```python
import torch

def _softmax(x, axis=-1):
    return torch.softmax(x, dim=axis)

def _gelu(x):
    return torch.nn.functional.gelu(x, approximate='tanh')

def _silu(x):
    return torch.nn.functional.silu(x)

def _sigmoid(x):
    return torch.sigmoid(x)

def _layernorm(x, axis=-1, eps=1e-05):
    m = x.mean(dim=axis, keepdim=True)
    v = x.var(dim=axis, keepdim=True, unbiased=False)
    return (x - m) / torch.sqrt(v + eps)

def _scatter_add(tgt, idx, src, axis=0):
    return tgt.clone().index_add_(axis, idx, src)

def _segment_sum(src, seg, n):
    out = torch.zeros((n,) + src.shape[1:], dtype=src.dtype)
    return out.index_add_(0, seg, src)

def _pad(x, pw):
    flat = tuple((v for pair in reversed(pw) for v in pair))
    return torch.nn.functional.pad(x, flat)
kernel_name = 'interleave_layers__linear_attn_block__memory_aug_recurrent_mem_tr__prompt'

def setup_inputs():

    _w = lambda a: (lambda t: t.to(torch.bfloat16) if t.is_floating_point() else t)(torch.as_tensor(a))

    def _A_setup():
        B, S, D = (1, 2048, 640)
        return {'x': _w((lambda *s: torch.randn(*s, dtype=torch.bfloat16) * 0.05)(B, S, D)), 'wqkv': _w((lambda *s: torch.randn(*s, dtype=torch.bfloat16) * 0.05)(D, 3 * D)), 'wo': _w((lambda *s: torch.randn(*s, dtype=torch.bfloat16) * 0.05)(D, D))}
    _A_in = _A_setup()

    def _B_setup():
        B, S, Dm = (1, 2048, 640)
        H, Dh = (32, 192)
        M, seg = (8, 32)
        seg = min(seg, S)
        S = S // seg * seg
        return {'x': _w((lambda *s: torch.randn(*s, dtype=torch.bfloat16) * 0.05)(B, S, Dm)), 'mem0': _w((lambda *s: torch.randn(*s, dtype=torch.bfloat16) * 0.8)(B, M, Dm)), 'Wq': _w((lambda *s: torch.randn(*s, dtype=torch.bfloat16) * 1.6)(Dm, H, Dh) * Dm ** (-0.5)), 'Wk': _w((lambda *s: torch.randn(*s, dtype=torch.bfloat16) * 1.6)(Dm, H, Dh) * Dm ** (-0.5)), 'Wv': _w((lambda *s: torch.randn(*s, dtype=torch.bfloat16) * 0.8)(Dm, H, Dh) * Dm ** (-0.5)), 'Wo': _w((lambda *s: torch.randn(*s, dtype=torch.bfloat16) * 0.8)(H, Dh, Dm) * (H * Dh) ** (-0.5)), 'seg_len': seg}
    _B_in = _B_setup()
    return {'A_x': _A_in['x'], 'A_wqkv': _A_in['wqkv'], 'A_wo': _A_in['wo'], 'B_x': _B_in['x'], 'B_mem0': _B_in['mem0'], 'B_Wq': _B_in['Wq'], 'B_Wk': _B_in['Wk'], 'B_Wv': _B_in['Wv'], 'B_Wo': _B_in['Wo'], 'B_seg_len': _B_in['seg_len']}

def reference(A_x, A_wqkv, A_wo, B_x, B_mem0, B_Wq, B_Wk, B_Wv, B_Wo, B_seg_len):

    def _A_ref(x, wqkv, wo):
        B, S, D = x.shape
        H = 32
        Dh = D // H
        qkv = (lambda x, *d: x.permute(*d))((x @ wqkv).reshape(B, S, 3, H, Dh), 2, 0, 3, 1, 4)
        q, k, v = (qkv[0], qkv[1], qkv[2])
        phi = lambda t: torch.where(t > 0, t + 1, torch.exp(t)) + 1e-06
        pq, pk = (phi(q), phi(k))
        kv = torch.einsum('bhsd,bhse->bhde', pk, v)
        z = torch.einsum('bhsd->bhd', pk)
        num = torch.einsum('bhqd,bhde->bhqe', pq, kv)
        den = torch.einsum('bhqd,bhd->bhq', pq, z)[..., None] + 1e-06
        o = num / den
        return (lambda x, *d: x.permute(*d))(o, 0, 2, 1, 3).reshape(B, S, D) @ wo

    def _B_ref(x, mem0, Wq, Wk, Wv, Wo, seg_len):
        B, S, Dm = x.shape
        H, Dh = (Wq.shape[1], Wq.shape[2])
        M = mem0.shape[1]
        scale = Dh ** (-0.5)
        n_seg = S // seg_len
        L = M + seg_len
        idx = torch.arange(L)
        mask = (idx[:, None] < M) | (idx[:, None] >= idx[None, :])
        mem = mem0
        outs = []
        for s in range(n_seg):
            xs = x[:, s * seg_len:(s + 1) * seg_len, :].clone()
            h = torch.concatenate([mem, xs], axis=1)
            q = torch.einsum('btd,dhe->bhte', h, Wq)
            k = torch.einsum('btd,dhe->bhte', h, Wk)
            v = torch.einsum('btd,dhe->bhte', h, Wv)
            scores = torch.einsum('bhqe,bhke->bhqk', q, k) * scale
            scores = torch.where(mask[None, None], scores, -1000000000.0)
            p = _softmax(scores, axis=-1)
            o = torch.einsum('bhqk,bhke->bhqe', p, v)
            o = torch.einsum('bhte,hed->btd', o, Wo)
            mem = o[:, :M, :].clone()
            outs.append(o[:, M:, :])
        return torch.concatenate(outs, axis=1)
    x = A_x
    x = x + _A_ref(_layernorm(x, axis=-1), A_wqkv, A_wo)
    x = x + _B_ref(_layernorm(x, axis=-1), B_mem0, B_Wq, B_Wk, B_Wv, B_Wo, B_seg_len)
    x = x + _A_ref(_layernorm(x, axis=-1), A_wqkv, A_wo)
    x = x + _B_ref(_layernorm(x, axis=-1), B_mem0, B_Wq, B_Wk, B_Wv, B_Wo, B_seg_len)
    return x
```

```python
import sys, math
sys.path.insert(0, "/code"); sys.path.insert(0, "tools")
from asmk import *
from lay import *

NSTEP = 64
SPIN = 400000
CSC = (192 ** -0.5) * math.log2(math.e)

class LQ:
    def __init__(self, k): self.k = k; self.q = []
    def ds(self, ins, tag=None):
        self.k(ins); self.q.append(tag)
        assert len(self.q) <= 15, "too many outstanding LDS ops"
    def wait(self, tag):
        idx = [i for i, t in enumerate(self.q) if t == tag]
        if not idx: return
        n = len(self.q) - 1 - idx[-1]
        self.k(f"s_waitcnt lgkmcnt({n})"); self.q = self.q[idx[-1] + 1:]
    def all(self):
        self.k("s_waitcnt lgkmcnt(0)"); self.q = []

def vr(b, n): return f"v[{b}:{b+n-1}]" if n > 1 else f"v{b}"
def ar(b, n): return f"a[{b}:{b+n-1}]"

def check_valid(k, regs, tmp):
    regs = list(regs)
    k(f"v_max3_u32 v{tmp}, v{regs[0]}, v{regs[1]}, v{regs[2]}")
    rest = regs[3:]
    while len(rest) >= 2:
        k(f"v_max3_u32 v{tmp}, v{tmp}, v{rest[0]}, v{rest[1]}"); rest = rest[2:]
    if rest: k(f"v_max_u32 v{tmp}, v{tmp}, v{rest[0]}")
    k(f"v_cmp_eq_u32 vcc, -1, v{tmp}")

S_WS = 4
SRD = 8
S_ROLE = 12; S_WAVE = 13; S_STEP = 14; S_SPIN = 15
S_EB0 = 16; S_EB1 = 17
S_SB = 18
S_SBN = 19
S_T = 20
S_M8 = 40
S_M2 = 42
S_KX = 44; S_KM = 45; S_Z = 46
S_ST = 50
srd = f"s[{SRD}:{SRD+3}]"

OWN = [[0, 1, 2], [3, 4, 5], [6, 7], [8, 9]]

def slot_base(k, dst, step_s, tmp):
    k(f"s_cmp_lt_u32 s{step_s}, 32")
    k(f"s_cselect_b32 s{dst}, s{S_EB0}, s{S_EB1}")
    k(f"s_and_b32 s{tmp}, s{step_s}, 31")
    k(f"s_lshl_b32 s{tmp}, s{tmp}, 16")
    k(f"s_add_u32 s{dst}, s{dst}, s{tmp}")

def stamp(k, cfg, n, real=False):
    if cfg.get('stamp'):
        k(f"s_mem{'real' if real else ''}time s[{S_ST+2*n}:{S_ST+2*n+1}]")

def stamp_flush(k, cfg, nst, base_off):
    if not cfg.get('stamp'): return
    k("s_waitcnt lgkmcnt(0)")
    sk = k.uniq('stk')
    k(f"s_cmp_lg_u32 s{S_ROLE}, {cfg.get('stamp_role', 0)}")
    k(f"s_cbranch_scc1 {k.ref(sk)}")
    k("s_mov_b64 s[30:31], exec")
    k("s_mov_b64 exec, 1")
    k(f"s_lshl_b32 s32, s{S_STEP}, 6")
    k(f"s_add_u32 s32, s32, {base_off}")
    k("v_mov_b32 v254, 0")
    for n in range(nst):
        k(f"v_mov_b32 v255, s{S_ST+2*n}")
        k(f"buffer_store_dword v255, v254, {srd}, s32 offen offset:{4*n}")
        k("s_nop 1")
    k("s_mov_b64 exec, s[30:31]")
    k.lab(sk)

def rt(k, cfg, n):
    if cfg.get('rt'):
        k(f"s_memrealtime s[{S_ST+2*n}:{S_ST+2*n+1}]")

def rt_flush(k, cfg, rolebase):
    if not cfg.get('rt'): return
    k("s_waitcnt lgkmcnt(0)")
    k("s_mov_b64 exec, 1")
    k(f"s_add_u32 s32, s{S_ROLE}, {rolebase}")
    k("s_lshl_b32 s32, s32, 6")
    k(f"s_add_u32 s32, s32, s{S_STEP}")
    k("s_lshl_b32 s32, s32, 4")
    k(f"s_add_u32 s32, s32, {cfg['rt']}")
    k("v_mov_b32 v255, 0")
    for n in range(3):
        k(f"v_mov_b32 v{252+n}, s{S_ST+2*n}")
    k(f"buffer_store_dwordx3 v[252:254], v255, {srd}, s32 offen")
    k("s_mov_b64 exec, -1")

def spin_check(k, bail):
    k(f"s_sub_u32 s{S_SPIN}, s{S_SPIN}, 1")
    k(f"s_cbranch_scc1 {bail}")

PL_NL = 15
PL_WL = 0
PL_MEMI = 4 * PL_NL * 2048
PL_QI = PL_MEMI + 10240
PL_STR = 400
PL_KI = PL_QI + 8 * PL_STR
PL_SP = PL_KI + 8 * PL_STR
PL_END = PL_SP + 4096

V_L16 = 1; V_IDX = 2; V_IW = 3; V_QR = 4; V_KR = 5; V_SPR = 6; V_PX = 7; V_PM = 8; V_KXO = 9
V_KML = 10; V_KMG = 11; V_MASKF = 12; V_WLA = 13; V_MIA = 14; V_SPW = 15
AF = 16; PD = 56; PDX = 80; PDM = 84; QF = 88; KXF = 100; TB = 116; PVW = 148

def p_plan(w):
    own = OWN[w]; rest = [ks for ks in range(10) if ks not in own]
    order1 = own + rest
    seq = [(T, ks) for ks in order1 for T in (0, 1, 2)] + [(T, ks) for T in (3, 4, 5) for ks in range(10)]
    ldspos = list(range(9, 30, 2)) + [44, 48, 52, 56]
    assert len(ldspos) == PL_NL
    where = {}
    regops = [i for i in range(60) if i not in ldspos]
    for n, i in enumerate(regops):
        where[seq[i]] = ('a', 8 * n) if n < 32 else ('v', PVW + 8 * (n - 32))
    assert PVW + 8 * (len(regops) - 32) <= 254
    for n, i in enumerate(ldspos): where[seq[i]] = ('l', n)
    return own, rest, seq, ldspos, where

def p_setup_lanes(k):
    k(f"v_lshlrev_b32 v{V_L16}, 4, v0")
    k("v_and_b32 v16, 8, v0")
    k("v_cmp_eq_u32 vcc, 0, v16")
    k("v_mov_b32 v17, 0xeeeeeeee")
    k("v_mov_b32 v18, 0x44444444")
    k(f"v_cndmask_b32 v{V_IDX}, v17, v18, vcc")

def gen_p_wave(k, w, cfg):
    own, rest, seq, ldspos, where = p_plan(w)
    L = lambda s: k.ref(f"p{w}_{s}")
    lab = lambda s: k.lab(f"p{w}_{s}")
    bail = k.ref('bail')
    lq = LQ(k)
    lab('start')
    k("v_lshrrev_b32 v16, 4, v0")
    k("v_and_b32 v17, 15, v0")
    k("v_and_b32 v18, 1, v16")
    k("v_lshlrev_b32 v18, 2, v18")
    k("v_lshrrev_b32 v19, 1, v16")
    k("v_lshl_add_u32 v18, v19, 1, v18")
    k(f"v_mul_u32_u24 v18, {PL_STR}, v18")
    k("v_lshl_add_u32 v18, v17, 1, v18")
    k(f"v_add_u32 v{V_IW}, {PL_QI + 96 * w}, v18")
    k("v_and_b32 v18, 7, v0")
    k(f"v_mul_u32_u24 v18, {PL_STR}, v18")
    k("v_lshrrev_b32 v19, 3, v0")
    k("v_lshl_add_u32 v18, v19, 4, v18")
    k(f"v_add_u32 v{V_QR}, {PL_QI}, v18")
    k("v_and_b32 v18, 7, v0")
    k(f"v_mul_u32_u24 v18, {PL_STR}, v18")
    k("v_lshl_add_u32 v18, v16, 5, v18")
    k(f"v_add_u32 v{V_KR}, {PL_KI}, v18")
    k("v_lshrrev_b32 v18, 1, v16")
    k("v_lshlrev_b32 v18, 10, v18")
    k("v_and_b32 v19, 31, v0")
    k("v_lshl_add_u32 v18, v19, 4, v18")
    k(f"v_add_u32 v{V_SPR}, {PL_SP + 4 * w}, v18")
    k(f"v_add_u32 v{V_SPW}, {PL_SP + 1024 * w}, v{V_L16}")
    k("v_lshrrev_b32 v18, 1, v16")
    k("v_lshlrev_b32 v18, 1, v18")
    k("v_lshrrev_b32 v19, 3, v17")
    k("v_add3_u32 v18, v18, v19, 1")
    k("v_lshrrev_b32 v19, 1, v18")
    k("v_lshlrev_b32 v19, 14, v19")
    k("v_and_b32 v18, 1, v18")
    k("v_lshl_add_u32 v18, v18, 12, v19")
    k("v_and_b32 v19, 1, v16")
    k("v_lshlrev_b32 v19, 4, v19")
    k(f"v_add_u32 v19, {32 * w}, v19")
    k(f"s_lshl_b32 s{S_T}, s{S_ROLE}, 7")
    k(f"v_add_u32 v{V_PM}, s{S_T}, v19")
    k(f"v_add_u32 v{V_PX}, v{V_PM}, v18")
    k(f"v_lshlrev_b32 v18, 4, v17")
    k("v_lshl_add_u32 v18, v16, 10, v18")
    k(f"v_add_u32 v{V_KXO}, {16 * (w & 1) * 16}, v18")
    k(f"v_add_u32 v18, {64 * w}, v0")
    k("v_mul_u32_u24 v19, 2731, v18")
    k("v_lshrrev_b32 v19, 16, v19")
    k("v_mul_u32_u24 v20, 24, v19")
    k("v_sub_u32 v20, v18, v20")
    k(f"v_mul_u32_u24 v21, {PL_STR}, v19")
    k("v_lshl_add_u32 v21, v20, 4, v21")
    k(f"v_add_u32 v{V_KML}, {PL_KI}, v21")
    k("v_lshlrev_b32 v21, 4, v19")
    k(f"v_lshl_add_u32 v{V_KMG}, v20, 7, v21")
    k("v_and_b32 v18, 0x28, v0")
    k("v_cmp_eq_u32 vcc, 0, v18")
    k("v_mov_b32 v18, 1.0")
    k("v_mov_b32 v19, 0")
    k(f"v_cndmask_b32 v{V_MASKF}, v19, v18, vcc")
    k(f"v_add_u32 v{V_WLA}, {PL_WL + w * PL_NL * 2048}, v{V_L16}")
    k(f"v_add_u32 v{V_MIA}, {PL_MEMI}, v{V_L16}")
    k(f"s_mul_i32 s{S_KX}, s{S_ROLE}, {KX_SH}")
    k(f"s_add_u32 s{S_KX}, s{S_KX}, {KX}")
    k(f"s_mul_i32 s{S_KM}, s{S_ROLE}, {KM_SH}")
    k(f"s_add_u32 s{S_KM}, s{S_KM}, {KM}")
    k(f"s_mul_i32 s{S_T}, s{S_ROLE}, 491520")
    k(f"s_add_u32 s{S_T}, s{S_T}, {WP + w * 122880}")
    def wload(dst, T, ks):
        idx = T * 10 + ks
        k(f"s_add_u32 s{S_T+1}, s{S_T}, {idx * 2048}")
        for hi in range(2):
            k(f"buffer_load_dwordx4 {dst(hi)}, v{V_L16}, {srd}, s{S_T+1} offen offset:{hi*1024}")
    lops = [(op, wh[1]) for op, wh in where.items() if wh[0] == 'l']
    rops = [(op, wh) for op, wh in where.items() if wh[0] != 'l']
    for (T, ks), slot in lops:
        wload(lambda hi: vr(16 + 8 * slot + 4 * hi, 4), T, ks)
    nre = 0
    for (T, ks), wh in rops[:16]:
        wload((lambda hi, wh=wh: (ar if wh[0] == 'a' else vr)(wh[1] + 4 * hi, 4)), T, ks)
    k("s_waitcnt vmcnt(32)")
    for (T, ks), slot in lops:
        for hi in range(2):
            k(f"ds_write_b128 v{V_WLA}, {vr(16 + 8 * slot + 4 * hi, 4)} offset:{slot * 2048 + hi * 1024}")
    for (T, ks), wh in rops[16:]:
        wload((lambda hi, wh=wh: (ar if wh[0] == 'a' else vr)(wh[1] + 4 * hi, 4)), T, ks)
    k("s_waitcnt lgkmcnt(0)")
    kxset = [0, 1] if w < 2 else [2]
    def kx_prefetch(step_s):
        k(f"s_mul_i32 s{S_T}, s{step_s}, {32 * KX_SH}")
        k(f"s_add_u32 s{S_T}, s{S_T}, s{S_KX}")
        for u, ks in enumerate(kxset):
            k(f"s_add_u32 s{S_T+1}, s{S_T}, {ks * 4096}")
            for hi in range(2):
                k(f"buffer_load_dwordx4 {vr(KXF + 8 * u + 4 * hi, 4)}, v{V_KXO}, {srd}, s{S_T+1} offen offset:{hi * 512}")
    def tb_read(n):
        for hi in range(2):
            lq.ds(f"ds_read_b128 {vr(TB + 8 * (n % 4) + 4 * hi, 4)}, v{V_WLA} offset:{n * 2048 + hi * 1024}", ('tb', n))
    def zero_d():
        for r in range(PD, PD + 32): k(f"v_mov_b32 v{r}, 0")
    k(f"s_mov_b32 s{S_STEP}, 0")
    kx_prefetch(S_STEP)
    zero_d()
    for n in range(4): tb_read(n)
    lq.all()
    lab('step')
    slot_base(k, S_SB, S_STEP, S_T)
    for u, ks in enumerate(own):
        k(f"s_add_u32 s{S_T+2+u}, s{S_SB}, {physmap(M_LOG + 1024 * ks)}")
    stamp(k, cfg, 0)
    lab('poll')
    for u, ks in enumerate(own):
        k(f"buffer_load_dwordx4 {vr(AF + 4 * ks, 4)}, v{V_L16}, {srd}, s{S_T+2+u} offen sc1")
    k("s_waitcnt vmcnt(0)")
    for ks in own:
        k(f"ds_write_b128 v{V_MIA}, {vr(AF + 4 * ks, 4)} offset:{ks * 1024}")
    check_valid(k, [AF + 4 * ks + j for ks in own for j in range(4)], QF)
    spin_check(k, bail)
    k(f"s_cbranch_vccnz {L('poll')}")
    lq.all()
    k("s_barrier")
    stamp(k, cfg, 1)
    if w == 0: rt(k, cfg, 0)
    for ks in rest:
        lq.ds(f"ds_read_b128 {vr(AF + 4 * ks, 4)}, v{V_MIA} offset:{ks * 1024}", ('af', ks))
    def post_tile(T, base):
        d = PD + 4 * T
        col = 32 * (T % 3)
        return [
            lambda: k(f"v_permlane32_swap_b32 v{d}, v{d+2}"),
            lambda: k(f"v_permlane32_swap_b32 v{d+1}, v{d+3}"),
            lambda: k(f"v_add_f32 v{d}, v{d}, v{d+2}"),
            lambda: k(f"v_add_f32 v{d+1}, v{d+1}, v{d+3}"),
            lambda: k(f"v_cvt_pk_bf16_f32 v{d}, v{d}, v{d+1}"),
            lambda: lq.ds(f"ds_write_b16 v{V_IW}, v{d} offset:{base + col}", ('img', T)),
            lambda: lq.ds(f"ds_write_b16_d16_hi v{V_IW}, v{d} offset:{base + col + PL_STR}", ('img', T)),
        ]
    side = {i: [] for i in range(60)}
    def put(items, start, per=2):
        i = start
        for it in items:
            while len(side[i]) >= per: i += 1
            side[i].append(it)
        return i
    KO = PL_KI - PL_QI
    e = put(post_tile(0, 0) + post_tile(1, 0) + post_tile(2, 0), 31)
    b1 = e + 2
    side[b1].append(lambda: (lq.wait(('img', 2)), k("s_barrier")))
    for ks in range(3):
        side[b1 + (ks > 0)].append(lambda ks=ks: lq.ds(f"ds_read_b128 {vr(QF + 4 * ks, 4)}, v{V_QR} offset:{ks * 128}", ('qf', ks)))
    put(post_tile(3, KO), b1 + 2)
    sx = b1 + 6
    def smx():
        lq.wait(('qf', 2))
        for u, ks in enumerate(kxset):
            k(f"v_smfmac_f32_16x16x64_bf16 {vr(PDX, 4)}, {vr(QF + 4 * ks, 4)}, {vr(KXF + 8 * u, 8)}, v{V_IDX}")
    side[sx].append(smx)
    put(post_tile(4, KO), 52)
    side[min(sx + 4, 58)].append(lambda: lq.ds(f"ds_write_b128 v{V_SPW}, {vr(PDX, 4)}", 'sp'))
    for i, (T, ks) in enumerate(seq):
        wh = where[(T, ks)]
        if i < 30 and ks in rest: lq.wait(('af', ks))
        if wh[0] == 'l':
            lq.wait(('tb', wh[1]))
            b = vr(TB + 8 * (wh[1] % 4), 8)
        else:
            b = (ar if wh[0] == 'a' else vr)(wh[1], 8)
        k(f"v_smfmac_f32_16x16x64_bf16 {vr(PD + 4 * T, 4)}, {vr(AF + 4 * ks, 4)}, {b}, v{V_IDX}")
        if wh[0] == 'l' and wh[1] + 4 < PL_NL:
            tb_read(wh[1] + 4)
        for it in side[i]: it()
        if i == 29: stamp(k, cfg, 2)
        if i == b1: stamp(k, cfg, 3)
    stamp(k, cfg, 4)
    k("s_nop 7")
    for it in post_tile(5, KO): it()
    lq.all()
    k("s_barrier")
    stamp(k, cfg, 5)
    KF = AF
    X0 = AF + 24
    lq.ds(f"ds_read2st64_b32 {vr(X0, 2)}, v{V_SPR} offset0:0 offset1:2", 'sp0')
    lq.ds(f"ds_read2st64_b32 {vr(X0 + 2, 2)}, v{V_SPR} offset0:8 offset1:10", 'sp1')
    for ks in range(3):
        for hi in range(2):
            lq.ds(f"ds_read_b128 {vr(KF + 8 * ks + 4 * hi, 4)}, v{V_KR} offset:{ks * 128 + hi * 16}", ('kf', ks))
    sx_, mx, t, u, sm, ex, em, tot = X0 + 4, X0 + 5, X0 + 6, X0 + 7, X0 + 8, X0 + 9, X0 + 10, X0 + 11
    lq.wait('sp1')
    k(f"v_add_f32 v{X0}, v{X0}, v{X0+1}")
    k(f"v_add_f32 v{X0+2}, v{X0+2}, v{X0+3}")
    k(f"v_add_f32 v{sx_}, v{X0}, v{X0+2}")
    k(f"v_mul_f32 v{sx_}, {hexf(CSC)}, v{sx_}")
    for ks in range(3):
        lq.wait(('kf', ks))
        k(f"v_smfmac_f32_16x16x64_bf16 {vr(PDM, 4)}, {vr(QF + 4 * ks, 4)}, {vr(KF + 8 * ks, 8)}, v{V_IDX}")
    stamp(k, cfg, 6)
    def dpp(op, dst, src, ctl):
        k(f"{op} v{dst}, v{src}, v{src} {ctl} row_mask:0xf bank_mask:0xf")
    dpp("v_max_f32_dpp", mx, sx_, "row_ror:8"); k("s_nop 1")
    dpp("v_max_f32_dpp", mx, mx, "row_ror:4"); k("s_nop 1")
    dpp("v_max_f32_dpp", mx, mx, "row_ror:2"); k("s_nop 1")
    dpp("v_max_f32_dpp", mx, mx, "row_ror:1")
    k(f"v_mov_b32 v{u}, v{mx}")
    k("s_nop 1")
    k(f"v_permlane32_swap_b32 v{mx}, v{u}")
    k(f"v_max_f32 v{mx}, v{mx}, v{u}")
    dm = PDM + w
    k(f"v_mov_b32 v{u}, v{dm}")
    k("s_nop 1")
    k(f"v_permlane32_swap_b32 v{dm}, v{u}")
    k(f"v_add_f32 v{sm}, v{dm}, v{u}")
    k(f"v_mul_f32 v{sm}, {hexf(CSC)}, v{sm}")
    k("s_nop 1")
    dpp("v_max_f32_dpp", t, sm, "row_ror:4"); k("s_nop 1")
    dpp("v_max_f32_dpp", t, t, "row_ror:2"); k("s_nop 1")
    dpp("v_max_f32_dpp", t, t, "row_ror:1")
    k(f"v_max_f32 v{mx}, v{mx}, v{t}")
    k(f"v_sub_f32 v{ex}, v{sx_}, v{mx}")
    k(f"v_sub_f32 v{em}, v{sm}, v{mx}")
    k(f"v_exp_f32 v{ex}, v{ex}")
    k(f"v_exp_f32 v{em}, v{em}")
    k("s_nop 0")
    k(f"v_fma_f32 v{tot}, v{em}, v{V_MASKF}, v{ex}")
    k("s_nop 1")
    dpp("v_add_f32_dpp", tot, tot, "row_ror:8"); k("s_nop 1")
    dpp("v_add_f32_dpp", tot, tot, "row_ror:4"); k("s_nop 1")
    dpp("v_add_f32_dpp", tot, tot, "row_ror:2"); k("s_nop 1")
    dpp("v_add_f32_dpp", tot, tot, "row_ror:1")
    k(f"v_mov_b32 v{u}, v{tot}")
    k("s_nop 1")
    k(f"v_permlane32_swap_b32 v{tot}, v{u}")
    k(f"v_add_f32 v{tot}, v{tot}, v{u}")
    k(f"v_rcp_f32 v{tot}, v{tot}")
    k("s_nop 0")
    k(f"v_mul_f32 v{ex}, v{ex}, v{tot}")
    k(f"v_mul_f32 v{em}, v{em}, v{tot}")
    ox, om = KF, KF + 4
    k("s_nop 0")
    k(f"v_mov_b32_dpp v{t}, v{ex} quad_perm:[1,0,3,2] row_mask:0xf bank_mask:0xf")
    k(f"v_mov_b32_dpp v{u}, v{em} quad_perm:[1,0,3,2] row_mask:0xf bank_mask:0xf")
    k(f"v_cvt_pk_bf16_f32 v{ox}, v{ex}, v{t}")
    k(f"v_cvt_pk_bf16_f32 v{om}, v{em}, v{u}")
    k("s_nop 0")
    for j in range(1, 4):
        k(f"v_mov_b32_dpp v{ox+j}, v{ox} row_shl:{2*j} row_mask:0xf bank_mask:0xf")
    for j in range(1, 4):
        k(f"v_mov_b32_dpp v{om+j}, v{om} row_shl:{2*j} row_mask:0xf bank_mask:0xf")
    k(f"s_mov_b64 exec, s[{S_M8}:{S_M8+1}]")
    k(f"buffer_store_dwordx4 {vr(ox, 4)}, v{V_PX}, {srd}, s{S_SB} offen sc1")
    k(f"s_mov_b64 exec, s[{S_M2}:{S_M2+1}]")
    k(f"buffer_store_dwordx4 {vr(om, 4)}, v{V_PM}, {srd}, s{S_SB} offen sc1")
    k("s_mov_b64 exec, -1")
    stamp(k, cfg, 7)
    stamp(k, cfg, 8, True)
    if w == 0: rt(k, cfg, 1)
    if w < 3:
        lq.ds(f"ds_read_b128 {vr(X0, 4)}, v{V_KML}", 'km')
    k(f"s_add_u32 s{S_T+8}, s{S_STEP}, 1")
    k(f"s_min_u32 s{S_T+8}, s{S_T+8}, {NSTEP-1}")
    kx_prefetch(S_T + 8)
    zero_d()
    if w < 3:
        lq.wait('km')
        k(f"s_mul_i32 s{S_T}, s{S_STEP}, {32 * KM_SH}")
        k(f"s_add_u32 s{S_T}, s{S_T}, s{S_KM}")
        k(f"buffer_store_dwordx4 {vr(X0, 4)}, v{V_KMG}, {srd}, s{S_T} offen")
    for n in range(4): tb_read(n)
    lq.all()
    if w == 0: rt_flush(k, cfg, 0)
    if w == cfg.get('stamp_wave', 0): stamp_flush(k, cfg, 9, cfg.get('stamp_p', 0))
    k(f"s_add_u32 s{S_STEP}, s{S_STEP}, 1")
    k(f"s_cmp_lt_u32 s{S_STEP}, {NSTEP}")
    k(f"s_cbranch_scc1 {L('step')}")
    k(f"s_branch {k.ref('end')}")

YL_MEMI = 0
YL_RED = 10240
YV_L16 = 1; YV_IDX = 2; YV_MIA = 3; YV_ZO = 4; YV_PO = 5; YV_RW = 6; YV_RR = 7; YV_MO = 8
YAF = 16; YD = 56; YZB = 72; YPF = 92; YACC = 112; YT = 116; YVW = 176

def gen_y_wave(k, w, cfg):
    own = OWN[w]; rest = [ks for ks in range(10) if ks not in own]
    L = lambda s: k.ref(f"y{w}_{s}")
    lab = lambda s: k.lab(f"y{w}_{s}")
    bail = k.ref('bail')
    lq = LQ(k)
    lab('start')
    k("v_lshrrev_b32 v16, 4, v0")
    k("v_and_b32 v17, 7, v0")
    k("v_lshrrev_b32 v18, 3, v0")
    k("v_and_b32 v18, 1, v18")
    k("v_lshl_add_u32 v19, v18, 2, v16")
    k(f"v_add_u32 v19, {8 * w}, v19")
    k("v_mul_u32_u24 v20, 640, v19")
    k(f"v_lshl_add_u32 v{YV_ZO}, v17, 4, v20")
    k("v_and_b32 v20, 3, v17")
    k("v_lshlrev_b32 v20, 1, v20")
    k("v_lshrrev_b32 v21, 2, v17")
    k("v_add_u32 v20, v20, v21")
    k("v_lshlrev_b32 v20, 4, v20")
    k(f"v_lshl_add_u32 v{YV_PO}, v19, 7, v20")
    k(f"v_add_u32 v{YV_MIA}, {YL_MEMI}, v{YV_L16}")
    k("v_lshlrev_b32 v20, 8, v18")
    k("v_lshl_add_u32 v20, v17, 5, v20")
    k("v_and_b32 v21, 1, v16")
    k("v_lshl_add_u32 v20, v21, 4, v20")
    k(f"v_add_u32 v20, {YL_RED + 512 * w}, v20")
    k(f"v_add_u32 v21, {YL_RED + 2048}, v{YV_L16}")
    k("v_lshrrev_b32 v22, 1, v16")
    k("v_cmp_eq_u32 vcc, v22, v18")
    k("s_nop 1")
    k(f"v_cndmask_b32 v{YV_RW}, v21, v20, vcc")
    k("v_lshrrev_b32 v20, 3, v0")
    k("v_lshlrev_b32 v20, 2, v20")
    k("v_lshl_add_u32 v20, v17, 5, v20")
    k(f"v_add_u32 v{YV_RR}, {YL_RED}, v20")
    k(f"s_lshl_b32 s{S_T}, s{S_ROLE}, 7")
    k(f"s_add_u32 s{S_T}, s{S_T}, {M_LOG}")
    k(f"s_lshr_b32 s{S_T+1}, s{S_T}, 13")
    k(f"s_lshl_b32 s{S_T+1}, s{S_T+1}, 14")
    k(f"s_and_b32 s{S_T}, s{S_T}, 8191")
    k(f"s_add_u32 s{S_T}, s{S_T}, s{S_T+1}")
    k("v_lshrrev_b32 v20, 3, v0")
    k("v_lshlrev_b32 v20, 4, v20")
    k(f"v_add_u32 v{YV_MO}, s{S_T}, v20")
    k(f"s_mul_i32 s{S_Z}, s{S_ROLE}, 20480")
    k(f"s_add_u32 s{S_Z}, s{S_Z}, {Z}")
    k(f"s_mul_i32 s{S_T}, s{S_ROLE}, 327680")
    k(f"s_add_u32 s{S_T}, s{S_T}, {WY + w * 81920}")
    def wreg(T, ks):
        n = T * 10 + ks
        return ('a', 8 * n) if n < 32 else ('v', YVW + 8 * (n - 32))
    for T in range(4):
        for ks in range(10):
            wh = wreg(T, ks)
            k(f"s_add_u32 s{S_T+1}, s{S_T}, {(T * 10 + ks) * 2048}")
            for hi in range(2):
                d = (ar if wh[0] == 'a' else vr)(wh[1] + 4 * hi, 4)
                k(f"buffer_load_dwordx4 {d}, v{YV_L16}, {srd}, s{S_T+1} offen offset:{hi*1024}")
    k(f"s_mov_b32 s{S_STEP}, 0")
    lab('step')
    slot_base(k, S_SB, S_STEP, S_T)
    k(f"s_mul_i32 s{S_T+8}, s{S_STEP}, {Z_SEG}")
    k(f"s_add_u32 s{S_T+8}, s{S_T+8}, s{S_Z}")
    for t in range(1, 5):
        k(f"buffer_load_dwordx4 {vr(YZB + 4 * t, 4)}, v{YV_ZO}, {srd}, s{S_T+8} offen offset:{t*128}")
    for r in range(YD, YD + 16): k(f"v_mov_b32 v{r}, 0")
    for u, ks in enumerate(own):
        k(f"s_add_u32 s{S_T+2+u}, s{S_SB}, {physmap(M_LOG + 1024 * ks)}")
    stamp(k, cfg, 0)
    lab('poll')
    for u, ks in enumerate(own):
        k(f"buffer_load_dwordx4 {vr(YAF + 4 * ks, 4)}, v{YV_L16}, {srd}, s{S_T+2+u} offen sc1")
    k("s_waitcnt vmcnt(0)")
    for ks in own:
        k(f"ds_write_b128 v{YV_MIA}, {vr(YAF + 4 * ks, 4)} offset:{ks * 1024}")
    check_valid(k, [YAF + 4 * ks + j for ks in own for j in range(4)], YT)
    spin_check(k, bail)
    k(f"s_cbranch_vccnz {L('poll')}")
    lq.all()
    k("s_barrier")
    stamp(k, cfg, 1)
    if w == 0: rt(k, cfg, 0)
    for ks in rest:
        lq.ds(f"ds_read_b128 {vr(YAF + 4 * ks, 4)}, v{YV_MIA} offset:{ks * 1024}", ('af', ks))
    for ks in own + rest:
        if ks in rest: lq.wait(('af', ks))
        for T in range(4):
            wh = wreg(T, ks)
            b = (ar if wh[0] == 'a' else vr)(wh[1], 8)
            k(f"v_smfmac_f32_16x16x64_bf16 {vr(YD + 4 * T, 4)}, {vr(YAF + 4 * ks, 4)}, {b}, v{YV_IDX}")
    k("s_nop 7")
    D = lambda T, r: YD + 4 * T + r
    for r in range(4):
        k(f"v_permlane32_swap_b32 v{D(0,r)}, v{D(2,r)}")
        k(f"v_permlane32_swap_b32 v{D(1,r)}, v{D(3,r)}")
    for r in range(4):
        k(f"v_add_f32 v{D(0,r)}, v{D(0,r)}, v{D(2,r)}")
        k(f"v_add_f32 v{D(1,r)}, v{D(1,r)}, v{D(3,r)}")
    k("s_nop 1")
    for r in range(4):
        k(f"v_permlane16_swap_b32 v{D(0,r)}, v{D(1,r)}")
    k("s_nop 1")
    k(f"v_cvt_pk_bf16_f32 v{YZB}, v{D(0,0)}, v{D(0,1)}")
    k(f"v_cvt_pk_bf16_f32 v{YZB+1}, v{D(0,2)}, v{D(0,3)}")
    k(f"v_cvt_pk_bf16_f32 v{YZB+2}, v{D(1,0)}, v{D(1,1)}")
    k(f"v_cvt_pk_bf16_f32 v{YZB+3}, v{D(1,2)}, v{D(1,3)}")
    k(f"buffer_store_dwordx4 {vr(YZB, 4)}, v{YV_ZO}, {srd}, s{S_T+8} offen")
    stamp(k, cfg, 2)
    k(f"s_cmp_eq_u32 s{S_STEP}, {NSTEP-1}")
    k(f"s_cbranch_scc1 {k.ref('end')}")
    for t in range(5):
        k(f"s_add_u32 s{S_T+10+t}, s{S_SB}, {physmap(t * 4096)}")
    k(f"s_add_u32 s{S_T+9}, s{S_STEP}, 1")
    slot_base(k, S_SBN, S_T + 9, S_T)
    lab('ppoll')
    for t in range(5):
        k(f"buffer_load_dwordx4 {vr(YPF + 4 * t, 4)}, v{YV_PO}, {srd}, s{S_T+10+t} offen sc1")
    k("s_waitcnt vmcnt(0)")
    for t in range(5):
        c = "0" if t == 0 else vr(YACC, 4)
        k(f"v_mfma_f32_16x16x32_bf16 {vr(YACC, 4)}, {vr(YPF + 4 * t, 4)}, {vr(YZB + 4 * t, 4)}, {c}")
    check_valid(k, range(YPF, YPF + 20), YT)
    spin_check(k, bail)
    k(f"s_cbranch_vccnz {L('ppoll')}")
    stamp(k, cfg, 3)
    if w == 0: rt(k, cfg, 1)
    lq.ds(f"ds_write_b128 v{YV_RW}, {vr(YACC, 4)}", 'rw')
    lq.all()
    k("s_barrier")
    if w == 0:
        for u in range(4):
            lq.ds(f"ds_read2st64_b32 {vr(YT + 2 * u, 2)}, v{YV_RR} offset0:{2*u} offset1:{2*u+1}", ('rr', u))
        lq.wait(('rr', 1))
        k(f"v_add_f32 v{YT}, v{YT}, v{YT+1}")
        k(f"v_add_f32 v{YT+2}, v{YT+2}, v{YT+3}")
        lq.wait(('rr', 3))
        k(f"v_add_f32 v{YT+4}, v{YT+4}, v{YT+5}")
        k(f"v_add_f32 v{YT+6}, v{YT+6}, v{YT+7}")
        k(f"v_add_f32 v{YT}, v{YT}, v{YT+2}")
        k(f"v_add_f32 v{YT+4}, v{YT+4}, v{YT+6}")
        k(f"v_add_f32 v{YT}, v{YT}, v{YT+4}")
        k("s_nop 1")
        k(f"v_mov_b32_dpp v{YT+1}, v{YT} quad_perm:[1,0,3,2] row_mask:0xf bank_mask:0xf")
        k(f"v_cvt_pk_bf16_f32 v{YT+8}, v{YT}, v{YT+1}")
        k("s_nop 1")
        for j in range(1, 4):
            k(f"v_mov_b32_dpp v{YT+8+j}, v{YT+8} row_shl:{2*j} row_mask:0xf bank_mask:0xf")
        k(f"s_mov_b64 exec, s[{S_M8}:{S_M8+1}]")
        k(f"buffer_store_dwordx4 {vr(YT + 8, 4)}, v{YV_MO}, {srd}, s{S_SBN} offen sc1")
        k("s_mov_b64 exec, -1")
        stamp(k, cfg, 4)
        rt(k, cfg, 2)
        rt_flush(k, cfg, 32)
        stamp_flush(k, cfg, 5, cfg.get('stamp_y', 0))
    k(f"s_add_u32 s{S_STEP}, s{S_STEP}, 1")
    k(f"s_branch {L('step')}")

def role_assign(k, cfg, slot):
    k("s_getreg_b32 s20, hwreg(HW_REG_XCC_ID)")
    k("s_and_b32 s20, s20, 7")
    if cfg.get('fake_xcc') is not None:
        k(f"s_and_b32 s20, s2, {cfg['fake_xcc']}")
    k(f"s_cmp_lg_u32 s{S_WAVE}, 0")
    k(f"s_cbranch_scc1 {k.ref('tk_wait')}")
    k("s_lshl_b32 s22, s20, 8")
    k(f"s_add_u32 s22, s22, {CT_TICK + slot * 2048}")
    k("s_mov_b64 exec, 1")
    k("v_mov_b32 v2, 0")
    k("v_mov_b32 v3, 1")
    k(f"buffer_atomic_add v3, v2, {srd}, s22 offen sc0 sc1")
    k("s_waitcnt vmcnt(0)")
    k("s_mov_b64 exec, -1")
    k("s_nop 0")
    k("v_readfirstlane_b32 s21, v3")
    k("s_cmp_lt_u32 s21, 32")
    k(f"s_cbranch_scc1 {k.ref('tk_pub')}")
    k("v_lshlrev_b32 v2, 8, v0")
    k("v_and_b32 v2, 0x7ff, v2")
    k(f"s_mov_b32 s22, {CT_TICK + slot * 2048}")
    k.lab('tk_poll')
    k(f"buffer_load_dword v3, v2, {srd}, s22 offen sc1")
    k("s_waitcnt vmcnt(0)")
    k("s_mov_b32 s23, 0")
    for x in range(8):
        k(f"v_readlane_b32 s{24+x}, v3, {x}")
        k("s_nop 0")
        k(f"s_add_u32 s23, s23, s{24+x}")
    spin_check(k, k.ref('bail'))
    k("s_cmp_lt_u32 s23, 256")
    k(f"s_cbranch_scc1 {k.ref('tk_poll')}")
    k("s_sub_u32 s21, s21, 32")
    for x in range(7):
        k(f"s_max_u32 s23, s{24+x}, 32")
        k("s_sub_u32 s23, s23, 32")
        k(f"s_cmp_gt_u32 s20, {x}")
        k("s_cselect_b32 s23, s23, 0")
        k("s_add_u32 s21, s21, s23")
    for x in range(8):
        k(f"s_min_u32 s23, s{24+x}, 32")
        k("s_sub_u32 s22, 32, s23")
        k("s_cmp_lt_u32 s21, s22")
        k(f"s_cbranch_scc0 {k.ref(f'tk_n{x}')}")
        k(f"s_mov_b32 s20, {x}")
        k("s_add_u32 s21, s21, s23")
        k(f"s_branch {k.ref('tk_pub')}")
        k.lab(f'tk_n{x}')
        k("s_sub_u32 s21, s21, s22")
    k(f"s_branch {k.ref('bail')}")
    k.lab('tk_pub')
    k("s_lshl_b32 s22, s20, 8")
    k("s_or_b32 s22, s22, s21")
    k("v_mov_b32 v2, 0")
    k("v_mov_b32 v3, s22")
    k("ds_write_b32 v2, v3")
    k("s_waitcnt lgkmcnt(0)")
    k.lab('tk_wait')
    k("s_barrier")
    k("v_mov_b32 v2, 0")
    k("ds_read_b32 v3, v2")
    k("s_waitcnt lgkmcnt(0)")
    k("v_readfirstlane_b32 s22, v3")
    k("s_barrier")
    k("s_lshr_b32 s20, s22, 8")
    k("s_and_b32 s21, s22, 255")

def build_chain(name, layer, cfg=None):
    cfg = cfg or {}
    k = K(name, vgpr=256, sgpr=100, agpr=256)
    k("s_cmp_ge_u32 s2, 256")
    k(f"s_cbranch_scc1 {k.ref('end')}")
    k.ptr(KA_WS, S_WS)
    k("v_lshrrev_b32 v1, 6, v0")
    k("v_and_b32 v0, 63, v0")
    k("s_nop 0")
    k(f"v_readfirstlane_b32 s{S_WAVE}, v1")
    k(f"s_mov_b32 s{S_SPIN}, {SPIN}")
    k("s_waitcnt lgkmcnt(0)")
    k.srd(SRD, S_WS, WS_BYTES)
    role_assign(k, cfg, layer)
    k(f"s_sub_u32 s22, 0, s{S_WS}")
    k("s_and_b32 s22, s22, 0x1fffff")
    k(f"s_mov_b32 s23, {CT_PAR + 8 * layer}")
    k(f"s_buffer_load_dwordx2 s[24:25], {srd}, s23")
    k("s_waitcnt lgkmcnt(0)")
    k("s_and_b32 s24, s24, 8192")
    k("s_and_b32 s25, s25, 8192")
    k(f"s_add_u32 s22, s22, {2 * layer * EX_BLOCK}")
    k(f"s_add_u32 s{S_EB0}, s22, s24")
    k(f"s_add_u32 s{S_EB1}, s22, s25")
    k(f"s_add_u32 s{S_EB1}, s{S_EB1}, {EX_BLOCK}")
    k(f"s_mov_b32 s{S_M8}, 0x01010101")
    k(f"s_mov_b32 s{S_M8+1}, 0x01010101")
    k(f"s_mov_b32 s{S_M2}, 0x00010001")
    k(f"s_mov_b32 s{S_M2+1}, 0")
    p_setup_lanes(k)
    k("s_cmp_eq_u32 s20, 0")
    k(f"s_cbranch_scc0 {k.ref('notp')}")
    k(f"s_mov_b32 s{S_ROLE}, s21")
    for w in range(4):
        k(f"s_cmp_eq_u32 s{S_WAVE}, {w}")
        k(f"s_cbranch_scc1 {k.ref(f'p{w}_start')}")
    k.lab('notp')
    k("s_cmp_ge_u32 s20, 4")
    k(f"s_cbranch_scc1 {k.ref('end')}")
    k("s_cmp_ge_u32 s21, 27")
    k(f"s_cbranch_scc1 {k.ref('end')}")
    k("s_sub_u32 s22, s20, 1")
    k("s_mul_i32 s22, s22, 27")
    k(f"s_add_u32 s{S_ROLE}, s22, s21")
    k(f"s_cmp_ge_u32 s{S_ROLE}, 80")
    k(f"s_cbranch_scc1 {k.ref('end')}")
    for w in range(4):
        k(f"s_cmp_eq_u32 s{S_WAVE}, {w}")
        k(f"s_cbranch_scc1 {k.ref(f'y{w}_start')}")
    k(f"s_branch {k.ref('end')}")
    for w in range(4): gen_p_wave(k, w, cfg)
    for w in range(4): gen_y_wave(k, w, cfg)
    k.lab('bail')
    k("s_mov_b64 exec, 1")
    k.ptr(KA_DBG, 6)
    k("s_waitcnt lgkmcnt(0)")
    k.srd(24, 6, 256)
    k("v_mov_b32 v1, 0xdead")
    k(f"v_mov_b32 v2, s{S_STEP}")
    k("v_mov_b32 v3, 0")
    k("buffer_store_dword v1, v3, s[24:27], 0 offen")
    k("buffer_store_dword v2, v3, s[24:27], 0 offen offset:4")
    k.lab('end')
    return k

if __name__ == "__main__":
    STP = 240 * MB
    ks = [build_chain("chain", 0, {}),
          build_chain("chainst", 0, {'stamp': True, 'stamp_p': STP, 'stamp_y': STP + 65536}),
          build_chain("chainrt", 0, {'rt': STP + MB})]
    launches = [(k_, 256, 256, PL_END) for k_ in ks]
    open("chain.s", "w").write(listfile(launches, ks))
    print("lds", PL_END)
```

```python
import sys

NAME = "interleave_layers__linear_attn_block__memory_aug_recurrent_mem_tr__prompt"
S, D = 2048, 640
H, DH, HD = 32, 192, 6144
NSEG, SEG, MEM = 64, 32, 8

KA_AX, KA_WQKV, KA_WOA, KA_BX, KA_MEM0, KA_WQ, KA_WK, KA_WV, KA_WO, KA_SEG, KA_OUT, KA_DBG, KA_WS = range(13)

WS_XN    = 0x00000000
WS_X1    = 0x00400000
WS_QA    = 0x00800000
WS_KVT   = 0x00C00000
WS_OA    = 0x01200000
WS_KVZ   = 0x01600000
WS_PQKVA = 0x01800000
WS_PWOA  = 0x01C00000
WS_PQ    = 0x02000000
WS_PK    = 0x02780000
WS_PV    = 0x02F00000
WS_PO    = 0x03800000
WS_QB    = 0x04000000
WS_KB    = 0x06000000
WS_VBT   = 0x08000000
WS_OB    = 0x0A000000
WS_KM    = 0x0C000000
WS_VMT   = 0x0C800000
WS_EX    = 0x0D000000
WS_BYTES = 268435456

import re
_BIGOFF = re.compile(r'^(buffer_\w+ .*?\], )(0 offen) offset:(\d+)(.*)$')
class K:
    def __init__(self, name, vgpr, sgpr, agpr=0, wgy=False):
        self.name = name + "_kernel"; self.L = []; self.vgpr = vgpr; self.sgpr = sgpr; self.agpr = agpr
    def __call__(self, s):
        m = _BIGOFF.match(s)
        if m and int(m.group(3)) > 4095:
            self.L.append(f"    s_mov_b32 s63, {m.group(3)}")
            s = m.group(1) + "s63 offen" + m.group(4)
        self.L.append("    " + s)
    def lab(self, l): self.L.append(f"{self.name}_{l}:")
    def ref(self, l): return f"{self.name}_{l}"
    def ptr(self, slot, s):
        self(f"s_load_dwordx2 s[{s}:{s+1}], s[0:1], {slot*8}")
    def srd(self, sd, sp, size, off=0):
        if off:
            self(f"s_add_u32 s{sd}, s{sp}, {off}")
            self(f"s_addc_u32 s{sd+1}, s{sp+1}, 0")
        else:
            self(f"s_mov_b32 s{sd}, s{sp}")
            self(f"s_mov_b32 s{sd+1}, s{sp+1}")
        self(f"s_mov_b32 s{sd+2}, {size}")
        self(f"s_mov_b32 s{sd+3}, 0x00020000")
    def text(self):
        acc = ((self.vgpr + 3) // 4) * 4
        nfv = acc + self.agpr if self.agpr else self.vgpr
        t = [".text", f".globl {self.name}", ".p2align 8", f".type {self.name},@function", f"{self.name}:"]
        t += self.L
        t += ["    s_endpgm", '.section .rodata,"a"', ".p2align 6", f".amdhsa_kernel {self.name}",
              f"  .amdhsa_next_free_vgpr {nfv}", f"  .amdhsa_next_free_sgpr {self.sgpr}",
              f"  .amdhsa_accum_offset {acc}", "  .amdhsa_group_segment_fixed_size 0",
              "  .amdhsa_kernarg_size 104", "  .amdhsa_user_sgpr_count 2",
              "  .amdhsa_user_sgpr_kernarg_segment_ptr 1", "  .amdhsa_system_sgpr_workgroup_id_x 1",
              ".end_amdhsa_kernel"]
        return "\n".join(t)

def magic(d, maxn):
    for sh in range(0, 32):
        m = -(-(1 << sh) // d)
        if m * maxn >= (1 << 32): break
        if all((n * m) >> sh == n // d for n in range(0, maxn + 1, func_step(maxn))) and all(((n * m) >> sh) == n // d for n in range(max(0,maxn-4096), maxn+1)):
            ok = all(((n*m)>>sh) == n//d for n in range(0, min(maxn+1, 70000)))
            if ok: return m, sh
    raise ValueError("no magic")
def func_step(n): return 1 if n < 70000 else 7

PACK = [
    (KA_WQKV, 640, 1920, WS_PQKVA),
    (KA_WOA, 640, 640, WS_PWOA),
    (KA_WQ, 640, 6144, WS_PQ),
    (KA_WK, 640, 6144, WS_PK),
    (KA_WV, 640, 6144, WS_PV),
    (KA_WO, 6144, 640, WS_PO),
]
EX_CLEAR_BYTES = 0x00510000
def k_pack():
    k = K("pack", vgpr=24, sgpr=40)
    blocks = [(kk // 32) * (n // 16) for _, kk, n, _ in PACK]
    total = sum(blocks)
    clear_waves = (EX_CLEAR_BYTES + 2 * 32 * 32 * 32 * 4) // (64 * 16)
    k("v_lshrrev_b32 v1, 6, v0")
    k("v_and_b32 v2, 63, v0")
    k("s_nop 0")
    k("v_readfirstlane_b32 s3, v1")
    k("s_lshl_b32 s4, s2, 2")
    k("s_add_u32 s4, s4, s3")
    k.ptr(KA_WS, 6)
    k("s_waitcnt lgkmcnt(0)")
    k.srd(8, 6, WS_BYTES)
    k(f"s_cmp_lt_u32 s4, {total}")
    k(f"s_cbranch_scc1 {k.ref('pk')}")
    k(f"s_cmp_ge_u32 s4, {total + clear_waves}")
    k(f"s_cbranch_scc1 {k.ref('end')}")
    k(f"s_sub_u32 s4, s4, {total}")
    k("s_lshl_b32 s5, s4, 10")
    k("v_lshlrev_b32 v3, 4, v2")
    k("v_add_u32 v3, s5, v3")
    k(f"v_add_u32 v4, {WS_EX}, v3")
    k(f"s_cmp_lt_u32 s5, {EX_CLEAR_BYTES}")
    k(f"s_cbranch_scc1 {k.ref('clr')}")
    k(f"v_add_u32 v4, {WS_KVZ - EX_CLEAR_BYTES}, v3")
    k.lab('clr')
    for i in range(4): k(f"v_mov_b32 v{8+i}, 0")
    k("buffer_store_dwordx4 v[8:11], v4, s[8:11], 0 offen")
    k(f"s_branch {k.ref('end')}")
    k.lab('pk')
    base = 0
    for idx, ((slot, kk, n, dst), nb) in enumerate(zip(PACK, blocks)):
        ks = kk // 32
        k(f"s_cmp_lt_u32 s4, {base + nb}")
        k(f"s_cbranch_scc0 {k.ref(f'nx{idx}')}")
        k(f"s_sub_u32 s4, s4, {base}")
        k.ptr(slot, 12)
        k(f"s_mov_b32 s20, {n}")
        k(f"s_mov_b32 s21, {ks}")
        k(f"s_mov_b32 s22, {dst}")
        k(f"s_mov_b32 s23, {kk * n * 2}")
        m, sh = magic(ks, nb)
        k(f"s_mul_i32 s24, s4, {m}")
        k(f"s_lshr_b32 s24, s24, {sh}")
        k(f"s_branch {k.ref('go')}")
        k.lab(f'nx{idx}')
        base += nb
    k(f"s_branch {k.ref('end')}")
    k.lab('go')
    k("s_waitcnt lgkmcnt(0)")
    k("s_mov_b32 s16, s12"); k("s_mov_b32 s17, s13"); k("s_mov_b32 s18, s23"); k("s_mov_b32 s19, 0x00020000")
    k("s_mul_i32 s25, s24, s21")
    k("s_sub_u32 s25, s4, s25")
    k("v_lshrrev_b32 v3, 4, v2")
    k("v_lshlrev_b32 v3, 3, v3")
    k("s_lshl_b32 s26, s25, 5")
    k("v_add_u32 v3, s26, v3")
    k("v_mul_lo_u32 v3, v3, s20")
    k("v_and_b32 v4, 15, v2")
    k("s_lshl_b32 s27, s24, 4")
    k("v_add3_u32 v3, v3, v4, s27")
    k("v_lshlrev_b32 v3, 1, v3")
    k("s_lshl_b32 s28, s20, 1")
    k("s_mov_b32 s29, 0")
    for j in range(8):
        k(f"buffer_load_ushort v{12 + j}, v3, s[16:19], s29 offen")
        if j < 7: k("s_add_u32 s29, s29, s28")
    k("s_lshl_b32 s5, s4, 10")
    k("s_add_u32 s5, s5, s22")
    k("v_lshlrev_b32 v5, 4, v2")
    k("v_add_u32 v5, s5, v5")
    k("s_waitcnt vmcnt(0)")
    for j in range(4): k(f"v_lshl_or_b32 v{8+j}, v{13+2*j}, 16, v{12+2*j}")
    k("buffer_store_dwordx4 v[8:11], v5, s[8:11], 0 offen")
    k.lab('end')
    nwg = (total + clear_waves + 3) // 4
    return k, nwg

def wave_sum(k, v, tmp, s0):
    k("s_nop 1")
    k(f"v_add_f32 v{tmp}, v{v}, v{v} quad_perm:[1,0,3,2] row_mask:0xf bank_mask:0xf")
    k("s_nop 1")
    k(f"v_add_f32 v{tmp}, v{tmp}, v{tmp} quad_perm:[2,3,0,1] row_mask:0xf bank_mask:0xf")
    k("s_nop 1")
    k(f"v_add_f32 v{tmp}, v{tmp}, v{tmp} row_half_mirror row_mask:0xf bank_mask:0xf")
    k("s_nop 1")
    k(f"v_add_f32 v{tmp}, v{tmp}, v{tmp} row_mirror row_mask:0xf bank_mask:0xf")
    k("s_nop 1")
    for i in range(4): k(f"v_readlane_b32 s{s0+i}, v{tmp}, {16*i}")
    k("s_nop 1")
    k(f"v_mov_b32 v{v}, s{s0}")
    for i in range(1, 4): k(f"v_add_f32 v{v}, s{s0+i}, v{v}")

def k_ln(name, src_slot, src_off):
    k = K(name, vgpr=32, sgpr=40)
    k("v_lshrrev_b32 v1, 6, v0")
    k("v_and_b32 v2, 63, v0")
    k("s_nop 0")
    k("v_readfirstlane_b32 s3, v1")
    k("s_lshl_b32 s4, s2, 2")
    k("s_add_u32 s4, s4, s3")
    k(f"s_cmp_ge_u32 s4, {S}")
    k(f"s_cbranch_scc1 {k.ref('end')}")
    k.ptr(src_slot, 6); k.ptr(KA_WS, 12)
    k("s_waitcnt lgkmcnt(0)")
    k.srd(8, 6, S * D * 2, src_off)
    k.srd(16, 12, S * D * 2, WS_XN)
    k(f"s_mul_i32 s5, s4, {D*2}")
    k("v_lshlrev_b32 v3, 2, v2")
    k("v_add_u32 v3, s5, v3")
    for j in range(5): k(f"buffer_load_dword v{4+j}, v3, s[8:11], 0 offen offset:{j*256}")
    k("s_waitcnt vmcnt(0)")
    for j in range(5):
        k(f"v_lshlrev_b32 v{10+2*j}, 16, v{4+j}")
        k(f"v_and_b32 v{11+2*j}, 0xffff0000, v{4+j}")
    k("v_add_f32 v20, v10, v11")
    for j in range(2, 10): k(f"v_add_f32 v20, v20, v{10+j}")
    wave_sum(k, 20, 21, 24)
    k(f"v_mul_f32 v20, {1.0/D!r}, v20")
    for j in range(10): k(f"v_sub_f32 v{10+j}, v{10+j}, v20")
    k("v_mul_f32 v21, v10, v10")
    for j in range(1, 10): k(f"v_fmac_f32 v21, v{10+j}, v{10+j}")
    wave_sum(k, 21, 22, 24)
    k(f"v_mov_b32 v22, 0x3727c5ac")
    k(f"v_fmac_f32 v22, {1.0/D!r}, v21")
    k("v_rsq_f32 v22, v22")
    k("s_nop 0")
    for j in range(10): k(f"v_mul_f32 v{10+j}, v{10+j}, v22")
    for j in range(5):
        k(f"v_cvt_pk_bf16_f32 v{4+j}, v{10+2*j}, v{11+2*j}")
    for j in range(5): k(f"buffer_store_dword v{4+j}, v3, s[16:19], 0 offen offset:{j*256}")
    k.lab('end')
    return k, S // 4

def k_gemm(name, M, N, Kd, a_off, lda, w_off, TM, TN, epi, ksplit=1, w_nt0=0):
    KS = Kd // 32
    nacc = TM * TN * 4
    nfr = (TM + TN) * 4
    VB = 16
    vgpr = VB + 2 * nfr + 24
    k = K(name, vgpr=vgpr, sgpr=64, agpr=nacc)
    mjobs = M // (16 * TM); njobs = N // (16 * TN)
    assert M % (16 * TM) == 0 and N % (16 * TN) == 0
    if ksplit == 1:
        assert mjobs % 4 == 0
        nwg = (mjobs // 4) * njobs
    else:
        assert ksplit == 4 and KS % 4 == 0
        nwg = mjobs * njobs
    kper = KS // ksplit
    k("v_lshrrev_b32 v1, 6, v0")
    k("v_and_b32 v2, 63, v0")
    k("s_nop 0")
    k("v_readfirstlane_b32 s3, v1")
    k(f"s_cmp_ge_u32 s2, {nwg}")
    k(f"s_cbranch_scc1 {k.ref('end')}")
    k.ptr(KA_WS, 4)
    k.ptr(KA_OUT, 6)
    if epi.get('res_in'): k.ptr(epi['res_slot'], 42)
    m, sh = magic(njobs, nwg)
    k(f"s_mul_i32 s20, s2, {m}")
    k(f"s_lshr_b32 s20, s20, {sh}")
    k(f"s_mul_i32 s21, s20, {njobs}")
    k("s_sub_u32 s21, s2, s21")
    if ksplit == 1:
        k("s_lshl_b32 s20, s20, 2")
        k("s_add_u32 s20, s20, s3")
    k(f"s_mul_i32 s22, s20, {16*TM}")
    k(f"s_mul_i32 s23, s21, {16*TN}")
    k("s_waitcnt lgkmcnt(0)")
    k.srd(8, 4, WS_BYTES)
    k("v_and_b32 v3, 15, v2")
    k("v_lshrrev_b32 v4, 4, v2")
    k(f"s_mov_b32 s24, {lda}")
    k("v_add_u32 v5, s22, v3")
    k("v_mul_lo_u32 v5, v5, s24")
    k("v_lshlrev_b32 v6, 4, v4")
    k("v_add_u32 v5, v5, v6")
    k(f"v_add_u32 v5, {a_off}, v5")
    assert TM <= 8
    for i in range(TM):
        if i == 0: k("v_mov_b32 v8, v5")
        else: k(f"v_add_u32 v{8+i}, {16*lda*i}, v5")
    k("v_lshlrev_b32 v7, 4, v2")
    if ksplit == 1:
        k("s_mov_b32 s25, 0")
        k("s_mov_b32 s26, 0")
    else:
        k(f"s_mul_i32 s26, s3, {kper*1024}")
        k(f"s_mul_i32 s25, s3, {kper*64}")
    k(f"s_mul_i32 s27, s21, {TN*KS*1024}")
    k("s_add_u32 s27, s27, s26")
    wbase = w_off + w_nt0 * KS * 1024
    k(f"s_add_u32 s27, s27, {wbase}")
    for j in range(TN):
        k(f"s_add_u32 s{32+j}, s27, {j*KS*1024}")
    for i in range(nacc): k(f"v_accvgpr_write_b32 a{i}, 0")
    def loads(st):
        b = VB + st * nfr
        for i in range(TM):
            k(f"buffer_load_dwordx4 v[{b+4*i}:{b+4*i+3}], v{8+i}, s[8:11], s25 offen")
        for j in range(TN):
            r = b + 4 * TM + 4 * j
            k(f"buffer_load_dwordx4 v[{r}:{r+3}], v7, s[8:11], s{32+j} offen")
    def adv():
        k("s_add_u32 s25, s25, 64")
        for j in range(TN): k(f"s_add_u32 s{32+j}, s{32+j}, 1024")
    def mfmas(st):
        b = VB + st * nfr
        for j in range(TN):
            for i in range(TM):
                a = (i * TN + j) * 4
                fa = f"v[{b+4*i}:{b+4*i+3}]"; fw = f"v[{b+4*TM+4*j}:{b+4*TM+4*j+3}]"
                if epi_normal(epi, j):
                    k(f"v_mfma_f32_16x16x32_bf16 a[{a}:{a+3}], {fa}, {fw}, a[{a}:{a+3}]")
                else:
                    k(f"v_mfma_f32_16x16x32_bf16 a[{a}:{a+3}], {fw}, {fa}, a[{a}:{a+3}]")
    def epi_normal(epi, j):
        return False
    def body(normal):
        nonlocal epi_normal
        epi_normal = (lambda e, j: normal)
        loads(0)
        assert kper % 2 == 0
        k(f"s_mov_b32 s28, {kper // 2}")
        lp = f"loop{int(normal)}"
        k.lab(lp)
        adv(); loads(1)
        k(f"s_waitcnt vmcnt({TM+TN})")
        mfmas(0)
        k("s_sub_u32 s28, s28, 1")
        k("s_cmp_eq_u32 s28, 0")
        k(f"s_cbranch_scc1 {k.ref(lp+'_last')}")
        adv(); loads(0)
        k(f"s_waitcnt vmcnt({TM+TN})")
        mfmas(1)
        k(f"s_branch {k.ref(lp)}")
        k.lab(lp + '_last')
        k("s_waitcnt vmcnt(0)")
        mfmas(1)
    kind = epi['kind']
    E0 = VB + 2 * nfr
    def ksplit_reduce():
        if ksplit == 1: return
        k("s_nop 7"); k("s_nop 7")
        k("v_lshlrev_b32 v5, 4, v2")
        k("s_cmp_eq_u32 s3, 0")
        k(f"s_cbranch_scc1 {k.ref('red0')}")
        k("s_sub_u32 s29, s3, 1")
        k(f"s_mul_i32 s29, s29, {TM*TN*1024}")
        k("v_add_u32 v5, s29, v5")
        for t in range(TM * TN):
            for r in range(4): k(f"v_accvgpr_read_b32 v{E0+r}, a{4*t+r}")
            k(f"ds_write_b128 v5, v[{E0}:{E0+3}] offset:{t*1024}")
        k("s_waitcnt lgkmcnt(0)")
        k("s_barrier")
        k(f"s_branch {k.ref('end')}")
        k.lab('red0')
        k("s_barrier")
        for t in range(TM * TN):
            for w in range(3):
                k(f"ds_read_b128 v[{E0+4*w}:{E0+4*w+3}], v5 offset:{(w*TM*TN+t)*1024}")
            k("s_waitcnt lgkmcnt(0)")
            for r in range(4):
                k(f"v_accvgpr_read_b32 v{E0+12+r}, a{4*t+r}")
            for r in range(4):
                k(f"v_add_f32 v{E0+12+r}, v{E0+12+r}, v{E0+r}")
                k(f"v_add_f32 v{E0+4+r}, v{E0+4+r}, v{E0+8+r}")
                k(f"v_add_f32 v{E0+12+r}, v{E0+12+r}, v{E0+4+r}")
                k(f"v_accvgpr_write_b32 a{4*t+r}, v{E0+12+r}")
    def epi_T_store(i, j, base_v, ldc_bytes, imm_extra=0):
        pass
    if kind == 'res':
        body(False)
        ksplit_reduce()
        k("s_nop 7"); k("s_nop 7")
        to_out = epi.get('to_out', False)
        if to_out: k.srd(12, 6, S * D * 2)
        rs = "s[8:11]"
        if epi.get('res_in'):
            k.srd(44, 42, S * D * 2); rs = "s[44:47]"
        k(f"s_mov_b32 s24, {N*2}")
        k("v_add_u32 v5, s22, v3")
        k("v_mul_lo_u32 v5, v5, s24")
        k("v_lshlrev_b32 v6, 3, v4")
        k("s_lshl_b32 s29, s23, 1")
        k("v_add3_u32 v5, v5, v6, s29")
        for i in range(TM):
            for j in range(TN):
                a = (i * TN + j) * 4
                off = i * 16 * N * 2 + j * 32
                k(f"v_add_u32 v6, {off + epi['res_off']}, v5")
                k(f"buffer_load_dwordx2 v[{E0}:{E0+1}], v6, {rs}, 0 offen")
                for r in range(4): k(f"v_accvgpr_read_b32 v{E0+4+r}, a{a+r}")
                k(f"v_cvt_pk_bf16_f32 v{E0+8}, v{E0+4}, v{E0+5}")
                k(f"v_cvt_pk_bf16_f32 v{E0+9}, v{E0+6}, v{E0+7}")
                k("s_waitcnt vmcnt(0)")
                for h in range(2):
                    k(f"v_lshlrev_b32 v{E0+4+2*h}, 16, v{E0+8+h}")
                    k(f"v_and_b32 v{E0+5+2*h}, 0xffff0000, v{E0+8+h}")
                    k(f"v_lshlrev_b32 v{E0+10}, 16, v{E0+h}")
                    k(f"v_and_b32 v{E0+11}, 0xffff0000, v{E0+h}")
                    k(f"v_add_f32 v{E0+4+2*h}, v{E0+4+2*h}, v{E0+10}")
                    k(f"v_add_f32 v{E0+5+2*h}, v{E0+5+2*h}, v{E0+11}")
                k(f"v_cvt_pk_bf16_f32 v{E0+8}, v{E0+4}, v{E0+5}")
                k(f"v_cvt_pk_bf16_f32 v{E0+9}, v{E0+6}, v{E0+7}")
                if to_out:
                    k(f"v_add_u32 v6, {off}, v5")
                    k(f"buffer_store_dwordx2 v[{E0+8}:{E0+9}], v6, s[12:15], 0 offen")
                else:
                    k(f"v_add_u32 v6, {off + epi['out_off']}, v5")
                    k(f"buffer_store_dwordx2 v[{E0+8}:{E0+9}], v6, s[8:11], 0 offen")
    elif kind in ('qkvA', 'qkvB'):
        nsplit = 640 if kind == 'qkvA' else 2 * HD
        assert nsplit % (16 * TN) == 0
        k(f"s_cmp_ge_u32 s23, {nsplit}")
        k(f"s_cbranch_scc1 {k.ref('nrm')}")
        body(False)
        k("s_nop 7"); k("s_nop 7")
        if kind == 'qkvA':
            ncols = 640
            k(f"s_mov_b32 s24, {ncols*2}")
            k("s_lshl_b32 s29, s23, 1")
            k(f"s_add_u32 s29, s29, {WS_QA}")
        else:
            ncols = HD
            k(f"s_mov_b32 s24, {ncols*2}")
            k(f"s_mov_b32 s31, {WS_KB - HD*2}")
            k(f"s_cmp_lt_u32 s23, {HD}")
            k(f"s_cselect_b32 s30, {WS_QB}, s31")
            k("s_lshl_b32 s29, s23, 1")
            k("s_add_u32 s29, s29, s30")
        k("v_add_u32 v5, s22, v3")
        k("v_mul_lo_u32 v5, v5, s24")
        k("v_lshlrev_b32 v6, 3, v4")
        k("v_add3_u32 v5, v5, v6, s29")
        for i in range(TM):
            for j in range(TN):
                a = (i * TN + j) * 4
                off = i * 16 * ncols * 2 + j * 32
                for r in range(4): k(f"v_accvgpr_read_b32 v{E0+4+r}, a{a+r}")
                k(f"v_cvt_pk_bf16_f32 v{E0+8}, v{E0+4}, v{E0+5}")
                k(f"v_cvt_pk_bf16_f32 v{E0+9}, v{E0+6}, v{E0+7}")
                k(f"v_add_u32 v6, {off}, v5")
                k(f"buffer_store_dwordx2 v[{E0+8}:{E0+9}], v6, s[8:11], 0 offen")
        k(f"s_branch {k.ref('end')}")
        k.lab('nrm')
        body(True)
        k("s_nop 7"); k("s_nop 7")
        if kind == 'qkvA':
            k(f"s_sub_u32 s29, s23, 640")
            k("v_add_u32 v5, s29, v3")
            k("v_lshlrev_b32 v5, 11, v5")
            k("v_lshlrev_b32 v6, 2, v4")
            k("v_add3_u32 v5, v5, v6, s22")
            k("v_lshlrev_b32 v5, 1, v5")
            k(f"v_add_u32 v5, {WS_KVT}, v5")
            joff = lambda i, j: (16 * j * 2048 + 16 * i) * 2
        else:
            assert TM % 2 == 0
            k(f"s_sub_u32 s29, s23, {2*HD}")
            k("v_add_u32 v5, s29, v3")
            k("v_lshlrev_b32 v5, 5, v5")
            k("v_lshlrev_b32 v6, 2, v4")
            k("v_add_u32 v5, v5, v6")
            k("s_lshr_b32 s30, s22, 5")
            k(f"s_mul_i32 s30, s30, {HD*32}")
            k("v_add_u32 v5, s30, v5")
            k("v_lshlrev_b32 v5, 1, v5")
            k(f"v_add_u32 v5, {WS_VBT}, v5")
            joff = lambda i, j: ((i // 2) * HD * 32 + 16 * j * 32 + 16 * (i % 2)) * 2
        for i in range(TM):
            for j in range(TN):
                a = (i * TN + j) * 4
                for r in range(4): k(f"v_accvgpr_read_b32 v{E0+4+r}, a{a+r}")
                k(f"v_cvt_pk_bf16_f32 v{E0+8}, v{E0+4}, v{E0+5}")
                k(f"v_cvt_pk_bf16_f32 v{E0+9}, v{E0+6}, v{E0+7}")
                k(f"v_add_u32 v6, {joff(i, j)}, v5")
                k(f"buffer_store_dwordx2 v[{E0+8}:{E0+9}], v6, s[8:11], 0 offen")
    k.lab('end')
    lds = 3 * TM * TN * 1024 if ksplit > 1 else 0
    return k, nwg, lds


LOG2E = 1.4426950408889634
def emit_phi(k, dst, src, tmp):
    k(f"v_mul_f32 v{tmp}, {LOG2E!r}, v{src}")
    k(f"v_exp_f32 v{tmp}, v{tmp}")
    k(f"v_add_f32 v{dst}, 1.0, v{src}")
    k(f"v_cmp_lt_f32 vcc, 0, v{src}")
    k("s_nop 1")
    k(f"v_cndmask_b32 v{dst}, v{tmp}, v{dst}, vcc")
    k(f"v_add_f32 v{dst}, 0x358637bd, v{dst}")

def k_kvz(name, layer):
    k = K(name, vgpr=64, sgpr=40, agpr=16)
    k("v_lshrrev_b32 v1, 6, v0")
    k("v_and_b32 v2, 63, v0")
    k("s_nop 0")
    k("v_readfirstlane_b32 s3, v1")
    k("s_lshl_b32 s4, s2, 2")
    k("s_add_u32 s4, s4, s3")
    k("s_cmp_ge_u32 s4, 512")
    k(f"s_cbranch_scc1 {k.ref('end')}")
    k.ptr(KA_WS, 6)
    k("s_waitcnt lgkmcnt(0)")
    k.srd(8, 6, WS_BYTES)
    k("s_lshr_b32 s5, s4, 4")
    k("s_and_b32 s12, s4, 15")
    k("s_mul_i32 s13, s5, 20")
    k("v_and_b32 v3, 15, v2")
    k("v_lshrrev_b32 v4, 4, v2")
    k("s_lshl_b32 s14, s12, 7")
    k("v_lshlrev_b32 v5, 3, v4")
    k("v_add_u32 v5, s14, v5")
    for t in range(2):
        k(f"v_add_u32 v{6+t}, {16*t}, v3")
        k(f"v_min_u32 v{8+t}, 19, v{6+t}")
        k(f"v_add_u32 v{8+t}, s13, v{8+t}")
        k(f"v_lshlrev_b32 v{8+t}, 11, v{8+t}")
        k(f"v_add_u32 v{8+t}, v{8+t}, v5")
        k(f"v_lshlrev_b32 v{8+t}, 1, v{8+t}")
        k(f"v_add_u32 v{8+t}, {WS_KVT}, v{8+t}")
        k(f"v_add_u32 v{10+t}, {640*2048*2}, v{8+t}")
    for i in range(16): k(f"v_accvgpr_write_b32 a{i}, 0")
    k("v_cmp_gt_u32 s[16:17], 20, v7")
    k("v_cmp_eq_u32 s[18:19], 20, v7")
    for ks in range(4):
        for t in range(2):
            k(f"buffer_load_dwordx4 v[{16+4*t}:{19+4*t}], v{8+t}, s[8:11], 0 offen offset:{ks*64}")
            k(f"buffer_load_dwordx4 v[{24+4*t}:{27+4*t}], v{10+t}, s[8:11], 0 offen offset:{ks*64}")
        k("s_waitcnt vmcnt(0)")
        for r in range(8):
            k(f"v_lshlrev_b32 v32, 16, v{16+r}")
            k(f"v_and_b32 v33, 0xffff0000, v{16+r}")
            emit_phi(k, 34, 32, 36)
            emit_phi(k, 35, 33, 36)
            k(f"v_cvt_pk_bf16_f32 v{16+r}, v34, v35")
        k("v_mov_b32 v37, 0x3f803f80")
        for r in range(4):
            k(f"v_cndmask_b32 v{20+r}, 0, v{20+r}, s[16:17]")
            k(f"v_cndmask_b32 v{28+r}, 0, v{28+r}, s[16:17]")
            k(f"v_cndmask_b32 v{28+r}, v{28+r}, v37, s[18:19]")
        k("s_nop 1")
        for te in range(2):
            for td in range(2):
                a = (te * 2 + td) * 4
                k(f"v_mfma_f32_16x16x32_bf16 a[{a}:{a+3}], v[{24+4*te}:{27+4*te}], v[{16+4*td}:{19+4*td}], a[{a}:{a+3}]")
    k("s_nop 7"); k("s_nop 7")
    k("v_lshlrev_b32 v5, 2, v4")
    k("v_lshlrev_b32 v5, 5, v5")
    k("v_add_u32 v5, v5, v3")
    k("v_lshlrev_b32 v5, 2, v5")
    k("s_lshl_b32 s14, s5, 12")
    k(f"s_add_u32 s14, s14, {WS_KVZ + layer * 32 * 4096}")
    k("v_add_u32 v5, s14, v5")
    for te in range(2):
        for td in range(2):
            a = (te * 2 + td) * 4
            for i in range(4):
                k(f"v_accvgpr_read_b32 v{40+i}, a{a+i}")
            for i in range(4):
                k(f"buffer_atomic_add_f32 v{40+i}, v5, s[8:11], 0 offen offset:{(16*te+i)*128 + td*64}")
    k.lab('end')
    return k, 128

def k_attn_a(name, layer):
    k = K(name, vgpr=96, sgpr=40)
    k(f"s_cmp_ge_u32 s2, {S*32//256}")
    k(f"s_cbranch_scc1 {k.ref('end')}")
    k.ptr(KA_WS, 6)
    k("s_waitcnt lgkmcnt(0)")
    k.srd(8, 6, WS_BYTES)
    k("v_mov_b32 v1, v0")
    for it in range(21):
        k(f"v_add_u32 v2, {it*256}, v1")
        m, sh = magic(168, 5376)
        k(f"s_mov_b32 s12, {m}")
        k("v_mul_lo_u32 v3, v2, s12")
        k(f"v_lshrrev_b32 v3, {sh}, v3")
        k("v_mul_u32_u24 v4, 168, v3")
        k("v_sub_u32 v4, v2, v4")
        k("v_lshlrev_b32 v5, 12, v3")
        k("v_lshlrev_b32 v6, 4, v4")
        k("v_add_u32 v5, v5, v6")
        k(f"v_add_u32 v5, {WS_KVZ + layer*32*4096}, v5")
        k(f"buffer_load_dwordx4 v[8:11], v5, s[8:11], 0 offen")
        k("v_mul_u32_u24 v7, 2688, v3")
        k("v_add_u32 v7, v7, v6")
        k("s_waitcnt vmcnt(0)")
        k("ds_write_b128 v7, v[8:11]")
    k("s_waitcnt lgkmcnt(0)")
    k("s_barrier")
    k("v_and_b32 v2, 31, v0")
    k("v_lshrrev_b32 v3, 5, v0")
    k("s_lshl_b32 s12, s2, 3")
    k("v_add_u32 v3, s12, v3")
    k("v_mul_u32_u24 v4, 1280, v3")
    k("v_mul_u32_u24 v5, 40, v2")
    k("v_add_u32 v4, v4, v5")
    k(f"v_add_u32 v6, {WS_QA}, v4")
    for j in range(5): k(f"buffer_load_dwordx2 v[{8+2*j}:{9+2*j}], v6, s[8:11], 0 offen offset:{8*j}")
    k("s_waitcnt vmcnt(0)")
    for j in range(10):
        k(f"v_lshlrev_b32 v40, 16, v{8+j}")
        k(f"v_and_b32 v41, 0xffff0000, v{8+j}")
        emit_phi(k, 42, 40, 44)
        emit_phi(k, 43, 41, 44)
        k(f"v_cvt_pk_bf16_f32 v45, v42, v43")
        k(f"v_lshlrev_b32 v{20+2*j}, 16, v45")
        k(f"v_and_b32 v{21+2*j}, 0xffff0000, v45")
    k("v_mul_u32_u24 v7, 2688, v2")
    for e in range(21):
        for c in range(5):
            k(f"ds_read_b128 v[{72+4*c}:{75+4*c}], v7 offset:{e*128 + c*16}")
        k("s_waitcnt lgkmcnt(0)")
        k(f"v_mul_f32 v{50+e}, v20, v72")
        for d in range(1, 20): k(f"v_fmac_f32 v{50+e}, v{20+d}, v{72+d}")
    k("v_add_f32 v70, 0x358637bd, v70")
    k("v_rcp_f32 v70, v70")
    k("s_nop 0")
    for e in range(20): k(f"v_mul_f32 v{50+e}, v{50+e}, v70")
    for j in range(10): k(f"v_cvt_pk_bf16_f32 v{8+j}, v{50+2*j}, v{51+2*j}")
    k(f"v_add_u32 v6, {WS_OA}, v4")
    for j in range(5): k(f"buffer_store_dwordx2 v[{8+2*j}:{9+2*j}], v6, s[8:11], 0 offen offset:{8*j}")
    k.lab('end')
    return k, S * 32 // 256, 32 * 2688


GCU = 3
NCH = H * GCU
EX_S = WS_EX
EX_P = WS_EX + 0x00100000
EX_M = WS_EX + 0x00500000
SPIN_MAX = 1 << 18
SCALE_B = DH ** -0.5

def emit_tag(k, regs, tagv):
    for r in regs:
        k(f"v_and_or_b32 v{r}, v{r}, s60, v{tagv}")

def emit_poll(k, name, loads, regs, tagv, tmp):
    k("s_mov_b32 s61, 0")
    k.lab(name)
    k("s_cmp_eq_u32 s61, 0")
    k(f"s_cbranch_scc1 {k.ref(name + '_nosl')}")
    k("s_sleep 4")
    k.lab(name + "_nosl")
    for l in loads: k(l)
    k("s_waitcnt vmcnt(0)")
    first = True
    for r in regs:
        if first:
            k(f"v_xor_b32 v{tmp}, v{r}, v{tagv}"); first = False
        else:
            k(f"v_xor_b32 v{tmp+1}, v{r}, v{tagv}")
            k(f"v_or_b32 v{tmp}, v{tmp}, v{tmp+1}")
    k(f"v_and_b32 v{tmp}, 0xff, v{tmp}")
    k(f"v_cmp_ne_u32 vcc, 0, v{tmp}")
    k("s_add_u32 s61, s61, 1")
    k(f"s_cmp_ge_u32 s61, s64")
    k(f"s_cbranch_scc0 {k.ref(name + '_cont')}")
    k("s_mov_b32 s64, 1")
    k(f"s_branch {k.ref(name + '_out')}")
    k.lab(name + "_cont")
    k(f"s_cbranch_vccnz {k.ref(name)}")
    k.lab(name + "_out")

STAMP = False
EX_V = WS_EX + 0x00300000
def k_chain(name, layer):
    def stamp(i):
        if not STAMP: return
        k(f"s_memrealtime s[{66+2*i}:{67+2*i}]")
    k = K(name, vgpr=256, sgpr=96, agpr=240)
    MF, WO = 16, 96
    PB = 16
    AQ, AK, AV = 192, 196, 200
    QB_, KB_, VB_ = 204, 206, 208
    KX, VX = 210, 214
    SC = 226
    T0, T1 = 238, 239
    LDS_MEM, LDS_O, LDS_S = 0, 10240, 16384
    k(f"s_cmp_ge_u32 s2, {NCH}")
    k(f"s_cbranch_scc1 {k.ref('end')}")
    k.ptr(KA_WS, 4); k.ptr(KA_MEM0, 6)
    k("v_and_b32 v2, 63, v0")
    k("v_lshrrev_b32 v1, 6, v0")
    k("v_and_b32 v3, 15, v2")
    k("v_lshrrev_b32 v4, 4, v2")
    k("v_readfirstlane_b32 s3, v1")
    k("s_and_b32 s20, s2, 31")
    k("s_lshr_b32 s21, s2, 5")
    k("s_mov_b32 s60, 0xffffff00")
    k(f"s_mov_b32 s64, {SPIN_MAX}")
    k("s_waitcnt lgkmcnt(0)")
    k.srd(8, 4, WS_BYTES)
    k.srd(12, 6, 8 * 640 * 2)
    k("s_mul_i32 s22, s20, 192")
    k("s_lshl_b32 s23, s21, 6")
    k("s_add_u32 s22, s22, s23")
    k("s_lshl_b32 s23, s3, 4")
    k("s_add_u32 s22, s22, s23")
    k("v_lshlrev_b32 v5, 4, v2")
    k("s_lshr_b32 s23, s22, 4")
    k("s_mul_i32 s23, s23, 20480")
    for mi, off in enumerate((WS_PQ, WS_PK, WS_PV)):
        k(f"s_add_u32 s24, s23, {off}")
        for g in range(5):
            for q in range(4):
                r = PB + 4 * q
                k(f"buffer_load_dwordx4 v[{r}:{r+3}], v5, s[8:11], s24 offen offset:{q*1024}")
            k("s_add_u32 s24, s24, 4096")
            k("s_waitcnt vmcnt(0)")
            for q in range(16): k(f"v_accvgpr_write_b32 a{mi*80 + g*16 + q}, v{PB+q}")
    k("s_cmp_eq_u32 s21, 1"); k("s_cselect_b32 s26, 14, 0")
    k("s_cmp_eq_u32 s21, 2"); k("s_cselect_b32 s26, 27, s26")
    k("s_cmp_eq_u32 s21, 0"); k("s_cselect_b32 s27, 14, 13")
    k("s_mul_i32 s28, s20, 6")
    k("s_mov_b32 s29, s26")
    for j in range(4):
        k(f"s_add_u32 s24, s3, {4*j}")
        k("s_sub_u32 s25, s27, 1")
        k("s_min_u32 s24, s24, s25")
        k("s_add_u32 s24, s24, s26")
        k("s_mul_i32 s24, s24, 192")
        k("s_add_u32 s24, s24, s28")
        k("s_lshl_b32 s24, s24, 10")
        k(f"s_add_u32 s24, s24, {WS_PO}")
        for ks in range(6):
            r = WO + (j * 6 + ks) * 4
            k(f"buffer_load_dwordx4 v[{r}:{r+3}], v5, s[8:11], s24 offen offset:{ks*1024 if ks<4 else 0}") if ks < 4 else None
        k("s_add_u32 s24, s24, 4096")
        for ks in range(4, 6):
            r = WO + (j * 6 + ks) * 4
            k(f"buffer_load_dwordx4 v[{r}:{r+3}], v5, s[8:11], s24 offen offset:{(ks-4)*1024}")
    k("v_lshlrev_b32 v6, 4, v0")
    for p in range(3):
        if p == 2:
            k("v_cmp_gt_u32 vcc, 128, v0")
            k("s_and_saveexec_b64 s[30:31], vcc")
        k(f"buffer_load_dwordx4 v[{PB}:{PB+3}], v6, s[12:15], 0 offen offset:{p*4096}")
        k("s_waitcnt vmcnt(0)")
        k(f"ds_write_b128 v6, v[{PB}:{PB+3}] offset:{LDS_MEM + p*4096}")
        if p == 2: k("s_mov_b64 exec, s[30:31]")
    k("v_and_b32 v7, 7, v3")
    k("v_mul_u32_u24 v7, 1280, v7")
    k("v_lshl_add_u32 v7, v4, 4, v7")
    k("v_mul_u32_u24 v9, 12288, v3")
    k("v_lshl_add_u32 v9, v4, 3, v9")
    k("s_lshl_b32 s23, s22, 1")
    k(f"s_add_u32 s23, s23, {WS_KB}")
    k("v_add_u32 v9, s23, v9")
    k("s_mul_i32 s23, s20, 192")
    k("s_mul_i32 s24, s3, 48")
    k("s_add_u32 s23, s23, s24")
    k("v_add_u32 v10, s23, v3")
    k("v_lshlrev_b32 v10, 6, v10")
    k("v_lshl_add_u32 v10, v4, 3, v10")
    k(f"v_add_u32 v10, {WS_VBT}, v10")
    k("s_mul_i32 s23, s20, 1344")
    k("s_add_u32 s23, s23, s22")
    k("v_mul_u32_u24 v11, 192, v3")
    k("v_lshlrev_b32 v8, 2, v4")
    k("v_add3_u32 v11, v11, v8, s23")
    k("v_lshlrev_b32 v11, 1, v11")
    k(f"v_add_u32 v11, {WS_KM}, v11")
    k("v_add_u32 v12, s22, v3")
    k("v_lshlrev_b32 v12, 3, v12")
    k("v_add_u32 v12, v12, v8")
    k("v_lshlrev_b32 v12, 1, v12")
    k(f"v_add_u32 v12, {WS_VMT}, v12")
    k("s_waitcnt vmcnt(0) lgkmcnt(0)")
    k("s_barrier")
    k("s_mov_b32 s40, 0")
    k.lab('step')
    k(f"s_add_u32 s41, s40, {layer*64 + 1}")
    stamp(0)
    if STAMP: k("s_memtime s[90:91]")
    k("v_mov_b32 v15, s41")
    k("s_and_b32 s42, s40, 1")
    k(f"buffer_load_dwordx2 v[{KX}:{KX+1}], v9, s[8:11], 0 offen")
    k(f"v_add_u32 v8, {16*12288}, v9")
    k(f"buffer_load_dwordx2 v[{KX+2}:{KX+3}], v8, s[8:11], 0 offen")
    for j in range(3):
        k(f"buffer_load_dwordx2 v[{VX+4*j}:{VX+4*j+1}], v10, s[8:11], 0 offen offset:{j*1024}")
        k(f"buffer_load_dwordx2 v[{VX+4*j+2}:{VX+4*j+3}], v10, s[8:11], 0 offen offset:{j*1024+32}")
    for ks in range(20): k(f"ds_read_b128 v[{MF+4*ks}:{MF+4*ks+3}], v7 offset:{LDS_MEM + ks*64}")
    for r in range(12): k(f"v_mov_b32 v{AQ+r}, 0")
    k("s_waitcnt lgkmcnt(0)")
    for ks in range(20):
        f = f"v[{MF+4*ks}:{MF+4*ks+3}]"
        k(f"v_mfma_f32_16x16x32_bf16 v[{AQ}:{AQ+3}], a[{4*ks}:{4*ks+3}], {f}, v[{AQ}:{AQ+3}]")
        k(f"v_mfma_f32_16x16x32_bf16 v[{AK}:{AK+3}], a[{80+4*ks}:{80+4*ks+3}], {f}, v[{AK}:{AK+3}]")
        k(f"v_mfma_f32_16x16x32_bf16 v[{AV}:{AV+3}], {f}, a[{160+4*ks}:{160+4*ks+3}], v[{AV}:{AV+3}]")
    k("s_nop 7")
    for acc, dst in ((AQ, QB_), (AK, KB_), (AV, VB_)):
        k(f"v_cvt_pk_bf16_f32 v{dst}, v{acc}, v{acc+1}")
        k(f"v_cvt_pk_bf16_f32 v{dst+1}, v{acc+2}, v{acc+3}")
    if STAMP:
        k("s_memtime s[92:93]")
        k("s_sub_u32 s92, s92, s90"); k("s_subb_u32 s93, s93, s91")
        k("s_mov_b64 s[90:91], s[92:93]")
    stamp(1)
    k("v_cmp_gt_u32 vcc, 8, v3")
    k("s_and_saveexec_b64 s[30:31], vcc")
    k(f"buffer_store_dwordx2 v[{KB_}:{KB_+1}], v11, s[8:11], 0 offen")
    k("s_mov_b64 exec, s[30:31]")
    k("v_cmp_gt_u32 vcc, 2, v4")
    k("s_and_saveexec_b64 s[30:31], vcc")
    k(f"buffer_store_dwordx2 v[{VB_}:{VB_+1}], v12, s[8:11], 0 offen")
    k("s_mov_b64 exec, s[30:31]")
    k("s_cmp_eq_u32 s40, 63")
    k(f"s_cbranch_scc1 {k.ref('end')}")
    k(f"v_mov_b32 v{PB+2}, v15"); k(f"v_mov_b32 v{PB+3}, v15")
    k(f"v_mov_b32 v{PB}, v{VB_}"); k(f"v_mov_b32 v{PB+1}, v{VB_+1}")
    k("s_lshl_b32 s23, s42, 18")
    k("s_lshl_b32 s24, s2, 11")
    k("s_add_u32 s23, s23, s24")
    k("s_lshl_b32 s24, s3, 9")
    k("s_add_u32 s23, s23, s24")
    k(f"s_add_u32 s23, s23, {EX_V}")
    k("v_lshlrev_b32 v13, 4, v2")
    k("v_add_u32 v13, s23, v13")
    k("v_cmp_gt_u32 vcc, 32, v2")
    k("s_and_saveexec_b64 s[30:31], vcc")
    k(f"buffer_store_dwordx4 v[{PB}:{PB+3}], v13, s[8:11], 0 offen sc1")
    k("s_mov_b64 exec, s[30:31]")
    for r in range(12): k(f"v_mov_b32 v{SC+r}, 0")
    k("s_waitcnt vmcnt(4)")
    k(f"v_mfma_f32_16x16x16_bf16 v[{SC}:{SC+3}], v[{KB_}:{KB_+1}], v[{QB_}:{QB_+1}], v[{SC}:{SC+3}]")
    k(f"v_mfma_f32_16x16x16_bf16 v[{SC+4}:{SC+7}], v[{KX}:{KX+1}], v[{QB_}:{QB_+1}], v[{SC+4}:{SC+7}]")
    k(f"v_mfma_f32_16x16x16_bf16 v[{SC+8}:{SC+11}], v[{KX+2}:{KX+3}], v[{QB_}:{QB_+1}], v[{SC+8}:{SC+11}]")
    k("s_nop 7")
    k("v_mul_u32_u24 v8, 48, v2")
    k("s_mul_i32 s23, s3, 3072")
    k(f"s_add_u32 s23, s23, {LDS_S}")
    k("v_add_u32 v13, s23, v8")
    for q in range(3): k(f"ds_write_b128 v13, v[{SC+4*q}:{SC+4*q+3}] offset:{16*q}")
    k("s_waitcnt lgkmcnt(0)")
    k("s_barrier")
    k(f"v_add_u32 v13, {LDS_S}, v8")
    for w in range(4):
        for q in range(3): k(f"ds_read_b128 v[{PB+12*w+4*q}:{PB+12*w+4*q+3}], v13 offset:{w*3072+16*q}")
    k("s_waitcnt lgkmcnt(0)")
    for r in range(12):
        k(f"v_add_f32 v{PB+r}, v{PB+r}, v{PB+12+r}")
        k(f"v_add_f32 v{PB+24+r}, v{PB+24+r}, v{PB+36+r}")
        k(f"v_add_f32 v{SC+r}, v{PB+r}, v{PB+24+r}")
    k("s_lshl_b32 s23, s42, 19")
    k("s_lshl_b32 s24, s2, 12")
    k("s_add_u32 s23, s23, s24")
    k(f"s_add_u32 s23, s23, {EX_S}")
    k("v_lshl_add_u32 v13, v4, 3, v3")
    k("v_mul_u32_u24 v13, 48, v13")
    k("v_add_u32 v13, s23, v13")
    k("v_cmp_gt_u32 vcc, 8, v3")
    k("s_and_saveexec_b64 s[30:31], vcc")
    k("s_cmp_lg_u32 s3, 0")
    k(f"s_cbranch_scc1 {k.ref('nopub')}")
    for r in range(12): k(f"v_and_or_b32 v{PB+r}, v{SC+r}, s60, v15")
    for q in range(3): k(f"buffer_store_dwordx4 v[{PB+4*q}:{PB+4*q+3}], v13, s[8:11], 0 offen offset:{16*q} sc1")
    k.lab('nopub')
    stamp(2)
    k("s_add_u32 s24, s21, 1"); k("s_cmp_ge_u32 s24, 3"); k("s_cselect_b32 s25, 3, 0"); k("s_sub_u32 s24, s24, s25")
    k("s_add_u32 s26, s21, 2"); k("s_cmp_ge_u32 s26, 3"); k("s_cselect_b32 s25, 3, 0"); k("s_sub_u32 s26, s26, s25")
    k("s_sub_u32 s24, s24, s21"); k("s_lshl_b32 s24, s24, 17")
    k("s_sub_u32 s26, s26, s21"); k("s_lshl_b32 s26, s26, 17")
    k("v_add_u32 v14, s24, v13")
    k("v_add_u32 v8, s26, v13")
    loads = [f"buffer_load_dwordx4 v[{PB+4*q}:{PB+4*q+3}], v14, s[8:11], 0 offen offset:{16*q} sc1" for q in range(3)]
    loads += [f"buffer_load_dwordx4 v[{PB+12+4*q}:{PB+12+4*q+3}], v8, s[8:11], 0 offen offset:{16*q} sc1" for q in range(3)]
    emit_poll(k, 'pollc', loads, list(range(PB, PB + 24)), 15, T0)
    for r in range(12):
        k(f"v_add_f32 v{SC+r}, v{SC+r}, v{PB+r}")
        k(f"v_add_f32 v{SC+r}, v{SC+r}, v{PB+12+r}")
    k("s_mov_b64 exec, s[30:31]")
    k("v_cmp_gt_u32 vcc, 32, v2")
    k("s_and_saveexec_b64 s[30:31], vcc")
    k("v_lshlrev_b32 v13, 4, v2")
    loads = []
    k("s_mul_i32 s23, s3, 3")
    for j in range(3):
        k(f"s_add_u32 s24, s23, {j}")
        k("s_lshr_b32 s25, s24, 2")
        k("s_lshl_b32 s25, s25, 5")
        k("s_add_u32 s25, s25, s20")
        k("s_lshl_b32 s25, s25, 11")
        k("s_and_b32 s24, s24, 3")
        k("s_lshl_b32 s24, s24, 9")
        k("s_add_u32 s25, s25, s24")
        k("s_lshl_b32 s24, s42, 18")
        k("s_add_u32 s25, s25, s24")
        k(f"s_add_u32 s{48+j}, s25, {EX_V}")
        loads.append(f"buffer_load_dwordx4 v[{PB+24+4*j}:{PB+24+4*j+3}], v13, s[8:11], s{48+j} offen sc1")
    emit_poll(k, 'pollv', loads, [PB+24+4*j+2 for j in range(3)], 15, T0)
    k("s_mov_b64 exec, s[30:31]")
    stamp(3)
    k(f"s_mov_b32 s23, {hexf(SCALE_B * LOG2E)}")
    for r in range(12): k(f"v_mul_f32 v{SC+r}, s23, v{SC+r}")
    k("v_cmp_gt_u32 vcc, 2, v4")
    k("v_mov_b32 v8, 0xff800000")
    for r in range(4): k(f"v_cndmask_b32 v{SC+r}, v8, v{SC+r}, vcc")
    k(f"v_max3_f32 v{T0}, v{SC}, v{SC+1}, v{SC+2}")
    for r in range(3, 11, 2): k(f"v_max3_f32 v{T0}, v{T0}, v{SC+r}, v{SC+r+1}")
    k(f"v_max_f32 v{T0}, v{T0}, v{SC+11}")
    def xlane(op, v):
        k(f"v_mov_b32 v{T1}, v{v}"); k("s_nop 1")
        k(f"v_permlane16_swap_b32 v{v}, v{T1}")
        k(f"{op} v{v}, v{v}, v{T1}")
        k(f"v_mov_b32 v{T1}, v{v}"); k("s_nop 1")
        k(f"v_permlane32_swap_b32 v{v}, v{T1}")
        k(f"{op} v{v}, v{v}, v{T1}")
    xlane("v_max_f32", T0)
    for r in range(12):
        k(f"v_sub_f32 v{SC+r}, v{SC+r}, v{T0}")
        k(f"v_exp_f32 v{SC+r}, v{SC+r}")
    k("s_nop 0")
    k(f"v_add_f32 v{T0}, v{SC}, v{SC+1}")
    for r in range(2, 12): k(f"v_add_f32 v{T0}, v{T0}, v{SC+r}")
    xlane("v_add_f32", T0)
    k(f"v_rcp_f32 v{T0}, v{T0}")
    k("s_nop 0")
    for r in range(12): k(f"v_mul_f32 v{SC+r}, v{SC+r}, v{T0}")
    for q in range(6): k(f"v_cvt_pk_bf16_f32 v{AQ+q}, v{SC+2*q}, v{SC+2*q+1}")
    k("v_cmp_gt_u32 vcc, 32, v2")
    for j in range(3):
        for r in range(2): k(f"v_cndmask_b32 v{PB+24+4*j+r}, 0, v{PB+24+4*j+r}, vcc")
    for j in range(3):
        a = PB + 40 + 4 * j
        for r in range(4): k(f"v_mov_b32 v{a+r}, 0")
    k("s_waitcnt vmcnt(0)")
    k("s_nop 1")
    for j in range(3):
        a = PB + 40 + 4 * j
        k(f"v_mfma_f32_16x16x16_bf16 v[{a}:{a+3}], v[{PB+24+4*j}:{PB+24+4*j+1}], v[{AQ}:{AQ+1}], v[{a}:{a+3}]")
        k(f"v_mfma_f32_16x16x16_bf16 v[{a}:{a+3}], v[{VX+4*j}:{VX+4*j+1}], v[{AQ+2}:{AQ+3}], v[{a}:{a+3}]")
        k(f"v_mfma_f32_16x16x16_bf16 v[{a}:{a+3}], v[{VX+4*j+2}:{VX+4*j+3}], v[{AQ+4}:{AQ+5}], v[{a}:{a+3}]")
    k("s_nop 7")
    k("v_mul_u32_u24 v8, 384, v3")
    k("v_lshl_add_u32 v8, v4, 3, v8")
    k("s_mul_i32 s23, s3, 96")
    k(f"s_add_u32 s23, s23, {LDS_O}")
    k("v_add_u32 v8, s23, v8")
    for j in range(3):
        a = PB + 40 + 4 * j
        k(f"v_cvt_pk_bf16_f32 v{T0}, v{a}, v{a+1}")
        k(f"v_cvt_pk_bf16_f32 v{T1}, v{a+2}, v{a+3}")
        k(f"ds_write_b64 v8, v[{T0}:{T1}] offset:{j*32}")
    k("s_waitcnt lgkmcnt(0)")
    k("s_barrier")
    k("v_mul_u32_u24 v8, 384, v3")
    k("v_lshl_add_u32 v8, v4, 4, v8")
    for ks in range(6): k(f"ds_read_b128 v[{PB+4*ks}:{PB+4*ks+3}], v8 offset:{LDS_O + ks*64}")
    for r in range(16): k(f"v_mov_b32 v{PB+24+r}, 0")
    k("s_waitcnt lgkmcnt(0)")
    for j in range(4):
        a = PB + 24 + 4 * j
        for ks in range(6):
            w_ = WO + (j * 6 + ks) * 4
            k(f"v_mfma_f32_16x16x32_bf16 v[{a}:{a+3}], v[{PB+4*ks}:{PB+4*ks+3}], v[{w_}:{w_+3}], v[{a}:{a+3}]")
    k("s_nop 7")
    k("v_cmp_gt_u32 vcc, 2, v4")
    k("s_and_saveexec_b64 s[30:31], vcc")
    k("v_and_b32 v13, 1, v3")
    k("v_lshlrev_b32 v13, 5, v13")
    k("v_lshl_add_u32 v13, v4, 4, v13")
    k("s_lshl_b32 s23, s42, 20")
    k("s_lshl_b32 s24, s20, 6")
    k("s_add_u32 s23, s23, s24")
    k(f"s_add_u32 s23, s23, {EX_P}")
    for j in range(4):
        k(f"s_add_u32 s24, s3, {4*j}")
        k("s_cmp_ge_u32 s24, s27")
        k(f"s_cbranch_scc1 {k.ref(f'skipp{j}')}")
        k("s_add_u32 s24, s24, s29")
        k("s_lshl_b32 s24, s24, 3")
        k("v_lshrrev_b32 v8, 1, v3")
        k("v_add_u32 v8, s24, v8")
        k("v_lshlrev_b32 v8, 11, v8")
        k("v_add3_u32 v8, v8, v13, s23")
        a = PB + 24 + 4 * j
        emit_tag(k, range(a, a + 4), 15)
        k(f"buffer_store_dwordx4 v[{a}:{a+3}], v8, s[8:11], 0 offen sc1")
        k.lab(f'skipp{j}')
    k("s_mov_b64 exec, s[30:31]")
    stamp(4)
    k("s_lshl_b32 s23, s2, 2")
    k("s_add_u32 s23, s23, s3")
    k("s_cmp_ge_u32 s23, 320")
    k(f"s_cbranch_scc1 {k.ref('nored')}")
    k("v_lshrrev_b32 v8, 2, v2")
    k("v_lshlrev_b32 v8, 7, v8")
    k("v_and_b32 v13, 3, v2")
    k("v_lshl_add_u32 v8, v13, 4, v8")
    k("s_lshl_b32 s24, s23, 11")
    k("s_lshl_b32 s25, s42, 20")
    k("s_add_u32 s24, s24, s25")
    k(f"s_add_u32 s24, s24, {EX_P}")
    k("v_add_u32 v8, s24, v8")
    loads = [f"buffer_load_dwordx4 v[{PB+4*m}:{PB+4*m+3}], v8, s[8:11], 0 offen offset:{m*64} sc1" for m in range(2)]
    emit_poll(k, 'polla', loads, list(range(PB, PB + 8)), 15, T0)
    for i in range(4): k(f"v_add_f32 v{PB+i}, v{PB+i}, v{PB+4+i}")
    k("s_nop 1")
    for i in range(4): k(f"v_add_f32 v{PB+i}, v{PB+i}, v{PB+i} row_ror:4 row_mask:0xf bank_mask:0xf")
    k("s_nop 1")
    for i in range(4): k(f"v_add_f32 v{PB+i}, v{PB+i}, v{PB+i} row_ror:8 row_mask:0xf bank_mask:0xf")
    for i in range(4): xlane("v_add_f32", PB + i)
    k(f"v_cvt_pk_bf16_f32 v{T0}, v{PB}, v{PB+1}")
    k(f"v_cvt_pk_bf16_f32 v{T1}, v{PB+2}, v{PB+3}")
    k(f"v_lshlrev_b32 v{PB}, 16, v{T0}")
    k(f"v_and_b32 v{PB+1}, 0xffff0000, v{T0}")
    k(f"v_lshlrev_b32 v{PB+2}, 16, v{T1}")
    k(f"v_and_b32 v{PB+3}, 0xffff0000, v{T1}")
    for i in range(4): k(f"v_or_b32 v{PB+i}, v{PB+i}, v15")
    k("v_lshlrev_b32 v13, 4, v2")
    k("s_lshl_b32 s24, s23, 6")
    k("s_lshl_b32 s25, s42, 15")
    k("s_add_u32 s24, s24, s25")
    k(f"s_add_u32 s24, s24, {EX_M}")
    k("v_add_u32 v13, s24, v13")
    k("v_cmp_gt_u32 vcc, 4, v2")
    k("s_and_saveexec_b64 s[30:31], vcc")
    k(f"buffer_store_dwordx4 v[{PB}:{PB+3}], v13, s[8:11], 0 offen sc1")
    k("s_mov_b64 exec, s[30:31]")
    k.lab('nored')
    stamp(5)
    k("v_lshlrev_b32 v8, 4, v0")
    k("s_lshl_b32 s25, s42, 15")
    k(f"s_add_u32 s25, s25, {EX_M}")
    k("v_add_u32 v13, s25, v8")
    loads = [f"buffer_load_dwordx4 v[{PB+4*p}:{PB+4*p+3}], v13, s[8:11], 0 offen offset:{p*4096} sc1" for p in range(5)]
    emit_poll(k, 'pollb', loads, list(range(PB, PB + 20)), 15, T0)
    stamp(6)
    for p in range(5):
        k(f"v_add_u32 v8, {p*256}, v0")
        k("v_lshrrev_b32 v13, 1, v8")
        k("v_and_b32 v8, 1, v8")
        k(f"v_mul_u32_u24 v8, {4*1280}, v8")
        k("v_lshl_add_u32 v8, v13, 1, v8")
        for i in range(4):
            k(f"ds_write_b16_d16_hi v8, v{PB+4*p+i} offset:{LDS_MEM + i*1280}")
    k("s_waitcnt lgkmcnt(0)")
    k("s_barrier")
    if STAMP:
        k("s_cmp_eq_u32 s40, 10")
        k(f"s_cbranch_scc0 {k.ref('nostamp')}")
        k("s_cmp_eq_u32 s3, 0")
        k(f"s_cbranch_scc0 {k.ref('nostamp')}")
        k.ptr(KA_DBG, 34)
        k("s_waitcnt lgkmcnt(0)")
        k.srd(36, 34, 256)
        k("s_cmp_eq_u32 s2, 0"); k("s_cselect_b32 s33, 0, 64")
        k("s_cmp_eq_u32 s2, 95"); k("s_cselect_b32 s32, 1, 0")
        k("s_cmp_eq_u32 s2, 0"); k("s_cselect_b32 s32, 1, s32")
        k("s_cmp_eq_u32 s32, 0")
        k(f"s_cbranch_scc1 {k.ref('nostamp')}")
        for i in range(7):
            k(f"v_mov_b32 v13, s{66+2*i}")
            k(f"v_mov_b32 v14, s33")
            k(f"buffer_store_dword v13, v14, s[36:39], 0 offen offset:{i*4}")
        k("v_mov_b32 v13, s90"); k("v_mov_b32 v14, s33")
        k("buffer_store_dword v13, v14, s[36:39], 0 offen offset:28")
        k.lab('nostamp')
    k(f"v_add_u32 v9, {32*12288}, v9")
    k(f"v_add_u32 v10, {6144*64}, v10")
    k(f"v_add_u32 v11, {32*8*384}, v11")
    k(f"v_add_u32 v12, {6144*16}, v12")
    k("s_add_u32 s40, s40, 1")
    k(f"s_branch {k.ref('step')}")
    k.lab('end')
    return k, NCH, 16384 + 12288

def hexf(x):
    import struct
    return "0x%08x" % struct.unpack("<I", struct.pack("<f", x))[0]


def k_attn_b(name):
    k = K(name, vgpr=200, sgpr=48)
    QF, KF = 16, 64
    SA = 136
    PP = 160
    VF = 172
    OA_ = 180
    T0, T1 = 190, 191
    k(f"s_cmp_ge_u32 s2, {NSEG*8}")
    k(f"s_cbranch_scc1 {k.ref('end')}")
    k.ptr(KA_WS, 4)
    k("v_and_b32 v2, 63, v0")
    k("v_lshrrev_b32 v1, 6, v0")
    k("v_and_b32 v3, 15, v2")
    k("v_lshrrev_b32 v4, 4, v2")
    k("v_readfirstlane_b32 s3, v1")
    k("s_lshr_b32 s20, s2, 3")
    k("s_and_b32 s21, s2, 7")
    k("s_lshl_b32 s21, s21, 2")
    k("s_add_u32 s21, s21, s3")
    k("s_waitcnt lgkmcnt(0)")
    k.srd(8, 4, WS_BYTES)
    k("s_mul_i32 s22, s21, 384")
    k("s_mul_i32 s23, s20, %d" % (32 * 12288))
    k("s_add_u32 s23, s23, s22")
    k("v_mul_u32_u24 v5, 12288, v3")
    k("v_lshlrev_b32 v6, 4, v4")
    k("v_add3_u32 v5, v5, v6, s23")
    for tt in range(2):
        k(f"v_add_u32 v{8+tt}, {WS_QB + tt*16*12288}, v5")
        k(f"v_add_u32 v{10+tt}, {WS_KB + tt*16*12288}, v5")
    k("v_and_b32 v7, 7, v3")
    k("v_mul_u32_u24 v7, 384, v7")
    k("s_lshl_b32 s24, s20, 5")
    k("s_add_u32 s24, s24, s21")
    k("s_mul_i32 s24, s24, 3072")
    k(f"s_add_u32 s24, s24, {WS_KM}")
    k("v_add3_u32 v12, v7, v6, s24")
    for ks in range(6):
        for tt in range(2):
            r = QF + (tt * 6 + ks) * 4
            k(f"buffer_load_dwordx4 v[{r}:{r+3}], v{8+tt}, s[8:11], 0 offen offset:{ks*64}")
        r = KF + ks * 4
        k(f"buffer_load_dwordx4 v[{r}:{r+3}], v12, s[8:11], 0 offen offset:{ks*64}")
        for tt in range(2):
            r = KF + ((1 + tt) * 6 + ks) * 4
            k(f"buffer_load_dwordx4 v[{r}:{r+3}], v{10+tt}, s[8:11], 0 offen offset:{ks*64}")
    for r in range(24): k(f"v_mov_b32 v{SA+r}, 0")
    k("s_waitcnt vmcnt(0)")
    for ks in range(6):
        for kt in range(3):
            for tt in range(2):
                a = SA + (kt * 2 + tt) * 4
                kf = KF + (kt * 6 + ks) * 4; qf = QF + (tt * 6 + ks) * 4
                k(f"v_mfma_f32_16x16x32_bf16 v[{a}:{a+3}], v[{kf}:{kf+3}], v[{qf}:{qf+3}], v[{a}:{a+3}]")
    k("s_nop 7")
    k(f"s_mov_b32 s25, {hexf(SCALE_B * LOG2E)}")
    k("v_mov_b32 v13, 0xff800000")
    def xlane(op, v):
        k(f"v_mov_b32 v{T1}, v{v}"); k("s_nop 1")
        k(f"v_permlane16_swap_b32 v{v}, v{T1}")
        k(f"{op} v{v}, v{v}, v{T1}")
        k(f"v_mov_b32 v{T1}, v{v}"); k("s_nop 1")
        k(f"v_permlane32_swap_b32 v{v}, v{T1}")
        k(f"{op} v{v}, v{v}, v{T1}")
    k("v_lshlrev_b32 v14, 2, v4")
    for tt in range(2):
        regs = [SA + (kt * 2 + tt) * 4 + i for kt in range(3) for i in range(4)]
        for r in regs: k(f"v_mul_f32 v{r}, s25, v{r}")
        k("v_cmp_gt_u32 vcc, 2, v4")
        for i in range(4): k(f"v_cndmask_b32 v{regs[i]}, v13, v{regs[i]}, vcc")
        for kt in (1, 2):
            for i in range(4):
                c = (kt - 1) * 16 + i - tt * 16
                k(f"v_add_u32 v15, {c}, v14") if c >= 0 else k(f"v_subrev_u32 v15, {-c}, v14")
                k("v_cmp_le_i32 vcc, v15, v3")
                k("s_nop 1")
                r = regs[kt * 4 + i]
                k(f"v_cndmask_b32 v{r}, v13, v{r}, vcc")
        k(f"v_max3_f32 v{T0}, v{regs[0]}, v{regs[1]}, v{regs[2]}")
        for q in range(3, 11, 2): k(f"v_max3_f32 v{T0}, v{T0}, v{regs[q]}, v{regs[q+1]}")
        k(f"v_max_f32 v{T0}, v{T0}, v{regs[11]}")
        xlane("v_max_f32", T0)
        for r in regs:
            k(f"v_sub_f32 v{r}, v{r}, v{T0}")
            k(f"v_exp_f32 v{r}, v{r}")
        k("s_nop 0")
        k(f"v_add_f32 v{T0}, v{regs[0]}, v{regs[1]}")
        for r in regs[2:]: k(f"v_add_f32 v{T0}, v{T0}, v{r}")
        xlane("v_add_f32", T0)
        k(f"v_rcp_f32 v{T0}, v{T0}")
        k("s_nop 0")
        for r in regs: k(f"v_mul_f32 v{r}, v{r}, v{T0}")
        for q in range(6): k(f"v_cvt_pk_bf16_f32 v{PP + tt*6 + q}, v{regs[2*q]}, v{regs[2*q+1]}")
    k("s_mul_i32 s26, s21, 192")
    k("v_add_u32 v16, s26, v3")
    k("v_lshlrev_b32 v17, 6, v16")
    k("v_lshlrev_b32 v18, 3, v4")
    k("v_add_u32 v17, v17, v18")
    k("s_mul_i32 s27, s20, %d" % (6144 * 64))
    k(f"s_add_u32 s27, s27, {WS_VBT}")
    k("v_add_u32 v17, s27, v17")
    k("v_lshlrev_b32 v19, 4, v16")
    k("v_and_b32 v18, 1, v4")
    k("v_lshlrev_b32 v18, 3, v18")
    k("v_add_u32 v19, v19, v18")
    k("s_mul_i32 s27, s20, %d" % (6144 * 16))
    k(f"s_add_u32 s27, s27, {WS_VMT}")
    k("v_add_u32 v19, s27, v19")
    k("v_mul_u32_u24 v20, 12288, v3")
    k("v_lshlrev_b32 v18, 3, v4")
    k("v_add3_u32 v20, v20, v18, s23")
    k(f"v_add_u32 v20, {WS_OB}, v20")
    for et in range(12):
        k(f"buffer_load_dwordx2 v[{VF}:{VF+1}], v19, s[8:11], 0 offen offset:{et*256}")
        k(f"buffer_load_dwordx2 v[{VF+2}:{VF+3}], v17, s[8:11], 0 offen offset:{et*1024}")
        k(f"buffer_load_dwordx2 v[{VF+4}:{VF+5}], v17, s[8:11], 0 offen offset:{et*1024+32}")
        for r in range(8): k(f"v_mov_b32 v{OA_+r}, 0")
        k("s_waitcnt vmcnt(0)")
        for tt in range(2):
            a = OA_ + 4 * tt
            for kt in range(3):
                k(f"v_mfma_f32_16x16x16_bf16 v[{a}:{a+3}], v[{VF+2*kt}:{VF+2*kt+1}], v[{PP+tt*6+2*kt}:{PP+tt*6+2*kt+1}], v[{a}:{a+3}]")
        k("s_nop 7")
        for tt in range(2):
            a = OA_ + 4 * tt
            k(f"v_cvt_pk_bf16_f32 v{T0}, v{a}, v{a+1}")
            k(f"v_cvt_pk_bf16_f32 v{T1}, v{a+2}, v{a+3}")
            k(f"v_add_u32 v21, {tt*16*12288 + et*32}, v20")
            k(f"buffer_store_dwordx2 v[{T0}:{T1}], v21, s[8:11], 0 offen")
    k.lab('end')
    return k, NSEG * 8

def build(stage=99):
    kernels = []; launches = []
    def add(k, nwg, lds=0, block=256):
        if k not in kernels: kernels.append(k)
        launches.append((k.name, nwg, block, lds))
    kp, n = k_pack(); add(kp, n)
    kl, n = k_ln("ln_a1", KA_AX, 0); add(kl, n)
    kg, n, lds = k_gemm("qkv_a", S, 1920, D, WS_XN, D * 2, WS_PQKVA, 4, 5, dict(kind='qkvA')); add(kg, n, lds); n_qkva, lds_qkva = n, lds
    kz, n = k_kvz("kvz_a1", 0); add(kz, n)
    ka, n, lds = k_attn_a("attn_a1", 0); add(ka, n, lds)
    kg2, n, lds = k_gemm("wo_a1", S, D, D, WS_OA, D * 2, WS_PWOA, 2, 5, dict(kind='res', res_slot=KA_AX, res_off=0, out_off=WS_X1, res_in=True)); add(kg2, n, lds)
    kl2, n = k_ln("ln_b1", KA_WS, WS_X1); add(kl2, n)
    kg3, n, lds = k_gemm("qkv_b", S, 3 * HD, D, WS_XN, D * 2, WS_PQ, 8, 6, dict(kind='qkvB')); add(kg3, n, lds); n_qkvb, lds_qkvb = n, lds
    kc, n, lds = k_chain("chain1", 0); add(kc, n, lds)
    kb, n = k_attn_b("attn_b"); add(kb, n)
    kg4, n, lds = k_gemm("wo_b1", S, D, HD, WS_OB, HD * 2, WS_PO, 4, 5, dict(kind='res', res_off=WS_X1, out_off=WS_X1), ksplit=4); add(kg4, n, lds)
    kl3, n = k_ln("ln_a2", KA_WS, WS_X1); add(kl3, n)
    add(kg, n_qkva, lds_qkva)
    kz2, n = k_kvz("kvz_a2", 1); add(kz2, n)
    ka2, n, lds = k_attn_a("attn_a2", 1); add(ka2, n, lds)
    kg5, n, lds = k_gemm("wo_a2", S, D, D, WS_OA, D * 2, WS_PWOA, 2, 5, dict(kind='res', res_off=WS_X1, out_off=WS_X1)); add(kg5, n, lds)
    add(kl2, S // 4)
    add(kg3, n_qkvb, lds_qkvb)
    kc2, n, lds = k_chain("chain2", 1); add(kc2, n, lds)
    add(kb, NSEG * 8)
    kg6, n, lds = k_gemm("wo_b2", S, D, HD, WS_OB, HD * 2, WS_PO, 4, 5, dict(kind='res', res_off=WS_X1, to_out=True), ksplit=4); add(kg6, n, lds)
    head = [f"; generated by gen.py (hand-written generator); kernarg: 13 pointers (see harness)"]
    for name, nwg, block, lds in launches:
        head.append(f"; @launch kernel={name} grid=({nwg},1,1) block=({block},1,1) lds={lds}")
    head.append('.amdgcn_target "amdgcn-amd-amdhsa--gfx950"')
    return "\n".join(head) + "\n" + "\n".join(k.text() for k in kernels) + "\n"

if __name__ == "__main__":
    if len(sys.argv) > 1 and sys.argv[1] == "stamp": STAMP = True
    open(f"/code/{NAME}.s", "w").write(build())
    print("written")
```

```python
WS_BYTES = 268435456
MB = 1 << 20
EX_BLOCK = 2 * MB
EX_STEP = 65536
CTRL = 10 * MB
CT_TICK = CTRL
CT_PAR = CTRL + 0x10000
CT_FLAG = CTRL + 0x20000
WP = 11 * MB
WY = 26 * MB
KX = 51 * MB
QX = 75 * MB
Z = 99 * MB
KM = 199 * MB
PXB = 205 * MB
XN = 210 * MB
END0 = 213 * MB
A_XN = 213 * MB; A_X1 = 216 * MB; A_QA = 219 * MB; A_KVT = 222 * MB; A_OA = 228 * MB
A_KVZ = 231 * MB; A_PQKVA = 232 * MB; A_PWOA = 235 * MB; A_X2 = 236 * MB
XN_SEG = 40960
PX_SEG = 81920

Z_SEG = 80 * 20480
KX_SH = 32 * 384
KM_SH = 8 * 384

def physmap(o):
    return ((o >> 13) << 14) | (o & 8191)

P_LOG = 0
M_LOG = 20480
CAL_LOG = 30720

def alpha(gb, jb):
    return 32 * (jb >> 3) + 16 * (gb >> 1) + 8 * ((jb >> 1) & 1) + 4 * (gb & 1) + 2 * ((jb >> 2) & 1) + (jb & 1)

def p2e(p):
    return 64 * (p >> 6) + alpha((p >> 4) & 3, p & 15)

def islot(i):
    return 2 * (i & 3) + (i >> 2)
```

```python
import re, struct
WS_BYTES = 268435456
KA_AX, KA_WQKV, KA_WOA, KA_BX, KA_MEM0, KA_WQ, KA_WK, KA_WV, KA_WO, KA_SEG, KA_OUT, KA_DBG, KA_WS = range(13)

def hexf(x):
    return "0x%08x" % struct.unpack("<I", struct.pack("<f", x))[0]

class K:
    def __init__(self, name, vgpr=128, sgpr=96, agpr=0):
        self.name = name + "_kernel"; self.L = []; self.vgpr = vgpr; self.sgpr = sgpr; self.agpr = agpr
        self._u = 0
    def __call__(self, s):
        for line in s.split("\n"):
            line = line.strip()
            if line: self.L.append("    " + line)
    def lab(self, l): self.L.append(f"{self.name}_{l}:")
    def ref(self, l): return f"{self.name}_{l}"
    def uniq(self, p):
        self._u += 1; return f"{p}{self._u}"
    def ptr(self, slot, s): self(f"s_load_dwordx2 s[{s}:{s+1}], s[0:1], {slot*8}")
    def srd(self, sd, sp, size, off=0):
        if off:
            self(f"s_add_u32 s{sd}, s{sp}, {off}")
            self(f"s_addc_u32 s{sd+1}, s{sp+1}, 0")
        else:
            self(f"s_mov_b32 s{sd}, s{sp}")
            self(f"s_mov_b32 s{sd+1}, s{sp+1}")
        self(f"s_mov_b32 s{sd+2}, {size}")
        self(f"s_mov_b32 s{sd+3}, 0x00020000")
    def text(self):
        acc = ((self.vgpr + 3) // 4) * 4
        nfv = acc + self.agpr if self.agpr else self.vgpr
        t = [".text", f".globl {self.name}", ".p2align 8", f".type {self.name},@function", f"{self.name}:"]
        t += self.L
        t += ["    s_endpgm", '.section .rodata,"a"', ".p2align 6", f".amdhsa_kernel {self.name}",
              f"  .amdhsa_next_free_vgpr {nfv}", f"  .amdhsa_next_free_sgpr {self.sgpr}",
              f"  .amdhsa_accum_offset {acc}", "  .amdhsa_group_segment_fixed_size 0",
              "  .amdhsa_kernarg_size 104", "  .amdhsa_user_sgpr_count 2",
              "  .amdhsa_user_sgpr_kernarg_segment_ptr 1", "  .amdhsa_system_sgpr_workgroup_id_x 1",
              ".end_amdhsa_kernel"]
        return "\n".join(t)

def listfile(launches, kernels, comment="generated"):
    head = [f"; {comment}"]
    for k, nwg, block, lds in launches:
        head.append(f"; @launch kernel={k.name} grid=({nwg},1,1) block=({block},1,1) lds={lds}")
    head.append('.amdgcn_target "amdgcn-amd-amdhsa--gfx950"')
    return "\n".join(head) + "\n" + "\n".join(k.text() for k in kernels) + "\n"
```

```python
import sys, math
sys.path.insert(0, "/code"); sys.path.insert(0, "tools")
from asmk import *
from lay import *

CSC = (192 ** -0.5) * math.log2(math.e)
S_WS = 4; SRD = 8; S_WAVE = 13
srd = f"s[{SRD}:{SRD+3}]"
def vr(b, n): return f"v[{b}:{b+n-1}]" if n > 1 else f"v{b}"
def ar(b, n): return f"a[{b}:{b+n-1}]"

def prologue(k, extra_ptrs=()):
    k.ptr(KA_WS, S_WS)
    for slot, s in extra_ptrs: k.ptr(slot, s)
    k("v_lshrrev_b32 v1, 6, v0")
    k("v_and_b32 v0, 63, v0")
    k("s_nop 0")
    k(f"v_readfirstlane_b32 s{S_WAVE}, v1")
    k("s_waitcnt lgkmcnt(0)")
    k.srd(SRD, S_WS, WS_BYTES)

def ex_delta(k, dst):
    k(f"s_sub_u32 s{dst}, 0, s{S_WS}")
    k(f"s_and_b32 s{dst}, s{dst}, 0x1fffff")

def p2e_lane(k, dst, p, t0, t1):
    k(f"v_and_b32 v{dst}, 0xc1, v{p}")
    k(f"v_and_b32 v{t0}, 8, v{p}")
    k(f"v_lshl_or_b32 v{dst}, v{t0}, 2, v{dst}")
    k(f"v_and_b32 v{t0}, 32, v{p}")
    k(f"v_lshrrev_b32 v{t0}, 1, v{t0}")
    k(f"v_or_b32 v{dst}, v{dst}, v{t0}")
    k(f"v_and_b32 v{t0}, 2, v{p}")
    k(f"v_lshl_or_b32 v{dst}, v{t0}, 2, v{dst}")
    k(f"v_and_b32 v{t0}, 16, v{p}")
    k(f"v_lshrrev_b32 v{t0}, 2, v{t0}")
    k(f"v_or_b32 v{dst}, v{dst}, v{t0}")
    k(f"v_and_b32 v{t0}, 4, v{p}")
    k(f"v_lshrrev_b32 v{t0}, 1, v{t0}")
    k(f"v_or_b32 v{dst}, v{dst}, v{t0}")

def wp_block_off(k, dst, x, isk, t0, t1):
    k(f"v_lshrrev_b32 v{t0}, 4, v{x}")
    k(f"v_mul_u32_u24 v{t1}, 11, v{t0}")
    k(f"v_lshrrev_b32 v{t1}, 5, v{t1}")
    k(f"v_mul_u32_u24 v{t1}, 3, v{t1}")
    k(f"v_add_u32 v{t0}, v{t0}, v{t1}")
    if isk: k(f"v_add_u32 v{t0}, 3, v{t0}")
    k(f"v_mul_u32_u24 v{t0}, 20480, v{t0}")
    k(f"v_and_b32 v{t1}, 15, v{x}")
    k(f"v_lshl_add_u32 v{dst}, v{t1}, 4, v{t0}")

CH_ROW = [0, 1, 8, 9, 2, 3, 10, 11]

def chunk_base_lane(k, dst, c, t0):
    k(f"v_lshrrev_b32 v{dst}, 2, v{c}")
    k(f"v_lshlrev_b32 v{dst}, 5, v{dst}")
    k(f"v_and_b32 v{t0}, 2, v{c}")
    k(f"v_lshl_add_u32 v{dst}, v{t0}, 3, v{dst}")
    k(f"v_and_b32 v{t0}, 1, v{c}")
    k(f"v_lshl_add_u32 v{dst}, v{t0}, 2, v{dst}")

N_WVO = 160
N_PWP = 240
N_CLR = 64
PREP_WG = N_WVO + N_PWP + N_CLR + 1

def role_wvo(k):
    L = lambda s: k.ref('wvo_' + s)
    k.ptr(KA_WV, 24); k.ptr(KA_WO, 26)
    k("s_and_b32 s21, s20, 1")
    k("s_lshr_b32 s22, s20, 1")
    k("s_mul_i32 s23, s22, 205")
    k("s_lshr_b32 s23, s23, 11")
    k("s_mul_i32 s28, s23, 10")
    k("s_sub_u32 s22, s22, s28")
    k("s_waitcnt lgkmcnt(0)")
    k.srd(32, 24, 640 * 6144 * 2)
    k.srd(36, 26, 6144 * 640 * 2)
    VI, VH = 1, 2
    k(f"v_and_b32 v{VI}, 31, v0")
    k(f"v_lshrrev_b32 v{VH}, 5, v0")
    BE, BO, TMP = 16, 64, 112
    k(f"v_mul_u32_u24 v3, {8 * 1280}, v{VH}")
    k(f"v_lshl_add_u32 v3, v{VI}, 2, v3")
    k(f"s_mul_i32 s28, s23, {192*1280}")
    k("s_lshl_b32 s29, s22, 7")
    k("s_add_u32 s28, s28, s29")
    for half in range(2):
        for kk in range(6):
            kap = half * 6 + kk
            for j in range(8):
                row = 16 * kap + j
                k(f"s_add_u32 s29, s28, {row * 1280}")
                k(f"buffer_load_dword v{TMP + 8 * kk + j}, v3, s[36:39], s29 offen")
        k("v_mov_b32 v4, 0x05040100")
        k("v_mov_b32 v5, 0x07060302")
        k("s_waitcnt vmcnt(0)")
        for kk in range(6):
            kap = half * 6 + kk
            for m in range(4):
                k(f"v_perm_b32 v{BE + 4 * kap + m}, v{TMP + 8 * kk + 2 * m + 1}, v{TMP + 8 * kk + 2 * m}, v4")
                k(f"v_perm_b32 v{BO + 4 * kap + m}, v{TMP + 8 * kk + 2 * m + 1}, v{TMP + 8 * kk + 2 * m}, v5")
    k(f"v_lshrrev_b32 v6, 3, v{VI}")
    chunk_base_lane(k, 7, 6, 8)
    k(f"v_and_b32 v8, 7, v{VI}")
    k("v_and_b32 v9, 1, v8")
    k("v_add_u32 v7, v7, v9")
    k("v_and_b32 v9, 2, v8")
    k("v_lshl_add_u32 v7, v9, 2, v7")
    k("v_lshrrev_b32 v9, 2, v8")
    k("v_lshl_add_u32 v7, v9, 1, v7")
    k("v_mul_u32_u24 v7, 12288, v7")
    k(f"v_lshl_add_u32 v7, v{VH}, 4, v7")
    k("s_mul_i32 s28, s23, 384")
    k(f"s_mul_i32 s29, s21, {10 * 32 * 12288}")
    k("s_add_u32 s28, s28, s29")
    k(f"v_lshrrev_b32 v10, 2, v{VI}")
    k("v_mul_u32_u24 v10, 20480, v10")
    k("v_lshlrev_b32 v10, 4, v10")
    k(f"v_and_b32 v11, 3, v{VI}")
    k("v_lshl_add_u32 v10, v11, 5, v10")
    k(f"v_lshl_add_u32 v10, v{VH}, 8, v10")
    k(f"s_mul_i32 s30, s22, {8 * 327680}")
    k("s_lshr_b32 s31, s23, 3")
    k("s_mul_i32 s31, s31, 81920")
    k("s_add_u32 s30, s30, s31")
    k("s_and_b32 s31, s23, 3")
    k("s_mul_i32 s31, s31, 20480")
    k("s_add_u32 s30, s30, s31")
    k("s_bfe_u32 s31, s23, 0x10002")
    k("s_lshl_b32 s31, s31, 7")
    k("s_add_u32 s30, s30, s31")
    k(f"s_mul_i32 s31, s21, 10240")
    k("s_add_u32 s30, s30, s31")
    k(f"s_add_u32 s30, s30, {WY}")
    AF0, AF1, ACC, OUT = 112, 160, 208, 240
    def aload(dst):
        for kap in range(12):
            k(f"buffer_load_dwordx4 {vr(dst + 4 * kap, 4)}, v7, s[32:35], s28 offen offset:{kap * 32}")
        k(f"s_add_u32 s28, s28, {32 * 12288}")
    def tile(src):
        for kap in range(12):
            for t, B in ((0, BE), (1, BO)):
                c = "0" if kap == 0 else vr(ACC + 16 * t, 16)
                k(f"v_mfma_f32_32x32x16_bf16 {vr(ACC + 16 * t, 16)}, {vr(src + 4 * kap, 4)}, {vr(B + 4 * kap, 4)}, {c}")
        k("s_nop 7"); k("s_nop 7")
        for t in range(2):
            a = ACC + 16 * t
            for j in range(2):
                o = OUT + 4 * j
                for q in range(2):
                    k(f"v_cvt_pk_bf16_f32 v{o + 2 * q}, v{a + 8 * j + 4 * q}, v{a + 8 * j + 4 * q + 1}")
                    k(f"v_cvt_pk_bf16_f32 v{o + 2 * q + 1}, v{a + 8 * j + 4 * q + 2}, v{a + 8 * j + 4 * q + 3}")
                k("s_nop 1")
                k(f"v_permlane32_swap_b32 v{o}, v{o + 2}")
                k(f"v_permlane32_swap_b32 v{o + 1}, v{o + 3}")
                k(f"buffer_store_dwordx4 {vr(o, 4)}, v10, {srd}, s30 offen offset:{j * 512 + t * 16}")
            k("s_nop 1")
        k("s_add_u32 s30, s30, 1024")
    aload(AF0)
    k("s_mov_b32 s31, 5")
    k.lab('wvo_loop')
    aload(AF1)
    k("s_waitcnt vmcnt(12)")
    tile(AF0)
    k("s_cmp_eq_u32 s31, 1")
    k(f"s_cbranch_scc1 {L('last')}")
    aload(AF0)
    k("s_waitcnt vmcnt(12)")
    tile(AF1)
    k("s_sub_u32 s31, s31, 1")
    k(f"s_branch {L('loop')}")
    k.lab('wvo_last')
    k("s_waitcnt vmcnt(0)")
    tile(AF1)
    k(f"s_branch {k.ref('end')}")

def role_pwp(k):
    L = lambda s: k.ref('pwp_' + s)
    k("s_mul_i32 s21, s20, 13108"); k("s_lshr_b32 s21, s21, 16")
    k("s_mul_i32 s22, s21, 5"); k("s_sub_u32 s22, s20, s22")
    k("s_mul_i32 s23, s21, 21846"); k("s_lshr_b32 s23, s23, 16")
    k("s_mul_i32 s28, s23, 3"); k("s_sub_u32 s21, s21, s28")
    k("s_lshr_b32 s29, s23, 5")
    k("s_and_b32 s23, s23, 31")
    k("s_cmp_eq_u32 s29, 0")
    k(f"s_cbranch_scc0 {L('k')}")
    k.ptr(KA_WQ, 24)
    k(f"s_branch {L('go')}")
    k.lab('pwp_k')
    k.ptr(KA_WK, 24)
    k.lab('pwp_go')
    k("v_and_b32 v1, 31, v0")
    k("v_lshrrev_b32 v2, 5, v0")
    k("s_lshl_b32 s28, s21, 6")
    k("v_lshlrev_b32 v3, 1, v1")
    k("v_add_u32 v3, s28, v3")
    p2e_lane(k, 4, 3, 5, 6)
    k("s_cmp_eq_u32 s29, 0")
    k("s_cselect_b64 vcc, -1, 0")
    k("s_nop 1")
    k("v_cndmask_b32 v4, v4, v3, vcc")
    wp_block_off(k, 7, 3, 0, 5, 6)
    k(f"s_mul_i32 s30, s29, {3*20480}")
    k("s_mul_i32 s31, s23, 491520")
    k("s_add_u32 s30, s30, s31")
    k(f"s_add_u32 s30, s30, {WP}")
    k("s_lshl_b32 s31, s22, 4")
    k("v_add_u32 v8, s31, v2")
    k("s_waitcnt lgkmcnt(0)")
    k.srd(32, 24, 640 * 6144 * 2)
    k("s_mul_i32 s28, s23, 384")
    RAW, OUT = 16, 80
    for it in range(8):
        k(f"v_add_u32 v9, {2 * it}, v8")
        chunk_base_lane(k, 10, 9, 11)
        k("v_mul_u32_u24 v10, 12288, v10")
        k("v_lshl_add_u32 v10, v4, 1, v10")
        for j in range(8):
            k(f"s_add_u32 s31, s28, {CH_ROW[j] * 12288}")
            k(f"buffer_load_dword v{RAW + 8 * it + j}, v10, s[32:35], s31 offen")
    k("v_lshl_add_u32 v7, v8, 8, v7")
    k("v_mov_b32 v4, 0x05040100")
    k("v_mov_b32 v5, 0x07060302")
    for it in range(8):
        k(f"s_waitcnt vmcnt({8 * (7 - it)})")
        o = OUT + 8 * (it & 1)
        for m in range(4):
            k(f"v_perm_b32 v{o + m}, v{RAW + 8 * it + 2 * m + 1}, v{RAW + 8 * it + 2 * m}, v4")
            k(f"v_perm_b32 v{o + 4 + m}, v{RAW + 8 * it + 2 * m + 1}, v{RAW + 8 * it + 2 * m}, v5")
        k(f"buffer_store_dwordx4 {vr(o, 4)}, v7, {srd}, s30 offen offset:{it * 512}")
        k(f"buffer_store_dwordx4 {vr(o + 4, 4)}, v7, {srd}, s30 offen offset:{it * 512 + 16}")
        if it >= 1: k("s_nop 0")
    k(f"s_branch {k.ref('end')}")

def role_clear(k):
    ex_delta(k, 21)
    per = 4 * EX_BLOCK // N_CLR
    k(f"s_mul_i32 s22, s20, {per}")
    k("s_add_u32 s21, s21, s22")
    k(f"s_lshl_b32 s22, s{S_WAVE}, 10")
    k("s_add_u32 s21, s21, s22")
    k("v_lshlrev_b32 v1, 4, v0")
    for r in range(4, 8): k(f"v_mov_b32 v{r}, -1")
    k(f"s_mov_b32 s22, {per // 4096}")
    k.lab('clr_loop')
    k(f"buffer_store_dwordx4 v[4:7], v1, {srd}, s21 offen")
    k("s_add_u32 s21, s21, 4096")
    k("s_sub_u32 s22, s22, 1")
    k("s_cmp_lg_u32 s22, 0")
    k(f"s_cbranch_scc1 {k.ref('clr_loop')}")
    k(f"s_branch {k.ref('end')}")

CAL_N = 12
def role_ctl(k):
    k(f"s_cmp_lg_u32 s{S_WAVE}, 0")
    k(f"s_cbranch_scc1 {k.ref('end')}")
    k("v_lshlrev_b32 v1, 4, v0")
    for r in range(4, 8): k(f"v_mov_b32 v{r}, 0")
    for i in range(4):
        k(f"s_mov_b32 s21, {CT_TICK + i * 1024}")
        k(f"buffer_store_dwordx4 v[4:7], v1, {srd}, s21 offen")
    ex_delta(k, 22)
    k("s_getreg_b32 s23, hwreg(HW_REG_XCC_ID)")
    k("s_bfe_u32 s23, s23, 0x10002")
    k("s_mov_b64 exec, 1")
    k("v_mov_b32 v1, 0")
    cal = physmap(CAL_LOG)
    for b in range(4):
        for p in range(2):
            best = 30 + p
            k(f"s_add_u32 s24, s22, {b * EX_BLOCK + 31 * EX_STEP + cal + p * 8192}")
            k(f"s_mov_b32 s{best}, -1")
            k(f"s_mov_b32 s25, {CAL_N}")
            lp = f'cal{b}{p}'
            k.lab(lp)
            k("s_memrealtime s[26:27]")
            k("s_waitcnt lgkmcnt(0)")
            k(f"buffer_store_dword v1, v1, {srd}, s24 offen sc1")
            k("s_waitcnt vmcnt(0)")
            k(f"buffer_load_dword v2, v1, {srd}, s24 offen sc1")
            k("s_waitcnt vmcnt(0)")
            k(f"buffer_store_dword v2, v1, {srd}, s24 offen offset:64 sc1")
            k("s_waitcnt vmcnt(0)")
            k(f"buffer_load_dword v2, v1, {srd}, s24 offen offset:64 sc1")
            k("s_waitcnt vmcnt(0)")
            k("s_memrealtime s[28:29]")
            k("s_waitcnt lgkmcnt(0)")
            k("s_sub_u32 s26, s28, s26")
            k(f"s_min_u32 s{best}, s{best}, s26")
            k("s_sub_u32 s25, s25, 1")
            k("s_cmp_lg_u32 s25, 0")
            k(f"s_cbranch_scc1 {k.ref(lp)}")
        k("s_cmp_lt_u32 s31, s30")
        k("s_cselect_b32 s24, 1, 0")
        k("s_xor_b32 s24, s24, s23")
        k("s_lshl_b32 s24, s24, 13")
        k("v_mov_b32 v3, s24")
        k(f"s_mov_b32 s25, {CT_PAR + 4 * b}")
        k(f"buffer_store_dword v3, v1, {srd}, s25 offen")
        k("s_lshl_b32 s26, s30, 16")
        k("s_or_b32 s26, s26, s31")
        k("v_mov_b32 v3, s26")
        k(f"buffer_store_dword v3, v1, {srd}, s25 offen offset:64")
    k(f"s_branch {k.ref('end')}")

def build_prep(name="prep"):
    k = K(name, vgpr=248, sgpr=64)
    k(f"s_cmp_ge_u32 s2, {PREP_WG}")
    k(f"s_cbranch_scc1 {k.ref('end')}")
    prologue(k)
    k("s_cmp_eq_u32 s2, 0")
    k(f"s_cbranch_scc1 {k.ref('r_ctl')}")
    k("s_sub_u32 s20, s2, 1")
    k(f"s_cmp_lt_u32 s20, {N_WVO}")
    k(f"s_cbranch_scc1 {k.ref('r_wvo')}")
    k(f"s_sub_u32 s20, s20, {N_WVO}")
    k(f"s_cmp_lt_u32 s20, {N_PWP}")
    k(f"s_cbranch_scc1 {k.ref('r_pwp')}")
    k(f"s_sub_u32 s20, s20, {N_PWP}")
    role_clear(k)
    k.lab('r_ctl'); role_ctl(k)
    k.lab('r_wvo')
    k("s_lshl_b32 s20, s20, 2"); k(f"s_add_u32 s20, s20, s{S_WAVE}")
    role_wvo(k)
    k.lab('r_pwp')
    k("s_lshl_b32 s20, s20, 2"); k(f"s_add_u32 s20, s20, s{S_WAVE}")
    role_pwp(k)
    k.lab('end')
    return k, PREP_WG

def wave_sum(k, v, tmp, s0):
    k("s_nop 1")
    k(f"v_add_f32 v{tmp}, v{v}, v{v} quad_perm:[1,0,3,2] row_mask:0xf bank_mask:0xf")
    k("s_nop 1")
    k(f"v_add_f32 v{tmp}, v{tmp}, v{tmp} quad_perm:[2,3,0,1] row_mask:0xf bank_mask:0xf")
    k("s_nop 1")
    k(f"v_add_f32 v{tmp}, v{tmp}, v{tmp} row_half_mirror row_mask:0xf bank_mask:0xf")
    k("s_nop 1")
    k(f"v_add_f32 v{tmp}, v{tmp}, v{tmp} row_mirror row_mask:0xf bank_mask:0xf")
    k("s_nop 1")
    for i in range(4): k(f"v_readlane_b32 s{s0+i}, v{tmp}, {16*i}")
    k("s_nop 1")
    k(f"v_mov_b32 v{v}, s{s0}")
    for i in range(1, 4): k(f"v_add_f32 v{v}, s{s0+i}, v{v}")

def build_lnb(name, layer, src_off):
    k = K(name, vgpr=32, sgpr=48)
    k("s_cmp_gt_u32 s2, 512")
    k(f"s_cbranch_scc1 {k.ref('end')}")
    prologue(k, [(KA_MEM0, 6)])
    k("s_cmp_eq_u32 s2, 512")
    k(f"s_cbranch_scc1 {k.ref('mem0')}")
    k("s_lshl_b32 s20, s2, 2")
    k(f"s_add_u32 s20, s20, s{S_WAVE}")
    k("s_mul_i32 s21, s20, 1280")
    k(f"s_add_u32 s21, s21, {src_off}")
    k("v_lshlrev_b32 v3, 2, v0")
    for j in range(5): k(f"buffer_load_dword v{4+j}, v3, {srd}, s21 offen offset:{j*256}")
    k("v_lshrrev_b32 v20, 4, v0")
    k("v_lshlrev_b32 v20, 2, v20")
    k("v_bfe_u32 v21, v0, 3, 1")
    k("v_lshl_add_u32 v20, v21, 1, v20")
    k("v_bfe_u32 v21, v0, 1, 1")
    k("v_add_u32 v20, v20, v21")
    k("v_lshlrev_b32 v20, 9, v20")
    k("v_and_b32 v21, 1, v0")
    k("v_lshl_add_u32 v20, v21, 3, v20")
    k("v_bfe_u32 v21, v0, 2, 1")
    k("v_lshl_add_u32 v23, v21, 2, v20")
    k("s_lshr_b32 s22, s20, 5")
    k(f"s_mul_i32 s22, s22, {XN_SEG}")
    k("s_and_b32 s23, s20, 31")
    k("s_lshl_b32 s23, s23, 4")
    k("s_add_u32 s22, s22, s23")
    k(f"s_add_u32 s22, s22, {XN}")
    k("s_waitcnt vmcnt(0)")
    for j in range(5):
        k(f"v_lshlrev_b32 v{10+2*j}, 16, v{4+j}")
        k(f"v_and_b32 v{11+2*j}, 0xffff0000, v{4+j}")
    k("v_add_f32 v20, v10, v11")
    for j in range(2, 10): k(f"v_add_f32 v20, v20, v{10+j}")
    wave_sum(k, 20, 21, 24)
    k(f"v_mul_f32 v20, {hexf(1.0/640)}, v20")
    for j in range(10): k(f"v_sub_f32 v{10+j}, v{10+j}, v20")
    k("v_mul_f32 v21, v10, v10")
    for j in range(1, 10): k(f"v_fmac_f32 v21, v{10+j}, v{10+j}")
    wave_sum(k, 21, 22, 24)
    k("v_mov_b32 v22, 0x3727c5ac")
    k(f"v_fmac_f32 v22, {hexf(1.0/640)}, v21")
    k("v_rsq_f32 v22, v22")
    k("s_nop 0")
    for j in range(10): k(f"v_mul_f32 v{10+j}, v{10+j}, v22")
    for j in range(5): k(f"v_cvt_pk_bf16_f32 v{4+j}, v{10+2*j}, v{11+2*j}")
    for j in range(5):
        k(f"s_add_u32 s23, s22, {j * 16 * 512}")
        k(f"buffer_store_dword v{4+j}, v23, {srd}, s23 offen")
    k(f"s_branch {k.ref('end')}")
    k.lab('mem0')
    k.srd(16, 6, 8 * 640 * 2)
    ex_delta(k, 22)
    k(f"s_mov_b32 s23, {CT_PAR + 8 * layer}")
    k(f"s_buffer_load_dword s24, {srd}, s23")
    k("s_waitcnt lgkmcnt(0)")
    k("s_and_b32 s24, s24, 8192")
    k("s_add_u32 s22, s22, s24")
    k(f"s_add_u32 s22, s22, {2 * layer * EX_BLOCK}")
    k(f"s_lshl_b32 s25, s{S_WAVE}, 6")
    k("v_add_u32 v1, s25, v0")
    for it in range(3):
        k(f"v_add_u32 v2, {256 * it}, v1")
        k("v_and_b32 v3, 7, v2")
        k("v_mul_u32_u24 v3, 1280, v3")
        k("v_lshrrev_b32 v4, 3, v2")
        k("v_lshl_add_u32 v3, v4, 4, v3")
        k("v_lshlrev_b32 v5, 4, v2")
        k(f"v_add_u32 v5, {M_LOG}, v5")
        k("v_lshrrev_b32 v6, 13, v5")
        k("v_lshlrev_b32 v6, 14, v6")
        k("v_and_b32 v5, 8191, v5")
        k("v_add_u32 v5, v5, v6")
        k("v_cmp_gt_u32 vcc, 640, v2")
        k("s_and_saveexec_b64 s[30:31], vcc")
        sk = k.ref(f'm0s{it}')
        k(f"s_cbranch_execz {sk}")
        k("buffer_load_dwordx4 v[8:11], v3, s[16:19], 0 offen")
        k("s_waitcnt vmcnt(0)")
        k(f"buffer_store_dwordx4 v[8:11], v5, {srd}, s22 offen")
        k.lab(f'm0s{it}')
        k("s_mov_b64 exec, s[30:31]")
    k.lab('end')
    return k, 513

G_LDS = 3 * XN_SEG
GV_L16 = 1; GV_RD = 2; GV_ST = 3; GV_W = 4
G_RING = 8; G_NR = 8
G_ACC = 40
G_OUT = 104
G_WV = 192
GS_SEG = 14; GS_END = 15; GS_BUF = 16; GS_ST0 = 17; GS_ST1 = 18; GS_DMA = 19; GS_INC = 20; GS_LB = 21; GS_NB = 22

def gw(kap, t):
    n = kap * 2 + t
    return ar(4 * n, 4) if n < 64 else vr(G_WV + 4 * (n - 64), 4)

def gemm_body(k, isu, tag, cfg):
    L = lambda s: k.ref(f"g{tag}_{s}")
    lab = lambda s: k.lab(f"g{tag}_{s}")
    def dma(seg_s):
        k(f"s_min_u32 s24, s{seg_s}, 63")
        k(f"s_mul_i32 s24, s24, {XN_SEG}")
        k(f"s_add_u32 s24, s24, s{GS_DMA}")
        k(f"s_mul_i32 s25, s{S_WAVE}, 10240")
        k(f"s_add_u32 s25, s25, s{GS_NB}")
        for grp in range(3):
            k(f"s_mov_b32 m0, s25")
            k("s_nop 0")
            for i in range(4 if grp < 2 else 2):
                k(f"buffer_load_dwordx4 v{GV_L16}, {srd}, s24 offen offset:{i * 1024} lds")
            if grp < 2:
                k("s_add_u32 s24, s24, 4096"); k("s_add_u32 s25, s25, 4096")
    def nextbuf(dst, src):
        k(f"s_add_u32 s{dst}, s{src}, {XN_SEG}")
        k(f"s_cmp_eq_u32 s{dst}, {G_LDS}")
        k(f"s_cselect_b32 s{dst}, 0, s{dst}")
    k(f"s_mul_i32 s{GS_DMA}, s{S_WAVE}, 10240")
    k(f"s_add_u32 s{GS_DMA}, s{GS_DMA}, {XN}")
    k(f"s_mov_b32 s{GS_NB}, 0")
    dma(GS_SEG)
    k(f"s_mov_b32 s{GS_NB}, {XN_SEG}")
    k(f"s_add_u32 s23, s{GS_SEG}, 1")
    dma(23)
    k(f"s_mov_b32 s{GS_NB}, {2 * XN_SEG}")
    k(f"s_mov_b32 s{GS_BUF}, 0")
    k("s_waitcnt vmcnt(10)")
    k("s_barrier")
    k(f"v_mov_b32 v{GV_RD}, v{GV_L16}")
    for r in range(G_NR - 2):
        k(f"ds_read_b128 {vr(G_RING + 4 * r, 4)}, v{GV_RD} offset:{r * 1024}")
    PRE = G_NR - 2
    def epilogue_items(par):
        it = []
        for t in range(2):
            a = G_ACC + 32 * par + 16 * t
            for j in range(2):
                o = G_OUT + 4 * ((2 * t + j) & 3)
                for q in range(2):
                    it.append(f"v_cvt_pk_bf16_f32 v{o + 2 * q}, v{a + 8 * j + 4 * q}, v{a + 8 * j + 4 * q + 1}")
                    it.append(f"v_cvt_pk_bf16_f32 v{o + 2 * q + 1}, v{a + 8 * j + 4 * q + 2}, v{a + 8 * j + 4 * q + 3}")
                it.append("s_nop 1")
                it.append(f"v_permlane32_swap_b32 v{o}, v{o + 2}")
                it.append(f"v_permlane32_swap_b32 v{o + 1}, v{o + 3}")
                if isu: it.append(f"buffer_store_dwordx4 {vr(o, 4)}, v{GV_ST}, {srd}, s{GS_ST0} offen offset:{t * 2560 + j * 256}")
                else:   it.append(f"buffer_store_dwordx4 {vr(o, 4)}, v{GV_ST}, {srd}, s{GS_ST0 + t} offen offset:{j * 1024}")
        it.append(f"s_add_u32 s{GS_ST0}, s{GS_ST0}, s{GS_INC}")
        it.append(f"s_add_u32 s{GS_ST1}, s{GS_ST1}, s{GS_INC}")
        return it
    def segment(par, first):
        side = {i: [] for i in range(80)}
        if not first:
            for n, it in enumerate(epilogue_items(par ^ 1)): side[4 + n].append(it)
        for kap in range(40):
            slot = kap % G_NR
            nk = kap + PRE
            if nk == 40:
                k(f"v_add_u32 v{GV_RD + 4}, s{GS_LB}, v{GV_L16}")
            rb = GV_RD if nk < 40 else GV_RD + 4
            k(f"ds_read_b128 {vr(G_RING + 4 * (nk % G_NR), 4)}, v{rb} offset:{(nk % 40) * 1024}")
            k(f"s_waitcnt lgkmcnt({PRE})")
            x = vr(G_RING + 4 * slot, 4)
            for t in range(2):
                d = vr(G_ACC + 32 * par + 16 * t, 16)
                c = "0" if kap == 0 else d
                if isu: k(f"v_mfma_f32_32x32x16_bf16 {d}, {x}, {gw(kap, t)}, {c}")
                else:   k(f"v_mfma_f32_32x32x16_bf16 {d}, {gw(kap, t)}, {x}, {c}")
                for it in side[2 * kap + t]: k(it)
            if kap == 28:
                k("s_waitcnt vmcnt(0)" if first else "s_waitcnt vmcnt(0)")
                k("s_barrier")
                nextbuf(GS_LB, GS_BUF)
                k(f"s_add_u32 s23, s{GS_SEG}, 2")
                dma(23)
                nextbuf(GS_NB, GS_NB)
        k(f"v_mov_b32 v{GV_RD}, v{GV_RD + 4}")
        k(f"s_mov_b32 s{GS_BUF}, s{GS_LB}")
        k(f"s_add_u32 s{GS_SEG}, s{GS_SEG}, 1")
    segment(0, True)
    k(f"s_cmp_ge_u32 s{GS_SEG}, s{GS_END}")
    k(f"s_cbranch_scc1 {L('fin0')}")
    lab('loop')
    segment(1, False)
    k(f"s_cmp_ge_u32 s{GS_SEG}, s{GS_END}")
    k(f"s_cbranch_scc1 {L('fin1')}")
    segment(0, False)
    k(f"s_cmp_lt_u32 s{GS_SEG}, s{GS_END}")
    k(f"s_cbranch_scc1 {L('loop')}")
    lab('fin0')
    k("s_nop 7"); k("s_nop 7")
    for it in epilogue_items(0): k(it)
    k(f"s_branch {L('done')}")
    lab('fin1')
    k("s_nop 7"); k("s_nop 7")
    for it in epilogue_items(1): k(it)
    lab('done')
    k("s_waitcnt vmcnt(0) lgkmcnt(0)")

def role_gemm(k, cg_s, cfg=None):
    cfg = cfg or {}
    L = lambda s: k.ref('g_' + s)
    k(f"v_lshlrev_b32 v{GV_L16}, 4, v0")
    k("v_and_b32 v8, 31, v0")
    k("v_lshrrev_b32 v9, 5, v0")
    k(f"s_cmp_ge_u32 s{cg_s}, 80")
    k(f"s_cbranch_scc1 {L('qk')}")
    k("v_lshrrev_b32 v10, 3, v8")
    k("v_and_b32 v11, 7, v8")
    k("v_mul_u32_u24 v12, 20480, v10")
    k("v_lshl_add_u32 v12, v11, 4, v12")
    k(f"v_lshl_add_u32 v{GV_W}, v9, 8, v12")
    k(f"s_mul_i32 s24, s{cg_s}, 327680")
    k(f"s_mul_i32 s25, s{S_WAVE}, 81920")
    k("s_add_u32 s24, s24, s25")
    k(f"s_add_u32 s24, s24, {WY}")
    for kap in range(40):
        if kap % 7 == 0 and kap: k(f"s_add_u32 s24, s24, {7 * 512}")
        for t in range(2):
            k(f"buffer_load_dwordx4 {gw(kap, t)}, v{GV_W}, {srd}, s24 offen offset:{(kap % 7) * 512 + t * 128}")
    k(f"s_lshl_b32 s25, s{S_WAVE}, 3")
    k("v_add_u32 v10, s25, v10")
    k("v_mul_u32_u24 v10, 640, v10")
    k("v_lshl_add_u32 v10, v9, 7, v10")
    k("v_lshl_add_u32 v10, v11, 4, v10")
    k(f"v_add_u32 v{GV_ST}, 128, v10")
    k(f"s_mul_i32 s{GS_ST0}, s{cg_s}, 20480")
    k(f"s_mul_i32 s25, s{GS_SEG}, {Z_SEG}")
    k(f"s_add_u32 s{GS_ST0}, s{GS_ST0}, s25")
    k(f"s_add_u32 s{GS_ST0}, s{GS_ST0}, {Z}")
    k(f"s_mov_b32 s{GS_INC}, {Z_SEG}")
    gemm_body(k, True, 'u', cfg)
    k(f"s_branch {L('done')}")
    k.lab('g_qk')
    k(f"s_sub_u32 s26, s{cg_s}, 80")
    k("s_cmp_ge_u32 s26, 24")
    k("s_cselect_b32 s27, 1, 0")
    k("s_cselect_b32 s28, 24, 0")
    k("s_sub_u32 s26, s26, s28")
    k("s_lshl_b32 s26, s26, 3")
    k(f"s_lshl_b32 s28, s{S_WAVE}, 1")
    k("s_add_u32 s26, s26, s28")
    for t in range(2):
        k(f"s_add_u32 s28, s26, {t}")
        k("s_mul_i32 s29, s28, 171")
        k("s_lshr_b32 s29, s29, 10")
        k("s_mul_i32 s30, s29, 6")
        k("s_sub_u32 s30, s28, s30")
        k(f"s_mul_i32 s31, s29, {KX_SH}")
        k("s_lshl_b32 s32, s30, 11")
        k("s_add_u32 s31, s31, s32")
        k(f"s_mul_i32 s32, s{GS_SEG}, {32 * KX_SH}")
        k("s_add_u32 s31, s31, s32")
        k(f"s_mul_i32 s32, s27, {QX - KX}")
        k("s_add_u32 s31, s31, s32")
        k(f"s_add_u32 s{GS_ST0 + t}, s31, {KX}")
        k("s_lshl_b32 s30, s30, 5")
        k("v_add_u32 v10, s30, v8")
        p2e_lane(k, 11, 10, 12, 13)
        k("s_cmp_eq_u32 s27, 1")
        k("s_cselect_b64 vcc, -1, 0")
        k("s_nop 1")
        k("v_cndmask_b32 v10, v10, v11, vcc")
        wp_block_off(k, 11, 10, 0, 12, 13)
        k(f"v_lshl_add_u32 v{GV_W + t}, v9, 8, v11")
        k("s_xor_b32 s30, s27, 1")
        k(f"s_mul_i32 s30, s30, {3*20480}")
        k("s_mul_i32 s31, s29, 491520")
        k("s_add_u32 s30, s30, s31")
        k(f"s_add_u32 s{34 + t}, s30, {WP}")
    for kap in range(40):
        if kap % 8 == 0 and kap:
            k("s_add_u32 s34, s34, 4096"); k("s_add_u32 s35, s35, 4096")
        for t in range(2):
            k(f"buffer_load_dwordx4 {gw(kap, t)}, v{GV_W + t}, {srd}, s{34 + t} offen offset:{(kap % 8) * 512}")
    k(f"v_mov_b32 v{GV_ST}, v{GV_L16}")
    k(f"s_mov_b32 s{GS_INC}, {32 * KX_SH}")
    gemm_body(k, False, 'k', cfg)
    k.lab('g_done')

def build_gemmb(name="gemmb", nsplit=2):
    k = K(name, vgpr=256, sgpr=64, agpr=256)
    k(f"s_cmp_ge_u32 s2, {128 * nsplit}")
    k(f"s_cbranch_scc1 {k.ref('end')}")
    prologue(k)
    k("s_and_b32 s36, s2, 127")
    k("s_lshr_b32 s37, s2, 7")
    k(f"s_mul_i32 s{GS_SEG}, s37, {64 // nsplit}")
    k(f"s_add_u32 s{GS_END}, s{GS_SEG}, {64 // nsplit}")
    role_gemm(k, 36)
    k.lab('end')
    return k, 128 * nsplit, G_LDS

def role_w3a(k, seg_s, h_s):
    Q, KK, KMF, D1, D2, BI = 16, 64, 112, 160, 176, 192
    T = 208
    k("v_lshlrev_b32 v1, 4, v0")
    k("v_and_b32 v2, 31, v0")
    k("v_lshrrev_b32 v3, 5, v0")
    k(f"s_lshl_b32 s24, s{seg_s}, 5")
    k(f"s_add_u32 s24, s24, s{h_s}")
    k(f"s_mul_i32 s25, s24, {KX_SH}")
    k(f"s_add_u32 s26, s25, {QX}")
    k(f"s_add_u32 s27, s25, {KX}")
    k(f"s_mul_i32 s28, s24, {KM_SH}")
    k(f"s_add_u32 s28, s28, {KM}")
    k("v_and_b32 v4, 7, v0")
    k("v_lshlrev_b32 v4, 4, v4")
    k("v_lshl_add_u32 v4, v3, 7, v4")
    for kap in range(12):
        if kap % 4 == 0 and kap:
            k("s_add_u32 s26, s26, 4096"); k("s_add_u32 s27, s27, 4096")
        k(f"buffer_load_dwordx4 {vr(Q + 4 * kap, 4)}, v1, {srd}, s26 offen offset:{(kap % 4) * 1024}")
        k(f"buffer_load_dwordx4 {vr(KK + 4 * kap, 4)}, v1, {srd}, s27 offen offset:{(kap % 4) * 1024}")
        k(f"buffer_load_dwordx4 {vr(KMF + 4 * kap, 4)}, v4, {srd}, s28 offen offset:{kap * 256}")
    k("v_lshlrev_b32 v5, 2, v3")
    k("v_sub_u32 v5, v2, v5")
    k(f"v_mov_b32 v6, {hexf(-1e30)}")
    for r in range(16):
        k(f"v_cmp_gt_i32 vcc, {(r & 3) + 8 * (r >> 2)}, v5")
        k("s_nop 1")
        k(f"v_cndmask_b32 v{BI + r}, 0, v6, vcc")
    for kap in range(12):
        k(f"s_waitcnt vmcnt({3 * (11 - kap)})")
        k(f"v_mfma_f32_32x32x16_bf16 {vr(D1, 16)}, {vr(KK + 4 * kap, 4)}, {vr(Q + 4 * kap, 4)}, {'0' if kap == 0 else vr(D1, 16)}")
        k(f"v_mfma_f32_32x32x16_bf16 {vr(D2, 16)}, {vr(KMF + 4 * kap, 4)}, {vr(Q + 4 * kap, 4)}, {'0' if kap == 0 else vr(D2, 16)}")
    k("s_nop 7"); k("s_nop 7")
    c = hexf(CSC)
    k(f"v_mov_b32 v7, {c}")
    for r in range(16): k(f"v_fma_f32 v{D1 + r}, v{D1 + r}, v7, v{BI + r}")
    for r in range(4): k(f"v_mul_f32 v{D2 + r}, v{D2 + r}, v7")
    vals = [D1 + r for r in range(16)] + [D2 + r for r in range(4)]
    m, u = T, T + 1
    k(f"v_max3_f32 v{m}, v{vals[0]}, v{vals[1]}, v{vals[2]}")
    rest = vals[3:]
    while len(rest) >= 2:
        k(f"v_max3_f32 v{m}, v{m}, v{rest[0]}, v{rest[1]}"); rest = rest[2:]
    if rest: k(f"v_max_f32 v{m}, v{m}, v{rest[0]}")
    k(f"v_mov_b32 v{u}, v{m}")
    k("s_nop 1")
    k(f"v_permlane32_swap_b32 v{m}, v{u}")
    k(f"v_max_f32 v{m}, v{m}, v{u}")
    for r in vals: k(f"v_sub_f32 v{r}, v{r}, v{m}")
    for r in vals: k(f"v_exp_f32 v{r}, v{r}")
    k("s_nop 0")
    s_ = T + 2
    k(f"v_add_f32 v{s_}, v{vals[0]}, v{vals[1]}")
    for r in vals[2:]: k(f"v_add_f32 v{s_}, v{s_}, v{r}")
    k(f"v_mov_b32 v{u}, v{s_}")
    k("s_nop 1")
    k(f"v_permlane32_swap_b32 v{s_}, v{u}")
    k(f"v_add_f32 v{s_}, v{s_}, v{u}")
    k(f"v_rcp_f32 v{s_}, v{s_}")
    k("s_nop 0")
    for r in vals: k(f"v_mul_f32 v{r}, v{r}, v{s_}")
    k(f"s_mul_i32 s25, s{seg_s}, {PX_SEG}")
    k(f"s_mul_i32 s26, s{h_s}, 2560")
    k("s_add_u32 s25, s25, s26")
    k(f"s_add_u32 s25, s25, {PXB}")
    O = Q
    for j in range(2):
        o = O + 4 * j
        for q in range(2):
            k(f"v_cvt_pk_bf16_f32 v{o + 2 * q}, v{D1 + 8 * j + 4 * q}, v{D1 + 8 * j + 4 * q + 1}")
            k(f"v_cvt_pk_bf16_f32 v{o + 2 * q + 1}, v{D1 + 8 * j + 4 * q + 2}, v{D1 + 8 * j + 4 * q + 3}")
        k("s_nop 1")
        k(f"v_permlane32_swap_b32 v{o}, v{o + 2}")
        k(f"v_permlane32_swap_b32 v{o + 1}, v{o + 3}")
        k(f"buffer_store_dwordx4 {vr(o, 4)}, v1, {srd}, s25 offen offset:{512 + j * 1024}")
    k(f"v_cvt_pk_bf16_f32 v{O + 8}, v{D2}, v{D2 + 1}")
    k(f"v_cvt_pk_bf16_f32 v{O + 9}, v{D2 + 2}, v{D2 + 3}")
    k("v_lshlrev_b32 v4, 4, v2")
    k("v_lshl_add_u32 v4, v3, 3, v4")
    k(f"buffer_store_dwordx2 {vr(O + 8, 2)}, v4, {srd}, s25 offen")

def build_w3a(name="w3a"):
    k = K(name, vgpr=216, sgpr=48)
    k("s_cmp_ge_u32 s2, 512")
    k(f"s_cbranch_scc1 {k.ref('end')}")
    prologue(k)
    k("s_lshl_b32 s20, s2, 2")
    k(f"s_add_u32 s20, s20, s{S_WAVE}")
    k("s_lshr_b32 s21, s20, 5")
    k("s_and_b32 s22, s20, 31")
    role_w3a(k, 21, 22)
    k.lab('end')
    return k, 512

def role_w3b(k, seg_s, cg_s, res_off, out_srd, out_off, NR=16):
    RING = 32; ACC = 16
    k("v_lshlrev_b32 v1, 4, v0")
    k("v_and_b32 v2, 31, v0")
    k("v_lshrrev_b32 v3, 5, v0")
    k("v_lshrrev_b32 v4, 3, v2")
    k("v_mul_u32_u24 v4, 20480, v4")
    k("v_and_b32 v5, 7, v2")
    k("v_lshl_add_u32 v4, v5, 4, v4")
    k("v_lshl_add_u32 v4, v3, 7, v4")
    k(f"s_mul_i32 s24, s{seg_s}, {Z_SEG}")
    k(f"s_mul_i32 s25, s{cg_s}, {4 * 20480}")
    k("s_add_u32 s24, s24, s25")
    k(f"s_add_u32 s24, s24, {Z}")
    k(f"s_mul_i32 s25, s{seg_s}, {PX_SEG}")
    k(f"s_add_u32 s25, s25, {PXB}")
    k("v_mul_u32_u24 v6, 1280, v2")
    k("v_lshl_add_u32 v6, v3, 4, v6")
    k(f"s_mul_i32 s26, s{seg_s}, {32 * 1280}")
    k(f"s_lshl_b32 s27, s{cg_s}, 6")
    k("s_add_u32 s26, s26, s27")
    k(f"s_add_u32 s27, s26, {res_off}")
    for j in range(2):
        k(f"buffer_load_dwordx4 {vr(8 + 4 * j, 4)}, v6, {srd}, s27 offen offset:{32 * j}")
    def load(kap):
        sl = RING + 8 * (kap % NR)
        if kap % 16 == 0 and kap: k("s_add_u32 s24, s24, 4096")
        if kap % 4 == 0 and kap: k("s_add_u32 s25, s25, 4096")
        k(f"buffer_load_dwordx4 {vr(sl, 4)}, v4, {srd}, s24 offen offset:{(kap % 16) * 256}")
        k(f"buffer_load_dwordx4 {vr(sl + 4, 4)}, v1, {srd}, s25 offen offset:{(kap % 4) * 1024}")
    for kap in range(NR): load(kap)
    issued = NR
    for kap in range(80):
        k(f"s_waitcnt vmcnt({2 * (issued - 1 - kap)})")
        sl = RING + 8 * (kap % NR)
        k(f"v_mfma_f32_32x32x16_bf16 {vr(ACC, 16)}, {vr(sl, 4)}, {vr(sl + 4, 4)}, {'0' if kap == 0 else vr(ACC, 16)}")
        if kap >= 1 and issued < 80:
            load(issued); issued += 1
    k("s_nop 7"); k("s_nop 7")
    O = RING
    for j in range(2):
        o = O + 4 * j
        for q in range(2):
            k(f"v_cvt_pk_bf16_f32 v{o + 2 * q}, v{ACC + 8 * j + 4 * q}, v{ACC + 8 * j + 4 * q + 1}")
            k(f"v_cvt_pk_bf16_f32 v{o + 2 * q + 1}, v{ACC + 8 * j + 4 * q + 2}, v{ACC + 8 * j + 4 * q + 3}")
        k("s_nop 1")
        k(f"v_permlane32_swap_b32 v{o}, v{o + 2}")
        k(f"v_permlane32_swap_b32 v{o + 1}, v{o + 3}")
        k("s_nop 1")
        for r in range(4):
            a, b, t0, t1 = O + 8, O + 9, O + 10, O + 11
            k(f"v_lshlrev_b32 v{a}, 16, v{o + r}")
            k(f"v_and_b32 v{b}, 0xffff0000, v{o + r}")
            k(f"v_lshlrev_b32 v{t0}, 16, v{8 + 4 * j + r}")
            k(f"v_and_b32 v{t1}, 0xffff0000, v{8 + 4 * j + r}")
            k(f"v_add_f32 v{a}, v{a}, v{t0}")
            k(f"v_add_f32 v{b}, v{b}, v{t1}")
            k(f"v_cvt_pk_bf16_f32 v{o + r}, v{a}, v{b}")
        if out_off is not None:
            k(f"s_add_u32 s27, s26, {out_off}")
            k(f"buffer_store_dwordx4 {vr(o, 4)}, v6, {srd}, s27 offen offset:{32 * j}")
        else:
            k(f"buffer_store_dwordx4 {vr(o, 4)}, v6, {out_srd}, s26 offen offset:{32 * j}")

def build_w3b(name, res_off, out_off):
    NR = 12
    k = K(name, vgpr=32 + 8 * NR, sgpr=48)
    k("s_cmp_ge_u32 s2, 320")
    k(f"s_cbranch_scc1 {k.ref('end')}")
    prologue(k, [(KA_OUT, 6)])
    k.srd(16, 6, 2048 * 640 * 2)
    k("s_lshl_b32 s20, s2, 2")
    k(f"s_add_u32 s20, s20, s{S_WAVE}")
    k("s_mul_i32 s21, s20, 3277"); k("s_lshr_b32 s21, s21, 16")
    k("s_mul_i32 s22, s21, 20"); k("s_sub_u32 s22, s20, s22")
    role_w3b(k, 21, 22, res_off, "s[16:19]", out_off, NR)
    k.lab('end')
    return k, 320
```

```python
import sys
sys.path.insert(0, "/code"); sys.path.insert(0, "tools")
import gen, work, chain
from lay import *
from asmk import KA_AX, KA_WQKV, KA_WOA, KA_WS
NAME = gen.NAME
gen.WS_XN = A_XN; gen.WS_X1 = A_X1; gen.WS_QA = A_QA; gen.WS_KVT = A_KVT; gen.WS_OA = A_OA
gen.WS_KVZ = A_KVZ; gen.WS_PQKVA = A_PQKVA; gen.WS_PWOA = A_PWOA
gen.PACK = [(KA_WQKV, 640, 1920, A_PQKVA), (KA_WOA, 640, 640, A_PWOA)]
gen.WS_EX = A_KVZ; gen.EX_CLEAR_BYTES = 0
S, D = 2048, 640

def build(cfg=None):
    cfg = cfg or {}
    kernels = []; launches = []
    def add(k, nwg, lds=0, block=256):
        if k not in kernels: kernels.append(k)
        launches.append((k.name, nwg, block, lds))
    kp, n = gen.k_pack(); add(kp, n)
    kq, n = work.build_prep(); add(kq, n)
    kg, n_qkva, lds_qkva = gen.k_gemm("qkv_a", S, 1920, D, A_XN, D * 2, A_PQKVA, 4, 5, dict(kind='qkvA'))
    kgb, n_gb, lds_gb = work.build_gemmb()
    kwa, n_wa = work.build_w3a()
    for layer in range(2):
        if layer == 0:
            kl, n = gen.k_ln("ln_a1", KA_AX, 0)
        else:
            kl, n = gen.k_ln("ln_a2", KA_WS, A_X2)
        add(kl, n)
        add(kg, n_qkva, lds_qkva)
        kz, n = gen.k_kvz(f"kvz_a{layer+1}", layer); add(kz, n)
        ka, n, lds = gen.k_attn_a(f"attn_a{layer+1}", layer); add(ka, n, lds)
        if layer == 0:
            epi = dict(kind='res', res_slot=KA_AX, res_off=0, out_off=A_X1, res_in=True)
        else:
            epi = dict(kind='res', res_off=A_X2, out_off=A_X1)
        kw, n, lds = gen.k_gemm(f"wo_a{layer+1}", S, D, D, A_OA, D * 2, A_PWOA, 2, 5, epi); add(kw, n, lds)
        kl2, n = work.build_lnb(f"ln_b{layer+1}", layer, A_X1); add(kl2, n)
        add(kgb, n_gb, lds_gb)
        kc = chain.build_chain(f"chain{layer+1}", layer, cfg); add(kc, 256, chain.PL_END)
        add(kwa, n_wa)
        k3, n = work.build_w3b(f"w3b{layer+1}", A_X1, A_X2 if layer == 0 else None); add(k3, n)
    head = ["; generated by gen2.py (my own generator); kernarg: 13 pointers"]
    for name, nwg, block, lds in launches:
        head.append(f"; @launch kernel={name} grid=({nwg},1,1) block=({block},1,1) lds={lds}")
    head.append('.amdgcn_target "amdgcn-amd-amdhsa--gfx950"')
    return "\n".join(head) + "\n" + "\n".join(k.text() for k in kernels) + "\n"

if __name__ == "__main__":
    out = sys.argv[1] if len(sys.argv) > 1 else "v2.s"
    open(out, "w").write(build())
    print("written", out)
```

```python
import sys, math
sys.path.insert(0, "/code"); sys.path.insert(0, "tools")
from asmk import *
from lay import *

NSTEP = 64
SPIN = 400000
CSC = (192 ** -0.5) * math.log2(math.e)

class LQ:
    def __init__(self, k): self.k = k; self.q = []
    def ds(self, ins, tag=None):
        self.k(ins); self.q.append(tag)
        assert len(self.q) <= 15, "too many outstanding LDS ops"
    def wait(self, tag):
        idx = [i for i, t in enumerate(self.q) if t == tag]
        if not idx: return
        n = len(self.q) - 1 - idx[-1]
        self.k(f"s_waitcnt lgkmcnt({n})"); self.q = self.q[idx[-1] + 1:]
    def all(self):
        self.k("s_waitcnt lgkmcnt(0)"); self.q = []

def vr(b, n): return f"v[{b}:{b+n-1}]" if n > 1 else f"v{b}"
def ar(b, n): return f"a[{b}:{b+n-1}]"

def check_valid(k, regs, tmp):
    regs = list(regs)
    k(f"v_max3_u32 v{tmp}, v{regs[0]}, v{regs[1]}, v{regs[2]}")
    rest = regs[3:]
    while len(rest) >= 2:
        k(f"v_max3_u32 v{tmp}, v{tmp}, v{rest[0]}, v{rest[1]}"); rest = rest[2:]
    if rest: k(f"v_max_u32 v{tmp}, v{tmp}, v{rest[0]}")
    k(f"v_cmp_eq_u32 vcc, -1, v{tmp}")

S_WS = 4
SRD = 8
S_ROLE = 12; S_WAVE = 13; S_STEP = 14; S_SPIN = 15
S_EB0 = 16; S_EB1 = 17
S_SB = 18
S_SBN = 19
S_T = 20
S_M8 = 40
S_M2 = 42
S_KX = 44; S_KM = 45; S_Z = 46
S_GK = 47
S_FL = 48
S_LAYER = 49
S_ST = 50
S_OSRD = 84
srd = f"s[{SRD}:{SRD+3}]"

OWN = [[0, 1, 2], [3, 4, 5], [6, 7], [8, 9]]

def slot_base(k, dst, step_s, tmp):
    k(f"s_cmp_lt_u32 s{step_s}, 32")
    k(f"s_cselect_b32 s{dst}, s{S_EB0}, s{S_EB1}")
    k(f"s_and_b32 s{tmp}, s{step_s}, 31")
    k(f"s_lshl_b32 s{tmp}, s{tmp}, 16")
    k(f"s_add_u32 s{dst}, s{dst}, s{tmp}")

def stamp(k, cfg, n, real=False):
    if cfg.get('stamp'):
        k(f"s_mem{'real' if real else ''}time s[{S_ST+2*n}:{S_ST+2*n+1}]")

def stamp_flush(k, cfg, nst, base_off):
    if not cfg.get('stamp'): return
    k("s_waitcnt lgkmcnt(0)")
    sk = k.uniq('stk')
    k(f"s_cmp_lg_u32 s{S_ROLE}, {cfg.get('stamp_role', 0)}")
    k(f"s_cbranch_scc1 {k.ref(sk)}")
    k("s_mov_b64 s[30:31], exec")
    k("s_mov_b64 exec, 1")
    k(f"s_lshl_b32 s32, s{S_STEP}, 6")
    k(f"s_add_u32 s32, s32, {base_off}")
    k("v_mov_b32 v252, 0")
    for n in range(nst):
        k(f"v_mov_b32 v253, s{S_ST+2*n}")
        k(f"buffer_store_dword v253, v252, {srd}, s32 offen offset:{4*n}")
        k("s_nop 1")
    k("s_mov_b64 exec, s[30:31]")
    k.lab(sk)

def rt(k, cfg, n):
    if cfg.get('rt'):
        k(f"s_memrealtime s[{S_ST+2*n}:{S_ST+2*n+1}]")

def rt_flush(k, cfg, rolebase):
    if not cfg.get('rt'): return
    k("s_waitcnt lgkmcnt(0)")
    k("s_mov_b64 exec, 1")
    k(f"s_add_u32 s32, s{S_ROLE}, {rolebase}")
    k("s_lshl_b32 s32, s32, 6")
    k(f"s_add_u32 s32, s32, s{S_STEP}")
    k("s_lshl_b32 s32, s32, 4")
    k(f"s_add_u32 s32, s32, {cfg['rt']}")
    k(f"s_mul_i32 s33, s{S_LAYER}, 0x200000")
    k("s_add_u32 s32, s32, s33")
    k("v_mov_b32 v252, 0")
    for n in range(3):
        k(f"v_mov_b32 v253, s{S_ST+2*n}")
        k(f"buffer_store_dword v253, v252, {srd}, s32 offen offset:{4*n}")
        k("s_nop 1")
    k("s_mov_b64 exec, -1")

def spin_check(k, bail):
    k(f"s_sub_u32 s{S_SPIN}, s{S_SPIN}, 1")
    k(f"s_cbranch_scc1 {bail}")

def wait_progress(k, cfg, tag, step_s, voff, nl, vt):
    if not cfg.get('ovl'): return
    ok = k.ref(tag + '_ok'); lp = tag + '_lp'
    k(f"s_cmp_gt_u32 s{S_GK}, s{step_s}")
    k(f"s_cbranch_scc1 {ok}")
    k.lab(lp)
    k(f"buffer_load_dword v{vt}, v{voff}, {srd}, s{S_FL} offen sc1")
    k("s_waitcnt vmcnt(0)")
    k(f"v_readlane_b32 s{S_GK}, v{vt}, 0")
    if nl == 2:
        k(f"v_readlane_b32 s{S_T+9}, v{vt}, 1")
        k("s_nop 0")
        k(f"s_min_u32 s{S_GK}, s{S_GK}, s{S_T+9}")
    else:
        k("s_nop 0")
    spin_check(k, k.ref('bail'))
    k(f"s_cmp_gt_u32 s{S_GK}, s{step_s}")
    k(f"s_cbranch_scc0 {k.ref(lp)}")
    k.lab(tag + '_ok')

def flag_store(k, cfg, off_s, val_s, va, vb):
    k("s_mov_b64 exec, 1")
    k(f"v_mov_b32 v{va}, s{off_s}")
    k(f"v_mov_b32 v{vb}, s{val_s}")
    k(f"buffer_store_dword v{vb}, v{va}, {srd}, s{S_FL} offen sc1")
    k("s_mov_b64 exec, -1")

PL_NL = 15
PL_WL = 0
PL_MEMI = 4 * PL_NL * 2048
PL_QI = PL_MEMI + 10240
PL_STR = 400
PL_KI = PL_QI + 8 * PL_STR
PL_SP = PL_KI + 8 * PL_STR
PL_END = PL_SP + 4096

V_L16 = 1; V_IDX = 2; V_IW = 3; V_QR = 4; V_KR = 5; V_SPR = 6; V_PX = 7; V_PM = 8; V_KXO = 9
V_KML = 10; V_KMG = 11; V_MASKF = 12; V_WLA = 13; V_MIA = 14; V_SPW = 15
V_GF = 255; V_T0 = 253; V_T1 = 254
AF = 16; PD = 56; PDX = 80; PDM = 84; QF = 88; KXF = 100; TB = 116; PVW = 148

def p_plan(w):
    own = OWN[w]; rest = [ks for ks in range(10) if ks not in own]
    order1 = own + rest
    seq = [(T, ks) for ks in order1 for T in (0, 1, 2)] + [(T, ks) for T in (3, 4, 5) for ks in range(10)]
    ldspos = list(range(9, 30, 2)) + [44, 48, 52, 56]
    assert len(ldspos) == PL_NL
    where = {}
    regops = [i for i in range(60) if i not in ldspos]
    for n, i in enumerate(regops):
        where[seq[i]] = ('a', 8 * n) if n < 32 else ('v', PVW + 8 * (n - 32))
    assert PVW + 8 * (len(regops) - 32) <= 254
    for n, i in enumerate(ldspos): where[seq[i]] = ('l', n)
    return own, rest, seq, ldspos, where

def p_setup_lanes(k):
    k(f"v_lshlrev_b32 v{V_L16}, 4, v0")
    k("v_and_b32 v16, 8, v0")
    k("v_cmp_eq_u32 vcc, 0, v16")
    k("v_mov_b32 v17, 0xeeeeeeee")
    k("v_mov_b32 v18, 0x44444444")
    k(f"v_cndmask_b32 v{V_IDX}, v17, v18, vcc")

def gen_p_wave(k, w, cfg):
    own, rest, seq, ldspos, where = p_plan(w)
    L = lambda s: k.ref(f"p{w}_{s}")
    lab = lambda s: k.lab(f"p{w}_{s}")
    bail = k.ref('bail')
    lq = LQ(k)
    lab('start')
    k("v_lshrrev_b32 v16, 4, v0")
    k("v_and_b32 v17, 15, v0")
    k("v_and_b32 v18, 1, v16")
    k("v_lshlrev_b32 v18, 2, v18")
    k("v_lshrrev_b32 v19, 1, v16")
    k("v_lshl_add_u32 v18, v19, 1, v18")
    k(f"v_mul_u32_u24 v18, {PL_STR}, v18")
    k("v_lshl_add_u32 v18, v17, 1, v18")
    k(f"v_add_u32 v{V_IW}, {PL_QI + 96 * w}, v18")
    k("v_and_b32 v18, 7, v0")
    k(f"v_mul_u32_u24 v18, {PL_STR}, v18")
    k("v_lshrrev_b32 v19, 3, v0")
    k("v_lshl_add_u32 v18, v19, 4, v18")
    k(f"v_add_u32 v{V_QR}, {PL_QI}, v18")
    k("v_and_b32 v18, 7, v0")
    k(f"v_mul_u32_u24 v18, {PL_STR}, v18")
    k("v_lshl_add_u32 v18, v16, 5, v18")
    k(f"v_add_u32 v{V_KR}, {PL_KI}, v18")
    k("v_lshrrev_b32 v18, 1, v16")
    k("v_lshlrev_b32 v18, 10, v18")
    k("v_and_b32 v19, 31, v0")
    k("v_lshl_add_u32 v18, v19, 4, v18")
    k(f"v_add_u32 v{V_SPR}, {PL_SP + 4 * w}, v18")
    k(f"v_add_u32 v{V_SPW}, {PL_SP + 1024 * w}, v{V_L16}")
    k("v_lshrrev_b32 v18, 1, v16")
    k("v_lshlrev_b32 v18, 1, v18")
    k("v_lshrrev_b32 v19, 3, v17")
    k("v_add3_u32 v18, v18, v19, 1")
    k("v_lshrrev_b32 v19, 1, v18")
    k("v_lshlrev_b32 v19, 14, v19")
    k("v_and_b32 v18, 1, v18")
    k("v_lshl_add_u32 v18, v18, 12, v19")
    k("v_and_b32 v19, 1, v16")
    k("v_lshlrev_b32 v19, 4, v19")
    k(f"v_add_u32 v19, {32 * w}, v19")
    k(f"s_lshl_b32 s{S_T}, s{S_ROLE}, 7")
    k(f"v_add_u32 v{V_PM}, s{S_T}, v19")
    k(f"v_add_u32 v{V_PX}, v{V_PM}, v18")
    k(f"v_lshlrev_b32 v18, 4, v17")
    k("v_lshl_add_u32 v18, v16, 10, v18")
    k(f"v_add_u32 v{V_KXO}, {16 * (w & 1) * 16}, v18")
    k(f"v_add_u32 v18, {64 * w}, v0")
    k("v_mul_u32_u24 v19, 2731, v18")
    k("v_lshrrev_b32 v19, 16, v19")
    k("v_mul_u32_u24 v20, 24, v19")
    k("v_sub_u32 v20, v18, v20")
    k(f"v_mul_u32_u24 v21, {PL_STR}, v19")
    k("v_lshl_add_u32 v21, v20, 4, v21")
    k(f"v_add_u32 v{V_KML}, {PL_KI}, v21")
    k("v_lshlrev_b32 v21, 4, v19")
    k(f"v_lshl_add_u32 v{V_KMG}, v20, 7, v21")
    k("v_and_b32 v18, 0x28, v0")
    k("v_cmp_eq_u32 vcc, 0, v18")
    k("v_mov_b32 v18, 1.0")
    k("v_mov_b32 v19, 0")
    k(f"v_cndmask_b32 v{V_MASKF}, v19, v18, vcc")
    k(f"v_add_u32 v{V_WLA}, {PL_WL + w * PL_NL * 2048}, v{V_L16}")
    k(f"v_add_u32 v{V_MIA}, {PL_MEMI}, v{V_L16}")
    k(f"s_mul_i32 s{S_KX}, s{S_ROLE}, {KX_SH}")
    k(f"s_add_u32 s{S_KX}, s{S_KX}, {KX}")
    k(f"s_mul_i32 s{S_KM}, s{S_ROLE}, {KM_SH}")
    k(f"s_add_u32 s{S_KM}, s{S_KM}, {KM}")
    if cfg.get('ovl'):
        k(f"s_mul_i32 s{S_T}, s{S_ROLE}, 6")
        k(f"s_add_u32 s{S_T+1}, s{S_T}, 5")
        k(f"s_lshr_b32 s{S_T}, s{S_T}, 3")
        k(f"s_lshr_b32 s{S_T+1}, s{S_T+1}, 3")
        k(f"s_add_u32 s{S_T}, s{S_T}, 80"); k(f"s_add_u32 s{S_T+1}, s{S_T+1}, 80")
        k(f"s_lshl_b32 s{S_T}, s{S_T}, 7"); k(f"s_lshl_b32 s{S_T+1}, s{S_T+1}, 7")
        k(f"v_mov_b32 v{V_GF}, s{S_T+1}")
        k(f"v_mov_b32 v{V_T0}, s{S_T}")
        k("v_cmp_eq_u32 vcc, 0, v0")
        k("s_nop 1")
        k(f"v_cndmask_b32 v{V_GF}, v{V_GF}, v{V_T0}, vcc")
        k(f"s_mov_b32 s{S_GK}, 0")
    k(f"s_mul_i32 s{S_T}, s{S_ROLE}, 491520")
    k(f"s_add_u32 s{S_T}, s{S_T}, {WP + w * 122880}")
    def wload(dst, T, ks):
        idx = T * 10 + ks
        k(f"s_add_u32 s{S_T+1}, s{S_T}, {idx * 2048}")
        for hi in range(2):
            k(f"buffer_load_dwordx4 {dst(hi)}, v{V_L16}, {srd}, s{S_T+1} offen offset:{hi*1024}")
    lops = [(op, wh[1]) for op, wh in where.items() if wh[0] == 'l']
    rops = [(op, wh) for op, wh in where.items() if wh[0] != 'l']
    for (T, ks), slot in lops:
        wload(lambda hi: vr(16 + 8 * slot + 4 * hi, 4), T, ks)
    nre = 0
    for (T, ks), wh in rops[:16]:
        wload((lambda hi, wh=wh: (ar if wh[0] == 'a' else vr)(wh[1] + 4 * hi, 4)), T, ks)
    k("s_waitcnt vmcnt(32)")
    for (T, ks), slot in lops:
        for hi in range(2):
            k(f"ds_write_b128 v{V_WLA}, {vr(16 + 8 * slot + 4 * hi, 4)} offset:{slot * 2048 + hi * 1024}")
    for (T, ks), wh in rops[16:]:
        wload((lambda hi, wh=wh: (ar if wh[0] == 'a' else vr)(wh[1] + 4 * hi, 4)), T, ks)
    k("s_waitcnt lgkmcnt(0)")
    kxset = [0, 1] if w < 2 else [2]
    SC1 = " sc1" if cfg.get('ovl') else ""
    npf = [0]
    def kx_prefetch(step_s):
        npf[0] += 1
        wait_progress(k, cfg, f"p{w}_gw{npf[0]}", step_s, V_GF, 2, V_T0)
        k(f"s_mul_i32 s{S_T}, s{step_s}, {32 * KX_SH}")
        k(f"s_add_u32 s{S_T}, s{S_T}, s{S_KX}")
        for u, ks in enumerate(kxset):
            k(f"s_add_u32 s{S_T+1}, s{S_T}, {ks * 4096}")
            for hi in range(2):
                k(f"buffer_load_dwordx4 {vr(KXF + 8 * u + 4 * hi, 4)}, v{V_KXO}, {srd}, s{S_T+1} offen offset:{hi * 512}{SC1}")
    def tb_read(n):
        for hi in range(2):
            lq.ds(f"ds_read_b128 {vr(TB + 8 * (n % 4) + 4 * hi, 4)}, v{V_WLA} offset:{n * 2048 + hi * 1024}", ('tb', n))
    def zero_d():
        for r in range(PD, PD + 32): k(f"v_mov_b32 v{r}, 0")
    k(f"s_mov_b32 s{S_STEP}, 0")
    kx_prefetch(S_STEP)
    zero_d()
    for n in range(4): tb_read(n)
    lq.all()
    lab('step')
    slot_base(k, S_SB, S_STEP, S_T)
    for u, ks in enumerate(own):
        k(f"s_add_u32 s{S_T+2+u}, s{S_SB}, {physmap(M_LOG + 1024 * ks)}")
    stamp(k, cfg, 0)
    lab('poll')
    for u, ks in enumerate(own):
        k(f"buffer_load_dwordx4 {vr(AF + 4 * ks, 4)}, v{V_L16}, {srd}, s{S_T+2+u} offen sc1")
    k("s_waitcnt vmcnt(0)")
    for ks in own:
        k(f"ds_write_b128 v{V_MIA}, {vr(AF + 4 * ks, 4)} offset:{ks * 1024}")
    check_valid(k, [AF + 4 * ks + j for ks in own for j in range(4)], QF)
    spin_check(k, bail)
    k(f"s_cbranch_vccnz {L('poll')}")
    lq.all()
    k("s_barrier")
    stamp(k, cfg, 1)
    if w == 0: rt(k, cfg, 0)
    for ks in rest:
        lq.ds(f"ds_read_b128 {vr(AF + 4 * ks, 4)}, v{V_MIA} offset:{ks * 1024}", ('af', ks))
    def post_tile(T, base):
        d = PD + 4 * T
        col = 32 * (T % 3)
        return [
            lambda: k(f"v_permlane32_swap_b32 v{d}, v{d+2}"),
            lambda: k(f"v_permlane32_swap_b32 v{d+1}, v{d+3}"),
            lambda: k(f"v_add_f32 v{d}, v{d}, v{d+2}"),
            lambda: k(f"v_add_f32 v{d+1}, v{d+1}, v{d+3}"),
            lambda: k(f"v_cvt_pk_bf16_f32 v{d}, v{d}, v{d+1}"),
            lambda: lq.ds(f"ds_write_b16 v{V_IW}, v{d} offset:{base + col}", ('img', T)),
            lambda: lq.ds(f"ds_write_b16_d16_hi v{V_IW}, v{d} offset:{base + col + PL_STR}", ('img', T)),
        ]
    side = {i: [] for i in range(60)}
    def put(items, start, per=2):
        i = start
        for it in items:
            while len(side[i]) >= per: i += 1
            side[i].append(it)
        return i
    KO = PL_KI - PL_QI
    e = put(post_tile(0, 0) + post_tile(1, 0) + post_tile(2, 0), 31)
    b1 = e + 2
    side[b1].append(lambda: (lq.wait(('img', 2)), k("s_barrier")))
    for ks in range(3):
        side[b1 + (ks > 0)].append(lambda ks=ks: lq.ds(f"ds_read_b128 {vr(QF + 4 * ks, 4)}, v{V_QR} offset:{ks * 128}", ('qf', ks)))
    put(post_tile(3, KO), b1 + 2)
    sx = b1 + 6
    def smx():
        lq.wait(('qf', 2))
        for u, ks in enumerate(kxset):
            k(f"v_smfmac_f32_16x16x64_bf16 {vr(PDX, 4)}, {vr(QF + 4 * ks, 4)}, {vr(KXF + 8 * u, 8)}, v{V_IDX}")
    side[sx].append(smx)
    put(post_tile(4, KO), 52)
    side[min(sx + 4, 58)].append(lambda: lq.ds(f"ds_write_b128 v{V_SPW}, {vr(PDX, 4)}", 'sp'))
    for i, (T, ks) in enumerate(seq):
        wh = where[(T, ks)]
        if i < 30 and ks in rest: lq.wait(('af', ks))
        if wh[0] == 'l':
            lq.wait(('tb', wh[1]))
            b = vr(TB + 8 * (wh[1] % 4), 8)
        else:
            b = (ar if wh[0] == 'a' else vr)(wh[1], 8)
        k(f"v_smfmac_f32_16x16x64_bf16 {vr(PD + 4 * T, 4)}, {vr(AF + 4 * ks, 4)}, {b}, v{V_IDX}")
        if wh[0] == 'l' and wh[1] + 4 < PL_NL:
            tb_read(wh[1] + 4)
        for it in side[i]: it()
        if i == 29: stamp(k, cfg, 2)
        if i == b1: stamp(k, cfg, 3)
    stamp(k, cfg, 4)
    k("s_nop 7")
    for it in post_tile(5, KO): it()
    lq.all()
    k("s_barrier")
    stamp(k, cfg, 5)
    KF = AF
    X0 = AF + 24
    lq.ds(f"ds_read2st64_b32 {vr(X0, 2)}, v{V_SPR} offset0:0 offset1:2", 'sp0')
    lq.ds(f"ds_read2st64_b32 {vr(X0 + 2, 2)}, v{V_SPR} offset0:8 offset1:10", 'sp1')
    for ks in range(3):
        for hi in range(2):
            lq.ds(f"ds_read_b128 {vr(KF + 8 * ks + 4 * hi, 4)}, v{V_KR} offset:{ks * 128 + hi * 16}", ('kf', ks))
    sx_, mx, t, u, sm, ex, em, tot = X0 + 4, X0 + 5, X0 + 6, X0 + 7, X0 + 8, X0 + 9, X0 + 10, X0 + 11
    lq.wait('sp1')
    k(f"v_add_f32 v{X0}, v{X0}, v{X0+1}")
    k(f"v_add_f32 v{X0+2}, v{X0+2}, v{X0+3}")
    k(f"v_add_f32 v{sx_}, v{X0}, v{X0+2}")
    k(f"v_mul_f32 v{sx_}, {hexf(CSC)}, v{sx_}")
    for ks in range(3):
        lq.wait(('kf', ks))
        k(f"v_smfmac_f32_16x16x64_bf16 {vr(PDM, 4)}, {vr(QF + 4 * ks, 4)}, {vr(KF + 8 * ks, 8)}, v{V_IDX}")
    stamp(k, cfg, 6)
    def dpp(op, dst, src, ctl):
        k(f"{op} v{dst}, v{src}, v{src} {ctl} row_mask:0xf bank_mask:0xf")
    dpp("v_max_f32_dpp", mx, sx_, "row_ror:8"); k("s_nop 1")
    dpp("v_max_f32_dpp", mx, mx, "row_ror:4"); k("s_nop 1")
    dpp("v_max_f32_dpp", mx, mx, "row_ror:2"); k("s_nop 1")
    dpp("v_max_f32_dpp", mx, mx, "row_ror:1")
    k(f"v_mov_b32 v{u}, v{mx}")
    k("s_nop 1")
    k(f"v_permlane32_swap_b32 v{mx}, v{u}")
    k(f"v_max_f32 v{mx}, v{mx}, v{u}")
    dm = PDM + w
    k(f"v_mov_b32 v{u}, v{dm}")
    k("s_nop 1")
    k(f"v_permlane32_swap_b32 v{dm}, v{u}")
    k(f"v_add_f32 v{sm}, v{dm}, v{u}")
    k(f"v_mul_f32 v{sm}, {hexf(CSC)}, v{sm}")
    k("s_nop 1")
    dpp("v_max_f32_dpp", t, sm, "row_ror:4"); k("s_nop 1")
    dpp("v_max_f32_dpp", t, t, "row_ror:2"); k("s_nop 1")
    dpp("v_max_f32_dpp", t, t, "row_ror:1")
    k(f"v_max_f32 v{mx}, v{mx}, v{t}")
    k(f"v_sub_f32 v{ex}, v{sx_}, v{mx}")
    k(f"v_sub_f32 v{em}, v{sm}, v{mx}")
    k(f"v_exp_f32 v{ex}, v{ex}")
    k(f"v_exp_f32 v{em}, v{em}")
    k("s_nop 0")
    k(f"v_fma_f32 v{tot}, v{em}, v{V_MASKF}, v{ex}")
    k("s_nop 1")
    dpp("v_add_f32_dpp", tot, tot, "row_ror:8"); k("s_nop 1")
    dpp("v_add_f32_dpp", tot, tot, "row_ror:4"); k("s_nop 1")
    dpp("v_add_f32_dpp", tot, tot, "row_ror:2"); k("s_nop 1")
    dpp("v_add_f32_dpp", tot, tot, "row_ror:1")
    k(f"v_mov_b32 v{u}, v{tot}")
    k("s_nop 1")
    k(f"v_permlane32_swap_b32 v{tot}, v{u}")
    k(f"v_add_f32 v{tot}, v{tot}, v{u}")
    k(f"v_rcp_f32 v{tot}, v{tot}")
    k("s_nop 0")
    k(f"v_mul_f32 v{ex}, v{ex}, v{tot}")
    k(f"v_mul_f32 v{em}, v{em}, v{tot}")
    ox, om = KF, KF + 4
    k("s_nop 0")
    k(f"v_mov_b32_dpp v{t}, v{ex} quad_perm:[1,0,3,2] row_mask:0xf bank_mask:0xf")
    k(f"v_mov_b32_dpp v{u}, v{em} quad_perm:[1,0,3,2] row_mask:0xf bank_mask:0xf")
    k(f"v_cvt_pk_bf16_f32 v{ox}, v{ex}, v{t}")
    k(f"v_cvt_pk_bf16_f32 v{om}, v{em}, v{u}")
    k("s_nop 0")
    for j in range(1, 4):
        k(f"v_mov_b32_dpp v{ox+j}, v{ox} row_shl:{2*j} row_mask:0xf bank_mask:0xf")
    for j in range(1, 4):
        k(f"v_mov_b32_dpp v{om+j}, v{om} row_shl:{2*j} row_mask:0xf bank_mask:0xf")
    k(f"s_mov_b64 exec, s[{S_M8}:{S_M8+1}]")
    k(f"buffer_store_dwordx4 {vr(ox, 4)}, v{V_PX}, {srd}, s{S_SB} offen sc1")
    k(f"s_mov_b64 exec, s[{S_M2}:{S_M2+1}]")
    k(f"buffer_store_dwordx4 {vr(om, 4)}, v{V_PM}, {srd}, s{S_SB} offen sc1")
    k("s_mov_b64 exec, -1")
    stamp(k, cfg, 7)
    stamp(k, cfg, 8, True)
    if w == 0: rt(k, cfg, 1)
    if w < 3:
        lq.ds(f"ds_read_b128 {vr(X0, 4)}, v{V_KML}", 'km')
    k(f"s_add_u32 s{S_T+8}, s{S_STEP}, 1")
    k(f"s_min_u32 s{S_T+8}, s{S_T+8}, {NSTEP-1}")
    kx_prefetch(S_T + 8)
    zero_d()
    if w < 3:
        lq.wait('km')
        k(f"s_mul_i32 s{S_T}, s{S_STEP}, {32 * KM_SH}")
        k(f"s_add_u32 s{S_T}, s{S_T}, s{S_KM}")
        k(f"buffer_store_dwordx4 {vr(X0, 4)}, v{V_KMG}, {srd}, s{S_T} offen{SC1}")
    if w == 3 and cfg.get('ovl'):
        k(f"s_lshl_b32 s{S_T}, s{S_ROLE}, 7")
        k(f"s_add_u32 s{S_T}, s{S_T}, {FL_PF}")
        flag_store(k, cfg, S_T, S_STEP, V_T0, V_T1)
    for n in range(4): tb_read(n)
    lq.all()
    if w == 0: rt_flush(k, cfg, 0)
    if w == cfg.get('stamp_wave', 0): stamp_flush(k, cfg, 9, cfg.get('stamp_p', 0))
    k(f"s_add_u32 s{S_STEP}, s{S_STEP}, 1")
    k(f"s_cmp_lt_u32 s{S_STEP}, {NSTEP}")
    k(f"s_cbranch_scc1 {L('step')}")
    if cfg.get('ovl'):
        k("s_waitcnt vmcnt(0)")
        k("s_barrier")
        if w == 3:
            k(f"s_lshl_b32 s{S_T}, s{S_ROLE}, 7")
            k(f"s_add_u32 s{S_T}, s{S_T}, {FL_PF}")
            flag_store(k, cfg, S_T, S_STEP, V_T0, V_T1)
    k(f"s_branch {k.ref('end')}")

YL_MEMI = 0
YL_RED = 10240
YV_L16 = 1; YV_IDX = 2; YV_MIA = 3; YV_ZO = 4; YV_PO = 5; YV_RW = 6; YV_RR = 7; YV_MO = 8; YV_GF = 9
YAF = 16; YD = 56; YZB = 72; YPF = 92; YACC = 112; YT = 116; YVW = 176

def gen_y_wave(k, w, cfg):
    own = OWN[w]; rest = [ks for ks in range(10) if ks not in own]
    L = lambda s: k.ref(f"y{w}_{s}")
    lab = lambda s: k.lab(f"y{w}_{s}")
    bail = k.ref('bail')
    lq = LQ(k)
    lab('start')
    k("v_lshrrev_b32 v16, 4, v0")
    k("v_and_b32 v17, 7, v0")
    k("v_lshrrev_b32 v18, 3, v0")
    k("v_and_b32 v18, 1, v18")
    k("v_lshl_add_u32 v19, v18, 2, v16")
    k(f"v_add_u32 v19, {8 * w}, v19")
    k("v_mul_u32_u24 v20, 640, v19")
    k(f"v_lshl_add_u32 v{YV_ZO}, v17, 4, v20")
    k("v_and_b32 v20, 3, v17")
    k("v_lshlrev_b32 v20, 1, v20")
    k("v_lshrrev_b32 v21, 2, v17")
    k("v_add_u32 v20, v20, v21")
    k("v_lshlrev_b32 v20, 4, v20")
    k(f"v_lshl_add_u32 v{YV_PO}, v19, 7, v20")
    k(f"v_add_u32 v{YV_MIA}, {YL_MEMI}, v{YV_L16}")
    k("v_lshlrev_b32 v20, 8, v18")
    k("v_lshl_add_u32 v20, v17, 5, v20")
    k("v_and_b32 v21, 1, v16")
    k("v_lshl_add_u32 v20, v21, 4, v20")
    k(f"v_add_u32 v20, {YL_RED + 512 * w}, v20")
    k(f"v_add_u32 v21, {YL_RED + 2048}, v{YV_L16}")
    k("v_lshrrev_b32 v22, 1, v16")
    k("v_cmp_eq_u32 vcc, v22, v18")
    k("s_nop 1")
    k(f"v_cndmask_b32 v{YV_RW}, v21, v20, vcc")
    k("v_lshrrev_b32 v20, 3, v0")
    k("v_lshlrev_b32 v20, 2, v20")
    k("v_lshl_add_u32 v20, v17, 5, v20")
    k(f"v_add_u32 v{YV_RR}, {YL_RED}, v20")
    k(f"s_lshl_b32 s{S_T}, s{S_ROLE}, 7")
    k(f"s_add_u32 s{S_T}, s{S_T}, {M_LOG}")
    k(f"s_lshr_b32 s{S_T+1}, s{S_T}, 13")
    k(f"s_lshl_b32 s{S_T+1}, s{S_T+1}, 14")
    k(f"s_and_b32 s{S_T}, s{S_T}, 8191")
    k(f"s_add_u32 s{S_T}, s{S_T}, s{S_T+1}")
    k("v_lshrrev_b32 v20, 3, v0")
    k("v_lshlrev_b32 v20, 4, v20")
    k(f"v_add_u32 v{YV_MO}, s{S_T}, v20")
    k(f"s_mul_i32 s{S_Z}, s{S_ROLE}, 20480")
    k(f"s_add_u32 s{S_Z}, s{S_Z}, {Z}")
    k(f"s_mul_i32 s{S_T}, s{S_ROLE}, 327680")
    k(f"s_add_u32 s{S_T}, s{S_T}, {WY + w * 81920}")
    def wreg(T, ks):
        n = T * 10 + ks
        return ('a', 8 * n) if n < 32 else ('v', YVW + 8 * (n - 32))
    for T in range(4):
        for ks in range(10):
            wh = wreg(T, ks)
            k(f"s_add_u32 s{S_T+1}, s{S_T}, {(T * 10 + ks) * 2048}")
            for hi in range(2):
                d = (ar if wh[0] == 'a' else vr)(wh[1] + 4 * hi, 4)
                k(f"buffer_load_dwordx4 {d}, v{YV_L16}, {srd}, s{S_T+1} offen offset:{hi*1024}")
    k(f"s_mov_b32 s{S_STEP}, 0")
    SC1 = " sc1" if cfg.get('ovl') else ""
    if cfg.get('ovl'):
        k(f"s_lshl_b32 s{S_T}, s{S_ROLE}, 7")
        k(f"v_mov_b32 v{YV_GF}, s{S_T}")
        k(f"s_mov_b32 s{S_GK}, 0")
    lab('step')
    slot_base(k, S_SB, S_STEP, S_T)
    wait_progress(k, cfg, f"y{w}_gw", S_STEP, YV_GF, 1, YT)
    k(f"s_mul_i32 s{S_T+8}, s{S_STEP}, {Z_SEG}")
    k(f"s_add_u32 s{S_T+8}, s{S_T+8}, s{S_Z}")
    for t in range(1, 5):
        k(f"buffer_load_dwordx4 {vr(YZB + 4 * t, 4)}, v{YV_ZO}, {srd}, s{S_T+8} offen offset:{t*128}{SC1}")
    for r in range(YD, YD + 16): k(f"v_mov_b32 v{r}, 0")
    for u, ks in enumerate(own):
        k(f"s_add_u32 s{S_T+2+u}, s{S_SB}, {physmap(M_LOG + 1024 * ks)}")
    stamp(k, cfg, 0)
    lab('poll')
    for u, ks in enumerate(own):
        k(f"buffer_load_dwordx4 {vr(YAF + 4 * ks, 4)}, v{YV_L16}, {srd}, s{S_T+2+u} offen sc1")
    k("s_waitcnt vmcnt(0)")
    for ks in own:
        k(f"ds_write_b128 v{YV_MIA}, {vr(YAF + 4 * ks, 4)} offset:{ks * 1024}")
    check_valid(k, [YAF + 4 * ks + j for ks in own for j in range(4)], YT)
    spin_check(k, bail)
    k(f"s_cbranch_vccnz {L('poll')}")
    lq.all()
    k("s_barrier")
    stamp(k, cfg, 1)
    if w == 0: rt(k, cfg, 0)
    for ks in rest:
        lq.ds(f"ds_read_b128 {vr(YAF + 4 * ks, 4)}, v{YV_MIA} offset:{ks * 1024}", ('af', ks))
    for ks in own + rest:
        if ks in rest: lq.wait(('af', ks))
        for T in range(4):
            wh = wreg(T, ks)
            b = (ar if wh[0] == 'a' else vr)(wh[1], 8)
            k(f"v_smfmac_f32_16x16x64_bf16 {vr(YD + 4 * T, 4)}, {vr(YAF + 4 * ks, 4)}, {b}, v{YV_IDX}")
    k("s_nop 7")
    D = lambda T, r: YD + 4 * T + r
    for r in range(4):
        k(f"v_permlane32_swap_b32 v{D(0,r)}, v{D(2,r)}")
        k(f"v_permlane32_swap_b32 v{D(1,r)}, v{D(3,r)}")
    for r in range(4):
        k(f"v_add_f32 v{D(0,r)}, v{D(0,r)}, v{D(2,r)}")
        k(f"v_add_f32 v{D(1,r)}, v{D(1,r)}, v{D(3,r)}")
    k("s_nop 1")
    for r in range(4):
        k(f"v_permlane16_swap_b32 v{D(0,r)}, v{D(1,r)}")
    k("s_nop 1")
    k(f"v_cvt_pk_bf16_f32 v{YZB}, v{D(0,0)}, v{D(0,1)}")
    k(f"v_cvt_pk_bf16_f32 v{YZB+1}, v{D(0,2)}, v{D(0,3)}")
    k(f"v_cvt_pk_bf16_f32 v{YZB+2}, v{D(1,0)}, v{D(1,1)}")
    k(f"v_cvt_pk_bf16_f32 v{YZB+3}, v{D(1,2)}, v{D(1,3)}")
    k(f"buffer_store_dwordx4 {vr(YZB, 4)}, v{YV_ZO}, {srd}, s{S_T+8} offen{SC1}")
    stamp(k, cfg, 2)
    k(f"s_cmp_eq_u32 s{S_STEP}, {NSTEP-1}")
    k(f"s_cbranch_scc1 {L('last') if cfg.get('ovl') else k.ref('end')}")
    for t in range(5):
        k(f"s_add_u32 s{S_T+10+t}, s{S_SB}, {physmap(t * 4096)}")
    k(f"s_add_u32 s{S_T+9}, s{S_STEP}, 1")
    slot_base(k, S_SBN, S_T + 9, S_T)
    lab('ppoll')
    for t in range(5):
        k(f"buffer_load_dwordx4 {vr(YPF + 4 * t, 4)}, v{YV_PO}, {srd}, s{S_T+10+t} offen sc1")
    k("s_waitcnt vmcnt(0)")
    for t in range(5):
        c = "0" if t == 0 else vr(YACC, 4)
        k(f"v_mfma_f32_16x16x32_bf16 {vr(YACC, 4)}, {vr(YPF + 4 * t, 4)}, {vr(YZB + 4 * t, 4)}, {c}")
    check_valid(k, range(YPF, YPF + 20), YT)
    spin_check(k, bail)
    k(f"s_cbranch_vccnz {L('ppoll')}")
    stamp(k, cfg, 3)
    if w == 0: rt(k, cfg, 1)
    lq.ds(f"ds_write_b128 v{YV_RW}, {vr(YACC, 4)}", 'rw')
    lq.all()
    k("s_barrier")
    if w == 0:
        for u in range(4):
            lq.ds(f"ds_read2st64_b32 {vr(YT + 2 * u, 2)}, v{YV_RR} offset0:{2*u} offset1:{2*u+1}", ('rr', u))
        lq.wait(('rr', 1))
        k(f"v_add_f32 v{YT}, v{YT}, v{YT+1}")
        k(f"v_add_f32 v{YT+2}, v{YT+2}, v{YT+3}")
        lq.wait(('rr', 3))
        k(f"v_add_f32 v{YT+4}, v{YT+4}, v{YT+5}")
        k(f"v_add_f32 v{YT+6}, v{YT+6}, v{YT+7}")
        k(f"v_add_f32 v{YT}, v{YT}, v{YT+2}")
        k(f"v_add_f32 v{YT+4}, v{YT+4}, v{YT+6}")
        k(f"v_add_f32 v{YT}, v{YT}, v{YT+4}")
        k("s_nop 1")
        k(f"v_mov_b32_dpp v{YT+1}, v{YT} quad_perm:[1,0,3,2] row_mask:0xf bank_mask:0xf")
        k(f"v_cvt_pk_bf16_f32 v{YT+8}, v{YT}, v{YT+1}")
        k("s_nop 1")
        for j in range(1, 4):
            k(f"v_mov_b32_dpp v{YT+8+j}, v{YT+8} row_shl:{2*j} row_mask:0xf bank_mask:0xf")
        k(f"s_mov_b64 exec, s[{S_M8}:{S_M8+1}]")
        k(f"buffer_store_dwordx4 {vr(YT + 8, 4)}, v{YV_MO}, {srd}, s{S_SBN} offen sc1")
        k("s_mov_b64 exec, -1")
        if cfg.get('ovl'):
            k(f"s_lshl_b32 s{S_T}, s{S_ROLE}, 7")
            k(f"s_add_u32 s{S_T}, s{S_T}, {FL_YF}")
            flag_store(k, cfg, S_T, S_T + 9, YT, YT + 1)
        stamp(k, cfg, 4)
        rt(k, cfg, 2)
        rt_flush(k, cfg, 32)
        stamp_flush(k, cfg, 5, cfg.get('stamp_y', 0))
    k(f"s_add_u32 s{S_STEP}, s{S_STEP}, 1")
    k(f"s_branch {L('step')}")
    if cfg.get('ovl'):
        lab('last')
        k("s_waitcnt vmcnt(0)")
        k("s_barrier")
        if w == 0:
            k(f"s_lshl_b32 s{S_T}, s{S_ROLE}, 7")
            k(f"s_add_u32 s{S_T}, s{S_T}, {FL_YF}")
            k(f"s_mov_b32 s{S_T+9}, {NSTEP}")
            flag_store(k, cfg, S_T, S_T + 9, YT, YT + 1)
        k(f"s_branch {k.ref('end')}")

def role_assign(k, cfg):
    k(f"s_lshl_b32 s19, s{S_LAYER}, 11")
    k(f"s_add_u32 s19, s19, {CT_TICK}")
    k("s_getreg_b32 s20, hwreg(HW_REG_XCC_ID)")
    k("s_and_b32 s20, s20, 7")
    if cfg.get('fake_xcc') is not None:
        k(f"s_and_b32 s20, s2, {cfg['fake_xcc']}")
    k(f"s_cmp_lg_u32 s{S_WAVE}, 0")
    k(f"s_cbranch_scc1 {k.ref('tk_wait')}")
    k("s_lshl_b32 s22, s20, 8")
    k("s_add_u32 s22, s22, s19")
    k("s_mov_b64 exec, 1")
    k("v_mov_b32 v2, 0")
    k("v_mov_b32 v3, 1")
    k(f"buffer_atomic_add v3, v2, {srd}, s22 offen sc0 sc1")
    k("s_waitcnt vmcnt(0)")
    k("s_mov_b64 exec, -1")
    k("s_nop 0")
    k("v_readfirstlane_b32 s21, v3")
    k("s_cmp_lt_u32 s21, 32")
    k(f"s_cbranch_scc1 {k.ref('tk_pub')}")
    k("v_lshlrev_b32 v2, 8, v0")
    k("v_and_b32 v2, 0x7ff, v2")
    k("s_mov_b32 s22, s19")
    k.lab('tk_poll')
    k(f"buffer_load_dword v3, v2, {srd}, s22 offen sc1")
    k("s_waitcnt vmcnt(0)")
    k("s_mov_b32 s23, 0")
    for x in range(8):
        k(f"v_readlane_b32 s{24+x}, v3, {x}")
        k("s_nop 0")
        k(f"s_add_u32 s23, s23, s{24+x}")
    spin_check(k, k.ref('bail'))
    k("s_cmp_lt_u32 s23, 256")
    k(f"s_cbranch_scc1 {k.ref('tk_poll')}")
    k("s_sub_u32 s21, s21, 32")
    for x in range(7):
        k(f"s_max_u32 s23, s{24+x}, 32")
        k("s_sub_u32 s23, s23, 32")
        k(f"s_cmp_gt_u32 s20, {x}")
        k("s_cselect_b32 s23, s23, 0")
        k("s_add_u32 s21, s21, s23")
    for x in range(8):
        k(f"s_min_u32 s23, s{24+x}, 32")
        k("s_sub_u32 s22, 32, s23")
        k("s_cmp_lt_u32 s21, s22")
        k(f"s_cbranch_scc0 {k.ref(f'tk_n{x}')}")
        k(f"s_mov_b32 s20, {x}")
        k("s_add_u32 s21, s21, s23")
        k(f"s_branch {k.ref('tk_pub')}")
        k.lab(f'tk_n{x}')
        k("s_sub_u32 s21, s21, s22")
    k(f"s_branch {k.ref('bail')}")
    k.lab('tk_pub')
    k("s_lshl_b32 s22, s20, 8")
    k("s_or_b32 s22, s22, s21")
    k("v_mov_b32 v2, 0")
    k("v_mov_b32 v3, s22")
    k("ds_write_b32 v2, v3")
    k("s_waitcnt lgkmcnt(0)")
    k.lab('tk_wait')
    k("s_barrier")
    k("v_mov_b32 v2, 0")
    k("ds_read_b32 v3, v2")
    k("s_waitcnt lgkmcnt(0)")
    k("v_readfirstlane_b32 s22, v3")
    k("s_barrier")
    k("s_lshr_b32 s20, s22, 8")
    k("s_and_b32 s21, s22, 255")

def build_chain(name, layer, cfg=None):
    import work
    cfg = cfg or {}
    k = K(name if layer is not None else name + "1", vgpr=256, sgpr=100, agpr=256)
    stub = None
    if layer is None:
        stub = K(name + "2", vgpr=256, sgpr=100, agpr=256)
        stub(f"s_mov_b32 s{S_LAYER}, 1")
        stub(f"s_branch {k.ref('body')}")
        k(f"s_mov_b32 s{S_LAYER}, 0")
        k.lab('body')
    else:
        k(f"s_mov_b32 s{S_LAYER}, {layer}")
    k("s_cmp_ge_u32 s2, 256")
    k(f"s_cbranch_scc1 {k.ref('end0')}")
    if cfg.get('rt'): k("s_memrealtime s[90:91]")
    k.ptr(KA_WS, S_WS)
    k.ptr(KA_OUT, 6)
    k("v_lshrrev_b32 v1, 6, v0")
    k("v_and_b32 v0, 63, v0")
    k("s_nop 0")
    k(f"v_readfirstlane_b32 s{S_WAVE}, v1")
    k(f"s_mov_b32 s{S_SPIN}, {SPIN}")
    k("s_waitcnt lgkmcnt(0)")
    k.srd(SRD, S_WS, WS_BYTES)
    k(f"s_add_u32 s22, s{S_WS}, {A_X2}")
    k(f"s_addc_u32 s23, s{S_WS+1}, 0")
    k(f"s_cmp_eq_u32 s{S_LAYER}, 0")
    k(f"s_cselect_b32 s{S_OSRD}, s22, s6")
    k(f"s_cselect_b32 s{S_OSRD+1}, s23, s7")
    k(f"s_mov_b32 s{S_OSRD+2}, {2048 * 640 * 2}")
    k(f"s_mov_b32 s{S_OSRD+3}, 0x00020000")
    k(f"s_mul_i32 s{S_FL}, s{S_LAYER}, {FL_LAYER}")
    k(f"s_add_u32 s{S_FL}, s{S_FL}, {CT_FLAG}")
    role_assign(k, cfg)
    if cfg.get('rt'):
        k("s_lshl_b32 s92, s20, 8"); k("s_or_b32 s92, s92, s21")
    k(f"s_sub_u32 s22, 0, s{S_WS}")
    k("s_and_b32 s22, s22, 0x1fffff")
    k(f"s_lshl_b32 s23, s{S_LAYER}, 3")
    k(f"s_add_u32 s23, s23, {CT_PAR}")
    k(f"s_buffer_load_dwordx2 s[24:25], {srd}, s23")
    k("s_waitcnt lgkmcnt(0)")
    k("s_and_b32 s24, s24, 8192")
    k("s_and_b32 s25, s25, 8192")
    k(f"s_mul_i32 s23, s{S_LAYER}, {2 * EX_BLOCK}")
    k("s_add_u32 s22, s22, s23")
    k(f"s_add_u32 s{S_EB0}, s22, s24")
    k(f"s_add_u32 s{S_EB1}, s22, s25")
    k(f"s_add_u32 s{S_EB1}, s{S_EB1}, {EX_BLOCK}")
    k(f"s_mov_b32 s{S_M8}, 0x01010101")
    k(f"s_mov_b32 s{S_M8+1}, 0x01010101")
    k(f"s_mov_b32 s{S_M2}, 0x00010001")
    k(f"s_mov_b32 s{S_M2+1}, 0")
    p_setup_lanes(k)
    ovl = cfg.get('ovl')
    other = k.ref('w3') if ovl else k.ref('end')
    k("s_cmp_eq_u32 s20, 0")
    k(f"s_cbranch_scc0 {k.ref('notp')}")
    k(f"s_mov_b32 s{S_ROLE}, s21")
    for w in range(4):
        k(f"s_cmp_eq_u32 s{S_WAVE}, {w}")
        k(f"s_cbranch_scc1 {k.ref(f'p{w}_start')}")
    k.lab('notp')
    k("s_cmp_ge_u32 s20, 4")
    k(f"s_cbranch_scc1 {k.ref('proj') if ovl else k.ref('end')}")
    k("s_cmp_ge_u32 s21, 27")
    k(f"s_cbranch_scc1 {other}")
    k("s_sub_u32 s22, s20, 1")
    k("s_mul_i32 s22, s22, 27")
    k(f"s_add_u32 s{S_ROLE}, s22, s21")
    k(f"s_cmp_ge_u32 s{S_ROLE}, 80")
    k(f"s_cbranch_scc1 {other}")
    for w in range(4):
        k(f"s_cmp_eq_u32 s{S_WAVE}, {w}")
        k(f"s_cbranch_scc1 {k.ref(f'y{w}_start')}")
    k(f"s_branch {k.ref('end')}")
    for w in range(4): gen_p_wave(k, w, cfg)
    for w in range(4): gen_y_wave(k, w, cfg)
    if ovl:
        k.lab('proj')
        k("s_sub_u32 s22, s20, 4")
        k("s_lshl_b32 s22, s22, 5")
        k(f"s_add_u32 s{S_ROLE}, s22, s21")
        k(f"s_mov_b32 s{work.GS_SEG}, 0")
        k(f"s_mov_b32 s{work.GS_END}, 64")
        work.role_gemm(k, S_ROLE, dict(cfg, flag_s=S_FL))
        if cfg.get('rt'):
            k("s_memrealtime s[96:97]"); k("s_waitcnt lgkmcnt(0)"); k("s_mov_b32 s93, s96")
        if cfg.get('w3_join', 128) < 128:
            k(f"s_cmp_ge_u32 s{S_ROLE}, {cfg['w3_join']}")
            k(f"s_cbranch_scc1 {k.ref('end')}")
        k.lab('w3')
        k(f"s_mov_b32 s{S_SPIN}, {SPIN}")
        work.role_w3_loop(k, cfg, S_FL, S_SPIN, f"s[{S_OSRD}:{S_OSRD+3}]", S_LAYER)
        k(f"s_branch {k.ref('end')}")
    k.lab('bail')
    k("s_mov_b64 exec, 1")
    k.ptr(KA_DBG, 6)
    k("s_waitcnt lgkmcnt(0)")
    k.srd(24, 6, 256)
    k("v_mov_b32 v1, 0xdead")
    k(f"v_mov_b32 v2, s{S_STEP}")
    k("v_mov_b32 v3, 0")
    k("buffer_store_dword v1, v3, s[24:27], 0 offen")
    k("buffer_store_dword v2, v3, s[24:27], 0 offen offset:4")
    k.lab('end')
    if cfg.get('rt'):
        k("s_memrealtime s[94:95]")
        k("s_waitcnt lgkmcnt(0)")
        k("s_mov_b64 exec, 1")
        k("s_lshl_b32 s32, s2, 2")
        k(f"s_add_u32 s32, s32, s{S_WAVE}")
        k("s_lshl_b32 s32, s32, 4")
        k(f"s_mul_i32 s33, s{S_LAYER}, 0x200000")
        k("s_add_u32 s32, s32, s33")
        k(f"s_add_u32 s32, s32, {cfg['rt'] + 0x100000}")
        k("v_mov_b32 v252, 0")
        for n, sr in enumerate((90, 94, 92, 93)):
            k(f"v_mov_b32 v253, s{sr}")
            k(f"buffer_store_dword v253, v252, {srd}, s32 offen offset:{4*n}")
            k("s_nop 1")
    k.lab('end0')
    if stub is not None: return k, stub
    return k

if __name__ == "__main__":
    STP = 240 * MB
    ks = [build_chain("chain", 0, {}),
          build_chain("chainst", 0, {'stamp': True, 'stamp_p': STP, 'stamp_y': STP + 65536}),
          build_chain("chainrt", 0, {'rt': STP + MB})]
    launches = [(k_, 256, 256, PL_END) for k_ in ks]
    open("chain.s", "w").write(listfile(launches, ks))
    print("lds", PL_END)
```

```python
WS_BYTES = 268435456
MB = 1 << 20
EX_BLOCK = 2 * MB
EX_STEP = 65536
CTRL = 10 * MB
CT_TICK = CTRL
CT_PAR = CTRL + 0x10000
CT_FLAG = CTRL + 0x20000
FL_LAYER = 0x8000
FL_G = 0
FL_PF = 0x4000
FL_YF = 0x5000
FL_WA = 0x7800
FL_JOB = 0x7c00
WP = 11 * MB
WY = 26 * MB
KX = 51 * MB
QX = 75 * MB
Z = 99 * MB
KM = 199 * MB
PXB = 205 * MB
XN = 210 * MB
END0 = 213 * MB
A_XN = 213 * MB; A_X1 = 216 * MB; A_QA = 219 * MB; A_KVT = 222 * MB; A_OA = 228 * MB
A_KVZ = 231 * MB; A_PQKVA = 232 * MB; A_PWOA = 235 * MB; A_X2 = 236 * MB
XN_SEG = 40960
PX_SEG = 81920

Z_SEG = 80 * 20480
KX_SH = 32 * 384
KM_SH = 8 * 384

def physmap(o):
    return ((o >> 13) << 14) | (o & 8191)

P_LOG = 0
M_LOG = 20480
CAL_LOG = 30720

def alpha(gb, jb):
    return 32 * (jb >> 3) + 16 * (gb >> 1) + 8 * ((jb >> 1) & 1) + 4 * (gb & 1) + 2 * ((jb >> 2) & 1) + (jb & 1)

def p2e(p):
    return 64 * (p >> 6) + alpha((p >> 4) & 3, p & 15)

def islot(i):
    return 2 * (i & 3) + (i >> 2)
```

```python
import sys, math
sys.path.insert(0, "/code"); sys.path.insert(0, "tools")
from asmk import *
from lay import *

CSC = (192 ** -0.5) * math.log2(math.e)
S_WS = 4; SRD = 8; S_WAVE = 13
srd = f"s[{SRD}:{SRD+3}]"
def vr(b, n): return f"v[{b}:{b+n-1}]" if n > 1 else f"v{b}"
def ar(b, n): return f"a[{b}:{b+n-1}]"

def prologue(k, extra_ptrs=()):
    k.ptr(KA_WS, S_WS)
    for slot, s in extra_ptrs: k.ptr(slot, s)
    k("v_lshrrev_b32 v1, 6, v0")
    k("v_and_b32 v0, 63, v0")
    k("s_nop 0")
    k(f"v_readfirstlane_b32 s{S_WAVE}, v1")
    k("s_waitcnt lgkmcnt(0)")
    k.srd(SRD, S_WS, WS_BYTES)

def ex_delta(k, dst):
    k(f"s_sub_u32 s{dst}, 0, s{S_WS}")
    k(f"s_and_b32 s{dst}, s{dst}, 0x1fffff")

def p2e_lane(k, dst, p, t0, t1):
    k(f"v_and_b32 v{dst}, 0xc1, v{p}")
    k(f"v_and_b32 v{t0}, 8, v{p}")
    k(f"v_lshl_or_b32 v{dst}, v{t0}, 2, v{dst}")
    k(f"v_and_b32 v{t0}, 32, v{p}")
    k(f"v_lshrrev_b32 v{t0}, 1, v{t0}")
    k(f"v_or_b32 v{dst}, v{dst}, v{t0}")
    k(f"v_and_b32 v{t0}, 2, v{p}")
    k(f"v_lshl_or_b32 v{dst}, v{t0}, 2, v{dst}")
    k(f"v_and_b32 v{t0}, 16, v{p}")
    k(f"v_lshrrev_b32 v{t0}, 2, v{t0}")
    k(f"v_or_b32 v{dst}, v{dst}, v{t0}")
    k(f"v_and_b32 v{t0}, 4, v{p}")
    k(f"v_lshrrev_b32 v{t0}, 1, v{t0}")
    k(f"v_or_b32 v{dst}, v{dst}, v{t0}")

def wp_block_off(k, dst, x, isk, t0, t1):
    k(f"v_lshrrev_b32 v{t0}, 4, v{x}")
    k(f"v_mul_u32_u24 v{t1}, 11, v{t0}")
    k(f"v_lshrrev_b32 v{t1}, 5, v{t1}")
    k(f"v_mul_u32_u24 v{t1}, 3, v{t1}")
    k(f"v_add_u32 v{t0}, v{t0}, v{t1}")
    if isk: k(f"v_add_u32 v{t0}, 3, v{t0}")
    k(f"v_mul_u32_u24 v{t0}, 20480, v{t0}")
    k(f"v_and_b32 v{t1}, 15, v{x}")
    k(f"v_lshl_add_u32 v{dst}, v{t1}, 4, v{t0}")

CH_ROW = [0, 1, 8, 9, 2, 3, 10, 11]

def chunk_base_lane(k, dst, c, t0):
    k(f"v_lshrrev_b32 v{dst}, 2, v{c}")
    k(f"v_lshlrev_b32 v{dst}, 5, v{dst}")
    k(f"v_and_b32 v{t0}, 2, v{c}")
    k(f"v_lshl_add_u32 v{dst}, v{t0}, 3, v{dst}")
    k(f"v_and_b32 v{t0}, 1, v{c}")
    k(f"v_lshl_add_u32 v{dst}, v{t0}, 2, v{dst}")

N_WVO = 160
N_PWP = 240
N_CLR = 64
PREP_WG = N_WVO + N_PWP + N_CLR + 1

def role_wvo(k):
    L = lambda s: k.ref('wvo_' + s)
    k.ptr(KA_WV, 24); k.ptr(KA_WO, 26)
    k("s_and_b32 s21, s20, 1")
    k("s_lshr_b32 s22, s20, 1")
    k("s_mul_i32 s23, s22, 205")
    k("s_lshr_b32 s23, s23, 11")
    k("s_mul_i32 s28, s23, 10")
    k("s_sub_u32 s22, s22, s28")
    k("s_waitcnt lgkmcnt(0)")
    k.srd(32, 24, 640 * 6144 * 2)
    k.srd(36, 26, 6144 * 640 * 2)
    VI, VH = 1, 2
    k(f"v_and_b32 v{VI}, 31, v0")
    k(f"v_lshrrev_b32 v{VH}, 5, v0")
    BE, BO, TMP = 16, 64, 112
    k(f"v_mul_u32_u24 v3, {8 * 1280}, v{VH}")
    k(f"v_lshl_add_u32 v3, v{VI}, 2, v3")
    k(f"s_mul_i32 s28, s23, {192*1280}")
    k("s_lshl_b32 s29, s22, 7")
    k("s_add_u32 s28, s28, s29")
    for half in range(2):
        for kk in range(6):
            kap = half * 6 + kk
            for j in range(8):
                row = 16 * kap + j
                k(f"s_add_u32 s29, s28, {row * 1280}")
                k(f"buffer_load_dword v{TMP + 8 * kk + j}, v3, s[36:39], s29 offen")
        k("v_mov_b32 v4, 0x05040100")
        k("v_mov_b32 v5, 0x07060302")
        k("s_waitcnt vmcnt(0)")
        for kk in range(6):
            kap = half * 6 + kk
            for m in range(4):
                k(f"v_perm_b32 v{BE + 4 * kap + m}, v{TMP + 8 * kk + 2 * m + 1}, v{TMP + 8 * kk + 2 * m}, v4")
                k(f"v_perm_b32 v{BO + 4 * kap + m}, v{TMP + 8 * kk + 2 * m + 1}, v{TMP + 8 * kk + 2 * m}, v5")
    k(f"v_lshrrev_b32 v6, 3, v{VI}")
    chunk_base_lane(k, 7, 6, 8)
    k(f"v_and_b32 v8, 7, v{VI}")
    k("v_and_b32 v9, 1, v8")
    k("v_add_u32 v7, v7, v9")
    k("v_and_b32 v9, 2, v8")
    k("v_lshl_add_u32 v7, v9, 2, v7")
    k("v_lshrrev_b32 v9, 2, v8")
    k("v_lshl_add_u32 v7, v9, 1, v7")
    k("v_mul_u32_u24 v7, 12288, v7")
    k(f"v_lshl_add_u32 v7, v{VH}, 4, v7")
    k("s_mul_i32 s28, s23, 384")
    k(f"s_mul_i32 s29, s21, {10 * 32 * 12288}")
    k("s_add_u32 s28, s28, s29")
    k(f"v_lshrrev_b32 v10, 2, v{VI}")
    k("v_mul_u32_u24 v10, 20480, v10")
    k("v_lshlrev_b32 v10, 4, v10")
    k(f"v_and_b32 v11, 3, v{VI}")
    k("v_lshl_add_u32 v10, v11, 5, v10")
    k(f"v_lshl_add_u32 v10, v{VH}, 8, v10")
    k(f"s_mul_i32 s30, s22, {8 * 327680}")
    k("s_lshr_b32 s31, s23, 3")
    k("s_mul_i32 s31, s31, 81920")
    k("s_add_u32 s30, s30, s31")
    k("s_and_b32 s31, s23, 3")
    k("s_mul_i32 s31, s31, 20480")
    k("s_add_u32 s30, s30, s31")
    k("s_bfe_u32 s31, s23, 0x10002")
    k("s_lshl_b32 s31, s31, 7")
    k("s_add_u32 s30, s30, s31")
    k(f"s_mul_i32 s31, s21, 10240")
    k("s_add_u32 s30, s30, s31")
    k(f"s_add_u32 s30, s30, {WY}")
    AF0, AF1, ACC, OUT = 112, 160, 208, 240
    def aload(dst):
        for kap in range(12):
            k(f"buffer_load_dwordx4 {vr(dst + 4 * kap, 4)}, v7, s[32:35], s28 offen offset:{kap * 32}")
        k(f"s_add_u32 s28, s28, {32 * 12288}")
    def tile(src):
        for kap in range(12):
            for t, B in ((0, BE), (1, BO)):
                c = "0" if kap == 0 else vr(ACC + 16 * t, 16)
                k(f"v_mfma_f32_32x32x16_bf16 {vr(ACC + 16 * t, 16)}, {vr(src + 4 * kap, 4)}, {vr(B + 4 * kap, 4)}, {c}")
        k("s_nop 7"); k("s_nop 7")
        for t in range(2):
            a = ACC + 16 * t
            for j in range(2):
                o = OUT + 4 * j
                for q in range(2):
                    k(f"v_cvt_pk_bf16_f32 v{o + 2 * q}, v{a + 8 * j + 4 * q}, v{a + 8 * j + 4 * q + 1}")
                    k(f"v_cvt_pk_bf16_f32 v{o + 2 * q + 1}, v{a + 8 * j + 4 * q + 2}, v{a + 8 * j + 4 * q + 3}")
                k("s_nop 1")
                k(f"v_permlane32_swap_b32 v{o}, v{o + 2}")
                k(f"v_permlane32_swap_b32 v{o + 1}, v{o + 3}")
                k(f"buffer_store_dwordx4 {vr(o, 4)}, v10, {srd}, s30 offen offset:{j * 512 + t * 16}")
            k("s_nop 1")
        k("s_add_u32 s30, s30, 1024")
    aload(AF0)
    k("s_mov_b32 s31, 5")
    k.lab('wvo_loop')
    aload(AF1)
    k("s_waitcnt vmcnt(12)")
    tile(AF0)
    k("s_cmp_eq_u32 s31, 1")
    k(f"s_cbranch_scc1 {L('last')}")
    aload(AF0)
    k("s_waitcnt vmcnt(12)")
    tile(AF1)
    k("s_sub_u32 s31, s31, 1")
    k(f"s_branch {L('loop')}")
    k.lab('wvo_last')
    k("s_waitcnt vmcnt(0)")
    tile(AF1)
    k(f"s_branch {k.ref('end')}")

def role_pwp(k):
    L = lambda s: k.ref('pwp_' + s)
    k("s_mul_i32 s21, s20, 13108"); k("s_lshr_b32 s21, s21, 16")
    k("s_mul_i32 s22, s21, 5"); k("s_sub_u32 s22, s20, s22")
    k("s_mul_i32 s23, s21, 21846"); k("s_lshr_b32 s23, s23, 16")
    k("s_mul_i32 s28, s23, 3"); k("s_sub_u32 s21, s21, s28")
    k("s_lshr_b32 s29, s23, 5")
    k("s_and_b32 s23, s23, 31")
    k("s_cmp_eq_u32 s29, 0")
    k(f"s_cbranch_scc0 {L('k')}")
    k.ptr(KA_WQ, 24)
    k(f"s_branch {L('go')}")
    k.lab('pwp_k')
    k.ptr(KA_WK, 24)
    k.lab('pwp_go')
    k("v_and_b32 v1, 31, v0")
    k("v_lshrrev_b32 v2, 5, v0")
    k("s_lshl_b32 s28, s21, 6")
    k("v_lshlrev_b32 v3, 1, v1")
    k("v_add_u32 v3, s28, v3")
    p2e_lane(k, 4, 3, 5, 6)
    k("s_cmp_eq_u32 s29, 0")
    k("s_cselect_b64 vcc, -1, 0")
    k("s_nop 1")
    k("v_cndmask_b32 v4, v4, v3, vcc")
    wp_block_off(k, 7, 3, 0, 5, 6)
    k(f"s_mul_i32 s30, s29, {3*20480}")
    k("s_mul_i32 s31, s23, 491520")
    k("s_add_u32 s30, s30, s31")
    k(f"s_add_u32 s30, s30, {WP}")
    k("s_lshl_b32 s31, s22, 4")
    k("v_add_u32 v8, s31, v2")
    k("s_waitcnt lgkmcnt(0)")
    k.srd(32, 24, 640 * 6144 * 2)
    k("s_mul_i32 s28, s23, 384")
    RAW, OUT = 16, 80
    for it in range(8):
        k(f"v_add_u32 v9, {2 * it}, v8")
        chunk_base_lane(k, 10, 9, 11)
        k("v_mul_u32_u24 v10, 12288, v10")
        k("v_lshl_add_u32 v10, v4, 1, v10")
        for j in range(8):
            k(f"s_add_u32 s31, s28, {CH_ROW[j] * 12288}")
            k(f"buffer_load_dword v{RAW + 8 * it + j}, v10, s[32:35], s31 offen")
    k("v_lshl_add_u32 v7, v8, 8, v7")
    k("v_mov_b32 v4, 0x05040100")
    k("v_mov_b32 v5, 0x07060302")
    for it in range(8):
        k(f"s_waitcnt vmcnt({8 * (7 - it)})")
        o = OUT + 8 * (it & 1)
        for m in range(4):
            k(f"v_perm_b32 v{o + m}, v{RAW + 8 * it + 2 * m + 1}, v{RAW + 8 * it + 2 * m}, v4")
            k(f"v_perm_b32 v{o + 4 + m}, v{RAW + 8 * it + 2 * m + 1}, v{RAW + 8 * it + 2 * m}, v5")
        k(f"buffer_store_dwordx4 {vr(o, 4)}, v7, {srd}, s30 offen offset:{it * 512}")
        k(f"buffer_store_dwordx4 {vr(o + 4, 4)}, v7, {srd}, s30 offen offset:{it * 512 + 16}")
        if it >= 1: k("s_nop 0")
    k(f"s_branch {k.ref('end')}")

def role_clear(k):
    ex_delta(k, 21)
    per = 4 * EX_BLOCK // N_CLR
    k(f"s_mul_i32 s22, s20, {per}")
    k("s_add_u32 s21, s21, s22")
    k(f"s_lshl_b32 s22, s{S_WAVE}, 10")
    k("s_add_u32 s21, s21, s22")
    k("v_lshlrev_b32 v1, 4, v0")
    for r in range(4, 8): k(f"v_mov_b32 v{r}, -1")
    k(f"s_mov_b32 s22, {per // 4096}")
    k.lab('clr_loop')
    k(f"buffer_store_dwordx4 v[4:7], v1, {srd}, s21 offen")
    k("s_add_u32 s21, s21, 4096")
    k("s_sub_u32 s22, s22, 1")
    k("s_cmp_lg_u32 s22, 0")
    k(f"s_cbranch_scc1 {k.ref('clr_loop')}")
    k(f"s_branch {k.ref('end')}")

CAL_N = 5
def role_ctl(k):
    k("v_lshlrev_b32 v1, 4, v0")
    for r in range(4, 8): k(f"v_mov_b32 v{r}, 0")
    k(f"s_lshl_b32 s21, s{S_WAVE}, 10")
    k(f"s_add_u32 s21, s21, {CT_TICK}")
    k(f"buffer_store_dwordx4 v[4:7], v1, {srd}, s21 offen")
    k(f"s_lshl_b32 s21, s{S_WAVE}, 14")
    k(f"s_add_u32 s21, s21, {CT_FLAG}")
    for i in range(16):
        k(f"buffer_store_dwordx4 v[4:7], v1, {srd}, s21 offen offset:{(i % 4) * 1024}")
        if i % 4 == 3: k("s_add_u32 s21, s21, 4096")
    ex_delta(k, 22)
    k("s_getreg_b32 s23, hwreg(HW_REG_XCC_ID)")
    k("s_bfe_u32 s23, s23, 0x10002")
    k("s_mov_b64 exec, 1")
    k("v_mov_b32 v1, 0")
    cal = physmap(CAL_LOG)
    k(f"s_mul_i32 s24, s{S_WAVE}, {EX_BLOCK}")
    k("s_add_u32 s22, s22, s24")
    k(f"s_add_u32 s22, s22, {31 * EX_STEP + cal}")
    k("s_mov_b32 s30, -1")
    k("s_mov_b32 s31, -1")
    k(f"s_mov_b32 s25, {CAL_N}")
    k.lab('cal')
    for p in range(2):
        k(f"s_add_u32 s24, s22, {p * 8192}")
        k("s_memrealtime s[26:27]")
        k("s_waitcnt lgkmcnt(0)")
        k(f"buffer_store_dword v1, v1, {srd}, s24 offen sc1")
        k("s_waitcnt vmcnt(0)")
        k(f"buffer_load_dword v2, v1, {srd}, s24 offen sc1")
        k("s_waitcnt vmcnt(0)")
        k("s_memrealtime s[28:29]")
        k("s_waitcnt lgkmcnt(0)")
        k("s_sub_u32 s26, s28, s26")
        k(f"s_min_u32 s{30 + p}, s{30 + p}, s26")
    k("s_sub_u32 s25, s25, 1")
    k("s_cmp_lg_u32 s25, 0")
    k(f"s_cbranch_scc1 {k.ref('cal')}")
    k("s_cmp_lt_u32 s31, s30")
    k("s_cselect_b32 s24, 1, 0")
    k("s_xor_b32 s24, s24, s23")
    k("s_lshl_b32 s24, s24, 13")
    k("v_mov_b32 v3, s24")
    k(f"s_lshl_b32 s25, s{S_WAVE}, 2")
    k(f"s_add_u32 s25, s25, {CT_PAR}")
    k(f"buffer_store_dword v3, v1, {srd}, s25 offen")
    k("s_lshl_b32 s26, s30, 16")
    k("s_or_b32 s26, s26, s31")
    k("v_mov_b32 v3, s26")
    k(f"buffer_store_dword v3, v1, {srd}, s25 offen offset:64")
    k(f"s_branch {k.ref('end')}")

def build_prep(name="prep"):
    k = K(name, vgpr=248, sgpr=64)
    k(f"s_cmp_ge_u32 s2, {PREP_WG}")
    k(f"s_cbranch_scc1 {k.ref('end')}")
    prologue(k)
    k("s_cmp_eq_u32 s2, 0")
    k(f"s_cbranch_scc1 {k.ref('r_ctl')}")
    k("s_sub_u32 s20, s2, 1")
    k(f"s_cmp_lt_u32 s20, {N_WVO}")
    k(f"s_cbranch_scc1 {k.ref('r_wvo')}")
    k(f"s_sub_u32 s20, s20, {N_WVO}")
    k(f"s_cmp_lt_u32 s20, {N_PWP}")
    k(f"s_cbranch_scc1 {k.ref('r_pwp')}")
    k(f"s_sub_u32 s20, s20, {N_PWP}")
    role_clear(k)
    k.lab('r_ctl'); role_ctl(k)
    k.lab('r_wvo')
    k("s_lshl_b32 s20, s20, 2"); k(f"s_add_u32 s20, s20, s{S_WAVE}")
    role_wvo(k)
    k.lab('r_pwp')
    k("s_lshl_b32 s20, s20, 2"); k(f"s_add_u32 s20, s20, s{S_WAVE}")
    role_pwp(k)
    k.lab('end')
    return k, PREP_WG

def wave_sum(k, v, tmp, s0):
    k("s_nop 1")
    k(f"v_add_f32 v{tmp}, v{v}, v{v} quad_perm:[1,0,3,2] row_mask:0xf bank_mask:0xf")
    k("s_nop 1")
    k(f"v_add_f32 v{tmp}, v{tmp}, v{tmp} quad_perm:[2,3,0,1] row_mask:0xf bank_mask:0xf")
    k("s_nop 1")
    k(f"v_add_f32 v{tmp}, v{tmp}, v{tmp} row_half_mirror row_mask:0xf bank_mask:0xf")
    k("s_nop 1")
    k(f"v_add_f32 v{tmp}, v{tmp}, v{tmp} row_mirror row_mask:0xf bank_mask:0xf")
    k("s_nop 1")
    for i in range(4): k(f"v_readlane_b32 s{s0+i}, v{tmp}, {16*i}")
    k("s_nop 1")
    k(f"v_mov_b32 v{v}, s{s0}")
    for i in range(1, 4): k(f"v_add_f32 v{v}, s{s0+i}, v{v}")

def build_lnb(name, layer, src_off):
    k = K(name, vgpr=32, sgpr=48)
    k("s_cmp_gt_u32 s2, 512")
    k(f"s_cbranch_scc1 {k.ref('end')}")
    prologue(k, [(KA_MEM0, 6)])
    k("s_cmp_eq_u32 s2, 512")
    k(f"s_cbranch_scc1 {k.ref('mem0')}")
    k("s_lshl_b32 s20, s2, 2")
    k(f"s_add_u32 s20, s20, s{S_WAVE}")
    k("s_mul_i32 s21, s20, 1280")
    k(f"s_add_u32 s21, s21, {src_off}")
    k("v_lshlrev_b32 v3, 2, v0")
    for j in range(5): k(f"buffer_load_dword v{4+j}, v3, {srd}, s21 offen offset:{j*256}")
    k("v_lshrrev_b32 v20, 4, v0")
    k("v_lshlrev_b32 v20, 2, v20")
    k("v_bfe_u32 v21, v0, 3, 1")
    k("v_lshl_add_u32 v20, v21, 1, v20")
    k("v_bfe_u32 v21, v0, 1, 1")
    k("v_add_u32 v20, v20, v21")
    k("v_lshlrev_b32 v20, 9, v20")
    k("v_and_b32 v21, 1, v0")
    k("v_lshl_add_u32 v20, v21, 3, v20")
    k("v_bfe_u32 v21, v0, 2, 1")
    k("v_lshl_add_u32 v23, v21, 2, v20")
    k("s_lshr_b32 s22, s20, 5")
    k(f"s_mul_i32 s22, s22, {XN_SEG}")
    k("s_and_b32 s23, s20, 31")
    k("s_lshl_b32 s23, s23, 4")
    k("s_add_u32 s22, s22, s23")
    k(f"s_add_u32 s22, s22, {XN}")
    k("s_waitcnt vmcnt(0)")
    for j in range(5):
        k(f"v_lshlrev_b32 v{10+2*j}, 16, v{4+j}")
        k(f"v_and_b32 v{11+2*j}, 0xffff0000, v{4+j}")
    k("v_add_f32 v20, v10, v11")
    for j in range(2, 10): k(f"v_add_f32 v20, v20, v{10+j}")
    wave_sum(k, 20, 21, 24)
    k(f"v_mul_f32 v20, {hexf(1.0/640)}, v20")
    for j in range(10): k(f"v_sub_f32 v{10+j}, v{10+j}, v20")
    k("v_mul_f32 v21, v10, v10")
    for j in range(1, 10): k(f"v_fmac_f32 v21, v{10+j}, v{10+j}")
    wave_sum(k, 21, 22, 24)
    k("v_mov_b32 v22, 0x3727c5ac")
    k(f"v_fmac_f32 v22, {hexf(1.0/640)}, v21")
    k("v_rsq_f32 v22, v22")
    k("s_nop 0")
    for j in range(10): k(f"v_mul_f32 v{10+j}, v{10+j}, v22")
    for j in range(5): k(f"v_cvt_pk_bf16_f32 v{4+j}, v{10+2*j}, v{11+2*j}")
    for j in range(5):
        k(f"s_add_u32 s23, s22, {j * 16 * 512}")
        k(f"buffer_store_dword v{4+j}, v23, {srd}, s23 offen")
    k(f"s_branch {k.ref('end')}")
    k.lab('mem0')
    k.srd(16, 6, 8 * 640 * 2)
    ex_delta(k, 22)
    k(f"s_mov_b32 s23, {CT_PAR + 8 * layer}")
    k(f"s_buffer_load_dword s24, {srd}, s23")
    k("s_waitcnt lgkmcnt(0)")
    k("s_and_b32 s24, s24, 8192")
    k("s_add_u32 s22, s22, s24")
    k(f"s_add_u32 s22, s22, {2 * layer * EX_BLOCK}")
    k(f"s_lshl_b32 s25, s{S_WAVE}, 6")
    k("v_add_u32 v1, s25, v0")
    for it in range(3):
        k(f"v_add_u32 v2, {256 * it}, v1")
        k("v_and_b32 v3, 7, v2")
        k("v_mul_u32_u24 v3, 1280, v3")
        k("v_lshrrev_b32 v4, 3, v2")
        k("v_lshl_add_u32 v3, v4, 4, v3")
        k("v_lshlrev_b32 v5, 4, v2")
        k(f"v_add_u32 v5, {M_LOG}, v5")
        k("v_lshrrev_b32 v6, 13, v5")
        k("v_lshlrev_b32 v6, 14, v6")
        k("v_and_b32 v5, 8191, v5")
        k("v_add_u32 v5, v5, v6")
        k("v_cmp_gt_u32 vcc, 640, v2")
        k("s_and_saveexec_b64 s[30:31], vcc")
        sk = k.ref(f'm0s{it}')
        k(f"s_cbranch_execz {sk}")
        k("buffer_load_dwordx4 v[8:11], v3, s[16:19], 0 offen")
        k("s_waitcnt vmcnt(0)")
        k(f"buffer_store_dwordx4 v[8:11], v5, {srd}, s22 offen")
        k.lab(f'm0s{it}')
        k("s_mov_b64 exec, s[30:31]")
    k.lab('end')
    return k, 513

G_LDS = 3 * XN_SEG
GV_L16 = 1; GV_RD = 2; GV_ST = 3; GV_W = 4
G_RING = 8; G_NR = 8
G_ACC = 40
G_OUT = 104
G_WV = 192
GS_SEG = 14; GS_END = 15; GS_BUF = 16; GS_ST0 = 17; GS_ST1 = 18; GS_DMA = 19; GS_INC = 20; GS_LB = 21; GS_NB = 22

def gw(kap, t):
    n = kap * 2 + t
    return ar(4 * n, 4) if n < 64 else vr(G_WV + 4 * (n - 64), 4)

def gemm_body(k, isu, tag, cfg):
    L = lambda s: k.ref(f"g{tag}_{s}")
    lab = lambda s: k.lab(f"g{tag}_{s}")
    ovl = cfg.get('ovl'); SC1 = " sc1" if ovl else ""
    nfl = [0]
    def flag(val_s):
        if not ovl: return
        nfl[0] += 1
        sk = f"g{tag}_fl{nfl[0]}"
        k(f"s_cmp_lg_u32 s{S_WAVE}, 0")
        k(f"s_cbranch_scc1 {k.ref(sk)}")
        k("s_mov_b64 exec, 1")
        k(f"s_lshl_b32 s26, s{cfg['cg_s']}, 7")
        k("v_mov_b32 v7, s26")
        k(f"v_mov_b32 v{G_OUT + 16}, s{val_s}")
        k(f"buffer_store_dword v{G_OUT + 16}, v7, {srd}, s{cfg['flag_s']} offen sc1")
        k("s_mov_b64 exec, -1")
        k.lab(sk)
    def dma(seg_s):
        k(f"s_min_u32 s24, s{seg_s}, 63")
        k(f"s_mul_i32 s24, s24, {XN_SEG}")
        k(f"s_add_u32 s24, s24, s{GS_DMA}")
        k(f"s_mul_i32 s25, s{S_WAVE}, 10240")
        k(f"s_add_u32 s25, s25, s{GS_NB}")
        for grp in range(3):
            k(f"s_mov_b32 m0, s25")
            k("s_nop 0")
            for i in range(4 if grp < 2 else 2):
                k(f"buffer_load_dwordx4 v{GV_L16}, {srd}, s24 offen offset:{i * 1024} lds")
            if grp < 2:
                k("s_add_u32 s24, s24, 4096"); k("s_add_u32 s25, s25, 4096")
    def nextbuf(dst, src):
        k(f"s_add_u32 s{dst}, s{src}, {XN_SEG}")
        k(f"s_cmp_eq_u32 s{dst}, {G_LDS}")
        k(f"s_cselect_b32 s{dst}, 0, s{dst}")
    k(f"s_mul_i32 s{GS_DMA}, s{S_WAVE}, 10240")
    k(f"s_add_u32 s{GS_DMA}, s{GS_DMA}, {XN}")
    k(f"s_mov_b32 s{GS_NB}, 0")
    dma(GS_SEG)
    k(f"s_mov_b32 s{GS_NB}, {XN_SEG}")
    k(f"s_add_u32 s23, s{GS_SEG}, 1")
    dma(23)
    k(f"s_mov_b32 s{GS_NB}, {2 * XN_SEG}")
    k(f"s_mov_b32 s{GS_BUF}, 0")
    k("s_waitcnt vmcnt(10)")
    k("s_barrier")
    k(f"v_mov_b32 v{GV_RD}, v{GV_L16}")
    for r in range(G_NR - 2):
        k(f"ds_read_b128 {vr(G_RING + 4 * r, 4)}, v{GV_RD} offset:{r * 1024}")
    PRE = G_NR - 2
    def epilogue_items(par):
        it = []
        for t in range(2):
            a = G_ACC + 32 * par + 16 * t
            for j in range(2):
                o = G_OUT + 4 * ((2 * t + j) & 3)
                for q in range(2):
                    it.append(f"v_cvt_pk_bf16_f32 v{o + 2 * q}, v{a + 8 * j + 4 * q}, v{a + 8 * j + 4 * q + 1}")
                    it.append(f"v_cvt_pk_bf16_f32 v{o + 2 * q + 1}, v{a + 8 * j + 4 * q + 2}, v{a + 8 * j + 4 * q + 3}")
                it.append("s_nop 1")
                it.append(f"v_permlane32_swap_b32 v{o}, v{o + 2}")
                it.append(f"v_permlane32_swap_b32 v{o + 1}, v{o + 3}")
                if isu: it.append(f"buffer_store_dwordx4 {vr(o, 4)}, v{GV_ST}, {srd}, s{GS_ST0} offen offset:{t * 2560 + j * 256}{SC1}")
                else:   it.append(f"buffer_store_dwordx4 {vr(o, 4)}, v{GV_ST}, {srd}, s{GS_ST0 + t} offen offset:{j * 1024}{SC1}")
        it.append(f"s_add_u32 s{GS_ST0}, s{GS_ST0}, s{GS_INC}")
        it.append(f"s_add_u32 s{GS_ST1}, s{GS_ST1}, s{GS_INC}")
        return it
    def segment(par, first):
        side = {i: [] for i in range(80)}
        if not first:
            for n, it in enumerate(epilogue_items(par ^ 1)): side[4 + n].append(it)
        for kap in range(40):
            slot = kap % G_NR
            nk = kap + PRE
            if nk == 40:
                k(f"v_add_u32 v{GV_RD + 4}, s{GS_LB}, v{GV_L16}")
            rb = GV_RD if nk < 40 else GV_RD + 4
            k(f"ds_read_b128 {vr(G_RING + 4 * (nk % G_NR), 4)}, v{rb} offset:{(nk % 40) * 1024}")
            k(f"s_waitcnt lgkmcnt({PRE})")
            x = vr(G_RING + 4 * slot, 4)
            for t in range(2):
                d = vr(G_ACC + 32 * par + 16 * t, 16)
                c = "0" if kap == 0 else d
                if isu: k(f"v_mfma_f32_32x32x16_bf16 {d}, {x}, {gw(kap, t)}, {c}")
                else:   k(f"v_mfma_f32_32x32x16_bf16 {d}, {gw(kap, t)}, {x}, {c}")
                for it in side[2 * kap + t]: k(it)
            if kap == 28:
                k("s_waitcnt vmcnt(0)")
                k("s_barrier")
                if not first: flag(GS_SEG)
                nextbuf(GS_LB, GS_BUF)
                k(f"s_add_u32 s23, s{GS_SEG}, 2")
                dma(23)
                nextbuf(GS_NB, GS_NB)
        k(f"v_mov_b32 v{GV_RD}, v{GV_RD + 4}")
        k(f"s_mov_b32 s{GS_BUF}, s{GS_LB}")
        k(f"s_add_u32 s{GS_SEG}, s{GS_SEG}, 1")
    segment(0, True)
    k(f"s_cmp_ge_u32 s{GS_SEG}, s{GS_END}")
    k(f"s_cbranch_scc1 {L('fin0')}")
    lab('loop')
    segment(1, False)
    k(f"s_cmp_ge_u32 s{GS_SEG}, s{GS_END}")
    k(f"s_cbranch_scc1 {L('fin1')}")
    segment(0, False)
    k(f"s_cmp_lt_u32 s{GS_SEG}, s{GS_END}")
    k(f"s_cbranch_scc1 {L('loop')}")
    lab('fin0')
    k("s_nop 7"); k("s_nop 7")
    for it in epilogue_items(0): k(it)
    k(f"s_branch {L('done')}")
    lab('fin1')
    k("s_nop 7"); k("s_nop 7")
    for it in epilogue_items(1): k(it)
    lab('done')
    k("s_waitcnt vmcnt(0) lgkmcnt(0)")
    if ovl:
        k("s_barrier")
        flag(GS_SEG)

def role_gemm(k, cg_s, cfg=None):
    cfg = dict(cfg or {}, cg_s=cg_s)
    L = lambda s: k.ref('g_' + s)
    k(f"v_lshlrev_b32 v{GV_L16}, 4, v0")
    k("v_and_b32 v8, 31, v0")
    k("v_lshrrev_b32 v9, 5, v0")
    k(f"s_cmp_ge_u32 s{cg_s}, 80")
    k(f"s_cbranch_scc1 {L('qk')}")
    k("v_lshrrev_b32 v10, 3, v8")
    k("v_and_b32 v11, 7, v8")
    k("v_mul_u32_u24 v12, 20480, v10")
    k("v_lshl_add_u32 v12, v11, 4, v12")
    k(f"v_lshl_add_u32 v{GV_W}, v9, 8, v12")
    k(f"s_mul_i32 s24, s{cg_s}, 327680")
    k(f"s_mul_i32 s25, s{S_WAVE}, 81920")
    k("s_add_u32 s24, s24, s25")
    k(f"s_add_u32 s24, s24, {WY}")
    for kap in range(40):
        if kap % 7 == 0 and kap: k(f"s_add_u32 s24, s24, {7 * 512}")
        for t in range(2):
            k(f"buffer_load_dwordx4 {gw(kap, t)}, v{GV_W}, {srd}, s24 offen offset:{(kap % 7) * 512 + t * 128}")
    k(f"s_lshl_b32 s25, s{S_WAVE}, 3")
    k("v_add_u32 v10, s25, v10")
    k("v_mul_u32_u24 v10, 640, v10")
    k("v_lshl_add_u32 v10, v9, 7, v10")
    k("v_lshl_add_u32 v10, v11, 4, v10")
    k(f"v_add_u32 v{GV_ST}, 128, v10")
    k(f"s_mul_i32 s{GS_ST0}, s{cg_s}, 20480")
    k(f"s_mul_i32 s25, s{GS_SEG}, {Z_SEG}")
    k(f"s_add_u32 s{GS_ST0}, s{GS_ST0}, s25")
    k(f"s_add_u32 s{GS_ST0}, s{GS_ST0}, {Z}")
    k(f"s_mov_b32 s{GS_INC}, {Z_SEG}")
    gemm_body(k, True, 'u', cfg)
    k(f"s_branch {L('done')}")
    k.lab('g_qk')
    k(f"s_sub_u32 s26, s{cg_s}, 80")
    k("s_cmp_ge_u32 s26, 24")
    k("s_cselect_b32 s27, 1, 0")
    k("s_cselect_b32 s28, 24, 0")
    k("s_sub_u32 s26, s26, s28")
    k("s_lshl_b32 s26, s26, 3")
    k(f"s_lshl_b32 s28, s{S_WAVE}, 1")
    k("s_add_u32 s26, s26, s28")
    for t in range(2):
        k(f"s_add_u32 s28, s26, {t}")
        k("s_mul_i32 s29, s28, 171")
        k("s_lshr_b32 s29, s29, 10")
        k("s_mul_i32 s30, s29, 6")
        k("s_sub_u32 s30, s28, s30")
        k(f"s_mul_i32 s31, s29, {KX_SH}")
        k("s_lshl_b32 s32, s30, 11")
        k("s_add_u32 s31, s31, s32")
        k(f"s_mul_i32 s32, s{GS_SEG}, {32 * KX_SH}")
        k("s_add_u32 s31, s31, s32")
        k(f"s_mul_i32 s32, s27, {QX - KX}")
        k("s_add_u32 s31, s31, s32")
        k(f"s_add_u32 s{GS_ST0 + t}, s31, {KX}")
        k("s_lshl_b32 s30, s30, 5")
        k("v_add_u32 v10, s30, v8")
        p2e_lane(k, 11, 10, 12, 13)
        k("s_cmp_eq_u32 s27, 1")
        k("s_cselect_b64 vcc, -1, 0")
        k("s_nop 1")
        k("v_cndmask_b32 v10, v10, v11, vcc")
        wp_block_off(k, 11, 10, 0, 12, 13)
        k(f"v_lshl_add_u32 v{GV_W + t}, v9, 8, v11")
        k("s_xor_b32 s30, s27, 1")
        k(f"s_mul_i32 s30, s30, {3*20480}")
        k("s_mul_i32 s31, s29, 491520")
        k("s_add_u32 s30, s30, s31")
        k(f"s_add_u32 s{34 + t}, s30, {WP}")
    for kap in range(40):
        if kap % 8 == 0 and kap:
            k("s_add_u32 s34, s34, 4096"); k("s_add_u32 s35, s35, 4096")
        for t in range(2):
            k(f"buffer_load_dwordx4 {gw(kap, t)}, v{GV_W + t}, {srd}, s{34 + t} offen offset:{(kap % 8) * 512}")
    k(f"v_mov_b32 v{GV_ST}, v{GV_L16}")
    k(f"s_mov_b32 s{GS_INC}, {32 * KX_SH}")
    gemm_body(k, False, 'k', cfg)
    k.lab('g_done')

def build_gemmb(name="gemmb", nsplit=2):
    k = K(name, vgpr=256, sgpr=64, agpr=256)
    k(f"s_cmp_ge_u32 s2, {128 * nsplit}")
    k(f"s_cbranch_scc1 {k.ref('end')}")
    prologue(k)
    k("s_and_b32 s36, s2, 127")
    k("s_lshr_b32 s37, s2, 7")
    k(f"s_mul_i32 s{GS_SEG}, s37, {64 // nsplit}")
    k(f"s_add_u32 s{GS_END}, s{GS_SEG}, {64 // nsplit}")
    role_gemm(k, 36)
    k.lab('end')
    return k, 128 * nsplit, G_LDS

def role_w3a(k, seg_s, h_s, SC1=""):
    Q, KK, KMF, D1, D2, BI = 16, 64, 112, 160, 176, 192
    T = 208
    k("v_lshlrev_b32 v1, 4, v0")
    k("v_and_b32 v2, 31, v0")
    k("v_lshrrev_b32 v3, 5, v0")
    k(f"s_lshl_b32 s24, s{seg_s}, 5")
    k(f"s_add_u32 s24, s24, s{h_s}")
    k(f"s_mul_i32 s25, s24, {KX_SH}")
    k(f"s_add_u32 s26, s25, {QX}")
    k(f"s_add_u32 s27, s25, {KX}")
    k(f"s_mul_i32 s28, s24, {KM_SH}")
    k(f"s_add_u32 s28, s28, {KM}")
    k("v_and_b32 v4, 7, v0")
    k("v_lshlrev_b32 v4, 4, v4")
    k("v_lshl_add_u32 v4, v3, 7, v4")
    for kap in range(12):
        if kap % 4 == 0 and kap:
            k("s_add_u32 s26, s26, 4096"); k("s_add_u32 s27, s27, 4096")
        k(f"buffer_load_dwordx4 {vr(Q + 4 * kap, 4)}, v1, {srd}, s26 offen offset:{(kap % 4) * 1024}{SC1}")
        k(f"buffer_load_dwordx4 {vr(KK + 4 * kap, 4)}, v1, {srd}, s27 offen offset:{(kap % 4) * 1024}{SC1}")
        k(f"buffer_load_dwordx4 {vr(KMF + 4 * kap, 4)}, v4, {srd}, s28 offen offset:{kap * 256}{SC1}")
    k("v_lshlrev_b32 v5, 2, v3")
    k("v_sub_u32 v5, v2, v5")
    k(f"v_mov_b32 v6, {hexf(-1e30)}")
    for r in range(16):
        k(f"v_cmp_gt_i32 vcc, {(r & 3) + 8 * (r >> 2)}, v5")
        k("s_nop 1")
        k(f"v_cndmask_b32 v{BI + r}, 0, v6, vcc")
    for kap in range(12):
        k(f"s_waitcnt vmcnt({3 * (11 - kap)})")
        k(f"v_mfma_f32_32x32x16_bf16 {vr(D1, 16)}, {vr(KK + 4 * kap, 4)}, {vr(Q + 4 * kap, 4)}, {'0' if kap == 0 else vr(D1, 16)}")
        k(f"v_mfma_f32_32x32x16_bf16 {vr(D2, 16)}, {vr(KMF + 4 * kap, 4)}, {vr(Q + 4 * kap, 4)}, {'0' if kap == 0 else vr(D2, 16)}")
    k("s_nop 7"); k("s_nop 7")
    c = hexf(CSC)
    k(f"v_mov_b32 v7, {c}")
    for r in range(16): k(f"v_fma_f32 v{D1 + r}, v{D1 + r}, v7, v{BI + r}")
    for r in range(4): k(f"v_mul_f32 v{D2 + r}, v{D2 + r}, v7")
    vals = [D1 + r for r in range(16)] + [D2 + r for r in range(4)]
    m, u = T, T + 1
    k(f"v_max3_f32 v{m}, v{vals[0]}, v{vals[1]}, v{vals[2]}")
    rest = vals[3:]
    while len(rest) >= 2:
        k(f"v_max3_f32 v{m}, v{m}, v{rest[0]}, v{rest[1]}"); rest = rest[2:]
    if rest: k(f"v_max_f32 v{m}, v{m}, v{rest[0]}")
    k(f"v_mov_b32 v{u}, v{m}")
    k("s_nop 1")
    k(f"v_permlane32_swap_b32 v{m}, v{u}")
    k(f"v_max_f32 v{m}, v{m}, v{u}")
    for r in vals: k(f"v_sub_f32 v{r}, v{r}, v{m}")
    for r in vals: k(f"v_exp_f32 v{r}, v{r}")
    k("s_nop 0")
    s_ = T + 2
    k(f"v_add_f32 v{s_}, v{vals[0]}, v{vals[1]}")
    for r in vals[2:]: k(f"v_add_f32 v{s_}, v{s_}, v{r}")
    k(f"v_mov_b32 v{u}, v{s_}")
    k("s_nop 1")
    k(f"v_permlane32_swap_b32 v{s_}, v{u}")
    k(f"v_add_f32 v{s_}, v{s_}, v{u}")
    k(f"v_rcp_f32 v{s_}, v{s_}")
    k("s_nop 0")
    for r in vals: k(f"v_mul_f32 v{r}, v{r}, v{s_}")
    k(f"s_mul_i32 s25, s{seg_s}, {PX_SEG}")
    k(f"s_mul_i32 s26, s{h_s}, 2560")
    k("s_add_u32 s25, s25, s26")
    k(f"s_add_u32 s25, s25, {PXB}")
    O = Q
    for j in range(2):
        o = O + 4 * j
        for q in range(2):
            k(f"v_cvt_pk_bf16_f32 v{o + 2 * q}, v{D1 + 8 * j + 4 * q}, v{D1 + 8 * j + 4 * q + 1}")
            k(f"v_cvt_pk_bf16_f32 v{o + 2 * q + 1}, v{D1 + 8 * j + 4 * q + 2}, v{D1 + 8 * j + 4 * q + 3}")
        k("s_nop 1")
        k(f"v_permlane32_swap_b32 v{o}, v{o + 2}")
        k(f"v_permlane32_swap_b32 v{o + 1}, v{o + 3}")
        k(f"buffer_store_dwordx4 {vr(o, 4)}, v1, {srd}, s25 offen offset:{512 + j * 1024}{SC1}")
    k(f"v_cvt_pk_bf16_f32 v{O + 8}, v{D2}, v{D2 + 1}")
    k(f"v_cvt_pk_bf16_f32 v{O + 9}, v{D2 + 2}, v{D2 + 3}")
    k("v_lshlrev_b32 v4, 4, v2")
    k("v_lshl_add_u32 v4, v3, 3, v4")
    k(f"buffer_store_dwordx2 {vr(O + 8, 2)}, v4, {srd}, s25 offen{SC1}")

def build_w3a(name="w3a"):
    k = K(name, vgpr=216, sgpr=48)
    k("s_cmp_ge_u32 s2, 512")
    k(f"s_cbranch_scc1 {k.ref('end')}")
    prologue(k)
    k("s_lshl_b32 s20, s2, 2")
    k(f"s_add_u32 s20, s20, s{S_WAVE}")
    k("s_lshr_b32 s21, s20, 5")
    k("s_and_b32 s22, s20, 31")
    role_w3a(k, 21, 22)
    k.lab('end')
    return k, 512

def role_w3b(k, seg_s, cg_s, res_off, out_srd, out_off, NR=16, SC1=""):
    RING = 32; ACC = 16
    k("v_lshlrev_b32 v1, 4, v0")
    k("v_and_b32 v2, 31, v0")
    k("v_lshrrev_b32 v3, 5, v0")
    k("v_lshrrev_b32 v4, 3, v2")
    k("v_mul_u32_u24 v4, 20480, v4")
    k("v_and_b32 v5, 7, v2")
    k("v_lshl_add_u32 v4, v5, 4, v4")
    k("v_lshl_add_u32 v4, v3, 7, v4")
    k(f"s_mul_i32 s24, s{seg_s}, {Z_SEG}")
    k(f"s_mul_i32 s25, s{cg_s}, {4 * 20480}")
    k("s_add_u32 s24, s24, s25")
    k(f"s_add_u32 s24, s24, {Z}")
    k(f"s_mul_i32 s25, s{seg_s}, {PX_SEG}")
    k(f"s_add_u32 s25, s25, {PXB}")
    k("v_mul_u32_u24 v6, 1280, v2")
    k("v_lshl_add_u32 v6, v3, 4, v6")
    k(f"s_mul_i32 s26, s{seg_s}, {32 * 1280}")
    k(f"s_lshl_b32 s27, s{cg_s}, 6")
    k("s_add_u32 s26, s26, s27")
    k(f"s_add_u32 s27, s26, {res_off}")
    for j in range(2):
        k(f"buffer_load_dwordx4 {vr(8 + 4 * j, 4)}, v6, {srd}, s27 offen offset:{32 * j}")
    def load(kap):
        sl = RING + 8 * (kap % NR)
        if kap % 16 == 0 and kap: k("s_add_u32 s24, s24, 4096")
        if kap % 4 == 0 and kap: k("s_add_u32 s25, s25, 4096")
        k(f"buffer_load_dwordx4 {vr(sl, 4)}, v4, {srd}, s24 offen offset:{(kap % 16) * 256}{SC1}")
        k(f"buffer_load_dwordx4 {vr(sl + 4, 4)}, v1, {srd}, s25 offen offset:{(kap % 4) * 1024}{SC1}")
    for kap in range(NR): load(kap)
    issued = NR
    for kap in range(80):
        k(f"s_waitcnt vmcnt({2 * (issued - 1 - kap)})")
        sl = RING + 8 * (kap % NR)
        k(f"v_mfma_f32_32x32x16_bf16 {vr(ACC, 16)}, {vr(sl, 4)}, {vr(sl + 4, 4)}, {'0' if kap == 0 else vr(ACC, 16)}")
        if kap >= 1 and issued < 80:
            load(issued); issued += 1
    k("s_nop 7"); k("s_nop 7")
    O = RING
    for j in range(2):
        o = O + 4 * j
        for q in range(2):
            k(f"v_cvt_pk_bf16_f32 v{o + 2 * q}, v{ACC + 8 * j + 4 * q}, v{ACC + 8 * j + 4 * q + 1}")
            k(f"v_cvt_pk_bf16_f32 v{o + 2 * q + 1}, v{ACC + 8 * j + 4 * q + 2}, v{ACC + 8 * j + 4 * q + 3}")
        k("s_nop 1")
        k(f"v_permlane32_swap_b32 v{o}, v{o + 2}")
        k(f"v_permlane32_swap_b32 v{o + 1}, v{o + 3}")
        k("s_nop 1")
        for r in range(4):
            a, b, t0, t1 = O + 8, O + 9, O + 10, O + 11
            k(f"v_lshlrev_b32 v{a}, 16, v{o + r}")
            k(f"v_and_b32 v{b}, 0xffff0000, v{o + r}")
            k(f"v_lshlrev_b32 v{t0}, 16, v{8 + 4 * j + r}")
            k(f"v_and_b32 v{t1}, 0xffff0000, v{8 + 4 * j + r}")
            k(f"v_add_f32 v{a}, v{a}, v{t0}")
            k(f"v_add_f32 v{b}, v{b}, v{t1}")
            k(f"v_cvt_pk_bf16_f32 v{o + r}, v{a}, v{b}")
        if out_off is not None:
            k(f"s_add_u32 s27, s26, {out_off}")
            k(f"buffer_store_dwordx4 {vr(o, 4)}, v6, {srd}, s27 offen offset:{32 * j}")
        else:
            k(f"buffer_store_dwordx4 {vr(o, 4)}, v6, {out_srd}, s26 offen offset:{32 * j}")

def build_w3b(name, res_off, out_off):
    NR = 12
    k = K(name, vgpr=32 + 8 * NR, sgpr=48)
    k("s_cmp_ge_u32 s2, 320")
    k(f"s_cbranch_scc1 {k.ref('end')}")
    prologue(k, [(KA_OUT, 6)])
    k.srd(16, 6, 2048 * 640 * 2)
    k("s_lshl_b32 s20, s2, 2")
    k(f"s_add_u32 s20, s20, s{S_WAVE}")
    k("s_mul_i32 s21, s20, 3277"); k("s_lshr_b32 s21, s21, 16")
    k("s_mul_i32 s22, s21, 20"); k("s_sub_u32 s22, s20, s22")
    role_w3b(k, 21, 22, res_off, "s[16:19]", out_off, NR)
    k.lab('end')
    return k, 320

NJOB = 64 * 52
def role_w3_loop(k, cfg, fl_s, spin_s, out_srd, layer_s):
    L = lambda s: k.ref('j_' + s)
    lab = lambda s: k.lab('j_' + s)
    bail = k.ref('bail')
    SEG, R, NEED = 40, 41, 42
    lab('next')
    k("s_mov_b64 exec, 1")
    k(f"v_mov_b32 v2, {FL_JOB}")
    k("v_mov_b32 v3, 1")
    k(f"buffer_atomic_add v3, v2, {srd}, s{fl_s} offen sc0 sc1")
    k("s_waitcnt vmcnt(0)")
    k("s_mov_b64 exec, -1")
    k("s_nop 0")
    k("v_readfirstlane_b32 s38, v3")
    k(f"s_cmp_ge_u32 s38, {NJOB}")
    k(f"s_cbranch_scc1 {L('done')}")
    k("s_mul_i32 s39, s38, 40330")
    k(f"s_lshr_b32 s{SEG}, s39, 21")
    k(f"s_mul_i32 s39, s{SEG}, 52")
    k(f"s_sub_u32 s{R}, s38, s39")
    k(f"s_add_u32 s{NEED}, s{SEG}, 1")
    k(f"s_cmp_ge_u32 s{R}, 32")
    k(f"s_cbranch_scc1 {L('b')}")
    k(f"s_lshl_b32 s24, s{R}, 7")
    k(f"s_add_u32 s24, s24, {FL_PF}")
    k(f"s_mul_i32 s25, s{R}, 6")
    k("s_add_u32 s26, s25, 5")
    k("s_lshr_b32 s25, s25, 3"); k("s_lshr_b32 s26, s26, 3")
    k("s_add_u32 s25, s25, 104"); k("s_add_u32 s26, s26, 104")
    k("s_lshl_b32 s25, s25, 7"); k("s_lshl_b32 s26, s26, 7")
    k("v_mov_b32 v2, s26")
    k("v_writelane_b32 v2, s24, 0")
    k("v_writelane_b32 v2, s25, 1")
    k("s_mov_b64 exec, 7")
    lab('a_poll')
    k(f"buffer_load_dword v3, v2, {srd}, s{fl_s} offen sc1")
    k("s_waitcnt vmcnt(0)")
    k(f"v_cmp_gt_u32 vcc, s{NEED}, v3")
    k(f"s_sub_u32 s{spin_s}, s{spin_s}, 1")
    k(f"s_cbranch_scc1 {bail}")
    k(f"s_cbranch_vccnz {L('a_poll')}")
    k("s_mov_b64 exec, -1")
    role_w3a(k, SEG, R, " sc1")
    k("s_waitcnt vmcnt(0)")
    k("s_mov_b64 exec, 1")
    k(f"s_lshl_b32 s24, s{SEG}, 4")
    k(f"s_add_u32 s24, s24, {FL_WA}")
    k("v_mov_b32 v2, s24")
    k("v_mov_b32 v3, 1")
    k(f"buffer_atomic_add v3, v2, {srd}, s{fl_s} offen sc1")
    k("s_mov_b64 exec, -1")
    k(f"s_branch {L('next')}")
    lab('b')
    k(f"s_sub_u32 s{R}, s{R}, 32")
    k(f"s_lshl_b32 s24, s{R}, 9")
    k(f"s_add_u32 s24, s24, {FL_YF}")
    k("v_lshlrev_b32 v2, 7, v0")
    k("v_add_u32 v2, s24, v2")
    k(f"s_lshl_b32 s25, s{SEG}, 4")
    k(f"s_add_u32 s25, s25, {FL_WA}")
    k("v_writelane_b32 v2, s25, 4")
    k(f"v_mov_b32 v4, s{NEED}")
    k("s_mov_b32 s26, 32")
    k("v_writelane_b32 v4, s26, 4")
    k("s_mov_b64 exec, 31")
    lab('b_poll')
    k(f"buffer_load_dword v3, v2, {srd}, s{fl_s} offen sc1")
    k("s_waitcnt vmcnt(0)")
    k("v_cmp_gt_u32 vcc, v4, v3")
    k(f"s_sub_u32 s{spin_s}, s{spin_s}, 1")
    k(f"s_cbranch_scc1 {bail}")
    k(f"s_cbranch_vccnz {L('b_poll')}")
    k("s_mov_b64 exec, -1")
    role_w3b(k, SEG, R, A_X1, out_srd, None, cfg.get('w3b_nr', 24), " sc1")
    k(f"s_branch {L('next')}")
    lab('done')
```

```python
import sys
sys.path.insert(0, "/code"); sys.path.insert(0, "tools")
import gen, work, chain
from lay import *
from asmk import KA_AX, KA_WQKV, KA_WOA, KA_WS
NAME = gen.NAME
gen.WS_XN = A_XN; gen.WS_X1 = A_X1; gen.WS_QA = A_QA; gen.WS_KVT = A_KVT; gen.WS_OA = A_OA
gen.WS_KVZ = A_KVZ; gen.WS_PQKVA = A_PQKVA; gen.WS_PWOA = A_PWOA
gen.PACK = [(KA_WQKV, 640, 1920, A_PQKVA), (KA_WOA, 640, 640, A_PWOA)]
gen.WS_EX = A_KVZ; gen.EX_CLEAR_BYTES = 0
S, D = 2048, 640

def build(cfg=None):
    cfg = cfg or {}
    kernels = []; launches = []
    def add(k, nwg, lds=0, block=256):
        if k not in kernels: kernels.append(k)
        launches.append((k.name, nwg, block, lds))
    kp, n = gen.k_pack(); add(kp, n)
    kq, n = work.build_prep(); add(kq, n)
    kg, n_qkva, lds_qkva = gen.k_gemm("qkv_a", S, 1920, D, A_XN, D * 2, A_PQKVA, 4, 5, dict(kind='qkvA'))
    kgb, n_gb, lds_gb = work.build_gemmb()
    kwa, n_wa = work.build_w3a()
    ovl = cfg.get('ovl')
    if ovl:
        kc1, kc2 = chain.build_chain("layerb", None, cfg)
    for layer in range(2):
        if layer == 0:
            kl, n = gen.k_ln("ln_a1", KA_AX, 0)
        else:
            kl, n = gen.k_ln("ln_a2", KA_WS, A_X2)
        add(kl, n)
        add(kg, n_qkva, lds_qkva)
        kz, n = gen.k_kvz(f"kvz_a{layer+1}", layer); add(kz, n)
        ka, n, lds = gen.k_attn_a(f"attn_a{layer+1}", layer); add(ka, n, lds)
        if layer == 0:
            epi = dict(kind='res', res_slot=KA_AX, res_off=0, out_off=A_X1, res_in=True)
        else:
            epi = dict(kind='res', res_off=A_X2, out_off=A_X1)
        kw, n, lds = gen.k_gemm(f"wo_a{layer+1}", S, D, D, A_OA, D * 2, A_PWOA, 2, 5, epi); add(kw, n, lds)
        kl2, n = work.build_lnb(f"ln_b{layer+1}", layer, A_X1); add(kl2, n)
        if ovl:
            if layer == 0:
                kernels.append(kc2)
            add(kc1 if layer == 0 else kc2, 256, chain.PL_END)
            continue
        add(kgb, n_gb, lds_gb)
        kc = chain.build_chain(f"chain{layer+1}", layer, cfg); add(kc, 256, chain.PL_END)
        add(kwa, n_wa)
        k3, n = work.build_w3b(f"w3b{layer+1}", A_X1, A_X2 if layer == 0 else None); add(k3, n)
    head = ["; generated by gen2.py (my own generator); kernarg: 13 pointers"]
    for name, nwg, block, lds in launches:
        head.append(f"; @launch kernel={name} grid=({nwg},1,1) block=({block},1,1) lds={lds}")
    head.append('.amdgcn_target "amdgcn-amd-amdhsa--gfx950"')
    return "\n".join(head) + "\n" + "\n".join(k.text() for k in kernels) + "\n"

if __name__ == "__main__":
    out = sys.argv[1] if len(sys.argv) > 1 else "v2.s"
    cfg = eval(sys.argv[2]) if len(sys.argv) > 2 else {}
    open(out, "w").write(build(cfg))
    print("written", out)
```

```python
import sys, math
sys.path.insert(0, "/code"); sys.path.insert(0, "tools")
from asmk import *
from lay import *

CSC = (192 ** -0.5) * math.log2(math.e)
S_WS = 4; SRD = 8; S_WAVE = 13
srd = f"s[{SRD}:{SRD+3}]"
def vr(b, n): return f"v[{b}:{b+n-1}]" if n > 1 else f"v{b}"
def ar(b, n): return f"a[{b}:{b+n-1}]"

def prologue(k, extra_ptrs=()):
    k.ptr(KA_WS, S_WS)
    for slot, s in extra_ptrs: k.ptr(slot, s)
    k("v_lshrrev_b32 v1, 6, v0")
    k("v_and_b32 v0, 63, v0")
    k("s_nop 0")
    k(f"v_readfirstlane_b32 s{S_WAVE}, v1")
    k("s_waitcnt lgkmcnt(0)")
    k.srd(SRD, S_WS, WS_BYTES)

def ex_delta(k, dst):
    k(f"s_sub_u32 s{dst}, 0, s{S_WS}")
    k(f"s_and_b32 s{dst}, s{dst}, 0x1fffff")

def p2e_lane(k, dst, p, t0, t1):
    k(f"v_and_b32 v{dst}, 0xc1, v{p}")
    k(f"v_and_b32 v{t0}, 8, v{p}")
    k(f"v_lshl_or_b32 v{dst}, v{t0}, 2, v{dst}")
    k(f"v_and_b32 v{t0}, 32, v{p}")
    k(f"v_lshrrev_b32 v{t0}, 1, v{t0}")
    k(f"v_or_b32 v{dst}, v{dst}, v{t0}")
    k(f"v_and_b32 v{t0}, 2, v{p}")
    k(f"v_lshl_or_b32 v{dst}, v{t0}, 2, v{dst}")
    k(f"v_and_b32 v{t0}, 16, v{p}")
    k(f"v_lshrrev_b32 v{t0}, 2, v{t0}")
    k(f"v_or_b32 v{dst}, v{dst}, v{t0}")
    k(f"v_and_b32 v{t0}, 4, v{p}")
    k(f"v_lshrrev_b32 v{t0}, 1, v{t0}")
    k(f"v_or_b32 v{dst}, v{dst}, v{t0}")

def wp_block_off(k, dst, x, isk, t0, t1):
    k(f"v_lshrrev_b32 v{t0}, 4, v{x}")
    k(f"v_mul_u32_u24 v{t1}, 11, v{t0}")
    k(f"v_lshrrev_b32 v{t1}, 5, v{t1}")
    k(f"v_mul_u32_u24 v{t1}, 3, v{t1}")
    k(f"v_add_u32 v{t0}, v{t0}, v{t1}")
    if isk: k(f"v_add_u32 v{t0}, 3, v{t0}")
    k(f"v_mul_u32_u24 v{t0}, 20480, v{t0}")
    k(f"v_and_b32 v{t1}, 15, v{x}")
    k(f"v_lshl_add_u32 v{dst}, v{t1}, 4, v{t0}")

CH_ROW = [0, 1, 8, 9, 2, 3, 10, 11]

def chunk_base_lane(k, dst, c, t0):
    k(f"v_lshrrev_b32 v{dst}, 2, v{c}")
    k(f"v_lshlrev_b32 v{dst}, 5, v{dst}")
    k(f"v_and_b32 v{t0}, 2, v{c}")
    k(f"v_lshl_add_u32 v{dst}, v{t0}, 3, v{dst}")
    k(f"v_and_b32 v{t0}, 1, v{c}")
    k(f"v_lshl_add_u32 v{dst}, v{t0}, 2, v{dst}")

N_WVO = 160
N_PWP = 240
N_CLR = 64
PREP_WG = N_WVO + N_PWP + N_CLR + 1

def role_wvo(k):
    L = lambda s: k.ref('wvo_' + s)
    k.ptr(KA_WV, 24); k.ptr(KA_WO, 26)
    k("s_and_b32 s21, s20, 1")
    k("s_lshr_b32 s22, s20, 1")
    k("s_mul_i32 s23, s22, 205")
    k("s_lshr_b32 s23, s23, 11")
    k("s_mul_i32 s28, s23, 10")
    k("s_sub_u32 s22, s22, s28")
    k("s_waitcnt lgkmcnt(0)")
    k.srd(32, 24, 640 * 6144 * 2)
    k.srd(36, 26, 6144 * 640 * 2)
    VI, VH = 1, 2
    k(f"v_and_b32 v{VI}, 31, v0")
    k(f"v_lshrrev_b32 v{VH}, 5, v0")
    BE, BO, TMP = 16, 64, 112
    k(f"v_mul_u32_u24 v3, {8 * 1280}, v{VH}")
    k(f"v_lshl_add_u32 v3, v{VI}, 2, v3")
    k(f"s_mul_i32 s28, s23, {192*1280}")
    k("s_lshl_b32 s29, s22, 7")
    k("s_add_u32 s28, s28, s29")
    for half in range(2):
        for kk in range(6):
            kap = half * 6 + kk
            for j in range(8):
                row = 16 * kap + j
                k(f"s_add_u32 s29, s28, {row * 1280}")
                k(f"buffer_load_dword v{TMP + 8 * kk + j}, v3, s[36:39], s29 offen")
        k("v_mov_b32 v4, 0x05040100")
        k("v_mov_b32 v5, 0x07060302")
        k("s_waitcnt vmcnt(0)")
        for kk in range(6):
            kap = half * 6 + kk
            for m in range(4):
                k(f"v_perm_b32 v{BE + 4 * kap + m}, v{TMP + 8 * kk + 2 * m + 1}, v{TMP + 8 * kk + 2 * m}, v4")
                k(f"v_perm_b32 v{BO + 4 * kap + m}, v{TMP + 8 * kk + 2 * m + 1}, v{TMP + 8 * kk + 2 * m}, v5")
    k(f"v_lshrrev_b32 v6, 3, v{VI}")
    chunk_base_lane(k, 7, 6, 8)
    k(f"v_and_b32 v8, 7, v{VI}")
    k("v_and_b32 v9, 1, v8")
    k("v_add_u32 v7, v7, v9")
    k("v_and_b32 v9, 2, v8")
    k("v_lshl_add_u32 v7, v9, 2, v7")
    k("v_lshrrev_b32 v9, 2, v8")
    k("v_lshl_add_u32 v7, v9, 1, v7")
    k("v_mul_u32_u24 v7, 12288, v7")
    k(f"v_lshl_add_u32 v7, v{VH}, 4, v7")
    k("s_mul_i32 s28, s23, 384")
    k(f"s_mul_i32 s29, s21, {10 * 32 * 12288}")
    k("s_add_u32 s28, s28, s29")
    k(f"v_lshrrev_b32 v10, 2, v{VI}")
    k("v_mul_u32_u24 v10, 20480, v10")
    k("v_lshlrev_b32 v10, 4, v10")
    k(f"v_and_b32 v11, 3, v{VI}")
    k("v_lshl_add_u32 v10, v11, 5, v10")
    k(f"v_lshl_add_u32 v10, v{VH}, 8, v10")
    k(f"s_mul_i32 s30, s22, {8 * 327680}")
    k("s_lshr_b32 s31, s23, 3")
    k("s_mul_i32 s31, s31, 81920")
    k("s_add_u32 s30, s30, s31")
    k("s_and_b32 s31, s23, 3")
    k("s_mul_i32 s31, s31, 20480")
    k("s_add_u32 s30, s30, s31")
    k("s_bfe_u32 s31, s23, 0x10002")
    k("s_lshl_b32 s31, s31, 7")
    k("s_add_u32 s30, s30, s31")
    k(f"s_mul_i32 s31, s21, 10240")
    k("s_add_u32 s30, s30, s31")
    k(f"s_add_u32 s30, s30, {WY}")
    AF0, AF1, ACC, OUT = 112, 160, 208, 240
    def aload(dst):
        for kap in range(12):
            k(f"buffer_load_dwordx4 {vr(dst + 4 * kap, 4)}, v7, s[32:35], s28 offen offset:{kap * 32}")
        k(f"s_add_u32 s28, s28, {32 * 12288}")
    def tile(src):
        for kap in range(12):
            for t, B in ((0, BE), (1, BO)):
                c = "0" if kap == 0 else vr(ACC + 16 * t, 16)
                k(f"v_mfma_f32_32x32x16_bf16 {vr(ACC + 16 * t, 16)}, {vr(src + 4 * kap, 4)}, {vr(B + 4 * kap, 4)}, {c}")
        k("s_nop 7"); k("s_nop 7")
        for t in range(2):
            a = ACC + 16 * t
            for j in range(2):
                o = OUT + 4 * j
                for q in range(2):
                    k(f"v_cvt_pk_bf16_f32 v{o + 2 * q}, v{a + 8 * j + 4 * q}, v{a + 8 * j + 4 * q + 1}")
                    k(f"v_cvt_pk_bf16_f32 v{o + 2 * q + 1}, v{a + 8 * j + 4 * q + 2}, v{a + 8 * j + 4 * q + 3}")
                k("s_nop 1")
                k(f"v_permlane32_swap_b32 v{o}, v{o + 2}")
                k(f"v_permlane32_swap_b32 v{o + 1}, v{o + 3}")
                k(f"buffer_store_dwordx4 {vr(o, 4)}, v10, {srd}, s30 offen offset:{j * 512 + t * 16}")
            k("s_nop 1")
        k("s_add_u32 s30, s30, 1024")
    aload(AF0)
    k("s_mov_b32 s31, 5")
    k.lab('wvo_loop')
    aload(AF1)
    k("s_waitcnt vmcnt(12)")
    tile(AF0)
    k("s_cmp_eq_u32 s31, 1")
    k(f"s_cbranch_scc1 {L('last')}")
    aload(AF0)
    k("s_waitcnt vmcnt(12)")
    tile(AF1)
    k("s_sub_u32 s31, s31, 1")
    k(f"s_branch {L('loop')}")
    k.lab('wvo_last')
    k("s_waitcnt vmcnt(0)")
    tile(AF1)
    k(f"s_branch {k.ref('end')}")

def role_pwp(k):
    L = lambda s: k.ref('pwp_' + s)
    k("s_mul_i32 s21, s20, 13108"); k("s_lshr_b32 s21, s21, 16")
    k("s_mul_i32 s22, s21, 5"); k("s_sub_u32 s22, s20, s22")
    k("s_mul_i32 s23, s21, 21846"); k("s_lshr_b32 s23, s23, 16")
    k("s_mul_i32 s28, s23, 3"); k("s_sub_u32 s21, s21, s28")
    k("s_lshr_b32 s29, s23, 5")
    k("s_and_b32 s23, s23, 31")
    k("s_cmp_eq_u32 s29, 0")
    k(f"s_cbranch_scc0 {L('k')}")
    k.ptr(KA_WQ, 24)
    k(f"s_branch {L('go')}")
    k.lab('pwp_k')
    k.ptr(KA_WK, 24)
    k.lab('pwp_go')
    k("v_and_b32 v1, 31, v0")
    k("v_lshrrev_b32 v2, 5, v0")
    k("s_lshl_b32 s28, s21, 6")
    k("v_lshlrev_b32 v3, 1, v1")
    k("v_add_u32 v3, s28, v3")
    p2e_lane(k, 4, 3, 5, 6)
    k("s_cmp_eq_u32 s29, 0")
    k("s_cselect_b64 vcc, -1, 0")
    k("s_nop 1")
    k("v_cndmask_b32 v4, v4, v3, vcc")
    wp_block_off(k, 7, 3, 0, 5, 6)
    k(f"s_mul_i32 s30, s29, {3*20480}")
    k("s_mul_i32 s31, s23, 491520")
    k("s_add_u32 s30, s30, s31")
    k(f"s_add_u32 s30, s30, {WP}")
    k("s_lshl_b32 s31, s22, 4")
    k("v_add_u32 v8, s31, v2")
    k("s_waitcnt lgkmcnt(0)")
    k.srd(32, 24, 640 * 6144 * 2)
    k("s_mul_i32 s28, s23, 384")
    RAW, OUT = 16, 80
    for it in range(8):
        k(f"v_add_u32 v9, {2 * it}, v8")
        chunk_base_lane(k, 10, 9, 11)
        k("v_mul_u32_u24 v10, 12288, v10")
        k("v_lshl_add_u32 v10, v4, 1, v10")
        for j in range(8):
            k(f"s_add_u32 s31, s28, {CH_ROW[j] * 12288}")
            k(f"buffer_load_dword v{RAW + 8 * it + j}, v10, s[32:35], s31 offen")
    k("v_lshl_add_u32 v7, v8, 8, v7")
    k("v_mov_b32 v4, 0x05040100")
    k("v_mov_b32 v5, 0x07060302")
    for it in range(8):
        k(f"s_waitcnt vmcnt({8 * (7 - it)})")
        o = OUT + 8 * (it & 1)
        for m in range(4):
            k(f"v_perm_b32 v{o + m}, v{RAW + 8 * it + 2 * m + 1}, v{RAW + 8 * it + 2 * m}, v4")
            k(f"v_perm_b32 v{o + 4 + m}, v{RAW + 8 * it + 2 * m + 1}, v{RAW + 8 * it + 2 * m}, v5")
        k(f"buffer_store_dwordx4 {vr(o, 4)}, v7, {srd}, s30 offen offset:{it * 512}")
        k(f"buffer_store_dwordx4 {vr(o + 4, 4)}, v7, {srd}, s30 offen offset:{it * 512 + 16}")
        if it >= 1: k("s_nop 0")
    k(f"s_branch {k.ref('end')}")

def role_clear(k):
    ex_delta(k, 21)
    per = 4 * EX_BLOCK // N_CLR
    k(f"s_mul_i32 s22, s20, {per}")
    k("s_add_u32 s21, s21, s22")
    k(f"s_lshl_b32 s22, s{S_WAVE}, 10")
    k("s_add_u32 s21, s21, s22")
    k("v_lshlrev_b32 v1, 4, v0")
    for r in range(4, 8): k(f"v_mov_b32 v{r}, -1")
    k(f"s_mov_b32 s22, {per // 4096}")
    k.lab('clr_loop')
    k(f"buffer_store_dwordx4 v[4:7], v1, {srd}, s21 offen")
    k("s_add_u32 s21, s21, 4096")
    k("s_sub_u32 s22, s22, 1")
    k("s_cmp_lg_u32 s22, 0")
    k(f"s_cbranch_scc1 {k.ref('clr_loop')}")
    k(f"s_branch {k.ref('end')}")

CAL_N = 5
def role_ctl(k):
    k("v_lshlrev_b32 v1, 4, v0")
    for r in range(4, 8): k(f"v_mov_b32 v{r}, 0")
    k(f"s_lshl_b32 s21, s{S_WAVE}, 10")
    k(f"s_add_u32 s21, s21, {CT_TICK}")
    k(f"buffer_store_dwordx4 v[4:7], v1, {srd}, s21 offen")
    k(f"s_lshl_b32 s21, s{S_WAVE}, 14")
    k(f"s_add_u32 s21, s21, {CT_FLAG}")
    for i in range(16):
        k(f"buffer_store_dwordx4 v[4:7], v1, {srd}, s21 offen offset:{(i % 4) * 1024}")
        if i % 4 == 3: k("s_add_u32 s21, s21, 4096")
    ex_delta(k, 22)
    k("s_getreg_b32 s23, hwreg(HW_REG_XCC_ID)")
    k("s_bfe_u32 s23, s23, 0x10002")
    k("s_mov_b64 exec, 1")
    k("v_mov_b32 v1, 0")
    cal = physmap(CAL_LOG)
    k(f"s_mul_i32 s24, s{S_WAVE}, {EX_BLOCK}")
    k("s_add_u32 s22, s22, s24")
    k(f"s_add_u32 s22, s22, {31 * EX_STEP + cal}")
    k("s_mov_b32 s30, -1")
    k("s_mov_b32 s31, -1")
    k(f"s_mov_b32 s25, {CAL_N}")
    k.lab('cal')
    for p in range(2):
        k(f"s_add_u32 s24, s22, {p * 8192}")
        k("s_memrealtime s[26:27]")
        k("s_waitcnt lgkmcnt(0)")
        k(f"buffer_store_dword v1, v1, {srd}, s24 offen sc1")
        k("s_waitcnt vmcnt(0)")
        k(f"buffer_load_dword v2, v1, {srd}, s24 offen sc1")
        k("s_waitcnt vmcnt(0)")
        k("s_memrealtime s[28:29]")
        k("s_waitcnt lgkmcnt(0)")
        k("s_sub_u32 s26, s28, s26")
        k(f"s_min_u32 s{30 + p}, s{30 + p}, s26")
    k("s_sub_u32 s25, s25, 1")
    k("s_cmp_lg_u32 s25, 0")
    k(f"s_cbranch_scc1 {k.ref('cal')}")
    k("s_cmp_lt_u32 s31, s30")
    k("s_cselect_b32 s24, 1, 0")
    k("s_xor_b32 s24, s24, s23")
    k("s_lshl_b32 s24, s24, 13")
    k("v_mov_b32 v3, s24")
    k(f"s_lshl_b32 s25, s{S_WAVE}, 2")
    k(f"s_add_u32 s25, s25, {CT_PAR}")
    k(f"buffer_store_dword v3, v1, {srd}, s25 offen")
    k("s_lshl_b32 s26, s30, 16")
    k("s_or_b32 s26, s26, s31")
    k("v_mov_b32 v3, s26")
    k(f"buffer_store_dword v3, v1, {srd}, s25 offen offset:64")
    k(f"s_branch {k.ref('end')}")

def build_prep(name="prep"):
    k = K(name, vgpr=248, sgpr=64)
    k(f"s_cmp_ge_u32 s2, {PREP_WG}")
    k(f"s_cbranch_scc1 {k.ref('end')}")
    prologue(k)
    k("s_cmp_eq_u32 s2, 0")
    k(f"s_cbranch_scc1 {k.ref('r_ctl')}")
    k("s_sub_u32 s20, s2, 1")
    k(f"s_cmp_lt_u32 s20, {N_WVO}")
    k(f"s_cbranch_scc1 {k.ref('r_wvo')}")
    k(f"s_sub_u32 s20, s20, {N_WVO}")
    k(f"s_cmp_lt_u32 s20, {N_PWP}")
    k(f"s_cbranch_scc1 {k.ref('r_pwp')}")
    k(f"s_sub_u32 s20, s20, {N_PWP}")
    role_clear(k)
    k.lab('r_ctl'); role_ctl(k)
    k.lab('r_wvo')
    k("s_lshl_b32 s20, s20, 2"); k(f"s_add_u32 s20, s20, s{S_WAVE}")
    role_wvo(k)
    k.lab('r_pwp')
    k("s_lshl_b32 s20, s20, 2"); k(f"s_add_u32 s20, s20, s{S_WAVE}")
    role_pwp(k)
    k.lab('end')
    return k, PREP_WG

def wave_sum(k, v, tmp, s0):
    k("s_nop 1")
    k(f"v_add_f32 v{tmp}, v{v}, v{v} quad_perm:[1,0,3,2] row_mask:0xf bank_mask:0xf")
    k("s_nop 1")
    k(f"v_add_f32 v{tmp}, v{tmp}, v{tmp} quad_perm:[2,3,0,1] row_mask:0xf bank_mask:0xf")
    k("s_nop 1")
    k(f"v_add_f32 v{tmp}, v{tmp}, v{tmp} row_half_mirror row_mask:0xf bank_mask:0xf")
    k("s_nop 1")
    k(f"v_add_f32 v{tmp}, v{tmp}, v{tmp} row_mirror row_mask:0xf bank_mask:0xf")
    k("s_nop 1")
    for i in range(4): k(f"v_readlane_b32 s{s0+i}, v{tmp}, {16*i}")
    k("s_nop 1")
    k(f"v_mov_b32 v{v}, s{s0}")
    for i in range(1, 4): k(f"v_add_f32 v{v}, s{s0+i}, v{v}")

def build_lnb(name, layer, src_off):
    k = K(name, vgpr=32, sgpr=48)
    k("s_cmp_gt_u32 s2, 512")
    k(f"s_cbranch_scc1 {k.ref('end')}")
    prologue(k, [(KA_MEM0, 6)])
    k("s_cmp_eq_u32 s2, 512")
    k(f"s_cbranch_scc1 {k.ref('mem0')}")
    k("s_lshl_b32 s20, s2, 2")
    k(f"s_add_u32 s20, s20, s{S_WAVE}")
    k("s_mul_i32 s21, s20, 1280")
    k(f"s_add_u32 s21, s21, {src_off}")
    k("v_lshlrev_b32 v3, 2, v0")
    for j in range(5): k(f"buffer_load_dword v{4+j}, v3, {srd}, s21 offen offset:{j*256}")
    k("v_lshrrev_b32 v20, 4, v0")
    k("v_lshlrev_b32 v20, 2, v20")
    k("v_bfe_u32 v21, v0, 3, 1")
    k("v_lshl_add_u32 v20, v21, 1, v20")
    k("v_bfe_u32 v21, v0, 1, 1")
    k("v_add_u32 v20, v20, v21")
    k("v_lshlrev_b32 v20, 9, v20")
    k("v_and_b32 v21, 1, v0")
    k("v_lshl_add_u32 v20, v21, 3, v20")
    k("v_bfe_u32 v21, v0, 2, 1")
    k("v_lshl_add_u32 v23, v21, 2, v20")
    k("s_lshr_b32 s22, s20, 5")
    k(f"s_mul_i32 s22, s22, {XN_SEG}")
    k("s_and_b32 s23, s20, 31")
    k("s_lshl_b32 s23, s23, 4")
    k("s_add_u32 s22, s22, s23")
    k(f"s_add_u32 s22, s22, {XN}")
    k("s_waitcnt vmcnt(0)")
    for j in range(5):
        k(f"v_lshlrev_b32 v{10+2*j}, 16, v{4+j}")
        k(f"v_and_b32 v{11+2*j}, 0xffff0000, v{4+j}")
    k("v_add_f32 v20, v10, v11")
    for j in range(2, 10): k(f"v_add_f32 v20, v20, v{10+j}")
    wave_sum(k, 20, 21, 24)
    k(f"v_mul_f32 v20, {hexf(1.0/640)}, v20")
    for j in range(10): k(f"v_sub_f32 v{10+j}, v{10+j}, v20")
    k("v_mul_f32 v21, v10, v10")
    for j in range(1, 10): k(f"v_fmac_f32 v21, v{10+j}, v{10+j}")
    wave_sum(k, 21, 22, 24)
    k("v_mov_b32 v22, 0x3727c5ac")
    k(f"v_fmac_f32 v22, {hexf(1.0/640)}, v21")
    k("v_rsq_f32 v22, v22")
    k("s_nop 0")
    for j in range(10): k(f"v_mul_f32 v{10+j}, v{10+j}, v22")
    for j in range(5): k(f"v_cvt_pk_bf16_f32 v{4+j}, v{10+2*j}, v{11+2*j}")
    for j in range(5):
        k(f"s_add_u32 s23, s22, {j * 16 * 512}")
        k(f"buffer_store_dword v{4+j}, v23, {srd}, s23 offen")
    k(f"s_branch {k.ref('end')}")
    k.lab('mem0')
    k.srd(16, 6, 8 * 640 * 2)
    ex_delta(k, 22)
    k(f"s_mov_b32 s23, {CT_PAR + 8 * layer}")
    k(f"s_buffer_load_dword s24, {srd}, s23")
    k("s_waitcnt lgkmcnt(0)")
    k("s_and_b32 s24, s24, 8192")
    k("s_add_u32 s22, s22, s24")
    k(f"s_add_u32 s22, s22, {2 * layer * EX_BLOCK}")
    k(f"s_lshl_b32 s25, s{S_WAVE}, 6")
    k("v_add_u32 v1, s25, v0")
    for it in range(3):
        k(f"v_add_u32 v2, {256 * it}, v1")
        k("v_and_b32 v3, 7, v2")
        k("v_mul_u32_u24 v3, 1280, v3")
        k("v_lshrrev_b32 v4, 3, v2")
        k("v_lshl_add_u32 v3, v4, 4, v3")
        k("v_lshlrev_b32 v5, 4, v2")
        k(f"v_add_u32 v5, {M_LOG}, v5")
        k("v_lshrrev_b32 v6, 13, v5")
        k("v_lshlrev_b32 v6, 14, v6")
        k("v_and_b32 v5, 8191, v5")
        k("v_add_u32 v5, v5, v6")
        k("v_cmp_gt_u32 vcc, 640, v2")
        k("s_and_saveexec_b64 s[30:31], vcc")
        sk = k.ref(f'm0s{it}')
        k(f"s_cbranch_execz {sk}")
        k("buffer_load_dwordx4 v[8:11], v3, s[16:19], 0 offen")
        k("s_waitcnt vmcnt(0)")
        k(f"buffer_store_dwordx4 v[8:11], v5, {srd}, s22 offen")
        k.lab(f'm0s{it}')
        k("s_mov_b64 exec, s[30:31]")
    k.lab('end')
    return k, 513

G_LDS = 3 * XN_SEG
GV_L16 = 1; GV_RD = 2; GV_ST = 3; GV_W = 4
G_RING = 8; G_NR = 8
G_ACC = 40
G_OUT = 104
G_WV = 192
GS_SEG = 14; GS_END = 15; GS_BUF = 16; GS_ST0 = 17; GS_ST1 = 18; GS_DMA = 19; GS_INC = 20; GS_LB = 21; GS_NB = 22

def gw(kap, t):
    n = kap * 2 + t
    return ar(4 * n, 4) if n < 64 else vr(G_WV + 4 * (n - 64), 4)

def gemm_body(k, isu, tag, cfg):
    L = lambda s: k.ref(f"g{tag}_{s}")
    lab = lambda s: k.lab(f"g{tag}_{s}")
    ovl = cfg.get('ovl'); SC1 = " sc1" if ovl else ""
    nfl = [0]
    def flag(val_s):
        if not ovl: return
        nfl[0] += 1
        sk = f"g{tag}_fl{nfl[0]}"
        k(f"s_cmp_lg_u32 s{S_WAVE}, 0")
        k(f"s_cbranch_scc1 {k.ref(sk)}")
        k("s_mov_b64 exec, 1")
        k(f"s_lshl_b32 s26, s{cfg['cg_s']}, 7")
        k("v_mov_b32 v7, s26")
        k(f"v_mov_b32 v{G_OUT + 16}, s{val_s}")
        k(f"buffer_store_dword v{G_OUT + 16}, v7, {srd}, s{cfg['flag_s']} offen sc1")
        k("s_mov_b64 exec, -1")
        k.lab(sk)
    def dma(seg_s):
        k(f"s_min_u32 s24, s{seg_s}, 63")
        k(f"s_mul_i32 s24, s24, {XN_SEG}")
        k(f"s_add_u32 s24, s24, s{GS_DMA}")
        k(f"s_mul_i32 s25, s{S_WAVE}, 10240")
        k(f"s_add_u32 s25, s25, s{GS_NB}")
        for grp in range(3):
            k(f"s_mov_b32 m0, s25")
            k("s_nop 0")
            for i in range(4 if grp < 2 else 2):
                k(f"buffer_load_dwordx4 v{GV_L16}, {srd}, s24 offen offset:{i * 1024} lds")
            if grp < 2:
                k("s_add_u32 s24, s24, 4096"); k("s_add_u32 s25, s25, 4096")
    def nextbuf(dst, src):
        k(f"s_add_u32 s{dst}, s{src}, {XN_SEG}")
        k(f"s_cmp_eq_u32 s{dst}, {G_LDS}")
        k(f"s_cselect_b32 s{dst}, 0, s{dst}")
    k(f"s_mul_i32 s{GS_DMA}, s{S_WAVE}, 10240")
    k(f"s_add_u32 s{GS_DMA}, s{GS_DMA}, {XN}")
    k(f"s_mov_b32 s{GS_NB}, 0")
    dma(GS_SEG)
    k(f"s_mov_b32 s{GS_NB}, {XN_SEG}")
    k(f"s_add_u32 s23, s{GS_SEG}, 1")
    dma(23)
    k(f"s_mov_b32 s{GS_NB}, {2 * XN_SEG}")
    k(f"s_mov_b32 s{GS_BUF}, 0")
    k("s_waitcnt vmcnt(10)")
    k("s_barrier")
    k(f"v_mov_b32 v{GV_RD}, v{GV_L16}")
    for r in range(G_NR - 2):
        k(f"ds_read_b128 {vr(G_RING + 4 * r, 4)}, v{GV_RD} offset:{r * 1024}")
    PRE = G_NR - 2
    def epilogue_items(par):
        it = []
        for t in range(2):
            a = G_ACC + 32 * par + 16 * t
            for j in range(2):
                o = G_OUT + 4 * ((2 * t + j) & 3)
                for q in range(2):
                    it.append(f"v_cvt_pk_bf16_f32 v{o + 2 * q}, v{a + 8 * j + 4 * q}, v{a + 8 * j + 4 * q + 1}")
                    it.append(f"v_cvt_pk_bf16_f32 v{o + 2 * q + 1}, v{a + 8 * j + 4 * q + 2}, v{a + 8 * j + 4 * q + 3}")
                it.append("s_nop 1")
                it.append(f"v_permlane32_swap_b32 v{o}, v{o + 2}")
                it.append(f"v_permlane32_swap_b32 v{o + 1}, v{o + 3}")
                if isu: it.append(f"buffer_store_dwordx4 {vr(o, 4)}, v{GV_ST}, {srd}, s{GS_ST0} offen offset:{t * 2560 + j * 256}{SC1}")
                else:   it.append(f"buffer_store_dwordx4 {vr(o, 4)}, v{GV_ST}, {srd}, s{GS_ST0 + t} offen offset:{j * 1024}{SC1}")
        it.append(f"s_add_u32 s{GS_ST0}, s{GS_ST0}, s{GS_INC}")
        it.append(f"s_add_u32 s{GS_ST1}, s{GS_ST1}, s{GS_INC}")
        return it
    def segment(par, first):
        side = {i: [] for i in range(80)}
        if not first:
            for n, it in enumerate(epilogue_items(par ^ 1)): side[4 + n].append(it)
        for kap in range(40):
            slot = kap % G_NR
            nk = kap + PRE
            if nk == 40:
                k(f"v_add_u32 v{GV_RD + 4}, s{GS_LB}, v{GV_L16}")
            rb = GV_RD if nk < 40 else GV_RD + 4
            k(f"ds_read_b128 {vr(G_RING + 4 * (nk % G_NR), 4)}, v{rb} offset:{(nk % 40) * 1024}")
            k(f"s_waitcnt lgkmcnt({PRE})")
            x = vr(G_RING + 4 * slot, 4)
            for t in range(2):
                d = vr(G_ACC + 32 * par + 16 * t, 16)
                c = "0" if kap == 0 else d
                if isu: k(f"v_mfma_f32_32x32x16_bf16 {d}, {x}, {gw(kap, t)}, {c}")
                else:   k(f"v_mfma_f32_32x32x16_bf16 {d}, {gw(kap, t)}, {x}, {c}")
                for it in side[2 * kap + t]: k(it)
            if kap == 28:
                if first or not ovl:
                    k("s_waitcnt vmcnt(0)" if first else "s_waitcnt vmcnt(4)")
                    k("s_barrier")
                else:
                    nfl[0] += 1
                    l1 = f"g{tag}_dr{nfl[0]}"; l2 = f"g{tag}_dq{nfl[0]}"
                    k(f"s_cmp_gt_u32 s{GS_SEG}, 2")
                    k(f"s_cbranch_scc1 {k.ref(l1)}")
                    k("s_waitcnt vmcnt(0)")
                    k(f"s_mov_b32 s27, s{GS_SEG}")
                    k(f"s_branch {k.ref(l2)}")
                    k.lab(l1)
                    k("s_waitcnt vmcnt(4)")
                    k(f"s_sub_u32 s27, s{GS_SEG}, 1")
                    k.lab(l2)
                    k("s_barrier")
                    flag(27)
                nextbuf(GS_LB, GS_BUF)
                k(f"s_add_u32 s23, s{GS_SEG}, 2")
                dma(23)
                nextbuf(GS_NB, GS_NB)
        k(f"v_mov_b32 v{GV_RD}, v{GV_RD + 4}")
        k(f"s_mov_b32 s{GS_BUF}, s{GS_LB}")
        k(f"s_add_u32 s{GS_SEG}, s{GS_SEG}, 1")
    segment(0, True)
    k(f"s_cmp_ge_u32 s{GS_SEG}, s{GS_END}")
    k(f"s_cbranch_scc1 {L('fin0')}")
    lab('loop')
    segment(1, False)
    k(f"s_cmp_ge_u32 s{GS_SEG}, s{GS_END}")
    k(f"s_cbranch_scc1 {L('fin1')}")
    segment(0, False)
    k(f"s_cmp_lt_u32 s{GS_SEG}, s{GS_END}")
    k(f"s_cbranch_scc1 {L('loop')}")
    lab('fin0')
    k("s_nop 7"); k("s_nop 7")
    for it in epilogue_items(0): k(it)
    k(f"s_branch {L('done')}")
    lab('fin1')
    k("s_nop 7"); k("s_nop 7")
    for it in epilogue_items(1): k(it)
    lab('done')
    k("s_waitcnt vmcnt(0) lgkmcnt(0)")
    if ovl:
        k("s_barrier")
        flag(GS_SEG)

def role_gemm(k, cg_s, cfg=None):
    cfg = dict(cfg or {}, cg_s=cg_s)
    L = lambda s: k.ref('g_' + s)
    k(f"v_lshlrev_b32 v{GV_L16}, 4, v0")
    k("v_and_b32 v8, 31, v0")
    k("v_lshrrev_b32 v9, 5, v0")
    k(f"s_cmp_ge_u32 s{cg_s}, 80")
    k(f"s_cbranch_scc1 {L('qk')}")
    k("v_lshrrev_b32 v10, 3, v8")
    k("v_and_b32 v11, 7, v8")
    k("v_mul_u32_u24 v12, 20480, v10")
    k("v_lshl_add_u32 v12, v11, 4, v12")
    k(f"v_lshl_add_u32 v{GV_W}, v9, 8, v12")
    k(f"s_mul_i32 s24, s{cg_s}, 327680")
    k(f"s_mul_i32 s25, s{S_WAVE}, 81920")
    k("s_add_u32 s24, s24, s25")
    k(f"s_add_u32 s24, s24, {WY}")
    for kap in range(40):
        if kap % 7 == 0 and kap: k(f"s_add_u32 s24, s24, {7 * 512}")
        for t in range(2):
            k(f"buffer_load_dwordx4 {gw(kap, t)}, v{GV_W}, {srd}, s24 offen offset:{(kap % 7) * 512 + t * 128}")
    k(f"s_lshl_b32 s25, s{S_WAVE}, 3")
    k("v_add_u32 v10, s25, v10")
    k("v_mul_u32_u24 v10, 640, v10")
    k("v_lshl_add_u32 v10, v9, 7, v10")
    k("v_lshl_add_u32 v10, v11, 4, v10")
    k(f"v_add_u32 v{GV_ST}, 128, v10")
    k(f"s_mul_i32 s{GS_ST0}, s{cg_s}, 20480")
    k(f"s_mul_i32 s25, s{GS_SEG}, {Z_SEG}")
    k(f"s_add_u32 s{GS_ST0}, s{GS_ST0}, s25")
    k(f"s_add_u32 s{GS_ST0}, s{GS_ST0}, {Z}")
    k(f"s_mov_b32 s{GS_INC}, {Z_SEG}")
    gemm_body(k, True, 'u', cfg)
    k(f"s_branch {L('done')}")
    k.lab('g_qk')
    k(f"s_sub_u32 s26, s{cg_s}, 80")
    k("s_cmp_ge_u32 s26, 24")
    k("s_cselect_b32 s27, 1, 0")
    k("s_cselect_b32 s28, 24, 0")
    k("s_sub_u32 s26, s26, s28")
    k("s_lshl_b32 s26, s26, 3")
    k(f"s_lshl_b32 s28, s{S_WAVE}, 1")
    k("s_add_u32 s26, s26, s28")
    for t in range(2):
        k(f"s_add_u32 s28, s26, {t}")
        k("s_mul_i32 s29, s28, 171")
        k("s_lshr_b32 s29, s29, 10")
        k("s_mul_i32 s30, s29, 6")
        k("s_sub_u32 s30, s28, s30")
        k(f"s_mul_i32 s31, s29, {KX_SH}")
        k("s_lshl_b32 s32, s30, 11")
        k("s_add_u32 s31, s31, s32")
        k(f"s_mul_i32 s32, s{GS_SEG}, {32 * KX_SH}")
        k("s_add_u32 s31, s31, s32")
        k(f"s_mul_i32 s32, s27, {QX - KX}")
        k("s_add_u32 s31, s31, s32")
        k(f"s_add_u32 s{GS_ST0 + t}, s31, {KX}")
        k("s_lshl_b32 s30, s30, 5")
        k("v_add_u32 v10, s30, v8")
        p2e_lane(k, 11, 10, 12, 13)
        k("s_cmp_eq_u32 s27, 1")
        k("s_cselect_b64 vcc, -1, 0")
        k("s_nop 1")
        k("v_cndmask_b32 v10, v10, v11, vcc")
        wp_block_off(k, 11, 10, 0, 12, 13)
        k(f"v_lshl_add_u32 v{GV_W + t}, v9, 8, v11")
        k("s_xor_b32 s30, s27, 1")
        k(f"s_mul_i32 s30, s30, {3*20480}")
        k("s_mul_i32 s31, s29, 491520")
        k("s_add_u32 s30, s30, s31")
        k(f"s_add_u32 s{34 + t}, s30, {WP}")
    for kap in range(40):
        if kap % 8 == 0 and kap:
            k("s_add_u32 s34, s34, 4096"); k("s_add_u32 s35, s35, 4096")
        for t in range(2):
            k(f"buffer_load_dwordx4 {gw(kap, t)}, v{GV_W + t}, {srd}, s{34 + t} offen offset:{(kap % 8) * 512}")
    k(f"v_mov_b32 v{GV_ST}, v{GV_L16}")
    k(f"s_mov_b32 s{GS_INC}, {32 * KX_SH}")
    gemm_body(k, False, 'k', cfg)
    k.lab('g_done')

def build_gemmb(name="gemmb", nsplit=2):
    k = K(name, vgpr=256, sgpr=64, agpr=256)
    k(f"s_cmp_ge_u32 s2, {128 * nsplit}")
    k(f"s_cbranch_scc1 {k.ref('end')}")
    prologue(k)
    k("s_and_b32 s36, s2, 127")
    k("s_lshr_b32 s37, s2, 7")
    k(f"s_mul_i32 s{GS_SEG}, s37, {64 // nsplit}")
    k(f"s_add_u32 s{GS_END}, s{GS_SEG}, {64 // nsplit}")
    role_gemm(k, 36)
    k.lab('end')
    return k, 128 * nsplit, G_LDS

def role_w3a(k, seg_s, h_s, SC1=""):
    Q, KK, KMF, D1, D2, BI = 16, 64, 112, 160, 176, 192
    T = 208
    k("v_lshlrev_b32 v1, 4, v0")
    k("v_and_b32 v2, 31, v0")
    k("v_lshrrev_b32 v3, 5, v0")
    k(f"s_lshl_b32 s24, s{seg_s}, 5")
    k(f"s_add_u32 s24, s24, s{h_s}")
    k(f"s_mul_i32 s25, s24, {KX_SH}")
    k(f"s_add_u32 s26, s25, {QX}")
    k(f"s_add_u32 s27, s25, {KX}")
    k(f"s_mul_i32 s28, s24, {KM_SH}")
    k(f"s_add_u32 s28, s28, {KM}")
    k("v_and_b32 v4, 7, v0")
    k("v_lshlrev_b32 v4, 4, v4")
    k("v_lshl_add_u32 v4, v3, 7, v4")
    for kap in range(12):
        if kap % 4 == 0 and kap:
            k("s_add_u32 s26, s26, 4096"); k("s_add_u32 s27, s27, 4096")
        k(f"buffer_load_dwordx4 {vr(Q + 4 * kap, 4)}, v1, {srd}, s26 offen offset:{(kap % 4) * 1024}{SC1}")
        k(f"buffer_load_dwordx4 {vr(KK + 4 * kap, 4)}, v1, {srd}, s27 offen offset:{(kap % 4) * 1024}{SC1}")
        k(f"buffer_load_dwordx4 {vr(KMF + 4 * kap, 4)}, v4, {srd}, s28 offen offset:{kap * 256}{SC1}")
    k("v_lshlrev_b32 v5, 2, v3")
    k("v_sub_u32 v5, v2, v5")
    k(f"v_mov_b32 v6, {hexf(-1e30)}")
    for r in range(16):
        k(f"v_cmp_gt_i32 vcc, {(r & 3) + 8 * (r >> 2)}, v5")
        k("s_nop 1")
        k(f"v_cndmask_b32 v{BI + r}, 0, v6, vcc")
    for kap in range(12):
        k(f"s_waitcnt vmcnt({3 * (11 - kap)})")
        k(f"v_mfma_f32_32x32x16_bf16 {vr(D1, 16)}, {vr(KK + 4 * kap, 4)}, {vr(Q + 4 * kap, 4)}, {'0' if kap == 0 else vr(D1, 16)}")
        k(f"v_mfma_f32_32x32x16_bf16 {vr(D2, 16)}, {vr(KMF + 4 * kap, 4)}, {vr(Q + 4 * kap, 4)}, {'0' if kap == 0 else vr(D2, 16)}")
    k("s_nop 7"); k("s_nop 7")
    c = hexf(CSC)
    k(f"v_mov_b32 v7, {c}")
    for r in range(16): k(f"v_fma_f32 v{D1 + r}, v{D1 + r}, v7, v{BI + r}")
    for r in range(4): k(f"v_mul_f32 v{D2 + r}, v{D2 + r}, v7")
    vals = [D1 + r for r in range(16)] + [D2 + r for r in range(4)]
    m, u = T, T + 1
    k(f"v_max3_f32 v{m}, v{vals[0]}, v{vals[1]}, v{vals[2]}")
    rest = vals[3:]
    while len(rest) >= 2:
        k(f"v_max3_f32 v{m}, v{m}, v{rest[0]}, v{rest[1]}"); rest = rest[2:]
    if rest: k(f"v_max_f32 v{m}, v{m}, v{rest[0]}")
    k(f"v_mov_b32 v{u}, v{m}")
    k("s_nop 1")
    k(f"v_permlane32_swap_b32 v{m}, v{u}")
    k(f"v_max_f32 v{m}, v{m}, v{u}")
    for r in vals: k(f"v_sub_f32 v{r}, v{r}, v{m}")
    for r in vals: k(f"v_exp_f32 v{r}, v{r}")
    k("s_nop 0")
    s_ = T + 2
    k(f"v_add_f32 v{s_}, v{vals[0]}, v{vals[1]}")
    for r in vals[2:]: k(f"v_add_f32 v{s_}, v{s_}, v{r}")
    k(f"v_mov_b32 v{u}, v{s_}")
    k("s_nop 1")
    k(f"v_permlane32_swap_b32 v{s_}, v{u}")
    k(f"v_add_f32 v{s_}, v{s_}, v{u}")
    k(f"v_rcp_f32 v{s_}, v{s_}")
    k("s_nop 0")
    for r in vals: k(f"v_mul_f32 v{r}, v{r}, v{s_}")
    k(f"s_mul_i32 s25, s{seg_s}, {PX_SEG}")
    k(f"s_mul_i32 s26, s{h_s}, 2560")
    k("s_add_u32 s25, s25, s26")
    k(f"s_add_u32 s25, s25, {PXB}")
    O = Q
    for j in range(2):
        o = O + 4 * j
        for q in range(2):
            k(f"v_cvt_pk_bf16_f32 v{o + 2 * q}, v{D1 + 8 * j + 4 * q}, v{D1 + 8 * j + 4 * q + 1}")
            k(f"v_cvt_pk_bf16_f32 v{o + 2 * q + 1}, v{D1 + 8 * j + 4 * q + 2}, v{D1 + 8 * j + 4 * q + 3}")
        k("s_nop 1")
        k(f"v_permlane32_swap_b32 v{o}, v{o + 2}")
        k(f"v_permlane32_swap_b32 v{o + 1}, v{o + 3}")
        k(f"buffer_store_dwordx4 {vr(o, 4)}, v1, {srd}, s25 offen offset:{512 + j * 1024}{SC1}")
    k(f"v_cvt_pk_bf16_f32 v{O + 8}, v{D2}, v{D2 + 1}")
    k(f"v_cvt_pk_bf16_f32 v{O + 9}, v{D2 + 2}, v{D2 + 3}")
    k("v_lshlrev_b32 v4, 4, v2")
    k("v_lshl_add_u32 v4, v3, 3, v4")
    k(f"buffer_store_dwordx2 {vr(O + 8, 2)}, v4, {srd}, s25 offen{SC1}")

def build_w3a(name="w3a"):
    k = K(name, vgpr=216, sgpr=48)
    k("s_cmp_ge_u32 s2, 512")
    k(f"s_cbranch_scc1 {k.ref('end')}")
    prologue(k)
    k("s_lshl_b32 s20, s2, 2")
    k(f"s_add_u32 s20, s20, s{S_WAVE}")
    k("s_lshr_b32 s21, s20, 5")
    k("s_and_b32 s22, s20, 31")
    role_w3a(k, 21, 22)
    k.lab('end')
    return k, 512

def role_w3b(k, seg_s, cg_s, res_off, out_srd, out_off, NR=16, SC1=""):
    RING = 32; ACC = 16
    k("v_lshlrev_b32 v1, 4, v0")
    k("v_and_b32 v2, 31, v0")
    k("v_lshrrev_b32 v3, 5, v0")
    k("v_lshrrev_b32 v4, 3, v2")
    k("v_mul_u32_u24 v4, 20480, v4")
    k("v_and_b32 v5, 7, v2")
    k("v_lshl_add_u32 v4, v5, 4, v4")
    k("v_lshl_add_u32 v4, v3, 7, v4")
    k(f"s_mul_i32 s24, s{seg_s}, {Z_SEG}")
    k(f"s_mul_i32 s25, s{cg_s}, {4 * 20480}")
    k("s_add_u32 s24, s24, s25")
    k(f"s_add_u32 s24, s24, {Z}")
    k(f"s_mul_i32 s25, s{seg_s}, {PX_SEG}")
    k(f"s_add_u32 s25, s25, {PXB}")
    k("v_mul_u32_u24 v6, 1280, v2")
    k("v_lshl_add_u32 v6, v3, 4, v6")
    k(f"s_mul_i32 s26, s{seg_s}, {32 * 1280}")
    k(f"s_lshl_b32 s27, s{cg_s}, 6")
    k("s_add_u32 s26, s26, s27")
    k(f"s_add_u32 s27, s26, {res_off}")
    for j in range(2):
        k(f"buffer_load_dwordx4 {vr(8 + 4 * j, 4)}, v6, {srd}, s27 offen offset:{32 * j}")
    def load(kap):
        sl = RING + 8 * (kap % NR)
        if kap % 16 == 0 and kap: k("s_add_u32 s24, s24, 4096")
        if kap % 4 == 0 and kap: k("s_add_u32 s25, s25, 4096")
        k(f"buffer_load_dwordx4 {vr(sl, 4)}, v4, {srd}, s24 offen offset:{(kap % 16) * 256}{SC1}")
        k(f"buffer_load_dwordx4 {vr(sl + 4, 4)}, v1, {srd}, s25 offen offset:{(kap % 4) * 1024}{SC1}")
    for kap in range(NR): load(kap)
    issued = NR
    for kap in range(80):
        k(f"s_waitcnt vmcnt({2 * (issued - 1 - kap)})")
        sl = RING + 8 * (kap % NR)
        k(f"v_mfma_f32_32x32x16_bf16 {vr(ACC, 16)}, {vr(sl, 4)}, {vr(sl + 4, 4)}, {'0' if kap == 0 else vr(ACC, 16)}")
        if kap >= 1 and issued < 80:
            load(issued); issued += 1
    k("s_nop 7"); k("s_nop 7")
    O = RING
    for j in range(2):
        o = O + 4 * j
        for q in range(2):
            k(f"v_cvt_pk_bf16_f32 v{o + 2 * q}, v{ACC + 8 * j + 4 * q}, v{ACC + 8 * j + 4 * q + 1}")
            k(f"v_cvt_pk_bf16_f32 v{o + 2 * q + 1}, v{ACC + 8 * j + 4 * q + 2}, v{ACC + 8 * j + 4 * q + 3}")
        k("s_nop 1")
        k(f"v_permlane32_swap_b32 v{o}, v{o + 2}")
        k(f"v_permlane32_swap_b32 v{o + 1}, v{o + 3}")
        k("s_nop 1")
        for r in range(4):
            a, b, t0, t1 = O + 8, O + 9, O + 10, O + 11
            k(f"v_lshlrev_b32 v{a}, 16, v{o + r}")
            k(f"v_and_b32 v{b}, 0xffff0000, v{o + r}")
            k(f"v_lshlrev_b32 v{t0}, 16, v{8 + 4 * j + r}")
            k(f"v_and_b32 v{t1}, 0xffff0000, v{8 + 4 * j + r}")
            k(f"v_add_f32 v{a}, v{a}, v{t0}")
            k(f"v_add_f32 v{b}, v{b}, v{t1}")
            k(f"v_cvt_pk_bf16_f32 v{o + r}, v{a}, v{b}")
        if out_off is not None:
            k(f"s_add_u32 s27, s26, {out_off}")
            k(f"buffer_store_dwordx4 {vr(o, 4)}, v6, {srd}, s27 offen offset:{32 * j}")
        else:
            k(f"buffer_store_dwordx4 {vr(o, 4)}, v6, {out_srd}, s26 offen offset:{32 * j}")

def build_w3b(name, res_off, out_off):
    NR = 12
    k = K(name, vgpr=32 + 8 * NR, sgpr=48)
    k("s_cmp_ge_u32 s2, 320")
    k(f"s_cbranch_scc1 {k.ref('end')}")
    prologue(k, [(KA_OUT, 6)])
    k.srd(16, 6, 2048 * 640 * 2)
    k("s_lshl_b32 s20, s2, 2")
    k(f"s_add_u32 s20, s20, s{S_WAVE}")
    k("s_mul_i32 s21, s20, 3277"); k("s_lshr_b32 s21, s21, 16")
    k("s_mul_i32 s22, s21, 20"); k("s_sub_u32 s22, s20, s22")
    role_w3b(k, 21, 22, res_off, "s[16:19]", out_off, NR)
    k.lab('end')
    return k, 320

J_PER = 18
NJOB = 64 * J_PER
JL_RED = 0; JL_JOB = 32768

def role_w3b2(k, seg_s, cg_s, res_off, out_srd):
    ACC = 16; T = 48
    AP, AZ0, AZ1 = 160, 0, 80
    k("v_lshlrev_b32 v1, 4, v0")
    k("v_and_b32 v2, 31, v0")
    k("v_lshrrev_b32 v3, 5, v0")
    k("v_lshrrev_b32 v4, 3, v2")
    k("v_mul_u32_u24 v4, 20480, v4")
    k("v_and_b32 v5, 7, v2")
    k("v_lshl_add_u32 v4, v5, 4, v4")
    k("v_lshl_add_u32 v4, v3, 7, v4")
    k(f"s_mul_i32 s24, s{seg_s}, {Z_SEG}")
    k(f"s_mul_i32 s25, s{cg_s}, {8 * 20480}")
    k("s_add_u32 s24, s24, s25")
    k(f"s_mul_i32 s25, s{S_WAVE}, {20 * 256}")
    k("s_add_u32 s24, s24, s25")
    k(f"s_add_u32 s24, s24, {Z}")
    k(f"s_add_u32 s28, s24, {4 * 20480}")
    k(f"s_mul_i32 s25, s{seg_s}, {PX_SEG}")
    k(f"s_mul_i32 s26, s{S_WAVE}, {20 * 1024}")
    k("s_add_u32 s25, s25, s26")
    k(f"s_add_u32 s25, s25, {PXB}")
    k("v_mul_u32_u24 v6, 1280, v2")
    k("v_lshl_add_u32 v6, v3, 4, v6")
    k(f"s_mul_i32 s26, s{seg_s}, {32 * 1280}")
    k(f"s_lshl_b32 s27, s{cg_s}, 7")
    k("s_add_u32 s26, s26, s27")
    k(f"s_lshl_b32 s27, s{S_WAVE}, 5")
    k("s_add_u32 s26, s26, s27")
    k(f"s_add_u32 s27, s26, {res_off}")
    k(f"buffer_load_dwordx4 v[8:11], v6, {srd}, s27 offen")
    for i in range(20):
        if i % 4 == 0 and i: k("s_add_u32 s25, s25, 4096")
        if i == 16:
            k("s_add_u32 s24, s24, 4096"); k("s_add_u32 s28, s28, 4096")
        k(f"buffer_load_dwordx4 {ar(AP + 4 * i, 4)}, v1, {srd}, s25 offen offset:{(i % 4) * 1024} sc1")
        k(f"buffer_load_dwordx4 {ar(AZ0 + 4 * i, 4)}, v4, {srd}, s24 offen offset:{(i % 16) * 256} sc1")
        k(f"buffer_load_dwordx4 {ar(AZ1 + 4 * i, 4)}, v4, {srd}, s28 offen offset:{(i % 16) * 256} sc1")
    for i in range(20):
        k(f"s_waitcnt vmcnt({3 * (19 - i)})")
        for t, az in ((0, AZ0), (1, AZ1)):
            d = vr(ACC + 16 * t, 16)
            k(f"v_mfma_f32_32x32x16_bf16 {d}, {ar(az + 4 * i, 4)}, {ar(AP + 4 * i, 4)}, {'0' if i == 0 else d}")
    k(f"s_lshl_b32 s27, s{S_WAVE}, 11")
    k(f"v_add_u32 v7, s27, v1")
    k("s_nop 7"); k("s_nop 7")
    for t in range(2):
        for j in range(2):
            for hh in range(2):
                k(f"ds_write_b128 v7, {vr(ACC + 16 * t + 8 * j + 4 * hh, 4)} offset:{JL_RED + (t * 2 + j) * 8192 + hh * 1024}")
    k("s_waitcnt lgkmcnt(0)")
    k("s_barrier")
    k(f"s_lshl_b32 s27, s{S_WAVE}, 13")
    k(f"v_add_u32 v7, s27, v1")
    for ww in range(4):
        for hh in range(2):
            k(f"ds_read_b128 {vr(T + 8 * ww + 4 * hh, 4)}, v7 offset:{JL_RED + ww * 2048 + hh * 1024}")
    k("s_waitcnt lgkmcnt(4)")
    for r in range(8): k(f"v_add_f32 v{T + r}, v{T + r}, v{T + 8 + r}")
    k("s_waitcnt lgkmcnt(0)")
    for r in range(8): k(f"v_add_f32 v{T + 16 + r}, v{T + 16 + r}, v{T + 24 + r}")
    for r in range(8): k(f"v_add_f32 v{T + r}, v{T + r}, v{T + 16 + r}")
    o = ACC
    for q in range(2):
        k(f"v_cvt_pk_bf16_f32 v{o + 2 * q}, v{T + 4 * q}, v{T + 4 * q + 1}")
        k(f"v_cvt_pk_bf16_f32 v{o + 2 * q + 1}, v{T + 4 * q + 2}, v{T + 4 * q + 3}")
    k("s_nop 1")
    k(f"v_permlane32_swap_b32 v{o}, v{o + 2}")
    k(f"v_permlane32_swap_b32 v{o + 1}, v{o + 3}")
    k("s_nop 1")
    for r in range(4):
        a, b, t0, t1 = T, T + 1, T + 2, T + 3
        k(f"v_lshlrev_b32 v{a}, 16, v{o + r}")
        k(f"v_and_b32 v{b}, 0xffff0000, v{o + r}")
        k(f"v_lshlrev_b32 v{t0}, 16, v{8 + r}")
        k(f"v_and_b32 v{t1}, 0xffff0000, v{8 + r}")
        k(f"v_add_f32 v{a}, v{a}, v{t0}")
        k(f"v_add_f32 v{b}, v{b}, v{t1}")
        k(f"v_cvt_pk_bf16_f32 v{o + r}, v{a}, v{b}")
    k(f"buffer_store_dwordx4 {vr(o, 4)}, v6, {out_srd}, s26 offen")

def role_w3_loop(k, cfg, fl_s, spin_s, out_srd, layer_s):
    L = lambda s: k.ref('j_' + s)
    lab = lambda s: k.lab('j_' + s)
    bail = k.ref('bail')
    SEG, R, NEED = 40, 41, 42
    lab('next')
    k(f"s_cmp_lg_u32 s{S_WAVE}, 0")
    k(f"s_cbranch_scc1 {L('rel')}")
    k("s_mov_b64 exec, 1")
    k(f"v_mov_b32 v2, {FL_JOB}")
    k("v_mov_b32 v3, 1")
    k(f"buffer_atomic_add v3, v2, {srd}, s{fl_s} offen sc0 sc1")
    k("s_waitcnt vmcnt(0)")
    k("s_mov_b64 exec, -1")
    k("s_nop 0")
    k("v_readfirstlane_b32 s38, v3")
    k(f"s_cmp_ge_u32 s38, {NJOB}")
    k(f"s_cbranch_scc1 {L('pub')}")
    k("s_mul_i32 s39, s38, 58255")
    k(f"s_lshr_b32 s{SEG}, s39, 20")
    k(f"s_mul_i32 s39, s{SEG}, {J_PER}")
    k(f"s_sub_u32 s{R}, s38, s39")
    k(f"s_add_u32 s{NEED}, s{SEG}, 1")
    k(f"v_mov_b32 v4, s{NEED}")
    k(f"s_cmp_ge_u32 s{R}, 8")
    k(f"s_cbranch_scc1 {L('dep_b')}")
    k(f"s_lshl_b32 s24, s{R}, 9")
    k(f"s_add_u32 s24, s24, {FL_PF}")
    k("v_lshlrev_b32 v2, 7, v0")
    k("v_add_u32 v2, s24, v2")
    k(f"s_mul_i32 s25, s{R}, 3")
    k("s_add_u32 s25, s25, 104")
    k("s_lshl_b32 s25, s25, 7")
    k("v_writelane_b32 v2, s25, 4")
    k("s_add_u32 s25, s25, 128")
    k("v_writelane_b32 v2, s25, 5")
    k("s_add_u32 s25, s25, 128")
    k("v_writelane_b32 v2, s25, 6")
    k("s_mov_b64 exec, 0x7f")
    k(f"s_branch {L('poll')}")
    lab('dep_b')
    k(f"s_sub_u32 s24, s{R}, 8")
    k("s_lshl_b32 s24, s24, 10")
    k(f"s_add_u32 s24, s24, {FL_YF}")
    k("v_lshlrev_b32 v2, 7, v0")
    k("v_add_u32 v2, s24, v2")
    k(f"s_lshl_b32 s25, s{SEG}, 4")
    k(f"s_add_u32 s25, s25, {FL_WA}")
    k("v_writelane_b32 v2, s25, 8")
    k("s_mov_b32 s26, 8")
    k("v_writelane_b32 v4, s26, 8")
    k("s_mov_b64 exec, 0x1ff")
    lab('poll')
    k(f"buffer_load_dword v3, v2, {srd}, s{fl_s} offen sc1")
    k("s_waitcnt vmcnt(0)")
    k("v_cmp_gt_u32 vcc, v4, v3")
    k(f"s_sub_u32 s{spin_s}, s{spin_s}, 1")
    k(f"s_cbranch_scc1 {L('giveup')}")
    k(f"s_cbranch_vccnz {L('poll')}")
    k("s_mov_b64 exec, -1")
    lab('pub')
    k("v_mov_b32 v2, 0")
    k("v_mov_b32 v3, s38")
    k(f"ds_write_b32 v2, v3 offset:{JL_JOB}")
    k("s_waitcnt lgkmcnt(0)")
    lab('rel')
    k("s_barrier")
    k("v_mov_b32 v2, 0")
    k(f"ds_read_b32 v3, v2 offset:{JL_JOB}")
    k("s_waitcnt lgkmcnt(0)")
    k("v_readfirstlane_b32 s38, v3")
    k(f"s_cmp_ge_u32 s38, {NJOB}")
    k(f"s_cbranch_scc1 {L('done')}")
    k("s_mul_i32 s39, s38, 58255")
    k(f"s_lshr_b32 s{SEG}, s39, 20")
    k(f"s_mul_i32 s39, s{SEG}, {J_PER}")
    k(f"s_sub_u32 s{R}, s38, s39")
    k(f"s_cmp_ge_u32 s{R}, 8")
    k(f"s_cbranch_scc1 {L('b')}")
    k(f"s_lshl_b32 s{R}, s{R}, 2")
    k(f"s_add_u32 s{R}, s{R}, s{S_WAVE}")
    role_w3a(k, SEG, R, " sc1")
    k("s_waitcnt vmcnt(0)")
    k("s_barrier")
    k(f"s_cmp_lg_u32 s{S_WAVE}, 0")
    k(f"s_cbranch_scc1 {L('next')}")
    k("s_mov_b64 exec, 1")
    k(f"s_lshl_b32 s24, s{SEG}, 4")
    k(f"s_add_u32 s24, s24, {FL_WA}")
    k("v_mov_b32 v2, s24")
    k("v_mov_b32 v3, 1")
    k(f"buffer_atomic_add v3, v2, {srd}, s{fl_s} offen sc1")
    k("s_mov_b64 exec, -1")
    k(f"s_branch {L('next')}")
    lab('b')
    k(f"s_sub_u32 s{R}, s{R}, 8")
    role_w3b2(k, SEG, R, A_X1, out_srd)
    k(f"s_branch {L('next')}")
    lab('giveup')
    k("s_mov_b64 exec, -1")
    k("v_mov_b32 v2, 0")
    k("v_mov_b32 v3, -1")
    k(f"ds_write_b32 v2, v3 offset:{JL_JOB}")
    k("s_waitcnt lgkmcnt(0)")
    k("s_barrier")
    k(f"s_branch {bail}")
    lab('done')
```

```python
import sys, math
sys.path.insert(0, "/code"); sys.path.insert(0, "tools")
from asmk import *
from lay import *

NSTEP = 64
SPIN = 400000
CSC = (192 ** -0.5) * math.log2(math.e)

class LQ:
    def __init__(self, k): self.k = k; self.q = []
    def ds(self, ins, tag=None):
        self.k(ins); self.q.append(tag)
        assert len(self.q) <= 15, "too many outstanding LDS ops"
    def wait(self, tag):
        idx = [i for i, t in enumerate(self.q) if t == tag]
        if not idx: return
        n = len(self.q) - 1 - idx[-1]
        self.k(f"s_waitcnt lgkmcnt({n})"); self.q = self.q[idx[-1] + 1:]
    def all(self):
        self.k("s_waitcnt lgkmcnt(0)"); self.q = []

def vr(b, n): return f"v[{b}:{b+n-1}]" if n > 1 else f"v{b}"
def ar(b, n): return f"a[{b}:{b+n-1}]"

def check_valid(k, regs, tmp):
    regs = list(regs)
    k(f"v_max3_u32 v{tmp}, v{regs[0]}, v{regs[1]}, v{regs[2]}")
    rest = regs[3:]
    while len(rest) >= 2:
        k(f"v_max3_u32 v{tmp}, v{tmp}, v{rest[0]}, v{rest[1]}"); rest = rest[2:]
    if rest: k(f"v_max_u32 v{tmp}, v{tmp}, v{rest[0]}")
    k(f"v_cmp_eq_u32 vcc, -1, v{tmp}")

S_WS = 4
SRD = 8
S_ROLE = 12; S_WAVE = 13; S_STEP = 14; S_SPIN = 15
S_EB0 = 16; S_EB1 = 17
S_SB = 18
S_SBN = 19
S_T = 20
S_M8 = 40
S_M2 = 42
S_KX = 44; S_KM = 45; S_Z = 46
S_GK = 47
S_FL = 48
S_LAYER = 49
S_ST = 50
S_OSRD = 84
S_FD0 = 82; S_FD1 = 83
S_SBF = 88; S_SBNF = 89
srd = f"s[{SRD}:{SRD+3}]"

OWN = [[0, 1, 2], [3, 4, 5], [6, 7], [8, 9]]

def slot_base(k, dst, step_s, tmp, far=None):
    k(f"s_cmp_lt_u32 s{step_s}, 32")
    k(f"s_cselect_b32 s{dst}, s{S_EB0}, s{S_EB1}")
    if far is not None: k(f"s_cselect_b32 s{far}, s{S_FD0}, s{S_FD1}")
    k(f"s_and_b32 s{tmp}, s{step_s}, 31")
    k(f"s_lshl_b32 s{tmp}, s{tmp}, 16")
    k(f"s_add_u32 s{dst}, s{dst}, s{tmp}")
    if far is not None: k(f"s_add_u32 s{far}, s{far}, s{dst}")

def stamp(k, cfg, n, real=False):
    if cfg.get('stamp'):
        k(f"s_mem{'real' if real else ''}time s[{S_ST+2*n}:{S_ST+2*n+1}]")

def stamp_flush(k, cfg, nst, base_off):
    if not cfg.get('stamp'): return
    k("s_waitcnt lgkmcnt(0)")
    sk = k.uniq('stk')
    k(f"s_cmp_lg_u32 s{S_ROLE}, {cfg.get('stamp_role', 0)}")
    k(f"s_cbranch_scc1 {k.ref(sk)}")
    k("s_mov_b64 s[30:31], exec")
    k("s_mov_b64 exec, 1")
    k(f"s_lshl_b32 s32, s{S_STEP}, 6")
    k(f"s_add_u32 s32, s32, {base_off}")
    k("v_mov_b32 v252, 0")
    for n in range(nst):
        k(f"v_mov_b32 v253, s{S_ST+2*n}")
        k(f"buffer_store_dword v253, v252, {srd}, s32 offen offset:{4*n}")
        k("s_nop 1")
    k("s_mov_b64 exec, s[30:31]")
    k.lab(sk)

def rt(k, cfg, n):
    if cfg.get('rt'):
        k(f"s_memrealtime s[{S_ST+2*n}:{S_ST+2*n+1}]")

def rt_flush(k, cfg, rolebase):
    if not cfg.get('rt'): return
    k("s_waitcnt lgkmcnt(0)")
    k("s_mov_b64 exec, 1")
    k(f"s_add_u32 s32, s{S_ROLE}, {rolebase}")
    k("s_lshl_b32 s32, s32, 6")
    k(f"s_add_u32 s32, s32, s{S_STEP}")
    k("s_lshl_b32 s32, s32, 4")
    k(f"s_add_u32 s32, s32, {cfg['rt']}")
    k(f"s_mul_i32 s33, s{S_LAYER}, 0x200000")
    k("s_add_u32 s32, s32, s33")
    k("v_mov_b32 v252, 0")
    for n in range(3):
        k(f"v_mov_b32 v253, s{S_ST+2*n}")
        k(f"buffer_store_dword v253, v252, {srd}, s32 offen offset:{4*n}")
        k("s_nop 1")
    k("s_mov_b64 exec, -1")

def spin_check(k, bail):
    k(f"s_sub_u32 s{S_SPIN}, s{S_SPIN}, 1")
    k(f"s_cbranch_scc1 {bail}")

def wait_progress(k, cfg, tag, step_s, voff, nl, vt):
    if not cfg.get('ovl'): return
    ok = k.ref(tag + '_ok'); lp = tag + '_lp'
    k(f"s_cmp_gt_u32 s{S_GK}, s{step_s}")
    k(f"s_cbranch_scc1 {ok}")
    k.lab(lp)
    k(f"buffer_load_dword v{vt}, v{voff}, {srd}, s{S_FL} offen sc1")
    k("s_waitcnt vmcnt(0)")
    k(f"v_readlane_b32 s{S_GK}, v{vt}, 0")
    if nl == 2:
        k(f"v_readlane_b32 s{S_T+9}, v{vt}, 1")
        k("s_nop 0")
        k(f"s_min_u32 s{S_GK}, s{S_GK}, s{S_T+9}")
    else:
        k("s_nop 0")
    spin_check(k, k.ref('bail'))
    k(f"s_cmp_gt_u32 s{S_GK}, s{step_s}")
    k(f"s_cbranch_scc0 {k.ref(lp)}")
    k.lab(tag + '_ok')

def flag_store(k, cfg, off_s, val_s, va, vb):
    k("s_mov_b64 exec, 1")
    k(f"v_mov_b32 v{va}, s{off_s}")
    k(f"v_mov_b32 v{vb}, s{val_s}")
    k(f"buffer_store_dword v{vb}, v{va}, {srd}, s{S_FL} offen sc1")
    k("s_mov_b64 exec, -1")

PL_NL = 15
PL_WL = 0
PL_MEMI = 4 * PL_NL * 2048
PL_QI = PL_MEMI + 10240
PL_STR = 400
PL_KI = PL_QI + 8 * PL_STR
PL_SP = PL_KI + 8 * PL_STR
PL_END = PL_SP + 4096

V_L16 = 1; V_IDX = 2; V_IW = 3; V_QR = 4; V_KR = 5; V_SPR = 6; V_PX = 7; V_PM = 8; V_KXO = 9
V_KML = 10; V_KMG = 11; V_MASKF = 12; V_WLA = 13; V_MIA = 14; V_SPW = 15
V_GF = 255; V_T0 = 253; V_T1 = 254
AF = 16; PD = 56; PDX = 80; PDM = 84; QF = 88; KXF = 100; TB = 116; PVW = 148

def p_plan(w):
    own = OWN[w]; rest = [ks for ks in range(10) if ks not in own]
    order1 = own + rest
    seq = [(T, ks) for ks in order1 for T in (0, 1, 2)] + [(T, ks) for T in (3, 4, 5) for ks in range(10)]
    ldspos = list(range(9, 30, 2)) + [44, 48, 52, 56]
    assert len(ldspos) == PL_NL
    where = {}
    regops = [i for i in range(60) if i not in ldspos]
    for n, i in enumerate(regops):
        where[seq[i]] = ('a', 8 * n) if n < 32 else ('v', PVW + 8 * (n - 32))
    assert PVW + 8 * (len(regops) - 32) <= 254
    for n, i in enumerate(ldspos): where[seq[i]] = ('l', n)
    return own, rest, seq, ldspos, where

def p_setup_lanes(k):
    k(f"v_lshlrev_b32 v{V_L16}, 4, v0")
    k("v_and_b32 v16, 8, v0")
    k("v_cmp_eq_u32 vcc, 0, v16")
    k("v_mov_b32 v17, 0xeeeeeeee")
    k("v_mov_b32 v18, 0x44444444")
    k(f"v_cndmask_b32 v{V_IDX}, v17, v18, vcc")

def gen_p_wave(k, w, cfg):
    own, rest, seq, ldspos, where = p_plan(w)
    L = lambda s: k.ref(f"p{w}_{s}")
    lab = lambda s: k.lab(f"p{w}_{s}")
    bail = k.ref('bail')
    lq = LQ(k)
    lab('start')
    k("v_lshrrev_b32 v16, 4, v0")
    k("v_and_b32 v17, 15, v0")
    k("v_and_b32 v18, 1, v16")
    k("v_lshlrev_b32 v18, 2, v18")
    k("v_lshrrev_b32 v19, 1, v16")
    k("v_lshl_add_u32 v18, v19, 1, v18")
    k(f"v_mul_u32_u24 v18, {PL_STR}, v18")
    k("v_lshl_add_u32 v18, v17, 1, v18")
    k(f"v_add_u32 v{V_IW}, {PL_QI + 96 * w}, v18")
    k("v_and_b32 v18, 7, v0")
    k(f"v_mul_u32_u24 v18, {PL_STR}, v18")
    k("v_lshrrev_b32 v19, 3, v0")
    k("v_lshl_add_u32 v18, v19, 4, v18")
    k(f"v_add_u32 v{V_QR}, {PL_QI}, v18")
    k("v_and_b32 v18, 7, v0")
    k(f"v_mul_u32_u24 v18, {PL_STR}, v18")
    k("v_lshl_add_u32 v18, v16, 5, v18")
    k(f"v_add_u32 v{V_KR}, {PL_KI}, v18")
    k("v_lshrrev_b32 v18, 1, v16")
    k("v_lshlrev_b32 v18, 10, v18")
    k("v_and_b32 v19, 31, v0")
    k("v_lshl_add_u32 v18, v19, 4, v18")
    k(f"v_add_u32 v{V_SPR}, {PL_SP + 4 * w}, v18")
    k(f"v_add_u32 v{V_SPW}, {PL_SP + 1024 * w}, v{V_L16}")
    k("v_lshrrev_b32 v18, 1, v16")
    k("v_lshlrev_b32 v18, 1, v18")
    k("v_lshrrev_b32 v19, 3, v17")
    k("v_add3_u32 v18, v18, v19, 1")
    k("v_lshrrev_b32 v19, 1, v18")
    k("v_lshlrev_b32 v19, 14, v19")
    k("v_and_b32 v18, 1, v18")
    k("v_lshl_add_u32 v18, v18, 12, v19")
    k("v_and_b32 v19, 1, v16")
    k("v_lshlrev_b32 v19, 4, v19")
    k(f"v_add_u32 v19, {32 * w}, v19")
    k(f"s_lshl_b32 s{S_T}, s{S_ROLE}, 7")
    k(f"v_add_u32 v{V_PM}, s{S_T}, v19")
    k(f"v_add_u32 v{V_PX}, v{V_PM}, v18")
    k(f"v_lshlrev_b32 v18, 4, v17")
    k("v_lshl_add_u32 v18, v16, 10, v18")
    k(f"v_add_u32 v{V_KXO}, {16 * (w & 1) * 16}, v18")
    k(f"v_add_u32 v18, {64 * w}, v0")
    k("v_mul_u32_u24 v19, 2731, v18")
    k("v_lshrrev_b32 v19, 16, v19")
    k("v_mul_u32_u24 v20, 24, v19")
    k("v_sub_u32 v20, v18, v20")
    k(f"v_mul_u32_u24 v21, {PL_STR}, v19")
    k("v_lshl_add_u32 v21, v20, 4, v21")
    k(f"v_add_u32 v{V_KML}, {PL_KI}, v21")
    k("v_lshlrev_b32 v21, 4, v19")
    k(f"v_lshl_add_u32 v{V_KMG}, v20, 7, v21")
    k("v_and_b32 v18, 0x28, v0")
    k("v_cmp_eq_u32 vcc, 0, v18")
    k("v_mov_b32 v18, 1.0")
    k("v_mov_b32 v19, 0")
    k(f"v_cndmask_b32 v{V_MASKF}, v19, v18, vcc")
    k(f"v_add_u32 v{V_WLA}, {PL_WL + w * PL_NL * 2048}, v{V_L16}")
    k(f"v_add_u32 v{V_MIA}, {PL_MEMI}, v{V_L16}")
    k(f"s_mul_i32 s{S_KX}, s{S_ROLE}, {KX_SH}")
    k(f"s_add_u32 s{S_KX}, s{S_KX}, {KX}")
    k(f"s_mul_i32 s{S_KM}, s{S_ROLE}, {KM_SH}")
    k(f"s_add_u32 s{S_KM}, s{S_KM}, {KM}")
    if cfg.get('ovl'):
        k(f"s_mul_i32 s{S_T}, s{S_ROLE}, 6")
        k(f"s_add_u32 s{S_T+1}, s{S_T}, 5")
        k(f"s_lshr_b32 s{S_T}, s{S_T}, 3")
        k(f"s_lshr_b32 s{S_T+1}, s{S_T+1}, 3")
        k(f"s_add_u32 s{S_T}, s{S_T}, 80"); k(f"s_add_u32 s{S_T+1}, s{S_T+1}, 80")
        k(f"s_lshl_b32 s{S_T}, s{S_T}, 7"); k(f"s_lshl_b32 s{S_T+1}, s{S_T+1}, 7")
        k(f"v_mov_b32 v{V_GF}, s{S_T+1}")
        k(f"v_mov_b32 v{V_T0}, s{S_T}")
        k("v_cmp_eq_u32 vcc, 0, v0")
        k("s_nop 1")
        k(f"v_cndmask_b32 v{V_GF}, v{V_GF}, v{V_T0}, vcc")
        k(f"s_mov_b32 s{S_GK}, 0")
    k(f"s_mul_i32 s{S_T}, s{S_ROLE}, 491520")
    k(f"s_add_u32 s{S_T}, s{S_T}, {WP + w * 122880}")
    def wload(dst, T, ks):
        idx = T * 10 + ks
        k(f"s_add_u32 s{S_T+1}, s{S_T}, {idx * 2048}")
        for hi in range(2):
            k(f"buffer_load_dwordx4 {dst(hi)}, v{V_L16}, {srd}, s{S_T+1} offen offset:{hi*1024}")
    lops = [(op, wh[1]) for op, wh in where.items() if wh[0] == 'l']
    rops = [(op, wh) for op, wh in where.items() if wh[0] != 'l']
    for (T, ks), slot in lops:
        wload(lambda hi: vr(16 + 8 * slot + 4 * hi, 4), T, ks)
    nre = 0
    for (T, ks), wh in rops[:16]:
        wload((lambda hi, wh=wh: (ar if wh[0] == 'a' else vr)(wh[1] + 4 * hi, 4)), T, ks)
    k("s_waitcnt vmcnt(32)")
    for (T, ks), slot in lops:
        for hi in range(2):
            k(f"ds_write_b128 v{V_WLA}, {vr(16 + 8 * slot + 4 * hi, 4)} offset:{slot * 2048 + hi * 1024}")
    for (T, ks), wh in rops[16:]:
        wload((lambda hi, wh=wh: (ar if wh[0] == 'a' else vr)(wh[1] + 4 * hi, 4)), T, ks)
    k("s_waitcnt lgkmcnt(0)")
    kxset = [0, 1] if w < 2 else [2]
    SC1 = " sc1" if cfg.get('ovl') else ""
    npf = [0]
    def kx_prefetch(step_s):
        npf[0] += 1
        wait_progress(k, cfg, f"p{w}_gw{npf[0]}", step_s, V_GF, 2, V_T0)
        k(f"s_mul_i32 s{S_T}, s{step_s}, {32 * KX_SH}")
        k(f"s_add_u32 s{S_T}, s{S_T}, s{S_KX}")
        for u, ks in enumerate(kxset):
            k(f"s_add_u32 s{S_T+1}, s{S_T}, {ks * 4096}")
            for hi in range(2):
                k(f"buffer_load_dwordx4 {vr(KXF + 8 * u + 4 * hi, 4)}, v{V_KXO}, {srd}, s{S_T+1} offen offset:{hi * 512}{SC1}")
    def tb_read(n):
        for hi in range(2):
            lq.ds(f"ds_read_b128 {vr(TB + 8 * (n % 4) + 4 * hi, 4)}, v{V_WLA} offset:{n * 2048 + hi * 1024}", ('tb', n))
    def zero_d():
        for r in range(PD, PD + 32): k(f"v_mov_b32 v{r}, 0")
    k(f"s_mov_b32 s{S_STEP}, 0")
    kx_prefetch(S_STEP)
    zero_d()
    for n in range(4): tb_read(n)
    lq.all()
    lab('step')
    slot_base(k, S_SB, S_STEP, S_T)
    for u, ks in enumerate(own):
        k(f"s_add_u32 s{S_T+2+u}, s{S_SB}, {physmap(M_LOG + 1024 * ks)}")
    stamp(k, cfg, 0)
    lab('poll')
    for u, ks in enumerate(own):
        k(f"buffer_load_dwordx4 {vr(AF + 4 * ks, 4)}, v{V_L16}, {srd}, s{S_T+2+u} offen sc1")
    k("s_waitcnt vmcnt(0)")
    for ks in own:
        k(f"ds_write_b128 v{V_MIA}, {vr(AF + 4 * ks, 4)} offset:{ks * 1024}")
    check_valid(k, [AF + 4 * ks + j for ks in own for j in range(4)], QF)
    spin_check(k, bail)
    k(f"s_cbranch_vccnz {L('poll')}")
    lq.all()
    k("s_barrier")
    stamp(k, cfg, 1)
    if w == 0: rt(k, cfg, 0)
    for ks in rest:
        lq.ds(f"ds_read_b128 {vr(AF + 4 * ks, 4)}, v{V_MIA} offset:{ks * 1024}", ('af', ks))
    def post_tile(T, base):
        d = PD + 4 * T
        col = 32 * (T % 3)
        return [
            lambda: k(f"v_permlane32_swap_b32 v{d}, v{d+2}"),
            lambda: k(f"v_permlane32_swap_b32 v{d+1}, v{d+3}"),
            lambda: k(f"v_add_f32 v{d}, v{d}, v{d+2}"),
            lambda: k(f"v_add_f32 v{d+1}, v{d+1}, v{d+3}"),
            lambda: k(f"v_cvt_pk_bf16_f32 v{d}, v{d}, v{d+1}"),
            lambda: lq.ds(f"ds_write_b16 v{V_IW}, v{d} offset:{base + col}", ('img', T)),
            lambda: lq.ds(f"ds_write_b16_d16_hi v{V_IW}, v{d} offset:{base + col + PL_STR}", ('img', T)),
        ]
    side = {i: [] for i in range(60)}
    def put(items, start, per=2):
        i = start
        for it in items:
            while len(side[i]) >= per: i += 1
            side[i].append(it)
        return i
    KO = PL_KI - PL_QI
    e = put(post_tile(0, 0) + post_tile(1, 0) + post_tile(2, 0), 31)
    b1 = e + 2
    side[b1].append(lambda: (lq.wait(('img', 2)), k("s_barrier")))
    for ks in range(3):
        side[b1 + (ks > 0)].append(lambda ks=ks: lq.ds(f"ds_read_b128 {vr(QF + 4 * ks, 4)}, v{V_QR} offset:{ks * 128}", ('qf', ks)))
    put(post_tile(3, KO), b1 + 2)
    sx = b1 + 6
    def smx():
        lq.wait(('qf', 2))
        for u, ks in enumerate(kxset):
            k(f"v_smfmac_f32_16x16x64_bf16 {vr(PDX, 4)}, {vr(QF + 4 * ks, 4)}, {vr(KXF + 8 * u, 8)}, v{V_IDX}")
    side[sx].append(smx)
    put(post_tile(4, KO), 52)
    side[min(sx + 4, 58)].append(lambda: lq.ds(f"ds_write_b128 v{V_SPW}, {vr(PDX, 4)}", 'sp'))
    for i, (T, ks) in enumerate(seq):
        wh = where[(T, ks)]
        if i < 30 and ks in rest: lq.wait(('af', ks))
        if wh[0] == 'l':
            lq.wait(('tb', wh[1]))
            b = vr(TB + 8 * (wh[1] % 4), 8)
        else:
            b = (ar if wh[0] == 'a' else vr)(wh[1], 8)
        k(f"v_smfmac_f32_16x16x64_bf16 {vr(PD + 4 * T, 4)}, {vr(AF + 4 * ks, 4)}, {b}, v{V_IDX}")
        if wh[0] == 'l' and wh[1] + 4 < PL_NL:
            tb_read(wh[1] + 4)
        for it in side[i]: it()
        if i == 29: stamp(k, cfg, 2)
        if i == b1: stamp(k, cfg, 3)
    stamp(k, cfg, 4)
    k("s_nop 7")
    for it in post_tile(5, KO): it()
    lq.all()
    k("s_barrier")
    stamp(k, cfg, 5)
    KF = AF
    X0 = AF + 24
    lq.ds(f"ds_read2st64_b32 {vr(X0, 2)}, v{V_SPR} offset0:0 offset1:2", 'sp0')
    lq.ds(f"ds_read2st64_b32 {vr(X0 + 2, 2)}, v{V_SPR} offset0:8 offset1:10", 'sp1')
    for ks in range(3):
        for hi in range(2):
            lq.ds(f"ds_read_b128 {vr(KF + 8 * ks + 4 * hi, 4)}, v{V_KR} offset:{ks * 128 + hi * 16}", ('kf', ks))
    sx_, mx, t, u, sm, ex, em, tot = X0 + 4, X0 + 5, X0 + 6, X0 + 7, X0 + 8, X0 + 9, X0 + 10, X0 + 11
    lq.wait('sp1')
    k(f"v_add_f32 v{X0}, v{X0}, v{X0+1}")
    k(f"v_add_f32 v{X0+2}, v{X0+2}, v{X0+3}")
    k(f"v_add_f32 v{sx_}, v{X0}, v{X0+2}")
    k(f"v_mul_f32 v{sx_}, {hexf(CSC)}, v{sx_}")
    for ks in range(3):
        lq.wait(('kf', ks))
        k(f"v_smfmac_f32_16x16x64_bf16 {vr(PDM, 4)}, {vr(QF + 4 * ks, 4)}, {vr(KF + 8 * ks, 8)}, v{V_IDX}")
    stamp(k, cfg, 6)
    def dpp(op, dst, src, ctl):
        k(f"{op} v{dst}, v{src}, v{src} {ctl} row_mask:0xf bank_mask:0xf")
    dpp("v_max_f32_dpp", mx, sx_, "row_ror:8"); k("s_nop 1")
    dpp("v_max_f32_dpp", mx, mx, "row_ror:4"); k("s_nop 1")
    dpp("v_max_f32_dpp", mx, mx, "row_ror:2"); k("s_nop 1")
    dpp("v_max_f32_dpp", mx, mx, "row_ror:1")
    k(f"v_mov_b32 v{u}, v{mx}")
    k("s_nop 1")
    k(f"v_permlane32_swap_b32 v{mx}, v{u}")
    k(f"v_max_f32 v{mx}, v{mx}, v{u}")
    dm = PDM + w
    k(f"v_mov_b32 v{u}, v{dm}")
    k("s_nop 1")
    k(f"v_permlane32_swap_b32 v{dm}, v{u}")
    k(f"v_add_f32 v{sm}, v{dm}, v{u}")
    k(f"v_mul_f32 v{sm}, {hexf(CSC)}, v{sm}")
    k("s_nop 1")
    dpp("v_max_f32_dpp", t, sm, "row_ror:4"); k("s_nop 1")
    dpp("v_max_f32_dpp", t, t, "row_ror:2"); k("s_nop 1")
    dpp("v_max_f32_dpp", t, t, "row_ror:1")
    k(f"v_max_f32 v{mx}, v{mx}, v{t}")
    k(f"v_sub_f32 v{ex}, v{sx_}, v{mx}")
    k(f"v_sub_f32 v{em}, v{sm}, v{mx}")
    k(f"v_exp_f32 v{ex}, v{ex}")
    k(f"v_exp_f32 v{em}, v{em}")
    k("s_nop 0")
    k(f"v_fma_f32 v{tot}, v{em}, v{V_MASKF}, v{ex}")
    k("s_nop 1")
    dpp("v_add_f32_dpp", tot, tot, "row_ror:8"); k("s_nop 1")
    dpp("v_add_f32_dpp", tot, tot, "row_ror:4"); k("s_nop 1")
    dpp("v_add_f32_dpp", tot, tot, "row_ror:2"); k("s_nop 1")
    dpp("v_add_f32_dpp", tot, tot, "row_ror:1")
    k(f"v_mov_b32 v{u}, v{tot}")
    k("s_nop 1")
    k(f"v_permlane32_swap_b32 v{tot}, v{u}")
    k(f"v_add_f32 v{tot}, v{tot}, v{u}")
    k(f"v_rcp_f32 v{tot}, v{tot}")
    k("s_nop 0")
    k(f"v_mul_f32 v{ex}, v{ex}, v{tot}")
    k(f"v_mul_f32 v{em}, v{em}, v{tot}")
    ox, om = KF, KF + 4
    k("s_nop 0")
    k(f"v_mov_b32_dpp v{t}, v{ex} quad_perm:[1,0,3,2] row_mask:0xf bank_mask:0xf")
    k(f"v_mov_b32_dpp v{u}, v{em} quad_perm:[1,0,3,2] row_mask:0xf bank_mask:0xf")
    k(f"v_cvt_pk_bf16_f32 v{ox}, v{ex}, v{t}")
    k(f"v_cvt_pk_bf16_f32 v{om}, v{em}, v{u}")
    k("s_nop 0")
    for j in range(1, 4):
        k(f"v_mov_b32_dpp v{ox+j}, v{ox} row_shl:{2*j} row_mask:0xf bank_mask:0xf")
    for j in range(1, 4):
        k(f"v_mov_b32_dpp v{om+j}, v{om} row_shl:{2*j} row_mask:0xf bank_mask:0xf")
    k(f"s_mov_b64 exec, s[{S_M8}:{S_M8+1}]")
    k(f"buffer_store_dwordx4 {vr(ox, 4)}, v{V_PX}, {srd}, s{S_SB} offen sc1")
    k(f"s_mov_b64 exec, s[{S_M2}:{S_M2+1}]")
    k(f"buffer_store_dwordx4 {vr(om, 4)}, v{V_PM}, {srd}, s{S_SB} offen sc1")
    k("s_mov_b64 exec, -1")
    stamp(k, cfg, 7)
    stamp(k, cfg, 8, True)
    if w == 0: rt(k, cfg, 1)
    if w < 3:
        lq.ds(f"ds_read_b128 {vr(X0, 4)}, v{V_KML}", 'km')
    k(f"s_add_u32 s{S_T+8}, s{S_STEP}, 1")
    k(f"s_min_u32 s{S_T+8}, s{S_T+8}, {NSTEP-1}")
    kx_prefetch(S_T + 8)
    zero_d()
    if w < 3:
        lq.wait('km')
        k(f"s_mul_i32 s{S_T}, s{S_STEP}, {32 * KM_SH}")
        k(f"s_add_u32 s{S_T}, s{S_T}, s{S_KM}")
        k(f"buffer_store_dwordx4 {vr(X0, 4)}, v{V_KMG}, {srd}, s{S_T} offen{SC1}")
    if w == 3 and cfg.get('ovl'):
        k(f"s_lshl_b32 s{S_T}, s{S_ROLE}, 7")
        k(f"s_add_u32 s{S_T}, s{S_T}, {FL_PF}")
        flag_store(k, cfg, S_T, S_STEP, V_T0, V_T1)
    for n in range(4): tb_read(n)
    lq.all()
    if w == 0: rt_flush(k, cfg, 0)
    if w == cfg.get('stamp_wave', 0): stamp_flush(k, cfg, 9, cfg.get('stamp_p', 0))
    k(f"s_add_u32 s{S_STEP}, s{S_STEP}, 1")
    k(f"s_cmp_lt_u32 s{S_STEP}, {NSTEP}")
    k(f"s_cbranch_scc1 {L('step')}")
    if cfg.get('ovl'):
        k("s_waitcnt vmcnt(0)")
        k("s_barrier")
        if w == 3:
            k(f"s_lshl_b32 s{S_T}, s{S_ROLE}, 7")
            k(f"s_add_u32 s{S_T}, s{S_T}, {FL_PF}")
            flag_store(k, cfg, S_T, S_STEP, V_T0, V_T1)
    k(f"s_branch {k.ref('end')}")

YL_MEMI = 0
YL_RED = 10240
YV_L16 = 1; YV_IDX = 2; YV_MIA = 3; YV_ZO = 4; YV_PO = 5; YV_RW = 6; YV_RR = 7; YV_MO = 8; YV_GF = 9
YAF = 16; YD = 56; YZB = 72; YPF = 92; YACC = 112; YT = 116; YVW = 176

def gen_y_wave(k, w, cfg):
    own = OWN[w]; rest = [ks for ks in range(10) if ks not in own]
    L = lambda s: k.ref(f"y{w}_{s}")
    lab = lambda s: k.lab(f"y{w}_{s}")
    bail = k.ref('bail')
    lq = LQ(k)
    lab('start')
    k("v_lshrrev_b32 v16, 4, v0")
    k("v_and_b32 v17, 7, v0")
    k("v_lshrrev_b32 v18, 3, v0")
    k("v_and_b32 v18, 1, v18")
    k("v_lshl_add_u32 v19, v18, 2, v16")
    k(f"v_add_u32 v19, {8 * w}, v19")
    k("v_mul_u32_u24 v20, 640, v19")
    k(f"v_lshl_add_u32 v{YV_ZO}, v17, 4, v20")
    k("v_and_b32 v20, 3, v17")
    k("v_lshlrev_b32 v20, 1, v20")
    k("v_lshrrev_b32 v21, 2, v17")
    k("v_add_u32 v20, v20, v21")
    k("v_lshlrev_b32 v20, 4, v20")
    k(f"v_lshl_add_u32 v{YV_PO}, v19, 7, v20")
    k(f"v_add_u32 v{YV_MIA}, {YL_MEMI}, v{YV_L16}")
    k("v_lshlrev_b32 v20, 8, v18")
    k("v_lshl_add_u32 v20, v17, 5, v20")
    k("v_and_b32 v21, 1, v16")
    k("v_lshl_add_u32 v20, v21, 4, v20")
    k(f"v_add_u32 v20, {YL_RED + 512 * w}, v20")
    k(f"v_add_u32 v21, {YL_RED + 2048}, v{YV_L16}")
    k("v_lshrrev_b32 v22, 1, v16")
    k("v_cmp_eq_u32 vcc, v22, v18")
    k("s_nop 1")
    k(f"v_cndmask_b32 v{YV_RW}, v21, v20, vcc")
    k("v_lshrrev_b32 v20, 3, v0")
    k("v_lshlrev_b32 v20, 2, v20")
    k("v_lshl_add_u32 v20, v17, 5, v20")
    k(f"v_add_u32 v{YV_RR}, {YL_RED}, v20")
    k(f"s_lshl_b32 s{S_T}, s{S_ROLE}, 7")
    k(f"s_add_u32 s{S_T}, s{S_T}, {M_LOG}")
    k(f"s_lshr_b32 s{S_T+1}, s{S_T}, 13")
    k(f"s_lshl_b32 s{S_T+1}, s{S_T+1}, 14")
    k(f"s_and_b32 s{S_T}, s{S_T}, 8191")
    k(f"s_add_u32 s{S_T}, s{S_T}, s{S_T+1}")
    k("v_lshrrev_b32 v20, 3, v0")
    k("v_lshlrev_b32 v20, 4, v20")
    k(f"v_add_u32 v{YV_MO}, s{S_T}, v20")
    k(f"s_mul_i32 s{S_Z}, s{S_ROLE}, 20480")
    k(f"s_add_u32 s{S_Z}, s{S_Z}, {Z}")
    k(f"s_mul_i32 s{S_T}, s{S_ROLE}, 327680")
    k(f"s_add_u32 s{S_T}, s{S_T}, {WY + w * 81920}")
    def wreg(T, ks):
        n = T * 10 + ks
        return ('a', 8 * n) if n < 32 else ('v', YVW + 8 * (n - 32))
    for T in range(4):
        for ks in range(10):
            wh = wreg(T, ks)
            k(f"s_add_u32 s{S_T+1}, s{S_T}, {(T * 10 + ks) * 2048}")
            for hi in range(2):
                d = (ar if wh[0] == 'a' else vr)(wh[1] + 4 * hi, 4)
                k(f"buffer_load_dwordx4 {d}, v{YV_L16}, {srd}, s{S_T+1} offen offset:{hi*1024}")
    k(f"s_mov_b32 s{S_STEP}, 0")
    SC1 = " sc1" if cfg.get('ovl') else ""
    if cfg.get('ovl'):
        k(f"s_lshl_b32 s{S_T}, s{S_ROLE}, 7")
        k(f"v_mov_b32 v{YV_GF}, s{S_T}")
        k(f"s_mov_b32 s{S_GK}, 0")
    lab('step')
    YC = cfg.get('ycopy', 0)
    AW = cfg.get('ackwait', 1)
    slot_base(k, S_SB, S_STEP, S_T, S_SBF if YC else None)
    def uload():
        wait_progress(k, cfg, f"y{w}_gw", S_STEP, YV_GF, 1, YT)
        for t in range(1, 5):
            k(f"buffer_load_dwordx4 {vr(YZB + 4 * t, 4)}, v{YV_ZO}, {srd}, s{S_T+8} offen offset:{t*128}{SC1}")
    k(f"s_mul_i32 s{S_T+8}, s{S_STEP}, {Z_SEG}")
    k(f"s_add_u32 s{S_T+8}, s{S_T+8}, s{S_Z}")
    if not AW: uload()
    for r in range(YD, YD + 16): k(f"v_mov_b32 v{r}, 0")
    for u, ks in enumerate(own):
        k(f"s_add_u32 s{S_T+2+u}, s{S_SBF if YC else S_SB}, {physmap(M_LOG + 1024 * ks)}")
    stamp(k, cfg, 0)
    lab('poll')
    if cfg.get('y_nopoll'):
        for ks in own:
            for j in range(4): k(f"v_mov_b32 v{YAF + 4 * ks + j}, 0")
            k(f"ds_write_b128 v{YV_MIA}, {vr(YAF + 4 * ks, 4)} offset:{ks * 1024}")
    else:
        for u, ks in enumerate(own):
            k(f"buffer_load_dwordx4 {vr(YAF + 4 * ks, 4)}, v{YV_L16}, {srd}, s{S_T+2+u} offen sc1")
        k("s_waitcnt vmcnt(0)")
        for ks in own:
            k(f"ds_write_b128 v{YV_MIA}, {vr(YAF + 4 * ks, 4)} offset:{ks * 1024}")
        check_valid(k, [YAF + 4 * ks + j for ks in own for j in range(4)], YT)
        spin_check(k, bail)
        k(f"s_cbranch_vccnz {L('poll')}")
    lq.all()
    k("s_barrier")
    stamp(k, cfg, 1)
    if w == 0: rt(k, cfg, 0)
    for ks in rest:
        lq.ds(f"ds_read_b128 {vr(YAF + 4 * ks, 4)}, v{YV_MIA} offset:{ks * 1024}", ('af', ks))
    if AW: uload()
    for ks in own + rest:
        if ks in rest: lq.wait(('af', ks))
        for T in range(4):
            wh = wreg(T, ks)
            b = (ar if wh[0] == 'a' else vr)(wh[1], 8)
            k(f"v_smfmac_f32_16x16x64_bf16 {vr(YD + 4 * T, 4)}, {vr(YAF + 4 * ks, 4)}, {b}, v{YV_IDX}")
    k("s_nop 7")
    D = lambda T, r: YD + 4 * T + r
    for r in range(4):
        k(f"v_permlane32_swap_b32 v{D(0,r)}, v{D(2,r)}")
        k(f"v_permlane32_swap_b32 v{D(1,r)}, v{D(3,r)}")
    for r in range(4):
        k(f"v_add_f32 v{D(0,r)}, v{D(0,r)}, v{D(2,r)}")
        k(f"v_add_f32 v{D(1,r)}, v{D(1,r)}, v{D(3,r)}")
    k("s_nop 1")
    for r in range(4):
        k(f"v_permlane16_swap_b32 v{D(0,r)}, v{D(1,r)}")
    k("s_nop 1")
    k(f"v_cvt_pk_bf16_f32 v{YZB}, v{D(0,0)}, v{D(0,1)}")
    k(f"v_cvt_pk_bf16_f32 v{YZB+1}, v{D(0,2)}, v{D(0,3)}")
    k(f"v_cvt_pk_bf16_f32 v{YZB+2}, v{D(1,0)}, v{D(1,1)}")
    k(f"v_cvt_pk_bf16_f32 v{YZB+3}, v{D(1,2)}, v{D(1,3)}")
    k(f"buffer_store_dwordx4 {vr(YZB, 4)}, v{YV_ZO}, {srd}, s{S_T+8} offen{SC1}")
    stamp(k, cfg, 2)
    k(f"s_cmp_eq_u32 s{S_STEP}, {NSTEP-1}")
    k(f"s_cbranch_scc1 {L('last') if cfg.get('ovl') else k.ref('end')}")
    for t in range(5):
        k(f"s_add_u32 s{S_T+10+t}, s{S_SB}, {physmap(t * 4096)}")
    k(f"s_add_u32 s{S_T+9}, s{S_STEP}, 1")
    slot_base(k, S_SBN, S_T + 9, S_T, S_SBNF if YC else None)
    lab('ppoll')
    for t in range(5):
        k(f"buffer_load_dwordx4 {vr(YPF + 4 * t, 4)}, v{YV_PO}, {srd}, s{S_T+10+t} offen sc1")
    k("s_waitcnt vmcnt(0)")
    for t in range(5):
        c = "0" if t == 0 else vr(YACC, 4)
        k(f"v_mfma_f32_16x16x32_bf16 {vr(YACC, 4)}, {vr(YPF + 4 * t, 4)}, {vr(YZB + 4 * t, 4)}, {c}")
    check_valid(k, range(YPF, YPF + 20), YT)
    spin_check(k, bail)
    k(f"s_cbranch_vccnz {L('ppoll')}")
    stamp(k, cfg, 3)
    if w == 0: rt(k, cfg, 1)
    lq.ds(f"ds_write_b128 v{YV_RW}, {vr(YACC, 4)}", 'rw')
    lq.all()
    k("s_barrier")
    if w == 0:
        for u in range(4):
            lq.ds(f"ds_read2st64_b32 {vr(YT + 2 * u, 2)}, v{YV_RR} offset0:{2*u} offset1:{2*u+1}", ('rr', u))
        lq.wait(('rr', 1))
        k(f"v_add_f32 v{YT}, v{YT}, v{YT+1}")
        k(f"v_add_f32 v{YT+2}, v{YT+2}, v{YT+3}")
        lq.wait(('rr', 3))
        k(f"v_add_f32 v{YT+4}, v{YT+4}, v{YT+5}")
        k(f"v_add_f32 v{YT+6}, v{YT+6}, v{YT+7}")
        k(f"v_add_f32 v{YT}, v{YT}, v{YT+2}")
        k(f"v_add_f32 v{YT+4}, v{YT+4}, v{YT+6}")
        k(f"v_add_f32 v{YT}, v{YT}, v{YT+4}")
        k("s_nop 1")
        k(f"v_mov_b32_dpp v{YT+1}, v{YT} quad_perm:[1,0,3,2] row_mask:0xf bank_mask:0xf")
        k(f"v_cvt_pk_bf16_f32 v{YT+8}, v{YT}, v{YT+1}")
        k("s_nop 1")
        for j in range(1, 4):
            k(f"v_mov_b32_dpp v{YT+8+j}, v{YT+8} row_shl:{2*j} row_mask:0xf bank_mask:0xf")
        k(f"s_mov_b64 exec, s[{S_M8}:{S_M8+1}]")
        k(f"buffer_store_dwordx4 {vr(YT + 8, 4)}, v{YV_MO}, {srd}, s{S_SBN} offen sc1")
        if YC: k(f"buffer_store_dwordx4 {vr(YT + 8, 4)}, v{YV_MO}, {srd}, s{S_SBNF} offen sc1")
        k("s_mov_b64 exec, -1")
        if cfg.get('ovl'):
            k(f"s_lshl_b32 s{S_T}, s{S_ROLE}, 7")
            k(f"s_add_u32 s{S_T}, s{S_T}, {FL_YF}")
            flag_store(k, cfg, S_T, S_T + 9, YT, YT + 1)
        stamp(k, cfg, 4)
        rt(k, cfg, 2)
        if AW: k("s_waitcnt vmcnt(0)")
        rt_flush(k, cfg, 32)
        stamp_flush(k, cfg, 5, cfg.get('stamp_y', 0))
    if AW: k("s_barrier")
    k(f"s_add_u32 s{S_STEP}, s{S_STEP}, 1")
    k(f"s_branch {L('step')}")
    if cfg.get('ovl'):
        lab('last')
        k("s_waitcnt vmcnt(0)")
        k("s_barrier")
        if w == 0:
            k(f"s_lshl_b32 s{S_T}, s{S_ROLE}, 7")
            k(f"s_add_u32 s{S_T}, s{S_T}, {FL_YF}")
            k(f"s_mov_b32 s{S_T+9}, {NSTEP}")
            flag_store(k, cfg, S_T, S_T + 9, YT, YT + 1)
        k(f"s_branch {k.ref('end')}")

def role_assign(k, cfg):
    k(f"s_lshl_b32 s19, s{S_LAYER}, 11")
    k(f"s_add_u32 s19, s19, {CT_TICK}")
    k("s_getreg_b32 s20, hwreg(HW_REG_XCC_ID)")
    k("s_and_b32 s20, s20, 7")
    if cfg.get('fake_xcc') is not None:
        k(f"s_and_b32 s20, s2, {cfg['fake_xcc']}")
    k(f"s_cmp_lg_u32 s{S_WAVE}, 0")
    k(f"s_cbranch_scc1 {k.ref('tk_wait')}")
    k("s_lshl_b32 s22, s20, 8")
    k("s_add_u32 s22, s22, s19")
    k("s_mov_b64 exec, 1")
    k("v_mov_b32 v2, 0")
    k("v_mov_b32 v3, 1")
    k(f"buffer_atomic_add v3, v2, {srd}, s22 offen sc0 sc1")
    k("s_waitcnt vmcnt(0)")
    k("s_mov_b64 exec, -1")
    k("s_nop 0")
    k("v_readfirstlane_b32 s21, v3")
    k("s_cmp_lt_u32 s21, 32")
    k(f"s_cbranch_scc1 {k.ref('tk_pub')}")
    k("v_lshlrev_b32 v2, 8, v0")
    k("v_and_b32 v2, 0x7ff, v2")
    k("s_mov_b32 s22, s19")
    k.lab('tk_poll')
    k(f"buffer_load_dword v3, v2, {srd}, s22 offen sc1")
    k("s_waitcnt vmcnt(0)")
    k("s_mov_b32 s23, 0")
    for x in range(8):
        k(f"v_readlane_b32 s{24+x}, v3, {x}")
        k("s_nop 0")
        k(f"s_add_u32 s23, s23, s{24+x}")
    spin_check(k, k.ref('bail'))
    k("s_cmp_lt_u32 s23, 256")
    k(f"s_cbranch_scc1 {k.ref('tk_poll')}")
    k("s_sub_u32 s21, s21, 32")
    for x in range(7):
        k(f"s_max_u32 s23, s{24+x}, 32")
        k("s_sub_u32 s23, s23, 32")
        k(f"s_cmp_gt_u32 s20, {x}")
        k("s_cselect_b32 s23, s23, 0")
        k("s_add_u32 s21, s21, s23")
    for x in range(8):
        k(f"s_min_u32 s23, s{24+x}, 32")
        k("s_sub_u32 s22, 32, s23")
        k("s_cmp_lt_u32 s21, s22")
        k(f"s_cbranch_scc0 {k.ref(f'tk_n{x}')}")
        k(f"s_mov_b32 s20, {x}")
        k("s_add_u32 s21, s21, s23")
        k(f"s_branch {k.ref('tk_pub')}")
        k.lab(f'tk_n{x}')
        k("s_sub_u32 s21, s21, s22")
    k(f"s_branch {k.ref('bail')}")
    k.lab('tk_pub')
    k("s_lshl_b32 s22, s20, 8")
    k("s_or_b32 s22, s22, s21")
    k("v_mov_b32 v2, 0")
    k("v_mov_b32 v3, s22")
    k("ds_write_b32 v2, v3")
    k("s_waitcnt lgkmcnt(0)")
    k.lab('tk_wait')
    k("s_barrier")
    k("v_mov_b32 v2, 0")
    k("ds_read_b32 v3, v2")
    k("s_waitcnt lgkmcnt(0)")
    k("v_readfirstlane_b32 s22, v3")
    k("s_barrier")
    k("s_lshr_b32 s20, s22, 8")
    k("s_and_b32 s21, s22, 255")

def build_chain(name, layer, cfg=None):
    import work
    cfg = cfg or {}
    k = K(name if layer is not None else name + "1", vgpr=256, sgpr=100, agpr=256)
    stub = None
    if layer is None:
        stub = K(name + "2", vgpr=256, sgpr=100, agpr=256)
        stub(f"s_mov_b32 s{S_LAYER}, 1")
        stub(f"s_branch {k.ref('body')}")
        k(f"s_mov_b32 s{S_LAYER}, 0")
        k.lab('body')
    else:
        k(f"s_mov_b32 s{S_LAYER}, {layer}")
    k("s_cmp_ge_u32 s2, 256")
    k(f"s_cbranch_scc1 {k.ref('end0')}")
    if cfg.get('rt'): k("s_memrealtime s[90:91]")
    k.ptr(KA_WS, S_WS)
    k.ptr(KA_OUT, 6)
    k("v_lshrrev_b32 v1, 6, v0")
    k("v_and_b32 v0, 63, v0")
    k("s_nop 0")
    k(f"v_readfirstlane_b32 s{S_WAVE}, v1")
    k(f"s_mov_b32 s{S_SPIN}, {SPIN}")
    k("s_waitcnt lgkmcnt(0)")
    k.srd(SRD, S_WS, WS_BYTES)
    k(f"s_add_u32 s22, s{S_WS}, {A_X2}")
    k(f"s_addc_u32 s23, s{S_WS+1}, 0")
    k(f"s_cmp_eq_u32 s{S_LAYER}, 0")
    k(f"s_cselect_b32 s{S_OSRD}, s22, s6")
    k(f"s_cselect_b32 s{S_OSRD+1}, s23, s7")
    k(f"s_mov_b32 s{S_OSRD+2}, {2048 * 640 * 2}")
    k(f"s_mov_b32 s{S_OSRD+3}, 0x00020000")
    k(f"s_mul_i32 s{S_FL}, s{S_LAYER}, {FL_LAYER}")
    k(f"s_add_u32 s{S_FL}, s{S_FL}, {CT_FLAG}")
    role_assign(k, cfg)
    if cfg.get('rt'):
        k("s_lshl_b32 s92, s20, 8"); k("s_or_b32 s92, s92, s21")
    k(f"s_sub_u32 s22, 0, s{S_WS}")
    k("s_and_b32 s22, s22, 0x1fffff")
    k(f"s_lshl_b32 s23, s{S_LAYER}, 3")
    k(f"s_add_u32 s23, s23, {CT_PAR}")
    k(f"s_buffer_load_dwordx2 s[24:25], {srd}, s23")
    k("s_waitcnt lgkmcnt(0)")
    k("s_and_b32 s24, s24, 8192")
    k("s_and_b32 s25, s25, 8192")
    for f, p in ((S_FD0, 24), (S_FD1, 25)):
        k(f"s_lshl_b32 s{f}, s{p}, 1")
        k(f"s_sub_u32 s{f}, 8192, s{f}")
    k(f"s_mul_i32 s23, s{S_LAYER}, {2 * EX_BLOCK}")
    k("s_add_u32 s22, s22, s23")
    k(f"s_add_u32 s{S_EB0}, s22, s24")
    k(f"s_add_u32 s{S_EB1}, s22, s25")
    k(f"s_add_u32 s{S_EB1}, s{S_EB1}, {EX_BLOCK}")
    k(f"s_mov_b32 s{S_M8}, 0x01010101")
    k(f"s_mov_b32 s{S_M8+1}, 0x01010101")
    k(f"s_mov_b32 s{S_M2}, 0x00010001")
    k(f"s_mov_b32 s{S_M2+1}, 0")
    p_setup_lanes(k)
    ovl = cfg.get('ovl')
    other = k.ref('w3') if ovl else k.ref('end')
    k("s_cmp_eq_u32 s20, 0")
    k(f"s_cbranch_scc0 {k.ref('notp')}")
    k(f"s_mov_b32 s{S_ROLE}, s21")
    for w in range(4):
        k(f"s_cmp_eq_u32 s{S_WAVE}, {w}")
        k(f"s_cbranch_scc1 {k.ref(f'p{w}_start')}")
    k.lab('notp')
    k("s_cmp_ge_u32 s20, 4")
    k(f"s_cbranch_scc1 {k.ref('proj') if ovl else k.ref('end')}")
    k("s_cmp_ge_u32 s21, 27")
    k(f"s_cbranch_scc1 {other}")
    k("s_sub_u32 s22, s20, 1")
    k("s_mul_i32 s22, s22, 27")
    k(f"s_add_u32 s{S_ROLE}, s22, s21")
    k(f"s_cmp_ge_u32 s{S_ROLE}, 80")
    k(f"s_cbranch_scc1 {other}")
    for w in range(4):
        k(f"s_cmp_eq_u32 s{S_WAVE}, {w}")
        k(f"s_cbranch_scc1 {k.ref(f'y{w}_start')}")
    k(f"s_branch {k.ref('end')}")
    for w in range(4): gen_p_wave(k, w, cfg)
    for w in range(4): gen_y_wave(k, w, cfg)
    if ovl:
        k.lab('proj')
        k("s_sub_u32 s22, s20, 4")
        k("s_lshl_b32 s22, s22, 5")
        k(f"s_add_u32 s{S_ROLE}, s22, s21")
        k(f"s_mov_b32 s{work.GS_SEG}, 0")
        k(f"s_mov_b32 s{work.GS_END}, 64")
        work.role_gemm(k, S_ROLE, dict(cfg, flag_s=S_FL))
        if cfg.get('rt'):
            k("s_memrealtime s[96:97]"); k("s_waitcnt lgkmcnt(0)"); k("s_mov_b32 s93, s96")
        if cfg.get('w3_join', 128) < 128:
            k(f"s_cmp_ge_u32 s{S_ROLE}, {cfg['w3_join']}")
            k(f"s_cbranch_scc1 {k.ref('end')}")
        k.lab('w3')
        k(f"s_mov_b32 s{S_SPIN}, {SPIN}")
        work.role_w3_loop(k, cfg, S_FL, S_SPIN, f"s[{S_OSRD}:{S_OSRD+3}]", S_LAYER)
        k(f"s_branch {k.ref('end')}")
    k.lab('bail')
    k("s_mov_b64 exec, 1")
    k.ptr(KA_DBG, 6)
    k("s_waitcnt lgkmcnt(0)")
    k.srd(24, 6, 256)
    k("v_mov_b32 v1, 0xdead")
    k(f"v_mov_b32 v2, s{S_STEP}")
    k("v_mov_b32 v3, 0")
    k("buffer_store_dword v1, v3, s[24:27], 0 offen")
    k("buffer_store_dword v2, v3, s[24:27], 0 offen offset:4")
    k.lab('end')
    if cfg.get('rt'):
        k("s_memrealtime s[94:95]")
        k("s_waitcnt lgkmcnt(0)")
        k("s_mov_b64 exec, 1")
        k("s_lshl_b32 s32, s2, 2")
        k(f"s_add_u32 s32, s32, s{S_WAVE}")
        k("s_lshl_b32 s32, s32, 4")
        k(f"s_mul_i32 s33, s{S_LAYER}, 0x200000")
        k("s_add_u32 s32, s32, s33")
        k(f"s_add_u32 s32, s32, {cfg['rt'] + 0x100000}")
        k("v_mov_b32 v252, 0")
        for n, sr in enumerate((90, 94, 92, 93)):
            k(f"v_mov_b32 v253, s{sr}")
            k(f"buffer_store_dword v253, v252, {srd}, s32 offen offset:{4*n}")
            k("s_nop 1")
    k.lab('end0')
    if stub is not None: return k, stub
    return k

if __name__ == "__main__":
    STP = 240 * MB
    extra = eval(sys.argv[1]) if len(sys.argv) > 1 else {}
    ks = [build_chain("chain", 0, dict(extra)),
          build_chain("chainst", 0, dict(extra, stamp=True, stamp_p=STP, stamp_y=STP + 65536)),
          build_chain("chainrt", 0, dict(extra, rt=STP + MB))]
    launches = [(k_, 256, 256, PL_END) for k_ in ks]
    open(sys.argv[2] if len(sys.argv) > 2 else "chain.s", "w").write(listfile(launches, ks))
    print("lds", PL_END)
```

```python
import sys, math
sys.path.insert(0, "/code"); sys.path.insert(0, "tools")
from asmk import *
from lay import *

CSC = (192 ** -0.5) * math.log2(math.e)
S_WS = 4; SRD = 8; S_WAVE = 13
srd = f"s[{SRD}:{SRD+3}]"
def vr(b, n): return f"v[{b}:{b+n-1}]" if n > 1 else f"v{b}"
def ar(b, n): return f"a[{b}:{b+n-1}]"

def prologue(k, extra_ptrs=()):
    k.ptr(KA_WS, S_WS)
    for slot, s in extra_ptrs: k.ptr(slot, s)
    k("v_lshrrev_b32 v1, 6, v0")
    k("v_and_b32 v0, 63, v0")
    k("s_nop 0")
    k(f"v_readfirstlane_b32 s{S_WAVE}, v1")
    k("s_waitcnt lgkmcnt(0)")
    k.srd(SRD, S_WS, WS_BYTES)

def ex_delta(k, dst):
    k(f"s_sub_u32 s{dst}, 0, s{S_WS}")
    k(f"s_and_b32 s{dst}, s{dst}, 0x1fffff")

def p2e_lane(k, dst, p, t0, t1):
    k(f"v_and_b32 v{dst}, 0xc1, v{p}")
    k(f"v_and_b32 v{t0}, 8, v{p}")
    k(f"v_lshl_or_b32 v{dst}, v{t0}, 2, v{dst}")
    k(f"v_and_b32 v{t0}, 32, v{p}")
    k(f"v_lshrrev_b32 v{t0}, 1, v{t0}")
    k(f"v_or_b32 v{dst}, v{dst}, v{t0}")
    k(f"v_and_b32 v{t0}, 2, v{p}")
    k(f"v_lshl_or_b32 v{dst}, v{t0}, 2, v{dst}")
    k(f"v_and_b32 v{t0}, 16, v{p}")
    k(f"v_lshrrev_b32 v{t0}, 2, v{t0}")
    k(f"v_or_b32 v{dst}, v{dst}, v{t0}")
    k(f"v_and_b32 v{t0}, 4, v{p}")
    k(f"v_lshrrev_b32 v{t0}, 1, v{t0}")
    k(f"v_or_b32 v{dst}, v{dst}, v{t0}")

def wp_block_off(k, dst, x, isk, t0, t1):
    k(f"v_lshrrev_b32 v{t0}, 4, v{x}")
    k(f"v_mul_u32_u24 v{t1}, 11, v{t0}")
    k(f"v_lshrrev_b32 v{t1}, 5, v{t1}")
    k(f"v_mul_u32_u24 v{t1}, 3, v{t1}")
    k(f"v_add_u32 v{t0}, v{t0}, v{t1}")
    if isk: k(f"v_add_u32 v{t0}, 3, v{t0}")
    k(f"v_mul_u32_u24 v{t0}, 20480, v{t0}")
    k(f"v_and_b32 v{t1}, 15, v{x}")
    k(f"v_lshl_add_u32 v{dst}, v{t1}, 4, v{t0}")

CH_ROW = [0, 1, 8, 9, 2, 3, 10, 11]

def chunk_base_lane(k, dst, c, t0):
    k(f"v_lshrrev_b32 v{dst}, 2, v{c}")
    k(f"v_lshlrev_b32 v{dst}, 5, v{dst}")
    k(f"v_and_b32 v{t0}, 2, v{c}")
    k(f"v_lshl_add_u32 v{dst}, v{t0}, 3, v{dst}")
    k(f"v_and_b32 v{t0}, 1, v{c}")
    k(f"v_lshl_add_u32 v{dst}, v{t0}, 2, v{dst}")

N_WVO = 160
N_PWP = 240
N_CLR = 64
PREP_WG = N_WVO + N_PWP + N_CLR + 1

def role_wvo(k):
    L = lambda s: k.ref('wvo_' + s)
    k.ptr(KA_WV, 24); k.ptr(KA_WO, 26)
    k("s_and_b32 s21, s20, 1")
    k("s_lshr_b32 s22, s20, 1")
    k("s_mul_i32 s23, s22, 205")
    k("s_lshr_b32 s23, s23, 11")
    k("s_mul_i32 s28, s23, 10")
    k("s_sub_u32 s22, s22, s28")
    k("s_waitcnt lgkmcnt(0)")
    k.srd(32, 24, 640 * 6144 * 2)
    k.srd(36, 26, 6144 * 640 * 2)
    VI, VH = 1, 2
    k(f"v_and_b32 v{VI}, 31, v0")
    k(f"v_lshrrev_b32 v{VH}, 5, v0")
    BE, BO, TMP = 16, 64, 112
    k(f"v_mul_u32_u24 v3, {8 * 1280}, v{VH}")
    k(f"v_lshl_add_u32 v3, v{VI}, 2, v3")
    k(f"s_mul_i32 s28, s23, {192*1280}")
    k("s_lshl_b32 s29, s22, 7")
    k("s_add_u32 s28, s28, s29")
    for half in range(2):
        for kk in range(6):
            kap = half * 6 + kk
            for j in range(8):
                row = 16 * kap + j
                k(f"s_add_u32 s29, s28, {row * 1280}")
                k(f"buffer_load_dword v{TMP + 8 * kk + j}, v3, s[36:39], s29 offen")
        k("v_mov_b32 v4, 0x05040100")
        k("v_mov_b32 v5, 0x07060302")
        k("s_waitcnt vmcnt(0)")
        for kk in range(6):
            kap = half * 6 + kk
            for m in range(4):
                k(f"v_perm_b32 v{BE + 4 * kap + m}, v{TMP + 8 * kk + 2 * m + 1}, v{TMP + 8 * kk + 2 * m}, v4")
                k(f"v_perm_b32 v{BO + 4 * kap + m}, v{TMP + 8 * kk + 2 * m + 1}, v{TMP + 8 * kk + 2 * m}, v5")
    k(f"v_lshrrev_b32 v6, 3, v{VI}")
    chunk_base_lane(k, 7, 6, 8)
    k(f"v_and_b32 v8, 7, v{VI}")
    k("v_and_b32 v9, 1, v8")
    k("v_add_u32 v7, v7, v9")
    k("v_and_b32 v9, 2, v8")
    k("v_lshl_add_u32 v7, v9, 2, v7")
    k("v_lshrrev_b32 v9, 2, v8")
    k("v_lshl_add_u32 v7, v9, 1, v7")
    k("v_mul_u32_u24 v7, 12288, v7")
    k(f"v_lshl_add_u32 v7, v{VH}, 4, v7")
    k("s_mul_i32 s28, s23, 384")
    k(f"s_mul_i32 s29, s21, {10 * 32 * 12288}")
    k("s_add_u32 s28, s28, s29")
    k(f"v_lshrrev_b32 v10, 2, v{VI}")
    k("v_mul_u32_u24 v10, 20480, v10")
    k("v_lshlrev_b32 v10, 4, v10")
    k(f"v_and_b32 v11, 3, v{VI}")
    k("v_lshl_add_u32 v10, v11, 5, v10")
    k(f"v_lshl_add_u32 v10, v{VH}, 8, v10")
    k(f"s_mul_i32 s30, s22, {8 * 327680}")
    k("s_lshr_b32 s31, s23, 3")
    k("s_mul_i32 s31, s31, 81920")
    k("s_add_u32 s30, s30, s31")
    k("s_and_b32 s31, s23, 3")
    k("s_mul_i32 s31, s31, 20480")
    k("s_add_u32 s30, s30, s31")
    k("s_bfe_u32 s31, s23, 0x10002")
    k("s_lshl_b32 s31, s31, 7")
    k("s_add_u32 s30, s30, s31")
    k(f"s_mul_i32 s31, s21, 10240")
    k("s_add_u32 s30, s30, s31")
    k(f"s_add_u32 s30, s30, {WY}")
    AF0, AF1, ACC, OUT = 112, 160, 208, 240
    def aload(dst):
        for kap in range(12):
            k(f"buffer_load_dwordx4 {vr(dst + 4 * kap, 4)}, v7, s[32:35], s28 offen offset:{kap * 32}")
        k(f"s_add_u32 s28, s28, {32 * 12288}")
    def tile(src):
        for kap in range(12):
            for t, B in ((0, BE), (1, BO)):
                c = "0" if kap == 0 else vr(ACC + 16 * t, 16)
                k(f"v_mfma_f32_32x32x16_bf16 {vr(ACC + 16 * t, 16)}, {vr(src + 4 * kap, 4)}, {vr(B + 4 * kap, 4)}, {c}")
        k("s_nop 7"); k("s_nop 7")
        for t in range(2):
            a = ACC + 16 * t
            for j in range(2):
                o = OUT + 4 * j
                for q in range(2):
                    k(f"v_cvt_pk_bf16_f32 v{o + 2 * q}, v{a + 8 * j + 4 * q}, v{a + 8 * j + 4 * q + 1}")
                    k(f"v_cvt_pk_bf16_f32 v{o + 2 * q + 1}, v{a + 8 * j + 4 * q + 2}, v{a + 8 * j + 4 * q + 3}")
                k("s_nop 1")
                k(f"v_permlane32_swap_b32 v{o}, v{o + 2}")
                k(f"v_permlane32_swap_b32 v{o + 1}, v{o + 3}")
                k(f"buffer_store_dwordx4 {vr(o, 4)}, v10, {srd}, s30 offen offset:{j * 512 + t * 16}")
            k("s_nop 1")
        k("s_add_u32 s30, s30, 1024")
    aload(AF0)
    k("s_mov_b32 s31, 5")
    k.lab('wvo_loop')
    aload(AF1)
    k("s_waitcnt vmcnt(12)")
    tile(AF0)
    k("s_cmp_eq_u32 s31, 1")
    k(f"s_cbranch_scc1 {L('last')}")
    aload(AF0)
    k("s_waitcnt vmcnt(12)")
    tile(AF1)
    k("s_sub_u32 s31, s31, 1")
    k(f"s_branch {L('loop')}")
    k.lab('wvo_last')
    k("s_waitcnt vmcnt(0)")
    tile(AF1)
    k(f"s_branch {k.ref('end')}")

def role_pwp(k):
    L = lambda s: k.ref('pwp_' + s)
    k("s_mul_i32 s21, s20, 13108"); k("s_lshr_b32 s21, s21, 16")
    k("s_mul_i32 s22, s21, 5"); k("s_sub_u32 s22, s20, s22")
    k("s_mul_i32 s23, s21, 21846"); k("s_lshr_b32 s23, s23, 16")
    k("s_mul_i32 s28, s23, 3"); k("s_sub_u32 s21, s21, s28")
    k("s_lshr_b32 s29, s23, 5")
    k("s_and_b32 s23, s23, 31")
    k("s_cmp_eq_u32 s29, 0")
    k(f"s_cbranch_scc0 {L('k')}")
    k.ptr(KA_WQ, 24)
    k(f"s_branch {L('go')}")
    k.lab('pwp_k')
    k.ptr(KA_WK, 24)
    k.lab('pwp_go')
    k("v_and_b32 v1, 31, v0")
    k("v_lshrrev_b32 v2, 5, v0")
    k("s_lshl_b32 s28, s21, 6")
    k("v_lshlrev_b32 v3, 1, v1")
    k("v_add_u32 v3, s28, v3")
    p2e_lane(k, 4, 3, 5, 6)
    k("s_cmp_eq_u32 s29, 0")
    k("s_cselect_b64 vcc, -1, 0")
    k("s_nop 1")
    k("v_cndmask_b32 v4, v4, v3, vcc")
    wp_block_off(k, 7, 3, 0, 5, 6)
    k(f"s_mul_i32 s30, s29, {3*20480}")
    k("s_mul_i32 s31, s23, 491520")
    k("s_add_u32 s30, s30, s31")
    k(f"s_add_u32 s30, s30, {WP}")
    k("s_lshl_b32 s31, s22, 4")
    k("v_add_u32 v8, s31, v2")
    k("s_waitcnt lgkmcnt(0)")
    k.srd(32, 24, 640 * 6144 * 2)
    k("s_mul_i32 s28, s23, 384")
    RAW, OUT = 16, 80
    for it in range(8):
        k(f"v_add_u32 v9, {2 * it}, v8")
        chunk_base_lane(k, 10, 9, 11)
        k("v_mul_u32_u24 v10, 12288, v10")
        k("v_lshl_add_u32 v10, v4, 1, v10")
        for j in range(8):
            k(f"s_add_u32 s31, s28, {CH_ROW[j] * 12288}")
            k(f"buffer_load_dword v{RAW + 8 * it + j}, v10, s[32:35], s31 offen")
    k("v_lshl_add_u32 v7, v8, 8, v7")
    k("v_mov_b32 v4, 0x05040100")
    k("v_mov_b32 v5, 0x07060302")
    for it in range(8):
        k(f"s_waitcnt vmcnt({8 * (7 - it)})")
        o = OUT + 8 * (it & 1)
        for m in range(4):
            k(f"v_perm_b32 v{o + m}, v{RAW + 8 * it + 2 * m + 1}, v{RAW + 8 * it + 2 * m}, v4")
            k(f"v_perm_b32 v{o + 4 + m}, v{RAW + 8 * it + 2 * m + 1}, v{RAW + 8 * it + 2 * m}, v5")
        k(f"buffer_store_dwordx4 {vr(o, 4)}, v7, {srd}, s30 offen offset:{it * 512}")
        k(f"buffer_store_dwordx4 {vr(o + 4, 4)}, v7, {srd}, s30 offen offset:{it * 512 + 16}")
        if it >= 1: k("s_nop 0")
    k(f"s_branch {k.ref('end')}")

def role_clear(k):
    ex_delta(k, 21)
    per = 4 * EX_BLOCK // N_CLR
    k(f"s_mul_i32 s22, s20, {per}")
    k("s_add_u32 s21, s21, s22")
    k(f"s_lshl_b32 s22, s{S_WAVE}, 10")
    k("s_add_u32 s21, s21, s22")
    k("v_lshlrev_b32 v1, 4, v0")
    for r in range(4, 8): k(f"v_mov_b32 v{r}, -1")
    k(f"s_mov_b32 s22, {per // 4096}")
    k.lab('clr_loop')
    k(f"buffer_store_dwordx4 v[4:7], v1, {srd}, s21 offen")
    k("s_add_u32 s21, s21, 4096")
    k("s_sub_u32 s22, s22, 1")
    k("s_cmp_lg_u32 s22, 0")
    k(f"s_cbranch_scc1 {k.ref('clr_loop')}")
    k(f"s_branch {k.ref('end')}")

CAL_N = 5
def role_ctl(k):
    k("v_lshlrev_b32 v1, 4, v0")
    for r in range(4, 8): k(f"v_mov_b32 v{r}, 0")
    k(f"s_lshl_b32 s21, s{S_WAVE}, 10")
    k(f"s_add_u32 s21, s21, {CT_TICK}")
    k(f"buffer_store_dwordx4 v[4:7], v1, {srd}, s21 offen")
    k(f"s_lshl_b32 s21, s{S_WAVE}, 14")
    k(f"s_add_u32 s21, s21, {CT_FLAG}")
    for i in range(16):
        k(f"buffer_store_dwordx4 v[4:7], v1, {srd}, s21 offen offset:{(i % 4) * 1024}")
        if i % 4 == 3: k("s_add_u32 s21, s21, 4096")
    ex_delta(k, 22)
    k("s_getreg_b32 s23, hwreg(HW_REG_XCC_ID)")
    k("s_bfe_u32 s23, s23, 0x10002")
    k("s_mov_b64 exec, 1")
    k("v_mov_b32 v1, 0")
    cal = physmap(CAL_LOG)
    k(f"s_mul_i32 s24, s{S_WAVE}, {EX_BLOCK}")
    k("s_add_u32 s22, s22, s24")
    k(f"s_add_u32 s22, s22, {31 * EX_STEP + cal}")
    k("s_mov_b32 s30, -1")
    k("s_mov_b32 s31, -1")
    k(f"s_mov_b32 s25, {CAL_N}")
    k.lab('cal')
    for p in range(2):
        k(f"s_add_u32 s24, s22, {p * 8192}")
        k("s_memrealtime s[26:27]")
        k("s_waitcnt lgkmcnt(0)")
        k(f"buffer_store_dword v1, v1, {srd}, s24 offen sc1")
        k("s_waitcnt vmcnt(0)")
        k(f"buffer_load_dword v2, v1, {srd}, s24 offen sc1")
        k("s_waitcnt vmcnt(0)")
        k("s_memrealtime s[28:29]")
        k("s_waitcnt lgkmcnt(0)")
        k("s_sub_u32 s26, s28, s26")
        k(f"s_min_u32 s{30 + p}, s{30 + p}, s26")
    k("s_sub_u32 s25, s25, 1")
    k("s_cmp_lg_u32 s25, 0")
    k(f"s_cbranch_scc1 {k.ref('cal')}")
    k("s_cmp_lt_u32 s31, s30")
    k("s_cselect_b32 s24, 1, 0")
    k("s_xor_b32 s24, s24, s23")
    k("s_lshl_b32 s24, s24, 13")
    k("v_mov_b32 v3, s24")
    k(f"s_lshl_b32 s25, s{S_WAVE}, 2")
    k(f"s_add_u32 s25, s25, {CT_PAR}")
    k(f"buffer_store_dword v3, v1, {srd}, s25 offen")
    k("s_lshl_b32 s26, s30, 16")
    k("s_or_b32 s26, s26, s31")
    k("v_mov_b32 v3, s26")
    k(f"buffer_store_dword v3, v1, {srd}, s25 offen offset:64")
    k(f"s_branch {k.ref('end')}")

def build_prep(name="prep"):
    k = K(name, vgpr=248, sgpr=64)
    k(f"s_cmp_ge_u32 s2, {PREP_WG}")
    k(f"s_cbranch_scc1 {k.ref('end')}")
    prologue(k)
    k("s_cmp_eq_u32 s2, 0")
    k(f"s_cbranch_scc1 {k.ref('r_ctl')}")
    k("s_sub_u32 s20, s2, 1")
    k(f"s_cmp_lt_u32 s20, {N_WVO}")
    k(f"s_cbranch_scc1 {k.ref('r_wvo')}")
    k(f"s_sub_u32 s20, s20, {N_WVO}")
    k(f"s_cmp_lt_u32 s20, {N_PWP}")
    k(f"s_cbranch_scc1 {k.ref('r_pwp')}")
    k(f"s_sub_u32 s20, s20, {N_PWP}")
    role_clear(k)
    k.lab('r_ctl'); role_ctl(k)
    k.lab('r_wvo')
    k("s_lshl_b32 s20, s20, 2"); k(f"s_add_u32 s20, s20, s{S_WAVE}")
    role_wvo(k)
    k.lab('r_pwp')
    k("s_lshl_b32 s20, s20, 2"); k(f"s_add_u32 s20, s20, s{S_WAVE}")
    role_pwp(k)
    k.lab('end')
    return k, PREP_WG

def wave_sum(k, v, tmp, s0):
    k("s_nop 1")
    k(f"v_add_f32 v{tmp}, v{v}, v{v} quad_perm:[1,0,3,2] row_mask:0xf bank_mask:0xf")
    k("s_nop 1")
    k(f"v_add_f32 v{tmp}, v{tmp}, v{tmp} quad_perm:[2,3,0,1] row_mask:0xf bank_mask:0xf")
    k("s_nop 1")
    k(f"v_add_f32 v{tmp}, v{tmp}, v{tmp} row_half_mirror row_mask:0xf bank_mask:0xf")
    k("s_nop 1")
    k(f"v_add_f32 v{tmp}, v{tmp}, v{tmp} row_mirror row_mask:0xf bank_mask:0xf")
    k("s_nop 1")
    for i in range(4): k(f"v_readlane_b32 s{s0+i}, v{tmp}, {16*i}")
    k("s_nop 1")
    k(f"v_mov_b32 v{v}, s{s0}")
    for i in range(1, 4): k(f"v_add_f32 v{v}, s{s0+i}, v{v}")

def build_lnb(name, layer, src_off):
    k = K(name, vgpr=32, sgpr=48)
    k("s_cmp_gt_u32 s2, 512")
    k(f"s_cbranch_scc1 {k.ref('end')}")
    prologue(k, [(KA_MEM0, 6)])
    k("s_cmp_eq_u32 s2, 512")
    k(f"s_cbranch_scc1 {k.ref('mem0')}")
    k("s_lshl_b32 s20, s2, 2")
    k(f"s_add_u32 s20, s20, s{S_WAVE}")
    k("s_mul_i32 s21, s20, 1280")
    k(f"s_add_u32 s21, s21, {src_off}")
    k("v_lshlrev_b32 v3, 2, v0")
    for j in range(5): k(f"buffer_load_dword v{4+j}, v3, {srd}, s21 offen offset:{j*256}")
    k("v_lshrrev_b32 v20, 4, v0")
    k("v_lshlrev_b32 v20, 2, v20")
    k("v_bfe_u32 v21, v0, 3, 1")
    k("v_lshl_add_u32 v20, v21, 1, v20")
    k("v_bfe_u32 v21, v0, 1, 1")
    k("v_add_u32 v20, v20, v21")
    k("v_lshlrev_b32 v20, 9, v20")
    k("v_and_b32 v21, 1, v0")
    k("v_lshl_add_u32 v20, v21, 3, v20")
    k("v_bfe_u32 v21, v0, 2, 1")
    k("v_lshl_add_u32 v23, v21, 2, v20")
    k("s_lshr_b32 s22, s20, 5")
    k(f"s_mul_i32 s22, s22, {XN_SEG}")
    k("s_and_b32 s23, s20, 31")
    k("s_lshl_b32 s23, s23, 4")
    k("s_add_u32 s22, s22, s23")
    k(f"s_add_u32 s22, s22, {XN}")
    k("s_waitcnt vmcnt(0)")
    for j in range(5):
        k(f"v_lshlrev_b32 v{10+2*j}, 16, v{4+j}")
        k(f"v_and_b32 v{11+2*j}, 0xffff0000, v{4+j}")
    k("v_add_f32 v20, v10, v11")
    for j in range(2, 10): k(f"v_add_f32 v20, v20, v{10+j}")
    wave_sum(k, 20, 21, 24)
    k(f"v_mul_f32 v20, {hexf(1.0/640)}, v20")
    for j in range(10): k(f"v_sub_f32 v{10+j}, v{10+j}, v20")
    k("v_mul_f32 v21, v10, v10")
    for j in range(1, 10): k(f"v_fmac_f32 v21, v{10+j}, v{10+j}")
    wave_sum(k, 21, 22, 24)
    k("v_mov_b32 v22, 0x3727c5ac")
    k(f"v_fmac_f32 v22, {hexf(1.0/640)}, v21")
    k("v_rsq_f32 v22, v22")
    k("s_nop 0")
    for j in range(10): k(f"v_mul_f32 v{10+j}, v{10+j}, v22")
    for j in range(5): k(f"v_cvt_pk_bf16_f32 v{4+j}, v{10+2*j}, v{11+2*j}")
    for j in range(5):
        k(f"s_add_u32 s23, s22, {j * 16 * 512}")
        k(f"buffer_store_dword v{4+j}, v23, {srd}, s23 offen")
    k(f"s_branch {k.ref('end')}")
    k.lab('mem0')
    k.srd(16, 6, 8 * 640 * 2)
    ex_delta(k, 22)
    k(f"s_mov_b32 s23, {CT_PAR + 8 * layer}")
    k(f"s_buffer_load_dword s24, {srd}, s23")
    k("s_waitcnt lgkmcnt(0)")
    k("s_and_b32 s24, s24, 8192")
    k(f"s_add_u32 s22, s22, {2 * layer * EX_BLOCK}")
    k("s_xor_b32 s25, s24, 8192")
    k("s_add_u32 s26, s22, s25")
    k("s_add_u32 s22, s22, s24")
    k(f"s_lshl_b32 s25, s{S_WAVE}, 6")
    k("v_add_u32 v1, s25, v0")
    for it in range(3):
        k(f"v_add_u32 v2, {256 * it}, v1")
        k("v_and_b32 v3, 7, v2")
        k("v_mul_u32_u24 v3, 1280, v3")
        k("v_lshrrev_b32 v4, 3, v2")
        k("v_lshl_add_u32 v3, v4, 4, v3")
        k("v_lshlrev_b32 v5, 4, v2")
        k(f"v_add_u32 v5, {M_LOG}, v5")
        k("v_lshrrev_b32 v6, 13, v5")
        k("v_lshlrev_b32 v6, 14, v6")
        k("v_and_b32 v5, 8191, v5")
        k("v_add_u32 v5, v5, v6")
        k("v_cmp_gt_u32 vcc, 640, v2")
        k("s_and_saveexec_b64 s[30:31], vcc")
        sk = k.ref(f'm0s{it}')
        k(f"s_cbranch_execz {sk}")
        k("buffer_load_dwordx4 v[8:11], v3, s[16:19], 0 offen")
        k("s_waitcnt vmcnt(0)")
        k(f"buffer_store_dwordx4 v[8:11], v5, {srd}, s22 offen")
        k(f"buffer_store_dwordx4 v[8:11], v5, {srd}, s26 offen")
        k.lab(f'm0s{it}')
        k("s_mov_b64 exec, s[30:31]")
    k.lab('end')
    return k, 513

G_LDS = 3 * XN_SEG
GV_L16 = 1; GV_RD = 2; GV_ST = 3; GV_W = 4
G_RING = 8; G_NR = 8
G_ACC = 40
G_OUT = 104
G_WV = 192
GS_SEG = 14; GS_END = 15; GS_BUF = 16; GS_ST0 = 17; GS_ST1 = 18; GS_DMA = 19; GS_INC = 20; GS_LB = 21; GS_NB = 22

def gw(kap, t):
    n = kap * 2 + t
    return ar(4 * n, 4) if n < 64 else vr(G_WV + 4 * (n - 64), 4)

def gemm_body(k, isu, tag, cfg):
    L = lambda s: k.ref(f"g{tag}_{s}")
    lab = lambda s: k.lab(f"g{tag}_{s}")
    ovl = cfg.get('ovl'); SC1 = " sc1" if ovl else ""
    nfl = [0]
    def flag(val_s):
        if not ovl: return
        nfl[0] += 1
        sk = f"g{tag}_fl{nfl[0]}"
        k(f"s_cmp_lg_u32 s{S_WAVE}, 0")
        k(f"s_cbranch_scc1 {k.ref(sk)}")
        k("s_mov_b64 exec, 1")
        k(f"s_lshl_b32 s26, s{cfg['cg_s']}, 7")
        k("v_mov_b32 v7, s26")
        k(f"v_mov_b32 v{G_OUT + 16}, s{val_s}")
        k(f"buffer_store_dword v{G_OUT + 16}, v7, {srd}, s{cfg['flag_s']} offen sc1")
        k("s_mov_b64 exec, -1")
        k.lab(sk)
    def dma(seg_s):
        k(f"s_min_u32 s24, s{seg_s}, 63")
        k(f"s_mul_i32 s24, s24, {XN_SEG}")
        k(f"s_add_u32 s24, s24, s{GS_DMA}")
        k(f"s_mul_i32 s25, s{S_WAVE}, 10240")
        k(f"s_add_u32 s25, s25, s{GS_NB}")
        for grp in range(3):
            k(f"s_mov_b32 m0, s25")
            k("s_nop 0")
            for i in range(4 if grp < 2 else 2):
                k(f"buffer_load_dwordx4 v{GV_L16}, {srd}, s24 offen offset:{i * 1024} lds")
            if grp < 2:
                k("s_add_u32 s24, s24, 4096"); k("s_add_u32 s25, s25, 4096")
    def nextbuf(dst, src):
        k(f"s_add_u32 s{dst}, s{src}, {XN_SEG}")
        k(f"s_cmp_eq_u32 s{dst}, {G_LDS}")
        k(f"s_cselect_b32 s{dst}, 0, s{dst}")
    k(f"s_mul_i32 s{GS_DMA}, s{S_WAVE}, 10240")
    k(f"s_add_u32 s{GS_DMA}, s{GS_DMA}, {XN}")
    k(f"s_mov_b32 s{GS_NB}, 0")
    dma(GS_SEG)
    k(f"s_mov_b32 s{GS_NB}, {XN_SEG}")
    k(f"s_add_u32 s23, s{GS_SEG}, 1")
    dma(23)
    k(f"s_mov_b32 s{GS_NB}, {2 * XN_SEG}")
    k(f"s_mov_b32 s{GS_BUF}, 0")
    k("s_waitcnt vmcnt(10)")
    k("s_barrier")
    k(f"v_mov_b32 v{GV_RD}, v{GV_L16}")
    for r in range(G_NR - 2):
        k(f"ds_read_b128 {vr(G_RING + 4 * r, 4)}, v{GV_RD} offset:{r * 1024}")
    PRE = G_NR - 2
    def epilogue_items(par):
        it = []
        for t in range(2):
            a = G_ACC + 32 * par + 16 * t
            for j in range(2):
                o = G_OUT + 4 * ((2 * t + j) & 3)
                for q in range(2):
                    it.append(f"v_cvt_pk_bf16_f32 v{o + 2 * q}, v{a + 8 * j + 4 * q}, v{a + 8 * j + 4 * q + 1}")
                    it.append(f"v_cvt_pk_bf16_f32 v{o + 2 * q + 1}, v{a + 8 * j + 4 * q + 2}, v{a + 8 * j + 4 * q + 3}")
                it.append("s_nop 1")
                it.append(f"v_permlane32_swap_b32 v{o}, v{o + 2}")
                it.append(f"v_permlane32_swap_b32 v{o + 1}, v{o + 3}")
                if isu: it.append(f"buffer_store_dwordx4 {vr(o, 4)}, v{GV_ST}, {srd}, s{GS_ST0} offen offset:{t * 2560 + j * 256}{SC1}")
                else:   it.append(f"buffer_store_dwordx4 {vr(o, 4)}, v{GV_ST}, {srd}, s{GS_ST0 + t} offen offset:{j * 1024}{SC1}")
        it.append(f"s_add_u32 s{GS_ST0}, s{GS_ST0}, s{GS_INC}")
        it.append(f"s_add_u32 s{GS_ST1}, s{GS_ST1}, s{GS_INC}")
        return it
    def segment(par, first):
        side = {i: [] for i in range(80)}
        if not first:
            for n, it in enumerate(epilogue_items(par ^ 1)): side[4 + n].append(it)
        for kap in range(40):
            slot = kap % G_NR
            nk = kap + PRE
            if nk == 40:
                k(f"v_add_u32 v{GV_RD + 4}, s{GS_LB}, v{GV_L16}")
            rb = GV_RD if nk < 40 else GV_RD + 4
            k(f"ds_read_b128 {vr(G_RING + 4 * (nk % G_NR), 4)}, v{rb} offset:{(nk % 40) * 1024}")
            k(f"s_waitcnt lgkmcnt({PRE})")
            x = vr(G_RING + 4 * slot, 4)
            for t in range(2):
                d = vr(G_ACC + 32 * par + 16 * t, 16)
                c = "0" if kap == 0 else d
                if isu: k(f"v_mfma_f32_32x32x16_bf16 {d}, {x}, {gw(kap, t)}, {c}")
                else:   k(f"v_mfma_f32_32x32x16_bf16 {d}, {gw(kap, t)}, {x}, {c}")
                for it in side[2 * kap + t]: k(it)
            if kap == 28:
                if first or not ovl:
                    k("s_waitcnt vmcnt(0)" if first else "s_waitcnt vmcnt(4)")
                    k("s_barrier")
                else:
                    nfl[0] += 1
                    l1 = f"g{tag}_dr{nfl[0]}"; l2 = f"g{tag}_dq{nfl[0]}"
                    k(f"s_cmp_gt_u32 s{GS_SEG}, 2")
                    k(f"s_cbranch_scc1 {k.ref(l1)}")
                    k("s_waitcnt vmcnt(0)")
                    k(f"s_mov_b32 s27, s{GS_SEG}")
                    k(f"s_branch {k.ref(l2)}")
                    k.lab(l1)
                    k("s_waitcnt vmcnt(4)")
                    k(f"s_sub_u32 s27, s{GS_SEG}, 1")
                    k.lab(l2)
                    k("s_barrier")
                    flag(27)
                nextbuf(GS_LB, GS_BUF)
                k(f"s_add_u32 s23, s{GS_SEG}, 2")
                dma(23)
                nextbuf(GS_NB, GS_NB)
        k(f"v_mov_b32 v{GV_RD}, v{GV_RD + 4}")
        k(f"s_mov_b32 s{GS_BUF}, s{GS_LB}")
        k(f"s_add_u32 s{GS_SEG}, s{GS_SEG}, 1")
    segment(0, True)
    k(f"s_cmp_ge_u32 s{GS_SEG}, s{GS_END}")
    k(f"s_cbranch_scc1 {L('fin0')}")
    lab('loop')
    segment(1, False)
    k(f"s_cmp_ge_u32 s{GS_SEG}, s{GS_END}")
    k(f"s_cbranch_scc1 {L('fin1')}")
    segment(0, False)
    k(f"s_cmp_lt_u32 s{GS_SEG}, s{GS_END}")
    k(f"s_cbranch_scc1 {L('loop')}")
    lab('fin0')
    k("s_nop 7"); k("s_nop 7")
    for it in epilogue_items(0): k(it)
    k(f"s_branch {L('done')}")
    lab('fin1')
    k("s_nop 7"); k("s_nop 7")
    for it in epilogue_items(1): k(it)
    lab('done')
    k("s_waitcnt vmcnt(0) lgkmcnt(0)")
    if ovl:
        k("s_barrier")
        flag(GS_SEG)

def role_gemm(k, cg_s, cfg=None):
    cfg = dict(cfg or {}, cg_s=cg_s)
    L = lambda s: k.ref('g_' + s)
    k(f"v_lshlrev_b32 v{GV_L16}, 4, v0")
    k("v_and_b32 v8, 31, v0")
    k("v_lshrrev_b32 v9, 5, v0")
    k(f"s_cmp_ge_u32 s{cg_s}, 80")
    k(f"s_cbranch_scc1 {L('qk')}")
    k("v_lshrrev_b32 v10, 3, v8")
    k("v_and_b32 v11, 7, v8")
    k("v_mul_u32_u24 v12, 20480, v10")
    k("v_lshl_add_u32 v12, v11, 4, v12")
    k(f"v_lshl_add_u32 v{GV_W}, v9, 8, v12")
    k(f"s_mul_i32 s24, s{cg_s}, 327680")
    k(f"s_mul_i32 s25, s{S_WAVE}, 81920")
    k("s_add_u32 s24, s24, s25")
    k(f"s_add_u32 s24, s24, {WY}")
    for kap in range(40):
        if kap % 7 == 0 and kap: k(f"s_add_u32 s24, s24, {7 * 512}")
        for t in range(2):
            k(f"buffer_load_dwordx4 {gw(kap, t)}, v{GV_W}, {srd}, s24 offen offset:{(kap % 7) * 512 + t * 128}")
    k(f"s_lshl_b32 s25, s{S_WAVE}, 3")
    k("v_add_u32 v10, s25, v10")
    k("v_mul_u32_u24 v10, 640, v10")
    k("v_lshl_add_u32 v10, v9, 7, v10")
    k("v_lshl_add_u32 v10, v11, 4, v10")
    k(f"v_add_u32 v{GV_ST}, 128, v10")
    k(f"s_mul_i32 s{GS_ST0}, s{cg_s}, 20480")
    k(f"s_mul_i32 s25, s{GS_SEG}, {Z_SEG}")
    k(f"s_add_u32 s{GS_ST0}, s{GS_ST0}, s25")
    k(f"s_add_u32 s{GS_ST0}, s{GS_ST0}, {Z}")
    k(f"s_mov_b32 s{GS_INC}, {Z_SEG}")
    gemm_body(k, True, 'u', cfg)
    k(f"s_branch {L('done')}")
    k.lab('g_qk')
    k(f"s_sub_u32 s26, s{cg_s}, 80")
    k("s_cmp_ge_u32 s26, 24")
    k("s_cselect_b32 s27, 1, 0")
    k("s_cselect_b32 s28, 24, 0")
    k("s_sub_u32 s26, s26, s28")
    k("s_lshl_b32 s26, s26, 3")
    k(f"s_lshl_b32 s28, s{S_WAVE}, 1")
    k("s_add_u32 s26, s26, s28")
    for t in range(2):
        k(f"s_add_u32 s28, s26, {t}")
        k("s_mul_i32 s29, s28, 171")
        k("s_lshr_b32 s29, s29, 10")
        k("s_mul_i32 s30, s29, 6")
        k("s_sub_u32 s30, s28, s30")
        k(f"s_mul_i32 s31, s29, {KX_SH}")
        k("s_lshl_b32 s32, s30, 11")
        k("s_add_u32 s31, s31, s32")
        k(f"s_mul_i32 s32, s{GS_SEG}, {32 * KX_SH}")
        k("s_add_u32 s31, s31, s32")
        k(f"s_mul_i32 s32, s27, {QX - KX}")
        k("s_add_u32 s31, s31, s32")
        k(f"s_add_u32 s{GS_ST0 + t}, s31, {KX}")
        k("s_lshl_b32 s30, s30, 5")
        k("v_add_u32 v10, s30, v8")
        p2e_lane(k, 11, 10, 12, 13)
        k("s_cmp_eq_u32 s27, 1")
        k("s_cselect_b64 vcc, -1, 0")
        k("s_nop 1")
        k("v_cndmask_b32 v10, v10, v11, vcc")
        wp_block_off(k, 11, 10, 0, 12, 13)
        k(f"v_lshl_add_u32 v{GV_W + t}, v9, 8, v11")
        k("s_xor_b32 s30, s27, 1")
        k(f"s_mul_i32 s30, s30, {3*20480}")
        k("s_mul_i32 s31, s29, 491520")
        k("s_add_u32 s30, s30, s31")
        k(f"s_add_u32 s{34 + t}, s30, {WP}")
    for kap in range(40):
        if kap % 8 == 0 and kap:
            k("s_add_u32 s34, s34, 4096"); k("s_add_u32 s35, s35, 4096")
        for t in range(2):
            k(f"buffer_load_dwordx4 {gw(kap, t)}, v{GV_W + t}, {srd}, s{34 + t} offen offset:{(kap % 8) * 512}")
    k(f"v_mov_b32 v{GV_ST}, v{GV_L16}")
    k(f"s_mov_b32 s{GS_INC}, {32 * KX_SH}")
    gemm_body(k, False, 'k', cfg)
    k.lab('g_done')

def build_gemmb(name="gemmb", nsplit=2):
    k = K(name, vgpr=256, sgpr=64, agpr=256)
    k(f"s_cmp_ge_u32 s2, {128 * nsplit}")
    k(f"s_cbranch_scc1 {k.ref('end')}")
    prologue(k)
    k("s_and_b32 s36, s2, 127")
    k("s_lshr_b32 s37, s2, 7")
    k(f"s_mul_i32 s{GS_SEG}, s37, {64 // nsplit}")
    k(f"s_add_u32 s{GS_END}, s{GS_SEG}, {64 // nsplit}")
    role_gemm(k, 36)
    k.lab('end')
    return k, 128 * nsplit, G_LDS

def role_w3a(k, seg_s, h_s, SC1=""):
    Q, KK, KMF, D1, D2, BI = 16, 64, 112, 160, 176, 192
    T = 208
    k("v_lshlrev_b32 v1, 4, v0")
    k("v_and_b32 v2, 31, v0")
    k("v_lshrrev_b32 v3, 5, v0")
    k(f"s_lshl_b32 s24, s{seg_s}, 5")
    k(f"s_add_u32 s24, s24, s{h_s}")
    k(f"s_mul_i32 s25, s24, {KX_SH}")
    k(f"s_add_u32 s26, s25, {QX}")
    k(f"s_add_u32 s27, s25, {KX}")
    k(f"s_mul_i32 s28, s24, {KM_SH}")
    k(f"s_add_u32 s28, s28, {KM}")
    k("v_and_b32 v4, 7, v0")
    k("v_lshlrev_b32 v4, 4, v4")
    k("v_lshl_add_u32 v4, v3, 7, v4")
    for kap in range(12):
        if kap % 4 == 0 and kap:
            k("s_add_u32 s26, s26, 4096"); k("s_add_u32 s27, s27, 4096")
        k(f"buffer_load_dwordx4 {vr(Q + 4 * kap, 4)}, v1, {srd}, s26 offen offset:{(kap % 4) * 1024}{SC1}")
        k(f"buffer_load_dwordx4 {vr(KK + 4 * kap, 4)}, v1, {srd}, s27 offen offset:{(kap % 4) * 1024}{SC1}")
        k(f"buffer_load_dwordx4 {vr(KMF + 4 * kap, 4)}, v4, {srd}, s28 offen offset:{kap * 256}{SC1}")
    k("v_lshlrev_b32 v5, 2, v3")
    k("v_sub_u32 v5, v2, v5")
    k(f"v_mov_b32 v6, {hexf(-1e30)}")
    for r in range(16):
        k(f"v_cmp_gt_i32 vcc, {(r & 3) + 8 * (r >> 2)}, v5")
        k("s_nop 1")
        k(f"v_cndmask_b32 v{BI + r}, 0, v6, vcc")
    for kap in range(12):
        k(f"s_waitcnt vmcnt({3 * (11 - kap)})")
        k(f"v_mfma_f32_32x32x16_bf16 {vr(D1, 16)}, {vr(KK + 4 * kap, 4)}, {vr(Q + 4 * kap, 4)}, {'0' if kap == 0 else vr(D1, 16)}")
        k(f"v_mfma_f32_32x32x16_bf16 {vr(D2, 16)}, {vr(KMF + 4 * kap, 4)}, {vr(Q + 4 * kap, 4)}, {'0' if kap == 0 else vr(D2, 16)}")
    k("s_nop 7"); k("s_nop 7")
    c = hexf(CSC)
    k(f"v_mov_b32 v7, {c}")
    for r in range(16): k(f"v_fma_f32 v{D1 + r}, v{D1 + r}, v7, v{BI + r}")
    for r in range(4): k(f"v_mul_f32 v{D2 + r}, v{D2 + r}, v7")
    vals = [D1 + r for r in range(16)] + [D2 + r for r in range(4)]
    m, u = T, T + 1
    k(f"v_max3_f32 v{m}, v{vals[0]}, v{vals[1]}, v{vals[2]}")
    rest = vals[3:]
    while len(rest) >= 2:
        k(f"v_max3_f32 v{m}, v{m}, v{rest[0]}, v{rest[1]}"); rest = rest[2:]
    if rest: k(f"v_max_f32 v{m}, v{m}, v{rest[0]}")
    k(f"v_mov_b32 v{u}, v{m}")
    k("s_nop 1")
    k(f"v_permlane32_swap_b32 v{m}, v{u}")
    k(f"v_max_f32 v{m}, v{m}, v{u}")
    for r in vals: k(f"v_sub_f32 v{r}, v{r}, v{m}")
    for r in vals: k(f"v_exp_f32 v{r}, v{r}")
    k("s_nop 0")
    s_ = T + 2
    k(f"v_add_f32 v{s_}, v{vals[0]}, v{vals[1]}")
    for r in vals[2:]: k(f"v_add_f32 v{s_}, v{s_}, v{r}")
    k(f"v_mov_b32 v{u}, v{s_}")
    k("s_nop 1")
    k(f"v_permlane32_swap_b32 v{s_}, v{u}")
    k(f"v_add_f32 v{s_}, v{s_}, v{u}")
    k(f"v_rcp_f32 v{s_}, v{s_}")
    k("s_nop 0")
    for r in vals: k(f"v_mul_f32 v{r}, v{r}, v{s_}")
    k(f"s_mul_i32 s25, s{seg_s}, {PX_SEG}")
    k(f"s_mul_i32 s26, s{h_s}, 2560")
    k("s_add_u32 s25, s25, s26")
    k(f"s_add_u32 s25, s25, {PXB}")
    O = Q
    for j in range(2):
        o = O + 4 * j
        for q in range(2):
            k(f"v_cvt_pk_bf16_f32 v{o + 2 * q}, v{D1 + 8 * j + 4 * q}, v{D1 + 8 * j + 4 * q + 1}")
            k(f"v_cvt_pk_bf16_f32 v{o + 2 * q + 1}, v{D1 + 8 * j + 4 * q + 2}, v{D1 + 8 * j + 4 * q + 3}")
        k("s_nop 1")
        k(f"v_permlane32_swap_b32 v{o}, v{o + 2}")
        k(f"v_permlane32_swap_b32 v{o + 1}, v{o + 3}")
        k(f"buffer_store_dwordx4 {vr(o, 4)}, v1, {srd}, s25 offen offset:{512 + j * 1024}{SC1}")
    k(f"v_cvt_pk_bf16_f32 v{O + 8}, v{D2}, v{D2 + 1}")
    k(f"v_cvt_pk_bf16_f32 v{O + 9}, v{D2 + 2}, v{D2 + 3}")
    k("v_lshlrev_b32 v4, 4, v2")
    k("v_lshl_add_u32 v4, v3, 3, v4")
    k(f"buffer_store_dwordx2 {vr(O + 8, 2)}, v4, {srd}, s25 offen{SC1}")

def build_w3a(name="w3a"):
    k = K(name, vgpr=216, sgpr=48)
    k("s_cmp_ge_u32 s2, 512")
    k(f"s_cbranch_scc1 {k.ref('end')}")
    prologue(k)
    k("s_lshl_b32 s20, s2, 2")
    k(f"s_add_u32 s20, s20, s{S_WAVE}")
    k("s_lshr_b32 s21, s20, 5")
    k("s_and_b32 s22, s20, 31")
    role_w3a(k, 21, 22)
    k.lab('end')
    return k, 512

def role_w3b(k, seg_s, cg_s, res_off, out_srd, out_off, NR=16, SC1=""):
    RING = 32; ACC = 16
    k("v_lshlrev_b32 v1, 4, v0")
    k("v_and_b32 v2, 31, v0")
    k("v_lshrrev_b32 v3, 5, v0")
    k("v_lshrrev_b32 v4, 3, v2")
    k("v_mul_u32_u24 v4, 20480, v4")
    k("v_and_b32 v5, 7, v2")
    k("v_lshl_add_u32 v4, v5, 4, v4")
    k("v_lshl_add_u32 v4, v3, 7, v4")
    k(f"s_mul_i32 s24, s{seg_s}, {Z_SEG}")
    k(f"s_mul_i32 s25, s{cg_s}, {4 * 20480}")
    k("s_add_u32 s24, s24, s25")
    k(f"s_add_u32 s24, s24, {Z}")
    k(f"s_mul_i32 s25, s{seg_s}, {PX_SEG}")
    k(f"s_add_u32 s25, s25, {PXB}")
    k("v_mul_u32_u24 v6, 1280, v2")
    k("v_lshl_add_u32 v6, v3, 4, v6")
    k(f"s_mul_i32 s26, s{seg_s}, {32 * 1280}")
    k(f"s_lshl_b32 s27, s{cg_s}, 6")
    k("s_add_u32 s26, s26, s27")
    k(f"s_add_u32 s27, s26, {res_off}")
    for j in range(2):
        k(f"buffer_load_dwordx4 {vr(8 + 4 * j, 4)}, v6, {srd}, s27 offen offset:{32 * j}")
    def load(kap):
        sl = RING + 8 * (kap % NR)
        if kap % 16 == 0 and kap: k("s_add_u32 s24, s24, 4096")
        if kap % 4 == 0 and kap: k("s_add_u32 s25, s25, 4096")
        k(f"buffer_load_dwordx4 {vr(sl, 4)}, v4, {srd}, s24 offen offset:{(kap % 16) * 256}{SC1}")
        k(f"buffer_load_dwordx4 {vr(sl + 4, 4)}, v1, {srd}, s25 offen offset:{(kap % 4) * 1024}{SC1}")
    for kap in range(NR): load(kap)
    issued = NR
    for kap in range(80):
        k(f"s_waitcnt vmcnt({2 * (issued - 1 - kap)})")
        sl = RING + 8 * (kap % NR)
        k(f"v_mfma_f32_32x32x16_bf16 {vr(ACC, 16)}, {vr(sl, 4)}, {vr(sl + 4, 4)}, {'0' if kap == 0 else vr(ACC, 16)}")
        if kap >= 1 and issued < 80:
            load(issued); issued += 1
    k("s_nop 7"); k("s_nop 7")
    O = RING
    for j in range(2):
        o = O + 4 * j
        for q in range(2):
            k(f"v_cvt_pk_bf16_f32 v{o + 2 * q}, v{ACC + 8 * j + 4 * q}, v{ACC + 8 * j + 4 * q + 1}")
            k(f"v_cvt_pk_bf16_f32 v{o + 2 * q + 1}, v{ACC + 8 * j + 4 * q + 2}, v{ACC + 8 * j + 4 * q + 3}")
        k("s_nop 1")
        k(f"v_permlane32_swap_b32 v{o}, v{o + 2}")
        k(f"v_permlane32_swap_b32 v{o + 1}, v{o + 3}")
        k("s_nop 1")
        for r in range(4):
            a, b, t0, t1 = O + 8, O + 9, O + 10, O + 11
            k(f"v_lshlrev_b32 v{a}, 16, v{o + r}")
            k(f"v_and_b32 v{b}, 0xffff0000, v{o + r}")
            k(f"v_lshlrev_b32 v{t0}, 16, v{8 + 4 * j + r}")
            k(f"v_and_b32 v{t1}, 0xffff0000, v{8 + 4 * j + r}")
            k(f"v_add_f32 v{a}, v{a}, v{t0}")
            k(f"v_add_f32 v{b}, v{b}, v{t1}")
            k(f"v_cvt_pk_bf16_f32 v{o + r}, v{a}, v{b}")
        if out_off is not None:
            k(f"s_add_u32 s27, s26, {out_off}")
            k(f"buffer_store_dwordx4 {vr(o, 4)}, v6, {srd}, s27 offen offset:{32 * j}")
        else:
            k(f"buffer_store_dwordx4 {vr(o, 4)}, v6, {out_srd}, s26 offen offset:{32 * j}")

def build_w3b(name, res_off, out_off):
    NR = 12
    k = K(name, vgpr=32 + 8 * NR, sgpr=48)
    k("s_cmp_ge_u32 s2, 320")
    k(f"s_cbranch_scc1 {k.ref('end')}")
    prologue(k, [(KA_OUT, 6)])
    k.srd(16, 6, 2048 * 640 * 2)
    k("s_lshl_b32 s20, s2, 2")
    k(f"s_add_u32 s20, s20, s{S_WAVE}")
    k("s_mul_i32 s21, s20, 3277"); k("s_lshr_b32 s21, s21, 16")
    k("s_mul_i32 s22, s21, 20"); k("s_sub_u32 s22, s20, s22")
    role_w3b(k, 21, 22, res_off, "s[16:19]", out_off, NR)
    k.lab('end')
    return k, 320

J_PER = 18
NJOB = 64 * J_PER
JL_RED = 0; JL_JOB = 32768

def role_w3b2(k, seg_s, cg_s, res_off, out_srd):
    ACC = 16; T = 48
    AP, AZ0, AZ1 = 160, 0, 80
    k("v_lshlrev_b32 v1, 4, v0")
    k("v_and_b32 v2, 31, v0")
    k("v_lshrrev_b32 v3, 5, v0")
    k("v_lshrrev_b32 v4, 3, v2")
    k("v_mul_u32_u24 v4, 20480, v4")
    k("v_and_b32 v5, 7, v2")
    k("v_lshl_add_u32 v4, v5, 4, v4")
    k("v_lshl_add_u32 v4, v3, 7, v4")
    k(f"s_mul_i32 s24, s{seg_s}, {Z_SEG}")
    k(f"s_mul_i32 s25, s{cg_s}, {8 * 20480}")
    k("s_add_u32 s24, s24, s25")
    k(f"s_mul_i32 s25, s{S_WAVE}, {20 * 256}")
    k("s_add_u32 s24, s24, s25")
    k(f"s_add_u32 s24, s24, {Z}")
    k(f"s_add_u32 s28, s24, {4 * 20480}")
    k(f"s_mul_i32 s25, s{seg_s}, {PX_SEG}")
    k(f"s_mul_i32 s26, s{S_WAVE}, {20 * 1024}")
    k("s_add_u32 s25, s25, s26")
    k(f"s_add_u32 s25, s25, {PXB}")
    k("v_mul_u32_u24 v6, 1280, v2")
    k("v_lshl_add_u32 v6, v3, 4, v6")
    k(f"s_mul_i32 s26, s{seg_s}, {32 * 1280}")
    k(f"s_lshl_b32 s27, s{cg_s}, 7")
    k("s_add_u32 s26, s26, s27")
    k(f"s_lshl_b32 s27, s{S_WAVE}, 5")
    k("s_add_u32 s26, s26, s27")
    k(f"s_add_u32 s27, s26, {res_off}")
    k(f"buffer_load_dwordx4 v[8:11], v6, {srd}, s27 offen")
    for i in range(20):
        if i % 4 == 0 and i: k("s_add_u32 s25, s25, 4096")
        if i == 16:
            k("s_add_u32 s24, s24, 4096"); k("s_add_u32 s28, s28, 4096")
        k(f"buffer_load_dwordx4 {ar(AP + 4 * i, 4)}, v1, {srd}, s25 offen offset:{(i % 4) * 1024} sc1")
        k(f"buffer_load_dwordx4 {ar(AZ0 + 4 * i, 4)}, v4, {srd}, s24 offen offset:{(i % 16) * 256} sc1")
        k(f"buffer_load_dwordx4 {ar(AZ1 + 4 * i, 4)}, v4, {srd}, s28 offen offset:{(i % 16) * 256} sc1")
    for i in range(20):
        k(f"s_waitcnt vmcnt({3 * (19 - i)})")
        for t, az in ((0, AZ0), (1, AZ1)):
            d = vr(ACC + 16 * t, 16)
            k(f"v_mfma_f32_32x32x16_bf16 {d}, {ar(az + 4 * i, 4)}, {ar(AP + 4 * i, 4)}, {'0' if i == 0 else d}")
    k(f"s_lshl_b32 s27, s{S_WAVE}, 11")
    k(f"v_add_u32 v7, s27, v1")
    k("s_nop 7"); k("s_nop 7")
    for t in range(2):
        for j in range(2):
            for hh in range(2):
                k(f"ds_write_b128 v7, {vr(ACC + 16 * t + 8 * j + 4 * hh, 4)} offset:{JL_RED + (t * 2 + j) * 8192 + hh * 1024}")
    k("s_waitcnt lgkmcnt(0)")
    k("s_barrier")
    k(f"s_lshl_b32 s27, s{S_WAVE}, 13")
    k(f"v_add_u32 v7, s27, v1")
    for ww in range(4):
        for hh in range(2):
            k(f"ds_read_b128 {vr(T + 8 * ww + 4 * hh, 4)}, v7 offset:{JL_RED + ww * 2048 + hh * 1024}")
    k("s_waitcnt lgkmcnt(4)")
    for r in range(8): k(f"v_add_f32 v{T + r}, v{T + r}, v{T + 8 + r}")
    k("s_waitcnt lgkmcnt(0)")
    for r in range(8): k(f"v_add_f32 v{T + 16 + r}, v{T + 16 + r}, v{T + 24 + r}")
    for r in range(8): k(f"v_add_f32 v{T + r}, v{T + r}, v{T + 16 + r}")
    o = ACC
    for q in range(2):
        k(f"v_cvt_pk_bf16_f32 v{o + 2 * q}, v{T + 4 * q}, v{T + 4 * q + 1}")
        k(f"v_cvt_pk_bf16_f32 v{o + 2 * q + 1}, v{T + 4 * q + 2}, v{T + 4 * q + 3}")
    k("s_nop 1")
    k(f"v_permlane32_swap_b32 v{o}, v{o + 2}")
    k(f"v_permlane32_swap_b32 v{o + 1}, v{o + 3}")
    k("s_nop 1")
    for r in range(4):
        a, b, t0, t1 = T, T + 1, T + 2, T + 3
        k(f"v_lshlrev_b32 v{a}, 16, v{o + r}")
        k(f"v_and_b32 v{b}, 0xffff0000, v{o + r}")
        k(f"v_lshlrev_b32 v{t0}, 16, v{8 + r}")
        k(f"v_and_b32 v{t1}, 0xffff0000, v{8 + r}")
        k(f"v_add_f32 v{a}, v{a}, v{t0}")
        k(f"v_add_f32 v{b}, v{b}, v{t1}")
        k(f"v_cvt_pk_bf16_f32 v{o + r}, v{a}, v{b}")
    k(f"buffer_store_dwordx4 {vr(o, 4)}, v6, {out_srd}, s26 offen")

def role_w3_loop(k, cfg, fl_s, spin_s, out_srd, layer_s):
    L = lambda s: k.ref('j_' + s)
    lab = lambda s: k.lab('j_' + s)
    bail = k.ref('bail')
    SEG, R, NEED = 40, 41, 42
    lab('next')
    k(f"s_cmp_lg_u32 s{S_WAVE}, 0")
    k(f"s_cbranch_scc1 {L('rel')}")
    k("s_mov_b64 exec, 1")
    k(f"v_mov_b32 v2, {FL_JOB}")
    k("v_mov_b32 v3, 1")
    k(f"buffer_atomic_add v3, v2, {srd}, s{fl_s} offen sc0 sc1")
    k("s_waitcnt vmcnt(0)")
    k("s_mov_b64 exec, -1")
    k("s_nop 0")
    k("v_readfirstlane_b32 s38, v3")
    k(f"s_cmp_ge_u32 s38, {NJOB}")
    k(f"s_cbranch_scc1 {L('pub')}")
    k("s_mul_i32 s39, s38, 58255")
    k(f"s_lshr_b32 s{SEG}, s39, 20")
    k(f"s_mul_i32 s39, s{SEG}, {J_PER}")
    k(f"s_sub_u32 s{R}, s38, s39")
    k(f"s_add_u32 s{NEED}, s{SEG}, 1")
    k(f"v_mov_b32 v4, s{NEED}")
    k(f"s_cmp_ge_u32 s{R}, 8")
    k(f"s_cbranch_scc1 {L('dep_b')}")
    k(f"s_lshl_b32 s24, s{R}, 9")
    k(f"s_add_u32 s24, s24, {FL_PF}")
    k("v_lshlrev_b32 v2, 7, v0")
    k("v_add_u32 v2, s24, v2")
    k(f"s_mul_i32 s25, s{R}, 3")
    k("s_add_u32 s25, s25, 104")
    k("s_lshl_b32 s25, s25, 7")
    k("v_writelane_b32 v2, s25, 4")
    k("s_add_u32 s25, s25, 128")
    k("v_writelane_b32 v2, s25, 5")
    k("s_add_u32 s25, s25, 128")
    k("v_writelane_b32 v2, s25, 6")
    k("s_mov_b64 exec, 0x7f")
    k(f"s_branch {L('poll')}")
    lab('dep_b')
    k(f"s_sub_u32 s24, s{R}, 8")
    k("s_lshl_b32 s24, s24, 10")
    k(f"s_add_u32 s24, s24, {FL_YF}")
    k("v_lshlrev_b32 v2, 7, v0")
    k("v_add_u32 v2, s24, v2")
    k(f"s_lshl_b32 s25, s{SEG}, 4")
    k(f"s_add_u32 s25, s25, {FL_WA}")
    k("v_writelane_b32 v2, s25, 8")
    k("s_mov_b32 s26, 8")
    k("v_writelane_b32 v4, s26, 8")
    k("s_mov_b64 exec, 0x1ff")
    lab('poll')
    k(f"buffer_load_dword v3, v2, {srd}, s{fl_s} offen sc1")
    k("s_waitcnt vmcnt(0)")
    k("v_cmp_gt_u32 vcc, v4, v3")
    k(f"s_sub_u32 s{spin_s}, s{spin_s}, 1")
    k(f"s_cbranch_scc1 {L('giveup')}")
    k(f"s_cbranch_vccnz {L('poll')}")
    k("s_mov_b64 exec, -1")
    lab('pub')
    k("v_mov_b32 v2, 0")
    k("v_mov_b32 v3, s38")
    k(f"ds_write_b32 v2, v3 offset:{JL_JOB}")
    k("s_waitcnt lgkmcnt(0)")
    lab('rel')
    k("s_barrier")
    k("v_mov_b32 v2, 0")
    k(f"ds_read_b32 v3, v2 offset:{JL_JOB}")
    k("s_waitcnt lgkmcnt(0)")
    k("v_readfirstlane_b32 s38, v3")
    k(f"s_cmp_ge_u32 s38, {NJOB}")
    k(f"s_cbranch_scc1 {L('done')}")
    k("s_mul_i32 s39, s38, 58255")
    k(f"s_lshr_b32 s{SEG}, s39, 20")
    k(f"s_mul_i32 s39, s{SEG}, {J_PER}")
    k(f"s_sub_u32 s{R}, s38, s39")
    k(f"s_cmp_ge_u32 s{R}, 8")
    k(f"s_cbranch_scc1 {L('b')}")
    k(f"s_lshl_b32 s{R}, s{R}, 2")
    k(f"s_add_u32 s{R}, s{R}, s{S_WAVE}")
    role_w3a(k, SEG, R, " sc1")
    k("s_waitcnt vmcnt(0)")
    k("s_barrier")
    k(f"s_cmp_lg_u32 s{S_WAVE}, 0")
    k(f"s_cbranch_scc1 {L('next')}")
    k("s_mov_b64 exec, 1")
    k(f"s_lshl_b32 s24, s{SEG}, 4")
    k(f"s_add_u32 s24, s24, {FL_WA}")
    k("v_mov_b32 v2, s24")
    k("v_mov_b32 v3, 1")
    k(f"buffer_atomic_add v3, v2, {srd}, s{fl_s} offen sc1")
    k("s_mov_b64 exec, -1")
    k(f"s_branch {L('next')}")
    lab('b')
    k(f"s_sub_u32 s{R}, s{R}, 8")
    role_w3b2(k, SEG, R, A_X1, out_srd)
    k(f"s_branch {L('next')}")
    lab('giveup')
    k("s_mov_b64 exec, -1")
    k("v_mov_b32 v2, 0")
    k("v_mov_b32 v3, -1")
    k(f"ds_write_b32 v2, v3 offset:{JL_JOB}")
    k("s_waitcnt lgkmcnt(0)")
    k("s_barrier")
    k(f"s_branch {bail}")
    lab('done')
```

```python
import sys, math
sys.path.insert(0, "/code"); sys.path.insert(0, "tools")
from asmk import *
from lay import *
from work import prologue, vr, ar, S_WS, SRD, S_WAVE, srd

LOG2E = math.log2(math.e)
E6 = 1e-6
SPIN = 400000

def role_pwa(k):
    k.ptr(KA_WQKV, 24)
    k("s_lshr_b32 s21, s20, 1")
    k("s_and_b32 s22, s20, 1")
    k("v_and_b32 v1, 31, v0")
    k("v_lshrrev_b32 v2, 5, v0")
    k("s_mul_i32 s23, s21, 20")
    k("v_add_u32 v3, 640, v1")
    k("v_add_u32 v4, 1260, v1")
    k("v_cmp_gt_u32 vcc, 20, v1")
    k("s_nop 1")
    k("v_cndmask_b32 v3, v4, v3, vcc")
    k("v_add_u32 v4, 1292, v1")
    k("v_subrev_u32 v5, 12, v1")
    k("v_cmp_gt_u32 vcc, 8, v1")
    k("s_nop 1")
    k("v_cndmask_b32 v4, v5, v4, vcc")
    k("s_cmp_eq_u32 s22, 0")
    k("s_cselect_b64 vcc, -1, 0")
    k("s_nop 1")
    k("v_cndmask_b32 v3, v4, v3, vcc")
    k("v_add_u32 v3, s23, v3")
    k("v_lshlrev_b32 v3, 1, v3")
    k(f"v_mul_u32_u24 v4, {8 * 3840}, v2")
    k("v_add_u32 v3, v3, v4")
    k("s_mov_b32 s26, 0xfffff0ff")
    k("s_cmp_eq_u32 s22, 0")
    k("s_cselect_b32 s26, -1, s26")
    k("s_mov_b32 s27, s26")
    R = 16
    for r in range(80): k(f"v_mov_b32 v{R + r}, 0")
    k("s_waitcnt lgkmcnt(0)")
    k.srd(32, 24, 640 * 1920 * 2)
    k(f"s_mul_i32 s28, s{S_WAVE}, {160 * 3840}")
    k("s_mov_b64 exec, s[26:27]")
    for kk in range(10):
        for j in range(8):
            k(f"s_add_u32 s29, s28, {(16 * kk + j) * 3840}")
            k(f"buffer_load_short_d16_hi v{R + 8 * kk + j}, v3, s[32:35], s29 offen")
    k("s_mov_b64 exec, -1")
    k("s_waitcnt vmcnt(0)")
    k(f"v_add_f32 v5, v{R}, v{R + 1}")
    for r in range(2, 80): k(f"v_add_f32 v5, v5, v{R + r}")
    k("v_mov_b32 v6, v5")
    k("s_nop 1")
    k("v_permlane32_swap_b32 v5, v6")
    k("v_add_f32 v5, v5, v6")
    k(f"s_lshl_b32 s29, s{S_WAVE}, 8")
    k("v_lshlrev_b32 v7, 2, v0")
    k("v_add_u32 v8, s29, v7")
    k("ds_write_b32 v8, v5")
    k("s_waitcnt lgkmcnt(0)")
    k("s_barrier")
    for w in range(4): k(f"ds_read_b32 v{8 + w}, v7 offset:{256 * w}")
    k("s_waitcnt lgkmcnt(0)")
    k("v_add_f32 v8, v8, v9"); k("v_add_f32 v10, v10, v11"); k("v_add_f32 v8, v8, v10")
    k(f"v_mul_f32 v8, {hexf(1.0 / 640)}, v8")
    for r in range(80): k(f"v_sub_f32 v{R + r}, v{R + r}, v8")
    k("s_mul_i32 s29, s21, 81920")
    k("s_lshl_b32 s30, s22, 10")
    k("s_add_u32 s29, s29, s30")
    k(f"s_mul_i32 s30, s{S_WAVE}, {10 * 2048}")
    k("s_add_u32 s29, s29, s30")
    k(f"s_add_u32 s29, s29, {PWA}")
    k("v_lshlrev_b32 v7, 4, v0")
    for kk in range(10):
        o = 100 + 4 * (kk & 1)
        for m in range(4):
            k(f"v_cvt_pk_bf16_f32 v{o + m}, v{R + 8 * kk + 2 * m}, v{R + 8 * kk + 2 * m + 1}")
        k(f"buffer_store_dwordx4 {vr(o, 4)}, v7, {srd}, s29 offen")
        k("s_add_u32 s29, s29, 2048")
    k(f"s_branch {k.ref('end')}")

N_PWA = 64
N_PWO = 40
def role_pwo(k):
    k.ptr(KA_WOA, 24)
    k("s_lshr_b32 s21, s20, 3")
    k("s_and_b32 s22, s20, 7")
    k("v_and_b32 v1, 31, v0")
    k("v_lshrrev_b32 v2, 5, v0")
    k("v_lshlrev_b32 v3, 1, v1")
    k(f"v_mul_u32_u24 v4, {8 * 1280}, v2")
    k("v_add_u32 v3, v3, v4")
    k("s_lshl_b32 s29, s21, 6")
    k(f"s_mul_i32 s30, s22, {5 * 16 * 1280}")
    k("s_add_u32 s29, s29, s30")
    k("s_waitcnt lgkmcnt(0)")
    k.srd(32, 24, 640 * 640 * 2)
    R = 16
    for i in range(5):
        for j in range(8):
            k(f"s_add_u32 s30, s29, {(16 * i + j) * 1280}")
            k(f"buffer_load_ushort v{R + 8 * i + j}, v3, s[32:35], s30 offen")
    k("s_mul_i32 s29, s20, 5120")
    k(f"s_add_u32 s29, s29, {PWO}")
    k("v_lshlrev_b32 v7, 4, v0")
    for i in range(5):
        k(f"s_waitcnt vmcnt({8 * (4 - i) + i})")
        o = 64 + 4 * i
        for m in range(4):
            k(f"v_lshl_or_b32 v{o + m}, v{R + 8 * i + 2 * m + 1}, 16, v{R + 8 * i + 2 * m}")
        k(f"buffer_store_dwordx4 {vr(o, 4)}, v7, {srd}, s29 offen offset:{(i % 4) * 1024}")
        if i == 3: k("s_add_u32 s29, s29, 4096")
    k(f"s_branch {k.ref('end')}")

AF_LDS = 4 * 32768
def build_afront(name, layer):
    k = K(name, vgpr=256, sgpr=64)
    k("s_cmp_ge_u32 s2, 256")
    k(f"s_cbranch_scc1 {k.ref('end')}")
    prologue(k, [(KA_AX, 6)] if layer == 0 else [])
    afront_body(k, layer, 2)
    k.lab('end')
    return k, 256, AF_LDS

def afront_body(k, layer, id_s):
    XS = 16
    xsrd = f"s[{XS}:{XS+3}]"
    if layer == 0: k.srd(XS, 6, 2048 * 1280)
    else: k.srd(XS, S_WS, 2048 * 1280, A_X2)
    S_HP, S_RB, S_RH, S_HH, S_XB, S_WB, S_H, S_ONE = 20, 21, 22, 23, 24, 25, 26, 27
    k(f"s_and_b32 s28, s{id_s}, 7")
    k(f"s_lshr_b32 s29, s{id_s}, 3")
    k("s_and_b32 s30, s28, 3"); k("s_lshl_b32 s30, s30, 2"); k("s_and_b32 s31, s29, 3")
    k(f"s_add_u32 s{S_HP}, s30, s31")
    k("s_lshr_b32 s30, s28, 2"); k("s_lshl_b32 s30, s30, 3"); k("s_lshr_b32 s31, s29, 2")
    k(f"s_add_u32 s{S_RB}, s30, s31")
    k(f"s_lshr_b32 s{S_RH}, s{S_WAVE}, 1")
    k(f"s_and_b32 s{S_HH}, s{S_WAVE}, 1")
    k(f"s_lshl_b32 s{S_H}, s{S_HP}, 1")
    k(f"s_add_u32 s{S_H}, s{S_H}, s{S_HH}")
    k(f"s_mov_b32 s{S_ONE}, 0x3f803f80")
    k(f"s_lshl_b32 s28, s{S_RB}, 7")
    k(f"s_lshl_b32 s29, s{S_WAVE}, 5")
    k("s_add_u32 s28, s28, s29")
    k(f"s_mul_i32 s{S_XB}, s28, 1280")
    k(f"s_lshl_b32 s28, s{S_HP}, 1")
    k(f"s_add_u32 s28, s28, s{S_RH}")
    k(f"s_mul_i32 s{S_WB}, s28, 81920")
    k(f"s_lshl_b32 s29, s{S_HH}, 12")
    k(f"s_add_u32 s{S_WB}, s{S_WB}, s29")
    k(f"s_add_u32 s{S_WB}, s{S_WB}, {PWA}")
    V_L16, V_XE, V_XO, V_WR, V_XR = 1, 2, 3, 4, 6
    k(f"v_lshlrev_b32 v{V_L16}, 4, v0")
    k("v_lshrrev_b32 v16, 3, v0")
    k("v_mul_u32_u24 v16, 1280, v16")
    k("v_and_b32 v17, 7, v0")
    k("v_lshrrev_b32 v18, 4, v0")
    k("v_xor_b32 v19, v17, v18")
    k(f"v_lshl_add_u32 v{V_XE}, v19, 4, v16")
    k("v_xor_b32 v19, 4, v19")
    k(f"v_lshl_add_u32 v{V_XO}, v19, 4, v16")
    def dma(s):
        buf = (s % 4) * 32768
        k(f"s_lshl_b32 s28, s{S_WAVE}, 12")
        if buf: k(f"s_add_u32 s28, s28, {buf}")
        k("s_mov_b32 m0, s28")
        k(f"s_add_u32 s29, s{S_XB}, {s * 128}")
        for u in range(4):
            k(f"buffer_load_dwordx4 v{V_XE if u % 2 == 0 else V_XO}, {xsrd}, s29 offen offset:{u * 1024} lds")
            if u < 3: k(f"s_add_u32 s29, s29, {10240 - 1024}")
        k("s_add_u32 s28, s28, 16384")
        k("s_mov_b32 m0, s28")
        k(f"s_add_u32 s29, s{S_WB}, {s * 8192}")
        for u in range(4):
            k(f"buffer_load_dwordx4 v{V_L16}, {srd}, s29 offen offset:{u * 1024} lds")
    for s in range(3): dma(s)
    k("v_and_b32 v16, 31, v0")
    k("v_lshrrev_b32 v17, 5, v0")
    k("v_lshrrev_b32 v18, 1, v16")
    k("v_and_b32 v18, 7, v18")
    k("v_xor_b32 v18, v18, v17")
    k("v_lshlrev_b32 v18, 4, v18")
    k("v_lshl_add_u32 v18, v16, 7, v18")
    k(f"s_lshl_b32 s28, s{S_RH}, 13")
    k("v_add_u32 v18, s28, v18")
    for kp in range(4):
        k(f"v_xor_b32 v{V_XR + kp}, {32 * kp}, v18")
        k(f"v_add_u32 v{V_XR + 4 + kp}, 65536, v{V_XR + kp}")
    k(f"s_lshl_b32 s28, s{S_HH}, 13")
    k("s_add_u32 s28, s28, 16384")
    k(f"v_add_u32 v{V_WR}, s28, v{V_L16}")
    k(f"v_add_u32 v{V_WR + 1}, 65536, v{V_WR}")
    FR = 32
    D0, D1, DQ = 64, 96, 128
    PA, PB = 160, 176
    ST = 20
    for r in range(4): k(f"v_mov_b32 v{ST + r}, 0")
    def reads(s, kp):
        o = FR + 16 * ((4 * s + kp) & 1)
        hi = (s % 4) >> 1; off = (s & 1) * 32768
        return [f"ds_read_b128 {vr(o + 4 * rt, 4)}, v{V_XR + 4 * hi + kp} offset:{off + rt * 4096}" for rt in range(2)] + \
               [f"ds_read_b128 {vr(o + 8 + 4 * t, 4)}, v{V_WR + hi} offset:{off + kp * 2048 + t * 1024}" for t in range(2)]
    k("s_waitcnt vmcnt(16)")
    k("s_barrier")
    for it in reads(0, 0): k(it)
    def body(hh):
        for s in range(10):
            for kp in range(4):
                o = FR + 16 * ((4 * s + kp) & 1)
                X = lambda rt: vr(o + 4 * rt, 4)
                W = lambda t: vr(o + 8 + 4 * t, 4)
                first = (s == 0 and kp == 0)
                k("s_waitcnt lgkmcnt(0)")
                nxt = reads(s, kp + 1) if kp < 3 else (reads(s + 1, 0) if s < 9 else [])
                xs = o + 4 * hh
                dots = []
                for r in range(4):
                    dots.append(f"v_dot2c_f32_bf16 v{ST + (r & 1)}, s{S_ONE}, v{xs + r}")
                    dots.append(f"v_dot2c_f32_bf16 v{ST + 2 + (r & 1)}, v{xs + r}, v{xs + r}")
                mf = []
                for rt in range(2):
                    for (d, a, b) in ((D0, X(rt), W(0)), (D1, X(rt), W(1)), (DQ, W(1), X(rt))):
                        dd = vr(d + 16 * rt, 16)
                        mf.append(f"v_mfma_f32_32x32x16_bf16 {dd}, {a}, {b}, {'0' if first else dd}")
                gaps = [[] for _ in range(6)]
                if kp == 3:
                    pass
                for i, it in enumerate(nxt): gaps[1 + i].append(it)
                for i, it in enumerate(dots): gaps[(i * 6) // 8].append(it)
                for i in range(6):
                    k(mf[i])
                    for it in gaps[i]: k(it)
                    if kp == 2 and i == 5 and s < 9:
                        k(f"s_waitcnt vmcnt({8 if s + 2 <= 9 else 0})")
                        k("s_barrier")
                        if s + 3 <= 9: dma(s + 3)
    k(f"s_cmp_eq_u32 s{S_HH}, 1")
    k(f"s_cbranch_scc1 {k.ref('af_h1')}")
    body(0)
    k(f"s_branch {k.ref('af_epi')}")
    k.lab('af_h1')
    body(1)
    k.lab('af_epi')
    EL = 65536
    k(f"v_add_f32 v{ST}, v{ST}, v{ST+1}")
    k(f"v_add_f32 v{ST+2}, v{ST+2}, v{ST+3}")
    k(f"v_mov_b32 v{ST+1}, v{ST}")
    k(f"v_mov_b32 v{ST+3}, v{ST+2}")
    k("s_nop 1")
    k(f"v_permlane32_swap_b32 v{ST}, v{ST+1}")
    k(f"v_permlane32_swap_b32 v{ST+2}, v{ST+3}")
    k(f"v_add_f32 v{ST}, v{ST}, v{ST+1}")
    k(f"v_add_f32 v{ST+2}, v{ST+2}, v{ST+3}")
    k(f"v_mul_f32 v{ST}, {hexf(1.0/640)}, v{ST}")
    k(f"v_mul_f32 v{ST+1}, v{ST}, v{ST}")
    k(f"v_fma_f32 v{ST+2}, v{ST+2}, {hexf(1.0/640)}, -v{ST+1}" if False else f"v_mul_f32 v{ST+2}, {hexf(1.0/640)}, v{ST+2}")
    k(f"v_sub_f32 v{ST+2}, v{ST+2}, v{ST+1}")
    k(f"v_max_f32 v{ST+2}, 0, v{ST+2}")
    k(f"v_add_f32 v{ST+2}, 0x3727c5ac, v{ST+2}")
    k(f"v_rsq_f32 v{ST+2}, v{ST+2}")
    k("v_and_b32 v16, 31, v0")
    k(f"s_lshl_b32 s28, s{S_WAVE}, 7")
    k(f"s_add_u32 s28, s28, {EL}")
    k("v_lshl_add_u32 v17, v16, 2, s28")
    k(f"ds_write_b32 v17, v{ST+2}")
    k("s_waitcnt lgkmcnt(0)")
    k("s_barrier")
    RS = 192; RL = 224
    k(f"s_lshl_b32 s28, s{S_RH}, 8")
    k(f"s_add_u32 s28, s28, {EL}")
    k("v_lshl_add_u32 v17, v16, 2, s28")
    k("v_lshrrev_b32 v18, 5, v0")
    k("v_lshlrev_b32 v18, 4, v18")
    k("v_add_u32 v18, s28, v18")
    for rt in range(2):
        k(f"ds_read_b32 v{RL + rt}, v17 offset:{rt * 128}")
        for q in range(4):
            k(f"ds_read_b128 {vr(RS + 16 * rt + 4 * q, 4)}, v18 offset:{rt * 128 + q * 32}")
    C0, C1, CE = 226, 227, 228
    k("v_and_b32 v16, 31, v0")
    k(f"v_mov_b32 v{CE}, {hexf(E6)}")
    k("v_cmp_gt_u32 vcc, 20, v16")
    k("s_mov_b64 s[30:31], vcc")
    k("s_nop 0")
    k(f"v_cndmask_b32 v{C0}, 0, v{CE}, vcc")
    k("v_cmp_eq_u32 vcc, 8, v16")
    k("s_nop 1")
    k(f"v_cndmask_b32 v{C1}, 0, 1.0, vcc")
    k("s_waitcnt lgkmcnt(0)")
    F0, F1, T = 32, 40, 48
    def phi(x, acc, scale, c, t):
        k(f"v_fma_f32 v{x}, v{acc}, v{scale}, v{c}")
        k(f"v_mul_f32 v{t}, {hexf(LOG2E)}, v{x}")
        k(f"v_exp_f32 v{t}, v{t} clamp")
        k(f"v_max_f32 v{t+1}, v{x}, v{CE}")
    for rt in range(2):
        a0 = D0 + 16 * rt; a1 = D1 + 16 * rt
        for r in range(16):
            t = T + 2 * (r & 3)
            phi(a0 + r, a0 + r, RS + 16 * rt + r, C0, t)
            k(f"v_fma_f32 v{a1 + r}, v{a1 + r}, v{RS + 16 * rt + r}, v{C1}")
            k(f"v_add_f32 v{t}, v{t}, v{t+1}")
            k(f"v_cndmask_b32 v{a0 + r}, v{a0 + r}, v{t}, s[30:31]")
        for m in range(8):
            k(f"v_cvt_pk_bf16_f32 v{F0 + m}, v{a0 + 2 * m}, v{a0 + 2 * m + 1}")
            k(f"v_cvt_pk_bf16_f32 v{F1 + m}, v{a1 + 2 * m}, v{a1 + 2 * m + 1}")
        k("s_nop 1")
        for half in range(2):
            c0 = "0" if (rt == 0 and half == 0) else None
            k(f"v_mfma_f32_32x32x16_bf16 {vr(PA, 16)}, {vr(F0 + 4 * half, 4)}, {vr(F0 + 4 * half, 4)}, {c0 or vr(PA, 16)}")
            k(f"v_mfma_f32_32x32x16_bf16 {vr(PB, 16)}, {vr(F1 + 4 * half, 4)}, {vr(F0 + 4 * half, 4)}, {c0 or vr(PB, 16)}")
    def qphi(rt):
        b = DQ + 16 * rt
        for r in range(4, 16):
            t = T + 2 * (r & 3)
            phi(b + r, b + r, RL + rt, CE, t)
            k(f"v_add_f32 v{b + r}, v{t}, v{t+1}")
        for m in range(2, 8):
            k(f"v_cvt_pk_bf16_f32 v{b + m}, v{b + 2 * m}, v{b + 2 * m + 1}")
        k(f"v_mov_b32 v{b}, 0"); k(f"v_mov_b32 v{b + 1}, 0")
    qphi(0)
    RAW = EL + 1024
    k(f"s_lshl_b32 s28, s{S_WAVE}, 13")
    k(f"s_add_u32 s28, s28, {RAW}")
    k(f"v_add_u32 v17, s28, v{V_L16}")
    for p_, base in ((0, PA), (1, PB)):
        for q in range(4):
            k(f"ds_write_b128 v17, {vr(base + 4 * q, 4)} offset:{p_ * 4096 + q * 1024}")
    t_, hh_, rem, e_, d_, m_, la, ga = range(32, 40)
    k(f"s_lshl_b32 s28, s{S_WAVE}, 6")
    k(f"v_add_u32 v{t_}, s28, v0")
    k(f"v_cmp_le_u32 vcc, 105, v{t_}")
    k("s_nop 1")
    k(f"v_cndmask_b32 v{hh_}, 0, 1, vcc")
    k(f"v_mul_u32_u24 v{rem}, 105, v{hh_}")
    k(f"v_sub_u32 v{rem}, v{t_}, v{rem}")
    k(f"v_mul_u32_u24 v{e_}, 13108, v{rem}")
    k(f"v_lshrrev_b32 v{e_}, 16, v{e_}")
    k(f"v_mul_u32_u24 v{d_}, 5, v{e_}")
    k(f"v_sub_u32 v{d_}, v{rem}, v{d_}")
    k(f"v_add_u32 v{m_}, 20, v{e_}")
    k(f"v_subrev_u32 v{la}, 12, v{e_}")
    k(f"v_cmp_gt_u32 vcc, 12, v{e_}")
    k("s_nop 1")
    k(f"v_cndmask_b32 v{m_}, v{la}, v{m_}, vcc")
    k(f"v_cndmask_b32 v{la}, 1, 0, vcc")
    k(f"v_lshlrev_b32 v{la}, 12, v{la}")
    k(f"v_lshl_add_u32 v{la}, v{hh_}, 13, v{la}")
    k(f"v_lshrrev_b32 v{ga}, 3, v{m_}")
    k(f"v_lshl_add_u32 v{la}, v{ga}, 10, v{la}")
    k(f"v_bfe_u32 v{ga}, v{m_}, 2, 1")
    k(f"v_lshlrev_b32 v{ga}, 5, v{ga}")
    k(f"v_lshl_add_u32 v{ga}, v{d_}, 2, v{ga}")
    k(f"v_lshl_add_u32 v{la}, v{ga}, 4, v{la}")
    k(f"v_and_b32 v{ga}, 3, v{m_}")
    k(f"v_lshl_add_u32 v{la}, v{ga}, 2, v{la}")
    k(f"v_min_u32 v{la}, {8192 * 2 - 64}, v{la}")
    k(f"v_add_u32 v{la}, {RAW}, v{la}")
    k("s_waitcnt lgkmcnt(0)")
    k("s_barrier")
    for hlf in range(2):
        for i in range(4):
            k(f"ds_read_b32 v{40 + 4 * hlf + i}, v{la} offset:{hlf * 16384 + i * 16}")
    k(f"s_lshl_b32 s28, s{S_HP}, 4")
    k(f"s_add_u32 s28, s28, s{S_RB}")
    k("s_lshl_b32 s28, s28, 12")
    k(f"s_add_u32 s28, s28, {KVP + layer * KVP_L}")
    k(f"v_lshlrev_b32 v{ga}, 4, v{t_}")
    k(f"v_cmp_gt_u32 vcc, 210, v{t_}")
    k("s_mov_b64 s[32:33], vcc")
    k("s_waitcnt lgkmcnt(0)")
    for i in range(4): k(f"v_add_f32 v{40 + i}, v{40 + i}, v{44 + i}")
    k("s_mov_b64 exec, s[32:33]")
    k(f"buffer_store_dwordx4 v[40:43], v{ga}, {srd}, s28 offen sc1")
    k("s_mov_b64 exec, -1")
    qphi(1)
    k(f"s_mul_i32 s29, s{S_H}, 5")
    k("v_lshrrev_b32 v17, 5, v0")
    k("v_add_u32 v17, s29, v17")
    k("v_lshrrev_b32 v18, 1, v17")
    k("v_lshlrev_b32 v18, 9, v18")
    k("v_and_b32 v17, 1, v17")
    k("v_lshl_add_u32 v18, v17, 3, v18")
    k("v_and_b32 v16, 31, v0")
    k("v_lshl_add_u32 v14, v16, 4, v18")
    KS = 64
    k("v_mul_u32_u24 v15, 80, v16")
    k("v_lshrrev_b32 v17, 5, v0")
    k("v_lshl_add_u32 v15, v17, 4, v15")
    k(f"s_mul_i32 s29, s{S_HH}, 1680")
    k(f"s_add_u32 s29, s29, {KS - 16}")
    k("v_add_u32 v15, s29, v15")
    R0 = 48
    for r in range(12): k(f"v_mov_b32 v{R0 + r}, 0")
    k("s_waitcnt vmcnt(0)")
    k("s_barrier")
    k(f"s_cmp_lg_u32 s{S_WAVE}, 0")
    k(f"s_cbranch_scc1 {k.ref('af_go')}")
    k(f"s_lshl_b32 s29, s{S_HP}, 7")
    k(f"s_add_u32 s29, s29, {CT_FLAG + layer * FL_LAYER + FL_AF}")
    k(f"s_lshl_b32 s30, s{S_RB}, 2")
    k("v_mov_b32 v16, s30")
    k("v_mov_b32 v17, 1")
    k("s_mov_b64 exec, 1")
    k(f"buffer_store_dword v17, v16, {srd}, s29 offen sc1")
    k("s_mov_b64 exec, 0xffff")
    k("v_lshlrev_b32 v16, 2, v0")
    k(f"s_mov_b32 s31, {SPIN}")
    k.lab('af_poll')
    k(f"buffer_load_dword v17, v16, {srd}, s29 offen sc1")
    k("s_waitcnt vmcnt(0)")
    k("v_cmp_eq_u32 vcc, 0, v17")
    k("s_sub_u32 s31, s31, 1")
    k(f"s_cbranch_scc1 {k.ref('af_fail')}")
    k(f"s_cbranch_vccnz {k.ref('af_poll')}")
    k(f"s_branch {k.ref('af_ok')}")
    k.lab('af_fail')
    k.ptr(KA_DBG, 34)
    k("s_waitcnt lgkmcnt(0)")
    k.srd(36, 34, 256)
    k("s_mov_b64 exec, 1")
    k("v_mov_b32 v16, 0"); k("v_mov_b32 v17, 0xdead")
    k("buffer_store_dword v17, v16, s[36:39], 0 offen")
    k.lab('af_ok')
    k("s_mov_b64 exec, -1")
    k.lab('af_go')
    k("s_barrier")
    PS = 160
    k(f"s_lshl_b32 s28, s{S_HP}, 16")
    k(f"s_add_u32 s28, s28, {KVP + layer * KVP_L}")
    k("s_mov_b64 exec, s[32:33]")
    for i in range(16):
        k(f"buffer_load_dwordx4 {vr(PS + 4 * i, 4)}, v{ga}, {srd}, s28 offen sc1")
        if i < 15: k("s_add_u32 s28, s28, 4096")
    k("s_mov_b64 exec, -1")
    for step in (1, 2, 4, 8):
        for i in range(0, 16, 2 * step):
            if step == 1: k(f"s_waitcnt vmcnt({14 - i})")
            for c in range(4):
                k(f"v_add_f32 v{PS + 4 * i + c}, v{PS + 4 * i + c}, v{PS + 4 * (i + step) + c}")
    k(f"v_add_u32 v{ga}, {KS}, v{ga}")
    k("s_mov_b64 exec, s[32:33]")
    k(f"ds_write_b128 v{ga}, {vr(PS, 4)}")
    k("s_mov_b64 exec, -1")
    k("s_waitcnt lgkmcnt(0)")
    k("s_barrier")
    k("s_mov_b32 exec_lo, 0x1fffff"); k("s_mov_b32 exec_hi, 0x1fffff")
    k(f"ds_read_b128 {vr(R0 + 4, 4)}, v15 offset:32")
    k(f"ds_read_b128 {vr(R0 + 8, 4)}, v15 offset:64")
    k("s_mov_b32 exec_lo, 0")
    k(f"ds_read_b128 {vr(R0, 4)}, v15")
    k("s_mov_b64 exec, -1")
    AK = 32
    k(f"v_mov_b32 v{AK}, 0"); k(f"v_mov_b32 v{AK + 1}, 0")
    k("s_waitcnt lgkmcnt(0)")
    for m in range(6):
        k(f"v_cvt_pk_bf16_f32 v{AK + 2 + m}, v{R0 + 2 * m}, v{R0 + 2 * m + 1}")
    k("s_nop 1")
    for rt in range(2):
        o = D0 + 16 * rt; b = DQ + 16 * rt
        k(f"v_mfma_f32_32x32x16_bf16 {vr(o, 16)}, {vr(AK, 4)}, {vr(b, 4)}, 0")
        k(f"v_mfma_f32_32x32x16_bf16 {vr(o, 16)}, {vr(AK + 4, 4)}, {vr(b + 4, 4)}, {vr(o, 16)}")
    k(f"s_lshl_b32 s28, s{S_RB}, 2")
    k(f"s_lshl_b32 s29, s{S_RH}, 1")
    k("s_add_u32 s28, s28, s29")
    k(f"s_mul_i32 s28, s28, {XN_SEG}")
    k(f"s_add_u32 s28, s28, {OA}")
    k("s_nop 7"); k("s_nop 3")
    for rt in range(2):
        o = D0 + 16 * rt
        if rt == 1: k("s_nop 7")
        k(f"v_add_f32 v40, {hexf(E6)}, v{o + 8}")
        k("v_mov_b32 v41, v40")
        k("s_nop 1")
        k("v_permlane32_swap_b32 v40, v41")
        k("v_rcp_f32 v41, v41")
        k("s_nop 0")
        for r in range(12): k(f"v_mul_f32 v{o + r}, v{o + r}, v41")
        for m in range(6): k(f"v_cvt_pk_bf16_f32 v{42 + 6 * rt + m}, v{o + 2 * m}, v{o + 2 * m + 1}")
        for q in range(3):
            if q == 2: k("s_mov_b32 exec_hi, 0")
            k(f"buffer_store_dwordx2 {vr(42 + 6 * rt + 2 * q, 2)}, v14, {srd}, s28 offen offset:{q * 512}")
        k("s_mov_b32 exec_hi, -1")
        if rt == 0: k(f"s_add_u32 s28, s28, {XN_SEG}")

AB_SEG = 14; AB_END = 15; AB_BUF = 16; AB_NB = 17; AB_DMA = 18; AB_RES = 19; AB_FLG = 20; AB_CT = 21
AB_RSRD = 52
AB_LDS = 3 * XN_SEG

def role_aback(k, p_s, layer_s, fl_s, flags=True):
    L = lambda s: k.ref('ab_' + s)
    lab = lambda s: k.lab('ab_' + s)
    V_L16, V_RD, V_IO, V_FA, V_ONE = 1, 2, 3, 4, 5
    RES = 8; RING = 16; NR = 8; ACC = 48; OUT = 80; T = 88
    rsrd = f"s[{AB_RSRD}:{AB_RSRD+3}]"
    k.ptr(KA_AX, AB_RSRD)
    k(f"v_lshlrev_b32 v{V_L16}, 4, v0")
    k(f"s_lshl_b32 s{AB_CT}, s{p_s}, 2")
    k(f"s_add_u32 s{AB_CT}, s{AB_CT}, s{S_WAVE}")
    k(f"s_mul_i32 s24, s{AB_CT}, 40960")
    k(f"s_add_u32 s24, s24, {PWO}")
    for kap in range(40):
        if kap % 4 == 0 and kap: k("s_add_u32 s24, s24, 4096")
        k(f"buffer_load_dwordx4 {ar(4 * kap, 4)}, v{V_L16}, {srd}, s24 offen offset:{(kap % 4) * 1024}")
    k(f"s_add_u32 s24, s{S_WS}, {A_X2}")
    k(f"s_addc_u32 s25, s{S_WS+1}, 0")
    k("s_waitcnt lgkmcnt(0)")
    k(f"s_cmp_eq_u32 s{layer_s}, 0")
    k(f"s_cselect_b32 s{AB_RSRD}, s{AB_RSRD}, s24")
    k(f"s_cselect_b32 s{AB_RSRD+1}, s{AB_RSRD+1}, s25")
    k(f"s_mov_b32 s{AB_RSRD+2}, {2048 * 1280}")
    k(f"s_mov_b32 s{AB_RSRD+3}, 0x00020000")
    k("v_and_b32 v6, 31, v0")
    k("v_lshrrev_b32 v7, 5, v0")
    k("v_mul_u32_u24 v6, 1280, v6")
    k(f"v_lshl_add_u32 v{V_IO}, v7, 4, v6")
    k(f"s_mul_i32 s{AB_RES}, s{AB_SEG}, {32 * 1280}")
    k(f"s_lshl_b32 s24, s{AB_CT}, 6")
    k(f"s_add_u32 s{AB_RES}, s{AB_RES}, s24")
    k(f"s_lshl_b32 s{AB_FLG}, s{AB_SEG}, 7")
    k(f"s_lshl_b32 s24, s{AB_CT}, 2")
    k(f"s_add_u32 s{AB_FLG}, s{AB_FLG}, s24")
    k(f"s_add_u32 s{AB_FLG}, s{AB_FLG}, {FL_AB}")
    k(f"v_mov_b32 v{V_ONE}, 1")
    k(f"v_mov_b32 v{V_FA}, 0")
    k(f"s_mul_i32 s{AB_DMA}, s{S_WAVE}, 10240")
    k(f"s_add_u32 s{AB_DMA}, s{AB_DMA}, {OA}")
    def dma(seg_s):
        k(f"s_min_u32 s24, s{seg_s}, 63")
        k(f"s_mul_i32 s24, s24, {XN_SEG}")
        k(f"s_add_u32 s24, s24, s{AB_DMA}")
        k(f"s_mul_i32 s25, s{S_WAVE}, 10240")
        k(f"s_add_u32 s25, s25, s{AB_NB}")
        for grp in range(3):
            k(f"s_mov_b32 m0, s25")
            k("s_nop 0")
            for i in range(4 if grp < 2 else 2):
                k(f"buffer_load_dwordx4 v{V_L16}, {srd}, s24 offen offset:{i * 1024} lds")
            if grp < 2:
                k("s_add_u32 s24, s24, 4096"); k("s_add_u32 s25, s25, 4096")
    def nextbuf(dst, src):
        k(f"s_add_u32 s{dst}, s{src}, {XN_SEG}")
        k(f"s_cmp_eq_u32 s{dst}, {AB_LDS}")
        k(f"s_cselect_b32 s{dst}, 0, s{dst}")
    def flag():
        if not flags: return
        k("s_mov_b64 exec, 1")
        k(f"s_add_u32 s26, s{fl_s}, s{AB_FLG}")
        k(f"buffer_store_dword v{V_ONE}, v{V_FA}, {srd}, s26 offen sc1")
        k("s_mov_b64 exec, -1")
        k(f"s_add_u32 s{AB_FLG}, s{AB_FLG}, 128")
    k(f"s_mov_b32 s{AB_NB}, 0")
    dma(AB_SEG)
    k(f"s_mov_b32 s{AB_NB}, {XN_SEG}")
    k(f"s_add_u32 s23, s{AB_SEG}, 1")
    dma(23)
    k(f"s_mov_b32 s{AB_NB}, {2 * XN_SEG}")
    k(f"s_mov_b32 s{AB_BUF}, 0")
    k("s_waitcnt vmcnt(10)")
    SC1 = " sc1" if flags else ""
    def segment(first):
        k("s_barrier")
        k(f"v_add_u32 v{V_RD}, s{AB_BUF}, v{V_L16}")
        for j in range(2):
            k(f"buffer_load_dwordx4 {vr(RES + 4 * j, 4)}, v{V_IO}, {rsrd}, s{AB_RES} offen offset:{32 * j}")
        k(f"s_add_u32 s23, s{AB_SEG}, 2")
        dma(23)
        nextbuf(AB_NB, AB_NB)
        PRE = NR - 2
        for r in range(PRE): k(f"ds_read_b128 {vr(RING + 4 * r, 4)}, v{V_RD} offset:{r * 1024}")
        for kap in range(40):
            nk = kap + PRE
            if nk < 40:
                k(f"ds_read_b128 {vr(RING + 4 * (nk % NR), 4)}, v{V_RD} offset:{nk * 1024}")
            k(f"s_waitcnt lgkmcnt({min(PRE, 39 - kap)})")
            d = vr(ACC + 16 * (kap & 1), 16)
            k(f"v_mfma_f32_32x32x16_bf16 {d}, {ar(4 * kap, 4)}, {vr(RING + 4 * (kap % NR), 4)}, {'0' if kap < 2 else d}")
            if kap == 16 and not first and flags:
                k("s_waitcnt vmcnt(12)")
                flag()
        k(f"s_waitcnt vmcnt({11 if (flags and not first) else 10})")
        k("s_nop 7"); k("s_nop 3")
        for r in range(16): k(f"v_add_f32 v{ACC + r}, v{ACC + r}, v{ACC + 16 + r}")
        for j in range(2):
            o = OUT + 4 * j
            for q in range(2):
                k(f"v_cvt_pk_bf16_f32 v{o + 2 * q}, v{ACC + 8 * j + 4 * q}, v{ACC + 8 * j + 4 * q + 1}")
                k(f"v_cvt_pk_bf16_f32 v{o + 2 * q + 1}, v{ACC + 8 * j + 4 * q + 2}, v{ACC + 8 * j + 4 * q + 3}")
            k("s_nop 1")
            k(f"v_permlane32_swap_b32 v{o}, v{o + 2}")
            k(f"v_permlane32_swap_b32 v{o + 1}, v{o + 3}")
            k("s_nop 1")
            for r in range(4):
                a, b, t0, t1 = T + 4 * (r & 1), T + 4 * (r & 1) + 1, T + 4 * (r & 1) + 2, T + 4 * (r & 1) + 3
                k(f"v_lshlrev_b32 v{a}, 16, v{o + r}")
                k(f"v_and_b32 v{b}, 0xffff0000, v{o + r}")
                k(f"v_lshlrev_b32 v{t0}, 16, v{RES + 4 * j + r}")
                k(f"v_and_b32 v{t1}, 0xffff0000, v{RES + 4 * j + r}")
                k(f"v_add_f32 v{a}, v{a}, v{t0}")
                k(f"v_add_f32 v{b}, v{b}, v{t1}")
                k(f"v_cvt_pk_bf16_f32 v{o + r}, v{a}, v{b}")
            k(f"s_add_u32 s26, s{AB_RES}, {A_X1}")
            k(f"buffer_store_dwordx4 {vr(o, 4)}, v{V_IO}, {srd}, s26 offen offset:{32 * j}{SC1}")
        k(f"s_add_u32 s{AB_RES}, s{AB_RES}, {32 * 1280}")
        nextbuf(AB_BUF, AB_BUF)
        k(f"s_add_u32 s{AB_SEG}, s{AB_SEG}, 1")
    segment(True)
    k(f"s_cmp_ge_u32 s{AB_SEG}, s{AB_END}")
    k(f"s_cbranch_scc1 {L('fin')}")
    lab('loop')
    segment(False)
    k(f"s_cmp_lt_u32 s{AB_SEG}, s{AB_END}")
    k(f"s_cbranch_scc1 {L('loop')}")
    lab('fin')
    k("s_waitcnt vmcnt(0) lgkmcnt(0)")
    flag()
    k("s_barrier")

def role_lnw(k, first_s, nstride, fl_s, spin_s, bail, wait=True):
    L = lambda s: k.ref('ln_' + s)
    lab = lambda s: k.lab('ln_' + s)
    SEG = 14; ONE = 16
    V_SRC, V_DST, V_FA, V_ONE = 1, 2, 3, 4
    X = 16; U = 64; O = 72; ST = 8
    k(f"s_mov_b32 s{SEG}, s{first_s}")
    k(f"s_mov_b32 s{ONE}, 0x3f803f80")
    k("v_lshrrev_b32 v6, 3, v0")
    k("v_and_b32 v7, 7, v0")
    k(f"v_mul_u32_u24 v{V_SRC}, 1280, v6")
    k(f"v_lshl_add_u32 v{V_SRC}, v7, 5, v{V_SRC}")
    k(f"v_lshlrev_b32 v{V_DST}, 10, v7")
    k(f"v_lshl_add_u32 v{V_DST}, v6, 4, v{V_DST}")
    k(f"v_lshlrev_b32 v{V_FA}, 2, v0")
    k(f"v_mov_b32 v{V_ONE}, 1")
    lab('seg')
    if wait:
        k(f"s_lshl_b32 s17, s{SEG}, 7")
        k(f"s_add_u32 s17, s17, s{fl_s}")
        k(f"s_add_u32 s17, s17, {FL_AB}")
        k("s_mov_b64 exec, 0xfffff")
        lab('poll')
        k(f"buffer_load_dword v5, v{V_FA}, {srd}, s17 offen sc1")
        k("s_waitcnt vmcnt(0)")
        k("v_cmp_eq_u32 vcc, 0, v5")
        k(f"s_sub_u32 s{spin_s}, s{spin_s}, 1")
        k(f"s_cbranch_scc1 {bail}")
        k(f"s_cbranch_vccnz {L('poll')}")
        k("s_mov_b64 exec, -1")
    k(f"s_lshl_b32 s18, s{SEG}, 5")
    k(f"s_lshl_b32 s19, s{S_WAVE}, 3")
    k("s_add_u32 s18, s18, s19")
    k("s_mul_i32 s18, s18, 1280")
    k(f"s_add_u32 s18, s18, {A_X1}")
    SC1 = " sc1" if wait else ""
    for i in range(5):
        for hlf in range(2):
            k(f"buffer_load_dwordx4 {vr(X + 8 * i + 4 * hlf, 4)}, v{V_SRC}, {srd}, s18 offen offset:{i * 256 + hlf * 16}{SC1}")
    for r in range(4): k(f"v_mov_b32 v{ST + r}, 0")
    for i in range(5):
        for hlf in range(2):
            k(f"s_waitcnt vmcnt({9 - 2 * i - hlf})")
            for r in range(4):
                x = X + 8 * i + 4 * hlf + r
                k(f"v_dot2c_f32_bf16 v{ST + (r & 1)}, s{ONE}, v{x}")
                k(f"v_dot2c_f32_bf16 v{ST + 2 + (r & 1)}, v{x}, v{x}")
    k("s_nop 3")
    k(f"v_add_f32 v{ST}, v{ST}, v{ST+1}")
    k(f"v_add_f32 v{ST+2}, v{ST+2}, v{ST+3}")
    for ctl in ("quad_perm:[1,0,3,2]", "quad_perm:[2,3,0,1]", "row_half_mirror"):
        k("s_nop 1")
        k(f"v_add_f32_dpp v{ST}, v{ST}, v{ST} {ctl} row_mask:0xf bank_mask:0xf")
        k(f"v_add_f32_dpp v{ST+2}, v{ST+2}, v{ST+2} {ctl} row_mask:0xf bank_mask:0xf")
    k(f"v_mul_f32 v{ST}, {hexf(1.0/640)}, v{ST}")
    k(f"v_mul_f32 v{ST+1}, v{ST}, v{ST}")
    k(f"v_mul_f32 v{ST+2}, {hexf(1.0/640)}, v{ST+2}")
    k(f"v_sub_f32 v{ST+2}, v{ST+2}, v{ST+1}")
    k(f"v_max_f32 v{ST+2}, 0, v{ST+2}")
    k(f"v_add_f32 v{ST+2}, 0x3727c5ac, v{ST+2}")
    k(f"v_rsq_f32 v{ST+2}, v{ST+2}")
    k("s_nop 0")
    k(f"v_mul_f32 v{ST}, v{ST}, v{ST+2}")
    k(f"v_sub_f32 v{ST}, 0, v{ST}")
    k(f"s_mul_i32 s18, s{SEG}, {XN_SEG}")
    k(f"s_lshl_b32 s19, s{S_WAVE}, 7")
    k("s_add_u32 s18, s18, s19")
    k(f"s_add_u32 s18, s18, {XN}")
    POS = [0, 2, 4, 6, 1, 3, 5, 7]
    for i in range(5):
        o = O + 8 * (i & 1)
        for d in range(8):
            x = X + 8 * i + d; u = U + 2 * (d & 3)
            k(f"v_lshlrev_b32 v{u}, 16, v{x}")
            k(f"v_and_b32 v{u+1}, 0xffff0000, v{x}")
            k(f"v_fma_f32 v{u}, v{u}, v{ST+2}, v{ST}")
            k(f"v_fma_f32 v{u+1}, v{u+1}, v{ST+2}, v{ST}")
            k(f"v_cvt_pk_bf16_f32 v{o + POS[d]}, v{u}, v{u+1}")
        for b in range(2):
            k(f"buffer_store_dwordx4 {vr(o + 4 * b, 4)}, v{V_DST}, {srd}, s18 offen offset:{b * 512}{SC1}")
        if i < 4: k("s_add_u32 s18, s18, 8192")
    if wait:
        k("s_waitcnt vmcnt(0)")
        k(f"s_lshl_b32 s17, s{SEG}, 4")
        k(f"s_lshl_b32 s19, s{S_WAVE}, 2")
        k("s_add_u32 s17, s17, s19")
        k(f"s_add_u32 s17, s17, s{fl_s}")
        k(f"s_add_u32 s17, s17, {FL_LN}")
        k("v_mov_b32 v5, 0")
        k("s_mov_b64 exec, 1")
        k(f"buffer_store_dword v{V_ONE}, v5, {srd}, s17 offen sc1")
        k("s_mov_b64 exec, -1")
    k(f"s_add_u32 s{SEG}, s{SEG}, {nstride}")
    k(f"s_cmp_lt_u32 s{SEG}, 64")
    k(f"s_cbranch_scc1 {L('seg')}")

def build_aback_test(name):
    k = K(name, vgpr=128, sgpr=64, agpr=160)
    k("s_cmp_ge_u32 s2, 160")
    k(f"s_cbranch_scc1 {k.ref('end')}")
    prologue(k)
    k("s_mov_b32 s49, %d" % (0 if name.endswith('1') else 1))
    k("s_mul_i32 s28, s2, 13108"); k("s_lshr_b32 s28, s28, 16")
    k("s_mul_i32 s29, s28, 5"); k("s_sub_u32 s29, s2, s29")
    k(f"s_lshl_b32 s{AB_SEG}, s28, 1")
    k(f"s_add_u32 s{AB_END}, s{AB_SEG}, 2")
    role_aback(k, 29, 49, 48, flags=False)
    k.lab('end')
    return k, 160, AB_LDS

def build_lnw_test(name):
    k = K(name, vgpr=96, sgpr=64)
    k("s_cmp_ge_u32 s2, 64")
    k(f"s_cbranch_scc1 {k.ref('end')}")
    prologue(k)
    role_lnw(k, 2, 64, 48, 15, k.ref('end'), wait=False)
    k.lab('end')
    return k, 64
```

```python
import sys, math
sys.path.insert(0, "/code"); sys.path.insert(0, "tools")
from asmk import *
from lay import *

NSTEP = 64
SPIN = 400000
CSC = (192 ** -0.5) * math.log2(math.e)

class LQ:
    def __init__(self, k): self.k = k; self.q = []
    def ds(self, ins, tag=None):
        self.k(ins); self.q.append(tag)
        assert len(self.q) <= 15, "too many outstanding LDS ops"
    def wait(self, tag):
        idx = [i for i, t in enumerate(self.q) if t == tag]
        if not idx: return
        n = len(self.q) - 1 - idx[-1]
        self.k(f"s_waitcnt lgkmcnt({n})"); self.q = self.q[idx[-1] + 1:]
    def all(self):
        self.k("s_waitcnt lgkmcnt(0)"); self.q = []

def vr(b, n): return f"v[{b}:{b+n-1}]" if n > 1 else f"v{b}"
def ar(b, n): return f"a[{b}:{b+n-1}]"

def check_valid(k, regs, tmp):
    regs = list(regs)
    k(f"v_max3_u32 v{tmp}, v{regs[0]}, v{regs[1]}, v{regs[2]}")
    rest = regs[3:]
    while len(rest) >= 2:
        k(f"v_max3_u32 v{tmp}, v{tmp}, v{rest[0]}, v{rest[1]}"); rest = rest[2:]
    if rest: k(f"v_max_u32 v{tmp}, v{tmp}, v{rest[0]}")
    k(f"v_cmp_eq_u32 vcc, -1, v{tmp}")

S_WS = 4
SRD = 8
S_ROLE = 12; S_WAVE = 13; S_STEP = 14; S_SPIN = 15
S_EB0 = 16; S_EB1 = 17
S_SB = 18
S_SBN = 19
S_T = 20
S_M8 = 40
S_M2 = 42
S_KX = 44; S_KM = 45; S_Z = 46
S_GK = 47
S_FL = 48
S_LAYER = 49
S_ST = 50
S_OSRD = 84
S_FD0 = 82; S_FD1 = 83
S_SBF = 88; S_SBNF = 89
srd = f"s[{SRD}:{SRD+3}]"

OWN = [[0, 1, 2], [3, 4, 5], [6, 7], [8, 9]]

def slot_base(k, dst, step_s, tmp, far=None):
    k(f"s_cmp_lt_u32 s{step_s}, 32")
    k(f"s_cselect_b32 s{dst}, s{S_EB0}, s{S_EB1}")
    if far is not None: k(f"s_cselect_b32 s{far}, s{S_FD0}, s{S_FD1}")
    k(f"s_and_b32 s{tmp}, s{step_s}, 31")
    k(f"s_lshl_b32 s{tmp}, s{tmp}, 16")
    k(f"s_add_u32 s{dst}, s{dst}, s{tmp}")
    if far is not None: k(f"s_add_u32 s{far}, s{far}, s{dst}")

def stamp(k, cfg, n, real=False):
    if cfg.get('stamp'):
        k(f"s_mem{'real' if real else ''}time s[{S_ST+2*n}:{S_ST+2*n+1}]")

def stamp_flush(k, cfg, nst, base_off):
    if not cfg.get('stamp'): return
    k("s_waitcnt lgkmcnt(0)")
    sk = k.uniq('stk')
    k(f"s_cmp_lg_u32 s{S_ROLE}, {cfg.get('stamp_role', 0)}")
    k(f"s_cbranch_scc1 {k.ref(sk)}")
    k("s_mov_b64 s[30:31], exec")
    k("s_mov_b64 exec, 1")
    k(f"s_lshl_b32 s32, s{S_STEP}, 6")
    k(f"s_add_u32 s32, s32, {base_off}")
    k("v_mov_b32 v253, 0")
    for n in range(nst):
        k(f"v_mov_b32 v254, s{S_ST+2*n}")
        k(f"buffer_store_dword v254, v253, {srd}, s32 offen offset:{4*n}")
        k("s_nop 1")
    k("s_mov_b64 exec, s[30:31]")
    k.lab(sk)

def rt(k, cfg, n):
    if cfg.get('rt'):
        k(f"s_memrealtime s[{S_ST+2*n}:{S_ST+2*n+1}]")

def rt_flush(k, cfg, rolebase):
    if not cfg.get('rt'): return
    k("s_waitcnt lgkmcnt(0)")
    k("s_mov_b64 exec, 1")
    k(f"s_add_u32 s32, s{S_ROLE}, {rolebase}")
    k("s_lshl_b32 s32, s32, 6")
    k(f"s_add_u32 s32, s32, s{S_STEP}")
    k(f"s_lshl_b32 s32, s32, {5 if cfg.get('rt2') else 4}")
    k(f"s_add_u32 s32, s32, {cfg['rt']}")
    k(f"s_mul_i32 s33, s{S_LAYER}, 0x200000")
    k("s_add_u32 s32, s32, s33")
    k("v_mov_b32 v253, 0")
    for n in range(8 if cfg.get('rt2') else 3):
        k(f"v_mov_b32 v254, s{S_ST+2*n}")
        k(f"buffer_store_dword v254, v253, {srd}, s32 offen offset:{4*n}")
        k("s_nop 1")
    k("s_mov_b64 exec, -1")

def spin_check(k, bail):
    k(f"s_sub_u32 s{S_SPIN}, s{S_SPIN}, 1")
    k(f"s_cbranch_scc1 {bail}")

def wait_progress(k, cfg, tag, step_s, voff, nl, vt):
    if not cfg.get('ovl'): return
    ok = k.ref(tag + '_ok'); lp = tag + '_lp'
    k(f"s_cmp_gt_u32 s{S_GK}, s{step_s}")
    k(f"s_cbranch_scc1 {ok}")
    k.lab(lp)
    k(f"buffer_load_dword v{vt}, v{voff}, {srd}, s{S_FL} offen sc1")
    k("s_waitcnt vmcnt(0)")
    k(f"v_readlane_b32 s{S_GK}, v{vt}, 0")
    if nl == 2:
        k(f"v_readlane_b32 s{S_T+9}, v{vt}, 1")
        k("s_nop 0")
        k(f"s_min_u32 s{S_GK}, s{S_GK}, s{S_T+9}")
    else:
        k("s_nop 0")
    spin_check(k, k.ref('bail'))
    k(f"s_cmp_gt_u32 s{S_GK}, s{step_s}")
    k(f"s_cbranch_scc0 {k.ref(lp)}")
    k.lab(tag + '_ok')

def flag_store(k, cfg, off_s, val_s, va, vb):
    k("s_mov_b64 exec, 1")
    k(f"v_mov_b32 v{va}, s{off_s}")
    k(f"v_mov_b32 v{vb}, s{val_s}")
    k(f"buffer_store_dword v{vb}, v{va}, {srd}, s{S_FL} offen sc1")
    k("s_mov_b64 exec, -1")


S_MK = 69
S_PM = 68

def poll_cont(k, tag, loads, regs, consume, tmp, dummy, bail):
    n = len(loads)
    for u in range(n): loads[u]()
    k(f"s_mov_b32 s{S_PM}, 0")
    k.lab(f"{tag}_lp")
    for u in range(n):
        k(f"s_waitcnt vmcnt({n - 1})")
        k(f"s_bitcmp1_b32 s{S_PM}, {u}")
        k(f"s_cbranch_scc1 {k.ref(f'{tag}_d{u}')}")
        check_valid(k, regs[u], tmp)
        k(f"s_bitset1_b32 s{S_PM}, {u}")
        k(f"s_cbranch_vccnz {k.ref(f'{tag}_r{u}')}")
        consume[u]()
        k(f"s_cmp_eq_u32 s{S_PM}, {(1 << n) - 1}")
        k(f"s_cbranch_scc1 {k.ref(f'{tag}_x')}")
        k.lab(f"{tag}_d{u}")
        k(f"buffer_load_dword v{dummy}, off, {srd}, s{S_SB} sc1")
        k(f"s_branch {k.ref(f'{tag}_n{u}')}")
        k.lab(f"{tag}_r{u}")
        k(f"s_bitset0_b32 s{S_PM}, {u}")
        loads[u]()
        k.lab(f"{tag}_n{u}")
    spin_check(k, bail)
    k(f"s_branch {k.ref(f'{tag}_lp')}")
    k.lab(f"{tag}_x")

PL_NL = 15
PL_WL = 0
PL_MEMI = 4 * PL_NL * 2048
PL_QI = PL_MEMI + 10240
PL_STR = 400
PL_KI = PL_QI + 8 * PL_STR
PL_SP = PL_KI + 8 * PL_STR
PL_END = PL_SP + 4096

V_L16 = 1; V_IDX = 2; V_IW = 3; V_QR = 4; V_KR = 5; V_SPR = 6; V_PX = 7; V_PM = 8; V_KXO = 9
V_KML = 10; V_KMG = 11; V_MASKF = 12; V_WLA = 13; V_MIA = 14; V_SPW = 15
V_GF = 255; V_T0 = 253; V_T1 = 254
AF = 16; PD = 56; PDX = 80; PDM = 84; QF = 88; KXF = 100; TB = 116; PVW = 148

def p_plan(w):
    own = OWN[w]; rest = [ks for ks in range(10) if ks not in own]
    order1 = own + rest
    seq = [(T, ks) for ks in order1 for T in (0, 1, 2)] + [(T, ks) for T in (3, 4, 5) for ks in range(10)]
    ldspos = list(range(9, 30, 2)) + [44, 48, 52, 56]
    assert len(ldspos) == PL_NL
    where = {}
    regops = [i for i in range(60) if i not in ldspos]
    for n, i in enumerate(regops):
        where[seq[i]] = ('a', 8 * n) if n < 32 else ('v', PVW + 8 * (n - 32))
    assert PVW + 8 * (len(regops) - 32) <= 254
    for n, i in enumerate(ldspos): where[seq[i]] = ('l', n)
    return own, rest, seq, ldspos, where

def p_setup_lanes(k):
    k(f"v_lshlrev_b32 v{V_L16}, 4, v0")
    k("v_and_b32 v16, 8, v0")
    k("v_cmp_eq_u32 vcc, 0, v16")
    k("v_mov_b32 v17, 0xeeeeeeee")
    k("v_mov_b32 v18, 0x44444444")
    k(f"v_cndmask_b32 v{V_IDX}, v17, v18, vcc")

def gen_p_wave(k, w, cfg):
    own, rest, seq, ldspos, where = p_plan(w)
    L = lambda s: k.ref(f"p{w}_{s}")
    lab = lambda s: k.lab(f"p{w}_{s}")
    bail = k.ref('bail')
    lq = LQ(k)
    lab('start')
    k("v_lshrrev_b32 v16, 4, v0")
    k("v_and_b32 v17, 15, v0")
    k("v_and_b32 v18, 1, v16")
    k("v_lshlrev_b32 v18, 2, v18")
    k("v_lshrrev_b32 v19, 1, v16")
    k("v_lshl_add_u32 v18, v19, 1, v18")
    k(f"v_mul_u32_u24 v18, {PL_STR}, v18")
    k("v_lshl_add_u32 v18, v17, 1, v18")
    k(f"v_add_u32 v{V_IW}, {PL_QI + 96 * w}, v18")
    k("v_and_b32 v18, 7, v0")
    k(f"v_mul_u32_u24 v18, {PL_STR}, v18")
    k("v_lshrrev_b32 v19, 3, v0")
    k("v_lshl_add_u32 v18, v19, 4, v18")
    k(f"v_add_u32 v{V_QR}, {PL_QI}, v18")
    k("v_and_b32 v18, 7, v0")
    k(f"v_mul_u32_u24 v18, {PL_STR}, v18")
    k("v_lshl_add_u32 v18, v16, 5, v18")
    k(f"v_add_u32 v{V_KR}, {PL_KI}, v18")
    k("v_lshrrev_b32 v18, 1, v16")
    k("v_lshlrev_b32 v18, 10, v18")
    k("v_and_b32 v19, 31, v0")
    k("v_lshl_add_u32 v18, v19, 4, v18")
    k(f"v_add_u32 v{V_SPR}, {PL_SP + 4 * w}, v18")
    k(f"v_add_u32 v{V_SPW}, {PL_SP + 1024 * w}, v{V_L16}")
    k("v_lshrrev_b32 v18, 1, v16")
    k("v_lshlrev_b32 v18, 1, v18")
    k("v_lshrrev_b32 v19, 3, v17")
    k("v_add3_u32 v18, v18, v19, 1")
    k("v_lshrrev_b32 v19, 1, v18")
    k("v_lshlrev_b32 v19, 14, v19")
    k("v_and_b32 v18, 1, v18")
    k("v_lshl_add_u32 v18, v18, 12, v19")
    k("v_and_b32 v19, 1, v16")
    k("v_lshlrev_b32 v19, 4, v19")
    k(f"v_add_u32 v19, {32 * w}, v19")
    k(f"s_lshl_b32 s{S_T}, s{S_ROLE}, 7")
    k(f"v_add_u32 v{V_PM}, s{S_T}, v19")
    k(f"v_add_u32 v{V_PX}, v{V_PM}, v18")
    k(f"v_lshlrev_b32 v18, 4, v17")
    k("v_lshl_add_u32 v18, v16, 10, v18")
    k(f"v_add_u32 v{V_KXO}, {16 * (w & 1) * 16}, v18")
    k(f"v_add_u32 v18, {64 * w}, v0")
    k("v_mul_u32_u24 v19, 2731, v18")
    k("v_lshrrev_b32 v19, 16, v19")
    k("v_mul_u32_u24 v20, 24, v19")
    k("v_sub_u32 v20, v18, v20")
    k(f"v_mul_u32_u24 v21, {PL_STR}, v19")
    k("v_lshl_add_u32 v21, v20, 4, v21")
    k(f"v_add_u32 v{V_KML}, {PL_KI}, v21")
    k("v_lshlrev_b32 v21, 4, v19")
    k(f"v_lshl_add_u32 v{V_KMG}, v20, 7, v21")
    k("v_and_b32 v18, 0x28, v0")
    k("v_cmp_eq_u32 vcc, 0, v18")
    k("v_mov_b32 v18, 1.0")
    k("v_mov_b32 v19, 0")
    k(f"v_cndmask_b32 v{V_MASKF}, v19, v18, vcc")
    k(f"v_add_u32 v{V_WLA}, {PL_WL + w * PL_NL * 2048}, v{V_L16}")
    k(f"v_add_u32 v{V_MIA}, {PL_MEMI}, v{V_L16}")
    k(f"s_mul_i32 s{S_KX}, s{S_ROLE}, {KX_SH}")
    k(f"s_add_u32 s{S_KX}, s{S_KX}, {KX}")
    k(f"s_mul_i32 s{S_KM}, s{S_ROLE}, {KM_SH}")
    k(f"s_add_u32 s{S_KM}, s{S_KM}, {KM}")
    if cfg.get('ovl'):
        k(f"s_mul_i32 s{S_T}, s{S_ROLE}, 6")
        k(f"s_add_u32 s{S_T+1}, s{S_T}, 5")
        k(f"s_lshr_b32 s{S_T}, s{S_T}, 3")
        k(f"s_lshr_b32 s{S_T+1}, s{S_T+1}, 3")
        k(f"s_add_u32 s{S_T}, s{S_T}, 80"); k(f"s_add_u32 s{S_T+1}, s{S_T+1}, 80")
        k(f"s_lshl_b32 s{S_T}, s{S_T}, 7"); k(f"s_lshl_b32 s{S_T+1}, s{S_T+1}, 7")
        k(f"v_mov_b32 v{V_GF}, s{S_T+1}")
        k(f"v_mov_b32 v{V_T0}, s{S_T}")
        k("v_cmp_eq_u32 vcc, 0, v0")
        k("s_nop 1")
        k(f"v_cndmask_b32 v{V_GF}, v{V_GF}, v{V_T0}, vcc")
        k(f"s_mov_b32 s{S_GK}, 0")
    k(f"s_mul_i32 s{S_T}, s{S_ROLE}, 491520")
    k(f"s_add_u32 s{S_T}, s{S_T}, {WP + w * 122880}")
    def wload(dst, T, ks):
        idx = T * 10 + ks
        k(f"s_add_u32 s{S_T+1}, s{S_T}, {idx * 2048}")
        for hi in range(2):
            k(f"buffer_load_dwordx4 {dst(hi)}, v{V_L16}, {srd}, s{S_T+1} offen offset:{hi*1024}")
    lops = [(op, wh[1]) for op, wh in where.items() if wh[0] == 'l']
    rops = [(op, wh) for op, wh in where.items() if wh[0] != 'l']
    for (T, ks), slot in lops:
        wload(lambda hi: vr(16 + 8 * slot + 4 * hi, 4), T, ks)
    nre = 0
    for (T, ks), wh in rops[:16]:
        wload((lambda hi, wh=wh: (ar if wh[0] == 'a' else vr)(wh[1] + 4 * hi, 4)), T, ks)
    k("s_waitcnt vmcnt(32)")
    for (T, ks), slot in lops:
        for hi in range(2):
            k(f"ds_write_b128 v{V_WLA}, {vr(16 + 8 * slot + 4 * hi, 4)} offset:{slot * 2048 + hi * 1024}")
    for (T, ks), wh in rops[16:]:
        wload((lambda hi, wh=wh: (ar if wh[0] == 'a' else vr)(wh[1] + 4 * hi, 4)), T, ks)
    k("s_waitcnt lgkmcnt(0)")
    kxset = [0, 1] if w < 2 else [2]
    SC1 = " sc1" if cfg.get('ovl') else ""
    npf = [0]
    def kx_prefetch(step_s):
        npf[0] += 1
        wait_progress(k, cfg, f"p{w}_gw{npf[0]}", step_s, V_GF, 2, V_T0)
        k(f"s_mul_i32 s{S_T}, s{step_s}, {32 * KX_SH}")
        k(f"s_add_u32 s{S_T}, s{S_T}, s{S_KX}")
        for u, ks in enumerate(kxset):
            k(f"s_add_u32 s{S_T+1}, s{S_T}, {ks * 4096}")
            for hi in range(2):
                k(f"buffer_load_dwordx4 {vr(KXF + 8 * u + 4 * hi, 4)}, v{V_KXO}, {srd}, s{S_T+1} offen offset:{hi * 512}{SC1}")
    def tb_read(n):
        for hi in range(2):
            lq.ds(f"ds_read_b128 {vr(TB + 8 * (n % 4) + 4 * hi, 4)}, v{V_WLA} offset:{n * 2048 + hi * 1024}", ('tb', n))
    def zero_d():
        for r in range(PD, PD + 32): k(f"v_mov_b32 v{r}, 0")
    k(f"s_mov_b32 s{S_STEP}, 0")
    kx_prefetch(S_STEP)
    zero_d()
    for n in range(4): tb_read(n)
    lq.all()
    lab('step')
    slot_base(k, S_SB, S_STEP, S_T)
    for u, ks in enumerate(own):
        k(f"s_add_u32 s{S_T+2+u}, s{S_SB}, {physmap(M_LOG + 1024 * ks)}")
    if cfg.get('mark') is not None and w == 0:
        k(f"s_lshr_b32 s{S_MK}, s{S_ROLE}, 1")
        k(f"s_lshl_b32 s{S_MK}, s{S_MK}, 7")
        k(f"s_and_b32 s{S_T}, s{S_ROLE}, 1")
        k(f"s_lshl_b32 s{S_T}, s{S_T}, 2")
        k(f"s_add_u32 s{S_MK}, s{S_MK}, s{S_T}")
        k(f"s_add_u32 s{S_MK}, s{S_MK}, s{S_SB}")
        k(f"s_add_u32 s{S_MK}, s{S_MK}, {physmap(MARK_LOG)}")
    stamp(k, cfg, 0)
    if cfg.get('cpoll', 0):
        poll_cont(k, f"p{w}_mp",
                  [lambda u=u, ks=ks: k(f"buffer_load_dwordx4 {vr(AF + 4 * ks, 4)}, v{V_L16}, {srd}, s{S_T+2+u} offen sc1") for u, ks in enumerate(own)],
                  [[AF + 4 * ks + j for j in range(4)] for ks in own],
                  [lambda ks=ks: k(f"ds_write_b128 v{V_MIA}, {vr(AF + 4 * ks, 4)} offset:{ks * 1024}") for ks in own],
                  QF, 252, bail)
    else:
        lab('poll')
        for u, ks in enumerate(own):
            k(f"buffer_load_dwordx4 {vr(AF + 4 * ks, 4)}, v{V_L16}, {srd}, s{S_T+2+u} offen sc1")
        k("s_waitcnt vmcnt(0)")
        for ks in own:
            k(f"ds_write_b128 v{V_MIA}, {vr(AF + 4 * ks, 4)} offset:{ks * 1024}")
        check_valid(k, [AF + 4 * ks + j for ks in own for j in range(4)], QF)
        spin_check(k, bail)
        k(f"s_cbranch_vccnz {L('poll')}")
    lq.all()
    k("s_barrier")
    stamp(k, cfg, 1)
    if w == 0: rt(k, cfg, 0)
    for ks in rest:
        lq.ds(f"ds_read_b128 {vr(AF + 4 * ks, 4)}, v{V_MIA} offset:{ks * 1024}", ('af', ks))
    def post_tile(T, base):
        d = PD + 4 * T
        col = 32 * (T % 3)
        return [
            lambda: k(f"v_permlane32_swap_b32 v{d}, v{d+2}"),
            lambda: k(f"v_permlane32_swap_b32 v{d+1}, v{d+3}"),
            lambda: k(f"v_add_f32 v{d}, v{d}, v{d+2}"),
            lambda: k(f"v_add_f32 v{d+1}, v{d+1}, v{d+3}"),
            lambda: k(f"v_cvt_pk_bf16_f32 v{d}, v{d}, v{d+1}"),
            lambda: lq.ds(f"ds_write_b16 v{V_IW}, v{d} offset:{base + col}", ('img', T)),
            lambda: lq.ds(f"ds_write_b16_d16_hi v{V_IW}, v{d} offset:{base + col + PL_STR}", ('img', T)),
        ]
    MK = cfg.get('mark', None)
    def mark():
        if w != 0: return
        k(f"buffer_store_dword v{V_L16}, off, {srd}, s{S_MK} sc1")
    side = {i: [] for i in range(60)}
    if isinstance(MK, int): side[MK].append(mark)
    def put(items, start, per=2):
        i = start
        for it in items:
            while len(side[i]) >= per: i += 1
            side[i].append(it)
        return i
    KO = PL_KI - PL_QI
    e = put(post_tile(0, 0) + post_tile(1, 0) + post_tile(2, 0), 31)
    b1 = e + 2
    side[b1].append(lambda: (lq.wait(('img', 2)), k("s_barrier")))
    for ks in range(3):
        side[b1 + (ks > 0)].append(lambda ks=ks: lq.ds(f"ds_read_b128 {vr(QF + 4 * ks, 4)}, v{V_QR} offset:{ks * 128}", ('qf', ks)))
    put(post_tile(3, KO), b1 + 2)
    sx = b1 + 6
    def smx():
        lq.wait(('qf', 2))
        for u, ks in enumerate(kxset):
            k(f"v_smfmac_f32_16x16x64_bf16 {vr(PDX, 4)}, {vr(QF + 4 * ks, 4)}, {vr(KXF + 8 * u, 8)}, v{V_IDX}")
    side[sx].append(smx)
    put(post_tile(4, KO), 52)
    side[min(sx + 4, 58)].append(lambda: lq.ds(f"ds_write_b128 v{V_SPW}, {vr(PDX, 4)}", 'sp'))
    for i, (T, ks) in enumerate(seq):
        wh = where[(T, ks)]
        if i < 30 and ks in rest: lq.wait(('af', ks))
        if wh[0] == 'l':
            lq.wait(('tb', wh[1]))
            b = vr(TB + 8 * (wh[1] % 4), 8)
        else:
            b = (ar if wh[0] == 'a' else vr)(wh[1], 8)
        k(f"v_smfmac_f32_16x16x64_bf16 {vr(PD + 4 * T, 4)}, {vr(AF + 4 * ks, 4)}, {b}, v{V_IDX}")
        if wh[0] == 'l' and wh[1] + 4 < PL_NL:
            tb_read(wh[1] + 4)
        for it in side[i]: it()
        if i == 29: stamp(k, cfg, 2)
        if i == b1: stamp(k, cfg, 3)
    stamp(k, cfg, 4)
    k("s_nop 7")
    for it in post_tile(5, KO): it()
    lq.all()
    k("s_barrier")
    if MK == 'b3': mark()
    stamp(k, cfg, 5)
    KF = AF
    X0 = AF + 24
    lq.ds(f"ds_read2st64_b32 {vr(X0, 2)}, v{V_SPR} offset0:0 offset1:2", 'sp0')
    lq.ds(f"ds_read2st64_b32 {vr(X0 + 2, 2)}, v{V_SPR} offset0:8 offset1:10", 'sp1')
    for ks in range(3):
        for hi in range(2):
            lq.ds(f"ds_read_b128 {vr(KF + 8 * ks + 4 * hi, 4)}, v{V_KR} offset:{ks * 128 + hi * 16}", ('kf', ks))
    sx_, mx, t, u, sm, ex, em, tot = X0 + 4, X0 + 5, X0 + 6, X0 + 7, X0 + 8, X0 + 9, X0 + 10, X0 + 11
    lq.wait('sp1')
    k(f"v_add_f32 v{X0}, v{X0}, v{X0+1}")
    k(f"v_add_f32 v{X0+2}, v{X0+2}, v{X0+3}")
    k(f"v_add_f32 v{sx_}, v{X0}, v{X0+2}")
    k(f"v_mul_f32 v{sx_}, {hexf(CSC)}, v{sx_}")
    for ks in range(3):
        lq.wait(('kf', ks))
        k(f"v_smfmac_f32_16x16x64_bf16 {vr(PDM, 4)}, {vr(QF + 4 * ks, 4)}, {vr(KF + 8 * ks, 8)}, v{V_IDX}")
    if MK == 's6': mark()
    stamp(k, cfg, 6)
    def dpp(op, dst, src, ctl):
        k(f"{op} v{dst}, v{src}, v{src} {ctl} row_mask:0xf bank_mask:0xf")
    dpp("v_max_f32_dpp", mx, sx_, "row_ror:8"); k("s_nop 1")
    dpp("v_max_f32_dpp", mx, mx, "row_ror:4"); k("s_nop 1")
    dpp("v_max_f32_dpp", mx, mx, "row_ror:2"); k("s_nop 1")
    dpp("v_max_f32_dpp", mx, mx, "row_ror:1")
    k(f"v_mov_b32 v{u}, v{mx}")
    k("s_nop 1")
    k(f"v_permlane32_swap_b32 v{mx}, v{u}")
    k(f"v_max_f32 v{mx}, v{mx}, v{u}")
    dm = PDM + w
    k(f"v_mov_b32 v{u}, v{dm}")
    k("s_nop 1")
    k(f"v_permlane32_swap_b32 v{dm}, v{u}")
    k(f"v_add_f32 v{sm}, v{dm}, v{u}")
    k(f"v_mul_f32 v{sm}, {hexf(CSC)}, v{sm}")
    k("s_nop 1")
    dpp("v_max_f32_dpp", t, sm, "row_ror:4"); k("s_nop 1")
    dpp("v_max_f32_dpp", t, t, "row_ror:2"); k("s_nop 1")
    dpp("v_max_f32_dpp", t, t, "row_ror:1")
    k(f"v_max_f32 v{mx}, v{mx}, v{t}")
    k(f"v_sub_f32 v{ex}, v{sx_}, v{mx}")
    k(f"v_sub_f32 v{em}, v{sm}, v{mx}")
    k(f"v_exp_f32 v{ex}, v{ex}")
    k(f"v_exp_f32 v{em}, v{em}")
    k("s_nop 0")
    k(f"v_fma_f32 v{tot}, v{em}, v{V_MASKF}, v{ex}")
    k("s_nop 1")
    dpp("v_add_f32_dpp", tot, tot, "row_ror:8"); k("s_nop 1")
    dpp("v_add_f32_dpp", tot, tot, "row_ror:4"); k("s_nop 1")
    dpp("v_add_f32_dpp", tot, tot, "row_ror:2"); k("s_nop 1")
    dpp("v_add_f32_dpp", tot, tot, "row_ror:1")
    k(f"v_mov_b32 v{u}, v{tot}")
    k("s_nop 1")
    k(f"v_permlane32_swap_b32 v{tot}, v{u}")
    k(f"v_add_f32 v{tot}, v{tot}, v{u}")
    k(f"v_rcp_f32 v{tot}, v{tot}")
    k("s_nop 0")
    k(f"v_mul_f32 v{ex}, v{ex}, v{tot}")
    k(f"v_mul_f32 v{em}, v{em}, v{tot}")
    ox, om = KF, KF + 4
    k("s_nop 0")
    k(f"v_mov_b32_dpp v{t}, v{ex} quad_perm:[1,0,3,2] row_mask:0xf bank_mask:0xf")
    k(f"v_mov_b32_dpp v{u}, v{em} quad_perm:[1,0,3,2] row_mask:0xf bank_mask:0xf")
    k(f"v_cvt_pk_bf16_f32 v{ox}, v{ex}, v{t}")
    k(f"v_cvt_pk_bf16_f32 v{om}, v{em}, v{u}")
    k("s_nop 0")
    for j in range(1, 4):
        k(f"v_mov_b32_dpp v{ox+j}, v{ox} row_shl:{2*j} row_mask:0xf bank_mask:0xf")
    for j in range(1, 4):
        k(f"v_mov_b32_dpp v{om+j}, v{om} row_shl:{2*j} row_mask:0xf bank_mask:0xf")
    k(f"s_mov_b64 exec, s[{S_M8}:{S_M8+1}]")
    k(f"buffer_store_dwordx4 {vr(ox, 4)}, v{V_PX}, {srd}, s{S_SB} offen sc1")
    k(f"s_mov_b64 exec, s[{S_M2}:{S_M2+1}]")
    k(f"buffer_store_dwordx4 {vr(om, 4)}, v{V_PM}, {srd}, s{S_SB} offen sc1")
    k("s_mov_b64 exec, -1")
    stamp(k, cfg, 7)
    stamp(k, cfg, 8, True)
    if w == 0: rt(k, cfg, 1)
    if w < 3:
        lq.ds(f"ds_read_b128 {vr(X0, 4)}, v{V_KML}", 'km')
    k(f"s_add_u32 s{S_T+8}, s{S_STEP}, 1")
    k(f"s_min_u32 s{S_T+8}, s{S_T+8}, {NSTEP-1}")
    kx_prefetch(S_T + 8)
    zero_d()
    if w < 3:
        lq.wait('km')
        k(f"s_mul_i32 s{S_T}, s{S_STEP}, {32 * KM_SH}")
        k(f"s_add_u32 s{S_T}, s{S_T}, s{S_KM}")
        k(f"buffer_store_dwordx4 {vr(X0, 4)}, v{V_KMG}, {srd}, s{S_T} offen{SC1}")
    if w == 3 and cfg.get('ovl'):
        k(f"s_lshl_b32 s{S_T}, s{S_ROLE}, 7")
        k(f"s_add_u32 s{S_T}, s{S_T}, {FL_PF}")
        flag_store(k, cfg, S_T, S_STEP, V_T0, V_T1)
    for n in range(4): tb_read(n)
    lq.all()
    if cfg.get('pack', 0):
        k("s_waitcnt vmcnt(0)")
        k("s_barrier")
    if w == 0: rt_flush(k, cfg, 0)
    if w == cfg.get('stamp_wave', 0): stamp_flush(k, cfg, 9, cfg.get('stamp_p', 0))
    k(f"s_add_u32 s{S_STEP}, s{S_STEP}, 1")
    k(f"s_cmp_lt_u32 s{S_STEP}, {NSTEP}")
    k(f"s_cbranch_scc1 {L('step')}")
    if cfg.get('ovl'):
        k("s_waitcnt vmcnt(0)")
        k("s_barrier")
        if w == 3:
            k(f"s_lshl_b32 s{S_T}, s{S_ROLE}, 7")
            k(f"s_add_u32 s{S_T}, s{S_T}, {FL_PF}")
            flag_store(k, cfg, S_T, S_STEP, V_T0, V_T1)
    k(f"s_branch {k.ref('end')}")

YL_MEMI = 0
YL_RED = 10240
YV_L16 = 1; YV_IDX = 2; YV_MIA = 3; YV_ZO = 4; YV_PO = 5; YV_RW = 6; YV_RR = 7; YV_MO = 8; YV_GF = 9; YV_MK = 10
YAF = 16; YD = 56; YZB = 72; YPF = 92; YACC = 112; YT = 116; YVW = 176

def gen_y_wave(k, w, cfg):
    own = OWN[w]; rest = [ks for ks in range(10) if ks not in own]
    L = lambda s: k.ref(f"y{w}_{s}")
    lab = lambda s: k.lab(f"y{w}_{s}")
    bail = k.ref('bail')
    lq = LQ(k)
    lab('start')
    k("v_lshrrev_b32 v16, 4, v0")
    k("v_and_b32 v17, 7, v0")
    k("v_lshrrev_b32 v18, 3, v0")
    k("v_and_b32 v18, 1, v18")
    k("v_lshl_add_u32 v19, v18, 2, v16")
    k(f"v_add_u32 v19, {8 * w}, v19")
    k("v_mul_u32_u24 v20, 640, v19")
    k(f"v_lshl_add_u32 v{YV_ZO}, v17, 4, v20")
    k("v_and_b32 v20, 3, v17")
    k("v_lshlrev_b32 v20, 1, v20")
    k("v_lshrrev_b32 v21, 2, v17")
    k("v_add_u32 v20, v20, v21")
    k("v_lshlrev_b32 v20, 4, v20")
    k(f"v_lshl_add_u32 v{YV_PO}, v19, 7, v20")
    k(f"v_add_u32 v{YV_MIA}, {YL_MEMI}, v{YV_L16}")
    k("v_lshrrev_b32 v20, 1, v17")
    k("v_lshlrev_b32 v20, 7, v20")
    k("v_and_b32 v21, 1, v17")
    k("v_lshl_add_u32 v20, v21, 2, v20")
    k(f"v_add_u32 v{YV_MK}, {512 * w}, v20")
    k("v_lshlrev_b32 v20, 8, v18")
    k("v_lshl_add_u32 v20, v17, 5, v20")
    k("v_and_b32 v21, 1, v16")
    k("v_lshl_add_u32 v20, v21, 4, v20")
    k(f"v_add_u32 v20, {YL_RED + 512 * w}, v20")
    k(f"v_add_u32 v21, {YL_RED + 2048}, v{YV_L16}")
    k("v_lshrrev_b32 v22, 1, v16")
    k("v_cmp_eq_u32 vcc, v22, v18")
    k("s_nop 1")
    k(f"v_cndmask_b32 v{YV_RW}, v21, v20, vcc")
    k("v_lshrrev_b32 v20, 3, v0")
    k("v_lshlrev_b32 v20, 2, v20")
    k("v_lshl_add_u32 v20, v17, 5, v20")
    k(f"v_add_u32 v{YV_RR}, {YL_RED}, v20")
    k(f"s_lshl_b32 s{S_T}, s{S_ROLE}, 7")
    k(f"s_add_u32 s{S_T}, s{S_T}, {M_LOG}")
    k(f"s_lshr_b32 s{S_T+1}, s{S_T}, 13")
    k(f"s_lshl_b32 s{S_T+1}, s{S_T+1}, 14")
    k(f"s_and_b32 s{S_T}, s{S_T}, 8191")
    k(f"s_add_u32 s{S_T}, s{S_T}, s{S_T+1}")
    k("v_lshrrev_b32 v20, 3, v0")
    k("v_lshlrev_b32 v20, 4, v20")
    k(f"v_add_u32 v{YV_MO}, s{S_T}, v20")
    k(f"s_mul_i32 s{S_Z}, s{S_ROLE}, 20480")
    k(f"s_add_u32 s{S_Z}, s{S_Z}, {Z}")
    k(f"s_mul_i32 s{S_T}, s{S_ROLE}, 327680")
    k(f"s_add_u32 s{S_T}, s{S_T}, {WY + w * 81920}")
    def wreg(T, ks):
        n = T * 10 + ks
        return ('a', 8 * n) if n < 32 else ('v', YVW + 8 * (n - 32))
    for T in range(4):
        for ks in range(10):
            wh = wreg(T, ks)
            k(f"s_add_u32 s{S_T+1}, s{S_T}, {(T * 10 + ks) * 2048}")
            for hi in range(2):
                d = (ar if wh[0] == 'a' else vr)(wh[1] + 4 * hi, 4)
                k(f"buffer_load_dwordx4 {d}, v{YV_L16}, {srd}, s{S_T+1} offen offset:{hi*1024}")
    k(f"s_mov_b32 s{S_STEP}, 0")
    SC1 = " sc1" if cfg.get('ovl') else ""
    if cfg.get('ovl'):
        k(f"s_lshl_b32 s{S_T}, s{S_ROLE}, 7")
        k(f"v_mov_b32 v{YV_GF}, s{S_T}")
        k(f"s_mov_b32 s{S_GK}, 0")
    lab('step')
    YC = cfg.get('ycopy', 0)
    AW = cfg.get('ackwait', 1)
    slot_base(k, S_SB, S_STEP, S_T, S_SBF if YC else None)
    def uload():
        wait_progress(k, cfg, f"y{w}_gw", S_STEP, YV_GF, 1, YT)
        for t in range(1, 5):
            k(f"buffer_load_dwordx4 {vr(YZB + 4 * t, 4)}, v{YV_ZO}, {srd}, s{S_T+8} offen offset:{t*128}{SC1}")
    k(f"s_mul_i32 s{S_T+8}, s{S_STEP}, {Z_SEG}")
    k(f"s_add_u32 s{S_T+8}, s{S_T+8}, s{S_Z}")
    if not AW: uload()
    for r in range(YD, YD + 16): k(f"v_mov_b32 v{r}, 0")
    for u, ks in enumerate(own):
        k(f"s_add_u32 s{S_T+2+u}, s{S_SBF if YC else S_SB}, {physmap(M_LOG + 1024 * ks)}")
    stamp(k, cfg, 0)
    lab('poll')
    if cfg.get('y_nopoll'):
        for ks in own:
            for j in range(4): k(f"v_mov_b32 v{YAF + 4 * ks + j}, 0")
            k(f"ds_write_b128 v{YV_MIA}, {vr(YAF + 4 * ks, 4)} offset:{ks * 1024}")
    else:
        for u, ks in enumerate(own):
            k(f"buffer_load_dwordx4 {vr(YAF + 4 * ks, 4)}, v{YV_L16}, {srd}, s{S_T+2+u} offen sc1")
        k("s_waitcnt vmcnt(0)")
        for ks in own:
            k(f"ds_write_b128 v{YV_MIA}, {vr(YAF + 4 * ks, 4)} offset:{ks * 1024}")
        check_valid(k, [YAF + 4 * ks + j for ks in own for j in range(4)], YT)
        spin_check(k, bail)
        k(f"s_cbranch_vccnz {L('poll')}")
    lq.all()
    k("s_barrier")
    stamp(k, cfg, 1)
    if w == 0: rt(k, cfg, 0)
    for ks in rest:
        lq.ds(f"ds_read_b128 {vr(YAF + 4 * ks, 4)}, v{YV_MIA} offset:{ks * 1024}", ('af', ks))
    if AW: uload()
    for ks in own + rest:
        if ks in rest: lq.wait(('af', ks))
        for T in range(4):
            wh = wreg(T, ks)
            b = (ar if wh[0] == 'a' else vr)(wh[1], 8)
            k(f"v_smfmac_f32_16x16x64_bf16 {vr(YD + 4 * T, 4)}, {vr(YAF + 4 * ks, 4)}, {b}, v{YV_IDX}")
    k("s_nop 7")
    D = lambda T, r: YD + 4 * T + r
    for r in range(4):
        k(f"v_permlane32_swap_b32 v{D(0,r)}, v{D(2,r)}")
        k(f"v_permlane32_swap_b32 v{D(1,r)}, v{D(3,r)}")
    for r in range(4):
        k(f"v_add_f32 v{D(0,r)}, v{D(0,r)}, v{D(2,r)}")
        k(f"v_add_f32 v{D(1,r)}, v{D(1,r)}, v{D(3,r)}")
    k("s_nop 1")
    for r in range(4):
        k(f"v_permlane16_swap_b32 v{D(0,r)}, v{D(1,r)}")
    k("s_nop 1")
    k(f"v_cvt_pk_bf16_f32 v{YZB}, v{D(0,0)}, v{D(0,1)}")
    k(f"v_cvt_pk_bf16_f32 v{YZB+1}, v{D(0,2)}, v{D(0,3)}")
    k(f"v_cvt_pk_bf16_f32 v{YZB+2}, v{D(1,0)}, v{D(1,1)}")
    k(f"v_cvt_pk_bf16_f32 v{YZB+3}, v{D(1,2)}, v{D(1,3)}")
    k(f"buffer_store_dwordx4 {vr(YZB, 4)}, v{YV_ZO}, {srd}, s{S_T+8} offen{SC1}")
    stamp(k, cfg, 2)
    k(f"s_cmp_eq_u32 s{S_STEP}, {NSTEP-1}")
    k(f"s_cbranch_scc1 {L('last') if cfg.get('ovl') else k.ref('end')}")
    for t in range(5):
        k(f"s_add_u32 s{S_T+10+t}, s{S_SB}, {physmap(t * 4096)}")
    k(f"s_add_u32 s{S_T+9}, s{S_STEP}, 1")
    slot_base(k, S_SBN, S_T + 9, S_T, S_SBNF if YC else None)
    if cfg.get('mark') is not None:
        k(f"s_add_u32 s{S_MK}, s{S_SB}, {physmap(MARK_LOG)}")
        lab('mpoll')
        k(f"buffer_load_dword v{YT}, v{YV_MK}, {srd}, s{S_MK} offen sc1")
        k("s_waitcnt vmcnt(0)")
        k(f"v_cmp_eq_u32 vcc, -1, v{YT}")
        spin_check(k, bail)
        k(f"s_cbranch_vccnz {L('mpoll')}")
        if w == 0 and cfg.get('rt2'): rt(k, cfg, 0)
    if cfg.get('cpoll', 0):
        for r in range(4): k(f"v_mov_b32 v{YACC + r}, 0")
        poll_cont(k, f"y{w}_pp",
                  [lambda t=t: k(f"buffer_load_dwordx4 {vr(YPF + 4 * t, 4)}, v{YV_PO}, {srd}, s{S_T+10+t} offen sc1") for t in range(5)],
                  [[YPF + 4 * t + j for j in range(4)] for t in range(5)],
                  [lambda t=t: (k(f"v_mfma_f32_16x16x32_bf16 {vr(YACC, 4)}, {vr(YPF + 4 * t, 4)}, {vr(YZB + 4 * t, 4)}, {vr(YACC, 4)}"),
                                (rt(k, cfg, 3 + t) if (w == 0 and cfg.get('rt2')) else None)) for t in range(5)],
                  YT, 132, bail)
        k("s_nop 5")
    else:
        lab('ppoll')
        for t in range(5):
            k(f"buffer_load_dwordx4 {vr(YPF + 4 * t, 4)}, v{YV_PO}, {srd}, s{S_T+10+t} offen sc1")
        k("s_waitcnt vmcnt(0)")
        for t in range(5):
            c = "0" if t == 0 else vr(YACC, 4)
            k(f"v_mfma_f32_16x16x32_bf16 {vr(YACC, 4)}, {vr(YPF + 4 * t, 4)}, {vr(YZB + 4 * t, 4)}, {c}")
        check_valid(k, range(YPF, YPF + 20), YT)
        spin_check(k, bail)
        k(f"s_cbranch_vccnz {L('ppoll')}")
    stamp(k, cfg, 3)
    if w == 0: rt(k, cfg, 1)
    lq.ds(f"ds_write_b128 v{YV_RW}, {vr(YACC, 4)}", 'rw')
    lq.all()
    k("s_barrier")
    if w == 0:
        for u in range(4):
            lq.ds(f"ds_read2st64_b32 {vr(YT + 2 * u, 2)}, v{YV_RR} offset0:{2*u} offset1:{2*u+1}", ('rr', u))
        lq.wait(('rr', 1))
        k(f"v_add_f32 v{YT}, v{YT}, v{YT+1}")
        k(f"v_add_f32 v{YT+2}, v{YT+2}, v{YT+3}")
        lq.wait(('rr', 3))
        k(f"v_add_f32 v{YT+4}, v{YT+4}, v{YT+5}")
        k(f"v_add_f32 v{YT+6}, v{YT+6}, v{YT+7}")
        k(f"v_add_f32 v{YT}, v{YT}, v{YT+2}")
        k(f"v_add_f32 v{YT+4}, v{YT+4}, v{YT+6}")
        k(f"v_add_f32 v{YT}, v{YT}, v{YT+4}")
        k("s_nop 1")
        k(f"v_mov_b32_dpp v{YT+1}, v{YT} quad_perm:[1,0,3,2] row_mask:0xf bank_mask:0xf")
        k(f"v_cvt_pk_bf16_f32 v{YT+8}, v{YT}, v{YT+1}")
        k("s_nop 1")
        for j in range(1, 4):
            k(f"v_mov_b32_dpp v{YT+8+j}, v{YT+8} row_shl:{2*j} row_mask:0xf bank_mask:0xf")
        k(f"s_mov_b64 exec, s[{S_M8}:{S_M8+1}]")
        k(f"buffer_store_dwordx4 {vr(YT + 8, 4)}, v{YV_MO}, {srd}, s{S_SBN} offen sc1")
        if YC: k(f"buffer_store_dwordx4 {vr(YT + 8, 4)}, v{YV_MO}, {srd}, s{S_SBNF} offen sc1")
        k("s_mov_b64 exec, -1")
        if cfg.get('ovl'):
            k(f"s_lshl_b32 s{S_T}, s{S_ROLE}, 7")
            k(f"s_add_u32 s{S_T}, s{S_T}, {FL_YF}")
            flag_store(k, cfg, S_T, S_T + 9, YT, YT + 1)
        stamp(k, cfg, 4)
        rt(k, cfg, 2)
        if AW: k("s_waitcnt vmcnt(0)")
        rt_flush(k, cfg, 32)
        stamp_flush(k, cfg, 5, cfg.get('stamp_y', 0))
    if AW: k("s_barrier")
    k(f"s_add_u32 s{S_STEP}, s{S_STEP}, 1")
    k(f"s_branch {L('step')}")
    if cfg.get('ovl'):
        lab('last')
        k("s_waitcnt vmcnt(0)")
        k("s_barrier")
        if w == 0:
            k(f"s_lshl_b32 s{S_T}, s{S_ROLE}, 7")
            k(f"s_add_u32 s{S_T}, s{S_T}, {FL_YF}")
            k(f"s_mov_b32 s{S_T+9}, {NSTEP}")
            flag_store(k, cfg, S_T, S_T + 9, YT, YT + 1)
        k(f"s_branch {k.ref('end')}")

def role_assign(k, cfg):
    k(f"s_lshl_b32 s19, s{S_LAYER}, 11")
    k(f"s_add_u32 s19, s19, {CT_TICK}")
    k("s_getreg_b32 s20, hwreg(HW_REG_XCC_ID)")
    k("s_and_b32 s20, s20, 7")
    if cfg.get('fake_xcc') is not None:
        k(f"s_and_b32 s20, s2, {cfg['fake_xcc']}")
    k(f"s_cmp_lg_u32 s{S_WAVE}, 0")
    k(f"s_cbranch_scc1 {k.ref('tk_wait')}")
    k("s_lshl_b32 s22, s20, 8")
    k("s_add_u32 s22, s22, s19")
    k("s_mov_b64 exec, 1")
    k("v_mov_b32 v2, 0")
    k("v_mov_b32 v3, 1")
    k(f"buffer_atomic_add v3, v2, {srd}, s22 offen sc0 sc1")
    k("s_waitcnt vmcnt(0)")
    k("s_mov_b64 exec, -1")
    k("s_nop 0")
    k("v_readfirstlane_b32 s21, v3")
    k("s_cmp_lt_u32 s21, 32")
    k(f"s_cbranch_scc1 {k.ref('tk_pub')}")
    k("v_lshlrev_b32 v2, 8, v0")
    k("v_and_b32 v2, 0x7ff, v2")
    k("s_mov_b32 s22, s19")
    k.lab('tk_poll')
    k(f"buffer_load_dword v3, v2, {srd}, s22 offen sc1")
    k("s_waitcnt vmcnt(0)")
    k("s_mov_b32 s23, 0")
    for x in range(8):
        k(f"v_readlane_b32 s{24+x}, v3, {x}")
        k("s_nop 0")
        k(f"s_add_u32 s23, s23, s{24+x}")
    spin_check(k, k.ref('bail'))
    k("s_cmp_lt_u32 s23, 256")
    k(f"s_cbranch_scc1 {k.ref('tk_poll')}")
    k("s_sub_u32 s21, s21, 32")
    for x in range(7):
        k(f"s_max_u32 s23, s{24+x}, 32")
        k("s_sub_u32 s23, s23, 32")
        k(f"s_cmp_gt_u32 s20, {x}")
        k("s_cselect_b32 s23, s23, 0")
        k("s_add_u32 s21, s21, s23")
    for x in range(8):
        k(f"s_min_u32 s23, s{24+x}, 32")
        k("s_sub_u32 s22, 32, s23")
        k("s_cmp_lt_u32 s21, s22")
        k(f"s_cbranch_scc0 {k.ref(f'tk_n{x}')}")
        k(f"s_mov_b32 s20, {x}")
        k("s_add_u32 s21, s21, s23")
        k(f"s_branch {k.ref('tk_pub')}")
        k.lab(f'tk_n{x}')
        k("s_sub_u32 s21, s21, s22")
    k(f"s_branch {k.ref('bail')}")
    k.lab('tk_pub')
    k("s_lshl_b32 s22, s20, 8")
    k("s_or_b32 s22, s22, s21")
    k("v_mov_b32 v2, 0")
    k("v_mov_b32 v3, s22")
    k("ds_write_b32 v2, v3")
    k("s_waitcnt lgkmcnt(0)")
    k.lab('tk_wait')
    k("s_barrier")
    k("v_mov_b32 v2, 0")
    k("ds_read_b32 v3, v2")
    k("s_waitcnt lgkmcnt(0)")
    k("v_readfirstlane_b32 s22, v3")
    k("s_barrier")
    k("s_lshr_b32 s20, s22, 8")
    k("s_and_b32 s21, s22, 255")

def build_chain(name, layer, cfg=None):
    import work
    cfg = cfg or {}
    k = K(name if layer is not None else name + "1", vgpr=256, sgpr=100, agpr=256)
    stub = None
    if layer is None:
        stub = K(name + "2", vgpr=256, sgpr=100, agpr=256)
        stub(f"s_mov_b32 s{S_LAYER}, 1")
        stub(f"s_branch {k.ref('body')}")
        k(f"s_mov_b32 s{S_LAYER}, 0")
        k.lab('body')
    else:
        k(f"s_mov_b32 s{S_LAYER}, {layer}")
    k("s_cmp_ge_u32 s2, 256")
    k(f"s_cbranch_scc1 {k.ref('end0')}")
    if cfg.get('rt'): k("s_memrealtime s[90:91]")
    k.ptr(KA_WS, S_WS)
    k.ptr(KA_OUT, 6)
    k("v_lshrrev_b32 v1, 6, v0")
    k("v_and_b32 v0, 63, v0")
    k("s_nop 0")
    k(f"v_readfirstlane_b32 s{S_WAVE}, v1")
    k(f"s_mov_b32 s{S_SPIN}, {SPIN}")
    k("s_waitcnt lgkmcnt(0)")
    k.srd(SRD, S_WS, WS_BYTES)
    k(f"s_add_u32 s22, s{S_WS}, {A_X2}")
    k(f"s_addc_u32 s23, s{S_WS+1}, 0")
    k(f"s_cmp_eq_u32 s{S_LAYER}, 0")
    k(f"s_cselect_b32 s{S_OSRD}, s22, s6")
    k(f"s_cselect_b32 s{S_OSRD+1}, s23, s7")
    k(f"s_mov_b32 s{S_OSRD+2}, {2048 * 640 * 2}")
    k(f"s_mov_b32 s{S_OSRD+3}, 0x00020000")
    k(f"s_mul_i32 s{S_FL}, s{S_LAYER}, {FL_LAYER}")
    k(f"s_add_u32 s{S_FL}, s{S_FL}, {CT_FLAG}")
    role_assign(k, cfg)
    if cfg.get('rt'):
        k("s_lshl_b32 s92, s20, 8"); k("s_or_b32 s92, s92, s21")
    k(f"s_sub_u32 s22, 0, s{S_WS}")
    k("s_and_b32 s22, s22, 0x1fffff")
    k(f"s_lshl_b32 s23, s{S_LAYER}, 3")
    k(f"s_add_u32 s23, s23, {CT_PAR}")
    k(f"s_buffer_load_dwordx2 s[24:25], {srd}, s23")
    k("s_waitcnt lgkmcnt(0)")
    k("s_and_b32 s24, s24, 8192")
    k("s_and_b32 s25, s25, 8192")
    for f, p in ((S_FD0, 24), (S_FD1, 25)):
        k(f"s_lshl_b32 s{f}, s{p}, 1")
        k(f"s_sub_u32 s{f}, 8192, s{f}")
    k(f"s_mul_i32 s23, s{S_LAYER}, {2 * EX_BLOCK}")
    k("s_add_u32 s22, s22, s23")
    k(f"s_add_u32 s{S_EB0}, s22, s24")
    k(f"s_add_u32 s{S_EB1}, s22, s25")
    k(f"s_add_u32 s{S_EB1}, s{S_EB1}, {EX_BLOCK}")
    k(f"s_mov_b32 s{S_M8}, 0x01010101")
    k(f"s_mov_b32 s{S_M8+1}, 0x01010101")
    k(f"s_mov_b32 s{S_M2}, 0x00010001")
    k(f"s_mov_b32 s{S_M2+1}, 0")
    p_setup_lanes(k)
    ovl = cfg.get('ovl')
    other = k.ref('w3') if ovl else k.ref('end')
    if cfg.get('spread', 0):
        k("s_cmp_ge_u32 s20, 4")
        k(f"s_cbranch_scc1 {k.ref('proj') if ovl else k.ref('end')}")
        k("s_cmp_ge_u32 s21, 28")
        k(f"s_cbranch_scc1 {other}")
        k("s_cmp_ge_u32 s21, 8")
        k(f"s_cbranch_scc1 {k.ref('notp')}")
        k("s_lshl_b32 s22, s20, 3")
        k(f"s_add_u32 s{S_ROLE}, s22, s21")
        for w in range(4):
            k(f"s_cmp_eq_u32 s{S_WAVE}, {w}")
            k(f"s_cbranch_scc1 {k.ref(f'p{w}_start')}")
        k.lab('notp')
        k("s_mul_i32 s22, s20, 20")
        k("s_add_u32 s22, s22, s21")
        k(f"s_sub_u32 s{S_ROLE}, s22, 8")
    else:
        k("s_cmp_eq_u32 s20, 0")
        k(f"s_cbranch_scc0 {k.ref('notp')}")
        k(f"s_mov_b32 s{S_ROLE}, s21")
        for w in range(4):
            k(f"s_cmp_eq_u32 s{S_WAVE}, {w}")
            k(f"s_cbranch_scc1 {k.ref(f'p{w}_start')}")
        k.lab('notp')
        k("s_cmp_ge_u32 s20, 4")
        k(f"s_cbranch_scc1 {k.ref('proj') if ovl else k.ref('end')}")
        k("s_cmp_ge_u32 s21, 27")
        k(f"s_cbranch_scc1 {other}")
        k("s_sub_u32 s22, s20, 1")
        k("s_mul_i32 s22, s22, 27")
        k(f"s_add_u32 s{S_ROLE}, s22, s21")
        k(f"s_cmp_ge_u32 s{S_ROLE}, 80")
        k(f"s_cbranch_scc1 {other}")
    for w in range(4):
        k(f"s_cmp_eq_u32 s{S_WAVE}, {w}")
        k(f"s_cbranch_scc1 {k.ref(f'y{w}_start')}")
    k(f"s_branch {k.ref('end')}")
    for w in range(4): gen_p_wave(k, w, cfg)
    for w in range(4): gen_y_wave(k, w, cfg)
    if ovl:
        k.lab('proj')
        k("s_sub_u32 s22, s20, 4")
        k("s_lshl_b32 s22, s22, 5")
        k(f"s_add_u32 s{S_ROLE}, s22, s21")
        k(f"s_mov_b32 s{work.GS_SEG}, 0")
        k(f"s_mov_b32 s{work.GS_END}, 64")
        work.role_gemm(k, S_ROLE, dict(cfg, flag_s=S_FL))
        if cfg.get('rt'):
            k("s_memrealtime s[96:97]"); k("s_waitcnt lgkmcnt(0)"); k("s_mov_b32 s93, s96")
        if cfg.get('w3_join', 128) < 128:
            k(f"s_cmp_ge_u32 s{S_ROLE}, {cfg['w3_join']}")
            k(f"s_cbranch_scc1 {k.ref('end')}")
        k.lab('w3')
        k(f"s_mov_b32 s{S_SPIN}, {SPIN}")
        work.role_w3_loop(k, cfg, S_FL, S_SPIN, f"s[{S_OSRD}:{S_OSRD+3}]", S_LAYER)
        k(f"s_branch {k.ref('end')}")
    k.lab('bail')
    k("s_mov_b64 exec, 1")
    k.ptr(KA_DBG, 6)
    k("s_waitcnt lgkmcnt(0)")
    k.srd(24, 6, 256)
    k("v_mov_b32 v1, 0xdead")
    k(f"v_mov_b32 v2, s{S_STEP}")
    k("v_mov_b32 v3, 0")
    k("buffer_store_dword v1, v3, s[24:27], 0 offen")
    k("buffer_store_dword v2, v3, s[24:27], 0 offen offset:4")
    k.lab('end')
    if cfg.get('rt'):
        k("s_memrealtime s[94:95]")
        k("s_waitcnt lgkmcnt(0)")
        k("s_mov_b64 exec, 1")
        k("s_lshl_b32 s32, s2, 2")
        k(f"s_add_u32 s32, s32, s{S_WAVE}")
        k("s_lshl_b32 s32, s32, 4")
        k(f"s_mul_i32 s33, s{S_LAYER}, 0x200000")
        k("s_add_u32 s32, s32, s33")
        k(f"s_add_u32 s32, s32, {cfg['rt'] + 0x100000}")
        k("v_mov_b32 v253, 0")
        for n, sr in enumerate((90, 94, 92, 93)):
            k(f"v_mov_b32 v254, s{sr}")
            k(f"buffer_store_dword v254, v253, {srd}, s32 offen offset:{4*n}")
            k("s_nop 1")
    k.lab('end0')
    if stub is not None: return k, stub
    return k

if __name__ == "__main__":
    STP = 240 * MB
    extra = eval(sys.argv[1]) if len(sys.argv) > 1 else {}
    ks = [build_chain("chain", 0, dict(extra)),
          build_chain("chainst", 0, dict(extra, stamp=True, stamp_p=STP, stamp_y=STP + 65536)),
          build_chain("chainrt", 0, dict(extra, rt=STP + MB, rt2=1))]
    launches = [(k_, 256, 256, PL_END) for k_ in ks]
    open(sys.argv[2] if len(sys.argv) > 2 else "chain.s", "w").write(listfile(launches, ks))
    print("lds", PL_END)
```

```python
WS_BYTES = 268435456
MB = 1 << 20
EX_BLOCK = 2 * MB
EX_STEP = 65536
CTRL = 10 * MB
CT_TICK = CTRL
CT_PAR = CTRL + 0x10000
CT_FLAG = CTRL + 0x20000
FL_LAYER = 0x10000
FL_G = 0
FL_PF = 0x4000
FL_YF = 0x5000
FL_WA = 0x7800
FL_JOB = 0x7c00
FL_AF = 0x8000
FL_AB = 0x9000
FL_LN = 0xb000
WP = 11 * MB
WY = 26 * MB
KX = 51 * MB
QX = 75 * MB
Z = 99 * MB
KM = 199 * MB
PXB = 205 * MB
XN = 210 * MB
END0 = 213 * MB
A_XN = 213 * MB; A_X1 = 216 * MB; A_QA = 219 * MB; A_KVT = 222 * MB; A_OA = 228 * MB
A_KVZ = 231 * MB; A_PQKVA = 232 * MB; A_PWOA = 235 * MB; A_X2 = 236 * MB
PWA = A_PQKVA
PWO = A_PWOA
OA = A_QA
KVP = A_KVT
KVP_L = MB
XN_SEG = 40960
PX_SEG = 81920

Z_SEG = 80 * 20480
KX_SH = 32 * 384
KM_SH = 8 * 384

def physmap(o):
    return ((o >> 13) << 14) | (o & 8191)

P_LOG = 0
M_LOG = 20480
CAL_LOG = 30720
MARK_LOG = CAL_LOG + 4

def alpha(gb, jb):
    return 32 * (jb >> 3) + 16 * (gb >> 1) + 8 * ((jb >> 1) & 1) + 4 * (gb & 1) + 2 * ((jb >> 2) & 1) + (jb & 1)

def p2e(p):
    return 64 * (p >> 6) + alpha((p >> 4) & 3, p & 15)

def islot(i):
    return 2 * (i & 3) + (i >> 2)
```

```python
import sys, math
sys.path.insert(0, "/code"); sys.path.insert(0, "tools")
from asmk import *
from lay import *

CSC = (192 ** -0.5) * math.log2(math.e)
S_WS = 4; SRD = 8; S_WAVE = 13
srd = f"s[{SRD}:{SRD+3}]"
def vr(b, n): return f"v[{b}:{b+n-1}]" if n > 1 else f"v{b}"
def ar(b, n): return f"a[{b}:{b+n-1}]"

def prologue(k, extra_ptrs=()):
    k.ptr(KA_WS, S_WS)
    for slot, s in extra_ptrs: k.ptr(slot, s)
    k("v_lshrrev_b32 v1, 6, v0")
    k("v_and_b32 v0, 63, v0")
    k("s_nop 0")
    k(f"v_readfirstlane_b32 s{S_WAVE}, v1")
    k("s_waitcnt lgkmcnt(0)")
    k.srd(SRD, S_WS, WS_BYTES)

def ex_delta(k, dst):
    k(f"s_sub_u32 s{dst}, 0, s{S_WS}")
    k(f"s_and_b32 s{dst}, s{dst}, 0x1fffff")

def p2e_lane(k, dst, p, t0, t1):
    k(f"v_and_b32 v{dst}, 0xc1, v{p}")
    k(f"v_and_b32 v{t0}, 8, v{p}")
    k(f"v_lshl_or_b32 v{dst}, v{t0}, 2, v{dst}")
    k(f"v_and_b32 v{t0}, 32, v{p}")
    k(f"v_lshrrev_b32 v{t0}, 1, v{t0}")
    k(f"v_or_b32 v{dst}, v{dst}, v{t0}")
    k(f"v_and_b32 v{t0}, 2, v{p}")
    k(f"v_lshl_or_b32 v{dst}, v{t0}, 2, v{dst}")
    k(f"v_and_b32 v{t0}, 16, v{p}")
    k(f"v_lshrrev_b32 v{t0}, 2, v{t0}")
    k(f"v_or_b32 v{dst}, v{dst}, v{t0}")
    k(f"v_and_b32 v{t0}, 4, v{p}")
    k(f"v_lshrrev_b32 v{t0}, 1, v{t0}")
    k(f"v_or_b32 v{dst}, v{dst}, v{t0}")

def wp_block_off(k, dst, x, isk, t0, t1):
    k(f"v_lshrrev_b32 v{t0}, 4, v{x}")
    k(f"v_mul_u32_u24 v{t1}, 11, v{t0}")
    k(f"v_lshrrev_b32 v{t1}, 5, v{t1}")
    k(f"v_mul_u32_u24 v{t1}, 3, v{t1}")
    k(f"v_add_u32 v{t0}, v{t0}, v{t1}")
    if isk: k(f"v_add_u32 v{t0}, 3, v{t0}")
    k(f"v_mul_u32_u24 v{t0}, 20480, v{t0}")
    k(f"v_and_b32 v{t1}, 15, v{x}")
    k(f"v_lshl_add_u32 v{dst}, v{t1}, 4, v{t0}")

CH_ROW = [0, 1, 8, 9, 2, 3, 10, 11]

def chunk_base_lane(k, dst, c, t0):
    k(f"v_lshrrev_b32 v{dst}, 2, v{c}")
    k(f"v_lshlrev_b32 v{dst}, 5, v{dst}")
    k(f"v_and_b32 v{t0}, 2, v{c}")
    k(f"v_lshl_add_u32 v{dst}, v{t0}, 3, v{dst}")
    k(f"v_and_b32 v{t0}, 1, v{c}")
    k(f"v_lshl_add_u32 v{dst}, v{t0}, 2, v{dst}")

N_WVO = 160
N_PWP = 240
N_CLR = 64
PREP_WG = N_WVO + N_PWP + N_CLR + 1

def role_wvo(k):
    L = lambda s: k.ref('wvo_' + s)
    k.ptr(KA_WV, 24); k.ptr(KA_WO, 26)
    k("s_and_b32 s21, s20, 1")
    k("s_lshr_b32 s22, s20, 1")
    k("s_mul_i32 s23, s22, 205")
    k("s_lshr_b32 s23, s23, 11")
    k("s_mul_i32 s28, s23, 10")
    k("s_sub_u32 s22, s22, s28")
    k("s_waitcnt lgkmcnt(0)")
    k.srd(32, 24, 640 * 6144 * 2)
    k.srd(36, 26, 6144 * 640 * 2)
    VI, VH = 1, 2
    k(f"v_and_b32 v{VI}, 31, v0")
    k(f"v_lshrrev_b32 v{VH}, 5, v0")
    BE, BO, TMP = 16, 64, 112
    k(f"v_mul_u32_u24 v3, {8 * 1280}, v{VH}")
    k(f"v_lshl_add_u32 v3, v{VI}, 2, v3")
    k(f"s_mul_i32 s28, s23, {192*1280}")
    k("s_lshl_b32 s29, s22, 7")
    k("s_add_u32 s28, s28, s29")
    for half in range(2):
        for kk in range(6):
            kap = half * 6 + kk
            for j in range(8):
                row = 16 * kap + j
                k(f"s_add_u32 s29, s28, {row * 1280}")
                k(f"buffer_load_dword v{TMP + 8 * kk + j}, v3, s[36:39], s29 offen")
        k("v_mov_b32 v4, 0x05040100")
        k("v_mov_b32 v5, 0x07060302")
        k("s_waitcnt vmcnt(0)")
        for kk in range(6):
            kap = half * 6 + kk
            for m in range(4):
                k(f"v_perm_b32 v{BE + 4 * kap + m}, v{TMP + 8 * kk + 2 * m + 1}, v{TMP + 8 * kk + 2 * m}, v4")
                k(f"v_perm_b32 v{BO + 4 * kap + m}, v{TMP + 8 * kk + 2 * m + 1}, v{TMP + 8 * kk + 2 * m}, v5")
    k(f"v_lshrrev_b32 v6, 3, v{VI}")
    chunk_base_lane(k, 7, 6, 8)
    k(f"v_and_b32 v8, 7, v{VI}")
    k("v_and_b32 v9, 1, v8")
    k("v_add_u32 v7, v7, v9")
    k("v_and_b32 v9, 2, v8")
    k("v_lshl_add_u32 v7, v9, 2, v7")
    k("v_lshrrev_b32 v9, 2, v8")
    k("v_lshl_add_u32 v7, v9, 1, v7")
    k("v_mul_u32_u24 v7, 12288, v7")
    k(f"v_lshl_add_u32 v7, v{VH}, 4, v7")
    k("s_mul_i32 s28, s23, 384")
    k(f"s_mul_i32 s29, s21, {10 * 32 * 12288}")
    k("s_add_u32 s28, s28, s29")
    k(f"v_lshrrev_b32 v10, 2, v{VI}")
    k("v_mul_u32_u24 v10, 20480, v10")
    k("v_lshlrev_b32 v10, 4, v10")
    k(f"v_and_b32 v11, 3, v{VI}")
    k("v_lshl_add_u32 v10, v11, 5, v10")
    k(f"v_lshl_add_u32 v10, v{VH}, 8, v10")
    k(f"s_mul_i32 s30, s22, {8 * 327680}")
    k("s_lshr_b32 s31, s23, 3")
    k("s_mul_i32 s31, s31, 81920")
    k("s_add_u32 s30, s30, s31")
    k("s_and_b32 s31, s23, 3")
    k("s_mul_i32 s31, s31, 20480")
    k("s_add_u32 s30, s30, s31")
    k("s_bfe_u32 s31, s23, 0x10002")
    k("s_lshl_b32 s31, s31, 7")
    k("s_add_u32 s30, s30, s31")
    k(f"s_mul_i32 s31, s21, 10240")
    k("s_add_u32 s30, s30, s31")
    k(f"s_add_u32 s30, s30, {WY}")
    AF0, AF1, ACC, OUT = 112, 160, 208, 240
    def aload(dst):
        for kap in range(12):
            k(f"buffer_load_dwordx4 {vr(dst + 4 * kap, 4)}, v7, s[32:35], s28 offen offset:{kap * 32}")
        k(f"s_add_u32 s28, s28, {32 * 12288}")
    def tile(src):
        for kap in range(12):
            for t, B in ((0, BE), (1, BO)):
                c = "0" if kap == 0 else vr(ACC + 16 * t, 16)
                k(f"v_mfma_f32_32x32x16_bf16 {vr(ACC + 16 * t, 16)}, {vr(src + 4 * kap, 4)}, {vr(B + 4 * kap, 4)}, {c}")
        k("s_nop 7"); k("s_nop 7")
        for t in range(2):
            a = ACC + 16 * t
            for j in range(2):
                o = OUT + 4 * j
                for q in range(2):
                    k(f"v_cvt_pk_bf16_f32 v{o + 2 * q}, v{a + 8 * j + 4 * q}, v{a + 8 * j + 4 * q + 1}")
                    k(f"v_cvt_pk_bf16_f32 v{o + 2 * q + 1}, v{a + 8 * j + 4 * q + 2}, v{a + 8 * j + 4 * q + 3}")
                k("s_nop 1")
                k(f"v_permlane32_swap_b32 v{o}, v{o + 2}")
                k(f"v_permlane32_swap_b32 v{o + 1}, v{o + 3}")
                k(f"buffer_store_dwordx4 {vr(o, 4)}, v10, {srd}, s30 offen offset:{j * 512 + t * 16}")
            k("s_nop 1")
        k("s_add_u32 s30, s30, 1024")
    aload(AF0)
    k("s_mov_b32 s31, 5")
    k.lab('wvo_loop')
    aload(AF1)
    k("s_waitcnt vmcnt(12)")
    tile(AF0)
    k("s_cmp_eq_u32 s31, 1")
    k(f"s_cbranch_scc1 {L('last')}")
    aload(AF0)
    k("s_waitcnt vmcnt(12)")
    tile(AF1)
    k("s_sub_u32 s31, s31, 1")
    k(f"s_branch {L('loop')}")
    k.lab('wvo_last')
    k("s_waitcnt vmcnt(0)")
    tile(AF1)
    k(f"s_branch {k.ref('end')}")

def role_pwp(k):
    L = lambda s: k.ref('pwp_' + s)
    k("s_mul_i32 s21, s20, 13108"); k("s_lshr_b32 s21, s21, 16")
    k("s_mul_i32 s22, s21, 5"); k("s_sub_u32 s22, s20, s22")
    k("s_mul_i32 s23, s21, 21846"); k("s_lshr_b32 s23, s23, 16")
    k("s_mul_i32 s28, s23, 3"); k("s_sub_u32 s21, s21, s28")
    k("s_lshr_b32 s29, s23, 5")
    k("s_and_b32 s23, s23, 31")
    k("s_cmp_eq_u32 s29, 0")
    k(f"s_cbranch_scc0 {L('k')}")
    k.ptr(KA_WQ, 24)
    k(f"s_branch {L('go')}")
    k.lab('pwp_k')
    k.ptr(KA_WK, 24)
    k.lab('pwp_go')
    k("v_and_b32 v1, 31, v0")
    k("v_lshrrev_b32 v2, 5, v0")
    k("s_lshl_b32 s28, s21, 6")
    k("v_lshlrev_b32 v3, 1, v1")
    k("v_add_u32 v3, s28, v3")
    p2e_lane(k, 4, 3, 5, 6)
    k("s_cmp_eq_u32 s29, 0")
    k("s_cselect_b64 vcc, -1, 0")
    k("s_nop 1")
    k("v_cndmask_b32 v4, v4, v3, vcc")
    wp_block_off(k, 7, 3, 0, 5, 6)
    k(f"s_mul_i32 s30, s29, {3*20480}")
    k("s_mul_i32 s31, s23, 491520")
    k("s_add_u32 s30, s30, s31")
    k(f"s_add_u32 s30, s30, {WP}")
    k("s_lshl_b32 s31, s22, 4")
    k("v_add_u32 v8, s31, v2")
    k("s_waitcnt lgkmcnt(0)")
    k.srd(32, 24, 640 * 6144 * 2)
    k("s_mul_i32 s28, s23, 384")
    RAW, OUT = 16, 80
    for it in range(8):
        k(f"v_add_u32 v9, {2 * it}, v8")
        chunk_base_lane(k, 10, 9, 11)
        k("v_mul_u32_u24 v10, 12288, v10")
        k("v_lshl_add_u32 v10, v4, 1, v10")
        for j in range(8):
            k(f"s_add_u32 s31, s28, {CH_ROW[j] * 12288}")
            k(f"buffer_load_dword v{RAW + 8 * it + j}, v10, s[32:35], s31 offen")
    k("v_lshl_add_u32 v7, v8, 8, v7")
    k("v_mov_b32 v4, 0x05040100")
    k("v_mov_b32 v5, 0x07060302")
    for it in range(8):
        k(f"s_waitcnt vmcnt({8 * (7 - it)})")
        o = OUT + 8 * (it & 1)
        for m in range(4):
            k(f"v_perm_b32 v{o + m}, v{RAW + 8 * it + 2 * m + 1}, v{RAW + 8 * it + 2 * m}, v4")
            k(f"v_perm_b32 v{o + 4 + m}, v{RAW + 8 * it + 2 * m + 1}, v{RAW + 8 * it + 2 * m}, v5")
        k(f"buffer_store_dwordx4 {vr(o, 4)}, v7, {srd}, s30 offen offset:{it * 512}")
        k(f"buffer_store_dwordx4 {vr(o + 4, 4)}, v7, {srd}, s30 offen offset:{it * 512 + 16}")
        if it >= 1: k("s_nop 0")
    k(f"s_branch {k.ref('end')}")

def role_clear(k):
    ex_delta(k, 21)
    per = 4 * EX_BLOCK // N_CLR
    k(f"s_mul_i32 s22, s20, {per}")
    k("s_add_u32 s21, s21, s22")
    k(f"s_lshl_b32 s22, s{S_WAVE}, 10")
    k("s_add_u32 s21, s21, s22")
    k("v_lshlrev_b32 v1, 4, v0")
    for r in range(4, 8): k(f"v_mov_b32 v{r}, -1")
    k(f"s_mov_b32 s22, {per // 4096}")
    k.lab('clr_loop')
    k(f"buffer_store_dwordx4 v[4:7], v1, {srd}, s21 offen")
    k("s_add_u32 s21, s21, 4096")
    k("s_sub_u32 s22, s22, 1")
    k("s_cmp_lg_u32 s22, 0")
    k(f"s_cbranch_scc1 {k.ref('clr_loop')}")
    k(f"s_branch {k.ref('end')}")

CAL_N = 5
def role_ctl(k):
    k("v_lshlrev_b32 v1, 4, v0")
    for r in range(4, 8): k(f"v_mov_b32 v{r}, 0")
    k(f"s_lshl_b32 s21, s{S_WAVE}, 10")
    k(f"s_add_u32 s21, s21, {CT_TICK}")
    k(f"buffer_store_dwordx4 v[4:7], v1, {srd}, s21 offen")
    k(f"s_lshl_b32 s21, s{S_WAVE}, 15")
    k(f"s_add_u32 s21, s21, {CT_FLAG}")
    assert 4 * 32768 == 2 * FL_LAYER
    for i in range(32):
        k(f"buffer_store_dwordx4 v[4:7], v1, {srd}, s21 offen offset:{(i % 4) * 1024}")
        if i % 4 == 3: k("s_add_u32 s21, s21, 4096")
    ex_delta(k, 22)
    k("s_getreg_b32 s23, hwreg(HW_REG_XCC_ID)")
    k("s_bfe_u32 s23, s23, 0x10002")
    k("s_mov_b64 exec, 1")
    k("v_mov_b32 v1, 0")
    cal = physmap(CAL_LOG)
    k(f"s_mul_i32 s24, s{S_WAVE}, {EX_BLOCK}")
    k("s_add_u32 s22, s22, s24")
    k(f"s_add_u32 s22, s22, {31 * EX_STEP + cal}")
    k("s_mov_b32 s30, -1")
    k("s_mov_b32 s31, -1")
    k(f"s_mov_b32 s25, {CAL_N}")
    k.lab('cal')
    for p in range(2):
        k(f"s_add_u32 s24, s22, {p * 8192}")
        k("s_memrealtime s[26:27]")
        k("s_waitcnt lgkmcnt(0)")
        k(f"buffer_store_dword v1, v1, {srd}, s24 offen sc1")
        k("s_waitcnt vmcnt(0)")
        k(f"buffer_load_dword v2, v1, {srd}, s24 offen sc1")
        k("s_waitcnt vmcnt(0)")
        k("s_memrealtime s[28:29]")
        k("s_waitcnt lgkmcnt(0)")
        k("s_sub_u32 s26, s28, s26")
        k(f"s_min_u32 s{30 + p}, s{30 + p}, s26")
    k("s_sub_u32 s25, s25, 1")
    k("s_cmp_lg_u32 s25, 0")
    k(f"s_cbranch_scc1 {k.ref('cal')}")
    k("s_cmp_lt_u32 s31, s30")
    k("s_cselect_b32 s24, 1, 0")
    k("s_xor_b32 s24, s24, s23")
    k("s_lshl_b32 s24, s24, 13")
    k("v_mov_b32 v3, s24")
    k(f"s_lshl_b32 s25, s{S_WAVE}, 2")
    k(f"s_add_u32 s25, s25, {CT_PAR}")
    k(f"buffer_store_dword v3, v1, {srd}, s25 offen")
    k("s_lshl_b32 s26, s30, 16")
    k("s_or_b32 s26, s26, s31")
    k("v_mov_b32 v3, s26")
    k(f"buffer_store_dword v3, v1, {srd}, s25 offen offset:64")
    k(f"s_branch {k.ref('end')}")

def build_prep(name="prep", newa=False):
    import aly
    k = K(name, vgpr=248, sgpr=64)
    total = PREP_WG + (aly.N_PWA + aly.N_PWO if newa else 0)
    k(f"s_cmp_ge_u32 s2, {total}")
    k(f"s_cbranch_scc1 {k.ref('end')}")
    prologue(k)
    k("s_cmp_eq_u32 s2, 0")
    k(f"s_cbranch_scc1 {k.ref('r_ctl')}")
    k("s_sub_u32 s20, s2, 1")
    if newa:
        k(f"s_cmp_lt_u32 s20, {aly.N_PWA}")
        k(f"s_cbranch_scc1 {k.ref('r_pwa')}")
        k(f"s_sub_u32 s20, s20, {aly.N_PWA}")
        k(f"s_cmp_lt_u32 s20, {aly.N_PWO}")
        k(f"s_cbranch_scc1 {k.ref('r_pwo')}")
        k(f"s_sub_u32 s20, s20, {aly.N_PWO}")
    k(f"s_cmp_lt_u32 s20, {N_WVO}")
    k(f"s_cbranch_scc1 {k.ref('r_wvo')}")
    k(f"s_sub_u32 s20, s20, {N_WVO}")
    k(f"s_cmp_lt_u32 s20, {N_PWP}")
    k(f"s_cbranch_scc1 {k.ref('r_pwp')}")
    k(f"s_sub_u32 s20, s20, {N_PWP}")
    role_clear(k)
    k.lab('r_ctl'); role_ctl(k)
    k.lab('r_wvo')
    k("s_lshl_b32 s20, s20, 2"); k(f"s_add_u32 s20, s20, s{S_WAVE}")
    role_wvo(k)
    k.lab('r_pwp')
    k("s_lshl_b32 s20, s20, 2"); k(f"s_add_u32 s20, s20, s{S_WAVE}")
    role_pwp(k)
    if newa:
        k.lab('r_pwa'); aly.role_pwa(k)
        k.lab('r_pwo')
        k("s_lshl_b32 s20, s20, 2"); k(f"s_add_u32 s20, s20, s{S_WAVE}")
        aly.role_pwo(k)
    k.lab('end')
    return k, total

def wave_sum(k, v, tmp, s0):
    k("s_nop 1")
    k(f"v_add_f32 v{tmp}, v{v}, v{v} quad_perm:[1,0,3,2] row_mask:0xf bank_mask:0xf")
    k("s_nop 1")
    k(f"v_add_f32 v{tmp}, v{tmp}, v{tmp} quad_perm:[2,3,0,1] row_mask:0xf bank_mask:0xf")
    k("s_nop 1")
    k(f"v_add_f32 v{tmp}, v{tmp}, v{tmp} row_half_mirror row_mask:0xf bank_mask:0xf")
    k("s_nop 1")
    k(f"v_add_f32 v{tmp}, v{tmp}, v{tmp} row_mirror row_mask:0xf bank_mask:0xf")
    k("s_nop 1")
    for i in range(4): k(f"v_readlane_b32 s{s0+i}, v{tmp}, {16*i}")
    k("s_nop 1")
    k(f"v_mov_b32 v{v}, s{s0}")
    for i in range(1, 4): k(f"v_add_f32 v{v}, s{s0+i}, v{v}")

def build_lnb(name, layer, src_off):
    k = K(name, vgpr=32, sgpr=48)
    k("s_cmp_gt_u32 s2, 512")
    k(f"s_cbranch_scc1 {k.ref('end')}")
    prologue(k, [(KA_MEM0, 6)])
    k("s_cmp_eq_u32 s2, 512")
    k(f"s_cbranch_scc1 {k.ref('mem0')}")
    k("s_lshl_b32 s20, s2, 2")
    k(f"s_add_u32 s20, s20, s{S_WAVE}")
    k("s_mul_i32 s21, s20, 1280")
    k(f"s_add_u32 s21, s21, {src_off}")
    k("v_lshlrev_b32 v3, 2, v0")
    for j in range(5): k(f"buffer_load_dword v{4+j}, v3, {srd}, s21 offen offset:{j*256}")
    k("v_lshrrev_b32 v20, 4, v0")
    k("v_lshlrev_b32 v20, 2, v20")
    k("v_bfe_u32 v21, v0, 3, 1")
    k("v_lshl_add_u32 v20, v21, 1, v20")
    k("v_bfe_u32 v21, v0, 1, 1")
    k("v_add_u32 v20, v20, v21")
    k("v_lshlrev_b32 v20, 9, v20")
    k("v_and_b32 v21, 1, v0")
    k("v_lshl_add_u32 v20, v21, 3, v20")
    k("v_bfe_u32 v21, v0, 2, 1")
    k("v_lshl_add_u32 v23, v21, 2, v20")
    k("s_lshr_b32 s22, s20, 5")
    k(f"s_mul_i32 s22, s22, {XN_SEG}")
    k("s_and_b32 s23, s20, 31")
    k("s_lshl_b32 s23, s23, 4")
    k("s_add_u32 s22, s22, s23")
    k(f"s_add_u32 s22, s22, {XN}")
    k("s_waitcnt vmcnt(0)")
    for j in range(5):
        k(f"v_lshlrev_b32 v{10+2*j}, 16, v{4+j}")
        k(f"v_and_b32 v{11+2*j}, 0xffff0000, v{4+j}")
    k("v_add_f32 v20, v10, v11")
    for j in range(2, 10): k(f"v_add_f32 v20, v20, v{10+j}")
    wave_sum(k, 20, 21, 24)
    k(f"v_mul_f32 v20, {hexf(1.0/640)}, v20")
    for j in range(10): k(f"v_sub_f32 v{10+j}, v{10+j}, v20")
    k("v_mul_f32 v21, v10, v10")
    for j in range(1, 10): k(f"v_fmac_f32 v21, v{10+j}, v{10+j}")
    wave_sum(k, 21, 22, 24)
    k("v_mov_b32 v22, 0x3727c5ac")
    k(f"v_fmac_f32 v22, {hexf(1.0/640)}, v21")
    k("v_rsq_f32 v22, v22")
    k("s_nop 0")
    for j in range(10): k(f"v_mul_f32 v{10+j}, v{10+j}, v22")
    for j in range(5): k(f"v_cvt_pk_bf16_f32 v{4+j}, v{10+2*j}, v{11+2*j}")
    for j in range(5):
        k(f"s_add_u32 s23, s22, {j * 16 * 512}")
        k(f"buffer_store_dword v{4+j}, v23, {srd}, s23 offen")
    k(f"s_branch {k.ref('end')}")
    k.lab('mem0')
    k.srd(16, 6, 8 * 640 * 2)
    ex_delta(k, 22)
    k(f"s_mov_b32 s23, {CT_PAR + 8 * layer}")
    k(f"s_buffer_load_dword s24, {srd}, s23")
    k("s_waitcnt lgkmcnt(0)")
    k("s_and_b32 s24, s24, 8192")
    k(f"s_add_u32 s22, s22, {2 * layer * EX_BLOCK}")
    k("s_xor_b32 s25, s24, 8192")
    k("s_add_u32 s26, s22, s25")
    k("s_add_u32 s22, s22, s24")
    k(f"s_lshl_b32 s25, s{S_WAVE}, 6")
    k("v_add_u32 v1, s25, v0")
    for it in range(3):
        k(f"v_add_u32 v2, {256 * it}, v1")
        k("v_and_b32 v3, 7, v2")
        k("v_mul_u32_u24 v3, 1280, v3")
        k("v_lshrrev_b32 v4, 3, v2")
        k("v_lshl_add_u32 v3, v4, 4, v3")
        k("v_lshlrev_b32 v5, 4, v2")
        k(f"v_add_u32 v5, {M_LOG}, v5")
        k("v_lshrrev_b32 v6, 13, v5")
        k("v_lshlrev_b32 v6, 14, v6")
        k("v_and_b32 v5, 8191, v5")
        k("v_add_u32 v5, v5, v6")
        k("v_cmp_gt_u32 vcc, 640, v2")
        k("s_and_saveexec_b64 s[30:31], vcc")
        sk = k.ref(f'm0s{it}')
        k(f"s_cbranch_execz {sk}")
        k("buffer_load_dwordx4 v[8:11], v3, s[16:19], 0 offen")
        k("s_waitcnt vmcnt(0)")
        k(f"buffer_store_dwordx4 v[8:11], v5, {srd}, s22 offen")
        k(f"buffer_store_dwordx4 v[8:11], v5, {srd}, s26 offen")
        k.lab(f'm0s{it}')
        k("s_mov_b64 exec, s[30:31]")
    k.lab('end')
    return k, 513

G_LDS = 3 * XN_SEG
GV_L16 = 1; GV_RD = 2; GV_ST = 3; GV_W = 4
G_RING = 8; G_NR = 8
G_ACC = 40
G_OUT = 104
G_WV = 192
GS_SEG = 14; GS_END = 15; GS_BUF = 16; GS_ST0 = 17; GS_ST1 = 18; GS_DMA = 19; GS_INC = 20; GS_LB = 21; GS_NB = 22

def gw(kap, t):
    n = kap * 2 + t
    return ar(4 * n, 4) if n < 64 else vr(G_WV + 4 * (n - 64), 4)

def gemm_body(k, isu, tag, cfg):
    L = lambda s: k.ref(f"g{tag}_{s}")
    lab = lambda s: k.lab(f"g{tag}_{s}")
    ovl = cfg.get('ovl'); SC1 = " sc1" if ovl else ""
    nfl = [0]
    def flag(val_s):
        if not ovl: return
        nfl[0] += 1
        sk = f"g{tag}_fl{nfl[0]}"
        k(f"s_cmp_lg_u32 s{S_WAVE}, 0")
        k(f"s_cbranch_scc1 {k.ref(sk)}")
        k("s_mov_b64 exec, 1")
        k(f"s_lshl_b32 s26, s{cfg['cg_s']}, 7")
        k("v_mov_b32 v7, s26")
        k(f"v_mov_b32 v{G_OUT + 16}, s{val_s}")
        k(f"buffer_store_dword v{G_OUT + 16}, v7, {srd}, s{cfg['flag_s']} offen sc1")
        k("s_mov_b64 exec, -1")
        k.lab(sk)
    def dma(seg_s):
        k(f"s_min_u32 s24, s{seg_s}, 63")
        k(f"s_mul_i32 s24, s24, {XN_SEG}")
        k(f"s_add_u32 s24, s24, s{GS_DMA}")
        k(f"s_mul_i32 s25, s{S_WAVE}, 10240")
        k(f"s_add_u32 s25, s25, s{GS_NB}")
        for grp in range(3):
            k(f"s_mov_b32 m0, s25")
            k("s_nop 0")
            for i in range(4 if grp < 2 else 2):
                k(f"buffer_load_dwordx4 v{GV_L16}, {srd}, s24 offen offset:{i * 1024} lds")
            if grp < 2:
                k("s_add_u32 s24, s24, 4096"); k("s_add_u32 s25, s25, 4096")
    def nextbuf(dst, src):
        k(f"s_add_u32 s{dst}, s{src}, {XN_SEG}")
        k(f"s_cmp_eq_u32 s{dst}, {G_LDS}")
        k(f"s_cselect_b32 s{dst}, 0, s{dst}")
    k(f"s_mul_i32 s{GS_DMA}, s{S_WAVE}, 10240")
    k(f"s_add_u32 s{GS_DMA}, s{GS_DMA}, {XN}")
    k(f"s_mov_b32 s{GS_NB}, 0")
    dma(GS_SEG)
    k(f"s_mov_b32 s{GS_NB}, {XN_SEG}")
    k(f"s_add_u32 s23, s{GS_SEG}, 1")
    dma(23)
    k(f"s_mov_b32 s{GS_NB}, {2 * XN_SEG}")
    k(f"s_mov_b32 s{GS_BUF}, 0")
    k("s_waitcnt vmcnt(10)")
    k("s_barrier")
    k(f"v_mov_b32 v{GV_RD}, v{GV_L16}")
    for r in range(G_NR - 2):
        k(f"ds_read_b128 {vr(G_RING + 4 * r, 4)}, v{GV_RD} offset:{r * 1024}")
    PRE = G_NR - 2
    def epilogue_items(par):
        it = []
        for t in range(2):
            a = G_ACC + 32 * par + 16 * t
            for j in range(2):
                o = G_OUT + 4 * ((2 * t + j) & 3)
                for q in range(2):
                    it.append(f"v_cvt_pk_bf16_f32 v{o + 2 * q}, v{a + 8 * j + 4 * q}, v{a + 8 * j + 4 * q + 1}")
                    it.append(f"v_cvt_pk_bf16_f32 v{o + 2 * q + 1}, v{a + 8 * j + 4 * q + 2}, v{a + 8 * j + 4 * q + 3}")
                it.append("s_nop 1")
                it.append(f"v_permlane32_swap_b32 v{o}, v{o + 2}")
                it.append(f"v_permlane32_swap_b32 v{o + 1}, v{o + 3}")
                if isu: it.append(f"buffer_store_dwordx4 {vr(o, 4)}, v{GV_ST}, {srd}, s{GS_ST0} offen offset:{t * 2560 + j * 256}{SC1}")
                else:   it.append(f"buffer_store_dwordx4 {vr(o, 4)}, v{GV_ST}, {srd}, s{GS_ST0 + t} offen offset:{j * 1024}{SC1}")
        it.append(f"s_add_u32 s{GS_ST0}, s{GS_ST0}, s{GS_INC}")
        it.append(f"s_add_u32 s{GS_ST1}, s{GS_ST1}, s{GS_INC}")
        return it
    def segment(par, first):
        side = {i: [] for i in range(80)}
        if not first:
            for n, it in enumerate(epilogue_items(par ^ 1)): side[4 + n].append(it)
        for kap in range(40):
            slot = kap % G_NR
            nk = kap + PRE
            if nk == 40:
                k(f"v_add_u32 v{GV_RD + 4}, s{GS_LB}, v{GV_L16}")
            rb = GV_RD if nk < 40 else GV_RD + 4
            k(f"ds_read_b128 {vr(G_RING + 4 * (nk % G_NR), 4)}, v{rb} offset:{(nk % 40) * 1024}")
            k(f"s_waitcnt lgkmcnt({PRE})")
            x = vr(G_RING + 4 * slot, 4)
            for t in range(2):
                d = vr(G_ACC + 32 * par + 16 * t, 16)
                c = "0" if kap == 0 else d
                if isu: k(f"v_mfma_f32_32x32x16_bf16 {d}, {x}, {gw(kap, t)}, {c}")
                else:   k(f"v_mfma_f32_32x32x16_bf16 {d}, {gw(kap, t)}, {x}, {c}")
                for it in side[2 * kap + t]: k(it)
            if kap == 28:
                if first or not ovl:
                    k("s_waitcnt vmcnt(0)" if first else "s_waitcnt vmcnt(4)")
                    k("s_barrier")
                else:
                    nfl[0] += 1
                    l1 = f"g{tag}_dr{nfl[0]}"; l2 = f"g{tag}_dq{nfl[0]}"
                    k(f"s_cmp_gt_u32 s{GS_SEG}, 2")
                    k(f"s_cbranch_scc1 {k.ref(l1)}")
                    k("s_waitcnt vmcnt(0)")
                    k(f"s_mov_b32 s27, s{GS_SEG}")
                    k(f"s_branch {k.ref(l2)}")
                    k.lab(l1)
                    k("s_waitcnt vmcnt(4)")
                    k(f"s_sub_u32 s27, s{GS_SEG}, 1")
                    k.lab(l2)
                    k("s_barrier")
                    flag(27)
                nextbuf(GS_LB, GS_BUF)
                k(f"s_add_u32 s23, s{GS_SEG}, 2")
                dma(23)
                nextbuf(GS_NB, GS_NB)
        k(f"v_mov_b32 v{GV_RD}, v{GV_RD + 4}")
        k(f"s_mov_b32 s{GS_BUF}, s{GS_LB}")
        k(f"s_add_u32 s{GS_SEG}, s{GS_SEG}, 1")
    segment(0, True)
    k(f"s_cmp_ge_u32 s{GS_SEG}, s{GS_END}")
    k(f"s_cbranch_scc1 {L('fin0')}")
    lab('loop')
    segment(1, False)
    k(f"s_cmp_ge_u32 s{GS_SEG}, s{GS_END}")
    k(f"s_cbranch_scc1 {L('fin1')}")
    segment(0, False)
    k(f"s_cmp_lt_u32 s{GS_SEG}, s{GS_END}")
    k(f"s_cbranch_scc1 {L('loop')}")
    lab('fin0')
    k("s_nop 7"); k("s_nop 7")
    for it in epilogue_items(0): k(it)
    k(f"s_branch {L('done')}")
    lab('fin1')
    k("s_nop 7"); k("s_nop 7")
    for it in epilogue_items(1): k(it)
    lab('done')
    k("s_waitcnt vmcnt(0) lgkmcnt(0)")
    if ovl:
        k("s_barrier")
        flag(GS_SEG)

def role_gemm(k, cg_s, cfg=None):
    cfg = dict(cfg or {}, cg_s=cg_s)
    L = lambda s: k.ref('g_' + s)
    k(f"v_lshlrev_b32 v{GV_L16}, 4, v0")
    k("v_and_b32 v8, 31, v0")
    k("v_lshrrev_b32 v9, 5, v0")
    k(f"s_cmp_ge_u32 s{cg_s}, 80")
    k(f"s_cbranch_scc1 {L('qk')}")
    k("v_lshrrev_b32 v10, 3, v8")
    k("v_and_b32 v11, 7, v8")
    k("v_mul_u32_u24 v12, 20480, v10")
    k("v_lshl_add_u32 v12, v11, 4, v12")
    k(f"v_lshl_add_u32 v{GV_W}, v9, 8, v12")
    k(f"s_mul_i32 s24, s{cg_s}, 327680")
    k(f"s_mul_i32 s25, s{S_WAVE}, 81920")
    k("s_add_u32 s24, s24, s25")
    k(f"s_add_u32 s24, s24, {WY}")
    for kap in range(40):
        if kap % 7 == 0 and kap: k(f"s_add_u32 s24, s24, {7 * 512}")
        for t in range(2):
            k(f"buffer_load_dwordx4 {gw(kap, t)}, v{GV_W}, {srd}, s24 offen offset:{(kap % 7) * 512 + t * 128}")
    k(f"s_lshl_b32 s25, s{S_WAVE}, 3")
    k("v_add_u32 v10, s25, v10")
    k("v_mul_u32_u24 v10, 640, v10")
    k("v_lshl_add_u32 v10, v9, 7, v10")
    k("v_lshl_add_u32 v10, v11, 4, v10")
    k(f"v_add_u32 v{GV_ST}, 128, v10")
    k(f"s_mul_i32 s{GS_ST0}, s{cg_s}, 20480")
    k(f"s_mul_i32 s25, s{GS_SEG}, {Z_SEG}")
    k(f"s_add_u32 s{GS_ST0}, s{GS_ST0}, s25")
    k(f"s_add_u32 s{GS_ST0}, s{GS_ST0}, {Z}")
    k(f"s_mov_b32 s{GS_INC}, {Z_SEG}")
    gemm_body(k, True, 'u', cfg)
    k(f"s_branch {L('done')}")
    k.lab('g_qk')
    k(f"s_sub_u32 s26, s{cg_s}, 80")
    k("s_cmp_ge_u32 s26, 24")
    k("s_cselect_b32 s27, 1, 0")
    k("s_cselect_b32 s28, 24, 0")
    k("s_sub_u32 s26, s26, s28")
    k("s_lshl_b32 s26, s26, 3")
    k(f"s_lshl_b32 s28, s{S_WAVE}, 1")
    k("s_add_u32 s26, s26, s28")
    for t in range(2):
        k(f"s_add_u32 s28, s26, {t}")
        k("s_mul_i32 s29, s28, 171")
        k("s_lshr_b32 s29, s29, 10")
        k("s_mul_i32 s30, s29, 6")
        k("s_sub_u32 s30, s28, s30")
        k(f"s_mul_i32 s31, s29, {KX_SH}")
        k("s_lshl_b32 s32, s30, 11")
        k("s_add_u32 s31, s31, s32")
        k(f"s_mul_i32 s32, s{GS_SEG}, {32 * KX_SH}")
        k("s_add_u32 s31, s31, s32")
        k(f"s_mul_i32 s32, s27, {QX - KX}")
        k("s_add_u32 s31, s31, s32")
        k(f"s_add_u32 s{GS_ST0 + t}, s31, {KX}")
        k("s_lshl_b32 s30, s30, 5")
        k("v_add_u32 v10, s30, v8")
        p2e_lane(k, 11, 10, 12, 13)
        k("s_cmp_eq_u32 s27, 1")
        k("s_cselect_b64 vcc, -1, 0")
        k("s_nop 1")
        k("v_cndmask_b32 v10, v10, v11, vcc")
        wp_block_off(k, 11, 10, 0, 12, 13)
        k(f"v_lshl_add_u32 v{GV_W + t}, v9, 8, v11")
        k("s_xor_b32 s30, s27, 1")
        k(f"s_mul_i32 s30, s30, {3*20480}")
        k("s_mul_i32 s31, s29, 491520")
        k("s_add_u32 s30, s30, s31")
        k(f"s_add_u32 s{34 + t}, s30, {WP}")
    for kap in range(40):
        if kap % 8 == 0 and kap:
            k("s_add_u32 s34, s34, 4096"); k("s_add_u32 s35, s35, 4096")
        for t in range(2):
            k(f"buffer_load_dwordx4 {gw(kap, t)}, v{GV_W + t}, {srd}, s{34 + t} offen offset:{(kap % 8) * 512}")
    k(f"v_mov_b32 v{GV_ST}, v{GV_L16}")
    k(f"s_mov_b32 s{GS_INC}, {32 * KX_SH}")
    gemm_body(k, False, 'k', cfg)
    k.lab('g_done')

def build_gemmb(name="gemmb", nsplit=2):
    k = K(name, vgpr=256, sgpr=64, agpr=256)
    k(f"s_cmp_ge_u32 s2, {128 * nsplit}")
    k(f"s_cbranch_scc1 {k.ref('end')}")
    prologue(k)
    k("s_and_b32 s36, s2, 127")
    k("s_lshr_b32 s37, s2, 7")
    k(f"s_mul_i32 s{GS_SEG}, s37, {64 // nsplit}")
    k(f"s_add_u32 s{GS_END}, s{GS_SEG}, {64 // nsplit}")
    role_gemm(k, 36)
    k.lab('end')
    return k, 128 * nsplit, G_LDS

def role_w3a(k, seg_s, h_s, SC1=""):
    Q, KK, KMF, D1, D2, BI = 16, 64, 112, 160, 176, 192
    T = 208
    k("v_lshlrev_b32 v1, 4, v0")
    k("v_and_b32 v2, 31, v0")
    k("v_lshrrev_b32 v3, 5, v0")
    k(f"s_lshl_b32 s24, s{seg_s}, 5")
    k(f"s_add_u32 s24, s24, s{h_s}")
    k(f"s_mul_i32 s25, s24, {KX_SH}")
    k(f"s_add_u32 s26, s25, {QX}")
    k(f"s_add_u32 s27, s25, {KX}")
    k(f"s_mul_i32 s28, s24, {KM_SH}")
    k(f"s_add_u32 s28, s28, {KM}")
    k("v_and_b32 v4, 7, v0")
    k("v_lshlrev_b32 v4, 4, v4")
    k("v_lshl_add_u32 v4, v3, 7, v4")
    for kap in range(12):
        if kap % 4 == 0 and kap:
            k("s_add_u32 s26, s26, 4096"); k("s_add_u32 s27, s27, 4096")
        k(f"buffer_load_dwordx4 {vr(Q + 4 * kap, 4)}, v1, {srd}, s26 offen offset:{(kap % 4) * 1024}{SC1}")
        k(f"buffer_load_dwordx4 {vr(KK + 4 * kap, 4)}, v1, {srd}, s27 offen offset:{(kap % 4) * 1024}{SC1}")
        k(f"buffer_load_dwordx4 {vr(KMF + 4 * kap, 4)}, v4, {srd}, s28 offen offset:{kap * 256}{SC1}")
    k("v_lshlrev_b32 v5, 2, v3")
    k("v_sub_u32 v5, v2, v5")
    k(f"v_mov_b32 v6, {hexf(-1e30)}")
    for r in range(16):
        k(f"v_cmp_gt_i32 vcc, {(r & 3) + 8 * (r >> 2)}, v5")
        k("s_nop 1")
        k(f"v_cndmask_b32 v{BI + r}, 0, v6, vcc")
    for kap in range(12):
        k(f"s_waitcnt vmcnt({3 * (11 - kap)})")
        k(f"v_mfma_f32_32x32x16_bf16 {vr(D1, 16)}, {vr(KK + 4 * kap, 4)}, {vr(Q + 4 * kap, 4)}, {'0' if kap == 0 else vr(D1, 16)}")
        k(f"v_mfma_f32_32x32x16_bf16 {vr(D2, 16)}, {vr(KMF + 4 * kap, 4)}, {vr(Q + 4 * kap, 4)}, {'0' if kap == 0 else vr(D2, 16)}")
    k("s_nop 7"); k("s_nop 7")
    c = hexf(CSC)
    k(f"v_mov_b32 v7, {c}")
    for r in range(16): k(f"v_fma_f32 v{D1 + r}, v{D1 + r}, v7, v{BI + r}")
    for r in range(4): k(f"v_mul_f32 v{D2 + r}, v{D2 + r}, v7")
    vals = [D1 + r for r in range(16)] + [D2 + r for r in range(4)]
    m, u = T, T + 1
    k(f"v_max3_f32 v{m}, v{vals[0]}, v{vals[1]}, v{vals[2]}")
    rest = vals[3:]
    while len(rest) >= 2:
        k(f"v_max3_f32 v{m}, v{m}, v{rest[0]}, v{rest[1]}"); rest = rest[2:]
    if rest: k(f"v_max_f32 v{m}, v{m}, v{rest[0]}")
    k(f"v_mov_b32 v{u}, v{m}")
    k("s_nop 1")
    k(f"v_permlane32_swap_b32 v{m}, v{u}")
    k(f"v_max_f32 v{m}, v{m}, v{u}")
    for r in vals: k(f"v_sub_f32 v{r}, v{r}, v{m}")
    for r in vals: k(f"v_exp_f32 v{r}, v{r}")
    k("s_nop 0")
    s_ = T + 2
    k(f"v_add_f32 v{s_}, v{vals[0]}, v{vals[1]}")
    for r in vals[2:]: k(f"v_add_f32 v{s_}, v{s_}, v{r}")
    k(f"v_mov_b32 v{u}, v{s_}")
    k("s_nop 1")
    k(f"v_permlane32_swap_b32 v{s_}, v{u}")
    k(f"v_add_f32 v{s_}, v{s_}, v{u}")
    k(f"v_rcp_f32 v{s_}, v{s_}")
    k("s_nop 0")
    for r in vals: k(f"v_mul_f32 v{r}, v{r}, v{s_}")
    k(f"s_mul_i32 s25, s{seg_s}, {PX_SEG}")
    k(f"s_mul_i32 s26, s{h_s}, 2560")
    k("s_add_u32 s25, s25, s26")
    k(f"s_add_u32 s25, s25, {PXB}")
    O = Q
    for j in range(2):
        o = O + 4 * j
        for q in range(2):
            k(f"v_cvt_pk_bf16_f32 v{o + 2 * q}, v{D1 + 8 * j + 4 * q}, v{D1 + 8 * j + 4 * q + 1}")
            k(f"v_cvt_pk_bf16_f32 v{o + 2 * q + 1}, v{D1 + 8 * j + 4 * q + 2}, v{D1 + 8 * j + 4 * q + 3}")
        k("s_nop 1")
        k(f"v_permlane32_swap_b32 v{o}, v{o + 2}")
        k(f"v_permlane32_swap_b32 v{o + 1}, v{o + 3}")
        k(f"buffer_store_dwordx4 {vr(o, 4)}, v1, {srd}, s25 offen offset:{512 + j * 1024}{SC1}")
    k(f"v_cvt_pk_bf16_f32 v{O + 8}, v{D2}, v{D2 + 1}")
    k(f"v_cvt_pk_bf16_f32 v{O + 9}, v{D2 + 2}, v{D2 + 3}")
    k("v_lshlrev_b32 v4, 4, v2")
    k("v_lshl_add_u32 v4, v3, 3, v4")
    k(f"buffer_store_dwordx2 {vr(O + 8, 2)}, v4, {srd}, s25 offen{SC1}")

def build_w3a(name="w3a"):
    k = K(name, vgpr=216, sgpr=48)
    k("s_cmp_ge_u32 s2, 512")
    k(f"s_cbranch_scc1 {k.ref('end')}")
    prologue(k)
    k("s_lshl_b32 s20, s2, 2")
    k(f"s_add_u32 s20, s20, s{S_WAVE}")
    k("s_lshr_b32 s21, s20, 5")
    k("s_and_b32 s22, s20, 31")
    role_w3a(k, 21, 22)
    k.lab('end')
    return k, 512

def role_w3b(k, seg_s, cg_s, res_off, out_srd, out_off, NR=16, SC1=""):
    RING = 32; ACC = 16
    k("v_lshlrev_b32 v1, 4, v0")
    k("v_and_b32 v2, 31, v0")
    k("v_lshrrev_b32 v3, 5, v0")
    k("v_lshrrev_b32 v4, 3, v2")
    k("v_mul_u32_u24 v4, 20480, v4")
    k("v_and_b32 v5, 7, v2")
    k("v_lshl_add_u32 v4, v5, 4, v4")
    k("v_lshl_add_u32 v4, v3, 7, v4")
    k(f"s_mul_i32 s24, s{seg_s}, {Z_SEG}")
    k(f"s_mul_i32 s25, s{cg_s}, {4 * 20480}")
    k("s_add_u32 s24, s24, s25")
    k(f"s_add_u32 s24, s24, {Z}")
    k(f"s_mul_i32 s25, s{seg_s}, {PX_SEG}")
    k(f"s_add_u32 s25, s25, {PXB}")
    k("v_mul_u32_u24 v6, 1280, v2")
    k("v_lshl_add_u32 v6, v3, 4, v6")
    k(f"s_mul_i32 s26, s{seg_s}, {32 * 1280}")
    k(f"s_lshl_b32 s27, s{cg_s}, 6")
    k("s_add_u32 s26, s26, s27")
    k(f"s_add_u32 s27, s26, {res_off}")
    for j in range(2):
        k(f"buffer_load_dwordx4 {vr(8 + 4 * j, 4)}, v6, {srd}, s27 offen offset:{32 * j}")
    def load(kap):
        sl = RING + 8 * (kap % NR)
        if kap % 16 == 0 and kap: k("s_add_u32 s24, s24, 4096")
        if kap % 4 == 0 and kap: k("s_add_u32 s25, s25, 4096")
        k(f"buffer_load_dwordx4 {vr(sl, 4)}, v4, {srd}, s24 offen offset:{(kap % 16) * 256}{SC1}")
        k(f"buffer_load_dwordx4 {vr(sl + 4, 4)}, v1, {srd}, s25 offen offset:{(kap % 4) * 1024}{SC1}")
    for kap in range(NR): load(kap)
    issued = NR
    for kap in range(80):
        k(f"s_waitcnt vmcnt({2 * (issued - 1 - kap)})")
        sl = RING + 8 * (kap % NR)
        k(f"v_mfma_f32_32x32x16_bf16 {vr(ACC, 16)}, {vr(sl, 4)}, {vr(sl + 4, 4)}, {'0' if kap == 0 else vr(ACC, 16)}")
        if kap >= 1 and issued < 80:
            load(issued); issued += 1
    k("s_nop 7"); k("s_nop 7")
    O = RING
    for j in range(2):
        o = O + 4 * j
        for q in range(2):
            k(f"v_cvt_pk_bf16_f32 v{o + 2 * q}, v{ACC + 8 * j + 4 * q}, v{ACC + 8 * j + 4 * q + 1}")
            k(f"v_cvt_pk_bf16_f32 v{o + 2 * q + 1}, v{ACC + 8 * j + 4 * q + 2}, v{ACC + 8 * j + 4 * q + 3}")
        k("s_nop 1")
        k(f"v_permlane32_swap_b32 v{o}, v{o + 2}")
        k(f"v_permlane32_swap_b32 v{o + 1}, v{o + 3}")
        k("s_nop 1")
        for r in range(4):
            a, b, t0, t1 = O + 8, O + 9, O + 10, O + 11
            k(f"v_lshlrev_b32 v{a}, 16, v{o + r}")
            k(f"v_and_b32 v{b}, 0xffff0000, v{o + r}")
            k(f"v_lshlrev_b32 v{t0}, 16, v{8 + 4 * j + r}")
            k(f"v_and_b32 v{t1}, 0xffff0000, v{8 + 4 * j + r}")
            k(f"v_add_f32 v{a}, v{a}, v{t0}")
            k(f"v_add_f32 v{b}, v{b}, v{t1}")
            k(f"v_cvt_pk_bf16_f32 v{o + r}, v{a}, v{b}")
        if out_off is not None:
            k(f"s_add_u32 s27, s26, {out_off}")
            k(f"buffer_store_dwordx4 {vr(o, 4)}, v6, {srd}, s27 offen offset:{32 * j}")
        else:
            k(f"buffer_store_dwordx4 {vr(o, 4)}, v6, {out_srd}, s26 offen offset:{32 * j}")

def build_w3b(name, res_off, out_off):
    NR = 12
    k = K(name, vgpr=32 + 8 * NR, sgpr=48)
    k("s_cmp_ge_u32 s2, 320")
    k(f"s_cbranch_scc1 {k.ref('end')}")
    prologue(k, [(KA_OUT, 6)])
    k.srd(16, 6, 2048 * 640 * 2)
    k("s_lshl_b32 s20, s2, 2")
    k(f"s_add_u32 s20, s20, s{S_WAVE}")
    k("s_mul_i32 s21, s20, 3277"); k("s_lshr_b32 s21, s21, 16")
    k("s_mul_i32 s22, s21, 20"); k("s_sub_u32 s22, s20, s22")
    role_w3b(k, 21, 22, res_off, "s[16:19]", out_off, NR)
    k.lab('end')
    return k, 320

J_PER = 18
NJOB = 64 * J_PER
JL_RED = 0; JL_JOB = 32768

def role_w3b2(k, seg_s, cg_s, res_off, out_srd):
    ACC = 16; T = 48
    AP, AZ0, AZ1 = 160, 0, 80
    k("v_lshlrev_b32 v1, 4, v0")
    k("v_and_b32 v2, 31, v0")
    k("v_lshrrev_b32 v3, 5, v0")
    k("v_lshrrev_b32 v4, 3, v2")
    k("v_mul_u32_u24 v4, 20480, v4")
    k("v_and_b32 v5, 7, v2")
    k("v_lshl_add_u32 v4, v5, 4, v4")
    k("v_lshl_add_u32 v4, v3, 7, v4")
    k(f"s_mul_i32 s24, s{seg_s}, {Z_SEG}")
    k(f"s_mul_i32 s25, s{cg_s}, {8 * 20480}")
    k("s_add_u32 s24, s24, s25")
    k(f"s_mul_i32 s25, s{S_WAVE}, {20 * 256}")
    k("s_add_u32 s24, s24, s25")
    k(f"s_add_u32 s24, s24, {Z}")
    k(f"s_add_u32 s28, s24, {4 * 20480}")
    k(f"s_mul_i32 s25, s{seg_s}, {PX_SEG}")
    k(f"s_mul_i32 s26, s{S_WAVE}, {20 * 1024}")
    k("s_add_u32 s25, s25, s26")
    k(f"s_add_u32 s25, s25, {PXB}")
    k("v_mul_u32_u24 v6, 1280, v2")
    k("v_lshl_add_u32 v6, v3, 4, v6")
    k(f"s_mul_i32 s26, s{seg_s}, {32 * 1280}")
    k(f"s_lshl_b32 s27, s{cg_s}, 7")
    k("s_add_u32 s26, s26, s27")
    k(f"s_lshl_b32 s27, s{S_WAVE}, 5")
    k("s_add_u32 s26, s26, s27")
    k(f"s_add_u32 s27, s26, {res_off}")
    k(f"buffer_load_dwordx4 v[8:11], v6, {srd}, s27 offen")
    for i in range(20):
        if i % 4 == 0 and i: k("s_add_u32 s25, s25, 4096")
        if i == 16:
            k("s_add_u32 s24, s24, 4096"); k("s_add_u32 s28, s28, 4096")
        k(f"buffer_load_dwordx4 {ar(AP + 4 * i, 4)}, v1, {srd}, s25 offen offset:{(i % 4) * 1024} sc1")
        k(f"buffer_load_dwordx4 {ar(AZ0 + 4 * i, 4)}, v4, {srd}, s24 offen offset:{(i % 16) * 256} sc1")
        k(f"buffer_load_dwordx4 {ar(AZ1 + 4 * i, 4)}, v4, {srd}, s28 offen offset:{(i % 16) * 256} sc1")
    for i in range(20):
        k(f"s_waitcnt vmcnt({3 * (19 - i)})")
        for t, az in ((0, AZ0), (1, AZ1)):
            d = vr(ACC + 16 * t, 16)
            k(f"v_mfma_f32_32x32x16_bf16 {d}, {ar(az + 4 * i, 4)}, {ar(AP + 4 * i, 4)}, {'0' if i == 0 else d}")
    k(f"s_lshl_b32 s27, s{S_WAVE}, 11")
    k(f"v_add_u32 v7, s27, v1")
    k("s_nop 7"); k("s_nop 7")
    for t in range(2):
        for j in range(2):
            for hh in range(2):
                k(f"ds_write_b128 v7, {vr(ACC + 16 * t + 8 * j + 4 * hh, 4)} offset:{JL_RED + (t * 2 + j) * 8192 + hh * 1024}")
    k("s_waitcnt lgkmcnt(0)")
    k("s_barrier")
    k(f"s_lshl_b32 s27, s{S_WAVE}, 13")
    k(f"v_add_u32 v7, s27, v1")
    for ww in range(4):
        for hh in range(2):
            k(f"ds_read_b128 {vr(T + 8 * ww + 4 * hh, 4)}, v7 offset:{JL_RED + ww * 2048 + hh * 1024}")
    k("s_waitcnt lgkmcnt(4)")
    for r in range(8): k(f"v_add_f32 v{T + r}, v{T + r}, v{T + 8 + r}")
    k("s_waitcnt lgkmcnt(0)")
    for r in range(8): k(f"v_add_f32 v{T + 16 + r}, v{T + 16 + r}, v{T + 24 + r}")
    for r in range(8): k(f"v_add_f32 v{T + r}, v{T + r}, v{T + 16 + r}")
    o = ACC
    for q in range(2):
        k(f"v_cvt_pk_bf16_f32 v{o + 2 * q}, v{T + 4 * q}, v{T + 4 * q + 1}")
        k(f"v_cvt_pk_bf16_f32 v{o + 2 * q + 1}, v{T + 4 * q + 2}, v{T + 4 * q + 3}")
    k("s_nop 1")
    k(f"v_permlane32_swap_b32 v{o}, v{o + 2}")
    k(f"v_permlane32_swap_b32 v{o + 1}, v{o + 3}")
    k("s_nop 1")
    for r in range(4):
        a, b, t0, t1 = T, T + 1, T + 2, T + 3
        k(f"v_lshlrev_b32 v{a}, 16, v{o + r}")
        k(f"v_and_b32 v{b}, 0xffff0000, v{o + r}")
        k(f"v_lshlrev_b32 v{t0}, 16, v{8 + r}")
        k(f"v_and_b32 v{t1}, 0xffff0000, v{8 + r}")
        k(f"v_add_f32 v{a}, v{a}, v{t0}")
        k(f"v_add_f32 v{b}, v{b}, v{t1}")
        k(f"v_cvt_pk_bf16_f32 v{o + r}, v{a}, v{b}")
    k(f"buffer_store_dwordx4 {vr(o, 4)}, v6, {out_srd}, s26 offen")

def role_w3_loop(k, cfg, fl_s, spin_s, out_srd, layer_s):
    L = lambda s: k.ref('j_' + s)
    lab = lambda s: k.lab('j_' + s)
    bail = k.ref('bail')
    SEG, R, NEED = 40, 41, 42
    lab('next')
    k(f"s_cmp_lg_u32 s{S_WAVE}, 0")
    k(f"s_cbranch_scc1 {L('rel')}")
    k("s_mov_b64 exec, 1")
    k(f"v_mov_b32 v2, {FL_JOB}")
    k("v_mov_b32 v3, 1")
    k(f"buffer_atomic_add v3, v2, {srd}, s{fl_s} offen sc0 sc1")
    k("s_waitcnt vmcnt(0)")
    k("s_mov_b64 exec, -1")
    k("s_nop 0")
    k("v_readfirstlane_b32 s38, v3")
    k(f"s_cmp_ge_u32 s38, {NJOB}")
    k(f"s_cbranch_scc1 {L('pub')}")
    k("s_mul_i32 s39, s38, 58255")
    k(f"s_lshr_b32 s{SEG}, s39, 20")
    k(f"s_mul_i32 s39, s{SEG}, {J_PER}")
    k(f"s_sub_u32 s{R}, s38, s39")
    k(f"s_add_u32 s{NEED}, s{SEG}, 1")
    k(f"v_mov_b32 v4, s{NEED}")
    k(f"s_cmp_ge_u32 s{R}, 8")
    k(f"s_cbranch_scc1 {L('dep_b')}")
    k(f"s_lshl_b32 s24, s{R}, 9")
    k(f"s_add_u32 s24, s24, {FL_PF}")
    k("v_lshlrev_b32 v2, 7, v0")
    k("v_add_u32 v2, s24, v2")
    k(f"s_mul_i32 s25, s{R}, 3")
    k("s_add_u32 s25, s25, 104")
    k("s_lshl_b32 s25, s25, 7")
    k("v_writelane_b32 v2, s25, 4")
    k("s_add_u32 s25, s25, 128")
    k("v_writelane_b32 v2, s25, 5")
    k("s_add_u32 s25, s25, 128")
    k("v_writelane_b32 v2, s25, 6")
    k("s_mov_b64 exec, 0x7f")
    k(f"s_branch {L('poll')}")
    lab('dep_b')
    k(f"s_sub_u32 s24, s{R}, 8")
    k("s_lshl_b32 s24, s24, 10")
    k(f"s_add_u32 s24, s24, {FL_YF}")
    k("v_lshlrev_b32 v2, 7, v0")
    k("v_add_u32 v2, s24, v2")
    k(f"s_lshl_b32 s25, s{SEG}, 4")
    k(f"s_add_u32 s25, s25, {FL_WA}")
    k("v_writelane_b32 v2, s25, 8")
    k("s_mov_b32 s26, 8")
    k("v_writelane_b32 v4, s26, 8")
    k("s_mov_b64 exec, 0x1ff")
    lab('poll')
    k(f"buffer_load_dword v3, v2, {srd}, s{fl_s} offen sc1")
    k("s_waitcnt vmcnt(0)")
    k("v_cmp_gt_u32 vcc, v4, v3")
    k(f"s_sub_u32 s{spin_s}, s{spin_s}, 1")
    k(f"s_cbranch_scc1 {L('giveup')}")
    k(f"s_cbranch_vccnz {L('poll')}")
    k("s_mov_b64 exec, -1")
    lab('pub')
    k("v_mov_b32 v2, 0")
    k("v_mov_b32 v3, s38")
    k(f"ds_write_b32 v2, v3 offset:{JL_JOB}")
    k("s_waitcnt lgkmcnt(0)")
    lab('rel')
    k("s_barrier")
    k("v_mov_b32 v2, 0")
    k(f"ds_read_b32 v3, v2 offset:{JL_JOB}")
    k("s_waitcnt lgkmcnt(0)")
    k("v_readfirstlane_b32 s38, v3")
    k(f"s_cmp_ge_u32 s38, {NJOB}")
    k(f"s_cbranch_scc1 {L('done')}")
    k("s_mul_i32 s39, s38, 58255")
    k(f"s_lshr_b32 s{SEG}, s39, 20")
    k(f"s_mul_i32 s39, s{SEG}, {J_PER}")
    k(f"s_sub_u32 s{R}, s38, s39")
    k(f"s_cmp_ge_u32 s{R}, 8")
    k(f"s_cbranch_scc1 {L('b')}")
    k(f"s_lshl_b32 s{R}, s{R}, 2")
    k(f"s_add_u32 s{R}, s{R}, s{S_WAVE}")
    role_w3a(k, SEG, R, " sc1")
    k("s_waitcnt vmcnt(0)")
    k("s_barrier")
    k(f"s_cmp_lg_u32 s{S_WAVE}, 0")
    k(f"s_cbranch_scc1 {L('next')}")
    k("s_mov_b64 exec, 1")
    k(f"s_lshl_b32 s24, s{SEG}, 4")
    k(f"s_add_u32 s24, s24, {FL_WA}")
    k("v_mov_b32 v2, s24")
    k("v_mov_b32 v3, 1")
    k(f"buffer_atomic_add v3, v2, {srd}, s{fl_s} offen sc1")
    k("s_mov_b64 exec, -1")
    k(f"s_branch {L('next')}")
    lab('b')
    k(f"s_sub_u32 s{R}, s{R}, 8")
    role_w3b2(k, SEG, R, A_X1, out_srd)
    k(f"s_branch {L('next')}")
    lab('giveup')
    k("s_mov_b64 exec, -1")
    k("v_mov_b32 v2, 0")
    k("v_mov_b32 v3, -1")
    k(f"ds_write_b32 v2, v3 offset:{JL_JOB}")
    k("s_waitcnt lgkmcnt(0)")
    k("s_barrier")
    k(f"s_branch {bail}")
    lab('done')
```

```python
import sys
sys.path.insert(0, "/code"); sys.path.insert(0, "tools")
import gen, work, chain, aly
from lay import *
from asmk import KA_AX, KA_WQKV, KA_WOA, KA_WS
NAME = gen.NAME
gen.WS_XN = A_XN; gen.WS_X1 = A_X1; gen.WS_QA = A_QA; gen.WS_KVT = A_KVT; gen.WS_OA = A_OA
gen.WS_KVZ = A_KVZ; gen.WS_PQKVA = A_PQKVA; gen.WS_PWOA = A_PWOA
gen.PACK = [(KA_WQKV, 640, 1920, A_PQKVA), (KA_WOA, 640, 640, A_PWOA)]
gen.WS_EX = A_KVZ; gen.EX_CLEAR_BYTES = 0
S, D = 2048, 640

def build(cfg=None):
    cfg = cfg or {}
    kernels = []; launches = []
    def add(k, nwg, lds=0, block=256):
        if k not in kernels: kernels.append(k)
        launches.append((k.name, nwg, block, lds))
    na = cfg.get('na', 0)
    if na:
        kq, n = work.build_prep(newa=True); add(kq, n, 1024)
        kc1, kc2 = chain.build_chain("layerb", None, cfg)
        for layer in range(2):
            kf, n, lds = aly.build_afront(f"afront{layer+1}", layer); add(kf, n, lds)
            if na == 1:
                kb, n, lds = aly.build_aback_test(f"aback{layer+1}"); add(kb, n, lds)
                kl2, n = work.build_lnb(f"ln_b{layer+1}", layer, A_X1); add(kl2, n)
                if cfg.get('lnw_test'):
                    kl3, n = aly.build_lnw_test(f"lnw{layer+1}"); add(kl3, n)
            if layer == 0: kernels.append(kc2)
            add(kc1 if layer == 0 else kc2, 256, chain.PL_END)
        return finish(kernels, launches)
    kp, n = gen.k_pack(); add(kp, n)
    kq, n = work.build_prep(); add(kq, n)
    kg, n_qkva, lds_qkva = gen.k_gemm("qkv_a", S, 1920, D, A_XN, D * 2, A_PQKVA, 4, 5, dict(kind='qkvA'))
    kgb, n_gb, lds_gb = work.build_gemmb()
    kwa, n_wa = work.build_w3a()
    ovl = cfg.get('ovl')
    if ovl:
        kc1, kc2 = chain.build_chain("layerb", None, cfg)
    for layer in range(2):
        if layer == 0:
            kl, n = gen.k_ln("ln_a1", KA_AX, 0)
        else:
            kl, n = gen.k_ln("ln_a2", KA_WS, A_X2)
        add(kl, n)
        add(kg, n_qkva, lds_qkva)
        kz, n = gen.k_kvz(f"kvz_a{layer+1}", layer); add(kz, n)
        ka, n, lds = gen.k_attn_a(f"attn_a{layer+1}", layer); add(ka, n, lds)
        if layer == 0:
            epi = dict(kind='res', res_slot=KA_AX, res_off=0, out_off=A_X1, res_in=True)
        else:
            epi = dict(kind='res', res_off=A_X2, out_off=A_X1)
        kw, n, lds = gen.k_gemm(f"wo_a{layer+1}", S, D, D, A_OA, D * 2, A_PWOA, 2, 5, epi); add(kw, n, lds)
        kl2, n = work.build_lnb(f"ln_b{layer+1}", layer, A_X1); add(kl2, n)
        if ovl:
            if layer == 0:
                kernels.append(kc2)
            add(kc1 if layer == 0 else kc2, 256, chain.PL_END)
            continue
        add(kgb, n_gb, lds_gb)
        kc = chain.build_chain(f"chain{layer+1}", layer, cfg); add(kc, 256, chain.PL_END)
        add(kwa, n_wa)
        k3, n = work.build_w3b(f"w3b{layer+1}", A_X1, A_X2 if layer == 0 else None); add(k3, n)
    return finish(kernels, launches)

def finish(kernels, launches):
    head = ["; generated by gen2.py (my own generator); kernarg: 13 pointers"]
    for name, nwg, block, lds in launches:
        head.append(f"; @launch kernel={name} grid=({nwg},1,1) block=({block},1,1) lds={lds}")
    head.append('.amdgcn_target "amdgcn-amd-amdhsa--gfx950"')
    return "\n".join(head) + "\n" + "\n".join(k.text() for k in kernels) + "\n"

if __name__ == "__main__":
    out = sys.argv[1] if len(sys.argv) > 1 else "v2.s"
    cfg = eval(sys.argv[2]) if len(sys.argv) > 2 else {}
    open(out, "w").write(build(cfg))
    print("written", out)
```

```python
import sys, math
sys.path.insert(0, "/code"); sys.path.insert(0, "tools")
from asmk import *
from lay import *
from work import prologue, vr, ar, S_WS, SRD, S_WAVE, srd

LOG2E = math.log2(math.e)
E6 = 1e-6
SPIN = 400000

def role_pwa(k):
    k.ptr(KA_WQKV, 24)
    k("s_lshr_b32 s21, s20, 1")
    k("s_and_b32 s22, s20, 1")
    k("v_and_b32 v1, 31, v0")
    k("v_lshrrev_b32 v2, 5, v0")
    k("s_mul_i32 s23, s21, 20")
    k("v_add_u32 v3, 640, v1")
    k("v_add_u32 v4, 1260, v1")
    k("v_cmp_gt_u32 vcc, 20, v1")
    k("s_nop 1")
    k("v_cndmask_b32 v3, v4, v3, vcc")
    k("v_add_u32 v4, 1292, v1")
    k("v_subrev_u32 v5, 12, v1")
    k("v_cmp_gt_u32 vcc, 8, v1")
    k("s_nop 1")
    k("v_cndmask_b32 v4, v5, v4, vcc")
    k("s_cmp_eq_u32 s22, 0")
    k("s_cselect_b64 vcc, -1, 0")
    k("s_nop 1")
    k("v_cndmask_b32 v3, v4, v3, vcc")
    k("v_add_u32 v3, s23, v3")
    k("v_lshlrev_b32 v3, 1, v3")
    k(f"v_mul_u32_u24 v4, {8 * 3840}, v2")
    k("v_add_u32 v3, v3, v4")
    k("s_mov_b32 s26, 0xfffff0ff")
    k("s_cmp_eq_u32 s22, 0")
    k("s_cselect_b32 s26, -1, s26")
    k("s_mov_b32 s27, s26")
    R = 16
    for r in range(80): k(f"v_mov_b32 v{R + r}, 0")
    k("s_waitcnt lgkmcnt(0)")
    k.srd(32, 24, 640 * 1920 * 2)
    k(f"s_mul_i32 s28, s{S_WAVE}, {160 * 3840}")
    k("s_mov_b64 exec, s[26:27]")
    for kk in range(10):
        for j in range(8):
            k(f"s_add_u32 s29, s28, {(16 * kk + j) * 3840}")
            k(f"buffer_load_short_d16_hi v{R + 8 * kk + j}, v3, s[32:35], s29 offen")
    k("s_mov_b64 exec, -1")
    k("s_waitcnt vmcnt(0)")
    k(f"v_add_f32 v5, v{R}, v{R + 1}")
    for r in range(2, 80): k(f"v_add_f32 v5, v5, v{R + r}")
    k("v_mov_b32 v6, v5")
    k("s_nop 1")
    k("v_permlane32_swap_b32 v5, v6")
    k("v_add_f32 v5, v5, v6")
    k(f"s_lshl_b32 s29, s{S_WAVE}, 8")
    k("v_lshlrev_b32 v7, 2, v0")
    k("v_add_u32 v8, s29, v7")
    k("ds_write_b32 v8, v5")
    k("s_waitcnt lgkmcnt(0)")
    k("s_barrier")
    for w in range(4): k(f"ds_read_b32 v{8 + w}, v7 offset:{256 * w}")
    k("s_waitcnt lgkmcnt(0)")
    k("v_add_f32 v8, v8, v9"); k("v_add_f32 v10, v10, v11"); k("v_add_f32 v8, v8, v10")
    k(f"v_mul_f32 v8, {hexf(1.0 / 640)}, v8")
    for r in range(80): k(f"v_sub_f32 v{R + r}, v{R + r}, v8")
    k("s_mul_i32 s29, s21, 81920")
    k("s_lshl_b32 s30, s22, 10")
    k("s_add_u32 s29, s29, s30")
    k(f"s_mul_i32 s30, s{S_WAVE}, {10 * 2048}")
    k("s_add_u32 s29, s29, s30")
    k(f"s_add_u32 s29, s29, {PWA}")
    k("v_lshlrev_b32 v7, 4, v0")
    for kk in range(10):
        o = 100 + 4 * (kk & 1)
        for m in range(4):
            k(f"v_cvt_pk_bf16_f32 v{o + m}, v{R + 8 * kk + 2 * m}, v{R + 8 * kk + 2 * m + 1}")
        k(f"buffer_store_dwordx4 {vr(o, 4)}, v7, {srd}, s29 offen")
        k("s_add_u32 s29, s29, 2048")
    k(f"s_branch {k.ref('end')}")

N_PWA = 64
N_PWO = 40
def role_pwo(k):
    k.ptr(KA_WOA, 24)
    k("s_lshr_b32 s21, s20, 3")
    k("s_and_b32 s22, s20, 7")
    k("v_and_b32 v1, 31, v0")
    k("v_lshrrev_b32 v2, 5, v0")
    k("v_lshlrev_b32 v3, 1, v1")
    k(f"v_mul_u32_u24 v4, {8 * 1280}, v2")
    k("v_add_u32 v3, v3, v4")
    k("s_lshl_b32 s29, s21, 6")
    k(f"s_mul_i32 s30, s22, {5 * 16 * 1280}")
    k("s_add_u32 s29, s29, s30")
    k("s_waitcnt lgkmcnt(0)")
    k.srd(32, 24, 640 * 640 * 2)
    R = 16
    for i in range(5):
        for j in range(8):
            k(f"s_add_u32 s30, s29, {(16 * i + j) * 1280}")
            k(f"buffer_load_ushort v{R + 8 * i + j}, v3, s[32:35], s30 offen")
    k("s_mul_i32 s29, s20, 5120")
    k(f"s_add_u32 s29, s29, {PWO}")
    k("v_lshlrev_b32 v7, 4, v0")
    for i in range(5):
        k(f"s_waitcnt vmcnt({8 * (4 - i) + i})")
        o = 64 + 4 * i
        for m in range(4):
            k(f"v_lshl_or_b32 v{o + m}, v{R + 8 * i + 2 * m + 1}, 16, v{R + 8 * i + 2 * m}")
        k(f"buffer_store_dwordx4 {vr(o, 4)}, v7, {srd}, s29 offen offset:{(i % 4) * 1024}")
        if i == 3: k("s_add_u32 s29, s29, 4096")
    k(f"s_branch {k.ref('end')}")

AF_LDS = 4 * 32768
def build_afront(name, layer):
    k = K(name, vgpr=256, sgpr=64)
    k("s_cmp_ge_u32 s2, 256")
    k(f"s_cbranch_scc1 {k.ref('end')}")
    prologue(k, [(KA_AX, 6)] if layer == 0 else [])
    afront_body(k, layer, 2)
    k.lab('end')
    return k, 256, AF_LDS

def afront_body(k, layer, id_s):
    XS = 16
    xsrd = f"s[{XS}:{XS+3}]"
    if layer == 0: k.srd(XS, 6, 2048 * 1280)
    else: k.srd(XS, S_WS, 2048 * 1280, A_X2)
    S_HP, S_RB, S_RH, S_HH, S_XB, S_WB, S_H, S_ONE = 20, 21, 22, 23, 24, 25, 26, 27
    k(f"s_and_b32 s28, s{id_s}, 7")
    k(f"s_lshr_b32 s29, s{id_s}, 3")
    k("s_and_b32 s30, s28, 3"); k("s_lshl_b32 s30, s30, 2"); k("s_and_b32 s31, s29, 3")
    k(f"s_add_u32 s{S_HP}, s30, s31")
    k("s_lshr_b32 s30, s28, 2"); k("s_lshl_b32 s30, s30, 3"); k("s_lshr_b32 s31, s29, 2")
    k(f"s_add_u32 s{S_RB}, s30, s31")
    k(f"s_lshr_b32 s{S_RH}, s{S_WAVE}, 1")
    k(f"s_and_b32 s{S_HH}, s{S_WAVE}, 1")
    k(f"s_lshl_b32 s{S_H}, s{S_HP}, 1")
    k(f"s_add_u32 s{S_H}, s{S_H}, s{S_HH}")
    k(f"s_mov_b32 s{S_ONE}, 0x3f803f80")
    k(f"s_lshl_b32 s28, s{S_RB}, 7")
    k(f"s_lshl_b32 s29, s{S_WAVE}, 5")
    k("s_add_u32 s28, s28, s29")
    k(f"s_mul_i32 s{S_XB}, s28, 1280")
    k(f"s_lshl_b32 s28, s{S_HP}, 1")
    k(f"s_add_u32 s28, s28, s{S_RH}")
    k(f"s_mul_i32 s{S_WB}, s28, 81920")
    k(f"s_lshl_b32 s29, s{S_HH}, 12")
    k(f"s_add_u32 s{S_WB}, s{S_WB}, s29")
    k(f"s_add_u32 s{S_WB}, s{S_WB}, {PWA}")
    V_L16, V_XE, V_XO, V_WR, V_XR = 1, 2, 3, 4, 6
    k(f"v_lshlrev_b32 v{V_L16}, 4, v0")
    k("v_lshrrev_b32 v16, 3, v0")
    k("v_mul_u32_u24 v16, 1280, v16")
    k("v_and_b32 v17, 7, v0")
    k("v_lshrrev_b32 v18, 4, v0")
    k("v_xor_b32 v19, v17, v18")
    k(f"v_lshl_add_u32 v{V_XE}, v19, 4, v16")
    k("v_xor_b32 v19, 4, v19")
    k(f"v_lshl_add_u32 v{V_XO}, v19, 4, v16")
    def dma(s):
        buf = (s % 4) * 32768
        k(f"s_lshl_b32 s28, s{S_WAVE}, 12")
        if buf: k(f"s_add_u32 s28, s28, {buf}")
        k("s_mov_b32 m0, s28")
        k(f"s_add_u32 s29, s{S_XB}, {s * 128}")
        for u in range(4):
            k(f"buffer_load_dwordx4 v{V_XE if u % 2 == 0 else V_XO}, {xsrd}, s29 offen offset:{u * 1024} lds")
            if u < 3: k(f"s_add_u32 s29, s29, {10240 - 1024}")
        k("s_add_u32 s28, s28, 16384")
        k("s_mov_b32 m0, s28")
        k(f"s_add_u32 s29, s{S_WB}, {s * 8192}")
        for u in range(4):
            k(f"buffer_load_dwordx4 v{V_L16}, {srd}, s29 offen offset:{u * 1024} lds")
    for s in range(3): dma(s)
    k("v_and_b32 v16, 31, v0")
    k("v_lshrrev_b32 v17, 5, v0")
    k("v_lshrrev_b32 v18, 1, v16")
    k("v_and_b32 v18, 7, v18")
    k("v_xor_b32 v18, v18, v17")
    k("v_lshlrev_b32 v18, 4, v18")
    k("v_lshl_add_u32 v18, v16, 7, v18")
    k(f"s_lshl_b32 s28, s{S_RH}, 13")
    k("v_add_u32 v18, s28, v18")
    for kp in range(4):
        k(f"v_xor_b32 v{V_XR + kp}, {32 * kp}, v18")
        k(f"v_add_u32 v{V_XR + 4 + kp}, 65536, v{V_XR + kp}")
    k(f"s_lshl_b32 s28, s{S_HH}, 13")
    k("s_add_u32 s28, s28, 16384")
    k(f"v_add_u32 v{V_WR}, s28, v{V_L16}")
    k(f"v_add_u32 v{V_WR + 1}, 65536, v{V_WR}")
    FR = 32
    D0, D1, DQ = 64, 96, 128
    PA, PB = 160, 176
    ST = 20
    for r in range(4): k(f"v_mov_b32 v{ST + r}, 0")
    def reads(s, kp):
        o = FR + 16 * ((4 * s + kp) & 1)
        hi = (s % 4) >> 1; off = (s & 1) * 32768
        return [f"ds_read_b128 {vr(o + 4 * rt, 4)}, v{V_XR + 4 * hi + kp} offset:{off + rt * 4096}" for rt in range(2)] + \
               [f"ds_read_b128 {vr(o + 8 + 4 * t, 4)}, v{V_WR + hi} offset:{off + kp * 2048 + t * 1024}" for t in range(2)]
    k("s_waitcnt vmcnt(16)")
    k("s_barrier")
    for it in reads(0, 0): k(it)
    def body(hh):
        for s in range(10):
            for kp in range(4):
                o = FR + 16 * ((4 * s + kp) & 1)
                X = lambda rt: vr(o + 4 * rt, 4)
                W = lambda t: vr(o + 8 + 4 * t, 4)
                first = (s == 0 and kp == 0)
                k("s_waitcnt lgkmcnt(0)")
                nxt = reads(s, kp + 1) if kp < 3 else (reads(s + 1, 0) if s < 9 else [])
                xs = o + 4 * hh
                dots = []
                for r in range(4):
                    dots.append(f"v_dot2c_f32_bf16 v{ST + (r & 1)}, s{S_ONE}, v{xs + r}")
                    dots.append(f"v_dot2c_f32_bf16 v{ST + 2 + (r & 1)}, v{xs + r}, v{xs + r}")
                mf = []
                for rt in range(2):
                    for (d, a, b) in ((D0, X(rt), W(0)), (D1, X(rt), W(1)), (DQ, W(1), X(rt))):
                        dd = vr(d + 16 * rt, 16)
                        mf.append(f"v_mfma_f32_32x32x16_bf16 {dd}, {a}, {b}, {'0' if first else dd}")
                gaps = [[] for _ in range(6)]
                if kp == 3:
                    pass
                for i, it in enumerate(nxt): gaps[1 + i].append(it)
                for i, it in enumerate(dots): gaps[(i * 6) // 8].append(it)
                for i in range(6):
                    k(mf[i])
                    for it in gaps[i]: k(it)
                    if kp == 2 and i == 5 and s < 9:
                        k(f"s_waitcnt vmcnt({8 if s + 2 <= 9 else 0})")
                        k("s_barrier")
                        if s + 3 <= 9: dma(s + 3)
    k(f"s_cmp_eq_u32 s{S_HH}, 1")
    k(f"s_cbranch_scc1 {k.ref('af_h1')}")
    body(0)
    k(f"s_branch {k.ref('af_epi')}")
    k.lab('af_h1')
    body(1)
    k.lab('af_epi')
    EL = 65536
    k(f"v_add_f32 v{ST}, v{ST}, v{ST+1}")
    k(f"v_add_f32 v{ST+2}, v{ST+2}, v{ST+3}")
    k(f"v_mov_b32 v{ST+1}, v{ST}")
    k(f"v_mov_b32 v{ST+3}, v{ST+2}")
    k("s_nop 1")
    k(f"v_permlane32_swap_b32 v{ST}, v{ST+1}")
    k(f"v_permlane32_swap_b32 v{ST+2}, v{ST+3}")
    k(f"v_add_f32 v{ST}, v{ST}, v{ST+1}")
    k(f"v_add_f32 v{ST+2}, v{ST+2}, v{ST+3}")
    k(f"v_mul_f32 v{ST}, {hexf(1.0/640)}, v{ST}")
    k(f"v_mul_f32 v{ST+1}, v{ST}, v{ST}")
    k(f"v_fma_f32 v{ST+2}, v{ST+2}, {hexf(1.0/640)}, -v{ST+1}" if False else f"v_mul_f32 v{ST+2}, {hexf(1.0/640)}, v{ST+2}")
    k(f"v_sub_f32 v{ST+2}, v{ST+2}, v{ST+1}")
    k(f"v_max_f32 v{ST+2}, 0, v{ST+2}")
    k(f"v_add_f32 v{ST+2}, 0x3727c5ac, v{ST+2}")
    k(f"v_rsq_f32 v{ST+2}, v{ST+2}")
    k("v_and_b32 v16, 31, v0")
    k(f"s_lshl_b32 s28, s{S_WAVE}, 7")
    k(f"s_add_u32 s28, s28, {EL}")
    k("v_lshl_add_u32 v17, v16, 2, s28")
    k(f"ds_write_b32 v17, v{ST+2}")
    k("s_waitcnt lgkmcnt(0)")
    k("s_barrier")
    RS = 192; RL = 224
    k(f"s_lshl_b32 s28, s{S_RH}, 8")
    k(f"s_add_u32 s28, s28, {EL}")
    k("v_lshl_add_u32 v17, v16, 2, s28")
    k("v_lshrrev_b32 v18, 5, v0")
    k("v_lshlrev_b32 v18, 4, v18")
    k("v_add_u32 v18, s28, v18")
    for rt in range(2):
        k(f"ds_read_b32 v{RL + rt}, v17 offset:{rt * 128}")
        for q in range(4):
            k(f"ds_read_b128 {vr(RS + 16 * rt + 4 * q, 4)}, v18 offset:{rt * 128 + q * 32}")
    C0, C1, CE = 226, 227, 228
    k("v_and_b32 v16, 31, v0")
    k(f"v_mov_b32 v{CE}, {hexf(E6)}")
    k("v_cmp_gt_u32 vcc, 20, v16")
    k("s_mov_b64 s[30:31], vcc")
    k("s_nop 0")
    k(f"v_cndmask_b32 v{C0}, 0, v{CE}, vcc")
    k("v_cmp_eq_u32 vcc, 8, v16")
    k("s_nop 1")
    k(f"v_cndmask_b32 v{C1}, 0, 1.0, vcc")
    k("s_waitcnt lgkmcnt(0)")
    F0, F1, T = 32, 40, 48
    def phi(x, acc, scale, c, t):
        k(f"v_fma_f32 v{x}, v{acc}, v{scale}, v{c}")
        k(f"v_mul_f32 v{t}, {hexf(LOG2E)}, v{x}")
        k(f"v_exp_f32 v{t}, v{t} clamp")
        k(f"v_max_f32 v{t+1}, v{x}, v{CE}")
    for rt in range(2):
        a0 = D0 + 16 * rt; a1 = D1 + 16 * rt
        for r in range(16):
            t = T + 2 * (r & 3)
            phi(a0 + r, a0 + r, RS + 16 * rt + r, C0, t)
            k(f"v_fma_f32 v{a1 + r}, v{a1 + r}, v{RS + 16 * rt + r}, v{C1}")
            k(f"v_add_f32 v{t}, v{t}, v{t+1}")
            k(f"v_cndmask_b32 v{a0 + r}, v{a0 + r}, v{t}, s[30:31]")
        for m in range(8):
            k(f"v_cvt_pk_bf16_f32 v{F0 + m}, v{a0 + 2 * m}, v{a0 + 2 * m + 1}")
            k(f"v_cvt_pk_bf16_f32 v{F1 + m}, v{a1 + 2 * m}, v{a1 + 2 * m + 1}")
        k("s_nop 1")
        for half in range(2):
            c0 = "0" if (rt == 0 and half == 0) else None
            k(f"v_mfma_f32_32x32x16_bf16 {vr(PA, 16)}, {vr(F0 + 4 * half, 4)}, {vr(F0 + 4 * half, 4)}, {c0 or vr(PA, 16)}")
            k(f"v_mfma_f32_32x32x16_bf16 {vr(PB, 16)}, {vr(F1 + 4 * half, 4)}, {vr(F0 + 4 * half, 4)}, {c0 or vr(PB, 16)}")
    def qphi(rt):
        b = DQ + 16 * rt
        for r in range(4, 16):
            t = T + 2 * (r & 3)
            phi(b + r, b + r, RL + rt, CE, t)
            k(f"v_add_f32 v{b + r}, v{t}, v{t+1}")
        for m in range(2, 8):
            k(f"v_cvt_pk_bf16_f32 v{b + m}, v{b + 2 * m}, v{b + 2 * m + 1}")
        k(f"v_mov_b32 v{b}, 0"); k(f"v_mov_b32 v{b + 1}, 0")
    qphi(0)
    RAW = EL + 1024
    k(f"s_lshl_b32 s28, s{S_WAVE}, 13")
    k(f"s_add_u32 s28, s28, {RAW}")
    k(f"v_add_u32 v17, s28, v{V_L16}")
    for p_, base in ((0, PA), (1, PB)):
        for q in range(4):
            k(f"ds_write_b128 v17, {vr(base + 4 * q, 4)} offset:{p_ * 4096 + q * 1024}")
    t_, hh_, rem, e_, d_, m_, la, ga = range(32, 40)
    k(f"s_lshl_b32 s28, s{S_WAVE}, 6")
    k(f"v_add_u32 v{t_}, s28, v0")
    k(f"v_cmp_le_u32 vcc, 105, v{t_}")
    k("s_nop 1")
    k(f"v_cndmask_b32 v{hh_}, 0, 1, vcc")
    k(f"v_mul_u32_u24 v{rem}, 105, v{hh_}")
    k(f"v_sub_u32 v{rem}, v{t_}, v{rem}")
    k(f"v_mul_u32_u24 v{e_}, 13108, v{rem}")
    k(f"v_lshrrev_b32 v{e_}, 16, v{e_}")
    k(f"v_mul_u32_u24 v{d_}, 5, v{e_}")
    k(f"v_sub_u32 v{d_}, v{rem}, v{d_}")
    k(f"v_add_u32 v{m_}, 20, v{e_}")
    k(f"v_subrev_u32 v{la}, 12, v{e_}")
    k(f"v_cmp_gt_u32 vcc, 12, v{e_}")
    k("s_nop 1")
    k(f"v_cndmask_b32 v{m_}, v{la}, v{m_}, vcc")
    k(f"v_cndmask_b32 v{la}, 1, 0, vcc")
    k(f"v_lshlrev_b32 v{la}, 12, v{la}")
    k(f"v_lshl_add_u32 v{la}, v{hh_}, 13, v{la}")
    k(f"v_lshrrev_b32 v{ga}, 3, v{m_}")
    k(f"v_lshl_add_u32 v{la}, v{ga}, 10, v{la}")
    k(f"v_bfe_u32 v{ga}, v{m_}, 2, 1")
    k(f"v_lshlrev_b32 v{ga}, 5, v{ga}")
    k(f"v_lshl_add_u32 v{ga}, v{d_}, 2, v{ga}")
    k(f"v_lshl_add_u32 v{la}, v{ga}, 4, v{la}")
    k(f"v_and_b32 v{ga}, 3, v{m_}")
    k(f"v_lshl_add_u32 v{la}, v{ga}, 2, v{la}")
    k(f"v_min_u32 v{la}, {8192 * 2 - 64}, v{la}")
    k(f"v_add_u32 v{la}, {RAW}, v{la}")
    k("s_waitcnt lgkmcnt(0)")
    k("s_barrier")
    for hlf in range(2):
        for i in range(4):
            k(f"ds_read_b32 v{40 + 4 * hlf + i}, v{la} offset:{hlf * 16384 + i * 16}")
    k(f"s_lshl_b32 s28, s{S_HP}, 4")
    k(f"s_add_u32 s28, s28, s{S_RB}")
    k("s_lshl_b32 s28, s28, 12")
    k(f"s_add_u32 s28, s28, {KVP + layer * KVP_L}")
    k(f"v_lshlrev_b32 v{ga}, 4, v{t_}")
    k(f"v_cmp_gt_u32 vcc, 210, v{t_}")
    k("s_mov_b64 s[32:33], vcc")
    k("s_waitcnt lgkmcnt(0)")
    for i in range(4): k(f"v_add_f32 v{40 + i}, v{40 + i}, v{44 + i}")
    k("s_mov_b64 exec, s[32:33]")
    k(f"buffer_store_dwordx4 v[40:43], v{ga}, {srd}, s28 offen sc1")
    k("s_mov_b64 exec, -1")
    qphi(1)
    k(f"s_mul_i32 s29, s{S_H}, 5")
    k("v_lshrrev_b32 v17, 5, v0")
    k("v_add_u32 v17, s29, v17")
    k("v_lshrrev_b32 v18, 1, v17")
    k("v_lshlrev_b32 v18, 9, v18")
    k("v_and_b32 v17, 1, v17")
    k("v_lshl_add_u32 v18, v17, 3, v18")
    k("v_and_b32 v16, 31, v0")
    k("v_lshl_add_u32 v14, v16, 4, v18")
    KS = 64
    k("v_mul_u32_u24 v15, 80, v16")
    k("v_lshrrev_b32 v17, 5, v0")
    k("v_lshl_add_u32 v15, v17, 4, v15")
    k(f"s_mul_i32 s29, s{S_HH}, 1680")
    k(f"s_add_u32 s29, s29, {KS - 16}")
    k("v_add_u32 v15, s29, v15")
    R0 = 48
    for r in range(12): k(f"v_mov_b32 v{R0 + r}, 0")
    k("s_waitcnt vmcnt(0)")
    k("s_barrier")
    k(f"s_cmp_lg_u32 s{S_WAVE}, 0")
    k(f"s_cbranch_scc1 {k.ref('af_go')}")
    k(f"s_lshl_b32 s29, s{S_HP}, 7")
    k(f"s_add_u32 s29, s29, {CT_FLAG + layer * FL_LAYER + FL_AF}")
    k(f"s_lshl_b32 s30, s{S_RB}, 2")
    k("v_mov_b32 v16, s30")
    k("v_mov_b32 v17, 1")
    k("s_mov_b64 exec, 1")
    k(f"buffer_store_dword v17, v16, {srd}, s29 offen sc1")
    k("s_mov_b64 exec, 0xffff")
    k("v_lshlrev_b32 v16, 2, v0")
    k(f"s_mov_b32 s31, {SPIN}")
    k.lab('af_poll')
    k(f"buffer_load_dword v17, v16, {srd}, s29 offen sc1")
    k("s_waitcnt vmcnt(0)")
    k("v_cmp_eq_u32 vcc, 0, v17")
    k("s_sub_u32 s31, s31, 1")
    k(f"s_cbranch_scc1 {k.ref('af_fail')}")
    k(f"s_cbranch_vccnz {k.ref('af_poll')}")
    k(f"s_branch {k.ref('af_ok')}")
    k.lab('af_fail')
    k.ptr(KA_DBG, 34)
    k("s_waitcnt lgkmcnt(0)")
    k.srd(36, 34, 256)
    k("s_mov_b64 exec, 1")
    k("v_mov_b32 v16, 0"); k("v_mov_b32 v17, 0xdead")
    k("buffer_store_dword v17, v16, s[36:39], 0 offen")
    k.lab('af_ok')
    k("s_mov_b64 exec, -1")
    k.lab('af_go')
    k("s_barrier")
    PS = 160
    k(f"s_lshl_b32 s28, s{S_HP}, 16")
    k(f"s_add_u32 s28, s28, {KVP + layer * KVP_L}")
    k("s_mov_b64 exec, s[32:33]")
    for i in range(16):
        k(f"buffer_load_dwordx4 {vr(PS + 4 * i, 4)}, v{ga}, {srd}, s28 offen sc1")
        if i < 15: k("s_add_u32 s28, s28, 4096")
    k("s_mov_b64 exec, -1")
    for step in (1, 2, 4, 8):
        for i in range(0, 16, 2 * step):
            if step == 1: k(f"s_waitcnt vmcnt({14 - i})")
            for c in range(4):
                k(f"v_add_f32 v{PS + 4 * i + c}, v{PS + 4 * i + c}, v{PS + 4 * (i + step) + c}")
    k(f"v_add_u32 v{ga}, {KS}, v{ga}")
    k("s_mov_b64 exec, s[32:33]")
    k(f"ds_write_b128 v{ga}, {vr(PS, 4)}")
    k("s_mov_b64 exec, -1")
    k("s_waitcnt lgkmcnt(0)")
    k("s_barrier")
    k("s_mov_b32 exec_lo, 0x1fffff"); k("s_mov_b32 exec_hi, 0x1fffff")
    k(f"ds_read_b128 {vr(R0 + 4, 4)}, v15 offset:32")
    k(f"ds_read_b128 {vr(R0 + 8, 4)}, v15 offset:64")
    k("s_mov_b32 exec_lo, 0")
    k(f"ds_read_b128 {vr(R0, 4)}, v15")
    k("s_mov_b64 exec, -1")
    AK = 32
    k(f"v_mov_b32 v{AK}, 0"); k(f"v_mov_b32 v{AK + 1}, 0")
    k("s_waitcnt lgkmcnt(0)")
    for m in range(6):
        k(f"v_cvt_pk_bf16_f32 v{AK + 2 + m}, v{R0 + 2 * m}, v{R0 + 2 * m + 1}")
    k("s_nop 1")
    for rt in range(2):
        o = D0 + 16 * rt; b = DQ + 16 * rt
        k(f"v_mfma_f32_32x32x16_bf16 {vr(o, 16)}, {vr(AK, 4)}, {vr(b, 4)}, 0")
        k(f"v_mfma_f32_32x32x16_bf16 {vr(o, 16)}, {vr(AK + 4, 4)}, {vr(b + 4, 4)}, {vr(o, 16)}")
    k(f"s_lshl_b32 s28, s{S_RB}, 2")
    k(f"s_lshl_b32 s29, s{S_RH}, 1")
    k("s_add_u32 s28, s28, s29")
    k(f"s_mul_i32 s28, s28, {XN_SEG}")
    k(f"s_add_u32 s28, s28, {OA}")
    k("s_nop 7"); k("s_nop 3")
    for rt in range(2):
        o = D0 + 16 * rt
        if rt == 1: k("s_nop 7")
        k(f"v_add_f32 v40, {hexf(E6)}, v{o + 8}")
        k("v_mov_b32 v41, v40")
        k("s_nop 1")
        k("v_permlane32_swap_b32 v40, v41")
        k("v_rcp_f32 v41, v41")
        k("s_nop 0")
        for r in range(12): k(f"v_mul_f32 v{o + r}, v{o + r}, v41")
        for m in range(6): k(f"v_cvt_pk_bf16_f32 v{42 + 6 * rt + m}, v{o + 2 * m}, v{o + 2 * m + 1}")
        for q in range(3):
            if q == 2: k("s_mov_b32 exec_hi, 0")
            k(f"buffer_store_dwordx2 {vr(42 + 6 * rt + 2 * q, 2)}, v14, {srd}, s28 offen offset:{q * 512}")
        k("s_mov_b32 exec_hi, -1")
        if rt == 0: k(f"s_add_u32 s28, s28, {XN_SEG}")

AB_SEG = 14; AB_END = 15; AB_BUF = 16; AB_NB = 17; AB_DMA = 18; AB_RES = 19; AB_FLG = 20; AB_CT = 21
AB_RSRD = 52
AB_LDS = 3 * XN_SEG

def rts(k, cfg, n):
    if cfg and cfg.get('rt'): k(f"s_memrealtime s[{60 + 2 * n}:{61 + 2 * n}]")

def role_aback(k, p_s, layer_s, fl_s, flags=True, cfg=None):
    L = lambda s: k.ref('ab_' + s)
    lab = lambda s: k.lab('ab_' + s)
    V_L16, V_RD, V_IO, V_FA, V_ONE = 1, 2, 3, 4, 5
    RES = 96; RING = 16; NR = 8; ACC = 48; OUT = 80; T = 88
    rsrd = f"s[{AB_RSRD}:{AB_RSRD+3}]"
    k.ptr(KA_AX, AB_RSRD)
    k(f"v_lshlrev_b32 v{V_L16}, 4, v0")
    k(f"s_lshl_b32 s{AB_CT}, s{p_s}, 2")
    k(f"s_add_u32 s{AB_CT}, s{AB_CT}, s{S_WAVE}")
    k(f"s_add_u32 s24, s{S_WS}, {A_X2}")
    k(f"s_addc_u32 s25, s{S_WS+1}, 0")
    k("s_waitcnt lgkmcnt(0)")
    k(f"s_cmp_eq_u32 s{layer_s}, 0")
    k(f"s_cselect_b32 s{AB_RSRD}, s{AB_RSRD}, s24")
    k(f"s_cselect_b32 s{AB_RSRD+1}, s{AB_RSRD+1}, s25")
    k(f"s_mov_b32 s{AB_RSRD+2}, {2048 * 1280}")
    k(f"s_mov_b32 s{AB_RSRD+3}, 0x00020000")
    k("v_and_b32 v6, 31, v0")
    k("v_lshrrev_b32 v7, 5, v0")
    k("v_mul_u32_u24 v6, 1280, v6")
    k(f"v_lshl_add_u32 v{V_IO}, v7, 4, v6")
    k(f"s_mul_i32 s{AB_RES}, s{AB_SEG}, {32 * 1280}")
    k(f"s_lshl_b32 s24, s{AB_CT}, 6")
    k(f"s_add_u32 s{AB_RES}, s{AB_RES}, s24")
    k(f"s_lshl_b32 s{AB_FLG}, s{AB_SEG}, 7")
    k(f"s_lshl_b32 s24, s{AB_CT}, 2")
    k(f"s_add_u32 s{AB_FLG}, s{AB_FLG}, s24")
    k(f"s_add_u32 s{AB_FLG}, s{AB_FLG}, {FL_AB}")
    k(f"v_mov_b32 v{V_ONE}, 1")
    k(f"v_mov_b32 v{V_FA}, 0")
    k(f"s_mul_i32 s{AB_DMA}, s{S_WAVE}, 10240")
    k(f"s_add_u32 s{AB_DMA}, s{AB_DMA}, {OA}")
    def dma_items(seg_s):
        it = [[f"s_min_u32 s24, s{seg_s}, 63", f"s_mul_i32 s24, s24, {XN_SEG}", f"s_add_u32 s24, s24, s{AB_DMA}",
               f"s_mul_i32 s25, s{S_WAVE}, 10240", f"s_add_u32 s25, s25, s{AB_NB}"]]
        for grp in range(3):
            for i in range(4 if grp < 2 else 2):
                p = []
                if i == 0:
                    if grp: p += ["s_add_u32 s24, s24, 4096", "s_add_u32 s25, s25, 4096"]
                    p += ["s_mov_b32 m0, s25", "s_nop 0"]
                p.append(f"buffer_load_dwordx4 v{V_L16}, {srd}, s24 offen offset:{i * 1024} lds")
                it.append(p)
        return it
    def dma(seg_s):
        for p in dma_items(seg_s):
            for x in p: k(x)
    def nextbuf(dst, src):
        k(f"s_add_u32 s{dst}, s{src}, {XN_SEG}")
        k(f"s_cmp_eq_u32 s{dst}, {AB_LDS}")
        k(f"s_cselect_b32 s{dst}, 0, s{dst}")
    def flag():
        if not flags: return
        k("s_mov_b64 exec, 1")
        k(f"s_add_u32 s26, s{fl_s}, s{AB_FLG}")
        k(f"buffer_store_dword v{V_ONE}, v{V_FA}, {srd}, s26 offen sc1")
        k("s_mov_b64 exec, -1")
        k(f"s_add_u32 s{AB_FLG}, s{AB_FLG}, 128")
    SC1 = " sc1" if flags else ""
    def resload(par, sreg):
        for j in range(2):
            k(f"buffer_load_dwordx4 {vr(RES + 8 * par + 4 * j, 4)}, v{V_IO}, {rsrd}, s{sreg} offen offset:{32 * j}")
    k(f"s_mov_b32 s{AB_NB}, 0")
    dma(AB_SEG)
    resload(0, AB_RES)
    k(f"s_mul_i32 s24, s{AB_CT}, 40960")
    k(f"s_add_u32 s24, s24, {PWO}")
    for kap in range(40):
        if kap % 4 == 0 and kap: k("s_add_u32 s24, s24, 4096")
        k(f"buffer_load_dwordx4 {ar(4 * kap, 4)}, v{V_L16}, {srd}, s24 offen offset:{(kap % 4) * 1024}")
    k(f"s_mov_b32 s{AB_NB}, {XN_SEG}")
    k(f"s_add_u32 s23, s{AB_SEG}, 1")
    dma(23)
    k(f"s_mov_b32 s{AB_NB}, {2 * XN_SEG}")
    k(f"s_mov_b32 s{AB_BUF}, 0")
    k("s_waitcnt vmcnt(52)")
    rts(k, cfg, 0)
    def segment(par, early, wwait=False):
        k("s_barrier")
        if not early and par == 0: rts(k, cfg, 5)
        k(f"v_add_u32 v{V_RD}, s{AB_BUF}, v{V_L16}")
        PRE = NR - 2
        for r in range(PRE): k(f"ds_read_b128 {vr(RING + 4 * r, 4)}, v{V_RD} offset:{r * 1024}")
        k(f"s_add_u32 s27, s{AB_RES}, {32 * 1280}")
        k(f"s_cmp_ge_u32 s{AB_SEG}, 63")
        k(f"s_cselect_b32 s27, s{AB_RES}, s27")
        resload(par ^ 1, 27)
        k(f"s_add_u32 s23, s{AB_SEG}, 2")
        items = dma_items(23)
        for x in items[0]: k(x)
        nextbuf(AB_NB, AB_NB)
        pieces = {1 + 3 * n: p for n, p in enumerate(items[1:])}
        younger = 10 + 2
        for kap in range(40):
            nk = kap + PRE
            if nk < 40:
                k(f"ds_read_b128 {vr(RING + 4 * (nk % NR), 4)}, v{V_RD} offset:{nk * 1024}")
            if wwait: k(f"s_waitcnt vmcnt({39 - kap + younger}) lgkmcnt({min(PRE, 39 - kap)})")
            else: k(f"s_waitcnt lgkmcnt({min(PRE, 39 - kap)})")
            d = vr(ACC + 16 * (kap & 1), 16)
            k(f"v_mfma_f32_32x32x16_bf16 {d}, {ar(4 * kap, 4)}, {vr(RING + 4 * (kap % NR), 4)}, {'0' if kap < 2 else d}")
            if kap in pieces:
                for x in pieces[kap]: k(x)
                younger += 1
        if not early and par == 0: rts(k, cfg, 6)
        k(f"s_waitcnt vmcnt({15 if flags else 14})" if not early else "s_waitcnt vmcnt(12)")
        if not early and par == 0: rts(k, cfg, 7)
        k("s_nop 7"); k("s_nop 3")
        for r in range(16): k(f"v_add_f32 v{ACC + r}, v{ACC + r}, v{ACC + 16 + r}")
        k(f"s_add_u32 s26, s{AB_RES}, {A_X1}")
        for j in range(2):
            o = OUT + 4 * j
            for q in range(2):
                k(f"v_cvt_pk_bf16_f32 v{o + 2 * q}, v{ACC + 8 * j + 4 * q}, v{ACC + 8 * j + 4 * q + 1}")
                k(f"v_cvt_pk_bf16_f32 v{o + 2 * q + 1}, v{ACC + 8 * j + 4 * q + 2}, v{ACC + 8 * j + 4 * q + 3}")
            k("s_nop 1")
            k(f"v_permlane32_swap_b32 v{o}, v{o + 2}")
            k(f"v_permlane32_swap_b32 v{o + 1}, v{o + 3}")
            k("s_nop 1")
            for r in range(4):
                a, b, t0, t1 = T + 4 * (r & 1), T + 4 * (r & 1) + 1, T + 4 * (r & 1) + 2, T + 4 * (r & 1) + 3
                k(f"v_lshlrev_b32 v{a}, 16, v{o + r}")
                k(f"v_and_b32 v{b}, 0xffff0000, v{o + r}")
                k(f"v_lshlrev_b32 v{t0}, 16, v{RES + 8 * par + 4 * j + r}")
                k(f"v_and_b32 v{t1}, 0xffff0000, v{RES + 8 * par + 4 * j + r}")
                k(f"v_add_f32 v{a}, v{a}, v{t0}")
                k(f"v_add_f32 v{b}, v{b}, v{t1}")
                k(f"v_cvt_pk_bf16_f32 v{o + r}, v{a}, v{b}")
            k(f"buffer_store_dwordx4 {vr(o, 4)}, v{V_IO}, {srd}, s26 offen offset:{32 * j}{SC1}")
        if flags:
            if not early and par == 0: rts(k, cfg, 2)
            k("s_waitcnt vmcnt(0)" if early else "s_waitcnt vmcnt(15)")
            if not early and par == 0: rts(k, cfg, 3)
            flag()
        k(f"s_add_u32 s{AB_RES}, s{AB_RES}, {32 * 1280}")
        nextbuf(AB_BUF, AB_BUF)
        k(f"s_add_u32 s{AB_SEG}, s{AB_SEG}, 1")
    NEARLY = 3 if flags else 1
    for e in range(NEARLY):
        segment(e & 1, True, e == 0)
        if e < 1: rts(k, cfg, 1 + e)
        k(f"s_cmp_ge_u32 s{AB_SEG}, s{AB_END}")
        k(f"s_cbranch_scc1 {L('fin')}")
    def seg_late(par):
        segment(par, False)
    if flags: k(f"s_sub_u32 s{AB_FLG}, s{AB_FLG}, 128")
    lab('loop')
    par0 = NEARLY & 1
    seg_late(par0)
    k(f"s_cmp_ge_u32 s{AB_SEG}, s{AB_END}")
    k(f"s_cbranch_scc1 {L('fin')}")
    seg_late(par0 ^ 1)
    k(f"s_cmp_lt_u32 s{AB_SEG}, s{AB_END}")
    k(f"s_cbranch_scc1 {L('loop')}")
    lab('fin')
    k("s_waitcnt vmcnt(0) lgkmcnt(0)")
    flag()
    rts(k, cfg, 4)
    k("s_barrier")

def role_lnw(k, first_s, nstride, fl_s, spin_s, bail, wait=True, cfg=None):
    L = lambda s: k.ref('ln_' + s)
    lab = lambda s: k.lab('ln_' + s)
    SEG = 14; ONE = 16
    V_SRC, V_DST, V_FA, V_ONE = 1, 2, 3, 4
    X = 16; U = 64; O = 72; ST = 8
    k(f"s_mov_b32 s{SEG}, s{first_s}")
    k(f"s_mov_b32 s{ONE}, 0x3f803f80")
    k("v_lshrrev_b32 v6, 3, v0")
    k("v_and_b32 v7, 7, v0")
    k(f"v_mul_u32_u24 v{V_SRC}, 1280, v6")
    k(f"v_lshl_add_u32 v{V_SRC}, v7, 5, v{V_SRC}")
    k(f"v_lshlrev_b32 v{V_DST}, 10, v7")
    k(f"v_lshl_add_u32 v{V_DST}, v6, 4, v{V_DST}")
    k(f"v_lshlrev_b32 v{V_FA}, 2, v0")
    k(f"v_mov_b32 v{V_ONE}, 1")
    lab('seg')
    if wait:
        k(f"s_lshl_b32 s17, s{SEG}, 7")
        k(f"s_add_u32 s17, s17, s{fl_s}")
        k(f"s_add_u32 s17, s17, {FL_AB}")
        k("s_mov_b64 exec, 0xfffff")
        lab('poll')
        k(f"buffer_load_dword v5, v{V_FA}, {srd}, s17 offen sc1")
        k("s_waitcnt vmcnt(0)")
        k("v_cmp_eq_u32 vcc, 0, v5")
        k(f"s_sub_u32 s{spin_s}, s{spin_s}, 1")
        k(f"s_cbranch_scc1 {bail}")
        k(f"s_cbranch_vccnz {L('poll')}")
        k("s_mov_b64 exec, -1")
        if cfg and cfg.get('rt'):
            k(f"s_cmp_ge_u32 s{SEG}, 4"); k(f"s_cbranch_scc1 {L('rt0')}"); rts(k, cfg, 0); lab('rt0')
    k(f"s_lshl_b32 s18, s{SEG}, 5")
    k(f"s_lshl_b32 s19, s{S_WAVE}, 3")
    k("s_add_u32 s18, s18, s19")
    k("s_mul_i32 s18, s18, 1280")
    k(f"s_add_u32 s18, s18, {A_X1}")
    SC1 = " sc1" if wait else ""
    for i in range(5):
        for hlf in range(2):
            k(f"buffer_load_dwordx4 {vr(X + 8 * i + 4 * hlf, 4)}, v{V_SRC}, {srd}, s18 offen offset:{i * 256 + hlf * 16}{SC1}")
    for r in range(4): k(f"v_mov_b32 v{ST + r}, 0")
    for i in range(5):
        for hlf in range(2):
            k(f"s_waitcnt vmcnt({9 - 2 * i - hlf})")
            for r in range(4):
                x = X + 8 * i + 4 * hlf + r
                k(f"v_dot2c_f32_bf16 v{ST + (r & 1)}, s{ONE}, v{x}")
                k(f"v_dot2c_f32_bf16 v{ST + 2 + (r & 1)}, v{x}, v{x}")
    k("s_nop 3")
    k(f"v_add_f32 v{ST}, v{ST}, v{ST+1}")
    k(f"v_add_f32 v{ST+2}, v{ST+2}, v{ST+3}")
    for ctl in ("quad_perm:[1,0,3,2]", "quad_perm:[2,3,0,1]", "row_half_mirror"):
        k("s_nop 1")
        k(f"v_add_f32_dpp v{ST}, v{ST}, v{ST} {ctl} row_mask:0xf bank_mask:0xf")
        k(f"v_add_f32_dpp v{ST+2}, v{ST+2}, v{ST+2} {ctl} row_mask:0xf bank_mask:0xf")
    k(f"v_mul_f32 v{ST}, {hexf(1.0/640)}, v{ST}")
    k(f"v_mul_f32 v{ST+1}, v{ST}, v{ST}")
    k(f"v_mul_f32 v{ST+2}, {hexf(1.0/640)}, v{ST+2}")
    k(f"v_sub_f32 v{ST+2}, v{ST+2}, v{ST+1}")
    k(f"v_max_f32 v{ST+2}, 0, v{ST+2}")
    k(f"v_add_f32 v{ST+2}, 0x3727c5ac, v{ST+2}")
    k(f"v_rsq_f32 v{ST+2}, v{ST+2}")
    k("s_nop 0")
    k(f"v_mul_f32 v{ST}, v{ST}, v{ST+2}")
    k(f"v_sub_f32 v{ST}, 0, v{ST}")
    k(f"s_mul_i32 s18, s{SEG}, {XN_SEG}")
    k(f"s_lshl_b32 s19, s{S_WAVE}, 7")
    k("s_add_u32 s18, s18, s19")
    k(f"s_add_u32 s18, s18, {XN}")
    POS = [0, 2, 4, 6, 1, 3, 5, 7]
    for i in range(5):
        o = O + 8 * (i & 1)
        for d in range(8):
            x = X + 8 * i + d; u = U + 2 * (d & 3)
            k(f"v_lshlrev_b32 v{u}, 16, v{x}")
            k(f"v_and_b32 v{u+1}, 0xffff0000, v{x}")
            k(f"v_fma_f32 v{u}, v{u}, v{ST+2}, v{ST}")
            k(f"v_fma_f32 v{u+1}, v{u+1}, v{ST+2}, v{ST}")
            k(f"v_cvt_pk_bf16_f32 v{o + POS[d]}, v{u}, v{u+1}")
        for b in range(2):
            k(f"buffer_store_dwordx4 {vr(o + 4 * b, 4)}, v{V_DST}, {srd}, s18 offen offset:{b * 512}{SC1}")
        if i < 4: k("s_add_u32 s18, s18, 8192")
    if wait:
        k("s_waitcnt vmcnt(0)")
        k(f"s_lshl_b32 s17, s{SEG}, 4")
        k(f"s_lshl_b32 s19, s{S_WAVE}, 2")
        k("s_add_u32 s17, s17, s19")
        k(f"s_add_u32 s17, s17, s{fl_s}")
        k(f"s_add_u32 s17, s17, {FL_LN}")
        k("v_mov_b32 v5, 0")
        k("s_mov_b64 exec, 1")
        k(f"buffer_store_dword v{V_ONE}, v5, {srd}, s17 offen sc1")
        k("s_mov_b64 exec, -1")
        if cfg and cfg.get('rt'):
            k(f"s_cmp_ge_u32 s{SEG}, 4"); k(f"s_cbranch_scc1 {L('rt1')}"); rts(k, cfg, 1); lab('rt1')
            rts(k, cfg, 2)
    k(f"s_add_u32 s{SEG}, s{SEG}, {nstride}")
    k(f"s_cmp_lt_u32 s{SEG}, 64")
    k(f"s_cbranch_scc1 {L('seg')}")

def build_aback_test(name):
    k = K(name, vgpr=128, sgpr=64, agpr=160)
    k("s_cmp_ge_u32 s2, 160")
    k(f"s_cbranch_scc1 {k.ref('end')}")
    prologue(k)
    k("s_mov_b32 s49, %d" % (0 if name.endswith('1') else 1))
    k("s_mul_i32 s28, s2, 13108"); k("s_lshr_b32 s28, s28, 16")
    k("s_mul_i32 s29, s28, 5"); k("s_sub_u32 s29, s2, s29")
    k(f"s_lshl_b32 s{AB_SEG}, s28, 1")
    k(f"s_add_u32 s{AB_END}, s{AB_SEG}, 2")
    role_aback(k, 29, 49, 48, flags=False)
    k.lab('end')
    return k, 160, AB_LDS

def build_lnw_test(name):
    k = K(name, vgpr=96, sgpr=64)
    k("s_cmp_ge_u32 s2, 64")
    k(f"s_cbranch_scc1 {k.ref('end')}")
    prologue(k)
    role_lnw(k, 2, 64, 48, 15, k.ref('end'), wait=False)
    k.lab('end')
    return k, 64

def role_mem0(k, slot_s, far_s=None):
    k.ptr(KA_MEM0, 24)
    k(f"s_lshl_b32 s26, s{S_WAVE}, 6")
    k("v_add_u32 v1, s26, v0")
    k("s_waitcnt lgkmcnt(0)")
    k.srd(28, 24, 8 * 640 * 2)
    for it in range(3):
        k(f"v_add_u32 v2, {256 * it}, v1")
        k("v_and_b32 v3, 7, v2")
        k("v_mul_u32_u24 v3, 1280, v3")
        k("v_lshrrev_b32 v4, 3, v2")
        k("v_lshl_add_u32 v3, v4, 4, v3")
        k("v_lshlrev_b32 v5, 4, v2")
        k(f"v_add_u32 v5, {M_LOG}, v5")
        k("v_lshrrev_b32 v6, 13, v5")
        k("v_lshlrev_b32 v6, 14, v6")
        k("v_and_b32 v5, 8191, v5")
        k("v_add_u32 v5, v5, v6")
        k("v_cmp_gt_u32 vcc, 640, v2")
        k("s_and_saveexec_b64 s[32:33], vcc")
        sk = k.ref(f'm0s{it}')
        k(f"s_cbranch_execz {sk}")
        k("buffer_load_dwordx4 v[8:11], v3, s[28:31], 0 offen")
        k("s_waitcnt vmcnt(0)")
        k(f"buffer_store_dwordx4 v[8:11], v5, {srd}, s{slot_s} offen sc1")
        if far_s is not None:
            k(f"s_add_u32 s34, s{slot_s}, s{far_s}")
            k(f"buffer_store_dwordx4 v[8:11], v5, {srd}, s34 offen sc1")
        k.lab(f'm0s{it}')
        k("s_mov_b64 exec, s[32:33]")
    k("s_waitcnt vmcnt(0)")
```

```python
import sys, math
sys.path.insert(0, "/code"); sys.path.insert(0, "tools")
from asmk import *
from lay import *

NSTEP = 64
SPIN = 400000
CSC = (192 ** -0.5) * math.log2(math.e)

class LQ:
    def __init__(self, k): self.k = k; self.q = []
    def ds(self, ins, tag=None):
        self.k(ins); self.q.append(tag)
        assert len(self.q) <= 15, "too many outstanding LDS ops"
    def wait(self, tag):
        idx = [i for i, t in enumerate(self.q) if t == tag]
        if not idx: return
        n = len(self.q) - 1 - idx[-1]
        self.k(f"s_waitcnt lgkmcnt({n})"); self.q = self.q[idx[-1] + 1:]
    def all(self):
        self.k("s_waitcnt lgkmcnt(0)"); self.q = []

def vr(b, n): return f"v[{b}:{b+n-1}]" if n > 1 else f"v{b}"
def ar(b, n): return f"a[{b}:{b+n-1}]"

def check_valid(k, regs, tmp):
    regs = list(regs)
    k(f"v_max3_u32 v{tmp}, v{regs[0]}, v{regs[1]}, v{regs[2]}")
    rest = regs[3:]
    while len(rest) >= 2:
        k(f"v_max3_u32 v{tmp}, v{tmp}, v{rest[0]}, v{rest[1]}"); rest = rest[2:]
    if rest: k(f"v_max_u32 v{tmp}, v{tmp}, v{rest[0]}")
    k(f"v_cmp_eq_u32 vcc, -1, v{tmp}")

S_WS = 4
SRD = 8
S_ROLE = 12; S_WAVE = 13; S_STEP = 14; S_SPIN = 15
S_EB0 = 16; S_EB1 = 17
S_SB = 18
S_SBN = 19
S_T = 20
S_M8 = 40
S_M2 = 42
S_KX = 44; S_KM = 45; S_Z = 46
S_GK = 47
S_FL = 48
S_LAYER = 49
S_ST = 50
S_OSRD = 84
S_FD0 = 82; S_FD1 = 83
S_SBF = 88; S_SBNF = 89
srd = f"s[{SRD}:{SRD+3}]"

OWN = [[0, 1, 2], [3, 4, 5], [6, 7], [8, 9]]

def slot_base(k, dst, step_s, tmp, far=None):
    k(f"s_cmp_lt_u32 s{step_s}, 32")
    k(f"s_cselect_b32 s{dst}, s{S_EB0}, s{S_EB1}")
    if far is not None: k(f"s_cselect_b32 s{far}, s{S_FD0}, s{S_FD1}")
    k(f"s_and_b32 s{tmp}, s{step_s}, 31")
    k(f"s_lshl_b32 s{tmp}, s{tmp}, 16")
    k(f"s_add_u32 s{dst}, s{dst}, s{tmp}")
    if far is not None: k(f"s_add_u32 s{far}, s{far}, s{dst}")

def stamp(k, cfg, n, real=False):
    if cfg.get('stamp'):
        k(f"s_mem{'real' if real else ''}time s[{S_ST+2*n}:{S_ST+2*n+1}]")

def stamp_flush(k, cfg, nst, base_off):
    if not cfg.get('stamp'): return
    k("s_waitcnt lgkmcnt(0)")
    sk = k.uniq('stk')
    k(f"s_cmp_lg_u32 s{S_ROLE}, {cfg.get('stamp_role', 0)}")
    k(f"s_cbranch_scc1 {k.ref(sk)}")
    k("s_mov_b64 s[30:31], exec")
    k("s_mov_b64 exec, 1")
    k(f"s_lshl_b32 s32, s{S_STEP}, 6")
    k(f"s_add_u32 s32, s32, {base_off}")
    k("v_mov_b32 v253, 0")
    for n in range(nst):
        k(f"v_mov_b32 v254, s{S_ST+2*n}")
        k(f"buffer_store_dword v254, v253, {srd}, s32 offen offset:{4*n}")
        k("s_nop 1")
    k("s_mov_b64 exec, s[30:31]")
    k.lab(sk)

def rt(k, cfg, n):
    if cfg.get('rt'):
        k(f"s_memrealtime s[{S_ST+2*n}:{S_ST+2*n+1}]")

def rt_flush(k, cfg, rolebase):
    if not cfg.get('rt'): return
    k("s_waitcnt lgkmcnt(0)")
    k("s_mov_b64 exec, 1")
    k(f"s_add_u32 s32, s{S_ROLE}, {rolebase}")
    k("s_lshl_b32 s32, s32, 6")
    k(f"s_add_u32 s32, s32, s{S_STEP}")
    k(f"s_lshl_b32 s32, s32, {5 if cfg.get('rt2') else 4}")
    k(f"s_add_u32 s32, s32, {cfg['rt']}")
    k(f"s_mul_i32 s33, s{S_LAYER}, 0x200000")
    k("s_add_u32 s32, s32, s33")
    k("v_mov_b32 v253, 0")
    for n in range(8 if cfg.get('rt2') else 3):
        k(f"v_mov_b32 v254, s{S_ST+2*n}")
        k(f"buffer_store_dword v254, v253, {srd}, s32 offen offset:{4*n}")
        k("s_nop 1")
    k("s_mov_b64 exec, -1")

def spin_check(k, bail):
    k(f"s_sub_u32 s{S_SPIN}, s{S_SPIN}, 1")
    k(f"s_cbranch_scc1 {bail}")

def wait_progress(k, cfg, tag, step_s, voff, nl, vt):
    if not cfg.get('ovl'): return
    ok = k.ref(tag + '_ok'); lp = tag + '_lp'
    k(f"s_cmp_gt_u32 s{S_GK}, s{step_s}")
    k(f"s_cbranch_scc1 {ok}")
    k.lab(lp)
    k(f"buffer_load_dword v{vt}, v{voff}, {srd}, s{S_FL} offen sc1")
    k("s_waitcnt vmcnt(0)")
    k(f"v_readlane_b32 s{S_GK}, v{vt}, 0")
    if nl == 2:
        k(f"v_readlane_b32 s{S_T+9}, v{vt}, 1")
        k("s_nop 0")
        k(f"s_min_u32 s{S_GK}, s{S_GK}, s{S_T+9}")
    else:
        k("s_nop 0")
    spin_check(k, k.ref('bail'))
    k(f"s_cmp_gt_u32 s{S_GK}, s{step_s}")
    k(f"s_cbranch_scc0 {k.ref(lp)}")
    k.lab(tag + '_ok')

def flag_store(k, cfg, off_s, val_s, va, vb):
    k("s_mov_b64 exec, 1")
    k(f"v_mov_b32 v{va}, s{off_s}")
    k(f"v_mov_b32 v{vb}, s{val_s}")
    k(f"buffer_store_dword v{vb}, v{va}, {srd}, s{S_FL} offen sc1")
    k("s_mov_b64 exec, -1")


S_MK = 69
S_PM = 68

def poll_cont(k, tag, loads, regs, consume, tmp, dummy, bail):
    n = len(loads)
    for u in range(n): loads[u]()
    k(f"s_mov_b32 s{S_PM}, 0")
    k.lab(f"{tag}_lp")
    for u in range(n):
        k(f"s_waitcnt vmcnt({n - 1})")
        k(f"s_bitcmp1_b32 s{S_PM}, {u}")
        k(f"s_cbranch_scc1 {k.ref(f'{tag}_d{u}')}")
        check_valid(k, regs[u], tmp)
        k(f"s_bitset1_b32 s{S_PM}, {u}")
        k(f"s_cbranch_vccnz {k.ref(f'{tag}_r{u}')}")
        consume[u]()
        k(f"s_cmp_eq_u32 s{S_PM}, {(1 << n) - 1}")
        k(f"s_cbranch_scc1 {k.ref(f'{tag}_x')}")
        k.lab(f"{tag}_d{u}")
        k(f"buffer_load_dword v{dummy}, off, {srd}, s{S_SB} sc1")
        k(f"s_branch {k.ref(f'{tag}_n{u}')}")
        k.lab(f"{tag}_r{u}")
        k(f"s_bitset0_b32 s{S_PM}, {u}")
        loads[u]()
        k.lab(f"{tag}_n{u}")
    spin_check(k, bail)
    k(f"s_branch {k.ref(f'{tag}_lp')}")
    k.lab(f"{tag}_x")

PL_NL = 15
PL_WL = 0
PL_MEMI = 4 * PL_NL * 2048
PL_QI = PL_MEMI + 10240
PL_STR = 400
PL_KI = PL_QI + 8 * PL_STR
PL_SP = PL_KI + 8 * PL_STR
PL_END = PL_SP + 4096

V_L16 = 1; V_IDX = 2; V_IW = 3; V_QR = 4; V_KR = 5; V_SPR = 6; V_PX = 7; V_PM = 8; V_KXO = 9
V_KML = 10; V_KMG = 11; V_MASKF = 12; V_WLA = 13; V_MIA = 14; V_SPW = 15
V_GF = 255; V_T0 = 253; V_T1 = 254
AF = 16; PD = 56; PDX = 80; PDM = 84; QF = 88; KXF = 100; TB = 116; PVW = 148

def p_plan(w):
    own = OWN[w]; rest = [ks for ks in range(10) if ks not in own]
    order1 = own + rest
    seq = [(T, ks) for ks in order1 for T in (0, 1, 2)] + [(T, ks) for T in (3, 4, 5) for ks in range(10)]
    ldspos = list(range(9, 30, 2)) + [44, 48, 52, 56]
    assert len(ldspos) == PL_NL
    where = {}
    regops = [i for i in range(60) if i not in ldspos]
    for n, i in enumerate(regops):
        where[seq[i]] = ('a', 8 * n) if n < 32 else ('v', PVW + 8 * (n - 32))
    assert PVW + 8 * (len(regops) - 32) <= 254
    for n, i in enumerate(ldspos): where[seq[i]] = ('l', n)
    return own, rest, seq, ldspos, where

def p_setup_lanes(k):
    k(f"v_lshlrev_b32 v{V_L16}, 4, v0")
    k("v_and_b32 v16, 8, v0")
    k("v_cmp_eq_u32 vcc, 0, v16")
    k("v_mov_b32 v17, 0xeeeeeeee")
    k("v_mov_b32 v18, 0x44444444")
    k(f"v_cndmask_b32 v{V_IDX}, v17, v18, vcc")

def gen_p_wave(k, w, cfg):
    own, rest, seq, ldspos, where = p_plan(w)
    L = lambda s: k.ref(f"p{w}_{s}")
    lab = lambda s: k.lab(f"p{w}_{s}")
    bail = k.ref('bail')
    lq = LQ(k)
    lab('start')
    k("v_lshrrev_b32 v16, 4, v0")
    k("v_and_b32 v17, 15, v0")
    k("v_and_b32 v18, 1, v16")
    k("v_lshlrev_b32 v18, 2, v18")
    k("v_lshrrev_b32 v19, 1, v16")
    k("v_lshl_add_u32 v18, v19, 1, v18")
    k(f"v_mul_u32_u24 v18, {PL_STR}, v18")
    k("v_lshl_add_u32 v18, v17, 1, v18")
    k(f"v_add_u32 v{V_IW}, {PL_QI + 96 * w}, v18")
    k("v_and_b32 v18, 7, v0")
    k(f"v_mul_u32_u24 v18, {PL_STR}, v18")
    k("v_lshrrev_b32 v19, 3, v0")
    k("v_lshl_add_u32 v18, v19, 4, v18")
    k(f"v_add_u32 v{V_QR}, {PL_QI}, v18")
    k("v_and_b32 v18, 7, v0")
    k(f"v_mul_u32_u24 v18, {PL_STR}, v18")
    k("v_lshl_add_u32 v18, v16, 5, v18")
    k(f"v_add_u32 v{V_KR}, {PL_KI}, v18")
    k("v_lshrrev_b32 v18, 1, v16")
    k("v_lshlrev_b32 v18, 10, v18")
    k("v_and_b32 v19, 31, v0")
    k("v_lshl_add_u32 v18, v19, 4, v18")
    k(f"v_add_u32 v{V_SPR}, {PL_SP + 4 * w}, v18")
    k(f"v_add_u32 v{V_SPW}, {PL_SP + 1024 * w}, v{V_L16}")
    k("v_lshrrev_b32 v18, 1, v16")
    k("v_lshlrev_b32 v18, 1, v18")
    k("v_lshrrev_b32 v19, 3, v17")
    k("v_add3_u32 v18, v18, v19, 1")
    k("v_lshrrev_b32 v19, 1, v18")
    k("v_lshlrev_b32 v19, 14, v19")
    k("v_and_b32 v18, 1, v18")
    k("v_lshl_add_u32 v18, v18, 12, v19")
    k("v_and_b32 v19, 1, v16")
    k("v_lshlrev_b32 v19, 4, v19")
    k(f"v_add_u32 v19, {32 * w}, v19")
    k(f"s_lshl_b32 s{S_T}, s{S_ROLE}, 7")
    k(f"v_add_u32 v{V_PM}, s{S_T}, v19")
    k(f"v_add_u32 v{V_PX}, v{V_PM}, v18")
    k(f"v_lshlrev_b32 v18, 4, v17")
    k("v_lshl_add_u32 v18, v16, 10, v18")
    k(f"v_add_u32 v{V_KXO}, {16 * (w & 1) * 16}, v18")
    k(f"v_add_u32 v18, {64 * w}, v0")
    k("v_mul_u32_u24 v19, 2731, v18")
    k("v_lshrrev_b32 v19, 16, v19")
    k("v_mul_u32_u24 v20, 24, v19")
    k("v_sub_u32 v20, v18, v20")
    k(f"v_mul_u32_u24 v21, {PL_STR}, v19")
    k("v_lshl_add_u32 v21, v20, 4, v21")
    k(f"v_add_u32 v{V_KML}, {PL_KI}, v21")
    k("v_lshlrev_b32 v21, 4, v19")
    k(f"v_lshl_add_u32 v{V_KMG}, v20, 7, v21")
    k("v_and_b32 v18, 0x28, v0")
    k("v_cmp_eq_u32 vcc, 0, v18")
    k("v_mov_b32 v18, 1.0")
    k("v_mov_b32 v19, 0")
    k(f"v_cndmask_b32 v{V_MASKF}, v19, v18, vcc")
    k(f"v_add_u32 v{V_WLA}, {PL_WL + w * PL_NL * 2048}, v{V_L16}")
    k(f"v_add_u32 v{V_MIA}, {PL_MEMI}, v{V_L16}")
    k(f"s_mul_i32 s{S_KX}, s{S_ROLE}, {KX_SH}")
    k(f"s_add_u32 s{S_KX}, s{S_KX}, {KX}")
    k(f"s_mul_i32 s{S_KM}, s{S_ROLE}, {KM_SH}")
    k(f"s_add_u32 s{S_KM}, s{S_KM}, {KM}")
    if cfg.get('ovl'):
        k(f"s_mul_i32 s{S_T}, s{S_ROLE}, 6")
        k(f"s_add_u32 s{S_T+1}, s{S_T}, 5")
        k(f"s_lshr_b32 s{S_T}, s{S_T}, 3")
        k(f"s_lshr_b32 s{S_T+1}, s{S_T+1}, 3")
        k(f"s_add_u32 s{S_T}, s{S_T}, 80"); k(f"s_add_u32 s{S_T+1}, s{S_T+1}, 80")
        k(f"s_lshl_b32 s{S_T}, s{S_T}, 7"); k(f"s_lshl_b32 s{S_T+1}, s{S_T+1}, 7")
        k(f"v_mov_b32 v{V_GF}, s{S_T+1}")
        k(f"v_mov_b32 v{V_T0}, s{S_T}")
        k("v_cmp_eq_u32 vcc, 0, v0")
        k("s_nop 1")
        k(f"v_cndmask_b32 v{V_GF}, v{V_GF}, v{V_T0}, vcc")
        k(f"s_mov_b32 s{S_GK}, 0")
    k(f"s_mul_i32 s{S_T}, s{S_ROLE}, 491520")
    k(f"s_add_u32 s{S_T}, s{S_T}, {WP + w * 122880}")
    def wload(dst, T, ks):
        idx = T * 10 + ks
        k(f"s_add_u32 s{S_T+1}, s{S_T}, {idx * 2048}")
        for hi in range(2):
            k(f"buffer_load_dwordx4 {dst(hi)}, v{V_L16}, {srd}, s{S_T+1} offen offset:{hi*1024}")
    lops = [(op, wh[1]) for op, wh in where.items() if wh[0] == 'l']
    rops = [(op, wh) for op, wh in where.items() if wh[0] != 'l']
    for (T, ks), slot in lops:
        wload(lambda hi: vr(16 + 8 * slot + 4 * hi, 4), T, ks)
    nre = 0
    for (T, ks), wh in rops[:16]:
        wload((lambda hi, wh=wh: (ar if wh[0] == 'a' else vr)(wh[1] + 4 * hi, 4)), T, ks)
    k("s_waitcnt vmcnt(32)")
    for (T, ks), slot in lops:
        for hi in range(2):
            k(f"ds_write_b128 v{V_WLA}, {vr(16 + 8 * slot + 4 * hi, 4)} offset:{slot * 2048 + hi * 1024}")
    for (T, ks), wh in rops[16:]:
        wload((lambda hi, wh=wh: (ar if wh[0] == 'a' else vr)(wh[1] + 4 * hi, 4)), T, ks)
    k("s_waitcnt lgkmcnt(0)")
    kxset = [0, 1] if w < 2 else [2]
    SC1 = " sc1" if cfg.get('ovl') else ""
    npf = [0]
    def kx_prefetch(step_s):
        npf[0] += 1
        wait_progress(k, cfg, f"p{w}_gw{npf[0]}", step_s, V_GF, 2, V_T0)
        k(f"s_mul_i32 s{S_T}, s{step_s}, {32 * KX_SH}")
        k(f"s_add_u32 s{S_T}, s{S_T}, s{S_KX}")
        for u, ks in enumerate(kxset):
            k(f"s_add_u32 s{S_T+1}, s{S_T}, {ks * 4096}")
            for hi in range(2):
                k(f"buffer_load_dwordx4 {vr(KXF + 8 * u + 4 * hi, 4)}, v{V_KXO}, {srd}, s{S_T+1} offen offset:{hi * 512}{SC1}")
    def tb_read(n):
        for hi in range(2):
            lq.ds(f"ds_read_b128 {vr(TB + 8 * (n % 4) + 4 * hi, 4)}, v{V_WLA} offset:{n * 2048 + hi * 1024}", ('tb', n))
    def zero_d():
        for r in range(PD, PD + 32): k(f"v_mov_b32 v{r}, 0")
    k(f"s_mov_b32 s{S_STEP}, 0")
    kx_prefetch(S_STEP)
    zero_d()
    for n in range(4): tb_read(n)
    lq.all()
    lab('step')
    slot_base(k, S_SB, S_STEP, S_T)
    for u, ks in enumerate(own):
        k(f"s_add_u32 s{S_T+2+u}, s{S_SB}, {physmap(M_LOG + 1024 * ks)}")
    if cfg.get('mark') is not None and w == 0:
        k(f"s_lshr_b32 s{S_MK}, s{S_ROLE}, 1")
        k(f"s_lshl_b32 s{S_MK}, s{S_MK}, 7")
        k(f"s_and_b32 s{S_T}, s{S_ROLE}, 1")
        k(f"s_lshl_b32 s{S_T}, s{S_T}, 2")
        k(f"s_add_u32 s{S_MK}, s{S_MK}, s{S_T}")
        k(f"s_add_u32 s{S_MK}, s{S_MK}, s{S_SB}")
        k(f"s_add_u32 s{S_MK}, s{S_MK}, {physmap(MARK_LOG)}")
    stamp(k, cfg, 0)
    if cfg.get('cpoll', 0):
        poll_cont(k, f"p{w}_mp",
                  [lambda u=u, ks=ks: k(f"buffer_load_dwordx4 {vr(AF + 4 * ks, 4)}, v{V_L16}, {srd}, s{S_T+2+u} offen sc1") for u, ks in enumerate(own)],
                  [[AF + 4 * ks + j for j in range(4)] for ks in own],
                  [lambda ks=ks: k(f"ds_write_b128 v{V_MIA}, {vr(AF + 4 * ks, 4)} offset:{ks * 1024}") for ks in own],
                  QF, 252, bail)
    else:
        lab('poll')
        for u, ks in enumerate(own):
            k(f"buffer_load_dwordx4 {vr(AF + 4 * ks, 4)}, v{V_L16}, {srd}, s{S_T+2+u} offen sc1")
        k("s_waitcnt vmcnt(0)")
        for ks in own:
            k(f"ds_write_b128 v{V_MIA}, {vr(AF + 4 * ks, 4)} offset:{ks * 1024}")
        check_valid(k, [AF + 4 * ks + j for ks in own for j in range(4)], QF)
        spin_check(k, bail)
        k(f"s_cbranch_vccnz {L('poll')}")
    lq.all()
    k("s_barrier")
    stamp(k, cfg, 1)
    if w == 0: rt(k, cfg, 0)
    for ks in rest:
        lq.ds(f"ds_read_b128 {vr(AF + 4 * ks, 4)}, v{V_MIA} offset:{ks * 1024}", ('af', ks))
    def post_tile(T, base):
        d = PD + 4 * T
        col = 32 * (T % 3)
        return [
            lambda: k(f"v_permlane32_swap_b32 v{d}, v{d+2}"),
            lambda: k(f"v_permlane32_swap_b32 v{d+1}, v{d+3}"),
            lambda: k(f"v_add_f32 v{d}, v{d}, v{d+2}"),
            lambda: k(f"v_add_f32 v{d+1}, v{d+1}, v{d+3}"),
            lambda: k(f"v_cvt_pk_bf16_f32 v{d}, v{d}, v{d+1}"),
            lambda: lq.ds(f"ds_write_b16 v{V_IW}, v{d} offset:{base + col}", ('img', T)),
            lambda: lq.ds(f"ds_write_b16_d16_hi v{V_IW}, v{d} offset:{base + col + PL_STR}", ('img', T)),
        ]
    MK = cfg.get('mark', None)
    def mark():
        if w != 0: return
        k(f"buffer_store_dword v{V_L16}, off, {srd}, s{S_MK} sc1")
    side = {i: [] for i in range(60)}
    if isinstance(MK, int): side[MK].append(mark)
    def put(items, start, per=2):
        i = start
        for it in items:
            while len(side[i]) >= per: i += 1
            side[i].append(it)
        return i
    KO = PL_KI - PL_QI
    e = put(post_tile(0, 0) + post_tile(1, 0) + post_tile(2, 0), 31)
    b1 = e + 2
    side[b1].append(lambda: (lq.wait(('img', 2)), k("s_barrier")))
    for ks in range(3):
        side[b1 + (ks > 0)].append(lambda ks=ks: lq.ds(f"ds_read_b128 {vr(QF + 4 * ks, 4)}, v{V_QR} offset:{ks * 128}", ('qf', ks)))
    put(post_tile(3, KO), b1 + 2)
    sx = b1 + 6
    def smx():
        lq.wait(('qf', 2))
        for u, ks in enumerate(kxset):
            k(f"v_smfmac_f32_16x16x64_bf16 {vr(PDX, 4)}, {vr(QF + 4 * ks, 4)}, {vr(KXF + 8 * u, 8)}, v{V_IDX}")
    side[sx].append(smx)
    put(post_tile(4, KO), 52)
    side[min(sx + 4, 58)].append(lambda: lq.ds(f"ds_write_b128 v{V_SPW}, {vr(PDX, 4)}", 'sp'))
    for i, (T, ks) in enumerate(seq):
        wh = where[(T, ks)]
        if i < 30 and ks in rest: lq.wait(('af', ks))
        if wh[0] == 'l':
            lq.wait(('tb', wh[1]))
            b = vr(TB + 8 * (wh[1] % 4), 8)
        else:
            b = (ar if wh[0] == 'a' else vr)(wh[1], 8)
        k(f"v_smfmac_f32_16x16x64_bf16 {vr(PD + 4 * T, 4)}, {vr(AF + 4 * ks, 4)}, {b}, v{V_IDX}")
        if wh[0] == 'l' and wh[1] + 4 < PL_NL:
            tb_read(wh[1] + 4)
        for it in side[i]: it()
        if i == 29: stamp(k, cfg, 2)
        if i == b1: stamp(k, cfg, 3)
    stamp(k, cfg, 4)
    k("s_nop 7")
    for it in post_tile(5, KO): it()
    lq.all()
    k("s_barrier")
    if MK == 'b3': mark()
    stamp(k, cfg, 5)
    KF = AF
    X0 = AF + 24
    lq.ds(f"ds_read2st64_b32 {vr(X0, 2)}, v{V_SPR} offset0:0 offset1:2", 'sp0')
    lq.ds(f"ds_read2st64_b32 {vr(X0 + 2, 2)}, v{V_SPR} offset0:8 offset1:10", 'sp1')
    for ks in range(3):
        for hi in range(2):
            lq.ds(f"ds_read_b128 {vr(KF + 8 * ks + 4 * hi, 4)}, v{V_KR} offset:{ks * 128 + hi * 16}", ('kf', ks))
    sx_, mx, t, u, sm, ex, em, tot = X0 + 4, X0 + 5, X0 + 6, X0 + 7, X0 + 8, X0 + 9, X0 + 10, X0 + 11
    lq.wait('sp1')
    k(f"v_add_f32 v{X0}, v{X0}, v{X0+1}")
    k(f"v_add_f32 v{X0+2}, v{X0+2}, v{X0+3}")
    k(f"v_add_f32 v{sx_}, v{X0}, v{X0+2}")
    k(f"v_mul_f32 v{sx_}, {hexf(CSC)}, v{sx_}")
    for ks in range(3):
        lq.wait(('kf', ks))
        k(f"v_smfmac_f32_16x16x64_bf16 {vr(PDM, 4)}, {vr(QF + 4 * ks, 4)}, {vr(KF + 8 * ks, 8)}, v{V_IDX}")
    if MK == 's6': mark()
    stamp(k, cfg, 6)
    def dpp(op, dst, src, ctl):
        k(f"{op} v{dst}, v{src}, v{src} {ctl} row_mask:0xf bank_mask:0xf")
    dpp("v_max_f32_dpp", mx, sx_, "row_ror:8"); k("s_nop 1")
    dpp("v_max_f32_dpp", mx, mx, "row_ror:4"); k("s_nop 1")
    dpp("v_max_f32_dpp", mx, mx, "row_ror:2"); k("s_nop 1")
    dpp("v_max_f32_dpp", mx, mx, "row_ror:1")
    k(f"v_mov_b32 v{u}, v{mx}")
    k("s_nop 1")
    k(f"v_permlane32_swap_b32 v{mx}, v{u}")
    k(f"v_max_f32 v{mx}, v{mx}, v{u}")
    dm = PDM + w
    k(f"v_mov_b32 v{u}, v{dm}")
    k("s_nop 1")
    k(f"v_permlane32_swap_b32 v{dm}, v{u}")
    k(f"v_add_f32 v{sm}, v{dm}, v{u}")
    k(f"v_mul_f32 v{sm}, {hexf(CSC)}, v{sm}")
    k("s_nop 1")
    dpp("v_max_f32_dpp", t, sm, "row_ror:4"); k("s_nop 1")
    dpp("v_max_f32_dpp", t, t, "row_ror:2"); k("s_nop 1")
    dpp("v_max_f32_dpp", t, t, "row_ror:1")
    k(f"v_max_f32 v{mx}, v{mx}, v{t}")
    k(f"v_sub_f32 v{ex}, v{sx_}, v{mx}")
    k(f"v_sub_f32 v{em}, v{sm}, v{mx}")
    k(f"v_exp_f32 v{ex}, v{ex}")
    k(f"v_exp_f32 v{em}, v{em}")
    k("s_nop 0")
    k(f"v_fma_f32 v{tot}, v{em}, v{V_MASKF}, v{ex}")
    k("s_nop 1")
    dpp("v_add_f32_dpp", tot, tot, "row_ror:8"); k("s_nop 1")
    dpp("v_add_f32_dpp", tot, tot, "row_ror:4"); k("s_nop 1")
    dpp("v_add_f32_dpp", tot, tot, "row_ror:2"); k("s_nop 1")
    dpp("v_add_f32_dpp", tot, tot, "row_ror:1")
    k(f"v_mov_b32 v{u}, v{tot}")
    k("s_nop 1")
    k(f"v_permlane32_swap_b32 v{tot}, v{u}")
    k(f"v_add_f32 v{tot}, v{tot}, v{u}")
    k(f"v_rcp_f32 v{tot}, v{tot}")
    k("s_nop 0")
    k(f"v_mul_f32 v{ex}, v{ex}, v{tot}")
    k(f"v_mul_f32 v{em}, v{em}, v{tot}")
    ox, om = KF, KF + 4
    k("s_nop 0")
    k(f"v_mov_b32_dpp v{t}, v{ex} quad_perm:[1,0,3,2] row_mask:0xf bank_mask:0xf")
    k(f"v_mov_b32_dpp v{u}, v{em} quad_perm:[1,0,3,2] row_mask:0xf bank_mask:0xf")
    k(f"v_cvt_pk_bf16_f32 v{ox}, v{ex}, v{t}")
    k(f"v_cvt_pk_bf16_f32 v{om}, v{em}, v{u}")
    k("s_nop 0")
    for j in range(1, 4):
        k(f"v_mov_b32_dpp v{ox+j}, v{ox} row_shl:{2*j} row_mask:0xf bank_mask:0xf")
    for j in range(1, 4):
        k(f"v_mov_b32_dpp v{om+j}, v{om} row_shl:{2*j} row_mask:0xf bank_mask:0xf")
    k(f"s_mov_b64 exec, s[{S_M8}:{S_M8+1}]")
    k(f"buffer_store_dwordx4 {vr(ox, 4)}, v{V_PX}, {srd}, s{S_SB} offen sc1")
    k(f"s_mov_b64 exec, s[{S_M2}:{S_M2+1}]")
    k(f"buffer_store_dwordx4 {vr(om, 4)}, v{V_PM}, {srd}, s{S_SB} offen sc1")
    k("s_mov_b64 exec, -1")
    stamp(k, cfg, 7)
    stamp(k, cfg, 8, True)
    if w == 0: rt(k, cfg, 1)
    if w < 3:
        lq.ds(f"ds_read_b128 {vr(X0, 4)}, v{V_KML}", 'km')
    k(f"s_add_u32 s{S_T+8}, s{S_STEP}, 1")
    k(f"s_min_u32 s{S_T+8}, s{S_T+8}, {NSTEP-1}")
    kx_prefetch(S_T + 8)
    zero_d()
    if w < 3:
        lq.wait('km')
        k(f"s_mul_i32 s{S_T}, s{S_STEP}, {32 * KM_SH}")
        k(f"s_add_u32 s{S_T}, s{S_T}, s{S_KM}")
        k(f"buffer_store_dwordx4 {vr(X0, 4)}, v{V_KMG}, {srd}, s{S_T} offen{SC1}")
    if w == 3 and cfg.get('ovl'):
        k(f"s_lshl_b32 s{S_T}, s{S_ROLE}, 7")
        k(f"s_add_u32 s{S_T}, s{S_T}, {FL_PF}")
        flag_store(k, cfg, S_T, S_STEP, V_T0, V_T1)
    for n in range(4): tb_read(n)
    lq.all()
    if cfg.get('pack', 0):
        k("s_waitcnt vmcnt(0)")
        k("s_barrier")
    if w == 0: rt_flush(k, cfg, 0)
    if w == cfg.get('stamp_wave', 0): stamp_flush(k, cfg, 9, cfg.get('stamp_p', 0))
    k(f"s_add_u32 s{S_STEP}, s{S_STEP}, 1")
    k(f"s_cmp_lt_u32 s{S_STEP}, {NSTEP}")
    k(f"s_cbranch_scc1 {L('step')}")
    if cfg.get('ovl'):
        k("s_waitcnt vmcnt(0)")
        k("s_barrier")
        if w == 3:
            k(f"s_lshl_b32 s{S_T}, s{S_ROLE}, 7")
            k(f"s_add_u32 s{S_T}, s{S_T}, {FL_PF}")
            flag_store(k, cfg, S_T, S_STEP, V_T0, V_T1)
    k(f"s_branch {k.ref('end')}")

YL_MEMI = 0
YL_RED = 10240
YV_L16 = 1; YV_IDX = 2; YV_MIA = 3; YV_ZO = 4; YV_PO = 5; YV_RW = 6; YV_RR = 7; YV_MO = 8; YV_GF = 9; YV_MK = 10
YAF = 16; YD = 56; YZB = 72; YPF = 92; YACC = 112; YT = 116; YVW = 176

def gen_y_wave(k, w, cfg):
    own = OWN[w]; rest = [ks for ks in range(10) if ks not in own]
    L = lambda s: k.ref(f"y{w}_{s}")
    lab = lambda s: k.lab(f"y{w}_{s}")
    bail = k.ref('bail')
    lq = LQ(k)
    lab('start')
    k("v_lshrrev_b32 v16, 4, v0")
    k("v_and_b32 v17, 7, v0")
    k("v_lshrrev_b32 v18, 3, v0")
    k("v_and_b32 v18, 1, v18")
    k("v_lshl_add_u32 v19, v18, 2, v16")
    k(f"v_add_u32 v19, {8 * w}, v19")
    k("v_mul_u32_u24 v20, 640, v19")
    k(f"v_lshl_add_u32 v{YV_ZO}, v17, 4, v20")
    k("v_and_b32 v20, 3, v17")
    k("v_lshlrev_b32 v20, 1, v20")
    k("v_lshrrev_b32 v21, 2, v17")
    k("v_add_u32 v20, v20, v21")
    k("v_lshlrev_b32 v20, 4, v20")
    k(f"v_lshl_add_u32 v{YV_PO}, v19, 7, v20")
    k(f"v_add_u32 v{YV_MIA}, {YL_MEMI}, v{YV_L16}")
    k("v_lshrrev_b32 v20, 1, v17")
    k("v_lshlrev_b32 v20, 7, v20")
    k("v_and_b32 v21, 1, v17")
    k("v_lshl_add_u32 v20, v21, 2, v20")
    k(f"v_add_u32 v{YV_MK}, {512 * w}, v20")
    k("v_lshlrev_b32 v20, 8, v18")
    k("v_lshl_add_u32 v20, v17, 5, v20")
    k("v_and_b32 v21, 1, v16")
    k("v_lshl_add_u32 v20, v21, 4, v20")
    k(f"v_add_u32 v20, {YL_RED + 512 * w}, v20")
    k(f"v_add_u32 v21, {YL_RED + 2048}, v{YV_L16}")
    k("v_lshrrev_b32 v22, 1, v16")
    k("v_cmp_eq_u32 vcc, v22, v18")
    k("s_nop 1")
    k(f"v_cndmask_b32 v{YV_RW}, v21, v20, vcc")
    k("v_lshrrev_b32 v20, 3, v0")
    k("v_lshlrev_b32 v20, 2, v20")
    k("v_lshl_add_u32 v20, v17, 5, v20")
    k(f"v_add_u32 v{YV_RR}, {YL_RED}, v20")
    k(f"s_lshl_b32 s{S_T}, s{S_ROLE}, 7")
    k(f"s_add_u32 s{S_T}, s{S_T}, {M_LOG}")
    k(f"s_lshr_b32 s{S_T+1}, s{S_T}, 13")
    k(f"s_lshl_b32 s{S_T+1}, s{S_T+1}, 14")
    k(f"s_and_b32 s{S_T}, s{S_T}, 8191")
    k(f"s_add_u32 s{S_T}, s{S_T}, s{S_T+1}")
    k("v_lshrrev_b32 v20, 3, v0")
    k("v_lshlrev_b32 v20, 4, v20")
    k(f"v_add_u32 v{YV_MO}, s{S_T}, v20")
    k(f"s_mul_i32 s{S_Z}, s{S_ROLE}, 20480")
    k(f"s_add_u32 s{S_Z}, s{S_Z}, {Z}")
    k(f"s_mul_i32 s{S_T}, s{S_ROLE}, 327680")
    k(f"s_add_u32 s{S_T}, s{S_T}, {WY + w * 81920}")
    def wreg(T, ks):
        n = T * 10 + ks
        return ('a', 8 * n) if n < 32 else ('v', YVW + 8 * (n - 32))
    for T in range(4):
        for ks in range(10):
            wh = wreg(T, ks)
            k(f"s_add_u32 s{S_T+1}, s{S_T}, {(T * 10 + ks) * 2048}")
            for hi in range(2):
                d = (ar if wh[0] == 'a' else vr)(wh[1] + 4 * hi, 4)
                k(f"buffer_load_dwordx4 {d}, v{YV_L16}, {srd}, s{S_T+1} offen offset:{hi*1024}")
    k(f"s_mov_b32 s{S_STEP}, 0")
    SC1 = " sc1" if cfg.get('ovl') else ""
    if cfg.get('ovl'):
        k(f"s_lshl_b32 s{S_T}, s{S_ROLE}, 7")
        k(f"v_mov_b32 v{YV_GF}, s{S_T}")
        k(f"s_mov_b32 s{S_GK}, 0")
    lab('step')
    YC = cfg.get('ycopy', 0)
    AW = cfg.get('ackwait', 1)
    slot_base(k, S_SB, S_STEP, S_T, S_SBF if YC else None)
    def uload():
        wait_progress(k, cfg, f"y{w}_gw", S_STEP, YV_GF, 1, YT)
        for t in range(1, 5):
            k(f"buffer_load_dwordx4 {vr(YZB + 4 * t, 4)}, v{YV_ZO}, {srd}, s{S_T+8} offen offset:{t*128}{SC1}")
    k(f"s_mul_i32 s{S_T+8}, s{S_STEP}, {Z_SEG}")
    k(f"s_add_u32 s{S_T+8}, s{S_T+8}, s{S_Z}")
    if not AW: uload()
    for r in range(YD, YD + 16): k(f"v_mov_b32 v{r}, 0")
    for u, ks in enumerate(own):
        k(f"s_add_u32 s{S_T+2+u}, s{S_SBF if YC else S_SB}, {physmap(M_LOG + 1024 * ks)}")
    stamp(k, cfg, 0)
    lab('poll')
    if cfg.get('y_nopoll'):
        for ks in own:
            for j in range(4): k(f"v_mov_b32 v{YAF + 4 * ks + j}, 0")
            k(f"ds_write_b128 v{YV_MIA}, {vr(YAF + 4 * ks, 4)} offset:{ks * 1024}")
    else:
        for u, ks in enumerate(own):
            k(f"buffer_load_dwordx4 {vr(YAF + 4 * ks, 4)}, v{YV_L16}, {srd}, s{S_T+2+u} offen sc1")
        k("s_waitcnt vmcnt(0)")
        for ks in own:
            k(f"ds_write_b128 v{YV_MIA}, {vr(YAF + 4 * ks, 4)} offset:{ks * 1024}")
        check_valid(k, [YAF + 4 * ks + j for ks in own for j in range(4)], YT)
        spin_check(k, bail)
        k(f"s_cbranch_vccnz {L('poll')}")
    lq.all()
    k("s_barrier")
    stamp(k, cfg, 1)
    if w == 0: rt(k, cfg, 0)
    for ks in rest:
        lq.ds(f"ds_read_b128 {vr(YAF + 4 * ks, 4)}, v{YV_MIA} offset:{ks * 1024}", ('af', ks))
    if AW: uload()
    for ks in own + rest:
        if ks in rest: lq.wait(('af', ks))
        for T in range(4):
            wh = wreg(T, ks)
            b = (ar if wh[0] == 'a' else vr)(wh[1], 8)
            k(f"v_smfmac_f32_16x16x64_bf16 {vr(YD + 4 * T, 4)}, {vr(YAF + 4 * ks, 4)}, {b}, v{YV_IDX}")
    k("s_nop 7")
    D = lambda T, r: YD + 4 * T + r
    for r in range(4):
        k(f"v_permlane32_swap_b32 v{D(0,r)}, v{D(2,r)}")
        k(f"v_permlane32_swap_b32 v{D(1,r)}, v{D(3,r)}")
    for r in range(4):
        k(f"v_add_f32 v{D(0,r)}, v{D(0,r)}, v{D(2,r)}")
        k(f"v_add_f32 v{D(1,r)}, v{D(1,r)}, v{D(3,r)}")
    k("s_nop 1")
    for r in range(4):
        k(f"v_permlane16_swap_b32 v{D(0,r)}, v{D(1,r)}")
    k("s_nop 1")
    k(f"v_cvt_pk_bf16_f32 v{YZB}, v{D(0,0)}, v{D(0,1)}")
    k(f"v_cvt_pk_bf16_f32 v{YZB+1}, v{D(0,2)}, v{D(0,3)}")
    k(f"v_cvt_pk_bf16_f32 v{YZB+2}, v{D(1,0)}, v{D(1,1)}")
    k(f"v_cvt_pk_bf16_f32 v{YZB+3}, v{D(1,2)}, v{D(1,3)}")
    k(f"buffer_store_dwordx4 {vr(YZB, 4)}, v{YV_ZO}, {srd}, s{S_T+8} offen{SC1}")
    stamp(k, cfg, 2)
    k(f"s_cmp_eq_u32 s{S_STEP}, {NSTEP-1}")
    k(f"s_cbranch_scc1 {L('last') if cfg.get('ovl') else k.ref('end')}")
    for t in range(5):
        k(f"s_add_u32 s{S_T+10+t}, s{S_SB}, {physmap(t * 4096)}")
    k(f"s_add_u32 s{S_T+9}, s{S_STEP}, 1")
    slot_base(k, S_SBN, S_T + 9, S_T, S_SBNF if YC else None)
    if cfg.get('mark') is not None:
        k(f"s_add_u32 s{S_MK}, s{S_SB}, {physmap(MARK_LOG)}")
        lab('mpoll')
        k(f"buffer_load_dword v{YT}, v{YV_MK}, {srd}, s{S_MK} offen sc1")
        k("s_waitcnt vmcnt(0)")
        k(f"v_cmp_eq_u32 vcc, -1, v{YT}")
        spin_check(k, bail)
        k(f"s_cbranch_vccnz {L('mpoll')}")
        if w == 0 and cfg.get('rt2'): rt(k, cfg, 0)
    if cfg.get('cpoll', 0):
        for r in range(4): k(f"v_mov_b32 v{YACC + r}, 0")
        poll_cont(k, f"y{w}_pp",
                  [lambda t=t: k(f"buffer_load_dwordx4 {vr(YPF + 4 * t, 4)}, v{YV_PO}, {srd}, s{S_T+10+t} offen sc1") for t in range(5)],
                  [[YPF + 4 * t + j for j in range(4)] for t in range(5)],
                  [lambda t=t: (k(f"v_mfma_f32_16x16x32_bf16 {vr(YACC, 4)}, {vr(YPF + 4 * t, 4)}, {vr(YZB + 4 * t, 4)}, {vr(YACC, 4)}"),
                                (rt(k, cfg, 3 + t) if (w == 0 and cfg.get('rt2')) else None)) for t in range(5)],
                  YT, 132, bail)
        k("s_nop 5")
    else:
        lab('ppoll')
        for t in range(5):
            k(f"buffer_load_dwordx4 {vr(YPF + 4 * t, 4)}, v{YV_PO}, {srd}, s{S_T+10+t} offen sc1")
        k("s_waitcnt vmcnt(0)")
        for t in range(5):
            c = "0" if t == 0 else vr(YACC, 4)
            k(f"v_mfma_f32_16x16x32_bf16 {vr(YACC, 4)}, {vr(YPF + 4 * t, 4)}, {vr(YZB + 4 * t, 4)}, {c}")
        check_valid(k, range(YPF, YPF + 20), YT)
        spin_check(k, bail)
        k(f"s_cbranch_vccnz {L('ppoll')}")
    stamp(k, cfg, 3)
    if w == 0: rt(k, cfg, 1)
    lq.ds(f"ds_write_b128 v{YV_RW}, {vr(YACC, 4)}", 'rw')
    lq.all()
    k("s_barrier")
    if w == 0:
        for u in range(4):
            lq.ds(f"ds_read2st64_b32 {vr(YT + 2 * u, 2)}, v{YV_RR} offset0:{2*u} offset1:{2*u+1}", ('rr', u))
        lq.wait(('rr', 1))
        k(f"v_add_f32 v{YT}, v{YT}, v{YT+1}")
        k(f"v_add_f32 v{YT+2}, v{YT+2}, v{YT+3}")
        lq.wait(('rr', 3))
        k(f"v_add_f32 v{YT+4}, v{YT+4}, v{YT+5}")
        k(f"v_add_f32 v{YT+6}, v{YT+6}, v{YT+7}")
        k(f"v_add_f32 v{YT}, v{YT}, v{YT+2}")
        k(f"v_add_f32 v{YT+4}, v{YT+4}, v{YT+6}")
        k(f"v_add_f32 v{YT}, v{YT}, v{YT+4}")
        k("s_nop 1")
        k(f"v_mov_b32_dpp v{YT+1}, v{YT} quad_perm:[1,0,3,2] row_mask:0xf bank_mask:0xf")
        k(f"v_cvt_pk_bf16_f32 v{YT+8}, v{YT}, v{YT+1}")
        k("s_nop 1")
        for j in range(1, 4):
            k(f"v_mov_b32_dpp v{YT+8+j}, v{YT+8} row_shl:{2*j} row_mask:0xf bank_mask:0xf")
        k(f"s_mov_b64 exec, s[{S_M8}:{S_M8+1}]")
        k(f"buffer_store_dwordx4 {vr(YT + 8, 4)}, v{YV_MO}, {srd}, s{S_SBN} offen sc1")
        if YC: k(f"buffer_store_dwordx4 {vr(YT + 8, 4)}, v{YV_MO}, {srd}, s{S_SBNF} offen sc1")
        k("s_mov_b64 exec, -1")
        if cfg.get('ovl'):
            k(f"s_lshl_b32 s{S_T}, s{S_ROLE}, 7")
            k(f"s_add_u32 s{S_T}, s{S_T}, {FL_YF}")
            flag_store(k, cfg, S_T, S_T + 9, YT, YT + 1)
        stamp(k, cfg, 4)
        rt(k, cfg, 2)
        if AW: k("s_waitcnt vmcnt(0)")
        rt_flush(k, cfg, 32)
        stamp_flush(k, cfg, 5, cfg.get('stamp_y', 0))
    if AW: k("s_barrier")
    k(f"s_add_u32 s{S_STEP}, s{S_STEP}, 1")
    k(f"s_branch {L('step')}")
    if cfg.get('ovl'):
        lab('last')
        k("s_waitcnt vmcnt(0)")
        k("s_barrier")
        if w == 0:
            k(f"s_lshl_b32 s{S_T}, s{S_ROLE}, 7")
            k(f"s_add_u32 s{S_T}, s{S_T}, {FL_YF}")
            k(f"s_mov_b32 s{S_T+9}, {NSTEP}")
            flag_store(k, cfg, S_T, S_T + 9, YT, YT + 1)
        k(f"s_branch {k.ref('end')}")

def role_assign(k, cfg):
    k(f"s_lshl_b32 s19, s{S_LAYER}, 11")
    k(f"s_add_u32 s19, s19, {CT_TICK}")
    k("s_getreg_b32 s20, hwreg(HW_REG_XCC_ID)")
    k("s_and_b32 s20, s20, 7")
    if cfg.get('fake_xcc') is not None:
        k(f"s_and_b32 s20, s2, {cfg['fake_xcc']}")
    k(f"s_cmp_lg_u32 s{S_WAVE}, 0")
    k(f"s_cbranch_scc1 {k.ref('tk_wait')}")
    k("s_lshl_b32 s22, s20, 8")
    k("s_add_u32 s22, s22, s19")
    k("s_mov_b64 exec, 1")
    k("v_mov_b32 v2, 0")
    k("v_mov_b32 v3, 1")
    k(f"buffer_atomic_add v3, v2, {srd}, s22 offen sc0 sc1")
    k("s_waitcnt vmcnt(0)")
    k("s_mov_b64 exec, -1")
    k("s_nop 0")
    k("v_readfirstlane_b32 s21, v3")
    k("s_cmp_lt_u32 s21, 32")
    k(f"s_cbranch_scc1 {k.ref('tk_pub')}")
    k("v_lshlrev_b32 v2, 8, v0")
    k("v_and_b32 v2, 0x7ff, v2")
    k("s_mov_b32 s22, s19")
    k.lab('tk_poll')
    k(f"buffer_load_dword v3, v2, {srd}, s22 offen sc1")
    k("s_waitcnt vmcnt(0)")
    k("s_mov_b32 s23, 0")
    for x in range(8):
        k(f"v_readlane_b32 s{24+x}, v3, {x}")
        k("s_nop 0")
        k(f"s_add_u32 s23, s23, s{24+x}")
    spin_check(k, k.ref('bail'))
    k("s_cmp_lt_u32 s23, 256")
    k(f"s_cbranch_scc1 {k.ref('tk_poll')}")
    k("s_sub_u32 s21, s21, 32")
    for x in range(7):
        k(f"s_max_u32 s23, s{24+x}, 32")
        k("s_sub_u32 s23, s23, 32")
        k(f"s_cmp_gt_u32 s20, {x}")
        k("s_cselect_b32 s23, s23, 0")
        k("s_add_u32 s21, s21, s23")
    for x in range(8):
        k(f"s_min_u32 s23, s{24+x}, 32")
        k("s_sub_u32 s22, 32, s23")
        k("s_cmp_lt_u32 s21, s22")
        k(f"s_cbranch_scc0 {k.ref(f'tk_n{x}')}")
        k(f"s_mov_b32 s20, {x}")
        k("s_add_u32 s21, s21, s23")
        k(f"s_branch {k.ref('tk_pub')}")
        k.lab(f'tk_n{x}')
        k("s_sub_u32 s21, s21, s22")
    k(f"s_branch {k.ref('bail')}")
    k.lab('tk_pub')
    k("s_lshl_b32 s22, s20, 8")
    k("s_or_b32 s22, s22, s21")
    k("v_mov_b32 v2, 0")
    k("v_mov_b32 v3, s22")
    k("ds_write_b32 v2, v3")
    k("s_waitcnt lgkmcnt(0)")
    k.lab('tk_wait')
    k("s_barrier")
    k("v_mov_b32 v2, 0")
    k("ds_read_b32 v3, v2")
    k("s_waitcnt lgkmcnt(0)")
    k("v_readfirstlane_b32 s22, v3")
    k("s_barrier")
    k("s_lshr_b32 s20, s22, 8")
    k("s_and_b32 s21, s22, 255")

def build_chain(name, layer, cfg=None):
    import work
    cfg = cfg or {}
    k = K(name if layer is not None else name + "1", vgpr=256, sgpr=100, agpr=256)
    stub = None
    if layer is None:
        stub = K(name + "2", vgpr=256, sgpr=100, agpr=256)
        stub(f"s_mov_b32 s{S_LAYER}, 1")
        stub(f"s_branch {k.ref('body')}")
        k(f"s_mov_b32 s{S_LAYER}, 0")
        k.lab('body')
    else:
        k(f"s_mov_b32 s{S_LAYER}, {layer}")
    k("s_cmp_ge_u32 s2, 256")
    k(f"s_cbranch_scc1 {k.ref('end0')}")
    if cfg.get('rt'): k("s_memrealtime s[90:91]")
    k.ptr(KA_WS, S_WS)
    k.ptr(KA_OUT, 6)
    k("v_lshrrev_b32 v1, 6, v0")
    k("v_and_b32 v0, 63, v0")
    k("s_nop 0")
    k(f"v_readfirstlane_b32 s{S_WAVE}, v1")
    k(f"s_mov_b32 s{S_SPIN}, {SPIN}")
    k("s_waitcnt lgkmcnt(0)")
    k.srd(SRD, S_WS, WS_BYTES)
    k(f"s_add_u32 s22, s{S_WS}, {A_X2}")
    k(f"s_addc_u32 s23, s{S_WS+1}, 0")
    k(f"s_cmp_eq_u32 s{S_LAYER}, 0")
    k(f"s_cselect_b32 s{S_OSRD}, s22, s6")
    k(f"s_cselect_b32 s{S_OSRD+1}, s23, s7")
    k(f"s_mov_b32 s{S_OSRD+2}, {2048 * 640 * 2}")
    k(f"s_mov_b32 s{S_OSRD+3}, 0x00020000")
    k(f"s_mul_i32 s{S_FL}, s{S_LAYER}, {FL_LAYER}")
    k(f"s_add_u32 s{S_FL}, s{S_FL}, {CT_FLAG}")
    role_assign(k, cfg)
    if cfg.get('rt'):
        k("s_lshl_b32 s92, s20, 8"); k("s_or_b32 s92, s92, s21")
    k(f"s_sub_u32 s22, 0, s{S_WS}")
    k("s_and_b32 s22, s22, 0x1fffff")
    k(f"s_lshl_b32 s23, s{S_LAYER}, 3")
    k(f"s_add_u32 s23, s23, {CT_PAR}")
    k(f"s_buffer_load_dwordx2 s[24:25], {srd}, s23")
    k("s_waitcnt lgkmcnt(0)")
    k("s_and_b32 s24, s24, 8192")
    k("s_and_b32 s25, s25, 8192")
    for f, p in ((S_FD0, 24), (S_FD1, 25)):
        k(f"s_lshl_b32 s{f}, s{p}, 1")
        k(f"s_sub_u32 s{f}, 8192, s{f}")
    k(f"s_mul_i32 s23, s{S_LAYER}, {2 * EX_BLOCK}")
    k("s_add_u32 s22, s22, s23")
    k(f"s_add_u32 s{S_EB0}, s22, s24")
    k(f"s_add_u32 s{S_EB1}, s22, s25")
    k(f"s_add_u32 s{S_EB1}, s{S_EB1}, {EX_BLOCK}")
    k(f"s_mov_b32 s{S_M8}, 0x01010101")
    k(f"s_mov_b32 s{S_M8+1}, 0x01010101")
    k(f"s_mov_b32 s{S_M2}, 0x00010001")
    k(f"s_mov_b32 s{S_M2+1}, 0")
    p_setup_lanes(k)
    ovl = cfg.get('ovl')
    NA2 = cfg.get('na') == 2
    other = (k.ref('spare') if NA2 else k.ref('w3')) if ovl else k.ref('end')
    if cfg.get('spread', 0):
        k("s_cmp_ge_u32 s20, 4")
        k(f"s_cbranch_scc1 {k.ref('proj') if ovl else k.ref('end')}")
        k("s_cmp_ge_u32 s21, 28")
        k(f"s_cbranch_scc1 {other}")
        k("s_cmp_ge_u32 s21, 8")
        k(f"s_cbranch_scc1 {k.ref('notp')}")
        k("s_lshl_b32 s22, s20, 3")
        k(f"s_add_u32 s{S_ROLE}, s22, s21")
        for w in range(4):
            k(f"s_cmp_eq_u32 s{S_WAVE}, {w}")
            k(f"s_cbranch_scc1 {k.ref(f'p{w}_start')}")
        k.lab('notp')
        k("s_mul_i32 s22, s20, 20")
        k("s_add_u32 s22, s22, s21")
        k(f"s_sub_u32 s{S_ROLE}, s22, 8")
    else:
        k("s_cmp_eq_u32 s20, 0")
        k(f"s_cbranch_scc0 {k.ref('notp')}")
        k(f"s_mov_b32 s{S_ROLE}, s21")
        for w in range(4):
            k(f"s_cmp_eq_u32 s{S_WAVE}, {w}")
            k(f"s_cbranch_scc1 {k.ref(f'p{w}_start')}")
        k.lab('notp')
        k("s_cmp_ge_u32 s20, 4")
        k(f"s_cbranch_scc1 {k.ref('proj') if ovl else k.ref('end')}")
        k("s_cmp_ge_u32 s21, 27")
        k(f"s_cbranch_scc1 {other}")
        k("s_sub_u32 s22, s20, 1")
        k("s_mul_i32 s22, s22, 27")
        k(f"s_add_u32 s{S_ROLE}, s22, s21")
        k(f"s_cmp_ge_u32 s{S_ROLE}, 80")
        k(f"s_cbranch_scc1 {other}")
    for w in range(4):
        k(f"s_cmp_eq_u32 s{S_WAVE}, {w}")
        k(f"s_cbranch_scc1 {k.ref(f'y{w}_start')}")
    k(f"s_branch {k.ref('end')}")
    for w in range(4): gen_p_wave(k, w, cfg)
    for w in range(4): gen_y_wave(k, w, cfg)
    if ovl:
        k.lab('proj')
        k("s_sub_u32 s22, s20, 4")
        k("s_lshl_b32 s22, s22, 5")
        k(f"s_add_u32 s{S_ROLE}, s22, s21")
        k(f"s_mov_b32 s{work.GS_SEG}, 0")
        k(f"s_mov_b32 s{work.GS_END}, 64")
        work.role_gemm(k, S_ROLE, dict(cfg, flag_s=S_FL))
        if cfg.get('rt'):
            k("s_memrealtime s[96:97]"); k("s_waitcnt lgkmcnt(0)"); k("s_mov_b32 s93, s96")
        if cfg.get('w3_join', 128) < 128:
            k(f"s_cmp_ge_u32 s{S_ROLE}, {cfg['w3_join']}")
            k(f"s_cbranch_scc1 {k.ref('end')}")
        if NA2:
            import aly
            k(f"s_branch {k.ref('w3')}")
            k.lab('spare')
            k("s_sub_u32 s22, s20, 1")
            k("s_mul_i32 s22, s22, 5")
            k("s_add_u32 s22, s22, s21")
            k("s_sub_u32 s22, s22, 27")
            k("s_cmp_ge_u32 s21, 27")
            k("s_cselect_b32 s22, s22, 15")
            k("s_cmp_lt_u32 s22, 5")
            k(f"s_cbranch_scc1 {k.ref('sp_ab')}")
            k("s_cmp_lt_u32 s22, 9")
            k(f"s_cbranch_scc1 {k.ref('sp_ln')}")
            k("s_cmp_eq_u32 s22, 9")
            k(f"s_cbranch_scc0 {k.ref('w3')}")
            aly.role_mem0(k, S_EB0, S_FD0 if cfg.get('ycopy') else None)
            k(f"s_branch {k.ref('w3')}")
            k.lab('sp_ab')
            k(f"s_mov_b32 s{S_ROLE}, s22")
            k(f"s_mov_b32 s{aly.AB_SEG}, 0")
            k(f"s_mov_b32 s{aly.AB_END}, 64")
            aly.role_aback(k, S_ROLE, S_LAYER, S_FL, True, cfg)
            k(f"s_branch {k.ref('w3')}")
            k.lab('sp_ln')
            k(f"s_sub_u32 s{S_ROLE}, s22, 5")
            aly.role_lnw(k, S_ROLE, 4, S_FL, S_SPIN, k.ref('bail'), True, cfg)
            k("s_waitcnt vmcnt(0)")
            k("s_barrier")
        k.lab('w3')
        k(f"s_mov_b32 s{S_SPIN}, {SPIN}")
        work.role_w3_loop(k, cfg, S_FL, S_SPIN, f"s[{S_OSRD}:{S_OSRD+3}]", S_LAYER)
        k(f"s_branch {k.ref('end')}")
    k.lab('bail')
    k("s_mov_b64 exec, 1")
    k.ptr(KA_DBG, 6)
    k("s_waitcnt lgkmcnt(0)")
    k.srd(24, 6, 256)
    k("v_mov_b32 v1, 0xdead")
    k(f"v_mov_b32 v2, s{S_STEP}")
    k("v_mov_b32 v3, 0")
    k("buffer_store_dword v1, v3, s[24:27], 0 offen")
    k("buffer_store_dword v2, v3, s[24:27], 0 offen offset:4")
    k.lab('end')
    if cfg.get('rt'):
        k("s_memrealtime s[94:95]")
        k("s_waitcnt lgkmcnt(0)")
        k("s_mov_b64 exec, 1")
        k("s_lshl_b32 s32, s2, 2")
        k(f"s_add_u32 s32, s32, s{S_WAVE}")
        k("s_lshl_b32 s32, s32, 4")
        k(f"s_mul_i32 s33, s{S_LAYER}, 0x200000")
        k("s_add_u32 s32, s32, s33")
        k(f"s_add_u32 s32, s32, {cfg['rt'] + 0x100000}")
        k("v_mov_b32 v253, 0")
        for n, sr in enumerate((90, 94, 92, 93)):
            k(f"v_mov_b32 v254, s{sr}")
            k(f"buffer_store_dword v254, v253, {srd}, s32 offen offset:{4*n}")
            k("s_nop 1")
        k("s_lshl_b32 s32, s2, 2")
        k(f"s_add_u32 s32, s32, s{S_WAVE}")
        k("s_lshl_b32 s32, s32, 5")
        k("s_add_u32 s32, s32, s33")
        k(f"s_add_u32 s32, s32, {cfg['rt'] + 0x140000}")
        for n in range(8):
            k(f"v_mov_b32 v254, s{60 + 2 * n}")
            k(f"buffer_store_dword v254, v253, {srd}, s32 offen offset:{4*n}")
            k("s_nop 1")
    k.lab('end0')
    if stub is not None: return k, stub
    return k

if __name__ == "__main__":
    STP = 240 * MB
    extra = eval(sys.argv[1]) if len(sys.argv) > 1 else {}
    ks = [build_chain("chain", 0, dict(extra)),
          build_chain("chainst", 0, dict(extra, stamp=True, stamp_p=STP, stamp_y=STP + 65536)),
          build_chain("chainrt", 0, dict(extra, rt=STP + MB, rt2=1))]
    launches = [(k_, 256, 256, PL_END) for k_ in ks]
    open(sys.argv[2] if len(sys.argv) > 2 else "chain.s", "w").write(listfile(launches, ks))
    print("lds", PL_END)
```

```python
import sys, math
sys.path.insert(0, "/code"); sys.path.insert(0, "tools")
from asmk import *
from lay import *

CSC = (192 ** -0.5) * math.log2(math.e)
S_WS = 4; SRD = 8; S_WAVE = 13
srd = f"s[{SRD}:{SRD+3}]"
def vr(b, n): return f"v[{b}:{b+n-1}]" if n > 1 else f"v{b}"
def ar(b, n): return f"a[{b}:{b+n-1}]"

def prologue(k, extra_ptrs=()):
    k.ptr(KA_WS, S_WS)
    for slot, s in extra_ptrs: k.ptr(slot, s)
    k("v_lshrrev_b32 v1, 6, v0")
    k("v_and_b32 v0, 63, v0")
    k("s_nop 0")
    k(f"v_readfirstlane_b32 s{S_WAVE}, v1")
    k("s_waitcnt lgkmcnt(0)")
    k.srd(SRD, S_WS, WS_BYTES)

def ex_delta(k, dst):
    k(f"s_sub_u32 s{dst}, 0, s{S_WS}")
    k(f"s_and_b32 s{dst}, s{dst}, 0x1fffff")

def p2e_lane(k, dst, p, t0, t1):
    k(f"v_and_b32 v{dst}, 0xc1, v{p}")
    k(f"v_and_b32 v{t0}, 8, v{p}")
    k(f"v_lshl_or_b32 v{dst}, v{t0}, 2, v{dst}")
    k(f"v_and_b32 v{t0}, 32, v{p}")
    k(f"v_lshrrev_b32 v{t0}, 1, v{t0}")
    k(f"v_or_b32 v{dst}, v{dst}, v{t0}")
    k(f"v_and_b32 v{t0}, 2, v{p}")
    k(f"v_lshl_or_b32 v{dst}, v{t0}, 2, v{dst}")
    k(f"v_and_b32 v{t0}, 16, v{p}")
    k(f"v_lshrrev_b32 v{t0}, 2, v{t0}")
    k(f"v_or_b32 v{dst}, v{dst}, v{t0}")
    k(f"v_and_b32 v{t0}, 4, v{p}")
    k(f"v_lshrrev_b32 v{t0}, 1, v{t0}")
    k(f"v_or_b32 v{dst}, v{dst}, v{t0}")

def wp_block_off(k, dst, x, isk, t0, t1):
    k(f"v_lshrrev_b32 v{t0}, 4, v{x}")
    k(f"v_mul_u32_u24 v{t1}, 11, v{t0}")
    k(f"v_lshrrev_b32 v{t1}, 5, v{t1}")
    k(f"v_mul_u32_u24 v{t1}, 3, v{t1}")
    k(f"v_add_u32 v{t0}, v{t0}, v{t1}")
    if isk: k(f"v_add_u32 v{t0}, 3, v{t0}")
    k(f"v_mul_u32_u24 v{t0}, 20480, v{t0}")
    k(f"v_and_b32 v{t1}, 15, v{x}")
    k(f"v_lshl_add_u32 v{dst}, v{t1}, 4, v{t0}")

CH_ROW = [0, 1, 8, 9, 2, 3, 10, 11]

def chunk_base_lane(k, dst, c, t0):
    k(f"v_lshrrev_b32 v{dst}, 2, v{c}")
    k(f"v_lshlrev_b32 v{dst}, 5, v{dst}")
    k(f"v_and_b32 v{t0}, 2, v{c}")
    k(f"v_lshl_add_u32 v{dst}, v{t0}, 3, v{dst}")
    k(f"v_and_b32 v{t0}, 1, v{c}")
    k(f"v_lshl_add_u32 v{dst}, v{t0}, 2, v{dst}")

N_WVO = 160
N_PWP = 240
N_CLR = 64
N_CTL = 5
PREP_WG = N_WVO + N_PWP + N_CLR + N_CTL

def role_wvo(k):
    L = lambda s: k.ref('wvo_' + s)
    k.ptr(KA_WV, 24); k.ptr(KA_WO, 26)
    k("s_and_b32 s21, s20, 1")
    k("s_lshr_b32 s22, s20, 1")
    k("s_mul_i32 s23, s22, 205")
    k("s_lshr_b32 s23, s23, 11")
    k("s_mul_i32 s28, s23, 10")
    k("s_sub_u32 s22, s22, s28")
    k("s_waitcnt lgkmcnt(0)")
    k.srd(32, 24, 640 * 6144 * 2)
    k.srd(36, 26, 6144 * 640 * 2)
    VI, VH = 1, 2
    k(f"v_and_b32 v{VI}, 31, v0")
    k(f"v_lshrrev_b32 v{VH}, 5, v0")
    BE, BO, TMP = 16, 64, 112
    k(f"v_mul_u32_u24 v3, {8 * 1280}, v{VH}")
    k(f"v_lshl_add_u32 v3, v{VI}, 2, v3")
    k(f"s_mul_i32 s28, s23, {192*1280}")
    k("s_lshl_b32 s29, s22, 7")
    k("s_add_u32 s28, s28, s29")
    for half in range(2):
        for kk in range(6):
            kap = half * 6 + kk
            for j in range(8):
                row = 16 * kap + j
                k(f"s_add_u32 s29, s28, {row * 1280}")
                k(f"buffer_load_dword v{TMP + 8 * kk + j}, v3, s[36:39], s29 offen")
        k("v_mov_b32 v4, 0x05040100")
        k("v_mov_b32 v5, 0x07060302")
        k("s_waitcnt vmcnt(0)")
        for kk in range(6):
            kap = half * 6 + kk
            for m in range(4):
                k(f"v_perm_b32 v{BE + 4 * kap + m}, v{TMP + 8 * kk + 2 * m + 1}, v{TMP + 8 * kk + 2 * m}, v4")
                k(f"v_perm_b32 v{BO + 4 * kap + m}, v{TMP + 8 * kk + 2 * m + 1}, v{TMP + 8 * kk + 2 * m}, v5")
    k(f"v_lshrrev_b32 v6, 3, v{VI}")
    chunk_base_lane(k, 7, 6, 8)
    k(f"v_and_b32 v8, 7, v{VI}")
    k("v_and_b32 v9, 1, v8")
    k("v_add_u32 v7, v7, v9")
    k("v_and_b32 v9, 2, v8")
    k("v_lshl_add_u32 v7, v9, 2, v7")
    k("v_lshrrev_b32 v9, 2, v8")
    k("v_lshl_add_u32 v7, v9, 1, v7")
    k("v_mul_u32_u24 v7, 12288, v7")
    k(f"v_lshl_add_u32 v7, v{VH}, 4, v7")
    k("s_mul_i32 s28, s23, 384")
    k(f"s_mul_i32 s29, s21, {10 * 32 * 12288}")
    k("s_add_u32 s28, s28, s29")
    k(f"v_lshrrev_b32 v10, 2, v{VI}")
    k("v_mul_u32_u24 v10, 20480, v10")
    k("v_lshlrev_b32 v10, 4, v10")
    k(f"v_and_b32 v11, 3, v{VI}")
    k("v_lshl_add_u32 v10, v11, 5, v10")
    k(f"v_lshl_add_u32 v10, v{VH}, 8, v10")
    k(f"s_mul_i32 s30, s22, {8 * 327680}")
    k("s_lshr_b32 s31, s23, 3")
    k("s_mul_i32 s31, s31, 81920")
    k("s_add_u32 s30, s30, s31")
    k("s_and_b32 s31, s23, 3")
    k("s_mul_i32 s31, s31, 20480")
    k("s_add_u32 s30, s30, s31")
    k("s_bfe_u32 s31, s23, 0x10002")
    k("s_lshl_b32 s31, s31, 7")
    k("s_add_u32 s30, s30, s31")
    k(f"s_mul_i32 s31, s21, 10240")
    k("s_add_u32 s30, s30, s31")
    k(f"s_add_u32 s30, s30, {WY}")
    AF0, AF1, ACC, OUT = 112, 160, 208, 240
    def aload(dst):
        for kap in range(12):
            k(f"buffer_load_dwordx4 {vr(dst + 4 * kap, 4)}, v7, s[32:35], s28 offen offset:{kap * 32}")
        k(f"s_add_u32 s28, s28, {32 * 12288}")
    def tile(src):
        for kap in range(12):
            for t, B in ((0, BE), (1, BO)):
                c = "0" if kap == 0 else vr(ACC + 16 * t, 16)
                k(f"v_mfma_f32_32x32x16_bf16 {vr(ACC + 16 * t, 16)}, {vr(src + 4 * kap, 4)}, {vr(B + 4 * kap, 4)}, {c}")
        k("s_nop 7"); k("s_nop 7")
        for t in range(2):
            a = ACC + 16 * t
            for j in range(2):
                o = OUT + 4 * j
                for q in range(2):
                    k(f"v_cvt_pk_bf16_f32 v{o + 2 * q}, v{a + 8 * j + 4 * q}, v{a + 8 * j + 4 * q + 1}")
                    k(f"v_cvt_pk_bf16_f32 v{o + 2 * q + 1}, v{a + 8 * j + 4 * q + 2}, v{a + 8 * j + 4 * q + 3}")
                k("s_nop 1")
                k(f"v_permlane32_swap_b32 v{o}, v{o + 2}")
                k(f"v_permlane32_swap_b32 v{o + 1}, v{o + 3}")
                k(f"buffer_store_dwordx4 {vr(o, 4)}, v10, {srd}, s30 offen offset:{j * 512 + t * 16}")
            k("s_nop 1")
        k("s_add_u32 s30, s30, 1024")
    aload(AF0)
    k("s_mov_b32 s31, 5")
    k.lab('wvo_loop')
    aload(AF1)
    k("s_waitcnt vmcnt(12)")
    tile(AF0)
    k("s_cmp_eq_u32 s31, 1")
    k(f"s_cbranch_scc1 {L('last')}")
    aload(AF0)
    k("s_waitcnt vmcnt(12)")
    tile(AF1)
    k("s_sub_u32 s31, s31, 1")
    k(f"s_branch {L('loop')}")
    k.lab('wvo_last')
    k("s_waitcnt vmcnt(0)")
    tile(AF1)
    k(f"s_branch {k.ref('end')}")

def role_pwp(k):
    L = lambda s: k.ref('pwp_' + s)
    k("s_mul_i32 s21, s20, 13108"); k("s_lshr_b32 s21, s21, 16")
    k("s_mul_i32 s22, s21, 5"); k("s_sub_u32 s22, s20, s22")
    k("s_mul_i32 s23, s21, 21846"); k("s_lshr_b32 s23, s23, 16")
    k("s_mul_i32 s28, s23, 3"); k("s_sub_u32 s21, s21, s28")
    k("s_lshr_b32 s29, s23, 5")
    k("s_and_b32 s23, s23, 31")
    k("s_cmp_eq_u32 s29, 0")
    k(f"s_cbranch_scc0 {L('k')}")
    k.ptr(KA_WQ, 24)
    k(f"s_branch {L('go')}")
    k.lab('pwp_k')
    k.ptr(KA_WK, 24)
    k.lab('pwp_go')
    k("v_and_b32 v1, 31, v0")
    k("v_lshrrev_b32 v2, 5, v0")
    k("s_lshl_b32 s28, s21, 6")
    k("v_lshlrev_b32 v3, 1, v1")
    k("v_add_u32 v3, s28, v3")
    p2e_lane(k, 4, 3, 5, 6)
    k("s_cmp_eq_u32 s29, 0")
    k("s_cselect_b64 vcc, -1, 0")
    k("s_nop 1")
    k("v_cndmask_b32 v4, v4, v3, vcc")
    wp_block_off(k, 7, 3, 0, 5, 6)
    k(f"s_mul_i32 s30, s29, {3*20480}")
    k("s_mul_i32 s31, s23, 491520")
    k("s_add_u32 s30, s30, s31")
    k(f"s_add_u32 s30, s30, {WP}")
    k("s_lshl_b32 s31, s22, 4")
    k("v_add_u32 v8, s31, v2")
    k("s_waitcnt lgkmcnt(0)")
    k.srd(32, 24, 640 * 6144 * 2)
    k("s_mul_i32 s28, s23, 384")
    RAW, OUT = 16, 80
    for it in range(8):
        k(f"v_add_u32 v9, {2 * it}, v8")
        chunk_base_lane(k, 10, 9, 11)
        k("v_mul_u32_u24 v10, 12288, v10")
        k("v_lshl_add_u32 v10, v4, 1, v10")
        for j in range(8):
            k(f"s_add_u32 s31, s28, {CH_ROW[j] * 12288}")
            k(f"buffer_load_dword v{RAW + 8 * it + j}, v10, s[32:35], s31 offen")
    k("v_lshl_add_u32 v7, v8, 8, v7")
    k("v_mov_b32 v4, 0x05040100")
    k("v_mov_b32 v5, 0x07060302")
    for it in range(8):
        k(f"s_waitcnt vmcnt({8 * (7 - it)})")
        o = OUT + 8 * (it & 1)
        for m in range(4):
            k(f"v_perm_b32 v{o + m}, v{RAW + 8 * it + 2 * m + 1}, v{RAW + 8 * it + 2 * m}, v4")
            k(f"v_perm_b32 v{o + 4 + m}, v{RAW + 8 * it + 2 * m + 1}, v{RAW + 8 * it + 2 * m}, v5")
        k(f"buffer_store_dwordx4 {vr(o, 4)}, v7, {srd}, s30 offen offset:{it * 512}")
        k(f"buffer_store_dwordx4 {vr(o + 4, 4)}, v7, {srd}, s30 offen offset:{it * 512 + 16}")
        if it >= 1: k("s_nop 0")
    k(f"s_branch {k.ref('end')}")

def role_clear(k):
    ex_delta(k, 21)
    per = 4 * EX_BLOCK // N_CLR
    k(f"s_mul_i32 s22, s20, {per}")
    k("s_add_u32 s21, s21, s22")
    k(f"s_lshl_b32 s22, s{S_WAVE}, 10")
    k("s_add_u32 s21, s21, s22")
    k("v_lshlrev_b32 v1, 4, v0")
    for r in range(4, 8): k(f"v_mov_b32 v{r}, -1")
    k(f"s_mov_b32 s22, {per // 4096}")
    k.lab('clr_loop')
    k(f"buffer_store_dwordx4 v[4:7], v1, {srd}, s21 offen")
    k("s_add_u32 s21, s21, 4096")
    k("s_sub_u32 s22, s22, 1")
    k("s_cmp_lg_u32 s22, 0")
    k(f"s_cbranch_scc1 {k.ref('clr_loop')}")
    k(f"s_branch {k.ref('end')}")

CAL_N = 15
import os
CAL_DUMP = int(os.environ.get('CAL_DUMP', '0'))
if CAL_DUMP: CAL_N = 30
def role_zero(k):
    k("v_lshlrev_b32 v1, 4, v0")
    for r in range(4, 8): k(f"v_mov_b32 v{r}, 0")
    k(f"s_lshl_b32 s21, s{S_WAVE}, 10")
    k(f"s_add_u32 s21, s21, {CT_TICK}")
    k(f"buffer_store_dwordx4 v[4:7], v1, {srd}, s21 offen")
    k(f"s_lshl_b32 s21, s{S_WAVE}, 15")
    k(f"s_add_u32 s21, s21, {CT_FLAG}")
    assert 4 * 32768 == 2 * FL_LAYER
    for i in range(32):
        k(f"buffer_store_dwordx4 v[4:7], v1, {srd}, s21 offen offset:{(i % 4) * 1024}")
        if i % 4 == 3: k("s_add_u32 s21, s21, 4096")
    k(f"s_branch {k.ref('end')}")

def role_cal(k):
    k(f"s_cmp_lg_u32 s{S_WAVE}, 0")
    k(f"s_cbranch_scc1 {k.ref('end')}")
    ex_delta(k, 22)
    k("s_getreg_b32 s23, hwreg(HW_REG_XCC_ID)")
    k("s_bfe_u32 s23, s23, 0x10002")
    k("s_mov_b64 exec, 1")
    k("v_mov_b32 v1, 0")
    cal = physmap(CAL_LOG)
    k(f"s_mul_i32 s24, s20, {EX_BLOCK}")
    k("s_add_u32 s22, s22, s24")
    k(f"s_add_u32 s22, s22, {31 * EX_STEP + cal}")
    k("s_mov_b32 s30, -1")
    k("s_mov_b32 s31, -1")
    k(f"s_mov_b32 s25, {CAL_N}")
    k("v_mov_b32 v2, 0")
    k.lab('cal')
    for p in range(2):
        k("s_and_b32 s24, s25, 15")
        k("s_lshl_b32 s24, s24, 7")
        k("s_add_u32 s24, s24, s22")
        if p: k(f"s_add_u32 s24, s24, {p * 8192}")
        k("s_memtime s[26:27]")
        k("s_waitcnt lgkmcnt(0)")
        k(f"buffer_atomic_add v2, v1, {srd}, s24 offen sc0 sc1")
        k("s_waitcnt vmcnt(0)")
        k("s_memtime s[28:29]")
        k("v_mov_b32 v2, 0")
        k("s_waitcnt lgkmcnt(0)")
        k("s_sub_u32 s26, s28, s26")
        k(f"s_min_u32 s{30 + p}, s{30 + p}, s26")
        if CAL_DUMP:
            k("s_lshl_b32 s27, s20, 8")
            k("s_lshl_b32 s28, s25, 3")
            k("s_add_u32 s27, s27, s28")
            k(f"s_add_u32 s27, s27, {CT_PAR + 0x1000 + 4 * p}")
            k("v_mov_b32 v3, s26")
            k(f"buffer_store_dword v3, v1, {srd}, s27 offen")
            k("s_waitcnt vmcnt(0)")
    k("s_sub_u32 s25, s25, 1")
    k("s_cmp_lg_u32 s25, 0")
    k(f"s_cbranch_scc1 {k.ref('cal')}")
    k("s_cmp_lt_u32 s31, s30")
    k("s_cselect_b32 s24, 1, 0")
    k("s_xor_b32 s24, s24, s23")
    k("s_lshl_b32 s24, s24, 13")
    k("v_mov_b32 v3, s24")
    k("s_lshl_b32 s25, s20, 2")
    k(f"s_add_u32 s25, s25, {CT_PAR}")
    k(f"buffer_store_dword v3, v1, {srd}, s25 offen")
    k("s_lshl_b32 s26, s30, 16")
    k("s_or_b32 s26, s26, s31")
    k("v_mov_b32 v3, s26")
    k(f"buffer_store_dword v3, v1, {srd}, s25 offen offset:64")
    k(f"s_branch {k.ref('end')}")

def build_prep(name="prep", newa=False):
    import aly
    k = K(name, vgpr=248, sgpr=64)
    total = PREP_WG + (aly.N_PWA + aly.N_PWO if newa else 0)
    k(f"s_cmp_ge_u32 s2, {total}")
    k(f"s_cbranch_scc1 {k.ref('end')}")
    prologue(k)
    k("s_mov_b32 s20, s2")
    k("s_cmp_lt_u32 s2, 4")
    k(f"s_cbranch_scc1 {k.ref('r_cal')}")
    k("s_cmp_eq_u32 s2, 4")
    k(f"s_cbranch_scc1 {k.ref('r_zero')}")
    k(f"s_sub_u32 s20, s2, {N_CTL}")
    if newa:
        k(f"s_cmp_lt_u32 s20, {aly.N_PWA}")
        k(f"s_cbranch_scc1 {k.ref('r_pwa')}")
        k(f"s_sub_u32 s20, s20, {aly.N_PWA}")
        k(f"s_cmp_lt_u32 s20, {aly.N_PWO}")
        k(f"s_cbranch_scc1 {k.ref('r_pwo')}")
        k(f"s_sub_u32 s20, s20, {aly.N_PWO}")
    k(f"s_cmp_lt_u32 s20, {N_WVO}")
    k(f"s_cbranch_scc1 {k.ref('r_wvo')}")
    k(f"s_sub_u32 s20, s20, {N_WVO}")
    k(f"s_cmp_lt_u32 s20, {N_PWP}")
    k(f"s_cbranch_scc1 {k.ref('r_pwp')}")
    k(f"s_sub_u32 s20, s20, {N_PWP}")
    role_clear(k)
    k.lab('r_cal'); role_cal(k)
    k.lab('r_zero'); role_zero(k)
    k.lab('r_wvo')
    k("s_lshl_b32 s20, s20, 2"); k(f"s_add_u32 s20, s20, s{S_WAVE}")
    role_wvo(k)
    k.lab('r_pwp')
    k("s_lshl_b32 s20, s20, 2"); k(f"s_add_u32 s20, s20, s{S_WAVE}")
    role_pwp(k)
    if newa:
        k.lab('r_pwa'); aly.role_pwa(k)
        k.lab('r_pwo')
        k("s_lshl_b32 s20, s20, 2"); k(f"s_add_u32 s20, s20, s{S_WAVE}")
        aly.role_pwo(k)
    k.lab('end')
    return k, total

def wave_sum(k, v, tmp, s0):
    k("s_nop 1")
    k(f"v_add_f32 v{tmp}, v{v}, v{v} quad_perm:[1,0,3,2] row_mask:0xf bank_mask:0xf")
    k("s_nop 1")
    k(f"v_add_f32 v{tmp}, v{tmp}, v{tmp} quad_perm:[2,3,0,1] row_mask:0xf bank_mask:0xf")
    k("s_nop 1")
    k(f"v_add_f32 v{tmp}, v{tmp}, v{tmp} row_half_mirror row_mask:0xf bank_mask:0xf")
    k("s_nop 1")
    k(f"v_add_f32 v{tmp}, v{tmp}, v{tmp} row_mirror row_mask:0xf bank_mask:0xf")
    k("s_nop 1")
    for i in range(4): k(f"v_readlane_b32 s{s0+i}, v{tmp}, {16*i}")
    k("s_nop 1")
    k(f"v_mov_b32 v{v}, s{s0}")
    for i in range(1, 4): k(f"v_add_f32 v{v}, s{s0+i}, v{v}")

def build_lnb(name, layer, src_off):
    k = K(name, vgpr=32, sgpr=48)
    k("s_cmp_gt_u32 s2, 512")
    k(f"s_cbranch_scc1 {k.ref('end')}")
    prologue(k, [(KA_MEM0, 6)])
    k("s_cmp_eq_u32 s2, 512")
    k(f"s_cbranch_scc1 {k.ref('mem0')}")
    k("s_lshl_b32 s20, s2, 2")
    k(f"s_add_u32 s20, s20, s{S_WAVE}")
    k("s_mul_i32 s21, s20, 1280")
    k(f"s_add_u32 s21, s21, {src_off}")
    k("v_lshlrev_b32 v3, 2, v0")
    for j in range(5): k(f"buffer_load_dword v{4+j}, v3, {srd}, s21 offen offset:{j*256}")
    k("v_lshrrev_b32 v20, 4, v0")
    k("v_lshlrev_b32 v20, 2, v20")
    k("v_bfe_u32 v21, v0, 3, 1")
    k("v_lshl_add_u32 v20, v21, 1, v20")
    k("v_bfe_u32 v21, v0, 1, 1")
    k("v_add_u32 v20, v20, v21")
    k("v_lshlrev_b32 v20, 9, v20")
    k("v_and_b32 v21, 1, v0")
    k("v_lshl_add_u32 v20, v21, 3, v20")
    k("v_bfe_u32 v21, v0, 2, 1")
    k("v_lshl_add_u32 v23, v21, 2, v20")
    k("s_lshr_b32 s22, s20, 5")
    k(f"s_mul_i32 s22, s22, {XN_SEG}")
    k("s_and_b32 s23, s20, 31")
    k("s_lshl_b32 s23, s23, 4")
    k("s_add_u32 s22, s22, s23")
    k(f"s_add_u32 s22, s22, {XN}")
    k("s_waitcnt vmcnt(0)")
    for j in range(5):
        k(f"v_lshlrev_b32 v{10+2*j}, 16, v{4+j}")
        k(f"v_and_b32 v{11+2*j}, 0xffff0000, v{4+j}")
    k("v_add_f32 v20, v10, v11")
    for j in range(2, 10): k(f"v_add_f32 v20, v20, v{10+j}")
    wave_sum(k, 20, 21, 24)
    k(f"v_mul_f32 v20, {hexf(1.0/640)}, v20")
    for j in range(10): k(f"v_sub_f32 v{10+j}, v{10+j}, v20")
    k("v_mul_f32 v21, v10, v10")
    for j in range(1, 10): k(f"v_fmac_f32 v21, v{10+j}, v{10+j}")
    wave_sum(k, 21, 22, 24)
    k("v_mov_b32 v22, 0x3727c5ac")
    k(f"v_fmac_f32 v22, {hexf(1.0/640)}, v21")
    k("v_rsq_f32 v22, v22")
    k("s_nop 0")
    for j in range(10): k(f"v_mul_f32 v{10+j}, v{10+j}, v22")
    for j in range(5): k(f"v_cvt_pk_bf16_f32 v{4+j}, v{10+2*j}, v{11+2*j}")
    for j in range(5):
        k(f"s_add_u32 s23, s22, {j * 16 * 512}")
        k(f"buffer_store_dword v{4+j}, v23, {srd}, s23 offen")
    k(f"s_branch {k.ref('end')}")
    k.lab('mem0')
    k.srd(16, 6, 8 * 640 * 2)
    ex_delta(k, 22)
    k(f"s_mov_b32 s23, {CT_PAR + 8 * layer}")
    k(f"s_buffer_load_dword s24, {srd}, s23")
    k("s_waitcnt lgkmcnt(0)")
    k("s_and_b32 s24, s24, 8192")
    k(f"s_add_u32 s22, s22, {2 * layer * EX_BLOCK}")
    k("s_xor_b32 s25, s24, 8192")
    k("s_add_u32 s26, s22, s25")
    k("s_add_u32 s22, s22, s24")
    k(f"s_lshl_b32 s25, s{S_WAVE}, 6")
    k("v_add_u32 v1, s25, v0")
    for it in range(3):
        k(f"v_add_u32 v2, {256 * it}, v1")
        k("v_and_b32 v3, 7, v2")
        k("v_mul_u32_u24 v3, 1280, v3")
        k("v_lshrrev_b32 v4, 3, v2")
        k("v_lshl_add_u32 v3, v4, 4, v3")
        k("v_lshlrev_b32 v5, 4, v2")
        k(f"v_add_u32 v5, {M_LOG}, v5")
        k("v_lshrrev_b32 v6, 13, v5")
        k("v_lshlrev_b32 v6, 14, v6")
        k("v_and_b32 v5, 8191, v5")
        k("v_add_u32 v5, v5, v6")
        k("v_cmp_gt_u32 vcc, 640, v2")
        k("s_and_saveexec_b64 s[30:31], vcc")
        sk = k.ref(f'm0s{it}')
        k(f"s_cbranch_execz {sk}")
        k("buffer_load_dwordx4 v[8:11], v3, s[16:19], 0 offen")
        k("s_waitcnt vmcnt(0)")
        k(f"buffer_store_dwordx4 v[8:11], v5, {srd}, s22 offen")
        k(f"buffer_store_dwordx4 v[8:11], v5, {srd}, s26 offen")
        k.lab(f'm0s{it}')
        k("s_mov_b64 exec, s[30:31]")
    k.lab('end')
    return k, 513

G_LDS = 3 * XN_SEG
GV_L16 = 1; GV_RD = 2; GV_ST = 3; GV_W = 4
G_RING = 8; G_NR = 8
G_ACC = 40
G_OUT = 104
G_WV = 192
GS_LNW = 56; GS_LNA = 57; GS_SPIN = 58
GS_SEG = 14; GS_END = 15; GS_BUF = 16; GS_ST0 = 17; GS_ST1 = 18; GS_DMA = 19; GS_INC = 20; GS_LB = 21; GS_NB = 22

def gw(kap, t):
    n = kap * 2 + t
    return ar(4 * n, 4) if n < 64 else vr(G_WV + 4 * (n - 64), 4)

def gemm_body(k, isu, tag, cfg):
    L = lambda s: k.ref(f"g{tag}_{s}")
    lab = lambda s: k.lab(f"g{tag}_{s}")
    ovl = cfg.get('ovl'); SC1 = " sc1" if ovl else ""
    LNW = cfg.get('na') == 2
    nfl = [0]
    def flag(val_s):
        if not ovl: return
        nfl[0] += 1
        sk = f"g{tag}_fl{nfl[0]}"
        k(f"s_cmp_lg_u32 s{S_WAVE}, 0")
        k(f"s_cbranch_scc1 {k.ref(sk)}")
        k("s_mov_b64 exec, 1")
        k(f"s_lshl_b32 s26, s{cfg['cg_s']}, 7")
        k("v_mov_b32 v7, s26")
        k(f"v_mov_b32 v{G_OUT + 16}, s{val_s}")
        k(f"buffer_store_dword v{G_OUT + 16}, v7, {srd}, s{cfg['flag_s']} offen sc1")
        k("s_mov_b64 exec, -1")
        k.lab(sk)
    def dma_items(seg_s):
        it = [[f"s_min_u32 s24, s{seg_s}, 63", f"s_mul_i32 s24, s24, {XN_SEG}", f"s_add_u32 s24, s24, s{GS_DMA}",
               f"s_mul_i32 s25, s{S_WAVE}, 10240", f"s_add_u32 s25, s25, s{GS_NB}"]]
        for grp in range(3):
            for i in range(4 if grp < 2 else 2):
                p = []
                if i == 0:
                    if grp: p += ["s_add_u32 s24, s24, 4096", "s_add_u32 s25, s25, 4096"]
                    p += ["s_mov_b32 m0, s25", "s_nop 0"]
                p.append(f"buffer_load_dwordx4 v{GV_L16}, {srd}, s24 offen offset:{i * 1024}{' sc1' if LNW else ''} lds")
                it.append(p)
        return it
    def dma(seg_s):
        for p in dma_items(seg_s):
            for x in p: k(x)
    def lnwait(seg_s):
        if not LNW: return
        nfl[0] += 1
        sk = f"g{tag}_lw{nfl[0]}"; lp = f"g{tag}_lp{nfl[0]}"
        k(f"s_cmp_lg_u32 s{S_WAVE}, 0")
        k(f"s_cbranch_scc1 {k.ref(sk)}")
        k(f"s_min_u32 s28, s{seg_s}, 63")
        k(f"s_cmp_gt_u32 s{GS_LNW}, s28")
        k(f"s_cbranch_scc1 {k.ref(sk)}")
        k.lab(lp)
        k(f"buffer_load_dwordx4 v[124:127], v{GV_L16}, {srd}, s{GS_LNA} offen sc1")
        k("s_waitcnt vmcnt(0)")
        k("v_min_u32 v124, v124, v125")
        k("v_min_u32 v126, v126, v127")
        k("v_min_u32 v124, v124, v126")
        k("v_cmp_eq_u32 vcc, 0, v124")
        k("s_nop 1")
        k(f"s_ff1_i32_b64 s{GS_LNW}, vcc")
        k(f"s_min_u32 s{GS_LNW}, s{GS_LNW}, 64")
        k(f"s_sub_u32 s{GS_SPIN}, s{GS_SPIN}, 1")
        k(f"s_cbranch_scc1 {k.ref('bail')}")
        k(f"s_cmp_gt_u32 s{GS_LNW}, s28")
        k(f"s_cbranch_scc0 {k.ref(lp)}")
        k.lab(sk)
    def nextbuf(dst, src):
        k(f"s_add_u32 s{dst}, s{src}, {XN_SEG}")
        k(f"s_cmp_eq_u32 s{dst}, {G_LDS}")
        k(f"s_cselect_b32 s{dst}, 0, s{dst}")
    k(f"s_mul_i32 s{GS_DMA}, s{S_WAVE}, 10240")
    k(f"s_add_u32 s{GS_DMA}, s{GS_DMA}, {XN}")
    k(f"s_mov_b32 s{GS_NB}, 0")
    if LNW:
        k(f"s_mov_b32 s{GS_LNW}, 0")
        k(f"s_mov_b32 s{GS_SPIN}, 400000")
        k(f"s_add_u32 s{GS_LNA}, s{cfg['flag_s']}, {FL_LN}")
        if cfg.get('rt'): k("s_memrealtime s[60:61]")
        lnwait(GS_SEG)
        k("s_barrier")
        if cfg.get('rt'): k("s_memrealtime s[62:63]")
        dma(GS_SEG)
        k(f"s_mov_b32 s{GS_NB}, {XN_SEG}")
        k(f"s_mov_b32 s{GS_BUF}, 0")
        k("s_waitcnt vmcnt(0)")
    else:
        dma(GS_SEG)
        k(f"s_mov_b32 s{GS_NB}, {XN_SEG}")
        k(f"s_add_u32 s23, s{GS_SEG}, 1")
        dma(23)
        k(f"s_mov_b32 s{GS_NB}, {2 * XN_SEG}")
        k(f"s_mov_b32 s{GS_BUF}, 0")
        k("s_waitcnt vmcnt(10)")
    k("s_barrier")
    if cfg.get('rt'): k("s_memrealtime s[66:67]")
    k(f"v_mov_b32 v{GV_RD}, v{GV_L16}")
    for r in range(G_NR - 2):
        k(f"ds_read_b128 {vr(G_RING + 4 * r, 4)}, v{GV_RD} offset:{r * 1024}")
    PRE = G_NR - 2
    def epilogue_items(par):
        it = []
        for t in range(2):
            a = G_ACC + 32 * par + 16 * t
            for j in range(2):
                o = G_OUT + 4 * ((2 * t + j) & 3)
                for q in range(2):
                    it.append(f"v_cvt_pk_bf16_f32 v{o + 2 * q}, v{a + 8 * j + 4 * q}, v{a + 8 * j + 4 * q + 1}")
                    it.append(f"v_cvt_pk_bf16_f32 v{o + 2 * q + 1}, v{a + 8 * j + 4 * q + 2}, v{a + 8 * j + 4 * q + 3}")
                it.append("s_nop 1")
                it.append(f"v_permlane32_swap_b32 v{o}, v{o + 2}")
                it.append(f"v_permlane32_swap_b32 v{o + 1}, v{o + 3}")
                if isu: it.append(f"buffer_store_dwordx4 {vr(o, 4)}, v{GV_ST}, {srd}, s{GS_ST0} offen offset:{t * 2560 + j * 256}{SC1}")
                else:   it.append(f"buffer_store_dwordx4 {vr(o, 4)}, v{GV_ST}, {srd}, s{GS_ST0 + t} offen offset:{j * 1024}{SC1}")
        it.append(f"s_add_u32 s{GS_ST0}, s{GS_ST0}, s{GS_INC}")
        it.append(f"s_add_u32 s{GS_ST1}, s{GS_ST1}, s{GS_INC}")
        return it
    def segment(par, first, start=None, late=True):
        side = {i: [] for i in range(80)}
        if not first:
            for n, it in enumerate(epilogue_items(par ^ 1)): side[4 + n].append(it)
        for kap in range(40):
            slot = kap % G_NR
            nk = kap + PRE
            if nk == 40:
                k(f"v_add_u32 v{GV_RD + 4}, s{GS_LB}, v{GV_L16}")
            rb = GV_RD if nk < 40 else GV_RD + 4
            k(f"ds_read_b128 {vr(G_RING + 4 * (nk % G_NR), 4)}, v{rb} offset:{(nk % 40) * 1024}")
            k(f"s_waitcnt lgkmcnt({PRE})")
            x = vr(G_RING + 4 * slot, 4)
            for t in range(2):
                d = vr(G_ACC + 32 * par + 16 * t, 16)
                c = "0" if kap == 0 else d
                if isu: k(f"v_mfma_f32_32x32x16_bf16 {d}, {x}, {gw(kap, t)}, {c}")
                else:   k(f"v_mfma_f32_32x32x16_bf16 {d}, {gw(kap, t)}, {x}, {c}")
                for it in side[2 * kap + t]: k(it)
            if start is not None and kap == start:
                k(f"s_add_u32 s23, s{GS_SEG}, 1")
                lnwait(23)
                k("s_barrier")
                items = dma_items(23)
                for x_ in items[0]: k(x_)
                for n, p in enumerate(items[1:]): side[2 * (kap + 1 + n)] += p
                nextbuf(GS_NB, GS_NB)
            if kap == 28:
                if late:
                    k(f"s_add_u32 s23, s{GS_SEG}, 2")
                    lnwait(23)
                if first or not ovl:
                    k("s_waitcnt vmcnt(0)" if first else "s_waitcnt vmcnt(4)")
                    k("s_barrier")
                else:
                    nfl[0] += 1
                    l1 = f"g{tag}_dr{nfl[0]}"; l2 = f"g{tag}_dq{nfl[0]}"
                    k(f"s_cmp_gt_u32 s{GS_SEG}, 2")
                    k(f"s_cbranch_scc1 {k.ref(l1)}")
                    k("s_waitcnt vmcnt(0)")
                    k(f"s_mov_b32 s27, s{GS_SEG}")
                    k(f"s_branch {k.ref(l2)}")
                    k.lab(l1)
                    k("s_waitcnt vmcnt(4)")
                    k(f"s_sub_u32 s27, s{GS_SEG}, 1")
                    k.lab(l2)
                    k("s_barrier")
                    flag(27)
                nextbuf(GS_LB, GS_BUF)
                if late:
                    k(f"s_add_u32 s23, s{GS_SEG}, 2")
                    items = dma_items(23)
                    for x_ in items[0]: k(x_)
                    for n, p in enumerate(items[1:]): side[2 * (kap + 1 + n)] += p
                    nextbuf(GS_NB, GS_NB)
        k(f"v_mov_b32 v{GV_RD}, v{GV_RD + 4}")
        k(f"s_mov_b32 s{GS_BUF}, s{GS_LB}")
        k(f"s_add_u32 s{GS_SEG}, s{GS_SEG}, 1")
    if LNW:
        segment(0, True, 6, False)
        k("s_nop 7"); k("s_nop 7")
        for it in epilogue_items(0): k(it)
        k("s_waitcnt vmcnt(0)")
        k("s_barrier")
        flag(GS_SEG)
        if cfg.get('rt'): k("s_memrealtime s[68:69]")
        segment(1, True, 2)
        if cfg.get('rt'): k("s_memrealtime s[70:71]")
        lab('loop')
        segment(0, False)
        k(f"s_cmp_ge_u32 s{GS_SEG}, s{GS_END}")
        k(f"s_cbranch_scc1 {L('fin0')}")
        segment(1, False)
        k(f"s_cmp_lt_u32 s{GS_SEG}, s{GS_END}")
        k(f"s_cbranch_scc1 {L('loop')}")
        k(f"s_branch {L('fin1')}")
    else:
        segment(0, True)
        k(f"s_cmp_ge_u32 s{GS_SEG}, s{GS_END}")
        k(f"s_cbranch_scc1 {L('fin0')}")
        lab('loop')
        segment(1, False)
        k(f"s_cmp_ge_u32 s{GS_SEG}, s{GS_END}")
        k(f"s_cbranch_scc1 {L('fin1')}")
        segment(0, False)
        k(f"s_cmp_lt_u32 s{GS_SEG}, s{GS_END}")
        k(f"s_cbranch_scc1 {L('loop')}")
    lab('fin0')
    k("s_nop 7"); k("s_nop 7")
    for it in epilogue_items(0): k(it)
    k(f"s_branch {L('done')}")
    lab('fin1')
    k("s_nop 7"); k("s_nop 7")
    for it in epilogue_items(1): k(it)
    lab('done')
    k("s_waitcnt vmcnt(0) lgkmcnt(0)")
    if ovl:
        k("s_barrier")
        flag(GS_SEG)

def role_gemm(k, cg_s, cfg=None):
    cfg = dict(cfg or {}, cg_s=cg_s)
    L = lambda s: k.ref('g_' + s)
    k(f"v_lshlrev_b32 v{GV_L16}, 4, v0")
    k("v_and_b32 v8, 31, v0")
    k("v_lshrrev_b32 v9, 5, v0")
    k(f"s_cmp_ge_u32 s{cg_s}, 80")
    k(f"s_cbranch_scc1 {L('qk')}")
    k("v_lshrrev_b32 v10, 3, v8")
    k("v_and_b32 v11, 7, v8")
    k("v_mul_u32_u24 v12, 20480, v10")
    k("v_lshl_add_u32 v12, v11, 4, v12")
    k(f"v_lshl_add_u32 v{GV_W}, v9, 8, v12")
    k(f"s_mul_i32 s24, s{cg_s}, 327680")
    k(f"s_mul_i32 s25, s{S_WAVE}, 81920")
    k("s_add_u32 s24, s24, s25")
    k(f"s_add_u32 s24, s24, {WY}")
    for kap in range(40):
        if kap % 7 == 0 and kap: k(f"s_add_u32 s24, s24, {7 * 512}")
        for t in range(2):
            k(f"buffer_load_dwordx4 {gw(kap, t)}, v{GV_W}, {srd}, s24 offen offset:{(kap % 7) * 512 + t * 128}")
    k(f"s_lshl_b32 s25, s{S_WAVE}, 3")
    k("v_add_u32 v10, s25, v10")
    k("v_mul_u32_u24 v10, 640, v10")
    k("v_lshl_add_u32 v10, v9, 7, v10")
    k("v_lshl_add_u32 v10, v11, 4, v10")
    k(f"v_add_u32 v{GV_ST}, 128, v10")
    k(f"s_mul_i32 s{GS_ST0}, s{cg_s}, 20480")
    k(f"s_mul_i32 s25, s{GS_SEG}, {Z_SEG}")
    k(f"s_add_u32 s{GS_ST0}, s{GS_ST0}, s25")
    k(f"s_add_u32 s{GS_ST0}, s{GS_ST0}, {Z}")
    k(f"s_mov_b32 s{GS_INC}, {Z_SEG}")
    gemm_body(k, True, 'u', cfg)
    k(f"s_branch {L('done')}")
    k.lab('g_qk')
    k(f"s_sub_u32 s26, s{cg_s}, 80")
    k("s_cmp_ge_u32 s26, 24")
    k("s_cselect_b32 s27, 1, 0")
    k("s_cselect_b32 s28, 24, 0")
    k("s_sub_u32 s26, s26, s28")
    k("s_lshl_b32 s26, s26, 3")
    k(f"s_lshl_b32 s28, s{S_WAVE}, 1")
    k("s_add_u32 s26, s26, s28")
    for t in range(2):
        k(f"s_add_u32 s28, s26, {t}")
        k("s_mul_i32 s29, s28, 171")
        k("s_lshr_b32 s29, s29, 10")
        k("s_mul_i32 s30, s29, 6")
        k("s_sub_u32 s30, s28, s30")
        k(f"s_mul_i32 s31, s29, {KX_SH}")
        k("s_lshl_b32 s32, s30, 11")
        k("s_add_u32 s31, s31, s32")
        k(f"s_mul_i32 s32, s{GS_SEG}, {32 * KX_SH}")
        k("s_add_u32 s31, s31, s32")
        k(f"s_mul_i32 s32, s27, {QX - KX}")
        k("s_add_u32 s31, s31, s32")
        k(f"s_add_u32 s{GS_ST0 + t}, s31, {KX}")
        k("s_lshl_b32 s30, s30, 5")
        k("v_add_u32 v10, s30, v8")
        p2e_lane(k, 11, 10, 12, 13)
        k("s_cmp_eq_u32 s27, 1")
        k("s_cselect_b64 vcc, -1, 0")
        k("s_nop 1")
        k("v_cndmask_b32 v10, v10, v11, vcc")
        wp_block_off(k, 11, 10, 0, 12, 13)
        k(f"v_lshl_add_u32 v{GV_W + t}, v9, 8, v11")
        k("s_xor_b32 s30, s27, 1")
        k(f"s_mul_i32 s30, s30, {3*20480}")
        k("s_mul_i32 s31, s29, 491520")
        k("s_add_u32 s30, s30, s31")
        k(f"s_add_u32 s{34 + t}, s30, {WP}")
    for kap in range(40):
        if kap % 8 == 0 and kap:
            k("s_add_u32 s34, s34, 4096"); k("s_add_u32 s35, s35, 4096")
        for t in range(2):
            k(f"buffer_load_dwordx4 {gw(kap, t)}, v{GV_W + t}, {srd}, s{34 + t} offen offset:{(kap % 8) * 512}")
    k(f"v_mov_b32 v{GV_ST}, v{GV_L16}")
    k(f"s_mov_b32 s{GS_INC}, {32 * KX_SH}")
    gemm_body(k, False, 'k', cfg)
    k.lab('g_done')

def build_gemmb(name="gemmb", nsplit=2):
    k = K(name, vgpr=256, sgpr=64, agpr=256)
    k(f"s_cmp_ge_u32 s2, {128 * nsplit}")
    k(f"s_cbranch_scc1 {k.ref('end')}")
    prologue(k)
    k("s_and_b32 s36, s2, 127")
    k("s_lshr_b32 s37, s2, 7")
    k(f"s_mul_i32 s{GS_SEG}, s37, {64 // nsplit}")
    k(f"s_add_u32 s{GS_END}, s{GS_SEG}, {64 // nsplit}")
    role_gemm(k, 36)
    k.lab('end')
    return k, 128 * nsplit, G_LDS

def role_w3a(k, seg_s, h_s, SC1=""):
    Q, KK, KMF, D1, D2, BI = 16, 64, 112, 160, 176, 192
    T = 208
    k("v_lshlrev_b32 v1, 4, v0")
    k("v_and_b32 v2, 31, v0")
    k("v_lshrrev_b32 v3, 5, v0")
    k(f"s_lshl_b32 s24, s{seg_s}, 5")
    k(f"s_add_u32 s24, s24, s{h_s}")
    k(f"s_mul_i32 s25, s24, {KX_SH}")
    k(f"s_add_u32 s26, s25, {QX}")
    k(f"s_add_u32 s27, s25, {KX}")
    k(f"s_mul_i32 s28, s24, {KM_SH}")
    k(f"s_add_u32 s28, s28, {KM}")
    k("v_and_b32 v4, 7, v0")
    k("v_lshlrev_b32 v4, 4, v4")
    k("v_lshl_add_u32 v4, v3, 7, v4")
    for kap in range(12):
        if kap % 4 == 0 and kap:
            k("s_add_u32 s26, s26, 4096"); k("s_add_u32 s27, s27, 4096")
        k(f"buffer_load_dwordx4 {vr(Q + 4 * kap, 4)}, v1, {srd}, s26 offen offset:{(kap % 4) * 1024}{SC1}")
        k(f"buffer_load_dwordx4 {vr(KK + 4 * kap, 4)}, v1, {srd}, s27 offen offset:{(kap % 4) * 1024}{SC1}")
        k(f"buffer_load_dwordx4 {vr(KMF + 4 * kap, 4)}, v4, {srd}, s28 offen offset:{kap * 256}{SC1}")
    k("v_lshlrev_b32 v5, 2, v3")
    k("v_sub_u32 v5, v2, v5")
    k(f"v_mov_b32 v6, {hexf(-1e30)}")
    for r in range(16):
        k(f"v_cmp_gt_i32 vcc, {(r & 3) + 8 * (r >> 2)}, v5")
        k("s_nop 1")
        k(f"v_cndmask_b32 v{BI + r}, 0, v6, vcc")
    for kap in range(12):
        k(f"s_waitcnt vmcnt({3 * (11 - kap)})")
        k(f"v_mfma_f32_32x32x16_bf16 {vr(D1, 16)}, {vr(KK + 4 * kap, 4)}, {vr(Q + 4 * kap, 4)}, {'0' if kap == 0 else vr(D1, 16)}")
        k(f"v_mfma_f32_32x32x16_bf16 {vr(D2, 16)}, {vr(KMF + 4 * kap, 4)}, {vr(Q + 4 * kap, 4)}, {'0' if kap == 0 else vr(D2, 16)}")
    k("s_nop 7"); k("s_nop 7")
    c = hexf(CSC)
    k(f"v_mov_b32 v7, {c}")
    for r in range(16): k(f"v_fma_f32 v{D1 + r}, v{D1 + r}, v7, v{BI + r}")
    for r in range(4): k(f"v_mul_f32 v{D2 + r}, v{D2 + r}, v7")
    vals = [D1 + r for r in range(16)] + [D2 + r for r in range(4)]
    m, u = T, T + 1
    k(f"v_max3_f32 v{m}, v{vals[0]}, v{vals[1]}, v{vals[2]}")
    rest = vals[3:]
    while len(rest) >= 2:
        k(f"v_max3_f32 v{m}, v{m}, v{rest[0]}, v{rest[1]}"); rest = rest[2:]
    if rest: k(f"v_max_f32 v{m}, v{m}, v{rest[0]}")
    k(f"v_mov_b32 v{u}, v{m}")
    k("s_nop 1")
    k(f"v_permlane32_swap_b32 v{m}, v{u}")
    k(f"v_max_f32 v{m}, v{m}, v{u}")
    for r in vals: k(f"v_sub_f32 v{r}, v{r}, v{m}")
    for r in vals: k(f"v_exp_f32 v{r}, v{r}")
    k("s_nop 0")
    s_ = T + 2
    k(f"v_add_f32 v{s_}, v{vals[0]}, v{vals[1]}")
    for r in vals[2:]: k(f"v_add_f32 v{s_}, v{s_}, v{r}")
    k(f"v_mov_b32 v{u}, v{s_}")
    k("s_nop 1")
    k(f"v_permlane32_swap_b32 v{s_}, v{u}")
    k(f"v_add_f32 v{s_}, v{s_}, v{u}")
    k(f"v_rcp_f32 v{s_}, v{s_}")
    k("s_nop 0")
    for r in vals: k(f"v_mul_f32 v{r}, v{r}, v{s_}")
    k(f"s_mul_i32 s25, s{seg_s}, {PX_SEG}")
    k(f"s_mul_i32 s26, s{h_s}, 2560")
    k("s_add_u32 s25, s25, s26")
    k(f"s_add_u32 s25, s25, {PXB}")
    O = Q
    for j in range(2):
        o = O + 4 * j
        for q in range(2):
            k(f"v_cvt_pk_bf16_f32 v{o + 2 * q}, v{D1 + 8 * j + 4 * q}, v{D1 + 8 * j + 4 * q + 1}")
            k(f"v_cvt_pk_bf16_f32 v{o + 2 * q + 1}, v{D1 + 8 * j + 4 * q + 2}, v{D1 + 8 * j + 4 * q + 3}")
        k("s_nop 1")
        k(f"v_permlane32_swap_b32 v{o}, v{o + 2}")
        k(f"v_permlane32_swap_b32 v{o + 1}, v{o + 3}")
        k(f"buffer_store_dwordx4 {vr(o, 4)}, v1, {srd}, s25 offen offset:{512 + j * 1024}{SC1}")
    k(f"v_cvt_pk_bf16_f32 v{O + 8}, v{D2}, v{D2 + 1}")
    k(f"v_cvt_pk_bf16_f32 v{O + 9}, v{D2 + 2}, v{D2 + 3}")
    k("v_lshlrev_b32 v4, 4, v2")
    k("v_lshl_add_u32 v4, v3, 3, v4")
    k(f"buffer_store_dwordx2 {vr(O + 8, 2)}, v4, {srd}, s25 offen{SC1}")

def build_w3a(name="w3a"):
    k = K(name, vgpr=216, sgpr=48)
    k("s_cmp_ge_u32 s2, 512")
    k(f"s_cbranch_scc1 {k.ref('end')}")
    prologue(k)
    k("s_lshl_b32 s20, s2, 2")
    k(f"s_add_u32 s20, s20, s{S_WAVE}")
    k("s_lshr_b32 s21, s20, 5")
    k("s_and_b32 s22, s20, 31")
    role_w3a(k, 21, 22)
    k.lab('end')
    return k, 512

def role_w3b(k, seg_s, cg_s, res_off, out_srd, out_off, NR=16, SC1=""):
    RING = 32; ACC = 16
    k("v_lshlrev_b32 v1, 4, v0")
    k("v_and_b32 v2, 31, v0")
    k("v_lshrrev_b32 v3, 5, v0")
    k("v_lshrrev_b32 v4, 3, v2")
    k("v_mul_u32_u24 v4, 20480, v4")
    k("v_and_b32 v5, 7, v2")
    k("v_lshl_add_u32 v4, v5, 4, v4")
    k("v_lshl_add_u32 v4, v3, 7, v4")
    k(f"s_mul_i32 s24, s{seg_s}, {Z_SEG}")
    k(f"s_mul_i32 s25, s{cg_s}, {4 * 20480}")
    k("s_add_u32 s24, s24, s25")
    k(f"s_add_u32 s24, s24, {Z}")
    k(f"s_mul_i32 s25, s{seg_s}, {PX_SEG}")
    k(f"s_add_u32 s25, s25, {PXB}")
    k("v_mul_u32_u24 v6, 1280, v2")
    k("v_lshl_add_u32 v6, v3, 4, v6")
    k(f"s_mul_i32 s26, s{seg_s}, {32 * 1280}")
    k(f"s_lshl_b32 s27, s{cg_s}, 6")
    k("s_add_u32 s26, s26, s27")
    k(f"s_add_u32 s27, s26, {res_off}")
    for j in range(2):
        k(f"buffer_load_dwordx4 {vr(8 + 4 * j, 4)}, v6, {srd}, s27 offen offset:{32 * j}")
    def load(kap):
        sl = RING + 8 * (kap % NR)
        if kap % 16 == 0 and kap: k("s_add_u32 s24, s24, 4096")
        if kap % 4 == 0 and kap: k("s_add_u32 s25, s25, 4096")
        k(f"buffer_load_dwordx4 {vr(sl, 4)}, v4, {srd}, s24 offen offset:{(kap % 16) * 256}{SC1}")
        k(f"buffer_load_dwordx4 {vr(sl + 4, 4)}, v1, {srd}, s25 offen offset:{(kap % 4) * 1024}{SC1}")
    for kap in range(NR): load(kap)
    issued = NR
    for kap in range(80):
        k(f"s_waitcnt vmcnt({2 * (issued - 1 - kap)})")
        sl = RING + 8 * (kap % NR)
        k(f"v_mfma_f32_32x32x16_bf16 {vr(ACC, 16)}, {vr(sl, 4)}, {vr(sl + 4, 4)}, {'0' if kap == 0 else vr(ACC, 16)}")
        if kap >= 1 and issued < 80:
            load(issued); issued += 1
    k("s_nop 7"); k("s_nop 7")
    O = RING
    for j in range(2):
        o = O + 4 * j
        for q in range(2):
            k(f"v_cvt_pk_bf16_f32 v{o + 2 * q}, v{ACC + 8 * j + 4 * q}, v{ACC + 8 * j + 4 * q + 1}")
            k(f"v_cvt_pk_bf16_f32 v{o + 2 * q + 1}, v{ACC + 8 * j + 4 * q + 2}, v{ACC + 8 * j + 4 * q + 3}")
        k("s_nop 1")
        k(f"v_permlane32_swap_b32 v{o}, v{o + 2}")
        k(f"v_permlane32_swap_b32 v{o + 1}, v{o + 3}")
        k("s_nop 1")
        for r in range(4):
            a, b, t0, t1 = O + 8, O + 9, O + 10, O + 11
            k(f"v_lshlrev_b32 v{a}, 16, v{o + r}")
            k(f"v_and_b32 v{b}, 0xffff0000, v{o + r}")
            k(f"v_lshlrev_b32 v{t0}, 16, v{8 + 4 * j + r}")
            k(f"v_and_b32 v{t1}, 0xffff0000, v{8 + 4 * j + r}")
            k(f"v_add_f32 v{a}, v{a}, v{t0}")
            k(f"v_add_f32 v{b}, v{b}, v{t1}")
            k(f"v_cvt_pk_bf16_f32 v{o + r}, v{a}, v{b}")
        if out_off is not None:
            k(f"s_add_u32 s27, s26, {out_off}")
            k(f"buffer_store_dwordx4 {vr(o, 4)}, v6, {srd}, s27 offen offset:{32 * j}")
        else:
            k(f"buffer_store_dwordx4 {vr(o, 4)}, v6, {out_srd}, s26 offen offset:{32 * j}")

def build_w3b(name, res_off, out_off):
    NR = 12
    k = K(name, vgpr=32 + 8 * NR, sgpr=48)
    k("s_cmp_ge_u32 s2, 320")
    k(f"s_cbranch_scc1 {k.ref('end')}")
    prologue(k, [(KA_OUT, 6)])
    k.srd(16, 6, 2048 * 640 * 2)
    k("s_lshl_b32 s20, s2, 2")
    k(f"s_add_u32 s20, s20, s{S_WAVE}")
    k("s_mul_i32 s21, s20, 3277"); k("s_lshr_b32 s21, s21, 16")
    k("s_mul_i32 s22, s21, 20"); k("s_sub_u32 s22, s20, s22")
    role_w3b(k, 21, 22, res_off, "s[16:19]", out_off, NR)
    k.lab('end')
    return k, 320

J_PER = 18
NJOB = 64 * J_PER
JL_RED = 0; JL_JOB = 32768

def role_w3b2(k, seg_s, cg_s, res_off, out_srd, RSC=""):
    ACC = 16; T = 48
    AP, AZ0, AZ1 = 160, 0, 80
    k("v_lshlrev_b32 v1, 4, v0")
    k("v_and_b32 v2, 31, v0")
    k("v_lshrrev_b32 v3, 5, v0")
    k("v_lshrrev_b32 v4, 3, v2")
    k("v_mul_u32_u24 v4, 20480, v4")
    k("v_and_b32 v5, 7, v2")
    k("v_lshl_add_u32 v4, v5, 4, v4")
    k("v_lshl_add_u32 v4, v3, 7, v4")
    k(f"s_mul_i32 s24, s{seg_s}, {Z_SEG}")
    k(f"s_mul_i32 s25, s{cg_s}, {8 * 20480}")
    k("s_add_u32 s24, s24, s25")
    k(f"s_mul_i32 s25, s{S_WAVE}, {20 * 256}")
    k("s_add_u32 s24, s24, s25")
    k(f"s_add_u32 s24, s24, {Z}")
    k(f"s_add_u32 s28, s24, {4 * 20480}")
    k(f"s_mul_i32 s25, s{seg_s}, {PX_SEG}")
    k(f"s_mul_i32 s26, s{S_WAVE}, {20 * 1024}")
    k("s_add_u32 s25, s25, s26")
    k(f"s_add_u32 s25, s25, {PXB}")
    k("v_mul_u32_u24 v6, 1280, v2")
    k("v_lshl_add_u32 v6, v3, 4, v6")
    k(f"s_mul_i32 s26, s{seg_s}, {32 * 1280}")
    k(f"s_lshl_b32 s27, s{cg_s}, 7")
    k("s_add_u32 s26, s26, s27")
    k(f"s_lshl_b32 s27, s{S_WAVE}, 5")
    k("s_add_u32 s26, s26, s27")
    k(f"s_add_u32 s27, s26, {res_off}")
    k(f"buffer_load_dwordx4 v[8:11], v6, {srd}, s27 offen{RSC}")
    for i in range(20):
        if i % 4 == 0 and i: k("s_add_u32 s25, s25, 4096")
        if i == 16:
            k("s_add_u32 s24, s24, 4096"); k("s_add_u32 s28, s28, 4096")
        k(f"buffer_load_dwordx4 {ar(AP + 4 * i, 4)}, v1, {srd}, s25 offen offset:{(i % 4) * 1024} sc1")
        k(f"buffer_load_dwordx4 {ar(AZ0 + 4 * i, 4)}, v4, {srd}, s24 offen offset:{(i % 16) * 256} sc1")
        k(f"buffer_load_dwordx4 {ar(AZ1 + 4 * i, 4)}, v4, {srd}, s28 offen offset:{(i % 16) * 256} sc1")
    for i in range(20):
        k(f"s_waitcnt vmcnt({3 * (19 - i)})")
        for t, az in ((0, AZ0), (1, AZ1)):
            d = vr(ACC + 16 * t, 16)
            k(f"v_mfma_f32_32x32x16_bf16 {d}, {ar(az + 4 * i, 4)}, {ar(AP + 4 * i, 4)}, {'0' if i == 0 else d}")
    k(f"s_lshl_b32 s27, s{S_WAVE}, 11")
    k(f"v_add_u32 v7, s27, v1")
    k("s_nop 7"); k("s_nop 7")
    for t in range(2):
        for j in range(2):
            for hh in range(2):
                k(f"ds_write_b128 v7, {vr(ACC + 16 * t + 8 * j + 4 * hh, 4)} offset:{JL_RED + (t * 2 + j) * 8192 + hh * 1024}")
    k("s_waitcnt lgkmcnt(0)")
    k("s_barrier")
    k(f"s_lshl_b32 s27, s{S_WAVE}, 13")
    k(f"v_add_u32 v7, s27, v1")
    for ww in range(4):
        for hh in range(2):
            k(f"ds_read_b128 {vr(T + 8 * ww + 4 * hh, 4)}, v7 offset:{JL_RED + ww * 2048 + hh * 1024}")
    k("s_waitcnt lgkmcnt(4)")
    for r in range(8): k(f"v_add_f32 v{T + r}, v{T + r}, v{T + 8 + r}")
    k("s_waitcnt lgkmcnt(0)")
    for r in range(8): k(f"v_add_f32 v{T + 16 + r}, v{T + 16 + r}, v{T + 24 + r}")
    for r in range(8): k(f"v_add_f32 v{T + r}, v{T + r}, v{T + 16 + r}")
    o = ACC
    for q in range(2):
        k(f"v_cvt_pk_bf16_f32 v{o + 2 * q}, v{T + 4 * q}, v{T + 4 * q + 1}")
        k(f"v_cvt_pk_bf16_f32 v{o + 2 * q + 1}, v{T + 4 * q + 2}, v{T + 4 * q + 3}")
    k("s_nop 1")
    k(f"v_permlane32_swap_b32 v{o}, v{o + 2}")
    k(f"v_permlane32_swap_b32 v{o + 1}, v{o + 3}")
    k("s_nop 1")
    for r in range(4):
        a, b, t0, t1 = T, T + 1, T + 2, T + 3
        k(f"v_lshlrev_b32 v{a}, 16, v{o + r}")
        k(f"v_and_b32 v{b}, 0xffff0000, v{o + r}")
        k(f"v_lshlrev_b32 v{t0}, 16, v{8 + r}")
        k(f"v_and_b32 v{t1}, 0xffff0000, v{8 + r}")
        k(f"v_add_f32 v{a}, v{a}, v{t0}")
        k(f"v_add_f32 v{b}, v{b}, v{t1}")
        k(f"v_cvt_pk_bf16_f32 v{o + r}, v{a}, v{b}")
    k(f"buffer_store_dwordx4 {vr(o, 4)}, v6, {out_srd}, s26 offen")

def role_w3_loop(k, cfg, fl_s, spin_s, out_srd, layer_s):
    L = lambda s: k.ref('j_' + s)
    lab = lambda s: k.lab('j_' + s)
    bail = k.ref('bail')
    SEG, R, NEED = 40, 41, 42
    lab('next')
    k(f"s_cmp_lg_u32 s{S_WAVE}, 0")
    k(f"s_cbranch_scc1 {L('rel')}")
    k("s_mov_b64 exec, 1")
    k(f"v_mov_b32 v2, {FL_JOB}")
    k("v_mov_b32 v3, 1")
    k(f"buffer_atomic_add v3, v2, {srd}, s{fl_s} offen sc0 sc1")
    k("s_waitcnt vmcnt(0)")
    k("s_mov_b64 exec, -1")
    k("s_nop 0")
    k("v_readfirstlane_b32 s38, v3")
    k(f"s_cmp_ge_u32 s38, {NJOB}")
    k(f"s_cbranch_scc1 {L('pub')}")
    k("s_mul_i32 s39, s38, 58255")
    k(f"s_lshr_b32 s{SEG}, s39, 20")
    k(f"s_mul_i32 s39, s{SEG}, {J_PER}")
    k(f"s_sub_u32 s{R}, s38, s39")
    k(f"s_add_u32 s{NEED}, s{SEG}, 1")
    k(f"v_mov_b32 v4, s{NEED}")
    k(f"s_cmp_ge_u32 s{R}, 8")
    k(f"s_cbranch_scc1 {L('dep_b')}")
    k(f"s_lshl_b32 s24, s{R}, 9")
    k(f"s_add_u32 s24, s24, {FL_PF}")
    k("v_lshlrev_b32 v2, 7, v0")
    k("v_add_u32 v2, s24, v2")
    k(f"s_mul_i32 s25, s{R}, 3")
    k("s_add_u32 s25, s25, 104")
    k("s_lshl_b32 s25, s25, 7")
    k("v_writelane_b32 v2, s25, 4")
    k("s_add_u32 s25, s25, 128")
    k("v_writelane_b32 v2, s25, 5")
    k("s_add_u32 s25, s25, 128")
    k("v_writelane_b32 v2, s25, 6")
    k("s_mov_b64 exec, 0x7f")
    k(f"s_branch {L('poll')}")
    lab('dep_b')
    k(f"s_sub_u32 s24, s{R}, 8")
    k("s_lshl_b32 s24, s24, 10")
    k(f"s_add_u32 s24, s24, {FL_YF}")
    k("v_lshlrev_b32 v2, 7, v0")
    k("v_add_u32 v2, s24, v2")
    k(f"s_lshl_b32 s25, s{SEG}, 4")
    k(f"s_add_u32 s25, s25, {FL_WA}")
    k("v_writelane_b32 v2, s25, 8")
    k("s_mov_b32 s26, 8")
    k("v_writelane_b32 v4, s26, 8")
    k("s_mov_b64 exec, 0x1ff")
    lab('poll')
    k(f"buffer_load_dword v3, v2, {srd}, s{fl_s} offen sc1")
    k("s_waitcnt vmcnt(0)")
    k("v_cmp_gt_u32 vcc, v4, v3")
    k(f"s_sub_u32 s{spin_s}, s{spin_s}, 1")
    k(f"s_cbranch_scc1 {L('giveup')}")
    k(f"s_cbranch_vccnz {L('poll')}")
    k("s_mov_b64 exec, -1")
    lab('pub')
    k("v_mov_b32 v2, 0")
    k("v_mov_b32 v3, s38")
    k(f"ds_write_b32 v2, v3 offset:{JL_JOB}")
    k("s_waitcnt lgkmcnt(0)")
    lab('rel')
    k("s_barrier")
    k("v_mov_b32 v2, 0")
    k(f"ds_read_b32 v3, v2 offset:{JL_JOB}")
    k("s_waitcnt lgkmcnt(0)")
    k("v_readfirstlane_b32 s38, v3")
    k(f"s_cmp_ge_u32 s38, {NJOB}")
    k(f"s_cbranch_scc1 {L('done')}")
    k("s_mul_i32 s39, s38, 58255")
    k(f"s_lshr_b32 s{SEG}, s39, 20")
    k(f"s_mul_i32 s39, s{SEG}, {J_PER}")
    k(f"s_sub_u32 s{R}, s38, s39")
    k(f"s_cmp_ge_u32 s{R}, 8")
    k(f"s_cbranch_scc1 {L('b')}")
    k(f"s_lshl_b32 s{R}, s{R}, 2")
    k(f"s_add_u32 s{R}, s{R}, s{S_WAVE}")
    role_w3a(k, SEG, R, " sc1")
    k("s_waitcnt vmcnt(0)")
    k("s_barrier")
    k(f"s_cmp_lg_u32 s{S_WAVE}, 0")
    k(f"s_cbranch_scc1 {L('next')}")
    k("s_mov_b64 exec, 1")
    k(f"s_lshl_b32 s24, s{SEG}, 4")
    k(f"s_add_u32 s24, s24, {FL_WA}")
    k("v_mov_b32 v2, s24")
    k("v_mov_b32 v3, 1")
    k(f"buffer_atomic_add v3, v2, {srd}, s{fl_s} offen sc1")
    k("s_mov_b64 exec, -1")
    k(f"s_branch {L('next')}")
    lab('b')
    k(f"s_sub_u32 s{R}, s{R}, 8")
    role_w3b2(k, SEG, R, A_X1, out_srd, " sc1" if cfg.get('na') == 2 else "")
    k(f"s_branch {L('next')}")
    lab('giveup')
    k("s_mov_b64 exec, -1")
    k("v_mov_b32 v2, 0")
    k("v_mov_b32 v3, -1")
    k(f"ds_write_b32 v2, v3 offset:{JL_JOB}")
    k("s_waitcnt lgkmcnt(0)")
    k("s_barrier")
    k(f"s_branch {bail}")
    lab('done')
```

```python
import sys, math
sys.path.insert(0, "/code"); sys.path.insert(0, "tools")
from asmk import *
from lay import *
from work import prologue, vr, ar, S_WS, SRD, S_WAVE, srd

LOG2E = math.log2(math.e)
E6 = 1e-6
SPIN = 400000

def role_pwa(k):
    k.ptr(KA_WQKV, 24)
    k("s_lshr_b32 s21, s20, 1")
    k("s_and_b32 s22, s20, 1")
    k("v_and_b32 v1, 31, v0")
    k("v_lshrrev_b32 v2, 5, v0")
    k("s_mul_i32 s23, s21, 20")
    k("v_add_u32 v3, 640, v1")
    k("v_add_u32 v4, 1260, v1")
    k("v_cmp_gt_u32 vcc, 20, v1")
    k("s_nop 1")
    k("v_cndmask_b32 v3, v4, v3, vcc")
    k("v_add_u32 v4, 1292, v1")
    k("v_subrev_u32 v5, 12, v1")
    k("v_cmp_gt_u32 vcc, 8, v1")
    k("s_nop 1")
    k("v_cndmask_b32 v4, v5, v4, vcc")
    k("s_cmp_eq_u32 s22, 0")
    k("s_cselect_b64 vcc, -1, 0")
    k("s_nop 1")
    k("v_cndmask_b32 v3, v4, v3, vcc")
    k("v_add_u32 v3, s23, v3")
    k("v_lshlrev_b32 v3, 1, v3")
    k(f"v_mul_u32_u24 v4, {8 * 3840}, v2")
    k("v_add_u32 v3, v3, v4")
    k("s_mov_b32 s26, 0xfffff0ff")
    k("s_cmp_eq_u32 s22, 0")
    k("s_cselect_b32 s26, -1, s26")
    k("s_mov_b32 s27, s26")
    R = 16
    for r in range(80): k(f"v_mov_b32 v{R + r}, 0")
    k("s_waitcnt lgkmcnt(0)")
    k.srd(32, 24, 640 * 1920 * 2)
    k(f"s_mul_i32 s28, s{S_WAVE}, {160 * 3840}")
    k("s_mov_b64 exec, s[26:27]")
    for kk in range(10):
        for j in range(8):
            k(f"s_add_u32 s29, s28, {(16 * kk + j) * 3840}")
            k(f"buffer_load_short_d16_hi v{R + 8 * kk + j}, v3, s[32:35], s29 offen")
    k("s_mov_b64 exec, -1")
    k("s_waitcnt vmcnt(0)")
    k(f"v_add_f32 v5, v{R}, v{R + 1}")
    for r in range(2, 80): k(f"v_add_f32 v5, v5, v{R + r}")
    k("v_mov_b32 v6, v5")
    k("s_nop 1")
    k("v_permlane32_swap_b32 v5, v6")
    k("v_add_f32 v5, v5, v6")
    k(f"s_lshl_b32 s29, s{S_WAVE}, 8")
    k("v_lshlrev_b32 v7, 2, v0")
    k("v_add_u32 v8, s29, v7")
    k("ds_write_b32 v8, v5")
    k("s_waitcnt lgkmcnt(0)")
    k("s_barrier")
    for w in range(4): k(f"ds_read_b32 v{8 + w}, v7 offset:{256 * w}")
    k("s_waitcnt lgkmcnt(0)")
    k("v_add_f32 v8, v8, v9"); k("v_add_f32 v10, v10, v11"); k("v_add_f32 v8, v8, v10")
    k(f"v_mul_f32 v8, {hexf(1.0 / 640)}, v8")
    for r in range(80): k(f"v_sub_f32 v{R + r}, v{R + r}, v8")
    k("s_mul_i32 s29, s21, 81920")
    k("s_lshl_b32 s30, s22, 10")
    k("s_add_u32 s29, s29, s30")
    k(f"s_mul_i32 s30, s{S_WAVE}, {10 * 2048}")
    k("s_add_u32 s29, s29, s30")
    k(f"s_add_u32 s29, s29, {PWA}")
    k("v_lshlrev_b32 v7, 4, v0")
    for kk in range(10):
        o = 100 + 4 * (kk & 1)
        for m in range(4):
            k(f"v_cvt_pk_bf16_f32 v{o + m}, v{R + 8 * kk + 2 * m}, v{R + 8 * kk + 2 * m + 1}")
        k(f"buffer_store_dwordx4 {vr(o, 4)}, v7, {srd}, s29 offen")
        k("s_add_u32 s29, s29, 2048")
    k(f"s_branch {k.ref('end')}")

N_PWA = 64
N_PWO = 40
def role_pwo(k):
    k.ptr(KA_WOA, 24)
    k("s_lshr_b32 s21, s20, 3")
    k("s_and_b32 s22, s20, 7")
    k("v_and_b32 v1, 31, v0")
    k("v_lshrrev_b32 v2, 5, v0")
    k("v_lshlrev_b32 v3, 1, v1")
    k(f"v_mul_u32_u24 v4, {8 * 1280}, v2")
    k("v_add_u32 v3, v3, v4")
    k("s_lshl_b32 s29, s21, 6")
    k(f"s_mul_i32 s30, s22, {5 * 16 * 1280}")
    k("s_add_u32 s29, s29, s30")
    k("s_waitcnt lgkmcnt(0)")
    k.srd(32, 24, 640 * 640 * 2)
    R = 16
    for i in range(5):
        for j in range(8):
            k(f"s_add_u32 s30, s29, {(16 * i + j) * 1280}")
            k(f"buffer_load_ushort v{R + 8 * i + j}, v3, s[32:35], s30 offen")
    k("s_mul_i32 s29, s20, 5120")
    k(f"s_add_u32 s29, s29, {PWO}")
    k("v_lshlrev_b32 v7, 4, v0")
    for i in range(5):
        k(f"s_waitcnt vmcnt({8 * (4 - i) + i})")
        o = 64 + 4 * i
        for m in range(4):
            k(f"v_lshl_or_b32 v{o + m}, v{R + 8 * i + 2 * m + 1}, 16, v{R + 8 * i + 2 * m}")
        k(f"buffer_store_dwordx4 {vr(o, 4)}, v7, {srd}, s29 offen offset:{(i % 4) * 1024}")
        if i == 3: k("s_add_u32 s29, s29, 4096")
    k(f"s_branch {k.ref('end')}")

AF_LDS = 4 * 32768
def build_afront(name, layer, p1=False, cfg=None):
    k = K(name, vgpr=256, sgpr=64)
    k("s_cmp_ge_u32 s2, 256")
    k(f"s_cbranch_scc1 {k.ref('end')}")
    rt = (cfg or {}).get('rt')
    if rt: k("s_memrealtime s[40:41]")
    prologue(k, [(KA_AX, 6)] if layer == 0 else [])
    afront_body(k, layer, 2, p1, "", (lambda n: k(f"s_memrealtime s[{40 + 2 * n}:{41 + 2 * n}]")) if rt else None)
    if rt:
        k("s_memrealtime s[54:55]")
        k("s_waitcnt lgkmcnt(0)")
        k("s_mov_b64 exec, 1")
        k("s_lshl_b32 s32, s2, 2")
        k(f"s_add_u32 s32, s32, s{S_WAVE}")
        k("s_lshl_b32 s32, s32, 5")
        k(f"s_add_u32 s32, s32, {rt + 0x180000 + layer * 0x200000}")
        k("v_mov_b32 v253, 0")
        for n in range(8):
            k(f"v_mov_b32 v254, s{40 + 2 * n}")
            k(f"buffer_store_dword v254, v253, {srd}, s32 offen offset:{4*n}")
            k("s_nop 1")
    k.lab('end')
    return k, 256, AF_LDS

PF_TAB = 50; PF_B0 = 58; PF_B1 = 59; PF_D = 40; PF_V0 = 240; PF_V1 = 241
def afront_body(k, layer, id_s, p1=False, xsc="", st=None, pf=False, hook=None):
    st = st or (lambda n: None)
    XS = 16
    xsrd = f"s[{XS}:{XS+3}]"
    import os
    XW = os.environ.get('XW')
    RTL = layer == 'rt'
    if RTL:
        k.ptr(KA_AX, XS)
        k(f"s_add_u32 s28, s{S_WS}, {A_X2}")
        k(f"s_addc_u32 s29, s{S_WS+1}, 0")
        k("s_waitcnt lgkmcnt(0)")
        k("s_cmp_eq_u32 s49, 0")
        k(f"s_cselect_b32 s{XS}, s{XS}, s28")
        k(f"s_cselect_b32 s{XS+1}, s{XS+1}, s29")
        k(f"s_mov_b32 s{XS+2}, {2048 * 1280}")
        k(f"s_mov_b32 s{XS+3}, 0x00020000")
    elif layer == 0: k.srd(XS, 6, 2048 * 1280)
    else: k.srd(XS, S_WS, 2048 * 1280, A_X2)
    S_HP, S_RB, S_RH, S_HH, S_XB, S_WB, S_H, S_ONE = 20, 21, 22, 23, 24, 25, 26, 27
    k(f"s_and_b32 s28, s{id_s}, 7")
    k(f"s_lshr_b32 s29, s{id_s}, 3")
    k("s_and_b32 s30, s28, 3"); k("s_lshl_b32 s30, s30, 2"); k("s_and_b32 s31, s29, 3")
    k(f"s_add_u32 s{S_HP}, s30, s31")
    k("s_lshr_b32 s30, s28, 2"); k("s_lshl_b32 s30, s30, 3"); k("s_lshr_b32 s31, s29, 2")
    k(f"s_add_u32 s{S_RB}, s30, s31")
    k(f"s_lshr_b32 s{S_RH}, s{S_WAVE}, 1")
    k(f"s_and_b32 s{S_HH}, s{S_WAVE}, 1")
    k(f"s_lshl_b32 s{S_H}, s{S_HP}, 1")
    k(f"s_add_u32 s{S_H}, s{S_H}, s{S_HH}")
    k(f"s_mov_b32 s{S_ONE}, 0x3f803f80")
    k(f"s_lshl_b32 s28, s{S_RB}, 7")
    k(f"s_lshl_b32 s29, s{S_WAVE}, 5")
    k("s_add_u32 s28, s28, s29")
    k(f"s_mul_i32 s{S_XB}, s28, 1280")
    k(f"s_lshl_b32 s28, s{S_HP}, 1")
    k(f"s_add_u32 s28, s28, s{S_RH}")
    k(f"s_mul_i32 s{S_WB}, s28, 81920")
    k(f"s_lshl_b32 s29, s{S_HH}, 12")
    k(f"s_add_u32 s{S_WB}, s{S_WB}, s29")
    k(f"s_add_u32 s{S_WB}, s{S_WB}, {PWA}")
    V_L16, V_XE, V_XO, V_WR, V_XR = 1, 2, 3, 4, 6
    k(f"v_lshlrev_b32 v{V_L16}, 4, v0")
    k("v_lshrrev_b32 v16, 3, v0")
    k("v_mul_u32_u24 v16, 1280, v16")
    k("v_and_b32 v17, 7, v0")
    k("v_lshrrev_b32 v18, 4, v0")
    k("v_xor_b32 v19, v17, v18")
    k(f"v_lshl_add_u32 v{V_XE}, v19, 4, v16")
    k("v_xor_b32 v19, 4, v19")
    k(f"v_lshl_add_u32 v{V_XO}, v19, 4, v16")
    def dma_items(s):
        buf = (s % 4) * 32768
        it = []
        for u in range(4):
            p = []
            if u == 0:
                p += [f"s_lshl_b32 s28, s{S_WAVE}, 12"] + ([f"s_add_u32 s28, s28, {buf}"] if buf else []) + \
                     ["s_mov_b32 m0, s28", f"s_add_u32 s29, s{S_XB}, {s * 128}"]
            else:
                p.append(f"s_add_u32 s29, s29, {10240 - 1024}")
            p.append(f"buffer_load_dwordx4 v{V_XE if u % 2 == 0 else V_XO}, {xsrd}, s29 offen offset:{u * 1024}{xsc} lds")
            it.append(p)
        for u in range(4):
            p = []
            if u == 0: p += ["s_add_u32 s28, s28, 16384", "s_mov_b32 m0, s28", f"s_add_u32 s29, s{S_WB}, {s * 8192}"]
            if XW: p.append(f"buffer_load_dwordx4 v[{200 + 4 * u}:{203 + 4 * u}], v{V_L16}, {srd}, s29 offen offset:{u * 1024}")
            else: p.append(f"buffer_load_dwordx4 v{V_L16}, {srd}, s29 offen offset:{u * 1024} lds")
            it.append(p)
        return it
    def dma(s):
        for p in dma_items(s):
            for x in p: k(x)
    def pf_items(n0, n):
        it = []
        for i in range(n0, n0 + n):
            p = i >> 1
            if i & 1 == 0:
                it.append([f"s_bfe_u32 s41, s{PF_TAB + (p >> 2)}, {(8 << 16) | ((p & 3) * 8)}", f"s_mul_i32 s41, s41, s{PF_D}",
                           f"s_add_u32 s42, s{PF_B0}, s41", f"s_add_u32 s43, s{PF_B1}, s41",
                           f"buffer_load_dwordx4 a[{4*i}:{4*i+3}], v{PF_V0}, {srd}, s42 offen"])
            else:
                it.append([f"buffer_load_dwordx4 a[{4*i}:{4*i+3}], v{PF_V1}, {srd}, s43 offen"])
        return it
    HS = hook[1] if hook else None
    if hook: hook = hook[0]
    PFN = [4, 4, 4, 4, 4, 4, 4, 8, 8, 6] if pf else [0] * 10
    PF0 = 14 if pf else 0
    if HS is not None:
        PF0 = 0
        PFN = {0: [8] * 8 + [0, 0], 1: [0] + [8] * 8 + [0], 2: [0, 0, 10, 10, 10, 10, 8, 8, 8, 0]}[HS]
    if pf and pf is not True:
        PF0, PFN = pf
    for s in range(3): dma(s)
    if hook and HS is None: hook('')
    for p in pf_items(0, PF0):
        for x in p: k(x)
    k("v_and_b32 v16, 31, v0")
    k("v_lshrrev_b32 v17, 5, v0")
    k("v_lshrrev_b32 v18, 1, v16")
    k("v_and_b32 v18, 7, v18")
    k("v_xor_b32 v18, v18, v17")
    k("v_lshlrev_b32 v18, 4, v18")
    k("v_lshl_add_u32 v18, v16, 7, v18")
    k(f"s_lshl_b32 s28, s{S_RH}, 13")
    k("v_add_u32 v18, s28, v18")
    for kp in range(4):
        k(f"v_xor_b32 v{V_XR + kp}, {32 * kp}, v18")
        k(f"v_add_u32 v{V_XR + 4 + kp}, 65536, v{V_XR + kp}")
    k(f"s_lshl_b32 s28, s{S_HH}, 13")
    k("s_add_u32 s28, s28, 16384")
    k(f"v_add_u32 v{V_WR}, s28, v{V_L16}")
    k(f"v_add_u32 v{V_WR + 1}, 65536, v{V_WR}")
    FR = 32
    D0, D1, DQ = 64, 96, 128
    PA, PB = 160, 176
    ST = 20
    for r in range(4): k(f"v_mov_b32 v{ST + r}, 0")
    def reads(s, kp):
        o = FR + 16 * ((4 * s + kp) & 1)
        hi = (s % 4) >> 1; off = (s & 1) * 32768
        return [f"ds_read_b128 {vr(o + 4 * rt, 4)}, v{V_XR + 4 * hi + kp} offset:{off + rt * 4096}" for rt in range(2)] + \
               [f"ds_read_b128 {vr(o + 8 + 4 * t, 4)}, v{V_WR + hi} offset:{off + kp * 2048 + t * 1024}" for t in range(2)]
    k(f"s_waitcnt vmcnt({16 + PF0})")
    k("s_barrier")
    st(1)
    for it in reads(0, 0): k(it)
    def body(hh):
        pend = []
        for s in range(10):
            for kp in range(4):
                o = FR + 16 * ((4 * s + kp) & 1)
                X = lambda rt: vr(o + 4 * rt, 4)
                W = lambda t: vr(o + 8 + 4 * t, 4)
                first = (s == 0 and kp == 0)
                k("s_waitcnt lgkmcnt(0)")
                nxt = reads(s, kp + 1) if kp < 3 else (reads(s + 1, 0) if s < 9 else [])
                xs = o + 4 * hh
                dots = []
                for r in range(4):
                    dots.append(f"v_dot2c_f32_bf16 v{ST + (r & 1)}, s{S_ONE}, v{xs + r}")
                    dots.append(f"v_dot2c_f32_bf16 v{ST + 2 + (r & 1)}, v{xs + r}, v{xs + r}")
                mf = []
                for rt in range(2):
                    for (d, a, b) in ((D0, X(rt), W(0)), (D1, X(rt), W(1)), (DQ, W(1), X(rt))):
                        dd = vr(d + 16 * rt, 16)
                        mf.append(f"v_mfma_f32_32x32x16_bf16 {dd}, {a}, {b}, {'0' if first else dd}")
                gaps = [[] for _ in range(6)]
                if kp == 3:
                    pass
                for i, it in enumerate(nxt): gaps[1 + i].append(it)
                for i, it in enumerate(dots): gaps[(i * 6) // 8].append(it)
                for i in range(6):
                    k(mf[i])
                    for it in gaps[i]: k(it)
                    if pf and pend:
                        for x in pend.pop(0): k(x)
                        if s == 9 and kp == 3 and pend and len(pend) > 5 - i:
                            for x in pend.pop(0): k(x)
                    if kp == 2 and i == 5:
                        if pf:
                            assert not pend
                            if s < 9:
                                grp = lambda g: (8 if g + 3 <= 9 else 0) + PFN[g]
                                if s == 0: n = 8 + PF0
                                elif s == 1: n = PF0 + grp(0)
                                else: n = PFN[s - 2] + grp(s - 1)
                                k(f"s_waitcnt vmcnt({n})")
                                if s == HS: hook(f"h{hh}")
                                else: k("s_barrier")
                            pend += (dma_items(s + 3) if s + 3 <= 9 else []) + pf_items(PF0 + sum(PFN[:s]), PFN[s])
                        elif s < 9:
                            k(f"s_waitcnt vmcnt({8 if s + 2 <= 9 else 0})")
                            k("s_barrier")
                            if s + 3 <= 9: dma(s + 3)
        assert not pend
    k(f"s_cmp_eq_u32 s{S_HH}, 1")
    k(f"s_cbranch_scc1 {k.ref('af_h1')}")
    body(0)
    k(f"s_branch {k.ref('af_epi')}")
    k.lab('af_h1')
    body(1)
    k.lab('af_epi')
    st(2)
    k("s_nop 2")
    EL = 65536
    k(f"v_add_f32 v{ST}, v{ST}, v{ST+1}")
    k(f"v_add_f32 v{ST+2}, v{ST+2}, v{ST+3}")
    k(f"v_mov_b32 v{ST+1}, v{ST}")
    k(f"v_mov_b32 v{ST+3}, v{ST+2}")
    k("s_nop 1")
    k(f"v_permlane32_swap_b32 v{ST}, v{ST+1}")
    k(f"v_permlane32_swap_b32 v{ST+2}, v{ST+3}")
    k(f"v_add_f32 v{ST}, v{ST}, v{ST+1}")
    k(f"v_add_f32 v{ST+2}, v{ST+2}, v{ST+3}")
    k(f"v_mul_f32 v{ST}, {hexf(1.0/640)}, v{ST}")
    k(f"v_mul_f32 v{ST+1}, v{ST}, v{ST}")
    k(f"v_fma_f32 v{ST+2}, v{ST+2}, {hexf(1.0/640)}, -v{ST+1}" if False else f"v_mul_f32 v{ST+2}, {hexf(1.0/640)}, v{ST+2}")
    k(f"v_sub_f32 v{ST+2}, v{ST+2}, v{ST+1}")
    k(f"v_max_f32 v{ST+2}, 0, v{ST+2}")
    k(f"v_add_f32 v{ST+2}, 0x3727c5ac, v{ST+2}")
    k(f"v_rsq_f32 v{ST+2}, v{ST+2}")
    k("v_and_b32 v16, 31, v0")
    k(f"s_lshl_b32 s28, s{S_WAVE}, 7")
    k(f"s_add_u32 s28, s28, {EL}")
    k("v_lshl_add_u32 v17, v16, 2, s28")
    k(f"ds_write_b32 v17, v{ST+2}")
    k("s_waitcnt lgkmcnt(0)")
    k("s_barrier")
    RS = 192; RL = 224
    k(f"s_lshl_b32 s28, s{S_RH}, 8")
    k(f"s_add_u32 s28, s28, {EL}")
    k("v_lshl_add_u32 v17, v16, 2, s28")
    k("v_lshrrev_b32 v18, 5, v0")
    k("v_lshlrev_b32 v18, 4, v18")
    k("v_add_u32 v18, s28, v18")
    for rt in range(2):
        k(f"ds_read_b32 v{RL + rt}, v17 offset:{rt * 128}")
        for q in range(4):
            k(f"ds_read_b128 {vr(RS + 16 * rt + 4 * q, 4)}, v18 offset:{rt * 128 + q * 32}")
    C0, C1, CE = 226, 227, 228
    k("v_and_b32 v16, 31, v0")
    k(f"v_mov_b32 v{CE}, {hexf(E6)}")
    k("v_cmp_gt_u32 vcc, 20, v16")
    k("s_mov_b64 s[30:31], vcc")
    k("s_nop 0")
    k(f"v_cndmask_b32 v{C0}, 0, v{CE}, vcc")
    k("v_cmp_eq_u32 vcc, 8, v16")
    k("s_nop 1")
    k(f"v_cndmask_b32 v{C1}, 0, 1.0, vcc")
    k("s_waitcnt lgkmcnt(0)")
    F0, F1, T = 32, 40, 48
    def phi(x, acc, scale, c, t):
        k(f"v_fma_f32 v{x}, v{acc}, v{scale}, v{c}")
        k(f"v_mul_f32 v{t}, {hexf(LOG2E)}, v{x}")
        k(f"v_exp_f32 v{t}, v{t} clamp")
        k(f"v_max_f32 v{t+1}, v{x}, v{CE}")
    for rt in range(2):
        a0 = D0 + 16 * rt; a1 = D1 + 16 * rt
        for r in range(16):
            t = T + 2 * (r & 3)
            phi(a0 + r, a0 + r, RS + 16 * rt + r, C0, t)
            k(f"v_fma_f32 v{a1 + r}, v{a1 + r}, v{RS + 16 * rt + r}, v{C1}")
            k(f"v_add_f32 v{t}, v{t}, v{t+1}")
            k(f"v_cndmask_b32 v{a0 + r}, v{a0 + r}, v{t}, s[30:31]")
        for m in range(8):
            k(f"v_cvt_pk_bf16_f32 v{F0 + m}, v{a0 + 2 * m}, v{a0 + 2 * m + 1}")
            k(f"v_cvt_pk_bf16_f32 v{F1 + m}, v{a1 + 2 * m}, v{a1 + 2 * m + 1}")
        k("s_nop 1")
        for half in range(2):
            c0 = "0" if (rt == 0 and half == 0) else None
            k(f"v_mfma_f32_32x32x16_bf16 {vr(PA, 16)}, {vr(F0 + 4 * half, 4)}, {vr(F0 + 4 * half, 4)}, {c0 or vr(PA, 16)}")
            k(f"v_mfma_f32_32x32x16_bf16 {vr(PB, 16)}, {vr(F1 + 4 * half, 4)}, {vr(F0 + 4 * half, 4)}, {c0 or vr(PB, 16)}")
    def qphi(rt):
        b = DQ + 16 * rt
        for r in range(4, 16):
            t = T + 2 * (r & 3)
            phi(b + r, b + r, RL + rt, CE, t)
            k(f"v_add_f32 v{b + r}, v{t}, v{t+1}")
        for m in range(2, 8):
            k(f"v_cvt_pk_bf16_f32 v{b + m}, v{b + 2 * m}, v{b + 2 * m + 1}")
        k(f"v_mov_b32 v{b}, 0"); k(f"v_mov_b32 v{b + 1}, 0")
    qphi(0)
    st(3)
    RAW = EL + 1024
    k(f"s_lshl_b32 s28, s{S_WAVE}, 13")
    k(f"s_add_u32 s28, s28, {RAW}")
    k(f"v_add_u32 v17, s28, v{V_L16}")
    for p_, base in ((0, PA), (1, PB)):
        for q in range(4):
            k(f"ds_write_b128 v17, {vr(base + 4 * q, 4)} offset:{p_ * 4096 + q * 1024}")
    t_, hh_, rem, e_, d_, m_, la, ga = range(32, 40)
    k(f"s_lshl_b32 s28, s{S_WAVE}, 6")
    k(f"v_add_u32 v{t_}, s28, v0")
    k(f"v_cmp_le_u32 vcc, 105, v{t_}")
    k("s_nop 1")
    k(f"v_cndmask_b32 v{hh_}, 0, 1, vcc")
    k(f"v_mul_u32_u24 v{rem}, 105, v{hh_}")
    k(f"v_sub_u32 v{rem}, v{t_}, v{rem}")
    k(f"v_mul_u32_u24 v{e_}, 13108, v{rem}")
    k(f"v_lshrrev_b32 v{e_}, 16, v{e_}")
    k(f"v_mul_u32_u24 v{d_}, 5, v{e_}")
    k(f"v_sub_u32 v{d_}, v{rem}, v{d_}")
    k(f"v_add_u32 v{m_}, 20, v{e_}")
    k(f"v_subrev_u32 v{la}, 12, v{e_}")
    k(f"v_cmp_gt_u32 vcc, 12, v{e_}")
    k("s_nop 1")
    k(f"v_cndmask_b32 v{m_}, v{la}, v{m_}, vcc")
    k(f"v_cndmask_b32 v{la}, 1, 0, vcc")
    k(f"v_lshlrev_b32 v{la}, 12, v{la}")
    k(f"v_lshl_add_u32 v{la}, v{hh_}, 13, v{la}")
    k(f"v_lshrrev_b32 v{ga}, 3, v{m_}")
    k(f"v_lshl_add_u32 v{la}, v{ga}, 10, v{la}")
    k(f"v_bfe_u32 v{ga}, v{m_}, 2, 1")
    k(f"v_lshlrev_b32 v{ga}, 5, v{ga}")
    k(f"v_lshl_add_u32 v{ga}, v{d_}, 2, v{ga}")
    k(f"v_lshl_add_u32 v{la}, v{ga}, 4, v{la}")
    k(f"v_and_b32 v{ga}, 3, v{m_}")
    k(f"v_lshl_add_u32 v{la}, v{ga}, 2, v{la}")
    k(f"v_min_u32 v{la}, {8192 * 2 - 64}, v{la}")
    k(f"v_add_u32 v{la}, {RAW}, v{la}")
    k("s_waitcnt lgkmcnt(0)")
    k("s_barrier")
    for hlf in range(2):
        for i in range(4):
            k(f"ds_read_b32 v{40 + 4 * hlf + i}, v{la} offset:{hlf * 16384 + i * 16}")
    if p1:
        k(f"v_lshlrev_b32 v{ga}, 4, v{t_}")
        k(f"v_cmp_gt_u32 vcc, 210, v{t_}")
        k("s_mov_b64 s[32:33], vcc")
        k("s_waitcnt lgkmcnt(0)")
        for i in range(4): k(f"v_add_f32 v{40 + i}, v{40 + i}, v{44 + i}")
        k("s_mov_b64 exec, s[32:33]")
        k(f"ds_write_b128 v{ga}, v[40:43]")
        k("s_mov_b64 exec, -1")
        qphi(1)
        k(f"s_lshl_b32 s28, s{S_RB}, 2")
        k(f"s_lshl_b32 s29, s{S_RH}, 1")
        k("s_add_u32 s28, s28, s29")
        k("s_lshl_b32 s28, s28, 5")
        k(f"s_add_u32 s28, s28, s{S_H}")
        k(f"s_mul_i32 s28, s28, {PQ_SH}")
        k(f"s_add_u32 s28, s28, {PQ}")
        k("v_lshlrev_b32 v16, 3, v0")
        for rt in range(2):
            b = DQ + 16 * rt
            k(f"buffer_store_dwordx4 {vr(b + 4, 4)}, v{V_L16}, {srd}, s28 offen sc1")
            k(f"buffer_store_dwordx2 {vr(b + 2, 2)}, v16, {srd}, s28 offen offset:1024 sc1")
            if rt == 0: k(f"s_add_u32 s28, s28, {32 * PQ_SH}")
        k(f"v_lshlrev_b32 v17, 2, v{t_}")
        k("s_waitcnt lgkmcnt(0)")
        k("s_barrier")
        st(4)
        for j in range(4): k(f"ds_read_b32 v{40 + j}, v17 offset:{j * 1024}")
        k(f"s_lshl_b32 s28, s{S_HP}, 12")
        k(f"s_add_u32 s28, s28, {KVT + layer * KVT_L}")
        k(f"v_cmp_gt_u32 vcc, 72, v{t_}")
        k("s_waitcnt lgkmcnt(0)")
        for j in range(3):
            k(f"buffer_atomic_add_f32 v{40 + j}, v17, {srd}, s28 offen offset:{j * 1024} sc1")
        k("s_and_saveexec_b64 s[34:35], vcc")
        k(f"s_cbranch_execz {k.ref('af_na')}")
        k(f"buffer_atomic_add_f32 v43, v17, {srd}, s28 offen offset:3072 sc1")
        k.lab('af_na')
        k("s_mov_b64 exec, -1")
        st(5)
        k("s_waitcnt vmcnt(0)")
        k("s_barrier")
        st(6)
        k(f"s_cmp_lg_u32 s{S_WAVE}, 0")
        k(f"s_cbranch_scc1 {k.ref('af_done')}")
        k(f"s_lshl_b32 s29, s{S_HP}, 2")
        k(f"s_add_u32 s29, s29, {CT_FLAG + layer * FL_LAYER + FL_KC}")
        k("v_mov_b32 v16, 0")
        k("v_mov_b32 v17, 1")
        k("s_mov_b64 exec, 1")
        k(f"buffer_atomic_add v17, v16, {srd}, s29 offen sc1")
        k("s_mov_b64 exec, -1")
        k.lab('af_done')
        return
    k(f"s_lshl_b32 s28, s{S_HP}, 4")
    k(f"s_add_u32 s28, s28, s{S_RB}")
    k("s_lshl_b32 s28, s28, 12")
    if RTL:
        k(f"s_mul_i32 s39, s49, {KVP_L}")
        k(f"s_add_u32 s39, s39, {KVP}")
        k("s_add_u32 s28, s28, s39")
    else: k(f"s_add_u32 s28, s28, {KVP + layer * KVP_L}")
    k(f"v_lshlrev_b32 v{ga}, 4, v{t_}")
    k(f"v_cmp_gt_u32 vcc, 210, v{t_}")
    k("s_mov_b64 s[32:33], vcc")
    k("s_waitcnt lgkmcnt(0)")
    for i in range(4): k(f"v_add_f32 v{40 + i}, v{40 + i}, v{44 + i}")
    k("s_mov_b64 exec, s[32:33]")
    k(f"buffer_store_dwordx4 v[40:43], v{ga}, {srd}, s28 offen sc1")
    k("s_mov_b64 exec, -1")
    qphi(1)
    k(f"s_mul_i32 s29, s{S_H}, 5")
    k("v_lshrrev_b32 v17, 5, v0")
    k("v_add_u32 v17, s29, v17")
    k("v_lshrrev_b32 v18, 1, v17")
    k("v_lshlrev_b32 v18, 9, v18")
    k("v_and_b32 v17, 1, v17")
    k("v_lshl_add_u32 v18, v17, 3, v18")
    k("v_and_b32 v16, 31, v0")
    k("v_lshl_add_u32 v14, v16, 4, v18")
    KS = 64
    k("v_mul_u32_u24 v15, 80, v16")
    k("v_lshrrev_b32 v17, 5, v0")
    k("v_lshl_add_u32 v15, v17, 4, v15")
    k(f"s_mul_i32 s29, s{S_HH}, 1680")
    k(f"s_add_u32 s29, s29, {KS - 16}")
    k("v_add_u32 v15, s29, v15")
    R0 = 48
    for r in range(12): k(f"v_mov_b32 v{R0 + r}, 0")
    k("s_waitcnt vmcnt(0)")
    k("s_barrier")
    k(f"s_cmp_lg_u32 s{S_WAVE}, 0")
    k(f"s_cbranch_scc1 {k.ref('af_go')}")
    k(f"s_lshl_b32 s29, s{S_HP}, 7")
    if RTL:
        k("s_add_u32 s29, s29, s48")
        k(f"s_add_u32 s29, s29, {FL_AF}")
    else: k(f"s_add_u32 s29, s29, {CT_FLAG + layer * FL_LAYER + FL_AF}")
    k(f"s_lshl_b32 s30, s{S_RB}, 2")
    k("v_mov_b32 v16, s30")
    k("v_mov_b32 v17, 1")
    k("s_mov_b64 exec, 1")
    k(f"buffer_store_dword v17, v16, {srd}, s29 offen sc1")
    k("s_mov_b64 exec, 0xffff")
    k("v_lshlrev_b32 v16, 2, v0")
    k(f"s_mov_b32 s31, {SPIN}")
    k.lab('af_poll')
    k(f"buffer_load_dword v17, v16, {srd}, s29 offen sc1")
    k("s_waitcnt vmcnt(0)")
    k("v_cmp_eq_u32 vcc, 0, v17")
    k("s_sub_u32 s31, s31, 1")
    k(f"s_cbranch_scc1 {k.ref('af_fail')}")
    k(f"s_cbranch_vccnz {k.ref('af_poll')}")
    k(f"s_branch {k.ref('af_ok')}")
    k.lab('af_fail')
    k.ptr(KA_DBG, 34)
    k("s_waitcnt lgkmcnt(0)")
    k.srd(36, 34, 256)
    k("s_mov_b64 exec, 1")
    k("v_mov_b32 v16, 0"); k("v_mov_b32 v17, 0xdead")
    k("buffer_store_dword v17, v16, s[36:39], 0 offen")
    k.lab('af_ok')
    k("s_mov_b64 exec, -1")
    k.lab('af_go')
    k("s_barrier")
    st(4)
    PS = 160
    k(f"s_lshl_b32 s28, s{S_HP}, 16")
    if RTL: k("s_add_u32 s28, s28, s39")
    else: k(f"s_add_u32 s28, s28, {KVP + layer * KVP_L}")
    k("s_mov_b64 exec, s[32:33]")
    for i in range(16):
        k(f"buffer_load_dwordx4 {vr(PS + 4 * i, 4)}, v{ga}, {srd}, s28 offen sc1")
        if i < 15: k("s_add_u32 s28, s28, 4096")
    k("s_mov_b64 exec, -1")
    for step in (1, 2, 4, 8):
        for i in range(0, 16, 2 * step):
            if step == 1: k(f"s_waitcnt vmcnt({14 - i})")
            for c in range(4):
                k(f"v_add_f32 v{PS + 4 * i + c}, v{PS + 4 * i + c}, v{PS + 4 * (i + step) + c}")
    k(f"v_add_u32 v{ga}, {KS}, v{ga}")
    k("s_mov_b64 exec, s[32:33]")
    k(f"ds_write_b128 v{ga}, {vr(PS, 4)}")
    k("s_mov_b64 exec, -1")
    k("s_waitcnt lgkmcnt(0)")
    k("s_barrier")
    k("s_mov_b32 exec_lo, 0x1fffff"); k("s_mov_b32 exec_hi, 0x1fffff")
    k(f"ds_read_b128 {vr(R0 + 4, 4)}, v15 offset:32")
    k(f"ds_read_b128 {vr(R0 + 8, 4)}, v15 offset:64")
    k("s_mov_b32 exec_lo, 0")
    k(f"ds_read_b128 {vr(R0, 4)}, v15")
    k("s_mov_b64 exec, -1")
    AK = 32
    k(f"v_mov_b32 v{AK}, 0"); k(f"v_mov_b32 v{AK + 1}, 0")
    k("s_waitcnt lgkmcnt(0)")
    for m in range(6):
        k(f"v_cvt_pk_bf16_f32 v{AK + 2 + m}, v{R0 + 2 * m}, v{R0 + 2 * m + 1}")
    k("s_nop 1")
    for rt in range(2):
        o = D0 + 16 * rt; b = DQ + 16 * rt
        k(f"v_mfma_f32_32x32x16_bf16 {vr(o, 16)}, {vr(AK, 4)}, {vr(b, 4)}, 0")
        k(f"v_mfma_f32_32x32x16_bf16 {vr(o, 16)}, {vr(AK + 4, 4)}, {vr(b + 4, 4)}, {vr(o, 16)}")
    k(f"s_lshl_b32 s28, s{S_RB}, 2")
    k(f"s_lshl_b32 s29, s{S_RH}, 1")
    k("s_add_u32 s28, s28, s29")
    k(f"s_mul_i32 s28, s28, {XN_SEG}")
    k(f"s_add_u32 s28, s28, {OA}")
    k("s_nop 7"); k("s_nop 3")
    for rt in range(2):
        o = D0 + 16 * rt
        if rt == 1: k("s_nop 7")
        k(f"v_add_f32 v40, {hexf(E6)}, v{o + 8}")
        k("v_mov_b32 v41, v40")
        k("s_nop 1")
        k("v_permlane32_swap_b32 v40, v41")
        k("v_rcp_f32 v41, v41")
        k("s_nop 0")
        for r in range(12): k(f"v_mul_f32 v{o + r}, v{o + r}, v41")
        for m in range(6): k(f"v_cvt_pk_bf16_f32 v{42 + 6 * rt + m}, v{o + 2 * m}, v{o + 2 * m + 1}")
        for q in range(3):
            if q == 2: k("s_mov_b32 exec_hi, 0")
            k(f"buffer_store_dwordx2 {vr(42 + 6 * rt + 2 * q, 2)}, v14, {srd}, s28 offen offset:{q * 512}{' sc1' if RTL else ''}")
        k("s_mov_b32 exec_hi, -1")
        if rt == 0: k(f"s_add_u32 s28, s28, {XN_SEG}")
    if RTL:
        st(5)
        k("s_waitcnt vmcnt(0)")
        k("s_barrier")
        k(f"s_cmp_lg_u32 s{S_WAVE}, 0")
        k(f"s_cbranch_scc1 {k.ref('af_pub')}")
        k(f"s_lshl_b32 s28, s{S_RB}, 4")
        k(f"s_add_u32 s28, s28, s{S_HP}")
        k("s_lshl_b32 s28, s28, 2")
        k("s_add_u32 s28, s28, s48")
        k(f"s_add_u32 s28, s28, {FL_OF}")
        k("v_mov_b32 v16, 0"); k("v_mov_b32 v17, 1")
        k("s_mov_b64 exec, 1")
        k(f"buffer_store_dword v17, v16, {srd}, s28 offen sc1")
        k("s_mov_b64 exec, -1")
        k.lab('af_pub')

def role_ow(k, j_s, layer_s, fl_s, spin_s, bail, cfg=None):
    L = lambda s: k.ref('ow_' + s)
    lab = lambda s: k.lab('ow_' + s)
    SEG, H0, SRC, DST = 14, 16, 17, 18
    V_L16, V_L8, V_A, V_O = 1, 2, 3, 4
    RF, AK, BQ, ACC, T = 16, 64, 96, 160, 224
    k(f"v_lshlrev_b32 v{V_L16}, 4, v0")
    k(f"v_lshlrev_b32 v{V_L8}, 3, v0")
    k(f"s_lshl_b32 s{H0}, s{j_s}, 4")
    k(f"s_lshl_b32 s20, s{S_WAVE}, 2")
    k(f"s_add_u32 s{H0}, s{H0}, s20")
    k("v_and_b32 v8, 31, v0")
    k("v_lshrrev_b32 v9, 5, v0")
    k(f"v_mul_u32_u24 v{V_A}, 80, v8")
    k(f"v_lshl_add_u32 v{V_A}, v9, 4, v{V_A}")
    for u in range(4):
        k(f"s_add_u32 s20, s{H0}, {u}")
        k("s_mul_i32 s20, s20, 5")
        k("v_add_u32 v10, s20, v9")
        k("v_lshrrev_b32 v11, 1, v10")
        k("v_lshlrev_b32 v11, 9, v11")
        k("v_and_b32 v10, 1, v10")
        k("v_lshl_add_u32 v11, v10, 3, v11")
        k(f"v_lshl_add_u32 v{V_O + u}, v8, 4, v11")
    for r in range(48): k(f"v_mov_b32 v{RF + r}, 0")
    for par in range(2):
        for u in range(4):
            b = BQ + 32 * par + 8 * u
            k(f"v_mov_b32 v{b}, 0"); k(f"v_mov_b32 v{b + 1}, 0")
    k(f"s_mul_i32 s{SRC}, s{H0}, {PQ_SH}")
    k(f"s_add_u32 s{SRC}, s{SRC}, {PQ}")
    def loads(par):
        for u in range(4):
            b = BQ + 32 * par + 8 * u
            k(f"s_add_u32 s20, s{SRC}, {u * PQ_SH}")
            k(f"buffer_load_dwordx4 {vr(b + 4, 4)}, v{V_L16}, {srd}, s20 offen sc1")
            k(f"buffer_load_dwordx2 {vr(b + 2, 2)}, v{V_L8}, {srd}, s20 offen offset:1024 sc1")
    k(f"s_lshr_b32 s20, s{H0}, 1")
    k("s_lshl_b32 s20, s20, 2")
    k(f"s_add_u32 s20, s20, s{fl_s}")
    k(f"s_add_u32 s20, s20, {FL_KC}")
    k("v_lshlrev_b32 v10, 2, v0")
    k("s_mov_b64 exec, 3")
    lab('kc')
    k(f"buffer_load_dword v11, v10, {srd}, s20 offen sc1")
    k("s_waitcnt vmcnt(0)")
    k("v_cmp_gt_u32 vcc, 16, v11")
    k(f"s_sub_u32 s{spin_s}, s{spin_s}, 1")
    k(f"s_cbranch_scc1 {bail}")
    k(f"s_cbranch_vccnz {L('kc')}")
    k("s_mov_b64 exec, -1")
    k(f"s_lshr_b32 s20, s{H0}, 1")
    k("s_lshl_b32 s20, s20, 12")
    k(f"s_mul_i32 s21, s{layer_s}, {KVT_L}")
    k("s_add_u32 s20, s20, s21")
    k(f"s_add_u32 s20, s20, {KVT}")
    k("s_mov_b32 exec_lo, 0x1fffff"); k("s_mov_b32 exec_hi, 0x1fffff")
    hoff = lambda u: (u >> 1) * 4096 + (u & 1) * 1680
    for u in range(4):
        k(f"s_add_u32 s21, s20, {hoff(u)}")
        k(f"buffer_load_dwordx4 {vr(RF + 12 * u + 4, 4)}, v{V_A}, {srd}, s21 offen offset:16 sc1")
        k(f"buffer_load_dwordx4 {vr(RF + 12 * u + 8, 4)}, v{V_A}, {srd}, s21 offen offset:48 sc1")
    k("s_mov_b32 exec_lo, 0")
    k(f"v_subrev_u32 v10, 16, v{V_A}")
    for u in range(4):
        k(f"s_add_u32 s21, s20, {hoff(u)}")
        k(f"buffer_load_dwordx4 {vr(RF + 12 * u, 4)}, v10, {srd}, s21 offen sc1")
    k("s_mov_b64 exec, -1")
    loads(0)
    k(f"s_mov_b32 s{SEG}, 0")
    k(f"s_mov_b32 s{DST}, {OA}")
    k("s_waitcnt vmcnt(8)")
    for u in range(4):
        k(f"v_mov_b32 v{AK + 8 * u}, 0"); k(f"v_mov_b32 v{AK + 8 * u + 1}, 0")
        for m in range(6):
            k(f"v_cvt_pk_bf16_f32 v{AK + 8 * u + 2 + m}, v{RF + 12 * u + 2 * m}, v{RF + 12 * u + 2 * m + 1}")
    k("s_waitcnt vmcnt(0)")
    rts(k, cfg, 0)
    def segment(par):
        k(f"s_cmp_lt_u32 s{SEG}, 63")
        k(f"s_cselect_b32 s20, {32 * PQ_SH}, 0")
        k(f"s_add_u32 s{SRC}, s{SRC}, s20")
        for u in range(4):
            b = BQ + 32 * par + 8 * u
            k(f"v_mfma_f32_32x32x16_bf16 {vr(ACC + 16 * u, 16)}, {vr(AK + 8 * u, 4)}, {vr(b, 4)}, 0")
            k(f"v_mfma_f32_32x32x16_bf16 {vr(ACC + 16 * u, 16)}, {vr(AK + 8 * u + 4, 4)}, {vr(b + 4, 4)}, {vr(ACC + 16 * u, 16)}")
        loads(par ^ 1)
        k("s_nop 3")
        for u in range(4):
            o = ACC + 16 * u; t = T + 8 * (u & 1)
            if u == 3: k("s_nop 7")
            k(f"v_add_f32 v{t}, {hexf(E6)}, v{o + 8}")
            k(f"v_mov_b32 v{t + 1}, v{t}")
            k("s_nop 1")
            k(f"v_permlane32_swap_b32 v{t}, v{t + 1}")
            k(f"v_rcp_f32 v{t + 1}, v{t + 1}")
            k("s_nop 0")
            for r in range(12): k(f"v_mul_f32 v{o + r}, v{o + r}, v{t + 1}")
            for m in range(6): k(f"v_cvt_pk_bf16_f32 v{t + 2 + m}, v{o + 2 * m}, v{o + 2 * m + 1}")
            for q in range(3):
                if q == 2: k("s_mov_b32 exec_hi, 0")
                k(f"buffer_store_dwordx2 {vr(t + 2 + 2 * q, 2)}, v{V_O + u}, {srd}, s{DST} offen offset:{q * 512} sc1")
            k("s_mov_b32 exec_hi, -1")
        k("s_waitcnt vmcnt(0)")
        k("s_barrier")
        k(f"s_cmp_lg_u32 s{S_WAVE}, 0")
        sk = f"fl{par}"
        k(f"s_cbranch_scc1 {L(sk)}")
        k(f"s_lshl_b32 s20, s{SEG}, 3")
        k(f"s_lshl_b32 s21, s{j_s}, 2")
        k("s_add_u32 s20, s20, s21")
        k(f"s_add_u32 s20, s20, s{fl_s}")
        k(f"s_add_u32 s20, s20, {FL_OF}")
        k("v_mov_b32 v10, 0"); k("v_mov_b32 v11, 1")
        k("s_mov_b64 exec, 1")
        k(f"buffer_store_dword v11, v10, {srd}, s20 offen sc1")
        k("s_mov_b64 exec, -1")
        lab(sk)
        k(f"s_add_u32 s{DST}, s{DST}, {XN_SEG}")
        k(f"s_add_u32 s{SEG}, s{SEG}, 1")
    lab('loop')
    segment(0)
    if cfg and cfg.get('rt'):
        k(f"s_cmp_lg_u32 s{SEG}, 1"); k(f"s_cbranch_scc1 {L('rt1')}"); rts(k, cfg, 1); lab('rt1')
    segment(1)
    k(f"s_cmp_lt_u32 s{SEG}, 64")
    k(f"s_cbranch_scc1 {L('loop')}")
    rts(k, cfg, 2)
    k("s_waitcnt vmcnt(0)")
    k("s_barrier")

AB_SEG = 14; AB_END = 15; AB_BUF = 16; AB_NB = 17; AB_DMA = 18; AB_RES = 19; AB_FLG = 20; AB_CT = 21
AB_RSRD = 52
AB_LDS = 3 * XN_SEG

def rts(k, cfg, n):
    if cfg and cfg.get('rt'): k(f"s_memrealtime s[{60 + 2 * n}:{61 + 2 * n}]")

AB_OW = 22; AB_OFA = 29
def role_aback(k, p_s, layer_s, fl_s, flags=True, cfg=None, ow=None, semi=False):
    L = lambda s: k.ref('ab_' + s)
    lab = lambda s: k.lab('ab_' + s)
    V_L16, V_RD, V_IO, V_FA, V_ONE = 1, 2, 3, 4, 5
    RES = 96; RING = 16; NR = 8; ACC = 48; OUT = 80; T = 88
    rsrd = f"s[{AB_RSRD}:{AB_RSRD+3}]"
    k.ptr(KA_AX, AB_RSRD)
    k(f"v_lshlrev_b32 v{V_L16}, 4, v0")
    k(f"s_lshl_b32 s{AB_CT}, s{p_s}, 2")
    k(f"s_add_u32 s{AB_CT}, s{AB_CT}, s{S_WAVE}")
    k(f"s_add_u32 s24, s{S_WS}, {A_X2}")
    k(f"s_addc_u32 s25, s{S_WS+1}, 0")
    k("s_waitcnt lgkmcnt(0)")
    k(f"s_cmp_eq_u32 s{layer_s}, 0")
    k(f"s_cselect_b32 s{AB_RSRD}, s{AB_RSRD}, s24")
    k(f"s_cselect_b32 s{AB_RSRD+1}, s{AB_RSRD+1}, s25")
    k(f"s_mov_b32 s{AB_RSRD+2}, {2048 * 1280}")
    k(f"s_mov_b32 s{AB_RSRD+3}, 0x00020000")
    k("v_and_b32 v6, 31, v0")
    k("v_lshrrev_b32 v7, 5, v0")
    k("v_mul_u32_u24 v6, 1280, v6")
    k(f"v_lshl_add_u32 v{V_IO}, v7, 4, v6")
    k(f"s_mul_i32 s{AB_RES}, s{AB_SEG}, {32 * 1280}")
    k(f"s_lshl_b32 s24, s{AB_CT}, 6")
    k(f"s_add_u32 s{AB_RES}, s{AB_RES}, s24")
    k(f"s_lshl_b32 s{AB_FLG}, s{AB_SEG}, 7")
    k(f"s_lshl_b32 s24, s{AB_CT}, 2")
    k(f"s_add_u32 s{AB_FLG}, s{AB_FLG}, s24")
    k(f"s_add_u32 s{AB_FLG}, s{AB_FLG}, {FL_AB}")
    k(f"v_mov_b32 v{V_ONE}, 1")
    k(f"v_mov_b32 v{V_FA}, 0")
    k(f"s_mul_i32 s{AB_DMA}, s{S_WAVE}, 10240")
    k(f"s_add_u32 s{AB_DMA}, s{AB_DMA}, {OA}")
    def dma_items(seg_s):
        it = [[f"s_min_u32 s24, s{seg_s}, 63", f"s_mul_i32 s24, s24, {XN_SEG}", f"s_add_u32 s24, s24, s{AB_DMA}",
               f"s_mul_i32 s25, s{S_WAVE}, 10240", f"s_add_u32 s25, s25, s{AB_NB}"]]
        for grp in range(3):
            for i in range(4 if grp < 2 else 2):
                p = []
                if i == 0:
                    if grp: p += ["s_add_u32 s24, s24, 4096", "s_add_u32 s25, s25, 4096"]
                    p += ["s_mov_b32 m0, s25", "s_nop 0"]
                p.append(f"buffer_load_dwordx4 v{V_L16}, {srd}, s24 offen offset:{i * 1024}{' sc1' if ow else ''} lds")
                it.append(p)
        return it
    def dma(seg_s):
        for p in dma_items(seg_s):
            for x in p: k(x)
    nw = [0]
    def owait(seg_s):
        if not ow: return
        nw[0] += 1
        sk = L(f'ow{nw[0]}'); lp = f'op{nw[0]}'
        k(f"s_cmp_lg_u32 s{S_WAVE}, 0")
        k(f"s_cbranch_scc1 {sk}")
        k(f"s_min_u32 s28, s{seg_s}, 63")
        k(f"s_cmp_gt_u32 s{AB_OW}, s28")
        k(f"s_cbranch_scc1 {sk}")
        lab(lp)
        if semi:
            k(f"buffer_load_dwordx4 v[116:119], v{V_L16}, {srd}, s{AB_OFA} offen sc1")
            k("s_waitcnt vmcnt(0)")
            k("v_min_u32 v116, v116, v117")
            k("v_min_u32 v118, v118, v119")
            k("v_min_u32 v114, v116, v118")
        else:
            k(f"buffer_load_dwordx2 v[114:115], v112, {srd}, s{AB_OFA} offen sc1")
            k("s_waitcnt vmcnt(0)")
            k("v_min_u32 v114, v114, v115")
        k("v_cmp_eq_u32 vcc, 0, v114")
        k("s_nop 1")
        k(f"s_ff1_i32_b64 s{AB_OW}, vcc")
        k(f"s_min_u32 s{AB_OW}, s{AB_OW}, 64")
        if semi: k(f"s_and_b32 s{AB_OW}, s{AB_OW}, 0x7c")
        k(f"s_sub_u32 s{ow[0]}, s{ow[0]}, 1")
        k(f"s_cbranch_scc1 {ow[1]}")
        k(f"s_cmp_gt_u32 s{AB_OW}, s28")
        k(f"s_cbranch_scc0 {L(lp)}")
        lab(f'ow{nw[0]}')
    def nextbuf(dst, src):
        k(f"s_add_u32 s{dst}, s{src}, {XN_SEG}")
        k(f"s_cmp_eq_u32 s{dst}, {AB_LDS}")
        k(f"s_cselect_b32 s{dst}, 0, s{dst}")
    def flag():
        if not flags: return
        k("s_mov_b64 exec, 1")
        k(f"s_add_u32 s26, s{fl_s}, s{AB_FLG}")
        k(f"buffer_store_dword v{V_ONE}, v{V_FA}, {srd}, s26 offen sc1")
        k("s_mov_b64 exec, -1")
        k(f"s_add_u32 s{AB_FLG}, s{AB_FLG}, 128")
    SC1 = " sc1" if flags else ""
    def resload(par, sreg):
        for j in range(2):
            k(f"buffer_load_dwordx4 {vr(RES + 8 * par + 4 * j, 4)}, v{V_IO}, {rsrd}, s{sreg} offen offset:{32 * j}")
    k(f"s_mov_b32 s{AB_NB}, 0")
    if not ow: dma(AB_SEG)
    resload(0, AB_RES)
    k(f"s_mul_i32 s24, s{AB_CT}, 40960")
    k(f"s_add_u32 s24, s24, {PWO}")
    for kap in range(40):
        if kap % 4 == 0 and kap: k("s_add_u32 s24, s24, 4096")
        if semi and kap < (cfg or {}).get('npf', 64): continue
        k(f"buffer_load_dwordx4 {ar(4 * kap, 4)}, v{V_L16}, {srd}, s24 offen offset:{(kap % 4) * 1024}")
    if ow:
        k(f"s_mov_b32 s{AB_OW}, 0")
        k(f"s_mov_b32 s{ow[0]}, {SPIN}")
        k(f"s_add_u32 s{AB_OFA}, s{fl_s}, {FL_OF}")
        k("v_lshlrev_b32 v112, 3, v0")
        owait(AB_SEG)
        k("s_barrier")
        dma(AB_SEG)
    k(f"s_mov_b32 s{AB_NB}, {XN_SEG}")
    k(f"s_add_u32 s23, s{AB_SEG}, 1")
    if ow:
        owait(23)
        k("s_barrier")
    dma(23)
    k(f"s_mov_b32 s{AB_NB}, {2 * XN_SEG}")
    k(f"s_mov_b32 s{AB_BUF}, 0")
    k("s_waitcnt vmcnt(10)" if ow else "s_waitcnt vmcnt(52)")
    rts(k, cfg, 0)
    def segment(par, early, wwait=False):
        if ow:
            k(f"s_add_u32 s23, s{AB_SEG}, 2")
            owait(23)
        k("s_barrier")
        if not early and par == 0: rts(k, cfg, 5)
        k(f"v_add_u32 v{V_RD}, s{AB_BUF}, v{V_L16}")
        PRE = NR - 2
        for r in range(PRE): k(f"ds_read_b128 {vr(RING + 4 * r, 4)}, v{V_RD} offset:{r * 1024}")
        k(f"s_add_u32 s27, s{AB_RES}, {32 * 1280}")
        k(f"s_cmp_ge_u32 s{AB_SEG}, 63")
        k(f"s_cselect_b32 s27, s{AB_RES}, s27")
        resload(par ^ 1, 27)
        k(f"s_add_u32 s23, s{AB_SEG}, 2")
        items = dma_items(23)
        for x in items[0]: k(x)
        nextbuf(AB_NB, AB_NB)
        pieces = {1 + 3 * n: p for n, p in enumerate(items[1:])}
        younger = 10 + 2
        for kap in range(40):
            nk = kap + PRE
            if nk < 40:
                k(f"ds_read_b128 {vr(RING + 4 * (nk % NR), 4)}, v{V_RD} offset:{nk * 1024}")
            if wwait: k(f"s_waitcnt vmcnt({39 - kap + younger}) lgkmcnt({min(PRE, 39 - kap)})")
            else: k(f"s_waitcnt lgkmcnt({min(PRE, 39 - kap)})")
            d = vr(ACC + 16 * (kap & 1), 16)
            k(f"v_mfma_f32_32x32x16_bf16 {d}, {ar(4 * kap, 4)}, {vr(RING + 4 * (kap % NR), 4)}, {'0' if kap < 2 else d}")
            if kap in pieces:
                for x in pieces[kap]: k(x)
                younger += 1
        if not early and par == 0: rts(k, cfg, 6)
        k(f"s_waitcnt vmcnt({15 if flags else 14})" if not early else "s_waitcnt vmcnt(12)")
        if not early and par == 0: rts(k, cfg, 7)
        k("s_nop 7"); k("s_nop 3")
        for r in range(16): k(f"v_add_f32 v{ACC + r}, v{ACC + r}, v{ACC + 16 + r}")
        k(f"s_add_u32 s26, s{AB_RES}, {A_X1}")
        for j in range(2):
            o = OUT + 4 * j
            for q in range(2):
                k(f"v_cvt_pk_bf16_f32 v{o + 2 * q}, v{ACC + 8 * j + 4 * q}, v{ACC + 8 * j + 4 * q + 1}")
                k(f"v_cvt_pk_bf16_f32 v{o + 2 * q + 1}, v{ACC + 8 * j + 4 * q + 2}, v{ACC + 8 * j + 4 * q + 3}")
            k("s_nop 1")
            k(f"v_permlane32_swap_b32 v{o}, v{o + 2}")
            k(f"v_permlane32_swap_b32 v{o + 1}, v{o + 3}")
            k("s_nop 1")
            for r in range(4):
                a, b, t0, t1 = T + 4 * (r & 1), T + 4 * (r & 1) + 1, T + 4 * (r & 1) + 2, T + 4 * (r & 1) + 3
                k(f"v_lshlrev_b32 v{a}, 16, v{o + r}")
                k(f"v_and_b32 v{b}, 0xffff0000, v{o + r}")
                k(f"v_lshlrev_b32 v{t0}, 16, v{RES + 8 * par + 4 * j + r}")
                k(f"v_and_b32 v{t1}, 0xffff0000, v{RES + 8 * par + 4 * j + r}")
                k(f"v_add_f32 v{a}, v{a}, v{t0}")
                k(f"v_add_f32 v{b}, v{b}, v{t1}")
                k(f"v_cvt_pk_bf16_f32 v{o + r}, v{a}, v{b}")
            k(f"buffer_store_dwordx4 {vr(o, 4)}, v{V_IO}, {srd}, s26 offen offset:{32 * j}{SC1}")
        if flags:
            if not early and par == 0: rts(k, cfg, 2)
            k("s_waitcnt vmcnt(0)" if early else "s_waitcnt vmcnt(15)")
            if not early and par == 0: rts(k, cfg, 3)
            flag()
        k(f"s_add_u32 s{AB_RES}, s{AB_RES}, {32 * 1280}")
        nextbuf(AB_BUF, AB_BUF)
        k(f"s_add_u32 s{AB_SEG}, s{AB_SEG}, 1")
    NEARLY = (cfg or {}).get('nearly', 3) if flags else 1
    for e in range(NEARLY):
        segment(e & 1, True, e == 0 and not ow)
        if e < 1: rts(k, cfg, 1 + e)
        k(f"s_cmp_ge_u32 s{AB_SEG}, s{AB_END}")
        k(f"s_cbranch_scc1 {L('fin')}")
    def seg_late(par):
        segment(par, False)
    if flags: k(f"s_sub_u32 s{AB_FLG}, s{AB_FLG}, 128")
    lab('loop')
    par0 = NEARLY & 1
    seg_late(par0)
    k(f"s_cmp_ge_u32 s{AB_SEG}, s{AB_END}")
    k(f"s_cbranch_scc1 {L('fin')}")
    seg_late(par0 ^ 1)
    k(f"s_cmp_lt_u32 s{AB_SEG}, s{AB_END}")
    k(f"s_cbranch_scc1 {L('loop')}")
    lab('fin')
    k("s_waitcnt vmcnt(0) lgkmcnt(0)")
    flag()
    rts(k, cfg, 4)
    k("s_barrier")

def role_lnw(k, first_s, nstride, fl_s, spin_s, bail, wait=True, cfg=None):
    L = lambda s: k.ref('ln_' + s)
    lab = lambda s: k.lab('ln_' + s)
    SEG = 14; ONE = 16
    V_SRC, V_DST, V_FA, V_ONE = 1, 2, 3, 4
    X = 16; U = 64; O = 72; ST = 8
    k(f"s_mov_b32 s{SEG}, s{first_s}")
    k(f"s_mov_b32 s{ONE}, 0x3f803f80")
    k("v_lshrrev_b32 v6, 3, v0")
    k("v_and_b32 v7, 7, v0")
    k(f"v_mul_u32_u24 v{V_SRC}, 1280, v6")
    k(f"v_lshl_add_u32 v{V_SRC}, v7, 5, v{V_SRC}")
    k(f"v_lshlrev_b32 v{V_DST}, 10, v7")
    k(f"v_lshl_add_u32 v{V_DST}, v6, 4, v{V_DST}")
    k(f"v_lshlrev_b32 v{V_FA}, 2, v0")
    k(f"v_mov_b32 v{V_ONE}, 1")
    lab('seg')
    if wait:
        k(f"s_lshl_b32 s17, s{SEG}, 7")
        k(f"s_add_u32 s17, s17, s{fl_s}")
        k(f"s_add_u32 s17, s17, {FL_AB}")
        k("s_mov_b64 exec, 0xfffff")
        lab('poll')
        k(f"buffer_load_dword v5, v{V_FA}, {srd}, s17 offen sc1")
        k("s_waitcnt vmcnt(0)")
        k("v_cmp_eq_u32 vcc, 0, v5")
        k(f"s_sub_u32 s{spin_s}, s{spin_s}, 1")
        k(f"s_cbranch_scc1 {bail}")
        k(f"s_cbranch_vccnz {L('poll')}")
        k("s_mov_b64 exec, -1")
        if cfg and cfg.get('rt'):
            k(f"s_cmp_ge_u32 s{SEG}, 4"); k(f"s_cbranch_scc1 {L('rt0')}"); rts(k, cfg, 0); lab('rt0')
    k(f"s_lshl_b32 s18, s{SEG}, 5")
    k(f"s_lshl_b32 s19, s{S_WAVE}, 3")
    k("s_add_u32 s18, s18, s19")
    k("s_mul_i32 s18, s18, 1280")
    k(f"s_add_u32 s18, s18, {A_X1}")
    SC1 = " sc1" if wait else ""
    for i in range(5):
        for hlf in range(2):
            k(f"buffer_load_dwordx4 {vr(X + 8 * i + 4 * hlf, 4)}, v{V_SRC}, {srd}, s18 offen offset:{i * 256 + hlf * 16}{SC1}")
    for r in range(4): k(f"v_mov_b32 v{ST + r}, 0")
    for i in range(5):
        for hlf in range(2):
            k(f"s_waitcnt vmcnt({9 - 2 * i - hlf})")
            for r in range(4):
                x = X + 8 * i + 4 * hlf + r
                k(f"v_dot2c_f32_bf16 v{ST + (r & 1)}, s{ONE}, v{x}")
                k(f"v_dot2c_f32_bf16 v{ST + 2 + (r & 1)}, v{x}, v{x}")
    k("s_nop 3")
    k(f"v_add_f32 v{ST}, v{ST}, v{ST+1}")
    k(f"v_add_f32 v{ST+2}, v{ST+2}, v{ST+3}")
    for ctl in ("quad_perm:[1,0,3,2]", "quad_perm:[2,3,0,1]", "row_half_mirror"):
        k("s_nop 1")
        k(f"v_add_f32_dpp v{ST}, v{ST}, v{ST} {ctl} row_mask:0xf bank_mask:0xf")
        k(f"v_add_f32_dpp v{ST+2}, v{ST+2}, v{ST+2} {ctl} row_mask:0xf bank_mask:0xf")
    k(f"v_mul_f32 v{ST}, {hexf(1.0/640)}, v{ST}")
    k(f"v_mul_f32 v{ST+1}, v{ST}, v{ST}")
    k(f"v_mul_f32 v{ST+2}, {hexf(1.0/640)}, v{ST+2}")
    k(f"v_sub_f32 v{ST+2}, v{ST+2}, v{ST+1}")
    k(f"v_max_f32 v{ST+2}, 0, v{ST+2}")
    k(f"v_add_f32 v{ST+2}, 0x3727c5ac, v{ST+2}")
    k(f"v_rsq_f32 v{ST+2}, v{ST+2}")
    k("s_nop 0")
    k(f"v_mul_f32 v{ST}, v{ST}, v{ST+2}")
    k(f"v_sub_f32 v{ST}, 0, v{ST}")
    k(f"s_mul_i32 s18, s{SEG}, {XN_SEG}")
    k(f"s_lshl_b32 s19, s{S_WAVE}, 7")
    k("s_add_u32 s18, s18, s19")
    k(f"s_add_u32 s18, s18, {XN}")
    POS = [0, 2, 4, 6, 1, 3, 5, 7]
    for i in range(5):
        o = O + 8 * (i & 1)
        for d in range(8):
            x = X + 8 * i + d; u = U + 2 * (d & 3)
            k(f"v_lshlrev_b32 v{u}, 16, v{x}")
            k(f"v_and_b32 v{u+1}, 0xffff0000, v{x}")
            k(f"v_fma_f32 v{u}, v{u}, v{ST+2}, v{ST}")
            k(f"v_fma_f32 v{u+1}, v{u+1}, v{ST+2}, v{ST}")
            k(f"v_cvt_pk_bf16_f32 v{o + POS[d]}, v{u}, v{u+1}")
        for b in range(2):
            k(f"buffer_store_dwordx4 {vr(o + 4 * b, 4)}, v{V_DST}, {srd}, s18 offen offset:{b * 512}{SC1}")
        if i < 4: k("s_add_u32 s18, s18, 8192")
    if wait:
        k("s_waitcnt vmcnt(0)")
        k(f"s_lshl_b32 s17, s{SEG}, 4")
        k(f"s_lshl_b32 s19, s{S_WAVE}, 2")
        k("s_add_u32 s17, s17, s19")
        k(f"s_add_u32 s17, s17, s{fl_s}")
        k(f"s_add_u32 s17, s17, {FL_LN}")
        k("v_mov_b32 v5, 0")
        k("s_mov_b64 exec, 1")
        k(f"buffer_store_dword v{V_ONE}, v5, {srd}, s17 offen sc1")
        k("s_mov_b64 exec, -1")
        if cfg and cfg.get('rt'):
            k(f"s_cmp_ge_u32 s{SEG}, 4"); k(f"s_cbranch_scc1 {L('rt1')}"); rts(k, cfg, 1); lab('rt1')
            rts(k, cfg, 2)
    k(f"s_add_u32 s{SEG}, s{SEG}, {nstride}")
    k(f"s_cmp_lt_u32 s{SEG}, 64")
    k(f"s_cbranch_scc1 {L('seg')}")

def build_aback_test(name):
    k = K(name, vgpr=128, sgpr=64, agpr=160)
    k("s_cmp_ge_u32 s2, 160")
    k(f"s_cbranch_scc1 {k.ref('end')}")
    prologue(k)
    k("s_mov_b32 s49, %d" % (0 if name.endswith('1') else 1))
    k("s_mul_i32 s28, s2, 13108"); k("s_lshr_b32 s28, s28, 16")
    k("s_mul_i32 s29, s28, 5"); k("s_sub_u32 s29, s2, s29")
    k(f"s_lshl_b32 s{AB_SEG}, s28, 1")
    k(f"s_add_u32 s{AB_END}, s{AB_SEG}, 2")
    role_aback(k, 29, 49, 48, flags=False)
    k.lab('end')
    return k, 160, AB_LDS

def build_lnw_test(name):
    k = K(name, vgpr=96, sgpr=64)
    k("s_cmp_ge_u32 s2, 64")
    k(f"s_cbranch_scc1 {k.ref('end')}")
    prologue(k)
    role_lnw(k, 2, 64, 48, 15, k.ref('end'), wait=False)
    k.lab('end')
    return k, 64

def role_mem0(k, slot_s, far_s=None):
    k.ptr(KA_MEM0, 24)
    k(f"s_lshl_b32 s26, s{S_WAVE}, 6")
    k("v_add_u32 v1, s26, v0")
    k("s_waitcnt lgkmcnt(0)")
    k.srd(28, 24, 8 * 640 * 2)
    for it in range(3):
        k(f"v_add_u32 v2, {256 * it}, v1")
        k("v_and_b32 v3, 7, v2")
        k("v_mul_u32_u24 v3, 1280, v3")
        k("v_lshrrev_b32 v4, 3, v2")
        k("v_lshl_add_u32 v3, v4, 4, v3")
        k("v_lshlrev_b32 v5, 4, v2")
        k(f"v_add_u32 v5, {M_LOG}, v5")
        k("v_lshrrev_b32 v6, 13, v5")
        k("v_lshlrev_b32 v6, 14, v6")
        k("v_and_b32 v5, 8191, v5")
        k("v_add_u32 v5, v5, v6")
        k("v_cmp_gt_u32 vcc, 640, v2")
        k("s_and_saveexec_b64 s[32:33], vcc")
        sk = k.ref(f'm0s{it}')
        k(f"s_cbranch_execz {sk}")
        k("buffer_load_dwordx4 v[8:11], v3, s[28:31], 0 offen")
        k("s_waitcnt vmcnt(0)")
        k(f"buffer_store_dwordx4 v[8:11], v5, {srd}, s{slot_s} offen sc1")
        if far_s is not None:
            k(f"s_add_u32 s34, s{slot_s}, s{far_s}")
            k(f"buffer_store_dwordx4 v[8:11], v5, {srd}, s34 offen sc1")
        k.lab(f'm0s{it}')
        k("s_mov_b64 exec, s[32:33]")
    k("s_waitcnt vmcnt(0)")
```

```python
import sys, math
sys.path.insert(0, "/code"); sys.path.insert(0, "tools")
from asmk import *
from lay import *

NSTEP = 64
SPIN = 400000
CSC = (192 ** -0.5) * math.log2(math.e)

class LQ:
    def __init__(self, k): self.k = k; self.q = []
    def ds(self, ins, tag=None):
        self.k(ins); self.q.append(tag)
        assert len(self.q) <= 15, "too many outstanding LDS ops"
    def wait(self, tag):
        idx = [i for i, t in enumerate(self.q) if t == tag]
        if not idx: return
        n = len(self.q) - 1 - idx[-1]
        self.k(f"s_waitcnt lgkmcnt({n})"); self.q = self.q[idx[-1] + 1:]
    def all(self):
        self.k("s_waitcnt lgkmcnt(0)"); self.q = []

def vr(b, n): return f"v[{b}:{b+n-1}]" if n > 1 else f"v{b}"
def ar(b, n): return f"a[{b}:{b+n-1}]"

def check_valid(k, regs, tmp):
    regs = list(regs)
    k(f"v_max3_u32 v{tmp}, v{regs[0]}, v{regs[1]}, v{regs[2]}")
    rest = regs[3:]
    while len(rest) >= 2:
        k(f"v_max3_u32 v{tmp}, v{tmp}, v{rest[0]}, v{rest[1]}"); rest = rest[2:]
    if rest: k(f"v_max_u32 v{tmp}, v{tmp}, v{rest[0]}")
    k(f"v_cmp_eq_u32 vcc, -1, v{tmp}")

S_WS = 4
SRD = 8
S_ROLE = 12; S_WAVE = 13; S_STEP = 14; S_SPIN = 15
S_EB0 = 16; S_EB1 = 17
S_SB = 18
S_SBN = 19
S_T = 20
S_M8 = 40
S_M2 = 42
S_KX = 44; S_KM = 45; S_Z = 46
S_GK = 47
S_FL = 48
S_LAYER = 49
S_ST = 50
S_OSRD = 84
S_FD0 = 82; S_FD1 = 83
S_SBF = 88; S_SBNF = 89
srd = f"s[{SRD}:{SRD+3}]"

OWN = [[0, 1, 2], [3, 4, 5], [6, 7], [8, 9]]

def slot_base(k, dst, step_s, tmp, far=None):
    k(f"s_cmp_lt_u32 s{step_s}, 32")
    k(f"s_cselect_b32 s{dst}, s{S_EB0}, s{S_EB1}")
    if far is not None: k(f"s_cselect_b32 s{far}, s{S_FD0}, s{S_FD1}")
    k(f"s_and_b32 s{tmp}, s{step_s}, 31")
    k(f"s_lshl_b32 s{tmp}, s{tmp}, 16")
    k(f"s_add_u32 s{dst}, s{dst}, s{tmp}")
    if far is not None: k(f"s_add_u32 s{far}, s{far}, s{dst}")

def stamp(k, cfg, n, real=False):
    if cfg.get('stamp'):
        k(f"s_mem{'real' if real else ''}time s[{S_ST+2*n}:{S_ST+2*n+1}]")

def stamp_flush(k, cfg, nst, base_off):
    if not cfg.get('stamp'): return
    k("s_waitcnt lgkmcnt(0)")
    sk = k.uniq('stk')
    k(f"s_cmp_lg_u32 s{S_ROLE}, {cfg.get('stamp_role', 0)}")
    k(f"s_cbranch_scc1 {k.ref(sk)}")
    k("s_mov_b64 s[30:31], exec")
    k("s_mov_b64 exec, 1")
    k(f"s_lshl_b32 s32, s{S_STEP}, 6")
    k(f"s_add_u32 s32, s32, {base_off}")
    k("v_mov_b32 v253, 0")
    for n in range(nst):
        k(f"v_mov_b32 v254, s{S_ST+2*n}")
        k(f"buffer_store_dword v254, v253, {srd}, s32 offen offset:{4*n}")
        k("s_nop 1")
    k("s_mov_b64 exec, s[30:31]")
    k.lab(sk)

def rt(k, cfg, n):
    if cfg.get('rt'):
        k(f"s_memrealtime s[{S_ST+2*n}:{S_ST+2*n+1}]")

def rt_flush(k, cfg, rolebase):
    if not cfg.get('rt'): return
    k("s_waitcnt lgkmcnt(0)")
    k("s_mov_b64 exec, 1")
    k(f"s_add_u32 s32, s{S_ROLE}, {rolebase}")
    k("s_lshl_b32 s32, s32, 6")
    k(f"s_add_u32 s32, s32, s{S_STEP}")
    k(f"s_lshl_b32 s32, s32, {5 if cfg.get('rt2') else 4}")
    k(f"s_add_u32 s32, s32, {cfg['rt']}")
    k(f"s_mul_i32 s33, s{S_LAYER}, 0x200000")
    k("s_add_u32 s32, s32, s33")
    k("v_mov_b32 v253, 0")
    for n in range(8 if cfg.get('rt2') else 3):
        k(f"v_mov_b32 v254, s{S_ST+2*n}")
        k(f"buffer_store_dword v254, v253, {srd}, s32 offen offset:{4*n}")
        k("s_nop 1")
    k("s_mov_b64 exec, -1")

def spin_check(k, bail):
    k(f"s_sub_u32 s{S_SPIN}, s{S_SPIN}, 1")
    k(f"s_cbranch_scc1 {bail}")

def wait_progress(k, cfg, tag, step_s, voff, nl, vt):
    if not cfg.get('ovl'): return
    ok = k.ref(tag + '_ok'); lp = tag + '_lp'
    k(f"s_cmp_gt_u32 s{S_GK}, s{step_s}")
    k(f"s_cbranch_scc1 {ok}")
    k.lab(lp)
    k(f"buffer_load_dword v{vt}, v{voff}, {srd}, s{S_FL} offen sc1")
    k("s_waitcnt vmcnt(0)")
    k(f"v_readlane_b32 s{S_GK}, v{vt}, 0")
    if nl == 2:
        k(f"v_readlane_b32 s{S_T+9}, v{vt}, 1")
        k("s_nop 0")
        k(f"s_min_u32 s{S_GK}, s{S_GK}, s{S_T+9}")
    else:
        k("s_nop 0")
    spin_check(k, k.ref('bail'))
    k(f"s_cmp_gt_u32 s{S_GK}, s{step_s}")
    k(f"s_cbranch_scc0 {k.ref(lp)}")
    k.lab(tag + '_ok')

def flag_store(k, cfg, off_s, val_s, va, vb):
    k("s_mov_b64 exec, 1")
    k(f"v_mov_b32 v{va}, s{off_s}")
    k(f"v_mov_b32 v{vb}, s{val_s}")
    k(f"buffer_store_dword v{vb}, v{va}, {srd}, s{S_FL} offen sc1")
    k("s_mov_b64 exec, -1")


S_MK = 69
S_PM = 68

def poll_cont(k, tag, loads, regs, consume, tmp, dummy, bail):
    n = len(loads)
    for u in range(n): loads[u]()
    k(f"s_mov_b32 s{S_PM}, 0")
    k.lab(f"{tag}_lp")
    for u in range(n):
        k(f"s_waitcnt vmcnt({n - 1})")
        k(f"s_bitcmp1_b32 s{S_PM}, {u}")
        k(f"s_cbranch_scc1 {k.ref(f'{tag}_d{u}')}")
        check_valid(k, regs[u], tmp)
        k(f"s_bitset1_b32 s{S_PM}, {u}")
        k(f"s_cbranch_vccnz {k.ref(f'{tag}_r{u}')}")
        consume[u]()
        k(f"s_cmp_eq_u32 s{S_PM}, {(1 << n) - 1}")
        k(f"s_cbranch_scc1 {k.ref(f'{tag}_x')}")
        k.lab(f"{tag}_d{u}")
        k(f"buffer_load_dword v{dummy}, off, {srd}, s{S_SB} sc1")
        k(f"s_branch {k.ref(f'{tag}_n{u}')}")
        k.lab(f"{tag}_r{u}")
        k(f"s_bitset0_b32 s{S_PM}, {u}")
        loads[u]()
        k.lab(f"{tag}_n{u}")
    spin_check(k, bail)
    k(f"s_branch {k.ref(f'{tag}_lp')}")
    k.lab(f"{tag}_x")

PL_NL = 15
PL_WL = 0
PL_MEMI = 4 * PL_NL * 2048
PL_QI = PL_MEMI + 10240
PL_STR = 400
PL_KI = PL_QI + 8 * PL_STR
PL_SP = PL_KI + 8 * PL_STR
PL_STG = PL_SP + 4096
PL_END = PL_STG + 1024

V_L16 = 1; V_IDX = 2; V_IW = 3; V_QR = 4; V_KR = 5; V_SPR = 6; V_PX = 7; V_PM = 8; V_KXO = 9
V_KML = 10; V_KMG = 11; V_MASKF = 12; V_WLA = 13; V_MIA = 14; V_SPW = 15
V_GF = 255; V_T0 = 253; V_T1 = 254
AF = 16; PD = 56; PDX = 80; PDM = 84; QF = 88; KXF = 100; TB = 116; PVW = 148

P2_NL = 16
P2_MEMI = 4 * P2_NL * 2048
P2_QI = P2_MEMI + 10240
P2_KI = P2_QI + 8 * PL_STR
P2_ST = P2_KI + 8 * PL_STR
P2_END = P2_ST + 2048
P2_KXF = 100; P2_TB = 124; P2_PVW = 156
V_MG = 12; V_ST8 = 6

def p_plan2(w, cfg):
    own = OWN[w]; rest = [ks for ks in range(10) if ks not in own]
    seq = [(T, ks) for ks in own for T in (0, 1, 2)] + [(T, ks) for T in (0, 1, 2) for ks in rest]
    seq += [(T, ks) for T in (3, 4, 5) for ks in range(10)]
    ldspos = cfg.get('p2_lds', list(range(4, 28, 2)) + [31, 35, 39, 46])
    assert len(ldspos) == P2_NL
    where = {}
    regops = [i for i in range(60) if i not in ldspos]
    for n, i in enumerate(regops):
        where[seq[i]] = ('a', 8 * n) if n < 32 else ('v', P2_PVW + 8 * (n - 32))
    assert P2_PVW + 8 * (len(regops) - 32) <= 252
    for n, i in enumerate(ldspos): where[seq[i]] = ('l', n)
    return own, rest, seq, ldspos, where

def p_plan(w, cfg=None):
    if cfg and cfg.get('p2'): return p_plan2(w, cfg)
    own = OWN[w]; rest = [ks for ks in range(10) if ks not in own]
    order1 = own + rest
    seq = [(T, ks) for ks in order1 for T in (0, 1, 2)] + [(T, ks) for T in (3, 4, 5) for ks in range(10)]
    ldspos = list(range(9, 30, 2)) + [44, 48, 52, 56]
    assert len(ldspos) == PL_NL
    where = {}
    regops = [i for i in range(60) if i not in ldspos]
    for n, i in enumerate(regops):
        where[seq[i]] = ('a', 8 * n) if n < 32 else ('v', PVW + 8 * (n - 32))
    assert PVW + 8 * (len(regops) - 32) <= 254
    for n, i in enumerate(ldspos): where[seq[i]] = ('l', n)
    return own, rest, seq, ldspos, where

def p_setup_lanes(k):
    k(f"v_lshlrev_b32 v{V_L16}, 4, v0")
    k("v_and_b32 v16, 8, v0")
    k("v_cmp_eq_u32 vcc, 0, v16")
    k("v_mov_b32 v17, 0xeeeeeeee")
    k("v_mov_b32 v18, 0x44444444")
    k(f"v_cndmask_b32 v{V_IDX}, v17, v18, vcc")

def gen_p_wave(k, w, cfg):
    own, rest, seq, ldspos, where = p_plan(w, cfg)
    L = lambda s: k.ref(f"p{w}_{s}")
    lab = lambda s: k.lab(f"p{w}_{s}")
    bail = k.ref('bail')
    lq = LQ(k)
    lab('start')
    k("v_lshrrev_b32 v16, 4, v0")
    k("v_and_b32 v17, 15, v0")
    k("v_and_b32 v18, 1, v16")
    k("v_lshlrev_b32 v18, 2, v18")
    k("v_lshrrev_b32 v19, 1, v16")
    k("v_lshl_add_u32 v18, v19, 1, v18")
    k(f"v_mul_u32_u24 v18, {PL_STR}, v18")
    k("v_lshl_add_u32 v18, v17, 1, v18")
    k(f"v_add_u32 v{V_IW}, {PL_QI + 96 * w}, v18")
    k("v_and_b32 v18, 7, v0")
    k(f"v_mul_u32_u24 v18, {PL_STR}, v18")
    k("v_lshrrev_b32 v19, 3, v0")
    k("v_lshl_add_u32 v18, v19, 4, v18")
    k(f"v_add_u32 v{V_QR}, {PL_QI}, v18")
    k("v_and_b32 v18, 7, v0")
    k(f"v_mul_u32_u24 v18, {PL_STR}, v18")
    k("v_lshl_add_u32 v18, v16, 5, v18")
    k(f"v_add_u32 v{V_KR}, {PL_KI}, v18")
    k("v_lshrrev_b32 v18, 1, v16")
    k("v_lshlrev_b32 v18, 10, v18")
    k("v_and_b32 v19, 31, v0")
    k("v_lshl_add_u32 v18, v19, 4, v18")
    k(f"v_add_u32 v{V_SPR}, {PL_SP + 4 * w}, v18")
    k(f"v_add_u32 v{V_SPW}, {PL_SP + 1024 * w}, v{V_L16}")
    k("v_lshrrev_b32 v18, 1, v16")
    k("v_lshlrev_b32 v18, 1, v18")
    k("v_lshrrev_b32 v19, 3, v17")
    k("v_add3_u32 v18, v18, v19, 1")
    k("v_lshrrev_b32 v19, 1, v18")
    k("v_lshlrev_b32 v19, 14, v19")
    k("v_and_b32 v18, 1, v18")
    k("v_lshl_add_u32 v18, v18, 12, v19")
    k("v_and_b32 v19, 1, v16")
    k("v_lshlrev_b32 v19, 4, v19")
    k(f"v_add_u32 v19, {32 * w}, v19")
    k(f"s_lshl_b32 s{S_T}, s{S_ROLE}, 7")
    k(f"v_add_u32 v{V_PM}, s{S_T}, v19")
    k(f"v_add_u32 v{V_PX}, v{V_PM}, v18")
    if cfg.get('pgather'):
        k("v_lshrrev_b32 v18, 1, v16")
        k("v_lshlrev_b32 v18, 1, v18")
        k("v_lshrrev_b32 v20, 3, v17")
        k("v_add3_u32 v18, v18, v20, 1")
        k(f"v_add_u32 v{V_PM}, {PL_STG}, v19")
        k(f"v_lshl_add_u32 v{V_PX}, v18, 7, v{V_PM}")
        k("v_lshrrev_b32 v18, 3, v0")
        k("v_lshrrev_b32 v19, 1, v18")
        k("v_lshlrev_b32 v19, 14, v19")
        k("v_and_b32 v18, 1, v18")
        k("v_lshl_add_u32 v18, v18, 12, v19")
        k("v_and_b32 v19, 7, v0")
        k("v_lshl_add_u32 v18, v19, 4, v18")
        k(f"v_add_u32 v252, s{S_T}, v18")
    k(f"v_lshlrev_b32 v18, 4, v17")
    k("v_lshl_add_u32 v18, v16, 10, v18")
    k(f"v_add_u32 v{V_KXO}, {16 * (w & 1) * 16}, v18")
    k(f"v_add_u32 v18, {64 * w}, v0")
    k("v_mul_u32_u24 v19, 2731, v18")
    k("v_lshrrev_b32 v19, 16, v19")
    k("v_mul_u32_u24 v20, 24, v19")
    k("v_sub_u32 v20, v18, v20")
    k(f"v_mul_u32_u24 v21, {PL_STR}, v19")
    k("v_lshl_add_u32 v21, v20, 4, v21")
    k(f"v_add_u32 v{V_KML}, {PL_KI}, v21")
    k("v_lshlrev_b32 v21, 4, v19")
    k(f"v_lshl_add_u32 v{V_KMG}, v20, 7, v21")
    k("v_and_b32 v18, 0x28, v0")
    k("v_cmp_eq_u32 vcc, 0, v18")
    k("v_mov_b32 v18, 1.0")
    k("v_mov_b32 v19, 0")
    k(f"v_cndmask_b32 v{V_MASKF}, v19, v18, vcc")
    k(f"v_add_u32 v{V_WLA}, {PL_WL + w * PL_NL * 2048}, v{V_L16}")
    k(f"v_add_u32 v{V_MIA}, {PL_MEMI}, v{V_L16}")
    k(f"s_mul_i32 s{S_KX}, s{S_ROLE}, {KX_SH}")
    k(f"s_add_u32 s{S_KX}, s{S_KX}, {KX}")
    k(f"s_mul_i32 s{S_KM}, s{S_ROLE}, {KM_SH}")
    k(f"s_add_u32 s{S_KM}, s{S_KM}, {KM}")
    if cfg.get('ovl'):
        k(f"s_mul_i32 s{S_T}, s{S_ROLE}, 6")
        k(f"s_add_u32 s{S_T+1}, s{S_T}, 5")
        k(f"s_lshr_b32 s{S_T}, s{S_T}, 3")
        k(f"s_lshr_b32 s{S_T+1}, s{S_T+1}, 3")
        k(f"s_add_u32 s{S_T}, s{S_T}, 80"); k(f"s_add_u32 s{S_T+1}, s{S_T+1}, 80")
        k(f"s_lshl_b32 s{S_T}, s{S_T}, 7"); k(f"s_lshl_b32 s{S_T+1}, s{S_T+1}, 7")
        k(f"v_mov_b32 v{V_GF}, s{S_T+1}")
        k(f"v_mov_b32 v{V_T0}, s{S_T}")
        k("v_cmp_eq_u32 vcc, 0, v0")
        k("s_nop 1")
        k(f"v_cndmask_b32 v{V_GF}, v{V_GF}, v{V_T0}, vcc")
        k(f"s_mov_b32 s{S_GK}, 0")
    k(f"s_mul_i32 s{S_T}, s{S_ROLE}, 491520")
    k(f"s_add_u32 s{S_T}, s{S_T}, {WP + w * 122880}")
    WIN = cfg.get('winp', cfg.get('win'))
    nld = [0]
    def wload(dst, T, ks):
        idx = T * 10 + ks
        k(f"s_add_u32 s{S_T+1}, s{S_T}, {idx * 2048}")
        for hi in range(2):
            k(f"buffer_load_dwordx4 {dst(hi)}, v{V_L16}, {srd}, s{S_T+1} offen offset:{hi*1024}")
            nld[0] += 1
            if WIN and nld[0] > WIN: k(f"s_waitcnt vmcnt({WIN})")
    lops = [(op, wh[1]) for op, wh in where.items() if wh[0] == 'l']
    SEMI = cfg.get('na') == 4
    rops = [(op, wh) for op, wh in where.items() if wh[0] != 'l' and not (SEMI and wh[0] == 'a' and wh[1] // 8 < cfg.get('npf', 64) // 2)]
    for (T, ks), slot in lops:
        wload(lambda hi: vr(16 + 8 * slot + 4 * hi, 4), T, ks)
    nre = 0
    for (T, ks), wh in rops[:16]:
        wload((lambda hi, wh=wh: (ar if wh[0] == 'a' else vr)(wh[1] + 4 * hi, 4)), T, ks)
    k(f"s_waitcnt vmcnt({2 * len(rops[:16])})")
    for (T, ks), slot in lops:
        for hi in range(2):
            k(f"ds_write_b128 v{V_WLA}, {vr(16 + 8 * slot + 4 * hi, 4)} offset:{slot * 2048 + hi * 1024}")
    for (T, ks), wh in rops[16:]:
        wload((lambda hi, wh=wh: (ar if wh[0] == 'a' else vr)(wh[1] + 4 * hi, 4)), T, ks)
    k("s_waitcnt lgkmcnt(0)")
    kxset = [0, 1] if w < 2 else [2]
    SC1 = " sc1" if cfg.get('ovl') else ""
    npf = [0]
    def kx_prefetch(step_s):
        npf[0] += 1
        wait_progress(k, cfg, f"p{w}_gw{npf[0]}", step_s, V_GF, 2, V_T0)
        k(f"s_mul_i32 s{S_T}, s{step_s}, {32 * KX_SH}")
        k(f"s_add_u32 s{S_T}, s{S_T}, s{S_KX}")
        for u, ks in enumerate(kxset):
            k(f"s_add_u32 s{S_T+1}, s{S_T}, {ks * 4096}")
            for hi in range(2):
                k(f"buffer_load_dwordx4 {vr(KXF + 8 * u + 4 * hi, 4)}, v{V_KXO}, {srd}, s{S_T+1} offen offset:{hi * 512}{SC1}")
    def tb_read(n):
        for hi in range(2):
            lq.ds(f"ds_read_b128 {vr(TB + 8 * (n % 4) + 4 * hi, 4)}, v{V_WLA} offset:{n * 2048 + hi * 1024}", ('tb', n))
    def zero_d():
        for r in range(PD, PD + 32): k(f"v_mov_b32 v{r}, 0")
    k(f"s_mov_b32 s{S_STEP}, 0")
    kx_prefetch(S_STEP)
    zero_d()
    for n in range(4): tb_read(n)
    lq.all()
    lab('step')
    slot_base(k, S_SB, S_STEP, S_T)
    for u, ks in enumerate(own):
        k(f"s_add_u32 s{S_T+2+u}, s{S_SB}, {physmap(M_LOG + 1024 * ks)}")
    if cfg.get('mark') is not None and w == 0:
        k(f"s_lshr_b32 s{S_MK}, s{S_ROLE}, 1")
        k(f"s_lshl_b32 s{S_MK}, s{S_MK}, 7")
        k(f"s_and_b32 s{S_T}, s{S_ROLE}, 1")
        k(f"s_lshl_b32 s{S_T}, s{S_T}, 2")
        k(f"s_add_u32 s{S_MK}, s{S_MK}, s{S_T}")
        k(f"s_add_u32 s{S_MK}, s{S_MK}, s{S_SB}")
        k(f"s_add_u32 s{S_MK}, s{S_MK}, {physmap(MARK_LOG)}")
    stamp(k, cfg, 0)
    if cfg.get('cpoll', 0):
        poll_cont(k, f"p{w}_mp",
                  [lambda u=u, ks=ks: k(f"buffer_load_dwordx4 {vr(AF + 4 * ks, 4)}, v{V_L16}, {srd}, s{S_T+2+u} offen sc1") for u, ks in enumerate(own)],
                  [[AF + 4 * ks + j for j in range(4)] for ks in own],
                  [lambda ks=ks: k(f"ds_write_b128 v{V_MIA}, {vr(AF + 4 * ks, 4)} offset:{ks * 1024}") for ks in own],
                  QF, 252, bail)
    else:
        lab('poll')
        for u, ks in enumerate(own):
            k(f"buffer_load_dwordx4 {vr(AF + 4 * ks, 4)}, v{V_L16}, {srd}, s{S_T+2+u} offen sc1")
        k("s_waitcnt vmcnt(0)")
        for ks in own:
            k(f"ds_write_b128 v{V_MIA}, {vr(AF + 4 * ks, 4)} offset:{ks * 1024}")
        check_valid(k, [AF + 4 * ks + j for ks in own for j in range(4)], QF)
        spin_check(k, bail)
        k(f"s_cbranch_vccnz {L('poll')}")
    lq.all()
    k("s_barrier")
    stamp(k, cfg, 1)
    if w == 0: rt(k, cfg, 0)
    for ks in rest:
        lq.ds(f"ds_read_b128 {vr(AF + 4 * ks, 4)}, v{V_MIA} offset:{ks * 1024}", ('af', ks))
    def post_tile(T, base):
        d = PD + 4 * T
        col = 32 * (T % 3)
        return [
            lambda: k(f"v_permlane32_swap_b32 v{d}, v{d+2}"),
            lambda: k(f"v_permlane32_swap_b32 v{d+1}, v{d+3}"),
            lambda: k(f"v_add_f32 v{d}, v{d}, v{d+2}"),
            lambda: k(f"v_add_f32 v{d+1}, v{d+1}, v{d+3}"),
            lambda: k(f"v_cvt_pk_bf16_f32 v{d}, v{d}, v{d+1}"),
            lambda: lq.ds(f"ds_write_b16 v{V_IW}, v{d} offset:{base + col}", ('img', T)),
            lambda: lq.ds(f"ds_write_b16_d16_hi v{V_IW}, v{d} offset:{base + col + PL_STR}", ('img', T)),
        ]
    MK = cfg.get('mark', None)
    def mark():
        if w != 0: return
        k(f"buffer_store_dword v{V_L16}, off, {srd}, s{S_MK} sc1")
    side = {i: [] for i in range(60)}
    if isinstance(MK, int): side[MK].append(mark)
    def put(items, start, per=2):
        i = start
        for it in items:
            while len(side[i]) >= per: i += 1
            side[i].append(it)
        return i
    KO = PL_KI - PL_QI
    e = put(post_tile(0, 0) + post_tile(1, 0) + post_tile(2, 0), 31)
    b1 = e + 2
    side[b1].append(lambda: (lq.wait(('img', 2)), k("s_barrier")))
    for ks in range(3):
        side[b1 + (ks > 0)].append(lambda ks=ks: lq.ds(f"ds_read_b128 {vr(QF + 4 * ks, 4)}, v{V_QR} offset:{ks * 128}", ('qf', ks)))
    put(post_tile(3, KO), b1 + 2)
    sx = b1 + 6
    def smx():
        lq.wait(('qf', 2))
        for u, ks in enumerate(kxset):
            k(f"v_smfmac_f32_16x16x64_bf16 {vr(PDX, 4)}, {vr(QF + 4 * ks, 4)}, {vr(KXF + 8 * u, 8)}, v{V_IDX}")
    side[sx].append(smx)
    put(post_tile(4, KO), 52)
    side[min(sx + 4, 58)].append(lambda: lq.ds(f"ds_write_b128 v{V_SPW}, {vr(PDX, 4)}", 'sp'))
    for i, (T, ks) in enumerate(seq):
        wh = where[(T, ks)]
        if i < 30 and ks in rest: lq.wait(('af', ks))
        if wh[0] == 'l':
            lq.wait(('tb', wh[1]))
            b = vr(TB + 8 * (wh[1] % 4), 8)
        else:
            b = (ar if wh[0] == 'a' else vr)(wh[1], 8)
        k(f"v_smfmac_f32_16x16x64_bf16 {vr(PD + 4 * T, 4)}, {vr(AF + 4 * ks, 4)}, {b}, v{V_IDX}")
        if wh[0] == 'l' and wh[1] + 4 < PL_NL:
            tb_read(wh[1] + 4)
        for it in side[i]: it()
        if i == 29: stamp(k, cfg, 2)
        if i == b1: stamp(k, cfg, 3)
    stamp(k, cfg, 4)
    k("s_nop 7")
    for it in post_tile(5, KO): it()
    lq.all()
    k("s_barrier")
    if MK == 'b3': mark()
    stamp(k, cfg, 5)
    KF = AF
    X0 = AF + 24
    lq.ds(f"ds_read2st64_b32 {vr(X0, 2)}, v{V_SPR} offset0:0 offset1:2", 'sp0')
    lq.ds(f"ds_read2st64_b32 {vr(X0 + 2, 2)}, v{V_SPR} offset0:8 offset1:10", 'sp1')
    for ks in range(3):
        for hi in range(2):
            lq.ds(f"ds_read_b128 {vr(KF + 8 * ks + 4 * hi, 4)}, v{V_KR} offset:{ks * 128 + hi * 16}", ('kf', ks))
    sx_, mx, t, u, sm, ex, em, tot = X0 + 4, X0 + 5, X0 + 6, X0 + 7, X0 + 8, X0 + 9, X0 + 10, X0 + 11
    lq.wait('sp1')
    k(f"v_add_f32 v{X0}, v{X0}, v{X0+1}")
    k(f"v_add_f32 v{X0+2}, v{X0+2}, v{X0+3}")
    k(f"v_add_f32 v{sx_}, v{X0}, v{X0+2}")
    k(f"v_mul_f32 v{sx_}, {hexf(CSC)}, v{sx_}")
    for ks in range(3):
        lq.wait(('kf', ks))
        k(f"v_smfmac_f32_16x16x64_bf16 {vr(PDM, 4)}, {vr(QF + 4 * ks, 4)}, {vr(KF + 8 * ks, 8)}, v{V_IDX}")
    if MK == 's6': mark()
    stamp(k, cfg, 6)
    def dpp(op, dst, src, ctl):
        k(f"{op} v{dst}, v{src}, v{src} {ctl} row_mask:0xf bank_mask:0xf")
    dpp("v_max_f32_dpp", mx, sx_, "row_ror:8"); k("s_nop 1")
    dpp("v_max_f32_dpp", mx, mx, "row_ror:4"); k("s_nop 1")
    dpp("v_max_f32_dpp", mx, mx, "row_ror:2"); k("s_nop 1")
    dpp("v_max_f32_dpp", mx, mx, "row_ror:1")
    k(f"v_mov_b32 v{u}, v{mx}")
    k("s_nop 1")
    k(f"v_permlane32_swap_b32 v{mx}, v{u}")
    k(f"v_max_f32 v{mx}, v{mx}, v{u}")
    dm = PDM + w
    k(f"v_mov_b32 v{u}, v{dm}")
    k("s_nop 1")
    k(f"v_permlane32_swap_b32 v{dm}, v{u}")
    k(f"v_add_f32 v{sm}, v{dm}, v{u}")
    k(f"v_mul_f32 v{sm}, {hexf(CSC)}, v{sm}")
    k("s_nop 1")
    dpp("v_max_f32_dpp", t, sm, "row_ror:4"); k("s_nop 1")
    dpp("v_max_f32_dpp", t, t, "row_ror:2"); k("s_nop 1")
    dpp("v_max_f32_dpp", t, t, "row_ror:1")
    k(f"v_max_f32 v{mx}, v{mx}, v{t}")
    k(f"v_sub_f32 v{ex}, v{sx_}, v{mx}")
    k(f"v_sub_f32 v{em}, v{sm}, v{mx}")
    k(f"v_exp_f32 v{ex}, v{ex}")
    k(f"v_exp_f32 v{em}, v{em}")
    k("s_nop 0")
    k(f"v_fma_f32 v{tot}, v{em}, v{V_MASKF}, v{ex}")
    k("s_nop 1")
    dpp("v_add_f32_dpp", tot, tot, "row_ror:8"); k("s_nop 1")
    dpp("v_add_f32_dpp", tot, tot, "row_ror:4"); k("s_nop 1")
    dpp("v_add_f32_dpp", tot, tot, "row_ror:2"); k("s_nop 1")
    dpp("v_add_f32_dpp", tot, tot, "row_ror:1")
    k(f"v_mov_b32 v{u}, v{tot}")
    k("s_nop 1")
    k(f"v_permlane32_swap_b32 v{tot}, v{u}")
    k(f"v_add_f32 v{tot}, v{tot}, v{u}")
    k(f"v_rcp_f32 v{tot}, v{tot}")
    k("s_nop 0")
    k(f"v_mul_f32 v{ex}, v{ex}, v{tot}")
    k(f"v_mul_f32 v{em}, v{em}, v{tot}")
    ox, om = KF, KF + 4
    k("s_nop 0")
    k(f"v_mov_b32_dpp v{t}, v{ex} quad_perm:[1,0,3,2] row_mask:0xf bank_mask:0xf")
    k(f"v_mov_b32_dpp v{u}, v{em} quad_perm:[1,0,3,2] row_mask:0xf bank_mask:0xf")
    k(f"v_cvt_pk_bf16_f32 v{ox}, v{ex}, v{t}")
    k(f"v_cvt_pk_bf16_f32 v{om}, v{em}, v{u}")
    k("s_nop 0")
    for j in range(1, 4):
        k(f"v_mov_b32_dpp v{ox+j}, v{ox} row_shl:{2*j} row_mask:0xf bank_mask:0xf")
    for j in range(1, 4):
        k(f"v_mov_b32_dpp v{om+j}, v{om} row_shl:{2*j} row_mask:0xf bank_mask:0xf")
    if cfg.get('pgather'):
        k(f"s_mov_b64 exec, s[{S_M8}:{S_M8+1}]")
        k(f"ds_write_b128 v{V_PX}, {vr(ox, 4)}")
        k(f"s_mov_b64 exec, s[{S_M2}:{S_M2+1}]")
        k(f"ds_write_b128 v{V_PM}, {vr(om, 4)}")
        k("s_mov_b64 exec, -1")
        k("s_waitcnt lgkmcnt(0)")
        k("s_barrier")
        if w == 0:
            k("s_mov_b32 exec_hi, 0xff")
            k(f"ds_read_b128 {vr(ox, 4)}, v{V_SPW} offset:4096")
            k("s_waitcnt lgkmcnt(0)")
            k(f"buffer_store_dwordx4 {vr(ox, 4)}, v252, {srd}, s{S_SB} offen sc1")
            k("s_mov_b64 exec, -1")
    else:
        k(f"s_mov_b64 exec, s[{S_M8}:{S_M8+1}]")
        k(f"buffer_store_dwordx4 {vr(ox, 4)}, v{V_PX}, {srd}, s{S_SB} offen sc1")
        k(f"s_mov_b64 exec, s[{S_M2}:{S_M2+1}]")
        k(f"buffer_store_dwordx4 {vr(om, 4)}, v{V_PM}, {srd}, s{S_SB} offen sc1")
        k("s_mov_b64 exec, -1")
    stamp(k, cfg, 7)
    stamp(k, cfg, 8, True)
    if w == 0: rt(k, cfg, 1)
    if w < 3:
        lq.ds(f"ds_read_b128 {vr(X0, 4)}, v{V_KML}", 'km')
    k(f"s_add_u32 s{S_T+8}, s{S_STEP}, 1")
    k(f"s_min_u32 s{S_T+8}, s{S_T+8}, {NSTEP-1}")
    kx_prefetch(S_T + 8)
    zero_d()
    if w < 3:
        lq.wait('km')
        k(f"s_mul_i32 s{S_T}, s{S_STEP}, {32 * KM_SH}")
        k(f"s_add_u32 s{S_T}, s{S_T}, s{S_KM}")
        k(f"buffer_store_dwordx4 {vr(X0, 4)}, v{V_KMG}, {srd}, s{S_T} offen{SC1}")
    if w == 3 and cfg.get('ovl'):
        k(f"s_lshl_b32 s{S_T}, s{S_ROLE}, 7")
        k(f"s_add_u32 s{S_T}, s{S_T}, {FL_PF}")
        flag_store(k, cfg, S_T, S_STEP, V_T0, V_T1)
    for n in range(4): tb_read(n)
    lq.all()
    if cfg.get('pack', 0):
        k("s_waitcnt vmcnt(0)")
        k("s_barrier")
    if w == 0: rt_flush(k, cfg, 0)
    if w == cfg.get('stamp_wave', 0): stamp_flush(k, cfg, 9, cfg.get('stamp_p', 0))
    k(f"s_add_u32 s{S_STEP}, s{S_STEP}, 1")
    k(f"s_cmp_lt_u32 s{S_STEP}, {NSTEP}")
    k(f"s_cbranch_scc1 {L('step')}")
    if cfg.get('ovl'):
        k("s_waitcnt vmcnt(0)")
        k("s_barrier")
        if w == 3:
            k(f"s_lshl_b32 s{S_T}, s{S_ROLE}, 7")
            k(f"s_add_u32 s{S_T}, s{S_T}, {FL_PF}")
            flag_store(k, cfg, S_T, S_STEP, V_T0, V_T1)
    k(f"s_branch {k.ref('end')}")

def gen_p_wave2(k, w, cfg):
    own, rest, seq, ldspos, where = p_plan2(w, cfg)
    NL = P2_NL; KXF = P2_KXF; TB = P2_TB
    kt = w & 1; tp = w >> 1
    L = lambda s: k.ref(f"p{w}_{s}")
    lab = lambda s: k.lab(f"p{w}_{s}")
    bail = k.ref('bail')
    lq = LQ(k)
    lab('start')
    k("v_lshrrev_b32 v16, 4, v0")
    k("v_and_b32 v17, 15, v0")
    k("v_and_b32 v18, 2, v0")
    k("v_cmp_eq_u32 vcc, 0, v18")
    k("v_mov_b32 v18, 0xeeeeeeee")
    k("v_mov_b32 v19, 0x44444444")
    k(f"v_cndmask_b32 v{V_IDX}, v18, v19, vcc")
    k("v_lshrrev_b32 v20, 2, v17")
    k("v_lshlrev_b32 v20, 1, v20")
    k("v_and_b32 v21, 1, v17")
    k("v_add_u32 v20, v20, v21")
    k("v_bfe_u32 v21, v17, 1, 1")
    k("v_lshl_add_u32 v18, v16, 1, v21")
    k("v_lshlrev_b32 v18, 7, v18")
    k(f"v_lshl_add_u32 v{V_MG}, v20, 4, v18")
    k(f"v_mul_u32_u24 v18, {PL_STR}, v20")
    k("v_lshl_add_u32 v18, v16, 5, v18")
    k("v_lshl_add_u32 v18, v21, 4, v18")
    k(f"v_add_u32 v{V_QR}, {P2_QI}, v18")
    k(f"v_mul_u32_u24 v18, {2 * PL_STR}, v16")
    k("v_lshl_add_u32 v18, v17, 1, v18")
    k(f"v_add_u32 v{V_IW}, {P2_QI + 32 * w}, v18")
    k("v_and_b32 v18, 7, v0")
    k(f"v_mul_u32_u24 v18, {PL_STR}, v18")
    k("v_lshl_add_u32 v18, v16, 5, v18")
    k(f"v_add_u32 v{V_KR}, {P2_KI}, v18")
    k("v_lshlrev_b32 v18, 3, v0")
    k(f"v_add_u32 v{V_ST8}, {P2_ST}, v18")
    k("v_lshlrev_b32 v18, 4, v16")
    k("v_bfe_u32 v19, v17, 1, 2")
    k("v_lshl_add_u32 v18, v19, 2, v18")
    k(f"s_lshl_b32 s{S_T}, s{S_ROLE}, 7")
    k(f"s_add_u32 s{S_T}, s{S_T}, {64 * tp}")
    k(f"v_add_u32 v18, s{S_T}, v18")
    k("v_lshrrev_b32 v19, 3, v17")
    k(f"v_add_u32 v19, {1 + 2 * kt}, v19")
    k("v_lshrrev_b32 v20, 1, v19")
    k("v_lshlrev_b32 v20, 14, v20")
    k("v_and_b32 v19, 1, v19")
    k("v_lshl_add_u32 v19, v19, 12, v20")
    k("v_add_u32 v19, v19, v18")
    k("v_mov_b32 v20, 0x7ffffff0")
    k("v_and_b32 v21, 1, v0")
    k("v_cmp_eq_u32 vcc, 0, v21")
    k("s_nop 1")
    k(f"v_cndmask_b32 v{V_PX}, v20, v19, vcc")
    k(f"v_and_b32 v21, 0x29, v0")
    k(f"v_cmp_eq_u32 vcc, {32 * kt}, v21")
    k("s_nop 1")
    k(f"v_cndmask_b32 v{V_PM}, v20, v18, vcc")
    k(f"v_lshlrev_b32 v18, 4, v17")
    k("v_lshl_add_u32 v18, v16, 10, v18")
    k(f"v_add_u32 v{V_KXO}, {16 * kt * 16}, v18")
    k(f"v_add_u32 v18, {64 * w}, v0")
    k("v_mul_u32_u24 v19, 2731, v18")
    k("v_lshrrev_b32 v19, 16, v19")
    k("v_mul_u32_u24 v20, 24, v19")
    k("v_sub_u32 v20, v18, v20")
    k(f"v_mul_u32_u24 v21, {PL_STR}, v19")
    k("v_lshl_add_u32 v21, v20, 4, v21")
    k(f"v_add_u32 v{V_KML}, {P2_KI}, v21")
    k("v_lshlrev_b32 v21, 4, v19")
    k(f"v_lshl_add_u32 v{V_KMG}, v20, 7, v21")
    k(f"v_add_u32 v{V_WLA}, {w * NL * 2048}, v{V_L16}")
    k(f"v_add_u32 v{V_MIA}, {P2_MEMI}, v{V_L16}")
    k(f"s_mul_i32 s{S_KX}, s{S_ROLE}, {KX_SH}")
    k(f"s_add_u32 s{S_KX}, s{S_KX}, {KX}")
    k(f"s_mul_i32 s{S_KM}, s{S_ROLE}, {KM_SH}")
    k(f"s_add_u32 s{S_KM}, s{S_KM}, {KM}")
    k(f"s_mul_i32 s{S_T}, s{S_ROLE}, 6")
    k(f"s_add_u32 s{S_T+1}, s{S_T}, 5")
    k(f"s_lshr_b32 s{S_T}, s{S_T}, 3")
    k(f"s_lshr_b32 s{S_T+1}, s{S_T+1}, 3")
    k(f"s_add_u32 s{S_T}, s{S_T}, 80"); k(f"s_add_u32 s{S_T+1}, s{S_T+1}, 80")
    k(f"s_lshl_b32 s{S_T}, s{S_T}, 7"); k(f"s_lshl_b32 s{S_T+1}, s{S_T+1}, 7")
    k(f"v_mov_b32 v{V_GF}, s{S_T+1}")
    k(f"v_mov_b32 v{V_T0}, s{S_T}")
    k("v_cmp_eq_u32 vcc, 0, v0")
    k("s_nop 1")
    k(f"v_cndmask_b32 v{V_GF}, v{V_GF}, v{V_T0}, vcc")
    k(f"s_mov_b32 s{S_GK}, 0")
    k(f"s_mul_i32 s{S_T}, s{S_ROLE}, 491520")
    k(f"s_add_u32 s{S_T}, s{S_T}, {WP + w * 122880}")
    def wload(dst, T, ks):
        idx = T * 10 + ks
        k(f"s_add_u32 s{S_T+1}, s{S_T}, {idx * 2048}")
        for hi in range(2):
            k(f"buffer_load_dwordx4 {dst(hi)}, v{V_L16}, {srd}, s{S_T+1} offen offset:{hi*1024}")
    SEMI = cfg.get('na') == 4
    lops = [(op, wh[1]) for op, wh in where.items() if wh[0] == 'l']
    rops = [(op, wh) for op, wh in where.items() if wh[0] != 'l' and not (SEMI and wh[0] == 'a' and wh[1] // 8 < cfg.get('npf', 64) // 2)]
    for (T, ks), slot in lops:
        wload(lambda hi: vr(16 + 8 * slot + 4 * hi, 4), T, ks)
    for (T, ks), wh in rops[:15]:
        wload((lambda hi, wh=wh: (ar if wh[0] == 'a' else vr)(wh[1] + 4 * hi, 4)), T, ks)
    k(f"s_waitcnt vmcnt({2 * len(rops[:15])})")
    for (T, ks), slot in lops:
        for hi in range(2):
            k(f"ds_write_b128 v{V_WLA}, {vr(16 + 8 * slot + 4 * hi, 4)} offset:{slot * 2048 + hi * 1024}")
    for (T, ks), wh in rops[15:]:
        wload((lambda hi, wh=wh: (ar if wh[0] == 'a' else vr)(wh[1] + 4 * hi, 4)), T, ks)
    k("s_waitcnt lgkmcnt(0)")
    npf = [0]
    def kx_prefetch(step_s):
        npf[0] += 1
        wait_progress(k, cfg, f"p{w}_gw{npf[0]}", step_s, V_GF, 2, V_T0)
        k(f"s_mul_i32 s{S_T}, s{step_s}, {32 * KX_SH}")
        k(f"s_add_u32 s{S_T}, s{S_T}, s{S_KX}")
        for ks in range(3):
            k(f"s_add_u32 s{S_T+1}, s{S_T}, {ks * 4096}")
            for hi in range(2):
                k(f"buffer_load_dwordx4 {vr(KXF + 8 * ks + 4 * hi, 4)}, v{V_KXO}, {srd}, s{S_T+1} offen offset:{hi * 512} sc1")
    def tb_read_items(n):
        return [lambda hi=hi: lq.ds(f"ds_read_b128 {vr(TB + 8 * (n % 4) + 4 * hi, 4)}, v{V_WLA} offset:{n * 2048 + hi * 1024}", ('tb', n)) for hi in range(2)]
    def zero_d():
        for r in range(PD, PD + 32): k(f"v_mov_b32 v{r}, 0")
    k(f"s_mov_b32 s{S_STEP}, 0")
    kx_prefetch(S_STEP)
    zero_d()
    for n in range(4):
        for it in tb_read_items(n): it()
    lq.all()
    lab('step')
    slot_base(k, S_SB, S_STEP, S_T)
    for u, ks in enumerate(own):
        k(f"s_add_u32 s{S_T+2+u}, s{S_SB}, {physmap(M_LOG + 1024 * ks)}")
    stamp(k, cfg, 0)
    lab('poll')
    for u, ks in enumerate(own):
        k(f"buffer_load_dwordx4 {vr(AF + 4 * ks, 4)}, v{V_MG}, {srd}, s{S_T+2+u} offen sc1")
    k("s_waitcnt vmcnt(0)")
    for ks in own:
        k(f"ds_write_b128 v{V_MIA}, {vr(AF + 4 * ks, 4)} offset:{ks * 1024}")
    check_valid(k, [AF + 4 * ks + j for ks in own for j in range(4)], QF)
    spin_check(k, bail)
    k(f"s_cbranch_vccnz {L('poll')}")
    lq.q = ['mw']
    NB0 = cfg.get('p2_b0', 2)
    side = {i: [] for i in range(-1, 60)}
    def put(items, start, per=2):
        i = start
        for it in items:
            while len(side[i]) >= per: i += 1
            side[i].append(it)
        return i
    def b0():
        lq.all()
        k("s_barrier")
        stamp(k, cfg, 1)
        if w == 0: rt(k, cfg, 0)
    side[NB0 - 1].append(b0)
    rd = [lambda ks=ks: lq.ds(f"ds_read_b128 {vr(AF + 4 * ks, 4)}, v{V_MIA} offset:{ks * 1024}", ('af', ks)) for ks in rest]
    for it in rd[:3]: side[NB0 - 1].append(it)
    put(rd[3:], NB0)
    def post_tile(T, base):
        d = PD + 4 * T
        col = 128 * (T % 3)
        return [
            lambda: k(f"v_add_f32 v{d}, v{d}, v{d+2}"),
            lambda: k(f"v_add_f32 v{d+1}, v{d+1}, v{d+3}"),
            lambda: k(f"v_cvt_pk_bf16_f32 v{d}, v{d}, v{d+1}"),
            lambda: lq.ds(f"ds_write_b16 v{V_IW}, v{d} offset:{base + col}", ('img', T)),
            lambda: lq.ds(f"ds_write_b16_d16_hi v{V_IW}, v{d} offset:{base + col + PL_STR}", ('img', T)),
        ]
    for n, pos in enumerate(ldspos):
        if n + 4 < NL: put(tb_read_items(n + 4), pos)
    last = {T: max(i for i, op in enumerate(seq) if op[0] == T) for T in range(6)}
    KO = P2_KI - P2_QI
    for T in (0, 1): put(post_tile(T, 0), last[T] + 2)
    e = put(post_tile(2, 0), last[2] + 2)
    b1 = e + cfg.get('p2_b1', 3)
    side[b1].append(lambda: (lq.wait(('img', 2)), k("s_barrier"), stamp(k, cfg, 3)))
    for ks in range(3):
        side[b1 + (ks > 0)].append(lambda ks=ks: lq.ds(f"ds_read_b128 {vr(QF + 4 * ks, 4)}, v{V_QR} offset:{ks * 128}", ('qf', ks)))
    put(post_tile(3, KO), last[3] + 2)
    sx = b1 + cfg.get('p2_sx', 6)
    def smx():
        lq.wait(('qf', 2))
        for ks in range(3):
            k(f"v_smfmac_f32_16x16x64_bf16 {vr(PDX, 4)}, {vr(QF + 4 * ks, 4)}, {vr(KXF + 8 * ks, 8)}, v{V_IDX}")
    side[sx].append(smx)
    def dpp(op, dst, src, ctl):
        k(f"{op} v{dst}, v{src}, v{src} {ctl} row_mask:0xf bank_mask:0xf")
    XS, XM, XL, XE = PD, PD + 2, PD + 3, PD + 4
    xchain = [
        [lambda: k(f"v_add_f32 v{XS}, v{PDX + tp}, v{PDX + tp + 2}"), lambda: k(f"v_mul_f32 v{XS}, {hexf(CSC)}, v{XS}")],
        [lambda: dpp("v_max_f32_dpp", XM, XS, "row_ror:8")],
        [lambda: dpp("v_max_f32_dpp", XM, XM, "row_ror:4")],
        [lambda: dpp("v_max_f32_dpp", XM, XM, "row_ror:2")],
        [lambda: dpp("v_max_f32_dpp", XM, XM, "row_ror:1")],
        [lambda: k(f"v_sub_f32 v{XE}, v{XS}, v{XM}"), lambda: k(f"v_exp_f32 v{XE}, v{XE}")],
        [lambda: dpp("v_add_f32_dpp", XL, XE, "row_ror:8")],
        [lambda: dpp("v_add_f32_dpp", XL, XL, "row_ror:4")],
        [lambda: dpp("v_add_f32_dpp", XL, XL, "row_ror:2")],
        [lambda: dpp("v_add_f32_dpp", XL, XL, "row_ror:1")],
        [lambda: lq.ds(f"ds_write_b64 v{V_ST8}, {vr(XM, 2)} offset:{512 * w}", 'st')],
    ]
    g0 = sx + 2
    late = []
    for n, its in enumerate(xchain):
        if g0 + n <= 59:
            for it in its: side[g0 + n].append(it)
        else: late.append(its)
    put(post_tile(4, KO), last[4] + 2)
    bk = cfg.get('p2_bk', 56)
    side[bk].append(lambda: (lq.wait(('img', 4)), k("s_barrier")))
    kfr = [lambda ks=ks, hi=hi: lq.ds(f"ds_read_b128 {vr(KXF + 8 * ks + 4 * hi, 4)}, v{V_KR} offset:{ks * 128 + hi * 16}", ('kf', ks)) for ks in range(2) for hi in range(2)]
    side[bk] += kfr[:2]; side[bk + 1] += kfr[2:]
    assert bk > sx + 1
    for i, (T, ks) in enumerate(seq):
        wh = where[(T, ks)]
        if T < 3 and ks in rest: lq.wait(('af', ks))
        if wh[0] == 'l':
            lq.wait(('tb', wh[1]))
            b = vr(TB + 8 * (wh[1] % 4), 8)
        else:
            b = (ar if wh[0] == 'a' else vr)(wh[1], 8)
        k(f"v_smfmac_f32_16x16x64_bf16 {vr(PD + 4 * T, 4)}, {vr(AF + 4 * ks, 4)}, {b}, v{V_IDX}")
        for it in side[i]: it()
        if i == 29: stamp(k, cfg, 2)
    stamp(k, cfg, 4)
    for ks in range(2):
        lq.wait(('kf', ks))
        k(f"v_smfmac_f32_16x16x64_bf16 {vr(PDM, 4)}, {vr(QF + 4 * ks, 4)}, {vr(KXF + 8 * ks, 8)}, v{V_IDX}")
    for its in late:
        k("s_nop 1")
        for it in its: it()
    if late: k("s_nop 0")
    for it in post_tile(5, KO): it()
    lq.all()
    k("s_barrier")
    stamp(k, cfg, 5)
    for hi in range(2):
        lq.ds(f"ds_read_b128 {vr(KXF + 16 + 4 * hi, 4)}, v{V_KR} offset:{256 + hi * 16}", ('kf', 2))
    OM, OL = AF, AF + 1
    lq.ds(f"ds_read_b64 {vr(OM, 2)}, v{V_ST8} offset:{512 * (w ^ 1)}", 'so')
    lq.wait(('kf', 2))
    k(f"v_smfmac_f32_16x16x64_bf16 {vr(PDM, 4)}, {vr(QF + 8, 4)}, {vr(KXF + 16, 8)}, v{V_IDX}")
    stamp(k, cfg, 6)
    lq.wait('so')
    MXX, F0, F1, LX, SM, U, T_, EM, FX, R = range(AF + 2, AF + 12)
    k(f"v_max_f32 v{MXX}, v{XM}, v{OM}")
    k(f"v_sub_f32 v{F0}, v{XM}, v{MXX}")
    k(f"v_sub_f32 v{F1}, v{OM}, v{MXX}")
    k(f"v_exp_f32 v{F0}, v{F0}")
    k(f"v_exp_f32 v{F1}, v{F1}")
    k("s_nop 0")
    k(f"v_mul_f32 v{LX}, v{XL}, v{F0}")
    k(f"v_mul_f32 v{XE}, v{XE}, v{F0}")
    k(f"v_fmac_f32 v{LX}, v{OL}, v{F1}")
    k(f"v_add_f32 v{SM}, v{PDM + tp}, v{PDM + tp + 2}")
    k(f"v_mul_f32 v{SM}, {hexf(CSC)}, v{SM}")
    k(f"v_max_f32 v{U}, v{SM}, v{MXX}")
    k("s_nop 0")
    k(f"v_max_f32_dpp v{T_}, v{SM}, v{U} row_ror:4 row_mask:0xf bank_mask:0xf"); k("s_nop 1")
    dpp("v_max_f32_dpp", T_, T_, "row_ror:2"); k("s_nop 1")
    dpp("v_max_f32_dpp", T_, T_, "row_ror:1")
    k(f"v_sub_f32 v{EM}, v{SM}, v{T_}")
    k(f"v_sub_f32 v{FX}, v{MXX}, v{T_}")
    k(f"v_exp_f32 v{EM}, v{EM}")
    k(f"v_exp_f32 v{FX}, v{FX}")
    k("s_nop 0")
    dpp("v_add_f32_dpp", U, EM, "row_ror:4")
    k(f"v_mul_f32 v{XE}, v{XE}, v{FX}")
    k("s_nop 0")
    dpp("v_add_f32_dpp", U, U, "row_ror:2"); k("s_nop 1")
    dpp("v_add_f32_dpp", U, U, "row_ror:1")
    k(f"v_fmac_f32 v{U}, v{FX}, v{LX}")
    k(f"v_rcp_f32 v{R}, v{U}")
    k("s_nop 0")
    k(f"v_mul_f32 v{XE}, v{XE}, v{R}")
    k(f"v_mul_f32 v{EM}, v{EM}, v{R}")
    k("s_nop 0")
    k(f"v_mov_b32_dpp v{F0}, v{XE} quad_perm:[1,0,3,2] row_mask:0xf bank_mask:0xf")
    k(f"v_mov_b32_dpp v{F1}, v{EM} quad_perm:[1,0,3,2] row_mask:0xf bank_mask:0xf")
    k(f"v_cvt_pk_bf16_f32 v{XE}, v{XE}, v{F0}")
    k(f"v_cvt_pk_bf16_f32 v{EM}, v{EM}, v{F1}")
    k(f"buffer_store_dword v{XE}, v{V_PX}, {srd}, s{S_SB} offen sc1")
    k(f"buffer_store_dword v{EM}, v{V_PM}, {srd}, s{S_SB} offen sc1")
    stamp(k, cfg, 7)
    stamp(k, cfg, 8, True)
    if w == 0: rt(k, cfg, 1)
    X0 = AF + 24
    if w < 3:
        lq.ds(f"ds_read_b128 {vr(X0, 4)}, v{V_KML}", 'km')
    k(f"s_add_u32 s{S_T+8}, s{S_STEP}, 1")
    k(f"s_min_u32 s{S_T+8}, s{S_T+8}, {NSTEP-1}")
    kx_prefetch(S_T + 8)
    zero_d()
    if w < 3:
        lq.wait('km')
        k(f"s_mul_i32 s{S_T}, s{S_STEP}, {32 * KM_SH}")
        k(f"s_add_u32 s{S_T}, s{S_T}, s{S_KM}")
        k(f"buffer_store_dwordx4 {vr(X0, 4)}, v{V_KMG}, {srd}, s{S_T} offen sc1")
    if w == 3:
        k(f"s_lshl_b32 s{S_T}, s{S_ROLE}, 7")
        k(f"s_add_u32 s{S_T}, s{S_T}, {FL_PF}")
        flag_store(k, cfg, S_T, S_STEP, V_T0, V_T1)
    for n in range(4):
        for it in tb_read_items(n): it()
    lq.all()
    if w == 0: rt_flush(k, cfg, 0)
    if w == cfg.get('stamp_wave', 0): stamp_flush(k, cfg, 9, cfg.get('stamp_p', 0))
    k(f"s_add_u32 s{S_STEP}, s{S_STEP}, 1")
    k(f"s_cmp_lt_u32 s{S_STEP}, {NSTEP}")
    k(f"s_cbranch_scc1 {L('step')}")
    k("s_waitcnt vmcnt(0)")
    k("s_barrier")
    if w == 3:
        k(f"s_lshl_b32 s{S_T}, s{S_ROLE}, 7")
        k(f"s_add_u32 s{S_T}, s{S_T}, {FL_PF}")
        flag_store(k, cfg, S_T, S_STEP, V_T0, V_T1)
    k(f"s_branch {k.ref('end')}")

YL_MEMI = 0
YL_RED = 10240
YV_L16 = 1; YV_IDX = 2; YV_MIA = 3; YV_ZO = 4; YV_PO = 5; YV_RW = 6; YV_RR = 7; YV_MO = 8; YV_GF = 9; YV_MK = 10
YAF = 16; YD = 56; YZB = 72; YPF = 92; YACC = 112; YT = 116; YVW = 176

def gen_y_wave(k, w, cfg):
    own = OWN[w]; rest = [ks for ks in range(10) if ks not in own]
    L = lambda s: k.ref(f"y{w}_{s}")
    lab = lambda s: k.lab(f"y{w}_{s}")
    bail = k.ref('bail')
    lq = LQ(k)
    lab('start')
    k("v_lshrrev_b32 v16, 4, v0")
    k("v_and_b32 v17, 7, v0")
    k("v_lshrrev_b32 v18, 3, v0")
    k("v_and_b32 v18, 1, v18")
    k("v_lshl_add_u32 v19, v18, 2, v16")
    k(f"v_add_u32 v19, {8 * w}, v19")
    k("v_mul_u32_u24 v20, 640, v19")
    k(f"v_lshl_add_u32 v{YV_ZO}, v17, 4, v20")
    if cfg.get('p2'):
        k("v_and_b32 v20, 1, v17")
        k("v_lshlrev_b32 v20, 2, v20")
        k("v_lshrrev_b32 v21, 1, v17")
    else:
        k("v_and_b32 v20, 3, v17")
        k("v_lshlrev_b32 v20, 1, v20")
        k("v_lshrrev_b32 v21, 2, v17")
    k("v_add_u32 v20, v20, v21")
    k("v_lshlrev_b32 v20, 4, v20")
    k(f"v_lshl_add_u32 v{YV_PO}, v19, 7, v20")
    k(f"v_add_u32 v{YV_MIA}, {YL_MEMI}, v{YV_L16}")
    k("v_lshrrev_b32 v20, 1, v17")
    k("v_lshlrev_b32 v20, 7, v20")
    k("v_and_b32 v21, 1, v17")
    k("v_lshl_add_u32 v20, v21, 2, v20")
    k(f"v_add_u32 v{YV_MK}, {512 * w}, v20")
    k("v_lshlrev_b32 v20, 8, v18")
    k("v_lshl_add_u32 v20, v17, 5, v20")
    k("v_and_b32 v21, 1, v16")
    k("v_lshl_add_u32 v20, v21, 4, v20")
    k(f"v_add_u32 v20, {YL_RED + 512 * w}, v20")
    k(f"v_add_u32 v21, {YL_RED + 2048}, v{YV_L16}")
    k("v_lshrrev_b32 v22, 1, v16")
    k("v_cmp_eq_u32 vcc, v22, v18")
    k("s_nop 1")
    k(f"v_cndmask_b32 v{YV_RW}, v21, v20, vcc")
    k("v_lshrrev_b32 v20, 3, v0")
    k("v_lshlrev_b32 v20, 2, v20")
    k("v_lshl_add_u32 v20, v17, 5, v20")
    k(f"v_add_u32 v{YV_RR}, {YL_RED}, v20")
    k(f"s_lshl_b32 s{S_T}, s{S_ROLE}, 7")
    k(f"s_add_u32 s{S_T}, s{S_T}, {M_LOG}")
    k(f"s_lshr_b32 s{S_T+1}, s{S_T}, 13")
    k(f"s_lshl_b32 s{S_T+1}, s{S_T+1}, 14")
    k(f"s_and_b32 s{S_T}, s{S_T}, 8191")
    k(f"s_add_u32 s{S_T}, s{S_T}, s{S_T+1}")
    k("v_lshrrev_b32 v20, 3, v0")
    k("v_lshlrev_b32 v20, 4, v20")
    k(f"v_add_u32 v{YV_MO}, s{S_T}, v20")
    k(f"s_mul_i32 s{S_Z}, s{S_ROLE}, 20480")
    k(f"s_add_u32 s{S_Z}, s{S_Z}, {Z}")
    k(f"s_mul_i32 s{S_T}, s{S_ROLE}, 327680")
    k(f"s_add_u32 s{S_T}, s{S_T}, {WY + w * 81920}")
    def wreg(T, ks):
        n = T * 10 + ks
        return ('a', 8 * n) if n < 32 else ('v', YVW + 8 * (n - 32))
    if cfg.get('ygate') is not None:
        k(f"s_add_u32 s{S_T+2}, s{S_FL}, {cfg['ygate'][0]}")
        k("v_lshlrev_b32 v20, 2, v0")
        k(f"s_mov_b32 exec_lo, {(1 << cfg['ygate'][1]) - 1}"); k("s_mov_b32 exec_hi, 0")
        lab('gate')
        k(f"buffer_load_dword v21, v20, {srd}, s{S_T+2} offen sc1")
        k("s_waitcnt vmcnt(0)")
        k("v_cmp_eq_u32 vcc, 0, v21")
        spin_check(k, bail)
        k(f"s_cbranch_vccnz {L('gate')}")
        k("s_mov_b64 exec, -1")
    WIN = cfg.get('winy', cfg.get('win')); nld = 0
    for T in range(4):
        for ks in range(10):
            wh = wreg(T, ks)
            if cfg.get('na') == 4 and wh[0] == 'a' and wh[1] // 8 < cfg.get('npf', 64) // 2: continue
            k(f"s_add_u32 s{S_T+1}, s{S_T}, {(T * 10 + ks) * 2048}")
            for hi in range(2):
                d = (ar if wh[0] == 'a' else vr)(wh[1] + 4 * hi, 4)
                k(f"buffer_load_dwordx4 {d}, v{YV_L16}, {srd}, s{S_T+1} offen offset:{hi*1024}")
                nld += 1
                if WIN and nld > WIN: k(f"s_waitcnt vmcnt({WIN})")
    k(f"s_mov_b32 s{S_STEP}, 0")
    SC1 = " sc1" if cfg.get('ovl') else ""
    if cfg.get('ovl'):
        k(f"s_lshl_b32 s{S_T}, s{S_ROLE}, 7")
        k(f"v_mov_b32 v{YV_GF}, s{S_T}")
        k(f"s_mov_b32 s{S_GK}, 0")
    lab('step')
    YC = cfg.get('ycopy', 0)
    AW = cfg.get('ackwait', 1)
    slot_base(k, S_SB, S_STEP, S_T, S_SBF if YC else None)
    def uload():
        wait_progress(k, cfg, f"y{w}_gw", S_STEP, YV_GF, 1, YT)
        for t in range(1, 5):
            k(f"buffer_load_dwordx4 {vr(YZB + 4 * t, 4)}, v{YV_ZO}, {srd}, s{S_T+8} offen offset:{t*128}{SC1}")
    k(f"s_mul_i32 s{S_T+8}, s{S_STEP}, {Z_SEG}")
    k(f"s_add_u32 s{S_T+8}, s{S_T+8}, s{S_Z}")
    if not AW: uload()
    for r in range(YD, YD + 16): k(f"v_mov_b32 v{r}, 0")
    for u, ks in enumerate(own):
        k(f"s_add_u32 s{S_T+2+u}, s{S_SBF if YC else S_SB}, {physmap(M_LOG + 1024 * ks)}")
    stamp(k, cfg, 0)
    lab('poll')
    if cfg.get('y_nopoll'):
        for ks in own:
            for j in range(4): k(f"v_mov_b32 v{YAF + 4 * ks + j}, 0")
            k(f"ds_write_b128 v{YV_MIA}, {vr(YAF + 4 * ks, 4)} offset:{ks * 1024}")
    else:
        for u, ks in enumerate(own):
            k(f"buffer_load_dwordx4 {vr(YAF + 4 * ks, 4)}, v{YV_L16}, {srd}, s{S_T+2+u} offen sc1")
        k("s_waitcnt vmcnt(0)")
        for ks in own:
            k(f"ds_write_b128 v{YV_MIA}, {vr(YAF + 4 * ks, 4)} offset:{ks * 1024}")
        check_valid(k, [YAF + 4 * ks + j for ks in own for j in range(4)], YT)
        spin_check(k, bail)
        k(f"s_cbranch_vccnz {L('poll')}")
    lq.all()
    k("s_barrier")
    stamp(k, cfg, 1)
    if w == 0: rt(k, cfg, 0)
    for ks in rest:
        lq.ds(f"ds_read_b128 {vr(YAF + 4 * ks, 4)}, v{YV_MIA} offset:{ks * 1024}", ('af', ks))
    if AW: uload()
    for ks in own + rest:
        if ks in rest: lq.wait(('af', ks))
        for T in range(4):
            wh = wreg(T, ks)
            b = (ar if wh[0] == 'a' else vr)(wh[1], 8)
            k(f"v_smfmac_f32_16x16x64_bf16 {vr(YD + 4 * T, 4)}, {vr(YAF + 4 * ks, 4)}, {b}, v{YV_IDX}")
    k("s_nop 7")
    D = lambda T, r: YD + 4 * T + r
    for r in range(4):
        k(f"v_permlane32_swap_b32 v{D(0,r)}, v{D(2,r)}")
        k(f"v_permlane32_swap_b32 v{D(1,r)}, v{D(3,r)}")
    for r in range(4):
        k(f"v_add_f32 v{D(0,r)}, v{D(0,r)}, v{D(2,r)}")
        k(f"v_add_f32 v{D(1,r)}, v{D(1,r)}, v{D(3,r)}")
    k("s_nop 1")
    for r in range(4):
        k(f"v_permlane16_swap_b32 v{D(0,r)}, v{D(1,r)}")
    k("s_nop 1")
    k(f"v_cvt_pk_bf16_f32 v{YZB}, v{D(0,0)}, v{D(0,1)}")
    k(f"v_cvt_pk_bf16_f32 v{YZB+1}, v{D(0,2)}, v{D(0,3)}")
    k(f"v_cvt_pk_bf16_f32 v{YZB+2}, v{D(1,0)}, v{D(1,1)}")
    k(f"v_cvt_pk_bf16_f32 v{YZB+3}, v{D(1,2)}, v{D(1,3)}")
    k(f"buffer_store_dwordx4 {vr(YZB, 4)}, v{YV_ZO}, {srd}, s{S_T+8} offen{SC1}")
    stamp(k, cfg, 2)
    k(f"s_cmp_eq_u32 s{S_STEP}, {NSTEP-1}")
    k(f"s_cbranch_scc1 {L('last') if cfg.get('ovl') else k.ref('end')}")
    for t in range(5):
        k(f"s_add_u32 s{S_T+10+t}, s{S_SB}, {physmap(t * 4096)}")
    k(f"s_add_u32 s{S_T+9}, s{S_STEP}, 1")
    slot_base(k, S_SBN, S_T + 9, S_T, S_SBNF if YC else None)
    if cfg.get('mark') is not None:
        k(f"s_add_u32 s{S_MK}, s{S_SB}, {physmap(MARK_LOG)}")
        lab('mpoll')
        k(f"buffer_load_dword v{YT}, v{YV_MK}, {srd}, s{S_MK} offen sc1")
        k("s_waitcnt vmcnt(0)")
        k(f"v_cmp_eq_u32 vcc, -1, v{YT}")
        spin_check(k, bail)
        k(f"s_cbranch_vccnz {L('mpoll')}")
        if w == 0 and cfg.get('rt2'): rt(k, cfg, 0)
    if cfg.get('cpoll', 0):
        for r in range(4): k(f"v_mov_b32 v{YACC + r}, 0")
        poll_cont(k, f"y{w}_pp",
                  [lambda t=t: k(f"buffer_load_dwordx4 {vr(YPF + 4 * t, 4)}, v{YV_PO}, {srd}, s{S_T+10+t} offen sc1") for t in range(5)],
                  [[YPF + 4 * t + j for j in range(4)] for t in range(5)],
                  [lambda t=t: (k(f"v_mfma_f32_16x16x32_bf16 {vr(YACC, 4)}, {vr(YPF + 4 * t, 4)}, {vr(YZB + 4 * t, 4)}, {vr(YACC, 4)}"),
                                (rt(k, cfg, 3 + t) if (w == 0 and cfg.get('rt2')) else None)) for t in range(5)],
                  YT, 132, bail)
        k("s_nop 5")
    else:
        lab('ppoll')
        for t in range(5):
            k(f"buffer_load_dwordx4 {vr(YPF + 4 * t, 4)}, v{YV_PO}, {srd}, s{S_T+10+t} offen sc1")
        k("s_waitcnt vmcnt(0)")
        for t in range(5):
            c = "0" if t == 0 else vr(YACC, 4)
            k(f"v_mfma_f32_16x16x32_bf16 {vr(YACC, 4)}, {vr(YPF + 4 * t, 4)}, {vr(YZB + 4 * t, 4)}, {c}")
        check_valid(k, range(YPF, YPF + 20), YT)
        spin_check(k, bail)
        k(f"s_cbranch_vccnz {L('ppoll')}")
    stamp(k, cfg, 3)
    if w == 0: rt(k, cfg, 1)
    lq.ds(f"ds_write_b128 v{YV_RW}, {vr(YACC, 4)}", 'rw')
    lq.all()
    k("s_barrier")
    if w == 0:
        for u in range(4):
            lq.ds(f"ds_read2st64_b32 {vr(YT + 2 * u, 2)}, v{YV_RR} offset0:{2*u} offset1:{2*u+1}", ('rr', u))
        lq.wait(('rr', 1))
        k(f"v_add_f32 v{YT}, v{YT}, v{YT+1}")
        k(f"v_add_f32 v{YT+2}, v{YT+2}, v{YT+3}")
        lq.wait(('rr', 3))
        k(f"v_add_f32 v{YT+4}, v{YT+4}, v{YT+5}")
        k(f"v_add_f32 v{YT+6}, v{YT+6}, v{YT+7}")
        k(f"v_add_f32 v{YT}, v{YT}, v{YT+2}")
        k(f"v_add_f32 v{YT+4}, v{YT+4}, v{YT+6}")
        k(f"v_add_f32 v{YT}, v{YT}, v{YT+4}")
        k("s_nop 1")
        k(f"v_mov_b32_dpp v{YT+1}, v{YT} quad_perm:[1,0,3,2] row_mask:0xf bank_mask:0xf")
        k(f"v_cvt_pk_bf16_f32 v{YT+8}, v{YT}, v{YT+1}")
        k("s_nop 1")
        for j in range(1, 4):
            k(f"v_mov_b32_dpp v{YT+8+j}, v{YT+8} row_shl:{2*j} row_mask:0xf bank_mask:0xf")
        k(f"s_mov_b64 exec, s[{S_M8}:{S_M8+1}]")
        k(f"buffer_store_dwordx4 {vr(YT + 8, 4)}, v{YV_MO}, {srd}, s{S_SBN} offen sc1")
        if YC: k(f"buffer_store_dwordx4 {vr(YT + 8, 4)}, v{YV_MO}, {srd}, s{S_SBNF} offen sc1")
        k("s_mov_b64 exec, -1")
        if cfg.get('ovl'):
            k(f"s_lshl_b32 s{S_T}, s{S_ROLE}, 7")
            k(f"s_add_u32 s{S_T}, s{S_T}, {FL_YF}")
            flag_store(k, cfg, S_T, S_T + 9, YT, YT + 1)
        stamp(k, cfg, 4)
        rt(k, cfg, 2)
        if AW: k("s_waitcnt vmcnt(0)")
        rt_flush(k, cfg, 32)
        stamp_flush(k, cfg, 5, cfg.get('stamp_y', 0))
    if AW: k("s_barrier")
    k(f"s_add_u32 s{S_STEP}, s{S_STEP}, 1")
    k(f"s_branch {L('step')}")
    if cfg.get('ovl'):
        lab('last')
        k("s_waitcnt vmcnt(0)")
        k("s_barrier")
        if w == 0:
            k(f"s_lshl_b32 s{S_T}, s{S_ROLE}, 7")
            k(f"s_add_u32 s{S_T}, s{S_T}, {FL_YF}")
            k(f"s_mov_b32 s{S_T+9}, {NSTEP}")
            flag_store(k, cfg, S_T, S_T + 9, YT, YT + 1)
        k(f"s_branch {k.ref('end')}")

def role_assign(k, cfg, rb=19, part=None, va=2, lds_off=0, nyoung=0, sfx=''):
    R = lambda n: f"s{rb + n - 19}"
    vb = va + 1
    if part in (None, 1):
        k(f"s_lshl_b32 {R(19)}, s{S_LAYER}, 11")
        k(f"s_add_u32 {R(19)}, {R(19)}, {CT_TICK}")
        k(f"s_getreg_b32 {R(20)}, hwreg(HW_REG_XCC_ID)")
        k(f"s_and_b32 {R(20)}, {R(20)}, 7")
        if cfg.get('fake_xcc') is not None:
            k(f"s_and_b32 {R(20)}, s2, {cfg['fake_xcc']}")
        k(f"s_cmp_lg_u32 s{S_WAVE}, 0")
        k(f"s_cbranch_scc1 {k.ref('tk_wait' + sfx if part is None else 'tk_p1')}")
        k(f"s_lshl_b32 {R(22)}, {R(20)}, 8")
        k(f"s_add_u32 {R(22)}, {R(22)}, {R(19)}")
        k("s_mov_b64 exec, 1")
        k(f"v_mov_b32 v{va}, 0")
        k(f"v_mov_b32 v{vb}, 1")
        k(f"buffer_atomic_add v{vb}, v{va}, {srd}, {R(22)} offen sc0 sc1")
        k("s_mov_b64 exec, -1")
        if part == 1:
            k.lab('tk_p1')
            return
    else:
        k(f"s_cmp_lg_u32 s{S_WAVE}, 0")
        k(f"s_cbranch_scc1 {k.ref('tk_wait' + sfx)}")
    if nyoung is not None: k(f"s_waitcnt vmcnt({nyoung})")
    k("s_nop 0")
    k(f"v_readfirstlane_b32 {R(21)}, v{vb}")
    k(f"s_cmp_lt_u32 {R(21)}, 32")
    k(f"s_cbranch_scc1 {k.ref('tk_pub' + sfx)}")
    k(f"v_lshlrev_b32 v{va}, 8, v0")
    k(f"v_and_b32 v{va}, 0x7ff, v{va}")
    k(f"s_mov_b32 {R(22)}, {R(19)}")
    k.lab('tk_poll' + sfx)
    k(f"buffer_load_dword v{vb}, v{va}, {srd}, {R(22)} offen sc1")
    k("s_waitcnt vmcnt(0)")
    k(f"s_mov_b32 {R(23)}, 0")
    for x in range(8):
        k(f"v_readlane_b32 {R(24+x)}, v{vb}, {x}")
        k("s_nop 0")
        k(f"s_add_u32 {R(23)}, {R(23)}, {R(24+x)}")
    spin_check(k, k.ref('bail'))
    k(f"s_cmp_lt_u32 {R(23)}, 256")
    k(f"s_cbranch_scc1 {k.ref('tk_poll' + sfx)}")
    k(f"s_sub_u32 {R(21)}, {R(21)}, 32")
    for x in range(7):
        k(f"s_max_u32 {R(23)}, {R(24+x)}, 32")
        k(f"s_sub_u32 {R(23)}, {R(23)}, 32")
        k(f"s_cmp_gt_u32 {R(20)}, {x}")
        k(f"s_cselect_b32 {R(23)}, {R(23)}, 0")
        k(f"s_add_u32 {R(21)}, {R(21)}, {R(23)}")
    for x in range(8):
        k(f"s_min_u32 {R(23)}, {R(24+x)}, 32")
        k(f"s_sub_u32 {R(22)}, 32, {R(23)}")
        k(f"s_cmp_lt_u32 {R(21)}, {R(22)}")
        k(f"s_cbranch_scc0 {k.ref(f'tk_n{x}' + sfx)}")
        k(f"s_mov_b32 {R(20)}, {x}")
        k(f"s_add_u32 {R(21)}, {R(21)}, {R(23)}")
        k(f"s_branch {k.ref('tk_pub' + sfx)}")
        k.lab(f'tk_n{x}' + sfx)
        k(f"s_sub_u32 {R(21)}, {R(21)}, {R(22)}")
    k(f"s_branch {k.ref('bail')}")
    k.lab('tk_pub' + sfx)
    k(f"s_lshl_b32 {R(22)}, {R(20)}, 8")
    k(f"s_or_b32 {R(22)}, {R(22)}, {R(21)}")
    k(f"v_mov_b32 v{va}, {lds_off}")
    k(f"v_mov_b32 v{vb}, {R(22)}")
    k(f"ds_write_b32 v{va}, v{vb}")
    k("s_waitcnt lgkmcnt(0)")
    k.lab('tk_wait' + sfx)
    k("s_barrier")
    k(f"v_mov_b32 v{va}, {lds_off}")
    k(f"ds_read_b32 v{vb}, v{va}")
    k("s_waitcnt lgkmcnt(0)")
    k(f"v_readfirstlane_b32 {R(22)}, v{vb}")
    if part is None: k("s_barrier")
    k(f"s_lshr_b32 {R(20)}, {R(22)}, 8")
    k(f"s_and_b32 {R(21)}, {R(22)}, 255")

S_XCC = 98; S_TK = 99
def pf_setup(k, cfg, sfx='', tb=60):
    import aly, work
    TAB, B0, B1, D, V0, V1 = aly.PF_TAB, aly.PF_B0, aly.PF_B1, aly.PF_D, aly.PF_V0, aly.PF_V1
    L = lambda s: k.ref('pf_' + sfx + s)
    lab = lambda s: k.lab('pf_' + sfx + s)
    def table(idx):
        for q in range(8):
            k(f"s_mov_b32 s{TAB + q}, {sum(idx[4 * q + j] << (8 * j) for j in range(4)):#x}")
    k(f"v_lshlrev_b32 v{V0}, 4, v0")
    k(f"v_mov_b32 v{V1}, v{V0}")
    table(list(range(32)))
    k(f"s_mov_b32 s{D}, 2048")
    k(f"s_cmp_eq_u32 s{S_XCC}, 0")
    k(f"s_cbranch_scc1 {L('p')}")
    k(f"s_cmp_ge_u32 s{S_XCC}, 4")
    k(f"s_cbranch_scc1 {L('g')}")
    k(f"s_sub_u32 s{tb+0}, s{S_XCC}, 1")
    k(f"s_cmp_ge_u32 s{S_TK}, 27")
    k(f"s_cbranch_scc1 {L('sp')}")
    k(f"s_mul_i32 s{tb+1}, s{tb+0}, 27")
    k(f"s_add_u32 s{tb+1}, s{tb+1}, s{S_TK}")
    k(f"s_cmp_ge_u32 s{tb+1}, 80")
    k(f"s_cbranch_scc1 {L('no')}")
    k(f"s_mul_i32 s{tb+1}, s{tb+1}, 327680")
    k(f"s_mul_i32 s{tb+2}, s{S_WAVE}, 81920")
    k(f"s_add_u32 s{tb+1}, s{tb+1}, s{tb+2}")
    k(f"s_add_u32 s{B0}, s{tb+1}, {WY}")
    k(f"s_add_u32 s{B1}, s{B0}, 1024")
    k(f"s_branch {L('done')}")
    lab('sp')
    k(f"s_mul_i32 s{tb+1}, s{tb+0}, 5")
    k(f"s_add_u32 s{tb+1}, s{tb+1}, s{S_TK}")
    k(f"s_sub_u32 s{tb+1}, s{tb+1}, 27")
    k(f"s_cmp_lt_u32 s{tb+1}, 5")
    k(f"s_cbranch_scc0 {L('no')}")
    k(f"s_lshl_b32 s{tb+1}, s{tb+1}, 2")
    k(f"s_add_u32 s{tb+1}, s{tb+1}, s{S_WAVE}")
    k(f"s_mul_i32 s{tb+1}, s{tb+1}, 40960")
    k(f"s_add_u32 s{B0}, s{tb+1}, {PWO}")
    k(f"s_add_u32 s{B1}, s{B0}, 1024")
    k(f"s_branch {L('done')}")
    lab('no')
    k(f"s_mov_b32 s{B0}, {WY}")
    k(f"s_mov_b32 s{B1}, {WY}")
    k(f"s_mov_b32 s{D}, 0")
    k(f"s_branch {L('done')}")
    lab('p')
    k(f"s_mul_i32 s{tb+1}, s{S_TK}, 491520")
    k(f"s_mul_i32 s{tb+2}, s{S_WAVE}, 122880")
    k(f"s_add_u32 s{tb+1}, s{tb+1}, s{tb+2}")
    k(f"s_add_u32 s{B0}, s{tb+1}, {WP}")
    k(f"s_add_u32 s{B1}, s{B0}, 1024")
    for w in range(4):
        own, rest, seq, ldspos, where = p_plan(w, cfg)
        idx = [None] * 32
        for (T, ks), wh in where.items():
            if wh[0] == 'a': idx[wh[1] // 8] = T * 10 + ks
        if w < 3:
            k(f"s_cmp_lg_u32 s{S_WAVE}, {w}")
            k(f"s_cbranch_scc1 {L(f'pw{w}')}")
        table(idx)
        k(f"s_branch {L('done')}")
        if w < 3: lab(f'pw{w}')
    lab('g')
    k(f"s_sub_u32 s{tb+0}, s{S_XCC}, 4")
    k(f"s_lshl_b32 s{tb+0}, s{tb+0}, 5")
    k(f"s_add_u32 s{tb+0}, s{tb+0}, s{S_TK}")
    k(f"s_mov_b32 s{D}, 512")
    k("v_and_b32 v230, 31, v0")
    k("v_lshrrev_b32 v231, 5, v0")
    k(f"s_cmp_ge_u32 s{tb+0}, 80")
    k(f"s_cbranch_scc1 {L('qk')}")
    work.u_weight_addr(k, tb, 230, 231, 232, V0, B0, tb + 1)
    k(f"v_mov_b32 v{V1}, v{V0}")
    k(f"s_add_u32 s{B1}, s{B0}, 128")
    k(f"s_branch {L('done')}")
    lab('qk')
    work.qk_setup(k, tb, 230, 231, 232, V0, B0, tb + 1, None)
    lab('done')

def build_chain(name, layer, cfg=None):
    import work
    cfg = cfg or {}
    k = K(name if layer is not None else name + "1", vgpr=256, sgpr=100, agpr=256)
    stub = None
    if layer is None:
        stub = K(name + "2", vgpr=256, sgpr=100, agpr=256)
        stub(f"s_mov_b32 s{S_LAYER}, 1")
        stub(f"s_branch {k.ref('body')}")
        k(f"s_mov_b32 s{S_LAYER}, 0")
        k.lab('body')
    else:
        k(f"s_mov_b32 s{S_LAYER}, {layer}")
    k("s_cmp_ge_u32 s2, 256")
    k(f"s_cbranch_scc1 {k.ref('end0')}")
    if cfg.get('rt'): k("s_memrealtime s[90:91]")
    k.ptr(KA_WS, S_WS)
    k.ptr(KA_OUT, 6)
    k("v_lshrrev_b32 v1, 6, v0")
    k("v_and_b32 v0, 63, v0")
    k("s_nop 0")
    k(f"v_readfirstlane_b32 s{S_WAVE}, v1")
    k(f"s_mov_b32 s{S_SPIN}, {SPIN}")
    k("s_waitcnt lgkmcnt(0)")
    k.srd(SRD, S_WS, WS_BYTES)
    def osrd():
        k(f"s_add_u32 s22, s{S_WS}, {A_X2}")
        k(f"s_addc_u32 s23, s{S_WS+1}, 0")
        k(f"s_cmp_eq_u32 s{S_LAYER}, 0")
        k(f"s_cselect_b32 s{S_OSRD}, s22, s6")
        k(f"s_cselect_b32 s{S_OSRD+1}, s23, s7")
        k(f"s_mov_b32 s{S_OSRD+2}, {2048 * 640 * 2}")
        k(f"s_mov_b32 s{S_OSRD+3}, 0x00020000")
    if cfg.get('na') != 4: osrd()
    k(f"s_mul_i32 s{S_FL}, s{S_LAYER}, {FL_LAYER}")
    k(f"s_add_u32 s{S_FL}, s{S_FL}, {CT_FLAG}")
    SEMI = cfg.get('na') == 4
    if SEMI:
        import aly
        role_assign(k, cfg, 76 if cfg.get('hs') is not None else 60, 1, 230)
        HS = cfg.get('hs')
        if 'pfs' in cfg: assert cfg['pfs'][0] + sum(cfg['pfs'][1]) == cfg.get('npf', 64)
        def hook(sfx):
            role_assign(k, cfg, 76 if HS is not None else 60, 2, 230, aly.AF_LDS + 64, 24 if HS is None else None, sfx)
            k(f"s_mov_b32 s{S_XCC}, s{77 if HS is not None else 61}")
            k(f"s_mov_b32 s{S_TK}, s{78 if HS is not None else 62}")
            pf_setup(k, cfg, sfx, 76 if HS is not None else 60)
        rt_ = cfg.get('rt')
        aly.afront_body(k, 'rt', 2, False, "", (lambda n: k(f"s_memrealtime s[{60 + 2 * n}:{61 + 2 * n}]")) if rt_ else None, cfg.get('pfs', True), (hook, HS))
        if rt_:
            k("s_memrealtime s[74:75]")
            k("s_mov_b32 s60, s90")
            k("s_waitcnt lgkmcnt(0)")
            k("s_mov_b64 exec, 1")
            k("s_lshl_b32 s32, s2, 2")
            k(f"s_add_u32 s32, s32, s{S_WAVE}")
            k("s_lshl_b32 s32, s32, 5")
            k(f"s_mul_i32 s33, s{S_LAYER}, 0x200000")
            k("s_add_u32 s32, s32, s33")
            k(f"s_add_u32 s32, s32, {rt_ + 0x180000}")
            k("v_mov_b32 v253, 0")
            for n in range(8):
                k(f"v_mov_b32 v254, s{60 + 2 * n}")
                k(f"buffer_store_dword v254, v253, {srd}, s32 offen offset:{4*n}")
                k("s_nop 1")
            k("s_mov_b64 exec, -1")
        osrd()
        k(f"s_mov_b32 s20, s{S_XCC}")
        k(f"s_mov_b32 s21, s{S_TK}")
    else:
        role_assign(k, cfg)
    if cfg.get('rt'):
        k("s_lshl_b32 s92, s20, 8"); k("s_or_b32 s92, s92, s21")
    k(f"s_sub_u32 s22, 0, s{S_WS}")
    k("s_and_b32 s22, s22, 0x1fffff")
    k(f"s_lshl_b32 s23, s{S_LAYER}, 3")
    k(f"s_add_u32 s23, s23, {CT_PAR}")
    k(f"s_buffer_load_dwordx2 s[24:25], {srd}, s23")
    k("s_waitcnt lgkmcnt(0)")
    k("s_and_b32 s24, s24, 8192")
    k("s_and_b32 s25, s25, 8192")
    for f, p in ((S_FD0, 24), (S_FD1, 25)):
        k(f"s_lshl_b32 s{f}, s{p}, 1")
        k(f"s_sub_u32 s{f}, 8192, s{f}")
    k(f"s_mul_i32 s23, s{S_LAYER}, {2 * EX_BLOCK}")
    k("s_add_u32 s22, s22, s23")
    k(f"s_add_u32 s{S_EB0}, s22, s24")
    k(f"s_add_u32 s{S_EB1}, s22, s25")
    k(f"s_add_u32 s{S_EB1}, s{S_EB1}, {EX_BLOCK}")
    k(f"s_mov_b32 s{S_M8}, 0x01010101")
    k(f"s_mov_b32 s{S_M8+1}, 0x01010101")
    k(f"s_mov_b32 s{S_M2}, 0x00010001")
    k(f"s_mov_b32 s{S_M2+1}, 0")
    p_setup_lanes(k)
    ovl = cfg.get('ovl')
    NA2 = cfg.get('na') in (2, 3, 4)
    OW = cfg.get('na') == 3
    other = (k.ref('spare') if NA2 else k.ref('w3')) if ovl else k.ref('end')
    if cfg.get('spread', 0):
        k("s_cmp_ge_u32 s20, 4")
        k(f"s_cbranch_scc1 {k.ref('proj') if ovl else k.ref('end')}")
        k("s_cmp_ge_u32 s21, 28")
        k(f"s_cbranch_scc1 {other}")
        k("s_cmp_ge_u32 s21, 8")
        k(f"s_cbranch_scc1 {k.ref('notp')}")
        k("s_lshl_b32 s22, s20, 3")
        k(f"s_add_u32 s{S_ROLE}, s22, s21")
        for w in range(4):
            k(f"s_cmp_eq_u32 s{S_WAVE}, {w}")
            k(f"s_cbranch_scc1 {k.ref(f'p{w}_start')}")
        k.lab('notp')
        k("s_mul_i32 s22, s20, 20")
        k("s_add_u32 s22, s22, s21")
        k(f"s_sub_u32 s{S_ROLE}, s22, 8")
    else:
        k("s_cmp_eq_u32 s20, 0")
        k(f"s_cbranch_scc0 {k.ref('notp')}")
        k(f"s_mov_b32 s{S_ROLE}, s21")
        for w in range(4):
            k(f"s_cmp_eq_u32 s{S_WAVE}, {w}")
            k(f"s_cbranch_scc1 {k.ref(f'p{w}_start')}")
        k.lab('notp')
        k("s_cmp_ge_u32 s20, 4")
        k(f"s_cbranch_scc1 {k.ref('proj') if ovl else k.ref('end')}")
        k("s_cmp_ge_u32 s21, 27")
        k(f"s_cbranch_scc1 {other}")
        k("s_sub_u32 s22, s20, 1")
        k("s_mul_i32 s22, s22, 27")
        k(f"s_add_u32 s{S_ROLE}, s22, s21")
        k(f"s_cmp_ge_u32 s{S_ROLE}, 80")
        k(f"s_cbranch_scc1 {other}")
    for w in range(4):
        k(f"s_cmp_eq_u32 s{S_WAVE}, {w}")
        k(f"s_cbranch_scc1 {k.ref(f'y{w}_start')}")
    k(f"s_branch {k.ref('end')}")
    for w in range(4): (gen_p_wave2 if cfg.get('p2') else gen_p_wave)(k, w, cfg)
    for w in range(4): gen_y_wave(k, w, cfg)
    if ovl:
        k.lab('proj')
        k("s_sub_u32 s22, s20, 4")
        k("s_lshl_b32 s22, s22, 5")
        k(f"s_add_u32 s{S_ROLE}, s22, s21")
        k(f"s_mov_b32 s{work.GS_SEG}, 0")
        k(f"s_mov_b32 s{work.GS_END}, 64")
        work.role_gemm(k, S_ROLE, dict(cfg, flag_s=S_FL))
        if cfg.get('rt'):
            k("s_memrealtime s[96:97]"); k("s_waitcnt lgkmcnt(0)"); k("s_mov_b32 s93, s96")
        if cfg.get('w3_join', 128) < 128:
            k(f"s_cmp_ge_u32 s{S_ROLE}, {cfg['w3_join']}")
            k(f"s_cbranch_scc1 {k.ref('end')}")
        if NA2:
            import aly
            k(f"s_branch {k.ref('w3')}")
            k.lab('spare')
            if cfg.get('spread', 0):
                k("s_lshl_b32 s22, s20, 2")
                k("s_add_u32 s22, s22, s21")
                k("s_sub_u32 s22, s22, 28")
            else:
                k("s_sub_u32 s22, s20, 1")
                k("s_mul_i32 s22, s22, 5")
                k("s_add_u32 s22, s22, s21")
                k("s_sub_u32 s22, s22, 27")
                k("s_cmp_ge_u32 s21, 27")
                k("s_cselect_b32 s22, s22, 15")
            k("s_cmp_lt_u32 s22, 5")
            k(f"s_cbranch_scc1 {k.ref('sp_ab')}")
            k("s_cmp_lt_u32 s22, 9")
            k(f"s_cbranch_scc1 {k.ref('sp_ln')}")
            if OW:
                k("s_cmp_eq_u32 s22, 10")
                k(f"s_cbranch_scc1 {k.ref('sp_ow')}")
                k("s_cmp_eq_u32 s22, 11")
                k(f"s_cbranch_scc1 {k.ref('sp_ow')}")
            k("s_cmp_eq_u32 s22, 9")
            k(f"s_cbranch_scc0 {k.ref('w3')}")
            aly.role_mem0(k, S_EB0, S_FD0 if cfg.get('ycopy') else None)
            k(f"s_branch {k.ref('w3')}")
            if OW:
                k.lab('sp_ow')
                k(f"s_sub_u32 s{S_ROLE}, s22, 10")
                aly.role_ow(k, S_ROLE, S_LAYER, S_FL, S_SPIN, k.ref('bail'), cfg)
                k(f"s_branch {k.ref('w3')}")
            k.lab('sp_ab')
            k(f"s_mov_b32 s{S_ROLE}, s22")
            k(f"s_mov_b32 s{aly.AB_SEG}, 0")
            k(f"s_mov_b32 s{aly.AB_END}, 64")
            aly.role_aback(k, S_ROLE, S_LAYER, S_FL, True, cfg, (30, k.ref('bail')) if (OW or SEMI) else None, SEMI)
            k(f"s_branch {k.ref('w3')}")
            k.lab('sp_ln')
            k(f"s_sub_u32 s{S_ROLE}, s22, 5")
            aly.role_lnw(k, S_ROLE, 4, S_FL, S_SPIN, k.ref('bail'), True, cfg)
            k("s_waitcnt vmcnt(0)")
            k("s_barrier")
        k.lab('w3')
        k(f"s_mov_b32 s{S_SPIN}, {SPIN}")
        work.role_w3_loop(k, cfg, S_FL, S_SPIN, f"s[{S_OSRD}:{S_OSRD+3}]", S_LAYER)
        k(f"s_branch {k.ref('end')}")
    k.lab('bail')
    k("s_mov_b64 exec, 1")
    k.ptr(KA_DBG, 6)
    k("s_waitcnt lgkmcnt(0)")
    k.srd(24, 6, 256)
    k("v_mov_b32 v1, 0xdead")
    k(f"v_mov_b32 v2, s{S_STEP}")
    k("v_mov_b32 v3, 0")
    k("buffer_store_dword v1, v3, s[24:27], 0 offen")
    k("buffer_store_dword v2, v3, s[24:27], 0 offen offset:4")
    k.lab('end')
    if cfg.get('rt'):
        k("s_memrealtime s[94:95]")
        k("s_waitcnt lgkmcnt(0)")
        k("s_mov_b64 exec, 1")
        k("s_lshl_b32 s32, s2, 2")
        k(f"s_add_u32 s32, s32, s{S_WAVE}")
        k("s_lshl_b32 s32, s32, 4")
        k(f"s_mul_i32 s33, s{S_LAYER}, 0x200000")
        k("s_add_u32 s32, s32, s33")
        k(f"s_add_u32 s32, s32, {cfg['rt'] + 0x100000}")
        k("v_mov_b32 v253, 0")
        for n, sr in enumerate((90, 94, 92, 93)):
            k(f"v_mov_b32 v254, s{sr}")
            k(f"buffer_store_dword v254, v253, {srd}, s32 offen offset:{4*n}")
            k("s_nop 1")
        k("s_lshl_b32 s32, s2, 2")
        k(f"s_add_u32 s32, s32, s{S_WAVE}")
        k("s_lshl_b32 s32, s32, 5")
        k("s_add_u32 s32, s32, s33")
        k(f"s_add_u32 s32, s32, {cfg['rt'] + 0x140000}")
        for n in range(8):
            k(f"v_mov_b32 v254, s{60 + 2 * n}")
            k(f"buffer_store_dword v254, v253, {srd}, s32 offen offset:{4*n}")
            k("s_nop 1")
    k.lab('end0')
    if stub is not None: return k, stub
    return k

if __name__ == "__main__":
    STP = 240 * MB
    extra = eval(sys.argv[1]) if len(sys.argv) > 1 else {}
    ks = [build_chain("chain", 0, dict(extra)),
          build_chain("chainst", 0, dict(extra, stamp=True, stamp_p=STP, stamp_y=STP + 65536)),
          build_chain("chainrt", 0, dict(extra, rt=STP + MB, rt2=1))]
    launches = [(k_, 256, 256, PL_END) for k_ in ks]
    open(sys.argv[2] if len(sys.argv) > 2 else "chain.s", "w").write(listfile(launches, ks))
    print("lds", PL_END)
```

```python
WS_BYTES = 268435456
MB = 1 << 20
EX_BLOCK = 2 * MB
EX_STEP = 65536
CTRL = 10 * MB
CT_TICK = CTRL
CT_PAR = CTRL + 0x10000
CT_FLAG = CTRL + 0x20000
FL_LAYER = 0x10000
FL_G = 0
FL_PF = 0x4000
FL_YF = 0x5000
FL_WA = 0x7800
FL_JOB = 0x7c00
FL_AF = 0x8000
FL_AB = 0x9000
FL_LN = 0xb000
FL_OF = 0xc000
FL_KC = 0xc400
FL_PAR = 0xc800
FL_WA2 = 0xd000
KVT = CTRL + 0x40000
KVT_L = 0x10000
WP = 11 * MB
WY = 26 * MB
KX = 51 * MB
QX = 75 * MB
Z = 99 * MB
KM = 199 * MB
PXB = 205 * MB
XN = 210 * MB
END0 = 213 * MB
A_XN = 213 * MB; A_X1 = 216 * MB; A_QA = 219 * MB; A_KVT = 222 * MB; A_OA = 228 * MB
A_KVZ = 231 * MB; A_PQKVA = 232 * MB; A_PWOA = 235 * MB; A_X2 = 236 * MB
PWA = A_PQKVA
PWO = A_PWOA
OA = A_QA
KVP = A_KVT
KVP_L = MB
PQ = A_KVT
PQ_SH = 1536
XN_SEG = 40960
PX_SEG = 81920

Z_SEG = 80 * 20480
KX_SH = 32 * 384
KM_SH = 8 * 384

def physmap(o):
    return ((o >> 13) << 14) | (o & 8191)

P_LOG = 0
M_LOG = 20480
CAL_LOG = 30720
MARK_LOG = CAL_LOG + 4

def alpha(gb, jb):
    return 32 * (jb >> 3) + 16 * (gb >> 1) + 8 * ((jb >> 1) & 1) + 4 * (gb & 1) + 2 * ((jb >> 2) & 1) + (jb & 1)

def p2e(p):
    return 64 * (p >> 6) + alpha((p >> 4) & 3, p & 15)

def islot(i):
    return 2 * (i & 3) + (i >> 2)
```

```python
import sys, math
sys.path.insert(0, "/code"); sys.path.insert(0, "tools")
from asmk import *
from lay import *

CSC = (192 ** -0.5) * math.log2(math.e)
S_WS = 4; SRD = 8; S_WAVE = 13
P2 = False
srd = f"s[{SRD}:{SRD+3}]"
def vr(b, n): return f"v[{b}:{b+n-1}]" if n > 1 else f"v{b}"
def ar(b, n): return f"a[{b}:{b+n-1}]"

def prologue(k, extra_ptrs=()):
    k.ptr(KA_WS, S_WS)
    for slot, s in extra_ptrs: k.ptr(slot, s)
    k("v_lshrrev_b32 v1, 6, v0")
    k("v_and_b32 v0, 63, v0")
    k("s_nop 0")
    k(f"v_readfirstlane_b32 s{S_WAVE}, v1")
    k("s_waitcnt lgkmcnt(0)")
    k.srd(SRD, S_WS, WS_BYTES)

def ex_delta(k, dst):
    k(f"s_sub_u32 s{dst}, 0, s{S_WS}")
    k(f"s_and_b32 s{dst}, s{dst}, 0x1fffff")

def p2e_lane(k, dst, p, t0, t1):
    k(f"v_and_b32 v{dst}, 0xc1, v{p}")
    k(f"v_and_b32 v{t0}, 8, v{p}")
    k(f"v_lshl_or_b32 v{dst}, v{t0}, 2, v{dst}")
    k(f"v_and_b32 v{t0}, 32, v{p}")
    k(f"v_lshrrev_b32 v{t0}, 1, v{t0}")
    k(f"v_or_b32 v{dst}, v{dst}, v{t0}")
    k(f"v_and_b32 v{t0}, 2, v{p}")
    k(f"v_lshl_or_b32 v{dst}, v{t0}, 2, v{dst}")
    k(f"v_and_b32 v{t0}, 16, v{p}")
    k(f"v_lshrrev_b32 v{t0}, 2, v{t0}")
    k(f"v_or_b32 v{dst}, v{dst}, v{t0}")
    k(f"v_and_b32 v{t0}, 4, v{p}")
    k(f"v_lshrrev_b32 v{t0}, 1, v{t0}")
    k(f"v_or_b32 v{dst}, v{dst}, v{t0}")

def wp_block_off(k, dst, x, isk, t0, t1):
    k(f"v_lshrrev_b32 v{t0}, 4, v{x}")
    if P2:
        k(f"v_and_b32 v{t1}, 3, v{t0}")
        k(f"v_mul_u32_u24 v{t1}, 6, v{t1}")
        k(f"v_lshrrev_b32 v{t0}, 2, v{t0}")
        k(f"v_add_u32 v{t0}, v{t0}, v{t1}")
    else:
        k(f"v_mul_u32_u24 v{t1}, 11, v{t0}")
        k(f"v_lshrrev_b32 v{t1}, 5, v{t1}")
        k(f"v_mul_u32_u24 v{t1}, 3, v{t1}")
        k(f"v_add_u32 v{t0}, v{t0}, v{t1}")
    if isk: k(f"v_add_u32 v{t0}, 3, v{t0}")
    k(f"v_mul_u32_u24 v{t0}, 20480, v{t0}")
    k(f"v_and_b32 v{t1}, 15, v{x}")
    k(f"v_lshl_add_u32 v{dst}, v{t1}, 4, v{t0}")

CH_ROW = [0, 1, 8, 9, 2, 3, 10, 11]

def chunk_base_lane(k, dst, c, t0):
    k(f"v_lshrrev_b32 v{dst}, 2, v{c}")
    k(f"v_lshlrev_b32 v{dst}, 5, v{dst}")
    k(f"v_and_b32 v{t0}, 2, v{c}")
    k(f"v_lshl_add_u32 v{dst}, v{t0}, 3, v{dst}")
    k(f"v_and_b32 v{t0}, 1, v{c}")
    k(f"v_lshl_add_u32 v{dst}, v{t0}, 2, v{dst}")

N_WVO = 160
N_PWP = 240
N_CLR = 64
N_CTL = 5
PREP_WG = N_WVO + N_PWP + N_CLR + N_CTL

def role_wvo(k):
    L = lambda s: k.ref('wvo_' + s)
    k.ptr(KA_WV, 24); k.ptr(KA_WO, 26)
    k("s_and_b32 s21, s20, 1")
    k("s_lshr_b32 s22, s20, 1")
    k("s_mul_i32 s23, s22, 205")
    k("s_lshr_b32 s23, s23, 11")
    k("s_mul_i32 s28, s23, 10")
    k("s_sub_u32 s22, s22, s28")
    k("s_waitcnt lgkmcnt(0)")
    k.srd(32, 24, 640 * 6144 * 2)
    k.srd(36, 26, 6144 * 640 * 2)
    VI, VH = 1, 2
    k(f"v_and_b32 v{VI}, 31, v0")
    k(f"v_lshrrev_b32 v{VH}, 5, v0")
    BE, BO, TMP = 16, 64, 112
    k(f"v_mul_u32_u24 v3, {8 * 1280}, v{VH}")
    k(f"v_lshl_add_u32 v3, v{VI}, 2, v3")
    k(f"s_mul_i32 s28, s23, {192*1280}")
    k("s_lshl_b32 s29, s22, 7")
    k("s_add_u32 s28, s28, s29")
    for half in range(2):
        for kk in range(6):
            kap = half * 6 + kk
            for j in range(8):
                row = 16 * kap + j
                k(f"s_add_u32 s29, s28, {row * 1280}")
                k(f"buffer_load_dword v{TMP + 8 * kk + j}, v3, s[36:39], s29 offen")
        k("v_mov_b32 v4, 0x05040100")
        k("v_mov_b32 v5, 0x07060302")
        k("s_waitcnt vmcnt(0)")
        for kk in range(6):
            kap = half * 6 + kk
            for m in range(4):
                k(f"v_perm_b32 v{BE + 4 * kap + m}, v{TMP + 8 * kk + 2 * m + 1}, v{TMP + 8 * kk + 2 * m}, v4")
                k(f"v_perm_b32 v{BO + 4 * kap + m}, v{TMP + 8 * kk + 2 * m + 1}, v{TMP + 8 * kk + 2 * m}, v5")
    k(f"v_lshrrev_b32 v6, 3, v{VI}")
    chunk_base_lane(k, 7, 6, 8)
    k(f"v_and_b32 v8, 7, v{VI}")
    k("v_and_b32 v9, 1, v8")
    k("v_add_u32 v7, v7, v9")
    k("v_and_b32 v9, 2, v8")
    k("v_lshl_add_u32 v7, v9, 2, v7")
    k("v_lshrrev_b32 v9, 2, v8")
    k("v_lshl_add_u32 v7, v9, 1, v7")
    k("v_mul_u32_u24 v7, 12288, v7")
    k(f"v_lshl_add_u32 v7, v{VH}, 4, v7")
    k("s_mul_i32 s28, s23, 384")
    k(f"s_mul_i32 s29, s21, {10 * 32 * 12288}")
    k("s_add_u32 s28, s28, s29")
    k(f"v_lshrrev_b32 v10, 2, v{VI}")
    k("v_mul_u32_u24 v10, 20480, v10")
    k("v_lshlrev_b32 v10, 4, v10")
    k(f"v_and_b32 v11, 3, v{VI}")
    k("v_lshl_add_u32 v10, v11, 5, v10")
    k(f"v_lshl_add_u32 v10, v{VH}, 8, v10")
    k(f"s_mul_i32 s30, s22, {8 * 327680}")
    k("s_lshr_b32 s31, s23, 3")
    k("s_mul_i32 s31, s31, 81920")
    k("s_add_u32 s30, s30, s31")
    k("s_and_b32 s31, s23, 3")
    k("s_mul_i32 s31, s31, 20480")
    k("s_add_u32 s30, s30, s31")
    k("s_bfe_u32 s31, s23, 0x10002")
    k("s_lshl_b32 s31, s31, 7")
    k("s_add_u32 s30, s30, s31")
    k(f"s_mul_i32 s31, s21, 10240")
    k("s_add_u32 s30, s30, s31")
    k(f"s_add_u32 s30, s30, {WY}")
    AF0, AF1, ACC, OUT = 112, 160, 208, 240
    def aload(dst):
        for kap in range(12):
            k(f"buffer_load_dwordx4 {vr(dst + 4 * kap, 4)}, v7, s[32:35], s28 offen offset:{kap * 32}")
        k(f"s_add_u32 s28, s28, {32 * 12288}")
    def tile(src):
        for kap in range(12):
            for t, B in ((0, BE), (1, BO)):
                c = "0" if kap == 0 else vr(ACC + 16 * t, 16)
                k(f"v_mfma_f32_32x32x16_bf16 {vr(ACC + 16 * t, 16)}, {vr(src + 4 * kap, 4)}, {vr(B + 4 * kap, 4)}, {c}")
        k("s_nop 7"); k("s_nop 7")
        for t in range(2):
            a = ACC + 16 * t
            for j in range(2):
                o = OUT + 4 * j
                for q in range(2):
                    k(f"v_cvt_pk_bf16_f32 v{o + 2 * q}, v{a + 8 * j + 4 * q}, v{a + 8 * j + 4 * q + 1}")
                    k(f"v_cvt_pk_bf16_f32 v{o + 2 * q + 1}, v{a + 8 * j + 4 * q + 2}, v{a + 8 * j + 4 * q + 3}")
                k("s_nop 1")
                k(f"v_permlane32_swap_b32 v{o}, v{o + 2}")
                k(f"v_permlane32_swap_b32 v{o + 1}, v{o + 3}")
                k(f"buffer_store_dwordx4 {vr(o, 4)}, v10, {srd}, s30 offen offset:{j * 512 + t * 16}")
            k("s_nop 1")
        k("s_add_u32 s30, s30, 1024")
    aload(AF0)
    k("s_mov_b32 s31, 5")
    k.lab('wvo_loop')
    aload(AF1)
    k("s_waitcnt vmcnt(12)")
    tile(AF0)
    k("s_cmp_eq_u32 s31, 1")
    k(f"s_cbranch_scc1 {L('last')}")
    aload(AF0)
    k("s_waitcnt vmcnt(12)")
    tile(AF1)
    k("s_sub_u32 s31, s31, 1")
    k(f"s_branch {L('loop')}")
    k.lab('wvo_last')
    k("s_waitcnt vmcnt(0)")
    tile(AF1)
    k(f"s_branch {k.ref('end')}")

def role_pwp(k):
    L = lambda s: k.ref('pwp_' + s)
    k("s_mul_i32 s21, s20, 13108"); k("s_lshr_b32 s21, s21, 16")
    k("s_mul_i32 s22, s21, 5"); k("s_sub_u32 s22, s20, s22")
    k("s_mul_i32 s23, s21, 21846"); k("s_lshr_b32 s23, s23, 16")
    k("s_mul_i32 s28, s23, 3"); k("s_sub_u32 s21, s21, s28")
    k("s_lshr_b32 s29, s23, 5")
    k("s_and_b32 s23, s23, 31")
    k("s_cmp_eq_u32 s29, 0")
    k(f"s_cbranch_scc0 {L('k')}")
    k.ptr(KA_WQ, 24)
    k(f"s_branch {L('go')}")
    k.lab('pwp_k')
    k.ptr(KA_WK, 24)
    k.lab('pwp_go')
    k("v_and_b32 v1, 31, v0")
    k("v_lshrrev_b32 v2, 5, v0")
    k("s_lshl_b32 s28, s21, 6")
    k("v_lshlrev_b32 v3, 1, v1")
    k("v_add_u32 v3, s28, v3")
    p2e_lane(k, 4, 3, 5, 6)
    k("s_cmp_eq_u32 s29, 0")
    k("s_cselect_b64 vcc, -1, 0")
    k("s_nop 1")
    k("v_cndmask_b32 v4, v4, v3, vcc")
    wp_block_off(k, 7, 3, 0, 5, 6)
    k(f"s_mul_i32 s30, s29, {3*20480}")
    k("s_mul_i32 s31, s23, 491520")
    k("s_add_u32 s30, s30, s31")
    k(f"s_add_u32 s30, s30, {WP}")
    k("s_lshl_b32 s31, s22, 4")
    k("v_add_u32 v8, s31, v2")
    k("s_waitcnt lgkmcnt(0)")
    k.srd(32, 24, 640 * 6144 * 2)
    k("s_mul_i32 s28, s23, 384")
    RAW, OUT = 16, 80
    for it in range(8):
        k(f"v_add_u32 v9, {2 * it}, v8")
        chunk_base_lane(k, 10, 9, 11)
        k("v_mul_u32_u24 v10, 12288, v10")
        k("v_lshl_add_u32 v10, v4, 1, v10")
        for j in range(8):
            k(f"s_add_u32 s31, s28, {CH_ROW[j] * 12288}")
            k(f"buffer_load_dword v{RAW + 8 * it + j}, v10, s[32:35], s31 offen")
    k("v_lshl_add_u32 v7, v8, 8, v7")
    k("v_mov_b32 v4, 0x05040100")
    k("v_mov_b32 v5, 0x07060302")
    for it in range(8):
        k(f"s_waitcnt vmcnt({8 * (7 - it)})")
        o = OUT + 8 * (it & 1)
        for m in range(4):
            k(f"v_perm_b32 v{o + m}, v{RAW + 8 * it + 2 * m + 1}, v{RAW + 8 * it + 2 * m}, v4")
            k(f"v_perm_b32 v{o + 4 + m}, v{RAW + 8 * it + 2 * m + 1}, v{RAW + 8 * it + 2 * m}, v5")
        k(f"buffer_store_dwordx4 {vr(o, 4)}, v7, {srd}, s30 offen offset:{it * 512}")
        k(f"buffer_store_dwordx4 {vr(o + 4, 4)}, v7, {srd}, s30 offen offset:{it * 512 + 16}")
        if it >= 1: k("s_nop 0")
    k(f"s_branch {k.ref('end')}")

def role_clear(k):
    ex_delta(k, 21)
    per = 4 * EX_BLOCK // N_CLR
    k(f"s_mul_i32 s22, s20, {per}")
    k("s_add_u32 s21, s21, s22")
    k(f"s_lshl_b32 s22, s{S_WAVE}, 10")
    k("s_add_u32 s21, s21, s22")
    k("v_lshlrev_b32 v1, 4, v0")
    for r in range(4, 8): k(f"v_mov_b32 v{r}, -1")
    k(f"s_mov_b32 s22, {per // 4096}")
    k.lab('clr_loop')
    k(f"buffer_store_dwordx4 v[4:7], v1, {srd}, s21 offen")
    k("s_add_u32 s21, s21, 4096")
    k("s_sub_u32 s22, s22, 1")
    k("s_cmp_lg_u32 s22, 0")
    k(f"s_cbranch_scc1 {k.ref('clr_loop')}")
    k(f"s_branch {k.ref('end')}")

CAL_N = 15
import os
CAL_DUMP = int(os.environ.get('CAL_DUMP', '0'))
if CAL_DUMP: CAL_N = 30
def role_zero(k):
    k("v_lshlrev_b32 v1, 4, v0")
    for r in range(4, 8): k(f"v_mov_b32 v{r}, 0")
    k(f"s_lshl_b32 s21, s{S_WAVE}, 10")
    k(f"s_add_u32 s21, s21, {CT_TICK}")
    k(f"buffer_store_dwordx4 v[4:7], v1, {srd}, s21 offen")
    k(f"s_lshl_b32 s21, s{S_WAVE}, 15")
    k(f"s_add_u32 s21, s21, {CT_FLAG}")
    assert 4 * 32768 == 2 * FL_LAYER
    for i in range(32):
        k(f"buffer_store_dwordx4 v[4:7], v1, {srd}, s21 offen offset:{(i % 4) * 1024}")
        if i % 4 == 3: k("s_add_u32 s21, s21, 4096")
    k(f"s_lshl_b32 s21, s{S_WAVE}, 15")
    k(f"s_add_u32 s21, s21, {KVT}")
    assert 4 * 32768 == 2 * KVT_L
    for i in range(32):
        k(f"buffer_store_dwordx4 v[4:7], v1, {srd}, s21 offen offset:{(i % 4) * 1024}")
        if i % 4 == 3: k("s_add_u32 s21, s21, 4096")
    k(f"s_branch {k.ref('end')}")

def role_cal(k):
    k(f"s_cmp_lg_u32 s{S_WAVE}, 0")
    k(f"s_cbranch_scc1 {k.ref('end')}")
    ex_delta(k, 22)
    k("s_getreg_b32 s23, hwreg(HW_REG_XCC_ID)")
    k("s_bfe_u32 s23, s23, 0x10002")
    k("s_mov_b64 exec, 1")
    k("v_mov_b32 v1, 0")
    cal = physmap(CAL_LOG)
    k(f"s_mul_i32 s24, s20, {EX_BLOCK}")
    k("s_add_u32 s22, s22, s24")
    k(f"s_add_u32 s22, s22, {31 * EX_STEP + cal}")
    k("s_mov_b32 s30, -1")
    k("s_mov_b32 s31, -1")
    k(f"s_mov_b32 s25, {CAL_N}")
    k("v_mov_b32 v2, 0")
    k.lab('cal')
    for p in range(2):
        k("s_and_b32 s24, s25, 15")
        k("s_lshl_b32 s24, s24, 7")
        k("s_add_u32 s24, s24, s22")
        if p: k(f"s_add_u32 s24, s24, {p * 8192}")
        k("s_memtime s[26:27]")
        k("s_waitcnt lgkmcnt(0)")
        k(f"buffer_atomic_add v2, v1, {srd}, s24 offen sc0 sc1")
        k("s_waitcnt vmcnt(0)")
        k("s_memtime s[28:29]")
        k("v_mov_b32 v2, 0")
        k("s_waitcnt lgkmcnt(0)")
        k("s_sub_u32 s26, s28, s26")
        k(f"s_min_u32 s{30 + p}, s{30 + p}, s26")
        if CAL_DUMP:
            k("s_lshl_b32 s27, s20, 8")
            k("s_lshl_b32 s28, s25, 3")
            k("s_add_u32 s27, s27, s28")
            k(f"s_add_u32 s27, s27, {CT_PAR + 0x1000 + 4 * p}")
            k("v_mov_b32 v3, s26")
            k(f"buffer_store_dword v3, v1, {srd}, s27 offen")
            k("s_waitcnt vmcnt(0)")
    k("s_sub_u32 s25, s25, 1")
    k("s_cmp_lg_u32 s25, 0")
    k(f"s_cbranch_scc1 {k.ref('cal')}")
    k("s_cmp_lt_u32 s31, s30")
    k("s_cselect_b32 s24, 1, 0")
    k("s_xor_b32 s24, s24, s23")
    k("s_lshl_b32 s24, s24, 13")
    k("v_mov_b32 v3, s24")
    k("s_lshl_b32 s25, s20, 2")
    k(f"s_add_u32 s25, s25, {CT_PAR}")
    k(f"buffer_store_dword v3, v1, {srd}, s25 offen")
    k("s_lshl_b32 s26, s30, 16")
    k("s_or_b32 s26, s26, s31")
    k("v_mov_b32 v3, s26")
    k(f"buffer_store_dword v3, v1, {srd}, s25 offen offset:64")
    k(f"s_branch {k.ref('end')}")

def build_prep(name="prep", newa=False):
    import aly
    k = K(name, vgpr=248, sgpr=64)
    total = PREP_WG + (aly.N_PWA + aly.N_PWO if newa else 0)
    k(f"s_cmp_ge_u32 s2, {total}")
    k(f"s_cbranch_scc1 {k.ref('end')}")
    prologue(k)
    k("s_mov_b32 s20, s2")
    k("s_cmp_lt_u32 s2, 4")
    k(f"s_cbranch_scc1 {k.ref('r_cal')}")
    k("s_cmp_eq_u32 s2, 4")
    k(f"s_cbranch_scc1 {k.ref('r_zero')}")
    k(f"s_sub_u32 s20, s2, {N_CTL}")
    if newa:
        k(f"s_cmp_lt_u32 s20, {aly.N_PWA}")
        k(f"s_cbranch_scc1 {k.ref('r_pwa')}")
        k(f"s_sub_u32 s20, s20, {aly.N_PWA}")
        k(f"s_cmp_lt_u32 s20, {aly.N_PWO}")
        k(f"s_cbranch_scc1 {k.ref('r_pwo')}")
        k(f"s_sub_u32 s20, s20, {aly.N_PWO}")
    k(f"s_cmp_lt_u32 s20, {N_WVO}")
    k(f"s_cbranch_scc1 {k.ref('r_wvo')}")
    k(f"s_sub_u32 s20, s20, {N_WVO}")
    k(f"s_cmp_lt_u32 s20, {N_PWP}")
    k(f"s_cbranch_scc1 {k.ref('r_pwp')}")
    k(f"s_sub_u32 s20, s20, {N_PWP}")
    role_clear(k)
    k.lab('r_cal'); role_cal(k)
    k.lab('r_zero'); role_zero(k)
    k.lab('r_wvo')
    k("s_lshl_b32 s20, s20, 2"); k(f"s_add_u32 s20, s20, s{S_WAVE}")
    role_wvo(k)
    k.lab('r_pwp')
    k("s_lshl_b32 s20, s20, 2"); k(f"s_add_u32 s20, s20, s{S_WAVE}")
    role_pwp(k)
    if newa:
        k.lab('r_pwa'); aly.role_pwa(k)
        k.lab('r_pwo')
        k("s_lshl_b32 s20, s20, 2"); k(f"s_add_u32 s20, s20, s{S_WAVE}")
        aly.role_pwo(k)
    k.lab('end')
    return k, total

def wave_sum(k, v, tmp, s0):
    k("s_nop 1")
    k(f"v_add_f32 v{tmp}, v{v}, v{v} quad_perm:[1,0,3,2] row_mask:0xf bank_mask:0xf")
    k("s_nop 1")
    k(f"v_add_f32 v{tmp}, v{tmp}, v{tmp} quad_perm:[2,3,0,1] row_mask:0xf bank_mask:0xf")
    k("s_nop 1")
    k(f"v_add_f32 v{tmp}, v{tmp}, v{tmp} row_half_mirror row_mask:0xf bank_mask:0xf")
    k("s_nop 1")
    k(f"v_add_f32 v{tmp}, v{tmp}, v{tmp} row_mirror row_mask:0xf bank_mask:0xf")
    k("s_nop 1")
    for i in range(4): k(f"v_readlane_b32 s{s0+i}, v{tmp}, {16*i}")
    k("s_nop 1")
    k(f"v_mov_b32 v{v}, s{s0}")
    for i in range(1, 4): k(f"v_add_f32 v{v}, s{s0+i}, v{v}")

def build_lnb(name, layer, src_off):
    k = K(name, vgpr=32, sgpr=48)
    k("s_cmp_gt_u32 s2, 512")
    k(f"s_cbranch_scc1 {k.ref('end')}")
    prologue(k, [(KA_MEM0, 6)])
    k("s_cmp_eq_u32 s2, 512")
    k(f"s_cbranch_scc1 {k.ref('mem0')}")
    k("s_lshl_b32 s20, s2, 2")
    k(f"s_add_u32 s20, s20, s{S_WAVE}")
    k("s_mul_i32 s21, s20, 1280")
    k(f"s_add_u32 s21, s21, {src_off}")
    k("v_lshlrev_b32 v3, 2, v0")
    for j in range(5): k(f"buffer_load_dword v{4+j}, v3, {srd}, s21 offen offset:{j*256}")
    k("v_lshrrev_b32 v20, 4, v0")
    k("v_lshlrev_b32 v20, 2, v20")
    k("v_bfe_u32 v21, v0, 3, 1")
    k("v_lshl_add_u32 v20, v21, 1, v20")
    k("v_bfe_u32 v21, v0, 1, 1")
    k("v_add_u32 v20, v20, v21")
    k("v_lshlrev_b32 v20, 9, v20")
    k("v_and_b32 v21, 1, v0")
    k("v_lshl_add_u32 v20, v21, 3, v20")
    k("v_bfe_u32 v21, v0, 2, 1")
    k("v_lshl_add_u32 v23, v21, 2, v20")
    k("s_lshr_b32 s22, s20, 5")
    k(f"s_mul_i32 s22, s22, {XN_SEG}")
    k("s_and_b32 s23, s20, 31")
    k("s_lshl_b32 s23, s23, 4")
    k("s_add_u32 s22, s22, s23")
    k(f"s_add_u32 s22, s22, {XN}")
    k("s_waitcnt vmcnt(0)")
    for j in range(5):
        k(f"v_lshlrev_b32 v{10+2*j}, 16, v{4+j}")
        k(f"v_and_b32 v{11+2*j}, 0xffff0000, v{4+j}")
    k("v_add_f32 v20, v10, v11")
    for j in range(2, 10): k(f"v_add_f32 v20, v20, v{10+j}")
    wave_sum(k, 20, 21, 24)
    k(f"v_mul_f32 v20, {hexf(1.0/640)}, v20")
    for j in range(10): k(f"v_sub_f32 v{10+j}, v{10+j}, v20")
    k("v_mul_f32 v21, v10, v10")
    for j in range(1, 10): k(f"v_fmac_f32 v21, v{10+j}, v{10+j}")
    wave_sum(k, 21, 22, 24)
    k("v_mov_b32 v22, 0x3727c5ac")
    k(f"v_fmac_f32 v22, {hexf(1.0/640)}, v21")
    k("v_rsq_f32 v22, v22")
    k("s_nop 0")
    for j in range(10): k(f"v_mul_f32 v{10+j}, v{10+j}, v22")
    for j in range(5): k(f"v_cvt_pk_bf16_f32 v{4+j}, v{10+2*j}, v{11+2*j}")
    for j in range(5):
        k(f"s_add_u32 s23, s22, {j * 16 * 512}")
        k(f"buffer_store_dword v{4+j}, v23, {srd}, s23 offen")
    k(f"s_branch {k.ref('end')}")
    k.lab('mem0')
    k.srd(16, 6, 8 * 640 * 2)
    ex_delta(k, 22)
    k(f"s_mov_b32 s23, {CT_PAR + 8 * layer}")
    k(f"s_buffer_load_dword s24, {srd}, s23")
    k("s_waitcnt lgkmcnt(0)")
    k("s_and_b32 s24, s24, 8192")
    k(f"s_add_u32 s22, s22, {2 * layer * EX_BLOCK}")
    k("s_xor_b32 s25, s24, 8192")
    k("s_add_u32 s26, s22, s25")
    k("s_add_u32 s22, s22, s24")
    k(f"s_lshl_b32 s25, s{S_WAVE}, 6")
    k("v_add_u32 v1, s25, v0")
    for it in range(3):
        k(f"v_add_u32 v2, {256 * it}, v1")
        k("v_and_b32 v3, 7, v2")
        k("v_mul_u32_u24 v3, 1280, v3")
        k("v_lshrrev_b32 v4, 3, v2")
        k("v_lshl_add_u32 v3, v4, 4, v3")
        k("v_lshlrev_b32 v5, 4, v2")
        k(f"v_add_u32 v5, {M_LOG}, v5")
        k("v_lshrrev_b32 v6, 13, v5")
        k("v_lshlrev_b32 v6, 14, v6")
        k("v_and_b32 v5, 8191, v5")
        k("v_add_u32 v5, v5, v6")
        k("v_cmp_gt_u32 vcc, 640, v2")
        k("s_and_saveexec_b64 s[30:31], vcc")
        sk = k.ref(f'm0s{it}')
        k(f"s_cbranch_execz {sk}")
        k("buffer_load_dwordx4 v[8:11], v3, s[16:19], 0 offen")
        k("s_waitcnt vmcnt(0)")
        k(f"buffer_store_dwordx4 v[8:11], v5, {srd}, s22 offen")
        k(f"buffer_store_dwordx4 v[8:11], v5, {srd}, s26 offen")
        k.lab(f'm0s{it}')
        k("s_mov_b64 exec, s[30:31]")
    k.lab('end')
    return k, 513

G_LDS = 3 * XN_SEG
GV_L16 = 1; GV_RD = 2; GV_ST = 3; GV_W = 4
G_RING = 8; G_NR = 8
G_ACC = 40
G_OUT = 104
G_WV = 192
GS_LNW = 56; GS_LNA = 57; GS_SPIN = 58
GS_SEG = 14; GS_END = 15; GS_BUF = 16; GS_ST0 = 17; GS_ST1 = 18; GS_DMA = 19; GS_INC = 20; GS_LB = 21; GS_NB = 22

def gw(kap, t):
    n = kap * 2 + t
    return ar(4 * n, 4) if n < 64 else vr(G_WV + 4 * (n - 64), 4)

def gemm_body(k, isu, tag, cfg):
    L = lambda s: k.ref(f"g{tag}_{s}")
    lab = lambda s: k.lab(f"g{tag}_{s}")
    ovl = cfg.get('ovl'); SC1 = " sc1" if ovl else ""
    LNW = cfg.get('na') in (2, 3, 4)
    NSOLO = cfg.get('nsolo', 0); SOLO = NSOLO > 0
    nfl = [0]
    def flag(val_s):
        if not ovl: return
        nfl[0] += 1
        sk = f"g{tag}_fl{nfl[0]}"
        k(f"s_cmp_lg_u32 s{S_WAVE}, 0")
        k(f"s_cbranch_scc1 {k.ref(sk)}")
        k("s_mov_b64 exec, 1")
        k(f"s_lshl_b32 s26, s{cfg['cg_s']}, 7")
        k("v_mov_b32 v7, s26")
        k(f"v_mov_b32 v{G_OUT + 16}, s{val_s}")
        k(f"buffer_store_dword v{G_OUT + 16}, v7, {srd}, s{cfg['flag_s']} offen sc1")
        k("s_mov_b64 exec, -1")
        k.lab(sk)
    def dma_items(seg_s):
        it = [[f"s_min_u32 s24, s{seg_s}, 63", f"s_mul_i32 s24, s24, {XN_SEG}", f"s_add_u32 s24, s24, s{GS_DMA}",
               f"s_mul_i32 s25, s{S_WAVE}, 10240", f"s_add_u32 s25, s25, s{GS_NB}"]]
        for grp in range(3):
            for i in range(4 if grp < 2 else 2):
                p = []
                if i == 0:
                    if grp: p += ["s_add_u32 s24, s24, 4096", "s_add_u32 s25, s25, 4096"]
                    p += ["s_mov_b32 m0, s25", "s_nop 0"]
                p.append(f"buffer_load_dwordx4 v{GV_L16}, {srd}, s24 offen offset:{i * 1024}{' sc1' if LNW else ''} lds")
                it.append(p)
        return it
    def dma(seg_s):
        for p in dma_items(seg_s):
            for x in p: k(x)
    def lnwait(seg_s):
        if not LNW: return
        nfl[0] += 1
        sk = f"g{tag}_lw{nfl[0]}"; lp = f"g{tag}_lp{nfl[0]}"
        k(f"s_cmp_lg_u32 s{S_WAVE}, 0")
        k(f"s_cbranch_scc1 {k.ref(sk)}")
        k(f"s_min_u32 s28, s{seg_s}, 63")
        k(f"s_cmp_gt_u32 s{GS_LNW}, s28")
        k(f"s_cbranch_scc1 {k.ref(sk)}")
        k.lab(lp)
        k(f"buffer_load_dwordx4 v[124:127], v{GV_L16}, {srd}, s{GS_LNA} offen sc1")
        k("s_waitcnt vmcnt(0)")
        k("v_min_u32 v124, v124, v125")
        k("v_min_u32 v126, v126, v127")
        k("v_min_u32 v124, v124, v126")
        k("v_cmp_eq_u32 vcc, 0, v124")
        k("s_nop 1")
        k(f"s_ff1_i32_b64 s{GS_LNW}, vcc")
        k(f"s_min_u32 s{GS_LNW}, s{GS_LNW}, 64")
        k(f"s_sub_u32 s{GS_SPIN}, s{GS_SPIN}, 1")
        k(f"s_cbranch_scc1 {k.ref('bail')}")
        k(f"s_cmp_gt_u32 s{GS_LNW}, s28")
        k(f"s_cbranch_scc0 {k.ref(lp)}")
        k.lab(sk)
    def nextbuf(dst, src):
        k(f"s_add_u32 s{dst}, s{src}, {XN_SEG}")
        k(f"s_cmp_eq_u32 s{dst}, {G_LDS}")
        k(f"s_cselect_b32 s{dst}, 0, s{dst}")
    k(f"s_mul_i32 s{GS_DMA}, s{S_WAVE}, 10240")
    k(f"s_add_u32 s{GS_DMA}, s{GS_DMA}, {XN}")
    k(f"s_mov_b32 s{GS_NB}, 0")
    if LNW:
        k(f"s_mov_b32 s{GS_LNW}, 0")
        k(f"s_mov_b32 s{GS_SPIN}, 400000")
        k(f"s_add_u32 s{GS_LNA}, s{cfg['flag_s']}, {FL_LN}")
        if cfg.get('rt'): k("s_memrealtime s[60:61]")
        lnwait(GS_SEG)
        k("s_barrier")
        if cfg.get('rt'): k("s_memrealtime s[62:63]")
        dma(GS_SEG)
        k(f"s_mov_b32 s{GS_NB}, {XN_SEG}")
        k(f"s_mov_b32 s{GS_BUF}, 0")
        k("s_waitcnt vmcnt(0)")
    else:
        dma(GS_SEG)
        k(f"s_mov_b32 s{GS_NB}, {XN_SEG}")
        k(f"s_add_u32 s23, s{GS_SEG}, 1")
        dma(23)
        k(f"s_mov_b32 s{GS_NB}, {2 * XN_SEG}")
        k(f"s_mov_b32 s{GS_BUF}, 0")
        k("s_waitcnt vmcnt(10)")
    k("s_barrier")
    if cfg.get('rt'): k("s_memrealtime s[66:67]")
    k(f"v_mov_b32 v{GV_RD}, v{GV_L16}")
    for r in range(G_NR - 2):
        k(f"ds_read_b128 {vr(G_RING + 4 * r, 4)}, v{GV_RD} offset:{r * 1024}")
    PRE = G_NR - 2
    def epilogue_items(par):
        it = []
        for t in range(2):
            a = G_ACC + 32 * par + 16 * t
            for j in range(2):
                o = G_OUT + 4 * ((2 * t + j) & 3)
                for q in range(2):
                    it.append(f"v_cvt_pk_bf16_f32 v{o + 2 * q}, v{a + 8 * j + 4 * q}, v{a + 8 * j + 4 * q + 1}")
                    it.append(f"v_cvt_pk_bf16_f32 v{o + 2 * q + 1}, v{a + 8 * j + 4 * q + 2}, v{a + 8 * j + 4 * q + 3}")
                it.append("s_nop 1")
                it.append(f"v_permlane32_swap_b32 v{o}, v{o + 2}")
                it.append(f"v_permlane32_swap_b32 v{o + 1}, v{o + 3}")
                if isu: it.append(f"buffer_store_dwordx4 {vr(o, 4)}, v{GV_ST}, {srd}, s{GS_ST0} offen offset:{t * 2560 + j * 256}{SC1}")
                else:   it.append(f"buffer_store_dwordx4 {vr(o, 4)}, v{GV_ST}, {srd}, s{GS_ST0 + t} offen offset:{j * 1024}{SC1}")
        it.append(f"s_add_u32 s{GS_ST0}, s{GS_ST0}, s{GS_INC}")
        it.append(f"s_add_u32 s{GS_ST1}, s{GS_ST1}, s{GS_INC}")
        return it
    def segment(par, first, start=None, late=True, solo=False):
        side = {i: [] for i in range(80)}
        if not first:
            for n, it in enumerate(epilogue_items(par ^ 1)): side[4 + n].append(it)
        for kap in range(40):
            slot = kap % G_NR
            nk = kap + PRE
            if nk == 40 and not solo:
                k(f"v_add_u32 v{GV_RD + 4}, s{GS_LB}, v{GV_L16}")
            rb = GV_RD if nk < 40 else GV_RD + 4
            if nk < 40 or not solo:
                k(f"ds_read_b128 {vr(G_RING + 4 * (nk % G_NR), 4)}, v{rb} offset:{(nk % 40) * 1024}")
            k(f"s_waitcnt lgkmcnt({min(PRE, 39 - kap) if solo else PRE})")
            if solo and kap == 30:
                k(f"buffer_load_dwordx4 v[124:127], v{GV_L16}, {srd}, s{GS_LNA} offen sc1")
            x = vr(G_RING + 4 * slot, 4)
            for t in range(2):
                d = vr(G_ACC + 32 * par + 16 * t, 16)
                c = "0" if kap == 0 else d
                if isu: k(f"v_mfma_f32_32x32x16_bf16 {d}, {x}, {gw(kap, t)}, {c}")
                else:   k(f"v_mfma_f32_32x32x16_bf16 {d}, {gw(kap, t)}, {x}, {c}")
                for it in side[2 * kap + t]: k(it)
            if start is not None and kap == start:
                k(f"s_add_u32 s23, s{GS_SEG}, 1")
                lnwait(23)
                k("s_barrier")
                items = dma_items(23)
                for x_ in items[0]: k(x_)
                for n, p in enumerate(items[1:]): side[2 * (kap + 1 + n)] += p
                nextbuf(GS_NB, GS_NB)
            if kap == 28 and not solo:
                if late:
                    k(f"s_add_u32 s23, s{GS_SEG}, 2")
                    lnwait(23)
                if first or not ovl:
                    k("s_waitcnt vmcnt(0)" if first else "s_waitcnt vmcnt(4)")
                    k("s_barrier")
                else:
                    nfl[0] += 1
                    l1 = f"g{tag}_dr{nfl[0]}"; l2 = f"g{tag}_dq{nfl[0]}"
                    k(f"s_cmp_gt_u32 s{GS_SEG}, {NSOLO + 2 if SOLO else 2}")
                    k(f"s_cbranch_scc1 {k.ref(l1)}")
                    k("s_waitcnt vmcnt(0)")
                    k(f"s_mov_b32 s27, s{GS_SEG}")
                    k(f"s_branch {k.ref(l2)}")
                    k.lab(l1)
                    k("s_waitcnt vmcnt(4)")
                    k(f"s_sub_u32 s27, s{GS_SEG}, 1")
                    k.lab(l2)
                    k("s_barrier")
                    flag(27)
                nextbuf(GS_LB, GS_BUF)
                if late:
                    k(f"s_add_u32 s23, s{GS_SEG}, 2")
                    items = dma_items(23)
                    for x_ in items[0]: k(x_)
                    for n, p in enumerate(items[1:]): side[2 * (kap + 1 + n)] += p
                    nextbuf(GS_NB, GS_NB)
        if not solo:
            k(f"v_mov_b32 v{GV_RD}, v{GV_RD + 4}")
            k(f"s_mov_b32 s{GS_BUF}, s{GS_LB}")
        k(f"s_add_u32 s{GS_SEG}, s{GS_SEG}, 1")
    if LNW and SOLO:
        lab('solo')
        segment(0, True, None, False, True)
        k("s_nop 7"); k("s_nop 7")
        for it in epilogue_items(0): k(it)
        k("s_waitcnt vmcnt(0)")
        k("s_barrier")
        flag(GS_SEG)
        if cfg.get('rt'):
            k(f"s_cmp_lg_u32 s{GS_SEG}, 1"); k(f"s_cbranch_scc1 {L('rt1')}"); k("s_memrealtime s[68:69]"); lab('rt1')
        lab('spoll')
        k("v_min_u32 v124, v124, v125")
        k("v_min_u32 v126, v126, v127")
        k("v_min_u32 v124, v124, v126")
        k("v_cmp_eq_u32 vcc, 0, v124")
        k("s_nop 1")
        k(f"s_ff1_i32_b64 s{GS_LNW}, vcc")
        k(f"s_min_u32 s{GS_LNW}, s{GS_LNW}, 64")
        k(f"s_cmp_gt_u32 s{GS_LNW}, s{GS_SEG}")
        k(f"s_cbranch_scc1 {L('sok')}")
        k(f"s_sub_u32 s{GS_SPIN}, s{GS_SPIN}, 1")
        k(f"s_cbranch_scc1 {k.ref('bail')}")
        k(f"buffer_load_dwordx4 v[124:127], v{GV_L16}, {srd}, s{GS_LNA} offen sc1")
        k("s_waitcnt vmcnt(0)")
        k(f"s_branch {L('spoll')}")
        lab('sok')
        dma(GS_SEG)
        k(f"s_mov_b32 s{GS_BUF}, s{GS_NB}")
        nextbuf(GS_NB, GS_NB)
        k(f"v_add_u32 v{GV_RD}, s{GS_BUF}, v{GV_L16}")
        k("s_waitcnt vmcnt(0)")
        k("s_barrier")
        for r in range(G_NR - 2):
            k(f"ds_read_b128 {vr(G_RING + 4 * r, 4)}, v{GV_RD} offset:{r * 1024}")
        k(f"s_cmp_lt_u32 s{GS_SEG}, {NSOLO}")
        k(f"s_cbranch_scc1 {L('solo')}")
        segment(1, True, 2)
        if cfg.get('rt'): k("s_memrealtime s[70:71]")
        lab('loop')
        segment(0, False)
        k(f"s_cmp_ge_u32 s{GS_SEG}, s{GS_END}")
        k(f"s_cbranch_scc1 {L('fin0')}")
        segment(1, False)
        k(f"s_cmp_lt_u32 s{GS_SEG}, s{GS_END}")
        k(f"s_cbranch_scc1 {L('loop')}")
        k(f"s_branch {L('fin1')}")
    elif LNW:
        segment(0, True, 6, False)
        k("s_nop 7"); k("s_nop 7")
        for it in epilogue_items(0): k(it)
        k("s_waitcnt vmcnt(0)")
        k("s_barrier")
        flag(GS_SEG)
        if cfg.get('rt'): k("s_memrealtime s[68:69]")
        segment(1, True, 2)
        if cfg.get('rt'): k("s_memrealtime s[70:71]")
        lab('loop')
        segment(0, False)
        k(f"s_cmp_ge_u32 s{GS_SEG}, s{GS_END}")
        k(f"s_cbranch_scc1 {L('fin0')}")
        segment(1, False)
        k(f"s_cmp_lt_u32 s{GS_SEG}, s{GS_END}")
        k(f"s_cbranch_scc1 {L('loop')}")
        k(f"s_branch {L('fin1')}")
    else:
        segment(0, True)
        k(f"s_cmp_ge_u32 s{GS_SEG}, s{GS_END}")
        k(f"s_cbranch_scc1 {L('fin0')}")
        lab('loop')
        segment(1, False)
        k(f"s_cmp_ge_u32 s{GS_SEG}, s{GS_END}")
        k(f"s_cbranch_scc1 {L('fin1')}")
        segment(0, False)
        k(f"s_cmp_lt_u32 s{GS_SEG}, s{GS_END}")
        k(f"s_cbranch_scc1 {L('loop')}")
    lab('fin0')
    k("s_nop 7"); k("s_nop 7")
    for it in epilogue_items(0): k(it)
    k(f"s_branch {L('done')}")
    lab('fin1')
    k("s_nop 7"); k("s_nop 7")
    for it in epilogue_items(1): k(it)
    lab('done')
    k("s_waitcnt vmcnt(0) lgkmcnt(0)")
    if ovl:
        k("s_barrier")
        flag(GS_SEG)

def u_weight_addr(k, cg_s, vr_, vhf, vt, out_v, out_s, st):
    k(f"v_lshrrev_b32 v{vt}, 3, v{vr_}")
    k(f"v_and_b32 v{vt+1}, 7, v{vr_}")
    k(f"v_mul_u32_u24 v{vt+2}, 20480, v{vt}")
    k(f"v_lshl_add_u32 v{vt+2}, v{vt+1}, 4, v{vt+2}")
    k(f"v_lshl_add_u32 v{out_v}, v{vhf}, 8, v{vt+2}")
    k(f"s_mul_i32 s{st}, s{cg_s}, 327680")
    k(f"s_mul_i32 s{st+1}, s{S_WAVE}, 81920")
    k(f"s_add_u32 s{st}, s{st}, s{st+1}")
    k(f"s_add_u32 s{out_s}, s{st}, {WY}")

def qk_setup(k, cg_s, vr_, vhf, vt, out_v, out_s, st, st0):
    S = lambda n: f"s{st + n - 26}"
    k(f"s_sub_u32 {S(26)}, s{cg_s}, 80")
    k(f"s_cmp_ge_u32 {S(26)}, 24")
    k(f"s_cselect_b32 {S(27)}, 1, 0")
    k(f"s_cselect_b32 {S(28)}, 24, 0")
    k(f"s_sub_u32 {S(26)}, {S(26)}, {S(28)}")
    k(f"s_lshl_b32 {S(26)}, {S(26)}, 3")
    k(f"s_lshl_b32 {S(28)}, s{S_WAVE}, 1")
    k(f"s_add_u32 {S(26)}, {S(26)}, {S(28)}")
    for t in range(2):
        k(f"s_add_u32 {S(28)}, {S(26)}, {t}")
        k(f"s_mul_i32 {S(29)}, {S(28)}, 171")
        k(f"s_lshr_b32 {S(29)}, {S(29)}, 10")
        k(f"s_mul_i32 {S(30)}, {S(29)}, 6")
        k(f"s_sub_u32 {S(30)}, {S(28)}, {S(30)}")
        if st0 is not None:
            k(f"s_mul_i32 {S(31)}, {S(29)}, {KX_SH}")
            k(f"s_lshl_b32 {S(32)}, {S(30)}, 11")
            k(f"s_add_u32 {S(31)}, {S(31)}, {S(32)}")
            k(f"s_mul_i32 {S(32)}, s{GS_SEG}, {32 * KX_SH}")
            k(f"s_add_u32 {S(31)}, {S(31)}, {S(32)}")
            k(f"s_mul_i32 {S(32)}, {S(27)}, {QX - KX}")
            k(f"s_add_u32 {S(31)}, {S(31)}, {S(32)}")
            k(f"s_add_u32 s{st0 + t}, {S(31)}, {KX}")
        k(f"s_lshl_b32 {S(30)}, {S(30)}, 5")
        k(f"v_add_u32 v{vt}, {S(30)}, v{vr_}")
        p2e_lane(k, vt + 1, vt, vt + 2, vt + 3)
        k(f"s_cmp_eq_u32 {S(27)}, 1")
        k("s_cselect_b64 vcc, -1, 0")
        k("s_nop 1")
        k(f"v_cndmask_b32 v{vt}, v{vt}, v{vt+1}, vcc")
        wp_block_off(k, vt + 1, vt, 0, vt + 2, vt + 3)
        k(f"v_lshl_add_u32 v{out_v + t}, v{vhf}, 8, v{vt+1}")
        k(f"s_xor_b32 {S(30)}, {S(27)}, 1")
        k(f"s_mul_i32 {S(30)}, {S(30)}, {3*20480}")
        k(f"s_mul_i32 {S(31)}, {S(29)}, 491520")
        k(f"s_add_u32 {S(30)}, {S(30)}, {S(31)}")
        k(f"s_add_u32 s{out_s + t}, {S(30)}, {WP}")

def role_gemm(k, cg_s, cfg=None):
    cfg = dict(cfg or {}, cg_s=cg_s)
    WIN = cfg.get('wing', cfg.get('win'))
    L = lambda s: k.ref('g_' + s)
    k(f"v_lshlrev_b32 v{GV_L16}, 4, v0")
    k("v_and_b32 v8, 31, v0")
    k("v_lshrrev_b32 v9, 5, v0")
    k(f"s_cmp_ge_u32 s{cg_s}, 80")
    k(f"s_cbranch_scc1 {L('qk')}")
    u_weight_addr(k, cg_s, 8, 9, 10, GV_W, 24, 24)
    SEMI = cfg.get('na') == 4
    for kap in range(40):
        if kap % 7 == 0 and kap: k(f"s_add_u32 s24, s24, {7 * 512}")
        if SEMI and kap < cfg.get('npf', 64) // 2: continue
        for t in range(2):
            k(f"buffer_load_dwordx4 {gw(kap, t)}, v{GV_W}, {srd}, s24 offen offset:{(kap % 7) * 512 + t * 128}")
            if WIN and 2 * kap + t >= WIN: k(f"s_waitcnt vmcnt({WIN})")
    k(f"s_lshl_b32 s25, s{S_WAVE}, 3")
    k("v_add_u32 v10, s25, v10")
    k("v_mul_u32_u24 v10, 640, v10")
    k("v_lshl_add_u32 v10, v9, 7, v10")
    k("v_lshl_add_u32 v10, v11, 4, v10")
    k(f"v_add_u32 v{GV_ST}, 128, v10")
    k(f"s_mul_i32 s{GS_ST0}, s{cg_s}, 20480")
    k(f"s_mul_i32 s25, s{GS_SEG}, {Z_SEG}")
    k(f"s_add_u32 s{GS_ST0}, s{GS_ST0}, s25")
    k(f"s_add_u32 s{GS_ST0}, s{GS_ST0}, {Z}")
    k(f"s_mov_b32 s{GS_INC}, {Z_SEG}")
    gemm_body(k, True, 'u', cfg)
    k(f"s_branch {L('done')}")
    k.lab('g_qk')
    qk_setup(k, cg_s, 8, 9, 10, GV_W, 34, 26, GS_ST0)
    for kap in range(40):
        if kap % 8 == 0 and kap:
            k("s_add_u32 s34, s34, 4096"); k("s_add_u32 s35, s35, 4096")
        if SEMI and kap < cfg.get('npf', 64) // 2: continue
        for t in range(2):
            k(f"buffer_load_dwordx4 {gw(kap, t)}, v{GV_W + t}, {srd}, s{34 + t} offen offset:{(kap % 8) * 512}")
            if WIN and 2 * kap + t >= WIN: k(f"s_waitcnt vmcnt({WIN})")
    k(f"v_mov_b32 v{GV_ST}, v{GV_L16}")
    k(f"s_mov_b32 s{GS_INC}, {32 * KX_SH}")
    gemm_body(k, False, 'k', cfg)
    k.lab('g_done')

def build_gemmb(name="gemmb", nsplit=2):
    k = K(name, vgpr=256, sgpr=64, agpr=256)
    k(f"s_cmp_ge_u32 s2, {128 * nsplit}")
    k(f"s_cbranch_scc1 {k.ref('end')}")
    prologue(k)
    k("s_and_b32 s36, s2, 127")
    k("s_lshr_b32 s37, s2, 7")
    k(f"s_mul_i32 s{GS_SEG}, s37, {64 // nsplit}")
    k(f"s_add_u32 s{GS_END}, s{GS_SEG}, {64 // nsplit}")
    role_gemm(k, 36)
    k.lab('end')
    return k, 128 * nsplit, G_LDS

def role_w3a(k, seg_s, h_s, SC1=""):
    Q, KK, KMF, D1, D2, BI = 16, 64, 112, 160, 176, 192
    T = 208
    k("v_lshlrev_b32 v1, 4, v0")
    k("v_and_b32 v2, 31, v0")
    k("v_lshrrev_b32 v3, 5, v0")
    k(f"s_lshl_b32 s24, s{seg_s}, 5")
    k(f"s_add_u32 s24, s24, s{h_s}")
    k(f"s_mul_i32 s25, s24, {KX_SH}")
    k(f"s_add_u32 s26, s25, {QX}")
    k(f"s_add_u32 s27, s25, {KX}")
    k(f"s_mul_i32 s28, s24, {KM_SH}")
    k(f"s_add_u32 s28, s28, {KM}")
    k("v_and_b32 v4, 7, v0")
    k("v_lshlrev_b32 v4, 4, v4")
    k("v_lshl_add_u32 v4, v3, 7, v4")
    for kap in range(12):
        if kap % 4 == 0 and kap:
            k("s_add_u32 s26, s26, 4096"); k("s_add_u32 s27, s27, 4096")
        k(f"buffer_load_dwordx4 {vr(Q + 4 * kap, 4)}, v1, {srd}, s26 offen offset:{(kap % 4) * 1024}{SC1}")
        k(f"buffer_load_dwordx4 {vr(KK + 4 * kap, 4)}, v1, {srd}, s27 offen offset:{(kap % 4) * 1024}{SC1}")
        k(f"buffer_load_dwordx4 {vr(KMF + 4 * kap, 4)}, v4, {srd}, s28 offen offset:{kap * 256}{SC1}")
    k("v_lshlrev_b32 v5, 2, v3")
    k("v_sub_u32 v5, v2, v5")
    k(f"v_mov_b32 v6, {hexf(-1e30)}")
    for r in range(16):
        k(f"v_cmp_gt_i32 vcc, {(r & 3) + 8 * (r >> 2)}, v5")
        k("s_nop 1")
        k(f"v_cndmask_b32 v{BI + r}, 0, v6, vcc")
    for kap in range(12):
        k(f"s_waitcnt vmcnt({3 * (11 - kap)})")
        k(f"v_mfma_f32_32x32x16_bf16 {vr(D1, 16)}, {vr(KK + 4 * kap, 4)}, {vr(Q + 4 * kap, 4)}, {'0' if kap == 0 else vr(D1, 16)}")
        k(f"v_mfma_f32_32x32x16_bf16 {vr(D2, 16)}, {vr(KMF + 4 * kap, 4)}, {vr(Q + 4 * kap, 4)}, {'0' if kap == 0 else vr(D2, 16)}")
    k("s_nop 7"); k("s_nop 7")
    c = hexf(CSC)
    k(f"v_mov_b32 v7, {c}")
    for r in range(16): k(f"v_fma_f32 v{D1 + r}, v{D1 + r}, v7, v{BI + r}")
    for r in range(4): k(f"v_mul_f32 v{D2 + r}, v{D2 + r}, v7")
    vals = [D1 + r for r in range(16)] + [D2 + r for r in range(4)]
    m, u = T, T + 1
    k(f"v_max3_f32 v{m}, v{vals[0]}, v{vals[1]}, v{vals[2]}")
    rest = vals[3:]
    while len(rest) >= 2:
        k(f"v_max3_f32 v{m}, v{m}, v{rest[0]}, v{rest[1]}"); rest = rest[2:]
    if rest: k(f"v_max_f32 v{m}, v{m}, v{rest[0]}")
    k(f"v_mov_b32 v{u}, v{m}")
    k("s_nop 1")
    k(f"v_permlane32_swap_b32 v{m}, v{u}")
    k(f"v_max_f32 v{m}, v{m}, v{u}")
    for r in vals: k(f"v_sub_f32 v{r}, v{r}, v{m}")
    for r in vals: k(f"v_exp_f32 v{r}, v{r}")
    k("s_nop 0")
    s_ = T + 2
    k(f"v_add_f32 v{s_}, v{vals[0]}, v{vals[1]}")
    for r in vals[2:]: k(f"v_add_f32 v{s_}, v{s_}, v{r}")
    k(f"v_mov_b32 v{u}, v{s_}")
    k("s_nop 1")
    k(f"v_permlane32_swap_b32 v{s_}, v{u}")
    k(f"v_add_f32 v{s_}, v{s_}, v{u}")
    k(f"v_rcp_f32 v{s_}, v{s_}")
    k("s_nop 0")
    for r in vals: k(f"v_mul_f32 v{r}, v{r}, v{s_}")
    k(f"s_mul_i32 s25, s{seg_s}, {PX_SEG}")
    k(f"s_mul_i32 s26, s{h_s}, 2560")
    k("s_add_u32 s25, s25, s26")
    k(f"s_add_u32 s25, s25, {PXB}")
    O = Q
    for j in range(2):
        o = O + 4 * j
        for q in range(2):
            k(f"v_cvt_pk_bf16_f32 v{o + 2 * q}, v{D1 + 8 * j + 4 * q}, v{D1 + 8 * j + 4 * q + 1}")
            k(f"v_cvt_pk_bf16_f32 v{o + 2 * q + 1}, v{D1 + 8 * j + 4 * q + 2}, v{D1 + 8 * j + 4 * q + 3}")
        k("s_nop 1")
        k(f"v_permlane32_swap_b32 v{o}, v{o + 2}")
        k(f"v_permlane32_swap_b32 v{o + 1}, v{o + 3}")
        k(f"buffer_store_dwordx4 {vr(o, 4)}, v1, {srd}, s25 offen offset:{512 + j * 1024}{SC1}")
    k(f"v_cvt_pk_bf16_f32 v{O + 8}, v{D2}, v{D2 + 1}")
    k(f"v_cvt_pk_bf16_f32 v{O + 9}, v{D2 + 2}, v{D2 + 3}")
    k("v_lshlrev_b32 v4, 4, v2")
    k("v_lshl_add_u32 v4, v3, 3, v4")
    k(f"buffer_store_dwordx2 {vr(O + 8, 2)}, v4, {srd}, s25 offen{SC1}")

def build_w3a(name="w3a"):
    k = K(name, vgpr=216, sgpr=48)
    k("s_cmp_ge_u32 s2, 512")
    k(f"s_cbranch_scc1 {k.ref('end')}")
    prologue(k)
    k("s_lshl_b32 s20, s2, 2")
    k(f"s_add_u32 s20, s20, s{S_WAVE}")
    k("s_lshr_b32 s21, s20, 5")
    k("s_and_b32 s22, s20, 31")
    role_w3a(k, 21, 22)
    k.lab('end')
    return k, 512

def role_w3b(k, seg_s, cg_s, res_off, out_srd, out_off, NR=16, SC1=""):
    RING = 32; ACC = 16
    k("v_lshlrev_b32 v1, 4, v0")
    k("v_and_b32 v2, 31, v0")
    k("v_lshrrev_b32 v3, 5, v0")
    k("v_lshrrev_b32 v4, 3, v2")
    k("v_mul_u32_u24 v4, 20480, v4")
    k("v_and_b32 v5, 7, v2")
    k("v_lshl_add_u32 v4, v5, 4, v4")
    k("v_lshl_add_u32 v4, v3, 7, v4")
    k(f"s_mul_i32 s24, s{seg_s}, {Z_SEG}")
    k(f"s_mul_i32 s25, s{cg_s}, {4 * 20480}")
    k("s_add_u32 s24, s24, s25")
    k(f"s_add_u32 s24, s24, {Z}")
    k(f"s_mul_i32 s25, s{seg_s}, {PX_SEG}")
    k(f"s_add_u32 s25, s25, {PXB}")
    k("v_mul_u32_u24 v6, 1280, v2")
    k("v_lshl_add_u32 v6, v3, 4, v6")
    k(f"s_mul_i32 s26, s{seg_s}, {32 * 1280}")
    k(f"s_lshl_b32 s27, s{cg_s}, 6")
    k("s_add_u32 s26, s26, s27")
    k(f"s_add_u32 s27, s26, {res_off}")
    for j in range(2):
        k(f"buffer_load_dwordx4 {vr(8 + 4 * j, 4)}, v6, {srd}, s27 offen offset:{32 * j}")
    def load(kap):
        sl = RING + 8 * (kap % NR)
        if kap % 16 == 0 and kap: k("s_add_u32 s24, s24, 4096")
        if kap % 4 == 0 and kap: k("s_add_u32 s25, s25, 4096")
        k(f"buffer_load_dwordx4 {vr(sl, 4)}, v4, {srd}, s24 offen offset:{(kap % 16) * 256}{SC1}")
        k(f"buffer_load_dwordx4 {vr(sl + 4, 4)}, v1, {srd}, s25 offen offset:{(kap % 4) * 1024}{SC1}")
    for kap in range(NR): load(kap)
    issued = NR
    for kap in range(80):
        k(f"s_waitcnt vmcnt({2 * (issued - 1 - kap)})")
        sl = RING + 8 * (kap % NR)
        k(f"v_mfma_f32_32x32x16_bf16 {vr(ACC, 16)}, {vr(sl, 4)}, {vr(sl + 4, 4)}, {'0' if kap == 0 else vr(ACC, 16)}")
        if kap >= 1 and issued < 80:
            load(issued); issued += 1
    k("s_nop 7"); k("s_nop 7")
    O = RING
    for j in range(2):
        o = O + 4 * j
        for q in range(2):
            k(f"v_cvt_pk_bf16_f32 v{o + 2 * q}, v{ACC + 8 * j + 4 * q}, v{ACC + 8 * j + 4 * q + 1}")
            k(f"v_cvt_pk_bf16_f32 v{o + 2 * q + 1}, v{ACC + 8 * j + 4 * q + 2}, v{ACC + 8 * j + 4 * q + 3}")
        k("s_nop 1")
        k(f"v_permlane32_swap_b32 v{o}, v{o + 2}")
        k(f"v_permlane32_swap_b32 v{o + 1}, v{o + 3}")
        k("s_nop 1")
        for r in range(4):
            a, b, t0, t1 = O + 8, O + 9, O + 10, O + 11
            k(f"v_lshlrev_b32 v{a}, 16, v{o + r}")
            k(f"v_and_b32 v{b}, 0xffff0000, v{o + r}")
            k(f"v_lshlrev_b32 v{t0}, 16, v{8 + 4 * j + r}")
            k(f"v_and_b32 v{t1}, 0xffff0000, v{8 + 4 * j + r}")
            k(f"v_add_f32 v{a}, v{a}, v{t0}")
            k(f"v_add_f32 v{b}, v{b}, v{t1}")
            k(f"v_cvt_pk_bf16_f32 v{o + r}, v{a}, v{b}")
        if out_off is not None:
            k(f"s_add_u32 s27, s26, {out_off}")
            k(f"buffer_store_dwordx4 {vr(o, 4)}, v6, {srd}, s27 offen offset:{32 * j}")
        else:
            k(f"buffer_store_dwordx4 {vr(o, 4)}, v6, {out_srd}, s26 offen offset:{32 * j}")

def build_w3b(name, res_off, out_off):
    NR = 12
    k = K(name, vgpr=32 + 8 * NR, sgpr=48)
    k("s_cmp_ge_u32 s2, 320")
    k(f"s_cbranch_scc1 {k.ref('end')}")
    prologue(k, [(KA_OUT, 6)])
    k.srd(16, 6, 2048 * 640 * 2)
    k("s_lshl_b32 s20, s2, 2")
    k(f"s_add_u32 s20, s20, s{S_WAVE}")
    k("s_mul_i32 s21, s20, 3277"); k("s_lshr_b32 s21, s21, 16")
    k("s_mul_i32 s22, s21, 20"); k("s_sub_u32 s22, s20, s22")
    role_w3b(k, 21, 22, res_off, "s[16:19]", out_off, NR)
    k.lab('end')
    return k, 320

J_PER = 18
NJOB = 64 * J_PER
JL_RED = 0; JL_JOB = 32768

def role_w3b2(k, seg_s, cg_s, res_off, out_srd, RSC=""):
    ACC = 16; T = 48
    AP, AZ0, AZ1 = 160, 0, 80
    k("v_lshlrev_b32 v1, 4, v0")
    k("v_and_b32 v2, 31, v0")
    k("v_lshrrev_b32 v3, 5, v0")
    k("v_lshrrev_b32 v4, 3, v2")
    k("v_mul_u32_u24 v4, 20480, v4")
    k("v_and_b32 v5, 7, v2")
    k("v_lshl_add_u32 v4, v5, 4, v4")
    k("v_lshl_add_u32 v4, v3, 7, v4")
    k(f"s_mul_i32 s24, s{seg_s}, {Z_SEG}")
    k(f"s_mul_i32 s25, s{cg_s}, {8 * 20480}")
    k("s_add_u32 s24, s24, s25")
    k(f"s_mul_i32 s25, s{S_WAVE}, {20 * 256}")
    k("s_add_u32 s24, s24, s25")
    k(f"s_add_u32 s24, s24, {Z}")
    k(f"s_add_u32 s28, s24, {4 * 20480}")
    k(f"s_mul_i32 s25, s{seg_s}, {PX_SEG}")
    k(f"s_mul_i32 s26, s{S_WAVE}, {20 * 1024}")
    k("s_add_u32 s25, s25, s26")
    k(f"s_add_u32 s25, s25, {PXB}")
    k("v_mul_u32_u24 v6, 1280, v2")
    k("v_lshl_add_u32 v6, v3, 4, v6")
    k(f"s_mul_i32 s26, s{seg_s}, {32 * 1280}")
    k(f"s_lshl_b32 s27, s{cg_s}, 7")
    k("s_add_u32 s26, s26, s27")
    k(f"s_lshl_b32 s27, s{S_WAVE}, 5")
    k("s_add_u32 s26, s26, s27")
    k(f"s_add_u32 s27, s26, {res_off}")
    k(f"buffer_load_dwordx4 v[8:11], v6, {srd}, s27 offen{RSC}")
    for i in range(20):
        if i % 4 == 0 and i: k("s_add_u32 s25, s25, 4096")
        if i == 16:
            k("s_add_u32 s24, s24, 4096"); k("s_add_u32 s28, s28, 4096")
        k(f"buffer_load_dwordx4 {ar(AP + 4 * i, 4)}, v1, {srd}, s25 offen offset:{(i % 4) * 1024} sc1")
        k(f"buffer_load_dwordx4 {ar(AZ0 + 4 * i, 4)}, v4, {srd}, s24 offen offset:{(i % 16) * 256} sc1")
        k(f"buffer_load_dwordx4 {ar(AZ1 + 4 * i, 4)}, v4, {srd}, s28 offen offset:{(i % 16) * 256} sc1")
    for i in range(20):
        k(f"s_waitcnt vmcnt({3 * (19 - i)})")
        for t, az in ((0, AZ0), (1, AZ1)):
            d = vr(ACC + 16 * t, 16)
            k(f"v_mfma_f32_32x32x16_bf16 {d}, {ar(az + 4 * i, 4)}, {ar(AP + 4 * i, 4)}, {'0' if i == 0 else d}")
    k(f"s_lshl_b32 s27, s{S_WAVE}, 11")
    k(f"v_add_u32 v7, s27, v1")
    k("s_nop 7"); k("s_nop 7")
    for t in range(2):
        for j in range(2):
            for hh in range(2):
                k(f"ds_write_b128 v7, {vr(ACC + 16 * t + 8 * j + 4 * hh, 4)} offset:{JL_RED + (t * 2 + j) * 8192 + hh * 1024}")
    k("s_waitcnt lgkmcnt(0)")
    k("s_barrier")
    k(f"s_lshl_b32 s27, s{S_WAVE}, 13")
    k(f"v_add_u32 v7, s27, v1")
    for ww in range(4):
        for hh in range(2):
            k(f"ds_read_b128 {vr(T + 8 * ww + 4 * hh, 4)}, v7 offset:{JL_RED + ww * 2048 + hh * 1024}")
    k("s_waitcnt lgkmcnt(4)")
    for r in range(8): k(f"v_add_f32 v{T + r}, v{T + r}, v{T + 8 + r}")
    k("s_waitcnt lgkmcnt(0)")
    for r in range(8): k(f"v_add_f32 v{T + 16 + r}, v{T + 16 + r}, v{T + 24 + r}")
    for r in range(8): k(f"v_add_f32 v{T + r}, v{T + r}, v{T + 16 + r}")
    o = ACC
    for q in range(2):
        k(f"v_cvt_pk_bf16_f32 v{o + 2 * q}, v{T + 4 * q}, v{T + 4 * q + 1}")
        k(f"v_cvt_pk_bf16_f32 v{o + 2 * q + 1}, v{T + 4 * q + 2}, v{T + 4 * q + 3}")
    k("s_nop 1")
    k(f"v_permlane32_swap_b32 v{o}, v{o + 2}")
    k(f"v_permlane32_swap_b32 v{o + 1}, v{o + 3}")
    k("s_nop 1")
    for r in range(4):
        a, b, t0, t1 = T, T + 1, T + 2, T + 3
        k(f"v_lshlrev_b32 v{a}, 16, v{o + r}")
        k(f"v_and_b32 v{b}, 0xffff0000, v{o + r}")
        k(f"v_lshlrev_b32 v{t0}, 16, v{8 + r}")
        k(f"v_and_b32 v{t1}, 0xffff0000, v{8 + r}")
        k(f"v_add_f32 v{a}, v{a}, v{t0}")
        k(f"v_add_f32 v{b}, v{b}, v{t1}")
        k(f"v_cvt_pk_bf16_f32 v{o + r}, v{a}, v{b}")
    k(f"buffer_store_dwordx4 {vr(o, 4)}, v6, {out_srd}, s26 offen")

def role_w3_loop(k, cfg, fl_s, spin_s, out_srd, layer_s):
    L = lambda s: k.ref('j_' + s)
    lab = lambda s: k.lab('j_' + s)
    bail = k.ref('bail')
    SEG, R, NEED = 40, 41, 42
    lab('next')
    k(f"s_cmp_lg_u32 s{S_WAVE}, 0")
    k(f"s_cbranch_scc1 {L('rel')}")
    k("s_mov_b64 exec, 1")
    k(f"v_mov_b32 v2, {FL_JOB}")
    k("v_mov_b32 v3, 1")
    k(f"buffer_atomic_add v3, v2, {srd}, s{fl_s} offen sc0 sc1")
    k("s_waitcnt vmcnt(0)")
    k("s_mov_b64 exec, -1")
    k("s_nop 0")
    k("v_readfirstlane_b32 s38, v3")
    k(f"s_cmp_ge_u32 s38, {NJOB}")
    k(f"s_cbranch_scc1 {L('pub')}")
    k("s_mul_i32 s39, s38, 58255")
    k(f"s_lshr_b32 s{SEG}, s39, 20")
    k(f"s_mul_i32 s39, s{SEG}, {J_PER}")
    k(f"s_sub_u32 s{R}, s38, s39")
    k(f"s_add_u32 s{NEED}, s{SEG}, 1")
    k(f"v_mov_b32 v4, s{NEED}")
    k(f"s_cmp_ge_u32 s{R}, 8")
    k(f"s_cbranch_scc1 {L('dep_b')}")
    k(f"s_lshl_b32 s24, s{R}, 9")
    k(f"s_add_u32 s24, s24, {FL_PF}")
    k("v_lshlrev_b32 v2, 7, v0")
    k("v_add_u32 v2, s24, v2")
    k(f"s_mul_i32 s25, s{R}, 3")
    k("s_add_u32 s25, s25, 104")
    k("s_lshl_b32 s25, s25, 7")
    k("v_writelane_b32 v2, s25, 4")
    k("s_add_u32 s25, s25, 128")
    k("v_writelane_b32 v2, s25, 5")
    k("s_add_u32 s25, s25, 128")
    k("v_writelane_b32 v2, s25, 6")
    k("s_mov_b64 exec, 0x7f")
    k(f"s_branch {L('poll')}")
    lab('dep_b')
    k(f"s_sub_u32 s24, s{R}, 8")
    k("s_lshl_b32 s24, s24, 10")
    k(f"s_add_u32 s24, s24, {FL_YF}")
    k("v_lshlrev_b32 v2, 7, v0")
    k("v_add_u32 v2, s24, v2")
    k(f"s_lshl_b32 s25, s{SEG}, 4")
    k(f"s_add_u32 s25, s25, {FL_WA}")
    k("v_writelane_b32 v2, s25, 8")
    k("s_mov_b32 s26, 8")
    k("v_writelane_b32 v4, s26, 8")
    k("s_mov_b64 exec, 0x1ff")
    lab('poll')
    k(f"buffer_load_dword v3, v2, {srd}, s{fl_s} offen sc1")
    k("s_waitcnt vmcnt(0)")
    k("v_cmp_gt_u32 vcc, v4, v3")
    k(f"s_sub_u32 s{spin_s}, s{spin_s}, 1")
    k(f"s_cbranch_scc1 {L('giveup')}")
    k(f"s_cbranch_vccnz {L('poll')}")
    k("s_mov_b64 exec, -1")
    lab('pub')
    k("v_mov_b32 v2, 0")
    k("v_mov_b32 v3, s38")
    k(f"ds_write_b32 v2, v3 offset:{JL_JOB}")
    k("s_waitcnt lgkmcnt(0)")
    lab('rel')
    k("s_barrier")
    k("v_mov_b32 v2, 0")
    k(f"ds_read_b32 v3, v2 offset:{JL_JOB}")
    k("s_waitcnt lgkmcnt(0)")
    k("v_readfirstlane_b32 s38, v3")
    k(f"s_cmp_ge_u32 s38, {NJOB}")
    k(f"s_cbranch_scc1 {L('done')}")
    k("s_mul_i32 s39, s38, 58255")
    k(f"s_lshr_b32 s{SEG}, s39, 20")
    k(f"s_mul_i32 s39, s{SEG}, {J_PER}")
    k(f"s_sub_u32 s{R}, s38, s39")
    k(f"s_cmp_ge_u32 s{R}, 8")
    k(f"s_cbranch_scc1 {L('b')}")
    k(f"s_lshl_b32 s{R}, s{R}, 2")
    k(f"s_add_u32 s{R}, s{R}, s{S_WAVE}")
    role_w3a(k, SEG, R, " sc1")
    k("s_waitcnt vmcnt(0)")
    k("s_barrier")
    k(f"s_cmp_lg_u32 s{S_WAVE}, 0")
    k(f"s_cbranch_scc1 {L('next')}")
    k("s_mov_b64 exec, 1")
    k(f"s_lshl_b32 s24, s{SEG}, 4")
    k(f"s_add_u32 s24, s24, {FL_WA}")
    k("v_mov_b32 v2, s24")
    k("v_mov_b32 v3, 1")
    k(f"buffer_atomic_add v3, v2, {srd}, s{fl_s} offen sc1")
    k("s_mov_b64 exec, -1")
    k(f"s_branch {L('next')}")
    lab('b')
    k(f"s_sub_u32 s{R}, s{R}, 8")
    role_w3b2(k, SEG, R, A_X1, out_srd, " sc1" if cfg.get('na') in (2, 3, 4) else "")
    k(f"s_branch {L('next')}")
    lab('giveup')
    k("s_mov_b64 exec, -1")
    k("v_mov_b32 v2, 0")
    k("v_mov_b32 v3, -1")
    k(f"ds_write_b32 v2, v3 offset:{JL_JOB}")
    k("s_waitcnt lgkmcnt(0)")
    k("s_barrier")
    k(f"s_branch {bail}")
    lab('done')
```

```python
import sys
sys.path.insert(0, "/code"); sys.path.insert(0, "tools")
import gen, work, chain, aly
from lay import *
from asmk import KA_AX, KA_WQKV, KA_WOA, KA_WS
NAME = gen.NAME
gen.WS_XN = A_XN; gen.WS_X1 = A_X1; gen.WS_QA = A_QA; gen.WS_KVT = A_KVT; gen.WS_OA = A_OA
gen.WS_KVZ = A_KVZ; gen.WS_PQKVA = A_PQKVA; gen.WS_PWOA = A_PWOA
gen.PACK = [(KA_WQKV, 640, 1920, A_PQKVA), (KA_WOA, 640, 640, A_PWOA)]
gen.WS_EX = A_KVZ; gen.EX_CLEAR_BYTES = 0
S, D = 2048, 640
HEADX = ''

def build(cfg=None):
    cfg = cfg or {}
    kernels = []; launches = []
    def add(k, nwg, lds=0, block=256):
        if k not in kernels: kernels.append(k)
        launches.append((k.name, nwg, block, lds))
    na = cfg.get('na', 0)
    work.P2 = bool(cfg.get('p2'))
    global HEADX
    HEADX = ' p2' if cfg.get('p2') else ''
    PEND = chain.P2_END if cfg.get('p2') else chain.PL_END
    if na:
        kq, n = work.build_prep(newa=True, cfg=cfg); add(kq, n, work.WVO_LDS if cfg.get('wvo2') else 1024)
        kc1, kc2 = chain.build_chain("layerb", None, cfg)
        for layer in range(2):
            if na != 4:
                kf, n, lds = aly.build_afront(f"afront{layer+1}", layer, na == 3, cfg); add(kf, n, lds)
            if na == 1:
                kb, n, lds = aly.build_aback_test(f"aback{layer+1}"); add(kb, n, lds)
                kl2, n = work.build_lnb(f"ln_b{layer+1}", layer, A_X1); add(kl2, n)
                if cfg.get('lnw_test'):
                    kl3, n = aly.build_lnw_test(f"lnw{layer+1}"); add(kl3, n)
            if layer == 0: kernels.append(kc2)
            add(kc1 if layer == 0 else kc2, 256, PEND)
        return finish(kernels, launches)
    kp, n = gen.k_pack(); add(kp, n)
    kq, n = work.build_prep(); add(kq, n)
    kg, n_qkva, lds_qkva = gen.k_gemm("qkv_a", S, 1920, D, A_XN, D * 2, A_PQKVA, 4, 5, dict(kind='qkvA'))
    kgb, n_gb, lds_gb = work.build_gemmb()
    kwa, n_wa = work.build_w3a()
    ovl = cfg.get('ovl')
    if ovl:
        kc1, kc2 = chain.build_chain("layerb", None, cfg)
    for layer in range(2):
        if layer == 0:
            kl, n = gen.k_ln("ln_a1", KA_AX, 0)
        else:
            kl, n = gen.k_ln("ln_a2", KA_WS, A_X2)
        add(kl, n)
        add(kg, n_qkva, lds_qkva)
        kz, n = gen.k_kvz(f"kvz_a{layer+1}", layer); add(kz, n)
        ka, n, lds = gen.k_attn_a(f"attn_a{layer+1}", layer); add(ka, n, lds)
        if layer == 0:
            epi = dict(kind='res', res_slot=KA_AX, res_off=0, out_off=A_X1, res_in=True)
        else:
            epi = dict(kind='res', res_off=A_X2, out_off=A_X1)
        kw, n, lds = gen.k_gemm(f"wo_a{layer+1}", S, D, D, A_OA, D * 2, A_PWOA, 2, 5, epi); add(kw, n, lds)
        kl2, n = work.build_lnb(f"ln_b{layer+1}", layer, A_X1); add(kl2, n)
        if ovl:
            if layer == 0:
                kernels.append(kc2)
            add(kc1 if layer == 0 else kc2, 256, chain.PL_END)
            continue
        add(kgb, n_gb, lds_gb)
        kc = chain.build_chain(f"chain{layer+1}", layer, cfg); add(kc, 256, chain.PL_END)
        add(kwa, n_wa)
        k3, n = work.build_w3b(f"w3b{layer+1}", A_X1, A_X2 if layer == 0 else None); add(k3, n)
    return finish(kernels, launches)

def finish(kernels, launches):
    head = ["; generated by gen2.py (my own generator); kernarg: 13 pointers" + HEADX]
    for name, nwg, block, lds in launches:
        head.append(f"; @launch kernel={name} grid=({nwg},1,1) block=({block},1,1) lds={lds}")
    head.append('.amdgcn_target "amdgcn-amd-amdhsa--gfx950"')
    return "\n".join(head) + "\n" + "\n".join(k.text() for k in kernels) + "\n"

if __name__ == "__main__":
    out = sys.argv[1] if len(sys.argv) > 1 else "v2.s"
    cfg = eval(sys.argv[2]) if len(sys.argv) > 2 else {}
    open(out, "w").write(build(cfg))
    print("written", out)
```

```python
import sys, math
sys.path.insert(0, "/code"); sys.path.insert(0, "tools")
from asmk import *
from lay import *

NSTEP = 64
SPIN = 400000
CSC = (192 ** -0.5) * math.log2(math.e)

class LQ:
    def __init__(self, k): self.k = k; self.q = []
    def ds(self, ins, tag=None):
        self.k(ins); self.q.append(tag)
        assert len(self.q) <= 15, "too many outstanding LDS ops"
    def wait(self, tag):
        idx = [i for i, t in enumerate(self.q) if t == tag]
        if not idx: return
        n = len(self.q) - 1 - idx[-1]
        self.k(f"s_waitcnt lgkmcnt({n})"); self.q = self.q[idx[-1] + 1:]
    def wait_many(self, tags):
        idx = [i for i, t in enumerate(self.q) if t in tags]
        if not idx: return
        n = len(self.q) - 1 - idx[-1]
        self.k(f"s_waitcnt lgkmcnt({n})"); self.q = self.q[idx[-1] + 1:]
    def all(self):
        self.k("s_waitcnt lgkmcnt(0)"); self.q = []

def vr(b, n): return f"v[{b}:{b+n-1}]" if n > 1 else f"v{b}"
def ar(b, n): return f"a[{b}:{b+n-1}]"

def check_valid(k, regs, tmp):
    regs = list(regs)
    k(f"v_max3_u32 v{tmp}, v{regs[0]}, v{regs[1]}, v{regs[2]}")
    rest = regs[3:]
    while len(rest) >= 2:
        k(f"v_max3_u32 v{tmp}, v{tmp}, v{rest[0]}, v{rest[1]}"); rest = rest[2:]
    if rest: k(f"v_max_u32 v{tmp}, v{tmp}, v{rest[0]}")
    k(f"v_cmp_eq_u32 vcc, -1, v{tmp}")

S_WS = 4
SRD = 8
S_ROLE = 12; S_WAVE = 13; S_STEP = 14; S_SPIN = 15
S_EB0 = 16; S_EB1 = 17
S_SB = 18
S_SBN = 19
S_T = 20
S_M8 = 40
S_M2 = 42
S_KX = 44; S_KM = 45; S_Z = 46
S_GK = 47
S_FL = 48
S_LAYER = 49
S_ST = 50
S_OSRD = 84
S_FD0 = 82; S_FD1 = 83
S_SBF = 88; S_SBNF = 89
srd = f"s[{SRD}:{SRD+3}]"

OWN = [[0, 1, 2], [3, 4, 5], [6, 7], [8, 9]]

def slot_base(k, dst, step_s, tmp, far=None):
    k(f"s_cmp_lt_u32 s{step_s}, 32")
    k(f"s_cselect_b32 s{dst}, s{S_EB0}, s{S_EB1}")
    if far is not None: k(f"s_cselect_b32 s{far}, s{S_FD0}, s{S_FD1}")
    k(f"s_and_b32 s{tmp}, s{step_s}, 31")
    k(f"s_lshl_b32 s{tmp}, s{tmp}, 16")
    k(f"s_add_u32 s{dst}, s{dst}, s{tmp}")
    if far is not None: k(f"s_add_u32 s{far}, s{far}, s{dst}")

def stamp(k, cfg, n, real=False):
    if cfg.get('stamp'):
        k(f"s_mem{'real' if real else ''}time s[{S_ST+2*n}:{S_ST+2*n+1}]")

def stamp_flush(k, cfg, nst, base_off):
    if not cfg.get('stamp'): return
    k("s_waitcnt lgkmcnt(0)")
    sk = k.uniq('stk')
    k(f"s_cmp_lg_u32 s{S_ROLE}, {cfg.get('stamp_role', 0)}")
    k(f"s_cbranch_scc1 {k.ref(sk)}")
    k("s_mov_b64 s[30:31], exec")
    k("s_mov_b64 exec, 1")
    k(f"s_lshl_b32 s32, s{S_STEP}, 6")
    k(f"s_add_u32 s32, s32, {base_off}")
    k("v_mov_b32 v253, 0")
    for n in range(nst):
        k(f"v_mov_b32 v254, s{S_ST+2*n}")
        k(f"buffer_store_dword v254, v253, {srd}, s32 offen offset:{4*n}")
        k("s_nop 1")
    k("s_mov_b64 exec, s[30:31]")
    k.lab(sk)

def rt(k, cfg, n):
    if cfg.get('rt'):
        k(f"s_memrealtime s[{S_ST+2*n}:{S_ST+2*n+1}]")

def rt_flush(k, cfg, rolebase):
    if not cfg.get('rt'): return
    k("s_waitcnt lgkmcnt(0)")
    k("s_mov_b64 exec, 1")
    k(f"s_add_u32 s32, s{S_ROLE}, {rolebase}")
    k("s_lshl_b32 s32, s32, 6")
    k(f"s_add_u32 s32, s32, s{S_STEP}")
    k(f"s_lshl_b32 s32, s32, {5 if cfg.get('rt2') else 4}")
    k(f"s_add_u32 s32, s32, {cfg['rt']}")
    k(f"s_mul_i32 s33, s{S_LAYER}, 0x200000")
    k("s_add_u32 s32, s32, s33")
    k("v_mov_b32 v253, 0")
    for n in range(8 if cfg.get('rt2') else 3):
        k(f"v_mov_b32 v254, s{S_ST+2*n}")
        k(f"buffer_store_dword v254, v253, {srd}, s32 offen offset:{4*n}")
        k("s_nop 1")
    k("s_mov_b64 exec, -1")

def spin_check(k, bail):
    k(f"s_sub_u32 s{S_SPIN}, s{S_SPIN}, 1")
    k(f"s_cbranch_scc1 {bail}")

def wait_progress(k, cfg, tag, step_s, voff, nl, vt):
    if not cfg.get('ovl'): return
    ok = k.ref(tag + '_ok'); lp = tag + '_lp'
    k(f"s_cmp_gt_u32 s{S_GK}, s{step_s}")
    k(f"s_cbranch_scc1 {ok}")
    k.lab(lp)
    k(f"buffer_load_dword v{vt}, v{voff}, {srd}, s{S_FL} offen sc1")
    k("s_waitcnt vmcnt(0)")
    k(f"v_readlane_b32 s{S_GK}, v{vt}, 0")
    if nl == 2:
        k(f"v_readlane_b32 s{S_T+9}, v{vt}, 1")
        k("s_nop 0")
        k(f"s_min_u32 s{S_GK}, s{S_GK}, s{S_T+9}")
    else:
        k("s_nop 0")
    spin_check(k, k.ref('bail'))
    k(f"s_cmp_gt_u32 s{S_GK}, s{step_s}")
    k(f"s_cbranch_scc0 {k.ref(lp)}")
    k.lab(tag + '_ok')

def flag_store(k, cfg, off_s, val_s, va, vb):
    k("s_mov_b64 exec, 1")
    k(f"v_mov_b32 v{va}, s{off_s}")
    k(f"v_mov_b32 v{vb}, s{val_s}")
    k(f"buffer_store_dword v{vb}, v{va}, {srd}, s{S_FL} offen sc1")
    k("s_mov_b64 exec, -1")


S_MK = 69
S_PM = 68

def poll_cont(k, tag, loads, regs, consume, tmp, dummy, bail):
    n = len(loads)
    for u in range(n): loads[u]()
    k(f"s_mov_b32 s{S_PM}, 0")
    k.lab(f"{tag}_lp")
    for u in range(n):
        k(f"s_waitcnt vmcnt({n - 1})")
        k(f"s_bitcmp1_b32 s{S_PM}, {u}")
        k(f"s_cbranch_scc1 {k.ref(f'{tag}_d{u}')}")
        check_valid(k, regs[u], tmp)
        k(f"s_bitset1_b32 s{S_PM}, {u}")
        k(f"s_cbranch_vccnz {k.ref(f'{tag}_r{u}')}")
        consume[u]()
        k(f"s_cmp_eq_u32 s{S_PM}, {(1 << n) - 1}")
        k(f"s_cbranch_scc1 {k.ref(f'{tag}_x')}")
        k.lab(f"{tag}_d{u}")
        k(f"buffer_load_dword v{dummy}, off, {srd}, s{S_SB} sc1")
        k(f"s_branch {k.ref(f'{tag}_n{u}')}")
        k.lab(f"{tag}_r{u}")
        k(f"s_bitset0_b32 s{S_PM}, {u}")
        loads[u]()
        k.lab(f"{tag}_n{u}")
    spin_check(k, bail)
    k(f"s_branch {k.ref(f'{tag}_lp')}")
    k.lab(f"{tag}_x")

PL_NL = 15
PL_WL = 0
PL_MEMI = 4 * PL_NL * 2048
PL_QI = PL_MEMI + 10240
PL_STR = 400
PL_KI = PL_QI + 8 * PL_STR
PL_SP = PL_KI + 8 * PL_STR
PL_STG = PL_SP + 4096
PL_END = PL_STG + 1024

V_L16 = 1; V_IDX = 2; V_IW = 3; V_QR = 4; V_KR = 5; V_SPR = 6; V_PX = 7; V_PM = 8; V_KXO = 9
V_KML = 10; V_KMG = 11; V_MASKF = 12; V_WLA = 13; V_MIA = 14; V_SPW = 15
V_GF = 255; V_T0 = 253; V_T1 = 254
AF = 16; PD = 56; PDX = 80; PDM = 84; QF = 88; KXF = 100; TB = 116; PVW = 148

P2_NL = 16
P2_MEMI = 4 * P2_NL * 2048
P2_QI = P2_MEMI + 10240
P2_KI = P2_QI + 8 * PL_STR
P2_ST = P2_KI + 8 * PL_STR
P2_END = P2_ST + 2048
P2_KXF = 100; P2_TB = 124; P2_PVW = 156
V_MG = 12; V_ST8 = 6

def p_plan2(w, cfg):
    own = OWN[w]; rest = [ks for ks in range(10) if ks not in own]
    seq = [(T, ks) for ks in own for T in (0, 1, 2)] + [(T, ks) for T in (0, 1, 2) for ks in rest]
    seq += [(T, ks) for T in (3, 4, 5) for ks in range(10)]
    ldspos = cfg.get('p2_lds', list(range(4, 28, 2)) + [31, 35, 39, 46])
    if cfg.get('p2s'):
        nfirst = cfg.get('p2_nf', 11)
        first = [(T, ks) for ks in own for T in (0, 1, 2)]
        fill = [(T, ks) for T in (3, 4, 5) for ks in own][:max(0, nfirst - len(first))]
        seq = first + fill + [(T, ks) for T in (0, 1, 2) for ks in rest]
        seq += [(T, ks) for T in (3, 4, 5) for ks in rest + own if (T, ks) not in fill]
        ldspos = cfg.get('p2_lds', [3, 7, 11, 15, 19, 23, 27, 31, 35, 39, 43, 47, 50, 53, 56, 58])
    assert len(ldspos) == P2_NL
    where = {}
    regops = [i for i in range(60) if i not in ldspos]
    for n, i in enumerate(regops):
        where[seq[i]] = ('a', 8 * n) if n < 32 else ('v', P2_PVW + 8 * (n - 32))
    assert P2_PVW + 8 * (len(regops) - 32) <= 252
    for n, i in enumerate(ldspos): where[seq[i]] = ('l', n)
    return own, rest, seq, ldspos, where

def p_plan(w, cfg=None):
    if cfg and cfg.get('p2'): return p_plan2(w, cfg)
    own = OWN[w]; rest = [ks for ks in range(10) if ks not in own]
    order1 = own + rest
    seq = [(T, ks) for ks in order1 for T in (0, 1, 2)] + [(T, ks) for T in (3, 4, 5) for ks in range(10)]
    ldspos = list(range(9, 30, 2)) + [44, 48, 52, 56]
    assert len(ldspos) == PL_NL
    where = {}
    regops = [i for i in range(60) if i not in ldspos]
    for n, i in enumerate(regops):
        where[seq[i]] = ('a', 8 * n) if n < 32 else ('v', PVW + 8 * (n - 32))
    assert PVW + 8 * (len(regops) - 32) <= 254
    for n, i in enumerate(ldspos): where[seq[i]] = ('l', n)
    return own, rest, seq, ldspos, where

def p_setup_lanes(k):
    k(f"v_lshlrev_b32 v{V_L16}, 4, v0")
    k("v_and_b32 v16, 8, v0")
    k("v_cmp_eq_u32 vcc, 0, v16")
    k("v_mov_b32 v17, 0xeeeeeeee")
    k("v_mov_b32 v18, 0x44444444")
    k(f"v_cndmask_b32 v{V_IDX}, v17, v18, vcc")

def gen_p_wave(k, w, cfg):
    own, rest, seq, ldspos, where = p_plan(w, cfg)
    L = lambda s: k.ref(f"p{w}_{s}")
    lab = lambda s: k.lab(f"p{w}_{s}")
    bail = k.ref('bail')
    lq = LQ(k)
    lab('start')
    k("v_lshrrev_b32 v16, 4, v0")
    k("v_and_b32 v17, 15, v0")
    k("v_and_b32 v18, 1, v16")
    k("v_lshlrev_b32 v18, 2, v18")
    k("v_lshrrev_b32 v19, 1, v16")
    k("v_lshl_add_u32 v18, v19, 1, v18")
    k(f"v_mul_u32_u24 v18, {PL_STR}, v18")
    k("v_lshl_add_u32 v18, v17, 1, v18")
    k(f"v_add_u32 v{V_IW}, {PL_QI + 96 * w}, v18")
    k("v_and_b32 v18, 7, v0")
    k(f"v_mul_u32_u24 v18, {PL_STR}, v18")
    k("v_lshrrev_b32 v19, 3, v0")
    k("v_lshl_add_u32 v18, v19, 4, v18")
    k(f"v_add_u32 v{V_QR}, {PL_QI}, v18")
    k("v_and_b32 v18, 7, v0")
    k(f"v_mul_u32_u24 v18, {PL_STR}, v18")
    k("v_lshl_add_u32 v18, v16, 5, v18")
    k(f"v_add_u32 v{V_KR}, {PL_KI}, v18")
    k("v_lshrrev_b32 v18, 1, v16")
    k("v_lshlrev_b32 v18, 10, v18")
    k("v_and_b32 v19, 31, v0")
    k("v_lshl_add_u32 v18, v19, 4, v18")
    k(f"v_add_u32 v{V_SPR}, {PL_SP + 4 * w}, v18")
    k(f"v_add_u32 v{V_SPW}, {PL_SP + 1024 * w}, v{V_L16}")
    k("v_lshrrev_b32 v18, 1, v16")
    k("v_lshlrev_b32 v18, 1, v18")
    k("v_lshrrev_b32 v19, 3, v17")
    k("v_add3_u32 v18, v18, v19, 1")
    k("v_lshrrev_b32 v19, 1, v18")
    k("v_lshlrev_b32 v19, 14, v19")
    k("v_and_b32 v18, 1, v18")
    k("v_lshl_add_u32 v18, v18, 12, v19")
    k("v_and_b32 v19, 1, v16")
    k("v_lshlrev_b32 v19, 4, v19")
    k(f"v_add_u32 v19, {32 * w}, v19")
    k(f"s_lshl_b32 s{S_T}, s{S_ROLE}, 7")
    k(f"v_add_u32 v{V_PM}, s{S_T}, v19")
    k(f"v_add_u32 v{V_PX}, v{V_PM}, v18")
    if cfg.get('pgather'):
        k("v_lshrrev_b32 v18, 1, v16")
        k("v_lshlrev_b32 v18, 1, v18")
        k("v_lshrrev_b32 v20, 3, v17")
        k("v_add3_u32 v18, v18, v20, 1")
        k(f"v_add_u32 v{V_PM}, {PL_STG}, v19")
        k(f"v_lshl_add_u32 v{V_PX}, v18, 7, v{V_PM}")
        k("v_lshrrev_b32 v18, 3, v0")
        k("v_lshrrev_b32 v19, 1, v18")
        k("v_lshlrev_b32 v19, 14, v19")
        k("v_and_b32 v18, 1, v18")
        k("v_lshl_add_u32 v18, v18, 12, v19")
        k("v_and_b32 v19, 7, v0")
        k("v_lshl_add_u32 v18, v19, 4, v18")
        k(f"v_add_u32 v252, s{S_T}, v18")
    k(f"v_lshlrev_b32 v18, 4, v17")
    k("v_lshl_add_u32 v18, v16, 10, v18")
    k(f"v_add_u32 v{V_KXO}, {16 * (w & 1) * 16}, v18")
    k(f"v_add_u32 v18, {64 * w}, v0")
    k("v_mul_u32_u24 v19, 2731, v18")
    k("v_lshrrev_b32 v19, 16, v19")
    k("v_mul_u32_u24 v20, 24, v19")
    k("v_sub_u32 v20, v18, v20")
    k(f"v_mul_u32_u24 v21, {PL_STR}, v19")
    k("v_lshl_add_u32 v21, v20, 4, v21")
    k(f"v_add_u32 v{V_KML}, {PL_KI}, v21")
    k("v_lshlrev_b32 v21, 4, v19")
    k(f"v_lshl_add_u32 v{V_KMG}, v20, 7, v21")
    k("v_and_b32 v18, 0x28, v0")
    k("v_cmp_eq_u32 vcc, 0, v18")
    k("v_mov_b32 v18, 1.0")
    k("v_mov_b32 v19, 0")
    k(f"v_cndmask_b32 v{V_MASKF}, v19, v18, vcc")
    k(f"v_add_u32 v{V_WLA}, {PL_WL + w * PL_NL * 2048}, v{V_L16}")
    k(f"v_add_u32 v{V_MIA}, {PL_MEMI}, v{V_L16}")
    k(f"s_mul_i32 s{S_KX}, s{S_ROLE}, {KX_SH}")
    k(f"s_add_u32 s{S_KX}, s{S_KX}, {KX}")
    k(f"s_mul_i32 s{S_KM}, s{S_ROLE}, {KM_SH}")
    k(f"s_add_u32 s{S_KM}, s{S_KM}, {KM}")
    if cfg.get('ovl'):
        k(f"s_mul_i32 s{S_T}, s{S_ROLE}, 6")
        k(f"s_add_u32 s{S_T+1}, s{S_T}, 5")
        k(f"s_lshr_b32 s{S_T}, s{S_T}, 3")
        k(f"s_lshr_b32 s{S_T+1}, s{S_T+1}, 3")
        k(f"s_add_u32 s{S_T}, s{S_T}, 80"); k(f"s_add_u32 s{S_T+1}, s{S_T+1}, 80")
        k(f"s_lshl_b32 s{S_T}, s{S_T}, 7"); k(f"s_lshl_b32 s{S_T+1}, s{S_T+1}, 7")
        k(f"v_mov_b32 v{V_GF}, s{S_T+1}")
        k(f"v_mov_b32 v{V_T0}, s{S_T}")
        k("v_cmp_eq_u32 vcc, 0, v0")
        k("s_nop 1")
        k(f"v_cndmask_b32 v{V_GF}, v{V_GF}, v{V_T0}, vcc")
        k(f"s_mov_b32 s{S_GK}, 0")
    k(f"s_mul_i32 s{S_T}, s{S_ROLE}, 491520")
    k(f"s_add_u32 s{S_T}, s{S_T}, {WP + w * 122880}")
    WIN = cfg.get('winp', cfg.get('win'))
    nld = [0]
    def wload(dst, T, ks):
        idx = T * 10 + ks
        k(f"s_add_u32 s{S_T+1}, s{S_T}, {idx * 2048}")
        for hi in range(2):
            k(f"buffer_load_dwordx4 {dst(hi)}, v{V_L16}, {srd}, s{S_T+1} offen offset:{hi*1024}")
            nld[0] += 1
            if WIN and nld[0] > WIN: k(f"s_waitcnt vmcnt({WIN})")
    lops = [(op, wh[1]) for op, wh in where.items() if wh[0] == 'l']
    SEMI = cfg.get('na') == 4
    rops = [(op, wh) for op, wh in where.items() if wh[0] != 'l' and not (SEMI and wh[0] == 'a' and wh[1] // 8 < cfg.get('npf', 64) // 2)]
    for (T, ks), slot in lops:
        wload(lambda hi: vr(16 + 8 * slot + 4 * hi, 4), T, ks)
    nre = 0
    for (T, ks), wh in rops[:16]:
        wload((lambda hi, wh=wh: (ar if wh[0] == 'a' else vr)(wh[1] + 4 * hi, 4)), T, ks)
    k(f"s_waitcnt vmcnt({2 * len(rops[:16])})")
    for (T, ks), slot in lops:
        for hi in range(2):
            k(f"ds_write_b128 v{V_WLA}, {vr(16 + 8 * slot + 4 * hi, 4)} offset:{slot * 2048 + hi * 1024}")
    for (T, ks), wh in rops[16:]:
        wload((lambda hi, wh=wh: (ar if wh[0] == 'a' else vr)(wh[1] + 4 * hi, 4)), T, ks)
    k("s_waitcnt lgkmcnt(0)")
    kxset = [0, 1] if w < 2 else [2]
    SC1 = " sc1" if cfg.get('ovl') else ""
    npf = [0]
    def kx_prefetch(step_s):
        npf[0] += 1
        wait_progress(k, cfg, f"p{w}_gw{npf[0]}", step_s, V_GF, 2, V_T0)
        k(f"s_mul_i32 s{S_T}, s{step_s}, {32 * KX_SH}")
        k(f"s_add_u32 s{S_T}, s{S_T}, s{S_KX}")
        for u, ks in enumerate(kxset):
            k(f"s_add_u32 s{S_T+1}, s{S_T}, {ks * 4096}")
            for hi in range(2):
                k(f"buffer_load_dwordx4 {vr(KXF + 8 * u + 4 * hi, 4)}, v{V_KXO}, {srd}, s{S_T+1} offen offset:{hi * 512}{SC1}")
    def tb_read(n):
        for hi in range(2):
            lq.ds(f"ds_read_b128 {vr(TB + 8 * (n % 4) + 4 * hi, 4)}, v{V_WLA} offset:{n * 2048 + hi * 1024}", ('tb', n))
    def zero_d():
        for r in range(PD, PD + 32): k(f"v_mov_b32 v{r}, 0")
    k(f"s_mov_b32 s{S_STEP}, 0")
    kx_prefetch(S_STEP)
    zero_d()
    for n in range(4): tb_read(n)
    lq.all()
    lab('step')
    slot_base(k, S_SB, S_STEP, S_T)
    for u, ks in enumerate(own):
        k(f"s_add_u32 s{S_T+2+u}, s{S_SB}, {physmap(M_LOG + 1024 * ks)}")
    if cfg.get('mark') is not None and w == 0:
        k(f"s_lshr_b32 s{S_MK}, s{S_ROLE}, 1")
        k(f"s_lshl_b32 s{S_MK}, s{S_MK}, 7")
        k(f"s_and_b32 s{S_T}, s{S_ROLE}, 1")
        k(f"s_lshl_b32 s{S_T}, s{S_T}, 2")
        k(f"s_add_u32 s{S_MK}, s{S_MK}, s{S_T}")
        k(f"s_add_u32 s{S_MK}, s{S_MK}, s{S_SB}")
        k(f"s_add_u32 s{S_MK}, s{S_MK}, {physmap(MARK_LOG)}")
    stamp(k, cfg, 0)
    if cfg.get('cpoll', 0):
        poll_cont(k, f"p{w}_mp",
                  [lambda u=u, ks=ks: k(f"buffer_load_dwordx4 {vr(AF + 4 * ks, 4)}, v{V_L16}, {srd}, s{S_T+2+u} offen sc1") for u, ks in enumerate(own)],
                  [[AF + 4 * ks + j for j in range(4)] for ks in own],
                  [lambda ks=ks: k(f"ds_write_b128 v{V_MIA}, {vr(AF + 4 * ks, 4)} offset:{ks * 1024}") for ks in own],
                  QF, 252, bail)
    else:
        lab('poll')
        for u, ks in enumerate(own):
            k(f"buffer_load_dwordx4 {vr(AF + 4 * ks, 4)}, v{V_L16}, {srd}, s{S_T+2+u} offen sc1")
        k("s_waitcnt vmcnt(0)")
        for ks in own:
            k(f"ds_write_b128 v{V_MIA}, {vr(AF + 4 * ks, 4)} offset:{ks * 1024}")
        check_valid(k, [AF + 4 * ks + j for ks in own for j in range(4)], QF)
        spin_check(k, bail)
        k(f"s_cbranch_vccnz {L('poll')}")
    lq.all()
    k("s_barrier")
    stamp(k, cfg, 1)
    if w == 0: rt(k, cfg, 0)
    for ks in rest:
        lq.ds(f"ds_read_b128 {vr(AF + 4 * ks, 4)}, v{V_MIA} offset:{ks * 1024}", ('af', ks))
    def post_tile(T, base):
        d = PD + 4 * T
        col = 32 * (T % 3)
        return [
            lambda: k(f"v_permlane32_swap_b32 v{d}, v{d+2}"),
            lambda: k(f"v_permlane32_swap_b32 v{d+1}, v{d+3}"),
            lambda: k(f"v_add_f32 v{d}, v{d}, v{d+2}"),
            lambda: k(f"v_add_f32 v{d+1}, v{d+1}, v{d+3}"),
            lambda: k(f"v_cvt_pk_bf16_f32 v{d}, v{d}, v{d+1}"),
            lambda: lq.ds(f"ds_write_b16 v{V_IW}, v{d} offset:{base + col}", ('img', T)),
            lambda: lq.ds(f"ds_write_b16_d16_hi v{V_IW}, v{d} offset:{base + col + PL_STR}", ('img', T)),
        ]
    MK = cfg.get('mark', None)
    def mark():
        if w != 0: return
        k(f"buffer_store_dword v{V_L16}, off, {srd}, s{S_MK} sc1")
    side = {i: [] for i in range(60)}
    if isinstance(MK, int): side[MK].append(mark)
    def put(items, start, per=2):
        i = start
        for it in items:
            while len(side[i]) >= per: i += 1
            side[i].append(it)
        return i
    KO = PL_KI - PL_QI
    e = put(post_tile(0, 0) + post_tile(1, 0) + post_tile(2, 0), 31)
    b1 = e + 2
    side[b1].append(lambda: (lq.wait(('img', 2)), k("s_barrier")))
    for ks in range(3):
        side[b1 + (ks > 0)].append(lambda ks=ks: lq.ds(f"ds_read_b128 {vr(QF + 4 * ks, 4)}, v{V_QR} offset:{ks * 128}", ('qf', ks)))
    put(post_tile(3, KO), b1 + 2)
    sx = b1 + 6
    def smx():
        lq.wait(('qf', 2))
        for u, ks in enumerate(kxset):
            k(f"v_smfmac_f32_16x16x64_bf16 {vr(PDX, 4)}, {vr(QF + 4 * ks, 4)}, {vr(KXF + 8 * u, 8)}, v{V_IDX}")
    side[sx].append(smx)
    put(post_tile(4, KO), 52)
    side[min(sx + 4, 58)].append(lambda: lq.ds(f"ds_write_b128 v{V_SPW}, {vr(PDX, 4)}", 'sp'))
    for i, (T, ks) in enumerate(seq):
        wh = where[(T, ks)]
        if i < 30 and ks in rest: lq.wait(('af', ks))
        if wh[0] == 'l':
            lq.wait(('tb', wh[1]))
            b = vr(TB + 8 * (wh[1] % 4), 8)
        else:
            b = (ar if wh[0] == 'a' else vr)(wh[1], 8)
        k(f"v_smfmac_f32_16x16x64_bf16 {vr(PD + 4 * T, 4)}, {vr(AF + 4 * ks, 4)}, {b}, v{V_IDX}")
        if wh[0] == 'l' and wh[1] + 4 < PL_NL:
            tb_read(wh[1] + 4)
        for it in side[i]: it()
        if i == 29: stamp(k, cfg, 2)
        if i == b1: stamp(k, cfg, 3)
    stamp(k, cfg, 4)
    k("s_nop 7")
    for it in post_tile(5, KO): it()
    lq.all()
    k("s_barrier")
    if MK == 'b3': mark()
    stamp(k, cfg, 5)
    KF = AF
    X0 = AF + 24
    lq.ds(f"ds_read2st64_b32 {vr(X0, 2)}, v{V_SPR} offset0:0 offset1:2", 'sp0')
    lq.ds(f"ds_read2st64_b32 {vr(X0 + 2, 2)}, v{V_SPR} offset0:8 offset1:10", 'sp1')
    for ks in range(3):
        for hi in range(2):
            lq.ds(f"ds_read_b128 {vr(KF + 8 * ks + 4 * hi, 4)}, v{V_KR} offset:{ks * 128 + hi * 16}", ('kf', ks))
    sx_, mx, t, u, sm, ex, em, tot = X0 + 4, X0 + 5, X0 + 6, X0 + 7, X0 + 8, X0 + 9, X0 + 10, X0 + 11
    lq.wait('sp1')
    k(f"v_add_f32 v{X0}, v{X0}, v{X0+1}")
    k(f"v_add_f32 v{X0+2}, v{X0+2}, v{X0+3}")
    k(f"v_add_f32 v{sx_}, v{X0}, v{X0+2}")
    k(f"v_mul_f32 v{sx_}, {hexf(CSC)}, v{sx_}")
    for ks in range(3):
        lq.wait(('kf', ks))
        k(f"v_smfmac_f32_16x16x64_bf16 {vr(PDM, 4)}, {vr(QF + 4 * ks, 4)}, {vr(KF + 8 * ks, 8)}, v{V_IDX}")
    if MK == 's6': mark()
    stamp(k, cfg, 6)
    def dpp(op, dst, src, ctl):
        k(f"{op} v{dst}, v{src}, v{src} {ctl} row_mask:0xf bank_mask:0xf")
    dpp("v_max_f32_dpp", mx, sx_, "row_ror:8"); k("s_nop 1")
    dpp("v_max_f32_dpp", mx, mx, "row_ror:4"); k("s_nop 1")
    dpp("v_max_f32_dpp", mx, mx, "row_ror:2"); k("s_nop 1")
    dpp("v_max_f32_dpp", mx, mx, "row_ror:1")
    k(f"v_mov_b32 v{u}, v{mx}")
    k("s_nop 1")
    k(f"v_permlane32_swap_b32 v{mx}, v{u}")
    k(f"v_max_f32 v{mx}, v{mx}, v{u}")
    dm = PDM + w
    k(f"v_mov_b32 v{u}, v{dm}")
    k("s_nop 1")
    k(f"v_permlane32_swap_b32 v{dm}, v{u}")
    k(f"v_add_f32 v{sm}, v{dm}, v{u}")
    k(f"v_mul_f32 v{sm}, {hexf(CSC)}, v{sm}")
    k("s_nop 1")
    dpp("v_max_f32_dpp", t, sm, "row_ror:4"); k("s_nop 1")
    dpp("v_max_f32_dpp", t, t, "row_ror:2"); k("s_nop 1")
    dpp("v_max_f32_dpp", t, t, "row_ror:1")
    k(f"v_max_f32 v{mx}, v{mx}, v{t}")
    k(f"v_sub_f32 v{ex}, v{sx_}, v{mx}")
    k(f"v_sub_f32 v{em}, v{sm}, v{mx}")
    k(f"v_exp_f32 v{ex}, v{ex}")
    k(f"v_exp_f32 v{em}, v{em}")
    k("s_nop 0")
    k(f"v_fma_f32 v{tot}, v{em}, v{V_MASKF}, v{ex}")
    k("s_nop 1")
    dpp("v_add_f32_dpp", tot, tot, "row_ror:8"); k("s_nop 1")
    dpp("v_add_f32_dpp", tot, tot, "row_ror:4"); k("s_nop 1")
    dpp("v_add_f32_dpp", tot, tot, "row_ror:2"); k("s_nop 1")
    dpp("v_add_f32_dpp", tot, tot, "row_ror:1")
    k(f"v_mov_b32 v{u}, v{tot}")
    k("s_nop 1")
    k(f"v_permlane32_swap_b32 v{tot}, v{u}")
    k(f"v_add_f32 v{tot}, v{tot}, v{u}")
    k(f"v_rcp_f32 v{tot}, v{tot}")
    k("s_nop 0")
    k(f"v_mul_f32 v{ex}, v{ex}, v{tot}")
    k(f"v_mul_f32 v{em}, v{em}, v{tot}")
    ox, om = KF, KF + 4
    k("s_nop 0")
    k(f"v_mov_b32_dpp v{t}, v{ex} quad_perm:[1,0,3,2] row_mask:0xf bank_mask:0xf")
    k(f"v_mov_b32_dpp v{u}, v{em} quad_perm:[1,0,3,2] row_mask:0xf bank_mask:0xf")
    k(f"v_cvt_pk_bf16_f32 v{ox}, v{ex}, v{t}")
    k(f"v_cvt_pk_bf16_f32 v{om}, v{em}, v{u}")
    k("s_nop 0")
    for j in range(1, 4):
        k(f"v_mov_b32_dpp v{ox+j}, v{ox} row_shl:{2*j} row_mask:0xf bank_mask:0xf")
    for j in range(1, 4):
        k(f"v_mov_b32_dpp v{om+j}, v{om} row_shl:{2*j} row_mask:0xf bank_mask:0xf")
    if cfg.get('pgather'):
        k(f"s_mov_b64 exec, s[{S_M8}:{S_M8+1}]")
        k(f"ds_write_b128 v{V_PX}, {vr(ox, 4)}")
        k(f"s_mov_b64 exec, s[{S_M2}:{S_M2+1}]")
        k(f"ds_write_b128 v{V_PM}, {vr(om, 4)}")
        k("s_mov_b64 exec, -1")
        k("s_waitcnt lgkmcnt(0)")
        k("s_barrier")
        if w == 0:
            k("s_mov_b32 exec_hi, 0xff")
            k(f"ds_read_b128 {vr(ox, 4)}, v{V_SPW} offset:4096")
            k("s_waitcnt lgkmcnt(0)")
            k(f"buffer_store_dwordx4 {vr(ox, 4)}, v252, {srd}, s{S_SB} offen sc1")
            k("s_mov_b64 exec, -1")
    else:
        k(f"s_mov_b64 exec, s[{S_M8}:{S_M8+1}]")
        k(f"buffer_store_dwordx4 {vr(ox, 4)}, v{V_PX}, {srd}, s{S_SB} offen sc1")
        k(f"s_mov_b64 exec, s[{S_M2}:{S_M2+1}]")
        k(f"buffer_store_dwordx4 {vr(om, 4)}, v{V_PM}, {srd}, s{S_SB} offen sc1")
        k("s_mov_b64 exec, -1")
    stamp(k, cfg, 7)
    stamp(k, cfg, 8, True)
    if w == 0: rt(k, cfg, 1)
    if w < 3:
        lq.ds(f"ds_read_b128 {vr(X0, 4)}, v{V_KML}", 'km')
    k(f"s_add_u32 s{S_T+8}, s{S_STEP}, 1")
    k(f"s_min_u32 s{S_T+8}, s{S_T+8}, {NSTEP-1}")
    kx_prefetch(S_T + 8)
    zero_d()
    if w < 3:
        lq.wait('km')
        k(f"s_mul_i32 s{S_T}, s{S_STEP}, {32 * KM_SH}")
        k(f"s_add_u32 s{S_T}, s{S_T}, s{S_KM}")
        k(f"buffer_store_dwordx4 {vr(X0, 4)}, v{V_KMG}, {srd}, s{S_T} offen{SC1}")
    if w == 3 and cfg.get('ovl'):
        k(f"s_lshl_b32 s{S_T}, s{S_ROLE}, 7")
        k(f"s_add_u32 s{S_T}, s{S_T}, {FL_PF}")
        flag_store(k, cfg, S_T, S_STEP, V_T0, V_T1)
    for n in range(4): tb_read(n)
    lq.all()
    if cfg.get('pack', 0):
        k("s_waitcnt vmcnt(0)")
        k("s_barrier")
    if w == 0: rt_flush(k, cfg, 0)
    if w == cfg.get('stamp_wave', 0): stamp_flush(k, cfg, 9, cfg.get('stamp_p', 0))
    k(f"s_add_u32 s{S_STEP}, s{S_STEP}, 1")
    k(f"s_cmp_lt_u32 s{S_STEP}, {NSTEP}")
    k(f"s_cbranch_scc1 {L('step')}")
    if cfg.get('ovl'):
        k("s_waitcnt vmcnt(0)")
        k("s_barrier")
        if w == 3:
            k(f"s_lshl_b32 s{S_T}, s{S_ROLE}, 7")
            k(f"s_add_u32 s{S_T}, s{S_T}, {FL_PF}")
            flag_store(k, cfg, S_T, S_STEP, V_T0, V_T1)
    k(f"s_branch {k.ref('end')}")

def p2_sched(k, w, cfg, lq, own, rest, seq, ldspos, where, tb_read_items, fix=None):
    KXF = P2_KXF; TB = P2_TB; NL = P2_NL
    kt = w & 1; tp = w >> 1
    KO = P2_KI - P2_QI
    NB0 = cfg.get('p2_b0', 4)
    LR = cfg.get('p2_lr', 6)
    LW = cfg.get('p2_lw', 4)
    PR = cfg.get('p2_pr') or []
    BIG = 100
    ds = [None] * BIG; va = [None] * BIG; bar = [None] * BIG
    def first(start, ok):
        p = start
        while not ok(p): p += 1
        return p
    def put_r(fn, start):
        p = first(start, lambda p: ds[p] is None and bar[p] is None); ds[p] = ('r', fn); return p
    def put_v(fn, start):
        p = first(start, lambda p: va[p] is None and not (ds[p] and ds[p][0] == 'w')); va[p] = fn; return p
    def put_w(fn, start):
        p = first(start, lambda p: ds[p] is None and va[p] is None and bar[p] is None); ds[p] = ('w', fn); return p
    def put_b(tag, start, fn=None):
        p = first(start, lambda p: ds[p] is None and bar[p] is None); bar[p] = (tag, fn); return p
    def post(T, start):
        d = PD + 4 * T; col = 128 * (T % 3); base = 0 if T < 3 else KO
        p = put_v(lambda: k(f"v_add_f32 v{d}, v{d}, v{d+2}"), start)
        p = put_v(lambda: k(f"v_add_f32 v{d+1}, v{d+1}, v{d+3}"), p + 1)
        p = put_v(lambda: k(f"v_cvt_pk_bf16_f32 v{d}, v{d}, v{d+1}"), p + 1)
        p = put_w(lambda: lq.ds(f"ds_write_b16 v{V_IW}, v{d} offset:{base + col}", ('img', T)), p + 1)
        p = put_w(lambda: lq.ds(f"ds_write_b16_d16_hi v{V_IW}, v{d} offset:{base + col + PL_STR}", ('img', T)), p + 1)
        return p
    def dpp(op, dst, src, ctl):
        k(f"{op} v{dst}, v{src}, v{src} {ctl} row_mask:0xf bank_mask:0xf")
    last = {T: max(i for i, op in enumerate(seq) if op[0] == T) for T in range(6)}
    put_b('mw', NB0, lambda: (stamp(k, cfg, 1), rt(k, cfg, 0) if w == 0 else None))
    p = NB0
    afpos = {}
    for ks in rest:
        p = put_r(lambda ks=ks: lq.ds(f"ds_read_b128 {vr(AF + 4 * ks, 4)}, v{V_MIA} offset:{ks * 1024}", ('af', ks)), p + 1); afpos[ks] = p
    for ks in rest:
        u = min(i for i, op in enumerate(seq) if op[1] == ks)
        assert u - afpos[ks] >= LR - 1, (w, ks, u, afpos[ks])
    e2 = post(2, last[2] + 2)
    e0 = post(0, last[0] + 2); e1 = post(1, last[1] + 2)
    b1 = put_b(('img', 2), max(e2 + LW, e0 + LW, e1 + LW, fix['b1'] if fix else 0))
    p = b1; qpos = []
    for ks in range(3):
        p = put_r(lambda ks=ks: lq.ds(f"ds_read_b128 {vr(QF + 4 * ks, 4)}, v{V_QR} offset:{ks * 128}", ('qf', ks)), p + 1); qpos.append(p)
    sxi = qpos[0] + LR - 1
    assert qpos[2] + LR <= sxi + 3 + 1
    mf = []
    for i, op in enumerate(seq):
        mf.append(('m', i))
        if i == sxi: mf += [('x', 0), ('x', 1), ('x', 2)]
    NP = len(mf)
    pos = lambda i: i if i <= sxi else i + 3
    e4 = post(4, pos(last[4]) + 2)
    e3 = post(3, pos(last[3]) + 2)
    XS, XM, XL, XE = PD, PD + 2, PD + 3, PD + 4
    xch = [
        lambda: k(f"v_add_f32 v{XS}, v{PDX + tp}, v{PDX + tp + 2}"), lambda: k(f"v_mul_f32 v{XS}, {hexf(CSC)}, v{XS}"),
        lambda: dpp("v_max_f32_dpp", XM, XS, "row_ror:8"), lambda: dpp("v_max_f32_dpp", XM, XM, "row_ror:4"),
        lambda: dpp("v_max_f32_dpp", XM, XM, "row_ror:2"), lambda: dpp("v_max_f32_dpp", XM, XM, "row_ror:1"),
        lambda: k(f"v_sub_f32 v{XE}, v{XS}, v{XM}"), lambda: k(f"v_exp_f32 v{XE}, v{XE}"),
        lambda: dpp("v_add_f32_dpp", XL, XE, "row_ror:8"), lambda: dpp("v_add_f32_dpp", XL, XL, "row_ror:4"),
        lambda: dpp("v_add_f32_dpp", XL, XL, "row_ror:2"), lambda: dpp("v_add_f32_dpp", XL, XL, "row_ror:1")]
    p = sxi + 3 + 1
    late = []
    for fn in xch:
        p = put_v(fn, p + 1)
        if p >= NP: late.append(fn); va[p] = None
    bk = put_b(('img', 4), max(max(e4, e3) + cfg.get('p2_lwk', LW), fix['bk'] if fix and 'bk' in fix else 0))
    assert max(e3, e4) < NP, (w, e3, e4)
    if not fix or 'bk' not in fix: return dict(b1=b1, bk=bk)
    assert b1 == fix['b1'] and bk == fix['bk'], (w, b1, bk, fix)
    kin = bk < NP
    kfr = [lambda ks=ks, hi=hi: lq.ds(f"ds_read_b128 {vr(KXF + 8 * ks + 4 * hi, 4)}, v{V_KR} offset:{ks * 128 + hi * 16}", ('kf', ks)) for ks in range(3) for hi in range(2)]
    klate = []
    if kin:
        p = bk
        for fn in kfr[:4]:
            p = put_r(fn, p + 1)
            if p >= NP: klate.append(fn); ds[p] = None
    else: bar[bk] = None
    rdat = cfg.get('p2_rd')
    for n in range(NL - 4):
        p = max(pos(ldspos[n]), rdat[n] if rdat else 0) - 1
        for fn in tb_read_items(n + 4): p = put_r(fn, p + 1)
        assert p + LR <= pos(ldspos[n + 4]), (w, n, p, pos(ldspos[n + 4]))
    if cfg.get('p2_dump') == w:
        print("wave", w, "last", last, "b1", b1, "sxi", sxi, "bk", bk, "late", len(late), "klate", len(klate))
        print("".join((ds[p][0] if ds[p] else ('B' if bar[p] else '.')) for p in range(NP)))
        print("".join(('v' if va[p] else '.') for p in range(NP)))
    def need(m):
        if m[0] == 'x': return [('qf', m[1])]
        T, ks = seq[m[1]]; wh = where[(T, ks)]; t = []
        if ks in rest: t.append(('af', ks))
        if wh[0] == 'l': t.append(('tb', wh[1]))
        return t
    for p, m in enumerate(mf):
        if m[0] == 'x':
            k(f"v_smfmac_f32_16x16x64_bf16 {vr(PDX, 4)}, {vr(QF + 4 * m[1], 4)}, {vr(KXF + 8 * m[1], 8)}, v{V_IDX}")
        else:
            T, ks = seq[m[1]]; wh = where[(T, ks)]
            b = vr(TB + 8 * (wh[1] % 4), 8) if wh[0] == 'l' else (ar if wh[0] == 'a' else vr)(wh[1], 8)
            k(f"v_smfmac_f32_16x16x64_bf16 {vr(PD + 4 * T, 4)}, {vr(AF + 4 * ks, 4)}, {b}, v{V_IDX}")
        tags = need(mf[p + 1]) if p + 1 < NP else []
        if bar[p]: tags = tags + [bar[p][0]]
        lq.wait_many(tags)
        if bar[p]:
            k("s_barrier")
            if bar[p][1]: bar[p][1]()
        if ds[p]: ds[p][1]()
        if va[p]: va[p]()
        if p in PR: stamp(k, cfg, 2 + PR.index(p))
    if len(PR) < 3: stamp(k, cfg, 4)
    ns = 0
    for fn in klate: fn(); ns += 1
    for n, fn in enumerate(late):
        if n == 0 and ns == 0: k("s_nop 0"); ns += 1
        fn(); ns += 1
        if n + 1 < len(late): k("s_nop 1"); ns += 2
    if ns < 8: k(f"s_nop {7 - ns}")
    d = PD + 20
    k(f"v_add_f32 v{d}, v{d}, v{d+2}")
    k(f"v_add_f32 v{d+1}, v{d+1}, v{d+3}")
    k(f"v_cvt_pk_bf16_f32 v{d}, v{d}, v{d+1}")
    lq.ds(f"ds_write_b16 v{V_IW}, v{d} offset:{KO + 256}", ('img', 5))
    lq.ds(f"ds_write_b16_d16_hi v{V_IW}, v{d} offset:{KO + 256 + PL_STR}", ('img', 5))
    lq.ds(f"ds_write_b64 v{V_ST8}, {vr(XM, 2)} offset:{512 * w}", 'st')
    smm = lambda ks: k(f"v_smfmac_f32_16x16x64_bf16 {vr(PDM, 4)}, {vr(QF + 4 * ks, 4)}, {vr(KXF + 8 * ks, 8)}, v{V_IDX}")
    if kin:
        for ks in range(2):
            lq.wait(('kf', ks)); smm(ks)
    lq.all()
    k("s_barrier")
    if len(PR) <= 3: stamp(k, cfg, 5)
    OM = AF
    if kin:
        for fn in kfr[4:]: fn()
        lq.ds(f"ds_read_b64 {vr(OM, 2)}, v{V_ST8} offset:{512 * (w ^ 1)}", 'so')
        lq.wait(('kf', 2)); smm(2)
    else:
        for fn in kfr: fn()
        lq.ds(f"ds_read_b64 {vr(OM, 2)}, v{V_ST8} offset:{512 * (w ^ 1)}", 'so')
        for ks in range(3):
            lq.wait(('kf', ks)); smm(ks)
    if len(PR) <= 3: stamp(k, cfg, 6)

def gen_p_wave2(k, w, cfg):
    own, rest, seq, ldspos, where = p_plan2(w, cfg)
    NL = P2_NL; KXF = P2_KXF; TB = P2_TB
    kt = w & 1; tp = w >> 1
    L = lambda s: k.ref(f"p{w}_{s}")
    lab = lambda s: k.lab(f"p{w}_{s}")
    bail = k.ref('bail')
    lq = LQ(k)
    lab('start')
    k("v_lshrrev_b32 v16, 4, v0")
    k("v_and_b32 v17, 15, v0")
    k("v_and_b32 v18, 2, v0")
    k("v_cmp_eq_u32 vcc, 0, v18")
    k("v_mov_b32 v18, 0xeeeeeeee")
    k("v_mov_b32 v19, 0x44444444")
    k(f"v_cndmask_b32 v{V_IDX}, v18, v19, vcc")
    k("v_lshrrev_b32 v20, 2, v17")
    k("v_lshlrev_b32 v20, 1, v20")
    k("v_and_b32 v21, 1, v17")
    k("v_add_u32 v20, v20, v21")
    k("v_bfe_u32 v21, v17, 1, 1")
    k("v_lshl_add_u32 v18, v16, 1, v21")
    k("v_lshlrev_b32 v18, 7, v18")
    k(f"v_lshl_add_u32 v{V_MG}, v20, 4, v18")
    k(f"v_mul_u32_u24 v18, {PL_STR}, v20")
    k("v_lshl_add_u32 v18, v16, 5, v18")
    k("v_lshl_add_u32 v18, v21, 4, v18")
    k(f"v_add_u32 v{V_QR}, {P2_QI}, v18")
    k(f"v_mul_u32_u24 v18, {2 * PL_STR}, v16")
    k("v_lshl_add_u32 v18, v17, 1, v18")
    k(f"v_add_u32 v{V_IW}, {P2_QI + 32 * w}, v18")
    k("v_and_b32 v18, 7, v0")
    k(f"v_mul_u32_u24 v18, {PL_STR}, v18")
    k("v_lshl_add_u32 v18, v16, 5, v18")
    k(f"v_add_u32 v{V_KR}, {P2_KI}, v18")
    k("v_lshlrev_b32 v18, 3, v0")
    k(f"v_add_u32 v{V_ST8}, {P2_ST}, v18")
    k("v_lshlrev_b32 v18, 4, v16")
    k("v_bfe_u32 v19, v17, 1, 2")
    k("v_lshl_add_u32 v18, v19, 2, v18")
    k(f"s_lshl_b32 s{S_T}, s{S_ROLE}, 7")
    k(f"s_add_u32 s{S_T}, s{S_T}, {64 * tp}")
    k(f"v_add_u32 v18, s{S_T}, v18")
    k("v_lshrrev_b32 v19, 3, v17")
    k(f"v_add_u32 v19, {1 + 2 * kt}, v19")
    k("v_lshrrev_b32 v20, 1, v19")
    k("v_lshlrev_b32 v20, 14, v20")
    k("v_and_b32 v19, 1, v19")
    k("v_lshl_add_u32 v19, v19, 12, v20")
    k("v_add_u32 v19, v19, v18")
    k("v_mov_b32 v20, 0x7ffffff0")
    if cfg.get('p2_x4'):
        k("v_and_b32 v21, 7, v0")
        k("v_cmp_eq_u32 vcc, 4, v21")
        k("v_subrev_u32 v21, 8, v18")
        k("s_nop 0")
        k(f"v_cndmask_b32 v{V_PX}, v19, v21, vcc")
    else:
        k("v_and_b32 v21, 1, v0")
        k("v_cmp_eq_u32 vcc, 0, v21")
        k("s_nop 1")
        k(f"v_cndmask_b32 v{V_PX}, v20, v19, vcc")
    k(f"v_and_b32 v21, 0x29, v0")
    k(f"v_cmp_eq_u32 vcc, {32 * kt}, v21")
    k("s_nop 1")
    k(f"v_cndmask_b32 v{V_PM}, v20, v18, vcc")
    k(f"v_lshlrev_b32 v18, 4, v17")
    k("v_lshl_add_u32 v18, v16, 10, v18")
    k(f"v_add_u32 v{V_KXO}, {16 * kt * 16}, v18")
    k(f"v_add_u32 v18, {64 * w}, v0")
    k("v_mul_u32_u24 v19, 2731, v18")
    k("v_lshrrev_b32 v19, 16, v19")
    k("v_mul_u32_u24 v20, 24, v19")
    k("v_sub_u32 v20, v18, v20")
    k(f"v_mul_u32_u24 v21, {PL_STR}, v19")
    k("v_lshl_add_u32 v21, v20, 4, v21")
    k(f"v_add_u32 v{V_KML}, {P2_KI}, v21")
    k("v_lshlrev_b32 v21, 4, v19")
    k(f"v_lshl_add_u32 v{V_KMG}, v20, 7, v21")
    k(f"v_add_u32 v{V_WLA}, {w * NL * 2048}, v{V_L16}")
    k(f"v_add_u32 v{V_MIA}, {P2_MEMI}, v{V_L16}")
    k(f"s_mul_i32 s{S_KX}, s{S_ROLE}, {KX_SH}")
    k(f"s_add_u32 s{S_KX}, s{S_KX}, {KX}")
    k(f"s_mul_i32 s{S_KM}, s{S_ROLE}, {KM_SH}")
    k(f"s_add_u32 s{S_KM}, s{S_KM}, {KM}")
    k(f"s_mul_i32 s{S_T}, s{S_ROLE}, 6")
    k(f"s_add_u32 s{S_T+1}, s{S_T}, 5")
    k(f"s_lshr_b32 s{S_T}, s{S_T}, 3")
    k(f"s_lshr_b32 s{S_T+1}, s{S_T+1}, 3")
    k(f"s_add_u32 s{S_T}, s{S_T}, 80"); k(f"s_add_u32 s{S_T+1}, s{S_T+1}, 80")
    k(f"s_lshl_b32 s{S_T}, s{S_T}, 7"); k(f"s_lshl_b32 s{S_T+1}, s{S_T+1}, 7")
    k(f"v_mov_b32 v{V_GF}, s{S_T+1}")
    k(f"v_mov_b32 v{V_T0}, s{S_T}")
    k("v_cmp_eq_u32 vcc, 0, v0")
    k("s_nop 1")
    k(f"v_cndmask_b32 v{V_GF}, v{V_GF}, v{V_T0}, vcc")
    k(f"s_mov_b32 s{S_GK}, 0")
    k(f"s_mul_i32 s{S_T}, s{S_ROLE}, 491520")
    k(f"s_add_u32 s{S_T}, s{S_T}, {WP + w * 122880}")
    def wload(dst, T, ks):
        idx = T * 10 + ks
        k(f"s_add_u32 s{S_T+1}, s{S_T}, {idx * 2048}")
        for hi in range(2):
            k(f"buffer_load_dwordx4 {dst(hi)}, v{V_L16}, {srd}, s{S_T+1} offen offset:{hi*1024}")
    SEMI = cfg.get('na') == 4
    lops = [(op, wh[1]) for op, wh in where.items() if wh[0] == 'l']
    rops = [(op, wh) for op, wh in where.items() if wh[0] != 'l' and not (SEMI and wh[0] == 'a' and wh[1] // 8 < cfg.get('npf', 64) // 2)]
    for (T, ks), slot in lops:
        wload(lambda hi: vr(16 + 8 * slot + 4 * hi, 4), T, ks)
    for (T, ks), wh in rops[:15]:
        wload((lambda hi, wh=wh: (ar if wh[0] == 'a' else vr)(wh[1] + 4 * hi, 4)), T, ks)
    k(f"s_waitcnt vmcnt({2 * len(rops[:15])})")
    for (T, ks), slot in lops:
        for hi in range(2):
            k(f"ds_write_b128 v{V_WLA}, {vr(16 + 8 * slot + 4 * hi, 4)} offset:{slot * 2048 + hi * 1024}")
    for (T, ks), wh in rops[15:]:
        wload((lambda hi, wh=wh: (ar if wh[0] == 'a' else vr)(wh[1] + 4 * hi, 4)), T, ks)
    k("s_waitcnt lgkmcnt(0)")
    npf = [0]
    def kx_prefetch(step_s):
        npf[0] += 1
        wait_progress(k, cfg, f"p{w}_gw{npf[0]}", step_s, V_GF, 2, V_T0)
        k(f"s_mul_i32 s{S_T}, s{step_s}, {32 * KX_SH}")
        k(f"s_add_u32 s{S_T}, s{S_T}, s{S_KX}")
        for ks in range(3):
            k(f"s_add_u32 s{S_T+1}, s{S_T}, {ks * 4096}")
            for hi in range(2):
                k(f"buffer_load_dwordx4 {vr(KXF + 8 * ks + 4 * hi, 4)}, v{V_KXO}, {srd}, s{S_T+1} offen offset:{hi * 512} sc1")
    def tb_read_items(n):
        return [lambda hi=hi: lq.ds(f"ds_read_b128 {vr(TB + 8 * (n % 4) + 4 * hi, 4)}, v{V_WLA} offset:{n * 2048 + hi * 1024}", ('tb', n)) for hi in range(2)]
    def zero_d():
        for r in range(PD, PD + 32): k(f"v_mov_b32 v{r}, 0")
    k(f"s_mov_b32 s{S_STEP}, 0")
    kx_prefetch(S_STEP)
    zero_d()
    for n in range(4):
        for it in tb_read_items(n): it()
    lq.all()
    lab('step')
    slot_base(k, S_SB, S_STEP, S_T)
    for u, ks in enumerate(own):
        k(f"s_add_u32 s{S_T+2+u}, s{S_SB}, {physmap(M_LOG + 1024 * ks)}")
    stamp(k, cfg, 0)
    lab('poll')
    for u, ks in enumerate(own):
        k(f"buffer_load_dwordx4 {vr(AF + 4 * ks, 4)}, v{V_L16 if cfg.get('p2_lin') else V_MG}, {srd}, s{S_T+2+u} offen sc1")
    k("s_waitcnt vmcnt(0)")
    for ks in own:
        k(f"ds_write_b128 v{V_MIA}, {vr(AF + 4 * ks, 4)} offset:{ks * 1024}")
    check_valid(k, [AF + 4 * ks + j for ks in own for j in range(4)], QF)
    spin_check(k, bail)
    k(f"s_cbranch_vccnz {L('poll')}")
    lq.q = ['mw']
    def dpp(op, dst, src, ctl):
        k(f"{op} v{dst}, v{src}, v{src} {ctl} row_mask:0xf bank_mask:0xf")
    XS, XM, XL, XE = PD, PD + 2, PD + 3, PD + 4
    OM, OL = AF, AF + 1
    if cfg.get('p2s'):
        def dry(fix):
            r = []
            for w_ in range(4):
                o_, r_, s_, l_, wh_ = p_plan2(w_, cfg)
                r.append(p2_sched(k, w_, cfg, lq, o_, r_, s_, l_, wh_, tb_read_items, fix))
            return r
        fix = dict(b1=max(x['b1'] for x in dry(None)))
        fix['bk'] = max(x['bk'] for x in dry(fix))
        p2_sched(k, w, cfg, lq, own, rest, seq, ldspos, where, tb_read_items, fix)
    else:
        NB0 = cfg.get('p2_b0', 2)
        side = {i: [] for i in range(-1, 60)}
        def put(items, start, per=2):
            i = start
            for it in items:
                while len(side[i]) >= per: i += 1
                side[i].append(it)
            return i
        def b0():
            lq.all()
            k("s_barrier")
            stamp(k, cfg, 1)
            if w == 0: rt(k, cfg, 0)
        side[NB0 - 1].append(b0)
        rd = [lambda ks=ks: lq.ds(f"ds_read_b128 {vr(AF + 4 * ks, 4)}, v{V_MIA} offset:{ks * 1024}", ('af', ks)) for ks in rest]
        for it in rd[:3]: side[NB0 - 1].append(it)
        put(rd[3:], NB0)
        def post_tile(T, base):
            d = PD + 4 * T
            col = 128 * (T % 3)
            return [
                lambda: k(f"v_add_f32 v{d}, v{d}, v{d+2}"),
                lambda: k(f"v_add_f32 v{d+1}, v{d+1}, v{d+3}"),
                lambda: k(f"v_cvt_pk_bf16_f32 v{d}, v{d}, v{d+1}"),
                lambda: lq.ds(f"ds_write_b16 v{V_IW}, v{d} offset:{base + col}", ('img', T)),
                lambda: lq.ds(f"ds_write_b16_d16_hi v{V_IW}, v{d} offset:{base + col + PL_STR}", ('img', T)),
            ]
        nrd = {i: 0 for i in range(-1, 60)}
        def put_rd(items, start):
            i = start
            for it in items:
                while len(side[i]) >= 2 or nrd[i] >= 1: i += 1
                side[i].append(it); nrd[i] += 1
            return i
        RD1 = cfg.get('p2_rd1', 0)
        rdpos = cfg.get('p2_rd', ldspos)
        for n in range(NL - 4):
            assert rdpos[n] >= ldspos[n]
            if RD1: e_ = put_rd(tb_read_items(n + 4), rdpos[n]); assert e_ < ldspos[n + 4] - 3, (n, e_)
            else: put(tb_read_items(n + 4), rdpos[n])
        last = {T: max(i for i, op in enumerate(seq) if op[0] == T) for T in range(6)}
        KO = P2_KI - P2_QI
        for T in (0, 1): put(post_tile(T, 0), last[T] + 2)
        e = put(post_tile(2, 0), last[2] + 2)
        b1 = e + cfg.get('p2_b1', 3)
        PR = cfg.get('p2_pr')
        side[b1].append(lambda: (lq.wait(('img', 2)), k("s_barrier"), None if PR else stamp(k, cfg, 3)))
        for ks in range(3):
            side[b1 + (ks > 0)].append(lambda ks=ks: lq.ds(f"ds_read_b128 {vr(QF + 4 * ks, 4)}, v{V_QR} offset:{ks * 128}", ('qf', ks)))
        put(post_tile(3, KO), last[3] + 2)
        sx = b1 + cfg.get('p2_sx', 6)
        def smx():
            lq.wait(('qf', 2))
            for ks in range(3):
                k(f"v_smfmac_f32_16x16x64_bf16 {vr(PDX, 4)}, {vr(QF + 4 * ks, 4)}, {vr(KXF + 8 * ks, 8)}, v{V_IDX}")
        side[sx].append(smx)
        def dpp(op, dst, src, ctl):
            k(f"{op} v{dst}, v{src}, v{src} {ctl} row_mask:0xf bank_mask:0xf")
        XS, XM, XL, XE = PD, PD + 2, PD + 3, PD + 4
        xchain = [
            [lambda: k(f"v_add_f32 v{XS}, v{PDX + tp}, v{PDX + tp + 2}"), lambda: k(f"v_mul_f32 v{XS}, {hexf(CSC)}, v{XS}")],
            [lambda: dpp("v_max_f32_dpp", XM, XS, "row_ror:8")],
            [lambda: dpp("v_max_f32_dpp", XM, XM, "row_ror:4")],
            [lambda: dpp("v_max_f32_dpp", XM, XM, "row_ror:2")],
            [lambda: dpp("v_max_f32_dpp", XM, XM, "row_ror:1")],
            [lambda: k(f"v_sub_f32 v{XE}, v{XS}, v{XM}"), lambda: k(f"v_exp_f32 v{XE}, v{XE}")],
            [lambda: dpp("v_add_f32_dpp", XL, XE, "row_ror:8")],
            [lambda: dpp("v_add_f32_dpp", XL, XL, "row_ror:4")],
            [lambda: dpp("v_add_f32_dpp", XL, XL, "row_ror:2")],
            [lambda: dpp("v_add_f32_dpp", XL, XL, "row_ror:1")],
            [lambda: lq.ds(f"ds_write_b64 v{V_ST8}, {vr(XM, 2)} offset:{512 * w}", 'st')],
        ]
        g0 = sx + 2
        late = []
        for n, its in enumerate(xchain):
            if g0 + n <= 59:
                for it in its: side[g0 + n].append(it)
            else: late.append(its)
        put(post_tile(4, KO), last[4] + 2)
        bk = cfg.get('p2_bk', 56)
        side[bk].append(lambda: (lq.wait(('img', 4)), k("s_barrier")))
        kfr = [lambda ks=ks, hi=hi: lq.ds(f"ds_read_b128 {vr(KXF + 8 * ks + 4 * hi, 4)}, v{V_KR} offset:{ks * 128 + hi * 16}", ('kf', ks)) for ks in range(2) for hi in range(2)]
        side[bk] += kfr[:2]; side[bk + 1] += kfr[2:]
        assert bk > sx + 1
        for it in side[-1]: it()
        for i, (T, ks) in enumerate(seq):
            wh = where[(T, ks)]
            if T < 3 and ks in rest: lq.wait(('af', ks))
            if wh[0] == 'l':
                lq.wait(('tb', wh[1]))
                b = vr(TB + 8 * (wh[1] % 4), 8)
            else:
                b = (ar if wh[0] == 'a' else vr)(wh[1], 8)
            k(f"v_smfmac_f32_16x16x64_bf16 {vr(PD + 4 * T, 4)}, {vr(AF + 4 * ks, 4)}, {b}, v{V_IDX}")
            for it in side[i]: it()
            if i == 29 and not PR: stamp(k, cfg, 2)
            if PR and i in PR: stamp(k, cfg, 2 + PR.index(i))
        if not PR: stamp(k, cfg, 4)
        for ks in range(2):
            lq.wait(('kf', ks))
            k(f"v_smfmac_f32_16x16x64_bf16 {vr(PDM, 4)}, {vr(QF + 4 * ks, 4)}, {vr(KXF + 8 * ks, 8)}, v{V_IDX}")
        for its in late:
            k("s_nop 1")
            for it in its: it()
        if late: k("s_nop 0")
        for it in post_tile(5, KO): it()
        lq.all()
        k("s_barrier")
        if not PR: stamp(k, cfg, 5)
        for hi in range(2):
            lq.ds(f"ds_read_b128 {vr(KXF + 16 + 4 * hi, 4)}, v{V_KR} offset:{256 + hi * 16}", ('kf', 2))
        OM, OL = AF, AF + 1
        lq.ds(f"ds_read_b64 {vr(OM, 2)}, v{V_ST8} offset:{512 * (w ^ 1)}", 'so')
        lq.wait(('kf', 2))
        k(f"v_smfmac_f32_16x16x64_bf16 {vr(PDM, 4)}, {vr(QF + 8, 4)}, {vr(KXF + 16, 8)}, v{V_IDX}")
        if not PR: stamp(k, cfg, 6)
    lq.wait('so')
    MXX, F0, F1, LX, SM, U, T_, EM, FX, R = range(AF + 2, AF + 12)
    k(f"v_max_f32 v{MXX}, v{XM}, v{OM}")
    k(f"v_sub_f32 v{F0}, v{XM}, v{MXX}")
    k(f"v_sub_f32 v{F1}, v{OM}, v{MXX}")
    k(f"v_exp_f32 v{F0}, v{F0}")
    k(f"v_exp_f32 v{F1}, v{F1}")
    k("s_nop 0")
    k(f"v_mul_f32 v{LX}, v{XL}, v{F0}")
    k(f"v_mul_f32 v{XE}, v{XE}, v{F0}")
    k(f"v_fmac_f32 v{LX}, v{OL}, v{F1}")
    k(f"v_add_f32 v{SM}, v{PDM + tp}, v{PDM + tp + 2}")
    k(f"v_mul_f32 v{SM}, {hexf(CSC)}, v{SM}")
    k(f"v_max_f32 v{U}, v{SM}, v{MXX}")
    k("s_nop 0")
    k(f"v_max_f32_dpp v{T_}, v{SM}, v{U} row_ror:4 row_mask:0xf bank_mask:0xf"); k("s_nop 1")
    dpp("v_max_f32_dpp", T_, T_, "row_ror:2"); k("s_nop 1")
    dpp("v_max_f32_dpp", T_, T_, "row_ror:1")
    k(f"v_sub_f32 v{EM}, v{SM}, v{T_}")
    k(f"v_sub_f32 v{FX}, v{MXX}, v{T_}")
    k(f"v_exp_f32 v{EM}, v{EM}")
    k(f"v_exp_f32 v{FX}, v{FX}")
    k("s_nop 0")
    dpp("v_add_f32_dpp", U, EM, "row_ror:4")
    k(f"v_mul_f32 v{XE}, v{XE}, v{FX}")
    k("s_nop 0")
    dpp("v_add_f32_dpp", U, U, "row_ror:2"); k("s_nop 1")
    dpp("v_add_f32_dpp", U, U, "row_ror:1")
    k(f"v_fmac_f32 v{U}, v{FX}, v{LX}")
    k(f"v_rcp_f32 v{R}, v{U}")
    k("s_nop 0")
    k(f"v_mul_f32 v{XE}, v{XE}, v{R}")
    k(f"v_mul_f32 v{EM}, v{EM}, v{R}")
    k("s_nop 0")
    k(f"v_mov_b32_dpp v{F0}, v{XE} quad_perm:[1,0,3,2] row_mask:0xf bank_mask:0xf")
    k(f"v_mov_b32_dpp v{F1}, v{EM} quad_perm:[1,0,3,2] row_mask:0xf bank_mask:0xf")
    if cfg.get('p2_x4'):
        O = AF + 12
        k(f"v_cvt_pk_bf16_f32 v{O}, v{XE}, v{F0}")
        k(f"v_cvt_pk_bf16_f32 v{EM}, v{EM}, v{F1}")
        ctl = "row_mask:0xf bank_mask:0xf"
        k("s_nop 0")
        for j in range(1, 4): k(f"v_mov_b32_dpp v{O+j}, v{O} row_shl:{2*j} {ctl}")
        k(f"v_mov_b32_dpp v{O}, v{EM} row_shr:4 row_mask:0xf bank_mask:0x2")
        k(f"v_mov_b32_dpp v{O+1}, v{EM} row_shr:2 row_mask:0xf bank_mask:0x2")
        k(f"v_mov_b32_dpp v{O+2}, v{EM} quad_perm:[0,1,2,3] row_mask:0xf bank_mask:0x2")
        k(f"v_mov_b32_dpp v{O+3}, v{EM} row_shl:2 row_mask:0xf bank_mask:0x2")
        k(f"s_mov_b32 exec_lo, {0x01110111 if kt == 0 else 0x01010101:#x}")
        k(f"s_mov_b32 exec_hi, {0x01010101 if kt == 0 else 0x01110111:#x}")
        k(f"buffer_store_dwordx4 {vr(O, 4)}, v{V_PX}, {srd}, s{S_SB} offen sc1")
        k("s_mov_b64 exec, -1")
    else:
        k(f"v_cvt_pk_bf16_f32 v{XE}, v{XE}, v{F0}")
        k(f"v_cvt_pk_bf16_f32 v{EM}, v{EM}, v{F1}")
        k(f"buffer_store_dword v{XE}, v{V_PX}, {srd}, s{S_SB} offen sc1")
        k(f"buffer_store_dword v{EM}, v{V_PM}, {srd}, s{S_SB} offen sc1")
    stamp(k, cfg, 7)
    stamp(k, cfg, 8, True)
    if w == 0: rt(k, cfg, 1)
    X0 = AF + 24
    if w < 3:
        lq.ds(f"ds_read_b128 {vr(X0, 4)}, v{V_KML}", 'km')
    k(f"s_add_u32 s{S_T+8}, s{S_STEP}, 1")
    k(f"s_min_u32 s{S_T+8}, s{S_T+8}, {NSTEP-1}")
    kx_prefetch(S_T + 8)
    zero_d()
    if w < 3:
        lq.wait('km')
        k(f"s_mul_i32 s{S_T}, s{S_STEP}, {32 * KM_SH}")
        k(f"s_add_u32 s{S_T}, s{S_T}, s{S_KM}")
        k(f"buffer_store_dwordx4 {vr(X0, 4)}, v{V_KMG}, {srd}, s{S_T} offen sc1")
    if w == 3:
        k(f"s_lshl_b32 s{S_T}, s{S_ROLE}, 7")
        k(f"s_add_u32 s{S_T}, s{S_T}, {FL_PF}")
        flag_store(k, cfg, S_T, S_STEP, V_T0, V_T1)
    for n in range(4):
        for it in tb_read_items(n): it()
    lq.all()
    if w == 0: rt_flush(k, cfg, 0)
    if w == cfg.get('stamp_wave', 0): stamp_flush(k, cfg, 9, cfg.get('stamp_p', 0))
    k(f"s_add_u32 s{S_STEP}, s{S_STEP}, 1")
    k(f"s_cmp_lt_u32 s{S_STEP}, {NSTEP}")
    k(f"s_cbranch_scc1 {L('step')}")
    k("s_waitcnt vmcnt(0)")
    k("s_barrier")
    if w == 3:
        k(f"s_lshl_b32 s{S_T}, s{S_ROLE}, 7")
        k(f"s_add_u32 s{S_T}, s{S_T}, {FL_PF}")
        flag_store(k, cfg, S_T, S_STEP, V_T0, V_T1)
    k(f"s_branch {k.ref('end')}")

YL_MEMI = 0
YL_RED = 10240
YV_L16 = 1; YV_IDX = 2; YV_MIA = 3; YV_ZO = 4; YV_PO = 5; YV_RW = 6; YV_RR = 7; YV_MO = 8; YV_GF = 9; YV_MK = 10
YAF = 16; YD = 56; YZB = 72; YPF = 92; YACC = 112; YT = 116; YVW = 176

def gen_y_wave(k, w, cfg):
    own = OWN[w]; rest = [ks for ks in range(10) if ks not in own]
    L = lambda s: k.ref(f"y{w}_{s}")
    lab = lambda s: k.lab(f"y{w}_{s}")
    bail = k.ref('bail')
    lq = LQ(k)
    lab('start')
    k("v_lshrrev_b32 v16, 4, v0")
    k("v_and_b32 v17, 7, v0")
    k("v_lshrrev_b32 v18, 3, v0")
    k("v_and_b32 v18, 1, v18")
    k("v_lshl_add_u32 v19, v18, 2, v16")
    k(f"v_add_u32 v19, {8 * w}, v19")
    k("v_mul_u32_u24 v20, 640, v19")
    k(f"v_lshl_add_u32 v{YV_ZO}, v17, 4, v20")
    if cfg.get('p2'):
        k("v_and_b32 v20, 1, v17")
        k("v_lshlrev_b32 v20, 2, v20")
        k("v_lshrrev_b32 v21, 1, v17")
    else:
        k("v_and_b32 v20, 3, v17")
        k("v_lshlrev_b32 v20, 1, v20")
        k("v_lshrrev_b32 v21, 2, v17")
    k("v_add_u32 v20, v20, v21")
    k("v_lshlrev_b32 v20, 4, v20")
    k(f"v_lshl_add_u32 v{YV_PO}, v19, 7, v20")
    k(f"v_add_u32 v{YV_MIA}, {YL_MEMI}, v{YV_L16}")
    k("v_lshrrev_b32 v20, 1, v17")
    k("v_lshlrev_b32 v20, 7, v20")
    k("v_and_b32 v21, 1, v17")
    k("v_lshl_add_u32 v20, v21, 2, v20")
    k(f"v_add_u32 v{YV_MK}, {512 * w}, v20")
    k("v_lshlrev_b32 v20, 8, v18")
    k("v_lshl_add_u32 v20, v17, 5, v20")
    k("v_and_b32 v21, 1, v16")
    k("v_lshl_add_u32 v20, v21, 4, v20")
    k(f"v_add_u32 v20, {YL_RED + 512 * w}, v20")
    k(f"v_add_u32 v21, {YL_RED + 2048}, v{YV_L16}")
    k("v_lshrrev_b32 v22, 1, v16")
    k("v_cmp_eq_u32 vcc, v22, v18")
    k("s_nop 1")
    k(f"v_cndmask_b32 v{YV_RW}, v21, v20, vcc")
    k("v_lshrrev_b32 v20, 3, v0")
    k("v_lshlrev_b32 v20, 2, v20")
    k("v_lshl_add_u32 v20, v17, 5, v20")
    k(f"v_add_u32 v{YV_RR}, {YL_RED}, v20")
    k(f"s_lshl_b32 s{S_T}, s{S_ROLE}, 7")
    k(f"s_add_u32 s{S_T}, s{S_T}, {M_LOG}")
    k(f"s_lshr_b32 s{S_T+1}, s{S_T}, 13")
    k(f"s_lshl_b32 s{S_T+1}, s{S_T+1}, 14")
    k(f"s_and_b32 s{S_T}, s{S_T}, 8191")
    k(f"s_add_u32 s{S_T}, s{S_T}, s{S_T+1}")
    k("v_lshrrev_b32 v20, 3, v0")
    k("v_lshlrev_b32 v20, 4, v20")
    k(f"v_add_u32 v{YV_MO}, s{S_T}, v20")
    k(f"s_mul_i32 s{S_Z}, s{S_ROLE}, 20480")
    k(f"s_add_u32 s{S_Z}, s{S_Z}, {Z}")
    k(f"s_mul_i32 s{S_T}, s{S_ROLE}, 327680")
    k(f"s_add_u32 s{S_T}, s{S_T}, {WY + w * 81920}")
    def wreg(T, ks):
        n = T * 10 + ks
        return ('a', 8 * n) if n < 32 else ('v', YVW + 8 * (n - 32))
    if cfg.get('ygate') is not None:
        k(f"s_add_u32 s{S_T+2}, s{S_FL}, {cfg['ygate'][0]}")
        k("v_lshlrev_b32 v20, 2, v0")
        k(f"s_mov_b32 exec_lo, {(1 << cfg['ygate'][1]) - 1}"); k("s_mov_b32 exec_hi, 0")
        lab('gate')
        k(f"buffer_load_dword v21, v20, {srd}, s{S_T+2} offen sc1")
        k("s_waitcnt vmcnt(0)")
        k("v_cmp_eq_u32 vcc, 0, v21")
        spin_check(k, bail)
        k(f"s_cbranch_vccnz {L('gate')}")
        k("s_mov_b64 exec, -1")
    WIN = cfg.get('winy', cfg.get('win')); nld = 0
    for T in range(4):
        for ks in range(10):
            wh = wreg(T, ks)
            if cfg.get('na') == 4 and wh[0] == 'a' and wh[1] // 8 < cfg.get('npf', 64) // 2: continue
            k(f"s_add_u32 s{S_T+1}, s{S_T}, {(T * 10 + ks) * 2048}")
            for hi in range(2):
                d = (ar if wh[0] == 'a' else vr)(wh[1] + 4 * hi, 4)
                k(f"buffer_load_dwordx4 {d}, v{YV_L16}, {srd}, s{S_T+1} offen offset:{hi*1024}")
                nld += 1
                if WIN and nld > WIN: k(f"s_waitcnt vmcnt({WIN})")
    k(f"s_mov_b32 s{S_STEP}, 0")
    SC1 = " sc1" if cfg.get('ovl') else ""
    if cfg.get('ovl'):
        k(f"s_lshl_b32 s{S_T}, s{S_ROLE}, 7")
        k(f"v_mov_b32 v{YV_GF}, s{S_T}")
        k(f"s_mov_b32 s{S_GK}, 0")
    lab('step')
    YC = cfg.get('ycopy', 0)
    AW = cfg.get('ackwait', 1)
    slot_base(k, S_SB, S_STEP, S_T, S_SBF if YC else None)
    def uload():
        wait_progress(k, cfg, f"y{w}_gw", S_STEP, YV_GF, 1, YT)
        for t in range(1, 5):
            k(f"buffer_load_dwordx4 {vr(YZB + 4 * t, 4)}, v{YV_ZO}, {srd}, s{S_T+8} offen offset:{t*128}{SC1}")
    k(f"s_mul_i32 s{S_T+8}, s{S_STEP}, {Z_SEG}")
    k(f"s_add_u32 s{S_T+8}, s{S_T+8}, s{S_Z}")
    if not AW: uload()
    for r in range(YD, YD + 16): k(f"v_mov_b32 v{r}, 0")
    for u, ks in enumerate(own):
        k(f"s_add_u32 s{S_T+2+u}, s{S_SBF if YC else S_SB}, {physmap(M_LOG + 1024 * ks)}")
    stamp(k, cfg, 0)
    lab('poll')
    if cfg.get('y_nopoll'):
        for ks in own:
            for j in range(4): k(f"v_mov_b32 v{YAF + 4 * ks + j}, 0")
            k(f"ds_write_b128 v{YV_MIA}, {vr(YAF + 4 * ks, 4)} offset:{ks * 1024}")
    else:
        for u, ks in enumerate(own):
            k(f"buffer_load_dwordx4 {vr(YAF + 4 * ks, 4)}, v{YV_L16}, {srd}, s{S_T+2+u} offen sc1")
        k("s_waitcnt vmcnt(0)")
        for ks in own:
            k(f"ds_write_b128 v{YV_MIA}, {vr(YAF + 4 * ks, 4)} offset:{ks * 1024}")
        check_valid(k, [YAF + 4 * ks + j for ks in own for j in range(4)], YT)
        spin_check(k, bail)
        k(f"s_cbranch_vccnz {L('poll')}")
    lq.all()
    k("s_barrier")
    stamp(k, cfg, 1)
    if w == 0: rt(k, cfg, 0)
    for ks in rest:
        lq.ds(f"ds_read_b128 {vr(YAF + 4 * ks, 4)}, v{YV_MIA} offset:{ks * 1024}", ('af', ks))
    if AW: uload()
    for ks in own + rest:
        if ks in rest: lq.wait(('af', ks))
        for T in range(4):
            wh = wreg(T, ks)
            b = (ar if wh[0] == 'a' else vr)(wh[1], 8)
            k(f"v_smfmac_f32_16x16x64_bf16 {vr(YD + 4 * T, 4)}, {vr(YAF + 4 * ks, 4)}, {b}, v{YV_IDX}")
    k("s_nop 7")
    D = lambda T, r: YD + 4 * T + r
    for r in range(4):
        k(f"v_permlane32_swap_b32 v{D(0,r)}, v{D(2,r)}")
        k(f"v_permlane32_swap_b32 v{D(1,r)}, v{D(3,r)}")
    for r in range(4):
        k(f"v_add_f32 v{D(0,r)}, v{D(0,r)}, v{D(2,r)}")
        k(f"v_add_f32 v{D(1,r)}, v{D(1,r)}, v{D(3,r)}")
    k("s_nop 1")
    for r in range(4):
        k(f"v_permlane16_swap_b32 v{D(0,r)}, v{D(1,r)}")
    k("s_nop 1")
    k(f"v_cvt_pk_bf16_f32 v{YZB}, v{D(0,0)}, v{D(0,1)}")
    k(f"v_cvt_pk_bf16_f32 v{YZB+1}, v{D(0,2)}, v{D(0,3)}")
    k(f"v_cvt_pk_bf16_f32 v{YZB+2}, v{D(1,0)}, v{D(1,1)}")
    k(f"v_cvt_pk_bf16_f32 v{YZB+3}, v{D(1,2)}, v{D(1,3)}")
    k(f"buffer_store_dwordx4 {vr(YZB, 4)}, v{YV_ZO}, {srd}, s{S_T+8} offen{SC1}")
    stamp(k, cfg, 2)
    k(f"s_cmp_eq_u32 s{S_STEP}, {NSTEP-1}")
    k(f"s_cbranch_scc1 {L('last') if cfg.get('ovl') else k.ref('end')}")
    for t in range(5):
        k(f"s_add_u32 s{S_T+10+t}, s{S_SB}, {physmap(t * 4096)}")
    k(f"s_add_u32 s{S_T+9}, s{S_STEP}, 1")
    slot_base(k, S_SBN, S_T + 9, S_T, S_SBNF if YC else None)
    if cfg.get('mark') is not None:
        k(f"s_add_u32 s{S_MK}, s{S_SB}, {physmap(MARK_LOG)}")
        lab('mpoll')
        k(f"buffer_load_dword v{YT}, v{YV_MK}, {srd}, s{S_MK} offen sc1")
        k("s_waitcnt vmcnt(0)")
        k(f"v_cmp_eq_u32 vcc, -1, v{YT}")
        spin_check(k, bail)
        k(f"s_cbranch_vccnz {L('mpoll')}")
        if w == 0 and cfg.get('rt2'): rt(k, cfg, 0)
    if cfg.get('cpoll', 0):
        for r in range(4): k(f"v_mov_b32 v{YACC + r}, 0")
        poll_cont(k, f"y{w}_pp",
                  [lambda t=t: k(f"buffer_load_dwordx4 {vr(YPF + 4 * t, 4)}, v{YV_PO}, {srd}, s{S_T+10+t} offen sc1") for t in range(5)],
                  [[YPF + 4 * t + j for j in range(4)] for t in range(5)],
                  [lambda t=t: (k(f"v_mfma_f32_16x16x32_bf16 {vr(YACC, 4)}, {vr(YPF + 4 * t, 4)}, {vr(YZB + 4 * t, 4)}, {vr(YACC, 4)}"),
                                (rt(k, cfg, 3 + t) if (w == 0 and cfg.get('rt2')) else None)) for t in range(5)],
                  YT, 132, bail)
        k("s_nop 5")
    else:
        lab('ppoll')
        for t in range(5):
            k(f"buffer_load_dwordx4 {vr(YPF + 4 * t, 4)}, v{YV_PO}, {srd}, s{S_T+10+t} offen sc1")
        k("s_waitcnt vmcnt(0)")
        for t in range(5):
            c = "0" if t == 0 else vr(YACC, 4)
            k(f"v_mfma_f32_16x16x32_bf16 {vr(YACC, 4)}, {vr(YPF + 4 * t, 4)}, {vr(YZB + 4 * t, 4)}, {c}")
        check_valid(k, range(YPF, YPF + 20), YT)
        spin_check(k, bail)
        k(f"s_cbranch_vccnz {L('ppoll')}")
    stamp(k, cfg, 3)
    if w == 0: rt(k, cfg, 1)
    lq.ds(f"ds_write_b128 v{YV_RW}, {vr(YACC, 4)}", 'rw')
    lq.all()
    k("s_barrier")
    if w == 0:
        for u in range(4):
            lq.ds(f"ds_read2st64_b32 {vr(YT + 2 * u, 2)}, v{YV_RR} offset0:{2*u} offset1:{2*u+1}", ('rr', u))
        lq.wait(('rr', 1))
        k(f"v_add_f32 v{YT}, v{YT}, v{YT+1}")
        k(f"v_add_f32 v{YT+2}, v{YT+2}, v{YT+3}")
        lq.wait(('rr', 3))
        k(f"v_add_f32 v{YT+4}, v{YT+4}, v{YT+5}")
        k(f"v_add_f32 v{YT+6}, v{YT+6}, v{YT+7}")
        k(f"v_add_f32 v{YT}, v{YT}, v{YT+2}")
        k(f"v_add_f32 v{YT+4}, v{YT+4}, v{YT+6}")
        k(f"v_add_f32 v{YT}, v{YT}, v{YT+4}")
        k("s_nop 1")
        k(f"v_mov_b32_dpp v{YT+1}, v{YT} quad_perm:[1,0,3,2] row_mask:0xf bank_mask:0xf")
        k(f"v_cvt_pk_bf16_f32 v{YT+8}, v{YT}, v{YT+1}")
        k("s_nop 1")
        for j in range(1, 4):
            k(f"v_mov_b32_dpp v{YT+8+j}, v{YT+8} row_shl:{2*j} row_mask:0xf bank_mask:0xf")
        k(f"s_mov_b64 exec, s[{S_M8}:{S_M8+1}]")
        k(f"buffer_store_dwordx4 {vr(YT + 8, 4)}, v{YV_MO}, {srd}, s{S_SBN} offen sc1")
        if YC: k(f"buffer_store_dwordx4 {vr(YT + 8, 4)}, v{YV_MO}, {srd}, s{S_SBNF} offen sc1")
        k("s_mov_b64 exec, -1")
        if cfg.get('ovl'):
            k(f"s_lshl_b32 s{S_T}, s{S_ROLE}, 7")
            k(f"s_add_u32 s{S_T}, s{S_T}, {FL_YF}")
            flag_store(k, cfg, S_T, S_T + 9, YT, YT + 1)
        stamp(k, cfg, 4)
        rt(k, cfg, 2)
        if AW: k("s_waitcnt vmcnt(0)")
        rt_flush(k, cfg, 32)
        stamp_flush(k, cfg, 5, cfg.get('stamp_y', 0))
    if AW: k("s_barrier")
    k(f"s_add_u32 s{S_STEP}, s{S_STEP}, 1")
    k(f"s_branch {L('step')}")
    if cfg.get('ovl'):
        lab('last')
        k("s_waitcnt vmcnt(0)")
        k("s_barrier")
        if w == 0:
            k(f"s_lshl_b32 s{S_T}, s{S_ROLE}, 7")
            k(f"s_add_u32 s{S_T}, s{S_T}, {FL_YF}")
            k(f"s_mov_b32 s{S_T+9}, {NSTEP}")
            flag_store(k, cfg, S_T, S_T + 9, YT, YT + 1)
        k(f"s_branch {k.ref('end')}")

def role_assign(k, cfg, rb=19, part=None, va=2, lds_off=0, nyoung=0, sfx=''):
    R = lambda n: f"s{rb + n - 19}"
    vb = va + 1
    if part in (None, 1):
        k(f"s_lshl_b32 {R(19)}, s{S_LAYER}, 11")
        k(f"s_add_u32 {R(19)}, {R(19)}, {CT_TICK}")
        k(f"s_getreg_b32 {R(20)}, hwreg(HW_REG_XCC_ID)")
        k(f"s_and_b32 {R(20)}, {R(20)}, 7")
        if cfg.get('fake_xcc') is not None:
            k(f"s_and_b32 {R(20)}, s2, {cfg['fake_xcc']}")
        k(f"s_cmp_lg_u32 s{S_WAVE}, 0")
        k(f"s_cbranch_scc1 {k.ref('tk_wait' + sfx if part is None else 'tk_p1')}")
        k(f"s_lshl_b32 {R(22)}, {R(20)}, 8")
        k(f"s_add_u32 {R(22)}, {R(22)}, {R(19)}")
        k("s_mov_b64 exec, 1")
        k(f"v_mov_b32 v{va}, 0")
        k(f"v_mov_b32 v{vb}, 1")
        k(f"buffer_atomic_add v{vb}, v{va}, {srd}, {R(22)} offen sc0 sc1")
        k("s_mov_b64 exec, -1")
        if part == 1:
            k.lab('tk_p1')
            return
    else:
        k(f"s_cmp_lg_u32 s{S_WAVE}, 0")
        k(f"s_cbranch_scc1 {k.ref('tk_wait' + sfx)}")
    if nyoung is not None: k(f"s_waitcnt vmcnt({nyoung})")
    k("s_nop 0")
    k(f"v_readfirstlane_b32 {R(21)}, v{vb}")
    k(f"s_cmp_lt_u32 {R(21)}, 32")
    k(f"s_cbranch_scc1 {k.ref('tk_pub' + sfx)}")
    k(f"v_lshlrev_b32 v{va}, 8, v0")
    k(f"v_and_b32 v{va}, 0x7ff, v{va}")
    k(f"s_mov_b32 {R(22)}, {R(19)}")
    k.lab('tk_poll' + sfx)
    k(f"buffer_load_dword v{vb}, v{va}, {srd}, {R(22)} offen sc1")
    k("s_waitcnt vmcnt(0)")
    k(f"s_mov_b32 {R(23)}, 0")
    for x in range(8):
        k(f"v_readlane_b32 {R(24+x)}, v{vb}, {x}")
        k("s_nop 0")
        k(f"s_add_u32 {R(23)}, {R(23)}, {R(24+x)}")
    spin_check(k, k.ref('bail'))
    k(f"s_cmp_lt_u32 {R(23)}, 256")
    k(f"s_cbranch_scc1 {k.ref('tk_poll' + sfx)}")
    k(f"s_sub_u32 {R(21)}, {R(21)}, 32")
    for x in range(7):
        k(f"s_max_u32 {R(23)}, {R(24+x)}, 32")
        k(f"s_sub_u32 {R(23)}, {R(23)}, 32")
        k(f"s_cmp_gt_u32 {R(20)}, {x}")
        k(f"s_cselect_b32 {R(23)}, {R(23)}, 0")
        k(f"s_add_u32 {R(21)}, {R(21)}, {R(23)}")
    for x in range(8):
        k(f"s_min_u32 {R(23)}, {R(24+x)}, 32")
        k(f"s_sub_u32 {R(22)}, 32, {R(23)}")
        k(f"s_cmp_lt_u32 {R(21)}, {R(22)}")
        k(f"s_cbranch_scc0 {k.ref(f'tk_n{x}' + sfx)}")
        k(f"s_mov_b32 {R(20)}, {x}")
        k(f"s_add_u32 {R(21)}, {R(21)}, {R(23)}")
        k(f"s_branch {k.ref('tk_pub' + sfx)}")
        k.lab(f'tk_n{x}' + sfx)
        k(f"s_sub_u32 {R(21)}, {R(21)}, {R(22)}")
    k(f"s_branch {k.ref('bail')}")
    k.lab('tk_pub' + sfx)
    k(f"s_lshl_b32 {R(22)}, {R(20)}, 8")
    k(f"s_or_b32 {R(22)}, {R(22)}, {R(21)}")
    k(f"v_mov_b32 v{va}, {lds_off}")
    k(f"v_mov_b32 v{vb}, {R(22)}")
    k(f"ds_write_b32 v{va}, v{vb}")
    k("s_waitcnt lgkmcnt(0)")
    k.lab('tk_wait' + sfx)
    k("s_barrier")
    k(f"v_mov_b32 v{va}, {lds_off}")
    k(f"ds_read_b32 v{vb}, v{va}")
    k("s_waitcnt lgkmcnt(0)")
    k(f"v_readfirstlane_b32 {R(22)}, v{vb}")
    if part is None: k("s_barrier")
    k(f"s_lshr_b32 {R(20)}, {R(22)}, 8")
    k(f"s_and_b32 {R(21)}, {R(22)}, 255")

S_XCC = 98; S_TK = 99
def pf_setup(k, cfg, sfx='', tb=60):
    import aly, work
    TAB, B0, B1, D, V0, V1 = aly.PF_TAB, aly.PF_B0, aly.PF_B1, aly.PF_D, aly.PF_V0, aly.PF_V1
    L = lambda s: k.ref('pf_' + sfx + s)
    lab = lambda s: k.lab('pf_' + sfx + s)
    def table(idx):
        for q in range(8):
            k(f"s_mov_b32 s{TAB + q}, {sum(idx[4 * q + j] << (8 * j) for j in range(4)):#x}")
    k(f"v_lshlrev_b32 v{V0}, 4, v0")
    k(f"v_mov_b32 v{V1}, v{V0}")
    table(list(range(32)))
    k(f"s_mov_b32 s{D}, 2048")
    k(f"s_cmp_eq_u32 s{S_XCC}, 0")
    k(f"s_cbranch_scc1 {L('p')}")
    k(f"s_cmp_ge_u32 s{S_XCC}, 4")
    k(f"s_cbranch_scc1 {L('g')}")
    k(f"s_sub_u32 s{tb+0}, s{S_XCC}, 1")
    k(f"s_cmp_ge_u32 s{S_TK}, 27")
    k(f"s_cbranch_scc1 {L('sp')}")
    k(f"s_mul_i32 s{tb+1}, s{tb+0}, 27")
    k(f"s_add_u32 s{tb+1}, s{tb+1}, s{S_TK}")
    k(f"s_cmp_ge_u32 s{tb+1}, 80")
    k(f"s_cbranch_scc1 {L('no')}")
    k(f"s_mul_i32 s{tb+1}, s{tb+1}, 327680")
    k(f"s_mul_i32 s{tb+2}, s{S_WAVE}, 81920")
    k(f"s_add_u32 s{tb+1}, s{tb+1}, s{tb+2}")
    k(f"s_add_u32 s{B0}, s{tb+1}, {WY}")
    k(f"s_add_u32 s{B1}, s{B0}, 1024")
    k(f"s_branch {L('done')}")
    lab('sp')
    k(f"s_mul_i32 s{tb+1}, s{tb+0}, 5")
    k(f"s_add_u32 s{tb+1}, s{tb+1}, s{S_TK}")
    k(f"s_sub_u32 s{tb+1}, s{tb+1}, 27")
    k(f"s_cmp_lt_u32 s{tb+1}, 5")
    k(f"s_cbranch_scc0 {L('no')}")
    k(f"s_lshl_b32 s{tb+1}, s{tb+1}, 2")
    k(f"s_add_u32 s{tb+1}, s{tb+1}, s{S_WAVE}")
    k(f"s_mul_i32 s{tb+1}, s{tb+1}, 40960")
    k(f"s_add_u32 s{B0}, s{tb+1}, {PWO}")
    k(f"s_add_u32 s{B1}, s{B0}, 1024")
    k(f"s_branch {L('done')}")
    lab('no')
    k(f"s_mov_b32 s{B0}, {WY}")
    k(f"s_mov_b32 s{B1}, {WY}")
    k(f"s_mov_b32 s{D}, 0")
    k(f"s_branch {L('done')}")
    lab('p')
    k(f"s_mul_i32 s{tb+1}, s{S_TK}, 491520")
    k(f"s_mul_i32 s{tb+2}, s{S_WAVE}, 122880")
    k(f"s_add_u32 s{tb+1}, s{tb+1}, s{tb+2}")
    k(f"s_add_u32 s{B0}, s{tb+1}, {WP}")
    k(f"s_add_u32 s{B1}, s{B0}, 1024")
    for w in range(4):
        own, rest, seq, ldspos, where = p_plan(w, cfg)
        idx = [None] * 32
        for (T, ks), wh in where.items():
            if wh[0] == 'a': idx[wh[1] // 8] = T * 10 + ks
        if w < 3:
            k(f"s_cmp_lg_u32 s{S_WAVE}, {w}")
            k(f"s_cbranch_scc1 {L(f'pw{w}')}")
        table(idx)
        k(f"s_branch {L('done')}")
        if w < 3: lab(f'pw{w}')
    lab('g')
    k(f"s_sub_u32 s{tb+0}, s{S_XCC}, 4")
    k(f"s_lshl_b32 s{tb+0}, s{tb+0}, 5")
    k(f"s_add_u32 s{tb+0}, s{tb+0}, s{S_TK}")
    k(f"s_mov_b32 s{D}, 512")
    k("v_and_b32 v230, 31, v0")
    k("v_lshrrev_b32 v231, 5, v0")
    k(f"s_cmp_ge_u32 s{tb+0}, 80")
    k(f"s_cbranch_scc1 {L('qk')}")
    work.u_weight_addr(k, tb, 230, 231, 232, V0, B0, tb + 1)
    k(f"v_mov_b32 v{V1}, v{V0}")
    k(f"s_add_u32 s{B1}, s{B0}, 128")
    k(f"s_branch {L('done')}")
    lab('qk')
    work.qk_setup(k, tb, 230, 231, 232, V0, B0, tb + 1, None)
    lab('done')

def build_chain(name, layer, cfg=None):
    import work
    cfg = cfg or {}
    k = K(name if layer is not None else name + "1", vgpr=256, sgpr=100, agpr=256)
    stub = None
    if layer is None:
        stub = K(name + "2", vgpr=256, sgpr=100, agpr=256)
        stub(f"s_mov_b32 s{S_LAYER}, 1")
        stub(f"s_branch {k.ref('body')}")
        k(f"s_mov_b32 s{S_LAYER}, 0")
        k.lab('body')
    else:
        k(f"s_mov_b32 s{S_LAYER}, {layer}")
    k("s_cmp_ge_u32 s2, 256")
    k(f"s_cbranch_scc1 {k.ref('end0')}")
    if cfg.get('rt'): k("s_memrealtime s[90:91]")
    k.ptr(KA_WS, S_WS)
    k.ptr(KA_OUT, 6)
    k("v_lshrrev_b32 v1, 6, v0")
    k("v_and_b32 v0, 63, v0")
    k("s_nop 0")
    k(f"v_readfirstlane_b32 s{S_WAVE}, v1")
    k(f"s_mov_b32 s{S_SPIN}, {SPIN}")
    k("s_waitcnt lgkmcnt(0)")
    k.srd(SRD, S_WS, WS_BYTES)
    def osrd():
        k(f"s_add_u32 s22, s{S_WS}, {A_X2}")
        k(f"s_addc_u32 s23, s{S_WS+1}, 0")
        k(f"s_cmp_eq_u32 s{S_LAYER}, 0")
        k(f"s_cselect_b32 s{S_OSRD}, s22, s6")
        k(f"s_cselect_b32 s{S_OSRD+1}, s23, s7")
        k(f"s_mov_b32 s{S_OSRD+2}, {2048 * 640 * 2}")
        k(f"s_mov_b32 s{S_OSRD+3}, 0x00020000")
    if cfg.get('na') != 4: osrd()
    k(f"s_mul_i32 s{S_FL}, s{S_LAYER}, {FL_LAYER}")
    k(f"s_add_u32 s{S_FL}, s{S_FL}, {CT_FLAG}")
    SEMI = cfg.get('na') == 4
    if SEMI:
        import aly
        role_assign(k, cfg, 76 if cfg.get('hs') is not None else 60, 1, 230)
        HS = cfg.get('hs')
        if 'pfs' in cfg: assert cfg['pfs'][0] + sum(cfg['pfs'][1]) == cfg.get('npf', 64)
        def hook(sfx):
            role_assign(k, cfg, 76 if HS is not None else 60, 2, 230, aly.AF_LDS + 64, 24 if HS is None else None, sfx)
            k(f"s_mov_b32 s{S_XCC}, s{77 if HS is not None else 61}")
            k(f"s_mov_b32 s{S_TK}, s{78 if HS is not None else 62}")
            pf_setup(k, cfg, sfx, 76 if HS is not None else 60)
        rt_ = cfg.get('rt')
        aly.afront_body(k, 'rt', 2, False, "", (lambda n: k(f"s_memrealtime s[{60 + 2 * n}:{61 + 2 * n}]")) if rt_ else None, cfg.get('pfs', True), (hook, HS))
        if rt_:
            k("s_memrealtime s[74:75]")
            k("s_mov_b32 s60, s90")
            k("s_waitcnt lgkmcnt(0)")
            k("s_mov_b64 exec, 1")
            k("s_lshl_b32 s32, s2, 2")
            k(f"s_add_u32 s32, s32, s{S_WAVE}")
            k("s_lshl_b32 s32, s32, 5")
            k(f"s_mul_i32 s33, s{S_LAYER}, 0x200000")
            k("s_add_u32 s32, s32, s33")
            k(f"s_add_u32 s32, s32, {rt_ + 0x180000}")
            k("v_mov_b32 v253, 0")
            for n in range(8):
                k(f"v_mov_b32 v254, s{60 + 2 * n}")
                k(f"buffer_store_dword v254, v253, {srd}, s32 offen offset:{4*n}")
                k("s_nop 1")
            k("s_mov_b64 exec, -1")
        osrd()
        k(f"s_mov_b32 s20, s{S_XCC}")
        k(f"s_mov_b32 s21, s{S_TK}")
    else:
        role_assign(k, cfg)
    if cfg.get('rt'):
        k("s_lshl_b32 s92, s20, 8"); k("s_or_b32 s92, s92, s21")
    k(f"s_sub_u32 s22, 0, s{S_WS}")
    k("s_and_b32 s22, s22, 0x1fffff")
    k(f"s_lshl_b32 s23, s{S_LAYER}, 3")
    k(f"s_add_u32 s23, s23, {CT_PAR}")
    k(f"s_buffer_load_dwordx2 s[24:25], {srd}, s23")
    k("s_waitcnt lgkmcnt(0)")
    k("s_and_b32 s24, s24, 8192")
    k("s_and_b32 s25, s25, 8192")
    for f, p in ((S_FD0, 24), (S_FD1, 25)):
        k(f"s_lshl_b32 s{f}, s{p}, 1")
        k(f"s_sub_u32 s{f}, 8192, s{f}")
    k(f"s_mul_i32 s23, s{S_LAYER}, {2 * EX_BLOCK}")
    k("s_add_u32 s22, s22, s23")
    k(f"s_add_u32 s{S_EB0}, s22, s24")
    k(f"s_add_u32 s{S_EB1}, s22, s25")
    k(f"s_add_u32 s{S_EB1}, s{S_EB1}, {EX_BLOCK}")
    k(f"s_mov_b32 s{S_M8}, 0x01010101")
    k(f"s_mov_b32 s{S_M8+1}, 0x01010101")
    k(f"s_mov_b32 s{S_M2}, 0x00010001")
    k(f"s_mov_b32 s{S_M2+1}, 0")
    p_setup_lanes(k)
    ovl = cfg.get('ovl')
    NA2 = cfg.get('na') in (2, 3, 4)
    OW = cfg.get('na') == 3
    other = (k.ref('spare') if NA2 else k.ref('w3')) if ovl else k.ref('end')
    if cfg.get('spread', 0):
        k("s_cmp_ge_u32 s20, 4")
        k(f"s_cbranch_scc1 {k.ref('proj') if ovl else k.ref('end')}")
        k("s_cmp_ge_u32 s21, 28")
        k(f"s_cbranch_scc1 {other}")
        k("s_cmp_ge_u32 s21, 8")
        k(f"s_cbranch_scc1 {k.ref('notp')}")
        k("s_lshl_b32 s22, s20, 3")
        k(f"s_add_u32 s{S_ROLE}, s22, s21")
        for w in range(4):
            k(f"s_cmp_eq_u32 s{S_WAVE}, {w}")
            k(f"s_cbranch_scc1 {k.ref(f'p{w}_start')}")
        k.lab('notp')
        k("s_mul_i32 s22, s20, 20")
        k("s_add_u32 s22, s22, s21")
        k(f"s_sub_u32 s{S_ROLE}, s22, 8")
    else:
        k("s_cmp_eq_u32 s20, 0")
        k(f"s_cbranch_scc0 {k.ref('notp')}")
        k(f"s_mov_b32 s{S_ROLE}, s21")
        for w in range(4):
            k(f"s_cmp_eq_u32 s{S_WAVE}, {w}")
            k(f"s_cbranch_scc1 {k.ref(f'p{w}_start')}")
        k.lab('notp')
        k("s_cmp_ge_u32 s20, 4")
        k(f"s_cbranch_scc1 {k.ref('proj') if ovl else k.ref('end')}")
        k("s_cmp_ge_u32 s21, 27")
        k(f"s_cbranch_scc1 {other}")
        k("s_sub_u32 s22, s20, 1")
        k("s_mul_i32 s22, s22, 27")
        k(f"s_add_u32 s{S_ROLE}, s22, s21")
        k(f"s_cmp_ge_u32 s{S_ROLE}, 80")
        k(f"s_cbranch_scc1 {other}")
    for w in range(4):
        k(f"s_cmp_eq_u32 s{S_WAVE}, {w}")
        k(f"s_cbranch_scc1 {k.ref(f'y{w}_start')}")
    k(f"s_branch {k.ref('end')}")
    for w in range(4): (gen_p_wave2 if cfg.get('p2') else gen_p_wave)(k, w, cfg)
    for w in range(4): gen_y_wave(k, w, cfg)
    if ovl:
        k.lab('proj')
        k("s_sub_u32 s22, s20, 4")
        k("s_lshl_b32 s22, s22, 5")
        k(f"s_add_u32 s{S_ROLE}, s22, s21")
        k(f"s_mov_b32 s{work.GS_SEG}, 0")
        k(f"s_mov_b32 s{work.GS_END}, 64")
        work.role_gemm(k, S_ROLE, dict(cfg, flag_s=S_FL))
        if cfg.get('rt'):
            k("s_memrealtime s[96:97]"); k("s_waitcnt lgkmcnt(0)"); k("s_mov_b32 s93, s96")
        if cfg.get('w3_join', 128) < 128:
            k(f"s_cmp_ge_u32 s{S_ROLE}, {cfg['w3_join']}")
            k(f"s_cbranch_scc1 {k.ref('end')}")
        if NA2:
            import aly
            k(f"s_branch {k.ref('w3')}")
            k.lab('spare')
            if cfg.get('spread', 0):
                k("s_lshl_b32 s22, s20, 2")
                k("s_add_u32 s22, s22, s21")
                k("s_sub_u32 s22, s22, 28")
            else:
                k("s_sub_u32 s22, s20, 1")
                k("s_mul_i32 s22, s22, 5")
                k("s_add_u32 s22, s22, s21")
                k("s_sub_u32 s22, s22, 27")
                k("s_cmp_ge_u32 s21, 27")
                k("s_cselect_b32 s22, s22, 15")
            k("s_cmp_lt_u32 s22, 5")
            k(f"s_cbranch_scc1 {k.ref('sp_ab')}")
            k("s_cmp_lt_u32 s22, 9")
            k(f"s_cbranch_scc1 {k.ref('sp_ln')}")
            if OW:
                k("s_cmp_eq_u32 s22, 10")
                k(f"s_cbranch_scc1 {k.ref('sp_ow')}")
                k("s_cmp_eq_u32 s22, 11")
                k(f"s_cbranch_scc1 {k.ref('sp_ow')}")
            k("s_cmp_eq_u32 s22, 9")
            k(f"s_cbranch_scc0 {k.ref('w3')}")
            aly.role_mem0(k, S_EB0, S_FD0 if cfg.get('ycopy') else None)
            k(f"s_branch {k.ref('w3')}")
            if OW:
                k.lab('sp_ow')
                k(f"s_sub_u32 s{S_ROLE}, s22, 10")
                aly.role_ow(k, S_ROLE, S_LAYER, S_FL, S_SPIN, k.ref('bail'), cfg)
                k(f"s_branch {k.ref('w3')}")
            k.lab('sp_ab')
            k(f"s_mov_b32 s{S_ROLE}, s22")
            k(f"s_mov_b32 s{aly.AB_SEG}, 0")
            k(f"s_mov_b32 s{aly.AB_END}, 64")
            aly.role_aback(k, S_ROLE, S_LAYER, S_FL, True, cfg, (30, k.ref('bail')) if (OW or SEMI) else None, SEMI)
            k(f"s_branch {k.ref('w3')}")
            k.lab('sp_ln')
            k(f"s_sub_u32 s{S_ROLE}, s22, 5")
            aly.role_lnw(k, S_ROLE, 4, S_FL, S_SPIN, k.ref('bail'), True, cfg)
            k("s_waitcnt vmcnt(0)")
            k("s_barrier")
        k.lab('w3')
        k(f"s_mov_b32 s{S_SPIN}, {SPIN}")
        work.role_w3_loop(k, cfg, S_FL, S_SPIN, f"s[{S_OSRD}:{S_OSRD+3}]", S_LAYER)
        k(f"s_branch {k.ref('end')}")
    k.lab('bail')
    k("s_mov_b64 exec, 1")
    k.ptr(KA_DBG, 6)
    k("s_waitcnt lgkmcnt(0)")
    k.srd(24, 6, 256)
    k("v_mov_b32 v1, 0xdead")
    k(f"v_mov_b32 v2, s{S_STEP}")
    k("v_mov_b32 v3, 0")
    k("buffer_store_dword v1, v3, s[24:27], 0 offen")
    k("buffer_store_dword v2, v3, s[24:27], 0 offen offset:4")
    k.lab('end')
    if cfg.get('rt'):
        k("s_memrealtime s[94:95]")
        k("s_waitcnt lgkmcnt(0)")
        k("s_mov_b64 exec, 1")
        k("s_lshl_b32 s32, s2, 2")
        k(f"s_add_u32 s32, s32, s{S_WAVE}")
        k("s_lshl_b32 s32, s32, 4")
        k(f"s_mul_i32 s33, s{S_LAYER}, 0x200000")
        k("s_add_u32 s32, s32, s33")
        k(f"s_add_u32 s32, s32, {cfg['rt'] + 0x100000}")
        k("v_mov_b32 v253, 0")
        for n, sr in enumerate((90, 94, 92, 93)):
            k(f"v_mov_b32 v254, s{sr}")
            k(f"buffer_store_dword v254, v253, {srd}, s32 offen offset:{4*n}")
            k("s_nop 1")
        k("s_lshl_b32 s32, s2, 2")
        k(f"s_add_u32 s32, s32, s{S_WAVE}")
        k("s_lshl_b32 s32, s32, 5")
        k("s_add_u32 s32, s32, s33")
        k(f"s_add_u32 s32, s32, {cfg['rt'] + 0x140000}")
        for n in range(8):
            k(f"v_mov_b32 v254, s{60 + 2 * n}")
            k(f"buffer_store_dword v254, v253, {srd}, s32 offen offset:{4*n}")
            k("s_nop 1")
    k.lab('end0')
    if stub is not None: return k, stub
    return k

if __name__ == "__main__":
    STP = 240 * MB
    extra = eval(sys.argv[1]) if len(sys.argv) > 1 else {}
    ks = [build_chain("chain", 0, dict(extra)),
          build_chain("chainst", 0, dict(extra, stamp=True, stamp_p=STP, stamp_y=STP + 65536)),
          build_chain("chainrt", 0, dict(extra, rt=STP + MB, rt2=1))]
    launches = [(k_, 256, 256, PL_END) for k_ in ks]
    open(sys.argv[2] if len(sys.argv) > 2 else "chain.s", "w").write(listfile(launches, ks))
    print("lds", PL_END)
```

```python
import sys, math
sys.path.insert(0, "/code"); sys.path.insert(0, "tools")
from asmk import *
from lay import *

CSC = (192 ** -0.5) * math.log2(math.e)
S_WS = 4; SRD = 8; S_WAVE = 13
P2 = False
srd = f"s[{SRD}:{SRD+3}]"
def vr(b, n): return f"v[{b}:{b+n-1}]" if n > 1 else f"v{b}"
def ar(b, n): return f"a[{b}:{b+n-1}]"

def prologue(k, extra_ptrs=()):
    k.ptr(KA_WS, S_WS)
    for slot, s in extra_ptrs: k.ptr(slot, s)
    k("v_lshrrev_b32 v1, 6, v0")
    k("v_and_b32 v0, 63, v0")
    k("s_nop 0")
    k(f"v_readfirstlane_b32 s{S_WAVE}, v1")
    k("s_waitcnt lgkmcnt(0)")
    k.srd(SRD, S_WS, WS_BYTES)

def ex_delta(k, dst):
    k(f"s_sub_u32 s{dst}, 0, s{S_WS}")
    k(f"s_and_b32 s{dst}, s{dst}, 0x1fffff")

def p2e_lane(k, dst, p, t0, t1):
    k(f"v_and_b32 v{dst}, 0xc1, v{p}")
    k(f"v_and_b32 v{t0}, 8, v{p}")
    k(f"v_lshl_or_b32 v{dst}, v{t0}, 2, v{dst}")
    k(f"v_and_b32 v{t0}, 32, v{p}")
    k(f"v_lshrrev_b32 v{t0}, 1, v{t0}")
    k(f"v_or_b32 v{dst}, v{dst}, v{t0}")
    k(f"v_and_b32 v{t0}, 2, v{p}")
    k(f"v_lshl_or_b32 v{dst}, v{t0}, 2, v{dst}")
    k(f"v_and_b32 v{t0}, 16, v{p}")
    k(f"v_lshrrev_b32 v{t0}, 2, v{t0}")
    k(f"v_or_b32 v{dst}, v{dst}, v{t0}")
    k(f"v_and_b32 v{t0}, 4, v{p}")
    k(f"v_lshrrev_b32 v{t0}, 1, v{t0}")
    k(f"v_or_b32 v{dst}, v{dst}, v{t0}")

def wp_block_off(k, dst, x, isk, t0, t1):
    k(f"v_lshrrev_b32 v{t0}, 4, v{x}")
    if P2:
        k(f"v_and_b32 v{t1}, 3, v{t0}")
        k(f"v_mul_u32_u24 v{t1}, 6, v{t1}")
        k(f"v_lshrrev_b32 v{t0}, 2, v{t0}")
        k(f"v_add_u32 v{t0}, v{t0}, v{t1}")
    else:
        k(f"v_mul_u32_u24 v{t1}, 11, v{t0}")
        k(f"v_lshrrev_b32 v{t1}, 5, v{t1}")
        k(f"v_mul_u32_u24 v{t1}, 3, v{t1}")
        k(f"v_add_u32 v{t0}, v{t0}, v{t1}")
    if isk: k(f"v_add_u32 v{t0}, 3, v{t0}")
    k(f"v_mul_u32_u24 v{t0}, 20480, v{t0}")
    k(f"v_and_b32 v{t1}, 15, v{x}")
    k(f"v_lshl_add_u32 v{dst}, v{t1}, 4, v{t0}")

CH_ROW = [0, 1, 8, 9, 2, 3, 10, 11]

def chunk_base_lane(k, dst, c, t0):
    k(f"v_lshrrev_b32 v{dst}, 2, v{c}")
    k(f"v_lshlrev_b32 v{dst}, 5, v{dst}")
    k(f"v_and_b32 v{t0}, 2, v{c}")
    k(f"v_lshl_add_u32 v{dst}, v{t0}, 3, v{dst}")
    k(f"v_and_b32 v{t0}, 1, v{c}")
    k(f"v_lshl_add_u32 v{dst}, v{t0}, 2, v{dst}")

N_WVO = 160
N_PWP = 240
N_CLR = 64
N_CTL = 5
PREP_WG = N_WVO + N_PWP + N_CLR + N_CTL

def role_wvo(k):
    L = lambda s: k.ref('wvo_' + s)
    k.ptr(KA_WV, 24); k.ptr(KA_WO, 26)
    k("s_and_b32 s21, s20, 1")
    k("s_lshr_b32 s22, s20, 1")
    k("s_mul_i32 s23, s22, 205")
    k("s_lshr_b32 s23, s23, 11")
    k("s_mul_i32 s28, s23, 10")
    k("s_sub_u32 s22, s22, s28")
    k("s_waitcnt lgkmcnt(0)")
    k.srd(32, 24, 640 * 6144 * 2)
    k.srd(36, 26, 6144 * 640 * 2)
    VI, VH = 1, 2
    k(f"v_and_b32 v{VI}, 31, v0")
    k(f"v_lshrrev_b32 v{VH}, 5, v0")
    BE, BO, TMP = 16, 64, 112
    k(f"v_mul_u32_u24 v3, {8 * 1280}, v{VH}")
    k(f"v_lshl_add_u32 v3, v{VI}, 2, v3")
    k(f"s_mul_i32 s28, s23, {192*1280}")
    k("s_lshl_b32 s29, s22, 7")
    k("s_add_u32 s28, s28, s29")
    for half in range(2):
        for kk in range(6):
            kap = half * 6 + kk
            for j in range(8):
                row = 16 * kap + j
                k(f"s_add_u32 s29, s28, {row * 1280}")
                k(f"buffer_load_dword v{TMP + 8 * kk + j}, v3, s[36:39], s29 offen")
        k("v_mov_b32 v4, 0x05040100")
        k("v_mov_b32 v5, 0x07060302")
        k("s_waitcnt vmcnt(0)")
        for kk in range(6):
            kap = half * 6 + kk
            for m in range(4):
                k(f"v_perm_b32 v{BE + 4 * kap + m}, v{TMP + 8 * kk + 2 * m + 1}, v{TMP + 8 * kk + 2 * m}, v4")
                k(f"v_perm_b32 v{BO + 4 * kap + m}, v{TMP + 8 * kk + 2 * m + 1}, v{TMP + 8 * kk + 2 * m}, v5")
    k(f"v_lshrrev_b32 v6, 3, v{VI}")
    chunk_base_lane(k, 7, 6, 8)
    k(f"v_and_b32 v8, 7, v{VI}")
    k("v_and_b32 v9, 1, v8")
    k("v_add_u32 v7, v7, v9")
    k("v_and_b32 v9, 2, v8")
    k("v_lshl_add_u32 v7, v9, 2, v7")
    k("v_lshrrev_b32 v9, 2, v8")
    k("v_lshl_add_u32 v7, v9, 1, v7")
    k("v_mul_u32_u24 v7, 12288, v7")
    k(f"v_lshl_add_u32 v7, v{VH}, 4, v7")
    k("s_mul_i32 s28, s23, 384")
    k(f"s_mul_i32 s29, s21, {10 * 32 * 12288}")
    k("s_add_u32 s28, s28, s29")
    k(f"v_lshrrev_b32 v10, 2, v{VI}")
    k("v_mul_u32_u24 v10, 20480, v10")
    k("v_lshlrev_b32 v10, 4, v10")
    k(f"v_and_b32 v11, 3, v{VI}")
    k("v_lshl_add_u32 v10, v11, 5, v10")
    k(f"v_lshl_add_u32 v10, v{VH}, 8, v10")
    k(f"s_mul_i32 s30, s22, {8 * 327680}")
    k("s_lshr_b32 s31, s23, 3")
    k("s_mul_i32 s31, s31, 81920")
    k("s_add_u32 s30, s30, s31")
    k("s_and_b32 s31, s23, 3")
    k("s_mul_i32 s31, s31, 20480")
    k("s_add_u32 s30, s30, s31")
    k("s_bfe_u32 s31, s23, 0x10002")
    k("s_lshl_b32 s31, s31, 7")
    k("s_add_u32 s30, s30, s31")
    k(f"s_mul_i32 s31, s21, 10240")
    k("s_add_u32 s30, s30, s31")
    k(f"s_add_u32 s30, s30, {WY}")
    AF0, AF1, ACC, OUT = 112, 160, 208, 240
    def aload(dst):
        for kap in range(12):
            k(f"buffer_load_dwordx4 {vr(dst + 4 * kap, 4)}, v7, s[32:35], s28 offen offset:{kap * 32}")
        k(f"s_add_u32 s28, s28, {32 * 12288}")
    def tile(src):
        for kap in range(12):
            for t, B in ((0, BE), (1, BO)):
                c = "0" if kap == 0 else vr(ACC + 16 * t, 16)
                k(f"v_mfma_f32_32x32x16_bf16 {vr(ACC + 16 * t, 16)}, {vr(src + 4 * kap, 4)}, {vr(B + 4 * kap, 4)}, {c}")
        k("s_nop 7"); k("s_nop 7")
        for t in range(2):
            a = ACC + 16 * t
            for j in range(2):
                o = OUT + 4 * j
                for q in range(2):
                    k(f"v_cvt_pk_bf16_f32 v{o + 2 * q}, v{a + 8 * j + 4 * q}, v{a + 8 * j + 4 * q + 1}")
                    k(f"v_cvt_pk_bf16_f32 v{o + 2 * q + 1}, v{a + 8 * j + 4 * q + 2}, v{a + 8 * j + 4 * q + 3}")
                k("s_nop 1")
                k(f"v_permlane32_swap_b32 v{o}, v{o + 2}")
                k(f"v_permlane32_swap_b32 v{o + 1}, v{o + 3}")
                k(f"buffer_store_dwordx4 {vr(o, 4)}, v10, {srd}, s30 offen offset:{j * 512 + t * 16}")
            k("s_nop 1")
        k("s_add_u32 s30, s30, 1024")
    aload(AF0)
    k("s_mov_b32 s31, 5")
    k.lab('wvo_loop')
    aload(AF1)
    k("s_waitcnt vmcnt(12)")
    tile(AF0)
    k("s_cmp_eq_u32 s31, 1")
    k(f"s_cbranch_scc1 {L('last')}")
    aload(AF0)
    k("s_waitcnt vmcnt(12)")
    tile(AF1)
    k("s_sub_u32 s31, s31, 1")
    k(f"s_branch {L('loop')}")
    k.lab('wvo_last')
    k("s_waitcnt vmcnt(0)")
    tile(AF1)
    k(f"s_branch {k.ref('end')}")

class VQ:
    def __init__(self, k): self.k = k; self.q = []
    def op(self, ins, tag=None):
        self.k(ins); self.q.append(tag)
    def wait(self, tag):
        idx = [i for i, t in enumerate(self.q) if t == tag]
        if not idx: return
        n = len(self.q) - 1 - idx[-1]
        assert n <= 63
        self.k(f"s_waitcnt vmcnt({n})"); self.q = self.q[idx[-1] + 1:]

WVO_NS = 1
WVO_NB = 3
WVO_BUF = 192 * 128
WVO_LDS = WVO_NB * WVO_BUF
def role_wvo2(k, ns):
    nsl = 10 // ns
    k.ptr(KA_WV, 24); k.ptr(KA_WO, 26)
    per = 5 * ns
    k(f"s_mul_i32 s23, s20, {(65536 + per - 1) // per}")
    k("s_lshr_b32 s23, s23, 16")
    k(f"s_mul_i32 s28, s23, {per}")
    k("s_sub_u32 s22, s20, s28")
    if ns == 2:
        k("s_and_b32 s21, s22, 1"); k("s_lshr_b32 s22, s22, 1")
    else:
        k("s_mov_b32 s21, 0")
    k("s_waitcnt lgkmcnt(0)")
    k.srd(32, 24, 640 * 6144 * 2)
    k.srd(36, 26, 6144 * 640 * 2)
    VI, VH, VD, VR0, VR1, VA, VS = 1, 2, 3, 4, 5, 7, 10
    k(f"v_and_b32 v{VI}, 31, v0")
    k(f"v_lshrrev_b32 v{VH}, 5, v0")
    k("v_lshrrev_b32 v11, 3, v0")
    k(f"v_mul_u32_u24 v{VD}, 1280, v11")
    k("v_bfe_u32 v12, v0, 4, 1")
    k("v_lshlrev_b32 v12, 2, v12")
    k("v_and_b32 v13, 7, v0")
    k("v_xor_b32 v13, v13, v12")
    k(f"v_lshl_add_u32 v{VD}, v13, 4, v{VD}")
    k("s_mul_i32 s28, s23, 192")
    k(f"s_mul_i32 s29, s{S_WAVE}, 48")
    k("s_add_u32 s28, s28, s29")
    k("s_mul_i32 s28, s28, 1280")
    k(f"s_mul_i32 s29, s21, {nsl * 128}")
    k("s_add_u32 s28, s28, s29")
    k(f"s_mul_i32 s29, s{S_WAVE}, 6144")
    k("v_bfe_u32 v11, v0, 2, 2")
    k(f"v_lshl_add_u32 v12, v{VH}, 3, v11")
    k("v_lshlrev_b32 v12, 7, v12")
    k("v_bfe_u32 v13, v0, 4, 1")
    k("v_lshlrev_b32 v13, 1, v13")
    k("v_bfe_u32 v14, v0, 1, 1")
    k("v_add_u32 v13, v13, v14")
    k("v_lshl_add_u32 v12, v13, 4, v12")
    k("v_and_b32 v13, 1, v0")
    k("v_lshl_add_u32 v12, v13, 3, v12")
    k("v_bfe_u32 v13, v0, 3, 1")
    k(f"v_lshl_add_u32 v{VR0}, v13, 6, v12")
    k("v_xor_b32 v13, 1, v13")
    k(f"v_lshl_add_u32 v{VR1}, v13, 6, v12")
    k(f"v_lshrrev_b32 v6, 3, v{VI}")
    chunk_base_lane(k, VA, 6, 8)
    k(f"v_and_b32 v8, 7, v{VI}")
    k("v_and_b32 v9, 1, v8")
    k(f"v_add_u32 v{VA}, v{VA}, v9")
    k("v_and_b32 v9, 2, v8")
    k(f"v_lshl_add_u32 v{VA}, v9, 2, v{VA}")
    k("v_lshrrev_b32 v9, 2, v8")
    k(f"v_lshl_add_u32 v{VA}, v9, 1, v{VA}")
    k(f"v_mul_u32_u24 v{VA}, 12288, v{VA}")
    k(f"v_lshl_add_u32 v{VA}, v{VH}, 4, v{VA}")
    k("s_lshl_b32 s30, s22, 2")
    k(f"s_add_u32 s30, s30, s{S_WAVE}")
    k(f"s_mul_i32 s31, s30, {32 * 12288}")
    k("s_mul_i32 s40, s23, 384")
    k("s_add_u32 s31, s31, s40")
    k(f"v_lshrrev_b32 v{VS}, 3, v{VI}")
    k(f"v_mul_u32_u24 v{VS}, 20480, v{VS}")
    k(f"v_lshlrev_b32 v{VS}, 4, v{VS}")
    k(f"v_and_b32 v11, 7, v{VI}")
    k(f"v_lshl_add_u32 v{VS}, v11, 4, v{VS}")
    k(f"v_lshl_add_u32 v{VS}, v{VH}, 8, v{VS}")
    k(f"s_mul_i32 s41, s21, {nsl * 8 * 327680}")
    k("s_lshr_b32 s40, s23, 3")
    k("s_mul_i32 s40, s40, 81920")
    k("s_add_u32 s41, s41, s40")
    k("s_and_b32 s40, s23, 3")
    k("s_mul_i32 s40, s40, 20480")
    k("s_add_u32 s41, s41, s40")
    k("s_bfe_u32 s40, s23, 0x10002")
    k("s_lshl_b32 s40, s40, 7")
    k("s_add_u32 s41, s41, s40")
    k("s_lshl_b32 s40, s30, 10")
    k("s_add_u32 s41, s41, s40")
    k(f"s_add_u32 s41, s41, {WY}")
    AF, BF, ACC, OUT = 16, 64, 160, 192
    vq = VQ(k)
    def dma(s):
        for i in range(6):
            k(f"s_add_u32 s42, s29, {(s % WVO_NB) * WVO_BUF + i * 1024}")
            k("s_mov_b32 m0, s42")
            k(f"s_add_u32 s43, s28, {s * 128 + i * 8 * 1280}")
            vq.op(f"buffer_load_dwordx4 v{VD}, s[36:39], s43 offen lds", ('d', s))
    for kap in range(12):
        vq.op(f"buffer_load_dwordx4 {vr(AF + 4 * kap, 4)}, v{VA}, s[32:35], s31 offen offset:{kap * 32}", 'a')
    for s in range(min(WVO_NB, nsl)): dma(s)
    RA = 200
    for b_ in range(WVO_NB):
        k(f"v_add_u32 v{RA + 2 * b_}, {b_ * WVO_BUF}, v{VR0}")
        k(f"v_add_u32 v{RA + 2 * b_ + 1}, {b_ * WVO_BUF}, v{VR1}")
    def rd(s, t, kap):
        b = BF + 48 * t
        for j in range(2):
            k(f"ds_read_b64_tr_b16 {vr(b + 4 * kap + 2 * j, 2)}, v{RA + 2 * (s % WVO_NB) + t} offset:{kap * 2048 + j * 512}")
    def epi(t, s):
        a = ACC + 16 * t; it = []
        it.append(f"s_add_u32 s42, s41, {(8 * s + 4 * t) * 327680}")
        for j in range(2):
            o = OUT + 4 * j
            for q in range(2):
                it.append(f"v_cvt_pk_bf16_f32 v{o + 2 * q}, v{a + 8 * j + 4 * q}, v{a + 8 * j + 4 * q + 1}")
                it.append(f"v_cvt_pk_bf16_f32 v{o + 2 * q + 1}, v{a + 8 * j + 4 * q + 2}, v{a + 8 * j + 4 * q + 3}")
            it.append("s_nop 1")
            it.append(f"v_permlane32_swap_b32 v{o}, v{o + 2}")
            it.append(f"v_permlane32_swap_b32 v{o + 1}, v{o + 3}")
            it.append(('st', f"buffer_store_dwordx4 {vr(o, 4)}, v{VS}, {srd}, s42 offen offset:{j * 512}"))
        return it
    vq.wait(('d', 0))
    k("s_barrier")
    for kap in range(12): rd(0, 0, kap) if kap < 6 else None
    k("s_waitcnt lgkmcnt(0)")
    for kap in range(6, 12): rd(0, 0, kap)
    prev = None
    for s in range(nsl):
        for t in range(2):
            k("s_waitcnt lgkmcnt(0)")
            nxt = (s, 1) if t == 0 else ((s + 1, 0) if s + 1 < nsl else None)
            if t == 1:
                if s + 1 < nsl: vq.wait(('d', s + 1))
                k("s_barrier")
                if s + WVO_NB < nsl: dma(s + WVO_NB)
            side = epi(*prev) if prev else []
            for kap in range(12):
                d = vr(ACC + 16 * t, 16)
                k(f"v_mfma_f32_32x32x16_bf16 {d}, {vr(AF + 4 * kap, 4)}, {vr(BF + 48 * t + 4 * kap, 4)}, {'0' if kap == 0 else d}")
                if nxt: rd(nxt[0], nxt[1], kap)
                if kap >= 2:
                    for _ in range(3):
                        if side:
                            x = side.pop(0)
                            if isinstance(x, tuple): vq.op(x[1], 'st')
                            else: k(x)
            assert not side
            prev = (t, s)
    k("s_nop 7"); k("s_nop 7"); k("s_nop 7")
    for x in epi(*prev):
        if isinstance(x, tuple): vq.op(x[1], 'st')
        else: k(x)
    k(f"s_branch {k.ref('end')}")

def role_pwp(k):
    L = lambda s: k.ref('pwp_' + s)
    k("s_mul_i32 s21, s20, 13108"); k("s_lshr_b32 s21, s21, 16")
    k("s_mul_i32 s22, s21, 5"); k("s_sub_u32 s22, s20, s22")
    k("s_mul_i32 s23, s21, 21846"); k("s_lshr_b32 s23, s23, 16")
    k("s_mul_i32 s28, s23, 3"); k("s_sub_u32 s21, s21, s28")
    k("s_lshr_b32 s29, s23, 5")
    k("s_and_b32 s23, s23, 31")
    k("s_cmp_eq_u32 s29, 0")
    k(f"s_cbranch_scc0 {L('k')}")
    k.ptr(KA_WQ, 24)
    k(f"s_branch {L('go')}")
    k.lab('pwp_k')
    k.ptr(KA_WK, 24)
    k.lab('pwp_go')
    k("v_and_b32 v1, 31, v0")
    k("v_lshrrev_b32 v2, 5, v0")
    k("s_lshl_b32 s28, s21, 6")
    k("v_lshlrev_b32 v3, 1, v1")
    k("v_add_u32 v3, s28, v3")
    p2e_lane(k, 4, 3, 5, 6)
    k("s_cmp_eq_u32 s29, 0")
    k("s_cselect_b64 vcc, -1, 0")
    k("s_nop 1")
    k("v_cndmask_b32 v4, v4, v3, vcc")
    wp_block_off(k, 7, 3, 0, 5, 6)
    k(f"s_mul_i32 s30, s29, {3*20480}")
    k("s_mul_i32 s31, s23, 491520")
    k("s_add_u32 s30, s30, s31")
    k(f"s_add_u32 s30, s30, {WP}")
    k("s_lshl_b32 s31, s22, 4")
    k("v_add_u32 v8, s31, v2")
    k("s_waitcnt lgkmcnt(0)")
    k.srd(32, 24, 640 * 6144 * 2)
    k("s_mul_i32 s28, s23, 384")
    RAW, OUT = 16, 80
    for it in range(8):
        k(f"v_add_u32 v9, {2 * it}, v8")
        chunk_base_lane(k, 10, 9, 11)
        k("v_mul_u32_u24 v10, 12288, v10")
        k("v_lshl_add_u32 v10, v4, 1, v10")
        for j in range(8):
            k(f"s_add_u32 s31, s28, {CH_ROW[j] * 12288}")
            k(f"buffer_load_dword v{RAW + 8 * it + j}, v10, s[32:35], s31 offen")
    k("v_lshl_add_u32 v7, v8, 8, v7")
    k("v_mov_b32 v4, 0x05040100")
    k("v_mov_b32 v5, 0x07060302")
    for it in range(8):
        k(f"s_waitcnt vmcnt({8 * (7 - it)})")
        o = OUT + 8 * (it & 1)
        for m in range(4):
            k(f"v_perm_b32 v{o + m}, v{RAW + 8 * it + 2 * m + 1}, v{RAW + 8 * it + 2 * m}, v4")
            k(f"v_perm_b32 v{o + 4 + m}, v{RAW + 8 * it + 2 * m + 1}, v{RAW + 8 * it + 2 * m}, v5")
        k(f"buffer_store_dwordx4 {vr(o, 4)}, v7, {srd}, s30 offen offset:{it * 512}")
        k(f"buffer_store_dwordx4 {vr(o + 4, 4)}, v7, {srd}, s30 offen offset:{it * 512 + 16}")
        if it >= 1: k("s_nop 0")
    k(f"s_branch {k.ref('end')}")

def role_clear(k):
    ex_delta(k, 21)
    per = 4 * EX_BLOCK // N_CLR
    k(f"s_mul_i32 s22, s20, {per}")
    k("s_add_u32 s21, s21, s22")
    k(f"s_lshl_b32 s22, s{S_WAVE}, 10")
    k("s_add_u32 s21, s21, s22")
    k("v_lshlrev_b32 v1, 4, v0")
    for r in range(4, 8): k(f"v_mov_b32 v{r}, -1")
    k(f"s_mov_b32 s22, {per // 4096}")
    k.lab('clr_loop')
    k(f"buffer_store_dwordx4 v[4:7], v1, {srd}, s21 offen")
    k("s_add_u32 s21, s21, 4096")
    k("s_sub_u32 s22, s22, 1")
    k("s_cmp_lg_u32 s22, 0")
    k(f"s_cbranch_scc1 {k.ref('clr_loop')}")
    k(f"s_branch {k.ref('end')}")

CAL_N = 15
import os
CAL_DUMP = int(os.environ.get('CAL_DUMP', '0'))
if CAL_DUMP: CAL_N = 30
def role_zero(k):
    k("v_lshlrev_b32 v1, 4, v0")
    for r in range(4, 8): k(f"v_mov_b32 v{r}, 0")
    k(f"s_lshl_b32 s21, s{S_WAVE}, 10")
    k(f"s_add_u32 s21, s21, {CT_TICK}")
    k(f"buffer_store_dwordx4 v[4:7], v1, {srd}, s21 offen")
    k(f"s_lshl_b32 s21, s{S_WAVE}, 15")
    k(f"s_add_u32 s21, s21, {CT_FLAG}")
    assert 4 * 32768 == 2 * FL_LAYER
    for i in range(32):
        k(f"buffer_store_dwordx4 v[4:7], v1, {srd}, s21 offen offset:{(i % 4) * 1024}")
        if i % 4 == 3: k("s_add_u32 s21, s21, 4096")
    k(f"s_lshl_b32 s21, s{S_WAVE}, 15")
    k(f"s_add_u32 s21, s21, {KVT}")
    assert 4 * 32768 == 2 * KVT_L
    for i in range(32):
        k(f"buffer_store_dwordx4 v[4:7], v1, {srd}, s21 offen offset:{(i % 4) * 1024}")
        if i % 4 == 3: k("s_add_u32 s21, s21, 4096")
    k(f"s_branch {k.ref('end')}")

def role_cal(k, CAL_N=CAL_N):
    k(f"s_cmp_lg_u32 s{S_WAVE}, 0")
    k(f"s_cbranch_scc1 {k.ref('end')}")
    ex_delta(k, 22)
    k("s_getreg_b32 s23, hwreg(HW_REG_XCC_ID)")
    k("s_bfe_u32 s23, s23, 0x10002")
    k("s_mov_b64 exec, 1")
    k("v_mov_b32 v1, 0")
    cal = physmap(CAL_LOG)
    k(f"s_mul_i32 s24, s20, {EX_BLOCK}")
    k("s_add_u32 s22, s22, s24")
    k(f"s_add_u32 s22, s22, {31 * EX_STEP + cal}")
    k("s_mov_b32 s30, -1")
    k("s_mov_b32 s31, -1")
    k(f"s_mov_b32 s25, {CAL_N}")
    k("v_mov_b32 v2, 0")
    k.lab('cal')
    for p in range(2):
        k("s_and_b32 s24, s25, 15")
        k("s_lshl_b32 s24, s24, 7")
        k("s_add_u32 s24, s24, s22")
        if p: k(f"s_add_u32 s24, s24, {p * 8192}")
        k("s_memtime s[26:27]")
        k("s_waitcnt lgkmcnt(0)")
        k(f"buffer_atomic_add v2, v1, {srd}, s24 offen sc0 sc1")
        k("s_waitcnt vmcnt(0)")
        k("s_memtime s[28:29]")
        k("v_mov_b32 v2, 0")
        k("s_waitcnt lgkmcnt(0)")
        k("s_sub_u32 s26, s28, s26")
        k(f"s_min_u32 s{30 + p}, s{30 + p}, s26")
        if CAL_DUMP:
            k("s_lshl_b32 s27, s20, 8")
            k("s_lshl_b32 s28, s25, 3")
            k("s_add_u32 s27, s27, s28")
            k(f"s_add_u32 s27, s27, {CT_PAR + 0x1000 + 4 * p}")
            k("v_mov_b32 v3, s26")
            k(f"buffer_store_dword v3, v1, {srd}, s27 offen")
            k("s_waitcnt vmcnt(0)")
    k("s_sub_u32 s25, s25, 1")
    k("s_cmp_lg_u32 s25, 0")
    k(f"s_cbranch_scc1 {k.ref('cal')}")
    k("s_cmp_lt_u32 s31, s30")
    k("s_cselect_b32 s24, 1, 0")
    k("s_xor_b32 s24, s24, s23")
    k("s_lshl_b32 s24, s24, 13")
    k("v_mov_b32 v3, s24")
    k("s_lshl_b32 s25, s20, 2")
    k(f"s_add_u32 s25, s25, {CT_PAR}")
    k(f"buffer_store_dword v3, v1, {srd}, s25 offen")
    k("s_lshl_b32 s26, s30, 16")
    k("s_or_b32 s26, s26, s31")
    k("v_mov_b32 v3, s26")
    k(f"buffer_store_dword v3, v1, {srd}, s25 offen offset:64")
    k(f"s_branch {k.ref('end')}")

def build_prep(name="prep", newa=False, cfg=None):
    import aly
    cfg = cfg or {}
    k = K(name, vgpr=248, sgpr=64)
    W2 = cfg.get('wvo2', 0)
    NWVO = 160 * W2 if W2 else N_WVO
    total = PREP_WG - N_WVO + NWVO + (aly.N_PWA + aly.N_PWO if newa else 0)
    k(f"s_cmp_ge_u32 s2, {total}")
    k(f"s_cbranch_scc1 {k.ref('end0' if cfg.get('prt') else 'end')}")
    if cfg.get('prt'): k("s_memrealtime s[60:61]")
    prologue(k)
    k("s_mov_b32 s20, s2")
    k("s_cmp_lt_u32 s2, 4")
    k(f"s_cbranch_scc1 {k.ref('r_cal')}")
    k("s_cmp_eq_u32 s2, 4")
    k(f"s_cbranch_scc1 {k.ref('r_zero')}")
    k(f"s_sub_u32 s20, s2, {N_CTL}")
    if newa:
        k(f"s_cmp_lt_u32 s20, {aly.N_PWA}")
        k(f"s_cbranch_scc1 {k.ref('r_pwa')}")
        k(f"s_sub_u32 s20, s20, {aly.N_PWA}")
        k(f"s_cmp_lt_u32 s20, {aly.N_PWO}")
        k(f"s_cbranch_scc1 {k.ref('r_pwo')}")
        k(f"s_sub_u32 s20, s20, {aly.N_PWO}")
    k(f"s_cmp_lt_u32 s20, {NWVO}")
    k(f"s_cbranch_scc1 {k.ref('r_wvo')}")
    k(f"s_sub_u32 s20, s20, {NWVO}")
    k(f"s_cmp_lt_u32 s20, {N_PWP}")
    k(f"s_cbranch_scc1 {k.ref('r_pwp')}")
    k(f"s_sub_u32 s20, s20, {N_PWP}")
    if 'clr' in cfg.get('pskip', ''): k(f"s_branch {k.ref('end')}")
    role_clear(k)
    k.lab('r_cal')
    if 'cal' in cfg.get('pskip', ''): k(f"s_branch {k.ref('end')}")
    role_cal(k, cfg.get('caln', CAL_N))
    k.lab('r_zero'); role_zero(k)
    k.lab('r_wvo')
    if 'wvo' in cfg.get('pskip', ''): k(f"s_branch {k.ref('end')}")
    if W2: role_wvo2(k, W2)
    else:
        k("s_lshl_b32 s20, s20, 2"); k(f"s_add_u32 s20, s20, s{S_WAVE}")
        role_wvo(k)
    k.lab('r_pwp')
    if 'pwp' in cfg.get('pskip', ''): k(f"s_branch {k.ref('end')}")
    k("s_lshl_b32 s20, s20, 2"); k(f"s_add_u32 s20, s20, s{S_WAVE}")
    role_pwp(k)
    if newa:
        k.lab('r_pwa'); aly.role_pwa(k)
        k.lab('r_pwo')
        k("s_lshl_b32 s20, s20, 2"); k(f"s_add_u32 s20, s20, s{S_WAVE}")
        aly.role_pwo(k)
    k.lab('end')
    if cfg.get('prt'):
        k("s_waitcnt vmcnt(0)")
        k("s_memrealtime s[62:63]")
        k("s_waitcnt lgkmcnt(0)")
        k("s_mov_b64 exec, 1")
        k("s_lshl_b32 s32, s2, 2")
        k(f"s_add_u32 s32, s32, s{S_WAVE}")
        k("s_lshl_b32 s32, s32, 4")
        k(f"s_add_u32 s32, s32, {cfg['prt']}")
        k("s_getreg_b32 s33, hwreg(HW_REG_XCC_ID)")
        k("v_mov_b32 v1, 0")
        for n, sr in enumerate((60, 62, 33)):
            k(f"v_mov_b32 v2, s{sr}")
            k(f"buffer_store_dword v2, v1, {srd}, s32 offen offset:{4*n}")
            k("s_nop 1")
        k.lab('end0')
    return k, total

def wave_sum(k, v, tmp, s0):
    k("s_nop 1")
    k(f"v_add_f32 v{tmp}, v{v}, v{v} quad_perm:[1,0,3,2] row_mask:0xf bank_mask:0xf")
    k("s_nop 1")
    k(f"v_add_f32 v{tmp}, v{tmp}, v{tmp} quad_perm:[2,3,0,1] row_mask:0xf bank_mask:0xf")
    k("s_nop 1")
    k(f"v_add_f32 v{tmp}, v{tmp}, v{tmp} row_half_mirror row_mask:0xf bank_mask:0xf")
    k("s_nop 1")
    k(f"v_add_f32 v{tmp}, v{tmp}, v{tmp} row_mirror row_mask:0xf bank_mask:0xf")
    k("s_nop 1")
    for i in range(4): k(f"v_readlane_b32 s{s0+i}, v{tmp}, {16*i}")
    k("s_nop 1")
    k(f"v_mov_b32 v{v}, s{s0}")
    for i in range(1, 4): k(f"v_add_f32 v{v}, s{s0+i}, v{v}")

def build_lnb(name, layer, src_off):
    k = K(name, vgpr=32, sgpr=48)
    k("s_cmp_gt_u32 s2, 512")
    k(f"s_cbranch_scc1 {k.ref('end')}")
    prologue(k, [(KA_MEM0, 6)])
    k("s_cmp_eq_u32 s2, 512")
    k(f"s_cbranch_scc1 {k.ref('mem0')}")
    k("s_lshl_b32 s20, s2, 2")
    k(f"s_add_u32 s20, s20, s{S_WAVE}")
    k("s_mul_i32 s21, s20, 1280")
    k(f"s_add_u32 s21, s21, {src_off}")
    k("v_lshlrev_b32 v3, 2, v0")
    for j in range(5): k(f"buffer_load_dword v{4+j}, v3, {srd}, s21 offen offset:{j*256}")
    k("v_lshrrev_b32 v20, 4, v0")
    k("v_lshlrev_b32 v20, 2, v20")
    k("v_bfe_u32 v21, v0, 3, 1")
    k("v_lshl_add_u32 v20, v21, 1, v20")
    k("v_bfe_u32 v21, v0, 1, 1")
    k("v_add_u32 v20, v20, v21")
    k("v_lshlrev_b32 v20, 9, v20")
    k("v_and_b32 v21, 1, v0")
    k("v_lshl_add_u32 v20, v21, 3, v20")
    k("v_bfe_u32 v21, v0, 2, 1")
    k("v_lshl_add_u32 v23, v21, 2, v20")
    k("s_lshr_b32 s22, s20, 5")
    k(f"s_mul_i32 s22, s22, {XN_SEG}")
    k("s_and_b32 s23, s20, 31")
    k("s_lshl_b32 s23, s23, 4")
    k("s_add_u32 s22, s22, s23")
    k(f"s_add_u32 s22, s22, {XN}")
    k("s_waitcnt vmcnt(0)")
    for j in range(5):
        k(f"v_lshlrev_b32 v{10+2*j}, 16, v{4+j}")
        k(f"v_and_b32 v{11+2*j}, 0xffff0000, v{4+j}")
    k("v_add_f32 v20, v10, v11")
    for j in range(2, 10): k(f"v_add_f32 v20, v20, v{10+j}")
    wave_sum(k, 20, 21, 24)
    k(f"v_mul_f32 v20, {hexf(1.0/640)}, v20")
    for j in range(10): k(f"v_sub_f32 v{10+j}, v{10+j}, v20")
    k("v_mul_f32 v21, v10, v10")
    for j in range(1, 10): k(f"v_fmac_f32 v21, v{10+j}, v{10+j}")
    wave_sum(k, 21, 22, 24)
    k("v_mov_b32 v22, 0x3727c5ac")
    k(f"v_fmac_f32 v22, {hexf(1.0/640)}, v21")
    k("v_rsq_f32 v22, v22")
    k("s_nop 0")
    for j in range(10): k(f"v_mul_f32 v{10+j}, v{10+j}, v22")
    for j in range(5): k(f"v_cvt_pk_bf16_f32 v{4+j}, v{10+2*j}, v{11+2*j}")
    for j in range(5):
        k(f"s_add_u32 s23, s22, {j * 16 * 512}")
        k(f"buffer_store_dword v{4+j}, v23, {srd}, s23 offen")
    k(f"s_branch {k.ref('end')}")
    k.lab('mem0')
    k.srd(16, 6, 8 * 640 * 2)
    ex_delta(k, 22)
    k(f"s_mov_b32 s23, {CT_PAR + 8 * layer}")
    k(f"s_buffer_load_dword s24, {srd}, s23")
    k("s_waitcnt lgkmcnt(0)")
    k("s_and_b32 s24, s24, 8192")
    k(f"s_add_u32 s22, s22, {2 * layer * EX_BLOCK}")
    k("s_xor_b32 s25, s24, 8192")
    k("s_add_u32 s26, s22, s25")
    k("s_add_u32 s22, s22, s24")
    k(f"s_lshl_b32 s25, s{S_WAVE}, 6")
    k("v_add_u32 v1, s25, v0")
    for it in range(3):
        k(f"v_add_u32 v2, {256 * it}, v1")
        k("v_and_b32 v3, 7, v2")
        k("v_mul_u32_u24 v3, 1280, v3")
        k("v_lshrrev_b32 v4, 3, v2")
        k("v_lshl_add_u32 v3, v4, 4, v3")
        k("v_lshlrev_b32 v5, 4, v2")
        k(f"v_add_u32 v5, {M_LOG}, v5")
        k("v_lshrrev_b32 v6, 13, v5")
        k("v_lshlrev_b32 v6, 14, v6")
        k("v_and_b32 v5, 8191, v5")
        k("v_add_u32 v5, v5, v6")
        k("v_cmp_gt_u32 vcc, 640, v2")
        k("s_and_saveexec_b64 s[30:31], vcc")
        sk = k.ref(f'm0s{it}')
        k(f"s_cbranch_execz {sk}")
        k("buffer_load_dwordx4 v[8:11], v3, s[16:19], 0 offen")
        k("s_waitcnt vmcnt(0)")
        k(f"buffer_store_dwordx4 v[8:11], v5, {srd}, s22 offen")
        k(f"buffer_store_dwordx4 v[8:11], v5, {srd}, s26 offen")
        k.lab(f'm0s{it}')
        k("s_mov_b64 exec, s[30:31]")
    k.lab('end')
    return k, 513

G_LDS = 3 * XN_SEG
GV_L16 = 1; GV_RD = 2; GV_ST = 3; GV_W = 4
G_RING = 8; G_NR = 8
G_ACC = 40
G_OUT = 104
G_WV = 192
GS_LNW = 56; GS_LNA = 57; GS_SPIN = 58
GS_SEG = 14; GS_END = 15; GS_BUF = 16; GS_ST0 = 17; GS_ST1 = 18; GS_DMA = 19; GS_INC = 20; GS_LB = 21; GS_NB = 22

def gw(kap, t):
    n = kap * 2 + t
    return ar(4 * n, 4) if n < 64 else vr(G_WV + 4 * (n - 64), 4)

def gemm_body(k, isu, tag, cfg):
    L = lambda s: k.ref(f"g{tag}_{s}")
    lab = lambda s: k.lab(f"g{tag}_{s}")
    ovl = cfg.get('ovl'); SC1 = " sc1" if ovl else ""
    LNW = cfg.get('na') in (2, 3, 4)
    NSOLO = cfg.get('nsolo', 0); SOLO = NSOLO > 0
    nfl = [0]
    def flag(val_s):
        if not ovl: return
        nfl[0] += 1
        sk = f"g{tag}_fl{nfl[0]}"
        k(f"s_cmp_lg_u32 s{S_WAVE}, 0")
        k(f"s_cbranch_scc1 {k.ref(sk)}")
        k("s_mov_b64 exec, 1")
        k(f"s_lshl_b32 s26, s{cfg['cg_s']}, 7")
        k("v_mov_b32 v7, s26")
        k(f"v_mov_b32 v{G_OUT + 16}, s{val_s}")
        k(f"buffer_store_dword v{G_OUT + 16}, v7, {srd}, s{cfg['flag_s']} offen sc1")
        k("s_mov_b64 exec, -1")
        k.lab(sk)
    def dma_items(seg_s):
        it = [[f"s_min_u32 s24, s{seg_s}, 63", f"s_mul_i32 s24, s24, {XN_SEG}", f"s_add_u32 s24, s24, s{GS_DMA}",
               f"s_mul_i32 s25, s{S_WAVE}, 10240", f"s_add_u32 s25, s25, s{GS_NB}"]]
        for grp in range(3):
            for i in range(4 if grp < 2 else 2):
                p = []
                if i == 0:
                    if grp: p += ["s_add_u32 s24, s24, 4096", "s_add_u32 s25, s25, 4096"]
                    p += ["s_mov_b32 m0, s25", "s_nop 0"]
                p.append(f"buffer_load_dwordx4 v{GV_L16}, {srd}, s24 offen offset:{i * 1024}{' sc1' if LNW else ''} lds")
                it.append(p)
        return it
    def dma(seg_s):
        for p in dma_items(seg_s):
            for x in p: k(x)
    def lnwait(seg_s):
        if not LNW: return
        nfl[0] += 1
        sk = f"g{tag}_lw{nfl[0]}"; lp = f"g{tag}_lp{nfl[0]}"
        k(f"s_cmp_lg_u32 s{S_WAVE}, 0")
        k(f"s_cbranch_scc1 {k.ref(sk)}")
        k(f"s_min_u32 s28, s{seg_s}, 63")
        k(f"s_cmp_gt_u32 s{GS_LNW}, s28")
        k(f"s_cbranch_scc1 {k.ref(sk)}")
        k.lab(lp)
        k(f"buffer_load_dwordx4 v[124:127], v{GV_L16}, {srd}, s{GS_LNA} offen sc1")
        k("s_waitcnt vmcnt(0)")
        k("v_min_u32 v124, v124, v125")
        k("v_min_u32 v126, v126, v127")
        k("v_min_u32 v124, v124, v126")
        k("v_cmp_eq_u32 vcc, 0, v124")
        k("s_nop 1")
        k(f"s_ff1_i32_b64 s{GS_LNW}, vcc")
        k(f"s_min_u32 s{GS_LNW}, s{GS_LNW}, 64")
        k(f"s_sub_u32 s{GS_SPIN}, s{GS_SPIN}, 1")
        k(f"s_cbranch_scc1 {k.ref('bail')}")
        k(f"s_cmp_gt_u32 s{GS_LNW}, s28")
        k(f"s_cbranch_scc0 {k.ref(lp)}")
        k.lab(sk)
    def nextbuf(dst, src):
        k(f"s_add_u32 s{dst}, s{src}, {XN_SEG}")
        k(f"s_cmp_eq_u32 s{dst}, {G_LDS}")
        k(f"s_cselect_b32 s{dst}, 0, s{dst}")
    k(f"s_mul_i32 s{GS_DMA}, s{S_WAVE}, 10240")
    k(f"s_add_u32 s{GS_DMA}, s{GS_DMA}, {XN}")
    k(f"s_mov_b32 s{GS_NB}, 0")
    if LNW:
        k(f"s_mov_b32 s{GS_LNW}, 0")
        k(f"s_mov_b32 s{GS_SPIN}, 400000")
        k(f"s_add_u32 s{GS_LNA}, s{cfg['flag_s']}, {FL_LN}")
        if cfg.get('rt'): k("s_memrealtime s[60:61]")
        lnwait(GS_SEG)
        k("s_barrier")
        if cfg.get('rt'): k("s_memrealtime s[62:63]")
        dma(GS_SEG)
        k(f"s_mov_b32 s{GS_NB}, {XN_SEG}")
        k(f"s_mov_b32 s{GS_BUF}, 0")
        k("s_waitcnt vmcnt(0)")
    else:
        dma(GS_SEG)
        k(f"s_mov_b32 s{GS_NB}, {XN_SEG}")
        k(f"s_add_u32 s23, s{GS_SEG}, 1")
        dma(23)
        k(f"s_mov_b32 s{GS_NB}, {2 * XN_SEG}")
        k(f"s_mov_b32 s{GS_BUF}, 0")
        k("s_waitcnt vmcnt(10)")
    k("s_barrier")
    if cfg.get('rt'): k("s_memrealtime s[66:67]")
    k(f"v_mov_b32 v{GV_RD}, v{GV_L16}")
    for r in range(G_NR - 2):
        k(f"ds_read_b128 {vr(G_RING + 4 * r, 4)}, v{GV_RD} offset:{r * 1024}")
    PRE = G_NR - 2
    def epilogue_items(par):
        it = []
        for t in range(2):
            a = G_ACC + 32 * par + 16 * t
            for j in range(2):
                o = G_OUT + 4 * ((2 * t + j) & 3)
                for q in range(2):
                    it.append(f"v_cvt_pk_bf16_f32 v{o + 2 * q}, v{a + 8 * j + 4 * q}, v{a + 8 * j + 4 * q + 1}")
                    it.append(f"v_cvt_pk_bf16_f32 v{o + 2 * q + 1}, v{a + 8 * j + 4 * q + 2}, v{a + 8 * j + 4 * q + 3}")
                it.append("s_nop 1")
                it.append(f"v_permlane32_swap_b32 v{o}, v{o + 2}")
                it.append(f"v_permlane32_swap_b32 v{o + 1}, v{o + 3}")
                if isu: it.append(f"buffer_store_dwordx4 {vr(o, 4)}, v{GV_ST}, {srd}, s{GS_ST0} offen offset:{t * 2560 + j * 256}{SC1}")
                else:   it.append(f"buffer_store_dwordx4 {vr(o, 4)}, v{GV_ST}, {srd}, s{GS_ST0 + t} offen offset:{j * 1024}{SC1}")
        it.append(f"s_add_u32 s{GS_ST0}, s{GS_ST0}, s{GS_INC}")
        it.append(f"s_add_u32 s{GS_ST1}, s{GS_ST1}, s{GS_INC}")
        return it
    def segment(par, first, start=None, late=True, solo=False):
        side = {i: [] for i in range(80)}
        if not first:
            for n, it in enumerate(epilogue_items(par ^ 1)): side[4 + n].append(it)
        for kap in range(40):
            slot = kap % G_NR
            nk = kap + PRE
            if nk == 40 and not solo:
                k(f"v_add_u32 v{GV_RD + 4}, s{GS_LB}, v{GV_L16}")
            rb = GV_RD if nk < 40 else GV_RD + 4
            if nk < 40 or not solo:
                k(f"ds_read_b128 {vr(G_RING + 4 * (nk % G_NR), 4)}, v{rb} offset:{(nk % 40) * 1024}")
            k(f"s_waitcnt lgkmcnt({min(PRE, 39 - kap) if solo else PRE})")
            if solo and kap == 30:
                k(f"buffer_load_dwordx4 v[124:127], v{GV_L16}, {srd}, s{GS_LNA} offen sc1")
            x = vr(G_RING + 4 * slot, 4)
            for t in range(2):
                d = vr(G_ACC + 32 * par + 16 * t, 16)
                c = "0" if kap == 0 else d
                if isu: k(f"v_mfma_f32_32x32x16_bf16 {d}, {x}, {gw(kap, t)}, {c}")
                else:   k(f"v_mfma_f32_32x32x16_bf16 {d}, {gw(kap, t)}, {x}, {c}")
                for it in side[2 * kap + t]: k(it)
            if start is not None and kap == start:
                k(f"s_add_u32 s23, s{GS_SEG}, 1")
                lnwait(23)
                k("s_barrier")
                items = dma_items(23)
                for x_ in items[0]: k(x_)
                for n, p in enumerate(items[1:]): side[2 * (kap + 1 + n)] += p
                nextbuf(GS_NB, GS_NB)
            if kap == 28 and not solo:
                if late:
                    k(f"s_add_u32 s23, s{GS_SEG}, 2")
                    lnwait(23)
                if first or not ovl:
                    k("s_waitcnt vmcnt(0)" if first else "s_waitcnt vmcnt(4)")
                    k("s_barrier")
                else:
                    nfl[0] += 1
                    l1 = f"g{tag}_dr{nfl[0]}"; l2 = f"g{tag}_dq{nfl[0]}"
                    k(f"s_cmp_gt_u32 s{GS_SEG}, {NSOLO + 2 if SOLO else 2}")
                    k(f"s_cbranch_scc1 {k.ref(l1)}")
                    k("s_waitcnt vmcnt(0)")
                    k(f"s_mov_b32 s27, s{GS_SEG}")
                    k(f"s_branch {k.ref(l2)}")
                    k.lab(l1)
                    k("s_waitcnt vmcnt(4)")
                    k(f"s_sub_u32 s27, s{GS_SEG}, 1")
                    k.lab(l2)
                    k("s_barrier")
                    flag(27)
                nextbuf(GS_LB, GS_BUF)
                if late:
                    k(f"s_add_u32 s23, s{GS_SEG}, 2")
                    items = dma_items(23)
                    for x_ in items[0]: k(x_)
                    for n, p in enumerate(items[1:]): side[2 * (kap + 1 + n)] += p
                    nextbuf(GS_NB, GS_NB)
        if not solo:
            k(f"v_mov_b32 v{GV_RD}, v{GV_RD + 4}")
            k(f"s_mov_b32 s{GS_BUF}, s{GS_LB}")
        k(f"s_add_u32 s{GS_SEG}, s{GS_SEG}, 1")
    if LNW and SOLO:
        lab('solo')
        segment(0, True, None, False, True)
        k("s_nop 7"); k("s_nop 7")
        for it in epilogue_items(0): k(it)
        k("s_waitcnt vmcnt(0)")
        k("s_barrier")
        flag(GS_SEG)
        if cfg.get('rt'):
            k(f"s_cmp_lg_u32 s{GS_SEG}, 1"); k(f"s_cbranch_scc1 {L('rt1')}"); k("s_memrealtime s[68:69]"); lab('rt1')
        lab('spoll')
        k("v_min_u32 v124, v124, v125")
        k("v_min_u32 v126, v126, v127")
        k("v_min_u32 v124, v124, v126")
        k("v_cmp_eq_u32 vcc, 0, v124")
        k("s_nop 1")
        k(f"s_ff1_i32_b64 s{GS_LNW}, vcc")
        k(f"s_min_u32 s{GS_LNW}, s{GS_LNW}, 64")
        k(f"s_cmp_gt_u32 s{GS_LNW}, s{GS_SEG}")
        k(f"s_cbranch_scc1 {L('sok')}")
        k(f"s_sub_u32 s{GS_SPIN}, s{GS_SPIN}, 1")
        k(f"s_cbranch_scc1 {k.ref('bail')}")
        k(f"buffer_load_dwordx4 v[124:127], v{GV_L16}, {srd}, s{GS_LNA} offen sc1")
        k("s_waitcnt vmcnt(0)")
        k(f"s_branch {L('spoll')}")
        lab('sok')
        dma(GS_SEG)
        k(f"s_mov_b32 s{GS_BUF}, s{GS_NB}")
        nextbuf(GS_NB, GS_NB)
        k(f"v_add_u32 v{GV_RD}, s{GS_BUF}, v{GV_L16}")
        k("s_waitcnt vmcnt(0)")
        k("s_barrier")
        for r in range(G_NR - 2):
            k(f"ds_read_b128 {vr(G_RING + 4 * r, 4)}, v{GV_RD} offset:{r * 1024}")
        k(f"s_cmp_lt_u32 s{GS_SEG}, {NSOLO}")
        k(f"s_cbranch_scc1 {L('solo')}")
        segment(1, True, 2)
        if cfg.get('rt'): k("s_memrealtime s[70:71]")
        lab('loop')
        segment(0, False)
        k(f"s_cmp_ge_u32 s{GS_SEG}, s{GS_END}")
        k(f"s_cbranch_scc1 {L('fin0')}")
        segment(1, False)
        k(f"s_cmp_lt_u32 s{GS_SEG}, s{GS_END}")
        k(f"s_cbranch_scc1 {L('loop')}")
        k(f"s_branch {L('fin1')}")
    elif LNW:
        segment(0, True, 6, False)
        k("s_nop 7"); k("s_nop 7")
        for it in epilogue_items(0): k(it)
        k("s_waitcnt vmcnt(0)")
        k("s_barrier")
        flag(GS_SEG)
        if cfg.get('rt'): k("s_memrealtime s[68:69]")
        segment(1, True, 2)
        if cfg.get('rt'): k("s_memrealtime s[70:71]")
        lab('loop')
        segment(0, False)
        k(f"s_cmp_ge_u32 s{GS_SEG}, s{GS_END}")
        k(f"s_cbranch_scc1 {L('fin0')}")
        segment(1, False)
        k(f"s_cmp_lt_u32 s{GS_SEG}, s{GS_END}")
        k(f"s_cbranch_scc1 {L('loop')}")
        k(f"s_branch {L('fin1')}")
    else:
        segment(0, True)
        k(f"s_cmp_ge_u32 s{GS_SEG}, s{GS_END}")
        k(f"s_cbranch_scc1 {L('fin0')}")
        lab('loop')
        segment(1, False)
        k(f"s_cmp_ge_u32 s{GS_SEG}, s{GS_END}")
        k(f"s_cbranch_scc1 {L('fin1')}")
        segment(0, False)
        k(f"s_cmp_lt_u32 s{GS_SEG}, s{GS_END}")
        k(f"s_cbranch_scc1 {L('loop')}")
    lab('fin0')
    k("s_nop 7"); k("s_nop 7")
    for it in epilogue_items(0): k(it)
    k(f"s_branch {L('done')}")
    lab('fin1')
    k("s_nop 7"); k("s_nop 7")
    for it in epilogue_items(1): k(it)
    lab('done')
    k("s_waitcnt vmcnt(0) lgkmcnt(0)")
    if ovl:
        k("s_barrier")
        flag(GS_SEG)

def u_weight_addr(k, cg_s, vr_, vhf, vt, out_v, out_s, st):
    k(f"v_lshrrev_b32 v{vt}, 3, v{vr_}")
    k(f"v_and_b32 v{vt+1}, 7, v{vr_}")
    k(f"v_mul_u32_u24 v{vt+2}, 20480, v{vt}")
    k(f"v_lshl_add_u32 v{vt+2}, v{vt+1}, 4, v{vt+2}")
    k(f"v_lshl_add_u32 v{out_v}, v{vhf}, 8, v{vt+2}")
    k(f"s_mul_i32 s{st}, s{cg_s}, 327680")
    k(f"s_mul_i32 s{st+1}, s{S_WAVE}, 81920")
    k(f"s_add_u32 s{st}, s{st}, s{st+1}")
    k(f"s_add_u32 s{out_s}, s{st}, {WY}")

def qk_setup(k, cg_s, vr_, vhf, vt, out_v, out_s, st, st0):
    S = lambda n: f"s{st + n - 26}"
    k(f"s_sub_u32 {S(26)}, s{cg_s}, 80")
    k(f"s_cmp_ge_u32 {S(26)}, 24")
    k(f"s_cselect_b32 {S(27)}, 1, 0")
    k(f"s_cselect_b32 {S(28)}, 24, 0")
    k(f"s_sub_u32 {S(26)}, {S(26)}, {S(28)}")
    k(f"s_lshl_b32 {S(26)}, {S(26)}, 3")
    k(f"s_lshl_b32 {S(28)}, s{S_WAVE}, 1")
    k(f"s_add_u32 {S(26)}, {S(26)}, {S(28)}")
    for t in range(2):
        k(f"s_add_u32 {S(28)}, {S(26)}, {t}")
        k(f"s_mul_i32 {S(29)}, {S(28)}, 171")
        k(f"s_lshr_b32 {S(29)}, {S(29)}, 10")
        k(f"s_mul_i32 {S(30)}, {S(29)}, 6")
        k(f"s_sub_u32 {S(30)}, {S(28)}, {S(30)}")
        if st0 is not None:
            k(f"s_mul_i32 {S(31)}, {S(29)}, {KX_SH}")
            k(f"s_lshl_b32 {S(32)}, {S(30)}, 11")
            k(f"s_add_u32 {S(31)}, {S(31)}, {S(32)}")
            k(f"s_mul_i32 {S(32)}, s{GS_SEG}, {32 * KX_SH}")
            k(f"s_add_u32 {S(31)}, {S(31)}, {S(32)}")
            k(f"s_mul_i32 {S(32)}, {S(27)}, {QX - KX}")
            k(f"s_add_u32 {S(31)}, {S(31)}, {S(32)}")
            k(f"s_add_u32 s{st0 + t}, {S(31)}, {KX}")
        k(f"s_lshl_b32 {S(30)}, {S(30)}, 5")
        k(f"v_add_u32 v{vt}, {S(30)}, v{vr_}")
        p2e_lane(k, vt + 1, vt, vt + 2, vt + 3)
        k(f"s_cmp_eq_u32 {S(27)}, 1")
        k("s_cselect_b64 vcc, -1, 0")
        k("s_nop 1")
        k(f"v_cndmask_b32 v{vt}, v{vt}, v{vt+1}, vcc")
        wp_block_off(k, vt + 1, vt, 0, vt + 2, vt + 3)
        k(f"v_lshl_add_u32 v{out_v + t}, v{vhf}, 8, v{vt+1}")
        k(f"s_xor_b32 {S(30)}, {S(27)}, 1")
        k(f"s_mul_i32 {S(30)}, {S(30)}, {3*20480}")
        k(f"s_mul_i32 {S(31)}, {S(29)}, 491520")
        k(f"s_add_u32 {S(30)}, {S(30)}, {S(31)}")
        k(f"s_add_u32 s{out_s + t}, {S(30)}, {WP}")

def role_gemm(k, cg_s, cfg=None):
    cfg = dict(cfg or {}, cg_s=cg_s)
    WIN = cfg.get('wing', cfg.get('win'))
    L = lambda s: k.ref('g_' + s)
    k(f"v_lshlrev_b32 v{GV_L16}, 4, v0")
    k("v_and_b32 v8, 31, v0")
    k("v_lshrrev_b32 v9, 5, v0")
    k(f"s_cmp_ge_u32 s{cg_s}, 80")
    k(f"s_cbranch_scc1 {L('qk')}")
    u_weight_addr(k, cg_s, 8, 9, 10, GV_W, 24, 24)
    SEMI = cfg.get('na') == 4
    for kap in range(40):
        if kap % 7 == 0 and kap: k(f"s_add_u32 s24, s24, {7 * 512}")
        if SEMI and kap < cfg.get('npf', 64) // 2: continue
        for t in range(2):
            k(f"buffer_load_dwordx4 {gw(kap, t)}, v{GV_W}, {srd}, s24 offen offset:{(kap % 7) * 512 + t * 128}")
            if WIN and 2 * kap + t >= WIN: k(f"s_waitcnt vmcnt({WIN})")
    k(f"s_lshl_b32 s25, s{S_WAVE}, 3")
    k("v_add_u32 v10, s25, v10")
    k("v_mul_u32_u24 v10, 640, v10")
    k("v_lshl_add_u32 v10, v9, 7, v10")
    k("v_lshl_add_u32 v10, v11, 4, v10")
    k(f"v_add_u32 v{GV_ST}, 128, v10")
    k(f"s_mul_i32 s{GS_ST0}, s{cg_s}, 20480")
    k(f"s_mul_i32 s25, s{GS_SEG}, {Z_SEG}")
    k(f"s_add_u32 s{GS_ST0}, s{GS_ST0}, s25")
    k(f"s_add_u32 s{GS_ST0}, s{GS_ST0}, {Z}")
    k(f"s_mov_b32 s{GS_INC}, {Z_SEG}")
    gemm_body(k, True, 'u', cfg)
    k(f"s_branch {L('done')}")
    k.lab('g_qk')
    qk_setup(k, cg_s, 8, 9, 10, GV_W, 34, 26, GS_ST0)
    for kap in range(40):
        if kap % 8 == 0 and kap:
            k("s_add_u32 s34, s34, 4096"); k("s_add_u32 s35, s35, 4096")
        if SEMI and kap < cfg.get('npf', 64) // 2: continue
        for t in range(2):
            k(f"buffer_load_dwordx4 {gw(kap, t)}, v{GV_W + t}, {srd}, s{34 + t} offen offset:{(kap % 8) * 512}")
            if WIN and 2 * kap + t >= WIN: k(f"s_waitcnt vmcnt({WIN})")
    k(f"v_mov_b32 v{GV_ST}, v{GV_L16}")
    k(f"s_mov_b32 s{GS_INC}, {32 * KX_SH}")
    gemm_body(k, False, 'k', cfg)
    k.lab('g_done')

def build_gemmb(name="gemmb", nsplit=2):
    k = K(name, vgpr=256, sgpr=64, agpr=256)
    k(f"s_cmp_ge_u32 s2, {128 * nsplit}")
    k(f"s_cbranch_scc1 {k.ref('end')}")
    prologue(k)
    k("s_and_b32 s36, s2, 127")
    k("s_lshr_b32 s37, s2, 7")
    k(f"s_mul_i32 s{GS_SEG}, s37, {64 // nsplit}")
    k(f"s_add_u32 s{GS_END}, s{GS_SEG}, {64 // nsplit}")
    role_gemm(k, 36)
    k.lab('end')
    return k, 128 * nsplit, G_LDS

def role_w3a(k, seg_s, h_s, SC1=""):
    Q, KK, KMF, D1, D2, BI = 16, 64, 112, 160, 176, 192
    T = 208
    k("v_lshlrev_b32 v1, 4, v0")
    k("v_and_b32 v2, 31, v0")
    k("v_lshrrev_b32 v3, 5, v0")
    k(f"s_lshl_b32 s24, s{seg_s}, 5")
    k(f"s_add_u32 s24, s24, s{h_s}")
    k(f"s_mul_i32 s25, s24, {KX_SH}")
    k(f"s_add_u32 s26, s25, {QX}")
    k(f"s_add_u32 s27, s25, {KX}")
    k(f"s_mul_i32 s28, s24, {KM_SH}")
    k(f"s_add_u32 s28, s28, {KM}")
    k("v_and_b32 v4, 7, v0")
    k("v_lshlrev_b32 v4, 4, v4")
    k("v_lshl_add_u32 v4, v3, 7, v4")
    for kap in range(12):
        if kap % 4 == 0 and kap:
            k("s_add_u32 s26, s26, 4096"); k("s_add_u32 s27, s27, 4096")
        k(f"buffer_load_dwordx4 {vr(Q + 4 * kap, 4)}, v1, {srd}, s26 offen offset:{(kap % 4) * 1024}{SC1}")
        k(f"buffer_load_dwordx4 {vr(KK + 4 * kap, 4)}, v1, {srd}, s27 offen offset:{(kap % 4) * 1024}{SC1}")
        k(f"buffer_load_dwordx4 {vr(KMF + 4 * kap, 4)}, v4, {srd}, s28 offen offset:{kap * 256}{SC1}")
    k("v_lshlrev_b32 v5, 2, v3")
    k("v_sub_u32 v5, v2, v5")
    k(f"v_mov_b32 v6, {hexf(-1e30)}")
    for r in range(16):
        k(f"v_cmp_gt_i32 vcc, {(r & 3) + 8 * (r >> 2)}, v5")
        k("s_nop 1")
        k(f"v_cndmask_b32 v{BI + r}, 0, v6, vcc")
    for kap in range(12):
        k(f"s_waitcnt vmcnt({3 * (11 - kap)})")
        k(f"v_mfma_f32_32x32x16_bf16 {vr(D1, 16)}, {vr(KK + 4 * kap, 4)}, {vr(Q + 4 * kap, 4)}, {'0' if kap == 0 else vr(D1, 16)}")
        k(f"v_mfma_f32_32x32x16_bf16 {vr(D2, 16)}, {vr(KMF + 4 * kap, 4)}, {vr(Q + 4 * kap, 4)}, {'0' if kap == 0 else vr(D2, 16)}")
    k("s_nop 7"); k("s_nop 7")
    c = hexf(CSC)
    k(f"v_mov_b32 v7, {c}")
    for r in range(16): k(f"v_fma_f32 v{D1 + r}, v{D1 + r}, v7, v{BI + r}")
    for r in range(4): k(f"v_mul_f32 v{D2 + r}, v{D2 + r}, v7")
    vals = [D1 + r for r in range(16)] + [D2 + r for r in range(4)]
    m, u = T, T + 1
    k(f"v_max3_f32 v{m}, v{vals[0]}, v{vals[1]}, v{vals[2]}")
    rest = vals[3:]
    while len(rest) >= 2:
        k(f"v_max3_f32 v{m}, v{m}, v{rest[0]}, v{rest[1]}"); rest = rest[2:]
    if rest: k(f"v_max_f32 v{m}, v{m}, v{rest[0]}")
    k(f"v_mov_b32 v{u}, v{m}")
    k("s_nop 1")
    k(f"v_permlane32_swap_b32 v{m}, v{u}")
    k(f"v_max_f32 v{m}, v{m}, v{u}")
    for r in vals: k(f"v_sub_f32 v{r}, v{r}, v{m}")
    for r in vals: k(f"v_exp_f32 v{r}, v{r}")
    k("s_nop 0")
    s_ = T + 2
    k(f"v_add_f32 v{s_}, v{vals[0]}, v{vals[1]}")
    for r in vals[2:]: k(f"v_add_f32 v{s_}, v{s_}, v{r}")
    k(f"v_mov_b32 v{u}, v{s_}")
    k("s_nop 1")
    k(f"v_permlane32_swap_b32 v{s_}, v{u}")
    k(f"v_add_f32 v{s_}, v{s_}, v{u}")
    k(f"v_rcp_f32 v{s_}, v{s_}")
    k("s_nop 0")
    for r in vals: k(f"v_mul_f32 v{r}, v{r}, v{s_}")
    k(f"s_mul_i32 s25, s{seg_s}, {PX_SEG}")
    k(f"s_mul_i32 s26, s{h_s}, 2560")
    k("s_add_u32 s25, s25, s26")
    k(f"s_add_u32 s25, s25, {PXB}")
    O = Q
    for j in range(2):
        o = O + 4 * j
        for q in range(2):
            k(f"v_cvt_pk_bf16_f32 v{o + 2 * q}, v{D1 + 8 * j + 4 * q}, v{D1 + 8 * j + 4 * q + 1}")
            k(f"v_cvt_pk_bf16_f32 v{o + 2 * q + 1}, v{D1 + 8 * j + 4 * q + 2}, v{D1 + 8 * j + 4 * q + 3}")
        k("s_nop 1")
        k(f"v_permlane32_swap_b32 v{o}, v{o + 2}")
        k(f"v_permlane32_swap_b32 v{o + 1}, v{o + 3}")
        k(f"buffer_store_dwordx4 {vr(o, 4)}, v1, {srd}, s25 offen offset:{512 + j * 1024}{SC1}")
    k(f"v_cvt_pk_bf16_f32 v{O + 8}, v{D2}, v{D2 + 1}")
    k(f"v_cvt_pk_bf16_f32 v{O + 9}, v{D2 + 2}, v{D2 + 3}")
    k("v_lshlrev_b32 v4, 4, v2")
    k("v_lshl_add_u32 v4, v3, 3, v4")
    k(f"buffer_store_dwordx2 {vr(O + 8, 2)}, v4, {srd}, s25 offen{SC1}")

def build_w3a(name="w3a"):
    k = K(name, vgpr=216, sgpr=48)
    k("s_cmp_ge_u32 s2, 512")
    k(f"s_cbranch_scc1 {k.ref('end')}")
    prologue(k)
    k("s_lshl_b32 s20, s2, 2")
    k(f"s_add_u32 s20, s20, s{S_WAVE}")
    k("s_lshr_b32 s21, s20, 5")
    k("s_and_b32 s22, s20, 31")
    role_w3a(k, 21, 22)
    k.lab('end')
    return k, 512

def role_w3b(k, seg_s, cg_s, res_off, out_srd, out_off, NR=16, SC1=""):
    RING = 32; ACC = 16
    k("v_lshlrev_b32 v1, 4, v0")
    k("v_and_b32 v2, 31, v0")
    k("v_lshrrev_b32 v3, 5, v0")
    k("v_lshrrev_b32 v4, 3, v2")
    k("v_mul_u32_u24 v4, 20480, v4")
    k("v_and_b32 v5, 7, v2")
    k("v_lshl_add_u32 v4, v5, 4, v4")
    k("v_lshl_add_u32 v4, v3, 7, v4")
    k(f"s_mul_i32 s24, s{seg_s}, {Z_SEG}")
    k(f"s_mul_i32 s25, s{cg_s}, {4 * 20480}")
    k("s_add_u32 s24, s24, s25")
    k(f"s_add_u32 s24, s24, {Z}")
    k(f"s_mul_i32 s25, s{seg_s}, {PX_SEG}")
    k(f"s_add_u32 s25, s25, {PXB}")
    k("v_mul_u32_u24 v6, 1280, v2")
    k("v_lshl_add_u32 v6, v3, 4, v6")
    k(f"s_mul_i32 s26, s{seg_s}, {32 * 1280}")
    k(f"s_lshl_b32 s27, s{cg_s}, 6")
    k("s_add_u32 s26, s26, s27")
    k(f"s_add_u32 s27, s26, {res_off}")
    for j in range(2):
        k(f"buffer_load_dwordx4 {vr(8 + 4 * j, 4)}, v6, {srd}, s27 offen offset:{32 * j}")
    def load(kap):
        sl = RING + 8 * (kap % NR)
        if kap % 16 == 0 and kap: k("s_add_u32 s24, s24, 4096")
        if kap % 4 == 0 and kap: k("s_add_u32 s25, s25, 4096")
        k(f"buffer_load_dwordx4 {vr(sl, 4)}, v4, {srd}, s24 offen offset:{(kap % 16) * 256}{SC1}")
        k(f"buffer_load_dwordx4 {vr(sl + 4, 4)}, v1, {srd}, s25 offen offset:{(kap % 4) * 1024}{SC1}")
    for kap in range(NR): load(kap)
    issued = NR
    for kap in range(80):
        k(f"s_waitcnt vmcnt({2 * (issued - 1 - kap)})")
        sl = RING + 8 * (kap % NR)
        k(f"v_mfma_f32_32x32x16_bf16 {vr(ACC, 16)}, {vr(sl, 4)}, {vr(sl + 4, 4)}, {'0' if kap == 0 else vr(ACC, 16)}")
        if kap >= 1 and issued < 80:
            load(issued); issued += 1
    k("s_nop 7"); k("s_nop 7")
    O = RING
    for j in range(2):
        o = O + 4 * j
        for q in range(2):
            k(f"v_cvt_pk_bf16_f32 v{o + 2 * q}, v{ACC + 8 * j + 4 * q}, v{ACC + 8 * j + 4 * q + 1}")
            k(f"v_cvt_pk_bf16_f32 v{o + 2 * q + 1}, v{ACC + 8 * j + 4 * q + 2}, v{ACC + 8 * j + 4 * q + 3}")
        k("s_nop 1")
        k(f"v_permlane32_swap_b32 v{o}, v{o + 2}")
        k(f"v_permlane32_swap_b32 v{o + 1}, v{o + 3}")
        k("s_nop 1")
        for r in range(4):
            a, b, t0, t1 = O + 8, O + 9, O + 10, O + 11
            k(f"v_lshlrev_b32 v{a}, 16, v{o + r}")
            k(f"v_and_b32 v{b}, 0xffff0000, v{o + r}")
            k(f"v_lshlrev_b32 v{t0}, 16, v{8 + 4 * j + r}")
            k(f"v_and_b32 v{t1}, 0xffff0000, v{8 + 4 * j + r}")
            k(f"v_add_f32 v{a}, v{a}, v{t0}")
            k(f"v_add_f32 v{b}, v{b}, v{t1}")
            k(f"v_cvt_pk_bf16_f32 v{o + r}, v{a}, v{b}")
        if out_off is not None:
            k(f"s_add_u32 s27, s26, {out_off}")
            k(f"buffer_store_dwordx4 {vr(o, 4)}, v6, {srd}, s27 offen offset:{32 * j}")
        else:
            k(f"buffer_store_dwordx4 {vr(o, 4)}, v6, {out_srd}, s26 offen offset:{32 * j}")

def build_w3b(name, res_off, out_off):
    NR = 12
    k = K(name, vgpr=32 + 8 * NR, sgpr=48)
    k("s_cmp_ge_u32 s2, 320")
    k(f"s_cbranch_scc1 {k.ref('end')}")
    prologue(k, [(KA_OUT, 6)])
    k.srd(16, 6, 2048 * 640 * 2)
    k("s_lshl_b32 s20, s2, 2")
    k(f"s_add_u32 s20, s20, s{S_WAVE}")
    k("s_mul_i32 s21, s20, 3277"); k("s_lshr_b32 s21, s21, 16")
    k("s_mul_i32 s22, s21, 20"); k("s_sub_u32 s22, s20, s22")
    role_w3b(k, 21, 22, res_off, "s[16:19]", out_off, NR)
    k.lab('end')
    return k, 320

J_PER = 18
NJOB = 64 * J_PER
JL_RED = 0; JL_JOB = 32768

def role_w3b2(k, seg_s, cg_s, res_off, out_srd, RSC=""):
    ACC = 16; T = 48
    AP, AZ0, AZ1 = 160, 0, 80
    k("v_lshlrev_b32 v1, 4, v0")
    k("v_and_b32 v2, 31, v0")
    k("v_lshrrev_b32 v3, 5, v0")
    k("v_lshrrev_b32 v4, 3, v2")
    k("v_mul_u32_u24 v4, 20480, v4")
    k("v_and_b32 v5, 7, v2")
    k("v_lshl_add_u32 v4, v5, 4, v4")
    k("v_lshl_add_u32 v4, v3, 7, v4")
    k(f"s_mul_i32 s24, s{seg_s}, {Z_SEG}")
    k(f"s_mul_i32 s25, s{cg_s}, {8 * 20480}")
    k("s_add_u32 s24, s24, s25")
    k(f"s_mul_i32 s25, s{S_WAVE}, {20 * 256}")
    k("s_add_u32 s24, s24, s25")
    k(f"s_add_u32 s24, s24, {Z}")
    k(f"s_add_u32 s28, s24, {4 * 20480}")
    k(f"s_mul_i32 s25, s{seg_s}, {PX_SEG}")
    k(f"s_mul_i32 s26, s{S_WAVE}, {20 * 1024}")
    k("s_add_u32 s25, s25, s26")
    k(f"s_add_u32 s25, s25, {PXB}")
    k("v_mul_u32_u24 v6, 1280, v2")
    k("v_lshl_add_u32 v6, v3, 4, v6")
    k(f"s_mul_i32 s26, s{seg_s}, {32 * 1280}")
    k(f"s_lshl_b32 s27, s{cg_s}, 7")
    k("s_add_u32 s26, s26, s27")
    k(f"s_lshl_b32 s27, s{S_WAVE}, 5")
    k("s_add_u32 s26, s26, s27")
    k(f"s_add_u32 s27, s26, {res_off}")
    k(f"buffer_load_dwordx4 v[8:11], v6, {srd}, s27 offen{RSC}")
    for i in range(20):
        if i % 4 == 0 and i: k("s_add_u32 s25, s25, 4096")
        if i == 16:
            k("s_add_u32 s24, s24, 4096"); k("s_add_u32 s28, s28, 4096")
        k(f"buffer_load_dwordx4 {ar(AP + 4 * i, 4)}, v1, {srd}, s25 offen offset:{(i % 4) * 1024} sc1")
        k(f"buffer_load_dwordx4 {ar(AZ0 + 4 * i, 4)}, v4, {srd}, s24 offen offset:{(i % 16) * 256} sc1")
        k(f"buffer_load_dwordx4 {ar(AZ1 + 4 * i, 4)}, v4, {srd}, s28 offen offset:{(i % 16) * 256} sc1")
    for i in range(20):
        k(f"s_waitcnt vmcnt({3 * (19 - i)})")
        for t, az in ((0, AZ0), (1, AZ1)):
            d = vr(ACC + 16 * t, 16)
            k(f"v_mfma_f32_32x32x16_bf16 {d}, {ar(az + 4 * i, 4)}, {ar(AP + 4 * i, 4)}, {'0' if i == 0 else d}")
    k(f"s_lshl_b32 s27, s{S_WAVE}, 11")
    k(f"v_add_u32 v7, s27, v1")
    k("s_nop 7"); k("s_nop 7")
    for t in range(2):
        for j in range(2):
            for hh in range(2):
                k(f"ds_write_b128 v7, {vr(ACC + 16 * t + 8 * j + 4 * hh, 4)} offset:{JL_RED + (t * 2 + j) * 8192 + hh * 1024}")
    k("s_waitcnt lgkmcnt(0)")
    k("s_barrier")
    k(f"s_lshl_b32 s27, s{S_WAVE}, 13")
    k(f"v_add_u32 v7, s27, v1")
    for ww in range(4):
        for hh in range(2):
            k(f"ds_read_b128 {vr(T + 8 * ww + 4 * hh, 4)}, v7 offset:{JL_RED + ww * 2048 + hh * 1024}")
    k("s_waitcnt lgkmcnt(4)")
    for r in range(8): k(f"v_add_f32 v{T + r}, v{T + r}, v{T + 8 + r}")
    k("s_waitcnt lgkmcnt(0)")
    for r in range(8): k(f"v_add_f32 v{T + 16 + r}, v{T + 16 + r}, v{T + 24 + r}")
    for r in range(8): k(f"v_add_f32 v{T + r}, v{T + r}, v{T + 16 + r}")
    o = ACC
    for q in range(2):
        k(f"v_cvt_pk_bf16_f32 v{o + 2 * q}, v{T + 4 * q}, v{T + 4 * q + 1}")
        k(f"v_cvt_pk_bf16_f32 v{o + 2 * q + 1}, v{T + 4 * q + 2}, v{T + 4 * q + 3}")
    k("s_nop 1")
    k(f"v_permlane32_swap_b32 v{o}, v{o + 2}")
    k(f"v_permlane32_swap_b32 v{o + 1}, v{o + 3}")
    k("s_nop 1")
    for r in range(4):
        a, b, t0, t1 = T, T + 1, T + 2, T + 3
        k(f"v_lshlrev_b32 v{a}, 16, v{o + r}")
        k(f"v_and_b32 v{b}, 0xffff0000, v{o + r}")
        k(f"v_lshlrev_b32 v{t0}, 16, v{8 + r}")
        k(f"v_and_b32 v{t1}, 0xffff0000, v{8 + r}")
        k(f"v_add_f32 v{a}, v{a}, v{t0}")
        k(f"v_add_f32 v{b}, v{b}, v{t1}")
        k(f"v_cvt_pk_bf16_f32 v{o + r}, v{a}, v{b}")
    k(f"buffer_store_dwordx4 {vr(o, 4)}, v6, {out_srd}, s26 offen")

def role_w3_loop(k, cfg, fl_s, spin_s, out_srd, layer_s):
    L = lambda s: k.ref('j_' + s)
    lab = lambda s: k.lab('j_' + s)
    bail = k.ref('bail')
    SEG, R, NEED = 40, 41, 42
    lab('next')
    k(f"s_cmp_lg_u32 s{S_WAVE}, 0")
    k(f"s_cbranch_scc1 {L('rel')}")
    k("s_mov_b64 exec, 1")
    k(f"v_mov_b32 v2, {FL_JOB}")
    k("v_mov_b32 v3, 1")
    k(f"buffer_atomic_add v3, v2, {srd}, s{fl_s} offen sc0 sc1")
    k("s_waitcnt vmcnt(0)")
    k("s_mov_b64 exec, -1")
    k("s_nop 0")
    k("v_readfirstlane_b32 s38, v3")
    k(f"s_cmp_ge_u32 s38, {NJOB}")
    k(f"s_cbranch_scc1 {L('pub')}")
    k("s_mul_i32 s39, s38, 58255")
    k(f"s_lshr_b32 s{SEG}, s39, 20")
    k(f"s_mul_i32 s39, s{SEG}, {J_PER}")
    k(f"s_sub_u32 s{R}, s38, s39")
    k(f"s_add_u32 s{NEED}, s{SEG}, 1")
    k(f"v_mov_b32 v4, s{NEED}")
    k(f"s_cmp_ge_u32 s{R}, 8")
    k(f"s_cbranch_scc1 {L('dep_b')}")
    k(f"s_lshl_b32 s24, s{R}, 9")
    k(f"s_add_u32 s24, s24, {FL_PF}")
    k("v_lshlrev_b32 v2, 7, v0")
    k("v_add_u32 v2, s24, v2")
    k(f"s_mul_i32 s25, s{R}, 3")
    k("s_add_u32 s25, s25, 104")
    k("s_lshl_b32 s25, s25, 7")
    k("v_writelane_b32 v2, s25, 4")
    k("s_add_u32 s25, s25, 128")
    k("v_writelane_b32 v2, s25, 5")
    k("s_add_u32 s25, s25, 128")
    k("v_writelane_b32 v2, s25, 6")
    k("s_mov_b64 exec, 0x7f")
    k(f"s_branch {L('poll')}")
    lab('dep_b')
    k(f"s_sub_u32 s24, s{R}, 8")
    k("s_lshl_b32 s24, s24, 10")
    k(f"s_add_u32 s24, s24, {FL_YF}")
    k("v_lshlrev_b32 v2, 7, v0")
    k("v_add_u32 v2, s24, v2")
    k(f"s_lshl_b32 s25, s{SEG}, 4")
    k(f"s_add_u32 s25, s25, {FL_WA}")
    k("v_writelane_b32 v2, s25, 8")
    k("s_mov_b32 s26, 8")
    k("v_writelane_b32 v4, s26, 8")
    k("s_mov_b64 exec, 0x1ff")
    lab('poll')
    k(f"buffer_load_dword v3, v2, {srd}, s{fl_s} offen sc1")
    k("s_waitcnt vmcnt(0)")
    k("v_cmp_gt_u32 vcc, v4, v3")
    k(f"s_sub_u32 s{spin_s}, s{spin_s}, 1")
    k(f"s_cbranch_scc1 {L('giveup')}")
    k(f"s_cbranch_vccnz {L('poll')}")
    k("s_mov_b64 exec, -1")
    lab('pub')
    k("v_mov_b32 v2, 0")
    k("v_mov_b32 v3, s38")
    k(f"ds_write_b32 v2, v3 offset:{JL_JOB}")
    k("s_waitcnt lgkmcnt(0)")
    lab('rel')
    k("s_barrier")
    k("v_mov_b32 v2, 0")
    k(f"ds_read_b32 v3, v2 offset:{JL_JOB}")
    k("s_waitcnt lgkmcnt(0)")
    k("v_readfirstlane_b32 s38, v3")
    k(f"s_cmp_ge_u32 s38, {NJOB}")
    k(f"s_cbranch_scc1 {L('done')}")
    k("s_mul_i32 s39, s38, 58255")
    k(f"s_lshr_b32 s{SEG}, s39, 20")
    k(f"s_mul_i32 s39, s{SEG}, {J_PER}")
    k(f"s_sub_u32 s{R}, s38, s39")
    k(f"s_cmp_ge_u32 s{R}, 8")
    k(f"s_cbranch_scc1 {L('b')}")
    k(f"s_lshl_b32 s{R}, s{R}, 2")
    k(f"s_add_u32 s{R}, s{R}, s{S_WAVE}")
    role_w3a(k, SEG, R, " sc1")
    k("s_waitcnt vmcnt(0)")
    k("s_barrier")
    k(f"s_cmp_lg_u32 s{S_WAVE}, 0")
    k(f"s_cbranch_scc1 {L('next')}")
    k("s_mov_b64 exec, 1")
    k(f"s_lshl_b32 s24, s{SEG}, 4")
    k(f"s_add_u32 s24, s24, {FL_WA}")
    k("v_mov_b32 v2, s24")
    k("v_mov_b32 v3, 1")
    k(f"buffer_atomic_add v3, v2, {srd}, s{fl_s} offen sc1")
    k("s_mov_b64 exec, -1")
    k(f"s_branch {L('next')}")
    lab('b')
    k(f"s_sub_u32 s{R}, s{R}, 8")
    role_w3b2(k, SEG, R, A_X1, out_srd, " sc1" if cfg.get('na') in (2, 3, 4) else "")
    k(f"s_branch {L('next')}")
    lab('giveup')
    k("s_mov_b64 exec, -1")
    k("v_mov_b32 v2, 0")
    k("v_mov_b32 v3, -1")
    k(f"ds_write_b32 v2, v3 offset:{JL_JOB}")
    k("s_waitcnt lgkmcnt(0)")
    k("s_barrier")
    k(f"s_branch {bail}")
    lab('done')
```

```python
import sys, math
sys.path.insert(0, "/code"); sys.path.insert(0, "tools")
from asmk import *
from lay import *

NSTEP = 64
SPIN = 400000
CSC = (192 ** -0.5) * math.log2(math.e)

class LQ:
    def __init__(self, k): self.k = k; self.q = []
    def ds(self, ins, tag=None):
        self.k(ins); self.q.append(tag)
        assert len(self.q) <= 15, "too many outstanding LDS ops"
    def wait(self, tag):
        idx = [i for i, t in enumerate(self.q) if t == tag]
        if not idx: return
        n = len(self.q) - 1 - idx[-1]
        self.k(f"s_waitcnt lgkmcnt({n})"); self.q = self.q[idx[-1] + 1:]
    def wait_many(self, tags):
        idx = [i for i, t in enumerate(self.q) if t in tags]
        if not idx: return
        n = len(self.q) - 1 - idx[-1]
        self.k(f"s_waitcnt lgkmcnt({n})"); self.q = self.q[idx[-1] + 1:]
    def all(self):
        self.k("s_waitcnt lgkmcnt(0)"); self.q = []

def vr(b, n): return f"v[{b}:{b+n-1}]" if n > 1 else f"v{b}"
def ar(b, n): return f"a[{b}:{b+n-1}]"

def check_valid(k, regs, tmp):
    regs = list(regs)
    k(f"v_max3_u32 v{tmp}, v{regs[0]}, v{regs[1]}, v{regs[2]}")
    rest = regs[3:]
    while len(rest) >= 2:
        k(f"v_max3_u32 v{tmp}, v{tmp}, v{rest[0]}, v{rest[1]}"); rest = rest[2:]
    if rest: k(f"v_max_u32 v{tmp}, v{tmp}, v{rest[0]}")
    k(f"v_cmp_eq_u32 vcc, -1, v{tmp}")

S_WS = 4
SRD = 8
S_ROLE = 12; S_WAVE = 13; S_STEP = 14; S_SPIN = 15
S_EB0 = 16; S_EB1 = 17
S_SB = 18
S_SBN = 19
S_T = 20
S_M8 = 40
S_M2 = 42
S_KX = 44; S_KM = 45; S_Z = 46
S_GK = 47
S_FL = 48
S_LAYER = 49
S_ST = 50
S_OSRD = 84
S_FD0 = 82; S_FD1 = 83
S_SBF = 88; S_SBNF = 89
srd = f"s[{SRD}:{SRD+3}]"

OWN = [[0, 1, 2], [3, 4, 5], [6, 7], [8, 9]]

def slot_base(k, dst, step_s, tmp, far=None):
    k(f"s_cmp_lt_u32 s{step_s}, 32")
    k(f"s_cselect_b32 s{dst}, s{S_EB0}, s{S_EB1}")
    if far is not None: k(f"s_cselect_b32 s{far}, s{S_FD0}, s{S_FD1}")
    k(f"s_and_b32 s{tmp}, s{step_s}, 31")
    k(f"s_lshl_b32 s{tmp}, s{tmp}, 16")
    k(f"s_add_u32 s{dst}, s{dst}, s{tmp}")
    if far is not None: k(f"s_add_u32 s{far}, s{far}, s{dst}")

def stamp(k, cfg, n, real=False):
    if cfg.get('stamp'):
        k(f"s_mem{'real' if real else ''}time s[{S_ST+2*n}:{S_ST+2*n+1}]")

def stamp_flush(k, cfg, nst, base_off):
    if not cfg.get('stamp'): return
    k("s_waitcnt lgkmcnt(0)")
    sk = k.uniq('stk')
    k(f"s_cmp_lg_u32 s{S_ROLE}, {cfg.get('stamp_role', 0)}")
    k(f"s_cbranch_scc1 {k.ref(sk)}")
    k("s_mov_b64 s[30:31], exec")
    k("s_mov_b64 exec, 1")
    k(f"s_lshl_b32 s32, s{S_STEP}, 6")
    k(f"s_add_u32 s32, s32, {base_off}")
    k("v_mov_b32 v253, 0")
    for n in range(nst):
        k(f"v_mov_b32 v254, s{S_ST+2*n}")
        k(f"buffer_store_dword v254, v253, {srd}, s32 offen offset:{4*n}")
        k("s_nop 1")
    k("s_mov_b64 exec, s[30:31]")
    k.lab(sk)

def rt(k, cfg, n):
    if cfg.get('rt'):
        k(f"s_memrealtime s[{S_ST+2*n}:{S_ST+2*n+1}]")

def rt_flush(k, cfg, rolebase):
    if not cfg.get('rt'): return
    k("s_waitcnt lgkmcnt(0)")
    k("s_mov_b64 exec, 1")
    k(f"s_add_u32 s32, s{S_ROLE}, {rolebase}")
    k("s_lshl_b32 s32, s32, 6")
    k(f"s_add_u32 s32, s32, s{S_STEP}")
    k(f"s_lshl_b32 s32, s32, {5 if cfg.get('rt2') else 4}")
    k(f"s_add_u32 s32, s32, {cfg['rt']}")
    k(f"s_mul_i32 s33, s{S_LAYER}, 0x200000")
    k("s_add_u32 s32, s32, s33")
    k("v_mov_b32 v253, 0")
    for n in range(8 if cfg.get('rt2') else 3):
        k(f"v_mov_b32 v254, s{S_ST+2*n}")
        k(f"buffer_store_dword v254, v253, {srd}, s32 offen offset:{4*n}")
        k("s_nop 1")
    k("s_mov_b64 exec, -1")

def spin_check(k, bail):
    k(f"s_sub_u32 s{S_SPIN}, s{S_SPIN}, 1")
    k(f"s_cbranch_scc1 {bail}")

def wait_progress(k, cfg, tag, step_s, voff, nl, vt):
    if not cfg.get('ovl'): return
    ok = k.ref(tag + '_ok'); lp = tag + '_lp'
    k(f"s_cmp_gt_u32 s{S_GK}, s{step_s}")
    k(f"s_cbranch_scc1 {ok}")
    k.lab(lp)
    k(f"buffer_load_dword v{vt}, v{voff}, {srd}, s{S_FL} offen sc1")
    k("s_waitcnt vmcnt(0)")
    k(f"v_readlane_b32 s{S_GK}, v{vt}, 0")
    if nl == 2:
        k(f"v_readlane_b32 s{S_T+9}, v{vt}, 1")
        k("s_nop 0")
        k(f"s_min_u32 s{S_GK}, s{S_GK}, s{S_T+9}")
    else:
        k("s_nop 0")
    spin_check(k, k.ref('bail'))
    k(f"s_cmp_gt_u32 s{S_GK}, s{step_s}")
    k(f"s_cbranch_scc0 {k.ref(lp)}")
    k.lab(tag + '_ok')

def flag_store(k, cfg, off_s, val_s, va, vb):
    k("s_mov_b64 exec, 1")
    k(f"v_mov_b32 v{va}, s{off_s}")
    k(f"v_mov_b32 v{vb}, s{val_s}")
    k(f"buffer_store_dword v{vb}, v{va}, {srd}, s{S_FL} offen sc1")
    k("s_mov_b64 exec, -1")


S_MK = 69
S_PM = 68

def poll_cont(k, tag, loads, regs, consume, tmp, dummy, bail):
    n = len(loads)
    for u in range(n): loads[u]()
    k(f"s_mov_b32 s{S_PM}, 0")
    k.lab(f"{tag}_lp")
    for u in range(n):
        k(f"s_waitcnt vmcnt({n - 1})")
        k(f"s_bitcmp1_b32 s{S_PM}, {u}")
        k(f"s_cbranch_scc1 {k.ref(f'{tag}_d{u}')}")
        check_valid(k, regs[u], tmp)
        k(f"s_bitset1_b32 s{S_PM}, {u}")
        k(f"s_cbranch_vccnz {k.ref(f'{tag}_r{u}')}")
        consume[u]()
        k(f"s_cmp_eq_u32 s{S_PM}, {(1 << n) - 1}")
        k(f"s_cbranch_scc1 {k.ref(f'{tag}_x')}")
        k.lab(f"{tag}_d{u}")
        k(f"buffer_load_dword v{dummy}, off, {srd}, s{S_SB} sc1")
        k(f"s_branch {k.ref(f'{tag}_n{u}')}")
        k.lab(f"{tag}_r{u}")
        k(f"s_bitset0_b32 s{S_PM}, {u}")
        loads[u]()
        k.lab(f"{tag}_n{u}")
    spin_check(k, bail)
    k(f"s_branch {k.ref(f'{tag}_lp')}")
    k.lab(f"{tag}_x")

PL_NL = 15
PL_WL = 0
PL_MEMI = 4 * PL_NL * 2048
PL_QI = PL_MEMI + 10240
PL_STR = 400
PL_KI = PL_QI + 8 * PL_STR
PL_SP = PL_KI + 8 * PL_STR
PL_STG = PL_SP + 4096
PL_END = PL_STG + 1024

V_L16 = 1; V_IDX = 2; V_IW = 3; V_QR = 4; V_KR = 5; V_SPR = 6; V_PX = 7; V_PM = 8; V_KXO = 9
V_KML = 10; V_KMG = 11; V_MASKF = 12; V_WLA = 13; V_MIA = 14; V_SPW = 15
V_GF = 255; V_T0 = 253; V_T1 = 254
AF = 16; PD = 56; PDX = 80; PDM = 84; QF = 88; KXF = 100; TB = 116; PVW = 148

P2_NL = 16
P2_MEMI = 4 * P2_NL * 2048
P2_QI = P2_MEMI + 10240
P2_KI = P2_QI + 8 * PL_STR
P2_ST = P2_KI + 8 * PL_STR
P2_END = P2_ST + 2048
P2_KXF = 100; P2_TB = 124; P2_PVW = 156
V_MG = 12; V_ST8 = 6

def p_plan2(w, cfg):
    own = OWN[w]; rest = [ks for ks in range(10) if ks not in own]
    seq = [(T, ks) for ks in own for T in (0, 1, 2)] + [(T, ks) for T in (0, 1, 2) for ks in rest]
    seq += [(T, ks) for T in (3, 4, 5) for ks in range(10)]
    ldspos = cfg.get('p2_lds', list(range(4, 28, 2)) + [31, 35, 39, 46])
    if cfg.get('p2s'):
        nfirst = cfg.get('p2_nf', 11)
        first = [(T, ks) for ks in own for T in (0, 1, 2)]
        fill = [(T, ks) for T in (3, 4, 5) for ks in own][:max(0, nfirst - len(first))]
        seq = first + fill + [(T, ks) for T in (0, 1, 2) for ks in rest]
        seq += [(T, ks) for T in (3, 4, 5) for ks in rest + own if (T, ks) not in fill]
        ldspos = cfg.get('p2_lds', [3, 7, 11, 15, 19, 23, 27, 31, 35, 39, 43, 47, 50, 53, 56, 58])
    assert len(ldspos) == P2_NL
    where = {}
    regops = [i for i in range(60) if i not in ldspos]
    for n, i in enumerate(regops):
        where[seq[i]] = ('a', 8 * n) if n < 32 else ('v', P2_PVW + 8 * (n - 32))
    assert P2_PVW + 8 * (len(regops) - 32) <= 252
    for n, i in enumerate(ldspos): where[seq[i]] = ('l', n)
    return own, rest, seq, ldspos, where

def p_plan(w, cfg=None):
    if cfg and cfg.get('p2'): return p_plan2(w, cfg)
    own = OWN[w]; rest = [ks for ks in range(10) if ks not in own]
    order1 = own + rest
    seq = [(T, ks) for ks in order1 for T in (0, 1, 2)] + [(T, ks) for T in (3, 4, 5) for ks in range(10)]
    ldspos = list(range(9, 30, 2)) + [44, 48, 52, 56]
    assert len(ldspos) == PL_NL
    where = {}
    regops = [i for i in range(60) if i not in ldspos]
    for n, i in enumerate(regops):
        where[seq[i]] = ('a', 8 * n) if n < 32 else ('v', PVW + 8 * (n - 32))
    assert PVW + 8 * (len(regops) - 32) <= 254
    for n, i in enumerate(ldspos): where[seq[i]] = ('l', n)
    return own, rest, seq, ldspos, where

def p_setup_lanes(k):
    k(f"v_lshlrev_b32 v{V_L16}, 4, v0")
    k("v_and_b32 v16, 8, v0")
    k("v_cmp_eq_u32 vcc, 0, v16")
    k("v_mov_b32 v17, 0xeeeeeeee")
    k("v_mov_b32 v18, 0x44444444")
    k(f"v_cndmask_b32 v{V_IDX}, v17, v18, vcc")

def gen_p_wave(k, w, cfg):
    own, rest, seq, ldspos, where = p_plan(w, cfg)
    L = lambda s: k.ref(f"p{w}_{s}")
    lab = lambda s: k.lab(f"p{w}_{s}")
    bail = k.ref('bail')
    lq = LQ(k)
    lab('start')
    k("v_lshrrev_b32 v16, 4, v0")
    k("v_and_b32 v17, 15, v0")
    k("v_and_b32 v18, 1, v16")
    k("v_lshlrev_b32 v18, 2, v18")
    k("v_lshrrev_b32 v19, 1, v16")
    k("v_lshl_add_u32 v18, v19, 1, v18")
    k(f"v_mul_u32_u24 v18, {PL_STR}, v18")
    k("v_lshl_add_u32 v18, v17, 1, v18")
    k(f"v_add_u32 v{V_IW}, {PL_QI + 96 * w}, v18")
    k("v_and_b32 v18, 7, v0")
    k(f"v_mul_u32_u24 v18, {PL_STR}, v18")
    k("v_lshrrev_b32 v19, 3, v0")
    k("v_lshl_add_u32 v18, v19, 4, v18")
    k(f"v_add_u32 v{V_QR}, {PL_QI}, v18")
    k("v_and_b32 v18, 7, v0")
    k(f"v_mul_u32_u24 v18, {PL_STR}, v18")
    k("v_lshl_add_u32 v18, v16, 5, v18")
    k(f"v_add_u32 v{V_KR}, {PL_KI}, v18")
    k("v_lshrrev_b32 v18, 1, v16")
    k("v_lshlrev_b32 v18, 10, v18")
    k("v_and_b32 v19, 31, v0")
    k("v_lshl_add_u32 v18, v19, 4, v18")
    k(f"v_add_u32 v{V_SPR}, {PL_SP + 4 * w}, v18")
    k(f"v_add_u32 v{V_SPW}, {PL_SP + 1024 * w}, v{V_L16}")
    k("v_lshrrev_b32 v18, 1, v16")
    k("v_lshlrev_b32 v18, 1, v18")
    k("v_lshrrev_b32 v19, 3, v17")
    k("v_add3_u32 v18, v18, v19, 1")
    k("v_lshrrev_b32 v19, 1, v18")
    k("v_lshlrev_b32 v19, 14, v19")
    k("v_and_b32 v18, 1, v18")
    k("v_lshl_add_u32 v18, v18, 12, v19")
    k("v_and_b32 v19, 1, v16")
    k("v_lshlrev_b32 v19, 4, v19")
    k(f"v_add_u32 v19, {32 * w}, v19")
    k(f"s_lshl_b32 s{S_T}, s{S_ROLE}, 7")
    k(f"v_add_u32 v{V_PM}, s{S_T}, v19")
    k(f"v_add_u32 v{V_PX}, v{V_PM}, v18")
    if cfg.get('pgather'):
        k("v_lshrrev_b32 v18, 1, v16")
        k("v_lshlrev_b32 v18, 1, v18")
        k("v_lshrrev_b32 v20, 3, v17")
        k("v_add3_u32 v18, v18, v20, 1")
        k(f"v_add_u32 v{V_PM}, {PL_STG}, v19")
        k(f"v_lshl_add_u32 v{V_PX}, v18, 7, v{V_PM}")
        k("v_lshrrev_b32 v18, 3, v0")
        k("v_lshrrev_b32 v19, 1, v18")
        k("v_lshlrev_b32 v19, 14, v19")
        k("v_and_b32 v18, 1, v18")
        k("v_lshl_add_u32 v18, v18, 12, v19")
        k("v_and_b32 v19, 7, v0")
        k("v_lshl_add_u32 v18, v19, 4, v18")
        k(f"v_add_u32 v252, s{S_T}, v18")
    k(f"v_lshlrev_b32 v18, 4, v17")
    k("v_lshl_add_u32 v18, v16, 10, v18")
    k(f"v_add_u32 v{V_KXO}, {16 * (w & 1) * 16}, v18")
    k(f"v_add_u32 v18, {64 * w}, v0")
    k("v_mul_u32_u24 v19, 2731, v18")
    k("v_lshrrev_b32 v19, 16, v19")
    k("v_mul_u32_u24 v20, 24, v19")
    k("v_sub_u32 v20, v18, v20")
    k(f"v_mul_u32_u24 v21, {PL_STR}, v19")
    k("v_lshl_add_u32 v21, v20, 4, v21")
    k(f"v_add_u32 v{V_KML}, {PL_KI}, v21")
    k("v_lshlrev_b32 v21, 4, v19")
    k(f"v_lshl_add_u32 v{V_KMG}, v20, 7, v21")
    k("v_and_b32 v18, 0x28, v0")
    k("v_cmp_eq_u32 vcc, 0, v18")
    k("v_mov_b32 v18, 1.0")
    k("v_mov_b32 v19, 0")
    k(f"v_cndmask_b32 v{V_MASKF}, v19, v18, vcc")
    k(f"v_add_u32 v{V_WLA}, {PL_WL + w * PL_NL * 2048}, v{V_L16}")
    k(f"v_add_u32 v{V_MIA}, {PL_MEMI}, v{V_L16}")
    k(f"s_mul_i32 s{S_KX}, s{S_ROLE}, {KX_SH}")
    k(f"s_add_u32 s{S_KX}, s{S_KX}, {KX}")
    k(f"s_mul_i32 s{S_KM}, s{S_ROLE}, {KM_SH}")
    k(f"s_add_u32 s{S_KM}, s{S_KM}, {KM}")
    if cfg.get('ovl'):
        k(f"s_mul_i32 s{S_T}, s{S_ROLE}, 6")
        k(f"s_add_u32 s{S_T+1}, s{S_T}, 5")
        k(f"s_lshr_b32 s{S_T}, s{S_T}, 3")
        k(f"s_lshr_b32 s{S_T+1}, s{S_T+1}, 3")
        k(f"s_add_u32 s{S_T}, s{S_T}, 80"); k(f"s_add_u32 s{S_T+1}, s{S_T+1}, 80")
        k(f"s_lshl_b32 s{S_T}, s{S_T}, 7"); k(f"s_lshl_b32 s{S_T+1}, s{S_T+1}, 7")
        k(f"v_mov_b32 v{V_GF}, s{S_T+1}")
        k(f"v_mov_b32 v{V_T0}, s{S_T}")
        k("v_cmp_eq_u32 vcc, 0, v0")
        k("s_nop 1")
        k(f"v_cndmask_b32 v{V_GF}, v{V_GF}, v{V_T0}, vcc")
        k(f"s_mov_b32 s{S_GK}, 0")
    k(f"s_mul_i32 s{S_T}, s{S_ROLE}, 491520")
    k(f"s_add_u32 s{S_T}, s{S_T}, {WP + w * 122880}")
    WIN = cfg.get('winp', cfg.get('win'))
    nld = [0]
    def wload(dst, T, ks):
        idx = T * 10 + ks
        k(f"s_add_u32 s{S_T+1}, s{S_T}, {idx * 2048}")
        for hi in range(2):
            k(f"buffer_load_dwordx4 {dst(hi)}, v{V_L16}, {srd}, s{S_T+1} offen offset:{hi*1024}")
            nld[0] += 1
            if WIN and nld[0] > WIN: k(f"s_waitcnt vmcnt({WIN})")
    lops = [(op, wh[1]) for op, wh in where.items() if wh[0] == 'l']
    SEMI = cfg.get('na') == 4
    rops = [(op, wh) for op, wh in where.items() if wh[0] != 'l' and not (SEMI and wh[0] == 'a' and wh[1] // 8 < cfg.get('npf', 64) // 2)]
    for (T, ks), slot in lops:
        wload(lambda hi: vr(16 + 8 * slot + 4 * hi, 4), T, ks)
    nre = 0
    for (T, ks), wh in rops[:16]:
        wload((lambda hi, wh=wh: (ar if wh[0] == 'a' else vr)(wh[1] + 4 * hi, 4)), T, ks)
    k(f"s_waitcnt vmcnt({2 * len(rops[:16])})")
    for (T, ks), slot in lops:
        for hi in range(2):
            k(f"ds_write_b128 v{V_WLA}, {vr(16 + 8 * slot + 4 * hi, 4)} offset:{slot * 2048 + hi * 1024}")
    for (T, ks), wh in rops[16:]:
        wload((lambda hi, wh=wh: (ar if wh[0] == 'a' else vr)(wh[1] + 4 * hi, 4)), T, ks)
    k("s_waitcnt lgkmcnt(0)")
    kxset = [0, 1] if w < 2 else [2]
    SC1 = " sc1" if cfg.get('ovl') else ""
    npf = [0]
    def kx_prefetch(step_s):
        npf[0] += 1
        wait_progress(k, cfg, f"p{w}_gw{npf[0]}", step_s, V_GF, 2, V_T0)
        k(f"s_mul_i32 s{S_T}, s{step_s}, {32 * KX_SH}")
        k(f"s_add_u32 s{S_T}, s{S_T}, s{S_KX}")
        for u, ks in enumerate(kxset):
            k(f"s_add_u32 s{S_T+1}, s{S_T}, {ks * 4096}")
            for hi in range(2):
                k(f"buffer_load_dwordx4 {vr(KXF + 8 * u + 4 * hi, 4)}, v{V_KXO}, {srd}, s{S_T+1} offen offset:{hi * 512}{SC1}")
    def tb_read(n):
        for hi in range(2):
            lq.ds(f"ds_read_b128 {vr(TB + 8 * (n % 4) + 4 * hi, 4)}, v{V_WLA} offset:{n * 2048 + hi * 1024}", ('tb', n))
    def zero_d():
        for r in range(PD, PD + 32): k(f"v_mov_b32 v{r}, 0")
    k(f"s_mov_b32 s{S_STEP}, 0")
    kx_prefetch(S_STEP)
    zero_d()
    for n in range(4): tb_read(n)
    lq.all()
    lab('step')
    slot_base(k, S_SB, S_STEP, S_T)
    for u, ks in enumerate(own):
        k(f"s_add_u32 s{S_T+2+u}, s{S_SB}, {physmap(M_LOG + 1024 * ks)}")
    if cfg.get('mark') is not None and w == 0:
        k(f"s_lshr_b32 s{S_MK}, s{S_ROLE}, 1")
        k(f"s_lshl_b32 s{S_MK}, s{S_MK}, 7")
        k(f"s_and_b32 s{S_T}, s{S_ROLE}, 1")
        k(f"s_lshl_b32 s{S_T}, s{S_T}, 2")
        k(f"s_add_u32 s{S_MK}, s{S_MK}, s{S_T}")
        k(f"s_add_u32 s{S_MK}, s{S_MK}, s{S_SB}")
        k(f"s_add_u32 s{S_MK}, s{S_MK}, {physmap(MARK_LOG)}")
    stamp(k, cfg, 0)
    if cfg.get('cpoll', 0):
        poll_cont(k, f"p{w}_mp",
                  [lambda u=u, ks=ks: k(f"buffer_load_dwordx4 {vr(AF + 4 * ks, 4)}, v{V_L16}, {srd}, s{S_T+2+u} offen sc1") for u, ks in enumerate(own)],
                  [[AF + 4 * ks + j for j in range(4)] for ks in own],
                  [lambda ks=ks: k(f"ds_write_b128 v{V_MIA}, {vr(AF + 4 * ks, 4)} offset:{ks * 1024}") for ks in own],
                  QF, 252, bail)
    else:
        lab('poll')
        for u, ks in enumerate(own):
            k(f"buffer_load_dwordx4 {vr(AF + 4 * ks, 4)}, v{V_L16}, {srd}, s{S_T+2+u} offen sc1")
        k("s_waitcnt vmcnt(0)")
        for ks in own:
            k(f"ds_write_b128 v{V_MIA}, {vr(AF + 4 * ks, 4)} offset:{ks * 1024}")
        check_valid(k, [AF + 4 * ks + j for ks in own for j in range(4)], QF)
        spin_check(k, bail)
        k(f"s_cbranch_vccnz {L('poll')}")
    lq.all()
    k("s_barrier")
    stamp(k, cfg, 1)
    if w == 0: rt(k, cfg, 0)
    for ks in rest:
        lq.ds(f"ds_read_b128 {vr(AF + 4 * ks, 4)}, v{V_MIA} offset:{ks * 1024}", ('af', ks))
    def post_tile(T, base):
        d = PD + 4 * T
        col = 32 * (T % 3)
        return [
            lambda: k(f"v_permlane32_swap_b32 v{d}, v{d+2}"),
            lambda: k(f"v_permlane32_swap_b32 v{d+1}, v{d+3}"),
            lambda: k(f"v_add_f32 v{d}, v{d}, v{d+2}"),
            lambda: k(f"v_add_f32 v{d+1}, v{d+1}, v{d+3}"),
            lambda: k(f"v_cvt_pk_bf16_f32 v{d}, v{d}, v{d+1}"),
            lambda: lq.ds(f"ds_write_b16 v{V_IW}, v{d} offset:{base + col}", ('img', T)),
            lambda: lq.ds(f"ds_write_b16_d16_hi v{V_IW}, v{d} offset:{base + col + PL_STR}", ('img', T)),
        ]
    MK = cfg.get('mark', None)
    def mark():
        if w != 0: return
        k(f"buffer_store_dword v{V_L16}, off, {srd}, s{S_MK} sc1")
    side = {i: [] for i in range(60)}
    if isinstance(MK, int): side[MK].append(mark)
    def put(items, start, per=2):
        i = start
        for it in items:
            while len(side[i]) >= per: i += 1
            side[i].append(it)
        return i
    KO = PL_KI - PL_QI
    e = put(post_tile(0, 0) + post_tile(1, 0) + post_tile(2, 0), 31)
    b1 = e + 2
    side[b1].append(lambda: (lq.wait(('img', 2)), k("s_barrier")))
    for ks in range(3):
        side[b1 + (ks > 0)].append(lambda ks=ks: lq.ds(f"ds_read_b128 {vr(QF + 4 * ks, 4)}, v{V_QR} offset:{ks * 128}", ('qf', ks)))
    put(post_tile(3, KO), b1 + 2)
    sx = b1 + 6
    def smx():
        lq.wait(('qf', 2))
        for u, ks in enumerate(kxset):
            k(f"v_smfmac_f32_16x16x64_bf16 {vr(PDX, 4)}, {vr(QF + 4 * ks, 4)}, {vr(KXF + 8 * u, 8)}, v{V_IDX}")
    side[sx].append(smx)
    put(post_tile(4, KO), 52)
    side[min(sx + 4, 58)].append(lambda: lq.ds(f"ds_write_b128 v{V_SPW}, {vr(PDX, 4)}", 'sp'))
    for i, (T, ks) in enumerate(seq):
        wh = where[(T, ks)]
        if i < 30 and ks in rest: lq.wait(('af', ks))
        if wh[0] == 'l':
            lq.wait(('tb', wh[1]))
            b = vr(TB + 8 * (wh[1] % 4), 8)
        else:
            b = (ar if wh[0] == 'a' else vr)(wh[1], 8)
        k(f"v_smfmac_f32_16x16x64_bf16 {vr(PD + 4 * T, 4)}, {vr(AF + 4 * ks, 4)}, {b}, v{V_IDX}")
        if wh[0] == 'l' and wh[1] + 4 < PL_NL:
            tb_read(wh[1] + 4)
        for it in side[i]: it()
        if i == 29: stamp(k, cfg, 2)
        if i == b1: stamp(k, cfg, 3)
    stamp(k, cfg, 4)
    k("s_nop 7")
    for it in post_tile(5, KO): it()
    lq.all()
    k("s_barrier")
    if MK == 'b3': mark()
    stamp(k, cfg, 5)
    KF = AF
    X0 = AF + 24
    lq.ds(f"ds_read2st64_b32 {vr(X0, 2)}, v{V_SPR} offset0:0 offset1:2", 'sp0')
    lq.ds(f"ds_read2st64_b32 {vr(X0 + 2, 2)}, v{V_SPR} offset0:8 offset1:10", 'sp1')
    for ks in range(3):
        for hi in range(2):
            lq.ds(f"ds_read_b128 {vr(KF + 8 * ks + 4 * hi, 4)}, v{V_KR} offset:{ks * 128 + hi * 16}", ('kf', ks))
    sx_, mx, t, u, sm, ex, em, tot = X0 + 4, X0 + 5, X0 + 6, X0 + 7, X0 + 8, X0 + 9, X0 + 10, X0 + 11
    lq.wait('sp1')
    k(f"v_add_f32 v{X0}, v{X0}, v{X0+1}")
    k(f"v_add_f32 v{X0+2}, v{X0+2}, v{X0+3}")
    k(f"v_add_f32 v{sx_}, v{X0}, v{X0+2}")
    k(f"v_mul_f32 v{sx_}, {hexf(CSC)}, v{sx_}")
    for ks in range(3):
        lq.wait(('kf', ks))
        k(f"v_smfmac_f32_16x16x64_bf16 {vr(PDM, 4)}, {vr(QF + 4 * ks, 4)}, {vr(KF + 8 * ks, 8)}, v{V_IDX}")
    if MK == 's6': mark()
    stamp(k, cfg, 6)
    def dpp(op, dst, src, ctl):
        k(f"{op} v{dst}, v{src}, v{src} {ctl} row_mask:0xf bank_mask:0xf")
    dpp("v_max_f32_dpp", mx, sx_, "row_ror:8"); k("s_nop 1")
    dpp("v_max_f32_dpp", mx, mx, "row_ror:4"); k("s_nop 1")
    dpp("v_max_f32_dpp", mx, mx, "row_ror:2"); k("s_nop 1")
    dpp("v_max_f32_dpp", mx, mx, "row_ror:1")
    k(f"v_mov_b32 v{u}, v{mx}")
    k("s_nop 1")
    k(f"v_permlane32_swap_b32 v{mx}, v{u}")
    k(f"v_max_f32 v{mx}, v{mx}, v{u}")
    dm = PDM + w
    k(f"v_mov_b32 v{u}, v{dm}")
    k("s_nop 1")
    k(f"v_permlane32_swap_b32 v{dm}, v{u}")
    k(f"v_add_f32 v{sm}, v{dm}, v{u}")
    k(f"v_mul_f32 v{sm}, {hexf(CSC)}, v{sm}")
    k("s_nop 1")
    dpp("v_max_f32_dpp", t, sm, "row_ror:4"); k("s_nop 1")
    dpp("v_max_f32_dpp", t, t, "row_ror:2"); k("s_nop 1")
    dpp("v_max_f32_dpp", t, t, "row_ror:1")
    k(f"v_max_f32 v{mx}, v{mx}, v{t}")
    k(f"v_sub_f32 v{ex}, v{sx_}, v{mx}")
    k(f"v_sub_f32 v{em}, v{sm}, v{mx}")
    k(f"v_exp_f32 v{ex}, v{ex}")
    k(f"v_exp_f32 v{em}, v{em}")
    k("s_nop 0")
    k(f"v_fma_f32 v{tot}, v{em}, v{V_MASKF}, v{ex}")
    k("s_nop 1")
    dpp("v_add_f32_dpp", tot, tot, "row_ror:8"); k("s_nop 1")
    dpp("v_add_f32_dpp", tot, tot, "row_ror:4"); k("s_nop 1")
    dpp("v_add_f32_dpp", tot, tot, "row_ror:2"); k("s_nop 1")
    dpp("v_add_f32_dpp", tot, tot, "row_ror:1")
    k(f"v_mov_b32 v{u}, v{tot}")
    k("s_nop 1")
    k(f"v_permlane32_swap_b32 v{tot}, v{u}")
    k(f"v_add_f32 v{tot}, v{tot}, v{u}")
    k(f"v_rcp_f32 v{tot}, v{tot}")
    k("s_nop 0")
    k(f"v_mul_f32 v{ex}, v{ex}, v{tot}")
    k(f"v_mul_f32 v{em}, v{em}, v{tot}")
    ox, om = KF, KF + 4
    k("s_nop 0")
    k(f"v_mov_b32_dpp v{t}, v{ex} quad_perm:[1,0,3,2] row_mask:0xf bank_mask:0xf")
    k(f"v_mov_b32_dpp v{u}, v{em} quad_perm:[1,0,3,2] row_mask:0xf bank_mask:0xf")
    k(f"v_cvt_pk_bf16_f32 v{ox}, v{ex}, v{t}")
    k(f"v_cvt_pk_bf16_f32 v{om}, v{em}, v{u}")
    k("s_nop 0")
    for j in range(1, 4):
        k(f"v_mov_b32_dpp v{ox+j}, v{ox} row_shl:{2*j} row_mask:0xf bank_mask:0xf")
    for j in range(1, 4):
        k(f"v_mov_b32_dpp v{om+j}, v{om} row_shl:{2*j} row_mask:0xf bank_mask:0xf")
    if cfg.get('pgather'):
        k(f"s_mov_b64 exec, s[{S_M8}:{S_M8+1}]")
        k(f"ds_write_b128 v{V_PX}, {vr(ox, 4)}")
        k(f"s_mov_b64 exec, s[{S_M2}:{S_M2+1}]")
        k(f"ds_write_b128 v{V_PM}, {vr(om, 4)}")
        k("s_mov_b64 exec, -1")
        k("s_waitcnt lgkmcnt(0)")
        k("s_barrier")
        if w == 0:
            k("s_mov_b32 exec_hi, 0xff")
            k(f"ds_read_b128 {vr(ox, 4)}, v{V_SPW} offset:4096")
            k("s_waitcnt lgkmcnt(0)")
            k(f"buffer_store_dwordx4 {vr(ox, 4)}, v252, {srd}, s{S_SB} offen sc1")
            k("s_mov_b64 exec, -1")
    else:
        k(f"s_mov_b64 exec, s[{S_M8}:{S_M8+1}]")
        k(f"buffer_store_dwordx4 {vr(ox, 4)}, v{V_PX}, {srd}, s{S_SB} offen sc1")
        k(f"s_mov_b64 exec, s[{S_M2}:{S_M2+1}]")
        k(f"buffer_store_dwordx4 {vr(om, 4)}, v{V_PM}, {srd}, s{S_SB} offen sc1")
        k("s_mov_b64 exec, -1")
    stamp(k, cfg, 7)
    stamp(k, cfg, 8, True)
    if w == 0: rt(k, cfg, 1)
    if w < 3:
        lq.ds(f"ds_read_b128 {vr(X0, 4)}, v{V_KML}", 'km')
    k(f"s_add_u32 s{S_T+8}, s{S_STEP}, 1")
    k(f"s_min_u32 s{S_T+8}, s{S_T+8}, {NSTEP-1}")
    kx_prefetch(S_T + 8)
    zero_d()
    if w < 3:
        lq.wait('km')
        k(f"s_mul_i32 s{S_T}, s{S_STEP}, {32 * KM_SH}")
        k(f"s_add_u32 s{S_T}, s{S_T}, s{S_KM}")
        k(f"buffer_store_dwordx4 {vr(X0, 4)}, v{V_KMG}, {srd}, s{S_T} offen{SC1}")
    if w == 3 and cfg.get('ovl'):
        k(f"s_lshl_b32 s{S_T}, s{S_ROLE}, 7")
        k(f"s_add_u32 s{S_T}, s{S_T}, {FL_PF}")
        flag_store(k, cfg, S_T, S_STEP, V_T0, V_T1)
    for n in range(4): tb_read(n)
    lq.all()
    if cfg.get('pack', 0):
        k("s_waitcnt vmcnt(0)")
        k("s_barrier")
    if w == 0: rt_flush(k, cfg, 0)
    if w == cfg.get('stamp_wave', 0): stamp_flush(k, cfg, 9, cfg.get('stamp_p', 0))
    k(f"s_add_u32 s{S_STEP}, s{S_STEP}, 1")
    k(f"s_cmp_lt_u32 s{S_STEP}, {NSTEP}")
    k(f"s_cbranch_scc1 {L('step')}")
    if cfg.get('ovl'):
        k("s_waitcnt vmcnt(0)")
        k("s_barrier")
        if w == 3:
            k(f"s_lshl_b32 s{S_T}, s{S_ROLE}, 7")
            k(f"s_add_u32 s{S_T}, s{S_T}, {FL_PF}")
            flag_store(k, cfg, S_T, S_STEP, V_T0, V_T1)
    k(f"s_branch {k.ref('end')}")

def p2_sched(k, w, cfg, lq, own, rest, seq, ldspos, where, tb_read_items, fix=None):
    KXF = P2_KXF; TB = P2_TB; NL = P2_NL
    kt = w & 1; tp = w >> 1
    KO = P2_KI - P2_QI
    NB0 = cfg.get('p2_b0', 4)
    LR = cfg.get('p2_lr', 6)
    LW = cfg.get('p2_lw', 4)
    PR = cfg.get('p2_pr') or []
    BIG = 100
    ds = [None] * BIG; va = [None] * BIG; bar = [None] * BIG
    def first(start, ok):
        p = start
        while not ok(p): p += 1
        return p
    def put_r(fn, start):
        p = first(start, lambda p: ds[p] is None and bar[p] is None); ds[p] = ('r', fn); return p
    def put_v(fn, start):
        p = first(start, lambda p: va[p] is None and not (ds[p] and ds[p][0] == 'w')); va[p] = fn; return p
    def put_w(fn, start):
        p = first(start, lambda p: ds[p] is None and va[p] is None and bar[p] is None); ds[p] = ('w', fn); return p
    def put_b(tag, start, fn=None):
        p = first(start, lambda p: ds[p] is None and bar[p] is None); bar[p] = (tag, fn); return p
    def post(T, start):
        d = PD + 4 * T; col = 128 * (T % 3); base = 0 if T < 3 else KO
        p = put_v(lambda: k(f"v_add_f32 v{d}, v{d}, v{d+2}"), start)
        p = put_v(lambda: k(f"v_add_f32 v{d+1}, v{d+1}, v{d+3}"), p + 1)
        p = put_v(lambda: k(f"v_cvt_pk_bf16_f32 v{d}, v{d}, v{d+1}"), p + 1)
        p = put_w(lambda: lq.ds(f"ds_write_b16 v{V_IW}, v{d} offset:{base + col}", ('img', T)), p + 1)
        p = put_w(lambda: lq.ds(f"ds_write_b16_d16_hi v{V_IW}, v{d} offset:{base + col + PL_STR}", ('img', T)), p + 1)
        return p
    def dpp(op, dst, src, ctl):
        k(f"{op} v{dst}, v{src}, v{src} {ctl} row_mask:0xf bank_mask:0xf")
    last = {T: max(i for i, op in enumerate(seq) if op[0] == T) for T in range(6)}
    put_b('mw', NB0, lambda: (stamp(k, cfg, 1), rt(k, cfg, 0) if w == 0 else None))
    p = NB0
    afpos = {}
    for ks in rest:
        p = put_r(lambda ks=ks: lq.ds(f"ds_read_b128 {vr(AF + 4 * ks, 4)}, v{V_MIA} offset:{ks * 1024}", ('af', ks)), p + 1); afpos[ks] = p
    for ks in rest:
        u = min(i for i, op in enumerate(seq) if op[1] == ks)
        assert u - afpos[ks] >= LR - 1, (w, ks, u, afpos[ks])
    e2 = post(2, last[2] + 2)
    e0 = post(0, last[0] + 2); e1 = post(1, last[1] + 2)
    b1 = put_b(('img', 2), max(e2 + LW, e0 + LW, e1 + LW, fix['b1'] if fix else 0))
    p = b1; qpos = []
    for ks in range(3):
        p = put_r(lambda ks=ks: lq.ds(f"ds_read_b128 {vr(QF + 4 * ks, 4)}, v{V_QR} offset:{ks * 128}", ('qf', ks)), p + 1); qpos.append(p)
    sxi = qpos[0] + LR - 1
    assert qpos[2] + LR <= sxi + 3 + 1
    mf = []
    for i, op in enumerate(seq):
        mf.append(('m', i))
        if i == sxi: mf += [('x', 0), ('x', 1), ('x', 2)]
    NP = len(mf)
    pos = lambda i: i if i <= sxi else i + 3
    e4 = post(4, pos(last[4]) + 2)
    e3 = post(3, pos(last[3]) + 2)
    XS, XM, XL, XE = PD, PD + 2, PD + 3, PD + 4
    xch = [
        lambda: k(f"v_add_f32 v{XS}, v{PDX + tp}, v{PDX + tp + 2}"), lambda: k(f"v_mul_f32 v{XS}, {hexf(CSC)}, v{XS}"),
        lambda: dpp("v_max_f32_dpp", XM, XS, "row_ror:8"), lambda: dpp("v_max_f32_dpp", XM, XM, "row_ror:4"),
        lambda: dpp("v_max_f32_dpp", XM, XM, "row_ror:2"), lambda: dpp("v_max_f32_dpp", XM, XM, "row_ror:1"),
        lambda: k(f"v_sub_f32 v{XE}, v{XS}, v{XM}"), lambda: k(f"v_exp_f32 v{XE}, v{XE}"),
        lambda: dpp("v_add_f32_dpp", XL, XE, "row_ror:8"), lambda: dpp("v_add_f32_dpp", XL, XL, "row_ror:4"),
        lambda: dpp("v_add_f32_dpp", XL, XL, "row_ror:2"), lambda: dpp("v_add_f32_dpp", XL, XL, "row_ror:1")]
    p = sxi + 3 + 1
    late = []
    for fn in xch:
        p = put_v(fn, p + 1)
        if p >= NP: late.append(fn); va[p] = None
    bk = put_b(('img', 4), max(max(e4, e3) + cfg.get('p2_lwk', LW), fix['bk'] if fix and 'bk' in fix else 0))
    assert max(e3, e4) < NP, (w, e3, e4)
    if not fix or 'bk' not in fix: return dict(b1=b1, bk=bk)
    assert b1 == fix['b1'] and bk == fix['bk'], (w, b1, bk, fix)
    kin = bk < NP
    kfr = [lambda ks=ks, hi=hi: lq.ds(f"ds_read_b128 {vr(KXF + 8 * ks + 4 * hi, 4)}, v{V_KR} offset:{ks * 128 + hi * 16}", ('kf', ks)) for ks in range(3) for hi in range(2)]
    klate = []
    if kin:
        p = bk
        for fn in kfr[:4]:
            p = put_r(fn, p + 1)
            if p >= NP: klate.append(fn); ds[p] = None
    else: bar[bk] = None
    rdat = cfg.get('p2_rd')
    for n in range(NL - 4):
        p = max(pos(ldspos[n]), rdat[n] if rdat else 0) - 1
        for fn in tb_read_items(n + 4): p = put_r(fn, p + 1)
        assert p + LR <= pos(ldspos[n + 4]), (w, n, p, pos(ldspos[n + 4]))
    if cfg.get('p2_dump') == w:
        print("wave", w, "last", last, "b1", b1, "sxi", sxi, "bk", bk, "late", len(late), "klate", len(klate))
        print("".join((ds[p][0] if ds[p] else ('B' if bar[p] else '.')) for p in range(NP)))
        print("".join(('v' if va[p] else '.') for p in range(NP)))
    def need(m):
        if m[0] == 'x': return [('qf', m[1])]
        T, ks = seq[m[1]]; wh = where[(T, ks)]; t = []
        if ks in rest: t.append(('af', ks))
        if wh[0] == 'l': t.append(('tb', wh[1]))
        return t
    for p, m in enumerate(mf):
        if m[0] == 'x':
            k(f"v_smfmac_f32_16x16x64_bf16 {vr(PDX, 4)}, {vr(QF + 4 * m[1], 4)}, {vr(KXF + 8 * m[1], 8)}, v{V_IDX}")
        else:
            T, ks = seq[m[1]]; wh = where[(T, ks)]
            b = vr(TB + 8 * (wh[1] % 4), 8) if wh[0] == 'l' else (ar if wh[0] == 'a' else vr)(wh[1], 8)
            k(f"v_smfmac_f32_16x16x64_bf16 {vr(PD + 4 * T, 4)}, {vr(AF + 4 * ks, 4)}, {b}, v{V_IDX}")
        tags = need(mf[p + 1]) if p + 1 < NP else []
        if bar[p]: tags = tags + [bar[p][0]]
        lq.wait_many(tags)
        if bar[p]:
            k("s_barrier")
            if bar[p][1]: bar[p][1]()
        if ds[p]: ds[p][1]()
        if va[p]: va[p]()
        if p in PR: stamp(k, cfg, 2 + PR.index(p))
    if len(PR) < 3: stamp(k, cfg, 4)
    ns = 0
    for fn in klate: fn(); ns += 1
    for n, fn in enumerate(late):
        if n == 0 and ns == 0: k("s_nop 0"); ns += 1
        fn(); ns += 1
        if n + 1 < len(late): k("s_nop 1"); ns += 2
    if ns < 8: k(f"s_nop {7 - ns}")
    d = PD + 20
    k(f"v_add_f32 v{d}, v{d}, v{d+2}")
    k(f"v_add_f32 v{d+1}, v{d+1}, v{d+3}")
    k(f"v_cvt_pk_bf16_f32 v{d}, v{d}, v{d+1}")
    lq.ds(f"ds_write_b16 v{V_IW}, v{d} offset:{KO + 256}", ('img', 5))
    lq.ds(f"ds_write_b16_d16_hi v{V_IW}, v{d} offset:{KO + 256 + PL_STR}", ('img', 5))
    lq.ds(f"ds_write_b64 v{V_ST8}, {vr(XM, 2)} offset:{512 * w}", 'st')
    smm = lambda ks: k(f"v_smfmac_f32_16x16x64_bf16 {vr(PDM, 4)}, {vr(QF + 4 * ks, 4)}, {vr(KXF + 8 * ks, 8)}, v{V_IDX}")
    if kin:
        for ks in range(2):
            lq.wait(('kf', ks)); smm(ks)
    lq.all()
    k("s_barrier")
    if len(PR) <= 3: stamp(k, cfg, 5)
    OM = AF
    if kin:
        for fn in kfr[4:]: fn()
        lq.ds(f"ds_read_b64 {vr(OM, 2)}, v{V_ST8} offset:{512 * (w ^ 1)}", 'so')
        lq.wait(('kf', 2)); smm(2)
    else:
        for fn in kfr: fn()
        lq.ds(f"ds_read_b64 {vr(OM, 2)}, v{V_ST8} offset:{512 * (w ^ 1)}", 'so')
        for ks in range(3):
            lq.wait(('kf', ks)); smm(ks)
    if len(PR) <= 3: stamp(k, cfg, 6)

def gen_p_wave2(k, w, cfg):
    own, rest, seq, ldspos, where = p_plan2(w, cfg)
    NL = P2_NL; KXF = P2_KXF; TB = P2_TB
    kt = w & 1; tp = w >> 1
    L = lambda s: k.ref(f"p{w}_{s}")
    lab = lambda s: k.lab(f"p{w}_{s}")
    bail = k.ref('bail')
    lq = LQ(k)
    lab('start')
    k("v_lshrrev_b32 v16, 4, v0")
    k("v_and_b32 v17, 15, v0")
    k("v_and_b32 v18, 2, v0")
    k("v_cmp_eq_u32 vcc, 0, v18")
    k("v_mov_b32 v18, 0xeeeeeeee")
    k("v_mov_b32 v19, 0x44444444")
    k(f"v_cndmask_b32 v{V_IDX}, v18, v19, vcc")
    k("v_lshrrev_b32 v20, 2, v17")
    k("v_lshlrev_b32 v20, 1, v20")
    k("v_and_b32 v21, 1, v17")
    k("v_add_u32 v20, v20, v21")
    k("v_bfe_u32 v21, v17, 1, 1")
    k("v_lshl_add_u32 v18, v16, 1, v21")
    k("v_lshlrev_b32 v18, 7, v18")
    k(f"v_lshl_add_u32 v{V_MG}, v20, 4, v18")
    k(f"v_mul_u32_u24 v18, {PL_STR}, v20")
    k("v_lshl_add_u32 v18, v16, 5, v18")
    k("v_lshl_add_u32 v18, v21, 4, v18")
    k(f"v_add_u32 v{V_QR}, {P2_QI}, v18")
    k(f"v_mul_u32_u24 v18, {2 * PL_STR}, v16")
    k("v_lshl_add_u32 v18, v17, 1, v18")
    k(f"v_add_u32 v{V_IW}, {P2_QI + 32 * w}, v18")
    k("v_and_b32 v18, 7, v0")
    k(f"v_mul_u32_u24 v18, {PL_STR}, v18")
    k("v_lshl_add_u32 v18, v16, 5, v18")
    k(f"v_add_u32 v{V_KR}, {P2_KI}, v18")
    k("v_lshlrev_b32 v18, 3, v0")
    k(f"v_add_u32 v{V_ST8}, {P2_ST}, v18")
    k("v_lshlrev_b32 v18, 4, v16")
    k("v_bfe_u32 v19, v17, 1, 2")
    k("v_lshl_add_u32 v18, v19, 2, v18")
    k(f"s_lshl_b32 s{S_T}, s{S_ROLE}, 7")
    k(f"s_add_u32 s{S_T}, s{S_T}, {64 * tp}")
    k(f"v_add_u32 v18, s{S_T}, v18")
    k("v_lshrrev_b32 v19, 3, v17")
    k(f"v_add_u32 v19, {1 + 2 * kt}, v19")
    k("v_lshrrev_b32 v20, 1, v19")
    k("v_lshlrev_b32 v20, 14, v20")
    k("v_and_b32 v19, 1, v19")
    k("v_lshl_add_u32 v19, v19, 12, v20")
    k("v_add_u32 v19, v19, v18")
    k("v_mov_b32 v20, 0x7ffffff0")
    if cfg.get('p2_x4'):
        k("v_and_b32 v21, 7, v0")
        k("v_cmp_eq_u32 vcc, 4, v21")
        k("v_subrev_u32 v21, 8, v18")
        k("s_nop 0")
        k(f"v_cndmask_b32 v{V_PX}, v19, v21, vcc")
    else:
        k("v_and_b32 v21, 1, v0")
        k("v_cmp_eq_u32 vcc, 0, v21")
        k("s_nop 1")
        k(f"v_cndmask_b32 v{V_PX}, v20, v19, vcc")
    k(f"v_and_b32 v21, 0x29, v0")
    k(f"v_cmp_eq_u32 vcc, {32 * kt}, v21")
    k("s_nop 1")
    k(f"v_cndmask_b32 v{V_PM}, v20, v18, vcc")
    k(f"v_lshlrev_b32 v18, 4, v17")
    k("v_lshl_add_u32 v18, v16, 10, v18")
    k(f"v_add_u32 v{V_KXO}, {16 * kt * 16}, v18")
    k(f"v_add_u32 v18, {64 * w}, v0")
    k("v_mul_u32_u24 v19, 2731, v18")
    k("v_lshrrev_b32 v19, 16, v19")
    k("v_mul_u32_u24 v20, 24, v19")
    k("v_sub_u32 v20, v18, v20")
    k(f"v_mul_u32_u24 v21, {PL_STR}, v19")
    k("v_lshl_add_u32 v21, v20, 4, v21")
    k(f"v_add_u32 v{V_KML}, {P2_KI}, v21")
    k("v_lshlrev_b32 v21, 4, v19")
    k(f"v_lshl_add_u32 v{V_KMG}, v20, 7, v21")
    k(f"v_add_u32 v{V_WLA}, {w * NL * 2048}, v{V_L16}")
    k(f"v_add_u32 v{V_MIA}, {P2_MEMI}, v{V_L16}")
    k(f"s_mul_i32 s{S_KX}, s{S_ROLE}, {KX_SH}")
    k(f"s_add_u32 s{S_KX}, s{S_KX}, {KX}")
    k(f"s_mul_i32 s{S_KM}, s{S_ROLE}, {KM_SH}")
    k(f"s_add_u32 s{S_KM}, s{S_KM}, {KM}")
    k(f"s_mul_i32 s{S_T}, s{S_ROLE}, 6")
    k(f"s_add_u32 s{S_T+1}, s{S_T}, 5")
    k(f"s_lshr_b32 s{S_T}, s{S_T}, 3")
    k(f"s_lshr_b32 s{S_T+1}, s{S_T+1}, 3")
    k(f"s_add_u32 s{S_T}, s{S_T}, 80"); k(f"s_add_u32 s{S_T+1}, s{S_T+1}, 80")
    k(f"s_lshl_b32 s{S_T}, s{S_T}, 7"); k(f"s_lshl_b32 s{S_T+1}, s{S_T+1}, 7")
    k(f"v_mov_b32 v{V_GF}, s{S_T+1}")
    k(f"v_mov_b32 v{V_T0}, s{S_T}")
    k("v_cmp_eq_u32 vcc, 0, v0")
    k("s_nop 1")
    k(f"v_cndmask_b32 v{V_GF}, v{V_GF}, v{V_T0}, vcc")
    k(f"s_mov_b32 s{S_GK}, 0")
    k(f"s_mul_i32 s{S_T}, s{S_ROLE}, 491520")
    k(f"s_add_u32 s{S_T}, s{S_T}, {WP + w * 122880}")
    def wload(dst, T, ks):
        idx = T * 10 + ks
        k(f"s_add_u32 s{S_T+1}, s{S_T}, {idx * 2048}")
        for hi in range(2):
            k(f"buffer_load_dwordx4 {dst(hi)}, v{V_L16}, {srd}, s{S_T+1} offen offset:{hi*1024}")
    SEMI = cfg.get('na') == 4
    lops = [(op, wh[1]) for op, wh in where.items() if wh[0] == 'l']
    rops = [(op, wh) for op, wh in where.items() if wh[0] != 'l' and not (SEMI and wh[0] == 'a' and wh[1] // 8 < cfg.get('npf', 64) // 2)]
    for (T, ks), slot in lops:
        wload(lambda hi: vr(16 + 8 * slot + 4 * hi, 4), T, ks)
    for (T, ks), wh in rops[:15]:
        wload((lambda hi, wh=wh: (ar if wh[0] == 'a' else vr)(wh[1] + 4 * hi, 4)), T, ks)
    k(f"s_waitcnt vmcnt({2 * len(rops[:15])})")
    for (T, ks), slot in lops:
        for hi in range(2):
            k(f"ds_write_b128 v{V_WLA}, {vr(16 + 8 * slot + 4 * hi, 4)} offset:{slot * 2048 + hi * 1024}")
    for (T, ks), wh in rops[15:]:
        wload((lambda hi, wh=wh: (ar if wh[0] == 'a' else vr)(wh[1] + 4 * hi, 4)), T, ks)
    k("s_waitcnt lgkmcnt(0)")
    npf = [0]
    def kx_prefetch(step_s):
        npf[0] += 1
        wait_progress(k, cfg, f"p{w}_gw{npf[0]}", step_s, V_GF, 2, V_T0)
        k(f"s_mul_i32 s{S_T}, s{step_s}, {32 * KX_SH}")
        k(f"s_add_u32 s{S_T}, s{S_T}, s{S_KX}")
        for ks in range(3):
            k(f"s_add_u32 s{S_T+1}, s{S_T}, {ks * 4096}")
            for hi in range(2):
                k(f"buffer_load_dwordx4 {vr(KXF + 8 * ks + 4 * hi, 4)}, v{V_KXO}, {srd}, s{S_T+1} offen offset:{hi * 512} sc1")
    def tb_read_items(n):
        return [lambda hi=hi: lq.ds(f"ds_read_b128 {vr(TB + 8 * (n % 4) + 4 * hi, 4)}, v{V_WLA} offset:{n * 2048 + hi * 1024}", ('tb', n)) for hi in range(2)]
    def zero_d():
        for r in range(PD, PD + 32): k(f"v_mov_b32 v{r}, 0")
    k(f"s_mov_b32 s{S_STEP}, 0")
    kx_prefetch(S_STEP)
    zero_d()
    for n in range(4):
        for it in tb_read_items(n): it()
    lq.all()
    lab('step')
    slot_base(k, S_SB, S_STEP, S_T)
    for u, ks in enumerate(own):
        k(f"s_add_u32 s{S_T+2+u}, s{S_SB}, {physmap(M_LOG + 1024 * ks)}")
    stamp(k, cfg, 0)
    lab('poll')
    for u, ks in enumerate(own):
        k(f"buffer_load_dwordx4 {vr(AF + 4 * ks, 4)}, v{V_L16 if cfg.get('p2_lin') else V_MG}, {srd}, s{S_T+2+u} offen sc1")
    k("s_waitcnt vmcnt(0)")
    for ks in own:
        k(f"ds_write_b128 v{V_MIA}, {vr(AF + 4 * ks, 4)} offset:{ks * 1024}")
    check_valid(k, [AF + 4 * ks + j for ks in own for j in range(4)], QF)
    spin_check(k, bail)
    k(f"s_cbranch_vccnz {L('poll')}")
    lq.q = ['mw']
    def dpp(op, dst, src, ctl):
        k(f"{op} v{dst}, v{src}, v{src} {ctl} row_mask:0xf bank_mask:0xf")
    XS, XM, XL, XE = PD, PD + 2, PD + 3, PD + 4
    OM, OL = AF, AF + 1
    if cfg.get('p2s'):
        def dry(fix):
            r = []
            for w_ in range(4):
                o_, r_, s_, l_, wh_ = p_plan2(w_, cfg)
                r.append(p2_sched(k, w_, cfg, lq, o_, r_, s_, l_, wh_, tb_read_items, fix))
            return r
        fix = dict(b1=max(x['b1'] for x in dry(None)))
        fix['bk'] = max(x['bk'] for x in dry(fix))
        p2_sched(k, w, cfg, lq, own, rest, seq, ldspos, where, tb_read_items, fix)
    else:
        NB0 = cfg.get('p2_b0', 2)
        side = {i: [] for i in range(-1, 60)}
        def put(items, start, per=2):
            i = start
            for it in items:
                while len(side[i]) >= per: i += 1
                side[i].append(it)
            return i
        def b0():
            lq.all()
            k("s_barrier")
            stamp(k, cfg, 1)
            if w == 0: rt(k, cfg, 0)
        side[NB0 - 1].append(b0)
        rd = [lambda ks=ks: lq.ds(f"ds_read_b128 {vr(AF + 4 * ks, 4)}, v{V_MIA} offset:{ks * 1024}", ('af', ks)) for ks in rest]
        for it in rd[:3]: side[NB0 - 1].append(it)
        put(rd[3:], NB0)
        def post_tile(T, base):
            d = PD + 4 * T
            col = 128 * (T % 3)
            return [
                lambda: k(f"v_add_f32 v{d}, v{d}, v{d+2}"),
                lambda: k(f"v_add_f32 v{d+1}, v{d+1}, v{d+3}"),
                lambda: k(f"v_cvt_pk_bf16_f32 v{d}, v{d}, v{d+1}"),
                lambda: lq.ds(f"ds_write_b16 v{V_IW}, v{d} offset:{base + col}", ('img', T)),
                lambda: lq.ds(f"ds_write_b16_d16_hi v{V_IW}, v{d} offset:{base + col + PL_STR}", ('img', T)),
            ]
        nrd = {i: 0 for i in range(-1, 60)}
        def put_rd(items, start):
            i = start
            for it in items:
                while len(side[i]) >= 2 or nrd[i] >= 1: i += 1
                side[i].append(it); nrd[i] += 1
            return i
        RD1 = cfg.get('p2_rd1', 0)
        rdpos = cfg.get('p2_rd', ldspos)
        for n in range(NL - 4):
            assert rdpos[n] >= ldspos[n]
            if RD1: e_ = put_rd(tb_read_items(n + 4), rdpos[n]); assert e_ < ldspos[n + 4] - 3, (n, e_)
            else: put(tb_read_items(n + 4), rdpos[n])
        last = {T: max(i for i, op in enumerate(seq) if op[0] == T) for T in range(6)}
        KO = P2_KI - P2_QI
        for T in (0, 1): put(post_tile(T, 0), last[T] + 2)
        e = put(post_tile(2, 0), last[2] + 2)
        b1 = e + cfg.get('p2_b1', 3)
        PR = cfg.get('p2_pr')
        side[b1].append(lambda: (lq.wait(('img', 2)), k("s_barrier"), None if PR else stamp(k, cfg, 3)))
        for ks in range(3):
            side[b1 + (ks > 0)].append(lambda ks=ks: lq.ds(f"ds_read_b128 {vr(QF + 4 * ks, 4)}, v{V_QR} offset:{ks * 128}", ('qf', ks)))
        put(post_tile(3, KO), last[3] + 2)
        sx = b1 + cfg.get('p2_sx', 6)
        def smx():
            lq.wait(('qf', 2))
            for ks in range(3):
                k(f"v_smfmac_f32_16x16x64_bf16 {vr(PDX, 4)}, {vr(QF + 4 * ks, 4)}, {vr(KXF + 8 * ks, 8)}, v{V_IDX}")
        side[sx].append(smx)
        def dpp(op, dst, src, ctl):
            k(f"{op} v{dst}, v{src}, v{src} {ctl} row_mask:0xf bank_mask:0xf")
        XS, XM, XL, XE = PD, PD + 2, PD + 3, PD + 4
        xchain = [
            [lambda: k(f"v_add_f32 v{XS}, v{PDX + tp}, v{PDX + tp + 2}"), lambda: k(f"v_mul_f32 v{XS}, {hexf(CSC)}, v{XS}")],
            [lambda: dpp("v_max_f32_dpp", XM, XS, "row_ror:8")],
            [lambda: dpp("v_max_f32_dpp", XM, XM, "row_ror:4")],
            [lambda: dpp("v_max_f32_dpp", XM, XM, "row_ror:2")],
            [lambda: dpp("v_max_f32_dpp", XM, XM, "row_ror:1")],
            [lambda: k(f"v_sub_f32 v{XE}, v{XS}, v{XM}"), lambda: k(f"v_exp_f32 v{XE}, v{XE}")],
            [lambda: dpp("v_add_f32_dpp", XL, XE, "row_ror:8")],
            [lambda: dpp("v_add_f32_dpp", XL, XL, "row_ror:4")],
            [lambda: dpp("v_add_f32_dpp", XL, XL, "row_ror:2")],
            [lambda: dpp("v_add_f32_dpp", XL, XL, "row_ror:1")],
            [lambda: lq.ds(f"ds_write_b64 v{V_ST8}, {vr(XM, 2)} offset:{512 * w}", 'st')],
        ]
        g0 = sx + 2
        late = []
        for n, its in enumerate(xchain):
            if g0 + n <= 59:
                for it in its: side[g0 + n].append(it)
            else: late.append(its)
        put(post_tile(4, KO), last[4] + 2)
        bk = cfg.get('p2_bk', 56)
        side[bk].append(lambda: (lq.wait(('img', 4)), k("s_barrier")))
        kfr = [lambda ks=ks, hi=hi: lq.ds(f"ds_read_b128 {vr(KXF + 8 * ks + 4 * hi, 4)}, v{V_KR} offset:{ks * 128 + hi * 16}", ('kf', ks)) for ks in range(2) for hi in range(2)]
        side[bk] += kfr[:2]; side[bk + 1] += kfr[2:]
        assert bk > sx + 1
        for it in side[-1]: it()
        for i, (T, ks) in enumerate(seq):
            wh = where[(T, ks)]
            if T < 3 and ks in rest: lq.wait(('af', ks))
            if wh[0] == 'l':
                lq.wait(('tb', wh[1]))
                b = vr(TB + 8 * (wh[1] % 4), 8)
            else:
                b = (ar if wh[0] == 'a' else vr)(wh[1], 8)
            k(f"v_smfmac_f32_16x16x64_bf16 {vr(PD + 4 * T, 4)}, {vr(AF + 4 * ks, 4)}, {b}, v{V_IDX}")
            for it in side[i]: it()
            if i == 29 and not PR: stamp(k, cfg, 2)
            if PR and i in PR: stamp(k, cfg, 2 + PR.index(i))
        if not PR: stamp(k, cfg, 4)
        for ks in range(2):
            lq.wait(('kf', ks))
            k(f"v_smfmac_f32_16x16x64_bf16 {vr(PDM, 4)}, {vr(QF + 4 * ks, 4)}, {vr(KXF + 8 * ks, 8)}, v{V_IDX}")
        for its in late:
            k("s_nop 1")
            for it in its: it()
        if late: k("s_nop 0")
        for it in post_tile(5, KO): it()
        lq.all()
        k("s_barrier")
        if not PR: stamp(k, cfg, 5)
        for hi in range(2):
            lq.ds(f"ds_read_b128 {vr(KXF + 16 + 4 * hi, 4)}, v{V_KR} offset:{256 + hi * 16}", ('kf', 2))
        OM, OL = AF, AF + 1
        lq.ds(f"ds_read_b64 {vr(OM, 2)}, v{V_ST8} offset:{512 * (w ^ 1)}", 'so')
        lq.wait(('kf', 2))
        k(f"v_smfmac_f32_16x16x64_bf16 {vr(PDM, 4)}, {vr(QF + 8, 4)}, {vr(KXF + 16, 8)}, v{V_IDX}")
        if not PR: stamp(k, cfg, 6)
    lq.wait('so')
    MXX, F0, F1, LX, SM, U, T_, EM, FX, R = range(AF + 2, AF + 12)
    k(f"v_max_f32 v{MXX}, v{XM}, v{OM}")
    k(f"v_sub_f32 v{F0}, v{XM}, v{MXX}")
    k(f"v_sub_f32 v{F1}, v{OM}, v{MXX}")
    k(f"v_exp_f32 v{F0}, v{F0}")
    k(f"v_exp_f32 v{F1}, v{F1}")
    k("s_nop 0")
    k(f"v_mul_f32 v{LX}, v{XL}, v{F0}")
    k(f"v_mul_f32 v{XE}, v{XE}, v{F0}")
    k(f"v_fmac_f32 v{LX}, v{OL}, v{F1}")
    k(f"v_add_f32 v{SM}, v{PDM + tp}, v{PDM + tp + 2}")
    k(f"v_mul_f32 v{SM}, {hexf(CSC)}, v{SM}")
    k(f"v_max_f32 v{U}, v{SM}, v{MXX}")
    k("s_nop 0")
    k(f"v_max_f32_dpp v{T_}, v{SM}, v{U} row_ror:4 row_mask:0xf bank_mask:0xf"); k("s_nop 1")
    dpp("v_max_f32_dpp", T_, T_, "row_ror:2"); k("s_nop 1")
    dpp("v_max_f32_dpp", T_, T_, "row_ror:1")
    k(f"v_sub_f32 v{EM}, v{SM}, v{T_}")
    k(f"v_sub_f32 v{FX}, v{MXX}, v{T_}")
    k(f"v_exp_f32 v{EM}, v{EM}")
    k(f"v_exp_f32 v{FX}, v{FX}")
    k("s_nop 0")
    dpp("v_add_f32_dpp", U, EM, "row_ror:4")
    k(f"v_mul_f32 v{XE}, v{XE}, v{FX}")
    k("s_nop 0")
    dpp("v_add_f32_dpp", U, U, "row_ror:2"); k("s_nop 1")
    dpp("v_add_f32_dpp", U, U, "row_ror:1")
    k(f"v_fmac_f32 v{U}, v{FX}, v{LX}")
    k(f"v_rcp_f32 v{R}, v{U}")
    k("s_nop 0")
    k(f"v_mul_f32 v{XE}, v{XE}, v{R}")
    k(f"v_mul_f32 v{EM}, v{EM}, v{R}")
    k("s_nop 0")
    k(f"v_mov_b32_dpp v{F0}, v{XE} quad_perm:[1,0,3,2] row_mask:0xf bank_mask:0xf")
    k(f"v_mov_b32_dpp v{F1}, v{EM} quad_perm:[1,0,3,2] row_mask:0xf bank_mask:0xf")
    if cfg.get('p2_x4'):
        O = AF + 12
        k(f"v_cvt_pk_bf16_f32 v{O}, v{XE}, v{F0}")
        k(f"v_cvt_pk_bf16_f32 v{EM}, v{EM}, v{F1}")
        ctl = "row_mask:0xf bank_mask:0xf"
        k("s_nop 0")
        for j in range(1, 4): k(f"v_mov_b32_dpp v{O+j}, v{O} row_shl:{2*j} {ctl}")
        k(f"v_mov_b32_dpp v{O}, v{EM} row_shr:4 row_mask:0xf bank_mask:0x2")
        k(f"v_mov_b32_dpp v{O+1}, v{EM} row_shr:2 row_mask:0xf bank_mask:0x2")
        k(f"v_mov_b32_dpp v{O+2}, v{EM} quad_perm:[0,1,2,3] row_mask:0xf bank_mask:0x2")
        k(f"v_mov_b32_dpp v{O+3}, v{EM} row_shl:2 row_mask:0xf bank_mask:0x2")
        k(f"s_mov_b32 exec_lo, {0x01110111 if kt == 0 else 0x01010101:#x}")
        k(f"s_mov_b32 exec_hi, {0x01010101 if kt == 0 else 0x01110111:#x}")
        k(f"buffer_store_dwordx4 {vr(O, 4)}, v{V_PX}, {srd}, s{S_SB} offen sc1")
        k("s_mov_b64 exec, -1")
    else:
        k(f"v_cvt_pk_bf16_f32 v{XE}, v{XE}, v{F0}")
        k(f"v_cvt_pk_bf16_f32 v{EM}, v{EM}, v{F1}")
        k(f"buffer_store_dword v{XE}, v{V_PX}, {srd}, s{S_SB} offen sc1")
        k(f"buffer_store_dword v{EM}, v{V_PM}, {srd}, s{S_SB} offen sc1")
    stamp(k, cfg, 7)
    stamp(k, cfg, 8, True)
    if w == 0: rt(k, cfg, 1)
    X0 = AF + 24
    if w < 3:
        lq.ds(f"ds_read_b128 {vr(X0, 4)}, v{V_KML}", 'km')
    k(f"s_add_u32 s{S_T+8}, s{S_STEP}, 1")
    k(f"s_min_u32 s{S_T+8}, s{S_T+8}, {NSTEP-1}")
    kx_prefetch(S_T + 8)
    zero_d()
    if w < 3:
        lq.wait('km')
        k(f"s_mul_i32 s{S_T}, s{S_STEP}, {32 * KM_SH}")
        k(f"s_add_u32 s{S_T}, s{S_T}, s{S_KM}")
        k(f"buffer_store_dwordx4 {vr(X0, 4)}, v{V_KMG}, {srd}, s{S_T} offen sc1")
    if w == 3:
        k(f"s_lshl_b32 s{S_T}, s{S_ROLE}, 7")
        k(f"s_add_u32 s{S_T}, s{S_T}, {FL_PF}")
        flag_store(k, cfg, S_T, S_STEP, V_T0, V_T1)
    for n in range(4):
        for it in tb_read_items(n): it()
    lq.all()
    if w == 0: rt_flush(k, cfg, 0)
    if w == cfg.get('stamp_wave', 0): stamp_flush(k, cfg, 9, cfg.get('stamp_p', 0))
    k(f"s_add_u32 s{S_STEP}, s{S_STEP}, 1")
    k(f"s_cmp_lt_u32 s{S_STEP}, {NSTEP}")
    k(f"s_cbranch_scc1 {L('step')}")
    k("s_waitcnt vmcnt(0)")
    k("s_barrier")
    if w == 3:
        k(f"s_lshl_b32 s{S_T}, s{S_ROLE}, 7")
        k(f"s_add_u32 s{S_T}, s{S_T}, {FL_PF}")
        flag_store(k, cfg, S_T, S_STEP, V_T0, V_T1)
    k(f"s_branch {k.ref('end')}")

YL_MEMI = 0
YL_RED = 10240
YV_L16 = 1; YV_IDX = 2; YV_MIA = 3; YV_ZO = 4; YV_PO = 5; YV_RW = 6; YV_RR = 7; YV_MO = 8; YV_GF = 9; YV_MK = 10
YAF = 16; YD = 56; YZB = 72; YPF = 92; YACC = 112; YT = 116; YVW = 176

def gen_y_wave(k, w, cfg):
    own = OWN[w]; rest = [ks for ks in range(10) if ks not in own]
    L = lambda s: k.ref(f"y{w}_{s}")
    lab = lambda s: k.lab(f"y{w}_{s}")
    bail = k.ref('bail')
    lq = LQ(k)
    lab('start')
    k("v_lshrrev_b32 v16, 4, v0")
    k("v_and_b32 v17, 7, v0")
    k("v_lshrrev_b32 v18, 3, v0")
    k("v_and_b32 v18, 1, v18")
    k("v_lshl_add_u32 v19, v18, 2, v16")
    k(f"v_add_u32 v19, {8 * w}, v19")
    k("v_mul_u32_u24 v20, 640, v19")
    k(f"v_lshl_add_u32 v{YV_ZO}, v17, 4, v20")
    if cfg.get('p2'):
        k("v_and_b32 v20, 1, v17")
        k("v_lshlrev_b32 v20, 2, v20")
        k("v_lshrrev_b32 v21, 1, v17")
    else:
        k("v_and_b32 v20, 3, v17")
        k("v_lshlrev_b32 v20, 1, v20")
        k("v_lshrrev_b32 v21, 2, v17")
    k("v_add_u32 v20, v20, v21")
    k("v_lshlrev_b32 v20, 4, v20")
    k(f"v_lshl_add_u32 v{YV_PO}, v19, 7, v20")
    k(f"v_add_u32 v{YV_MIA}, {YL_MEMI}, v{YV_L16}")
    k("v_lshrrev_b32 v20, 1, v17")
    k("v_lshlrev_b32 v20, 7, v20")
    k("v_and_b32 v21, 1, v17")
    k("v_lshl_add_u32 v20, v21, 2, v20")
    k(f"v_add_u32 v{YV_MK}, {512 * w}, v20")
    k("v_lshlrev_b32 v20, 8, v18")
    k("v_lshl_add_u32 v20, v17, 5, v20")
    k("v_and_b32 v21, 1, v16")
    k("v_lshl_add_u32 v20, v21, 4, v20")
    k(f"v_add_u32 v20, {YL_RED + 512 * w}, v20")
    k(f"v_add_u32 v21, {YL_RED + 2048}, v{YV_L16}")
    k("v_lshrrev_b32 v22, 1, v16")
    k("v_cmp_eq_u32 vcc, v22, v18")
    k("s_nop 1")
    k(f"v_cndmask_b32 v{YV_RW}, v21, v20, vcc")
    k("v_lshrrev_b32 v20, 3, v0")
    k("v_lshlrev_b32 v20, 2, v20")
    k("v_lshl_add_u32 v20, v17, 5, v20")
    k(f"v_add_u32 v{YV_RR}, {YL_RED}, v20")
    k(f"s_lshl_b32 s{S_T}, s{S_ROLE}, 7")
    k(f"s_add_u32 s{S_T}, s{S_T}, {M_LOG}")
    k(f"s_lshr_b32 s{S_T+1}, s{S_T}, 13")
    k(f"s_lshl_b32 s{S_T+1}, s{S_T+1}, 14")
    k(f"s_and_b32 s{S_T}, s{S_T}, 8191")
    k(f"s_add_u32 s{S_T}, s{S_T}, s{S_T+1}")
    k("v_lshrrev_b32 v20, 3, v0")
    k("v_lshlrev_b32 v20, 4, v20")
    k(f"v_add_u32 v{YV_MO}, s{S_T}, v20")
    k(f"s_mul_i32 s{S_Z}, s{S_ROLE}, 20480")
    k(f"s_add_u32 s{S_Z}, s{S_Z}, {Z}")
    k(f"s_mul_i32 s{S_T}, s{S_ROLE}, 327680")
    k(f"s_add_u32 s{S_T}, s{S_T}, {WY + w * 81920}")
    def wreg(T, ks):
        n = T * 10 + ks
        return ('a', 8 * n) if n < 32 else ('v', YVW + 8 * (n - 32))
    if cfg.get('ygate') is not None:
        k(f"s_add_u32 s{S_T+2}, s{S_FL}, {cfg['ygate'][0]}")
        k("v_lshlrev_b32 v20, 2, v0")
        k(f"s_mov_b32 exec_lo, {(1 << cfg['ygate'][1]) - 1}"); k("s_mov_b32 exec_hi, 0")
        lab('gate')
        k(f"buffer_load_dword v21, v20, {srd}, s{S_T+2} offen sc1")
        k("s_waitcnt vmcnt(0)")
        k("v_cmp_eq_u32 vcc, 0, v21")
        spin_check(k, bail)
        k(f"s_cbranch_vccnz {L('gate')}")
        k("s_mov_b64 exec, -1")
    WIN = cfg.get('winy', cfg.get('win')); nld = 0
    for T in range(4):
        for ks in range(10):
            wh = wreg(T, ks)
            if cfg.get('na') == 4 and wh[0] == 'a' and wh[1] // 8 < cfg.get('npf', 64) // 2: continue
            k(f"s_add_u32 s{S_T+1}, s{S_T}, {(T * 10 + ks) * 2048}")
            for hi in range(2):
                d = (ar if wh[0] == 'a' else vr)(wh[1] + 4 * hi, 4)
                k(f"buffer_load_dwordx4 {d}, v{YV_L16}, {srd}, s{S_T+1} offen offset:{hi*1024}")
                nld += 1
                if WIN and nld > WIN: k(f"s_waitcnt vmcnt({WIN})")
    k(f"s_mov_b32 s{S_STEP}, 0")
    SC1 = " sc1" if cfg.get('ovl') else ""
    if cfg.get('ovl'):
        k(f"s_lshl_b32 s{S_T}, s{S_ROLE}, 7")
        k(f"v_mov_b32 v{YV_GF}, s{S_T}")
        k(f"s_mov_b32 s{S_GK}, 0")
    lab('step')
    YC = cfg.get('ycopy', 0)
    AW = cfg.get('ackwait', 1)
    slot_base(k, S_SB, S_STEP, S_T, S_SBF if YC else None)
    def uload():
        wait_progress(k, cfg, f"y{w}_gw", S_STEP, YV_GF, 1, YT)
        for t in range(1, 5):
            k(f"buffer_load_dwordx4 {vr(YZB + 4 * t, 4)}, v{YV_ZO}, {srd}, s{S_T+8} offen offset:{t*128}{SC1}")
    k(f"s_mul_i32 s{S_T+8}, s{S_STEP}, {Z_SEG}")
    k(f"s_add_u32 s{S_T+8}, s{S_T+8}, s{S_Z}")
    UE = cfg.get('uearly', 0)
    if not AW or UE: uload()
    for r in range(YD, YD + 16): k(f"v_mov_b32 v{r}, 0")
    for u, ks in enumerate(own):
        k(f"s_add_u32 s{S_T+2+u}, s{S_SBF if YC else S_SB}, {physmap(M_LOG + 1024 * ks)}")
    stamp(k, cfg, 0)
    lab('poll')
    if cfg.get('y_nopoll'):
        for ks in own:
            for j in range(4): k(f"v_mov_b32 v{YAF + 4 * ks + j}, 0")
            k(f"ds_write_b128 v{YV_MIA}, {vr(YAF + 4 * ks, 4)} offset:{ks * 1024}")
    else:
        for u, ks in enumerate(own):
            k(f"buffer_load_dwordx4 {vr(YAF + 4 * ks, 4)}, v{YV_L16}, {srd}, s{S_T+2+u} offen sc1")
        k("s_waitcnt vmcnt(0)")
        for ks in own:
            k(f"ds_write_b128 v{YV_MIA}, {vr(YAF + 4 * ks, 4)} offset:{ks * 1024}")
        check_valid(k, [YAF + 4 * ks + j for ks in own for j in range(4)], YT)
        spin_check(k, bail)
        k(f"s_cbranch_vccnz {L('poll')}")
    lq.all()
    k("s_barrier")
    stamp(k, cfg, 1)
    if w == 0: rt(k, cfg, 0)
    for ks in rest:
        lq.ds(f"ds_read_b128 {vr(YAF + 4 * ks, 4)}, v{YV_MIA} offset:{ks * 1024}", ('af', ks))
    if AW and not UE: uload()
    for ks in own + rest:
        if ks in rest: lq.wait(('af', ks))
        for T in range(4):
            wh = wreg(T, ks)
            b = (ar if wh[0] == 'a' else vr)(wh[1], 8)
            k(f"v_smfmac_f32_16x16x64_bf16 {vr(YD + 4 * T, 4)}, {vr(YAF + 4 * ks, 4)}, {b}, v{YV_IDX}")
    k("s_nop 7")
    D = lambda T, r: YD + 4 * T + r
    for r in range(4):
        k(f"v_permlane32_swap_b32 v{D(0,r)}, v{D(2,r)}")
        k(f"v_permlane32_swap_b32 v{D(1,r)}, v{D(3,r)}")
    for r in range(4):
        k(f"v_add_f32 v{D(0,r)}, v{D(0,r)}, v{D(2,r)}")
        k(f"v_add_f32 v{D(1,r)}, v{D(1,r)}, v{D(3,r)}")
    k("s_nop 1")
    for r in range(4):
        k(f"v_permlane16_swap_b32 v{D(0,r)}, v{D(1,r)}")
    k("s_nop 1")
    k(f"v_cvt_pk_bf16_f32 v{YZB}, v{D(0,0)}, v{D(0,1)}")
    k(f"v_cvt_pk_bf16_f32 v{YZB+1}, v{D(0,2)}, v{D(0,3)}")
    k(f"v_cvt_pk_bf16_f32 v{YZB+2}, v{D(1,0)}, v{D(1,1)}")
    k(f"v_cvt_pk_bf16_f32 v{YZB+3}, v{D(1,2)}, v{D(1,3)}")
    k(f"buffer_store_dwordx4 {vr(YZB, 4)}, v{YV_ZO}, {srd}, s{S_T+8} offen{SC1}")
    stamp(k, cfg, 2)
    k(f"s_cmp_eq_u32 s{S_STEP}, {NSTEP-1}")
    k(f"s_cbranch_scc1 {L('last') if cfg.get('ovl') else k.ref('end')}")
    for t in range(5):
        k(f"s_add_u32 s{S_T+10+t}, s{S_SB}, {physmap(t * 4096)}")
    k(f"s_add_u32 s{S_T+9}, s{S_STEP}, 1")
    slot_base(k, S_SBN, S_T + 9, S_T, S_SBNF if YC else None)
    if cfg.get('mark') is not None:
        k(f"s_add_u32 s{S_MK}, s{S_SB}, {physmap(MARK_LOG)}")
        lab('mpoll')
        k(f"buffer_load_dword v{YT}, v{YV_MK}, {srd}, s{S_MK} offen sc1")
        k("s_waitcnt vmcnt(0)")
        k(f"v_cmp_eq_u32 vcc, -1, v{YT}")
        spin_check(k, bail)
        k(f"s_cbranch_vccnz {L('mpoll')}")
        if w == 0 and cfg.get('rt2'): rt(k, cfg, 0)
    if cfg.get('cpoll', 0):
        for r in range(4): k(f"v_mov_b32 v{YACC + r}, 0")
        poll_cont(k, f"y{w}_pp",
                  [lambda t=t: k(f"buffer_load_dwordx4 {vr(YPF + 4 * t, 4)}, v{YV_PO}, {srd}, s{S_T+10+t} offen sc1") for t in range(5)],
                  [[YPF + 4 * t + j for j in range(4)] for t in range(5)],
                  [lambda t=t: (k(f"v_mfma_f32_16x16x32_bf16 {vr(YACC, 4)}, {vr(YPF + 4 * t, 4)}, {vr(YZB + 4 * t, 4)}, {vr(YACC, 4)}"),
                                (rt(k, cfg, 3 + t) if (w == 0 and cfg.get('rt2')) else None)) for t in range(5)],
                  YT, 132, bail)
        k("s_nop 5")
    else:
        lab('ppoll')
        for t in range(5):
            k(f"buffer_load_dwordx4 {vr(YPF + 4 * t, 4)}, v{YV_PO}, {srd}, s{S_T+10+t} offen sc1")
        k("s_waitcnt vmcnt(0)")
        for t in range(5):
            c = "0" if t == 0 else vr(YACC, 4)
            k(f"v_mfma_f32_16x16x32_bf16 {vr(YACC, 4)}, {vr(YPF + 4 * t, 4)}, {vr(YZB + 4 * t, 4)}, {c}")
        check_valid(k, range(YPF, YPF + 20), YT)
        spin_check(k, bail)
        k(f"s_cbranch_vccnz {L('ppoll')}")
    stamp(k, cfg, 3)
    if w == 0: rt(k, cfg, 1)
    lq.ds(f"ds_write_b128 v{YV_RW}, {vr(YACC, 4)}", 'rw')
    lq.all()
    k("s_barrier")
    if w == 0:
        for u in range(4):
            lq.ds(f"ds_read2st64_b32 {vr(YT + 2 * u, 2)}, v{YV_RR} offset0:{2*u} offset1:{2*u+1}", ('rr', u))
        lq.wait(('rr', 1))
        k(f"v_add_f32 v{YT}, v{YT}, v{YT+1}")
        k(f"v_add_f32 v{YT+2}, v{YT+2}, v{YT+3}")
        lq.wait(('rr', 3))
        k(f"v_add_f32 v{YT+4}, v{YT+4}, v{YT+5}")
        k(f"v_add_f32 v{YT+6}, v{YT+6}, v{YT+7}")
        k(f"v_add_f32 v{YT}, v{YT}, v{YT+2}")
        k(f"v_add_f32 v{YT+4}, v{YT+4}, v{YT+6}")
        k(f"v_add_f32 v{YT}, v{YT}, v{YT+4}")
        k("s_nop 1")
        k(f"v_mov_b32_dpp v{YT+1}, v{YT} quad_perm:[1,0,3,2] row_mask:0xf bank_mask:0xf")
        k(f"v_cvt_pk_bf16_f32 v{YT+8}, v{YT}, v{YT+1}")
        k("s_nop 1")
        for j in range(1, 4):
            k(f"v_mov_b32_dpp v{YT+8+j}, v{YT+8} row_shl:{2*j} row_mask:0xf bank_mask:0xf")
        k(f"s_mov_b64 exec, s[{S_M8}:{S_M8+1}]")
        k(f"buffer_store_dwordx4 {vr(YT + 8, 4)}, v{YV_MO}, {srd}, s{S_SBN} offen sc1")
        if YC: k(f"buffer_store_dwordx4 {vr(YT + 8, 4)}, v{YV_MO}, {srd}, s{S_SBNF} offen sc1")
        k("s_mov_b64 exec, -1")
        if cfg.get('ovl'):
            k(f"s_lshl_b32 s{S_T}, s{S_ROLE}, 7")
            k(f"s_add_u32 s{S_T}, s{S_T}, {FL_YF}")
            flag_store(k, cfg, S_T, S_T + 9, YT, YT + 1)
        stamp(k, cfg, 4)
        rt(k, cfg, 2)
        if AW: k("s_waitcnt vmcnt(0)")
        rt_flush(k, cfg, 32)
        stamp_flush(k, cfg, 5, cfg.get('stamp_y', 0))
    if AW: k("s_barrier")
    k(f"s_add_u32 s{S_STEP}, s{S_STEP}, 1")
    k(f"s_branch {L('step')}")
    if cfg.get('ovl'):
        lab('last')
        k("s_waitcnt vmcnt(0)")
        k("s_barrier")
        if w == 0:
            k(f"s_lshl_b32 s{S_T}, s{S_ROLE}, 7")
            k(f"s_add_u32 s{S_T}, s{S_T}, {FL_YF}")
            k(f"s_mov_b32 s{S_T+9}, {NSTEP}")
            flag_store(k, cfg, S_T, S_T + 9, YT, YT + 1)
        k(f"s_branch {k.ref('end')}")

def role_assign(k, cfg, rb=19, part=None, va=2, lds_off=0, nyoung=0, sfx=''):
    R = lambda n: f"s{rb + n - 19}"
    vb = va + 1
    if part in (None, 1):
        k(f"s_lshl_b32 {R(19)}, s{S_LAYER}, 11")
        k(f"s_add_u32 {R(19)}, {R(19)}, {CT_TICK}")
        k(f"s_getreg_b32 {R(20)}, hwreg(HW_REG_XCC_ID)")
        k(f"s_and_b32 {R(20)}, {R(20)}, 7")
        if cfg.get('fake_xcc') is not None:
            k(f"s_and_b32 {R(20)}, s2, {cfg['fake_xcc']}")
        k(f"s_cmp_lg_u32 s{S_WAVE}, 0")
        k(f"s_cbranch_scc1 {k.ref('tk_wait' + sfx if part is None else 'tk_p1')}")
        k(f"s_lshl_b32 {R(22)}, {R(20)}, 8")
        k(f"s_add_u32 {R(22)}, {R(22)}, {R(19)}")
        k("s_mov_b64 exec, 1")
        k(f"v_mov_b32 v{va}, 0")
        k(f"v_mov_b32 v{vb}, 1")
        k(f"buffer_atomic_add v{vb}, v{va}, {srd}, {R(22)} offen sc0 sc1")
        k("s_mov_b64 exec, -1")
        if part == 1:
            k.lab('tk_p1')
            return
    else:
        k(f"s_cmp_lg_u32 s{S_WAVE}, 0")
        k(f"s_cbranch_scc1 {k.ref('tk_wait' + sfx)}")
    if nyoung is not None: k(f"s_waitcnt vmcnt({nyoung})")
    k("s_nop 0")
    k(f"v_readfirstlane_b32 {R(21)}, v{vb}")
    k(f"s_cmp_lt_u32 {R(21)}, 32")
    k(f"s_cbranch_scc1 {k.ref('tk_pub' + sfx)}")
    k(f"v_lshlrev_b32 v{va}, 8, v0")
    k(f"v_and_b32 v{va}, 0x7ff, v{va}")
    k(f"s_mov_b32 {R(22)}, {R(19)}")
    k.lab('tk_poll' + sfx)
    k(f"buffer_load_dword v{vb}, v{va}, {srd}, {R(22)} offen sc1")
    k("s_waitcnt vmcnt(0)")
    k(f"s_mov_b32 {R(23)}, 0")
    for x in range(8):
        k(f"v_readlane_b32 {R(24+x)}, v{vb}, {x}")
        k("s_nop 0")
        k(f"s_add_u32 {R(23)}, {R(23)}, {R(24+x)}")
    spin_check(k, k.ref('bail'))
    k(f"s_cmp_lt_u32 {R(23)}, 256")
    k(f"s_cbranch_scc1 {k.ref('tk_poll' + sfx)}")
    k(f"s_sub_u32 {R(21)}, {R(21)}, 32")
    for x in range(7):
        k(f"s_max_u32 {R(23)}, {R(24+x)}, 32")
        k(f"s_sub_u32 {R(23)}, {R(23)}, 32")
        k(f"s_cmp_gt_u32 {R(20)}, {x}")
        k(f"s_cselect_b32 {R(23)}, {R(23)}, 0")
        k(f"s_add_u32 {R(21)}, {R(21)}, {R(23)}")
    for x in range(8):
        k(f"s_min_u32 {R(23)}, {R(24+x)}, 32")
        k(f"s_sub_u32 {R(22)}, 32, {R(23)}")
        k(f"s_cmp_lt_u32 {R(21)}, {R(22)}")
        k(f"s_cbranch_scc0 {k.ref(f'tk_n{x}' + sfx)}")
        k(f"s_mov_b32 {R(20)}, {x}")
        k(f"s_add_u32 {R(21)}, {R(21)}, {R(23)}")
        k(f"s_branch {k.ref('tk_pub' + sfx)}")
        k.lab(f'tk_n{x}' + sfx)
        k(f"s_sub_u32 {R(21)}, {R(21)}, {R(22)}")
    k(f"s_branch {k.ref('bail')}")
    k.lab('tk_pub' + sfx)
    k(f"s_lshl_b32 {R(22)}, {R(20)}, 8")
    k(f"s_or_b32 {R(22)}, {R(22)}, {R(21)}")
    k(f"v_mov_b32 v{va}, {lds_off}")
    k(f"v_mov_b32 v{vb}, {R(22)}")
    k(f"ds_write_b32 v{va}, v{vb}")
    k("s_waitcnt lgkmcnt(0)")
    k.lab('tk_wait' + sfx)
    k("s_barrier")
    k(f"v_mov_b32 v{va}, {lds_off}")
    k(f"ds_read_b32 v{vb}, v{va}")
    k("s_waitcnt lgkmcnt(0)")
    k(f"v_readfirstlane_b32 {R(22)}, v{vb}")
    if part is None: k("s_barrier")
    k(f"s_lshr_b32 {R(20)}, {R(22)}, 8")
    k(f"s_and_b32 {R(21)}, {R(22)}, 255")

S_XCC = 98; S_TK = 99
def pf_setup(k, cfg, sfx='', tb=60):
    import aly, work
    TAB, B0, B1, D, V0, V1 = aly.PF_TAB, aly.PF_B0, aly.PF_B1, aly.PF_D, aly.PF_V0, aly.PF_V1
    L = lambda s: k.ref('pf_' + sfx + s)
    lab = lambda s: k.lab('pf_' + sfx + s)
    def table(idx):
        for q in range(8):
            k(f"s_mov_b32 s{TAB + q}, {sum(idx[4 * q + j] << (8 * j) for j in range(4)):#x}")
    k(f"v_lshlrev_b32 v{V0}, 4, v0")
    k(f"v_mov_b32 v{V1}, v{V0}")
    table(list(range(32)))
    k(f"s_mov_b32 s{D}, 2048")
    k(f"s_cmp_eq_u32 s{S_XCC}, 0")
    k(f"s_cbranch_scc1 {L('p')}")
    k(f"s_cmp_ge_u32 s{S_XCC}, 4")
    k(f"s_cbranch_scc1 {L('g')}")
    k(f"s_sub_u32 s{tb+0}, s{S_XCC}, 1")
    k(f"s_cmp_ge_u32 s{S_TK}, 27")
    k(f"s_cbranch_scc1 {L('sp')}")
    k(f"s_mul_i32 s{tb+1}, s{tb+0}, 27")
    k(f"s_add_u32 s{tb+1}, s{tb+1}, s{S_TK}")
    k(f"s_cmp_ge_u32 s{tb+1}, 80")
    k(f"s_cbranch_scc1 {L('no')}")
    k(f"s_mul_i32 s{tb+1}, s{tb+1}, 327680")
    k(f"s_mul_i32 s{tb+2}, s{S_WAVE}, 81920")
    k(f"s_add_u32 s{tb+1}, s{tb+1}, s{tb+2}")
    k(f"s_add_u32 s{B0}, s{tb+1}, {WY}")
    k(f"s_add_u32 s{B1}, s{B0}, 1024")
    k(f"s_branch {L('done')}")
    lab('sp')
    k(f"s_mul_i32 s{tb+1}, s{tb+0}, 5")
    k(f"s_add_u32 s{tb+1}, s{tb+1}, s{S_TK}")
    k(f"s_sub_u32 s{tb+1}, s{tb+1}, 27")
    k(f"s_cmp_lt_u32 s{tb+1}, 5")
    k(f"s_cbranch_scc0 {L('no')}")
    k(f"s_lshl_b32 s{tb+1}, s{tb+1}, 2")
    k(f"s_add_u32 s{tb+1}, s{tb+1}, s{S_WAVE}")
    k(f"s_mul_i32 s{tb+1}, s{tb+1}, 40960")
    k(f"s_add_u32 s{B0}, s{tb+1}, {PWO}")
    k(f"s_add_u32 s{B1}, s{B0}, 1024")
    k(f"s_branch {L('done')}")
    lab('no')
    k(f"s_mov_b32 s{B0}, {WY}")
    k(f"s_mov_b32 s{B1}, {WY}")
    k(f"s_mov_b32 s{D}, 0")
    k(f"s_branch {L('done')}")
    lab('p')
    k(f"s_mul_i32 s{tb+1}, s{S_TK}, 491520")
    k(f"s_mul_i32 s{tb+2}, s{S_WAVE}, 122880")
    k(f"s_add_u32 s{tb+1}, s{tb+1}, s{tb+2}")
    k(f"s_add_u32 s{B0}, s{tb+1}, {WP}")
    k(f"s_add_u32 s{B1}, s{B0}, 1024")
    for w in range(4):
        own, rest, seq, ldspos, where = p_plan(w, cfg)
        idx = [None] * 32
        for (T, ks), wh in where.items():
            if wh[0] == 'a': idx[wh[1] // 8] = T * 10 + ks
        if w < 3:
            k(f"s_cmp_lg_u32 s{S_WAVE}, {w}")
            k(f"s_cbranch_scc1 {L(f'pw{w}')}")
        table(idx)
        k(f"s_branch {L('done')}")
        if w < 3: lab(f'pw{w}')
    lab('g')
    k(f"s_sub_u32 s{tb+0}, s{S_XCC}, 4")
    k(f"s_lshl_b32 s{tb+0}, s{tb+0}, 5")
    k(f"s_add_u32 s{tb+0}, s{tb+0}, s{S_TK}")
    k(f"s_mov_b32 s{D}, 512")
    k("v_and_b32 v230, 31, v0")
    k("v_lshrrev_b32 v231, 5, v0")
    k(f"s_cmp_ge_u32 s{tb+0}, 80")
    k(f"s_cbranch_scc1 {L('qk')}")
    work.u_weight_addr(k, tb, 230, 231, 232, V0, B0, tb + 1)
    k(f"v_mov_b32 v{V1}, v{V0}")
    k(f"s_add_u32 s{B1}, s{B0}, 128")
    k(f"s_branch {L('done')}")
    lab('qk')
    work.qk_setup(k, tb, 230, 231, 232, V0, B0, tb + 1, None)
    lab('done')

def build_chain(name, layer, cfg=None):
    import work
    cfg = cfg or {}
    k = K(name if layer is not None else name + "1", vgpr=256, sgpr=100, agpr=256)
    stub = None
    if layer is None:
        stub = K(name + "2", vgpr=256, sgpr=100, agpr=256)
        stub(f"s_mov_b32 s{S_LAYER}, 1")
        stub(f"s_branch {k.ref('body')}")
        k(f"s_mov_b32 s{S_LAYER}, 0")
        k.lab('body')
    else:
        k(f"s_mov_b32 s{S_LAYER}, {layer}")
    k("s_cmp_ge_u32 s2, 256")
    k(f"s_cbranch_scc1 {k.ref('end0')}")
    if cfg.get('rt'): k("s_memrealtime s[90:91]")
    k.ptr(KA_WS, S_WS)
    k.ptr(KA_OUT, 6)
    k("v_lshrrev_b32 v1, 6, v0")
    k("v_and_b32 v0, 63, v0")
    k("s_nop 0")
    k(f"v_readfirstlane_b32 s{S_WAVE}, v1")
    k(f"s_mov_b32 s{S_SPIN}, {SPIN}")
    k("s_waitcnt lgkmcnt(0)")
    k.srd(SRD, S_WS, WS_BYTES)
    def osrd():
        k(f"s_add_u32 s22, s{S_WS}, {A_X2}")
        k(f"s_addc_u32 s23, s{S_WS+1}, 0")
        k(f"s_cmp_eq_u32 s{S_LAYER}, 0")
        k(f"s_cselect_b32 s{S_OSRD}, s22, s6")
        k(f"s_cselect_b32 s{S_OSRD+1}, s23, s7")
        k(f"s_mov_b32 s{S_OSRD+2}, {2048 * 640 * 2}")
        k(f"s_mov_b32 s{S_OSRD+3}, 0x00020000")
    if cfg.get('na') != 4: osrd()
    k(f"s_mul_i32 s{S_FL}, s{S_LAYER}, {FL_LAYER}")
    k(f"s_add_u32 s{S_FL}, s{S_FL}, {CT_FLAG}")
    SEMI = cfg.get('na') == 4
    if SEMI:
        import aly
        role_assign(k, cfg, 76 if cfg.get('hs') is not None else 60, 1, 230)
        HS = cfg.get('hs')
        if 'pfs' in cfg: assert cfg['pfs'][0] + sum(cfg['pfs'][1]) == cfg.get('npf', 64)
        def hook(sfx):
            role_assign(k, cfg, 76 if HS is not None else 60, 2, 230, aly.AF_LDS + 64, 24 if HS is None else None, sfx)
            k(f"s_mov_b32 s{S_XCC}, s{77 if HS is not None else 61}")
            k(f"s_mov_b32 s{S_TK}, s{78 if HS is not None else 62}")
            pf_setup(k, cfg, sfx, 76 if HS is not None else 60)
        rt_ = cfg.get('rt')
        aly.afront_body(k, 'rt', 2, False, "", (lambda n: k(f"s_memrealtime s[{60 + 2 * n}:{61 + 2 * n}]")) if rt_ else None, cfg.get('pfs', True), (hook, HS))
        if rt_:
            k("s_memrealtime s[74:75]")
            k("s_mov_b32 s60, s90")
            k("s_waitcnt lgkmcnt(0)")
            k("s_mov_b64 exec, 1")
            k("s_lshl_b32 s32, s2, 2")
            k(f"s_add_u32 s32, s32, s{S_WAVE}")
            k("s_lshl_b32 s32, s32, 5")
            k(f"s_mul_i32 s33, s{S_LAYER}, 0x200000")
            k("s_add_u32 s32, s32, s33")
            k(f"s_add_u32 s32, s32, {rt_ + 0x180000}")
            k("v_mov_b32 v253, 0")
            for n in range(8):
                k(f"v_mov_b32 v254, s{60 + 2 * n}")
                k(f"buffer_store_dword v254, v253, {srd}, s32 offen offset:{4*n}")
                k("s_nop 1")
            k("s_mov_b64 exec, -1")
        osrd()
        k(f"s_mov_b32 s20, s{S_XCC}")
        k(f"s_mov_b32 s21, s{S_TK}")
    else:
        role_assign(k, cfg)
    if cfg.get('rt'):
        k("s_lshl_b32 s92, s20, 8"); k("s_or_b32 s92, s92, s21")
    k(f"s_sub_u32 s22, 0, s{S_WS}")
    k("s_and_b32 s22, s22, 0x1fffff")
    if cfg.get('calw', 1) > 1:
        k(f"s_lshl_b32 s23, s{S_LAYER}, 5")
        k(f"s_add_u32 s23, s23, {CT_PAR + 128}")
        k(f"s_buffer_load_dwordx8 s[24:31], {srd}, s23")
        k("s_waitcnt lgkmcnt(0)")
        for b_ in range(2):
            r = 24 + 4 * b_
            k(f"s_min_u32 s32, s{r}, s{r+1}"); k(f"s_min_u32 s33, s{r+2}, s{r+3}"); k("s_min_u32 s32, s32, s33")
            k("s_lshr_b32 s32, s32, 16")
            for j in range(4): k(f"s_and_b32 s{r+j}, s{r+j}, 0xffff")
            k(f"s_min_u32 s{r}, s{r}, s{r+1}"); k(f"s_min_u32 s33, s{r+2}, s{r+3}"); k(f"s_min_u32 s33, s33, s{r}")
            k("s_cmp_lt_u32 s33, s32")
            k(f"s_cselect_b32 s{34 + b_}, 8192, 0")
        k("s_mov_b32 s24, s34"); k("s_mov_b32 s25, s35")
    else:
        k(f"s_lshl_b32 s23, s{S_LAYER}, 3")
        k(f"s_add_u32 s23, s23, {CT_PAR}")
        k(f"s_buffer_load_dwordx2 s[24:25], {srd}, s23")
        k("s_waitcnt lgkmcnt(0)")
        k("s_and_b32 s24, s24, 8192")
        k("s_and_b32 s25, s25, 8192")
    for f, p in ((S_FD0, 24), (S_FD1, 25)):
        k(f"s_lshl_b32 s{f}, s{p}, 1")
        k(f"s_sub_u32 s{f}, 8192, s{f}")
    k(f"s_mul_i32 s23, s{S_LAYER}, {2 * EX_BLOCK}")
    k("s_add_u32 s22, s22, s23")
    k(f"s_add_u32 s{S_EB0}, s22, s24")
    k(f"s_add_u32 s{S_EB1}, s22, s25")
    k(f"s_add_u32 s{S_EB1}, s{S_EB1}, {EX_BLOCK}")
    k(f"s_mov_b32 s{S_M8}, 0x01010101")
    k(f"s_mov_b32 s{S_M8+1}, 0x01010101")
    k(f"s_mov_b32 s{S_M2}, 0x00010001")
    k(f"s_mov_b32 s{S_M2+1}, 0")
    p_setup_lanes(k)
    ovl = cfg.get('ovl')
    NA2 = cfg.get('na') in (2, 3, 4)
    OW = cfg.get('na') == 3
    other = (k.ref('spare') if NA2 else k.ref('w3')) if ovl else k.ref('end')
    if cfg.get('spread', 0):
        k("s_cmp_ge_u32 s20, 4")
        k(f"s_cbranch_scc1 {k.ref('proj') if ovl else k.ref('end')}")
        k("s_cmp_ge_u32 s21, 28")
        k(f"s_cbranch_scc1 {other}")
        k("s_cmp_ge_u32 s21, 8")
        k(f"s_cbranch_scc1 {k.ref('notp')}")
        k("s_lshl_b32 s22, s20, 3")
        k(f"s_add_u32 s{S_ROLE}, s22, s21")
        for w in range(4):
            k(f"s_cmp_eq_u32 s{S_WAVE}, {w}")
            k(f"s_cbranch_scc1 {k.ref(f'p{w}_start')}")
        k.lab('notp')
        k("s_mul_i32 s22, s20, 20")
        k("s_add_u32 s22, s22, s21")
        k(f"s_sub_u32 s{S_ROLE}, s22, 8")
    else:
        k("s_cmp_eq_u32 s20, 0")
        k(f"s_cbranch_scc0 {k.ref('notp')}")
        k(f"s_mov_b32 s{S_ROLE}, s21")
        for w in range(4):
            k(f"s_cmp_eq_u32 s{S_WAVE}, {w}")
            k(f"s_cbranch_scc1 {k.ref(f'p{w}_start')}")
        k.lab('notp')
        k("s_cmp_ge_u32 s20, 4")
        k(f"s_cbranch_scc1 {k.ref('proj') if ovl else k.ref('end')}")
        k("s_cmp_ge_u32 s21, 27")
        k(f"s_cbranch_scc1 {other}")
        k("s_sub_u32 s22, s20, 1")
        k("s_mul_i32 s22, s22, 27")
        k(f"s_add_u32 s{S_ROLE}, s22, s21")
        k(f"s_cmp_ge_u32 s{S_ROLE}, 80")
        k(f"s_cbranch_scc1 {other}")
    for w in range(4):
        k(f"s_cmp_eq_u32 s{S_WAVE}, {w}")
        k(f"s_cbranch_scc1 {k.ref(f'y{w}_start')}")
    k(f"s_branch {k.ref('end')}")
    for w in range(4): (gen_p_wave2 if cfg.get('p2') else gen_p_wave)(k, w, cfg)
    for w in range(4): gen_y_wave(k, w, cfg)
    if ovl:
        k.lab('proj')
        k("s_sub_u32 s22, s20, 4")
        k("s_lshl_b32 s22, s22, 5")
        k(f"s_add_u32 s{S_ROLE}, s22, s21")
        k(f"s_mov_b32 s{work.GS_SEG}, 0")
        k(f"s_mov_b32 s{work.GS_END}, 64")
        work.role_gemm(k, S_ROLE, dict(cfg, flag_s=S_FL))
        if cfg.get('rt'):
            k("s_memrealtime s[96:97]"); k("s_waitcnt lgkmcnt(0)"); k("s_mov_b32 s93, s96")
        if cfg.get('w3_join', 128) < 128:
            k(f"s_cmp_ge_u32 s{S_ROLE}, {cfg['w3_join']}")
            k(f"s_cbranch_scc1 {k.ref('end')}")
        if NA2:
            import aly
            k(f"s_branch {k.ref('w3')}")
            k.lab('spare')
            if cfg.get('spread', 0):
                k("s_lshl_b32 s22, s20, 2")
                k("s_add_u32 s22, s22, s21")
                k("s_sub_u32 s22, s22, 28")
            else:
                k("s_sub_u32 s22, s20, 1")
                k("s_mul_i32 s22, s22, 5")
                k("s_add_u32 s22, s22, s21")
                k("s_sub_u32 s22, s22, 27")
                k("s_cmp_ge_u32 s21, 27")
                k("s_cselect_b32 s22, s22, 15")
            k("s_cmp_lt_u32 s22, 5")
            k(f"s_cbranch_scc1 {k.ref('sp_ab')}")
            k("s_cmp_lt_u32 s22, 9")
            k(f"s_cbranch_scc1 {k.ref('sp_ln')}")
            if OW:
                k("s_cmp_eq_u32 s22, 10")
                k(f"s_cbranch_scc1 {k.ref('sp_ow')}")
                k("s_cmp_eq_u32 s22, 11")
                k(f"s_cbranch_scc1 {k.ref('sp_ow')}")
            k("s_cmp_eq_u32 s22, 9")
            k(f"s_cbranch_scc0 {k.ref('w3')}")
            aly.role_mem0(k, S_EB0, S_FD0 if cfg.get('ycopy') else None)
            k(f"s_branch {k.ref('w3')}")
            if OW:
                k.lab('sp_ow')
                k(f"s_sub_u32 s{S_ROLE}, s22, 10")
                aly.role_ow(k, S_ROLE, S_LAYER, S_FL, S_SPIN, k.ref('bail'), cfg)
                k(f"s_branch {k.ref('w3')}")
            k.lab('sp_ab')
            k(f"s_mov_b32 s{S_ROLE}, s22")
            k(f"s_mov_b32 s{aly.AB_SEG}, 0")
            k(f"s_mov_b32 s{aly.AB_END}, 64")
            aly.role_aback(k, S_ROLE, S_LAYER, S_FL, True, cfg, (30, k.ref('bail')) if (OW or SEMI) else None, SEMI)
            k(f"s_branch {k.ref('w3')}")
            k.lab('sp_ln')
            k(f"s_sub_u32 s{S_ROLE}, s22, 5")
            aly.role_lnw(k, S_ROLE, 4, S_FL, S_SPIN, k.ref('bail'), True, cfg)
            k("s_waitcnt vmcnt(0)")
            k("s_barrier")
        k.lab('w3')
        k(f"s_mov_b32 s{S_SPIN}, {SPIN}")
        work.role_w3_loop(k, cfg, S_FL, S_SPIN, f"s[{S_OSRD}:{S_OSRD+3}]", S_LAYER)
        k(f"s_branch {k.ref('end')}")
    k.lab('bail')
    k("s_mov_b64 exec, 1")
    k.ptr(KA_DBG, 6)
    k("s_waitcnt lgkmcnt(0)")
    k.srd(24, 6, 256)
    k("v_mov_b32 v1, 0xdead")
    k(f"v_mov_b32 v2, s{S_STEP}")
    k("v_mov_b32 v3, 0")
    k("buffer_store_dword v1, v3, s[24:27], 0 offen")
    k("buffer_store_dword v2, v3, s[24:27], 0 offen offset:4")
    k.lab('end')
    if cfg.get('rt'):
        k("s_memrealtime s[94:95]")
        k("s_waitcnt lgkmcnt(0)")
        k("s_mov_b64 exec, 1")
        k("s_lshl_b32 s32, s2, 2")
        k(f"s_add_u32 s32, s32, s{S_WAVE}")
        k("s_lshl_b32 s32, s32, 4")
        k(f"s_mul_i32 s33, s{S_LAYER}, 0x200000")
        k("s_add_u32 s32, s32, s33")
        k(f"s_add_u32 s32, s32, {cfg['rt'] + 0x100000}")
        k("v_mov_b32 v253, 0")
        for n, sr in enumerate((90, 94, 92, 93)):
            k(f"v_mov_b32 v254, s{sr}")
            k(f"buffer_store_dword v254, v253, {srd}, s32 offen offset:{4*n}")
            k("s_nop 1")
        k("s_lshl_b32 s32, s2, 2")
        k(f"s_add_u32 s32, s32, s{S_WAVE}")
        k("s_lshl_b32 s32, s32, 5")
        k("s_add_u32 s32, s32, s33")
        k(f"s_add_u32 s32, s32, {cfg['rt'] + 0x140000}")
        for n in range(8):
            k(f"v_mov_b32 v254, s{60 + 2 * n}")
            k(f"buffer_store_dword v254, v253, {srd}, s32 offen offset:{4*n}")
            k("s_nop 1")
    k.lab('end0')
    if stub is not None: return k, stub
    return k

if __name__ == "__main__":
    STP = 240 * MB
    extra = eval(sys.argv[1]) if len(sys.argv) > 1 else {}
    ks = [build_chain("chain", 0, dict(extra)),
          build_chain("chainst", 0, dict(extra, stamp=True, stamp_p=STP, stamp_y=STP + 65536)),
          build_chain("chainrt", 0, dict(extra, rt=STP + MB, rt2=1))]
    launches = [(k_, 256, 256, PL_END) for k_ in ks]
    open(sys.argv[2] if len(sys.argv) > 2 else "chain.s", "w").write(listfile(launches, ks))
    print("lds", PL_END)
```

```python
import sys, math
sys.path.insert(0, "/code"); sys.path.insert(0, "tools")
from asmk import *
from lay import *

CSC = (192 ** -0.5) * math.log2(math.e)
S_WS = 4; SRD = 8; S_WAVE = 13
P2 = False
srd = f"s[{SRD}:{SRD+3}]"
def vr(b, n): return f"v[{b}:{b+n-1}]" if n > 1 else f"v{b}"
def ar(b, n): return f"a[{b}:{b+n-1}]"

def prologue(k, extra_ptrs=()):
    k.ptr(KA_WS, S_WS)
    for slot, s in extra_ptrs: k.ptr(slot, s)
    k("v_lshrrev_b32 v1, 6, v0")
    k("v_and_b32 v0, 63, v0")
    k("s_nop 0")
    k(f"v_readfirstlane_b32 s{S_WAVE}, v1")
    k("s_waitcnt lgkmcnt(0)")
    k.srd(SRD, S_WS, WS_BYTES)

def ex_delta(k, dst):
    k(f"s_sub_u32 s{dst}, 0, s{S_WS}")
    k(f"s_and_b32 s{dst}, s{dst}, 0x1fffff")

def p2e_lane(k, dst, p, t0, t1):
    k(f"v_and_b32 v{dst}, 0xc1, v{p}")
    k(f"v_and_b32 v{t0}, 8, v{p}")
    k(f"v_lshl_or_b32 v{dst}, v{t0}, 2, v{dst}")
    k(f"v_and_b32 v{t0}, 32, v{p}")
    k(f"v_lshrrev_b32 v{t0}, 1, v{t0}")
    k(f"v_or_b32 v{dst}, v{dst}, v{t0}")
    k(f"v_and_b32 v{t0}, 2, v{p}")
    k(f"v_lshl_or_b32 v{dst}, v{t0}, 2, v{dst}")
    k(f"v_and_b32 v{t0}, 16, v{p}")
    k(f"v_lshrrev_b32 v{t0}, 2, v{t0}")
    k(f"v_or_b32 v{dst}, v{dst}, v{t0}")
    k(f"v_and_b32 v{t0}, 4, v{p}")
    k(f"v_lshrrev_b32 v{t0}, 1, v{t0}")
    k(f"v_or_b32 v{dst}, v{dst}, v{t0}")

def wp_block_off(k, dst, x, isk, t0, t1):
    k(f"v_lshrrev_b32 v{t0}, 4, v{x}")
    if P2:
        k(f"v_and_b32 v{t1}, 3, v{t0}")
        k(f"v_mul_u32_u24 v{t1}, 6, v{t1}")
        k(f"v_lshrrev_b32 v{t0}, 2, v{t0}")
        k(f"v_add_u32 v{t0}, v{t0}, v{t1}")
    else:
        k(f"v_mul_u32_u24 v{t1}, 11, v{t0}")
        k(f"v_lshrrev_b32 v{t1}, 5, v{t1}")
        k(f"v_mul_u32_u24 v{t1}, 3, v{t1}")
        k(f"v_add_u32 v{t0}, v{t0}, v{t1}")
    if isk: k(f"v_add_u32 v{t0}, 3, v{t0}")
    k(f"v_mul_u32_u24 v{t0}, 20480, v{t0}")
    k(f"v_and_b32 v{t1}, 15, v{x}")
    k(f"v_lshl_add_u32 v{dst}, v{t1}, 4, v{t0}")

CH_ROW = [0, 1, 8, 9, 2, 3, 10, 11]

def chunk_base_lane(k, dst, c, t0):
    k(f"v_lshrrev_b32 v{dst}, 2, v{c}")
    k(f"v_lshlrev_b32 v{dst}, 5, v{dst}")
    k(f"v_and_b32 v{t0}, 2, v{c}")
    k(f"v_lshl_add_u32 v{dst}, v{t0}, 3, v{dst}")
    k(f"v_and_b32 v{t0}, 1, v{c}")
    k(f"v_lshl_add_u32 v{dst}, v{t0}, 2, v{dst}")

N_WVO = 160
N_PWP = 240
N_CLR = 64
N_CTL = 5
PREP_WG = N_WVO + N_PWP + N_CLR + N_CTL

def role_wvo(k):
    L = lambda s: k.ref('wvo_' + s)
    k.ptr(KA_WV, 24); k.ptr(KA_WO, 26)
    k("s_and_b32 s21, s20, 1")
    k("s_lshr_b32 s22, s20, 1")
    k("s_mul_i32 s23, s22, 205")
    k("s_lshr_b32 s23, s23, 11")
    k("s_mul_i32 s28, s23, 10")
    k("s_sub_u32 s22, s22, s28")
    k("s_waitcnt lgkmcnt(0)")
    k.srd(32, 24, 640 * 6144 * 2)
    k.srd(36, 26, 6144 * 640 * 2)
    VI, VH = 1, 2
    k(f"v_and_b32 v{VI}, 31, v0")
    k(f"v_lshrrev_b32 v{VH}, 5, v0")
    BE, BO, TMP = 16, 64, 112
    k(f"v_mul_u32_u24 v3, {8 * 1280}, v{VH}")
    k(f"v_lshl_add_u32 v3, v{VI}, 2, v3")
    k(f"s_mul_i32 s28, s23, {192*1280}")
    k("s_lshl_b32 s29, s22, 7")
    k("s_add_u32 s28, s28, s29")
    for half in range(2):
        for kk in range(6):
            kap = half * 6 + kk
            for j in range(8):
                row = 16 * kap + j
                k(f"s_add_u32 s29, s28, {row * 1280}")
                k(f"buffer_load_dword v{TMP + 8 * kk + j}, v3, s[36:39], s29 offen")
        k("v_mov_b32 v4, 0x05040100")
        k("v_mov_b32 v5, 0x07060302")
        k("s_waitcnt vmcnt(0)")
        for kk in range(6):
            kap = half * 6 + kk
            for m in range(4):
                k(f"v_perm_b32 v{BE + 4 * kap + m}, v{TMP + 8 * kk + 2 * m + 1}, v{TMP + 8 * kk + 2 * m}, v4")
                k(f"v_perm_b32 v{BO + 4 * kap + m}, v{TMP + 8 * kk + 2 * m + 1}, v{TMP + 8 * kk + 2 * m}, v5")
    k(f"v_lshrrev_b32 v6, 3, v{VI}")
    chunk_base_lane(k, 7, 6, 8)
    k(f"v_and_b32 v8, 7, v{VI}")
    k("v_and_b32 v9, 1, v8")
    k("v_add_u32 v7, v7, v9")
    k("v_and_b32 v9, 2, v8")
    k("v_lshl_add_u32 v7, v9, 2, v7")
    k("v_lshrrev_b32 v9, 2, v8")
    k("v_lshl_add_u32 v7, v9, 1, v7")
    k("v_mul_u32_u24 v7, 12288, v7")
    k(f"v_lshl_add_u32 v7, v{VH}, 4, v7")
    k("s_mul_i32 s28, s23, 384")
    k(f"s_mul_i32 s29, s21, {10 * 32 * 12288}")
    k("s_add_u32 s28, s28, s29")
    k(f"v_lshrrev_b32 v10, 2, v{VI}")
    k("v_mul_u32_u24 v10, 20480, v10")
    k("v_lshlrev_b32 v10, 4, v10")
    k(f"v_and_b32 v11, 3, v{VI}")
    k("v_lshl_add_u32 v10, v11, 5, v10")
    k(f"v_lshl_add_u32 v10, v{VH}, 8, v10")
    k(f"s_mul_i32 s30, s22, {8 * 327680}")
    k("s_lshr_b32 s31, s23, 3")
    k("s_mul_i32 s31, s31, 81920")
    k("s_add_u32 s30, s30, s31")
    k("s_and_b32 s31, s23, 3")
    k("s_mul_i32 s31, s31, 20480")
    k("s_add_u32 s30, s30, s31")
    k("s_bfe_u32 s31, s23, 0x10002")
    k("s_lshl_b32 s31, s31, 7")
    k("s_add_u32 s30, s30, s31")
    k(f"s_mul_i32 s31, s21, 10240")
    k("s_add_u32 s30, s30, s31")
    k(f"s_add_u32 s30, s30, {WY}")
    AF0, AF1, ACC, OUT = 112, 160, 208, 240
    def aload(dst):
        for kap in range(12):
            k(f"buffer_load_dwordx4 {vr(dst + 4 * kap, 4)}, v7, s[32:35], s28 offen offset:{kap * 32}")
        k(f"s_add_u32 s28, s28, {32 * 12288}")
    def tile(src):
        for kap in range(12):
            for t, B in ((0, BE), (1, BO)):
                c = "0" if kap == 0 else vr(ACC + 16 * t, 16)
                k(f"v_mfma_f32_32x32x16_bf16 {vr(ACC + 16 * t, 16)}, {vr(src + 4 * kap, 4)}, {vr(B + 4 * kap, 4)}, {c}")
        k("s_nop 7"); k("s_nop 7")
        for t in range(2):
            a = ACC + 16 * t
            for j in range(2):
                o = OUT + 4 * j
                for q in range(2):
                    k(f"v_cvt_pk_bf16_f32 v{o + 2 * q}, v{a + 8 * j + 4 * q}, v{a + 8 * j + 4 * q + 1}")
                    k(f"v_cvt_pk_bf16_f32 v{o + 2 * q + 1}, v{a + 8 * j + 4 * q + 2}, v{a + 8 * j + 4 * q + 3}")
                k("s_nop 1")
                k(f"v_permlane32_swap_b32 v{o}, v{o + 2}")
                k(f"v_permlane32_swap_b32 v{o + 1}, v{o + 3}")
                k(f"buffer_store_dwordx4 {vr(o, 4)}, v10, {srd}, s30 offen offset:{j * 512 + t * 16}")
            k("s_nop 1")
        k("s_add_u32 s30, s30, 1024")
    aload(AF0)
    k("s_mov_b32 s31, 5")
    k.lab('wvo_loop')
    aload(AF1)
    k("s_waitcnt vmcnt(12)")
    tile(AF0)
    k("s_cmp_eq_u32 s31, 1")
    k(f"s_cbranch_scc1 {L('last')}")
    aload(AF0)
    k("s_waitcnt vmcnt(12)")
    tile(AF1)
    k("s_sub_u32 s31, s31, 1")
    k(f"s_branch {L('loop')}")
    k.lab('wvo_last')
    k("s_waitcnt vmcnt(0)")
    tile(AF1)
    k(f"s_branch {k.ref('end')}")

class VQ:
    def __init__(self, k): self.k = k; self.q = []
    def op(self, ins, tag=None):
        self.k(ins); self.q.append(tag)
    def wait(self, tag):
        idx = [i for i, t in enumerate(self.q) if t == tag]
        if not idx: return
        n = len(self.q) - 1 - idx[-1]
        assert n <= 63
        self.k(f"s_waitcnt vmcnt({n})"); self.q = self.q[idx[-1] + 1:]

WVO_NS = 1
WVO_NB = 3
WVO_BUF = 192 * 128
WVO_LDS = WVO_NB * WVO_BUF
def role_wvo2(k, ns):
    nsl = 10 // ns
    k.ptr(KA_WV, 24); k.ptr(KA_WO, 26)
    per = 5 * ns
    k(f"s_mul_i32 s23, s20, {(65536 + per - 1) // per}")
    k("s_lshr_b32 s23, s23, 16")
    k(f"s_mul_i32 s28, s23, {per}")
    k("s_sub_u32 s22, s20, s28")
    if ns == 2:
        k("s_and_b32 s21, s22, 1"); k("s_lshr_b32 s22, s22, 1")
    else:
        k("s_mov_b32 s21, 0")
    k("s_waitcnt lgkmcnt(0)")
    k.srd(32, 24, 640 * 6144 * 2)
    k.srd(36, 26, 6144 * 640 * 2)
    VI, VH, VD, VR0, VR1, VA, VS = 1, 2, 3, 4, 5, 7, 10
    k(f"v_and_b32 v{VI}, 31, v0")
    k(f"v_lshrrev_b32 v{VH}, 5, v0")
    k("v_lshrrev_b32 v11, 3, v0")
    k(f"v_mul_u32_u24 v{VD}, 1280, v11")
    k("v_bfe_u32 v12, v0, 4, 1")
    k("v_lshlrev_b32 v12, 2, v12")
    k("v_and_b32 v13, 7, v0")
    k("v_xor_b32 v13, v13, v12")
    k(f"v_lshl_add_u32 v{VD}, v13, 4, v{VD}")
    k("s_mul_i32 s28, s23, 192")
    k(f"s_mul_i32 s29, s{S_WAVE}, 48")
    k("s_add_u32 s28, s28, s29")
    k("s_mul_i32 s28, s28, 1280")
    k(f"s_mul_i32 s29, s21, {nsl * 128}")
    k("s_add_u32 s28, s28, s29")
    k(f"s_mul_i32 s29, s{S_WAVE}, 6144")
    k("v_bfe_u32 v11, v0, 2, 2")
    k(f"v_lshl_add_u32 v12, v{VH}, 3, v11")
    k("v_lshlrev_b32 v12, 7, v12")
    k("v_bfe_u32 v13, v0, 4, 1")
    k("v_lshlrev_b32 v13, 1, v13")
    k("v_bfe_u32 v14, v0, 1, 1")
    k("v_add_u32 v13, v13, v14")
    k("v_lshl_add_u32 v12, v13, 4, v12")
    k("v_and_b32 v13, 1, v0")
    k("v_lshl_add_u32 v12, v13, 3, v12")
    k("v_bfe_u32 v13, v0, 3, 1")
    k(f"v_lshl_add_u32 v{VR0}, v13, 6, v12")
    k("v_xor_b32 v13, 1, v13")
    k(f"v_lshl_add_u32 v{VR1}, v13, 6, v12")
    k(f"v_lshrrev_b32 v6, 3, v{VI}")
    chunk_base_lane(k, VA, 6, 8)
    k(f"v_and_b32 v8, 7, v{VI}")
    k("v_and_b32 v9, 1, v8")
    k(f"v_add_u32 v{VA}, v{VA}, v9")
    k("v_and_b32 v9, 2, v8")
    k(f"v_lshl_add_u32 v{VA}, v9, 2, v{VA}")
    k("v_lshrrev_b32 v9, 2, v8")
    k(f"v_lshl_add_u32 v{VA}, v9, 1, v{VA}")
    k(f"v_mul_u32_u24 v{VA}, 12288, v{VA}")
    k(f"v_lshl_add_u32 v{VA}, v{VH}, 4, v{VA}")
    k("s_lshl_b32 s30, s22, 2")
    k(f"s_add_u32 s30, s30, s{S_WAVE}")
    k(f"s_mul_i32 s31, s30, {32 * 12288}")
    k("s_mul_i32 s40, s23, 384")
    k("s_add_u32 s31, s31, s40")
    k(f"v_lshrrev_b32 v{VS}, 3, v{VI}")
    k(f"v_mul_u32_u24 v{VS}, 20480, v{VS}")
    k(f"v_lshlrev_b32 v{VS}, 4, v{VS}")
    k(f"v_and_b32 v11, 7, v{VI}")
    k(f"v_lshl_add_u32 v{VS}, v11, 4, v{VS}")
    k(f"v_lshl_add_u32 v{VS}, v{VH}, 8, v{VS}")
    k(f"s_mul_i32 s41, s21, {nsl * 8 * 327680}")
    k("s_lshr_b32 s40, s23, 3")
    k("s_mul_i32 s40, s40, 81920")
    k("s_add_u32 s41, s41, s40")
    k("s_and_b32 s40, s23, 3")
    k("s_mul_i32 s40, s40, 20480")
    k("s_add_u32 s41, s41, s40")
    k("s_bfe_u32 s40, s23, 0x10002")
    k("s_lshl_b32 s40, s40, 7")
    k("s_add_u32 s41, s41, s40")
    k("s_lshl_b32 s40, s30, 10")
    k("s_add_u32 s41, s41, s40")
    k(f"s_add_u32 s41, s41, {WY}")
    AF, BF, ACC, OUT = 16, 64, 160, 192
    vq = VQ(k)
    def dma(s):
        for i in range(6):
            k(f"s_add_u32 s42, s29, {(s % WVO_NB) * WVO_BUF + i * 1024}")
            k("s_mov_b32 m0, s42")
            k(f"s_add_u32 s43, s28, {s * 128 + i * 8 * 1280}")
            vq.op(f"buffer_load_dwordx4 v{VD}, s[36:39], s43 offen lds", ('d', s))
    for kap in range(12):
        vq.op(f"buffer_load_dwordx4 {vr(AF + 4 * kap, 4)}, v{VA}, s[32:35], s31 offen offset:{kap * 32}", 'a')
    for s in range(min(WVO_NB, nsl)): dma(s)
    RA = 200
    for b_ in range(WVO_NB):
        k(f"v_add_u32 v{RA + 2 * b_}, {b_ * WVO_BUF}, v{VR0}")
        k(f"v_add_u32 v{RA + 2 * b_ + 1}, {b_ * WVO_BUF}, v{VR1}")
    def rd(s, t, kap):
        b = BF + 48 * t
        for j in range(2):
            k(f"ds_read_b64_tr_b16 {vr(b + 4 * kap + 2 * j, 2)}, v{RA + 2 * (s % WVO_NB) + t} offset:{kap * 2048 + j * 512}")
    def epi(t, s):
        a = ACC + 16 * t; it = []
        it.append(f"s_add_u32 s42, s41, {(8 * s + 4 * t) * 327680}")
        for j in range(2):
            o = OUT + 4 * j
            for q in range(2):
                it.append(f"v_cvt_pk_bf16_f32 v{o + 2 * q}, v{a + 8 * j + 4 * q}, v{a + 8 * j + 4 * q + 1}")
                it.append(f"v_cvt_pk_bf16_f32 v{o + 2 * q + 1}, v{a + 8 * j + 4 * q + 2}, v{a + 8 * j + 4 * q + 3}")
            it.append("s_nop 1")
            it.append(f"v_permlane32_swap_b32 v{o}, v{o + 2}")
            it.append(f"v_permlane32_swap_b32 v{o + 1}, v{o + 3}")
            it.append(('st', f"buffer_store_dwordx4 {vr(o, 4)}, v{VS}, {srd}, s42 offen offset:{j * 512}"))
        return it
    vq.wait(('d', 0))
    k("s_barrier")
    for kap in range(12): rd(0, 0, kap) if kap < 6 else None
    k("s_waitcnt lgkmcnt(0)")
    for kap in range(6, 12): rd(0, 0, kap)
    prev = None
    for s in range(nsl):
        for t in range(2):
            k("s_waitcnt lgkmcnt(0)")
            nxt = (s, 1) if t == 0 else ((s + 1, 0) if s + 1 < nsl else None)
            if t == 1:
                if s + 1 < nsl: vq.wait(('d', s + 1))
                k("s_barrier")
                if s + WVO_NB < nsl: dma(s + WVO_NB)
            side = epi(*prev) if prev else []
            for kap in range(12):
                d = vr(ACC + 16 * t, 16)
                k(f"v_mfma_f32_32x32x16_bf16 {d}, {vr(AF + 4 * kap, 4)}, {vr(BF + 48 * t + 4 * kap, 4)}, {'0' if kap == 0 else d}")
                if nxt: rd(nxt[0], nxt[1], kap)
                if kap >= 2:
                    for _ in range(3):
                        if side:
                            x = side.pop(0)
                            if isinstance(x, tuple): vq.op(x[1], 'st')
                            else: k(x)
            assert not side
            prev = (t, s)
    k("s_nop 7"); k("s_nop 7"); k("s_nop 7")
    for x in epi(*prev):
        if isinstance(x, tuple): vq.op(x[1], 'st')
        else: k(x)
    k(f"s_branch {k.ref('end')}")

def role_pwp(k):
    L = lambda s: k.ref('pwp_' + s)
    k("s_mul_i32 s21, s20, 13108"); k("s_lshr_b32 s21, s21, 16")
    k("s_mul_i32 s22, s21, 5"); k("s_sub_u32 s22, s20, s22")
    k("s_mul_i32 s23, s21, 21846"); k("s_lshr_b32 s23, s23, 16")
    k("s_mul_i32 s28, s23, 3"); k("s_sub_u32 s21, s21, s28")
    k("s_lshr_b32 s29, s23, 5")
    k("s_and_b32 s23, s23, 31")
    k("s_cmp_eq_u32 s29, 0")
    k(f"s_cbranch_scc0 {L('k')}")
    k.ptr(KA_WQ, 24)
    k(f"s_branch {L('go')}")
    k.lab('pwp_k')
    k.ptr(KA_WK, 24)
    k.lab('pwp_go')
    k("v_and_b32 v1, 31, v0")
    k("v_lshrrev_b32 v2, 5, v0")
    k("s_lshl_b32 s28, s21, 6")
    k("v_lshlrev_b32 v3, 1, v1")
    k("v_add_u32 v3, s28, v3")
    p2e_lane(k, 4, 3, 5, 6)
    k("s_cmp_eq_u32 s29, 0")
    k("s_cselect_b64 vcc, -1, 0")
    k("s_nop 1")
    k("v_cndmask_b32 v4, v4, v3, vcc")
    wp_block_off(k, 7, 3, 0, 5, 6)
    k(f"s_mul_i32 s30, s29, {3*20480}")
    k("s_mul_i32 s31, s23, 491520")
    k("s_add_u32 s30, s30, s31")
    k(f"s_add_u32 s30, s30, {WP}")
    k("s_lshl_b32 s31, s22, 4")
    k("v_add_u32 v8, s31, v2")
    k("s_waitcnt lgkmcnt(0)")
    k.srd(32, 24, 640 * 6144 * 2)
    k("s_mul_i32 s28, s23, 384")
    RAW, OUT = 16, 80
    for it in range(8):
        k(f"v_add_u32 v9, {2 * it}, v8")
        chunk_base_lane(k, 10, 9, 11)
        k("v_mul_u32_u24 v10, 12288, v10")
        k("v_lshl_add_u32 v10, v4, 1, v10")
        for j in range(8):
            k(f"s_add_u32 s31, s28, {CH_ROW[j] * 12288}")
            k(f"buffer_load_dword v{RAW + 8 * it + j}, v10, s[32:35], s31 offen")
    k("v_lshl_add_u32 v7, v8, 8, v7")
    k("v_mov_b32 v4, 0x05040100")
    k("v_mov_b32 v5, 0x07060302")
    for it in range(8):
        k(f"s_waitcnt vmcnt({8 * (7 - it)})")
        o = OUT + 8 * (it & 1)
        for m in range(4):
            k(f"v_perm_b32 v{o + m}, v{RAW + 8 * it + 2 * m + 1}, v{RAW + 8 * it + 2 * m}, v4")
            k(f"v_perm_b32 v{o + 4 + m}, v{RAW + 8 * it + 2 * m + 1}, v{RAW + 8 * it + 2 * m}, v5")
        k(f"buffer_store_dwordx4 {vr(o, 4)}, v7, {srd}, s30 offen offset:{it * 512}")
        k(f"buffer_store_dwordx4 {vr(o + 4, 4)}, v7, {srd}, s30 offen offset:{it * 512 + 16}")
        if it >= 1: k("s_nop 0")
    k(f"s_branch {k.ref('end')}")

def role_clear(k):
    ex_delta(k, 21)
    per = 4 * EX_BLOCK // N_CLR
    k(f"s_mul_i32 s22, s20, {per}")
    k("s_add_u32 s21, s21, s22")
    k(f"s_lshl_b32 s22, s{S_WAVE}, 10")
    k("s_add_u32 s21, s21, s22")
    k("v_lshlrev_b32 v1, 4, v0")
    for r in range(4, 8): k(f"v_mov_b32 v{r}, -1")
    k(f"s_mov_b32 s22, {per // 4096}")
    k.lab('clr_loop')
    k(f"buffer_store_dwordx4 v[4:7], v1, {srd}, s21 offen")
    k("s_add_u32 s21, s21, 4096")
    k("s_sub_u32 s22, s22, 1")
    k("s_cmp_lg_u32 s22, 0")
    k(f"s_cbranch_scc1 {k.ref('clr_loop')}")
    k(f"s_branch {k.ref('end')}")

CAL_N = 15
import os
CAL_DUMP = int(os.environ.get('CAL_DUMP', '0'))
if CAL_DUMP: CAL_N = 30
def role_zero(k):
    k("v_lshlrev_b32 v1, 4, v0")
    for r in range(4, 8): k(f"v_mov_b32 v{r}, 0")
    k(f"s_lshl_b32 s21, s{S_WAVE}, 10")
    k(f"s_add_u32 s21, s21, {CT_TICK}")
    k(f"buffer_store_dwordx4 v[4:7], v1, {srd}, s21 offen")
    k(f"s_lshl_b32 s21, s{S_WAVE}, 15")
    k(f"s_add_u32 s21, s21, {CT_FLAG}")
    assert 4 * 32768 == 2 * FL_LAYER
    for i in range(32):
        k(f"buffer_store_dwordx4 v[4:7], v1, {srd}, s21 offen offset:{(i % 4) * 1024}")
        if i % 4 == 3: k("s_add_u32 s21, s21, 4096")
    k(f"s_lshl_b32 s21, s{S_WAVE}, 15")
    k(f"s_add_u32 s21, s21, {KVT}")
    assert 4 * 32768 == 2 * KVT_L
    for i in range(32):
        k(f"buffer_store_dwordx4 v[4:7], v1, {srd}, s21 offen offset:{(i % 4) * 1024}")
        if i % 4 == 3: k("s_add_u32 s21, s21, 4096")
    k(f"s_branch {k.ref('end')}")

def role_cal(k, CAL_N=CAL_N, NW=1):
    k(f"s_cmp_lg_u32 s{S_WAVE}, 0")
    k(f"s_cbranch_scc1 {k.ref('end')}")
    ex_delta(k, 22)
    if NW > 1:
        k("s_lshr_b32 s21, s20, 2")
        k("s_and_b32 s20, s20, 3")
        k(f"s_mul_i32 s24, s21, {EX_STEP}")
        k("s_sub_u32 s22, s22, s24")
    k("s_getreg_b32 s23, hwreg(HW_REG_XCC_ID)")
    k("s_bfe_u32 s23, s23, 0x10002")
    k("s_mov_b64 exec, 1")
    k("v_mov_b32 v1, 0")
    cal = physmap(CAL_LOG)
    k(f"s_mul_i32 s24, s20, {EX_BLOCK}")
    k("s_add_u32 s22, s22, s24")
    k(f"s_add_u32 s22, s22, {31 * EX_STEP + cal}")
    k("s_mov_b32 s30, -1")
    k("s_mov_b32 s31, -1")
    k(f"s_mov_b32 s25, {CAL_N}")
    k("v_mov_b32 v2, 0")
    k.lab('cal')
    for p in range(2):
        k("s_and_b32 s24, s25, 15")
        k("s_lshl_b32 s24, s24, 7")
        k("s_add_u32 s24, s24, s22")
        if p: k(f"s_add_u32 s24, s24, {p * 8192}")
        k("s_memtime s[26:27]")
        k("s_waitcnt lgkmcnt(0)")
        k(f"buffer_atomic_add v2, v1, {srd}, s24 offen sc0 sc1")
        k("s_waitcnt vmcnt(0)")
        k("s_memtime s[28:29]")
        k("v_mov_b32 v2, 0")
        k("s_waitcnt lgkmcnt(0)")
        k("s_sub_u32 s26, s28, s26")
        k(f"s_min_u32 s{30 + p}, s{30 + p}, s26")
        if CAL_DUMP:
            k("s_lshl_b32 s27, s20, 8")
            k("s_lshl_b32 s28, s25, 3")
            k("s_add_u32 s27, s27, s28")
            k(f"s_add_u32 s27, s27, {CT_PAR + 0x1000 + 4 * p}")
            k("v_mov_b32 v3, s26")
            k(f"buffer_store_dword v3, v1, {srd}, s27 offen")
            k("s_waitcnt vmcnt(0)")
    k("s_sub_u32 s25, s25, 1")
    k("s_cmp_lg_u32 s25, 0")
    k(f"s_cbranch_scc1 {k.ref('cal')}")
    if NW > 1:
        k("s_min_u32 s30, s30, 0xffff"); k("s_min_u32 s31, s31, 0xffff")
        k("s_cmp_eq_u32 s23, 0")
        k("s_cselect_b32 s24, s30, s31")
        k("s_cselect_b32 s25, s31, s30")
        k("s_lshl_b32 s24, s24, 16")
        k("s_or_b32 s24, s24, s25")
        k("v_mov_b32 v3, s24")
        k("s_lshl_b32 s25, s20, 4")
        k("s_lshl_b32 s26, s21, 2")
        k("s_add_u32 s25, s25, s26")
        k(f"s_add_u32 s25, s25, {CT_PAR + 128}")
        k(f"buffer_store_dword v3, v1, {srd}, s25 offen")
        k(f"s_branch {k.ref('end')}")
        return
    k("s_cmp_lt_u32 s31, s30")
    k("s_cselect_b32 s24, 1, 0")
    k("s_xor_b32 s24, s24, s23")
    k("s_lshl_b32 s24, s24, 13")
    k("v_mov_b32 v3, s24")
    k("s_lshl_b32 s25, s20, 2")
    k(f"s_add_u32 s25, s25, {CT_PAR}")
    k(f"buffer_store_dword v3, v1, {srd}, s25 offen")
    k("s_lshl_b32 s26, s30, 16")
    k("s_or_b32 s26, s26, s31")
    k("v_mov_b32 v3, s26")
    k(f"buffer_store_dword v3, v1, {srd}, s25 offen offset:64")
    k(f"s_branch {k.ref('end')}")

def build_prep(name="prep", newa=False, cfg=None):
    import aly
    cfg = cfg or {}
    k = K(name, vgpr=248, sgpr=64)
    W2 = cfg.get('wvo2', 0)
    NWVO = 160 * W2 if W2 else N_WVO
    CW = cfg.get('calw', 1); assert CW in (1, 4)
    NCTL = 4 * CW + 1
    total = PREP_WG - N_CTL + NCTL - N_WVO + NWVO + (aly.N_PWA + aly.N_PWO if newa else 0)
    k(f"s_cmp_ge_u32 s2, {total}")
    k(f"s_cbranch_scc1 {k.ref('end0' if cfg.get('prt') else 'end')}")
    if cfg.get('prt'): k("s_memrealtime s[60:61]")
    prologue(k)
    k("s_mov_b32 s20, s2")
    k(f"s_cmp_lt_u32 s2, {4 * CW}")
    k(f"s_cbranch_scc1 {k.ref('r_cal')}")
    k(f"s_cmp_eq_u32 s2, {4 * CW}")
    k(f"s_cbranch_scc1 {k.ref('r_zero')}")
    k(f"s_sub_u32 s20, s2, {NCTL}")
    if newa:
        k(f"s_cmp_lt_u32 s20, {aly.N_PWA}")
        k(f"s_cbranch_scc1 {k.ref('r_pwa')}")
        k(f"s_sub_u32 s20, s20, {aly.N_PWA}")
        k(f"s_cmp_lt_u32 s20, {aly.N_PWO}")
        k(f"s_cbranch_scc1 {k.ref('r_pwo')}")
        k(f"s_sub_u32 s20, s20, {aly.N_PWO}")
    k(f"s_cmp_lt_u32 s20, {NWVO}")
    k(f"s_cbranch_scc1 {k.ref('r_wvo')}")
    k(f"s_sub_u32 s20, s20, {NWVO}")
    k(f"s_cmp_lt_u32 s20, {N_PWP}")
    k(f"s_cbranch_scc1 {k.ref('r_pwp')}")
    k(f"s_sub_u32 s20, s20, {N_PWP}")
    if 'clr' in cfg.get('pskip', ''): k(f"s_branch {k.ref('end')}")
    role_clear(k)
    k.lab('r_cal')
    if 'cal' in cfg.get('pskip', ''): k(f"s_branch {k.ref('end')}")
    role_cal(k, cfg.get('caln', CAL_N), CW)
    k.lab('r_zero'); role_zero(k)
    k.lab('r_wvo')
    if 'wvo' in cfg.get('pskip', ''): k(f"s_branch {k.ref('end')}")
    if W2: role_wvo2(k, W2)
    else:
        k("s_lshl_b32 s20, s20, 2"); k(f"s_add_u32 s20, s20, s{S_WAVE}")
        role_wvo(k)
    k.lab('r_pwp')
    if 'pwp' in cfg.get('pskip', ''): k(f"s_branch {k.ref('end')}")
    k("s_lshl_b32 s20, s20, 2"); k(f"s_add_u32 s20, s20, s{S_WAVE}")
    role_pwp(k)
    if newa:
        k.lab('r_pwa'); aly.role_pwa(k)
        k.lab('r_pwo')
        k("s_lshl_b32 s20, s20, 2"); k(f"s_add_u32 s20, s20, s{S_WAVE}")
        aly.role_pwo(k)
    k.lab('end')
    if cfg.get('prt'):
        k("s_waitcnt vmcnt(0)")
        k("s_memrealtime s[62:63]")
        k("s_waitcnt lgkmcnt(0)")
        k("s_mov_b64 exec, 1")
        k("s_lshl_b32 s32, s2, 2")
        k(f"s_add_u32 s32, s32, s{S_WAVE}")
        k("s_lshl_b32 s32, s32, 4")
        k(f"s_add_u32 s32, s32, {cfg['prt']}")
        k("s_getreg_b32 s33, hwreg(HW_REG_XCC_ID)")
        k("v_mov_b32 v1, 0")
        for n, sr in enumerate((60, 62, 33)):
            k(f"v_mov_b32 v2, s{sr}")
            k(f"buffer_store_dword v2, v1, {srd}, s32 offen offset:{4*n}")
            k("s_nop 1")
        k.lab('end0')
    return k, total

def wave_sum(k, v, tmp, s0):
    k("s_nop 1")
    k(f"v_add_f32 v{tmp}, v{v}, v{v} quad_perm:[1,0,3,2] row_mask:0xf bank_mask:0xf")
    k("s_nop 1")
    k(f"v_add_f32 v{tmp}, v{tmp}, v{tmp} quad_perm:[2,3,0,1] row_mask:0xf bank_mask:0xf")
    k("s_nop 1")
    k(f"v_add_f32 v{tmp}, v{tmp}, v{tmp} row_half_mirror row_mask:0xf bank_mask:0xf")
    k("s_nop 1")
    k(f"v_add_f32 v{tmp}, v{tmp}, v{tmp} row_mirror row_mask:0xf bank_mask:0xf")
    k("s_nop 1")
    for i in range(4): k(f"v_readlane_b32 s{s0+i}, v{tmp}, {16*i}")
    k("s_nop 1")
    k(f"v_mov_b32 v{v}, s{s0}")
    for i in range(1, 4): k(f"v_add_f32 v{v}, s{s0+i}, v{v}")

def build_lnb(name, layer, src_off):
    k = K(name, vgpr=32, sgpr=48)
    k("s_cmp_gt_u32 s2, 512")
    k(f"s_cbranch_scc1 {k.ref('end')}")
    prologue(k, [(KA_MEM0, 6)])
    k("s_cmp_eq_u32 s2, 512")
    k(f"s_cbranch_scc1 {k.ref('mem0')}")
    k("s_lshl_b32 s20, s2, 2")
    k(f"s_add_u32 s20, s20, s{S_WAVE}")
    k("s_mul_i32 s21, s20, 1280")
    k(f"s_add_u32 s21, s21, {src_off}")
    k("v_lshlrev_b32 v3, 2, v0")
    for j in range(5): k(f"buffer_load_dword v{4+j}, v3, {srd}, s21 offen offset:{j*256}")
    k("v_lshrrev_b32 v20, 4, v0")
    k("v_lshlrev_b32 v20, 2, v20")
    k("v_bfe_u32 v21, v0, 3, 1")
    k("v_lshl_add_u32 v20, v21, 1, v20")
    k("v_bfe_u32 v21, v0, 1, 1")
    k("v_add_u32 v20, v20, v21")
    k("v_lshlrev_b32 v20, 9, v20")
    k("v_and_b32 v21, 1, v0")
    k("v_lshl_add_u32 v20, v21, 3, v20")
    k("v_bfe_u32 v21, v0, 2, 1")
    k("v_lshl_add_u32 v23, v21, 2, v20")
    k("s_lshr_b32 s22, s20, 5")
    k(f"s_mul_i32 s22, s22, {XN_SEG}")
    k("s_and_b32 s23, s20, 31")
    k("s_lshl_b32 s23, s23, 4")
    k("s_add_u32 s22, s22, s23")
    k(f"s_add_u32 s22, s22, {XN}")
    k("s_waitcnt vmcnt(0)")
    for j in range(5):
        k(f"v_lshlrev_b32 v{10+2*j}, 16, v{4+j}")
        k(f"v_and_b32 v{11+2*j}, 0xffff0000, v{4+j}")
    k("v_add_f32 v20, v10, v11")
    for j in range(2, 10): k(f"v_add_f32 v20, v20, v{10+j}")
    wave_sum(k, 20, 21, 24)
    k(f"v_mul_f32 v20, {hexf(1.0/640)}, v20")
    for j in range(10): k(f"v_sub_f32 v{10+j}, v{10+j}, v20")
    k("v_mul_f32 v21, v10, v10")
    for j in range(1, 10): k(f"v_fmac_f32 v21, v{10+j}, v{10+j}")
    wave_sum(k, 21, 22, 24)
    k("v_mov_b32 v22, 0x3727c5ac")
    k(f"v_fmac_f32 v22, {hexf(1.0/640)}, v21")
    k("v_rsq_f32 v22, v22")
    k("s_nop 0")
    for j in range(10): k(f"v_mul_f32 v{10+j}, v{10+j}, v22")
    for j in range(5): k(f"v_cvt_pk_bf16_f32 v{4+j}, v{10+2*j}, v{11+2*j}")
    for j in range(5):
        k(f"s_add_u32 s23, s22, {j * 16 * 512}")
        k(f"buffer_store_dword v{4+j}, v23, {srd}, s23 offen")
    k(f"s_branch {k.ref('end')}")
    k.lab('mem0')
    k.srd(16, 6, 8 * 640 * 2)
    ex_delta(k, 22)
    k(f"s_mov_b32 s23, {CT_PAR + 8 * layer}")
    k(f"s_buffer_load_dword s24, {srd}, s23")
    k("s_waitcnt lgkmcnt(0)")
    k("s_and_b32 s24, s24, 8192")
    k(f"s_add_u32 s22, s22, {2 * layer * EX_BLOCK}")
    k("s_xor_b32 s25, s24, 8192")
    k("s_add_u32 s26, s22, s25")
    k("s_add_u32 s22, s22, s24")
    k(f"s_lshl_b32 s25, s{S_WAVE}, 6")
    k("v_add_u32 v1, s25, v0")
    for it in range(3):
        k(f"v_add_u32 v2, {256 * it}, v1")
        k("v_and_b32 v3, 7, v2")
        k("v_mul_u32_u24 v3, 1280, v3")
        k("v_lshrrev_b32 v4, 3, v2")
        k("v_lshl_add_u32 v3, v4, 4, v3")
        k("v_lshlrev_b32 v5, 4, v2")
        k(f"v_add_u32 v5, {M_LOG}, v5")
        k("v_lshrrev_b32 v6, 13, v5")
        k("v_lshlrev_b32 v6, 14, v6")
        k("v_and_b32 v5, 8191, v5")
        k("v_add_u32 v5, v5, v6")
        k("v_cmp_gt_u32 vcc, 640, v2")
        k("s_and_saveexec_b64 s[30:31], vcc")
        sk = k.ref(f'm0s{it}')
        k(f"s_cbranch_execz {sk}")
        k("buffer_load_dwordx4 v[8:11], v3, s[16:19], 0 offen")
        k("s_waitcnt vmcnt(0)")
        k(f"buffer_store_dwordx4 v[8:11], v5, {srd}, s22 offen")
        k(f"buffer_store_dwordx4 v[8:11], v5, {srd}, s26 offen")
        k.lab(f'm0s{it}')
        k("s_mov_b64 exec, s[30:31]")
    k.lab('end')
    return k, 513

G_LDS = 3 * XN_SEG
GV_L16 = 1; GV_RD = 2; GV_ST = 3; GV_W = 4
G_RING = 8; G_NR = 8
G_ACC = 40
G_OUT = 104
G_WV = 192
GS_LNW = 56; GS_LNA = 57; GS_SPIN = 58
GS_SEG = 14; GS_END = 15; GS_BUF = 16; GS_ST0 = 17; GS_ST1 = 18; GS_DMA = 19; GS_INC = 20; GS_LB = 21; GS_NB = 22

def gw(kap, t):
    n = kap * 2 + t
    return ar(4 * n, 4) if n < 64 else vr(G_WV + 4 * (n - 64), 4)

def gemm_body(k, isu, tag, cfg):
    L = lambda s: k.ref(f"g{tag}_{s}")
    lab = lambda s: k.lab(f"g{tag}_{s}")
    ovl = cfg.get('ovl'); SC1 = " sc1" if ovl else ""
    LNW = cfg.get('na') in (2, 3, 4)
    NSOLO = cfg.get('nsolo', 0); SOLO = NSOLO > 0
    nfl = [0]
    def flag(val_s):
        if not ovl: return
        nfl[0] += 1
        sk = f"g{tag}_fl{nfl[0]}"
        k(f"s_cmp_lg_u32 s{S_WAVE}, 0")
        k(f"s_cbranch_scc1 {k.ref(sk)}")
        k("s_mov_b64 exec, 1")
        k(f"s_lshl_b32 s26, s{cfg['cg_s']}, 7")
        k("v_mov_b32 v7, s26")
        k(f"v_mov_b32 v{G_OUT + 16}, s{val_s}")
        k(f"buffer_store_dword v{G_OUT + 16}, v7, {srd}, s{cfg['flag_s']} offen sc1")
        k("s_mov_b64 exec, -1")
        k.lab(sk)
    def dma_items(seg_s):
        it = [[f"s_min_u32 s24, s{seg_s}, 63", f"s_mul_i32 s24, s24, {XN_SEG}", f"s_add_u32 s24, s24, s{GS_DMA}",
               f"s_mul_i32 s25, s{S_WAVE}, 10240", f"s_add_u32 s25, s25, s{GS_NB}"]]
        for grp in range(3):
            for i in range(4 if grp < 2 else 2):
                p = []
                if i == 0:
                    if grp: p += ["s_add_u32 s24, s24, 4096", "s_add_u32 s25, s25, 4096"]
                    p += ["s_mov_b32 m0, s25", "s_nop 0"]
                p.append(f"buffer_load_dwordx4 v{GV_L16}, {srd}, s24 offen offset:{i * 1024}{' sc1' if LNW else ''} lds")
                it.append(p)
        return it
    def dma(seg_s):
        for p in dma_items(seg_s):
            for x in p: k(x)
    def lnwait(seg_s):
        if not LNW: return
        nfl[0] += 1
        sk = f"g{tag}_lw{nfl[0]}"; lp = f"g{tag}_lp{nfl[0]}"
        k(f"s_cmp_lg_u32 s{S_WAVE}, 0")
        k(f"s_cbranch_scc1 {k.ref(sk)}")
        k(f"s_min_u32 s28, s{seg_s}, 63")
        k(f"s_cmp_gt_u32 s{GS_LNW}, s28")
        k(f"s_cbranch_scc1 {k.ref(sk)}")
        k.lab(lp)
        k(f"buffer_load_dwordx4 v[124:127], v{GV_L16}, {srd}, s{GS_LNA} offen sc1")
        k("s_waitcnt vmcnt(0)")
        k("v_min_u32 v124, v124, v125")
        k("v_min_u32 v126, v126, v127")
        k("v_min_u32 v124, v124, v126")
        k("v_cmp_eq_u32 vcc, 0, v124")
        k("s_nop 1")
        k(f"s_ff1_i32_b64 s{GS_LNW}, vcc")
        k(f"s_min_u32 s{GS_LNW}, s{GS_LNW}, 64")
        k(f"s_sub_u32 s{GS_SPIN}, s{GS_SPIN}, 1")
        k(f"s_cbranch_scc1 {k.ref('bail')}")
        k(f"s_cmp_gt_u32 s{GS_LNW}, s28")
        k(f"s_cbranch_scc0 {k.ref(lp)}")
        k.lab(sk)
    def nextbuf(dst, src):
        k(f"s_add_u32 s{dst}, s{src}, {XN_SEG}")
        k(f"s_cmp_eq_u32 s{dst}, {G_LDS}")
        k(f"s_cselect_b32 s{dst}, 0, s{dst}")
    k(f"s_mul_i32 s{GS_DMA}, s{S_WAVE}, 10240")
    k(f"s_add_u32 s{GS_DMA}, s{GS_DMA}, {XN}")
    k(f"s_mov_b32 s{GS_NB}, 0")
    if LNW:
        k(f"s_mov_b32 s{GS_LNW}, 0")
        k(f"s_mov_b32 s{GS_SPIN}, 400000")
        k(f"s_add_u32 s{GS_LNA}, s{cfg['flag_s']}, {FL_LN}")
        if cfg.get('rt'): k("s_memrealtime s[60:61]")
        lnwait(GS_SEG)
        k("s_barrier")
        if cfg.get('rt'): k("s_memrealtime s[62:63]")
        dma(GS_SEG)
        k(f"s_mov_b32 s{GS_NB}, {XN_SEG}")
        k(f"s_mov_b32 s{GS_BUF}, 0")
        k("s_waitcnt vmcnt(0)")
    else:
        dma(GS_SEG)
        k(f"s_mov_b32 s{GS_NB}, {XN_SEG}")
        k(f"s_add_u32 s23, s{GS_SEG}, 1")
        dma(23)
        k(f"s_mov_b32 s{GS_NB}, {2 * XN_SEG}")
        k(f"s_mov_b32 s{GS_BUF}, 0")
        k("s_waitcnt vmcnt(10)")
    k("s_barrier")
    if cfg.get('rt'): k("s_memrealtime s[66:67]")
    k(f"v_mov_b32 v{GV_RD}, v{GV_L16}")
    for r in range(G_NR - 2):
        k(f"ds_read_b128 {vr(G_RING + 4 * r, 4)}, v{GV_RD} offset:{r * 1024}")
    PRE = G_NR - 2
    def epilogue_items(par):
        it = []
        for t in range(2):
            a = G_ACC + 32 * par + 16 * t
            for j in range(2):
                o = G_OUT + 4 * ((2 * t + j) & 3)
                for q in range(2):
                    it.append(f"v_cvt_pk_bf16_f32 v{o + 2 * q}, v{a + 8 * j + 4 * q}, v{a + 8 * j + 4 * q + 1}")
                    it.append(f"v_cvt_pk_bf16_f32 v{o + 2 * q + 1}, v{a + 8 * j + 4 * q + 2}, v{a + 8 * j + 4 * q + 3}")
                it.append("s_nop 1")
                it.append(f"v_permlane32_swap_b32 v{o}, v{o + 2}")
                it.append(f"v_permlane32_swap_b32 v{o + 1}, v{o + 3}")
                if isu: it.append(f"buffer_store_dwordx4 {vr(o, 4)}, v{GV_ST}, {srd}, s{GS_ST0} offen offset:{t * 2560 + j * 256}{SC1}")
                else:   it.append(f"buffer_store_dwordx4 {vr(o, 4)}, v{GV_ST}, {srd}, s{GS_ST0 + t} offen offset:{j * 1024}{SC1}")
        it.append(f"s_add_u32 s{GS_ST0}, s{GS_ST0}, s{GS_INC}")
        it.append(f"s_add_u32 s{GS_ST1}, s{GS_ST1}, s{GS_INC}")
        return it
    def segment(par, first, start=None, late=True, solo=False):
        side = {i: [] for i in range(80)}
        if not first:
            for n, it in enumerate(epilogue_items(par ^ 1)): side[4 + n].append(it)
        for kap in range(40):
            slot = kap % G_NR
            nk = kap + PRE
            if nk == 40 and not solo:
                k(f"v_add_u32 v{GV_RD + 4}, s{GS_LB}, v{GV_L16}")
            rb = GV_RD if nk < 40 else GV_RD + 4
            if nk < 40 or not solo:
                k(f"ds_read_b128 {vr(G_RING + 4 * (nk % G_NR), 4)}, v{rb} offset:{(nk % 40) * 1024}")
            k(f"s_waitcnt lgkmcnt({min(PRE, 39 - kap) if solo else PRE})")
            if solo and kap == 30:
                k(f"buffer_load_dwordx4 v[124:127], v{GV_L16}, {srd}, s{GS_LNA} offen sc1")
            x = vr(G_RING + 4 * slot, 4)
            for t in range(2):
                d = vr(G_ACC + 32 * par + 16 * t, 16)
                c = "0" if kap == 0 else d
                if isu: k(f"v_mfma_f32_32x32x16_bf16 {d}, {x}, {gw(kap, t)}, {c}")
                else:   k(f"v_mfma_f32_32x32x16_bf16 {d}, {gw(kap, t)}, {x}, {c}")
                for it in side[2 * kap + t]: k(it)
            if start is not None and kap == start:
                k(f"s_add_u32 s23, s{GS_SEG}, 1")
                lnwait(23)
                k("s_barrier")
                items = dma_items(23)
                for x_ in items[0]: k(x_)
                for n, p in enumerate(items[1:]): side[2 * (kap + 1 + n)] += p
                nextbuf(GS_NB, GS_NB)
            if kap == 28 and not solo:
                if late:
                    k(f"s_add_u32 s23, s{GS_SEG}, 2")
                    lnwait(23)
                if first or not ovl:
                    k("s_waitcnt vmcnt(0)" if first else "s_waitcnt vmcnt(4)")
                    k("s_barrier")
                else:
                    nfl[0] += 1
                    l1 = f"g{tag}_dr{nfl[0]}"; l2 = f"g{tag}_dq{nfl[0]}"
                    k(f"s_cmp_gt_u32 s{GS_SEG}, {NSOLO + 2 if SOLO else 2}")
                    k(f"s_cbranch_scc1 {k.ref(l1)}")
                    k("s_waitcnt vmcnt(0)")
                    k(f"s_mov_b32 s27, s{GS_SEG}")
                    k(f"s_branch {k.ref(l2)}")
                    k.lab(l1)
                    k("s_waitcnt vmcnt(4)")
                    k(f"s_sub_u32 s27, s{GS_SEG}, 1")
                    k.lab(l2)
                    k("s_barrier")
                    flag(27)
                nextbuf(GS_LB, GS_BUF)
                if late:
                    k(f"s_add_u32 s23, s{GS_SEG}, 2")
                    items = dma_items(23)
                    for x_ in items[0]: k(x_)
                    for n, p in enumerate(items[1:]): side[2 * (kap + 1 + n)] += p
                    nextbuf(GS_NB, GS_NB)
        if not solo:
            k(f"v_mov_b32 v{GV_RD}, v{GV_RD + 4}")
            k(f"s_mov_b32 s{GS_BUF}, s{GS_LB}")
        k(f"s_add_u32 s{GS_SEG}, s{GS_SEG}, 1")
    if LNW and SOLO:
        lab('solo')
        segment(0, True, None, False, True)
        k("s_nop 7"); k("s_nop 7")
        for it in epilogue_items(0): k(it)
        k("s_waitcnt vmcnt(0)")
        k("s_barrier")
        flag(GS_SEG)
        if cfg.get('rt'):
            k(f"s_cmp_lg_u32 s{GS_SEG}, 1"); k(f"s_cbranch_scc1 {L('rt1')}"); k("s_memrealtime s[68:69]"); lab('rt1')
        lab('spoll')
        k("v_min_u32 v124, v124, v125")
        k("v_min_u32 v126, v126, v127")
        k("v_min_u32 v124, v124, v126")
        k("v_cmp_eq_u32 vcc, 0, v124")
        k("s_nop 1")
        k(f"s_ff1_i32_b64 s{GS_LNW}, vcc")
        k(f"s_min_u32 s{GS_LNW}, s{GS_LNW}, 64")
        k(f"s_cmp_gt_u32 s{GS_LNW}, s{GS_SEG}")
        k(f"s_cbranch_scc1 {L('sok')}")
        k(f"s_sub_u32 s{GS_SPIN}, s{GS_SPIN}, 1")
        k(f"s_cbranch_scc1 {k.ref('bail')}")
        k(f"buffer_load_dwordx4 v[124:127], v{GV_L16}, {srd}, s{GS_LNA} offen sc1")
        k("s_waitcnt vmcnt(0)")
        k(f"s_branch {L('spoll')}")
        lab('sok')
        dma(GS_SEG)
        k(f"s_mov_b32 s{GS_BUF}, s{GS_NB}")
        nextbuf(GS_NB, GS_NB)
        k(f"v_add_u32 v{GV_RD}, s{GS_BUF}, v{GV_L16}")
        k("s_waitcnt vmcnt(0)")
        k("s_barrier")
        for r in range(G_NR - 2):
            k(f"ds_read_b128 {vr(G_RING + 4 * r, 4)}, v{GV_RD} offset:{r * 1024}")
        k(f"s_cmp_lt_u32 s{GS_SEG}, {NSOLO}")
        k(f"s_cbranch_scc1 {L('solo')}")
        segment(1, True, 2)
        if cfg.get('rt'): k("s_memrealtime s[70:71]")
        lab('loop')
        segment(0, False)
        k(f"s_cmp_ge_u32 s{GS_SEG}, s{GS_END}")
        k(f"s_cbranch_scc1 {L('fin0')}")
        segment(1, False)
        k(f"s_cmp_lt_u32 s{GS_SEG}, s{GS_END}")
        k(f"s_cbranch_scc1 {L('loop')}")
        k(f"s_branch {L('fin1')}")
    elif LNW:
        segment(0, True, 6, False)
        k("s_nop 7"); k("s_nop 7")
        for it in epilogue_items(0): k(it)
        k("s_waitcnt vmcnt(0)")
        k("s_barrier")
        flag(GS_SEG)
        if cfg.get('rt'): k("s_memrealtime s[68:69]")
        segment(1, True, 2)
        if cfg.get('rt'): k("s_memrealtime s[70:71]")
        lab('loop')
        segment(0, False)
        k(f"s_cmp_ge_u32 s{GS_SEG}, s{GS_END}")
        k(f"s_cbranch_scc1 {L('fin0')}")
        segment(1, False)
        k(f"s_cmp_lt_u32 s{GS_SEG}, s{GS_END}")
        k(f"s_cbranch_scc1 {L('loop')}")
        k(f"s_branch {L('fin1')}")
    else:
        segment(0, True)
        k(f"s_cmp_ge_u32 s{GS_SEG}, s{GS_END}")
        k(f"s_cbranch_scc1 {L('fin0')}")
        lab('loop')
        segment(1, False)
        k(f"s_cmp_ge_u32 s{GS_SEG}, s{GS_END}")
        k(f"s_cbranch_scc1 {L('fin1')}")
        segment(0, False)
        k(f"s_cmp_lt_u32 s{GS_SEG}, s{GS_END}")
        k(f"s_cbranch_scc1 {L('loop')}")
    lab('fin0')
    k("s_nop 7"); k("s_nop 7")
    for it in epilogue_items(0): k(it)
    k(f"s_branch {L('done')}")
    lab('fin1')
    k("s_nop 7"); k("s_nop 7")
    for it in epilogue_items(1): k(it)
    lab('done')
    k("s_waitcnt vmcnt(0) lgkmcnt(0)")
    if ovl:
        k("s_barrier")
        flag(GS_SEG)

def u_weight_addr(k, cg_s, vr_, vhf, vt, out_v, out_s, st):
    k(f"v_lshrrev_b32 v{vt}, 3, v{vr_}")
    k(f"v_and_b32 v{vt+1}, 7, v{vr_}")
    k(f"v_mul_u32_u24 v{vt+2}, 20480, v{vt}")
    k(f"v_lshl_add_u32 v{vt+2}, v{vt+1}, 4, v{vt+2}")
    k(f"v_lshl_add_u32 v{out_v}, v{vhf}, 8, v{vt+2}")
    k(f"s_mul_i32 s{st}, s{cg_s}, 327680")
    k(f"s_mul_i32 s{st+1}, s{S_WAVE}, 81920")
    k(f"s_add_u32 s{st}, s{st}, s{st+1}")
    k(f"s_add_u32 s{out_s}, s{st}, {WY}")

def qk_setup(k, cg_s, vr_, vhf, vt, out_v, out_s, st, st0):
    S = lambda n: f"s{st + n - 26}"
    k(f"s_sub_u32 {S(26)}, s{cg_s}, 80")
    k(f"s_cmp_ge_u32 {S(26)}, 24")
    k(f"s_cselect_b32 {S(27)}, 1, 0")
    k(f"s_cselect_b32 {S(28)}, 24, 0")
    k(f"s_sub_u32 {S(26)}, {S(26)}, {S(28)}")
    k(f"s_lshl_b32 {S(26)}, {S(26)}, 3")
    k(f"s_lshl_b32 {S(28)}, s{S_WAVE}, 1")
    k(f"s_add_u32 {S(26)}, {S(26)}, {S(28)}")
    for t in range(2):
        k(f"s_add_u32 {S(28)}, {S(26)}, {t}")
        k(f"s_mul_i32 {S(29)}, {S(28)}, 171")
        k(f"s_lshr_b32 {S(29)}, {S(29)}, 10")
        k(f"s_mul_i32 {S(30)}, {S(29)}, 6")
        k(f"s_sub_u32 {S(30)}, {S(28)}, {S(30)}")
        if st0 is not None:
            k(f"s_mul_i32 {S(31)}, {S(29)}, {KX_SH}")
            k(f"s_lshl_b32 {S(32)}, {S(30)}, 11")
            k(f"s_add_u32 {S(31)}, {S(31)}, {S(32)}")
            k(f"s_mul_i32 {S(32)}, s{GS_SEG}, {32 * KX_SH}")
            k(f"s_add_u32 {S(31)}, {S(31)}, {S(32)}")
            k(f"s_mul_i32 {S(32)}, {S(27)}, {QX - KX}")
            k(f"s_add_u32 {S(31)}, {S(31)}, {S(32)}")
            k(f"s_add_u32 s{st0 + t}, {S(31)}, {KX}")
        k(f"s_lshl_b32 {S(30)}, {S(30)}, 5")
        k(f"v_add_u32 v{vt}, {S(30)}, v{vr_}")
        p2e_lane(k, vt + 1, vt, vt + 2, vt + 3)
        k(f"s_cmp_eq_u32 {S(27)}, 1")
        k("s_cselect_b64 vcc, -1, 0")
        k("s_nop 1")
        k(f"v_cndmask_b32 v{vt}, v{vt}, v{vt+1}, vcc")
        wp_block_off(k, vt + 1, vt, 0, vt + 2, vt + 3)
        k(f"v_lshl_add_u32 v{out_v + t}, v{vhf}, 8, v{vt+1}")
        k(f"s_xor_b32 {S(30)}, {S(27)}, 1")
        k(f"s_mul_i32 {S(30)}, {S(30)}, {3*20480}")
        k(f"s_mul_i32 {S(31)}, {S(29)}, 491520")
        k(f"s_add_u32 {S(30)}, {S(30)}, {S(31)}")
        k(f"s_add_u32 s{out_s + t}, {S(30)}, {WP}")

def role_gemm(k, cg_s, cfg=None):
    cfg = dict(cfg or {}, cg_s=cg_s)
    WIN = cfg.get('wing', cfg.get('win'))
    L = lambda s: k.ref('g_' + s)
    k(f"v_lshlrev_b32 v{GV_L16}, 4, v0")
    k("v_and_b32 v8, 31, v0")
    k("v_lshrrev_b32 v9, 5, v0")
    k(f"s_cmp_ge_u32 s{cg_s}, 80")
    k(f"s_cbranch_scc1 {L('qk')}")
    u_weight_addr(k, cg_s, 8, 9, 10, GV_W, 24, 24)
    SEMI = cfg.get('na') == 4
    for kap in range(40):
        if kap % 7 == 0 and kap: k(f"s_add_u32 s24, s24, {7 * 512}")
        if SEMI and kap < cfg.get('npf', 64) // 2: continue
        for t in range(2):
            k(f"buffer_load_dwordx4 {gw(kap, t)}, v{GV_W}, {srd}, s24 offen offset:{(kap % 7) * 512 + t * 128}")
            if WIN and 2 * kap + t >= WIN: k(f"s_waitcnt vmcnt({WIN})")
    k(f"s_lshl_b32 s25, s{S_WAVE}, 3")
    k("v_add_u32 v10, s25, v10")
    k("v_mul_u32_u24 v10, 640, v10")
    k("v_lshl_add_u32 v10, v9, 7, v10")
    k("v_lshl_add_u32 v10, v11, 4, v10")
    k(f"v_add_u32 v{GV_ST}, 128, v10")
    k(f"s_mul_i32 s{GS_ST0}, s{cg_s}, 20480")
    k(f"s_mul_i32 s25, s{GS_SEG}, {Z_SEG}")
    k(f"s_add_u32 s{GS_ST0}, s{GS_ST0}, s25")
    k(f"s_add_u32 s{GS_ST0}, s{GS_ST0}, {Z}")
    k(f"s_mov_b32 s{GS_INC}, {Z_SEG}")
    gemm_body(k, True, 'u', cfg)
    k(f"s_branch {L('done')}")
    k.lab('g_qk')
    qk_setup(k, cg_s, 8, 9, 10, GV_W, 34, 26, GS_ST0)
    for kap in range(40):
        if kap % 8 == 0 and kap:
            k("s_add_u32 s34, s34, 4096"); k("s_add_u32 s35, s35, 4096")
        if SEMI and kap < cfg.get('npf', 64) // 2: continue
        for t in range(2):
            k(f"buffer_load_dwordx4 {gw(kap, t)}, v{GV_W + t}, {srd}, s{34 + t} offen offset:{(kap % 8) * 512}")
            if WIN and 2 * kap + t >= WIN: k(f"s_waitcnt vmcnt({WIN})")
    k(f"v_mov_b32 v{GV_ST}, v{GV_L16}")
    k(f"s_mov_b32 s{GS_INC}, {32 * KX_SH}")
    gemm_body(k, False, 'k', cfg)
    k.lab('g_done')

def build_gemmb(name="gemmb", nsplit=2):
    k = K(name, vgpr=256, sgpr=64, agpr=256)
    k(f"s_cmp_ge_u32 s2, {128 * nsplit}")
    k(f"s_cbranch_scc1 {k.ref('end')}")
    prologue(k)
    k("s_and_b32 s36, s2, 127")
    k("s_lshr_b32 s37, s2, 7")
    k(f"s_mul_i32 s{GS_SEG}, s37, {64 // nsplit}")
    k(f"s_add_u32 s{GS_END}, s{GS_SEG}, {64 // nsplit}")
    role_gemm(k, 36)
    k.lab('end')
    return k, 128 * nsplit, G_LDS

def role_w3a(k, seg_s, h_s, SC1=""):
    Q, KK, KMF, D1, D2, BI = 16, 64, 112, 160, 176, 192
    T = 208
    k("v_lshlrev_b32 v1, 4, v0")
    k("v_and_b32 v2, 31, v0")
    k("v_lshrrev_b32 v3, 5, v0")
    k(f"s_lshl_b32 s24, s{seg_s}, 5")
    k(f"s_add_u32 s24, s24, s{h_s}")
    k(f"s_mul_i32 s25, s24, {KX_SH}")
    k(f"s_add_u32 s26, s25, {QX}")
    k(f"s_add_u32 s27, s25, {KX}")
    k(f"s_mul_i32 s28, s24, {KM_SH}")
    k(f"s_add_u32 s28, s28, {KM}")
    k("v_and_b32 v4, 7, v0")
    k("v_lshlrev_b32 v4, 4, v4")
    k("v_lshl_add_u32 v4, v3, 7, v4")
    for kap in range(12):
        if kap % 4 == 0 and kap:
            k("s_add_u32 s26, s26, 4096"); k("s_add_u32 s27, s27, 4096")
        k(f"buffer_load_dwordx4 {vr(Q + 4 * kap, 4)}, v1, {srd}, s26 offen offset:{(kap % 4) * 1024}{SC1}")
        k(f"buffer_load_dwordx4 {vr(KK + 4 * kap, 4)}, v1, {srd}, s27 offen offset:{(kap % 4) * 1024}{SC1}")
        k(f"buffer_load_dwordx4 {vr(KMF + 4 * kap, 4)}, v4, {srd}, s28 offen offset:{kap * 256}{SC1}")
    k("v_lshlrev_b32 v5, 2, v3")
    k("v_sub_u32 v5, v2, v5")
    k(f"v_mov_b32 v6, {hexf(-1e30)}")
    for r in range(16):
        k(f"v_cmp_gt_i32 vcc, {(r & 3) + 8 * (r >> 2)}, v5")
        k("s_nop 1")
        k(f"v_cndmask_b32 v{BI + r}, 0, v6, vcc")
    for kap in range(12):
        k(f"s_waitcnt vmcnt({3 * (11 - kap)})")
        k(f"v_mfma_f32_32x32x16_bf16 {vr(D1, 16)}, {vr(KK + 4 * kap, 4)}, {vr(Q + 4 * kap, 4)}, {'0' if kap == 0 else vr(D1, 16)}")
        k(f"v_mfma_f32_32x32x16_bf16 {vr(D2, 16)}, {vr(KMF + 4 * kap, 4)}, {vr(Q + 4 * kap, 4)}, {'0' if kap == 0 else vr(D2, 16)}")
    k("s_nop 7"); k("s_nop 7")
    c = hexf(CSC)
    k(f"v_mov_b32 v7, {c}")
    for r in range(16): k(f"v_fma_f32 v{D1 + r}, v{D1 + r}, v7, v{BI + r}")
    for r in range(4): k(f"v_mul_f32 v{D2 + r}, v{D2 + r}, v7")
    vals = [D1 + r for r in range(16)] + [D2 + r for r in range(4)]
    m, u = T, T + 1
    k(f"v_max3_f32 v{m}, v{vals[0]}, v{vals[1]}, v{vals[2]}")
    rest = vals[3:]
    while len(rest) >= 2:
        k(f"v_max3_f32 v{m}, v{m}, v{rest[0]}, v{rest[1]}"); rest = rest[2:]
    if rest: k(f"v_max_f32 v{m}, v{m}, v{rest[0]}")
    k(f"v_mov_b32 v{u}, v{m}")
    k("s_nop 1")
    k(f"v_permlane32_swap_b32 v{m}, v{u}")
    k(f"v_max_f32 v{m}, v{m}, v{u}")
    for r in vals: k(f"v_sub_f32 v{r}, v{r}, v{m}")
    for r in vals: k(f"v_exp_f32 v{r}, v{r}")
    k("s_nop 0")
    s_ = T + 2
    k(f"v_add_f32 v{s_}, v{vals[0]}, v{vals[1]}")
    for r in vals[2:]: k(f"v_add_f32 v{s_}, v{s_}, v{r}")
    k(f"v_mov_b32 v{u}, v{s_}")
    k("s_nop 1")
    k(f"v_permlane32_swap_b32 v{s_}, v{u}")
    k(f"v_add_f32 v{s_}, v{s_}, v{u}")
    k(f"v_rcp_f32 v{s_}, v{s_}")
    k("s_nop 0")
    for r in vals: k(f"v_mul_f32 v{r}, v{r}, v{s_}")
    k(f"s_mul_i32 s25, s{seg_s}, {PX_SEG}")
    k(f"s_mul_i32 s26, s{h_s}, 2560")
    k("s_add_u32 s25, s25, s26")
    k(f"s_add_u32 s25, s25, {PXB}")
    O = Q
    for j in range(2):
        o = O + 4 * j
        for q in range(2):
            k(f"v_cvt_pk_bf16_f32 v{o + 2 * q}, v{D1 + 8 * j + 4 * q}, v{D1 + 8 * j + 4 * q + 1}")
            k(f"v_cvt_pk_bf16_f32 v{o + 2 * q + 1}, v{D1 + 8 * j + 4 * q + 2}, v{D1 + 8 * j + 4 * q + 3}")
        k("s_nop 1")
        k(f"v_permlane32_swap_b32 v{o}, v{o + 2}")
        k(f"v_permlane32_swap_b32 v{o + 1}, v{o + 3}")
        k(f"buffer_store_dwordx4 {vr(o, 4)}, v1, {srd}, s25 offen offset:{512 + j * 1024}{SC1}")
    k(f"v_cvt_pk_bf16_f32 v{O + 8}, v{D2}, v{D2 + 1}")
    k(f"v_cvt_pk_bf16_f32 v{O + 9}, v{D2 + 2}, v{D2 + 3}")
    k("v_lshlrev_b32 v4, 4, v2")
    k("v_lshl_add_u32 v4, v3, 3, v4")
    k(f"buffer_store_dwordx2 {vr(O + 8, 2)}, v4, {srd}, s25 offen{SC1}")

def build_w3a(name="w3a"):
    k = K(name, vgpr=216, sgpr=48)
    k("s_cmp_ge_u32 s2, 512")
    k(f"s_cbranch_scc1 {k.ref('end')}")
    prologue(k)
    k("s_lshl_b32 s20, s2, 2")
    k(f"s_add_u32 s20, s20, s{S_WAVE}")
    k("s_lshr_b32 s21, s20, 5")
    k("s_and_b32 s22, s20, 31")
    role_w3a(k, 21, 22)
    k.lab('end')
    return k, 512

def role_w3b(k, seg_s, cg_s, res_off, out_srd, out_off, NR=16, SC1=""):
    RING = 32; ACC = 16
    k("v_lshlrev_b32 v1, 4, v0")
    k("v_and_b32 v2, 31, v0")
    k("v_lshrrev_b32 v3, 5, v0")
    k("v_lshrrev_b32 v4, 3, v2")
    k("v_mul_u32_u24 v4, 20480, v4")
    k("v_and_b32 v5, 7, v2")
    k("v_lshl_add_u32 v4, v5, 4, v4")
    k("v_lshl_add_u32 v4, v3, 7, v4")
    k(f"s_mul_i32 s24, s{seg_s}, {Z_SEG}")
    k(f"s_mul_i32 s25, s{cg_s}, {4 * 20480}")
    k("s_add_u32 s24, s24, s25")
    k(f"s_add_u32 s24, s24, {Z}")
    k(f"s_mul_i32 s25, s{seg_s}, {PX_SEG}")
    k(f"s_add_u32 s25, s25, {PXB}")
    k("v_mul_u32_u24 v6, 1280, v2")
    k("v_lshl_add_u32 v6, v3, 4, v6")
    k(f"s_mul_i32 s26, s{seg_s}, {32 * 1280}")
    k(f"s_lshl_b32 s27, s{cg_s}, 6")
    k("s_add_u32 s26, s26, s27")
    k(f"s_add_u32 s27, s26, {res_off}")
    for j in range(2):
        k(f"buffer_load_dwordx4 {vr(8 + 4 * j, 4)}, v6, {srd}, s27 offen offset:{32 * j}")
    def load(kap):
        sl = RING + 8 * (kap % NR)
        if kap % 16 == 0 and kap: k("s_add_u32 s24, s24, 4096")
        if kap % 4 == 0 and kap: k("s_add_u32 s25, s25, 4096")
        k(f"buffer_load_dwordx4 {vr(sl, 4)}, v4, {srd}, s24 offen offset:{(kap % 16) * 256}{SC1}")
        k(f"buffer_load_dwordx4 {vr(sl + 4, 4)}, v1, {srd}, s25 offen offset:{(kap % 4) * 1024}{SC1}")
    for kap in range(NR): load(kap)
    issued = NR
    for kap in range(80):
        k(f"s_waitcnt vmcnt({2 * (issued - 1 - kap)})")
        sl = RING + 8 * (kap % NR)
        k(f"v_mfma_f32_32x32x16_bf16 {vr(ACC, 16)}, {vr(sl, 4)}, {vr(sl + 4, 4)}, {'0' if kap == 0 else vr(ACC, 16)}")
        if kap >= 1 and issued < 80:
            load(issued); issued += 1
    k("s_nop 7"); k("s_nop 7")
    O = RING
    for j in range(2):
        o = O + 4 * j
        for q in range(2):
            k(f"v_cvt_pk_bf16_f32 v{o + 2 * q}, v{ACC + 8 * j + 4 * q}, v{ACC + 8 * j + 4 * q + 1}")
            k(f"v_cvt_pk_bf16_f32 v{o + 2 * q + 1}, v{ACC + 8 * j + 4 * q + 2}, v{ACC + 8 * j + 4 * q + 3}")
        k("s_nop 1")
        k(f"v_permlane32_swap_b32 v{o}, v{o + 2}")
        k(f"v_permlane32_swap_b32 v{o + 1}, v{o + 3}")
        k("s_nop 1")
        for r in range(4):
            a, b, t0, t1 = O + 8, O + 9, O + 10, O + 11
            k(f"v_lshlrev_b32 v{a}, 16, v{o + r}")
            k(f"v_and_b32 v{b}, 0xffff0000, v{o + r}")
            k(f"v_lshlrev_b32 v{t0}, 16, v{8 + 4 * j + r}")
            k(f"v_and_b32 v{t1}, 0xffff0000, v{8 + 4 * j + r}")
            k(f"v_add_f32 v{a}, v{a}, v{t0}")
            k(f"v_add_f32 v{b}, v{b}, v{t1}")
            k(f"v_cvt_pk_bf16_f32 v{o + r}, v{a}, v{b}")
        if out_off is not None:
            k(f"s_add_u32 s27, s26, {out_off}")
            k(f"buffer_store_dwordx4 {vr(o, 4)}, v6, {srd}, s27 offen offset:{32 * j}")
        else:
            k(f"buffer_store_dwordx4 {vr(o, 4)}, v6, {out_srd}, s26 offen offset:{32 * j}")

def build_w3b(name, res_off, out_off):
    NR = 12
    k = K(name, vgpr=32 + 8 * NR, sgpr=48)
    k("s_cmp_ge_u32 s2, 320")
    k(f"s_cbranch_scc1 {k.ref('end')}")
    prologue(k, [(KA_OUT, 6)])
    k.srd(16, 6, 2048 * 640 * 2)
    k("s_lshl_b32 s20, s2, 2")
    k(f"s_add_u32 s20, s20, s{S_WAVE}")
    k("s_mul_i32 s21, s20, 3277"); k("s_lshr_b32 s21, s21, 16")
    k("s_mul_i32 s22, s21, 20"); k("s_sub_u32 s22, s20, s22")
    role_w3b(k, 21, 22, res_off, "s[16:19]", out_off, NR)
    k.lab('end')
    return k, 320

J_PER = 18
NJOB = 64 * J_PER
JL_RED = 0; JL_JOB = 32768

def role_w3b2(k, seg_s, cg_s, res_off, out_srd, RSC=""):
    ACC = 16; T = 48
    AP, AZ0, AZ1 = 160, 0, 80
    k("v_lshlrev_b32 v1, 4, v0")
    k("v_and_b32 v2, 31, v0")
    k("v_lshrrev_b32 v3, 5, v0")
    k("v_lshrrev_b32 v4, 3, v2")
    k("v_mul_u32_u24 v4, 20480, v4")
    k("v_and_b32 v5, 7, v2")
    k("v_lshl_add_u32 v4, v5, 4, v4")
    k("v_lshl_add_u32 v4, v3, 7, v4")
    k(f"s_mul_i32 s24, s{seg_s}, {Z_SEG}")
    k(f"s_mul_i32 s25, s{cg_s}, {8 * 20480}")
    k("s_add_u32 s24, s24, s25")
    k(f"s_mul_i32 s25, s{S_WAVE}, {20 * 256}")
    k("s_add_u32 s24, s24, s25")
    k(f"s_add_u32 s24, s24, {Z}")
    k(f"s_add_u32 s28, s24, {4 * 20480}")
    k(f"s_mul_i32 s25, s{seg_s}, {PX_SEG}")
    k(f"s_mul_i32 s26, s{S_WAVE}, {20 * 1024}")
    k("s_add_u32 s25, s25, s26")
    k(f"s_add_u32 s25, s25, {PXB}")
    k("v_mul_u32_u24 v6, 1280, v2")
    k("v_lshl_add_u32 v6, v3, 4, v6")
    k(f"s_mul_i32 s26, s{seg_s}, {32 * 1280}")
    k(f"s_lshl_b32 s27, s{cg_s}, 7")
    k("s_add_u32 s26, s26, s27")
    k(f"s_lshl_b32 s27, s{S_WAVE}, 5")
    k("s_add_u32 s26, s26, s27")
    k(f"s_add_u32 s27, s26, {res_off}")
    k(f"buffer_load_dwordx4 v[8:11], v6, {srd}, s27 offen{RSC}")
    for i in range(20):
        if i % 4 == 0 and i: k("s_add_u32 s25, s25, 4096")
        if i == 16:
            k("s_add_u32 s24, s24, 4096"); k("s_add_u32 s28, s28, 4096")
        k(f"buffer_load_dwordx4 {ar(AP + 4 * i, 4)}, v1, {srd}, s25 offen offset:{(i % 4) * 1024} sc1")
        k(f"buffer_load_dwordx4 {ar(AZ0 + 4 * i, 4)}, v4, {srd}, s24 offen offset:{(i % 16) * 256} sc1")
        k(f"buffer_load_dwordx4 {ar(AZ1 + 4 * i, 4)}, v4, {srd}, s28 offen offset:{(i % 16) * 256} sc1")
    for i in range(20):
        k(f"s_waitcnt vmcnt({3 * (19 - i)})")
        for t, az in ((0, AZ0), (1, AZ1)):
            d = vr(ACC + 16 * t, 16)
            k(f"v_mfma_f32_32x32x16_bf16 {d}, {ar(az + 4 * i, 4)}, {ar(AP + 4 * i, 4)}, {'0' if i == 0 else d}")
    k(f"s_lshl_b32 s27, s{S_WAVE}, 11")
    k(f"v_add_u32 v7, s27, v1")
    k("s_nop 7"); k("s_nop 7")
    for t in range(2):
        for j in range(2):
            for hh in range(2):
                k(f"ds_write_b128 v7, {vr(ACC + 16 * t + 8 * j + 4 * hh, 4)} offset:{JL_RED + (t * 2 + j) * 8192 + hh * 1024}")
    k("s_waitcnt lgkmcnt(0)")
    k("s_barrier")
    k(f"s_lshl_b32 s27, s{S_WAVE}, 13")
    k(f"v_add_u32 v7, s27, v1")
    for ww in range(4):
        for hh in range(2):
            k(f"ds_read_b128 {vr(T + 8 * ww + 4 * hh, 4)}, v7 offset:{JL_RED + ww * 2048 + hh * 1024}")
    k("s_waitcnt lgkmcnt(4)")
    for r in range(8): k(f"v_add_f32 v{T + r}, v{T + r}, v{T + 8 + r}")
    k("s_waitcnt lgkmcnt(0)")
    for r in range(8): k(f"v_add_f32 v{T + 16 + r}, v{T + 16 + r}, v{T + 24 + r}")
    for r in range(8): k(f"v_add_f32 v{T + r}, v{T + r}, v{T + 16 + r}")
    o = ACC
    for q in range(2):
        k(f"v_cvt_pk_bf16_f32 v{o + 2 * q}, v{T + 4 * q}, v{T + 4 * q + 1}")
        k(f"v_cvt_pk_bf16_f32 v{o + 2 * q + 1}, v{T + 4 * q + 2}, v{T + 4 * q + 3}")
    k("s_nop 1")
    k(f"v_permlane32_swap_b32 v{o}, v{o + 2}")
    k(f"v_permlane32_swap_b32 v{o + 1}, v{o + 3}")
    k("s_nop 1")
    for r in range(4):
        a, b, t0, t1 = T, T + 1, T + 2, T + 3
        k(f"v_lshlrev_b32 v{a}, 16, v{o + r}")
        k(f"v_and_b32 v{b}, 0xffff0000, v{o + r}")
        k(f"v_lshlrev_b32 v{t0}, 16, v{8 + r}")
        k(f"v_and_b32 v{t1}, 0xffff0000, v{8 + r}")
        k(f"v_add_f32 v{a}, v{a}, v{t0}")
        k(f"v_add_f32 v{b}, v{b}, v{t1}")
        k(f"v_cvt_pk_bf16_f32 v{o + r}, v{a}, v{b}")
    k(f"buffer_store_dwordx4 {vr(o, 4)}, v6, {out_srd}, s26 offen")

def role_w3_loop(k, cfg, fl_s, spin_s, out_srd, layer_s):
    L = lambda s: k.ref('j_' + s)
    lab = lambda s: k.lab('j_' + s)
    bail = k.ref('bail')
    SEG, R, NEED = 40, 41, 42
    lab('next')
    k(f"s_cmp_lg_u32 s{S_WAVE}, 0")
    k(f"s_cbranch_scc1 {L('rel')}")
    k("s_mov_b64 exec, 1")
    k(f"v_mov_b32 v2, {FL_JOB}")
    k("v_mov_b32 v3, 1")
    k(f"buffer_atomic_add v3, v2, {srd}, s{fl_s} offen sc0 sc1")
    k("s_waitcnt vmcnt(0)")
    k("s_mov_b64 exec, -1")
    k("s_nop 0")
    k("v_readfirstlane_b32 s38, v3")
    k(f"s_cmp_ge_u32 s38, {NJOB}")
    k(f"s_cbranch_scc1 {L('pub')}")
    k("s_mul_i32 s39, s38, 58255")
    k(f"s_lshr_b32 s{SEG}, s39, 20")
    k(f"s_mul_i32 s39, s{SEG}, {J_PER}")
    k(f"s_sub_u32 s{R}, s38, s39")
    k(f"s_add_u32 s{NEED}, s{SEG}, 1")
    k(f"v_mov_b32 v4, s{NEED}")
    k(f"s_cmp_ge_u32 s{R}, 8")
    k(f"s_cbranch_scc1 {L('dep_b')}")
    k(f"s_lshl_b32 s24, s{R}, 9")
    k(f"s_add_u32 s24, s24, {FL_PF}")
    k("v_lshlrev_b32 v2, 7, v0")
    k("v_add_u32 v2, s24, v2")
    k(f"s_mul_i32 s25, s{R}, 3")
    k("s_add_u32 s25, s25, 104")
    k("s_lshl_b32 s25, s25, 7")
    k("v_writelane_b32 v2, s25, 4")
    k("s_add_u32 s25, s25, 128")
    k("v_writelane_b32 v2, s25, 5")
    k("s_add_u32 s25, s25, 128")
    k("v_writelane_b32 v2, s25, 6")
    k("s_mov_b64 exec, 0x7f")
    k(f"s_branch {L('poll')}")
    lab('dep_b')
    k(f"s_sub_u32 s24, s{R}, 8")
    k("s_lshl_b32 s24, s24, 10")
    k(f"s_add_u32 s24, s24, {FL_YF}")
    k("v_lshlrev_b32 v2, 7, v0")
    k("v_add_u32 v2, s24, v2")
    k(f"s_lshl_b32 s25, s{SEG}, 4")
    k(f"s_add_u32 s25, s25, {FL_WA}")
    k("v_writelane_b32 v2, s25, 8")
    k("s_mov_b32 s26, 8")
    k("v_writelane_b32 v4, s26, 8")
    k("s_mov_b64 exec, 0x1ff")
    lab('poll')
    k(f"buffer_load_dword v3, v2, {srd}, s{fl_s} offen sc1")
    k("s_waitcnt vmcnt(0)")
    k("v_cmp_gt_u32 vcc, v4, v3")
    k(f"s_sub_u32 s{spin_s}, s{spin_s}, 1")
    k(f"s_cbranch_scc1 {L('giveup')}")
    k(f"s_cbranch_vccnz {L('poll')}")
    k("s_mov_b64 exec, -1")
    lab('pub')
    k("v_mov_b32 v2, 0")
    k("v_mov_b32 v3, s38")
    k(f"ds_write_b32 v2, v3 offset:{JL_JOB}")
    k("s_waitcnt lgkmcnt(0)")
    lab('rel')
    k("s_barrier")
    k("v_mov_b32 v2, 0")
    k(f"ds_read_b32 v3, v2 offset:{JL_JOB}")
    k("s_waitcnt lgkmcnt(0)")
    k("v_readfirstlane_b32 s38, v3")
    k(f"s_cmp_ge_u32 s38, {NJOB}")
    k(f"s_cbranch_scc1 {L('done')}")
    k("s_mul_i32 s39, s38, 58255")
    k(f"s_lshr_b32 s{SEG}, s39, 20")
    k(f"s_mul_i32 s39, s{SEG}, {J_PER}")
    k(f"s_sub_u32 s{R}, s38, s39")
    k(f"s_cmp_ge_u32 s{R}, 8")
    k(f"s_cbranch_scc1 {L('b')}")
    k(f"s_lshl_b32 s{R}, s{R}, 2")
    k(f"s_add_u32 s{R}, s{R}, s{S_WAVE}")
    role_w3a(k, SEG, R, " sc1")
    k("s_waitcnt vmcnt(0)")
    k("s_barrier")
    k(f"s_cmp_lg_u32 s{S_WAVE}, 0")
    k(f"s_cbranch_scc1 {L('next')}")
    k("s_mov_b64 exec, 1")
    k(f"s_lshl_b32 s24, s{SEG}, 4")
    k(f"s_add_u32 s24, s24, {FL_WA}")
    k("v_mov_b32 v2, s24")
    k("v_mov_b32 v3, 1")
    k(f"buffer_atomic_add v3, v2, {srd}, s{fl_s} offen sc1")
    k("s_mov_b64 exec, -1")
    k(f"s_branch {L('next')}")
    lab('b')
    k(f"s_sub_u32 s{R}, s{R}, 8")
    role_w3b2(k, SEG, R, A_X1, out_srd, " sc1" if cfg.get('na') in (2, 3, 4) else "")
    k(f"s_branch {L('next')}")
    lab('giveup')
    k("s_mov_b64 exec, -1")
    k("v_mov_b32 v2, 0")
    k("v_mov_b32 v3, -1")
    k(f"ds_write_b32 v2, v3 offset:{JL_JOB}")
    k("s_waitcnt lgkmcnt(0)")
    k("s_barrier")
    k(f"s_branch {bail}")
    lab('done')
```

```python
import sys, math
sys.path.insert(0, "/code"); sys.path.insert(0, "tools")
from asmk import *
from lay import *

NSTEP = 64
SPIN = 400000
CSC = (192 ** -0.5) * math.log2(math.e)

class LQ:
    def __init__(self, k): self.k = k; self.q = []
    def ds(self, ins, tag=None):
        self.k(ins); self.q.append(tag)
        assert len(self.q) <= 15, "too many outstanding LDS ops"
    def wait(self, tag):
        idx = [i for i, t in enumerate(self.q) if t == tag]
        if not idx: return
        n = len(self.q) - 1 - idx[-1]
        self.k(f"s_waitcnt lgkmcnt({n})"); self.q = self.q[idx[-1] + 1:]
    def wait_many(self, tags):
        idx = [i for i, t in enumerate(self.q) if t in tags]
        if not idx: return
        n = len(self.q) - 1 - idx[-1]
        self.k(f"s_waitcnt lgkmcnt({n})"); self.q = self.q[idx[-1] + 1:]
    def all(self):
        self.k("s_waitcnt lgkmcnt(0)"); self.q = []

def vr(b, n): return f"v[{b}:{b+n-1}]" if n > 1 else f"v{b}"
def ar(b, n): return f"a[{b}:{b+n-1}]"

def check_valid(k, regs, tmp):
    regs = list(regs)
    k(f"v_max3_u32 v{tmp}, v{regs[0]}, v{regs[1]}, v{regs[2]}")
    rest = regs[3:]
    while len(rest) >= 2:
        k(f"v_max3_u32 v{tmp}, v{tmp}, v{rest[0]}, v{rest[1]}"); rest = rest[2:]
    if rest: k(f"v_max_u32 v{tmp}, v{tmp}, v{rest[0]}")
    k(f"v_cmp_eq_u32 vcc, -1, v{tmp}")

S_WS = 4
SRD = 8
S_ROLE = 12; S_WAVE = 13; S_STEP = 14; S_SPIN = 15
S_EB0 = 16; S_EB1 = 17
S_SB = 18
S_SBN = 19
S_T = 20
S_M8 = 40
S_M2 = 42
S_KX = 44; S_KM = 45; S_Z = 46
S_GK = 47
S_FL = 48
S_LAYER = 49
S_ST = 50
S_OSRD = 84
S_FD0 = 82; S_FD1 = 83
S_SBF = 88; S_SBNF = 89
srd = f"s[{SRD}:{SRD+3}]"

OWN = [[0, 1, 2], [3, 4, 5], [6, 7], [8, 9]]

def slot_base(k, dst, step_s, tmp, far=None):
    k(f"s_cmp_lt_u32 s{step_s}, 32")
    k(f"s_cselect_b32 s{dst}, s{S_EB0}, s{S_EB1}")
    if far is not None: k(f"s_cselect_b32 s{far}, s{S_FD0}, s{S_FD1}")
    k(f"s_and_b32 s{tmp}, s{step_s}, 31")
    k(f"s_lshl_b32 s{tmp}, s{tmp}, 16")
    k(f"s_add_u32 s{dst}, s{dst}, s{tmp}")
    if far is not None: k(f"s_add_u32 s{far}, s{far}, s{dst}")

def stamp(k, cfg, n, real=False):
    if cfg.get('stamp'):
        k(f"s_mem{'real' if real else ''}time s[{S_ST+2*n}:{S_ST+2*n+1}]")

def stamp_flush(k, cfg, nst, base_off):
    if not cfg.get('stamp'): return
    k("s_waitcnt lgkmcnt(0)")
    sk = k.uniq('stk')
    k(f"s_cmp_lg_u32 s{S_ROLE}, {cfg.get('stamp_role', 0)}")
    k(f"s_cbranch_scc1 {k.ref(sk)}")
    k("s_mov_b64 s[30:31], exec")
    k("s_mov_b64 exec, 1")
    k(f"s_lshl_b32 s32, s{S_STEP}, 6")
    k(f"s_add_u32 s32, s32, {base_off}")
    k("v_mov_b32 v253, 0")
    for n in range(nst):
        k(f"v_mov_b32 v254, s{S_ST+2*n}")
        k(f"buffer_store_dword v254, v253, {srd}, s32 offen offset:{4*n}")
        k("s_nop 1")
    k("s_mov_b64 exec, s[30:31]")
    k.lab(sk)

def rt(k, cfg, n):
    if cfg.get('rt'):
        k(f"s_memrealtime s[{S_ST+2*n}:{S_ST+2*n+1}]")

def rt_flush(k, cfg, rolebase):
    if not cfg.get('rt'): return
    k("s_waitcnt lgkmcnt(0)")
    k("s_mov_b64 exec, 1")
    k(f"s_add_u32 s32, s{S_ROLE}, {rolebase}")
    k("s_lshl_b32 s32, s32, 6")
    k(f"s_add_u32 s32, s32, s{S_STEP}")
    k(f"s_lshl_b32 s32, s32, {5 if cfg.get('rt2') else 4}")
    k(f"s_add_u32 s32, s32, {cfg['rt']}")
    k(f"s_mul_i32 s33, s{S_LAYER}, 0x200000")
    k("s_add_u32 s32, s32, s33")
    k("v_mov_b32 v253, 0")
    for n in range(8 if cfg.get('rt2') else 3):
        k(f"v_mov_b32 v254, s{S_ST+2*n}")
        k(f"buffer_store_dword v254, v253, {srd}, s32 offen offset:{4*n}")
        k("s_nop 1")
    k("s_mov_b64 exec, -1")

def spin_check(k, bail):
    k(f"s_sub_u32 s{S_SPIN}, s{S_SPIN}, 1")
    k(f"s_cbranch_scc1 {bail}")

def wait_progress(k, cfg, tag, step_s, voff, nl, vt):
    if not cfg.get('ovl'): return
    ok = k.ref(tag + '_ok'); lp = tag + '_lp'
    k(f"s_cmp_gt_u32 s{S_GK}, s{step_s}")
    k(f"s_cbranch_scc1 {ok}")
    k.lab(lp)
    k(f"buffer_load_dword v{vt}, v{voff}, {srd}, s{S_FL} offen sc1")
    k("s_waitcnt vmcnt(0)")
    k(f"v_readlane_b32 s{S_GK}, v{vt}, 0")
    if nl == 2:
        k(f"v_readlane_b32 s{S_T+9}, v{vt}, 1")
        k("s_nop 0")
        k(f"s_min_u32 s{S_GK}, s{S_GK}, s{S_T+9}")
    else:
        k("s_nop 0")
    spin_check(k, k.ref('bail'))
    k(f"s_cmp_gt_u32 s{S_GK}, s{step_s}")
    k(f"s_cbranch_scc0 {k.ref(lp)}")
    k.lab(tag + '_ok')

def flag_store(k, cfg, off_s, val_s, va, vb):
    k("s_mov_b64 exec, 1")
    k(f"v_mov_b32 v{va}, s{off_s}")
    k(f"v_mov_b32 v{vb}, s{val_s}")
    k(f"buffer_store_dword v{vb}, v{va}, {srd}, s{S_FL} offen sc1")
    k("s_mov_b64 exec, -1")


def wait_par(k, cfg, tag, bail):
    if not cfg.get('calin'): return
    k(f"s_add_u32 s{S_T}, s{S_FL}, {FL_PAR}")
    k("s_mov_b64 exec, 3")
    k("v_lshlrev_b32 v16, 2, v0")
    k.lab(tag)
    k(f"buffer_load_dword v17, v16, {srd}, s{S_T} offen sc1")
    k("s_waitcnt vmcnt(0)")
    k("v_cmp_eq_u32 vcc, 0, v17")
    spin_check(k, bail)
    k(f"s_cbranch_vccnz {k.ref(tag)}")
    k("s_mov_b64 exec, -1")
    k(f"v_readlane_b32 s{S_T}, v17, 0")
    k(f"v_readlane_b32 s{S_T+1}, v17, 1")
    k("s_nop 0")
    k(f"s_and_b32 s{S_T}, s{S_T}, 8192")
    k(f"s_and_b32 s{S_T+1}, s{S_T+1}, 8192")
    k(f"s_add_u32 s{S_EB0}, s{S_EB0}, s{S_T}")
    k(f"s_add_u32 s{S_EB1}, s{S_EB1}, s{S_T+1}")

def cal_block(k, cfg, blk, tag):
    N = cfg.get('caln', 8)
    k(f"s_cmp_lg_u32 s{S_WAVE}, 0")
    k(f"s_cbranch_scc1 {k.ref(tag + 'x')}")
    k(f"s_add_u32 s24, s{S_EB1 if blk else S_EB0}, {31 * EX_STEP + physmap(CAL_LOG)}")
    k("s_getreg_b32 s25, hwreg(HW_REG_XCC_ID)")
    k("s_bfe_u32 s25, s25, 0x10002")
    k("s_mov_b64 exec, 1")
    k("v_mov_b32 v1, 0"); k("v_mov_b32 v2, 0")
    k("s_mov_b32 s30, -1"); k("s_mov_b32 s31, -1")
    k(f"s_mov_b32 s26, {N}")
    k("s_waitcnt vmcnt(0)")
    k.lab(tag)
    for p in range(2):
        k("s_and_b32 s27, s26, 15")
        k("s_lshl_b32 s27, s27, 7")
        k("s_add_u32 s27, s27, s24")
        if p: k("s_add_u32 s27, s27, 8192")
        k("s_memtime s[28:29]")
        k("s_waitcnt lgkmcnt(0)")
        k(f"buffer_atomic_add v2, v1, {srd}, s27 offen sc0 sc1")
        k("s_waitcnt vmcnt(0)")
        k("s_memtime s[32:33]")
        k("v_mov_b32 v2, 0")
        k("s_waitcnt lgkmcnt(0)")
        k("s_sub_u32 s28, s32, s28")
        k(f"s_min_u32 s{30 + p}, s{30 + p}, s28")
    k("s_sub_u32 s26, s26, 1")
    k("s_cmp_lg_u32 s26, 0")
    k(f"s_cbranch_scc1 {k.ref(tag)}")
    k("s_cmp_lt_u32 s31, s30")
    k("s_cselect_b32 s27, 1, 0")
    k("s_xor_b32 s27, s27, s25")
    k("s_lshl_b32 s27, s27, 13")
    k("s_or_b32 s27, s27, 1")
    k("v_mov_b32 v3, s27")
    k(f"s_add_u32 s27, s{S_FL}, {FL_PAR + 4 * blk}")
    k(f"buffer_store_dword v3, v1, {srd}, s27 offen sc1")
    k("s_lshl_b32 s28, s30, 16"); k("s_or_b32 s28, s28, s31")
    k("v_mov_b32 v3, s28")
    k(f"buffer_store_dword v3, v1, {srd}, s27 offen offset:8 sc1")
    k("s_mov_b64 exec, -1")
    k("s_waitcnt vmcnt(0)")
    k.lab(tag + 'x')
    k("s_barrier")


S_MK = 69
S_PM = 68

def poll_cont(k, tag, loads, regs, consume, tmp, dummy, bail):
    n = len(loads)
    for u in range(n): loads[u]()
    k(f"s_mov_b32 s{S_PM}, 0")
    k.lab(f"{tag}_lp")
    for u in range(n):
        k(f"s_waitcnt vmcnt({n - 1})")
        k(f"s_bitcmp1_b32 s{S_PM}, {u}")
        k(f"s_cbranch_scc1 {k.ref(f'{tag}_d{u}')}")
        check_valid(k, regs[u], tmp)
        k(f"s_bitset1_b32 s{S_PM}, {u}")
        k(f"s_cbranch_vccnz {k.ref(f'{tag}_r{u}')}")
        consume[u]()
        k(f"s_cmp_eq_u32 s{S_PM}, {(1 << n) - 1}")
        k(f"s_cbranch_scc1 {k.ref(f'{tag}_x')}")
        k.lab(f"{tag}_d{u}")
        k(f"buffer_load_dword v{dummy}, off, {srd}, s{S_SB} sc1")
        k(f"s_branch {k.ref(f'{tag}_n{u}')}")
        k.lab(f"{tag}_r{u}")
        k(f"s_bitset0_b32 s{S_PM}, {u}")
        loads[u]()
        k.lab(f"{tag}_n{u}")
    spin_check(k, bail)
    k(f"s_branch {k.ref(f'{tag}_lp')}")
    k.lab(f"{tag}_x")

PL_NL = 15
PL_WL = 0
PL_MEMI = 4 * PL_NL * 2048
PL_QI = PL_MEMI + 10240
PL_STR = 400
PL_KI = PL_QI + 8 * PL_STR
PL_SP = PL_KI + 8 * PL_STR
PL_STG = PL_SP + 4096
PL_END = PL_STG + 1024

V_L16 = 1; V_IDX = 2; V_IW = 3; V_QR = 4; V_KR = 5; V_SPR = 6; V_PX = 7; V_PM = 8; V_KXO = 9
V_KML = 10; V_KMG = 11; V_MASKF = 12; V_WLA = 13; V_MIA = 14; V_SPW = 15
V_GF = 255; V_T0 = 253; V_T1 = 254
AF = 16; PD = 56; PDX = 80; PDM = 84; QF = 88; KXF = 100; TB = 116; PVW = 148

P2_NL = 16
P2_MEMI = 4 * P2_NL * 2048
P2_QI = P2_MEMI + 10240
P2_KI = P2_QI + 8 * PL_STR
P2_ST = P2_KI + 8 * PL_STR
P2_END = P2_ST + 2048
P2_KXF = 100; P2_TB = 124; P2_PVW = 156
V_MG = 12; V_ST8 = 6

def p_plan2(w, cfg):
    own = OWN[w]; rest = [ks for ks in range(10) if ks not in own]
    seq = [(T, ks) for ks in own for T in (0, 1, 2)] + [(T, ks) for T in (0, 1, 2) for ks in rest]
    seq += [(T, ks) for T in (3, 4, 5) for ks in range(10)]
    ldspos = cfg.get('p2_lds', list(range(4, 28, 2)) + [31, 35, 39, 46])
    if cfg.get('p2s'):
        nfirst = cfg.get('p2_nf', 11)
        first = [(T, ks) for ks in own for T in (0, 1, 2)]
        fill = [(T, ks) for T in (3, 4, 5) for ks in own][:max(0, nfirst - len(first))]
        seq = first + fill + [(T, ks) for T in (0, 1, 2) for ks in rest]
        seq += [(T, ks) for T in (3, 4, 5) for ks in rest + own if (T, ks) not in fill]
        ldspos = cfg.get('p2_lds', [3, 7, 11, 15, 19, 23, 27, 31, 35, 39, 43, 47, 50, 53, 56, 58])
    assert len(ldspos) == P2_NL
    where = {}
    regops = [i for i in range(60) if i not in ldspos]
    for n, i in enumerate(regops):
        where[seq[i]] = ('a', 8 * n) if n < 32 else ('v', P2_PVW + 8 * (n - 32))
    assert P2_PVW + 8 * (len(regops) - 32) <= 252
    for n, i in enumerate(ldspos): where[seq[i]] = ('l', n)
    return own, rest, seq, ldspos, where

def p_plan(w, cfg=None):
    if cfg and cfg.get('p2'): return p_plan2(w, cfg)
    own = OWN[w]; rest = [ks for ks in range(10) if ks not in own]
    order1 = own + rest
    seq = [(T, ks) for ks in order1 for T in (0, 1, 2)] + [(T, ks) for T in (3, 4, 5) for ks in range(10)]
    ldspos = list(range(9, 30, 2)) + [44, 48, 52, 56]
    assert len(ldspos) == PL_NL
    where = {}
    regops = [i for i in range(60) if i not in ldspos]
    for n, i in enumerate(regops):
        where[seq[i]] = ('a', 8 * n) if n < 32 else ('v', PVW + 8 * (n - 32))
    assert PVW + 8 * (len(regops) - 32) <= 254
    for n, i in enumerate(ldspos): where[seq[i]] = ('l', n)
    return own, rest, seq, ldspos, where

def p_setup_lanes(k):
    k(f"v_lshlrev_b32 v{V_L16}, 4, v0")
    k("v_and_b32 v16, 8, v0")
    k("v_cmp_eq_u32 vcc, 0, v16")
    k("v_mov_b32 v17, 0xeeeeeeee")
    k("v_mov_b32 v18, 0x44444444")
    k(f"v_cndmask_b32 v{V_IDX}, v17, v18, vcc")

def gen_p_wave(k, w, cfg):
    own, rest, seq, ldspos, where = p_plan(w, cfg)
    L = lambda s: k.ref(f"p{w}_{s}")
    lab = lambda s: k.lab(f"p{w}_{s}")
    bail = k.ref('bail')
    lq = LQ(k)
    lab('start')
    k("v_lshrrev_b32 v16, 4, v0")
    k("v_and_b32 v17, 15, v0")
    k("v_and_b32 v18, 1, v16")
    k("v_lshlrev_b32 v18, 2, v18")
    k("v_lshrrev_b32 v19, 1, v16")
    k("v_lshl_add_u32 v18, v19, 1, v18")
    k(f"v_mul_u32_u24 v18, {PL_STR}, v18")
    k("v_lshl_add_u32 v18, v17, 1, v18")
    k(f"v_add_u32 v{V_IW}, {PL_QI + 96 * w}, v18")
    k("v_and_b32 v18, 7, v0")
    k(f"v_mul_u32_u24 v18, {PL_STR}, v18")
    k("v_lshrrev_b32 v19, 3, v0")
    k("v_lshl_add_u32 v18, v19, 4, v18")
    k(f"v_add_u32 v{V_QR}, {PL_QI}, v18")
    k("v_and_b32 v18, 7, v0")
    k(f"v_mul_u32_u24 v18, {PL_STR}, v18")
    k("v_lshl_add_u32 v18, v16, 5, v18")
    k(f"v_add_u32 v{V_KR}, {PL_KI}, v18")
    k("v_lshrrev_b32 v18, 1, v16")
    k("v_lshlrev_b32 v18, 10, v18")
    k("v_and_b32 v19, 31, v0")
    k("v_lshl_add_u32 v18, v19, 4, v18")
    k(f"v_add_u32 v{V_SPR}, {PL_SP + 4 * w}, v18")
    k(f"v_add_u32 v{V_SPW}, {PL_SP + 1024 * w}, v{V_L16}")
    k("v_lshrrev_b32 v18, 1, v16")
    k("v_lshlrev_b32 v18, 1, v18")
    k("v_lshrrev_b32 v19, 3, v17")
    k("v_add3_u32 v18, v18, v19, 1")
    k("v_lshrrev_b32 v19, 1, v18")
    k("v_lshlrev_b32 v19, 14, v19")
    k("v_and_b32 v18, 1, v18")
    k("v_lshl_add_u32 v18, v18, 12, v19")
    k("v_and_b32 v19, 1, v16")
    k("v_lshlrev_b32 v19, 4, v19")
    k(f"v_add_u32 v19, {32 * w}, v19")
    k(f"s_lshl_b32 s{S_T}, s{S_ROLE}, 7")
    k(f"v_add_u32 v{V_PM}, s{S_T}, v19")
    k(f"v_add_u32 v{V_PX}, v{V_PM}, v18")
    if cfg.get('pgather'):
        k("v_lshrrev_b32 v18, 1, v16")
        k("v_lshlrev_b32 v18, 1, v18")
        k("v_lshrrev_b32 v20, 3, v17")
        k("v_add3_u32 v18, v18, v20, 1")
        k(f"v_add_u32 v{V_PM}, {PL_STG}, v19")
        k(f"v_lshl_add_u32 v{V_PX}, v18, 7, v{V_PM}")
        k("v_lshrrev_b32 v18, 3, v0")
        k("v_lshrrev_b32 v19, 1, v18")
        k("v_lshlrev_b32 v19, 14, v19")
        k("v_and_b32 v18, 1, v18")
        k("v_lshl_add_u32 v18, v18, 12, v19")
        k("v_and_b32 v19, 7, v0")
        k("v_lshl_add_u32 v18, v19, 4, v18")
        k(f"v_add_u32 v252, s{S_T}, v18")
    k(f"v_lshlrev_b32 v18, 4, v17")
    k("v_lshl_add_u32 v18, v16, 10, v18")
    k(f"v_add_u32 v{V_KXO}, {16 * (w & 1) * 16}, v18")
    k(f"v_add_u32 v18, {64 * w}, v0")
    k("v_mul_u32_u24 v19, 2731, v18")
    k("v_lshrrev_b32 v19, 16, v19")
    k("v_mul_u32_u24 v20, 24, v19")
    k("v_sub_u32 v20, v18, v20")
    k(f"v_mul_u32_u24 v21, {PL_STR}, v19")
    k("v_lshl_add_u32 v21, v20, 4, v21")
    k(f"v_add_u32 v{V_KML}, {PL_KI}, v21")
    k("v_lshlrev_b32 v21, 4, v19")
    k(f"v_lshl_add_u32 v{V_KMG}, v20, 7, v21")
    k("v_and_b32 v18, 0x28, v0")
    k("v_cmp_eq_u32 vcc, 0, v18")
    k("v_mov_b32 v18, 1.0")
    k("v_mov_b32 v19, 0")
    k(f"v_cndmask_b32 v{V_MASKF}, v19, v18, vcc")
    k(f"v_add_u32 v{V_WLA}, {PL_WL + w * PL_NL * 2048}, v{V_L16}")
    k(f"v_add_u32 v{V_MIA}, {PL_MEMI}, v{V_L16}")
    k(f"s_mul_i32 s{S_KX}, s{S_ROLE}, {KX_SH}")
    k(f"s_add_u32 s{S_KX}, s{S_KX}, {KX}")
    k(f"s_mul_i32 s{S_KM}, s{S_ROLE}, {KM_SH}")
    k(f"s_add_u32 s{S_KM}, s{S_KM}, {KM}")
    if cfg.get('ovl'):
        k(f"s_mul_i32 s{S_T}, s{S_ROLE}, 6")
        k(f"s_add_u32 s{S_T+1}, s{S_T}, 5")
        k(f"s_lshr_b32 s{S_T}, s{S_T}, 3")
        k(f"s_lshr_b32 s{S_T+1}, s{S_T+1}, 3")
        k(f"s_add_u32 s{S_T}, s{S_T}, 80"); k(f"s_add_u32 s{S_T+1}, s{S_T+1}, 80")
        k(f"s_lshl_b32 s{S_T}, s{S_T}, 7"); k(f"s_lshl_b32 s{S_T+1}, s{S_T+1}, 7")
        k(f"v_mov_b32 v{V_GF}, s{S_T+1}")
        k(f"v_mov_b32 v{V_T0}, s{S_T}")
        k("v_cmp_eq_u32 vcc, 0, v0")
        k("s_nop 1")
        k(f"v_cndmask_b32 v{V_GF}, v{V_GF}, v{V_T0}, vcc")
        k(f"s_mov_b32 s{S_GK}, 0")
    k(f"s_mul_i32 s{S_T}, s{S_ROLE}, 491520")
    k(f"s_add_u32 s{S_T}, s{S_T}, {WP + w * 122880}")
    WIN = cfg.get('winp', cfg.get('win'))
    nld = [0]
    def wload(dst, T, ks):
        idx = T * 10 + ks
        k(f"s_add_u32 s{S_T+1}, s{S_T}, {idx * 2048}")
        for hi in range(2):
            k(f"buffer_load_dwordx4 {dst(hi)}, v{V_L16}, {srd}, s{S_T+1} offen offset:{hi*1024}")
            nld[0] += 1
            if WIN and nld[0] > WIN: k(f"s_waitcnt vmcnt({WIN})")
    lops = [(op, wh[1]) for op, wh in where.items() if wh[0] == 'l']
    SEMI = cfg.get('na') == 4
    rops = [(op, wh) for op, wh in where.items() if wh[0] != 'l' and not (SEMI and wh[0] == 'a' and wh[1] // 8 < cfg.get('npf', 64) // 2)]
    for (T, ks), slot in lops:
        wload(lambda hi: vr(16 + 8 * slot + 4 * hi, 4), T, ks)
    nre = 0
    for (T, ks), wh in rops[:16]:
        wload((lambda hi, wh=wh: (ar if wh[0] == 'a' else vr)(wh[1] + 4 * hi, 4)), T, ks)
    k(f"s_waitcnt vmcnt({2 * len(rops[:16])})")
    for (T, ks), slot in lops:
        for hi in range(2):
            k(f"ds_write_b128 v{V_WLA}, {vr(16 + 8 * slot + 4 * hi, 4)} offset:{slot * 2048 + hi * 1024}")
    for (T, ks), wh in rops[16:]:
        wload((lambda hi, wh=wh: (ar if wh[0] == 'a' else vr)(wh[1] + 4 * hi, 4)), T, ks)
    k("s_waitcnt lgkmcnt(0)")
    kxset = [0, 1] if w < 2 else [2]
    SC1 = " sc1" if cfg.get('ovl') else ""
    npf = [0]
    def kx_prefetch(step_s):
        npf[0] += 1
        wait_progress(k, cfg, f"p{w}_gw{npf[0]}", step_s, V_GF, 2, V_T0)
        k(f"s_mul_i32 s{S_T}, s{step_s}, {32 * KX_SH}")
        k(f"s_add_u32 s{S_T}, s{S_T}, s{S_KX}")
        for u, ks in enumerate(kxset):
            k(f"s_add_u32 s{S_T+1}, s{S_T}, {ks * 4096}")
            for hi in range(2):
                k(f"buffer_load_dwordx4 {vr(KXF + 8 * u + 4 * hi, 4)}, v{V_KXO}, {srd}, s{S_T+1} offen offset:{hi * 512}{SC1}")
    def tb_read(n):
        for hi in range(2):
            lq.ds(f"ds_read_b128 {vr(TB + 8 * (n % 4) + 4 * hi, 4)}, v{V_WLA} offset:{n * 2048 + hi * 1024}", ('tb', n))
    def zero_d():
        for r in range(PD, PD + 32): k(f"v_mov_b32 v{r}, 0")
    k(f"s_mov_b32 s{S_STEP}, 0")
    kx_prefetch(S_STEP)
    zero_d()
    for n in range(4): tb_read(n)
    lq.all()
    lab('step')
    slot_base(k, S_SB, S_STEP, S_T)
    for u, ks in enumerate(own):
        k(f"s_add_u32 s{S_T+2+u}, s{S_SB}, {physmap(M_LOG + 1024 * ks)}")
    if cfg.get('mark') is not None and w == 0:
        k(f"s_lshr_b32 s{S_MK}, s{S_ROLE}, 1")
        k(f"s_lshl_b32 s{S_MK}, s{S_MK}, 7")
        k(f"s_and_b32 s{S_T}, s{S_ROLE}, 1")
        k(f"s_lshl_b32 s{S_T}, s{S_T}, 2")
        k(f"s_add_u32 s{S_MK}, s{S_MK}, s{S_T}")
        k(f"s_add_u32 s{S_MK}, s{S_MK}, s{S_SB}")
        k(f"s_add_u32 s{S_MK}, s{S_MK}, {physmap(MARK_LOG)}")
    stamp(k, cfg, 0)
    if cfg.get('cpoll', 0):
        poll_cont(k, f"p{w}_mp",
                  [lambda u=u, ks=ks: k(f"buffer_load_dwordx4 {vr(AF + 4 * ks, 4)}, v{V_L16}, {srd}, s{S_T+2+u} offen sc1") for u, ks in enumerate(own)],
                  [[AF + 4 * ks + j for j in range(4)] for ks in own],
                  [lambda ks=ks: k(f"ds_write_b128 v{V_MIA}, {vr(AF + 4 * ks, 4)} offset:{ks * 1024}") for ks in own],
                  QF, 252, bail)
    else:
        lab('poll')
        for u, ks in enumerate(own):
            k(f"buffer_load_dwordx4 {vr(AF + 4 * ks, 4)}, v{V_L16}, {srd}, s{S_T+2+u} offen sc1")
        k("s_waitcnt vmcnt(0)")
        for ks in own:
            k(f"ds_write_b128 v{V_MIA}, {vr(AF + 4 * ks, 4)} offset:{ks * 1024}")
        check_valid(k, [AF + 4 * ks + j for ks in own for j in range(4)], QF)
        spin_check(k, bail)
        k(f"s_cbranch_vccnz {L('poll')}")
    lq.all()
    k("s_barrier")
    stamp(k, cfg, 1)
    if w == 0: rt(k, cfg, 0)
    for ks in rest:
        lq.ds(f"ds_read_b128 {vr(AF + 4 * ks, 4)}, v{V_MIA} offset:{ks * 1024}", ('af', ks))
    def post_tile(T, base):
        d = PD + 4 * T
        col = 32 * (T % 3)
        return [
            lambda: k(f"v_permlane32_swap_b32 v{d}, v{d+2}"),
            lambda: k(f"v_permlane32_swap_b32 v{d+1}, v{d+3}"),
            lambda: k(f"v_add_f32 v{d}, v{d}, v{d+2}"),
            lambda: k(f"v_add_f32 v{d+1}, v{d+1}, v{d+3}"),
            lambda: k(f"v_cvt_pk_bf16_f32 v{d}, v{d}, v{d+1}"),
            lambda: lq.ds(f"ds_write_b16 v{V_IW}, v{d} offset:{base + col}", ('img', T)),
            lambda: lq.ds(f"ds_write_b16_d16_hi v{V_IW}, v{d} offset:{base + col + PL_STR}", ('img', T)),
        ]
    MK = cfg.get('mark', None)
    def mark():
        if w != 0: return
        k(f"buffer_store_dword v{V_L16}, off, {srd}, s{S_MK} sc1")
    side = {i: [] for i in range(60)}
    if isinstance(MK, int): side[MK].append(mark)
    def put(items, start, per=2):
        i = start
        for it in items:
            while len(side[i]) >= per: i += 1
            side[i].append(it)
        return i
    KO = PL_KI - PL_QI
    e = put(post_tile(0, 0) + post_tile(1, 0) + post_tile(2, 0), 31)
    b1 = e + 2
    side[b1].append(lambda: (lq.wait(('img', 2)), k("s_barrier")))
    for ks in range(3):
        side[b1 + (ks > 0)].append(lambda ks=ks: lq.ds(f"ds_read_b128 {vr(QF + 4 * ks, 4)}, v{V_QR} offset:{ks * 128}", ('qf', ks)))
    put(post_tile(3, KO), b1 + 2)
    sx = b1 + 6
    def smx():
        lq.wait(('qf', 2))
        for u, ks in enumerate(kxset):
            k(f"v_smfmac_f32_16x16x64_bf16 {vr(PDX, 4)}, {vr(QF + 4 * ks, 4)}, {vr(KXF + 8 * u, 8)}, v{V_IDX}")
    side[sx].append(smx)
    put(post_tile(4, KO), 52)
    side[min(sx + 4, 58)].append(lambda: lq.ds(f"ds_write_b128 v{V_SPW}, {vr(PDX, 4)}", 'sp'))
    for i, (T, ks) in enumerate(seq):
        wh = where[(T, ks)]
        if i < 30 and ks in rest: lq.wait(('af', ks))
        if wh[0] == 'l':
            lq.wait(('tb', wh[1]))
            b = vr(TB + 8 * (wh[1] % 4), 8)
        else:
            b = (ar if wh[0] == 'a' else vr)(wh[1], 8)
        k(f"v_smfmac_f32_16x16x64_bf16 {vr(PD + 4 * T, 4)}, {vr(AF + 4 * ks, 4)}, {b}, v{V_IDX}")
        if wh[0] == 'l' and wh[1] + 4 < PL_NL:
            tb_read(wh[1] + 4)
        for it in side[i]: it()
        if i == 29: stamp(k, cfg, 2)
        if i == b1: stamp(k, cfg, 3)
    stamp(k, cfg, 4)
    k("s_nop 7")
    for it in post_tile(5, KO): it()
    lq.all()
    k("s_barrier")
    if MK == 'b3': mark()
    stamp(k, cfg, 5)
    KF = AF
    X0 = AF + 24
    lq.ds(f"ds_read2st64_b32 {vr(X0, 2)}, v{V_SPR} offset0:0 offset1:2", 'sp0')
    lq.ds(f"ds_read2st64_b32 {vr(X0 + 2, 2)}, v{V_SPR} offset0:8 offset1:10", 'sp1')
    for ks in range(3):
        for hi in range(2):
            lq.ds(f"ds_read_b128 {vr(KF + 8 * ks + 4 * hi, 4)}, v{V_KR} offset:{ks * 128 + hi * 16}", ('kf', ks))
    sx_, mx, t, u, sm, ex, em, tot = X0 + 4, X0 + 5, X0 + 6, X0 + 7, X0 + 8, X0 + 9, X0 + 10, X0 + 11
    lq.wait('sp1')
    k(f"v_add_f32 v{X0}, v{X0}, v{X0+1}")
    k(f"v_add_f32 v{X0+2}, v{X0+2}, v{X0+3}")
    k(f"v_add_f32 v{sx_}, v{X0}, v{X0+2}")
    k(f"v_mul_f32 v{sx_}, {hexf(CSC)}, v{sx_}")
    for ks in range(3):
        lq.wait(('kf', ks))
        k(f"v_smfmac_f32_16x16x64_bf16 {vr(PDM, 4)}, {vr(QF + 4 * ks, 4)}, {vr(KF + 8 * ks, 8)}, v{V_IDX}")
    if MK == 's6': mark()
    stamp(k, cfg, 6)
    def dpp(op, dst, src, ctl):
        k(f"{op} v{dst}, v{src}, v{src} {ctl} row_mask:0xf bank_mask:0xf")
    dpp("v_max_f32_dpp", mx, sx_, "row_ror:8"); k("s_nop 1")
    dpp("v_max_f32_dpp", mx, mx, "row_ror:4"); k("s_nop 1")
    dpp("v_max_f32_dpp", mx, mx, "row_ror:2"); k("s_nop 1")
    dpp("v_max_f32_dpp", mx, mx, "row_ror:1")
    k(f"v_mov_b32 v{u}, v{mx}")
    k("s_nop 1")
    k(f"v_permlane32_swap_b32 v{mx}, v{u}")
    k(f"v_max_f32 v{mx}, v{mx}, v{u}")
    dm = PDM + w
    k(f"v_mov_b32 v{u}, v{dm}")
    k("s_nop 1")
    k(f"v_permlane32_swap_b32 v{dm}, v{u}")
    k(f"v_add_f32 v{sm}, v{dm}, v{u}")
    k(f"v_mul_f32 v{sm}, {hexf(CSC)}, v{sm}")
    k("s_nop 1")
    dpp("v_max_f32_dpp", t, sm, "row_ror:4"); k("s_nop 1")
    dpp("v_max_f32_dpp", t, t, "row_ror:2"); k("s_nop 1")
    dpp("v_max_f32_dpp", t, t, "row_ror:1")
    k(f"v_max_f32 v{mx}, v{mx}, v{t}")
    k(f"v_sub_f32 v{ex}, v{sx_}, v{mx}")
    k(f"v_sub_f32 v{em}, v{sm}, v{mx}")
    k(f"v_exp_f32 v{ex}, v{ex}")
    k(f"v_exp_f32 v{em}, v{em}")
    k("s_nop 0")
    k(f"v_fma_f32 v{tot}, v{em}, v{V_MASKF}, v{ex}")
    k("s_nop 1")
    dpp("v_add_f32_dpp", tot, tot, "row_ror:8"); k("s_nop 1")
    dpp("v_add_f32_dpp", tot, tot, "row_ror:4"); k("s_nop 1")
    dpp("v_add_f32_dpp", tot, tot, "row_ror:2"); k("s_nop 1")
    dpp("v_add_f32_dpp", tot, tot, "row_ror:1")
    k(f"v_mov_b32 v{u}, v{tot}")
    k("s_nop 1")
    k(f"v_permlane32_swap_b32 v{tot}, v{u}")
    k(f"v_add_f32 v{tot}, v{tot}, v{u}")
    k(f"v_rcp_f32 v{tot}, v{tot}")
    k("s_nop 0")
    k(f"v_mul_f32 v{ex}, v{ex}, v{tot}")
    k(f"v_mul_f32 v{em}, v{em}, v{tot}")
    ox, om = KF, KF + 4
    k("s_nop 0")
    k(f"v_mov_b32_dpp v{t}, v{ex} quad_perm:[1,0,3,2] row_mask:0xf bank_mask:0xf")
    k(f"v_mov_b32_dpp v{u}, v{em} quad_perm:[1,0,3,2] row_mask:0xf bank_mask:0xf")
    k(f"v_cvt_pk_bf16_f32 v{ox}, v{ex}, v{t}")
    k(f"v_cvt_pk_bf16_f32 v{om}, v{em}, v{u}")
    k("s_nop 0")
    for j in range(1, 4):
        k(f"v_mov_b32_dpp v{ox+j}, v{ox} row_shl:{2*j} row_mask:0xf bank_mask:0xf")
    for j in range(1, 4):
        k(f"v_mov_b32_dpp v{om+j}, v{om} row_shl:{2*j} row_mask:0xf bank_mask:0xf")
    if cfg.get('pgather'):
        k(f"s_mov_b64 exec, s[{S_M8}:{S_M8+1}]")
        k(f"ds_write_b128 v{V_PX}, {vr(ox, 4)}")
        k(f"s_mov_b64 exec, s[{S_M2}:{S_M2+1}]")
        k(f"ds_write_b128 v{V_PM}, {vr(om, 4)}")
        k("s_mov_b64 exec, -1")
        k("s_waitcnt lgkmcnt(0)")
        k("s_barrier")
        if w == 0:
            k("s_mov_b32 exec_hi, 0xff")
            k(f"ds_read_b128 {vr(ox, 4)}, v{V_SPW} offset:4096")
            k("s_waitcnt lgkmcnt(0)")
            k(f"buffer_store_dwordx4 {vr(ox, 4)}, v252, {srd}, s{S_SB} offen sc1")
            k("s_mov_b64 exec, -1")
    else:
        k(f"s_mov_b64 exec, s[{S_M8}:{S_M8+1}]")
        k(f"buffer_store_dwordx4 {vr(ox, 4)}, v{V_PX}, {srd}, s{S_SB} offen sc1")
        k(f"s_mov_b64 exec, s[{S_M2}:{S_M2+1}]")
        k(f"buffer_store_dwordx4 {vr(om, 4)}, v{V_PM}, {srd}, s{S_SB} offen sc1")
        k("s_mov_b64 exec, -1")
    stamp(k, cfg, 7)
    stamp(k, cfg, 8, True)
    if w == 0: rt(k, cfg, 1)
    if w < 3:
        lq.ds(f"ds_read_b128 {vr(X0, 4)}, v{V_KML}", 'km')
    k(f"s_add_u32 s{S_T+8}, s{S_STEP}, 1")
    k(f"s_min_u32 s{S_T+8}, s{S_T+8}, {NSTEP-1}")
    kx_prefetch(S_T + 8)
    zero_d()
    if w < 3:
        lq.wait('km')
        k(f"s_mul_i32 s{S_T}, s{S_STEP}, {32 * KM_SH}")
        k(f"s_add_u32 s{S_T}, s{S_T}, s{S_KM}")
        k(f"buffer_store_dwordx4 {vr(X0, 4)}, v{V_KMG}, {srd}, s{S_T} offen{SC1}")
    if w == 3 and cfg.get('ovl'):
        k(f"s_lshl_b32 s{S_T}, s{S_ROLE}, 7")
        k(f"s_add_u32 s{S_T}, s{S_T}, {FL_PF}")
        flag_store(k, cfg, S_T, S_STEP, V_T0, V_T1)
    for n in range(4): tb_read(n)
    lq.all()
    if cfg.get('pack', 0):
        k("s_waitcnt vmcnt(0)")
        k("s_barrier")
    if w == 0: rt_flush(k, cfg, 0)
    if w == cfg.get('stamp_wave', 0): stamp_flush(k, cfg, 9, cfg.get('stamp_p', 0))
    k(f"s_add_u32 s{S_STEP}, s{S_STEP}, 1")
    k(f"s_cmp_lt_u32 s{S_STEP}, {NSTEP}")
    k(f"s_cbranch_scc1 {L('step')}")
    if cfg.get('ovl'):
        k("s_waitcnt vmcnt(0)")
        k("s_barrier")
        if w == 3:
            k(f"s_lshl_b32 s{S_T}, s{S_ROLE}, 7")
            k(f"s_add_u32 s{S_T}, s{S_T}, {FL_PF}")
            flag_store(k, cfg, S_T, S_STEP, V_T0, V_T1)
    k(f"s_branch {k.ref('end')}")

def p2_sched(k, w, cfg, lq, own, rest, seq, ldspos, where, tb_read_items, fix=None):
    KXF = P2_KXF; TB = P2_TB; NL = P2_NL
    kt = w & 1; tp = w >> 1
    KO = P2_KI - P2_QI
    NB0 = cfg.get('p2_b0', 4)
    LR = cfg.get('p2_lr', 6)
    LW = cfg.get('p2_lw', 4)
    PR = cfg.get('p2_pr') or []
    BIG = 100
    ds = [None] * BIG; va = [None] * BIG; bar = [None] * BIG
    def first(start, ok):
        p = start
        while not ok(p): p += 1
        return p
    def put_r(fn, start):
        p = first(start, lambda p: ds[p] is None and bar[p] is None); ds[p] = ('r', fn); return p
    def put_v(fn, start):
        p = first(start, lambda p: va[p] is None and not (ds[p] and ds[p][0] == 'w')); va[p] = fn; return p
    def put_w(fn, start):
        p = first(start, lambda p: ds[p] is None and va[p] is None and bar[p] is None); ds[p] = ('w', fn); return p
    def put_b(tag, start, fn=None):
        p = first(start, lambda p: ds[p] is None and bar[p] is None); bar[p] = (tag, fn); return p
    def post(T, start):
        d = PD + 4 * T; col = 128 * (T % 3); base = 0 if T < 3 else KO
        p = put_v(lambda: k(f"v_add_f32 v{d}, v{d}, v{d+2}"), start)
        p = put_v(lambda: k(f"v_add_f32 v{d+1}, v{d+1}, v{d+3}"), p + 1)
        p = put_v(lambda: k(f"v_cvt_pk_bf16_f32 v{d}, v{d}, v{d+1}"), p + 1)
        p = put_w(lambda: lq.ds(f"ds_write_b16 v{V_IW}, v{d} offset:{base + col}", ('img', T)), p + 1)
        p = put_w(lambda: lq.ds(f"ds_write_b16_d16_hi v{V_IW}, v{d} offset:{base + col + PL_STR}", ('img', T)), p + 1)
        return p
    def dpp(op, dst, src, ctl):
        k(f"{op} v{dst}, v{src}, v{src} {ctl} row_mask:0xf bank_mask:0xf")
    last = {T: max(i for i, op in enumerate(seq) if op[0] == T) for T in range(6)}
    put_b('mw', NB0, lambda: (stamp(k, cfg, 1), rt(k, cfg, 0) if w == 0 else None))
    p = NB0
    afpos = {}
    for ks in rest:
        p = put_r(lambda ks=ks: lq.ds(f"ds_read_b128 {vr(AF + 4 * ks, 4)}, v{V_MIA} offset:{ks * 1024}", ('af', ks)), p + 1); afpos[ks] = p
    for ks in rest:
        u = min(i for i, op in enumerate(seq) if op[1] == ks)
        assert u - afpos[ks] >= LR - 1, (w, ks, u, afpos[ks])
    e2 = post(2, last[2] + 2)
    e0 = post(0, last[0] + 2); e1 = post(1, last[1] + 2)
    b1 = put_b(('img', 2), max(e2 + LW, e0 + LW, e1 + LW, fix['b1'] if fix else 0))
    p = b1; qpos = []
    for ks in range(3):
        p = put_r(lambda ks=ks: lq.ds(f"ds_read_b128 {vr(QF + 4 * ks, 4)}, v{V_QR} offset:{ks * 128}", ('qf', ks)), p + 1); qpos.append(p)
    sxi = qpos[0] + LR - 1
    assert qpos[2] + LR <= sxi + 3 + 1
    mf = []
    for i, op in enumerate(seq):
        mf.append(('m', i))
        if i == sxi: mf += [('x', 0), ('x', 1), ('x', 2)]
    NP = len(mf)
    pos = lambda i: i if i <= sxi else i + 3
    e4 = post(4, pos(last[4]) + 2)
    e3 = post(3, pos(last[3]) + 2)
    XS, XM, XL, XE = PD, PD + 2, PD + 3, PD + 4
    xch = [
        lambda: k(f"v_add_f32 v{XS}, v{PDX + tp}, v{PDX + tp + 2}"), lambda: k(f"v_mul_f32 v{XS}, {hexf(CSC)}, v{XS}"),
        lambda: dpp("v_max_f32_dpp", XM, XS, "row_ror:8"), lambda: dpp("v_max_f32_dpp", XM, XM, "row_ror:4"),
        lambda: dpp("v_max_f32_dpp", XM, XM, "row_ror:2"), lambda: dpp("v_max_f32_dpp", XM, XM, "row_ror:1"),
        lambda: k(f"v_sub_f32 v{XE}, v{XS}, v{XM}"), lambda: k(f"v_exp_f32 v{XE}, v{XE}"),
        lambda: dpp("v_add_f32_dpp", XL, XE, "row_ror:8"), lambda: dpp("v_add_f32_dpp", XL, XL, "row_ror:4"),
        lambda: dpp("v_add_f32_dpp", XL, XL, "row_ror:2"), lambda: dpp("v_add_f32_dpp", XL, XL, "row_ror:1")]
    p = sxi + 3 + 1
    late = []
    for fn in xch:
        p = put_v(fn, p + 1)
        if p >= NP: late.append(fn); va[p] = None
    bk = put_b(('img', 4), max(max(e4, e3) + cfg.get('p2_lwk', LW), fix['bk'] if fix and 'bk' in fix else 0))
    assert max(e3, e4) < NP, (w, e3, e4)
    if not fix or 'bk' not in fix: return dict(b1=b1, bk=bk)
    assert b1 == fix['b1'] and bk == fix['bk'], (w, b1, bk, fix)
    kin = bk < NP
    kfr = [lambda ks=ks, hi=hi: lq.ds(f"ds_read_b128 {vr(KXF + 8 * ks + 4 * hi, 4)}, v{V_KR} offset:{ks * 128 + hi * 16}", ('kf', ks)) for ks in range(3) for hi in range(2)]
    klate = []
    if kin:
        p = bk
        for fn in kfr[:4]:
            p = put_r(fn, p + 1)
            if p >= NP: klate.append(fn); ds[p] = None
    else: bar[bk] = None
    rdat = cfg.get('p2_rd')
    for n in range(NL - 4):
        p = max(pos(ldspos[n]), rdat[n] if rdat else 0) - 1
        for fn in tb_read_items(n + 4): p = put_r(fn, p + 1)
        assert p + LR <= pos(ldspos[n + 4]), (w, n, p, pos(ldspos[n + 4]))
    if cfg.get('p2_dump') == w:
        print("wave", w, "last", last, "b1", b1, "sxi", sxi, "bk", bk, "late", len(late), "klate", len(klate))
        print("".join((ds[p][0] if ds[p] else ('B' if bar[p] else '.')) for p in range(NP)))
        print("".join(('v' if va[p] else '.') for p in range(NP)))
    def need(m):
        if m[0] == 'x': return [('qf', m[1])]
        T, ks = seq[m[1]]; wh = where[(T, ks)]; t = []
        if ks in rest: t.append(('af', ks))
        if wh[0] == 'l': t.append(('tb', wh[1]))
        return t
    for p, m in enumerate(mf):
        if m[0] == 'x':
            k(f"v_smfmac_f32_16x16x64_bf16 {vr(PDX, 4)}, {vr(QF + 4 * m[1], 4)}, {vr(KXF + 8 * m[1], 8)}, v{V_IDX}")
        else:
            T, ks = seq[m[1]]; wh = where[(T, ks)]
            b = vr(TB + 8 * (wh[1] % 4), 8) if wh[0] == 'l' else (ar if wh[0] == 'a' else vr)(wh[1], 8)
            k(f"v_smfmac_f32_16x16x64_bf16 {vr(PD + 4 * T, 4)}, {vr(AF + 4 * ks, 4)}, {b}, v{V_IDX}")
        tags = need(mf[p + 1]) if p + 1 < NP else []
        if bar[p]: tags = tags + [bar[p][0]]
        lq.wait_many(tags)
        if bar[p]:
            k("s_barrier")
            if bar[p][1]: bar[p][1]()
        if ds[p]: ds[p][1]()
        if va[p]: va[p]()
        if p in PR: stamp(k, cfg, 2 + PR.index(p))
    if len(PR) < 3: stamp(k, cfg, 4)
    ns = 0
    for fn in klate: fn(); ns += 1
    for n, fn in enumerate(late):
        if n == 0 and ns == 0: k("s_nop 0"); ns += 1
        fn(); ns += 1
        if n + 1 < len(late): k("s_nop 1"); ns += 2
    if ns < 8: k(f"s_nop {7 - ns}")
    d = PD + 20
    k(f"v_add_f32 v{d}, v{d}, v{d+2}")
    k(f"v_add_f32 v{d+1}, v{d+1}, v{d+3}")
    k(f"v_cvt_pk_bf16_f32 v{d}, v{d}, v{d+1}")
    lq.ds(f"ds_write_b16 v{V_IW}, v{d} offset:{KO + 256}", ('img', 5))
    lq.ds(f"ds_write_b16_d16_hi v{V_IW}, v{d} offset:{KO + 256 + PL_STR}", ('img', 5))
    lq.ds(f"ds_write_b64 v{V_ST8}, {vr(XM, 2)} offset:{512 * w}", 'st')
    smm = lambda ks: k(f"v_smfmac_f32_16x16x64_bf16 {vr(PDM, 4)}, {vr(QF + 4 * ks, 4)}, {vr(KXF + 8 * ks, 8)}, v{V_IDX}")
    if kin:
        for ks in range(2):
            lq.wait(('kf', ks)); smm(ks)
    lq.all()
    k("s_barrier")
    if len(PR) <= 3: stamp(k, cfg, 5)
    OM = AF
    if kin:
        for fn in kfr[4:]: fn()
        lq.ds(f"ds_read_b64 {vr(OM, 2)}, v{V_ST8} offset:{512 * (w ^ 1)}", 'so')
        lq.wait(('kf', 2)); smm(2)
    else:
        for fn in kfr: fn()
        lq.ds(f"ds_read_b64 {vr(OM, 2)}, v{V_ST8} offset:{512 * (w ^ 1)}", 'so')
        for ks in range(3):
            lq.wait(('kf', ks)); smm(ks)
    if len(PR) <= 3: stamp(k, cfg, 6)

def gen_p_wave2(k, w, cfg):
    own, rest, seq, ldspos, where = p_plan2(w, cfg)
    NL = P2_NL; KXF = P2_KXF; TB = P2_TB
    kt = w & 1; tp = w >> 1
    L = lambda s: k.ref(f"p{w}_{s}")
    lab = lambda s: k.lab(f"p{w}_{s}")
    bail = k.ref('bail')
    lq = LQ(k)
    lab('start')
    k("v_lshrrev_b32 v16, 4, v0")
    k("v_and_b32 v17, 15, v0")
    k("v_and_b32 v18, 2, v0")
    k("v_cmp_eq_u32 vcc, 0, v18")
    k("v_mov_b32 v18, 0xeeeeeeee")
    k("v_mov_b32 v19, 0x44444444")
    k(f"v_cndmask_b32 v{V_IDX}, v18, v19, vcc")
    k("v_lshrrev_b32 v20, 2, v17")
    k("v_lshlrev_b32 v20, 1, v20")
    k("v_and_b32 v21, 1, v17")
    k("v_add_u32 v20, v20, v21")
    k("v_bfe_u32 v21, v17, 1, 1")
    k("v_lshl_add_u32 v18, v16, 1, v21")
    k("v_lshlrev_b32 v18, 7, v18")
    k(f"v_lshl_add_u32 v{V_MG}, v20, 4, v18")
    k(f"v_mul_u32_u24 v18, {PL_STR}, v20")
    k("v_lshl_add_u32 v18, v16, 5, v18")
    k("v_lshl_add_u32 v18, v21, 4, v18")
    k(f"v_add_u32 v{V_QR}, {P2_QI}, v18")
    k(f"v_mul_u32_u24 v18, {2 * PL_STR}, v16")
    k("v_lshl_add_u32 v18, v17, 1, v18")
    k(f"v_add_u32 v{V_IW}, {P2_QI + 32 * w}, v18")
    k("v_and_b32 v18, 7, v0")
    k(f"v_mul_u32_u24 v18, {PL_STR}, v18")
    k("v_lshl_add_u32 v18, v16, 5, v18")
    k(f"v_add_u32 v{V_KR}, {P2_KI}, v18")
    k("v_lshlrev_b32 v18, 3, v0")
    k(f"v_add_u32 v{V_ST8}, {P2_ST}, v18")
    k("v_lshlrev_b32 v18, 4, v16")
    k("v_bfe_u32 v19, v17, 1, 2")
    k("v_lshl_add_u32 v18, v19, 2, v18")
    k(f"s_lshl_b32 s{S_T}, s{S_ROLE}, 7")
    k(f"s_add_u32 s{S_T}, s{S_T}, {64 * tp}")
    k(f"v_add_u32 v18, s{S_T}, v18")
    k("v_lshrrev_b32 v19, 3, v17")
    k(f"v_add_u32 v19, {1 + 2 * kt}, v19")
    k("v_lshrrev_b32 v20, 1, v19")
    k("v_lshlrev_b32 v20, 14, v20")
    k("v_and_b32 v19, 1, v19")
    k("v_lshl_add_u32 v19, v19, 12, v20")
    k("v_add_u32 v19, v19, v18")
    k("v_mov_b32 v20, 0x7ffffff0")
    if cfg.get('p2_x4'):
        k("v_and_b32 v21, 7, v0")
        k("v_cmp_eq_u32 vcc, 4, v21")
        k("v_subrev_u32 v21, 8, v18")
        k("s_nop 0")
        k(f"v_cndmask_b32 v{V_PX}, v19, v21, vcc")
    else:
        k("v_and_b32 v21, 1, v0")
        k("v_cmp_eq_u32 vcc, 0, v21")
        k("s_nop 1")
        k(f"v_cndmask_b32 v{V_PX}, v20, v19, vcc")
    k(f"v_and_b32 v21, 0x29, v0")
    k(f"v_cmp_eq_u32 vcc, {32 * kt}, v21")
    k("s_nop 1")
    k(f"v_cndmask_b32 v{V_PM}, v20, v18, vcc")
    k(f"v_lshlrev_b32 v18, 4, v17")
    k("v_lshl_add_u32 v18, v16, 10, v18")
    k(f"v_add_u32 v{V_KXO}, {16 * kt * 16}, v18")
    k(f"v_add_u32 v18, {64 * w}, v0")
    k("v_mul_u32_u24 v19, 2731, v18")
    k("v_lshrrev_b32 v19, 16, v19")
    k("v_mul_u32_u24 v20, 24, v19")
    k("v_sub_u32 v20, v18, v20")
    k(f"v_mul_u32_u24 v21, {PL_STR}, v19")
    k("v_lshl_add_u32 v21, v20, 4, v21")
    k(f"v_add_u32 v{V_KML}, {P2_KI}, v21")
    k("v_lshlrev_b32 v21, 4, v19")
    k(f"v_lshl_add_u32 v{V_KMG}, v20, 7, v21")
    k(f"v_add_u32 v{V_WLA}, {w * NL * 2048}, v{V_L16}")
    k(f"v_add_u32 v{V_MIA}, {P2_MEMI}, v{V_L16}")
    k(f"s_mul_i32 s{S_KX}, s{S_ROLE}, {KX_SH}")
    k(f"s_add_u32 s{S_KX}, s{S_KX}, {KX}")
    k(f"s_mul_i32 s{S_KM}, s{S_ROLE}, {KM_SH}")
    k(f"s_add_u32 s{S_KM}, s{S_KM}, {KM}")
    k(f"s_mul_i32 s{S_T}, s{S_ROLE}, 6")
    k(f"s_add_u32 s{S_T+1}, s{S_T}, 5")
    k(f"s_lshr_b32 s{S_T}, s{S_T}, 3")
    k(f"s_lshr_b32 s{S_T+1}, s{S_T+1}, 3")
    k(f"s_add_u32 s{S_T}, s{S_T}, 80"); k(f"s_add_u32 s{S_T+1}, s{S_T+1}, 80")
    k(f"s_lshl_b32 s{S_T}, s{S_T}, 7"); k(f"s_lshl_b32 s{S_T+1}, s{S_T+1}, 7")
    k(f"v_mov_b32 v{V_GF}, s{S_T+1}")
    k(f"v_mov_b32 v{V_T0}, s{S_T}")
    k("v_cmp_eq_u32 vcc, 0, v0")
    k("s_nop 1")
    k(f"v_cndmask_b32 v{V_GF}, v{V_GF}, v{V_T0}, vcc")
    k(f"s_mov_b32 s{S_GK}, 0")
    k(f"s_mul_i32 s{S_T}, s{S_ROLE}, 491520")
    k(f"s_add_u32 s{S_T}, s{S_T}, {WP + w * 122880}")
    def wload(dst, T, ks):
        idx = T * 10 + ks
        k(f"s_add_u32 s{S_T+1}, s{S_T}, {idx * 2048}")
        for hi in range(2):
            k(f"buffer_load_dwordx4 {dst(hi)}, v{V_L16}, {srd}, s{S_T+1} offen offset:{hi*1024}")
    SEMI = cfg.get('na') == 4
    lops = [(op, wh[1]) for op, wh in where.items() if wh[0] == 'l']
    rops = [(op, wh) for op, wh in where.items() if wh[0] != 'l' and not (SEMI and wh[0] == 'a' and wh[1] // 8 < cfg.get('npf', 64) // 2)]
    for (T, ks), slot in lops:
        wload(lambda hi: vr(16 + 8 * slot + 4 * hi, 4), T, ks)
    for (T, ks), wh in rops[:15]:
        wload((lambda hi, wh=wh: (ar if wh[0] == 'a' else vr)(wh[1] + 4 * hi, 4)), T, ks)
    k(f"s_waitcnt vmcnt({2 * len(rops[:15])})")
    for (T, ks), slot in lops:
        for hi in range(2):
            k(f"ds_write_b128 v{V_WLA}, {vr(16 + 8 * slot + 4 * hi, 4)} offset:{slot * 2048 + hi * 1024}")
    for (T, ks), wh in rops[15:]:
        wload((lambda hi, wh=wh: (ar if wh[0] == 'a' else vr)(wh[1] + 4 * hi, 4)), T, ks)
    k("s_waitcnt lgkmcnt(0)")
    npf = [0]
    def kx_prefetch(step_s):
        npf[0] += 1
        wait_progress(k, cfg, f"p{w}_gw{npf[0]}", step_s, V_GF, 2, V_T0)
        k(f"s_mul_i32 s{S_T}, s{step_s}, {32 * KX_SH}")
        k(f"s_add_u32 s{S_T}, s{S_T}, s{S_KX}")
        for ks in range(3):
            k(f"s_add_u32 s{S_T+1}, s{S_T}, {ks * 4096}")
            for hi in range(2):
                k(f"buffer_load_dwordx4 {vr(KXF + 8 * ks + 4 * hi, 4)}, v{V_KXO}, {srd}, s{S_T+1} offen offset:{hi * 512} sc1")
    def tb_read_items(n):
        return [lambda hi=hi: lq.ds(f"ds_read_b128 {vr(TB + 8 * (n % 4) + 4 * hi, 4)}, v{V_WLA} offset:{n * 2048 + hi * 1024}", ('tb', n)) for hi in range(2)]
    def zero_d():
        for r in range(PD, PD + 32): k(f"v_mov_b32 v{r}, 0")
    wait_par(k, cfg, f"p{w}_par", bail)
    k(f"s_mov_b32 s{S_STEP}, 0")
    kx_prefetch(S_STEP)
    zero_d()
    for n in range(4):
        for it in tb_read_items(n): it()
    lq.all()
    lab('step')
    slot_base(k, S_SB, S_STEP, S_T)
    for u, ks in enumerate(own):
        k(f"s_add_u32 s{S_T+2+u}, s{S_SB}, {physmap(M_LOG + 1024 * ks)}")
    stamp(k, cfg, 0)
    lab('poll')
    for u, ks in enumerate(own):
        k(f"buffer_load_dwordx4 {vr(AF + 4 * ks, 4)}, v{V_L16 if cfg.get('p2_lin') else V_MG}, {srd}, s{S_T+2+u} offen sc1")
    k("s_waitcnt vmcnt(0)")
    for ks in own:
        k(f"ds_write_b128 v{V_MIA}, {vr(AF + 4 * ks, 4)} offset:{ks * 1024}")
    check_valid(k, [AF + 4 * ks + j for ks in own for j in range(4)], QF)
    spin_check(k, bail)
    k(f"s_cbranch_vccnz {L('poll')}")
    lq.q = ['mw']
    def dpp(op, dst, src, ctl):
        k(f"{op} v{dst}, v{src}, v{src} {ctl} row_mask:0xf bank_mask:0xf")
    XS, XM, XL, XE = PD, PD + 2, PD + 3, PD + 4
    OM, OL = AF, AF + 1
    if cfg.get('p2s'):
        def dry(fix):
            r = []
            for w_ in range(4):
                o_, r_, s_, l_, wh_ = p_plan2(w_, cfg)
                r.append(p2_sched(k, w_, cfg, lq, o_, r_, s_, l_, wh_, tb_read_items, fix))
            return r
        fix = dict(b1=max(x['b1'] for x in dry(None)))
        fix['bk'] = max(x['bk'] for x in dry(fix))
        p2_sched(k, w, cfg, lq, own, rest, seq, ldspos, where, tb_read_items, fix)
    else:
        NB0 = cfg.get('p2_b0', 2)
        side = {i: [] for i in range(-1, 60)}
        def put(items, start, per=2):
            i = start
            for it in items:
                while len(side[i]) >= per: i += 1
                side[i].append(it)
            return i
        def b0():
            lq.all()
            k("s_barrier")
            stamp(k, cfg, 1)
            if w == 0: rt(k, cfg, 0)
        side[NB0 - 1].append(b0)
        rd = [lambda ks=ks: lq.ds(f"ds_read_b128 {vr(AF + 4 * ks, 4)}, v{V_MIA} offset:{ks * 1024}", ('af', ks)) for ks in rest]
        for it in rd[:3]: side[NB0 - 1].append(it)
        put(rd[3:], NB0)
        def post_tile(T, base):
            d = PD + 4 * T
            col = 128 * (T % 3)
            return [
                lambda: k(f"v_add_f32 v{d}, v{d}, v{d+2}"),
                lambda: k(f"v_add_f32 v{d+1}, v{d+1}, v{d+3}"),
                lambda: k(f"v_cvt_pk_bf16_f32 v{d}, v{d}, v{d+1}"),
                lambda: lq.ds(f"ds_write_b16 v{V_IW}, v{d} offset:{base + col}", ('img', T)),
                lambda: lq.ds(f"ds_write_b16_d16_hi v{V_IW}, v{d} offset:{base + col + PL_STR}", ('img', T)),
            ]
        nrd = {i: 0 for i in range(-1, 60)}
        def put_rd(items, start):
            i = start
            for it in items:
                while len(side[i]) >= 2 or nrd[i] >= 1: i += 1
                side[i].append(it); nrd[i] += 1
            return i
        RD1 = cfg.get('p2_rd1', 0)
        rdpos = cfg.get('p2_rd', ldspos)
        for n in range(NL - 4):
            assert rdpos[n] >= ldspos[n]
            if RD1: e_ = put_rd(tb_read_items(n + 4), rdpos[n]); assert e_ < ldspos[n + 4] - 3, (n, e_)
            else: put(tb_read_items(n + 4), rdpos[n])
        last = {T: max(i for i, op in enumerate(seq) if op[0] == T) for T in range(6)}
        KO = P2_KI - P2_QI
        for T in (0, 1): put(post_tile(T, 0), last[T] + 2)
        e = put(post_tile(2, 0), last[2] + 2)
        b1 = e + cfg.get('p2_b1', 3)
        PR = cfg.get('p2_pr')
        side[b1].append(lambda: (lq.wait(('img', 2)), k("s_barrier"), None if PR else stamp(k, cfg, 3)))
        for ks in range(3):
            side[b1 + (ks > 0)].append(lambda ks=ks: lq.ds(f"ds_read_b128 {vr(QF + 4 * ks, 4)}, v{V_QR} offset:{ks * 128}", ('qf', ks)))
        put(post_tile(3, KO), last[3] + 2)
        sx = b1 + cfg.get('p2_sx', 6)
        def smx():
            lq.wait(('qf', 2))
            for ks in range(3):
                k(f"v_smfmac_f32_16x16x64_bf16 {vr(PDX, 4)}, {vr(QF + 4 * ks, 4)}, {vr(KXF + 8 * ks, 8)}, v{V_IDX}")
        side[sx].append(smx)
        def dpp(op, dst, src, ctl):
            k(f"{op} v{dst}, v{src}, v{src} {ctl} row_mask:0xf bank_mask:0xf")
        XS, XM, XL, XE = PD, PD + 2, PD + 3, PD + 4
        xchain = [
            [lambda: k(f"v_add_f32 v{XS}, v{PDX + tp}, v{PDX + tp + 2}"), lambda: k(f"v_mul_f32 v{XS}, {hexf(CSC)}, v{XS}")],
            [lambda: dpp("v_max_f32_dpp", XM, XS, "row_ror:8")],
            [lambda: dpp("v_max_f32_dpp", XM, XM, "row_ror:4")],
            [lambda: dpp("v_max_f32_dpp", XM, XM, "row_ror:2")],
            [lambda: dpp("v_max_f32_dpp", XM, XM, "row_ror:1")],
            [lambda: k(f"v_sub_f32 v{XE}, v{XS}, v{XM}"), lambda: k(f"v_exp_f32 v{XE}, v{XE}")],
            [lambda: dpp("v_add_f32_dpp", XL, XE, "row_ror:8")],
            [lambda: dpp("v_add_f32_dpp", XL, XL, "row_ror:4")],
            [lambda: dpp("v_add_f32_dpp", XL, XL, "row_ror:2")],
            [lambda: dpp("v_add_f32_dpp", XL, XL, "row_ror:1")],
            [lambda: lq.ds(f"ds_write_b64 v{V_ST8}, {vr(XM, 2)} offset:{512 * w}", 'st')],
        ]
        g0 = sx + 2
        late = []
        for n, its in enumerate(xchain):
            if g0 + n <= 59:
                for it in its: side[g0 + n].append(it)
            else: late.append(its)
        put(post_tile(4, KO), last[4] + 2)
        bk = cfg.get('p2_bk', 56)
        side[bk].append(lambda: (lq.wait(('img', 4)), k("s_barrier")))
        kfr = [lambda ks=ks, hi=hi: lq.ds(f"ds_read_b128 {vr(KXF + 8 * ks + 4 * hi, 4)}, v{V_KR} offset:{ks * 128 + hi * 16}", ('kf', ks)) for ks in range(2) for hi in range(2)]
        side[bk] += kfr[:2]; side[bk + 1] += kfr[2:]
        assert bk > sx + 1
        for it in side[-1]: it()
        for i, (T, ks) in enumerate(seq):
            wh = where[(T, ks)]
            if T < 3 and ks in rest: lq.wait(('af', ks))
            if wh[0] == 'l':
                lq.wait(('tb', wh[1]))
                b = vr(TB + 8 * (wh[1] % 4), 8)
            else:
                b = (ar if wh[0] == 'a' else vr)(wh[1], 8)
            k(f"v_smfmac_f32_16x16x64_bf16 {vr(PD + 4 * T, 4)}, {vr(AF + 4 * ks, 4)}, {b}, v{V_IDX}")
            for it in side[i]: it()
            if i == 29 and not PR: stamp(k, cfg, 2)
            if PR and i in PR: stamp(k, cfg, 2 + PR.index(i))
        if not PR: stamp(k, cfg, 4)
        for ks in range(2):
            lq.wait(('kf', ks))
            k(f"v_smfmac_f32_16x16x64_bf16 {vr(PDM, 4)}, {vr(QF + 4 * ks, 4)}, {vr(KXF + 8 * ks, 8)}, v{V_IDX}")
        for its in late:
            k("s_nop 1")
            for it in its: it()
        if late: k("s_nop 0")
        for it in post_tile(5, KO): it()
        lq.all()
        k("s_barrier")
        if not PR: stamp(k, cfg, 5)
        for hi in range(2):
            lq.ds(f"ds_read_b128 {vr(KXF + 16 + 4 * hi, 4)}, v{V_KR} offset:{256 + hi * 16}", ('kf', 2))
        OM, OL = AF, AF + 1
        lq.ds(f"ds_read_b64 {vr(OM, 2)}, v{V_ST8} offset:{512 * (w ^ 1)}", 'so')
        lq.wait(('kf', 2))
        k(f"v_smfmac_f32_16x16x64_bf16 {vr(PDM, 4)}, {vr(QF + 8, 4)}, {vr(KXF + 16, 8)}, v{V_IDX}")
        if not PR: stamp(k, cfg, 6)
    lq.wait('so')
    MXX, F0, F1, LX, SM, U, T_, EM, FX, R = range(AF + 2, AF + 12)
    k(f"v_max_f32 v{MXX}, v{XM}, v{OM}")
    k(f"v_sub_f32 v{F0}, v{XM}, v{MXX}")
    k(f"v_sub_f32 v{F1}, v{OM}, v{MXX}")
    k(f"v_exp_f32 v{F0}, v{F0}")
    k(f"v_exp_f32 v{F1}, v{F1}")
    k("s_nop 0")
    k(f"v_mul_f32 v{LX}, v{XL}, v{F0}")
    k(f"v_mul_f32 v{XE}, v{XE}, v{F0}")
    k(f"v_fmac_f32 v{LX}, v{OL}, v{F1}")
    k(f"v_add_f32 v{SM}, v{PDM + tp}, v{PDM + tp + 2}")
    k(f"v_mul_f32 v{SM}, {hexf(CSC)}, v{SM}")
    k(f"v_max_f32 v{U}, v{SM}, v{MXX}")
    k("s_nop 0")
    k(f"v_max_f32_dpp v{T_}, v{SM}, v{U} row_ror:4 row_mask:0xf bank_mask:0xf"); k("s_nop 1")
    dpp("v_max_f32_dpp", T_, T_, "row_ror:2"); k("s_nop 1")
    dpp("v_max_f32_dpp", T_, T_, "row_ror:1")
    k(f"v_sub_f32 v{EM}, v{SM}, v{T_}")
    k(f"v_sub_f32 v{FX}, v{MXX}, v{T_}")
    k(f"v_exp_f32 v{EM}, v{EM}")
    k(f"v_exp_f32 v{FX}, v{FX}")
    k("s_nop 0")
    dpp("v_add_f32_dpp", U, EM, "row_ror:4")
    k(f"v_mul_f32 v{XE}, v{XE}, v{FX}")
    k("s_nop 0")
    dpp("v_add_f32_dpp", U, U, "row_ror:2"); k("s_nop 1")
    dpp("v_add_f32_dpp", U, U, "row_ror:1")
    k(f"v_fmac_f32 v{U}, v{FX}, v{LX}")
    k(f"v_rcp_f32 v{R}, v{U}")
    k("s_nop 0")
    k(f"v_mul_f32 v{XE}, v{XE}, v{R}")
    k(f"v_mul_f32 v{EM}, v{EM}, v{R}")
    k("s_nop 0")
    k(f"v_mov_b32_dpp v{F0}, v{XE} quad_perm:[1,0,3,2] row_mask:0xf bank_mask:0xf")
    k(f"v_mov_b32_dpp v{F1}, v{EM} quad_perm:[1,0,3,2] row_mask:0xf bank_mask:0xf")
    if cfg.get('p2_x4'):
        O = AF + 12
        k(f"v_cvt_pk_bf16_f32 v{O}, v{XE}, v{F0}")
        k(f"v_cvt_pk_bf16_f32 v{EM}, v{EM}, v{F1}")
        ctl = "row_mask:0xf bank_mask:0xf"
        k("s_nop 0")
        for j in range(1, 4): k(f"v_mov_b32_dpp v{O+j}, v{O} row_shl:{2*j} {ctl}")
        k(f"v_mov_b32_dpp v{O}, v{EM} row_shr:4 row_mask:0xf bank_mask:0x2")
        k(f"v_mov_b32_dpp v{O+1}, v{EM} row_shr:2 row_mask:0xf bank_mask:0x2")
        k(f"v_mov_b32_dpp v{O+2}, v{EM} quad_perm:[0,1,2,3] row_mask:0xf bank_mask:0x2")
        k(f"v_mov_b32_dpp v{O+3}, v{EM} row_shl:2 row_mask:0xf bank_mask:0x2")
        k(f"s_mov_b32 exec_lo, {0x01110111 if kt == 0 else 0x01010101:#x}")
        k(f"s_mov_b32 exec_hi, {0x01010101 if kt == 0 else 0x01110111:#x}")
        k(f"buffer_store_dwordx4 {vr(O, 4)}, v{V_PX}, {srd}, s{S_SB} offen sc1")
        k("s_mov_b64 exec, -1")
    else:
        k(f"v_cvt_pk_bf16_f32 v{XE}, v{XE}, v{F0}")
        k(f"v_cvt_pk_bf16_f32 v{EM}, v{EM}, v{F1}")
        k(f"buffer_store_dword v{XE}, v{V_PX}, {srd}, s{S_SB} offen sc1")
        k(f"buffer_store_dword v{EM}, v{V_PM}, {srd}, s{S_SB} offen sc1")
    stamp(k, cfg, 7)
    stamp(k, cfg, 8, True)
    if w == 0: rt(k, cfg, 1)
    X0 = AF + 24
    if w < 3:
        lq.ds(f"ds_read_b128 {vr(X0, 4)}, v{V_KML}", 'km')
    k(f"s_add_u32 s{S_T+8}, s{S_STEP}, 1")
    k(f"s_min_u32 s{S_T+8}, s{S_T+8}, {NSTEP-1}")
    kx_prefetch(S_T + 8)
    zero_d()
    if w < 3:
        lq.wait('km')
        k(f"s_mul_i32 s{S_T}, s{S_STEP}, {32 * KM_SH}")
        k(f"s_add_u32 s{S_T}, s{S_T}, s{S_KM}")
        k(f"buffer_store_dwordx4 {vr(X0, 4)}, v{V_KMG}, {srd}, s{S_T} offen sc1")
    if w == 3:
        k(f"s_lshl_b32 s{S_T}, s{S_ROLE}, 7")
        k(f"s_add_u32 s{S_T}, s{S_T}, {FL_PF}")
        flag_store(k, cfg, S_T, S_STEP, V_T0, V_T1)
    for n in range(4):
        for it in tb_read_items(n): it()
    lq.all()
    if w == 0: rt_flush(k, cfg, 0)
    if w == cfg.get('stamp_wave', 0): stamp_flush(k, cfg, 9, cfg.get('stamp_p', 0))
    k(f"s_add_u32 s{S_STEP}, s{S_STEP}, 1")
    k(f"s_cmp_lt_u32 s{S_STEP}, {NSTEP}")
    k(f"s_cbranch_scc1 {L('step')}")
    k("s_waitcnt vmcnt(0)")
    k("s_barrier")
    if w == 3:
        k(f"s_lshl_b32 s{S_T}, s{S_ROLE}, 7")
        k(f"s_add_u32 s{S_T}, s{S_T}, {FL_PF}")
        flag_store(k, cfg, S_T, S_STEP, V_T0, V_T1)
    k(f"s_branch {k.ref('end')}")

YL_MEMI = 0
YL_RED = 10240
YV_L16 = 1; YV_IDX = 2; YV_MIA = 3; YV_ZO = 4; YV_PO = 5; YV_RW = 6; YV_RR = 7; YV_MO = 8; YV_GF = 9; YV_MK = 10
YAF = 16; YD = 56; YZB = 72; YPF = 92; YACC = 112; YT = 116; YVW = 176

def gen_y_wave(k, w, cfg):
    own = OWN[w]; rest = [ks for ks in range(10) if ks not in own]
    L = lambda s: k.ref(f"y{w}_{s}")
    lab = lambda s: k.lab(f"y{w}_{s}")
    bail = k.ref('bail')
    lq = LQ(k)
    lab('start')
    k("v_lshrrev_b32 v16, 4, v0")
    k("v_and_b32 v17, 7, v0")
    k("v_lshrrev_b32 v18, 3, v0")
    k("v_and_b32 v18, 1, v18")
    k("v_lshl_add_u32 v19, v18, 2, v16")
    k(f"v_add_u32 v19, {8 * w}, v19")
    k("v_mul_u32_u24 v20, 640, v19")
    k(f"v_lshl_add_u32 v{YV_ZO}, v17, 4, v20")
    if cfg.get('p2'):
        k("v_and_b32 v20, 1, v17")
        k("v_lshlrev_b32 v20, 2, v20")
        k("v_lshrrev_b32 v21, 1, v17")
    else:
        k("v_and_b32 v20, 3, v17")
        k("v_lshlrev_b32 v20, 1, v20")
        k("v_lshrrev_b32 v21, 2, v17")
    k("v_add_u32 v20, v20, v21")
    k("v_lshlrev_b32 v20, 4, v20")
    k(f"v_lshl_add_u32 v{YV_PO}, v19, 7, v20")
    k(f"v_add_u32 v{YV_MIA}, {YL_MEMI}, v{YV_L16}")
    k("v_lshrrev_b32 v20, 1, v17")
    k("v_lshlrev_b32 v20, 7, v20")
    k("v_and_b32 v21, 1, v17")
    k("v_lshl_add_u32 v20, v21, 2, v20")
    k(f"v_add_u32 v{YV_MK}, {512 * w}, v20")
    k("v_lshlrev_b32 v20, 8, v18")
    k("v_lshl_add_u32 v20, v17, 5, v20")
    k("v_and_b32 v21, 1, v16")
    k("v_lshl_add_u32 v20, v21, 4, v20")
    k(f"v_add_u32 v20, {YL_RED + 512 * w}, v20")
    k(f"v_add_u32 v21, {YL_RED + 2048}, v{YV_L16}")
    k("v_lshrrev_b32 v22, 1, v16")
    k("v_cmp_eq_u32 vcc, v22, v18")
    k("s_nop 1")
    k(f"v_cndmask_b32 v{YV_RW}, v21, v20, vcc")
    k("v_lshrrev_b32 v20, 3, v0")
    k("v_lshlrev_b32 v20, 2, v20")
    k("v_lshl_add_u32 v20, v17, 5, v20")
    k(f"v_add_u32 v{YV_RR}, {YL_RED}, v20")
    k(f"s_lshl_b32 s{S_T}, s{S_ROLE}, 7")
    k(f"s_add_u32 s{S_T}, s{S_T}, {M_LOG}")
    k(f"s_lshr_b32 s{S_T+1}, s{S_T}, 13")
    k(f"s_lshl_b32 s{S_T+1}, s{S_T+1}, 14")
    k(f"s_and_b32 s{S_T}, s{S_T}, 8191")
    k(f"s_add_u32 s{S_T}, s{S_T}, s{S_T+1}")
    k("v_lshrrev_b32 v20, 3, v0")
    k("v_lshlrev_b32 v20, 4, v20")
    k(f"v_add_u32 v{YV_MO}, s{S_T}, v20")
    k(f"s_mul_i32 s{S_Z}, s{S_ROLE}, 20480")
    k(f"s_add_u32 s{S_Z}, s{S_Z}, {Z}")
    k(f"s_mul_i32 s{S_T}, s{S_ROLE}, 327680")
    k(f"s_add_u32 s{S_T}, s{S_T}, {WY + w * 81920}")
    def wreg(T, ks):
        n = T * 10 + ks
        return ('a', 8 * n) if n < 32 else ('v', YVW + 8 * (n - 32))
    if cfg.get('ygate') is not None:
        k(f"s_add_u32 s{S_T+2}, s{S_FL}, {cfg['ygate'][0]}")
        k("v_lshlrev_b32 v20, 2, v0")
        k(f"s_mov_b32 exec_lo, {(1 << cfg['ygate'][1]) - 1}"); k("s_mov_b32 exec_hi, 0")
        lab('gate')
        k(f"buffer_load_dword v21, v20, {srd}, s{S_T+2} offen sc1")
        k("s_waitcnt vmcnt(0)")
        k("v_cmp_eq_u32 vcc, 0, v21")
        spin_check(k, bail)
        k(f"s_cbranch_vccnz {L('gate')}")
        k("s_mov_b64 exec, -1")
    WIN = cfg.get('winy', cfg.get('win')); nld = 0
    for T in range(4):
        for ks in range(10):
            wh = wreg(T, ks)
            if cfg.get('na') == 4 and wh[0] == 'a' and wh[1] // 8 < cfg.get('npf', 64) // 2: continue
            k(f"s_add_u32 s{S_T+1}, s{S_T}, {(T * 10 + ks) * 2048}")
            for hi in range(2):
                d = (ar if wh[0] == 'a' else vr)(wh[1] + 4 * hi, 4)
                k(f"buffer_load_dwordx4 {d}, v{YV_L16}, {srd}, s{S_T+1} offen offset:{hi*1024}")
                nld += 1
                if WIN and nld > WIN: k(f"s_waitcnt vmcnt({WIN})")
    wait_par(k, cfg, f"y{w}_par", bail)
    k(f"s_mov_b32 s{S_STEP}, 0")
    SC1 = " sc1" if cfg.get('ovl') else ""
    if cfg.get('ovl'):
        k(f"s_lshl_b32 s{S_T}, s{S_ROLE}, 7")
        k(f"v_mov_b32 v{YV_GF}, s{S_T}")
        k(f"s_mov_b32 s{S_GK}, 0")
    lab('step')
    YC = cfg.get('ycopy', 0)
    AW = cfg.get('ackwait', 1)
    slot_base(k, S_SB, S_STEP, S_T, S_SBF if YC else None)
    def uload():
        wait_progress(k, cfg, f"y{w}_gw", S_STEP, YV_GF, 1, YT)
        for t in range(1, 5):
            k(f"buffer_load_dwordx4 {vr(YZB + 4 * t, 4)}, v{YV_ZO}, {srd}, s{S_T+8} offen offset:{t*128}{SC1}")
    k(f"s_mul_i32 s{S_T+8}, s{S_STEP}, {Z_SEG}")
    k(f"s_add_u32 s{S_T+8}, s{S_T+8}, s{S_Z}")
    UE = cfg.get('uearly', 0)
    if not AW or UE: uload()
    for r in range(YD, YD + 16): k(f"v_mov_b32 v{r}, 0")
    for u, ks in enumerate(own):
        k(f"s_add_u32 s{S_T+2+u}, s{S_SBF if YC else S_SB}, {physmap(M_LOG + 1024 * ks)}")
    stamp(k, cfg, 0)
    lab('poll')
    if cfg.get('y_nopoll'):
        for ks in own:
            for j in range(4): k(f"v_mov_b32 v{YAF + 4 * ks + j}, 0")
            k(f"ds_write_b128 v{YV_MIA}, {vr(YAF + 4 * ks, 4)} offset:{ks * 1024}")
    else:
        for u, ks in enumerate(own):
            k(f"buffer_load_dwordx4 {vr(YAF + 4 * ks, 4)}, v{YV_L16}, {srd}, s{S_T+2+u} offen sc1")
        k("s_waitcnt vmcnt(0)")
        for ks in own:
            k(f"ds_write_b128 v{YV_MIA}, {vr(YAF + 4 * ks, 4)} offset:{ks * 1024}")
        check_valid(k, [YAF + 4 * ks + j for ks in own for j in range(4)], YT)
        spin_check(k, bail)
        k(f"s_cbranch_vccnz {L('poll')}")
    lq.all()
    k("s_barrier")
    stamp(k, cfg, 1)
    if w == 0: rt(k, cfg, 0)
    for ks in rest:
        lq.ds(f"ds_read_b128 {vr(YAF + 4 * ks, 4)}, v{YV_MIA} offset:{ks * 1024}", ('af', ks))
    if AW and not UE: uload()
    for ks in own + rest:
        if ks in rest: lq.wait(('af', ks))
        for T in range(4):
            wh = wreg(T, ks)
            b = (ar if wh[0] == 'a' else vr)(wh[1], 8)
            k(f"v_smfmac_f32_16x16x64_bf16 {vr(YD + 4 * T, 4)}, {vr(YAF + 4 * ks, 4)}, {b}, v{YV_IDX}")
    k("s_nop 7")
    D = lambda T, r: YD + 4 * T + r
    for r in range(4):
        k(f"v_permlane32_swap_b32 v{D(0,r)}, v{D(2,r)}")
        k(f"v_permlane32_swap_b32 v{D(1,r)}, v{D(3,r)}")
    for r in range(4):
        k(f"v_add_f32 v{D(0,r)}, v{D(0,r)}, v{D(2,r)}")
        k(f"v_add_f32 v{D(1,r)}, v{D(1,r)}, v{D(3,r)}")
    k("s_nop 1")
    for r in range(4):
        k(f"v_permlane16_swap_b32 v{D(0,r)}, v{D(1,r)}")
    k("s_nop 1")
    k(f"v_cvt_pk_bf16_f32 v{YZB}, v{D(0,0)}, v{D(0,1)}")
    k(f"v_cvt_pk_bf16_f32 v{YZB+1}, v{D(0,2)}, v{D(0,3)}")
    k(f"v_cvt_pk_bf16_f32 v{YZB+2}, v{D(1,0)}, v{D(1,1)}")
    k(f"v_cvt_pk_bf16_f32 v{YZB+3}, v{D(1,2)}, v{D(1,3)}")
    k(f"buffer_store_dwordx4 {vr(YZB, 4)}, v{YV_ZO}, {srd}, s{S_T+8} offen{SC1}")
    stamp(k, cfg, 2)
    k(f"s_cmp_eq_u32 s{S_STEP}, {NSTEP-1}")
    k(f"s_cbranch_scc1 {L('last') if cfg.get('ovl') else k.ref('end')}")
    for t in range(5):
        k(f"s_add_u32 s{S_T+10+t}, s{S_SB}, {physmap(t * 4096)}")
    k(f"s_add_u32 s{S_T+9}, s{S_STEP}, 1")
    slot_base(k, S_SBN, S_T + 9, S_T, S_SBNF if YC else None)
    if cfg.get('mark') is not None:
        k(f"s_add_u32 s{S_MK}, s{S_SB}, {physmap(MARK_LOG)}")
        lab('mpoll')
        k(f"buffer_load_dword v{YT}, v{YV_MK}, {srd}, s{S_MK} offen sc1")
        k("s_waitcnt vmcnt(0)")
        k(f"v_cmp_eq_u32 vcc, -1, v{YT}")
        spin_check(k, bail)
        k(f"s_cbranch_vccnz {L('mpoll')}")
        if w == 0 and cfg.get('rt2'): rt(k, cfg, 0)
    if cfg.get('cpoll', 0):
        for r in range(4): k(f"v_mov_b32 v{YACC + r}, 0")
        poll_cont(k, f"y{w}_pp",
                  [lambda t=t: k(f"buffer_load_dwordx4 {vr(YPF + 4 * t, 4)}, v{YV_PO}, {srd}, s{S_T+10+t} offen sc1") for t in range(5)],
                  [[YPF + 4 * t + j for j in range(4)] for t in range(5)],
                  [lambda t=t: (k(f"v_mfma_f32_16x16x32_bf16 {vr(YACC, 4)}, {vr(YPF + 4 * t, 4)}, {vr(YZB + 4 * t, 4)}, {vr(YACC, 4)}"),
                                (rt(k, cfg, 3 + t) if (w == 0 and cfg.get('rt2')) else None)) for t in range(5)],
                  YT, 132, bail)
        k("s_nop 5")
    else:
        lab('ppoll')
        for t in range(5):
            k(f"buffer_load_dwordx4 {vr(YPF + 4 * t, 4)}, v{YV_PO}, {srd}, s{S_T+10+t} offen sc1")
        k("s_waitcnt vmcnt(0)")
        for t in range(5):
            c = "0" if t == 0 else vr(YACC, 4)
            k(f"v_mfma_f32_16x16x32_bf16 {vr(YACC, 4)}, {vr(YPF + 4 * t, 4)}, {vr(YZB + 4 * t, 4)}, {c}")
        check_valid(k, range(YPF, YPF + 20), YT)
        spin_check(k, bail)
        k(f"s_cbranch_vccnz {L('ppoll')}")
    stamp(k, cfg, 3)
    if w == 0: rt(k, cfg, 1)
    lq.ds(f"ds_write_b128 v{YV_RW}, {vr(YACC, 4)}", 'rw')
    lq.all()
    k("s_barrier")
    if w == 0:
        for u in range(4):
            lq.ds(f"ds_read2st64_b32 {vr(YT + 2 * u, 2)}, v{YV_RR} offset0:{2*u} offset1:{2*u+1}", ('rr', u))
        lq.wait(('rr', 1))
        k(f"v_add_f32 v{YT}, v{YT}, v{YT+1}")
        k(f"v_add_f32 v{YT+2}, v{YT+2}, v{YT+3}")
        lq.wait(('rr', 3))
        k(f"v_add_f32 v{YT+4}, v{YT+4}, v{YT+5}")
        k(f"v_add_f32 v{YT+6}, v{YT+6}, v{YT+7}")
        k(f"v_add_f32 v{YT}, v{YT}, v{YT+2}")
        k(f"v_add_f32 v{YT+4}, v{YT+4}, v{YT+6}")
        k(f"v_add_f32 v{YT}, v{YT}, v{YT+4}")
        k("s_nop 1")
        k(f"v_mov_b32_dpp v{YT+1}, v{YT} quad_perm:[1,0,3,2] row_mask:0xf bank_mask:0xf")
        k(f"v_cvt_pk_bf16_f32 v{YT+8}, v{YT}, v{YT+1}")
        k("s_nop 1")
        for j in range(1, 4):
            k(f"v_mov_b32_dpp v{YT+8+j}, v{YT+8} row_shl:{2*j} row_mask:0xf bank_mask:0xf")
        k(f"s_mov_b64 exec, s[{S_M8}:{S_M8+1}]")
        k(f"buffer_store_dwordx4 {vr(YT + 8, 4)}, v{YV_MO}, {srd}, s{S_SBN} offen sc1")
        if YC: k(f"buffer_store_dwordx4 {vr(YT + 8, 4)}, v{YV_MO}, {srd}, s{S_SBNF} offen sc1")
        k("s_mov_b64 exec, -1")
        if cfg.get('ovl'):
            k(f"s_lshl_b32 s{S_T}, s{S_ROLE}, 7")
            k(f"s_add_u32 s{S_T}, s{S_T}, {FL_YF}")
            flag_store(k, cfg, S_T, S_T + 9, YT, YT + 1)
        stamp(k, cfg, 4)
        rt(k, cfg, 2)
        if AW: k("s_waitcnt vmcnt(0)")
        rt_flush(k, cfg, 32)
        stamp_flush(k, cfg, 5, cfg.get('stamp_y', 0))
    if AW: k("s_barrier")
    k(f"s_add_u32 s{S_STEP}, s{S_STEP}, 1")
    k(f"s_branch {L('step')}")
    if cfg.get('ovl'):
        lab('last')
        k("s_waitcnt vmcnt(0)")
        k("s_barrier")
        if w == 0:
            k(f"s_lshl_b32 s{S_T}, s{S_ROLE}, 7")
            k(f"s_add_u32 s{S_T}, s{S_T}, {FL_YF}")
            k(f"s_mov_b32 s{S_T+9}, {NSTEP}")
            flag_store(k, cfg, S_T, S_T + 9, YT, YT + 1)
        k(f"s_branch {k.ref('end')}")

def role_assign(k, cfg, rb=19, part=None, va=2, lds_off=0, nyoung=0, sfx=''):
    R = lambda n: f"s{rb + n - 19}"
    vb = va + 1
    if part in (None, 1):
        k(f"s_lshl_b32 {R(19)}, s{S_LAYER}, 11")
        k(f"s_add_u32 {R(19)}, {R(19)}, {CT_TICK}")
        k(f"s_getreg_b32 {R(20)}, hwreg(HW_REG_XCC_ID)")
        k(f"s_and_b32 {R(20)}, {R(20)}, 7")
        if cfg.get('fake_xcc') is not None:
            k(f"s_and_b32 {R(20)}, s2, {cfg['fake_xcc']}")
        k(f"s_cmp_lg_u32 s{S_WAVE}, 0")
        k(f"s_cbranch_scc1 {k.ref('tk_wait' + sfx if part is None else 'tk_p1')}")
        k(f"s_lshl_b32 {R(22)}, {R(20)}, 8")
        k(f"s_add_u32 {R(22)}, {R(22)}, {R(19)}")
        k("s_mov_b64 exec, 1")
        k(f"v_mov_b32 v{va}, 0")
        k(f"v_mov_b32 v{vb}, 1")
        k(f"buffer_atomic_add v{vb}, v{va}, {srd}, {R(22)} offen sc0 sc1")
        k("s_mov_b64 exec, -1")
        if part == 1:
            k.lab('tk_p1')
            return
    else:
        k(f"s_cmp_lg_u32 s{S_WAVE}, 0")
        k(f"s_cbranch_scc1 {k.ref('tk_wait' + sfx)}")
    if nyoung is not None: k(f"s_waitcnt vmcnt({nyoung})")
    k("s_nop 0")
    k(f"v_readfirstlane_b32 {R(21)}, v{vb}")
    k(f"s_cmp_lt_u32 {R(21)}, 32")
    k(f"s_cbranch_scc1 {k.ref('tk_pub' + sfx)}")
    k(f"v_lshlrev_b32 v{va}, 8, v0")
    k(f"v_and_b32 v{va}, 0x7ff, v{va}")
    k(f"s_mov_b32 {R(22)}, {R(19)}")
    k.lab('tk_poll' + sfx)
    k(f"buffer_load_dword v{vb}, v{va}, {srd}, {R(22)} offen sc1")
    k("s_waitcnt vmcnt(0)")
    k(f"s_mov_b32 {R(23)}, 0")
    for x in range(8):
        k(f"v_readlane_b32 {R(24+x)}, v{vb}, {x}")
        k("s_nop 0")
        k(f"s_add_u32 {R(23)}, {R(23)}, {R(24+x)}")
    spin_check(k, k.ref('bail'))
    k(f"s_cmp_lt_u32 {R(23)}, 256")
    k(f"s_cbranch_scc1 {k.ref('tk_poll' + sfx)}")
    k(f"s_sub_u32 {R(21)}, {R(21)}, 32")
    for x in range(7):
        k(f"s_max_u32 {R(23)}, {R(24+x)}, 32")
        k(f"s_sub_u32 {R(23)}, {R(23)}, 32")
        k(f"s_cmp_gt_u32 {R(20)}, {x}")
        k(f"s_cselect_b32 {R(23)}, {R(23)}, 0")
        k(f"s_add_u32 {R(21)}, {R(21)}, {R(23)}")
    for x in range(8):
        k(f"s_min_u32 {R(23)}, {R(24+x)}, 32")
        k(f"s_sub_u32 {R(22)}, 32, {R(23)}")
        k(f"s_cmp_lt_u32 {R(21)}, {R(22)}")
        k(f"s_cbranch_scc0 {k.ref(f'tk_n{x}' + sfx)}")
        k(f"s_mov_b32 {R(20)}, {x}")
        k(f"s_add_u32 {R(21)}, {R(21)}, {R(23)}")
        k(f"s_branch {k.ref('tk_pub' + sfx)}")
        k.lab(f'tk_n{x}' + sfx)
        k(f"s_sub_u32 {R(21)}, {R(21)}, {R(22)}")
    k(f"s_branch {k.ref('bail')}")
    k.lab('tk_pub' + sfx)
    k(f"s_lshl_b32 {R(22)}, {R(20)}, 8")
    k(f"s_or_b32 {R(22)}, {R(22)}, {R(21)}")
    k(f"v_mov_b32 v{va}, {lds_off}")
    k(f"v_mov_b32 v{vb}, {R(22)}")
    k(f"ds_write_b32 v{va}, v{vb}")
    k("s_waitcnt lgkmcnt(0)")
    k.lab('tk_wait' + sfx)
    k("s_barrier")
    k(f"v_mov_b32 v{va}, {lds_off}")
    k(f"ds_read_b32 v{vb}, v{va}")
    k("s_waitcnt lgkmcnt(0)")
    k(f"v_readfirstlane_b32 {R(22)}, v{vb}")
    if part is None: k("s_barrier")
    k(f"s_lshr_b32 {R(20)}, {R(22)}, 8")
    k(f"s_and_b32 {R(21)}, {R(22)}, 255")

S_XCC = 98; S_TK = 99
def pf_setup(k, cfg, sfx='', tb=60):
    import aly, work
    TAB, B0, B1, D, V0, V1 = aly.PF_TAB, aly.PF_B0, aly.PF_B1, aly.PF_D, aly.PF_V0, aly.PF_V1
    L = lambda s: k.ref('pf_' + sfx + s)
    lab = lambda s: k.lab('pf_' + sfx + s)
    def table(idx):
        for q in range(8):
            k(f"s_mov_b32 s{TAB + q}, {sum(idx[4 * q + j] << (8 * j) for j in range(4)):#x}")
    k(f"v_lshlrev_b32 v{V0}, 4, v0")
    k(f"v_mov_b32 v{V1}, v{V0}")
    table(list(range(32)))
    k(f"s_mov_b32 s{D}, 2048")
    k(f"s_cmp_eq_u32 s{S_XCC}, 0")
    k(f"s_cbranch_scc1 {L('p')}")
    k(f"s_cmp_ge_u32 s{S_XCC}, 4")
    k(f"s_cbranch_scc1 {L('g')}")
    k(f"s_sub_u32 s{tb+0}, s{S_XCC}, 1")
    k(f"s_cmp_ge_u32 s{S_TK}, 27")
    k(f"s_cbranch_scc1 {L('sp')}")
    k(f"s_mul_i32 s{tb+1}, s{tb+0}, 27")
    k(f"s_add_u32 s{tb+1}, s{tb+1}, s{S_TK}")
    k(f"s_cmp_ge_u32 s{tb+1}, 80")
    k(f"s_cbranch_scc1 {L('no')}")
    k(f"s_mul_i32 s{tb+1}, s{tb+1}, 327680")
    k(f"s_mul_i32 s{tb+2}, s{S_WAVE}, 81920")
    k(f"s_add_u32 s{tb+1}, s{tb+1}, s{tb+2}")
    k(f"s_add_u32 s{B0}, s{tb+1}, {WY}")
    k(f"s_add_u32 s{B1}, s{B0}, 1024")
    k(f"s_branch {L('done')}")
    lab('sp')
    k(f"s_mul_i32 s{tb+1}, s{tb+0}, 5")
    k(f"s_add_u32 s{tb+1}, s{tb+1}, s{S_TK}")
    k(f"s_sub_u32 s{tb+1}, s{tb+1}, 27")
    k(f"s_cmp_lt_u32 s{tb+1}, 5")
    k(f"s_cbranch_scc0 {L('no')}")
    k(f"s_lshl_b32 s{tb+1}, s{tb+1}, 2")
    k(f"s_add_u32 s{tb+1}, s{tb+1}, s{S_WAVE}")
    k(f"s_mul_i32 s{tb+1}, s{tb+1}, 40960")
    k(f"s_add_u32 s{B0}, s{tb+1}, {PWO}")
    k(f"s_add_u32 s{B1}, s{B0}, 1024")
    k(f"s_branch {L('done')}")
    lab('no')
    k(f"s_mov_b32 s{B0}, {WY}")
    k(f"s_mov_b32 s{B1}, {WY}")
    k(f"s_mov_b32 s{D}, 0")
    k(f"s_branch {L('done')}")
    lab('p')
    k(f"s_mul_i32 s{tb+1}, s{S_TK}, 491520")
    k(f"s_mul_i32 s{tb+2}, s{S_WAVE}, 122880")
    k(f"s_add_u32 s{tb+1}, s{tb+1}, s{tb+2}")
    k(f"s_add_u32 s{B0}, s{tb+1}, {WP}")
    k(f"s_add_u32 s{B1}, s{B0}, 1024")
    for w in range(4):
        own, rest, seq, ldspos, where = p_plan(w, cfg)
        idx = [None] * 32
        for (T, ks), wh in where.items():
            if wh[0] == 'a': idx[wh[1] // 8] = T * 10 + ks
        if w < 3:
            k(f"s_cmp_lg_u32 s{S_WAVE}, {w}")
            k(f"s_cbranch_scc1 {L(f'pw{w}')}")
        table(idx)
        k(f"s_branch {L('done')}")
        if w < 3: lab(f'pw{w}')
    lab('g')
    k(f"s_sub_u32 s{tb+0}, s{S_XCC}, 4")
    k(f"s_lshl_b32 s{tb+0}, s{tb+0}, 5")
    k(f"s_add_u32 s{tb+0}, s{tb+0}, s{S_TK}")
    k(f"s_mov_b32 s{D}, 512")
    k("v_and_b32 v230, 31, v0")
    k("v_lshrrev_b32 v231, 5, v0")
    k(f"s_cmp_ge_u32 s{tb+0}, 80")
    k(f"s_cbranch_scc1 {L('qk')}")
    work.u_weight_addr(k, tb, 230, 231, 232, V0, B0, tb + 1)
    k(f"v_mov_b32 v{V1}, v{V0}")
    k(f"s_add_u32 s{B1}, s{B0}, 128")
    k(f"s_branch {L('done')}")
    lab('qk')
    work.qk_setup(k, tb, 230, 231, 232, V0, B0, tb + 1, None)
    lab('done')

def build_chain(name, layer, cfg=None):
    import work
    cfg = cfg or {}
    k = K(name if layer is not None else name + "1", vgpr=256, sgpr=100, agpr=256)
    stub = None
    if layer is None:
        stub = K(name + "2", vgpr=256, sgpr=100, agpr=256)
        stub(f"s_mov_b32 s{S_LAYER}, 1")
        stub(f"s_branch {k.ref('body')}")
        k(f"s_mov_b32 s{S_LAYER}, 0")
        k.lab('body')
    else:
        k(f"s_mov_b32 s{S_LAYER}, {layer}")
    k("s_cmp_ge_u32 s2, 256")
    k(f"s_cbranch_scc1 {k.ref('end0')}")
    if cfg.get('rt'): k("s_memrealtime s[90:91]")
    k.ptr(KA_WS, S_WS)
    k.ptr(KA_OUT, 6)
    k("v_lshrrev_b32 v1, 6, v0")
    k("v_and_b32 v0, 63, v0")
    k("s_nop 0")
    k(f"v_readfirstlane_b32 s{S_WAVE}, v1")
    k(f"s_mov_b32 s{S_SPIN}, {SPIN}")
    k("s_waitcnt lgkmcnt(0)")
    k.srd(SRD, S_WS, WS_BYTES)
    def osrd():
        k(f"s_add_u32 s22, s{S_WS}, {A_X2}")
        k(f"s_addc_u32 s23, s{S_WS+1}, 0")
        k(f"s_cmp_eq_u32 s{S_LAYER}, 0")
        k(f"s_cselect_b32 s{S_OSRD}, s22, s6")
        k(f"s_cselect_b32 s{S_OSRD+1}, s23, s7")
        k(f"s_mov_b32 s{S_OSRD+2}, {2048 * 640 * 2}")
        k(f"s_mov_b32 s{S_OSRD+3}, 0x00020000")
    if cfg.get('na') != 4: osrd()
    k(f"s_mul_i32 s{S_FL}, s{S_LAYER}, {FL_LAYER}")
    k(f"s_add_u32 s{S_FL}, s{S_FL}, {CT_FLAG}")
    SEMI = cfg.get('na') == 4
    if SEMI:
        import aly
        role_assign(k, cfg, 76 if cfg.get('hs') is not None else 60, 1, 230)
        HS = cfg.get('hs')
        if 'pfs' in cfg: assert cfg['pfs'][0] + sum(cfg['pfs'][1]) == cfg.get('npf', 64)
        def hook(sfx):
            role_assign(k, cfg, 76 if HS is not None else 60, 2, 230, aly.AF_LDS + 64, 24 if HS is None else None, sfx)
            k(f"s_mov_b32 s{S_XCC}, s{77 if HS is not None else 61}")
            k(f"s_mov_b32 s{S_TK}, s{78 if HS is not None else 62}")
            pf_setup(k, cfg, sfx, 76 if HS is not None else 60)
        rt_ = cfg.get('rt')
        aly.afront_body(k, 'rt', 2, False, "", (lambda n: k(f"s_memrealtime s[{60 + 2 * n}:{61 + 2 * n}]")) if rt_ else None, cfg.get('pfs', True), (hook, HS))
        if rt_:
            k("s_memrealtime s[74:75]")
            k("s_mov_b32 s60, s90")
            k("s_waitcnt lgkmcnt(0)")
            k("s_mov_b64 exec, 1")
            k("s_lshl_b32 s32, s2, 2")
            k(f"s_add_u32 s32, s32, s{S_WAVE}")
            k("s_lshl_b32 s32, s32, 5")
            k(f"s_mul_i32 s33, s{S_LAYER}, 0x200000")
            k("s_add_u32 s32, s32, s33")
            k(f"s_add_u32 s32, s32, {rt_ + 0x180000}")
            k("v_mov_b32 v253, 0")
            for n in range(8):
                k(f"v_mov_b32 v254, s{60 + 2 * n}")
                k(f"buffer_store_dword v254, v253, {srd}, s32 offen offset:{4*n}")
                k("s_nop 1")
            k("s_mov_b64 exec, -1")
        osrd()
        k(f"s_mov_b32 s20, s{S_XCC}")
        k(f"s_mov_b32 s21, s{S_TK}")
    else:
        role_assign(k, cfg)
    if cfg.get('rt'):
        k("s_lshl_b32 s92, s20, 8"); k("s_or_b32 s92, s92, s21")
    k(f"s_sub_u32 s22, 0, s{S_WS}")
    k("s_and_b32 s22, s22, 0x1fffff")
    if cfg.get('calin'):
        k("s_mov_b32 s24, 0"); k("s_mov_b32 s25, 0")
    elif cfg.get('calw', 1) > 1:
        k(f"s_lshl_b32 s23, s{S_LAYER}, 5")
        k(f"s_add_u32 s23, s23, {CT_PAR + 128}")
        k(f"s_buffer_load_dwordx8 s[24:31], {srd}, s23")
        k("s_waitcnt lgkmcnt(0)")
        for b_ in range(2):
            r = 24 + 4 * b_
            k(f"s_min_u32 s32, s{r}, s{r+1}"); k(f"s_min_u32 s33, s{r+2}, s{r+3}"); k("s_min_u32 s32, s32, s33")
            k("s_lshr_b32 s32, s32, 16")
            for j in range(4): k(f"s_and_b32 s{r+j}, s{r+j}, 0xffff")
            k(f"s_min_u32 s{r}, s{r}, s{r+1}"); k(f"s_min_u32 s33, s{r+2}, s{r+3}"); k(f"s_min_u32 s33, s33, s{r}")
            k("s_cmp_lt_u32 s33, s32")
            k(f"s_cselect_b32 s{34 + b_}, 8192, 0")
        k("s_mov_b32 s24, s34"); k("s_mov_b32 s25, s35")
    else:
        k(f"s_lshl_b32 s23, s{S_LAYER}, 3")
        k(f"s_add_u32 s23, s23, {CT_PAR}")
        k(f"s_buffer_load_dwordx2 s[24:25], {srd}, s23")
        k("s_waitcnt lgkmcnt(0)")
        k("s_and_b32 s24, s24, 8192")
        k("s_and_b32 s25, s25, 8192")
    for f, p in ((S_FD0, 24), (S_FD1, 25)):
        k(f"s_lshl_b32 s{f}, s{p}, 1")
        k(f"s_sub_u32 s{f}, 8192, s{f}")
    k(f"s_mul_i32 s23, s{S_LAYER}, {2 * EX_BLOCK}")
    k("s_add_u32 s22, s22, s23")
    k(f"s_add_u32 s{S_EB0}, s22, s24")
    k(f"s_add_u32 s{S_EB1}, s22, s25")
    k(f"s_add_u32 s{S_EB1}, s{S_EB1}, {EX_BLOCK}")
    k(f"s_mov_b32 s{S_M8}, 0x01010101")
    k(f"s_mov_b32 s{S_M8+1}, 0x01010101")
    k(f"s_mov_b32 s{S_M2}, 0x00010001")
    k(f"s_mov_b32 s{S_M2+1}, 0")
    p_setup_lanes(k)
    ovl = cfg.get('ovl')
    NA2 = cfg.get('na') in (2, 3, 4)
    OW = cfg.get('na') == 3
    other = (k.ref('spare') if NA2 else k.ref('w3')) if ovl else k.ref('end')
    if cfg.get('spread', 0):
        k("s_cmp_ge_u32 s20, 4")
        k(f"s_cbranch_scc1 {k.ref('proj') if ovl else k.ref('end')}")
        k("s_cmp_ge_u32 s21, 28")
        k(f"s_cbranch_scc1 {other}")
        k("s_cmp_ge_u32 s21, 8")
        k(f"s_cbranch_scc1 {k.ref('notp')}")
        k("s_lshl_b32 s22, s20, 3")
        k(f"s_add_u32 s{S_ROLE}, s22, s21")
        for w in range(4):
            k(f"s_cmp_eq_u32 s{S_WAVE}, {w}")
            k(f"s_cbranch_scc1 {k.ref(f'p{w}_start')}")
        k.lab('notp')
        k("s_mul_i32 s22, s20, 20")
        k("s_add_u32 s22, s22, s21")
        k(f"s_sub_u32 s{S_ROLE}, s22, 8")
    else:
        k("s_cmp_eq_u32 s20, 0")
        k(f"s_cbranch_scc0 {k.ref('notp')}")
        k(f"s_mov_b32 s{S_ROLE}, s21")
        for w in range(4):
            k(f"s_cmp_eq_u32 s{S_WAVE}, {w}")
            k(f"s_cbranch_scc1 {k.ref(f'p{w}_start')}")
        k.lab('notp')
        k("s_cmp_ge_u32 s20, 4")
        k(f"s_cbranch_scc1 {k.ref('proj') if ovl else k.ref('end')}")
        k("s_cmp_ge_u32 s21, 27")
        k(f"s_cbranch_scc1 {other}")
        k("s_sub_u32 s22, s20, 1")
        k("s_mul_i32 s22, s22, 27")
        k(f"s_add_u32 s{S_ROLE}, s22, s21")
        k(f"s_cmp_ge_u32 s{S_ROLE}, 80")
        k(f"s_cbranch_scc1 {other}")
    for w in range(4):
        k(f"s_cmp_eq_u32 s{S_WAVE}, {w}")
        k(f"s_cbranch_scc1 {k.ref(f'y{w}_start')}")
    k(f"s_branch {k.ref('end')}")
    for w in range(4): (gen_p_wave2 if cfg.get('p2') else gen_p_wave)(k, w, cfg)
    for w in range(4): gen_y_wave(k, w, cfg)
    if ovl:
        k.lab('proj')
        k("s_sub_u32 s22, s20, 4")
        k("s_lshl_b32 s22, s22, 5")
        k(f"s_add_u32 s{S_ROLE}, s22, s21")
        k(f"s_mov_b32 s{work.GS_SEG}, 0")
        k(f"s_mov_b32 s{work.GS_END}, 64")
        work.role_gemm(k, S_ROLE, dict(cfg, flag_s=S_FL))
        if cfg.get('rt'):
            k("s_memrealtime s[96:97]"); k("s_waitcnt lgkmcnt(0)"); k("s_mov_b32 s93, s96")
        if cfg.get('w3_join', 128) < 128:
            k(f"s_cmp_ge_u32 s{S_ROLE}, {cfg['w3_join']}")
            k(f"s_cbranch_scc1 {k.ref('end')}")
        if NA2:
            import aly
            k(f"s_branch {k.ref('w3')}")
            k.lab('spare')
            if cfg.get('spread', 0):
                k("s_lshl_b32 s22, s20, 2")
                k("s_add_u32 s22, s22, s21")
                k("s_sub_u32 s22, s22, 28")
            else:
                k("s_sub_u32 s22, s20, 1")
                k("s_mul_i32 s22, s22, 5")
                k("s_add_u32 s22, s22, s21")
                k("s_sub_u32 s22, s22, 27")
                k("s_cmp_ge_u32 s21, 27")
                k("s_cselect_b32 s22, s22, 15")
            k("s_cmp_lt_u32 s22, 5")
            k(f"s_cbranch_scc1 {k.ref('sp_ab')}")
            k("s_cmp_lt_u32 s22, 9")
            k(f"s_cbranch_scc1 {k.ref('sp_ln')}")
            if OW:
                k("s_cmp_eq_u32 s22, 10")
                k(f"s_cbranch_scc1 {k.ref('sp_ow')}")
                k("s_cmp_eq_u32 s22, 11")
                k(f"s_cbranch_scc1 {k.ref('sp_ow')}")
            if cfg.get('calin'):
                k("s_cmp_eq_u32 s22, 10")
                k(f"s_cbranch_scc0 {k.ref('sp_n10')}")
                cal_block(k, cfg, 1, 'cal1')
                k(f"s_branch {k.ref('w3')}")
                k.lab('sp_n10')
            k("s_cmp_eq_u32 s22, 9")
            k(f"s_cbranch_scc0 {k.ref('w3')}")
            if cfg.get('calin'):
                cal_block(k, cfg, 0, 'cal0')
                wait_par(k, cfg, 'm0_par', k.ref('bail'))
            aly.role_mem0(k, S_EB0, S_FD0 if cfg.get('ycopy') else None)
            k(f"s_branch {k.ref('w3')}")
            if OW:
                k.lab('sp_ow')
                k(f"s_sub_u32 s{S_ROLE}, s22, 10")
                aly.role_ow(k, S_ROLE, S_LAYER, S_FL, S_SPIN, k.ref('bail'), cfg)
                k(f"s_branch {k.ref('w3')}")
            k.lab('sp_ab')
            k(f"s_mov_b32 s{S_ROLE}, s22")
            k(f"s_mov_b32 s{aly.AB_SEG}, 0")
            k(f"s_mov_b32 s{aly.AB_END}, 64")
            aly.role_aback(k, S_ROLE, S_LAYER, S_FL, True, cfg, (30, k.ref('bail')) if (OW or SEMI) else None, SEMI)
            k(f"s_branch {k.ref('w3')}")
            k.lab('sp_ln')
            k(f"s_sub_u32 s{S_ROLE}, s22, 5")
            aly.role_lnw(k, S_ROLE, 4, S_FL, S_SPIN, k.ref('bail'), True, cfg)
            k("s_waitcnt vmcnt(0)")
            k("s_barrier")
        k.lab('w3')
        k(f"s_mov_b32 s{S_SPIN}, {SPIN}")
        work.role_w3_loop(k, cfg, S_FL, S_SPIN, f"s[{S_OSRD}:{S_OSRD+3}]", S_LAYER)
        k(f"s_branch {k.ref('end')}")
    k.lab('bail')
    k("s_mov_b64 exec, 1")
    k.ptr(KA_DBG, 6)
    k("s_waitcnt lgkmcnt(0)")
    k.srd(24, 6, 256)
    k("v_mov_b32 v1, 0xdead")
    k(f"v_mov_b32 v2, s{S_STEP}")
    k("v_mov_b32 v3, 0")
    k("buffer_store_dword v1, v3, s[24:27], 0 offen")
    k("buffer_store_dword v2, v3, s[24:27], 0 offen offset:4")
    k.lab('end')
    if cfg.get('rt'):
        k("s_memrealtime s[94:95]")
        k("s_waitcnt lgkmcnt(0)")
        k("s_mov_b64 exec, 1")
        k("s_lshl_b32 s32, s2, 2")
        k(f"s_add_u32 s32, s32, s{S_WAVE}")
        k("s_lshl_b32 s32, s32, 4")
        k(f"s_mul_i32 s33, s{S_LAYER}, 0x200000")
        k("s_add_u32 s32, s32, s33")
        k(f"s_add_u32 s32, s32, {cfg['rt'] + 0x100000}")
        k("v_mov_b32 v253, 0")
        for n, sr in enumerate((90, 94, 92, 93)):
            k(f"v_mov_b32 v254, s{sr}")
            k(f"buffer_store_dword v254, v253, {srd}, s32 offen offset:{4*n}")
            k("s_nop 1")
        k("s_lshl_b32 s32, s2, 2")
        k(f"s_add_u32 s32, s32, s{S_WAVE}")
        k("s_lshl_b32 s32, s32, 5")
        k("s_add_u32 s32, s32, s33")
        k(f"s_add_u32 s32, s32, {cfg['rt'] + 0x140000}")
        for n in range(8):
            k(f"v_mov_b32 v254, s{60 + 2 * n}")
            k(f"buffer_store_dword v254, v253, {srd}, s32 offen offset:{4*n}")
            k("s_nop 1")
    k.lab('end0')
    if stub is not None: return k, stub
    return k

if __name__ == "__main__":
    STP = 240 * MB
    extra = eval(sys.argv[1]) if len(sys.argv) > 1 else {}
    ks = [build_chain("chain", 0, dict(extra)),
          build_chain("chainst", 0, dict(extra, stamp=True, stamp_p=STP, stamp_y=STP + 65536)),
          build_chain("chainrt", 0, dict(extra, rt=STP + MB, rt2=1))]
    launches = [(k_, 256, 256, PL_END) for k_ in ks]
    open(sys.argv[2] if len(sys.argv) > 2 else "chain.s", "w").write(listfile(launches, ks))
    print("lds", PL_END)
```

```python
import sys; sys.path.insert(0, "tools")
from asmk import *
MB = 1 << 20
WSB = 64 * MB
RES = 32 * MB
NL = 8192 * 4
k = K("lat", vgpr=64, sgpr=64)
L = k.ref
k("s_cmp_ge_u32 s2, 8"); k(f"s_cbranch_scc1 {L('end')}")
k.ptr(KA_WS, 4)
k("v_lshrrev_b32 v1, 6, v0"); k("s_nop 0"); k("v_readfirstlane_b32 s16, v1")
k("s_waitcnt lgkmcnt(0)")
k.srd(8, 4, WSB)
k("s_cmp_lg_u32 s16, 0"); k(f"s_cbranch_scc1 {L('end')}")
k("s_getreg_b32 s20, hwreg(HW_REG_XCC_ID)"); k("s_and_b32 s20, s20, 7")
k("s_sub_u32 s22, 0, s4"); k("s_and_b32 s22, s22, 0x1fffff")
k("s_mov_b64 exec, 1")
k("v_mov_b32 v1, 0"); k("v_mov_b32 v2, 0")
k(f"s_mul_i32 s23, s20, {NL * 4}"); k(f"s_add_u32 s23, s23, {RES}")
k("s_mov_b32 s24, 0")
k.lab('line')
k("s_lshl_b32 s25, s20, 11"); k("s_add_u32 s25, s25, s24"); k(f"s_and_b32 s25, s25, {NL - 1}")
k("s_lshl_b32 s26, s25, 8"); k("s_add_u32 s26, s26, s22")
k("s_mov_b32 s30, -1")
for it in range(3):
    k("s_memtime s[28:29]"); k("s_waitcnt lgkmcnt(0)")
    k("buffer_atomic_add v2, v1, s[8:11], s26 offen sc0 sc1")
    k("s_waitcnt vmcnt(0)")
    k("s_memtime s[32:33]")
    k("v_mov_b32 v2, 0")
    k("s_waitcnt lgkmcnt(0)")
    k("s_sub_u32 s28, s32, s28")
    k("s_min_u32 s30, s30, s28")
k("v_mov_b32 v3, s30")
k("s_lshl_b32 s27, s25, 2"); k("s_add_u32 s27, s27, s23")
k("buffer_store_dword v3, v1, s[8:11], s27 offen")
k("s_waitcnt vmcnt(0)")
k("s_add_u32 s24, s24, 1"); k(f"s_cmp_lt_u32 s24, {NL}"); k(f"s_cbranch_scc1 {L('line')}")
k.lab('end')
if __name__ == "__main__": open("lat.s", "w").write(listfile([(k, 8, 256, 65536)], [k]))
```

```python
import sys; sys.path.insert(0, "tools")
from asmk import *
import lat_gen as LG
MB = 1 << 20
STEPS = 32; SPIN = 100000
WSB = 64 * MB
TAB = 40 * MB

def check(k, regs, tmp):
    regs = list(regs)
    k(f"v_max3_u32 v{tmp}, v{regs[0]}, v{regs[1]}, v{regs[2]}")
    rest = regs[3:]
    while len(rest) >= 2:
        k(f"v_max3_u32 v{tmp}, v{tmp}, v{rest[0]}, v{rest[1]}"); rest = rest[2:]
    if rest: k(f"v_max_u32 v{tmp}, v{tmp}, v{rest[0]}")
    k(f"v_cmp_eq_u32 vcc, -1, v{tmp}")

def build(name, ncopy, pc=28, yc=10, yt=3):
    k = K(name, vgpr=256, sgpr=100)
    L = k.ref
    k("s_getreg_b32 s20, hwreg(HW_REG_XCC_ID)"); k("s_and_b32 s20, s20, 7")
    k("s_cmp_ge_u32 s20, 4"); k(f"s_cbranch_scc1 {L('end')}")
    k("s_lshr_b32 s21, s2, 3")
    k.ptr(KA_WS, 4); k.ptr(KA_DBG, 6)
    k("s_waitcnt lgkmcnt(0)")
    k.srd(8, 4, WSB); k.srd(12, 6, 256)
    for i in range(204, 208): k(f"v_mov_b32 v{i}, 0")
    k("v_lshrrev_b32 v1, 6, v0"); k("v_and_b32 v2, 63, v0"); k("s_nop 0"); k("v_readfirstlane_b32 s16, v1")
    k("v_lshlrev_b32 v6, 4, v2")
    k("s_and_b32 s17, s16, 1"); k("s_lshl_b32 s17, s17, 10")
    k("s_lshr_b32 s18, s16, 1")
    k("s_mov_b32 s70, 0"); k("s_mov_b32 s44, 0"); k("s_mov_b32 s71, 0"); k("s_mov_b32 s72, 0")
    k("s_memrealtime s[50:51]")
    k("s_cmp_eq_u32 s20, 0"); k(f"s_cbranch_scc0 {L('ysel')}")
    k("s_mov_b32 s43, s21")
    k(f"s_branch {L('pstep')}")
    k.lab('ysel')
    k("s_cmp_ge_u32 s21, 27"); k(f"s_cbranch_scc1 {L('end')}")
    k("s_sub_u32 s43, s20, 1"); k("s_mul_i32 s43, s43, 27"); k("s_add_u32 s43, s43, s21")
    k("s_cmp_ge_u32 s43, 80"); k(f"s_cbranch_scc1 {L('end')}")
    k(f"s_branch {L('ystep')}")
    def tab(x_s, step_s, dst):
        k(f"s_mul_i32 s46, {x_s}, {33 * 64}"); k(f"s_lshl_b32 s47, {step_s}, 6"); k("s_add_u32 s46, s46, s47"); k(f"s_add_u32 s46, s46, {TAB}")
        k(f"s_buffer_load_dwordx16 s[{dst}:{dst+15}], s[8:11], s46")
    def sel(dst, a, b):
        k("s_cmp_eq_u32 s18, 0"); k(f"s_cselect_b32 {dst}, {a}, {b}"); k(f"s_add_u32 {dst}, {dst}, s17")
    def mem_poll(nm):
        sel("s40", "s90", "s91"); sel("s41", "s92", "s93"); sel("s42", "s94", "s94")
        k.lab(nm + 'mp')
        for q in range(3):
            k(f"buffer_load_dwordx4 v[{16+4*q}:{19+4*q}], v6, s[8:11], s{40+q} offen sc1")
        k("s_waitcnt vmcnt(0)")
        check(k, range(16, 28), 99)
        k("s_add_u32 s70, s70, 1")
        k("s_add_u32 s71, s71, 1"); k(f"s_cmp_ge_u32 s71, {SPIN}"); k(f"s_cbranch_scc1 {L('bail')}")
        k(f"s_cbranch_vccnz {L(nm + 'mp')}")
        k("s_barrier")
    def tstart(nm):
        k("s_cmp_eq_u32 s44, 4"); k(f"s_cbranch_scc0 {L(nm + 'ns')}")
        k("s_memrealtime s[50:51]"); k("s_waitcnt lgkmcnt(0)"); k("s_mov_b32 s70, 0"); k("s_mov_b32 s72, 0")
        k.lab(nm + 'ns')
    k.lab('pstep')
    tstart('p')
    k("s_add_u32 s19, s16, 1"); k("s_min_u32 s19, s19, 3")
    tab("s19", "s44", 80)
    k("s_waitcnt lgkmcnt(0)")
    mem_poll('p')
    if pc: k(f"s_sleep {pc}")
    k(f"s_cmp_ge_u32 s16, {ncopy}"); k(f"s_cbranch_scc1 {L('pn')}")
    k("s_lshr_b32 s46, s43, 4")
    k("s_cmp_eq_u32 s46, 0")
    for t in range(5): k(f"s_cselect_b32 s{60+t}, s{80+2*t}, s{81+2*t}")
    k("v_lshrrev_b32 v9, 3, v2")
    k("v_mov_b32 v10, s60")
    for t in range(1, 5):
        k(f"v_cmp_eq_u32 vcc, {t}, v9"); k(f"v_mov_b32 v11, s{60+t}"); k("s_nop 0"); k("v_cndmask_b32 v10, v10, v11, vcc")
    k("v_and_b32 v9, 7, v2"); k("v_lshl_add_u32 v10, v9, 4, v10")
    k("s_and_b32 s46, s43, 15"); k("s_lshl_b32 s46, s46, 7")
    k("s_mov_b32 exec_hi, 0xff")
    k("buffer_store_dwordx4 v[204:207], v10, s[8:11], s46 offen sc1")
    k("s_mov_b64 exec, -1")
    k.lab('pn')
    k("s_add_u32 s44, s44, 1"); k(f"s_cmp_lt_u32 s44, {STEPS}"); k(f"s_cbranch_scc1 {L('pstep')}")
    k(f"s_branch {L('fin')}")
    k.lab('ystep')
    tstart('y')
    tab("s20", "s44", 80)
    k("s_waitcnt lgkmcnt(0)")
    mem_poll('y')
    for q in range(5): sel(f"s{60+q}", f"s{80+2*q}", f"s{81+2*q}")
    k("s_add_u32 s45, s44, 1")
    tab("s20", "s45", 80)
    if yc: k(f"s_sleep {yc}")
    k("s_waitcnt vmcnt(0) lgkmcnt(0)")
    k.lab('pp')
    for q in range(5):
        k(f"buffer_load_dwordx4 v[{100+4*q}:{103+4*q}], v6, s[8:11], s{60+q} offen sc1")
    k("s_waitcnt vmcnt(0)")
    check(k, range(100, 120), 99)
    k("s_add_u32 s72, s72, 1")
    k("s_add_u32 s71, s71, 1"); k(f"s_cmp_ge_u32 s71, {SPIN}"); k(f"s_cbranch_scc1 {L('bail')}")
    k(f"s_cbranch_vccnz {L('pp')}")
    k("s_barrier")
    if yt: k(f"s_sleep {yt}")
    k("s_cmp_lg_u32 s16, 0"); k(f"s_cbranch_scc1 {L('yn')}")
    k("s_lshr_b32 s46, s43, 4")
    k("s_mov_b32 s47, s90")
    for u in range(1, 5):
        k(f"s_cmp_eq_u32 s46, {u}"); k(f"s_cselect_b32 s47, s{90+u}, s47")
    k("s_and_b32 s46, s43, 15"); k("s_lshl_b32 s46, s46, 7"); k("s_add_u32 s47, s47, s46")
    k("s_mov_b32 exec_lo, 0xff"); k("s_mov_b32 exec_hi, 0")
    k("buffer_store_dwordx4 v[204:207], v6, s[8:11], s47 offen sc1")
    k("s_mov_b64 exec, -1")
    k("s_waitcnt vmcnt(0)")
    k.lab('yn')
    k("s_barrier")
    k("s_add_u32 s44, s44, 1"); k(f"s_cmp_lt_u32 s44, {STEPS}"); k(f"s_cbranch_scc1 {L('ystep')}")
    k.lab('fin')
    k("s_memrealtime s[52:53]"); k("s_waitcnt lgkmcnt(0)")
    k("s_sub_u32 s52, s52, s50")
    k("s_cmp_gt_u32 s20, 1"); k(f"s_cbranch_scc1 {L('end')}")
    k("s_cmp_lg_u32 s21, 0"); k(f"s_cbranch_scc1 {L('end')}")
    k("s_lshl_b32 s54, s20, 2")
    k("v_mov_b32 v1, s52"); k("v_mov_b32 v3, s70"); k("v_mov_b32 v4, s72"); k("v_mov_b32 v2, s54")
    k("buffer_store_dword v1, v2, s[12:15], 0 offen")
    k("buffer_store_dword v3, v2, s[12:15], 0 offen offset:16")
    k("buffer_store_dword v4, v2, s[12:15], 0 offen offset:32")
    k(f"s_branch {L('end')}")
    k.lab('bail')
    k("v_mov_b32 v1, 0xdead"); k("v_mov_b32 v2, 8")
    k("buffer_store_dword v1, v2, s[12:15], 0 offen")
    k.lab('end')
    return k

if __name__ == "__main__":
    ks = [LG.k, build("c1", 1), build("c3", 3)]
    launches = [(ks[0], 8, 256, 65536)] + [(k, 256, 256, 98304) for k in ks[1:]]
    open("skel5.s", "w").write(listfile(launches, ks))
```

```python
import sys, math
sys.path.insert(0, "/code"); sys.path.insert(0, "tools")
from asmk import *
from lay import *
from work import prologue, vr, ar, S_WS, SRD, S_WAVE, srd

LOG2E = math.log2(math.e)
E6 = 1e-6
SPIN = 400000

def role_pwa(k, g4=False):
    k.ptr(KA_WQKV, 24)
    k("s_lshr_b32 s21, s20, 1")
    k("s_and_b32 s22, s20, 1")
    k("v_and_b32 v1, 31, v0")
    k("v_lshrrev_b32 v2, 5, v0")
    k("s_mul_i32 s23, s21, 20")
    k("v_add_u32 v3, 640, v1")
    k("v_add_u32 v4, 1260, v1")
    k("v_cmp_gt_u32 vcc, 20, v1")
    k("s_nop 1")
    k("v_cndmask_b32 v3, v4, v3, vcc")
    k("v_add_u32 v4, 1292, v1")
    k("v_subrev_u32 v5, 12, v1")
    k("v_cmp_gt_u32 vcc, 8, v1")
    k("s_nop 1")
    k("v_cndmask_b32 v4, v5, v4, vcc")
    k("s_cmp_eq_u32 s22, 0")
    k("s_cselect_b64 vcc, -1, 0")
    k("s_nop 1")
    k("v_cndmask_b32 v3, v4, v3, vcc")
    k("v_add_u32 v3, s23, v3")
    k("v_lshlrev_b32 v3, 1, v3")
    k(f"v_mul_u32_u24 v4, {8 * 3840}, v2")
    k("v_add_u32 v3, v3, v4")
    k("s_mov_b32 s26, 0xfffff0ff")
    k("s_cmp_eq_u32 s22, 0")
    k("s_cselect_b32 s26, -1, s26")
    k("s_mov_b32 s27, s26")
    R = 16
    for r in range(80): k(f"v_mov_b32 v{R + r}, 0")
    k("s_waitcnt lgkmcnt(0)")
    k.srd(32, 24, 640 * 1920 * 2)
    k(f"s_mul_i32 s28, s{S_WAVE}, {160 * 3840}")
    k("s_mov_b64 exec, s[26:27]")
    for kk in range(10):
        for j in range(8):
            k(f"s_add_u32 s29, s28, {(16 * kk + j) * 3840}")
            k(f"buffer_load_short_d16_hi v{R + 8 * kk + j}, v3, s[32:35], s29 offen")
    k("s_mov_b64 exec, -1")
    k("s_waitcnt vmcnt(0)")
    k(f"v_add_f32 v5, v{R}, v{R + 1}")
    for r in range(2, 80): k(f"v_add_f32 v5, v5, v{R + r}")
    k("v_mov_b32 v6, v5")
    k("s_nop 1")
    k("v_permlane32_swap_b32 v5, v6")
    k("v_add_f32 v5, v5, v6")
    k(f"s_lshl_b32 s29, s{S_WAVE}, 8")
    k("v_lshlrev_b32 v7, 2, v0")
    k("v_add_u32 v8, s29, v7")
    k("ds_write_b32 v8, v5")
    k("s_waitcnt lgkmcnt(0)")
    k("s_barrier")
    for w in range(4): k(f"ds_read_b32 v{8 + w}, v7 offset:{256 * w}")
    k("s_waitcnt lgkmcnt(0)")
    k("v_add_f32 v8, v8, v9"); k("v_add_f32 v10, v10, v11"); k("v_add_f32 v8, v8, v10")
    k(f"v_mul_f32 v8, {hexf(1.0 / 640)}, v8")
    for r in range(80): k(f"v_sub_f32 v{R + r}, v{R + r}, v8")
    if g4:
        k("s_lshl_b32 s26, s22, 9")
        k("s_mov_b32 s27, s26")
        for r in range(80): k(f"v_cndmask_b32 v{R + r}, v{R + r}, 1.0, s[26:27]")
    k("s_mul_i32 s29, s21, 81920")
    k("s_lshl_b32 s30, s22, 10")
    k("s_add_u32 s29, s29, s30")
    k(f"s_mul_i32 s30, s{S_WAVE}, {10 * 2048}")
    k("s_add_u32 s29, s29, s30")
    k(f"s_add_u32 s29, s29, {PWA}")
    k("v_lshlrev_b32 v7, 4, v0")
    for kk in range(10):
        o = 100 + 4 * (kk & 1)
        for m in range(4):
            k(f"v_cvt_pk_bf16_f32 v{o + m}, v{R + 8 * kk + 2 * m}, v{R + 8 * kk + 2 * m + 1}")
        k(f"buffer_store_dwordx4 {vr(o, 4)}, v7, {srd}, s29 offen")
        k("s_add_u32 s29, s29, 2048")
    k(f"s_branch {k.ref('end')}")

N_PWA = 64
N_PWO = 40
def role_pwo(k):
    k.ptr(KA_WOA, 24)
    k("s_lshr_b32 s21, s20, 3")
    k("s_and_b32 s22, s20, 7")
    k("v_and_b32 v1, 31, v0")
    k("v_lshrrev_b32 v2, 5, v0")
    k("v_lshlrev_b32 v3, 1, v1")
    k(f"v_mul_u32_u24 v4, {8 * 1280}, v2")
    k("v_add_u32 v3, v3, v4")
    k("s_lshl_b32 s29, s21, 6")
    k(f"s_mul_i32 s30, s22, {5 * 16 * 1280}")
    k("s_add_u32 s29, s29, s30")
    k("s_waitcnt lgkmcnt(0)")
    k.srd(32, 24, 640 * 640 * 2)
    R = 16
    for i in range(5):
        for j in range(8):
            k(f"s_add_u32 s30, s29, {(16 * i + j) * 1280}")
            k(f"buffer_load_ushort v{R + 8 * i + j}, v3, s[32:35], s30 offen")
    k("s_mul_i32 s29, s20, 5120")
    k(f"s_add_u32 s29, s29, {PWO}")
    k("v_lshlrev_b32 v7, 4, v0")
    for i in range(5):
        k(f"s_waitcnt vmcnt({8 * (4 - i) + i})")
        o = 64 + 4 * i
        for m in range(4):
            k(f"v_lshl_or_b32 v{o + m}, v{R + 8 * i + 2 * m + 1}, 16, v{R + 8 * i + 2 * m}")
        k(f"buffer_store_dwordx4 {vr(o, 4)}, v7, {srd}, s29 offen offset:{(i % 4) * 1024}")
        if i == 3: k("s_add_u32 s29, s29, 4096")
    k(f"s_branch {k.ref('end')}")

AF_LDS = 4 * 32768
def build_afront(name, layer, p1=False, cfg=None):
    k = K(name, vgpr=256, sgpr=64)
    k("s_cmp_ge_u32 s2, 256")
    k(f"s_cbranch_scc1 {k.ref('end')}")
    rt = (cfg or {}).get('rt')
    if rt: k("s_memrealtime s[40:41]")
    prologue(k, [(KA_AX, 6)] if layer == 0 else [])
    afront_body(k, layer, 2, p1, "", (lambda n: k(f"s_memrealtime s[{40 + 2 * n}:{41 + 2 * n}]")) if rt else None)
    if rt:
        k("s_memrealtime s[54:55]")
        k("s_waitcnt lgkmcnt(0)")
        k("s_mov_b64 exec, 1")
        k("s_lshl_b32 s32, s2, 2")
        k(f"s_add_u32 s32, s32, s{S_WAVE}")
        k("s_lshl_b32 s32, s32, 5")
        k(f"s_add_u32 s32, s32, {rt + 0x180000 + layer * 0x200000}")
        k("v_mov_b32 v253, 0")
        for n in range(8):
            k(f"v_mov_b32 v254, s{40 + 2 * n}")
            k(f"buffer_store_dword v254, v253, {srd}, s32 offen offset:{4*n}")
            k("s_nop 1")
    k.lab('end')
    return k, 256, AF_LDS

PF_TAB = 50; PF_B0 = 58; PF_B1 = 59; PF_D = 40; PF_V0 = 240; PF_V1 = 241
def afront_body(k, layer, id_s, p1=False, xsc="", st=None, pf=False, hook=None, mid=None, coop=0, g4=False):
    st = st or (lambda n: None)
    XS = 16
    xsrd = f"s[{XS}:{XS+3}]"
    import os
    XW = os.environ.get('XW')
    ABL = os.environ.get('AFABL', '')
    RTL = layer == 'rt'
    if RTL:
        k.ptr(KA_AX, XS)
        k(f"s_add_u32 s28, s{S_WS}, {A_X2}")
        k(f"s_addc_u32 s29, s{S_WS+1}, 0")
        k("s_waitcnt lgkmcnt(0)")
        k("s_cmp_eq_u32 s49, 0")
        k(f"s_cselect_b32 s{XS}, s{XS}, s28")
        k(f"s_cselect_b32 s{XS+1}, s{XS+1}, s29")
        k(f"s_mov_b32 s{XS+2}, {2048 * 1280}")
        k(f"s_mov_b32 s{XS+3}, 0x00020000")
    elif layer == 0: k.srd(XS, 6, 2048 * 1280)
    else: k.srd(XS, S_WS, 2048 * 1280, A_X2)
    S_HP, S_RB, S_RH, S_HH, S_XB, S_WB, S_H, S_ONE = 20, 21, 22, 23, 24, 25, 26, 27
    k(f"s_and_b32 s28, s{id_s}, 7")
    k(f"s_lshr_b32 s29, s{id_s}, 3")
    k("s_and_b32 s30, s28, 3"); k("s_lshl_b32 s30, s30, 2"); k("s_and_b32 s31, s29, 3")
    k(f"s_add_u32 s{S_HP}, s30, s31")
    k("s_lshr_b32 s30, s28, 2"); k("s_lshl_b32 s30, s30, 3"); k("s_lshr_b32 s31, s29, 2")
    k(f"s_add_u32 s{S_RB}, s30, s31")
    k(f"s_lshr_b32 s{S_RH}, s{S_WAVE}, 1")
    k(f"s_and_b32 s{S_HH}, s{S_WAVE}, 1")
    k(f"s_lshl_b32 s{S_H}, s{S_HP}, 1")
    k(f"s_add_u32 s{S_H}, s{S_H}, s{S_HH}")
    k(f"s_mov_b32 s{S_ONE}, 0x3f803f80")
    k(f"s_lshl_b32 s28, s{S_RB}, 7")
    k(f"s_lshl_b32 s29, s{S_WAVE}, 5")
    k("s_add_u32 s28, s28, s29")
    k(f"s_mul_i32 s{S_XB}, s28, 1280")
    k(f"s_lshl_b32 s28, s{S_HP}, 1")
    k(f"s_add_u32 s28, s28, s{S_RH}")
    k(f"s_mul_i32 s{S_WB}, s28, 81920")
    k(f"s_lshl_b32 s29, s{S_HH}, 12")
    k(f"s_add_u32 s{S_WB}, s{S_WB}, s29")
    k(f"s_add_u32 s{S_WB}, s{S_WB}, {PWA}")
    V_L16, V_XE, V_XO, V_WR, V_XR = 1, 2, 3, 4, 6
    k(f"v_lshlrev_b32 v{V_L16}, 4, v0")
    k("v_lshrrev_b32 v16, 3, v0")
    k("v_mul_u32_u24 v16, 1280, v16")
    k("v_and_b32 v17, 7, v0")
    k("v_lshrrev_b32 v18, 4, v0")
    k("v_xor_b32 v19, v17, v18")
    k(f"v_lshl_add_u32 v{V_XE}, v19, 4, v16")
    k("v_xor_b32 v19, 4, v19")
    k(f"v_lshl_add_u32 v{V_XO}, v19, 4, v16")
    def dma_items(s):
        buf = (s % 4) * 32768
        it = []
        for u in range(4):
            p = []
            if u == 0:
                p += [f"s_lshl_b32 s28, s{S_WAVE}, 12"] + ([f"s_add_u32 s28, s28, {buf}"] if buf else []) + \
                     ["s_mov_b32 m0, s28", f"s_add_u32 s29, s{S_XB}, {s * 128}"]
            else:
                p.append(f"s_add_u32 s29, s29, {10240 - 1024}")
            p.append(f"buffer_load_dwordx4 v{V_XE if u % 2 == 0 else V_XO}, {xsrd}, s29 offen offset:{u * 1024}{xsc} lds")
            if 'x' in ABL and s >= 3: p.pop()
            it.append(p)
        for u in range(4):
            p = []
            if u == 0: p += ["s_add_u32 s28, s28, 16384", "s_mov_b32 m0, s28", f"s_add_u32 s29, s{S_WB}, {s * 8192}"]
            if XW: p.append(f"buffer_load_dwordx4 v[{200 + 4 * u}:{203 + 4 * u}], v{V_L16}, {srd}, s29 offen offset:{u * 1024}")
            else: p.append(f"buffer_load_dwordx4 v{V_L16}, {srd}, s29 offen offset:{u * 1024} lds")
            if 'w' in ABL and s >= 3: p.pop()
            it.append(p)
        return it
    def dma(s):
        for p in dma_items(s):
            for x in p: k(x)
    def pf_items(n0, n):
        it = []
        for i in range(n0, n0 + n):
            p = i >> 1
            if i & 1 == 0:
                it.append([f"s_bfe_u32 s41, s{PF_TAB + (p >> 2)}, {(8 << 16) | ((p & 3) * 8)}", f"s_mul_i32 s41, s41, s{PF_D}",
                           f"s_add_u32 s42, s{PF_B0}, s41", f"s_add_u32 s43, s{PF_B1}, s41",
                           f"buffer_load_dwordx4 a[{4*i}:{4*i+3}], v{PF_V0}, {srd}, s42 offen"])
            else:
                it.append([f"buffer_load_dwordx4 a[{4*i}:{4*i+3}], v{PF_V1}, {srd}, s43 offen"])
        return it
    HS = hook[1] if hook else None
    if hook: hook = hook[0]
    PFN = [4, 4, 4, 4, 4, 4, 4, 8, 8, 6] if pf else [0] * 10
    PF0 = 14 if pf else 0
    if HS is not None:
        PF0 = 0
        PFN = {0: [8] * 8 + [0, 0], 1: [0] + [8] * 8 + [0], 2: [0, 0, 10, 10, 10, 10, 8, 8, 8, 0]}[HS]
    if pf and pf is not True:
        PF0, PFN = pf
    if coop:
        k(f"s_and_b32 s28, s{id_s}, 7")
        k(f"s_lshr_b32 s29, s{id_s}, 3")
        k("s_lshl_b32 s29, s29, 2")
        k(f"s_add_u32 s29, s29, s{S_WAVE}")
        k("s_lshr_b32 s30, s28, 2")
        k(f"s_mul_i32 s30, s30, {1024 * 1280}")
        k("s_mul_i32 s31, s29, 10240")
        k("s_add_u32 s30, s30, s31")
        k("s_and_b32 s28, s28, 3")
        k(f"s_mul_i32 s28, s28, {8 * 81920}")
        k("s_mul_i32 s31, s29, 5120")
        k("s_add_u32 s28, s28, s31")
        k(f"s_add_u32 s28, s28, {PWA}")
        k("v_lshlrev_b32 v244, 7, v0")
        k(f"buffer_load_dword v245, v244, {xsrd}, s30 offen{xsc}")
        k("s_mov_b32 exec_hi, 0"); k("s_mov_b32 exec_lo, 0xffff")
        k("s_add_u32 s30, s30, 8192")
        k(f"buffer_load_dword v246, v244, {xsrd}, s30 offen{xsc}")
        k("s_mov_b32 exec_hi, 0xff"); k("s_mov_b32 exec_lo, -1")
        k(f"buffer_load_dword v247, v244, {srd}, s28 offen")
        k("s_mov_b64 exec, -1")
    for s in range(3): dma(s)
    if hook and HS is None: hook('')
    for p in pf_items(0, PF0):
        for x in p: k(x)
    k("v_and_b32 v16, 31, v0")
    k("v_lshrrev_b32 v17, 5, v0")
    k("v_lshrrev_b32 v18, 1, v16")
    k("v_and_b32 v18, 7, v18")
    k("v_xor_b32 v18, v18, v17")
    k("v_lshlrev_b32 v18, 4, v18")
    k("v_lshl_add_u32 v18, v16, 7, v18")
    k(f"s_lshl_b32 s28, s{S_RH}, 13")
    k("v_add_u32 v18, s28, v18")
    for kp in range(4):
        k(f"v_xor_b32 v{V_XR + kp}, {32 * kp}, v18")
        k(f"v_add_u32 v{V_XR + 4 + kp}, 65536, v{V_XR + kp}")
    k(f"s_lshl_b32 s28, s{S_HH}, 13")
    k("s_add_u32 s28, s28, 16384")
    k(f"v_add_u32 v{V_WR}, s28, v{V_L16}")
    k(f"v_add_u32 v{V_WR + 1}, 65536, v{V_WR}")
    FR = 32
    D0, D1, DQ = 64, 96, 128
    PA, PB = 160, 176
    ST = 20
    for r in range(4): k(f"v_mov_b32 v{ST + r}, 0")
    def reads(s, kp):
        o = FR + 16 * ((4 * s + kp) & 1)
        hi = (s % 4) >> 1; off = (s & 1) * 32768
        return [f"ds_read_b128 {vr(o + 4 * rt, 4)}, v{V_XR + 4 * hi + kp} offset:{off + rt * 4096}" for rt in range(2)] + \
               [f"ds_read_b128 {vr(o + 8 + 4 * t, 4)}, v{V_WR + hi} offset:{off + kp * 2048 + t * 1024}" for t in range(2)]
    k(f"s_waitcnt vmcnt({16 + PF0})")
    k("s_barrier")
    st(1)
    for it in reads(0, 0): k(it)
    G4P = (0, 4)
    def body(hh):
        pend = []
        for s in range(10):
            for kp in range(4):
                o = FR + 16 * ((4 * s + kp) & 1)
                X = lambda rt: vr(o + 4 * rt, 4)
                W = lambda t: vr(o + 8 + 4 * t, 4)
                first = (s == 0 and kp == 0)
                k("s_waitcnt lgkmcnt(0)")
                nxt = reads(s, kp + 1) if kp < 3 else (reads(s + 1, 0) if s < 9 else [])
                xs = o + 4 * hh
                dots = []
                for r in range(4):
                    dots.append(f"v_dot2c_f32_bf16 v{ST + (r & 1)}, s{S_ONE}, v{xs + r}")
                    dots.append(f"v_dot2c_f32_bf16 v{ST + 2 + (r & 1)}, v{xs + r}, v{xs + r}")
                mf = []
                for rt in range(2):
                    for (d, a, b) in ((D0, X(rt), W(0)), (D1, X(rt), W(1)), (DQ, W(1), X(rt))):
                        dd = vr(d + 16 * rt, 16)
                        mf.append(f"v_mfma_f32_32x32x16_bf16 {dd}, {a}, {b}, {'0' if first else dd}")
                gaps = [[] for _ in range(6)]
                if kp == 3:
                    pass
                for i, it in enumerate(nxt): gaps[1 + i].append(it)
                for i, it in enumerate(dots): gaps[(i * 6) // 8].append(it)
                if g4:
                    gaps = [[x for x in g if 'dot2c' not in x] for g in gaps]
                    for j, gi in enumerate(G4P):
                        gaps[gi].insert(0, f"v_mfma_f32_4x4x4_16b_bf16 {vr(ST, 4)}, {vr(xs + 2 * j, 2)}, {vr(xs + 2 * j, 2)}, {vr(ST, 4)}")
                if 'd' in ABL: gaps = [[x for x in g if 'dot2c' not in x] for g in gaps]
                if 'r' in ABL and s > 0: gaps = [[x for x in g if 'ds_read' not in x] for g in gaps]
                for i in range(6):
                    if not ('m' in ABL and s > 0): k(mf[i])
                    for it in gaps[i]: k(it)
                    if pf and pend:
                        for x in pend.pop(0): k(x)
                        if s == 9 and kp == 3 and pend and len(pend) > 5 - i:
                            for x in pend.pop(0): k(x)
                    if kp == 2 and i == 5:
                        if pf:
                            assert not pend
                            if s < 9:
                                grp = lambda g: (8 if g + 3 <= 9 else 0) + PFN[g]
                                if s == 0: n = 8 + PF0
                                elif s == 1: n = PF0 + grp(0)
                                else: n = PFN[s - 2] + grp(s - 1)
                                k(f"s_waitcnt vmcnt({n})")
                                if s == HS: hook(f"h{hh}")
                                else: k("s_barrier")
                            pend += (dma_items(s + 3) if s + 3 <= 9 else []) + pf_items(PF0 + sum(PFN[:s]), PFN[s])
                        elif s < 9:
                            k(f"s_waitcnt vmcnt({8 if s + 2 <= 9 else 0})")
                            k("s_barrier")
                            if s + 3 <= 9: dma(s + 3)
        assert not pend
    k(f"s_cmp_eq_u32 s{S_HH}, 1")
    k(f"s_cbranch_scc1 {k.ref('af_h1')}")
    body(0)
    k(f"s_branch {k.ref('af_epi')}")
    k.lab('af_h1')
    body(1)
    k.lab('af_epi')
    st(2)
    if mid: mid(pf_items, 'post')
    EL = 65536
    if g4:
        for j, m in enumerate((0x22222222, 0x44444444, 0x88888888)):
            k(f"s_mov_b32 s{32 + 2 * j}, {m:#x}"); k(f"s_mov_b32 s{33 + 2 * j}, {m:#x}")
        k(f"s_cmp_eq_u32 s{S_HH}, 1")
        k("s_cselect_b64 vcc, -1, 0")
        for j in range(3): k(f"v_cndmask_b32 v{ST}, v{ST}, v{ST + 1 + j}, s[{32 + 2 * j}:{33 + 2 * j}]")
        k(f"v_mov_b32 v{ST+2}, v{ST}")
        k("s_nop 1")
        k(f"v_permlane32_swap_b32 v{ST}, v{ST+2}")
        k(f"v_add_f32 v{ST+2}, v{ST}, v{ST+2}")
        k(f"v_cndmask_b32 v{ST}, v{DQ + 5}, v{DQ + 16 + 5}, vcc")
        k(f"v_mul_f32 v{ST}, {hexf(1.0/640)}, v{ST}")
        k(f"v_mul_f32 v{ST+1}, v{ST}, v{ST}")
        k(f"v_mul_f32 v{ST+2}, {hexf(1.0/640)}, v{ST+2}")
    else:
        k("s_nop 2")
        k(f"v_add_f32 v{ST}, v{ST}, v{ST+1}")
        k(f"v_add_f32 v{ST+2}, v{ST+2}, v{ST+3}")
        k(f"v_mov_b32 v{ST+1}, v{ST}")
        k(f"v_mov_b32 v{ST+3}, v{ST+2}")
        k("s_nop 1")
        k(f"v_permlane32_swap_b32 v{ST}, v{ST+1}")
        k(f"v_permlane32_swap_b32 v{ST+2}, v{ST+3}")
        k(f"v_add_f32 v{ST}, v{ST}, v{ST+1}")
        k(f"v_add_f32 v{ST+2}, v{ST+2}, v{ST+3}")
        k(f"v_mul_f32 v{ST}, {hexf(1.0/640)}, v{ST}")
        k(f"v_mul_f32 v{ST+1}, v{ST}, v{ST}")
        k(f"v_fma_f32 v{ST+2}, v{ST+2}, {hexf(1.0/640)}, -v{ST+1}" if False else f"v_mul_f32 v{ST+2}, {hexf(1.0/640)}, v{ST+2}")
    k(f"v_sub_f32 v{ST+2}, v{ST+2}, v{ST+1}")
    k(f"v_max_f32 v{ST+2}, 0, v{ST+2}")
    k(f"v_add_f32 v{ST+2}, 0x3727c5ac, v{ST+2}")
    k(f"v_rsq_f32 v{ST+2}, v{ST+2}")
    k("v_and_b32 v16, 31, v0")
    k(f"s_lshl_b32 s28, s{S_WAVE}, 7")
    k(f"s_add_u32 s28, s28, {EL}")
    k("v_lshl_add_u32 v17, v16, 2, s28")
    if g4: k("s_mov_b32 exec_hi, 0")
    k(f"ds_write_b32 v17, v{ST+2}")
    if g4: k("s_mov_b32 exec_hi, -1")
    k("s_waitcnt lgkmcnt(0)")
    k("s_barrier")
    RS = 192; RL = 224
    k(f"s_lshl_b32 s28, s{S_RH}, 8")
    k(f"s_add_u32 s28, s28, {EL}")
    k("v_lshl_add_u32 v17, v16, 2, s28")
    k("v_lshrrev_b32 v18, 5, v0")
    k("v_lshlrev_b32 v18, 4, v18")
    k("v_add_u32 v18, s28, v18")
    for rt in range(2):
        k(f"ds_read_b32 v{RL + rt}, v17 offset:{rt * 128}")
        for q in range(4):
            k(f"ds_read_b128 {vr(RS + 16 * rt + 4 * q, 4)}, v18 offset:{rt * 128 + q * 32}")
    C0, C1, CE = 226, 227, 228
    k("v_and_b32 v16, 31, v0")
    k(f"v_mov_b32 v{CE}, {hexf(E6)}")
    k("v_cmp_gt_u32 vcc, 20, v16")
    k("s_mov_b64 s[30:31], vcc")
    k("s_nop 0")
    k(f"v_cndmask_b32 v{C0}, 0, v{CE}, vcc")
    k("v_cmp_eq_u32 vcc, 8, v16")
    k("s_nop 1")
    k(f"v_cndmask_b32 v{C1}, 0, 1.0, vcc")
    k("s_waitcnt lgkmcnt(0)")
    F0, F1, T = 32, 40, 48
    def phi(x, acc, scale, c, t):
        k(f"v_fma_f32 v{x}, v{acc}, v{scale}, v{c}")
        k(f"v_mul_f32 v{t}, {hexf(LOG2E)}, v{x}")
        k(f"v_exp_f32 v{t}, v{t} clamp")
        k(f"v_max_f32 v{t+1}, v{x}, v{CE}")
    for rt in range(2):
        a0 = D0 + 16 * rt; a1 = D1 + 16 * rt
        for r in range(16):
            t = T + 2 * (r & 3)
            phi(a0 + r, a0 + r, RS + 16 * rt + r, C0, t)
            k(f"v_fma_f32 v{a1 + r}, v{a1 + r}, v{RS + 16 * rt + r}, v{C1}")
            k(f"v_add_f32 v{t}, v{t}, v{t+1}")
            k(f"v_cndmask_b32 v{a0 + r}, v{a0 + r}, v{t}, s[30:31]")
        for m in range(8):
            k(f"v_cvt_pk_bf16_f32 v{F0 + m}, v{a0 + 2 * m}, v{a0 + 2 * m + 1}")
            k(f"v_cvt_pk_bf16_f32 v{F1 + m}, v{a1 + 2 * m}, v{a1 + 2 * m + 1}")
        k("s_nop 1")
        for half in range(2):
            c0 = "0" if (rt == 0 and half == 0) else None
            k(f"v_mfma_f32_32x32x16_bf16 {vr(PA, 16)}, {vr(F0 + 4 * half, 4)}, {vr(F0 + 4 * half, 4)}, {c0 or vr(PA, 16)}")
            k(f"v_mfma_f32_32x32x16_bf16 {vr(PB, 16)}, {vr(F1 + 4 * half, 4)}, {vr(F0 + 4 * half, 4)}, {c0 or vr(PB, 16)}")
    def qphi(rt):
        b = DQ + 16 * rt
        for r in range(4, 16):
            t = T + 2 * (r & 3)
            phi(b + r, b + r, RL + rt, CE, t)
            k(f"v_add_f32 v{b + r}, v{t}, v{t+1}")
        for m in range(2, 8):
            k(f"v_cvt_pk_bf16_f32 v{b + m}, v{b + 2 * m}, v{b + 2 * m + 1}")
        k(f"v_mov_b32 v{b}, 0"); k(f"v_mov_b32 v{b + 1}, 0")
    qphi(0)
    st(3)
    RAW = EL + 1024
    k(f"s_lshl_b32 s28, s{S_WAVE}, 13")
    k(f"s_add_u32 s28, s28, {RAW}")
    k(f"v_add_u32 v17, s28, v{V_L16}")
    for p_, base in ((0, PA), (1, PB)):
        for q in range(4):
            k(f"ds_write_b128 v17, {vr(base + 4 * q, 4)} offset:{p_ * 4096 + q * 1024}")
    t_, hh_, rem, e_, d_, m_, la, ga = range(32, 40)
    k(f"s_lshl_b32 s28, s{S_WAVE}, 6")
    k(f"v_add_u32 v{t_}, s28, v0")
    k(f"v_cmp_le_u32 vcc, 105, v{t_}")
    k("s_nop 1")
    k(f"v_cndmask_b32 v{hh_}, 0, 1, vcc")
    k(f"v_mul_u32_u24 v{rem}, 105, v{hh_}")
    k(f"v_sub_u32 v{rem}, v{t_}, v{rem}")
    k(f"v_mul_u32_u24 v{e_}, 13108, v{rem}")
    k(f"v_lshrrev_b32 v{e_}, 16, v{e_}")
    k(f"v_mul_u32_u24 v{d_}, 5, v{e_}")
    k(f"v_sub_u32 v{d_}, v{rem}, v{d_}")
    k(f"v_add_u32 v{m_}, 20, v{e_}")
    k(f"v_subrev_u32 v{la}, 12, v{e_}")
    k(f"v_cmp_gt_u32 vcc, 12, v{e_}")
    k("s_nop 1")
    k(f"v_cndmask_b32 v{m_}, v{la}, v{m_}, vcc")
    k(f"v_cndmask_b32 v{la}, 1, 0, vcc")
    k(f"v_lshlrev_b32 v{la}, 12, v{la}")
    k(f"v_lshl_add_u32 v{la}, v{hh_}, 13, v{la}")
    k(f"v_lshrrev_b32 v{ga}, 3, v{m_}")
    k(f"v_lshl_add_u32 v{la}, v{ga}, 10, v{la}")
    k(f"v_bfe_u32 v{ga}, v{m_}, 2, 1")
    k(f"v_lshlrev_b32 v{ga}, 5, v{ga}")
    k(f"v_lshl_add_u32 v{ga}, v{d_}, 2, v{ga}")
    k(f"v_lshl_add_u32 v{la}, v{ga}, 4, v{la}")
    k(f"v_and_b32 v{ga}, 3, v{m_}")
    k(f"v_lshl_add_u32 v{la}, v{ga}, 2, v{la}")
    k(f"v_min_u32 v{la}, {8192 * 2 - 64}, v{la}")
    k(f"v_add_u32 v{la}, {RAW}, v{la}")
    k("s_waitcnt lgkmcnt(0)")
    k("s_barrier")
    for hlf in range(2):
        for i in range(4):
            k(f"ds_read_b32 v{40 + 4 * hlf + i}, v{la} offset:{hlf * 16384 + i * 16}")
    if p1:
        k(f"v_lshlrev_b32 v{ga}, 4, v{t_}")
        k(f"v_cmp_gt_u32 vcc, 210, v{t_}")
        k("s_mov_b64 s[32:33], vcc")
        k("s_waitcnt lgkmcnt(0)")
        for i in range(4): k(f"v_add_f32 v{40 + i}, v{40 + i}, v{44 + i}")
        k("s_mov_b64 exec, s[32:33]")
        k(f"ds_write_b128 v{ga}, v[40:43]")
        k("s_mov_b64 exec, -1")
        qphi(1)
        k(f"s_lshl_b32 s28, s{S_RB}, 2")
        k(f"s_lshl_b32 s29, s{S_RH}, 1")
        k("s_add_u32 s28, s28, s29")
        k("s_lshl_b32 s28, s28, 5")
        k(f"s_add_u32 s28, s28, s{S_H}")
        k(f"s_mul_i32 s28, s28, {PQ_SH}")
        k(f"s_add_u32 s28, s28, {PQ}")
        k("v_lshlrev_b32 v16, 3, v0")
        for rt in range(2):
            b = DQ + 16 * rt
            k(f"buffer_store_dwordx4 {vr(b + 4, 4)}, v{V_L16}, {srd}, s28 offen sc1")
            k(f"buffer_store_dwordx2 {vr(b + 2, 2)}, v16, {srd}, s28 offen offset:1024 sc1")
            if rt == 0: k(f"s_add_u32 s28, s28, {32 * PQ_SH}")
        k(f"v_lshlrev_b32 v17, 2, v{t_}")
        k("s_waitcnt lgkmcnt(0)")
        k("s_barrier")
        st(4)
        for j in range(4): k(f"ds_read_b32 v{40 + j}, v17 offset:{j * 1024}")
        k(f"s_lshl_b32 s28, s{S_HP}, 12")
        k(f"s_add_u32 s28, s28, {KVT + layer * KVT_L}")
        k(f"v_cmp_gt_u32 vcc, 72, v{t_}")
        k("s_waitcnt lgkmcnt(0)")
        for j in range(3):
            k(f"buffer_atomic_add_f32 v{40 + j}, v17, {srd}, s28 offen offset:{j * 1024} sc1")
        k("s_and_saveexec_b64 s[34:35], vcc")
        k(f"s_cbranch_execz {k.ref('af_na')}")
        k(f"buffer_atomic_add_f32 v43, v17, {srd}, s28 offen offset:3072 sc1")
        k.lab('af_na')
        k("s_mov_b64 exec, -1")
        st(5)
        k("s_waitcnt vmcnt(0)")
        k("s_barrier")
        st(6)
        k(f"s_cmp_lg_u32 s{S_WAVE}, 0")
        k(f"s_cbranch_scc1 {k.ref('af_done')}")
        k(f"s_lshl_b32 s29, s{S_HP}, 2")
        k(f"s_add_u32 s29, s29, {CT_FLAG + layer * FL_LAYER + FL_KC}")
        k("v_mov_b32 v16, 0")
        k("v_mov_b32 v17, 1")
        k("s_mov_b64 exec, 1")
        k(f"buffer_atomic_add v17, v16, {srd}, s29 offen sc1")
        k("s_mov_b64 exec, -1")
        k.lab('af_done')
        return
    k(f"s_lshl_b32 s28, s{S_HP}, 4")
    k(f"s_add_u32 s28, s28, s{S_RB}")
    k("s_lshl_b32 s28, s28, 12")
    if RTL:
        k(f"s_mul_i32 s39, s49, {KVP_L}")
        k(f"s_add_u32 s39, s39, {KVP}")
        k("s_add_u32 s28, s28, s39")
    else: k(f"s_add_u32 s28, s28, {KVP + layer * KVP_L}")
    k(f"v_lshlrev_b32 v{ga}, 4, v{t_}")
    k(f"v_cmp_gt_u32 vcc, 210, v{t_}")
    k("s_mov_b64 s[32:33], vcc")
    k("s_waitcnt lgkmcnt(0)")
    for i in range(4): k(f"v_add_f32 v{40 + i}, v{40 + i}, v{44 + i}")
    k("s_mov_b64 exec, s[32:33]")
    k(f"buffer_store_dwordx4 v[40:43], v{ga}, {srd}, s28 offen sc1")
    k("s_mov_b64 exec, -1")
    qphi(1)
    k(f"s_mul_i32 s29, s{S_H}, 5")
    k("v_lshrrev_b32 v17, 5, v0")
    k("v_add_u32 v17, s29, v17")
    k("v_lshrrev_b32 v18, 1, v17")
    k("v_lshlrev_b32 v18, 9, v18")
    k("v_and_b32 v17, 1, v17")
    k("v_lshl_add_u32 v18, v17, 3, v18")
    k("v_and_b32 v16, 31, v0")
    k("v_lshl_add_u32 v14, v16, 4, v18")
    KS = 64
    k("v_mul_u32_u24 v15, 80, v16")
    k("v_lshrrev_b32 v17, 5, v0")
    k("v_lshl_add_u32 v15, v17, 4, v15")
    k(f"s_mul_i32 s29, s{S_HH}, 1680")
    k(f"s_add_u32 s29, s29, {KS - 16}")
    k("v_add_u32 v15, s29, v15")
    R0 = 48
    for r in range(12): k(f"v_mov_b32 v{R0 + r}, 0")
    k("s_waitcnt vmcnt(0)")
    k("s_barrier")
    k(f"s_cmp_lg_u32 s{S_WAVE}, 0")
    if mid:
        k(f"s_cbranch_scc0 {k.ref('af_w0')}")
        mid(pf_items, 'wait')
        k(f"s_branch {k.ref('af_go')}")
        k.lab('af_w0')
    else: k(f"s_cbranch_scc1 {k.ref('af_go')}")
    k(f"s_lshl_b32 s29, s{S_HP}, 7")
    if RTL:
        k("s_add_u32 s29, s29, s48")
        k(f"s_add_u32 s29, s29, {FL_AF}")
    else: k(f"s_add_u32 s29, s29, {CT_FLAG + layer * FL_LAYER + FL_AF}")
    k(f"s_lshl_b32 s30, s{S_RB}, 2")
    k("v_mov_b32 v16, s30")
    k("v_mov_b32 v17, 1")
    k("s_mov_b64 exec, 1")
    k(f"buffer_store_dword v17, v16, {srd}, s29 offen sc1")
    k("s_mov_b64 exec, 0xffff")
    k("v_lshlrev_b32 v16, 2, v0")
    k(f"s_mov_b32 s31, {SPIN}")
    k.lab('af_poll')
    k(f"buffer_load_dword v17, v16, {srd}, s29 offen sc1")
    k("s_waitcnt vmcnt(0)")
    k("v_cmp_eq_u32 vcc, 0, v17")
    k("s_sub_u32 s31, s31, 1")
    k(f"s_cbranch_scc1 {k.ref('af_fail')}")
    k(f"s_cbranch_vccnz {k.ref('af_poll')}")
    k(f"s_branch {k.ref('af_ok')}")
    k.lab('af_fail')
    k.ptr(KA_DBG, 34)
    k("s_waitcnt lgkmcnt(0)")
    k.srd(36, 34, 256)
    k("s_mov_b64 exec, 1")
    k("v_mov_b32 v16, 0"); k("v_mov_b32 v17, 0xdead")
    k("buffer_store_dword v17, v16, s[36:39], 0 offen")
    k.lab('af_ok')
    k("s_mov_b64 exec, -1")
    k.lab('af_go')
    if mid: mid(pf_items, 'go')
    k("s_barrier")
    st(4)
    PS = 160
    k(f"s_lshl_b32 s28, s{S_HP}, 16")
    if RTL: k("s_add_u32 s28, s28, s39")
    else: k(f"s_add_u32 s28, s28, {KVP + layer * KVP_L}")
    k("s_mov_b64 exec, s[32:33]")
    for i in range(16):
        k(f"buffer_load_dwordx4 {vr(PS + 4 * i, 4)}, v{ga}, {srd}, s28 offen sc1")
        if i < 15: k("s_add_u32 s28, s28, 4096")
    k("s_mov_b64 exec, -1")
    for step in (1, 2, 4, 8):
        for i in range(0, 16, 2 * step):
            if step == 1: k(f"s_waitcnt vmcnt({14 - i})")
            for c in range(4):
                k(f"v_add_f32 v{PS + 4 * i + c}, v{PS + 4 * i + c}, v{PS + 4 * (i + step) + c}")
    k(f"v_add_u32 v{ga}, {KS}, v{ga}")
    k("s_mov_b64 exec, s[32:33]")
    k(f"ds_write_b128 v{ga}, {vr(PS, 4)}")
    k("s_mov_b64 exec, -1")
    k("s_waitcnt lgkmcnt(0)")
    k("s_barrier")
    k("s_mov_b32 exec_lo, 0x1fffff"); k("s_mov_b32 exec_hi, 0x1fffff")
    k(f"ds_read_b128 {vr(R0 + 4, 4)}, v15 offset:32")
    k(f"ds_read_b128 {vr(R0 + 8, 4)}, v15 offset:64")
    k("s_mov_b32 exec_lo, 0")
    k(f"ds_read_b128 {vr(R0, 4)}, v15")
    k("s_mov_b64 exec, -1")
    AK = 32
    k(f"v_mov_b32 v{AK}, 0"); k(f"v_mov_b32 v{AK + 1}, 0")
    k("s_waitcnt lgkmcnt(0)")
    for m in range(6):
        k(f"v_cvt_pk_bf16_f32 v{AK + 2 + m}, v{R0 + 2 * m}, v{R0 + 2 * m + 1}")
    k("s_nop 1")
    for rt in range(2):
        o = D0 + 16 * rt; b = DQ + 16 * rt
        k(f"v_mfma_f32_32x32x16_bf16 {vr(o, 16)}, {vr(AK, 4)}, {vr(b, 4)}, 0")
        k(f"v_mfma_f32_32x32x16_bf16 {vr(o, 16)}, {vr(AK + 4, 4)}, {vr(b + 4, 4)}, {vr(o, 16)}")
    k(f"s_lshl_b32 s28, s{S_RB}, 2")
    k(f"s_lshl_b32 s29, s{S_RH}, 1")
    k("s_add_u32 s28, s28, s29")
    k(f"s_mul_i32 s28, s28, {XN_SEG}")
    k(f"s_add_u32 s28, s28, {OA}")
    k("s_nop 7"); k("s_nop 3")
    for rt in range(2):
        o = D0 + 16 * rt
        if rt == 1: k("s_nop 7")
        k(f"v_add_f32 v40, {hexf(E6)}, v{o + 8}")
        k("v_mov_b32 v41, v40")
        k("s_nop 1")
        k("v_permlane32_swap_b32 v40, v41")
        k("v_rcp_f32 v41, v41")
        k("s_nop 0")
        for r in range(12): k(f"v_mul_f32 v{o + r}, v{o + r}, v41")
        for m in range(6): k(f"v_cvt_pk_bf16_f32 v{42 + 6 * rt + m}, v{o + 2 * m}, v{o + 2 * m + 1}")
        for q in range(3):
            if q == 2: k("s_mov_b32 exec_hi, 0")
            k(f"buffer_store_dwordx2 {vr(42 + 6 * rt + 2 * q, 2)}, v14, {srd}, s28 offen offset:{q * 512}{' sc1' if RTL else ''}")
        k("s_mov_b32 exec_hi, -1")
        if rt == 0: k(f"s_add_u32 s28, s28, {XN_SEG}")
    if RTL:
        st(5)
        k("s_waitcnt vmcnt(0)")
        k("s_barrier")
        k(f"s_cmp_lg_u32 s{S_WAVE}, 0")
        k(f"s_cbranch_scc1 {k.ref('af_pub')}")
        k(f"s_lshl_b32 s28, s{S_RB}, 4")
        k(f"s_add_u32 s28, s28, s{S_HP}")
        k("s_lshl_b32 s28, s28, 2")
        k("s_add_u32 s28, s28, s48")
        k(f"s_add_u32 s28, s28, {FL_OF}")
        k("v_mov_b32 v16, 0"); k("v_mov_b32 v17, 1")
        k("s_mov_b64 exec, 1")
        k(f"buffer_store_dword v17, v16, {srd}, s28 offen sc1")
        k("s_mov_b64 exec, -1")
        k.lab('af_pub')
    return pf_items

def role_ow(k, j_s, layer_s, fl_s, spin_s, bail, cfg=None):
    L = lambda s: k.ref('ow_' + s)
    lab = lambda s: k.lab('ow_' + s)
    SEG, H0, SRC, DST = 14, 16, 17, 18
    V_L16, V_L8, V_A, V_O = 1, 2, 3, 4
    RF, AK, BQ, ACC, T = 16, 64, 96, 160, 224
    k(f"v_lshlrev_b32 v{V_L16}, 4, v0")
    k(f"v_lshlrev_b32 v{V_L8}, 3, v0")
    k(f"s_lshl_b32 s{H0}, s{j_s}, 4")
    k(f"s_lshl_b32 s20, s{S_WAVE}, 2")
    k(f"s_add_u32 s{H0}, s{H0}, s20")
    k("v_and_b32 v8, 31, v0")
    k("v_lshrrev_b32 v9, 5, v0")
    k(f"v_mul_u32_u24 v{V_A}, 80, v8")
    k(f"v_lshl_add_u32 v{V_A}, v9, 4, v{V_A}")
    for u in range(4):
        k(f"s_add_u32 s20, s{H0}, {u}")
        k("s_mul_i32 s20, s20, 5")
        k("v_add_u32 v10, s20, v9")
        k("v_lshrrev_b32 v11, 1, v10")
        k("v_lshlrev_b32 v11, 9, v11")
        k("v_and_b32 v10, 1, v10")
        k("v_lshl_add_u32 v11, v10, 3, v11")
        k(f"v_lshl_add_u32 v{V_O + u}, v8, 4, v11")
    for r in range(48): k(f"v_mov_b32 v{RF + r}, 0")
    for par in range(2):
        for u in range(4):
            b = BQ + 32 * par + 8 * u
            k(f"v_mov_b32 v{b}, 0"); k(f"v_mov_b32 v{b + 1}, 0")
    k(f"s_mul_i32 s{SRC}, s{H0}, {PQ_SH}")
    k(f"s_add_u32 s{SRC}, s{SRC}, {PQ}")
    def loads(par):
        for u in range(4):
            b = BQ + 32 * par + 8 * u
            k(f"s_add_u32 s20, s{SRC}, {u * PQ_SH}")
            k(f"buffer_load_dwordx4 {vr(b + 4, 4)}, v{V_L16}, {srd}, s20 offen sc1")
            k(f"buffer_load_dwordx2 {vr(b + 2, 2)}, v{V_L8}, {srd}, s20 offen offset:1024 sc1")
    k(f"s_lshr_b32 s20, s{H0}, 1")
    k("s_lshl_b32 s20, s20, 2")
    k(f"s_add_u32 s20, s20, s{fl_s}")
    k(f"s_add_u32 s20, s20, {FL_KC}")
    k("v_lshlrev_b32 v10, 2, v0")
    k("s_mov_b64 exec, 3")
    lab('kc')
    k(f"buffer_load_dword v11, v10, {srd}, s20 offen sc1")
    k("s_waitcnt vmcnt(0)")
    k("v_cmp_gt_u32 vcc, 16, v11")
    k(f"s_sub_u32 s{spin_s}, s{spin_s}, 1")
    k(f"s_cbranch_scc1 {bail}")
    k(f"s_cbranch_vccnz {L('kc')}")
    k("s_mov_b64 exec, -1")
    k(f"s_lshr_b32 s20, s{H0}, 1")
    k("s_lshl_b32 s20, s20, 12")
    k(f"s_mul_i32 s21, s{layer_s}, {KVT_L}")
    k("s_add_u32 s20, s20, s21")
    k(f"s_add_u32 s20, s20, {KVT}")
    k("s_mov_b32 exec_lo, 0x1fffff"); k("s_mov_b32 exec_hi, 0x1fffff")
    hoff = lambda u: (u >> 1) * 4096 + (u & 1) * 1680
    for u in range(4):
        k(f"s_add_u32 s21, s20, {hoff(u)}")
        k(f"buffer_load_dwordx4 {vr(RF + 12 * u + 4, 4)}, v{V_A}, {srd}, s21 offen offset:16 sc1")
        k(f"buffer_load_dwordx4 {vr(RF + 12 * u + 8, 4)}, v{V_A}, {srd}, s21 offen offset:48 sc1")
    k("s_mov_b32 exec_lo, 0")
    k(f"v_subrev_u32 v10, 16, v{V_A}")
    for u in range(4):
        k(f"s_add_u32 s21, s20, {hoff(u)}")
        k(f"buffer_load_dwordx4 {vr(RF + 12 * u, 4)}, v10, {srd}, s21 offen sc1")
    k("s_mov_b64 exec, -1")
    loads(0)
    k(f"s_mov_b32 s{SEG}, 0")
    k(f"s_mov_b32 s{DST}, {OA}")
    k("s_waitcnt vmcnt(8)")
    for u in range(4):
        k(f"v_mov_b32 v{AK + 8 * u}, 0"); k(f"v_mov_b32 v{AK + 8 * u + 1}, 0")
        for m in range(6):
            k(f"v_cvt_pk_bf16_f32 v{AK + 8 * u + 2 + m}, v{RF + 12 * u + 2 * m}, v{RF + 12 * u + 2 * m + 1}")
    k("s_waitcnt vmcnt(0)")
    rts(k, cfg, 0)
    def segment(par):
        k(f"s_cmp_lt_u32 s{SEG}, 63")
        k(f"s_cselect_b32 s20, {32 * PQ_SH}, 0")
        k(f"s_add_u32 s{SRC}, s{SRC}, s20")
        for u in range(4):
            b = BQ + 32 * par + 8 * u
            k(f"v_mfma_f32_32x32x16_bf16 {vr(ACC + 16 * u, 16)}, {vr(AK + 8 * u, 4)}, {vr(b, 4)}, 0")
            k(f"v_mfma_f32_32x32x16_bf16 {vr(ACC + 16 * u, 16)}, {vr(AK + 8 * u + 4, 4)}, {vr(b + 4, 4)}, {vr(ACC + 16 * u, 16)}")
        loads(par ^ 1)
        k("s_nop 3")
        for u in range(4):
            o = ACC + 16 * u; t = T + 8 * (u & 1)
            if u == 3: k("s_nop 7")
            k(f"v_add_f32 v{t}, {hexf(E6)}, v{o + 8}")
            k(f"v_mov_b32 v{t + 1}, v{t}")
            k("s_nop 1")
            k(f"v_permlane32_swap_b32 v{t}, v{t + 1}")
            k(f"v_rcp_f32 v{t + 1}, v{t + 1}")
            k("s_nop 0")
            for r in range(12): k(f"v_mul_f32 v{o + r}, v{o + r}, v{t + 1}")
            for m in range(6): k(f"v_cvt_pk_bf16_f32 v{t + 2 + m}, v{o + 2 * m}, v{o + 2 * m + 1}")
            for q in range(3):
                if q == 2: k("s_mov_b32 exec_hi, 0")
                k(f"buffer_store_dwordx2 {vr(t + 2 + 2 * q, 2)}, v{V_O + u}, {srd}, s{DST} offen offset:{q * 512} sc1")
            k("s_mov_b32 exec_hi, -1")
        k("s_waitcnt vmcnt(0)")
        k("s_barrier")
        k(f"s_cmp_lg_u32 s{S_WAVE}, 0")
        sk = f"fl{par}"
        k(f"s_cbranch_scc1 {L(sk)}")
        k(f"s_lshl_b32 s20, s{SEG}, 3")
        k(f"s_lshl_b32 s21, s{j_s}, 2")
        k("s_add_u32 s20, s20, s21")
        k(f"s_add_u32 s20, s20, s{fl_s}")
        k(f"s_add_u32 s20, s20, {FL_OF}")
        k("v_mov_b32 v10, 0"); k("v_mov_b32 v11, 1")
        k("s_mov_b64 exec, 1")
        k(f"buffer_store_dword v11, v10, {srd}, s20 offen sc1")
        k("s_mov_b64 exec, -1")
        lab(sk)
        k(f"s_add_u32 s{DST}, s{DST}, {XN_SEG}")
        k(f"s_add_u32 s{SEG}, s{SEG}, 1")
    lab('loop')
    segment(0)
    if cfg and cfg.get('rt'):
        k(f"s_cmp_lg_u32 s{SEG}, 1"); k(f"s_cbranch_scc1 {L('rt1')}"); rts(k, cfg, 1); lab('rt1')
    segment(1)
    k(f"s_cmp_lt_u32 s{SEG}, 64")
    k(f"s_cbranch_scc1 {L('loop')}")
    rts(k, cfg, 2)
    k("s_waitcnt vmcnt(0)")
    k("s_barrier")

AB_SEG = 14; AB_END = 15; AB_BUF = 16; AB_NB = 17; AB_DMA = 18; AB_RES = 19; AB_FLG = 20; AB_CT = 21
AB_RSRD = 52
AB_LDS = 3 * XN_SEG

def rts(k, cfg, n):
    if cfg and cfg.get('rt'): k(f"s_memrealtime s[{60 + 2 * n}:{61 + 2 * n}]")

AB_OW = 22; AB_OFA = 29
def role_aback(k, p_s, layer_s, fl_s, flags=True, cfg=None, ow=None, semi=False):
    L = lambda s: k.ref('ab_' + s)
    lab = lambda s: k.lab('ab_' + s)
    V_L16, V_RD, V_IO, V_FA, V_ONE = 1, 2, 3, 4, 5
    RES = 96; RING = 16; NR = 8; ACC = 48; OUT = 80; T = 88
    rsrd = f"s[{AB_RSRD}:{AB_RSRD+3}]"
    k.ptr(KA_AX, AB_RSRD)
    k(f"v_lshlrev_b32 v{V_L16}, 4, v0")
    k(f"s_lshl_b32 s{AB_CT}, s{p_s}, 2")
    k(f"s_add_u32 s{AB_CT}, s{AB_CT}, s{S_WAVE}")
    k(f"s_add_u32 s24, s{S_WS}, {A_X2}")
    k(f"s_addc_u32 s25, s{S_WS+1}, 0")
    k("s_waitcnt lgkmcnt(0)")
    k(f"s_cmp_eq_u32 s{layer_s}, 0")
    k(f"s_cselect_b32 s{AB_RSRD}, s{AB_RSRD}, s24")
    k(f"s_cselect_b32 s{AB_RSRD+1}, s{AB_RSRD+1}, s25")
    k(f"s_mov_b32 s{AB_RSRD+2}, {2048 * 1280}")
    k(f"s_mov_b32 s{AB_RSRD+3}, 0x00020000")
    k("v_and_b32 v6, 31, v0")
    k("v_lshrrev_b32 v7, 5, v0")
    k("v_mul_u32_u24 v6, 1280, v6")
    k(f"v_lshl_add_u32 v{V_IO}, v7, 4, v6")
    k(f"s_mul_i32 s{AB_RES}, s{AB_SEG}, {32 * 1280}")
    k(f"s_lshl_b32 s24, s{AB_CT}, 6")
    k(f"s_add_u32 s{AB_RES}, s{AB_RES}, s24")
    k(f"s_lshl_b32 s{AB_FLG}, s{AB_SEG}, 7")
    k(f"s_lshl_b32 s24, s{AB_CT}, 2")
    k(f"s_add_u32 s{AB_FLG}, s{AB_FLG}, s24")
    k(f"s_add_u32 s{AB_FLG}, s{AB_FLG}, {FL_AB}")
    k(f"v_mov_b32 v{V_ONE}, 1")
    k(f"v_mov_b32 v{V_FA}, 0")
    k(f"s_mul_i32 s{AB_DMA}, s{S_WAVE}, 10240")
    k(f"s_add_u32 s{AB_DMA}, s{AB_DMA}, {OA}")
    def dma_items(seg_s):
        it = [[f"s_min_u32 s24, s{seg_s}, 63", f"s_mul_i32 s24, s24, {XN_SEG}", f"s_add_u32 s24, s24, s{AB_DMA}",
               f"s_mul_i32 s25, s{S_WAVE}, 10240", f"s_add_u32 s25, s25, s{AB_NB}"]]
        for grp in range(3):
            for i in range(4 if grp < 2 else 2):
                p = []
                if i == 0:
                    if grp: p += ["s_add_u32 s24, s24, 4096", "s_add_u32 s25, s25, 4096"]
                    p += ["s_mov_b32 m0, s25", "s_nop 0"]
                p.append(f"buffer_load_dwordx4 v{V_L16}, {srd}, s24 offen offset:{i * 1024}{' sc1' if ow else ''} lds")
                it.append(p)
        return it
    def dma(seg_s):
        for p in dma_items(seg_s):
            for x in p: k(x)
    nw = [0]
    def owait(seg_s):
        if not ow: return
        nw[0] += 1
        sk = L(f'ow{nw[0]}'); lp = f'op{nw[0]}'
        k(f"s_cmp_lg_u32 s{S_WAVE}, 0")
        k(f"s_cbranch_scc1 {sk}")
        k(f"s_min_u32 s28, s{seg_s}, 63")
        k(f"s_cmp_gt_u32 s{AB_OW}, s28")
        k(f"s_cbranch_scc1 {sk}")
        lab(lp)
        if semi:
            k(f"buffer_load_dwordx4 v[116:119], v{V_L16}, {srd}, s{AB_OFA} offen sc1")
            k("s_waitcnt vmcnt(0)")
            k("v_min_u32 v116, v116, v117")
            k("v_min_u32 v118, v118, v119")
            k("v_min_u32 v114, v116, v118")
        else:
            k(f"buffer_load_dwordx2 v[114:115], v112, {srd}, s{AB_OFA} offen sc1")
            k("s_waitcnt vmcnt(0)")
            k("v_min_u32 v114, v114, v115")
        k("v_cmp_eq_u32 vcc, 0, v114")
        k("s_nop 1")
        k(f"s_ff1_i32_b64 s{AB_OW}, vcc")
        k(f"s_min_u32 s{AB_OW}, s{AB_OW}, 64")
        if semi: k(f"s_and_b32 s{AB_OW}, s{AB_OW}, 0x7c")
        k(f"s_sub_u32 s{ow[0]}, s{ow[0]}, 1")
        k(f"s_cbranch_scc1 {ow[1]}")
        k(f"s_cmp_gt_u32 s{AB_OW}, s28")
        k(f"s_cbranch_scc0 {L(lp)}")
        lab(f'ow{nw[0]}')
    def nextbuf(dst, src):
        k(f"s_add_u32 s{dst}, s{src}, {XN_SEG}")
        k(f"s_cmp_eq_u32 s{dst}, {AB_LDS}")
        k(f"s_cselect_b32 s{dst}, 0, s{dst}")
    def flag():
        if not flags: return
        k("s_mov_b64 exec, 1")
        k(f"s_add_u32 s26, s{fl_s}, s{AB_FLG}")
        k(f"buffer_store_dword v{V_ONE}, v{V_FA}, {srd}, s26 offen sc1")
        k("s_mov_b64 exec, -1")
        k(f"s_add_u32 s{AB_FLG}, s{AB_FLG}, 128")
    SC1 = " sc1" if flags else ""
    def resload(par, sreg):
        for j in range(2):
            k(f"buffer_load_dwordx4 {vr(RES + 8 * par + 4 * j, 4)}, v{V_IO}, {rsrd}, s{sreg} offen offset:{32 * j}")
    k(f"s_mov_b32 s{AB_NB}, 0")
    if not ow: dma(AB_SEG)
    resload(0, AB_RES)
    k(f"s_mul_i32 s24, s{AB_CT}, 40960")
    k(f"s_add_u32 s24, s24, {PWO}")
    for kap in range(40):
        if kap % 4 == 0 and kap: k("s_add_u32 s24, s24, 4096")
        if semi and kap < (cfg or {}).get('npf', 64): continue
        k(f"buffer_load_dwordx4 {ar(4 * kap, 4)}, v{V_L16}, {srd}, s24 offen offset:{(kap % 4) * 1024}")
    if ow:
        k(f"s_mov_b32 s{AB_OW}, 0")
        k(f"s_mov_b32 s{ow[0]}, {SPIN}")
        k(f"s_add_u32 s{AB_OFA}, s{fl_s}, {FL_OF}")
        k("v_lshlrev_b32 v112, 3, v0")
        owait(AB_SEG)
        k("s_barrier")
        dma(AB_SEG)
    k(f"s_mov_b32 s{AB_NB}, {XN_SEG}")
    k(f"s_add_u32 s23, s{AB_SEG}, 1")
    if ow:
        owait(23)
        k("s_barrier")
    dma(23)
    k(f"s_mov_b32 s{AB_NB}, {2 * XN_SEG}")
    k(f"s_mov_b32 s{AB_BUF}, 0")
    k("s_waitcnt vmcnt(10)" if ow else "s_waitcnt vmcnt(52)")
    rts(k, cfg, 0)
    def segment(par, early, wwait=False):
        if ow:
            k(f"s_add_u32 s23, s{AB_SEG}, 2")
            owait(23)
        k("s_barrier")
        if not early and par == 0: rts(k, cfg, 5)
        k(f"v_add_u32 v{V_RD}, s{AB_BUF}, v{V_L16}")
        PRE = NR - 2
        for r in range(PRE): k(f"ds_read_b128 {vr(RING + 4 * r, 4)}, v{V_RD} offset:{r * 1024}")
        k(f"s_add_u32 s27, s{AB_RES}, {32 * 1280}")
        k(f"s_cmp_ge_u32 s{AB_SEG}, 63")
        k(f"s_cselect_b32 s27, s{AB_RES}, s27")
        resload(par ^ 1, 27)
        k(f"s_add_u32 s23, s{AB_SEG}, 2")
        items = dma_items(23)
        for x in items[0]: k(x)
        nextbuf(AB_NB, AB_NB)
        pieces = {1 + 3 * n: p for n, p in enumerate(items[1:])}
        younger = 10 + 2
        for kap in range(40):
            nk = kap + PRE
            if nk < 40:
                k(f"ds_read_b128 {vr(RING + 4 * (nk % NR), 4)}, v{V_RD} offset:{nk * 1024}")
            if wwait: k(f"s_waitcnt vmcnt({39 - kap + younger}) lgkmcnt({min(PRE, 39 - kap)})")
            else: k(f"s_waitcnt lgkmcnt({min(PRE, 39 - kap)})")
            d = vr(ACC + 16 * (kap & 1), 16)
            k(f"v_mfma_f32_32x32x16_bf16 {d}, {ar(4 * kap, 4)}, {vr(RING + 4 * (kap % NR), 4)}, {'0' if kap < 2 else d}")
            if kap in pieces:
                for x in pieces[kap]: k(x)
                younger += 1
        if not early and par == 0: rts(k, cfg, 6)
        k(f"s_waitcnt vmcnt({15 if flags else 14})" if not early else "s_waitcnt vmcnt(12)")
        if not early and par == 0: rts(k, cfg, 7)
        k("s_nop 7"); k("s_nop 3")
        for r in range(16): k(f"v_add_f32 v{ACC + r}, v{ACC + r}, v{ACC + 16 + r}")
        k(f"s_add_u32 s26, s{AB_RES}, {A_X1}")
        for j in range(2):
            o = OUT + 4 * j
            for q in range(2):
                k(f"v_cvt_pk_bf16_f32 v{o + 2 * q}, v{ACC + 8 * j + 4 * q}, v{ACC + 8 * j + 4 * q + 1}")
                k(f"v_cvt_pk_bf16_f32 v{o + 2 * q + 1}, v{ACC + 8 * j + 4 * q + 2}, v{ACC + 8 * j + 4 * q + 3}")
            k("s_nop 1")
            k(f"v_permlane32_swap_b32 v{o}, v{o + 2}")
            k(f"v_permlane32_swap_b32 v{o + 1}, v{o + 3}")
            k("s_nop 1")
            for r in range(4):
                a, b, t0, t1 = T + 4 * (r & 1), T + 4 * (r & 1) + 1, T + 4 * (r & 1) + 2, T + 4 * (r & 1) + 3
                k(f"v_lshlrev_b32 v{a}, 16, v{o + r}")
                k(f"v_and_b32 v{b}, 0xffff0000, v{o + r}")
                k(f"v_lshlrev_b32 v{t0}, 16, v{RES + 8 * par + 4 * j + r}")
                k(f"v_and_b32 v{t1}, 0xffff0000, v{RES + 8 * par + 4 * j + r}")
                k(f"v_add_f32 v{a}, v{a}, v{t0}")
                k(f"v_add_f32 v{b}, v{b}, v{t1}")
                k(f"v_cvt_pk_bf16_f32 v{o + r}, v{a}, v{b}")
            k(f"buffer_store_dwordx4 {vr(o, 4)}, v{V_IO}, {srd}, s26 offen offset:{32 * j}{SC1}")
        if flags:
            if not early and par == 0: rts(k, cfg, 2)
            k("s_waitcnt vmcnt(0)" if early else "s_waitcnt vmcnt(15)")
            if not early and par == 0: rts(k, cfg, 3)
            flag()
        k(f"s_add_u32 s{AB_RES}, s{AB_RES}, {32 * 1280}")
        nextbuf(AB_BUF, AB_BUF)
        k(f"s_add_u32 s{AB_SEG}, s{AB_SEG}, 1")
    NEARLY = (cfg or {}).get('nearly', 3) if flags else 1
    for e in range(NEARLY):
        segment(e & 1, True, e == 0 and not ow)
        if e < 1: rts(k, cfg, 1 + e)
        k(f"s_cmp_ge_u32 s{AB_SEG}, s{AB_END}")
        k(f"s_cbranch_scc1 {L('fin')}")
    def seg_late(par):
        segment(par, False)
    if flags: k(f"s_sub_u32 s{AB_FLG}, s{AB_FLG}, 128")
    lab('loop')
    par0 = NEARLY & 1
    seg_late(par0)
    k(f"s_cmp_ge_u32 s{AB_SEG}, s{AB_END}")
    k(f"s_cbranch_scc1 {L('fin')}")
    seg_late(par0 ^ 1)
    k(f"s_cmp_lt_u32 s{AB_SEG}, s{AB_END}")
    k(f"s_cbranch_scc1 {L('loop')}")
    lab('fin')
    k("s_waitcnt vmcnt(0) lgkmcnt(0)")
    flag()
    rts(k, cfg, 4)
    k("s_barrier")

def role_lnw(k, first_s, nstride, fl_s, spin_s, bail, wait=True, cfg=None):
    L = lambda s: k.ref('ln_' + s)
    lab = lambda s: k.lab('ln_' + s)
    SEG = 14; ONE = 16
    V_SRC, V_DST, V_FA, V_ONE = 1, 2, 3, 4
    X = 16; U = 64; O = 72; ST = 8
    k(f"s_mov_b32 s{SEG}, s{first_s}")
    k(f"s_mov_b32 s{ONE}, 0x3f803f80")
    k("v_lshrrev_b32 v6, 3, v0")
    k("v_and_b32 v7, 7, v0")
    k(f"v_mul_u32_u24 v{V_SRC}, 1280, v6")
    k(f"v_lshl_add_u32 v{V_SRC}, v7, 5, v{V_SRC}")
    k(f"v_lshlrev_b32 v{V_DST}, 10, v7")
    k(f"v_lshl_add_u32 v{V_DST}, v6, 4, v{V_DST}")
    k(f"v_lshlrev_b32 v{V_FA}, 2, v0")
    k(f"v_mov_b32 v{V_ONE}, 1")
    lab('seg')
    if wait:
        k(f"s_lshl_b32 s17, s{SEG}, 7")
        k(f"s_add_u32 s17, s17, s{fl_s}")
        k(f"s_add_u32 s17, s17, {FL_AB}")
        k("s_mov_b64 exec, 0xfffff")
        lab('poll')
        k(f"buffer_load_dword v5, v{V_FA}, {srd}, s17 offen sc1")
        k("s_waitcnt vmcnt(0)")
        k("v_cmp_eq_u32 vcc, 0, v5")
        k(f"s_sub_u32 s{spin_s}, s{spin_s}, 1")
        k(f"s_cbranch_scc1 {bail}")
        k(f"s_cbranch_vccnz {L('poll')}")
        k("s_mov_b64 exec, -1")
        if cfg and cfg.get('rt'):
            k(f"s_cmp_ge_u32 s{SEG}, 4"); k(f"s_cbranch_scc1 {L('rt0')}"); rts(k, cfg, 0); lab('rt0')
    k(f"s_lshl_b32 s18, s{SEG}, 5")
    k(f"s_lshl_b32 s19, s{S_WAVE}, 3")
    k("s_add_u32 s18, s18, s19")
    k("s_mul_i32 s18, s18, 1280")
    k(f"s_add_u32 s18, s18, {A_X1}")
    SC1 = " sc1" if wait else ""
    for i in range(5):
        for hlf in range(2):
            k(f"buffer_load_dwordx4 {vr(X + 8 * i + 4 * hlf, 4)}, v{V_SRC}, {srd}, s18 offen offset:{i * 256 + hlf * 16}{SC1}")
    for r in range(4): k(f"v_mov_b32 v{ST + r}, 0")
    for i in range(5):
        for hlf in range(2):
            k(f"s_waitcnt vmcnt({9 - 2 * i - hlf})")
            for r in range(4):
                x = X + 8 * i + 4 * hlf + r
                k(f"v_dot2c_f32_bf16 v{ST + (r & 1)}, s{ONE}, v{x}")
                k(f"v_dot2c_f32_bf16 v{ST + 2 + (r & 1)}, v{x}, v{x}")
    k("s_nop 3")
    k(f"v_add_f32 v{ST}, v{ST}, v{ST+1}")
    k(f"v_add_f32 v{ST+2}, v{ST+2}, v{ST+3}")
    for ctl in ("quad_perm:[1,0,3,2]", "quad_perm:[2,3,0,1]", "row_half_mirror"):
        k("s_nop 1")
        k(f"v_add_f32_dpp v{ST}, v{ST}, v{ST} {ctl} row_mask:0xf bank_mask:0xf")
        k(f"v_add_f32_dpp v{ST+2}, v{ST+2}, v{ST+2} {ctl} row_mask:0xf bank_mask:0xf")
    k(f"v_mul_f32 v{ST}, {hexf(1.0/640)}, v{ST}")
    k(f"v_mul_f32 v{ST+1}, v{ST}, v{ST}")
    k(f"v_mul_f32 v{ST+2}, {hexf(1.0/640)}, v{ST+2}")
    k(f"v_sub_f32 v{ST+2}, v{ST+2}, v{ST+1}")
    k(f"v_max_f32 v{ST+2}, 0, v{ST+2}")
    k(f"v_add_f32 v{ST+2}, 0x3727c5ac, v{ST+2}")
    k(f"v_rsq_f32 v{ST+2}, v{ST+2}")
    k("s_nop 0")
    k(f"v_mul_f32 v{ST}, v{ST}, v{ST+2}")
    k(f"v_sub_f32 v{ST}, 0, v{ST}")
    k(f"s_mul_i32 s18, s{SEG}, {XN_SEG}")
    k(f"s_lshl_b32 s19, s{S_WAVE}, 7")
    k("s_add_u32 s18, s18, s19")
    k(f"s_add_u32 s18, s18, {XN}")
    POS = [0, 2, 4, 6, 1, 3, 5, 7]
    for i in range(5):
        o = O + 8 * (i & 1)
        for d in range(8):
            x = X + 8 * i + d; u = U + 2 * (d & 3)
            k(f"v_lshlrev_b32 v{u}, 16, v{x}")
            k(f"v_and_b32 v{u+1}, 0xffff0000, v{x}")
            k(f"v_fma_f32 v{u}, v{u}, v{ST+2}, v{ST}")
            k(f"v_fma_f32 v{u+1}, v{u+1}, v{ST+2}, v{ST}")
            k(f"v_cvt_pk_bf16_f32 v{o + POS[d]}, v{u}, v{u+1}")
        for b in range(2):
            k(f"buffer_store_dwordx4 {vr(o + 4 * b, 4)}, v{V_DST}, {srd}, s18 offen offset:{b * 512}{SC1}")
        if i < 4: k("s_add_u32 s18, s18, 8192")
    if wait:
        k("s_waitcnt vmcnt(0)")
        k(f"s_lshl_b32 s17, s{SEG}, 4")
        k(f"s_lshl_b32 s19, s{S_WAVE}, 2")
        k("s_add_u32 s17, s17, s19")
        k(f"s_add_u32 s17, s17, s{fl_s}")
        k(f"s_add_u32 s17, s17, {FL_LN}")
        k("v_mov_b32 v5, 0")
        k("s_mov_b64 exec, 1")
        k(f"buffer_store_dword v{V_ONE}, v5, {srd}, s17 offen sc1")
        k("s_mov_b64 exec, -1")
        if cfg and cfg.get('rt'):
            k(f"s_cmp_ge_u32 s{SEG}, 4"); k(f"s_cbranch_scc1 {L('rt1')}"); rts(k, cfg, 1); lab('rt1')
            rts(k, cfg, 2)
    k(f"s_add_u32 s{SEG}, s{SEG}, {nstride}")
    k(f"s_cmp_lt_u32 s{SEG}, 64")
    k(f"s_cbranch_scc1 {L('seg')}")

def build_aback_test(name):
    k = K(name, vgpr=128, sgpr=64, agpr=160)
    k("s_cmp_ge_u32 s2, 160")
    k(f"s_cbranch_scc1 {k.ref('end')}")
    prologue(k)
    k("s_mov_b32 s49, %d" % (0 if name.endswith('1') else 1))
    k("s_mul_i32 s28, s2, 13108"); k("s_lshr_b32 s28, s28, 16")
    k("s_mul_i32 s29, s28, 5"); k("s_sub_u32 s29, s2, s29")
    k(f"s_lshl_b32 s{AB_SEG}, s28, 1")
    k(f"s_add_u32 s{AB_END}, s{AB_SEG}, 2")
    role_aback(k, 29, 49, 48, flags=False)
    k.lab('end')
    return k, 160, AB_LDS

def build_lnw_test(name):
    k = K(name, vgpr=96, sgpr=64)
    k("s_cmp_ge_u32 s2, 64")
    k(f"s_cbranch_scc1 {k.ref('end')}")
    prologue(k)
    role_lnw(k, 2, 64, 48, 15, k.ref('end'), wait=False)
    k.lab('end')
    return k, 64

def role_mem0(k, slot_s, far_s=None):
    k.ptr(KA_MEM0, 24)
    k(f"s_lshl_b32 s26, s{S_WAVE}, 6")
    k("v_add_u32 v1, s26, v0")
    k("s_waitcnt lgkmcnt(0)")
    k.srd(28, 24, 8 * 640 * 2)
    for it in range(3):
        k(f"v_add_u32 v2, {256 * it}, v1")
        k("v_and_b32 v3, 7, v2")
        k("v_mul_u32_u24 v3, 1280, v3")
        k("v_lshrrev_b32 v4, 3, v2")
        k("v_lshl_add_u32 v3, v4, 4, v3")
        k("v_lshlrev_b32 v5, 4, v2")
        k(f"v_add_u32 v5, {M_LOG}, v5")
        k("v_lshrrev_b32 v6, 13, v5")
        k("v_lshlrev_b32 v6, 14, v6")
        k("v_and_b32 v5, 8191, v5")
        k("v_add_u32 v5, v5, v6")
        k("v_cmp_gt_u32 vcc, 640, v2")
        k("s_and_saveexec_b64 s[32:33], vcc")
        sk = k.ref(f'm0s{it}')
        k(f"s_cbranch_execz {sk}")
        k("buffer_load_dwordx4 v[8:11], v3, s[28:31], 0 offen")
        k("s_waitcnt vmcnt(0)")
        k(f"buffer_store_dwordx4 v[8:11], v5, {srd}, s{slot_s} offen sc1")
        if far_s is not None:
            k(f"s_add_u32 s34, s{slot_s}, s{far_s}")
            k(f"buffer_store_dwordx4 v[8:11], v5, {srd}, s34 offen sc1")
        k.lab(f'm0s{it}')
        k("s_mov_b64 exec, s[32:33]")
    k("s_waitcnt vmcnt(0)")
```

```python
import sys, math
sys.path.insert(0, "/code"); sys.path.insert(0, "tools")
from asmk import *
from lay import *

NSTEP = 64
SPIN = 400000
CSC = (192 ** -0.5) * math.log2(math.e)

class LQ:
    def __init__(self, k): self.k = k; self.q = []
    def ds(self, ins, tag=None):
        self.k(ins); self.q.append(tag)
        assert len(self.q) <= 15, "too many outstanding LDS ops"
    def wait(self, tag):
        idx = [i for i, t in enumerate(self.q) if t == tag]
        if not idx: return
        n = len(self.q) - 1 - idx[-1]
        self.k(f"s_waitcnt lgkmcnt({n})"); self.q = self.q[idx[-1] + 1:]
    def wait_many(self, tags):
        idx = [i for i, t in enumerate(self.q) if t in tags]
        if not idx: return
        n = len(self.q) - 1 - idx[-1]
        self.k(f"s_waitcnt lgkmcnt({n})"); self.q = self.q[idx[-1] + 1:]
    def all(self):
        self.k("s_waitcnt lgkmcnt(0)"); self.q = []

def vr(b, n): return f"v[{b}:{b+n-1}]" if n > 1 else f"v{b}"
def ar(b, n): return f"a[{b}:{b+n-1}]"

def check_valid(k, regs, tmp):
    regs = list(regs)
    k(f"v_max3_u32 v{tmp}, v{regs[0]}, v{regs[1]}, v{regs[2]}")
    rest = regs[3:]
    while len(rest) >= 2:
        k(f"v_max3_u32 v{tmp}, v{tmp}, v{rest[0]}, v{rest[1]}"); rest = rest[2:]
    if rest: k(f"v_max_u32 v{tmp}, v{tmp}, v{rest[0]}")
    k(f"v_cmp_eq_u32 vcc, -1, v{tmp}")

S_WS = 4
SRD = 8
S_ROLE = 12; S_WAVE = 13; S_STEP = 14; S_SPIN = 15
S_EB0 = 16; S_EB1 = 17
S_SB = 18
S_SBN = 19
S_T = 20
S_M8 = 40
S_M2 = 42
S_KX = 44; S_KM = 45; S_Z = 46
S_GK = 47
S_FL = 48
S_LAYER = 49
S_ST = 50
S_OSRD = 84
S_FD0 = 82; S_FD1 = 83
S_SBF = 88; S_SBNF = 89
srd = f"s[{SRD}:{SRD+3}]"

OWN = [[0, 1, 2], [3, 4, 5], [6, 7], [8, 9]]

def slot_base(k, dst, step_s, tmp, far=None):
    k(f"s_cmp_lt_u32 s{step_s}, 32")
    k(f"s_cselect_b32 s{dst}, s{S_EB0}, s{S_EB1}")
    if far is not None: k(f"s_cselect_b32 s{far}, s{S_FD0}, s{S_FD1}")
    k(f"s_and_b32 s{tmp}, s{step_s}, 31")
    k(f"s_lshl_b32 s{tmp}, s{tmp}, 16")
    k(f"s_add_u32 s{dst}, s{dst}, s{tmp}")
    if far is not None: k(f"s_add_u32 s{far}, s{far}, s{dst}")

def stamp(k, cfg, n, real=False):
    if cfg.get('stamp'):
        k(f"s_mem{'real' if real else ''}time s[{S_ST+2*n}:{S_ST+2*n+1}]")

def stamp_flush(k, cfg, nst, base_off):
    if not cfg.get('stamp'): return
    k("s_waitcnt lgkmcnt(0)")
    sk = k.uniq('stk')
    k(f"s_cmp_lg_u32 s{S_ROLE}, {cfg.get('stamp_role', 0)}")
    k(f"s_cbranch_scc1 {k.ref(sk)}")
    k("s_mov_b64 s[30:31], exec")
    k("s_mov_b64 exec, 1")
    k(f"s_lshl_b32 s32, s{S_STEP}, 6")
    k(f"s_add_u32 s32, s32, {base_off}")
    k("v_mov_b32 v253, 0")
    for n in range(nst):
        k(f"v_mov_b32 v254, s{S_ST+2*n}")
        k(f"buffer_store_dword v254, v253, {srd}, s32 offen offset:{4*n}")
        k("s_nop 1")
    k("s_mov_b64 exec, s[30:31]")
    k.lab(sk)

def rt(k, cfg, n):
    if cfg.get('rt'):
        k(f"s_memrealtime s[{S_ST+2*n}:{S_ST+2*n+1}]")

def rt_flush(k, cfg, rolebase):
    if not cfg.get('rt'): return
    k("s_waitcnt lgkmcnt(0)")
    k("s_mov_b64 exec, 1")
    k(f"s_add_u32 s32, s{S_ROLE}, {rolebase}")
    k("s_lshl_b32 s32, s32, 6")
    k(f"s_add_u32 s32, s32, s{S_STEP}")
    k(f"s_lshl_b32 s32, s32, {5 if cfg.get('rt2') else 4}")
    k(f"s_add_u32 s32, s32, {cfg['rt']}")
    k(f"s_mul_i32 s33, s{S_LAYER}, 0x200000")
    k("s_add_u32 s32, s32, s33")
    k("v_mov_b32 v253, 0")
    for n in range(8 if cfg.get('rt2') else 3):
        k(f"v_mov_b32 v254, s{S_ST+2*n}")
        k(f"buffer_store_dword v254, v253, {srd}, s32 offen offset:{4*n}")
        k("s_nop 1")
    k("s_mov_b64 exec, -1")

def spin_check(k, bail):
    k(f"s_sub_u32 s{S_SPIN}, s{S_SPIN}, 1")
    k(f"s_cbranch_scc1 {bail}")

def wait_progress(k, cfg, tag, step_s, voff, nl, vt):
    if not cfg.get('ovl'): return
    ok = k.ref(tag + '_ok'); lp = tag + '_lp'
    k(f"s_cmp_gt_u32 s{S_GK}, s{step_s}")
    k(f"s_cbranch_scc1 {ok}")
    k.lab(lp)
    k(f"buffer_load_dword v{vt}, v{voff}, {srd}, s{S_FL} offen sc1")
    k("s_waitcnt vmcnt(0)")
    k(f"v_readlane_b32 s{S_GK}, v{vt}, 0")
    if nl == 2:
        k(f"v_readlane_b32 s{S_T+9}, v{vt}, 1")
        k("s_nop 0")
        k(f"s_min_u32 s{S_GK}, s{S_GK}, s{S_T+9}")
    else:
        k("s_nop 0")
    spin_check(k, k.ref('bail'))
    k(f"s_cmp_gt_u32 s{S_GK}, s{step_s}")
    k(f"s_cbranch_scc0 {k.ref(lp)}")
    k.lab(tag + '_ok')

def flag_store(k, cfg, off_s, val_s, va, vb):
    k("s_mov_b64 exec, 1")
    k(f"v_mov_b32 v{va}, s{off_s}")
    k(f"v_mov_b32 v{vb}, s{val_s}")
    k(f"buffer_store_dword v{vb}, v{va}, {srd}, s{S_FL} offen sc1")
    k("s_mov_b64 exec, -1")


def wait_par(k, cfg, tag, bail):
    if not cfg.get('calin'): return
    k(f"s_add_u32 s{S_T}, s{S_FL}, {FL_PAR}")
    k("s_mov_b64 exec, 3")
    k("v_lshlrev_b32 v16, 2, v0")
    k.lab(tag)
    k(f"buffer_load_dword v17, v16, {srd}, s{S_T} offen sc1")
    k("s_waitcnt vmcnt(0)")
    k("v_cmp_eq_u32 vcc, 0, v17")
    spin_check(k, bail)
    k(f"s_cbranch_vccnz {k.ref(tag)}")
    k("s_mov_b64 exec, -1")
    k(f"v_readlane_b32 s{S_T}, v17, 0")
    k(f"v_readlane_b32 s{S_T+1}, v17, 1")
    k("s_nop 0")
    k(f"s_and_b32 s{S_T}, s{S_T}, 8192")
    k(f"s_and_b32 s{S_T+1}, s{S_T+1}, 8192")
    k(f"s_add_u32 s{S_EB0}, s{S_EB0}, s{S_T}")
    k(f"s_add_u32 s{S_EB1}, s{S_EB1}, s{S_T+1}")

def cal_block(k, cfg, blk, tag):
    N = cfg.get('caln', 8)
    k(f"s_cmp_lg_u32 s{S_WAVE}, 0")
    k(f"s_cbranch_scc1 {k.ref(tag + 'x')}")
    k(f"s_add_u32 s24, s{S_EB1 if blk else S_EB0}, {31 * EX_STEP + physmap(CAL_LOG)}")
    k("s_getreg_b32 s25, hwreg(HW_REG_XCC_ID)")
    k("s_bfe_u32 s25, s25, 0x10002")
    k("s_mov_b64 exec, 1")
    k("v_mov_b32 v1, 0"); k("v_mov_b32 v2, 0")
    k("s_mov_b32 s30, -1"); k("s_mov_b32 s31, -1")
    k(f"s_mov_b32 s26, {N}")
    k("s_waitcnt vmcnt(0)")
    k.lab(tag)
    for p in range(2):
        k("s_and_b32 s27, s26, 15")
        k("s_lshl_b32 s27, s27, 7")
        k("s_add_u32 s27, s27, s24")
        if p: k("s_add_u32 s27, s27, 8192")
        k("s_memtime s[28:29]")
        k("s_waitcnt lgkmcnt(0)")
        k(f"buffer_atomic_add v2, v1, {srd}, s27 offen sc0 sc1")
        k("s_waitcnt vmcnt(0)")
        k("s_memtime s[32:33]")
        k("v_mov_b32 v2, 0")
        k("s_waitcnt lgkmcnt(0)")
        k("s_sub_u32 s28, s32, s28")
        k(f"s_min_u32 s{30 + p}, s{30 + p}, s28")
    k("s_sub_u32 s26, s26, 1")
    k("s_cmp_lg_u32 s26, 0")
    k(f"s_cbranch_scc1 {k.ref(tag)}")
    k("s_cmp_lt_u32 s31, s30")
    k("s_cselect_b32 s27, 1, 0")
    k("s_xor_b32 s27, s27, s25")
    k("s_lshl_b32 s27, s27, 13")
    k("s_or_b32 s27, s27, 1")
    k("v_mov_b32 v3, s27")
    k(f"s_add_u32 s27, s{S_FL}, {FL_PAR + 4 * blk}")
    k(f"buffer_store_dword v3, v1, {srd}, s27 offen sc1")
    k("s_lshl_b32 s28, s30, 16"); k("s_or_b32 s28, s28, s31")
    k("v_mov_b32 v3, s28")
    k(f"buffer_store_dword v3, v1, {srd}, s27 offen offset:8 sc1")
    k("s_mov_b64 exec, -1")
    k("s_waitcnt vmcnt(0)")
    k.lab(tag + 'x')
    k("s_barrier")


S_MK = 69
S_PM = 68

def poll_cont(k, tag, loads, regs, consume, tmp, dummy, bail):
    n = len(loads)
    for u in range(n): loads[u]()
    k(f"s_mov_b32 s{S_PM}, 0")
    k.lab(f"{tag}_lp")
    for u in range(n):
        k(f"s_waitcnt vmcnt({n - 1})")
        k(f"s_bitcmp1_b32 s{S_PM}, {u}")
        k(f"s_cbranch_scc1 {k.ref(f'{tag}_d{u}')}")
        check_valid(k, regs[u], tmp)
        k(f"s_bitset1_b32 s{S_PM}, {u}")
        k(f"s_cbranch_vccnz {k.ref(f'{tag}_r{u}')}")
        consume[u]()
        k(f"s_cmp_eq_u32 s{S_PM}, {(1 << n) - 1}")
        k(f"s_cbranch_scc1 {k.ref(f'{tag}_x')}")
        k.lab(f"{tag}_d{u}")
        k(f"buffer_load_dword v{dummy}, off, {srd}, s{S_SB} sc1")
        k(f"s_branch {k.ref(f'{tag}_n{u}')}")
        k.lab(f"{tag}_r{u}")
        k(f"s_bitset0_b32 s{S_PM}, {u}")
        loads[u]()
        k.lab(f"{tag}_n{u}")
    spin_check(k, bail)
    k(f"s_branch {k.ref(f'{tag}_lp')}")
    k.lab(f"{tag}_x")

PL_NL = 15
PL_WL = 0
PL_MEMI = 4 * PL_NL * 2048
PL_QI = PL_MEMI + 10240
PL_STR = 400
PL_KI = PL_QI + 8 * PL_STR
PL_SP = PL_KI + 8 * PL_STR
PL_STG = PL_SP + 4096
PL_END = PL_STG + 1024

V_L16 = 1; V_IDX = 2; V_IW = 3; V_QR = 4; V_KR = 5; V_SPR = 6; V_PX = 7; V_PM = 8; V_KXO = 9
V_KML = 10; V_KMG = 11; V_MASKF = 12; V_WLA = 13; V_MIA = 14; V_SPW = 15
V_GF = 255; V_T0 = 253; V_T1 = 254
AF = 16; PD = 56; PDX = 80; PDM = 84; QF = 88; KXF = 100; TB = 116; PVW = 148

P2_NL = 16
P2_MEMI = 4 * P2_NL * 2048
P2_QI = P2_MEMI + 10240
P2_KI = P2_QI + 8 * PL_STR
P2_ST = P2_KI + 8 * PL_STR
P2_END = P2_ST + 2048
P2_KXF = 100; P2_TB = 124; P2_PVW = 156
V_MG = 12; V_ST8 = 6

def p_plan2(w, cfg):
    own = OWN[w]; rest = [ks for ks in range(10) if ks not in own]
    seq = [(T, ks) for ks in own for T in (0, 1, 2)] + [(T, ks) for T in (0, 1, 2) for ks in rest]
    seq += [(T, ks) for T in (3, 4, 5) for ks in range(10)]
    ldspos = cfg.get('p2_lds', list(range(4, 28, 2)) + [31, 35, 39, 46])
    if cfg.get('p2s'):
        nfirst = cfg.get('p2_nf', 11)
        first = [(T, ks) for ks in own for T in (0, 1, 2)]
        fill = [(T, ks) for T in (3, 4, 5) for ks in own][:max(0, nfirst - len(first))]
        seq = first + fill + [(T, ks) for T in (0, 1, 2) for ks in rest]
        seq += [(T, ks) for T in (3, 4, 5) for ks in rest + own if (T, ks) not in fill]
        ldspos = cfg.get('p2_lds', [3, 7, 11, 15, 19, 23, 27, 31, 35, 39, 43, 47, 50, 53, 56, 58])
    assert len(ldspos) == P2_NL
    where = {}
    regops = [i for i in range(60) if i not in ldspos]
    for n, i in enumerate(regops):
        where[seq[i]] = ('a', 8 * n) if n < 32 else ('v', P2_PVW + 8 * (n - 32))
    assert P2_PVW + 8 * (len(regops) - 32) <= 252
    for n, i in enumerate(ldspos): where[seq[i]] = ('l', n)
    return own, rest, seq, ldspos, where

def p_plan(w, cfg=None):
    if cfg and cfg.get('p2'): return p_plan2(w, cfg)
    own = OWN[w]; rest = [ks for ks in range(10) if ks not in own]
    order1 = own + rest
    seq = [(T, ks) for ks in order1 for T in (0, 1, 2)] + [(T, ks) for T in (3, 4, 5) for ks in range(10)]
    ldspos = list(range(9, 30, 2)) + [44, 48, 52, 56]
    assert len(ldspos) == PL_NL
    where = {}
    regops = [i for i in range(60) if i not in ldspos]
    for n, i in enumerate(regops):
        where[seq[i]] = ('a', 8 * n) if n < 32 else ('v', PVW + 8 * (n - 32))
    assert PVW + 8 * (len(regops) - 32) <= 254
    for n, i in enumerate(ldspos): where[seq[i]] = ('l', n)
    return own, rest, seq, ldspos, where

def p_setup_lanes(k):
    k(f"v_lshlrev_b32 v{V_L16}, 4, v0")
    k("v_and_b32 v16, 8, v0")
    k("v_cmp_eq_u32 vcc, 0, v16")
    k("v_mov_b32 v17, 0xeeeeeeee")
    k("v_mov_b32 v18, 0x44444444")
    k(f"v_cndmask_b32 v{V_IDX}, v17, v18, vcc")

def gen_p_wave(k, w, cfg):
    own, rest, seq, ldspos, where = p_plan(w, cfg)
    L = lambda s: k.ref(f"p{w}_{s}")
    lab = lambda s: k.lab(f"p{w}_{s}")
    bail = k.ref('bail')
    lq = LQ(k)
    lab('start')
    k("v_lshrrev_b32 v16, 4, v0")
    k("v_and_b32 v17, 15, v0")
    k("v_and_b32 v18, 1, v16")
    k("v_lshlrev_b32 v18, 2, v18")
    k("v_lshrrev_b32 v19, 1, v16")
    k("v_lshl_add_u32 v18, v19, 1, v18")
    k(f"v_mul_u32_u24 v18, {PL_STR}, v18")
    k("v_lshl_add_u32 v18, v17, 1, v18")
    k(f"v_add_u32 v{V_IW}, {PL_QI + 96 * w}, v18")
    k("v_and_b32 v18, 7, v0")
    k(f"v_mul_u32_u24 v18, {PL_STR}, v18")
    k("v_lshrrev_b32 v19, 3, v0")
    k("v_lshl_add_u32 v18, v19, 4, v18")
    k(f"v_add_u32 v{V_QR}, {PL_QI}, v18")
    k("v_and_b32 v18, 7, v0")
    k(f"v_mul_u32_u24 v18, {PL_STR}, v18")
    k("v_lshl_add_u32 v18, v16, 5, v18")
    k(f"v_add_u32 v{V_KR}, {PL_KI}, v18")
    k("v_lshrrev_b32 v18, 1, v16")
    k("v_lshlrev_b32 v18, 10, v18")
    k("v_and_b32 v19, 31, v0")
    k("v_lshl_add_u32 v18, v19, 4, v18")
    k(f"v_add_u32 v{V_SPR}, {PL_SP + 4 * w}, v18")
    k(f"v_add_u32 v{V_SPW}, {PL_SP + 1024 * w}, v{V_L16}")
    k("v_lshrrev_b32 v18, 1, v16")
    k("v_lshlrev_b32 v18, 1, v18")
    k("v_lshrrev_b32 v19, 3, v17")
    k("v_add3_u32 v18, v18, v19, 1")
    k("v_lshrrev_b32 v19, 1, v18")
    k("v_lshlrev_b32 v19, 14, v19")
    k("v_and_b32 v18, 1, v18")
    k("v_lshl_add_u32 v18, v18, 12, v19")
    k("v_and_b32 v19, 1, v16")
    k("v_lshlrev_b32 v19, 4, v19")
    k(f"v_add_u32 v19, {32 * w}, v19")
    k(f"s_lshl_b32 s{S_T}, s{S_ROLE}, 7")
    k(f"v_add_u32 v{V_PM}, s{S_T}, v19")
    k(f"v_add_u32 v{V_PX}, v{V_PM}, v18")
    if cfg.get('pgather'):
        k("v_lshrrev_b32 v18, 1, v16")
        k("v_lshlrev_b32 v18, 1, v18")
        k("v_lshrrev_b32 v20, 3, v17")
        k("v_add3_u32 v18, v18, v20, 1")
        k(f"v_add_u32 v{V_PM}, {PL_STG}, v19")
        k(f"v_lshl_add_u32 v{V_PX}, v18, 7, v{V_PM}")
        k("v_lshrrev_b32 v18, 3, v0")
        k("v_lshrrev_b32 v19, 1, v18")
        k("v_lshlrev_b32 v19, 14, v19")
        k("v_and_b32 v18, 1, v18")
        k("v_lshl_add_u32 v18, v18, 12, v19")
        k("v_and_b32 v19, 7, v0")
        k("v_lshl_add_u32 v18, v19, 4, v18")
        k(f"v_add_u32 v252, s{S_T}, v18")
    k(f"v_lshlrev_b32 v18, 4, v17")
    k("v_lshl_add_u32 v18, v16, 10, v18")
    k(f"v_add_u32 v{V_KXO}, {16 * (w & 1) * 16}, v18")
    k(f"v_add_u32 v18, {64 * w}, v0")
    k("v_mul_u32_u24 v19, 2731, v18")
    k("v_lshrrev_b32 v19, 16, v19")
    k("v_mul_u32_u24 v20, 24, v19")
    k("v_sub_u32 v20, v18, v20")
    k(f"v_mul_u32_u24 v21, {PL_STR}, v19")
    k("v_lshl_add_u32 v21, v20, 4, v21")
    k(f"v_add_u32 v{V_KML}, {PL_KI}, v21")
    k("v_lshlrev_b32 v21, 4, v19")
    k(f"v_lshl_add_u32 v{V_KMG}, v20, 7, v21")
    k("v_and_b32 v18, 0x28, v0")
    k("v_cmp_eq_u32 vcc, 0, v18")
    k("v_mov_b32 v18, 1.0")
    k("v_mov_b32 v19, 0")
    k(f"v_cndmask_b32 v{V_MASKF}, v19, v18, vcc")
    k(f"v_add_u32 v{V_WLA}, {PL_WL + w * PL_NL * 2048}, v{V_L16}")
    k(f"v_add_u32 v{V_MIA}, {PL_MEMI}, v{V_L16}")
    k(f"s_mul_i32 s{S_KX}, s{S_ROLE}, {KX_SH}")
    k(f"s_add_u32 s{S_KX}, s{S_KX}, {KX}")
    k(f"s_mul_i32 s{S_KM}, s{S_ROLE}, {KM_SH}")
    k(f"s_add_u32 s{S_KM}, s{S_KM}, {KM}")
    if cfg.get('ovl'):
        k(f"s_mul_i32 s{S_T}, s{S_ROLE}, 6")
        k(f"s_add_u32 s{S_T+1}, s{S_T}, 5")
        k(f"s_lshr_b32 s{S_T}, s{S_T}, 3")
        k(f"s_lshr_b32 s{S_T+1}, s{S_T+1}, 3")
        k(f"s_add_u32 s{S_T}, s{S_T}, 80"); k(f"s_add_u32 s{S_T+1}, s{S_T+1}, 80")
        k(f"s_lshl_b32 s{S_T}, s{S_T}, 7"); k(f"s_lshl_b32 s{S_T+1}, s{S_T+1}, 7")
        k(f"v_mov_b32 v{V_GF}, s{S_T+1}")
        k(f"v_mov_b32 v{V_T0}, s{S_T}")
        k("v_cmp_eq_u32 vcc, 0, v0")
        k("s_nop 1")
        k(f"v_cndmask_b32 v{V_GF}, v{V_GF}, v{V_T0}, vcc")
        k(f"s_mov_b32 s{S_GK}, 0")
    k(f"s_mul_i32 s{S_T}, s{S_ROLE}, 491520")
    k(f"s_add_u32 s{S_T}, s{S_T}, {WP + w * 122880}")
    WIN = cfg.get('winp', cfg.get('win'))
    nld = [0]
    def wload(dst, T, ks):
        idx = T * 10 + ks
        k(f"s_add_u32 s{S_T+1}, s{S_T}, {idx * 2048}")
        for hi in range(2):
            k(f"buffer_load_dwordx4 {dst(hi)}, v{V_L16}, {srd}, s{S_T+1} offen offset:{hi*1024}")
            nld[0] += 1
            if WIN and nld[0] > WIN: k(f"s_waitcnt vmcnt({WIN})")
    lops = [(op, wh[1]) for op, wh in where.items() if wh[0] == 'l']
    SEMI = cfg.get('na') == 4
    rops = [(op, wh) for op, wh in where.items() if wh[0] != 'l' and not (SEMI and wh[0] == 'a' and wh[1] // 8 < cfg.get('npf', 64) // 2)]
    for (T, ks), slot in lops:
        wload(lambda hi: vr(16 + 8 * slot + 4 * hi, 4), T, ks)
    nre = 0
    for (T, ks), wh in rops[:16]:
        wload((lambda hi, wh=wh: (ar if wh[0] == 'a' else vr)(wh[1] + 4 * hi, 4)), T, ks)
    k(f"s_waitcnt vmcnt({2 * len(rops[:16])})")
    for (T, ks), slot in lops:
        for hi in range(2):
            k(f"ds_write_b128 v{V_WLA}, {vr(16 + 8 * slot + 4 * hi, 4)} offset:{slot * 2048 + hi * 1024}")
    for (T, ks), wh in rops[16:]:
        wload((lambda hi, wh=wh: (ar if wh[0] == 'a' else vr)(wh[1] + 4 * hi, 4)), T, ks)
    k("s_waitcnt lgkmcnt(0)")
    kxset = [0, 1] if w < 2 else [2]
    SC1 = " sc1" if cfg.get('ovl') else ""
    npf = [0]
    def kx_prefetch(step_s):
        npf[0] += 1
        wait_progress(k, cfg, f"p{w}_gw{npf[0]}", step_s, V_GF, 2, V_T0)
        k(f"s_mul_i32 s{S_T}, s{step_s}, {32 * KX_SH}")
        k(f"s_add_u32 s{S_T}, s{S_T}, s{S_KX}")
        for u, ks in enumerate(kxset):
            k(f"s_add_u32 s{S_T+1}, s{S_T}, {ks * 4096}")
            for hi in range(2):
                k(f"buffer_load_dwordx4 {vr(KXF + 8 * u + 4 * hi, 4)}, v{V_KXO}, {srd}, s{S_T+1} offen offset:{hi * 512}{SC1}")
    def tb_read(n):
        for hi in range(2):
            lq.ds(f"ds_read_b128 {vr(TB + 8 * (n % 4) + 4 * hi, 4)}, v{V_WLA} offset:{n * 2048 + hi * 1024}", ('tb', n))
    def zero_d():
        for r in range(PD, PD + 32): k(f"v_mov_b32 v{r}, 0")
    k(f"s_mov_b32 s{S_STEP}, 0")
    kx_prefetch(S_STEP)
    zero_d()
    for n in range(4): tb_read(n)
    lq.all()
    lab('step')
    slot_base(k, S_SB, S_STEP, S_T)
    for u, ks in enumerate(own):
        k(f"s_add_u32 s{S_T+2+u}, s{S_SB}, {physmap(M_LOG + 1024 * ks)}")
    if cfg.get('mark') is not None and w == 0:
        k(f"s_lshr_b32 s{S_MK}, s{S_ROLE}, 1")
        k(f"s_lshl_b32 s{S_MK}, s{S_MK}, 7")
        k(f"s_and_b32 s{S_T}, s{S_ROLE}, 1")
        k(f"s_lshl_b32 s{S_T}, s{S_T}, 2")
        k(f"s_add_u32 s{S_MK}, s{S_MK}, s{S_T}")
        k(f"s_add_u32 s{S_MK}, s{S_MK}, s{S_SB}")
        k(f"s_add_u32 s{S_MK}, s{S_MK}, {physmap(MARK_LOG)}")
    stamp(k, cfg, 0)
    if cfg.get('cpoll', 0):
        poll_cont(k, f"p{w}_mp",
                  [lambda u=u, ks=ks: k(f"buffer_load_dwordx4 {vr(AF + 4 * ks, 4)}, v{V_L16}, {srd}, s{S_T+2+u} offen sc1") for u, ks in enumerate(own)],
                  [[AF + 4 * ks + j for j in range(4)] for ks in own],
                  [lambda ks=ks: k(f"ds_write_b128 v{V_MIA}, {vr(AF + 4 * ks, 4)} offset:{ks * 1024}") for ks in own],
                  QF, 252, bail)
    else:
        lab('poll')
        for u, ks in enumerate(own):
            k(f"buffer_load_dwordx4 {vr(AF + 4 * ks, 4)}, v{V_L16}, {srd}, s{S_T+2+u} offen sc1")
        k("s_waitcnt vmcnt(0)")
        for ks in own:
            k(f"ds_write_b128 v{V_MIA}, {vr(AF + 4 * ks, 4)} offset:{ks * 1024}")
        check_valid(k, [AF + 4 * ks + j for ks in own for j in range(4)], QF)
        spin_check(k, bail)
        k(f"s_cbranch_vccnz {L('poll')}")
    lq.all()
    k("s_barrier")
    stamp(k, cfg, 1)
    if w == 0: rt(k, cfg, 0)
    for ks in rest:
        lq.ds(f"ds_read_b128 {vr(AF + 4 * ks, 4)}, v{V_MIA} offset:{ks * 1024}", ('af', ks))
    def post_tile(T, base):
        d = PD + 4 * T
        col = 32 * (T % 3)
        return [
            lambda: k(f"v_permlane32_swap_b32 v{d}, v{d+2}"),
            lambda: k(f"v_permlane32_swap_b32 v{d+1}, v{d+3}"),
            lambda: k(f"v_add_f32 v{d}, v{d}, v{d+2}"),
            lambda: k(f"v_add_f32 v{d+1}, v{d+1}, v{d+3}"),
            lambda: k(f"v_cvt_pk_bf16_f32 v{d}, v{d}, v{d+1}"),
            lambda: lq.ds(f"ds_write_b16 v{V_IW}, v{d} offset:{base + col}", ('img', T)),
            lambda: lq.ds(f"ds_write_b16_d16_hi v{V_IW}, v{d} offset:{base + col + PL_STR}", ('img', T)),
        ]
    MK = cfg.get('mark', None)
    def mark():
        if w != 0: return
        k(f"buffer_store_dword v{V_L16}, off, {srd}, s{S_MK} sc1")
    side = {i: [] for i in range(60)}
    if isinstance(MK, int): side[MK].append(mark)
    def put(items, start, per=2):
        i = start
        for it in items:
            while len(side[i]) >= per: i += 1
            side[i].append(it)
        return i
    KO = PL_KI - PL_QI
    e = put(post_tile(0, 0) + post_tile(1, 0) + post_tile(2, 0), 31)
    b1 = e + 2
    side[b1].append(lambda: (lq.wait(('img', 2)), k("s_barrier")))
    for ks in range(3):
        side[b1 + (ks > 0)].append(lambda ks=ks: lq.ds(f"ds_read_b128 {vr(QF + 4 * ks, 4)}, v{V_QR} offset:{ks * 128}", ('qf', ks)))
    put(post_tile(3, KO), b1 + 2)
    sx = b1 + 6
    def smx():
        lq.wait(('qf', 2))
        for u, ks in enumerate(kxset):
            k(f"v_smfmac_f32_16x16x64_bf16 {vr(PDX, 4)}, {vr(QF + 4 * ks, 4)}, {vr(KXF + 8 * u, 8)}, v{V_IDX}")
    side[sx].append(smx)
    put(post_tile(4, KO), 52)
    side[min(sx + 4, 58)].append(lambda: lq.ds(f"ds_write_b128 v{V_SPW}, {vr(PDX, 4)}", 'sp'))
    for i, (T, ks) in enumerate(seq):
        wh = where[(T, ks)]
        if i < 30 and ks in rest: lq.wait(('af', ks))
        if wh[0] == 'l':
            lq.wait(('tb', wh[1]))
            b = vr(TB + 8 * (wh[1] % 4), 8)
        else:
            b = (ar if wh[0] == 'a' else vr)(wh[1], 8)
        k(f"v_smfmac_f32_16x16x64_bf16 {vr(PD + 4 * T, 4)}, {vr(AF + 4 * ks, 4)}, {b}, v{V_IDX}")
        if wh[0] == 'l' and wh[1] + 4 < PL_NL:
            tb_read(wh[1] + 4)
        for it in side[i]: it()
        if i == 29: stamp(k, cfg, 2)
        if i == b1: stamp(k, cfg, 3)
    stamp(k, cfg, 4)
    k("s_nop 7")
    for it in post_tile(5, KO): it()
    lq.all()
    k("s_barrier")
    if MK == 'b3': mark()
    stamp(k, cfg, 5)
    KF = AF
    X0 = AF + 24
    lq.ds(f"ds_read2st64_b32 {vr(X0, 2)}, v{V_SPR} offset0:0 offset1:2", 'sp0')
    lq.ds(f"ds_read2st64_b32 {vr(X0 + 2, 2)}, v{V_SPR} offset0:8 offset1:10", 'sp1')
    for ks in range(3):
        for hi in range(2):
            lq.ds(f"ds_read_b128 {vr(KF + 8 * ks + 4 * hi, 4)}, v{V_KR} offset:{ks * 128 + hi * 16}", ('kf', ks))
    sx_, mx, t, u, sm, ex, em, tot = X0 + 4, X0 + 5, X0 + 6, X0 + 7, X0 + 8, X0 + 9, X0 + 10, X0 + 11
    lq.wait('sp1')
    k(f"v_add_f32 v{X0}, v{X0}, v{X0+1}")
    k(f"v_add_f32 v{X0+2}, v{X0+2}, v{X0+3}")
    k(f"v_add_f32 v{sx_}, v{X0}, v{X0+2}")
    k(f"v_mul_f32 v{sx_}, {hexf(CSC)}, v{sx_}")
    for ks in range(3):
        lq.wait(('kf', ks))
        k(f"v_smfmac_f32_16x16x64_bf16 {vr(PDM, 4)}, {vr(QF + 4 * ks, 4)}, {vr(KF + 8 * ks, 8)}, v{V_IDX}")
    if MK == 's6': mark()
    stamp(k, cfg, 6)
    def dpp(op, dst, src, ctl):
        k(f"{op} v{dst}, v{src}, v{src} {ctl} row_mask:0xf bank_mask:0xf")
    dpp("v_max_f32_dpp", mx, sx_, "row_ror:8"); k("s_nop 1")
    dpp("v_max_f32_dpp", mx, mx, "row_ror:4"); k("s_nop 1")
    dpp("v_max_f32_dpp", mx, mx, "row_ror:2"); k("s_nop 1")
    dpp("v_max_f32_dpp", mx, mx, "row_ror:1")
    k(f"v_mov_b32 v{u}, v{mx}")
    k("s_nop 1")
    k(f"v_permlane32_swap_b32 v{mx}, v{u}")
    k(f"v_max_f32 v{mx}, v{mx}, v{u}")
    dm = PDM + w
    k(f"v_mov_b32 v{u}, v{dm}")
    k("s_nop 1")
    k(f"v_permlane32_swap_b32 v{dm}, v{u}")
    k(f"v_add_f32 v{sm}, v{dm}, v{u}")
    k(f"v_mul_f32 v{sm}, {hexf(CSC)}, v{sm}")
    k("s_nop 1")
    dpp("v_max_f32_dpp", t, sm, "row_ror:4"); k("s_nop 1")
    dpp("v_max_f32_dpp", t, t, "row_ror:2"); k("s_nop 1")
    dpp("v_max_f32_dpp", t, t, "row_ror:1")
    k(f"v_max_f32 v{mx}, v{mx}, v{t}")
    k(f"v_sub_f32 v{ex}, v{sx_}, v{mx}")
    k(f"v_sub_f32 v{em}, v{sm}, v{mx}")
    k(f"v_exp_f32 v{ex}, v{ex}")
    k(f"v_exp_f32 v{em}, v{em}")
    k("s_nop 0")
    k(f"v_fma_f32 v{tot}, v{em}, v{V_MASKF}, v{ex}")
    k("s_nop 1")
    dpp("v_add_f32_dpp", tot, tot, "row_ror:8"); k("s_nop 1")
    dpp("v_add_f32_dpp", tot, tot, "row_ror:4"); k("s_nop 1")
    dpp("v_add_f32_dpp", tot, tot, "row_ror:2"); k("s_nop 1")
    dpp("v_add_f32_dpp", tot, tot, "row_ror:1")
    k(f"v_mov_b32 v{u}, v{tot}")
    k("s_nop 1")
    k(f"v_permlane32_swap_b32 v{tot}, v{u}")
    k(f"v_add_f32 v{tot}, v{tot}, v{u}")
    k(f"v_rcp_f32 v{tot}, v{tot}")
    k("s_nop 0")
    k(f"v_mul_f32 v{ex}, v{ex}, v{tot}")
    k(f"v_mul_f32 v{em}, v{em}, v{tot}")
    ox, om = KF, KF + 4
    k("s_nop 0")
    k(f"v_mov_b32_dpp v{t}, v{ex} quad_perm:[1,0,3,2] row_mask:0xf bank_mask:0xf")
    k(f"v_mov_b32_dpp v{u}, v{em} quad_perm:[1,0,3,2] row_mask:0xf bank_mask:0xf")
    k(f"v_cvt_pk_bf16_f32 v{ox}, v{ex}, v{t}")
    k(f"v_cvt_pk_bf16_f32 v{om}, v{em}, v{u}")
    k("s_nop 0")
    for j in range(1, 4):
        k(f"v_mov_b32_dpp v{ox+j}, v{ox} row_shl:{2*j} row_mask:0xf bank_mask:0xf")
    for j in range(1, 4):
        k(f"v_mov_b32_dpp v{om+j}, v{om} row_shl:{2*j} row_mask:0xf bank_mask:0xf")
    if cfg.get('pgather'):
        k(f"s_mov_b64 exec, s[{S_M8}:{S_M8+1}]")
        k(f"ds_write_b128 v{V_PX}, {vr(ox, 4)}")
        k(f"s_mov_b64 exec, s[{S_M2}:{S_M2+1}]")
        k(f"ds_write_b128 v{V_PM}, {vr(om, 4)}")
        k("s_mov_b64 exec, -1")
        k("s_waitcnt lgkmcnt(0)")
        k("s_barrier")
        if w == 0:
            k("s_mov_b32 exec_hi, 0xff")
            k(f"ds_read_b128 {vr(ox, 4)}, v{V_SPW} offset:4096")
            k("s_waitcnt lgkmcnt(0)")
            k(f"buffer_store_dwordx4 {vr(ox, 4)}, v252, {srd}, s{S_SB} offen sc1")
            k("s_mov_b64 exec, -1")
    else:
        k(f"s_mov_b64 exec, s[{S_M8}:{S_M8+1}]")
        k(f"buffer_store_dwordx4 {vr(ox, 4)}, v{V_PX}, {srd}, s{S_SB} offen sc1")
        k(f"s_mov_b64 exec, s[{S_M2}:{S_M2+1}]")
        k(f"buffer_store_dwordx4 {vr(om, 4)}, v{V_PM}, {srd}, s{S_SB} offen sc1")
        k("s_mov_b64 exec, -1")
    stamp(k, cfg, 7)
    stamp(k, cfg, 8, True)
    if w == 0: rt(k, cfg, 1)
    if w < 3:
        lq.ds(f"ds_read_b128 {vr(X0, 4)}, v{V_KML}", 'km')
    k(f"s_add_u32 s{S_T+8}, s{S_STEP}, 1")
    k(f"s_min_u32 s{S_T+8}, s{S_T+8}, {NSTEP-1}")
    kx_prefetch(S_T + 8)
    zero_d()
    if w < 3:
        lq.wait('km')
        k(f"s_mul_i32 s{S_T}, s{S_STEP}, {32 * KM_SH}")
        k(f"s_add_u32 s{S_T}, s{S_T}, s{S_KM}")
        k(f"buffer_store_dwordx4 {vr(X0, 4)}, v{V_KMG}, {srd}, s{S_T} offen{SC1}")
    if w == 3 and cfg.get('ovl'):
        k(f"s_lshl_b32 s{S_T}, s{S_ROLE}, 7")
        k(f"s_add_u32 s{S_T}, s{S_T}, {FL_PF}")
        flag_store(k, cfg, S_T, S_STEP, V_T0, V_T1)
    for n in range(4): tb_read(n)
    lq.all()
    if cfg.get('pack', 0):
        k("s_waitcnt vmcnt(0)")
        k("s_barrier")
    if w == 0: rt_flush(k, cfg, 0)
    if w == cfg.get('stamp_wave', 0): stamp_flush(k, cfg, 9, cfg.get('stamp_p', 0))
    k(f"s_add_u32 s{S_STEP}, s{S_STEP}, 1")
    k(f"s_cmp_lt_u32 s{S_STEP}, {NSTEP}")
    k(f"s_cbranch_scc1 {L('step')}")
    if cfg.get('ovl'):
        k("s_waitcnt vmcnt(0)")
        k("s_barrier")
        if w == 3:
            k(f"s_lshl_b32 s{S_T}, s{S_ROLE}, 7")
            k(f"s_add_u32 s{S_T}, s{S_T}, {FL_PF}")
            flag_store(k, cfg, S_T, S_STEP, V_T0, V_T1)
    k(f"s_branch {k.ref('end')}")

def p2_sched(k, w, cfg, lq, own, rest, seq, ldspos, where, tb_read_items, fix=None):
    KXF = P2_KXF; TB = P2_TB; NL = P2_NL
    kt = w & 1; tp = w >> 1
    KO = P2_KI - P2_QI
    NB0 = cfg.get('p2_b0', 4)
    LR = cfg.get('p2_lr', 6)
    LW = cfg.get('p2_lw', 4)
    PR = cfg.get('p2_pr') or []
    BIG = 100
    ds = [None] * BIG; va = [None] * BIG; bar = [None] * BIG
    def first(start, ok):
        p = start
        while not ok(p): p += 1
        return p
    def put_r(fn, start):
        p = first(start, lambda p: ds[p] is None and bar[p] is None); ds[p] = ('r', fn); return p
    def put_v(fn, start):
        p = first(start, lambda p: va[p] is None and not (ds[p] and ds[p][0] == 'w')); va[p] = fn; return p
    def put_w(fn, start):
        p = first(start, lambda p: ds[p] is None and va[p] is None and bar[p] is None); ds[p] = ('w', fn); return p
    def put_b(tag, start, fn=None):
        p = first(start, lambda p: ds[p] is None and bar[p] is None); bar[p] = (tag, fn); return p
    def post(T, start):
        d = PD + 4 * T; col = 128 * (T % 3); base = 0 if T < 3 else KO
        p = put_v(lambda: k(f"v_add_f32 v{d}, v{d}, v{d+2}"), start)
        p = put_v(lambda: k(f"v_add_f32 v{d+1}, v{d+1}, v{d+3}"), p + 1)
        p = put_v(lambda: k(f"v_cvt_pk_bf16_f32 v{d}, v{d}, v{d+1}"), p + 1)
        p = put_w(lambda: lq.ds(f"ds_write_b16 v{V_IW}, v{d} offset:{base + col}", ('img', T)), p + 1)
        p = put_w(lambda: lq.ds(f"ds_write_b16_d16_hi v{V_IW}, v{d} offset:{base + col + PL_STR}", ('img', T)), p + 1)
        return p
    def dpp(op, dst, src, ctl):
        k(f"{op} v{dst}, v{src}, v{src} {ctl} row_mask:0xf bank_mask:0xf")
    last = {T: max(i for i, op in enumerate(seq) if op[0] == T) for T in range(6)}
    put_b('mw', NB0, lambda: (stamp(k, cfg, 1), rt(k, cfg, 0) if w == 0 else None))
    p = NB0
    afpos = {}
    for ks in rest:
        p = put_r(lambda ks=ks: lq.ds(f"ds_read_b128 {vr(AF + 4 * ks, 4)}, v{V_MIA} offset:{ks * 1024}", ('af', ks)), p + 1); afpos[ks] = p
    for ks in rest:
        u = min(i for i, op in enumerate(seq) if op[1] == ks)
        assert u - afpos[ks] >= LR - 1, (w, ks, u, afpos[ks])
    e2 = post(2, last[2] + 2)
    e0 = post(0, last[0] + 2); e1 = post(1, last[1] + 2)
    b1 = put_b(('img', 2), max(e2 + LW, e0 + LW, e1 + LW, fix['b1'] if fix else 0))
    p = b1; qpos = []
    for ks in range(3):
        p = put_r(lambda ks=ks: lq.ds(f"ds_read_b128 {vr(QF + 4 * ks, 4)}, v{V_QR} offset:{ks * 128}", ('qf', ks)), p + 1); qpos.append(p)
    sxi = qpos[0] + LR - 1
    assert qpos[2] + LR <= sxi + 3 + 1
    mf = []
    for i, op in enumerate(seq):
        mf.append(('m', i))
        if i == sxi: mf += [('x', 0), ('x', 1), ('x', 2)]
    NP = len(mf)
    pos = lambda i: i if i <= sxi else i + 3
    e4 = post(4, pos(last[4]) + 2)
    e3 = post(3, pos(last[3]) + 2)
    XS, XM, XL, XE = PD, PD + 2, PD + 3, PD + 4
    xch = [
        lambda: k(f"v_add_f32 v{XS}, v{PDX + tp}, v{PDX + tp + 2}"), lambda: k(f"v_mul_f32 v{XS}, {hexf(CSC)}, v{XS}"),
        lambda: dpp("v_max_f32_dpp", XM, XS, "row_ror:8"), lambda: dpp("v_max_f32_dpp", XM, XM, "row_ror:4"),
        lambda: dpp("v_max_f32_dpp", XM, XM, "row_ror:2"), lambda: dpp("v_max_f32_dpp", XM, XM, "row_ror:1"),
        lambda: k(f"v_sub_f32 v{XE}, v{XS}, v{XM}"), lambda: k(f"v_exp_f32 v{XE}, v{XE}"),
        lambda: dpp("v_add_f32_dpp", XL, XE, "row_ror:8"), lambda: dpp("v_add_f32_dpp", XL, XL, "row_ror:4"),
        lambda: dpp("v_add_f32_dpp", XL, XL, "row_ror:2"), lambda: dpp("v_add_f32_dpp", XL, XL, "row_ror:1")]
    p = sxi + 3 + 1
    late = []
    for fn in xch:
        p = put_v(fn, p + 1)
        if p >= NP: late.append(fn); va[p] = None
    bk = put_b(('img', 4), max(max(e4, e3) + cfg.get('p2_lwk', LW), fix['bk'] if fix and 'bk' in fix else 0))
    assert max(e3, e4) < NP, (w, e3, e4)
    if not fix or 'bk' not in fix: return dict(b1=b1, bk=bk)
    assert b1 == fix['b1'] and bk == fix['bk'], (w, b1, bk, fix)
    kin = bk < NP
    kfr = [lambda ks=ks, hi=hi: lq.ds(f"ds_read_b128 {vr(KXF + 8 * ks + 4 * hi, 4)}, v{V_KR} offset:{ks * 128 + hi * 16}", ('kf', ks)) for ks in range(3) for hi in range(2)]
    klate = []
    if kin:
        p = bk
        for fn in kfr[:4]:
            p = put_r(fn, p + 1)
            if p >= NP: klate.append(fn); ds[p] = None
    else: bar[bk] = None
    rdat = cfg.get('p2_rd')
    for n in range(NL - 4):
        p = max(pos(ldspos[n]), rdat[n] if rdat else 0) - 1
        for fn in tb_read_items(n + 4): p = put_r(fn, p + 1)
        assert p + LR <= pos(ldspos[n + 4]), (w, n, p, pos(ldspos[n + 4]))
    if cfg.get('p2_dump') == w:
        print("wave", w, "last", last, "b1", b1, "sxi", sxi, "bk", bk, "late", len(late), "klate", len(klate))
        print("".join((ds[p][0] if ds[p] else ('B' if bar[p] else '.')) for p in range(NP)))
        print("".join(('v' if va[p] else '.') for p in range(NP)))
    def need(m):
        if m[0] == 'x': return [('qf', m[1])]
        T, ks = seq[m[1]]; wh = where[(T, ks)]; t = []
        if ks in rest: t.append(('af', ks))
        if wh[0] == 'l': t.append(('tb', wh[1]))
        return t
    for p, m in enumerate(mf):
        if m[0] == 'x':
            k(f"v_smfmac_f32_16x16x64_bf16 {vr(PDX, 4)}, {vr(QF + 4 * m[1], 4)}, {vr(KXF + 8 * m[1], 8)}, v{V_IDX}")
        else:
            T, ks = seq[m[1]]; wh = where[(T, ks)]
            b = vr(TB + 8 * (wh[1] % 4), 8) if wh[0] == 'l' else (ar if wh[0] == 'a' else vr)(wh[1], 8)
            k(f"v_smfmac_f32_16x16x64_bf16 {vr(PD + 4 * T, 4)}, {vr(AF + 4 * ks, 4)}, {b}, v{V_IDX}")
        tags = need(mf[p + 1]) if p + 1 < NP else []
        if bar[p]: tags = tags + [bar[p][0]]
        lq.wait_many(tags)
        if bar[p]:
            k("s_barrier")
            if bar[p][1]: bar[p][1]()
        if ds[p]: ds[p][1]()
        if va[p]: va[p]()
        if p in PR: stamp(k, cfg, 2 + PR.index(p))
    if len(PR) < 3: stamp(k, cfg, 4)
    ns = 0
    for fn in klate: fn(); ns += 1
    for n, fn in enumerate(late):
        if n == 0 and ns == 0: k("s_nop 0"); ns += 1
        fn(); ns += 1
        if n + 1 < len(late): k("s_nop 1"); ns += 2
    if ns < 8: k(f"s_nop {7 - ns}")
    d = PD + 20
    k(f"v_add_f32 v{d}, v{d}, v{d+2}")
    k(f"v_add_f32 v{d+1}, v{d+1}, v{d+3}")
    k(f"v_cvt_pk_bf16_f32 v{d}, v{d}, v{d+1}")
    lq.ds(f"ds_write_b16 v{V_IW}, v{d} offset:{KO + 256}", ('img', 5))
    lq.ds(f"ds_write_b16_d16_hi v{V_IW}, v{d} offset:{KO + 256 + PL_STR}", ('img', 5))
    lq.ds(f"ds_write_b64 v{V_ST8}, {vr(XM, 2)} offset:{512 * w}", 'st')
    smm = lambda ks: k(f"v_smfmac_f32_16x16x64_bf16 {vr(PDM, 4)}, {vr(QF + 4 * ks, 4)}, {vr(KXF + 8 * ks, 8)}, v{V_IDX}")
    if kin:
        for ks in range(2):
            lq.wait(('kf', ks)); smm(ks)
    lq.all()
    k("s_barrier")
    if len(PR) <= 3: stamp(k, cfg, 5)
    OM = AF
    if kin:
        for fn in kfr[4:]: fn()
        lq.ds(f"ds_read_b64 {vr(OM, 2)}, v{V_ST8} offset:{512 * (w ^ 1)}", 'so')
        lq.wait(('kf', 2)); smm(2)
    else:
        for fn in kfr: fn()
        lq.ds(f"ds_read_b64 {vr(OM, 2)}, v{V_ST8} offset:{512 * (w ^ 1)}", 'so')
        for ks in range(3):
            lq.wait(('kf', ks)); smm(ks)
    if len(PR) <= 3: stamp(k, cfg, 6)

def gen_p_wave2(k, w, cfg):
    own, rest, seq, ldspos, where = p_plan2(w, cfg)
    NL = P2_NL; KXF = P2_KXF; TB = P2_TB
    kt = w & 1; tp = w >> 1
    L = lambda s: k.ref(f"p{w}_{s}")
    lab = lambda s: k.lab(f"p{w}_{s}")
    bail = k.ref('bail')
    lq = LQ(k)
    lab('start')
    k("v_lshrrev_b32 v16, 4, v0")
    k("v_and_b32 v17, 15, v0")
    k("v_and_b32 v18, 2, v0")
    k("v_cmp_eq_u32 vcc, 0, v18")
    k("v_mov_b32 v18, 0xeeeeeeee")
    k("v_mov_b32 v19, 0x44444444")
    k(f"v_cndmask_b32 v{V_IDX}, v18, v19, vcc")
    k("v_lshrrev_b32 v20, 2, v17")
    k("v_lshlrev_b32 v20, 1, v20")
    k("v_and_b32 v21, 1, v17")
    k("v_add_u32 v20, v20, v21")
    k("v_bfe_u32 v21, v17, 1, 1")
    k("v_lshl_add_u32 v18, v16, 1, v21")
    k("v_lshlrev_b32 v18, 7, v18")
    k(f"v_lshl_add_u32 v{V_MG}, v20, 4, v18")
    k(f"v_mul_u32_u24 v18, {PL_STR}, v20")
    k("v_lshl_add_u32 v18, v16, 5, v18")
    k("v_lshl_add_u32 v18, v21, 4, v18")
    k(f"v_add_u32 v{V_QR}, {P2_QI}, v18")
    k(f"v_mul_u32_u24 v18, {2 * PL_STR}, v16")
    k("v_lshl_add_u32 v18, v17, 1, v18")
    k(f"v_add_u32 v{V_IW}, {P2_QI + 32 * w}, v18")
    k("v_and_b32 v18, 7, v0")
    k(f"v_mul_u32_u24 v18, {PL_STR}, v18")
    k("v_lshl_add_u32 v18, v16, 5, v18")
    k(f"v_add_u32 v{V_KR}, {P2_KI}, v18")
    k("v_lshlrev_b32 v18, 3, v0")
    k(f"v_add_u32 v{V_ST8}, {P2_ST}, v18")
    k("v_lshlrev_b32 v18, 4, v16")
    k("v_bfe_u32 v19, v17, 1, 2")
    k("v_lshl_add_u32 v18, v19, 2, v18")
    k(f"s_lshl_b32 s{S_T}, s{S_ROLE}, 7")
    k(f"s_add_u32 s{S_T}, s{S_T}, {64 * tp}")
    k(f"v_add_u32 v18, s{S_T}, v18")
    k("v_lshrrev_b32 v19, 3, v17")
    k(f"v_add_u32 v19, {1 + 2 * kt}, v19")
    k("v_lshrrev_b32 v20, 1, v19")
    k("v_lshlrev_b32 v20, 14, v20")
    k("v_and_b32 v19, 1, v19")
    k("v_lshl_add_u32 v19, v19, 12, v20")
    k("v_add_u32 v19, v19, v18")
    k("v_mov_b32 v20, 0x7ffffff0")
    if cfg.get('p2_x4'):
        k("v_and_b32 v21, 7, v0")
        k("v_cmp_eq_u32 vcc, 4, v21")
        k("v_subrev_u32 v21, 8, v18")
        k("s_nop 0")
        k(f"v_cndmask_b32 v{V_PX}, v19, v21, vcc")
    else:
        k("v_and_b32 v21, 1, v0")
        k("v_cmp_eq_u32 vcc, 0, v21")
        k("s_nop 1")
        k(f"v_cndmask_b32 v{V_PX}, v20, v19, vcc")
    k(f"v_and_b32 v21, 0x29, v0")
    k(f"v_cmp_eq_u32 vcc, {32 * kt}, v21")
    k("s_nop 1")
    k(f"v_cndmask_b32 v{V_PM}, v20, v18, vcc")
    k(f"v_lshlrev_b32 v18, 4, v17")
    k("v_lshl_add_u32 v18, v16, 10, v18")
    k(f"v_add_u32 v{V_KXO}, {16 * kt * 16}, v18")
    k(f"v_add_u32 v18, {64 * w}, v0")
    k("v_mul_u32_u24 v19, 2731, v18")
    k("v_lshrrev_b32 v19, 16, v19")
    k("v_mul_u32_u24 v20, 24, v19")
    k("v_sub_u32 v20, v18, v20")
    k(f"v_mul_u32_u24 v21, {PL_STR}, v19")
    k("v_lshl_add_u32 v21, v20, 4, v21")
    k(f"v_add_u32 v{V_KML}, {P2_KI}, v21")
    k("v_lshlrev_b32 v21, 4, v19")
    k(f"v_lshl_add_u32 v{V_KMG}, v20, 7, v21")
    k(f"v_add_u32 v{V_WLA}, {w * NL * 2048}, v{V_L16}")
    k(f"v_add_u32 v{V_MIA}, {P2_MEMI}, v{V_L16}")
    k(f"s_mul_i32 s{S_KX}, s{S_ROLE}, {KX_SH}")
    k(f"s_add_u32 s{S_KX}, s{S_KX}, {KX}")
    k(f"s_mul_i32 s{S_KM}, s{S_ROLE}, {KM_SH}")
    k(f"s_add_u32 s{S_KM}, s{S_KM}, {KM}")
    k(f"s_mul_i32 s{S_T}, s{S_ROLE}, 6")
    k(f"s_add_u32 s{S_T+1}, s{S_T}, 5")
    k(f"s_lshr_b32 s{S_T}, s{S_T}, 3")
    k(f"s_lshr_b32 s{S_T+1}, s{S_T+1}, 3")
    k(f"s_add_u32 s{S_T}, s{S_T}, 80"); k(f"s_add_u32 s{S_T+1}, s{S_T+1}, 80")
    k(f"s_lshl_b32 s{S_T}, s{S_T}, 7"); k(f"s_lshl_b32 s{S_T+1}, s{S_T+1}, 7")
    k(f"v_mov_b32 v{V_GF}, s{S_T+1}")
    k(f"v_mov_b32 v{V_T0}, s{S_T}")
    k("v_cmp_eq_u32 vcc, 0, v0")
    k("s_nop 1")
    k(f"v_cndmask_b32 v{V_GF}, v{V_GF}, v{V_T0}, vcc")
    k(f"s_mov_b32 s{S_GK}, 0")
    k(f"s_mul_i32 s{S_T}, s{S_ROLE}, 491520")
    k(f"s_add_u32 s{S_T}, s{S_T}, {WP + w * 122880}")
    def wload(dst, T, ks):
        idx = T * 10 + ks
        k(f"s_add_u32 s{S_T+1}, s{S_T}, {idx * 2048}")
        for hi in range(2):
            k(f"buffer_load_dwordx4 {dst(hi)}, v{V_L16}, {srd}, s{S_T+1} offen offset:{hi*1024}")
    SEMI = cfg.get('na') == 4
    lops = [(op, wh[1]) for op, wh in where.items() if wh[0] == 'l']
    rops = [(op, wh) for op, wh in where.items() if wh[0] != 'l' and not (SEMI and wh[0] == 'a' and wh[1] // 8 < cfg.get('npf', 64) // 2)]
    for (T, ks), slot in lops:
        wload(lambda hi: vr(16 + 8 * slot + 4 * hi, 4), T, ks)
    for (T, ks), wh in rops[:15]:
        wload((lambda hi, wh=wh: (ar if wh[0] == 'a' else vr)(wh[1] + 4 * hi, 4)), T, ks)
    k(f"s_waitcnt vmcnt({2 * len(rops[:15])})")
    for (T, ks), slot in lops:
        for hi in range(2):
            k(f"ds_write_b128 v{V_WLA}, {vr(16 + 8 * slot + 4 * hi, 4)} offset:{slot * 2048 + hi * 1024}")
    for (T, ks), wh in rops[15:]:
        wload((lambda hi, wh=wh: (ar if wh[0] == 'a' else vr)(wh[1] + 4 * hi, 4)), T, ks)
    k("s_waitcnt lgkmcnt(0)")
    npf = [0]
    def kx_prefetch(step_s):
        npf[0] += 1
        wait_progress(k, cfg, f"p{w}_gw{npf[0]}", step_s, V_GF, 2, V_T0)
        k(f"s_mul_i32 s{S_T}, s{step_s}, {32 * KX_SH}")
        k(f"s_add_u32 s{S_T}, s{S_T}, s{S_KX}")
        for ks in range(3):
            k(f"s_add_u32 s{S_T+1}, s{S_T}, {ks * 4096}")
            for hi in range(2):
                k(f"buffer_load_dwordx4 {vr(KXF + 8 * ks + 4 * hi, 4)}, v{V_KXO}, {srd}, s{S_T+1} offen offset:{hi * 512} sc1")
    def tb_read_items(n):
        return [lambda hi=hi: lq.ds(f"ds_read_b128 {vr(TB + 8 * (n % 4) + 4 * hi, 4)}, v{V_WLA} offset:{n * 2048 + hi * 1024}", ('tb', n)) for hi in range(2)]
    def zero_d():
        for r in range(PD, PD + 32): k(f"v_mov_b32 v{r}, 0")
    wait_par(k, cfg, f"p{w}_par", bail)
    k(f"s_mov_b32 s{S_STEP}, 0")
    kx_prefetch(S_STEP)
    zero_d()
    for n in range(4):
        for it in tb_read_items(n): it()
    lq.all()
    lab('step')
    slot_base(k, S_SB, S_STEP, S_T)
    for u, ks in enumerate(own):
        k(f"s_add_u32 s{S_T+2+u}, s{S_SB}, {physmap(M_LOG + 1024 * ks)}")
    stamp(k, cfg, 0)
    lab('poll')
    for u, ks in enumerate(own):
        k(f"buffer_load_dwordx4 {vr(AF + 4 * ks, 4)}, v{V_L16 if cfg.get('p2_lin') else V_MG}, {srd}, s{S_T+2+u} offen sc1")
    k("s_waitcnt vmcnt(0)")
    for ks in own:
        k(f"ds_write_b128 v{V_MIA}, {vr(AF + 4 * ks, 4)} offset:{ks * 1024}")
    check_valid(k, [AF + 4 * ks + j for ks in own for j in range(4)], QF)
    spin_check(k, bail)
    k(f"s_cbranch_vccnz {L('poll')}")
    lq.q = ['mw']
    def dpp(op, dst, src, ctl):
        k(f"{op} v{dst}, v{src}, v{src} {ctl} row_mask:0xf bank_mask:0xf")
    XS, XM, XL, XE = PD, PD + 2, PD + 3, PD + 4
    OM, OL = AF, AF + 1
    if cfg.get('p2s'):
        def dry(fix):
            r = []
            for w_ in range(4):
                o_, r_, s_, l_, wh_ = p_plan2(w_, cfg)
                r.append(p2_sched(k, w_, cfg, lq, o_, r_, s_, l_, wh_, tb_read_items, fix))
            return r
        fix = dict(b1=max(x['b1'] for x in dry(None)))
        fix['bk'] = max(x['bk'] for x in dry(fix))
        p2_sched(k, w, cfg, lq, own, rest, seq, ldspos, where, tb_read_items, fix)
    else:
        NB0 = cfg.get('p2_b0', 2)
        side = {i: [] for i in range(-1, 60)}
        def put(items, start, per=2):
            i = start
            for it in items:
                while len(side[i]) >= per: i += 1
                side[i].append(it)
            return i
        def b0():
            lq.all()
            k("s_barrier")
            stamp(k, cfg, 1)
            if w == 0: rt(k, cfg, 0)
        side[NB0 - 1].append(b0)
        rd = [lambda ks=ks: lq.ds(f"ds_read_b128 {vr(AF + 4 * ks, 4)}, v{V_MIA} offset:{ks * 1024}", ('af', ks)) for ks in rest]
        for it in rd[:3]: side[NB0 - 1].append(it)
        put(rd[3:], NB0)
        def post_tile(T, base):
            d = PD + 4 * T
            col = 128 * (T % 3)
            return [
                lambda: k(f"v_add_f32 v{d}, v{d}, v{d+2}"),
                lambda: k(f"v_add_f32 v{d+1}, v{d+1}, v{d+3}"),
                lambda: k(f"v_cvt_pk_bf16_f32 v{d}, v{d}, v{d+1}"),
                lambda: lq.ds(f"ds_write_b16 v{V_IW}, v{d} offset:{base + col}", ('img', T)),
                lambda: lq.ds(f"ds_write_b16_d16_hi v{V_IW}, v{d} offset:{base + col + PL_STR}", ('img', T)),
            ]
        nrd = {i: 0 for i in range(-1, 60)}
        def put_rd(items, start):
            i = start
            for it in items:
                while len(side[i]) >= 2 or nrd[i] >= 1: i += 1
                side[i].append(it); nrd[i] += 1
            return i
        RD1 = cfg.get('p2_rd1', 0)
        rdpos = cfg.get('p2_rd', ldspos)
        for n in range(NL - 4):
            assert rdpos[n] >= ldspos[n]
            if RD1: e_ = put_rd(tb_read_items(n + 4), rdpos[n]); assert e_ < ldspos[n + 4] - 3, (n, e_)
            else: put(tb_read_items(n + 4), rdpos[n])
        last = {T: max(i for i, op in enumerate(seq) if op[0] == T) for T in range(6)}
        KO = P2_KI - P2_QI
        for T in (0, 1): put(post_tile(T, 0), last[T] + 2)
        e = put(post_tile(2, 0), last[2] + 2)
        b1 = e + cfg.get('p2_b1', 3)
        PR = cfg.get('p2_pr')
        side[b1].append(lambda: (lq.wait(('img', 2)), k("s_barrier"), None if PR else stamp(k, cfg, 3)))
        for ks in range(3):
            side[b1 + (ks > 0)].append(lambda ks=ks: lq.ds(f"ds_read_b128 {vr(QF + 4 * ks, 4)}, v{V_QR} offset:{ks * 128}", ('qf', ks)))
        put(post_tile(3, KO), last[3] + 2)
        sx = b1 + cfg.get('p2_sx', 6)
        def smx():
            lq.wait(('qf', 2))
            for ks in range(3):
                k(f"v_smfmac_f32_16x16x64_bf16 {vr(PDX, 4)}, {vr(QF + 4 * ks, 4)}, {vr(KXF + 8 * ks, 8)}, v{V_IDX}")
        side[sx].append(smx)
        def dpp(op, dst, src, ctl):
            k(f"{op} v{dst}, v{src}, v{src} {ctl} row_mask:0xf bank_mask:0xf")
        XS, XM, XL, XE = PD, PD + 2, PD + 3, PD + 4
        xchain = [
            [lambda: k(f"v_add_f32 v{XS}, v{PDX + tp}, v{PDX + tp + 2}"), lambda: k(f"v_mul_f32 v{XS}, {hexf(CSC)}, v{XS}")],
            [lambda: dpp("v_max_f32_dpp", XM, XS, "row_ror:8")],
            [lambda: dpp("v_max_f32_dpp", XM, XM, "row_ror:4")],
            [lambda: dpp("v_max_f32_dpp", XM, XM, "row_ror:2")],
            [lambda: dpp("v_max_f32_dpp", XM, XM, "row_ror:1")],
            [lambda: k(f"v_sub_f32 v{XE}, v{XS}, v{XM}"), lambda: k(f"v_exp_f32 v{XE}, v{XE}")],
            [lambda: dpp("v_add_f32_dpp", XL, XE, "row_ror:8")],
            [lambda: dpp("v_add_f32_dpp", XL, XL, "row_ror:4")],
            [lambda: dpp("v_add_f32_dpp", XL, XL, "row_ror:2")],
            [lambda: dpp("v_add_f32_dpp", XL, XL, "row_ror:1")],
            [lambda: lq.ds(f"ds_write_b64 v{V_ST8}, {vr(XM, 2)} offset:{512 * w}", 'st')],
        ]
        g0 = sx + 2
        late = []
        for n, its in enumerate(xchain):
            if g0 + n <= 59:
                for it in its: side[g0 + n].append(it)
            else: late.append(its)
        put(post_tile(4, KO), last[4] + 2)
        bk = cfg.get('p2_bk', 56)
        side[bk].append(lambda: (lq.wait(('img', 4)), k("s_barrier")))
        kfr = [lambda ks=ks, hi=hi: lq.ds(f"ds_read_b128 {vr(KXF + 8 * ks + 4 * hi, 4)}, v{V_KR} offset:{ks * 128 + hi * 16}", ('kf', ks)) for ks in range(2) for hi in range(2)]
        side[bk] += kfr[:2]; side[bk + 1] += kfr[2:]
        assert bk > sx + 1
        for it in side[-1]: it()
        for i, (T, ks) in enumerate(seq):
            wh = where[(T, ks)]
            if T < 3 and ks in rest: lq.wait(('af', ks))
            if wh[0] == 'l':
                lq.wait(('tb', wh[1]))
                b = vr(TB + 8 * (wh[1] % 4), 8)
            else:
                b = (ar if wh[0] == 'a' else vr)(wh[1], 8)
            k(f"v_smfmac_f32_16x16x64_bf16 {vr(PD + 4 * T, 4)}, {vr(AF + 4 * ks, 4)}, {b}, v{V_IDX}")
            for it in side[i]: it()
            if i == 29 and not PR: stamp(k, cfg, 2)
            if PR and i in PR: stamp(k, cfg, 2 + PR.index(i))
        if not PR: stamp(k, cfg, 4)
        for ks in range(2):
            lq.wait(('kf', ks))
            k(f"v_smfmac_f32_16x16x64_bf16 {vr(PDM, 4)}, {vr(QF + 4 * ks, 4)}, {vr(KXF + 8 * ks, 8)}, v{V_IDX}")
        for its in late:
            k("s_nop 1")
            for it in its: it()
        if late: k("s_nop 0")
        for it in post_tile(5, KO): it()
        lq.all()
        k("s_barrier")
        if not PR: stamp(k, cfg, 5)
        for hi in range(2):
            lq.ds(f"ds_read_b128 {vr(KXF + 16 + 4 * hi, 4)}, v{V_KR} offset:{256 + hi * 16}", ('kf', 2))
        OM, OL = AF, AF + 1
        lq.ds(f"ds_read_b64 {vr(OM, 2)}, v{V_ST8} offset:{512 * (w ^ 1)}", 'so')
        lq.wait(('kf', 2))
        k(f"v_smfmac_f32_16x16x64_bf16 {vr(PDM, 4)}, {vr(QF + 8, 4)}, {vr(KXF + 16, 8)}, v{V_IDX}")
        if not PR: stamp(k, cfg, 6)
    lq.wait('so')
    MXX, F0, F1, LX, SM, U, T_, EM, FX, R = range(AF + 2, AF + 12)
    k(f"v_max_f32 v{MXX}, v{XM}, v{OM}")
    k(f"v_sub_f32 v{F0}, v{XM}, v{MXX}")
    k(f"v_sub_f32 v{F1}, v{OM}, v{MXX}")
    k(f"v_exp_f32 v{F0}, v{F0}")
    k(f"v_exp_f32 v{F1}, v{F1}")
    k("s_nop 0")
    k(f"v_mul_f32 v{LX}, v{XL}, v{F0}")
    k(f"v_mul_f32 v{XE}, v{XE}, v{F0}")
    k(f"v_fmac_f32 v{LX}, v{OL}, v{F1}")
    k(f"v_add_f32 v{SM}, v{PDM + tp}, v{PDM + tp + 2}")
    k(f"v_mul_f32 v{SM}, {hexf(CSC)}, v{SM}")
    k(f"v_max_f32 v{U}, v{SM}, v{MXX}")
    k("s_nop 0")
    k(f"v_max_f32_dpp v{T_}, v{SM}, v{U} row_ror:4 row_mask:0xf bank_mask:0xf"); k("s_nop 1")
    dpp("v_max_f32_dpp", T_, T_, "row_ror:2"); k("s_nop 1")
    dpp("v_max_f32_dpp", T_, T_, "row_ror:1")
    k(f"v_sub_f32 v{EM}, v{SM}, v{T_}")
    k(f"v_sub_f32 v{FX}, v{MXX}, v{T_}")
    k(f"v_exp_f32 v{EM}, v{EM}")
    k(f"v_exp_f32 v{FX}, v{FX}")
    k("s_nop 0")
    dpp("v_add_f32_dpp", U, EM, "row_ror:4")
    k(f"v_mul_f32 v{XE}, v{XE}, v{FX}")
    k("s_nop 0")
    dpp("v_add_f32_dpp", U, U, "row_ror:2"); k("s_nop 1")
    dpp("v_add_f32_dpp", U, U, "row_ror:1")
    k(f"v_fmac_f32 v{U}, v{FX}, v{LX}")
    k(f"v_rcp_f32 v{R}, v{U}")
    k("s_nop 0")
    k(f"v_mul_f32 v{XE}, v{XE}, v{R}")
    k(f"v_mul_f32 v{EM}, v{EM}, v{R}")
    k("s_nop 0")
    k(f"v_mov_b32_dpp v{F0}, v{XE} quad_perm:[1,0,3,2] row_mask:0xf bank_mask:0xf")
    k(f"v_mov_b32_dpp v{F1}, v{EM} quad_perm:[1,0,3,2] row_mask:0xf bank_mask:0xf")
    if cfg.get('p2_x4'):
        O = AF + 12
        k(f"v_cvt_pk_bf16_f32 v{O}, v{XE}, v{F0}")
        k(f"v_cvt_pk_bf16_f32 v{EM}, v{EM}, v{F1}")
        ctl = "row_mask:0xf bank_mask:0xf"
        k("s_nop 0")
        for j in range(1, 4): k(f"v_mov_b32_dpp v{O+j}, v{O} row_shl:{2*j} {ctl}")
        k(f"v_mov_b32_dpp v{O}, v{EM} row_shr:4 row_mask:0xf bank_mask:0x2")
        k(f"v_mov_b32_dpp v{O+1}, v{EM} row_shr:2 row_mask:0xf bank_mask:0x2")
        k(f"v_mov_b32_dpp v{O+2}, v{EM} quad_perm:[0,1,2,3] row_mask:0xf bank_mask:0x2")
        k(f"v_mov_b32_dpp v{O+3}, v{EM} row_shl:2 row_mask:0xf bank_mask:0x2")
        k(f"s_mov_b32 exec_lo, {0x01110111 if kt == 0 else 0x01010101:#x}")
        k(f"s_mov_b32 exec_hi, {0x01010101 if kt == 0 else 0x01110111:#x}")
        k(f"buffer_store_dwordx4 {vr(O, 4)}, v{V_PX}, {srd}, s{S_SB} offen sc1")
        k("s_mov_b64 exec, -1")
    else:
        k(f"v_cvt_pk_bf16_f32 v{XE}, v{XE}, v{F0}")
        k(f"v_cvt_pk_bf16_f32 v{EM}, v{EM}, v{F1}")
        k(f"buffer_store_dword v{XE}, v{V_PX}, {srd}, s{S_SB} offen sc1")
        k(f"buffer_store_dword v{EM}, v{V_PM}, {srd}, s{S_SB} offen sc1")
    stamp(k, cfg, 7)
    stamp(k, cfg, 8, True)
    if w == 0: rt(k, cfg, 1)
    X0 = AF + 24
    if w < 3:
        lq.ds(f"ds_read_b128 {vr(X0, 4)}, v{V_KML}", 'km')
    k(f"s_add_u32 s{S_T+8}, s{S_STEP}, 1")
    k(f"s_min_u32 s{S_T+8}, s{S_T+8}, {NSTEP-1}")
    kx_prefetch(S_T + 8)
    zero_d()
    if w < 3:
        lq.wait('km')
        k(f"s_mul_i32 s{S_T}, s{S_STEP}, {32 * KM_SH}")
        k(f"s_add_u32 s{S_T}, s{S_T}, s{S_KM}")
        k(f"buffer_store_dwordx4 {vr(X0, 4)}, v{V_KMG}, {srd}, s{S_T} offen sc1")
    if w == 3:
        k(f"s_lshl_b32 s{S_T}, s{S_ROLE}, 7")
        k(f"s_add_u32 s{S_T}, s{S_T}, {FL_PF}")
        flag_store(k, cfg, S_T, S_STEP, V_T0, V_T1)
    for n in range(4):
        for it in tb_read_items(n): it()
    lq.all()
    if w == 0: rt_flush(k, cfg, 0)
    if w == cfg.get('stamp_wave', 0): stamp_flush(k, cfg, 9, cfg.get('stamp_p', 0))
    k(f"s_add_u32 s{S_STEP}, s{S_STEP}, 1")
    k(f"s_cmp_lt_u32 s{S_STEP}, {NSTEP}")
    k(f"s_cbranch_scc1 {L('step')}")
    k("s_waitcnt vmcnt(0)")
    k("s_barrier")
    if w == 3:
        k(f"s_lshl_b32 s{S_T}, s{S_ROLE}, 7")
        k(f"s_add_u32 s{S_T}, s{S_T}, {FL_PF}")
        flag_store(k, cfg, S_T, S_STEP, V_T0, V_T1)
    k(f"s_branch {k.ref('end')}")

YL_MEMI = 0
YL_RED = 10240
YV_L16 = 1; YV_IDX = 2; YV_MIA = 3; YV_ZO = 4; YV_PO = 5; YV_RW = 6; YV_RR = 7; YV_MO = 8; YV_GF = 9; YV_MK = 10
YAF = 16; YD = 56; YZB = 72; YPF = 92; YACC = 112; YT = 116; YVW = 176

def gen_y_wave(k, w, cfg):
    own = OWN[w]; rest = [ks for ks in range(10) if ks not in own]
    L = lambda s: k.ref(f"y{w}_{s}")
    lab = lambda s: k.lab(f"y{w}_{s}")
    bail = k.ref('bail')
    lq = LQ(k)
    lab('start')
    k("v_lshrrev_b32 v16, 4, v0")
    k("v_and_b32 v17, 7, v0")
    k("v_lshrrev_b32 v18, 3, v0")
    k("v_and_b32 v18, 1, v18")
    k("v_lshl_add_u32 v19, v18, 2, v16")
    k(f"v_add_u32 v19, {8 * w}, v19")
    k("v_mul_u32_u24 v20, 640, v19")
    k(f"v_lshl_add_u32 v{YV_ZO}, v17, 4, v20")
    if cfg.get('p2'):
        k("v_and_b32 v20, 1, v17")
        k("v_lshlrev_b32 v20, 2, v20")
        k("v_lshrrev_b32 v21, 1, v17")
    else:
        k("v_and_b32 v20, 3, v17")
        k("v_lshlrev_b32 v20, 1, v20")
        k("v_lshrrev_b32 v21, 2, v17")
    k("v_add_u32 v20, v20, v21")
    k("v_lshlrev_b32 v20, 4, v20")
    k(f"v_lshl_add_u32 v{YV_PO}, v19, 7, v20")
    k(f"v_add_u32 v{YV_MIA}, {YL_MEMI}, v{YV_L16}")
    k("v_lshrrev_b32 v20, 1, v17")
    k("v_lshlrev_b32 v20, 7, v20")
    k("v_and_b32 v21, 1, v17")
    k("v_lshl_add_u32 v20, v21, 2, v20")
    k(f"v_add_u32 v{YV_MK}, {512 * w}, v20")
    k("v_lshlrev_b32 v20, 8, v18")
    k("v_lshl_add_u32 v20, v17, 5, v20")
    k("v_and_b32 v21, 1, v16")
    k("v_lshl_add_u32 v20, v21, 4, v20")
    k(f"v_add_u32 v20, {YL_RED + 512 * w}, v20")
    k(f"v_add_u32 v21, {YL_RED + 2048}, v{YV_L16}")
    k("v_lshrrev_b32 v22, 1, v16")
    k("v_cmp_eq_u32 vcc, v22, v18")
    k("s_nop 1")
    k(f"v_cndmask_b32 v{YV_RW}, v21, v20, vcc")
    k("v_lshrrev_b32 v20, 3, v0")
    k("v_lshlrev_b32 v20, 2, v20")
    k("v_lshl_add_u32 v20, v17, 5, v20")
    k(f"v_add_u32 v{YV_RR}, {YL_RED}, v20")
    k(f"s_lshl_b32 s{S_T}, s{S_ROLE}, 7")
    k(f"s_add_u32 s{S_T}, s{S_T}, {M_LOG}")
    k(f"s_lshr_b32 s{S_T+1}, s{S_T}, 13")
    k(f"s_lshl_b32 s{S_T+1}, s{S_T+1}, 14")
    k(f"s_and_b32 s{S_T}, s{S_T}, 8191")
    k(f"s_add_u32 s{S_T}, s{S_T}, s{S_T+1}")
    k("v_lshrrev_b32 v20, 3, v0")
    k("v_lshlrev_b32 v20, 4, v20")
    k(f"v_add_u32 v{YV_MO}, s{S_T}, v20")
    k(f"s_mul_i32 s{S_Z}, s{S_ROLE}, 20480")
    k(f"s_add_u32 s{S_Z}, s{S_Z}, {Z}")
    k(f"s_mul_i32 s{S_T}, s{S_ROLE}, 327680")
    k(f"s_add_u32 s{S_T}, s{S_T}, {WY + w * 81920}")
    def wreg(T, ks):
        n = T * 10 + ks
        return ('a', 8 * n) if n < 32 else ('v', YVW + 8 * (n - 32))
    if cfg.get('ygate') is not None:
        k(f"s_add_u32 s{S_T+2}, s{S_FL}, {cfg['ygate'][0]}")
        k("v_lshlrev_b32 v20, 2, v0")
        k(f"s_mov_b32 exec_lo, {(1 << cfg['ygate'][1]) - 1}"); k("s_mov_b32 exec_hi, 0")
        lab('gate')
        k(f"buffer_load_dword v21, v20, {srd}, s{S_T+2} offen sc1")
        k("s_waitcnt vmcnt(0)")
        k("v_cmp_eq_u32 vcc, 0, v21")
        spin_check(k, bail)
        k(f"s_cbranch_vccnz {L('gate')}")
        k("s_mov_b64 exec, -1")
    WIN = cfg.get('winy', cfg.get('win')); nld = 0
    for T in range(4):
        for ks in range(10):
            wh = wreg(T, ks)
            if cfg.get('na') == 4 and wh[0] == 'a' and wh[1] // 8 < cfg.get('npf', 64) // 2: continue
            k(f"s_add_u32 s{S_T+1}, s{S_T}, {(T * 10 + ks) * 2048}")
            for hi in range(2):
                d = (ar if wh[0] == 'a' else vr)(wh[1] + 4 * hi, 4)
                k(f"buffer_load_dwordx4 {d}, v{YV_L16}, {srd}, s{S_T+1} offen offset:{hi*1024}")
                nld += 1
                if WIN and nld > WIN: k(f"s_waitcnt vmcnt({WIN})")
    wait_par(k, cfg, f"y{w}_par", bail)
    k(f"s_mov_b32 s{S_STEP}, 0")
    SC1 = " sc1" if cfg.get('ovl') else ""
    if cfg.get('ovl'):
        k(f"s_lshl_b32 s{S_T}, s{S_ROLE}, 7")
        k(f"v_mov_b32 v{YV_GF}, s{S_T}")
        k(f"s_mov_b32 s{S_GK}, 0")
    lab('step')
    YC = cfg.get('ycopy', 0)
    AW = cfg.get('ackwait', 1)
    slot_base(k, S_SB, S_STEP, S_T, S_SBF if YC else None)
    def uload():
        wait_progress(k, cfg, f"y{w}_gw", S_STEP, YV_GF, 1, YT)
        for t in range(1, 5):
            k(f"buffer_load_dwordx4 {vr(YZB + 4 * t, 4)}, v{YV_ZO}, {srd}, s{S_T+8} offen offset:{t*128}{SC1}")
    k(f"s_mul_i32 s{S_T+8}, s{S_STEP}, {Z_SEG}")
    k(f"s_add_u32 s{S_T+8}, s{S_T+8}, s{S_Z}")
    UE = cfg.get('uearly', 0)
    if not AW or UE: uload()
    for r in range(YD, YD + 16): k(f"v_mov_b32 v{r}, 0")
    for u, ks in enumerate(own):
        k(f"s_add_u32 s{S_T+2+u}, s{S_SBF if YC else S_SB}, {physmap(M_LOG + 1024 * ks)}")
    stamp(k, cfg, 0)
    lab('poll')
    if cfg.get('y_nopoll'):
        for ks in own:
            for j in range(4): k(f"v_mov_b32 v{YAF + 4 * ks + j}, 0")
            k(f"ds_write_b128 v{YV_MIA}, {vr(YAF + 4 * ks, 4)} offset:{ks * 1024}")
    else:
        for u, ks in enumerate(own):
            k(f"buffer_load_dwordx4 {vr(YAF + 4 * ks, 4)}, v{YV_L16}, {srd}, s{S_T+2+u} offen sc1")
        k("s_waitcnt vmcnt(0)")
        for ks in own:
            k(f"ds_write_b128 v{YV_MIA}, {vr(YAF + 4 * ks, 4)} offset:{ks * 1024}")
        check_valid(k, [YAF + 4 * ks + j for ks in own for j in range(4)], YT)
        spin_check(k, bail)
        k(f"s_cbranch_vccnz {L('poll')}")
    lq.all()
    k("s_barrier")
    stamp(k, cfg, 1)
    if w == 0: rt(k, cfg, 0)
    for ks in rest:
        lq.ds(f"ds_read_b128 {vr(YAF + 4 * ks, 4)}, v{YV_MIA} offset:{ks * 1024}", ('af', ks))
    if AW and not UE: uload()
    for ks in own + rest:
        if ks in rest: lq.wait(('af', ks))
        for T in range(4):
            wh = wreg(T, ks)
            b = (ar if wh[0] == 'a' else vr)(wh[1], 8)
            k(f"v_smfmac_f32_16x16x64_bf16 {vr(YD + 4 * T, 4)}, {vr(YAF + 4 * ks, 4)}, {b}, v{YV_IDX}")
    k("s_nop 7")
    D = lambda T, r: YD + 4 * T + r
    for r in range(4):
        k(f"v_permlane32_swap_b32 v{D(0,r)}, v{D(2,r)}")
        k(f"v_permlane32_swap_b32 v{D(1,r)}, v{D(3,r)}")
    for r in range(4):
        k(f"v_add_f32 v{D(0,r)}, v{D(0,r)}, v{D(2,r)}")
        k(f"v_add_f32 v{D(1,r)}, v{D(1,r)}, v{D(3,r)}")
    k("s_nop 1")
    for r in range(4):
        k(f"v_permlane16_swap_b32 v{D(0,r)}, v{D(1,r)}")
    k("s_nop 1")
    k(f"v_cvt_pk_bf16_f32 v{YZB}, v{D(0,0)}, v{D(0,1)}")
    k(f"v_cvt_pk_bf16_f32 v{YZB+1}, v{D(0,2)}, v{D(0,3)}")
    k(f"v_cvt_pk_bf16_f32 v{YZB+2}, v{D(1,0)}, v{D(1,1)}")
    k(f"v_cvt_pk_bf16_f32 v{YZB+3}, v{D(1,2)}, v{D(1,3)}")
    k(f"buffer_store_dwordx4 {vr(YZB, 4)}, v{YV_ZO}, {srd}, s{S_T+8} offen{SC1}")
    stamp(k, cfg, 2)
    k(f"s_cmp_eq_u32 s{S_STEP}, {NSTEP-1}")
    k(f"s_cbranch_scc1 {L('last') if cfg.get('ovl') else k.ref('end')}")
    for t in range(5):
        k(f"s_add_u32 s{S_T+10+t}, s{S_SB}, {physmap(t * 4096)}")
    k(f"s_add_u32 s{S_T+9}, s{S_STEP}, 1")
    slot_base(k, S_SBN, S_T + 9, S_T, S_SBNF if YC else None)
    if cfg.get('mark') is not None:
        k(f"s_add_u32 s{S_MK}, s{S_SB}, {physmap(MARK_LOG)}")
        lab('mpoll')
        k(f"buffer_load_dword v{YT}, v{YV_MK}, {srd}, s{S_MK} offen sc1")
        k("s_waitcnt vmcnt(0)")
        k(f"v_cmp_eq_u32 vcc, -1, v{YT}")
        spin_check(k, bail)
        k(f"s_cbranch_vccnz {L('mpoll')}")
        if w == 0 and cfg.get('rt2'): rt(k, cfg, 0)
    if cfg.get('cpoll', 0):
        for r in range(4): k(f"v_mov_b32 v{YACC + r}, 0")
        poll_cont(k, f"y{w}_pp",
                  [lambda t=t: k(f"buffer_load_dwordx4 {vr(YPF + 4 * t, 4)}, v{YV_PO}, {srd}, s{S_T+10+t} offen sc1") for t in range(5)],
                  [[YPF + 4 * t + j for j in range(4)] for t in range(5)],
                  [lambda t=t: (k(f"v_mfma_f32_16x16x32_bf16 {vr(YACC, 4)}, {vr(YPF + 4 * t, 4)}, {vr(YZB + 4 * t, 4)}, {vr(YACC, 4)}"),
                                (rt(k, cfg, 3 + t) if (w == 0 and cfg.get('rt2')) else None)) for t in range(5)],
                  YT, 132, bail)
        k("s_nop 5")
    else:
        lab('ppoll')
        for t in range(5):
            k(f"buffer_load_dwordx4 {vr(YPF + 4 * t, 4)}, v{YV_PO}, {srd}, s{S_T+10+t} offen sc1")
        k("s_waitcnt vmcnt(0)")
        for t in range(5):
            c = "0" if t == 0 else vr(YACC, 4)
            k(f"v_mfma_f32_16x16x32_bf16 {vr(YACC, 4)}, {vr(YPF + 4 * t, 4)}, {vr(YZB + 4 * t, 4)}, {c}")
        check_valid(k, range(YPF, YPF + 20), YT)
        spin_check(k, bail)
        k(f"s_cbranch_vccnz {L('ppoll')}")
    stamp(k, cfg, 3)
    if w == 0: rt(k, cfg, 1)
    lq.ds(f"ds_write_b128 v{YV_RW}, {vr(YACC, 4)}", 'rw')
    lq.all()
    k("s_barrier")
    if w == 0:
        for u in range(4):
            lq.ds(f"ds_read2st64_b32 {vr(YT + 2 * u, 2)}, v{YV_RR} offset0:{2*u} offset1:{2*u+1}", ('rr', u))
        lq.wait(('rr', 1))
        k(f"v_add_f32 v{YT}, v{YT}, v{YT+1}")
        k(f"v_add_f32 v{YT+2}, v{YT+2}, v{YT+3}")
        lq.wait(('rr', 3))
        k(f"v_add_f32 v{YT+4}, v{YT+4}, v{YT+5}")
        k(f"v_add_f32 v{YT+6}, v{YT+6}, v{YT+7}")
        k(f"v_add_f32 v{YT}, v{YT}, v{YT+2}")
        k(f"v_add_f32 v{YT+4}, v{YT+4}, v{YT+6}")
        k(f"v_add_f32 v{YT}, v{YT}, v{YT+4}")
        k("s_nop 1")
        k(f"v_mov_b32_dpp v{YT+1}, v{YT} quad_perm:[1,0,3,2] row_mask:0xf bank_mask:0xf")
        k(f"v_cvt_pk_bf16_f32 v{YT+8}, v{YT}, v{YT+1}")
        k("s_nop 1")
        for j in range(1, 4):
            k(f"v_mov_b32_dpp v{YT+8+j}, v{YT+8} row_shl:{2*j} row_mask:0xf bank_mask:0xf")
        k(f"s_mov_b64 exec, s[{S_M8}:{S_M8+1}]")
        k(f"buffer_store_dwordx4 {vr(YT + 8, 4)}, v{YV_MO}, {srd}, s{S_SBN} offen sc1")
        if YC: k(f"buffer_store_dwordx4 {vr(YT + 8, 4)}, v{YV_MO}, {srd}, s{S_SBNF} offen sc1")
        k("s_mov_b64 exec, -1")
        if cfg.get('ovl'):
            k(f"s_lshl_b32 s{S_T}, s{S_ROLE}, 7")
            k(f"s_add_u32 s{S_T}, s{S_T}, {FL_YF}")
            flag_store(k, cfg, S_T, S_T + 9, YT, YT + 1)
        stamp(k, cfg, 4)
        rt(k, cfg, 2)
        if AW: k("s_waitcnt vmcnt(0)")
        rt_flush(k, cfg, 32)
        stamp_flush(k, cfg, 5, cfg.get('stamp_y', 0))
    if AW: k("s_barrier")
    k(f"s_add_u32 s{S_STEP}, s{S_STEP}, 1")
    k(f"s_branch {L('step')}")
    if cfg.get('ovl'):
        lab('last')
        k("s_waitcnt vmcnt(0)")
        k("s_barrier")
        if w == 0:
            k(f"s_lshl_b32 s{S_T}, s{S_ROLE}, 7")
            k(f"s_add_u32 s{S_T}, s{S_T}, {FL_YF}")
            k(f"s_mov_b32 s{S_T+9}, {NSTEP}")
            flag_store(k, cfg, S_T, S_T + 9, YT, YT + 1)
        k(f"s_branch {k.ref('end')}")

def role_assign(k, cfg, rb=19, part=None, va=2, lds_off=0, nyoung=0, sfx=''):
    R = lambda n: f"s{rb + n - 19}"
    vb = va + 1
    if part in (None, 1):
        k(f"s_lshl_b32 {R(19)}, s{S_LAYER}, 11")
        k(f"s_add_u32 {R(19)}, {R(19)}, {CT_TICK}")
        k(f"s_getreg_b32 {R(20)}, hwreg(HW_REG_XCC_ID)")
        k(f"s_and_b32 {R(20)}, {R(20)}, 7")
        if cfg.get('fake_xcc') is not None:
            k(f"s_and_b32 {R(20)}, s2, {cfg['fake_xcc']}")
        k(f"s_cmp_lg_u32 s{S_WAVE}, 0")
        k(f"s_cbranch_scc1 {k.ref('tk_wait' + sfx if part is None else 'tk_p1')}")
        k(f"s_lshl_b32 {R(22)}, {R(20)}, 8")
        k(f"s_add_u32 {R(22)}, {R(22)}, {R(19)}")
        k("s_mov_b64 exec, 1")
        k(f"v_mov_b32 v{va}, 0")
        k(f"v_mov_b32 v{vb}, 1")
        k(f"buffer_atomic_add v{vb}, v{va}, {srd}, {R(22)} offen sc0 sc1")
        k("s_mov_b64 exec, -1")
        if part == 1:
            k.lab('tk_p1')
            return
    else:
        k(f"s_cmp_lg_u32 s{S_WAVE}, 0")
        k(f"s_cbranch_scc1 {k.ref('tk_wait' + sfx)}")
    if nyoung is not None: k(f"s_waitcnt vmcnt({nyoung})")
    k("s_nop 0")
    k(f"v_readfirstlane_b32 {R(21)}, v{vb}")
    k(f"s_cmp_lt_u32 {R(21)}, 32")
    k(f"s_cbranch_scc1 {k.ref('tk_pub' + sfx)}")
    k(f"v_lshlrev_b32 v{va}, 8, v0")
    k(f"v_and_b32 v{va}, 0x7ff, v{va}")
    k(f"s_mov_b32 {R(22)}, {R(19)}")
    k.lab('tk_poll' + sfx)
    k(f"buffer_load_dword v{vb}, v{va}, {srd}, {R(22)} offen sc1")
    k("s_waitcnt vmcnt(0)")
    k(f"s_mov_b32 {R(23)}, 0")
    for x in range(8):
        k(f"v_readlane_b32 {R(24+x)}, v{vb}, {x}")
        k("s_nop 0")
        k(f"s_add_u32 {R(23)}, {R(23)}, {R(24+x)}")
    spin_check(k, k.ref('bail'))
    k(f"s_cmp_lt_u32 {R(23)}, 256")
    k(f"s_cbranch_scc1 {k.ref('tk_poll' + sfx)}")
    k(f"s_sub_u32 {R(21)}, {R(21)}, 32")
    for x in range(7):
        k(f"s_max_u32 {R(23)}, {R(24+x)}, 32")
        k(f"s_sub_u32 {R(23)}, {R(23)}, 32")
        k(f"s_cmp_gt_u32 {R(20)}, {x}")
        k(f"s_cselect_b32 {R(23)}, {R(23)}, 0")
        k(f"s_add_u32 {R(21)}, {R(21)}, {R(23)}")
    for x in range(8):
        k(f"s_min_u32 {R(23)}, {R(24+x)}, 32")
        k(f"s_sub_u32 {R(22)}, 32, {R(23)}")
        k(f"s_cmp_lt_u32 {R(21)}, {R(22)}")
        k(f"s_cbranch_scc0 {k.ref(f'tk_n{x}' + sfx)}")
        k(f"s_mov_b32 {R(20)}, {x}")
        k(f"s_add_u32 {R(21)}, {R(21)}, {R(23)}")
        k(f"s_branch {k.ref('tk_pub' + sfx)}")
        k.lab(f'tk_n{x}' + sfx)
        k(f"s_sub_u32 {R(21)}, {R(21)}, {R(22)}")
    k(f"s_branch {k.ref('bail')}")
    k.lab('tk_pub' + sfx)
    k(f"s_lshl_b32 {R(22)}, {R(20)}, 8")
    k(f"s_or_b32 {R(22)}, {R(22)}, {R(21)}")
    k(f"v_mov_b32 v{va}, {lds_off}")
    k(f"v_mov_b32 v{vb}, {R(22)}")
    k(f"ds_write_b32 v{va}, v{vb}")
    k("s_waitcnt lgkmcnt(0)")
    k.lab('tk_wait' + sfx)
    k("s_barrier")
    k(f"v_mov_b32 v{va}, {lds_off}")
    k(f"ds_read_b32 v{vb}, v{va}")
    k("s_waitcnt lgkmcnt(0)")
    k(f"v_readfirstlane_b32 {R(22)}, v{vb}")
    if part is None: k("s_barrier")
    k(f"s_lshr_b32 {R(20)}, {R(22)}, 8")
    k(f"s_and_b32 {R(21)}, {R(22)}, 255")

S_XCC = 98; S_TK = 99
def pf_setup(k, cfg, sfx='', tb=60):
    import aly, work
    TAB, B0, B1, D, V0, V1 = aly.PF_TAB, aly.PF_B0, aly.PF_B1, aly.PF_D, aly.PF_V0, aly.PF_V1
    L = lambda s: k.ref('pf_' + sfx + s)
    lab = lambda s: k.lab('pf_' + sfx + s)
    def table(idx):
        for q in range(8):
            k(f"s_mov_b32 s{TAB + q}, {sum(idx[4 * q + j] << (8 * j) for j in range(4)):#x}")
    k(f"v_lshlrev_b32 v{V0}, 4, v0")
    k(f"v_mov_b32 v{V1}, v{V0}")
    table(list(range(32)))
    k(f"s_mov_b32 s{D}, 2048")
    if cfg.get('latepf'): k("s_mov_b32 s44, 0")
    k(f"s_cmp_eq_u32 s{S_XCC}, 0")
    k(f"s_cbranch_scc1 {L('p')}")
    k(f"s_cmp_ge_u32 s{S_XCC}, 4")
    k(f"s_cbranch_scc1 {L('g')}")
    k(f"s_sub_u32 s{tb+0}, s{S_XCC}, 1")
    k(f"s_cmp_ge_u32 s{S_TK}, 27")
    k(f"s_cbranch_scc1 {L('sp')}")
    k(f"s_mul_i32 s{tb+1}, s{tb+0}, 27")
    k(f"s_add_u32 s{tb+1}, s{tb+1}, s{S_TK}")
    k(f"s_cmp_ge_u32 s{tb+1}, 80")
    k(f"s_cbranch_scc1 {L('no')}")
    k(f"s_mul_i32 s{tb+1}, s{tb+1}, 327680")
    k(f"s_mul_i32 s{tb+2}, s{S_WAVE}, 81920")
    k(f"s_add_u32 s{tb+1}, s{tb+1}, s{tb+2}")
    k(f"s_add_u32 s{B0}, s{tb+1}, {WY}")
    k(f"s_add_u32 s{B1}, s{B0}, 1024")
    k(f"s_branch {L('done')}")
    lab('sp')
    k(f"s_mul_i32 s{tb+1}, s{tb+0}, 5")
    k(f"s_add_u32 s{tb+1}, s{tb+1}, s{S_TK}")
    k(f"s_sub_u32 s{tb+1}, s{tb+1}, 27")
    k(f"s_cmp_lt_u32 s{tb+1}, 5")
    k(f"s_cbranch_scc0 {L('no')}")
    if cfg.get('latepf'): k("s_mov_b32 s44, 1")
    k(f"s_lshl_b32 s{tb+1}, s{tb+1}, 2")
    k(f"s_add_u32 s{tb+1}, s{tb+1}, s{S_WAVE}")
    k(f"s_mul_i32 s{tb+1}, s{tb+1}, 40960")
    k(f"s_add_u32 s{B0}, s{tb+1}, {PWO}")
    k(f"s_add_u32 s{B1}, s{B0}, 1024")
    k(f"s_branch {L('done')}")
    lab('no')
    if cfg.get('latepf'): k("s_mov_b32 s44, 2")
    k(f"s_mov_b32 s{B0}, {WY}")
    k(f"s_mov_b32 s{B1}, {WY}")
    k(f"s_mov_b32 s{D}, 0")
    k(f"s_branch {L('done')}")
    lab('p')
    k(f"s_mul_i32 s{tb+1}, s{S_TK}, 491520")
    k(f"s_mul_i32 s{tb+2}, s{S_WAVE}, 122880")
    k(f"s_add_u32 s{tb+1}, s{tb+1}, s{tb+2}")
    k(f"s_add_u32 s{B0}, s{tb+1}, {WP}")
    k(f"s_add_u32 s{B1}, s{B0}, 1024")
    for w in range(4):
        own, rest, seq, ldspos, where = p_plan(w, cfg)
        idx = [None] * 32
        for (T, ks), wh in where.items():
            if wh[0] == 'a': idx[wh[1] // 8] = T * 10 + ks
        if w < 3:
            k(f"s_cmp_lg_u32 s{S_WAVE}, {w}")
            k(f"s_cbranch_scc1 {L(f'pw{w}')}")
        table(idx)
        k(f"s_branch {L('done')}")
        if w < 3: lab(f'pw{w}')
    lab('g')
    k(f"s_sub_u32 s{tb+0}, s{S_XCC}, 4")
    k(f"s_lshl_b32 s{tb+0}, s{tb+0}, 5")
    k(f"s_add_u32 s{tb+0}, s{tb+0}, s{S_TK}")
    k(f"s_mov_b32 s{D}, 512")
    k("v_and_b32 v230, 31, v0")
    k("v_lshrrev_b32 v231, 5, v0")
    k(f"s_cmp_ge_u32 s{tb+0}, 80")
    k(f"s_cbranch_scc1 {L('qk')}")
    work.u_weight_addr(k, tb, 230, 231, 232, V0, B0, tb + 1)
    k(f"v_mov_b32 v{V1}, v{V0}")
    k(f"s_add_u32 s{B1}, s{B0}, 128")
    k(f"s_branch {L('done')}")
    lab('qk')
    work.qk_setup(k, tb, 230, 231, 232, V0, B0, tb + 1, None)
    lab('done')

def build_chain(name, layer, cfg=None):
    import work
    cfg = cfg or {}
    k = K(name if layer is not None else name + "1", vgpr=256, sgpr=100, agpr=256)
    stub = None
    if layer is None:
        stub = K(name + "2", vgpr=256, sgpr=100, agpr=256)
        stub(f"s_mov_b32 s{S_LAYER}, 1")
        stub(f"s_branch {k.ref('body')}")
        k(f"s_mov_b32 s{S_LAYER}, 0")
        k.lab('body')
    else:
        k(f"s_mov_b32 s{S_LAYER}, {layer}")
    k("s_cmp_ge_u32 s2, 256")
    k(f"s_cbranch_scc1 {k.ref('end0')}")
    if cfg.get('rt'): k("s_memrealtime s[90:91]")
    k.ptr(KA_WS, S_WS)
    k.ptr(KA_OUT, 6)
    k("v_lshrrev_b32 v1, 6, v0")
    k("v_and_b32 v0, 63, v0")
    k("s_nop 0")
    k(f"v_readfirstlane_b32 s{S_WAVE}, v1")
    k(f"s_mov_b32 s{S_SPIN}, {SPIN}")
    k("s_waitcnt lgkmcnt(0)")
    k.srd(SRD, S_WS, WS_BYTES)
    def osrd():
        k(f"s_add_u32 s22, s{S_WS}, {A_X2}")
        k(f"s_addc_u32 s23, s{S_WS+1}, 0")
        k(f"s_cmp_eq_u32 s{S_LAYER}, 0")
        k(f"s_cselect_b32 s{S_OSRD}, s22, s6")
        k(f"s_cselect_b32 s{S_OSRD+1}, s23, s7")
        k(f"s_mov_b32 s{S_OSRD+2}, {2048 * 640 * 2}")
        k(f"s_mov_b32 s{S_OSRD+3}, 0x00020000")
    if cfg.get('na') != 4: osrd()
    k(f"s_mul_i32 s{S_FL}, s{S_LAYER}, {FL_LAYER}")
    k(f"s_add_u32 s{S_FL}, s{S_FL}, {CT_FLAG}")
    SEMI = cfg.get('na') == 4
    if SEMI:
        import aly
        role_assign(k, cfg, 76 if cfg.get('hs') is not None else 60, 1, 230)
        HS = cfg.get('hs')
        if 'pfs' in cfg and not cfg.get('latepf'): assert cfg['pfs'][0] + sum(cfg['pfs'][1]) == cfg.get('npf', 64)
        def hook(sfx):
            role_assign(k, cfg, 76 if HS is not None else 60, 2, 230, aly.AF_LDS + 64, 24 if HS is None else None, sfx)
            k(f"s_mov_b32 s{S_XCC}, s{77 if HS is not None else 61}")
            k(f"s_mov_b32 s{S_TK}, s{78 if HS is not None else 62}")
            pf_setup(k, cfg, sfx, 76 if HS is not None else 60)
        rt_ = cfg.get('rt')
        LATE = cfg.get('latepf', 0)
        mid = None
        if LATE:
            assert HS is None
            cfg = dict(cfg, pfs=cfg.get('pfs', (0, [0] * 10)))
            NIN = cfg['pfs'][0] + sum(cfg['pfs'][1])
            B1, B2 = cfg.get('pfb', (0, 0))
            assert NIN + B1 + B2 + LATE == 64 and NIN % 2 == 0 and B1 % 2 == 0 and B2 % 2 == 0
            def emit(pfi, n0, n, tag, allowed):
                if n <= 0: return
                if allowed == (0, 1):
                    k("s_cmp_eq_u32 s44, 2"); k(f"s_cbranch_scc1 {k.ref(tag)}")
                else:
                    k(f"s_cmp_lg_u32 s44, {allowed[0]}"); k(f"s_cbranch_scc1 {k.ref(tag)}")
                for p_ in pfi(n0, n):
                    for x in p_: k(x)
                k.lab(tag)
            def mid(pfi, where):
                if where == 'post': emit(pfi, NIN, B1, 'pf_post', (0, 1))
                if where == 'wait': emit(pfi, NIN + B1, B2, 'pf_wait', (0, 1))
                if where == 'go':
                    n0 = NIN + B1
                    if n0 < 40:
                        k("s_cmp_lg_u32 s44, 1")
                        k(f"s_cbranch_scc1 {k.ref('pf_mid')}")
                        if B2:
                            k(f"s_cmp_lg_u32 s{S_WAVE}, 0")
                            k(f"s_cbranch_scc1 {k.ref('pf_mid1')}")
                            for p_ in pfi(n0, min(B2, 40 - n0)):
                                for x in p_: k(x)
                            k.lab('pf_mid1')
                        for p_ in pfi(n0 + B2, 40 - n0 - B2):
                            for x in p_: k(x)
                        k.lab('pf_mid')
        pfi = aly.afront_body(k, 'rt', 2, False, "", (lambda n: k(f"{'s_memtime' if cfg.get('afclk') else 's_memrealtime'} s[{60 + 2 * n}:{61 + 2 * n}]")) if rt_ else None, cfg.get('pfs', True), (hook, HS), mid, cfg.get('coop', 0), cfg.get('g4', 0))
        if LATE:
            k("s_cmp_lg_u32 s44, 0")
            k(f"s_cbranch_scc1 {k.ref('pf_late')}")
            if B2:
                k(f"s_cmp_lg_u32 s{S_WAVE}, 0")
                k(f"s_cbranch_scc1 {k.ref('pf_late1')}")
                for p_ in pfi(NIN + B1, B2):
                    for x in p_: k(x)
                k.lab('pf_late1')
            for p_ in pfi(NIN + B1 + B2, LATE):
                for x in p_: k(x)
            k.lab('pf_late')
        if rt_:
            k("s_memrealtime s[74:75]")
            k("s_mov_b32 s60, s90")
            k("s_waitcnt lgkmcnt(0)")
            k("s_mov_b64 exec, 1")
            k("s_lshl_b32 s32, s2, 2")
            k(f"s_add_u32 s32, s32, s{S_WAVE}")
            k("s_lshl_b32 s32, s32, 5")
            k(f"s_mul_i32 s33, s{S_LAYER}, 0x200000")
            k("s_add_u32 s32, s32, s33")
            k(f"s_add_u32 s32, s32, {rt_ + 0x180000}")
            k("v_mov_b32 v253, 0")
            for n in range(8):
                k(f"v_mov_b32 v254, s{60 + 2 * n}")
                k(f"buffer_store_dword v254, v253, {srd}, s32 offen offset:{4*n}")
                k("s_nop 1")
            k("s_mov_b64 exec, -1")
        osrd()
        k(f"s_mov_b32 s20, s{S_XCC}")
        k(f"s_mov_b32 s21, s{S_TK}")
    else:
        role_assign(k, cfg)
    if cfg.get('rt'):
        k("s_lshl_b32 s92, s20, 8"); k("s_or_b32 s92, s92, s21")
    k(f"s_sub_u32 s22, 0, s{S_WS}")
    k("s_and_b32 s22, s22, 0x1fffff")
    if cfg.get('calin'):
        k("s_mov_b32 s24, 0"); k("s_mov_b32 s25, 0")
    elif cfg.get('calw', 1) > 1:
        k(f"s_lshl_b32 s23, s{S_LAYER}, 5")
        k(f"s_add_u32 s23, s23, {CT_PAR + 128}")
        k(f"s_buffer_load_dwordx8 s[24:31], {srd}, s23")
        k("s_waitcnt lgkmcnt(0)")
        for b_ in range(2):
            r = 24 + 4 * b_
            k(f"s_min_u32 s32, s{r}, s{r+1}"); k(f"s_min_u32 s33, s{r+2}, s{r+3}"); k("s_min_u32 s32, s32, s33")
            k("s_lshr_b32 s32, s32, 16")
            for j in range(4): k(f"s_and_b32 s{r+j}, s{r+j}, 0xffff")
            k(f"s_min_u32 s{r}, s{r}, s{r+1}"); k(f"s_min_u32 s33, s{r+2}, s{r+3}"); k(f"s_min_u32 s33, s33, s{r}")
            k("s_cmp_lt_u32 s33, s32")
            k(f"s_cselect_b32 s{34 + b_}, 8192, 0")
        k("s_mov_b32 s24, s34"); k("s_mov_b32 s25, s35")
    else:
        k(f"s_lshl_b32 s23, s{S_LAYER}, 3")
        k(f"s_add_u32 s23, s23, {CT_PAR}")
        k(f"s_buffer_load_dwordx2 s[24:25], {srd}, s23")
        k("s_waitcnt lgkmcnt(0)")
        k("s_and_b32 s24, s24, 8192")
        k("s_and_b32 s25, s25, 8192")
    for f, p in ((S_FD0, 24), (S_FD1, 25)):
        k(f"s_lshl_b32 s{f}, s{p}, 1")
        k(f"s_sub_u32 s{f}, 8192, s{f}")
    k(f"s_mul_i32 s23, s{S_LAYER}, {2 * EX_BLOCK}")
    k("s_add_u32 s22, s22, s23")
    k(f"s_add_u32 s{S_EB0}, s22, s24")
    k(f"s_add_u32 s{S_EB1}, s22, s25")
    k(f"s_add_u32 s{S_EB1}, s{S_EB1}, {EX_BLOCK}")
    k(f"s_mov_b32 s{S_M8}, 0x01010101")
    k(f"s_mov_b32 s{S_M8+1}, 0x01010101")
    k(f"s_mov_b32 s{S_M2}, 0x00010001")
    k(f"s_mov_b32 s{S_M2+1}, 0")
    p_setup_lanes(k)
    ovl = cfg.get('ovl')
    NA2 = cfg.get('na') in (2, 3, 4)
    OW = cfg.get('na') == 3
    other = (k.ref('spare') if NA2 else k.ref('w3')) if ovl else k.ref('end')
    if cfg.get('spread', 0):
        k("s_cmp_ge_u32 s20, 4")
        k(f"s_cbranch_scc1 {k.ref('proj') if ovl else k.ref('end')}")
        k("s_cmp_ge_u32 s21, 28")
        k(f"s_cbranch_scc1 {other}")
        k("s_cmp_ge_u32 s21, 8")
        k(f"s_cbranch_scc1 {k.ref('notp')}")
        k("s_lshl_b32 s22, s20, 3")
        k(f"s_add_u32 s{S_ROLE}, s22, s21")
        for w in range(4):
            k(f"s_cmp_eq_u32 s{S_WAVE}, {w}")
            k(f"s_cbranch_scc1 {k.ref(f'p{w}_start')}")
        k.lab('notp')
        k("s_mul_i32 s22, s20, 20")
        k("s_add_u32 s22, s22, s21")
        k(f"s_sub_u32 s{S_ROLE}, s22, 8")
    else:
        k("s_cmp_eq_u32 s20, 0")
        k(f"s_cbranch_scc0 {k.ref('notp')}")
        k(f"s_mov_b32 s{S_ROLE}, s21")
        for w in range(4):
            k(f"s_cmp_eq_u32 s{S_WAVE}, {w}")
            k(f"s_cbranch_scc1 {k.ref(f'p{w}_start')}")
        k.lab('notp')
        k("s_cmp_ge_u32 s20, 4")
        k(f"s_cbranch_scc1 {k.ref('proj') if ovl else k.ref('end')}")
        k("s_cmp_ge_u32 s21, 27")
        k(f"s_cbranch_scc1 {other}")
        k("s_sub_u32 s22, s20, 1")
        k("s_mul_i32 s22, s22, 27")
        k(f"s_add_u32 s{S_ROLE}, s22, s21")
        k(f"s_cmp_ge_u32 s{S_ROLE}, 80")
        k(f"s_cbranch_scc1 {other}")
    for w in range(4):
        k(f"s_cmp_eq_u32 s{S_WAVE}, {w}")
        k(f"s_cbranch_scc1 {k.ref(f'y{w}_start')}")
    k(f"s_branch {k.ref('end')}")
    for w in range(4): (gen_p_wave2 if cfg.get('p2') else gen_p_wave)(k, w, cfg)
    for w in range(4): gen_y_wave(k, w, cfg)
    if ovl:
        k.lab('proj')
        k("s_sub_u32 s22, s20, 4")
        k("s_lshl_b32 s22, s22, 5")
        k(f"s_add_u32 s{S_ROLE}, s22, s21")
        k(f"s_mov_b32 s{work.GS_SEG}, 0")
        k(f"s_mov_b32 s{work.GS_END}, 64")
        work.role_gemm(k, S_ROLE, dict(cfg, flag_s=S_FL))
        if cfg.get('rt'):
            k("s_memrealtime s[96:97]"); k("s_waitcnt lgkmcnt(0)"); k("s_mov_b32 s93, s96")
        if cfg.get('w3_join', 128) < 128:
            k(f"s_cmp_ge_u32 s{S_ROLE}, {cfg['w3_join']}")
            k(f"s_cbranch_scc1 {k.ref('end')}")
        if NA2:
            import aly
            k(f"s_branch {k.ref('w3')}")
            k.lab('spare')
            if cfg.get('spread', 0):
                k("s_lshl_b32 s22, s20, 2")
                k("s_add_u32 s22, s22, s21")
                k("s_sub_u32 s22, s22, 28")
            else:
                k("s_sub_u32 s22, s20, 1")
                k("s_mul_i32 s22, s22, 5")
                k("s_add_u32 s22, s22, s21")
                k("s_sub_u32 s22, s22, 27")
                k("s_cmp_ge_u32 s21, 27")
                k("s_cselect_b32 s22, s22, 15")
            k("s_cmp_lt_u32 s22, 5")
            k(f"s_cbranch_scc1 {k.ref('sp_ab')}")
            k("s_cmp_lt_u32 s22, 9")
            k(f"s_cbranch_scc1 {k.ref('sp_ln')}")
            if OW:
                k("s_cmp_eq_u32 s22, 10")
                k(f"s_cbranch_scc1 {k.ref('sp_ow')}")
                k("s_cmp_eq_u32 s22, 11")
                k(f"s_cbranch_scc1 {k.ref('sp_ow')}")
            if cfg.get('calin'):
                k("s_cmp_eq_u32 s22, 10")
                k(f"s_cbranch_scc0 {k.ref('sp_n10')}")
                cal_block(k, cfg, 1, 'cal1')
                k(f"s_branch {k.ref('w3')}")
                k.lab('sp_n10')
            k("s_cmp_eq_u32 s22, 9")
            k(f"s_cbranch_scc0 {k.ref('w3')}")
            if cfg.get('calin'):
                cal_block(k, cfg, 0, 'cal0')
                wait_par(k, cfg, 'm0_par', k.ref('bail'))
            aly.role_mem0(k, S_EB0, S_FD0 if cfg.get('ycopy') else None)
            k(f"s_branch {k.ref('w3')}")
            if OW:
                k.lab('sp_ow')
                k(f"s_sub_u32 s{S_ROLE}, s22, 10")
                aly.role_ow(k, S_ROLE, S_LAYER, S_FL, S_SPIN, k.ref('bail'), cfg)
                k(f"s_branch {k.ref('w3')}")
            k.lab('sp_ab')
            k(f"s_mov_b32 s{S_ROLE}, s22")
            k(f"s_mov_b32 s{aly.AB_SEG}, 0")
            k(f"s_mov_b32 s{aly.AB_END}, 64")
            aly.role_aback(k, S_ROLE, S_LAYER, S_FL, True, cfg, (30, k.ref('bail')) if (OW or SEMI) else None, SEMI)
            k(f"s_branch {k.ref('w3')}")
            k.lab('sp_ln')
            k(f"s_sub_u32 s{S_ROLE}, s22, 5")
            aly.role_lnw(k, S_ROLE, 4, S_FL, S_SPIN, k.ref('bail'), True, cfg)
            k("s_waitcnt vmcnt(0)")
            k("s_barrier")
        k.lab('w3')
        k(f"s_mov_b32 s{S_SPIN}, {SPIN}")
        (work.role_w3_loop2 if cfg.get('w3e') else work.role_w3_loop)(k, cfg, S_FL, S_SPIN, f"s[{S_OSRD}:{S_OSRD+3}]", S_LAYER)
        k(f"s_branch {k.ref('end')}")
    k.lab('bail')
    k("s_mov_b64 exec, 1")
    k.ptr(KA_DBG, 6)
    k("s_waitcnt lgkmcnt(0)")
    k.srd(24, 6, 256)
    k("v_mov_b32 v1, 0xdead")
    k(f"v_mov_b32 v2, s{S_STEP}")
    k("v_mov_b32 v3, 0")
    k("buffer_store_dword v1, v3, s[24:27], 0 offen")
    k("buffer_store_dword v2, v3, s[24:27], 0 offen offset:4")
    k.lab('end')
    if cfg.get('rt'):
        k("s_memrealtime s[94:95]")
        k("s_waitcnt lgkmcnt(0)")
        k("s_mov_b64 exec, 1")
        k("s_lshl_b32 s32, s2, 2")
        k(f"s_add_u32 s32, s32, s{S_WAVE}")
        k("s_lshl_b32 s32, s32, 4")
        k(f"s_mul_i32 s33, s{S_LAYER}, 0x200000")
        k("s_add_u32 s32, s32, s33")
        k(f"s_add_u32 s32, s32, {cfg['rt'] + 0x100000}")
        k("v_mov_b32 v253, 0")
        for n, sr in enumerate((90, 94, 92, 93)):
            k(f"v_mov_b32 v254, s{sr}")
            k(f"buffer_store_dword v254, v253, {srd}, s32 offen offset:{4*n}")
            k("s_nop 1")
        k("s_lshl_b32 s32, s2, 2")
        k(f"s_add_u32 s32, s32, s{S_WAVE}")
        k("s_lshl_b32 s32, s32, 5")
        k("s_add_u32 s32, s32, s33")
        k(f"s_add_u32 s32, s32, {cfg['rt'] + 0x140000}")
        for n in range(8):
            k(f"v_mov_b32 v254, s{60 + 2 * n}")
            k(f"buffer_store_dword v254, v253, {srd}, s32 offen offset:{4*n}")
            k("s_nop 1")
    k.lab('end0')
    if stub is not None: return k, stub
    return k

if __name__ == "__main__":
    STP = 240 * MB
    extra = eval(sys.argv[1]) if len(sys.argv) > 1 else {}
    ks = [build_chain("chain", 0, dict(extra)),
          build_chain("chainst", 0, dict(extra, stamp=True, stamp_p=STP, stamp_y=STP + 65536)),
          build_chain("chainrt", 0, dict(extra, rt=STP + MB, rt2=1))]
    launches = [(k_, 256, 256, PL_END) for k_ in ks]
    open(sys.argv[2] if len(sys.argv) > 2 else "chain.s", "w").write(listfile(launches, ks))
    print("lds", PL_END)
```

```python
import sys, math
sys.path.insert(0, "/code"); sys.path.insert(0, "tools")
from asmk import *
from lay import *

CSC = (192 ** -0.5) * math.log2(math.e)
S_WS = 4; SRD = 8; S_WAVE = 13
P2 = False
srd = f"s[{SRD}:{SRD+3}]"
def vr(b, n): return f"v[{b}:{b+n-1}]" if n > 1 else f"v{b}"
def ar(b, n): return f"a[{b}:{b+n-1}]"

def prologue(k, extra_ptrs=()):
    k.ptr(KA_WS, S_WS)
    for slot, s in extra_ptrs: k.ptr(slot, s)
    k("v_lshrrev_b32 v1, 6, v0")
    k("v_and_b32 v0, 63, v0")
    k("s_nop 0")
    k(f"v_readfirstlane_b32 s{S_WAVE}, v1")
    k("s_waitcnt lgkmcnt(0)")
    k.srd(SRD, S_WS, WS_BYTES)

def ex_delta(k, dst):
    k(f"s_sub_u32 s{dst}, 0, s{S_WS}")
    k(f"s_and_b32 s{dst}, s{dst}, 0x1fffff")

def p2e_lane(k, dst, p, t0, t1):
    k(f"v_and_b32 v{dst}, 0xc1, v{p}")
    k(f"v_and_b32 v{t0}, 8, v{p}")
    k(f"v_lshl_or_b32 v{dst}, v{t0}, 2, v{dst}")
    k(f"v_and_b32 v{t0}, 32, v{p}")
    k(f"v_lshrrev_b32 v{t0}, 1, v{t0}")
    k(f"v_or_b32 v{dst}, v{dst}, v{t0}")
    k(f"v_and_b32 v{t0}, 2, v{p}")
    k(f"v_lshl_or_b32 v{dst}, v{t0}, 2, v{dst}")
    k(f"v_and_b32 v{t0}, 16, v{p}")
    k(f"v_lshrrev_b32 v{t0}, 2, v{t0}")
    k(f"v_or_b32 v{dst}, v{dst}, v{t0}")
    k(f"v_and_b32 v{t0}, 4, v{p}")
    k(f"v_lshrrev_b32 v{t0}, 1, v{t0}")
    k(f"v_or_b32 v{dst}, v{dst}, v{t0}")

def wp_block_off(k, dst, x, isk, t0, t1):
    k(f"v_lshrrev_b32 v{t0}, 4, v{x}")
    if P2:
        k(f"v_and_b32 v{t1}, 3, v{t0}")
        k(f"v_mul_u32_u24 v{t1}, 6, v{t1}")
        k(f"v_lshrrev_b32 v{t0}, 2, v{t0}")
        k(f"v_add_u32 v{t0}, v{t0}, v{t1}")
    else:
        k(f"v_mul_u32_u24 v{t1}, 11, v{t0}")
        k(f"v_lshrrev_b32 v{t1}, 5, v{t1}")
        k(f"v_mul_u32_u24 v{t1}, 3, v{t1}")
        k(f"v_add_u32 v{t0}, v{t0}, v{t1}")
    if isk: k(f"v_add_u32 v{t0}, 3, v{t0}")
    k(f"v_mul_u32_u24 v{t0}, 20480, v{t0}")
    k(f"v_and_b32 v{t1}, 15, v{x}")
    k(f"v_lshl_add_u32 v{dst}, v{t1}, 4, v{t0}")

CH_ROW = [0, 1, 8, 9, 2, 3, 10, 11]

def chunk_base_lane(k, dst, c, t0):
    k(f"v_lshrrev_b32 v{dst}, 2, v{c}")
    k(f"v_lshlrev_b32 v{dst}, 5, v{dst}")
    k(f"v_and_b32 v{t0}, 2, v{c}")
    k(f"v_lshl_add_u32 v{dst}, v{t0}, 3, v{dst}")
    k(f"v_and_b32 v{t0}, 1, v{c}")
    k(f"v_lshl_add_u32 v{dst}, v{t0}, 2, v{dst}")

N_WVO = 160
N_PWP = 240
N_CLR = 64
N_CTL = 5
PREP_WG = N_WVO + N_PWP + N_CLR + N_CTL

def role_wvo(k):
    L = lambda s: k.ref('wvo_' + s)
    k.ptr(KA_WV, 24); k.ptr(KA_WO, 26)
    k("s_and_b32 s21, s20, 1")
    k("s_lshr_b32 s22, s20, 1")
    k("s_mul_i32 s23, s22, 205")
    k("s_lshr_b32 s23, s23, 11")
    k("s_mul_i32 s28, s23, 10")
    k("s_sub_u32 s22, s22, s28")
    k("s_waitcnt lgkmcnt(0)")
    k.srd(32, 24, 640 * 6144 * 2)
    k.srd(36, 26, 6144 * 640 * 2)
    VI, VH = 1, 2
    k(f"v_and_b32 v{VI}, 31, v0")
    k(f"v_lshrrev_b32 v{VH}, 5, v0")
    BE, BO, TMP = 16, 64, 112
    k(f"v_mul_u32_u24 v3, {8 * 1280}, v{VH}")
    k(f"v_lshl_add_u32 v3, v{VI}, 2, v3")
    k(f"s_mul_i32 s28, s23, {192*1280}")
    k("s_lshl_b32 s29, s22, 7")
    k("s_add_u32 s28, s28, s29")
    for half in range(2):
        for kk in range(6):
            kap = half * 6 + kk
            for j in range(8):
                row = 16 * kap + j
                k(f"s_add_u32 s29, s28, {row * 1280}")
                k(f"buffer_load_dword v{TMP + 8 * kk + j}, v3, s[36:39], s29 offen")
        k("v_mov_b32 v4, 0x05040100")
        k("v_mov_b32 v5, 0x07060302")
        k("s_waitcnt vmcnt(0)")
        for kk in range(6):
            kap = half * 6 + kk
            for m in range(4):
                k(f"v_perm_b32 v{BE + 4 * kap + m}, v{TMP + 8 * kk + 2 * m + 1}, v{TMP + 8 * kk + 2 * m}, v4")
                k(f"v_perm_b32 v{BO + 4 * kap + m}, v{TMP + 8 * kk + 2 * m + 1}, v{TMP + 8 * kk + 2 * m}, v5")
    k(f"v_lshrrev_b32 v6, 3, v{VI}")
    chunk_base_lane(k, 7, 6, 8)
    k(f"v_and_b32 v8, 7, v{VI}")
    k("v_and_b32 v9, 1, v8")
    k("v_add_u32 v7, v7, v9")
    k("v_and_b32 v9, 2, v8")
    k("v_lshl_add_u32 v7, v9, 2, v7")
    k("v_lshrrev_b32 v9, 2, v8")
    k("v_lshl_add_u32 v7, v9, 1, v7")
    k("v_mul_u32_u24 v7, 12288, v7")
    k(f"v_lshl_add_u32 v7, v{VH}, 4, v7")
    k("s_mul_i32 s28, s23, 384")
    k(f"s_mul_i32 s29, s21, {10 * 32 * 12288}")
    k("s_add_u32 s28, s28, s29")
    k(f"v_lshrrev_b32 v10, 2, v{VI}")
    k("v_mul_u32_u24 v10, 20480, v10")
    k("v_lshlrev_b32 v10, 4, v10")
    k(f"v_and_b32 v11, 3, v{VI}")
    k("v_lshl_add_u32 v10, v11, 5, v10")
    k(f"v_lshl_add_u32 v10, v{VH}, 8, v10")
    k(f"s_mul_i32 s30, s22, {8 * 327680}")
    k("s_lshr_b32 s31, s23, 3")
    k("s_mul_i32 s31, s31, 81920")
    k("s_add_u32 s30, s30, s31")
    k("s_and_b32 s31, s23, 3")
    k("s_mul_i32 s31, s31, 20480")
    k("s_add_u32 s30, s30, s31")
    k("s_bfe_u32 s31, s23, 0x10002")
    k("s_lshl_b32 s31, s31, 7")
    k("s_add_u32 s30, s30, s31")
    k(f"s_mul_i32 s31, s21, 10240")
    k("s_add_u32 s30, s30, s31")
    k(f"s_add_u32 s30, s30, {WY}")
    AF0, AF1, ACC, OUT = 112, 160, 208, 240
    def aload(dst):
        for kap in range(12):
            k(f"buffer_load_dwordx4 {vr(dst + 4 * kap, 4)}, v7, s[32:35], s28 offen offset:{kap * 32}")
        k(f"s_add_u32 s28, s28, {32 * 12288}")
    def tile(src):
        for kap in range(12):
            for t, B in ((0, BE), (1, BO)):
                c = "0" if kap == 0 else vr(ACC + 16 * t, 16)
                k(f"v_mfma_f32_32x32x16_bf16 {vr(ACC + 16 * t, 16)}, {vr(src + 4 * kap, 4)}, {vr(B + 4 * kap, 4)}, {c}")
        k("s_nop 7"); k("s_nop 7")
        for t in range(2):
            a = ACC + 16 * t
            for j in range(2):
                o = OUT + 4 * j
                for q in range(2):
                    k(f"v_cvt_pk_bf16_f32 v{o + 2 * q}, v{a + 8 * j + 4 * q}, v{a + 8 * j + 4 * q + 1}")
                    k(f"v_cvt_pk_bf16_f32 v{o + 2 * q + 1}, v{a + 8 * j + 4 * q + 2}, v{a + 8 * j + 4 * q + 3}")
                k("s_nop 1")
                k(f"v_permlane32_swap_b32 v{o}, v{o + 2}")
                k(f"v_permlane32_swap_b32 v{o + 1}, v{o + 3}")
                k(f"buffer_store_dwordx4 {vr(o, 4)}, v10, {srd}, s30 offen offset:{j * 512 + t * 16}")
            k("s_nop 1")
        k("s_add_u32 s30, s30, 1024")
    aload(AF0)
    k("s_mov_b32 s31, 5")
    k.lab('wvo_loop')
    aload(AF1)
    k("s_waitcnt vmcnt(12)")
    tile(AF0)
    k("s_cmp_eq_u32 s31, 1")
    k(f"s_cbranch_scc1 {L('last')}")
    aload(AF0)
    k("s_waitcnt vmcnt(12)")
    tile(AF1)
    k("s_sub_u32 s31, s31, 1")
    k(f"s_branch {L('loop')}")
    k.lab('wvo_last')
    k("s_waitcnt vmcnt(0)")
    tile(AF1)
    k(f"s_branch {k.ref('end')}")

class VQ:
    def __init__(self, k): self.k = k; self.q = []
    def op(self, ins, tag=None):
        self.k(ins); self.q.append(tag)
    def wait(self, tag):
        idx = [i for i, t in enumerate(self.q) if t == tag]
        if not idx: return
        n = len(self.q) - 1 - idx[-1]
        assert n <= 63
        self.k(f"s_waitcnt vmcnt({n})"); self.q = self.q[idx[-1] + 1:]

WVO_NS = 1
WVO_NB = 3
WVO_BUF = 192 * 128
WVO_LDS = WVO_NB * WVO_BUF
def role_wvo2(k, ns):
    nsl = 10 // ns
    k.ptr(KA_WV, 24); k.ptr(KA_WO, 26)
    per = 5 * ns
    k(f"s_mul_i32 s23, s20, {(65536 + per - 1) // per}")
    k("s_lshr_b32 s23, s23, 16")
    k(f"s_mul_i32 s28, s23, {per}")
    k("s_sub_u32 s22, s20, s28")
    if ns == 2:
        k("s_and_b32 s21, s22, 1"); k("s_lshr_b32 s22, s22, 1")
    else:
        k("s_mov_b32 s21, 0")
    k("s_waitcnt lgkmcnt(0)")
    k.srd(32, 24, 640 * 6144 * 2)
    k.srd(36, 26, 6144 * 640 * 2)
    VI, VH, VD, VR0, VR1, VA, VS = 1, 2, 3, 4, 5, 7, 10
    k(f"v_and_b32 v{VI}, 31, v0")
    k(f"v_lshrrev_b32 v{VH}, 5, v0")
    k("v_lshrrev_b32 v11, 3, v0")
    k(f"v_mul_u32_u24 v{VD}, 1280, v11")
    k("v_bfe_u32 v12, v0, 4, 1")
    k("v_lshlrev_b32 v12, 2, v12")
    k("v_and_b32 v13, 7, v0")
    k("v_xor_b32 v13, v13, v12")
    k(f"v_lshl_add_u32 v{VD}, v13, 4, v{VD}")
    k("s_mul_i32 s28, s23, 192")
    k(f"s_mul_i32 s29, s{S_WAVE}, 48")
    k("s_add_u32 s28, s28, s29")
    k("s_mul_i32 s28, s28, 1280")
    k(f"s_mul_i32 s29, s21, {nsl * 128}")
    k("s_add_u32 s28, s28, s29")
    k(f"s_mul_i32 s29, s{S_WAVE}, 6144")
    k("v_bfe_u32 v11, v0, 2, 2")
    k(f"v_lshl_add_u32 v12, v{VH}, 3, v11")
    k("v_lshlrev_b32 v12, 7, v12")
    k("v_bfe_u32 v13, v0, 4, 1")
    k("v_lshlrev_b32 v13, 1, v13")
    k("v_bfe_u32 v14, v0, 1, 1")
    k("v_add_u32 v13, v13, v14")
    k("v_lshl_add_u32 v12, v13, 4, v12")
    k("v_and_b32 v13, 1, v0")
    k("v_lshl_add_u32 v12, v13, 3, v12")
    k("v_bfe_u32 v13, v0, 3, 1")
    k(f"v_lshl_add_u32 v{VR0}, v13, 6, v12")
    k("v_xor_b32 v13, 1, v13")
    k(f"v_lshl_add_u32 v{VR1}, v13, 6, v12")
    k(f"v_lshrrev_b32 v6, 3, v{VI}")
    chunk_base_lane(k, VA, 6, 8)
    k(f"v_and_b32 v8, 7, v{VI}")
    k("v_and_b32 v9, 1, v8")
    k(f"v_add_u32 v{VA}, v{VA}, v9")
    k("v_and_b32 v9, 2, v8")
    k(f"v_lshl_add_u32 v{VA}, v9, 2, v{VA}")
    k("v_lshrrev_b32 v9, 2, v8")
    k(f"v_lshl_add_u32 v{VA}, v9, 1, v{VA}")
    k(f"v_mul_u32_u24 v{VA}, 12288, v{VA}")
    k(f"v_lshl_add_u32 v{VA}, v{VH}, 4, v{VA}")
    k("s_lshl_b32 s30, s22, 2")
    k(f"s_add_u32 s30, s30, s{S_WAVE}")
    k(f"s_mul_i32 s31, s30, {32 * 12288}")
    k("s_mul_i32 s40, s23, 384")
    k("s_add_u32 s31, s31, s40")
    k(f"v_lshrrev_b32 v{VS}, 3, v{VI}")
    k(f"v_mul_u32_u24 v{VS}, 20480, v{VS}")
    k(f"v_lshlrev_b32 v{VS}, 4, v{VS}")
    k(f"v_and_b32 v11, 7, v{VI}")
    k(f"v_lshl_add_u32 v{VS}, v11, 4, v{VS}")
    k(f"v_lshl_add_u32 v{VS}, v{VH}, 8, v{VS}")
    k(f"s_mul_i32 s41, s21, {nsl * 8 * 327680}")
    k("s_lshr_b32 s40, s23, 3")
    k("s_mul_i32 s40, s40, 81920")
    k("s_add_u32 s41, s41, s40")
    k("s_and_b32 s40, s23, 3")
    k("s_mul_i32 s40, s40, 20480")
    k("s_add_u32 s41, s41, s40")
    k("s_bfe_u32 s40, s23, 0x10002")
    k("s_lshl_b32 s40, s40, 7")
    k("s_add_u32 s41, s41, s40")
    k("s_lshl_b32 s40, s30, 10")
    k("s_add_u32 s41, s41, s40")
    k(f"s_add_u32 s41, s41, {WY}")
    AF, BF, ACC, OUT = 16, 64, 160, 192
    vq = VQ(k)
    def dma(s):
        for i in range(6):
            k(f"s_add_u32 s42, s29, {(s % WVO_NB) * WVO_BUF + i * 1024}")
            k("s_mov_b32 m0, s42")
            k(f"s_add_u32 s43, s28, {s * 128 + i * 8 * 1280}")
            vq.op(f"buffer_load_dwordx4 v{VD}, s[36:39], s43 offen lds", ('d', s))
    for kap in range(12):
        vq.op(f"buffer_load_dwordx4 {vr(AF + 4 * kap, 4)}, v{VA}, s[32:35], s31 offen offset:{kap * 32}", 'a')
    for s in range(min(WVO_NB, nsl)): dma(s)
    RA = 200
    for b_ in range(WVO_NB):
        k(f"v_add_u32 v{RA + 2 * b_}, {b_ * WVO_BUF}, v{VR0}")
        k(f"v_add_u32 v{RA + 2 * b_ + 1}, {b_ * WVO_BUF}, v{VR1}")
    def rd(s, t, kap):
        b = BF + 48 * t
        for j in range(2):
            k(f"ds_read_b64_tr_b16 {vr(b + 4 * kap + 2 * j, 2)}, v{RA + 2 * (s % WVO_NB) + t} offset:{kap * 2048 + j * 512}")
    def epi(t, s):
        a = ACC + 16 * t; it = []
        it.append(f"s_add_u32 s42, s41, {(8 * s + 4 * t) * 327680}")
        for j in range(2):
            o = OUT + 4 * j
            for q in range(2):
                it.append(f"v_cvt_pk_bf16_f32 v{o + 2 * q}, v{a + 8 * j + 4 * q}, v{a + 8 * j + 4 * q + 1}")
                it.append(f"v_cvt_pk_bf16_f32 v{o + 2 * q + 1}, v{a + 8 * j + 4 * q + 2}, v{a + 8 * j + 4 * q + 3}")
            it.append("s_nop 1")
            it.append(f"v_permlane32_swap_b32 v{o}, v{o + 2}")
            it.append(f"v_permlane32_swap_b32 v{o + 1}, v{o + 3}")
            it.append(('st', f"buffer_store_dwordx4 {vr(o, 4)}, v{VS}, {srd}, s42 offen offset:{j * 512}"))
        return it
    vq.wait(('d', 0))
    k("s_barrier")
    for kap in range(12): rd(0, 0, kap) if kap < 6 else None
    k("s_waitcnt lgkmcnt(0)")
    for kap in range(6, 12): rd(0, 0, kap)
    prev = None
    for s in range(nsl):
        for t in range(2):
            k("s_waitcnt lgkmcnt(0)")
            nxt = (s, 1) if t == 0 else ((s + 1, 0) if s + 1 < nsl else None)
            if t == 1:
                if s + 1 < nsl: vq.wait(('d', s + 1))
                k("s_barrier")
                if s + WVO_NB < nsl: dma(s + WVO_NB)
            side = epi(*prev) if prev else []
            for kap in range(12):
                d = vr(ACC + 16 * t, 16)
                k(f"v_mfma_f32_32x32x16_bf16 {d}, {vr(AF + 4 * kap, 4)}, {vr(BF + 48 * t + 4 * kap, 4)}, {'0' if kap == 0 else d}")
                if nxt: rd(nxt[0], nxt[1], kap)
                if kap >= 2:
                    for _ in range(3):
                        if side:
                            x = side.pop(0)
                            if isinstance(x, tuple): vq.op(x[1], 'st')
                            else: k(x)
            assert not side
            prev = (t, s)
    k("s_nop 7"); k("s_nop 7"); k("s_nop 7")
    for x in epi(*prev):
        if isinstance(x, tuple): vq.op(x[1], 'st')
        else: k(x)
    k(f"s_branch {k.ref('end')}")

def role_pwp(k):
    L = lambda s: k.ref('pwp_' + s)
    k("s_mul_i32 s21, s20, 13108"); k("s_lshr_b32 s21, s21, 16")
    k("s_mul_i32 s22, s21, 5"); k("s_sub_u32 s22, s20, s22")
    k("s_mul_i32 s23, s21, 21846"); k("s_lshr_b32 s23, s23, 16")
    k("s_mul_i32 s28, s23, 3"); k("s_sub_u32 s21, s21, s28")
    k("s_lshr_b32 s29, s23, 5")
    k("s_and_b32 s23, s23, 31")
    k("s_cmp_eq_u32 s29, 0")
    k(f"s_cbranch_scc0 {L('k')}")
    k.ptr(KA_WQ, 24)
    k(f"s_branch {L('go')}")
    k.lab('pwp_k')
    k.ptr(KA_WK, 24)
    k.lab('pwp_go')
    k("v_and_b32 v1, 31, v0")
    k("v_lshrrev_b32 v2, 5, v0")
    k("s_lshl_b32 s28, s21, 6")
    k("v_lshlrev_b32 v3, 1, v1")
    k("v_add_u32 v3, s28, v3")
    p2e_lane(k, 4, 3, 5, 6)
    k("s_cmp_eq_u32 s29, 0")
    k("s_cselect_b64 vcc, -1, 0")
    k("s_nop 1")
    k("v_cndmask_b32 v4, v4, v3, vcc")
    wp_block_off(k, 7, 3, 0, 5, 6)
    k(f"s_mul_i32 s30, s29, {3*20480}")
    k("s_mul_i32 s31, s23, 491520")
    k("s_add_u32 s30, s30, s31")
    k(f"s_add_u32 s30, s30, {WP}")
    k("s_lshl_b32 s31, s22, 4")
    k("v_add_u32 v8, s31, v2")
    k("s_waitcnt lgkmcnt(0)")
    k.srd(32, 24, 640 * 6144 * 2)
    k("s_mul_i32 s28, s23, 384")
    RAW, OUT = 16, 80
    for it in range(8):
        k(f"v_add_u32 v9, {2 * it}, v8")
        chunk_base_lane(k, 10, 9, 11)
        k("v_mul_u32_u24 v10, 12288, v10")
        k("v_lshl_add_u32 v10, v4, 1, v10")
        for j in range(8):
            k(f"s_add_u32 s31, s28, {CH_ROW[j] * 12288}")
            k(f"buffer_load_dword v{RAW + 8 * it + j}, v10, s[32:35], s31 offen")
    k("v_lshl_add_u32 v7, v8, 8, v7")
    k("v_mov_b32 v4, 0x05040100")
    k("v_mov_b32 v5, 0x07060302")
    for it in range(8):
        k(f"s_waitcnt vmcnt({8 * (7 - it)})")
        o = OUT + 8 * (it & 1)
        for m in range(4):
            k(f"v_perm_b32 v{o + m}, v{RAW + 8 * it + 2 * m + 1}, v{RAW + 8 * it + 2 * m}, v4")
            k(f"v_perm_b32 v{o + 4 + m}, v{RAW + 8 * it + 2 * m + 1}, v{RAW + 8 * it + 2 * m}, v5")
        k(f"buffer_store_dwordx4 {vr(o, 4)}, v7, {srd}, s30 offen offset:{it * 512}")
        k(f"buffer_store_dwordx4 {vr(o + 4, 4)}, v7, {srd}, s30 offen offset:{it * 512 + 16}")
        if it >= 1: k("s_nop 0")
    k(f"s_branch {k.ref('end')}")

def role_clear(k):
    ex_delta(k, 21)
    per = 4 * EX_BLOCK // N_CLR
    k(f"s_mul_i32 s22, s20, {per}")
    k("s_add_u32 s21, s21, s22")
    k(f"s_lshl_b32 s22, s{S_WAVE}, 10")
    k("s_add_u32 s21, s21, s22")
    k("v_lshlrev_b32 v1, 4, v0")
    for r in range(4, 8): k(f"v_mov_b32 v{r}, -1")
    k(f"s_mov_b32 s22, {per // 4096}")
    k.lab('clr_loop')
    k(f"buffer_store_dwordx4 v[4:7], v1, {srd}, s21 offen")
    k("s_add_u32 s21, s21, 4096")
    k("s_sub_u32 s22, s22, 1")
    k("s_cmp_lg_u32 s22, 0")
    k(f"s_cbranch_scc1 {k.ref('clr_loop')}")
    k(f"s_branch {k.ref('end')}")

CAL_N = 15
import os
CAL_DUMP = int(os.environ.get('CAL_DUMP', '0'))
if CAL_DUMP: CAL_N = 30
def role_zero(k):
    k("v_lshlrev_b32 v1, 4, v0")
    for r in range(4, 8): k(f"v_mov_b32 v{r}, 0")
    k(f"s_lshl_b32 s21, s{S_WAVE}, 10")
    k(f"s_add_u32 s21, s21, {CT_TICK}")
    k(f"buffer_store_dwordx4 v[4:7], v1, {srd}, s21 offen")
    k(f"s_lshl_b32 s21, s{S_WAVE}, 15")
    k(f"s_add_u32 s21, s21, {CT_FLAG}")
    assert 4 * 32768 == 2 * FL_LAYER
    for i in range(32):
        k(f"buffer_store_dwordx4 v[4:7], v1, {srd}, s21 offen offset:{(i % 4) * 1024}")
        if i % 4 == 3: k("s_add_u32 s21, s21, 4096")
    k(f"s_lshl_b32 s21, s{S_WAVE}, 15")
    k(f"s_add_u32 s21, s21, {KVT}")
    assert 4 * 32768 == 2 * KVT_L
    for i in range(32):
        k(f"buffer_store_dwordx4 v[4:7], v1, {srd}, s21 offen offset:{(i % 4) * 1024}")
        if i % 4 == 3: k("s_add_u32 s21, s21, 4096")
    k(f"s_branch {k.ref('end')}")

def role_cal(k, CAL_N=CAL_N, NW=1):
    k(f"s_cmp_lg_u32 s{S_WAVE}, 0")
    k(f"s_cbranch_scc1 {k.ref('end')}")
    ex_delta(k, 22)
    if NW > 1:
        k("s_lshr_b32 s21, s20, 2")
        k("s_and_b32 s20, s20, 3")
        k(f"s_mul_i32 s24, s21, {EX_STEP}")
        k("s_sub_u32 s22, s22, s24")
    k("s_getreg_b32 s23, hwreg(HW_REG_XCC_ID)")
    k("s_bfe_u32 s23, s23, 0x10002")
    k("s_mov_b64 exec, 1")
    k("v_mov_b32 v1, 0")
    cal = physmap(CAL_LOG)
    k(f"s_mul_i32 s24, s20, {EX_BLOCK}")
    k("s_add_u32 s22, s22, s24")
    k(f"s_add_u32 s22, s22, {31 * EX_STEP + cal}")
    k("s_mov_b32 s30, -1")
    k("s_mov_b32 s31, -1")
    k(f"s_mov_b32 s25, {CAL_N}")
    k("v_mov_b32 v2, 0")
    k.lab('cal')
    for p in range(2):
        k("s_and_b32 s24, s25, 15")
        k("s_lshl_b32 s24, s24, 7")
        k("s_add_u32 s24, s24, s22")
        if p: k(f"s_add_u32 s24, s24, {p * 8192}")
        k("s_memtime s[26:27]")
        k("s_waitcnt lgkmcnt(0)")
        k(f"buffer_atomic_add v2, v1, {srd}, s24 offen sc0 sc1")
        k("s_waitcnt vmcnt(0)")
        k("s_memtime s[28:29]")
        k("v_mov_b32 v2, 0")
        k("s_waitcnt lgkmcnt(0)")
        k("s_sub_u32 s26, s28, s26")
        k(f"s_min_u32 s{30 + p}, s{30 + p}, s26")
        if CAL_DUMP:
            k("s_lshl_b32 s27, s20, 8")
            k("s_lshl_b32 s28, s25, 3")
            k("s_add_u32 s27, s27, s28")
            k(f"s_add_u32 s27, s27, {CT_PAR + 0x1000 + 4 * p}")
            k("v_mov_b32 v3, s26")
            k(f"buffer_store_dword v3, v1, {srd}, s27 offen")
            k("s_waitcnt vmcnt(0)")
    k("s_sub_u32 s25, s25, 1")
    k("s_cmp_lg_u32 s25, 0")
    k(f"s_cbranch_scc1 {k.ref('cal')}")
    if NW > 1:
        k("s_min_u32 s30, s30, 0xffff"); k("s_min_u32 s31, s31, 0xffff")
        k("s_cmp_eq_u32 s23, 0")
        k("s_cselect_b32 s24, s30, s31")
        k("s_cselect_b32 s25, s31, s30")
        k("s_lshl_b32 s24, s24, 16")
        k("s_or_b32 s24, s24, s25")
        k("v_mov_b32 v3, s24")
        k("s_lshl_b32 s25, s20, 4")
        k("s_lshl_b32 s26, s21, 2")
        k("s_add_u32 s25, s25, s26")
        k(f"s_add_u32 s25, s25, {CT_PAR + 128}")
        k(f"buffer_store_dword v3, v1, {srd}, s25 offen")
        k(f"s_branch {k.ref('end')}")
        return
    k("s_cmp_lt_u32 s31, s30")
    k("s_cselect_b32 s24, 1, 0")
    k("s_xor_b32 s24, s24, s23")
    k("s_lshl_b32 s24, s24, 13")
    k("v_mov_b32 v3, s24")
    k("s_lshl_b32 s25, s20, 2")
    k(f"s_add_u32 s25, s25, {CT_PAR}")
    k(f"buffer_store_dword v3, v1, {srd}, s25 offen")
    k("s_lshl_b32 s26, s30, 16")
    k("s_or_b32 s26, s26, s31")
    k("v_mov_b32 v3, s26")
    k(f"buffer_store_dword v3, v1, {srd}, s25 offen offset:64")
    k(f"s_branch {k.ref('end')}")

def build_prep(name="prep", newa=False, cfg=None):
    import aly
    cfg = cfg or {}
    k = K(name, vgpr=248, sgpr=64)
    W2 = cfg.get('wvo2', 0)
    NWVO = 160 * W2 if W2 else N_WVO
    CW = cfg.get('calw', 1); assert CW in (1, 4)
    NCTL = 4 * CW + 1
    total = PREP_WG - N_CTL + NCTL - N_WVO + NWVO + (aly.N_PWA + aly.N_PWO if newa else 0)
    k(f"s_cmp_ge_u32 s2, {total}")
    k(f"s_cbranch_scc1 {k.ref('end0' if cfg.get('prt') else 'end')}")
    if cfg.get('prt'): k("s_memrealtime s[60:61]")
    prologue(k)
    k("s_mov_b32 s20, s2")
    k(f"s_cmp_lt_u32 s2, {4 * CW}")
    k(f"s_cbranch_scc1 {k.ref('r_cal')}")
    k(f"s_cmp_eq_u32 s2, {4 * CW}")
    k(f"s_cbranch_scc1 {k.ref('r_zero')}")
    k(f"s_sub_u32 s20, s2, {NCTL}")
    if newa:
        k(f"s_cmp_lt_u32 s20, {aly.N_PWA}")
        k(f"s_cbranch_scc1 {k.ref('r_pwa')}")
        k(f"s_sub_u32 s20, s20, {aly.N_PWA}")
        k(f"s_cmp_lt_u32 s20, {aly.N_PWO}")
        k(f"s_cbranch_scc1 {k.ref('r_pwo')}")
        k(f"s_sub_u32 s20, s20, {aly.N_PWO}")
    k(f"s_cmp_lt_u32 s20, {NWVO}")
    k(f"s_cbranch_scc1 {k.ref('r_wvo')}")
    k(f"s_sub_u32 s20, s20, {NWVO}")
    k(f"s_cmp_lt_u32 s20, {N_PWP}")
    k(f"s_cbranch_scc1 {k.ref('r_pwp')}")
    k(f"s_sub_u32 s20, s20, {N_PWP}")
    if 'clr' in cfg.get('pskip', ''): k(f"s_branch {k.ref('end')}")
    role_clear(k)
    k.lab('r_cal')
    if 'cal' in cfg.get('pskip', ''): k(f"s_branch {k.ref('end')}")
    role_cal(k, cfg.get('caln', CAL_N), CW)
    k.lab('r_zero'); role_zero(k)
    k.lab('r_wvo')
    if 'wvo' in cfg.get('pskip', ''): k(f"s_branch {k.ref('end')}")
    if W2: role_wvo2(k, W2)
    else:
        k("s_lshl_b32 s20, s20, 2"); k(f"s_add_u32 s20, s20, s{S_WAVE}")
        role_wvo(k)
    k.lab('r_pwp')
    if 'pwp' in cfg.get('pskip', ''): k(f"s_branch {k.ref('end')}")
    k("s_lshl_b32 s20, s20, 2"); k(f"s_add_u32 s20, s20, s{S_WAVE}")
    role_pwp(k)
    if newa:
        k.lab('r_pwa'); aly.role_pwa(k, (cfg or {}).get('g4', 0))
        k.lab('r_pwo')
        k("s_lshl_b32 s20, s20, 2"); k(f"s_add_u32 s20, s20, s{S_WAVE}")
        aly.role_pwo(k)
    k.lab('end')
    if cfg.get('prt'):
        k("s_waitcnt vmcnt(0)")
        k("s_memrealtime s[62:63]")
        k("s_waitcnt lgkmcnt(0)")
        k("s_mov_b64 exec, 1")
        k("s_lshl_b32 s32, s2, 2")
        k(f"s_add_u32 s32, s32, s{S_WAVE}")
        k("s_lshl_b32 s32, s32, 4")
        k(f"s_add_u32 s32, s32, {cfg['prt']}")
        k("s_getreg_b32 s33, hwreg(HW_REG_XCC_ID)")
        k("v_mov_b32 v1, 0")
        for n, sr in enumerate((60, 62, 33)):
            k(f"v_mov_b32 v2, s{sr}")
            k(f"buffer_store_dword v2, v1, {srd}, s32 offen offset:{4*n}")
            k("s_nop 1")
        k.lab('end0')
    return k, total

def wave_sum(k, v, tmp, s0):
    k("s_nop 1")
    k(f"v_add_f32 v{tmp}, v{v}, v{v} quad_perm:[1,0,3,2] row_mask:0xf bank_mask:0xf")
    k("s_nop 1")
    k(f"v_add_f32 v{tmp}, v{tmp}, v{tmp} quad_perm:[2,3,0,1] row_mask:0xf bank_mask:0xf")
    k("s_nop 1")
    k(f"v_add_f32 v{tmp}, v{tmp}, v{tmp} row_half_mirror row_mask:0xf bank_mask:0xf")
    k("s_nop 1")
    k(f"v_add_f32 v{tmp}, v{tmp}, v{tmp} row_mirror row_mask:0xf bank_mask:0xf")
    k("s_nop 1")
    for i in range(4): k(f"v_readlane_b32 s{s0+i}, v{tmp}, {16*i}")
    k("s_nop 1")
    k(f"v_mov_b32 v{v}, s{s0}")
    for i in range(1, 4): k(f"v_add_f32 v{v}, s{s0+i}, v{v}")

def build_lnb(name, layer, src_off):
    k = K(name, vgpr=32, sgpr=48)
    k("s_cmp_gt_u32 s2, 512")
    k(f"s_cbranch_scc1 {k.ref('end')}")
    prologue(k, [(KA_MEM0, 6)])
    k("s_cmp_eq_u32 s2, 512")
    k(f"s_cbranch_scc1 {k.ref('mem0')}")
    k("s_lshl_b32 s20, s2, 2")
    k(f"s_add_u32 s20, s20, s{S_WAVE}")
    k("s_mul_i32 s21, s20, 1280")
    k(f"s_add_u32 s21, s21, {src_off}")
    k("v_lshlrev_b32 v3, 2, v0")
    for j in range(5): k(f"buffer_load_dword v{4+j}, v3, {srd}, s21 offen offset:{j*256}")
    k("v_lshrrev_b32 v20, 4, v0")
    k("v_lshlrev_b32 v20, 2, v20")
    k("v_bfe_u32 v21, v0, 3, 1")
    k("v_lshl_add_u32 v20, v21, 1, v20")
    k("v_bfe_u32 v21, v0, 1, 1")
    k("v_add_u32 v20, v20, v21")
    k("v_lshlrev_b32 v20, 9, v20")
    k("v_and_b32 v21, 1, v0")
    k("v_lshl_add_u32 v20, v21, 3, v20")
    k("v_bfe_u32 v21, v0, 2, 1")
    k("v_lshl_add_u32 v23, v21, 2, v20")
    k("s_lshr_b32 s22, s20, 5")
    k(f"s_mul_i32 s22, s22, {XN_SEG}")
    k("s_and_b32 s23, s20, 31")
    k("s_lshl_b32 s23, s23, 4")
    k("s_add_u32 s22, s22, s23")
    k(f"s_add_u32 s22, s22, {XN}")
    k("s_waitcnt vmcnt(0)")
    for j in range(5):
        k(f"v_lshlrev_b32 v{10+2*j}, 16, v{4+j}")
        k(f"v_and_b32 v{11+2*j}, 0xffff0000, v{4+j}")
    k("v_add_f32 v20, v10, v11")
    for j in range(2, 10): k(f"v_add_f32 v20, v20, v{10+j}")
    wave_sum(k, 20, 21, 24)
    k(f"v_mul_f32 v20, {hexf(1.0/640)}, v20")
    for j in range(10): k(f"v_sub_f32 v{10+j}, v{10+j}, v20")
    k("v_mul_f32 v21, v10, v10")
    for j in range(1, 10): k(f"v_fmac_f32 v21, v{10+j}, v{10+j}")
    wave_sum(k, 21, 22, 24)
    k("v_mov_b32 v22, 0x3727c5ac")
    k(f"v_fmac_f32 v22, {hexf(1.0/640)}, v21")
    k("v_rsq_f32 v22, v22")
    k("s_nop 0")
    for j in range(10): k(f"v_mul_f32 v{10+j}, v{10+j}, v22")
    for j in range(5): k(f"v_cvt_pk_bf16_f32 v{4+j}, v{10+2*j}, v{11+2*j}")
    for j in range(5):
        k(f"s_add_u32 s23, s22, {j * 16 * 512}")
        k(f"buffer_store_dword v{4+j}, v23, {srd}, s23 offen")
    k(f"s_branch {k.ref('end')}")
    k.lab('mem0')
    k.srd(16, 6, 8 * 640 * 2)
    ex_delta(k, 22)
    k(f"s_mov_b32 s23, {CT_PAR + 8 * layer}")
    k(f"s_buffer_load_dword s24, {srd}, s23")
    k("s_waitcnt lgkmcnt(0)")
    k("s_and_b32 s24, s24, 8192")
    k(f"s_add_u32 s22, s22, {2 * layer * EX_BLOCK}")
    k("s_xor_b32 s25, s24, 8192")
    k("s_add_u32 s26, s22, s25")
    k("s_add_u32 s22, s22, s24")
    k(f"s_lshl_b32 s25, s{S_WAVE}, 6")
    k("v_add_u32 v1, s25, v0")
    for it in range(3):
        k(f"v_add_u32 v2, {256 * it}, v1")
        k("v_and_b32 v3, 7, v2")
        k("v_mul_u32_u24 v3, 1280, v3")
        k("v_lshrrev_b32 v4, 3, v2")
        k("v_lshl_add_u32 v3, v4, 4, v3")
        k("v_lshlrev_b32 v5, 4, v2")
        k(f"v_add_u32 v5, {M_LOG}, v5")
        k("v_lshrrev_b32 v6, 13, v5")
        k("v_lshlrev_b32 v6, 14, v6")
        k("v_and_b32 v5, 8191, v5")
        k("v_add_u32 v5, v5, v6")
        k("v_cmp_gt_u32 vcc, 640, v2")
        k("s_and_saveexec_b64 s[30:31], vcc")
        sk = k.ref(f'm0s{it}')
        k(f"s_cbranch_execz {sk}")
        k("buffer_load_dwordx4 v[8:11], v3, s[16:19], 0 offen")
        k("s_waitcnt vmcnt(0)")
        k(f"buffer_store_dwordx4 v[8:11], v5, {srd}, s22 offen")
        k(f"buffer_store_dwordx4 v[8:11], v5, {srd}, s26 offen")
        k.lab(f'm0s{it}')
        k("s_mov_b64 exec, s[30:31]")
    k.lab('end')
    return k, 513

G_LDS = 3 * XN_SEG
GV_L16 = 1; GV_RD = 2; GV_ST = 3; GV_W = 4
G_RING = 8; G_NR = 8
G_ACC = 40
G_OUT = 104
G_WV = 192
GS_LNW = 56; GS_LNA = 57; GS_SPIN = 58
GS_SEG = 14; GS_END = 15; GS_BUF = 16; GS_ST0 = 17; GS_ST1 = 18; GS_DMA = 19; GS_INC = 20; GS_LB = 21; GS_NB = 22

def gw(kap, t):
    n = kap * 2 + t
    return ar(4 * n, 4) if n < 64 else vr(G_WV + 4 * (n - 64), 4)

def gemm_body(k, isu, tag, cfg):
    L = lambda s: k.ref(f"g{tag}_{s}")
    lab = lambda s: k.lab(f"g{tag}_{s}")
    ovl = cfg.get('ovl'); SC1 = " sc1" if ovl else ""
    LNW = cfg.get('na') in (2, 3, 4)
    NSOLO = cfg.get('nsolo', 0); SOLO = NSOLO > 0
    nfl = [0]
    def flag(val_s):
        if not ovl: return
        nfl[0] += 1
        sk = f"g{tag}_fl{nfl[0]}"
        k(f"s_cmp_lg_u32 s{S_WAVE}, 0")
        k(f"s_cbranch_scc1 {k.ref(sk)}")
        k("s_mov_b64 exec, 1")
        k(f"s_lshl_b32 s26, s{cfg['cg_s']}, 7")
        k("v_mov_b32 v7, s26")
        k(f"v_mov_b32 v{G_OUT + 16}, s{val_s}")
        k(f"buffer_store_dword v{G_OUT + 16}, v7, {srd}, s{cfg['flag_s']} offen sc1")
        k("s_mov_b64 exec, -1")
        k.lab(sk)
    def dma_items(seg_s):
        it = [[f"s_min_u32 s24, s{seg_s}, 63", f"s_mul_i32 s24, s24, {XN_SEG}", f"s_add_u32 s24, s24, s{GS_DMA}",
               f"s_mul_i32 s25, s{S_WAVE}, 10240", f"s_add_u32 s25, s25, s{GS_NB}"]]
        for grp in range(3):
            for i in range(4 if grp < 2 else 2):
                p = []
                if i == 0:
                    if grp: p += ["s_add_u32 s24, s24, 4096", "s_add_u32 s25, s25, 4096"]
                    p += ["s_mov_b32 m0, s25", "s_nop 0"]
                p.append(f"buffer_load_dwordx4 v{GV_L16}, {srd}, s24 offen offset:{i * 1024}{' sc1' if LNW else ''} lds")
                it.append(p)
        return it
    def dma(seg_s):
        for p in dma_items(seg_s):
            for x in p: k(x)
    def lnwait(seg_s):
        if not LNW: return
        nfl[0] += 1
        sk = f"g{tag}_lw{nfl[0]}"; lp = f"g{tag}_lp{nfl[0]}"
        k(f"s_cmp_lg_u32 s{S_WAVE}, 0")
        k(f"s_cbranch_scc1 {k.ref(sk)}")
        k(f"s_min_u32 s28, s{seg_s}, 63")
        k(f"s_cmp_gt_u32 s{GS_LNW}, s28")
        k(f"s_cbranch_scc1 {k.ref(sk)}")
        k.lab(lp)
        k(f"buffer_load_dwordx4 v[124:127], v{GV_L16}, {srd}, s{GS_LNA} offen sc1")
        k("s_waitcnt vmcnt(0)")
        k("v_min_u32 v124, v124, v125")
        k("v_min_u32 v126, v126, v127")
        k("v_min_u32 v124, v124, v126")
        k("v_cmp_eq_u32 vcc, 0, v124")
        k("s_nop 1")
        k(f"s_ff1_i32_b64 s{GS_LNW}, vcc")
        k(f"s_min_u32 s{GS_LNW}, s{GS_LNW}, 64")
        k(f"s_sub_u32 s{GS_SPIN}, s{GS_SPIN}, 1")
        k(f"s_cbranch_scc1 {k.ref('bail')}")
        k(f"s_cmp_gt_u32 s{GS_LNW}, s28")
        k(f"s_cbranch_scc0 {k.ref(lp)}")
        k.lab(sk)
    def nextbuf(dst, src):
        k(f"s_add_u32 s{dst}, s{src}, {XN_SEG}")
        k(f"s_cmp_eq_u32 s{dst}, {G_LDS}")
        k(f"s_cselect_b32 s{dst}, 0, s{dst}")
    k(f"s_mul_i32 s{GS_DMA}, s{S_WAVE}, 10240")
    k(f"s_add_u32 s{GS_DMA}, s{GS_DMA}, {XN}")
    k(f"s_mov_b32 s{GS_NB}, 0")
    if LNW:
        k(f"s_mov_b32 s{GS_LNW}, 0")
        k(f"s_mov_b32 s{GS_SPIN}, 400000")
        k(f"s_add_u32 s{GS_LNA}, s{cfg['flag_s']}, {FL_LN}")
        if cfg.get('rt'): k("s_memrealtime s[60:61]")
        lnwait(GS_SEG)
        k("s_barrier")
        if cfg.get('rt'): k("s_memrealtime s[62:63]")
        dma(GS_SEG)
        k(f"s_mov_b32 s{GS_NB}, {XN_SEG}")
        k(f"s_mov_b32 s{GS_BUF}, 0")
        k("s_waitcnt vmcnt(0)")
    else:
        dma(GS_SEG)
        k(f"s_mov_b32 s{GS_NB}, {XN_SEG}")
        k(f"s_add_u32 s23, s{GS_SEG}, 1")
        dma(23)
        k(f"s_mov_b32 s{GS_NB}, {2 * XN_SEG}")
        k(f"s_mov_b32 s{GS_BUF}, 0")
        k("s_waitcnt vmcnt(10)")
    k("s_barrier")
    if cfg.get('rt'): k("s_memrealtime s[66:67]")
    k(f"v_mov_b32 v{GV_RD}, v{GV_L16}")
    for r in range(G_NR - 2):
        k(f"ds_read_b128 {vr(G_RING + 4 * r, 4)}, v{GV_RD} offset:{r * 1024}")
    PRE = G_NR - 2
    def epilogue_items(par):
        it = []
        for t in range(2):
            a = G_ACC + 32 * par + 16 * t
            for j in range(2):
                o = G_OUT + 4 * ((2 * t + j) & 3)
                for q in range(2):
                    it.append(f"v_cvt_pk_bf16_f32 v{o + 2 * q}, v{a + 8 * j + 4 * q}, v{a + 8 * j + 4 * q + 1}")
                    it.append(f"v_cvt_pk_bf16_f32 v{o + 2 * q + 1}, v{a + 8 * j + 4 * q + 2}, v{a + 8 * j + 4 * q + 3}")
                it.append("s_nop 1")
                it.append(f"v_permlane32_swap_b32 v{o}, v{o + 2}")
                it.append(f"v_permlane32_swap_b32 v{o + 1}, v{o + 3}")
                if isu: it.append(f"buffer_store_dwordx4 {vr(o, 4)}, v{GV_ST}, {srd}, s{GS_ST0} offen offset:{t * 2560 + j * 256}{SC1}")
                else:   it.append(f"buffer_store_dwordx4 {vr(o, 4)}, v{GV_ST}, {srd}, s{GS_ST0 + t} offen offset:{j * 1024}{SC1}")
        it.append(f"s_add_u32 s{GS_ST0}, s{GS_ST0}, s{GS_INC}")
        it.append(f"s_add_u32 s{GS_ST1}, s{GS_ST1}, s{GS_INC}")
        return it
    def segment(par, first, start=None, late=True, solo=False):
        side = {i: [] for i in range(80)}
        if not first:
            for n, it in enumerate(epilogue_items(par ^ 1)): side[4 + n].append(it)
        for kap in range(40):
            slot = kap % G_NR
            nk = kap + PRE
            if nk == 40 and not solo:
                k(f"v_add_u32 v{GV_RD + 4}, s{GS_LB}, v{GV_L16}")
            rb = GV_RD if nk < 40 else GV_RD + 4
            if nk < 40 or not solo:
                k(f"ds_read_b128 {vr(G_RING + 4 * (nk % G_NR), 4)}, v{rb} offset:{(nk % 40) * 1024}")
            k(f"s_waitcnt lgkmcnt({min(PRE, 39 - kap) if solo else PRE})")
            if solo and kap == 30:
                k(f"buffer_load_dwordx4 v[124:127], v{GV_L16}, {srd}, s{GS_LNA} offen sc1")
            x = vr(G_RING + 4 * slot, 4)
            for t in range(2):
                d = vr(G_ACC + 32 * par + 16 * t, 16)
                c = "0" if kap == 0 else d
                if isu: k(f"v_mfma_f32_32x32x16_bf16 {d}, {x}, {gw(kap, t)}, {c}")
                else:   k(f"v_mfma_f32_32x32x16_bf16 {d}, {gw(kap, t)}, {x}, {c}")
                for it in side[2 * kap + t]: k(it)
            if start is not None and kap == start:
                k(f"s_add_u32 s23, s{GS_SEG}, 1")
                lnwait(23)
                k("s_barrier")
                items = dma_items(23)
                for x_ in items[0]: k(x_)
                for n, p in enumerate(items[1:]): side[2 * (kap + 1 + n)] += p
                nextbuf(GS_NB, GS_NB)
            if kap == 28 and not solo:
                if late:
                    k(f"s_add_u32 s23, s{GS_SEG}, 2")
                    lnwait(23)
                if first or not ovl:
                    k("s_waitcnt vmcnt(0)" if first else "s_waitcnt vmcnt(4)")
                    k("s_barrier")
                else:
                    nfl[0] += 1
                    l1 = f"g{tag}_dr{nfl[0]}"; l2 = f"g{tag}_dq{nfl[0]}"
                    k(f"s_cmp_gt_u32 s{GS_SEG}, {NSOLO + 2 if SOLO else 2}")
                    k(f"s_cbranch_scc1 {k.ref(l1)}")
                    k("s_waitcnt vmcnt(0)")
                    k(f"s_mov_b32 s27, s{GS_SEG}")
                    k(f"s_branch {k.ref(l2)}")
                    k.lab(l1)
                    k("s_waitcnt vmcnt(4)")
                    k(f"s_sub_u32 s27, s{GS_SEG}, 1")
                    k.lab(l2)
                    k("s_barrier")
                    flag(27)
                nextbuf(GS_LB, GS_BUF)
                if late:
                    k(f"s_add_u32 s23, s{GS_SEG}, 2")
                    items = dma_items(23)
                    for x_ in items[0]: k(x_)
                    for n, p in enumerate(items[1:]): side[2 * (kap + 1 + n)] += p
                    nextbuf(GS_NB, GS_NB)
        if not solo:
            k(f"v_mov_b32 v{GV_RD}, v{GV_RD + 4}")
            k(f"s_mov_b32 s{GS_BUF}, s{GS_LB}")
        k(f"s_add_u32 s{GS_SEG}, s{GS_SEG}, 1")
    if LNW and SOLO:
        lab('solo')
        segment(0, True, None, False, True)
        k("s_nop 7"); k("s_nop 7")
        for it in epilogue_items(0): k(it)
        k("s_waitcnt vmcnt(0)")
        k("s_barrier")
        flag(GS_SEG)
        if cfg.get('rt'):
            k(f"s_cmp_lg_u32 s{GS_SEG}, 1"); k(f"s_cbranch_scc1 {L('rt1')}"); k("s_memrealtime s[68:69]"); lab('rt1')
        lab('spoll')
        k("v_min_u32 v124, v124, v125")
        k("v_min_u32 v126, v126, v127")
        k("v_min_u32 v124, v124, v126")
        k("v_cmp_eq_u32 vcc, 0, v124")
        k("s_nop 1")
        k(f"s_ff1_i32_b64 s{GS_LNW}, vcc")
        k(f"s_min_u32 s{GS_LNW}, s{GS_LNW}, 64")
        k(f"s_cmp_gt_u32 s{GS_LNW}, s{GS_SEG}")
        k(f"s_cbranch_scc1 {L('sok')}")
        k(f"s_sub_u32 s{GS_SPIN}, s{GS_SPIN}, 1")
        k(f"s_cbranch_scc1 {k.ref('bail')}")
        k(f"buffer_load_dwordx4 v[124:127], v{GV_L16}, {srd}, s{GS_LNA} offen sc1")
        k("s_waitcnt vmcnt(0)")
        k(f"s_branch {L('spoll')}")
        lab('sok')
        dma(GS_SEG)
        k(f"s_mov_b32 s{GS_BUF}, s{GS_NB}")
        nextbuf(GS_NB, GS_NB)
        k(f"v_add_u32 v{GV_RD}, s{GS_BUF}, v{GV_L16}")
        k("s_waitcnt vmcnt(0)")
        k("s_barrier")
        for r in range(G_NR - 2):
            k(f"ds_read_b128 {vr(G_RING + 4 * r, 4)}, v{GV_RD} offset:{r * 1024}")
        k(f"s_cmp_lt_u32 s{GS_SEG}, {NSOLO}")
        k(f"s_cbranch_scc1 {L('solo')}")
        segment(1, True, 2)
        if cfg.get('rt'): k("s_memrealtime s[70:71]")
        lab('loop')
        segment(0, False)
        k(f"s_cmp_ge_u32 s{GS_SEG}, s{GS_END}")
        k(f"s_cbranch_scc1 {L('fin0')}")
        segment(1, False)
        k(f"s_cmp_lt_u32 s{GS_SEG}, s{GS_END}")
        k(f"s_cbranch_scc1 {L('loop')}")
        k(f"s_branch {L('fin1')}")
    elif LNW:
        segment(0, True, 6, False)
        k("s_nop 7"); k("s_nop 7")
        for it in epilogue_items(0): k(it)
        k("s_waitcnt vmcnt(0)")
        k("s_barrier")
        flag(GS_SEG)
        if cfg.get('rt'): k("s_memrealtime s[68:69]")
        segment(1, True, 2)
        if cfg.get('rt'): k("s_memrealtime s[70:71]")
        lab('loop')
        segment(0, False)
        k(f"s_cmp_ge_u32 s{GS_SEG}, s{GS_END}")
        k(f"s_cbranch_scc1 {L('fin0')}")
        segment(1, False)
        k(f"s_cmp_lt_u32 s{GS_SEG}, s{GS_END}")
        k(f"s_cbranch_scc1 {L('loop')}")
        k(f"s_branch {L('fin1')}")
    else:
        segment(0, True)
        k(f"s_cmp_ge_u32 s{GS_SEG}, s{GS_END}")
        k(f"s_cbranch_scc1 {L('fin0')}")
        lab('loop')
        segment(1, False)
        k(f"s_cmp_ge_u32 s{GS_SEG}, s{GS_END}")
        k(f"s_cbranch_scc1 {L('fin1')}")
        segment(0, False)
        k(f"s_cmp_lt_u32 s{GS_SEG}, s{GS_END}")
        k(f"s_cbranch_scc1 {L('loop')}")
    lab('fin0')
    k("s_nop 7"); k("s_nop 7")
    for it in epilogue_items(0): k(it)
    k(f"s_branch {L('done')}")
    lab('fin1')
    k("s_nop 7"); k("s_nop 7")
    for it in epilogue_items(1): k(it)
    lab('done')
    k("s_waitcnt vmcnt(0) lgkmcnt(0)")
    if ovl:
        k("s_barrier")
        flag(GS_SEG)

def u_weight_addr(k, cg_s, vr_, vhf, vt, out_v, out_s, st):
    k(f"v_lshrrev_b32 v{vt}, 3, v{vr_}")
    k(f"v_and_b32 v{vt+1}, 7, v{vr_}")
    k(f"v_mul_u32_u24 v{vt+2}, 20480, v{vt}")
    k(f"v_lshl_add_u32 v{vt+2}, v{vt+1}, 4, v{vt+2}")
    k(f"v_lshl_add_u32 v{out_v}, v{vhf}, 8, v{vt+2}")
    k(f"s_mul_i32 s{st}, s{cg_s}, 327680")
    k(f"s_mul_i32 s{st+1}, s{S_WAVE}, 81920")
    k(f"s_add_u32 s{st}, s{st}, s{st+1}")
    k(f"s_add_u32 s{out_s}, s{st}, {WY}")

def qk_setup(k, cg_s, vr_, vhf, vt, out_v, out_s, st, st0):
    S = lambda n: f"s{st + n - 26}"
    k(f"s_sub_u32 {S(26)}, s{cg_s}, 80")
    k(f"s_cmp_ge_u32 {S(26)}, 24")
    k(f"s_cselect_b32 {S(27)}, 1, 0")
    k(f"s_cselect_b32 {S(28)}, 24, 0")
    k(f"s_sub_u32 {S(26)}, {S(26)}, {S(28)}")
    k(f"s_lshl_b32 {S(26)}, {S(26)}, 3")
    k(f"s_lshl_b32 {S(28)}, s{S_WAVE}, 1")
    k(f"s_add_u32 {S(26)}, {S(26)}, {S(28)}")
    for t in range(2):
        k(f"s_add_u32 {S(28)}, {S(26)}, {t}")
        k(f"s_mul_i32 {S(29)}, {S(28)}, 171")
        k(f"s_lshr_b32 {S(29)}, {S(29)}, 10")
        k(f"s_mul_i32 {S(30)}, {S(29)}, 6")
        k(f"s_sub_u32 {S(30)}, {S(28)}, {S(30)}")
        if st0 is not None:
            k(f"s_mul_i32 {S(31)}, {S(29)}, {KX_SH}")
            k(f"s_lshl_b32 {S(32)}, {S(30)}, 11")
            k(f"s_add_u32 {S(31)}, {S(31)}, {S(32)}")
            k(f"s_mul_i32 {S(32)}, s{GS_SEG}, {32 * KX_SH}")
            k(f"s_add_u32 {S(31)}, {S(31)}, {S(32)}")
            k(f"s_mul_i32 {S(32)}, {S(27)}, {QX - KX}")
            k(f"s_add_u32 {S(31)}, {S(31)}, {S(32)}")
            k(f"s_add_u32 s{st0 + t}, {S(31)}, {KX}")
        k(f"s_lshl_b32 {S(30)}, {S(30)}, 5")
        k(f"v_add_u32 v{vt}, {S(30)}, v{vr_}")
        p2e_lane(k, vt + 1, vt, vt + 2, vt + 3)
        k(f"s_cmp_eq_u32 {S(27)}, 1")
        k("s_cselect_b64 vcc, -1, 0")
        k("s_nop 1")
        k(f"v_cndmask_b32 v{vt}, v{vt}, v{vt+1}, vcc")
        wp_block_off(k, vt + 1, vt, 0, vt + 2, vt + 3)
        k(f"v_lshl_add_u32 v{out_v + t}, v{vhf}, 8, v{vt+1}")
        k(f"s_xor_b32 {S(30)}, {S(27)}, 1")
        k(f"s_mul_i32 {S(30)}, {S(30)}, {3*20480}")
        k(f"s_mul_i32 {S(31)}, {S(29)}, 491520")
        k(f"s_add_u32 {S(30)}, {S(30)}, {S(31)}")
        k(f"s_add_u32 s{out_s + t}, {S(30)}, {WP}")

def role_gemm(k, cg_s, cfg=None):
    cfg = dict(cfg or {}, cg_s=cg_s)
    WIN = cfg.get('wing', cfg.get('win'))
    L = lambda s: k.ref('g_' + s)
    k(f"v_lshlrev_b32 v{GV_L16}, 4, v0")
    k("v_and_b32 v8, 31, v0")
    k("v_lshrrev_b32 v9, 5, v0")
    k(f"s_cmp_ge_u32 s{cg_s}, 80")
    k(f"s_cbranch_scc1 {L('qk')}")
    u_weight_addr(k, cg_s, 8, 9, 10, GV_W, 24, 24)
    SEMI = cfg.get('na') == 4
    for kap in range(40):
        if kap % 7 == 0 and kap: k(f"s_add_u32 s24, s24, {7 * 512}")
        if SEMI and kap < cfg.get('npf', 64) // 2: continue
        for t in range(2):
            k(f"buffer_load_dwordx4 {gw(kap, t)}, v{GV_W}, {srd}, s24 offen offset:{(kap % 7) * 512 + t * 128}")
            if WIN and 2 * kap + t >= WIN: k(f"s_waitcnt vmcnt({WIN})")
    k(f"s_lshl_b32 s25, s{S_WAVE}, 3")
    k("v_add_u32 v10, s25, v10")
    k("v_mul_u32_u24 v10, 640, v10")
    k("v_lshl_add_u32 v10, v9, 7, v10")
    k("v_lshl_add_u32 v10, v11, 4, v10")
    k(f"v_add_u32 v{GV_ST}, 128, v10")
    k(f"s_mul_i32 s{GS_ST0}, s{cg_s}, 20480")
    k(f"s_mul_i32 s25, s{GS_SEG}, {Z_SEG}")
    k(f"s_add_u32 s{GS_ST0}, s{GS_ST0}, s25")
    k(f"s_add_u32 s{GS_ST0}, s{GS_ST0}, {Z}")
    k(f"s_mov_b32 s{GS_INC}, {Z_SEG}")
    gemm_body(k, True, 'u', cfg)
    k(f"s_branch {L('done')}")
    k.lab('g_qk')
    qk_setup(k, cg_s, 8, 9, 10, GV_W, 34, 26, GS_ST0)
    for kap in range(40):
        if kap % 8 == 0 and kap:
            k("s_add_u32 s34, s34, 4096"); k("s_add_u32 s35, s35, 4096")
        if SEMI and kap < cfg.get('npf', 64) // 2: continue
        for t in range(2):
            k(f"buffer_load_dwordx4 {gw(kap, t)}, v{GV_W + t}, {srd}, s{34 + t} offen offset:{(kap % 8) * 512}")
            if WIN and 2 * kap + t >= WIN: k(f"s_waitcnt vmcnt({WIN})")
    k(f"v_mov_b32 v{GV_ST}, v{GV_L16}")
    k(f"s_mov_b32 s{GS_INC}, {32 * KX_SH}")
    gemm_body(k, False, 'k', cfg)
    k.lab('g_done')

def build_gemmb(name="gemmb", nsplit=2):
    k = K(name, vgpr=256, sgpr=64, agpr=256)
    k(f"s_cmp_ge_u32 s2, {128 * nsplit}")
    k(f"s_cbranch_scc1 {k.ref('end')}")
    prologue(k)
    k("s_and_b32 s36, s2, 127")
    k("s_lshr_b32 s37, s2, 7")
    k(f"s_mul_i32 s{GS_SEG}, s37, {64 // nsplit}")
    k(f"s_add_u32 s{GS_END}, s{GS_SEG}, {64 // nsplit}")
    role_gemm(k, 36)
    k.lab('end')
    return k, 128 * nsplit, G_LDS

def role_w3a(k, seg_s, h_s, SC1="", late=None):
    Q, KK, KMF, D1, D2, BI = 16, 64, 112, 160, 176, 192
    T = 208
    k("v_lshlrev_b32 v1, 4, v0")
    k("v_and_b32 v2, 31, v0")
    k("v_lshrrev_b32 v3, 5, v0")
    k(f"s_lshl_b32 s24, s{seg_s}, 5")
    k(f"s_add_u32 s24, s24, s{h_s}")
    k(f"s_mul_i32 s25, s24, {KX_SH}")
    k(f"s_add_u32 s26, s25, {QX}")
    k(f"s_add_u32 s27, s25, {KX}")
    k(f"s_mul_i32 s28, s24, {KM_SH}")
    k(f"s_add_u32 s28, s28, {KM}")
    k("v_and_b32 v4, 7, v0")
    k("v_lshlrev_b32 v4, 4, v4")
    k("v_lshl_add_u32 v4, v3, 7, v4")
    def kmload():
        for kap in range(12):
            k(f"buffer_load_dwordx4 {vr(KMF + 4 * kap, 4)}, v4, {srd}, s28 offen offset:{kap * 256}{SC1}")
    for kap in range(12):
        if kap % 4 == 0 and kap:
            k("s_add_u32 s26, s26, 4096"); k("s_add_u32 s27, s27, 4096")
        k(f"buffer_load_dwordx4 {vr(Q + 4 * kap, 4)}, v1, {srd}, s26 offen offset:{(kap % 4) * 1024}{SC1}")
        k(f"buffer_load_dwordx4 {vr(KK + 4 * kap, 4)}, v1, {srd}, s27 offen offset:{(kap % 4) * 1024}{SC1}")
        if not late: k(f"buffer_load_dwordx4 {vr(KMF + 4 * kap, 4)}, v4, {srd}, s28 offen offset:{kap * 256}{SC1}")
    if late:
        late[0](False, k.ref('w3a_nf'))
        kmload()
        k.lab('w3a_nf')
    k("v_lshlrev_b32 v5, 2, v3")
    k("v_sub_u32 v5, v2, v5")
    k(f"v_mov_b32 v6, {hexf(-1e30)}")
    for r in range(16):
        k(f"v_cmp_gt_i32 vcc, {(r & 3) + 8 * (r >> 2)}, v5")
        k("s_nop 1")
        k(f"v_cndmask_b32 v{BI + r}, 0, v6, vcc")
    if late:
        for kap in range(12):
            k(f"s_waitcnt vmcnt({2 * (11 - kap)})")
            k(f"v_mfma_f32_32x32x16_bf16 {vr(D1, 16)}, {vr(KK + 4 * kap, 4)}, {vr(Q + 4 * kap, 4)}, {'0' if kap == 0 else vr(D1, 16)}")
        late[0](True, k.ref('w3a_f'))
        late[1]()
        kmload()
        k.lab('w3a_f')
        for kap in range(12):
            k(f"s_waitcnt vmcnt({11 - kap})")
            k(f"v_mfma_f32_32x32x16_bf16 {vr(D2, 16)}, {vr(KMF + 4 * kap, 4)}, {vr(Q + 4 * kap, 4)}, {'0' if kap == 0 else vr(D2, 16)}")
    else:
      for kap in range(12):
        k(f"s_waitcnt vmcnt({3 * (11 - kap)})")
        k(f"v_mfma_f32_32x32x16_bf16 {vr(D1, 16)}, {vr(KK + 4 * kap, 4)}, {vr(Q + 4 * kap, 4)}, {'0' if kap == 0 else vr(D1, 16)}")
        k(f"v_mfma_f32_32x32x16_bf16 {vr(D2, 16)}, {vr(KMF + 4 * kap, 4)}, {vr(Q + 4 * kap, 4)}, {'0' if kap == 0 else vr(D2, 16)}")
    k("s_nop 7"); k("s_nop 7")
    c = hexf(CSC)
    k(f"v_mov_b32 v7, {c}")
    for r in range(16): k(f"v_fma_f32 v{D1 + r}, v{D1 + r}, v7, v{BI + r}")
    for r in range(4): k(f"v_mul_f32 v{D2 + r}, v{D2 + r}, v7")
    vals = [D1 + r for r in range(16)] + [D2 + r for r in range(4)]
    m, u = T, T + 1
    k(f"v_max3_f32 v{m}, v{vals[0]}, v{vals[1]}, v{vals[2]}")
    rest = vals[3:]
    while len(rest) >= 2:
        k(f"v_max3_f32 v{m}, v{m}, v{rest[0]}, v{rest[1]}"); rest = rest[2:]
    if rest: k(f"v_max_f32 v{m}, v{m}, v{rest[0]}")
    k(f"v_mov_b32 v{u}, v{m}")
    k("s_nop 1")
    k(f"v_permlane32_swap_b32 v{m}, v{u}")
    k(f"v_max_f32 v{m}, v{m}, v{u}")
    for r in vals: k(f"v_sub_f32 v{r}, v{r}, v{m}")
    for r in vals: k(f"v_exp_f32 v{r}, v{r}")
    k("s_nop 0")
    s_ = T + 2
    k(f"v_add_f32 v{s_}, v{vals[0]}, v{vals[1]}")
    for r in vals[2:]: k(f"v_add_f32 v{s_}, v{s_}, v{r}")
    k(f"v_mov_b32 v{u}, v{s_}")
    k("s_nop 1")
    k(f"v_permlane32_swap_b32 v{s_}, v{u}")
    k(f"v_add_f32 v{s_}, v{s_}, v{u}")
    k(f"v_rcp_f32 v{s_}, v{s_}")
    k("s_nop 0")
    for r in vals: k(f"v_mul_f32 v{r}, v{r}, v{s_}")
    k(f"s_mul_i32 s25, s{seg_s}, {PX_SEG}")
    k(f"s_mul_i32 s26, s{h_s}, 2560")
    k("s_add_u32 s25, s25, s26")
    k(f"s_add_u32 s25, s25, {PXB}")
    O = Q
    for j in range(2):
        o = O + 4 * j
        for q in range(2):
            k(f"v_cvt_pk_bf16_f32 v{o + 2 * q}, v{D1 + 8 * j + 4 * q}, v{D1 + 8 * j + 4 * q + 1}")
            k(f"v_cvt_pk_bf16_f32 v{o + 2 * q + 1}, v{D1 + 8 * j + 4 * q + 2}, v{D1 + 8 * j + 4 * q + 3}")
        k("s_nop 1")
        k(f"v_permlane32_swap_b32 v{o}, v{o + 2}")
        k(f"v_permlane32_swap_b32 v{o + 1}, v{o + 3}")
        k(f"buffer_store_dwordx4 {vr(o, 4)}, v1, {srd}, s25 offen offset:{512 + j * 1024}{SC1}")
    k(f"v_cvt_pk_bf16_f32 v{O + 8}, v{D2}, v{D2 + 1}")
    k(f"v_cvt_pk_bf16_f32 v{O + 9}, v{D2 + 2}, v{D2 + 3}")
    k("v_lshlrev_b32 v4, 4, v2")
    k("v_lshl_add_u32 v4, v3, 3, v4")
    k(f"buffer_store_dwordx2 {vr(O + 8, 2)}, v4, {srd}, s25 offen{SC1}")

def build_w3a(name="w3a"):
    k = K(name, vgpr=216, sgpr=48)
    k("s_cmp_ge_u32 s2, 512")
    k(f"s_cbranch_scc1 {k.ref('end')}")
    prologue(k)
    k("s_lshl_b32 s20, s2, 2")
    k(f"s_add_u32 s20, s20, s{S_WAVE}")
    k("s_lshr_b32 s21, s20, 5")
    k("s_and_b32 s22, s20, 31")
    role_w3a(k, 21, 22)
    k.lab('end')
    return k, 512

def role_w3b(k, seg_s, cg_s, res_off, out_srd, out_off, NR=16, SC1=""):
    RING = 32; ACC = 16
    k("v_lshlrev_b32 v1, 4, v0")
    k("v_and_b32 v2, 31, v0")
    k("v_lshrrev_b32 v3, 5, v0")
    k("v_lshrrev_b32 v4, 3, v2")
    k("v_mul_u32_u24 v4, 20480, v4")
    k("v_and_b32 v5, 7, v2")
    k("v_lshl_add_u32 v4, v5, 4, v4")
    k("v_lshl_add_u32 v4, v3, 7, v4")
    k(f"s_mul_i32 s24, s{seg_s}, {Z_SEG}")
    k(f"s_mul_i32 s25, s{cg_s}, {4 * 20480}")
    k("s_add_u32 s24, s24, s25")
    k(f"s_add_u32 s24, s24, {Z}")
    k(f"s_mul_i32 s25, s{seg_s}, {PX_SEG}")
    k(f"s_add_u32 s25, s25, {PXB}")
    k("v_mul_u32_u24 v6, 1280, v2")
    k("v_lshl_add_u32 v6, v3, 4, v6")
    k(f"s_mul_i32 s26, s{seg_s}, {32 * 1280}")
    k(f"s_lshl_b32 s27, s{cg_s}, 6")
    k("s_add_u32 s26, s26, s27")
    k(f"s_add_u32 s27, s26, {res_off}")
    for j in range(2):
        k(f"buffer_load_dwordx4 {vr(8 + 4 * j, 4)}, v6, {srd}, s27 offen offset:{32 * j}")
    def load(kap):
        sl = RING + 8 * (kap % NR)
        if kap % 16 == 0 and kap: k("s_add_u32 s24, s24, 4096")
        if kap % 4 == 0 and kap: k("s_add_u32 s25, s25, 4096")
        k(f"buffer_load_dwordx4 {vr(sl, 4)}, v4, {srd}, s24 offen offset:{(kap % 16) * 256}{SC1}")
        k(f"buffer_load_dwordx4 {vr(sl + 4, 4)}, v1, {srd}, s25 offen offset:{(kap % 4) * 1024}{SC1}")
    for kap in range(NR): load(kap)
    issued = NR
    for kap in range(80):
        k(f"s_waitcnt vmcnt({2 * (issued - 1 - kap)})")
        sl = RING + 8 * (kap % NR)
        k(f"v_mfma_f32_32x32x16_bf16 {vr(ACC, 16)}, {vr(sl, 4)}, {vr(sl + 4, 4)}, {'0' if kap == 0 else vr(ACC, 16)}")
        if kap >= 1 and issued < 80:
            load(issued); issued += 1
    k("s_nop 7"); k("s_nop 7")
    O = RING
    for j in range(2):
        o = O + 4 * j
        for q in range(2):
            k(f"v_cvt_pk_bf16_f32 v{o + 2 * q}, v{ACC + 8 * j + 4 * q}, v{ACC + 8 * j + 4 * q + 1}")
            k(f"v_cvt_pk_bf16_f32 v{o + 2 * q + 1}, v{ACC + 8 * j + 4 * q + 2}, v{ACC + 8 * j + 4 * q + 3}")
        k("s_nop 1")
        k(f"v_permlane32_swap_b32 v{o}, v{o + 2}")
        k(f"v_permlane32_swap_b32 v{o + 1}, v{o + 3}")
        k("s_nop 1")
        for r in range(4):
            a, b, t0, t1 = O + 8, O + 9, O + 10, O + 11
            k(f"v_lshlrev_b32 v{a}, 16, v{o + r}")
            k(f"v_and_b32 v{b}, 0xffff0000, v{o + r}")
            k(f"v_lshlrev_b32 v{t0}, 16, v{8 + 4 * j + r}")
            k(f"v_and_b32 v{t1}, 0xffff0000, v{8 + 4 * j + r}")
            k(f"v_add_f32 v{a}, v{a}, v{t0}")
            k(f"v_add_f32 v{b}, v{b}, v{t1}")
            k(f"v_cvt_pk_bf16_f32 v{o + r}, v{a}, v{b}")
        if out_off is not None:
            k(f"s_add_u32 s27, s26, {out_off}")
            k(f"buffer_store_dwordx4 {vr(o, 4)}, v6, {srd}, s27 offen offset:{32 * j}")
        else:
            k(f"buffer_store_dwordx4 {vr(o, 4)}, v6, {out_srd}, s26 offen offset:{32 * j}")

def build_w3b(name, res_off, out_off):
    NR = 12
    k = K(name, vgpr=32 + 8 * NR, sgpr=48)
    k("s_cmp_ge_u32 s2, 320")
    k(f"s_cbranch_scc1 {k.ref('end')}")
    prologue(k, [(KA_OUT, 6)])
    k.srd(16, 6, 2048 * 640 * 2)
    k("s_lshl_b32 s20, s2, 2")
    k(f"s_add_u32 s20, s20, s{S_WAVE}")
    k("s_mul_i32 s21, s20, 3277"); k("s_lshr_b32 s21, s21, 16")
    k("s_mul_i32 s22, s21, 20"); k("s_sub_u32 s22, s20, s22")
    role_w3b(k, 21, 22, res_off, "s[16:19]", out_off, NR)
    k.lab('end')
    return k, 320

J_PER = 18
NJOB = 64 * J_PER
JL_RED = 0; JL_JOB = 32768

def role_w3b2(k, seg_s, cg_s, res_off, out_srd, RSC="", late=None):
    ACC = 16; T = 48
    AP, AZ0, AZ1 = 160, 0, 80
    k("v_lshlrev_b32 v1, 4, v0")
    k("v_and_b32 v2, 31, v0")
    k("v_lshrrev_b32 v3, 5, v0")
    k("v_lshrrev_b32 v4, 3, v2")
    k("v_mul_u32_u24 v4, 20480, v4")
    k("v_and_b32 v5, 7, v2")
    k("v_lshl_add_u32 v4, v5, 4, v4")
    k("v_lshl_add_u32 v4, v3, 7, v4")
    k(f"s_mul_i32 s24, s{seg_s}, {Z_SEG}")
    k(f"s_mul_i32 s25, s{cg_s}, {8 * 20480}")
    k("s_add_u32 s24, s24, s25")
    k(f"s_mul_i32 s25, s{S_WAVE}, {20 * 256}")
    k("s_add_u32 s24, s24, s25")
    k(f"s_add_u32 s24, s24, {Z}")
    k(f"s_add_u32 s28, s24, {4 * 20480}")
    k(f"s_mul_i32 s25, s{seg_s}, {PX_SEG}")
    k(f"s_mul_i32 s26, s{S_WAVE}, {20 * 1024}")
    k("s_add_u32 s25, s25, s26")
    k(f"s_add_u32 s25, s25, {PXB}")
    k("v_mul_u32_u24 v6, 1280, v2")
    k("v_lshl_add_u32 v6, v3, 4, v6")
    k(f"s_mul_i32 s26, s{seg_s}, {32 * 1280}")
    k(f"s_lshl_b32 s27, s{cg_s}, 7")
    k("s_add_u32 s26, s26, s27")
    k(f"s_lshl_b32 s27, s{S_WAVE}, 5")
    k("s_add_u32 s26, s26, s27")
    k(f"s_add_u32 s27, s26, {res_off}")
    k(f"buffer_load_dwordx4 v[8:11], v6, {srd}, s27 offen{RSC}")
    if late:
        memhalf = lambda i: 0 if i % 5 == 0 else (1 if i % 5 == 2 else None)
        def half(hf):
            k(f"s_mov_b32 exec_lo, {-1 if hf == 0 else 0}"); k(f"s_mov_b32 exec_hi, {-1 if hf == 1 else 0}")
        k("s_add_u32 s29, s24, 4096"); k("s_add_u32 s30, s28, 4096")
        za = lambda t, i: (f"s{(24, 28)[t]}" if i < 16 else f"s{(29, 30)[t]}") + f" offen offset:{(i % 16) * 256} sc1"
        for i in range(20):
            m = memhalf(i)
            if m is not None: half(1 - m)
            k(f"buffer_load_dwordx4 {ar(AZ0 + 4 * i, 4)}, v4, {srd}, {za(0, i)}")
            k(f"buffer_load_dwordx4 {ar(AZ1 + 4 * i, 4)}, v4, {srd}, {za(1, i)}")
            if m is not None: k("s_mov_b64 exec, -1")
        late()
        seq = []
        for i in range(20):
            if i % 4 == 0 and i: k("s_add_u32 s25, s25, 4096")
            k(f"buffer_load_dwordx4 {ar(AP + 4 * i, 4)}, v1, {srd}, s25 offen offset:{(i % 4) * 1024} sc1"); seq.append(i)
            m = memhalf(i)
            if m is not None:
                half(m)
                k(f"buffer_load_dwordx4 {ar(AZ0 + 4 * i, 4)}, v4, {srd}, {za(0, i)}"); seq.append(i)
                k(f"buffer_load_dwordx4 {ar(AZ1 + 4 * i, 4)}, v4, {srd}, {za(1, i)}"); seq.append(i)
                k("s_mov_b64 exec, -1")
        k("s_nop 3")
        for i in range(20):
            k(f"s_waitcnt vmcnt({sum(1 for x in seq if x > i)})")
            for t, az in ((0, AZ0), (1, AZ1)):
                d = vr(ACC + 16 * t, 16)
                k(f"v_mfma_f32_32x32x16_bf16 {d}, {ar(az + 4 * i, 4)}, {ar(AP + 4 * i, 4)}, {'0' if i == 0 else d}")
    else:
      for i in range(20):
          if i % 4 == 0 and i: k("s_add_u32 s25, s25, 4096")
          if i == 16:
              k("s_add_u32 s24, s24, 4096"); k("s_add_u32 s28, s28, 4096")
          k(f"buffer_load_dwordx4 {ar(AP + 4 * i, 4)}, v1, {srd}, s25 offen offset:{(i % 4) * 1024} sc1")
          k(f"buffer_load_dwordx4 {ar(AZ0 + 4 * i, 4)}, v4, {srd}, s24 offen offset:{(i % 16) * 256} sc1")
          k(f"buffer_load_dwordx4 {ar(AZ1 + 4 * i, 4)}, v4, {srd}, s28 offen offset:{(i % 16) * 256} sc1")
      for i in range(20):
          k(f"s_waitcnt vmcnt({3 * (19 - i)})")
          for t, az in ((0, AZ0), (1, AZ1)):
              d = vr(ACC + 16 * t, 16)
              k(f"v_mfma_f32_32x32x16_bf16 {d}, {ar(az + 4 * i, 4)}, {ar(AP + 4 * i, 4)}, {'0' if i == 0 else d}")
    k(f"s_lshl_b32 s27, s{S_WAVE}, 11")
    k(f"v_add_u32 v7, s27, v1")
    k("s_nop 7"); k("s_nop 7")
    for t in range(2):
        for j in range(2):
            for hh in range(2):
                k(f"ds_write_b128 v7, {vr(ACC + 16 * t + 8 * j + 4 * hh, 4)} offset:{JL_RED + (t * 2 + j) * 8192 + hh * 1024}")
    k("s_waitcnt lgkmcnt(0)")
    k("s_barrier")
    k(f"s_lshl_b32 s27, s{S_WAVE}, 13")
    k(f"v_add_u32 v7, s27, v1")
    for ww in range(4):
        for hh in range(2):
            k(f"ds_read_b128 {vr(T + 8 * ww + 4 * hh, 4)}, v7 offset:{JL_RED + ww * 2048 + hh * 1024}")
    k("s_waitcnt lgkmcnt(4)")
    for r in range(8): k(f"v_add_f32 v{T + r}, v{T + r}, v{T + 8 + r}")
    k("s_waitcnt lgkmcnt(0)")
    for r in range(8): k(f"v_add_f32 v{T + 16 + r}, v{T + 16 + r}, v{T + 24 + r}")
    for r in range(8): k(f"v_add_f32 v{T + r}, v{T + r}, v{T + 16 + r}")
    o = ACC
    for q in range(2):
        k(f"v_cvt_pk_bf16_f32 v{o + 2 * q}, v{T + 4 * q}, v{T + 4 * q + 1}")
        k(f"v_cvt_pk_bf16_f32 v{o + 2 * q + 1}, v{T + 4 * q + 2}, v{T + 4 * q + 3}")
    k("s_nop 1")
    k(f"v_permlane32_swap_b32 v{o}, v{o + 2}")
    k(f"v_permlane32_swap_b32 v{o + 1}, v{o + 3}")
    k("s_nop 1")
    for r in range(4):
        a, b, t0, t1 = T, T + 1, T + 2, T + 3
        k(f"v_lshlrev_b32 v{a}, 16, v{o + r}")
        k(f"v_and_b32 v{b}, 0xffff0000, v{o + r}")
        k(f"v_lshlrev_b32 v{t0}, 16, v{8 + r}")
        k(f"v_and_b32 v{t1}, 0xffff0000, v{8 + r}")
        k(f"v_add_f32 v{a}, v{a}, v{t0}")
        k(f"v_add_f32 v{b}, v{b}, v{t1}")
        k(f"v_cvt_pk_bf16_f32 v{o + r}, v{a}, v{b}")
    k(f"buffer_store_dwordx4 {vr(o, 4)}, v6, {out_srd}, s26 offen")

def role_w3_loop(k, cfg, fl_s, spin_s, out_srd, layer_s):
    L = lambda s: k.ref('j_' + s)
    lab = lambda s: k.lab('j_' + s)
    bail = k.ref('bail')
    SEG, R, NEED = 40, 41, 42
    lab('next')
    k(f"s_cmp_lg_u32 s{S_WAVE}, 0")
    k(f"s_cbranch_scc1 {L('rel')}")
    k("s_mov_b64 exec, 1")
    k(f"v_mov_b32 v2, {FL_JOB}")
    k("v_mov_b32 v3, 1")
    k(f"buffer_atomic_add v3, v2, {srd}, s{fl_s} offen sc0 sc1")
    k("s_waitcnt vmcnt(0)")
    k("s_mov_b64 exec, -1")
    k("s_nop 0")
    k("v_readfirstlane_b32 s38, v3")
    JRT = cfg.get('rt')
    if JRT: k("s_memrealtime s[50:51]")
    k(f"s_cmp_ge_u32 s38, {NJOB}")
    k(f"s_cbranch_scc1 {L('pub')}")
    k("s_mul_i32 s39, s38, 58255")
    k(f"s_lshr_b32 s{SEG}, s39, 20")
    k(f"s_mul_i32 s39, s{SEG}, {J_PER}")
    k(f"s_sub_u32 s{R}, s38, s39")
    k(f"s_add_u32 s{NEED}, s{SEG}, 1")
    k(f"v_mov_b32 v4, s{NEED}")
    k(f"s_cmp_ge_u32 s{R}, 8")
    k(f"s_cbranch_scc1 {L('dep_b')}")
    k(f"s_lshl_b32 s24, s{R}, 9")
    k(f"s_add_u32 s24, s24, {FL_PF}")
    k("v_lshlrev_b32 v2, 7, v0")
    k("v_add_u32 v2, s24, v2")
    k(f"s_mul_i32 s25, s{R}, 3")
    k("s_add_u32 s25, s25, 104")
    k("s_lshl_b32 s25, s25, 7")
    k("v_writelane_b32 v2, s25, 4")
    k("s_add_u32 s25, s25, 128")
    k("v_writelane_b32 v2, s25, 5")
    k("s_add_u32 s25, s25, 128")
    k("v_writelane_b32 v2, s25, 6")
    k("s_mov_b64 exec, 0x7f")
    k(f"s_branch {L('poll')}")
    lab('dep_b')
    k(f"s_sub_u32 s24, s{R}, 8")
    k("s_lshl_b32 s24, s24, 10")
    k(f"s_add_u32 s24, s24, {FL_YF}")
    k("v_lshlrev_b32 v2, 7, v0")
    k("v_add_u32 v2, s24, v2")
    k(f"s_lshl_b32 s25, s{SEG}, 4")
    k(f"s_add_u32 s25, s25, {FL_WA}")
    k("v_writelane_b32 v2, s25, 8")
    k("s_mov_b32 s26, 8")
    k("v_writelane_b32 v4, s26, 8")
    k("s_mov_b64 exec, 0x1ff")
    lab('poll')
    k(f"buffer_load_dword v3, v2, {srd}, s{fl_s} offen sc1")
    k("s_waitcnt vmcnt(0)")
    k("v_cmp_gt_u32 vcc, v4, v3")
    k(f"s_sub_u32 s{spin_s}, s{spin_s}, 1")
    k(f"s_cbranch_scc1 {L('giveup')}")
    k(f"s_cbranch_vccnz {L('poll')}")
    k("s_mov_b64 exec, -1")
    lab('pub')
    k("v_mov_b32 v2, 0")
    k("v_mov_b32 v3, s38")
    k(f"ds_write_b32 v2, v3 offset:{JL_JOB}")
    k("s_waitcnt lgkmcnt(0)")
    lab('rel')
    k("s_barrier")
    if JRT: k("s_memrealtime s[52:53]")
    k("v_mov_b32 v2, 0")
    k(f"ds_read_b32 v3, v2 offset:{JL_JOB}")
    k("s_waitcnt lgkmcnt(0)")
    k("v_readfirstlane_b32 s38, v3")
    k(f"s_cmp_ge_u32 s38, {NJOB}")
    k(f"s_cbranch_scc1 {L('done')}")
    k("s_mul_i32 s39, s38, 58255")
    k(f"s_lshr_b32 s{SEG}, s39, 20")
    k(f"s_mul_i32 s39, s{SEG}, {J_PER}")
    k(f"s_sub_u32 s{R}, s38, s39")
    k(f"s_cmp_ge_u32 s{R}, 8")
    k(f"s_cbranch_scc1 {L('b')}")
    k(f"s_lshl_b32 s{R}, s{R}, 2")
    k(f"s_add_u32 s{R}, s{R}, s{S_WAVE}")
    role_w3a(k, SEG, R, " sc1")
    def jrt(tag):
        if not JRT: return
        k("s_memrealtime s[54:55]")
        k("s_waitcnt vmcnt(0)")
        k("s_memrealtime s[56:57]")
        k("s_waitcnt lgkmcnt(0)")
        k(f"s_cmp_lg_u32 s{S_WAVE}, 0")
        k(f"s_cbranch_scc1 {L(tag)}")
        k("s_lshl_b32 s24, s38, 4")
        k(f"s_mul_i32 s25, s{layer_s}, 0x200000")
        k("s_add_u32 s24, s24, s25")
        k(f"s_add_u32 s24, s24, {JRT + 0x1c0000}")
        k("s_mov_b64 exec, 1")
        k("v_mov_b32 v2, 0")
        for n in range(4):
            k(f"v_mov_b32 v3, s{50 + 2 * n}")
            k(f"buffer_store_dword v3, v2, {srd}, s24 offen offset:{4 * n}")
            k("s_nop 1")
        k("s_mov_b64 exec, -1")
        lab(tag)
    jrt('rta')
    k("s_waitcnt vmcnt(0)")
    k("s_barrier")
    k(f"s_cmp_lg_u32 s{S_WAVE}, 0")
    k(f"s_cbranch_scc1 {L('next')}")
    k("s_mov_b64 exec, 1")
    k(f"s_lshl_b32 s24, s{SEG}, 4")
    k(f"s_add_u32 s24, s24, {FL_WA}")
    k("v_mov_b32 v2, s24")
    k("v_mov_b32 v3, 1")
    k(f"buffer_atomic_add v3, v2, {srd}, s{fl_s} offen sc1")
    k("s_mov_b64 exec, -1")
    k(f"s_branch {L('next')}")
    lab('b')
    k(f"s_sub_u32 s{R}, s{R}, 8")
    role_w3b2(k, SEG, R, A_X1, out_srd, " sc1" if cfg.get('na') in (2, 3, 4) else "")
    jrt('rtb')
    k(f"s_branch {L('next')}")
    lab('giveup')
    k("s_mov_b64 exec, -1")
    k("v_mov_b32 v2, 0")
    k("v_mov_b32 v3, -1")
    k(f"ds_write_b32 v2, v3 offset:{JL_JOB}")
    k("s_waitcnt lgkmcnt(0)")
    k("s_barrier")
    k(f"s_branch {bail}")
    lab('done')

def role_w3_loop2(k, cfg, fl_s, spin_s, out_srd, layer_s):
    L = lambda s: k.ref('j_' + s)
    lab = lambda s: k.lab('j_' + s)
    bail = k.ref('bail')
    SEG, R, NEED, PAR, LM = 40, 41, 42, 43, 44
    JRT = cfg.get('rt')
    WASH, WAO = (7, FL_WA2) if cfg.get('wa2', 1) else (4, FL_WA)
    k(f"s_mov_b32 s{PAR}, {JL_JOB}")
    lab('next')
    k(f"s_xor_b32 s{PAR}, s{PAR}, 4")
    k(f"s_cmp_lg_u32 s{S_WAVE}, 0")
    k(f"s_cbranch_scc1 {L('rel')}")
    k("s_mov_b64 exec, 1")
    k(f"v_mov_b32 v2, {FL_JOB}")
    k("v_mov_b32 v3, 1")
    k(f"buffer_atomic_add v3, v2, {srd}, s{fl_s} offen sc0 sc1")
    k("s_waitcnt vmcnt(0)")
    k("s_mov_b64 exec, -1")
    k("s_nop 0")
    k("v_readfirstlane_b32 s38, v3")
    if JRT: k("s_memrealtime s[50:51]")
    k(f"s_cmp_ge_u32 s38, {NJOB}")
    k(f"s_cbranch_scc1 {L('pub')}")
    k("s_mul_i32 s39, s38, 58255")
    k(f"s_lshr_b32 s{SEG}, s39, 20")
    k(f"s_mul_i32 s39, s{SEG}, {J_PER}")
    k(f"s_sub_u32 s{R}, s38, s39")
    k(f"s_add_u32 s{NEED}, s{SEG}, 1")
    k(f"v_mov_b32 v4, s{NEED}")
    k("v_lshlrev_b32 v2, 7, v0")
    k(f"s_cmp_ge_u32 s{R}, 8")
    k(f"s_cbranch_scc1 {L('dep_b')}")
    k(f"s_lshl_b32 s24, s{R}, 9")
    k(f"s_add_u32 s24, s24, {FL_PF}")
    k("v_add_u32 v2, s24, v2")
    k(f"s_mul_i32 s25, s{R}, {3 * 128}")
    for j in range(6):
        k(f"s_add_u32 s26, s25, {(80 + (j % 3) + 24 * (j // 3)) * 128 + FL_G}")
        k(f"v_writelane_b32 v2, s26, {4 + j}")
    k("s_mov_b64 exec, 0x3ff")
    k(f"s_mov_b32 s{LM}, 0xf")
    k(f"s_branch {L('poll')}")
    lab('dep_b')
    k(f"s_sub_u32 s24, s{R}, 8")
    k("s_lshl_b32 s24, s24, 10")
    k("v_add_u32 v2, s24, v2")
    k("v_cmp_gt_u32 vcc, 8, v0")
    k(f"v_mov_b32 v5, {FL_YF}")
    k(f"v_mov_b32 v6, {FL_G - 8 * 128}")
    k("v_cndmask_b32 v5, v6, v5, vcc")
    k("v_add_u32 v2, v5, v2")
    k(f"s_lshl_b32 s25, s{SEG}, 7")
    k(f"s_add_u32 s25, s25, {FL_WA2 - 64}")
    k("v_lshl_add_u32 v5, v0, 2, s25")
    k("v_cmp_le_u32 vcc, 16, v0")
    k("s_nop 1")
    k("v_cndmask_b32 v2, v2, v5, vcc")
    k("v_cndmask_b32 v4, v4, 1, vcc")
    k("s_mov_b32 exec_lo, -1"); k("s_mov_b32 exec_hi, 0xffff")
    k(f"s_mov_b32 s{LM}, 0xffff00ff")
    lab('poll')
    k(f"buffer_load_dword v3, v2, {srd}, s{fl_s} offen sc1")
    k("s_waitcnt vmcnt(0)")
    k("v_cmp_gt_u32 vcc, v4, v3")
    k(f"s_sub_u32 s{spin_s}, s{spin_s}, 1")
    k(f"s_cbranch_scc1 {L('giveup')}")
    k(f"s_andn2_b32 s24, vcc_lo, s{LM}")
    k(f"s_cbranch_scc1 {L('poll')}")
    k("s_mov_b64 exec, -1")
    k(f"s_and_b32 s24, vcc_lo, s{LM}")
    k("s_or_b32 s25, s24, vcc_hi")
    k("s_cselect_b32 s25, 0xf, 0")
    k(f"s_cmp_ge_u32 s{R}, 8")
    k("s_cselect_b32 s24, s25, s24")
    k("s_lshl_b32 s24, s24, 11")
    k("s_or_b32 s38, s38, s24")
    lab('pub')
    k(f"v_mov_b32 v2, s{PAR}")
    k("v_mov_b32 v3, s38")
    k("ds_write_b32 v2, v3")
    k("s_waitcnt lgkmcnt(0)")
    lab('rel')
    k("s_barrier")
    if JRT: k("s_memrealtime s[52:53]")
    k(f"v_mov_b32 v2, s{PAR}")
    k("ds_read_b32 v3, v2")
    k("s_waitcnt lgkmcnt(0)")
    k("v_readfirstlane_b32 s38, v3")
    k("s_cmp_eq_u32 s38, -1")
    k(f"s_cbranch_scc1 {L('done')}")
    k(f"s_lshr_b32 s{LM}, s38, 11")
    k("s_and_b32 s38, s38, 0x7ff")
    k(f"s_cmp_ge_u32 s38, {NJOB}")
    k(f"s_cbranch_scc1 {L('done')}")
    k(f"s_lshr_b32 s{LM}, s{LM}, s{S_WAVE}")
    k(f"s_and_b32 s{LM}, s{LM}, 1")
    k("s_mul_i32 s39, s38, 58255")
    k(f"s_lshr_b32 s{SEG}, s39, 20")
    k(f"s_mul_i32 s39, s{SEG}, {J_PER}")
    k(f"s_sub_u32 s{R}, s38, s39")
    k(f"s_add_u32 s{NEED}, s{SEG}, 1")
    k(f"s_cmp_ge_u32 s{R}, 8")
    k(f"s_cbranch_scc1 {L('b')}")
    k(f"s_lshl_b32 s{R}, s{R}, 2")
    k(f"s_add_u32 s{R}, s{R}, s{S_WAVE}")
    def fast(want_fast, target):
        k(f"s_cmp_eq_u32 s{LM}, {0 if want_fast else 1}")
        k(f"s_cbranch_scc1 {target}")
    def lpoll(tag, nl):
        k(f"s_mov_b32 exec_lo, {((1 << nl) - 1) & 0xffffffff:#x}"); k(f"s_mov_b32 exec_hi, {((1 << nl) - 1) >> 32:#x}")
        lab(tag)
        k(f"buffer_load_dword v213, v212, {srd}, s{fl_s} offen sc1")
        k("s_waitcnt vmcnt(0)")
        k("v_and_b32 v213, v213, v214")
        k("v_cmp_gt_u32 vcc, v215, v213")
        k(f"s_sub_u32 s{spin_s}, s{spin_s}, 1")
        k(f"s_cbranch_scc1 {bail}")
        k(f"s_cbranch_vccnz {L(tag)}")
        k("s_mov_b64 exec, -1")
        if JRT: k("s_memrealtime s[58:59]")
    def waita():
        k(f"s_lshl_b32 s31, s{R}, 7")
        k(f"s_add_u32 s31, s31, {FL_PF}")
        k("v_mov_b32 v212, s31")
        k(f"v_mov_b32 v215, s{NEED}")
        k("v_mov_b32 v214, -1")
        lpoll('la', 1)
    if JRT: k("s_mov_b32 s58, s52")
    role_w3a(k, SEG, R, " sc1", (fast, waita))
    def jrt(tag):
        if not JRT: return
        k("s_memrealtime s[54:55]")
        k("s_waitcnt vmcnt(0)")
        k("s_memrealtime s[56:57]")
        k("s_waitcnt lgkmcnt(0)")
        k("s_lshl_b32 s24, s38, 2")
        k(f"s_add_u32 s24, s24, s{S_WAVE}")
        k("s_lshl_b32 s24, s24, 4")
        k(f"s_mul_i32 s25, s{layer_s}, 0x200000")
        k("s_add_u32 s24, s24, s25")
        k(f"s_add_u32 s24, s24, {JRT + 0x1c0000}")
        k("s_mov_b64 exec, 1")
        k("v_mov_b32 v2, 0")
        for n, sr in enumerate((50, 58, 54, 56)):
            k(f"v_mov_b32 v3, s{sr}")
            k(f"buffer_store_dword v3, v2, {srd}, s24 offen offset:{4 * n}")
            k("s_nop 1")
        k("s_mov_b64 exec, -1")
        lab(tag)
    jrt('rta')
    k("s_waitcnt vmcnt(0)")
    k("s_mov_b64 exec, 1")
    k(f"s_lshl_b32 s24, s{SEG}, 7")
    k(f"s_lshl_b32 s25, s{R}, 2")
    k("s_add_u32 s24, s24, s25")
    k(f"s_add_u32 s24, s24, {FL_WA2}")
    k("v_mov_b32 v2, s24")
    k("v_mov_b32 v3, 1")
    k(f"buffer_store_dword v3, v2, {srd}, s{fl_s} offen sc1")
    k("s_mov_b64 exec, -1")
    k(f"s_branch {L('next')}")
    lab('b')
    k(f"s_sub_u32 s{R}, s{R}, 8")
    def waitb():
        fast(True, L('bf'))
        k(f"s_cmp_lg_u32 s{S_WAVE}, 0")
        k(f"s_cbranch_scc1 {L('bw')}")
        k(f"s_lshl_b32 s31, s{R}, 10")
        k(f"s_add_u32 s31, s31, {FL_YF}")
        k("v_lshlrev_b32 v212, 7, v0")
        k("v_add_u32 v212, s31, v212")
        k(f"v_mov_b32 v215, s{NEED}")
        k("v_mov_b32 v214, -1")
        k(f"s_lshl_b32 s31, s{SEG}, 7")
        k(f"s_add_u32 s31, s31, {FL_WA2 - 32}")
        k("v_lshl_add_u32 v213, v0, 2, s31")
        k("v_cmp_le_u32 vcc, 8, v0")
        k("s_nop 1")
        k("v_cndmask_b32 v212, v212, v213, vcc")
        k("v_cndmask_b32 v215, v215, 1, vcc")
        lpoll('lb', 40)
        lab('bw')
        k("s_barrier")
        lab('bf')
    if JRT: k("s_mov_b32 s58, s52")
    role_w3b2(k, SEG, R, A_X1, out_srd, " sc1" if cfg.get('na') in (2, 3, 4) else "", waitb)
    jrt('rtb')
    k(f"s_branch {L('next')}")
    lab('giveup')
    k("s_mov_b64 exec, -1")
    k(f"v_mov_b32 v2, s{PAR}")
    k("v_mov_b32 v3, -1")
    k("ds_write_b32 v2, v3")
    k("s_waitcnt lgkmcnt(0)")
    k("s_barrier")
    k(f"s_branch {bail}")
    lab('done')
```
